```python
import torch

def _softmax(x, axis=-1):
    return torch.softmax(x, dim=axis)
def _gelu(x):
    return torch.nn.functional.gelu(x, approximate="tanh")
def _silu(x):
    return torch.nn.functional.silu(x)
def _sigmoid(x):
    return torch.sigmoid(x)
def _layernorm(x, axis=-1, eps=1e-5):
    m = x.mean(dim=axis, keepdim=True)
    v = x.var(dim=axis, keepdim=True, unbiased=False)
    return (x - m) / torch.sqrt(v + eps)
def _scatter_add(tgt, idx, src, axis=0):
    return tgt.clone().index_add_(axis, idx, src)
def _segment_sum(src, seg, n):
    out = torch.zeros((n,) + src.shape[1:], dtype=src.dtype)
    return out.index_add_(0, seg, src)
def _pad(x, pw):
    flat = tuple(v for pair in reversed(pw) for v in pair)
    return torch.nn.functional.pad(x, flat)

kernel_name = 'standalone__gqa_block_cached__near_ridge'

def setup_inputs():

    _w = (lambda a: (lambda t: t.to(torch.bfloat16) if t.is_floating_point() else t)(torch.as_tensor(a)))
    B, Sq, D = 8, 80, 512
    Hq, Hkv, Sk, Dh = 32, 8, 1024, 128
    assert Hq % Hkv == 0, (Hq, Hkv)
    return {
        "x": _w((lambda *s: torch.randn(*s, dtype=torch.bfloat16) * 0.8)(B, Sq, D)),
        "k_cache": _w((lambda *s: torch.randn(*s, dtype=torch.bfloat16) * 0.8)(B, Hkv, Sk, Dh)),
        "v_cache": _w((lambda *s: torch.randn(*s, dtype=torch.bfloat16) * 0.05)(B, Hkv, Sk, Dh)),
        "wq": _w((lambda *s: torch.randn(*s, dtype=torch.bfloat16) * 0.8)(D, Hq * Dh) * (D ** -0.5)),
        "wo": _w((lambda *s: torch.randn(*s, dtype=torch.bfloat16) * 0.05)(Hq * Dh, D) * ((Hq * Dh) ** -0.5)),
    }

def reference(x, k_cache, v_cache, wq, wo):
    B, Sq, D = x.shape
    Hq, Dh = 32, 128
    Hkv = k_cache.shape[1]
    rep = Hq // Hkv
    q = (lambda x, *d: x.permute(*d))((x @ wq).reshape(B, Sq, Hq, Dh), 0, 2, 1, 3)
    k = (lambda x, n, axis: torch.repeat_interleave(x, n, dim=axis))(k_cache, rep, axis=1)
    v = (lambda x, n, axis: torch.repeat_interleave(x, n, dim=axis))(v_cache, rep, axis=1)
    scores = torch.einsum("bhqd,bhkd->bhqk", q, k) * (Dh ** -0.5)
    p = _softmax(scores, axis=-1)
    o = torch.einsum("bhqk,bhkd->bhqd", p, v)
    return (lambda x, *d: x.permute(*d))(o, 0, 2, 1, 3).reshape(B, Sq, Hq * Dh) @ wo
```

```python
class I:
    __slots__ = ('t', 'k', 'r', 'w', 'vmtag', 'needvm', 'needlg', 'lgtag', 'cr')
    def __init__(s, t, k, r=(), w=(), vmtag=None, needvm=(), lgtag=None, needlg=(), cr=()):
        s.t = t; s.k = k; s.r = set(r); s.w = set(w); s.vmtag = vmtag; s.needvm = tuple(needvm)
        s.lgtag = lgtag; s.needlg = tuple(needlg); s.cr = set(cr)

def R(f, a, n=1):
    return [(f, a + i) for i in range(n)]
def rs(f, a, n=1):
    return f"{f}{a}" if n == 1 else f"{f}[{a}:{a+n-1}]"

def mfma(d, a, b, c):
    ct = '0' if c == 0 else rs(c[0], c[1], 4)
    cr = [] if c == 0 else R(c[0], c[1], 4)
    return I(f"v_mfma_f32_16x16x32_bf16 {rs(d[0],d[1],4)}, {rs(a[0],a[1],4)}, {rs(b[0],b[1],4)}, {ct}", 'mfma',
             r=R(a[0],a[1],4)+R(b[0],b[1],4)+cr, w=R(d[0],d[1],4), cr=cr)
def valu(t, r=(), w=(), trans=False):
    return I(t, 'trans' if trans else 'valu', r=r, w=w)
def salu(t, r=(), w=()):
    return I(t, 'salu', r=r, w=w)
def dsrd(op, d, n, addr, off, needvm=(), lgtag=None):
    assert 0 <= off < 65536, off
    return I(f"{op} {rs(d[0],d[1],n)}, v{addr} offset:{off}", 'dsrd', r=[('v',addr)], w=R(d[0],d[1],n), needvm=needvm, lgtag=lgtag)
def dswr(op, addr, s, n, off, lgtag=None, needvm=()):
    assert 0 <= off < 65536, off
    return I(f"{op} v{addr}, {rs(s[0],s[1],n)} offset:{off}", 'dswr', r=[('v',addr)]+R(s[0],s[1],n), lgtag=lgtag, needvm=needvm)
def dma(vaddr, srd, soff, off, tag, needlg=(), flags=''):
    assert 0 <= off < 4096
    so = f"s{soff}" if soff is not None else '0'
    return I(f"buffer_load_dwordx4 v{vaddr}, s[{srd}:{srd+3}], {so} offen offset:{off}{flags} lds", 'vmem',
             r=[('v',vaddr), ('m0',0)] + R('s',srd,4) + ([('s',soff)] if soff is not None else []), vmtag=tag, needlg=needlg)
def vload(d, n, vaddr, srd, soff, off, flags='', tag=None):
    op = {1:'buffer_load_dword',2:'buffer_load_dwordx2',4:'buffer_load_dwordx4'}[n]
    so = f"s{soff}" if soff is not None else '0'
    return I(f"{op} {rs(d[0],d[1],n)}, v{vaddr}, s[{srd}:{srd+3}], {so} offen offset:{off}{flags}", 'vmem',
             r=[('v',vaddr)] + R('s',srd,4) + ([('s',soff)] if soff is not None else []), w=R(d[0],d[1],n), vmtag=tag)
def vstore(s, n, vaddr, srd, soff, off, flags='', tag=None):
    op = {1:'buffer_store_dword',2:'buffer_store_dwordx2',4:'buffer_store_dwordx4'}[n]
    so = f"s{soff}" if soff is not None else '0'
    return I(f"{op} {rs(s[0],s[1],n)}, v{vaddr}, s[{srd}:{srd+3}], {so} offen offset:{off}{flags}", 'vmem',
             r=[('v',vaddr)] + R(s[0],s[1],n) + R('s',srd,4) + ([('s',soff)] if soff is not None else []), vmtag=tag)
def barrier(needvm=(), lg0=True):
    return I("s_barrier", 'barrier', needvm=needvm, needlg=('*',) if lg0 else ())
def raw(t, k='salu'):
    return I(t, k)

class Seg:
    def __init__(s):
        s.vm = []
        s.lg = []
        s.hist = []
        s.out = []
    def reset_hist(s):
        s.hist = []
    def _emit(s, ins, states=1):
        s.out.append(ins.t)
        s.hist.append((ins, states))
        if len(s.hist) > 40: s.hist.pop(0)
    def _need_states(s, ins):
        need = 0
        dist = 0
        touch = ins.r | ins.w
        for p, st in reversed(s.hist):
            req = 0
            if p.k == 'mfma':
                if ins.k == 'mfma':
                    ab = ins.r - ins.cr
                    if p.w & ab: req = max(req, 8)
                    if p.w & ins.cr and p.w != ins.cr: req = max(req, 6)
                    if (p.w & ins.w) and not (p.w == ins.w and p.w == ins.cr): req = max(req, 8)
                elif ins.k in ('valu', 'trans', 'dsrd', 'dswr', 'vmem'):
                    if p.w & touch: req = max(req, 8)
                    if ins.k in ('valu', 'trans') and (p.cr & ins.w): req = max(req, 3)
            elif p.k in ('valu', 'trans'):
                vw = {x for x in p.w if x[0] in 'va'}
                sw = {x for x in p.w if x[0] == 's' or x[0] == 'vcc'}
                if ins.k == 'mfma' and (vw & ins.r): req = max(req, 2)
                if p.k == 'trans' and ins.k == 'valu' and (vw & ins.r): req = max(req, 1)
                if ins.k == 'vmem' and (sw & ins.r): req = max(req, 5)
                if ins.k in ('valu', 'trans') and (sw & ins.r): req = max(req, 2)
                if ins.k in ('valu',) and ('readfirstlane' in ins.t or 'readlane' in ins.t) and (vw & ins.r): req = max(req, 1)
                if ins.k == 'valu' and ('permlane' in ins.t or 'dpp' in ins.t or 'row_' in ins.t) and (vw & ins.r): req = max(req, 2)
                if ins.k == 'salu' and (sw & ins.r): req = max(req, 2)
            elif p.k == 'salu':
                if ('m0', 0) in p.w and ins.k == 'vmem' and ('m0', 0) in ins.r: req = max(req, 1)
            elif p.k == 'vmem':
                if 'store_dwordx4' in p.t and ins.k in ('valu', 'trans', 'mfma', 'dsrd') and (p.r & ins.w): req = max(req, 2)
            elif p.k == 'dswr':
                if 'b128' in p.t and ins.k in ('valu', 'trans') and (p.r & ins.w): req = max(req, 2)
            need = max(need, req - dist)
            dist += st
            if dist >= 12: break
        return need
    def add(s, ins):
        touch = ins.r | ins.w
        vmn = None
        for i, (tag, w) in enumerate(s.vm):
            if (tag is not None and tag in ins.needvm) or (w & touch) or ('*' in ins.needvm):
                vmn = len(s.vm) - 1 - i
        lgn = None
        for i, (tag, w) in enumerate(s.lg):
            if (tag is not None and tag in ins.needlg) or (w & touch) or ('*' in ins.needlg):
                lgn = len(s.lg) - 1 - i
        if vmn is not None or lgn is not None:
            parts = []
            if vmn is not None:
                vmn = min(vmn, 63); parts.append(f"vmcnt({vmn})"); s.vm = s.vm[len(s.vm)-vmn:] if vmn else []
            if lgn is not None:
                lgn = min(lgn, 15); parts.append(f"lgkmcnt({lgn})"); s.lg = s.lg[len(s.lg)-lgn:] if lgn else []
            s._emit(I("s_waitcnt " + " ".join(parts), 'wait'))
        if ins.k == 'vmem' and len(s.vm) >= 62:
            s._emit(I("s_waitcnt vmcnt(48)", 'wait')); s.vm = s.vm[len(s.vm)-48:]
        n = s._need_states(ins)
        if n > 0:
            s._emit(I(f"s_nop {n-1}", 'nop'), n)
        s._emit(ins)
        if ins.k == 'vmem':
            s.vm.append((ins.vmtag, set(ins.w)))
            assert len(s.vm) <= 63, "too many outstanding vmem"
        if ins.k in ('dsrd', 'dswr'):
            s.lg.append((ins.lgtag, set(ins.w)))
    def addall(s, l):
        for x in l: s.add(x)
    def text(s, t):
        s.out.append(t)
    def drain(s):
        s._emit(I("s_waitcnt vmcnt(0) lgkmcnt(0)", 'wait')); s.vm = []; s.lg = []

def interleave(mf, gaps):
    out = []
    for i, m in enumerate(mf):
        out.append(m)
        out += gaps[i]
    return out
```

```python
import sys, struct
from dsl import *

KB = 1024
NAME = 'standalone__gqa_block_cached__near_ridge'
def f2h(x): return hex(struct.unpack('<I', struct.pack('<f', x))[0])
QSCALE = 1.4426950408889634 / (128 ** 0.5)
WS_O = 0
WS_WO = 8 << 20

class Opt:
    kv_flags = ''
    a_flags = ''
    unroll = True
opt = Opt()

S_X, S_WQ, S_K, S_V, S_O, S_WO, S_WT = 4, 8, 12, 16, 20, 24, 28
S_W, S_B, S_HKV, S_HQ = 32, 33, 34, 35
S_W1K, S_W8K, S_SO, S_T0, S_T1, S_T2 = 36, 37, 38, 39, 40, 41
S_XQ = 44
S_REDO = 50
V_LANE, V_N, V_G, V_T0, V_T1, V_T2, V_T3, V_T4 = 1, 2, 3, 4, 5, 6, 7, 8
V_KA, V_VA, V_KD, V_VD = 10, 14, 22, 26
V_OST, V_CW, V_LW = 28, 29, 31
V_ONES, V_NEGM, V_L, V_S, V_P, V_KF, V_VF = 32, 36, 56, 76, 92, 100, 164
V_XA, V_XB, V_WA, V_WB, V_XD, V_WD, V_QW = 228, 232, 236, 238, 240, 241, 242
V_CR = 244
V_LR = 250
A_O, A_Q = 0, 160
def AO(lam, q): return ('a', A_O + 4 * (q * 8 + lam))
def AQ(q, s): return ('a', A_Q + 4 * (q * 4 + s))

def XU(c, q):
    if c == 0: return q * 4 * KB
    if c == 1: return 20 * KB + q * 4 * KB
    if c == 2: return 128 * KB + q * 4 * KB
    return [120, 124, 148, 152, 156][q] * KB
def WU(slot, ks):
    return {0: [40, 48], 1: [56, 96], 2: [104, 112], 3: [64, 72], 4: [80, 88]}[slot][ks] * KB
WSLOT = [0, 1, 2, 3, 4, 0, 1, 2]
QBUF = 128 * KB

def V(t, r=(), w=()):
    return valu(t, r=[('v', x) if isinstance(x, int) else x for x in r], w=[('v', x) if isinstance(x, int) else x for x in w])
def S(t, r=(), w=()):
    return salu(t, r=[('s', x) if isinstance(x, int) else x for x in r], w=[('s', x) if isinstance(x, int) else x for x in w])
M0 = ('m0', 0)

def srd(dst, plo, add_s=None, add_imm=0, size=0):
    o = []
    if add_s is not None:
        o.append(S(f"s_add_u32 s{dst}, s{plo}, s{add_s}", [plo, add_s], [dst]))
        o.append(S(f"s_addc_u32 s{dst+1}, s{plo+1}, 0", [plo+1], [dst+1]))
    elif add_imm:
        o.append(S(f"s_add_u32 s{dst}, s{plo}, {add_imm}", [plo], [dst]))
        o.append(S(f"s_addc_u32 s{dst+1}, s{plo+1}, 0", [plo+1], [dst+1]))
    else:
        o.append(S(f"s_mov_b32 s{dst}, s{plo}", [plo], [dst]))
        o.append(S(f"s_mov_b32 s{dst+1}, s{plo+1}", [plo+1], [dst+1]))
    o.append(S(f"s_and_b32 s{dst+1}, s{dst+1}, 0xffff", [dst+1], [dst+1]))
    if isinstance(size, str):
        o.append(S(f"s_mov_b32 s{dst+2}, {size}", [int(size[1:])], [dst+2]))
    else:
        o.append(S(f"s_mov_b32 s{dst+2}, {size}", [], [dst+2]))
    o.append(S(f"s_mov_b32 s{dst+3}, 0x20000", [], [dst+3]))
    return o

def x_dma(c):
    o = []
    for q in range(5):
        o.append(S(f"s_add_u32 m0, s{S_W1K}, {XU(c,q) - c*256 if XU(c,q) >= c*256 else 'ERR'}", [S_W1K], [M0]))
        o.append(dma(V_XD, S_X, S_XQ + q, c * 256, ('x', c), flags=opt.a_flags))
    return o
def w_dma(u):
    o = []
    for k in range(4):
        o.append(S(f"s_mov_b32 s{S_SO}, {u*524288 + k*131072}", [], [S_SO]))
        o.append(S(f"s_add_u32 m0, s{S_W1K}, {WU(WSLOT[u], k>>1) + (k&1)*4*KB}", [S_W1K], [M0]))
        o.append(dma(V_WD, S_WQ, S_SO, 0, ('w', u), flags=opt.a_flags))
    return o
def kv_dma(kind, i):
    o = []
    base = (i & 1) * 32 * KB + (0 if kind == 'k' else 64 * KB)
    sr = S_K if kind == 'k' else S_V
    so = S_T0 if kind == 'k' else S_T1
    for j in range(8):
        pre = []
        if j % 4 == 0:
            pre.append(S(f"s_mov_b32 s{so}, {i*8192 + (j>>2)*4096}", [], [so]))
        pre.append(S(f"s_add_u32 m0, s{S_W8K}, {base + (j>>2)*4096}", [S_W8K], [M0]))
        va = V_KD + (j & 3) if kind == 'k' else V_VD + (j & 1)
        need = [(kind + 'r', i - 2, j >> 2)]
        pre.append(dma(va, sr, so, 1024 * (j & 3), (kind, i, j >> 2), needlg=need, flags=opt.kv_flags))
        o.append(pre)
    return o
def k_reads(i):
    o = []
    for t in range(2):
        for s in range(4):
            o.append(dsrd('ds_read_b128', ('v', V_KF + (i & 1) * 32 + (t * 4 + s) * 4), 4, V_KA + s, (i & 1) * 32 * KB + t * 4096,
                          needvm=[('k', i, t)], lgtag=('kr', i, t)))
    return o
def v_reads(i):
    o = []
    for h in range(2):
        for lam in range(8):
            o.append(dsrd('ds_read_b64_tr_b16', ('v', V_VF + (i & 1) * 32 + lam * 4 + h * 2), 2, V_VA + lam, (i & 1) * 32 * KB + h * 4096,
                          needvm=[('v', i, h)], lgtag=('vr', i, h)))
    return o

def prologue1():
    o = []
    a = o.append
    a(raw("s_load_dwordx4 s[52:55], s[0:1], 0"))
    a(raw("s_load_dwordx4 s[56:59], s[0:1], 16"))
    a(raw("s_load_dwordx2 s[60:61], s[0:1], 32"))
    a(raw("s_load_dwordx2 s[62:63], s[0:1], 56"))
    a(V(f"v_lshrrev_b32 v{V_T0}, 6, v0", [0], [V_T0]))
    a(V(f"v_and_b32 v{V_LANE}, 63, v0", [0], [V_LANE]))
    a(V(f"v_readfirstlane_b32 s{S_W}, v{V_T0}", [V_T0], [('s', S_W)]))
    a(S(f"s_and_b32 s{S_HKV}, s2, 7", [2], [S_HKV]))
    a(S(f"s_lshr_b32 s{S_B}, s2, 5", [2], [S_B]))
    a(S(f"s_lshr_b32 s{S_T0}, s2, 3", [2], [S_T0]))
    a(S(f"s_and_b32 s{S_T0}, s{S_T0}, 3", [S_T0], [S_T0]))
    a(S(f"s_lshl_b32 s{S_HQ}, s{S_HKV}, 2", [S_HKV], [S_HQ]))
    a(S(f"s_add_u32 s{S_HQ}, s{S_HQ}, s{S_T0}", [S_HQ, S_T0], [S_HQ]))
    a(S(f"s_lshl_b32 s{S_W1K}, s{S_W}, 10", [S_W], [S_W1K]))
    a(S(f"s_lshl_b32 s{S_W8K}, s{S_W}, 13", [S_W], [S_W8K]))
    for q in range(5):
        a(S(f"s_mov_b32 s{S_XQ+q}, {q*16384}", [], [S_XQ+q]))
    a(V(f"v_and_b32 v{V_N}, 15, v{V_LANE}", [V_LANE], [V_N]))
    a(V(f"v_lshrrev_b32 v{V_G}, 4, v{V_LANE}", [V_LANE], [V_G]))
    a(V(f"v_lshl_add_u32 v{V_T0}, s{S_W}, 2, v{V_G}", [V_G, ('s', S_W)], [V_T0]))
    a(V(f"v_xor_b32 v{V_T1}, v{V_N}, v{V_T0}", [V_N, V_T0], [V_T1]))
    a(V(f"v_lshlrev_b32 v{V_T1}, 4, v{V_T1}", [V_T1], [V_T1]))
    a(V(f"v_lshl_add_u32 v{V_XD}, v{V_T0}, 10, v{V_T1}", [V_T0, V_T1], [V_XD]))
    a(S(f"s_lshr_b32 s{S_T0}, s{S_W}, 1", [S_W], [S_T0]))
    a(S(f"s_lshl_b32 s{S_T0}, s{S_T0}, 3", [S_T0], [S_T0]))
    a(V(f"v_lshl_add_u32 v{V_T1}, v{V_G}, 1, s{S_T0}", [V_G, ('s', S_T0)], [V_T1]))
    a(V(f"v_xor_b32 v{V_T1}, v{V_N}, v{V_T1}", [V_N, V_T1], [V_T1]))
    a(V(f"v_lshlrev_b32 v{V_T1}, 4, v{V_T1}", [V_T1], [V_T1]))
    a(V(f"v_lshl_add_u32 v{V_WD}, v{V_T0}, 13, v{V_T1}", [V_T0, V_T1], [V_WD]))
    a(raw("s_waitcnt lgkmcnt(0)", 'wait'))
    a(S(f"s_mul_i32 s{S_T0}, s{S_B}, 81920", [S_B], [S_T0]))
    o += srd(S_X, 52, add_s=S_T0, size=81920)
    a(S(f"s_lshl_b32 s{S_T0}, s{S_HQ}, 8", [S_HQ], [S_T0]))
    a(S(f"s_sub_u32 s{S_T1}, 4194304, s{S_T0}", [S_T0], [S_T1]))
    o += srd(S_WQ, 58, add_s=S_T0, size=f"s{S_T1}")
    return o

def prologue2():
    o = []
    a = o.append
    a(S(f"s_lshl_b32 s{S_T0}, s{S_B}, 3", [S_B], [S_T0]))
    a(S(f"s_add_u32 s{S_T0}, s{S_T0}, s{S_HKV}", [S_T0, S_HKV], [S_T0]))
    a(S(f"s_lshl_b32 s{S_T0}, s{S_T0}, 2", [S_T0], [S_T0]))
    a(S(f"s_add_u32 s{S_T0}, s{S_T0}, s{S_W}", [S_T0, S_W], [S_T0]))
    a(S(f"s_lshl_b32 s{S_T0}, s{S_T0}, 16", [S_T0], [S_T0]))
    o += srd(S_K, 54, add_s=S_T0, size=65536)
    o += srd(S_V, 56, add_s=S_T0, size=65536)
    o += srd(S_O, 62, size=8*5*128*1024)
    o += srd(S_WO, 60, size=4194304)
    o += srd(S_WT, 62, add_imm=WS_WO, size=4194304)
    a(S(f"s_mov_b32 s{S_REDO}, 0", [], [S_REDO]))
    for s in range(4):
        a(V(f"v_add_u32 v{V_T0}, {4*s}, v{V_G}", [V_G], [V_T0]))
        a(V(f"v_xor_b32 v{V_T0}, v{V_T0}, v{V_N}", [V_T0, V_N], [V_T0]))
        a(V(f"v_lshlrev_b32 v{V_T0}, 4, v{V_T0}", [V_T0], [V_T0]))
        a(V(f"v_lshl_add_u32 v{V_XA+s}, v{V_N}, 8, v{V_T0}", [V_N, V_T0], [V_XA+s]))
        a(V(f"v_add_u32 v{V_XB+s}, {120*KB}, v{V_XA+s}", [V_XA+s], [V_XB+s]))
        a(V(f"v_add_u32 v{V_KA+s}, s{S_W8K}, v{V_XA+s}", [V_XA+s, ('s', S_W8K)], [V_KA+s]))
    a(V(f"v_lshrrev_b32 v{V_T2}, 2, v{V_N}", [V_N], [V_T2]))
    a(V(f"v_bfe_u32 v{V_T3}, v{V_N}, 1, 1", [V_N], [V_T3]))
    a(V(f"v_and_b32 v{V_T4}, 1, v{V_N}", [V_N], [V_T4]))
    a(V(f"v_lshlrev_b32 v{V_T4}, 3, v{V_T4}", [V_T4], [V_T4]))
    a(V(f"v_and_b32 v9, 1, v{V_G}", [V_G], [9]))
    a(V(f"v_lshl_add_u32 v9, v9, 2, v{V_T2}", [9, V_T2], [9]))
    a(V(f"v_lshlrev_b32 v9, 1, v9", [9], [9]))
    a(S(f"s_lshl_b32 s{S_T1}, s{S_W}, 2", [S_W], [S_T1]))
    for e in range(2):
        a(V(f"v_add_u32 v{V_T0}, s{S_T1}, v{V_T3}", [V_T3, ('s', S_T1)], [V_T0]))
        if e: a(V(f"v_add_u32 v{V_T0}, 2, v{V_T0}", [V_T0], [V_T0]))
        a(V(f"v_xor_b32 v{V_T0}, v{V_T0}, v9", [V_T0, 9], [V_T0]))
        a(V(f"v_lshl_add_u32 v{V_T0}, v{V_T0}, 4, v{V_T4}", [V_T0, V_T4], [V_T0]))
        a(V(f"v_lshl_add_u32 v{V_T1}, v{V_G}, 3, v{V_T2}", [V_G, V_T2], [V_T1]))
        a(V(f"v_lshl_add_u32 v{V_T0}, v{V_T1}, 8, v{V_T0}", [V_T0, V_T1], [V_T0]))
        a(V(f"v_add_u32 v{V_WA+e}, {40*KB}, v{V_T0}", [V_T0], [V_WA+e]))
        a(V(f"v_add_u32 v{V_WB+e}, {96*KB}, v{V_T0}", [V_T0], [V_WB+e]))
    a(V(f"v_lshl_add_u32 v{V_T1}, v{V_G}, 2, v{V_T2}", [V_G, V_T2], [V_T1]))
    a(V(f"v_lshl_add_u32 v{V_T1}, v{V_T1}, 8, v{V_T4}", [V_T1, V_T4], [V_T1]))
    a(S(f"s_add_u32 s{S_T2}, s{S_W8K}, {64*KB}", [S_W8K], [S_T2]))
    a(V(f"v_add_u32 v{V_T1}, s{S_T2}, v{V_T1}", [V_T1, ('s', S_T2)], [V_T1]))
    for lam in range(8):
        a(S(f"s_add_u32 s{S_T0}, s{S_T1}, {2*lam}", [S_T1], [S_T0]))
        a(S(f"s_and_b32 s{S_T0}, s{S_T0}, 15", [S_T0], [S_T0]))
        a(V(f"v_add_u32 v{V_T0}, s{S_T0}, v{V_T3}", [V_T3, ('s', S_T0)], [V_T0]))
        a(V(f"v_xor_b32 v{V_T0}, v{V_T0}, v9", [V_T0, 9], [V_T0]))
        a(V(f"v_lshl_add_u32 v{V_VA+lam}, v{V_T0}, 4, v{V_T1}", [V_T0, V_T1], [V_VA+lam]))
    for j in range(4):
        a(V(f"v_xor_b32 v{V_T0}, v{V_N}, v{V_G}", [V_N, V_G], [V_T0]))
        if j: a(V(f"v_xor_b32 v{V_T0}, {4*j}, v{V_T0}", [V_T0], [V_T0]))
        a(V(f"v_lshlrev_b32 v{V_T0}, 4, v{V_T0}", [V_T0], [V_T0]))
        a(V(f"v_lshl_add_u32 v{V_KD+j}, v{V_G}, 8, v{V_T0}", [V_G, V_T0], [V_KD+j]))
    for j in range(2):
        a(V(f"v_lshlrev_b32 v{V_T0}, 1, v{V_G}", [V_G], [V_T0]))
        a(V(f"v_xor_b32 v{V_T0}, v{V_N}, v{V_T0}", [V_N, V_T0], [V_T0]))
        if j: a(V(f"v_xor_b32 v{V_T0}, 8, v{V_T0}", [V_T0], [V_T0]))
        a(V(f"v_lshlrev_b32 v{V_T0}, 4, v{V_T0}", [V_T0], [V_T0]))
        a(V(f"v_lshl_add_u32 v{V_VD+j}, v{V_G}, 8, v{V_T0}", [V_G, V_T0], [V_VD+j]))
    for e in range(2):
        a(V(f"v_lshrrev_b32 v{V_T0}, 1, v{V_G}", [V_G], [V_T0]))
        a(V(f"v_add_u32 v{V_T0}, s{S_T1}, v{V_T0}", [V_T0, ('s', S_T1)], [V_T0]))
        if e: a(V(f"v_add_u32 v{V_T0}, 2, v{V_T0}", [V_T0], [V_T0]))
        a(V(f"v_xor_b32 v{V_T0}, v{V_T0}, v{V_N}", [V_T0, V_N], [V_T0]))
        a(V(f"v_lshlrev_b32 v{V_T0}, 4, v{V_T0}", [V_T0], [V_T0]))
        a(V(f"v_lshl_add_u32 v{V_T0}, v{V_N}, 8, v{V_T0}", [V_N, V_T0], [V_T0]))
        a(V(f"v_and_b32 v{V_T1}, 1, v{V_G}", [V_G], [V_T1]))
        a(V(f"v_lshl_add_u32 v{V_T0}, v{V_T1}, 3, v{V_T0}", [V_T0, V_T1], [V_T0]))
        a(V(f"v_add_u32 v{V_QW+e}, {QBUF}, v{V_T0}", [V_T0], [V_QW+e]))
    a(V(f"v_lshlrev_b32 v{V_T0}, 4, v{V_LANE}", [V_LANE], [V_T0]))
    a(V(f"v_add_u32 v{V_CW}, s{S_W8K}, v{V_T0}", [V_T0, ('s', S_W8K)], [V_CW]))
    a(V(f"v_add_u32 v{V_CW+1}, {64*KB}, v{V_CW}", [V_CW], [V_CW+1]))
    for jd in range(1, 4):
        a(S(f"s_sub_u32 s{S_T0}, s{S_W}, {jd}", [S_W], [S_T0]))
        a(S(f"s_and_b32 s{S_T0}, s{S_T0}, 3", [S_T0], [S_T0]))
        a(S(f"s_lshl_b32 s{S_T0}, s{S_T0}, 13", [S_T0], [S_T0]))
        a(V(f"v_add_u32 v{V_CR+2*(jd-1)}, s{S_T0}, v{V_T0}", [V_T0, ('s', S_T0)], [V_CR+2*(jd-1)]))
        a(V(f"v_add_u32 v{V_CR+2*(jd-1)+1}, {64*KB}, v{V_CR+2*(jd-1)}", [V_CR+2*(jd-1)], [V_CR+2*(jd-1)+1]))
    a(S(f"s_add_u32 s{S_T0}, s{S_W8K}, {102*KB}", [S_W8K], [S_T0]))
    a(V(f"v_lshl_add_u32 v{V_LW}, v{V_LANE}, 5, s{S_T0}", [V_LANE, ('s', S_T0)], [V_LW]))
    a(S(f"s_mov_b32 s{S_T0}, {102*KB}", [], [S_T0]))
    a(V(f"v_lshl_add_u32 v{V_LR}, v{V_N}, 5, s{S_T0}", [V_N, ('s', S_T0)], [V_LR]))
    a(S(f"s_mul_i32 s{S_T0}, s{S_B}, 640", [S_B], [S_T0]))
    a(S(f"s_lshl_b32 s{S_T2}, s{S_HQ}, 2", [S_HQ], [S_T2]))
    a(S(f"s_add_u32 s{S_T0}, s{S_T0}, s{S_T2}", [S_T0, S_T2], [S_T0]))
    a(S(f"s_add_u32 s{S_T0}, s{S_T0}, s{S_W}", [S_T0, S_W], [S_T0]))
    a(S(f"s_lshl_b32 s{S_T0}, s{S_T0}, 10", [S_T0], [S_T0]))
    a(V(f"v_lshl_add_u32 v{V_OST}, v{V_LANE}, 4, s{S_T0}", [V_LANE, ('s', S_T0)], [V_OST]))
    a(V(f"v_cmp_eq_u32 vcc, 0, v{V_N}", [V_N], [('vcc', 0)]))
    a(V(f"v_mov_b32 v{V_T0}, 0x3f803f80", [], [V_T0]))
    for i in range(4):
        a(V(f"v_cndmask_b32 v{V_ONES+i}, 0, v{V_T0}, vcc", [V_T0, ('vcc', 0)], [V_ONES+i]))
    for i in range(20):
        a(V(f"v_mov_b32 v{V_NEGM+i}, 0", [], [V_NEGM+i]))
    return o

def zero_acc():
    o = []
    for i in range(160):
        o.append(V(f"v_accvgpr_write_b32 a{A_O+i}, 0", [], [('a', A_O+i)]))
    for i in range(20):
        o.append(V(f"v_mov_b32 v{V_L+i}, 0", [], [V_L+i]))
    return o

V_QACC = V_VF
V_XF = V_KF
V_WF = V_KF + 40
def a_reads(kap):
    u, ks = kap >> 1, kap & 1
    c, s = u >> 1, kap & 3
    o = []
    wb = WU(WSLOT[u], ks)
    for e in range(2):
        for h in range(2):
            reg, base = (V_WA, 40 * KB) if wb < 96 * KB else (V_WB, 96 * KB)
            o.append(dsrd('ds_read_b64_tr_b16', ('v', V_WF + (kap & 1) * 8 + e * 4 + h * 2), 2, reg + e, wb - base + h * 1024))
    for q in range(5):
        xb = XU(c, q)
        reg, base = (V_XA, 0) if xb < 64 * KB else (V_XB, 120 * KB)
        o.append(dsrd('ds_read_b128', ('v', V_XF + (kap & 1) * 20 + q * 4), 4, reg + s, xb - base))
    return o
def a_mfmas(kap):
    o = []
    for q in range(5):
        for e in range(2):
            d = ('v', V_QACC + (e * 5 + q) * 4)
            o.append(mfma(d, ('v', V_WF + (kap & 1) * 8 + e * 4), ('v', V_XF + (kap & 1) * 20 + q * 4), 0 if kap == 0 else d))
    return o
def flat(l): return [x for y in l for x in y]
def phase_a(sg):
    after = {1: w_dma(5), 2: w_dma(6), 3: w_dma(7), 4: flat(kv_dma('k', 0)), 5: flat(kv_dma('v', 0)), 7: flat(kv_dma('k', 1))}
    sg.add(barrier(needvm=[('x', 0), ('w', 0)]))
    sg.addall(a_reads(0))
    for kap in range(16):
        mf = a_mfmas(kap)
        gaps = [[] for _ in mf]
        extra = []
        if kap < 15:
            nx = kap + 1
            if nx % 2 == 0:
                u = nx >> 1
                sg.add(barrier(needvm=[('x', u >> 1), ('w', u)]))
                extra = after.get(u, [])
            rd = a_reads(nx)
            for i, r in enumerate(rd): gaps[i].append(r)
        if extra:
            grp, cur = [], []
            for x in extra:
                cur.append(x)
                if x.k == 'vmem': grp.append(cur); cur = []
            for i, gq in enumerate(grp): gaps[min(9, i + 1)] += gq
        sg.addall(interleave(mf, gaps))
    sg.add(S(f"s_mov_b32 s{S_T2}, {f2h(QSCALE)}", [], [S_T2]))
    for q in range(5):
        for e in range(2):
            b = V_QACC + (e * 5 + q) * 4
            for r in range(4):
                sg.add(V(f"v_mul_f32 v{b+r}, s{S_T2}, v{b+r}", [b+r, ('s', S_T2)], [b+r]))
            sg.add(V(f"v_cvt_pk_bf16_f32 v{b}, v{b}, v{b+1}", [b, b+1], [b]))
            sg.add(V(f"v_cvt_pk_bf16_f32 v{b+1}, v{b+2}, v{b+3}", [b+2, b+3], [b+1]))
            sg.add(dswr('ds_write_b64', V_QW + e, ('v', b), 2, q * 4096))
    sg.add(barrier())
    qr = []
    for q in range(5):
        for s in range(4):
            qr.append(dsrd('ds_read_b128', AQ(q, s), 4, V_XB + s, QBUF - 120 * KB + q * 4096))
    sg.addall(qr[:4])
    sg.addall(k_reads(0))
    sg.addall(flat(kv_dma('v', 1)))
    sg.addall(qr[4:])

def qk(tau):
    i, q = divmod(tau, 5)
    o = []
    for s in range(4):
        for t in range(2):
            d = ('v', V_S + (tau & 1) * 8 + t * 4)
            o.append(mfma(d, ('v', V_KF + (i & 1) * 32 + (t * 4 + s) * 4), AQ(q, s), ('v', V_NEGM + q * 4) if s == 0 else d))
    return o
def pv(tau):
    i, q = divmod(tau, 5)
    p = ('v', V_P + (tau & 1) * 4)
    o = [mfma(AO(lam, q), ('v', V_VF + (i & 1) * 32 + lam * 4), p, AO(lam, q)) for lam in range(8)]
    o.append(mfma(('v', V_L + q * 4), ('v', V_ONES), p, ('v', V_L + q * 4)))
    return o
def sm(tau):
    b = V_S + (tau & 1) * 8
    p = V_P + (tau & 1) * 4
    e = [valu(f"v_exp_f32 v{b+i}, v{b+i}", [('v', b+i)], [('v', b+i)], trans=True) for i in range(8)]
    c = [V(f"v_cvt_pk_bf16_f32 v{p+i}, v{b+2*i}, v{b+2*i+1}", [b+2*i, b+2*i+1], [p+i]) for i in range(4)]
    return e, c
def comb_writes(q):
    o = []
    for jd in range(1, 4):
        for e in range(2):
            u = q * 6 + (jd - 1) * 2 + e
            row = u >> 3
            o.append(dswr('ds_write_b128', V_CW + (row >> 1), AO(2 * jd + e, q), 4, (row & 1) * 32 * KB + (u & 7) * KB))
    return o
def phase_b(sg):
    NT = 8
    for tau in range(-1, 41):
        i, q = divmod(tau, 5) if tau >= 0 else (-1, 4)
        mf = []
        if tau + 1 < 40: mf += qk(tau + 1)
        if tau - 1 >= 0: mf += pv(tau - 1)
        mem = []
        if 0 <= i < NT:
            kr = k_reads(i + 1) if i + 1 < NT else []
            vr = v_reads(i + 1) if i + 1 < NT else []
            kd = kv_dma('k', i + 3) if i + 3 < NT else []
            vd = kv_dma('v', i + 3) if i + 3 < NT else []
            if q == 0: mem = [[x] for x in kr[:4]]
            if q == 1: mem = flat([[[a], b] for a, b in zip(kr[4:], kd[:4])]) if kd else [[x] for x in kr[4:]]
            if q == 2:
                mem = []
                for n_ in range(4):
                    mem += [[x] for x in vr[2*n_:2*n_+2]]
                    if kd: mem.append(kd[4 + n_])
            if q == 3:
                mem = []
                for n_ in range(4):
                    mem += [[x] for x in vr[8+2*n_:8+2*n_+2]]
                    if vd: mem.append(vd[n_])
            if q == 4: mem = vd[4:]
            if i == NT - 1 and q >= 2: mem = [[x] for x in comb_writes(q - 2)]
        if tau == -1:
            mem = [[x] for x in v_reads(0)] + kv_dma('k', 2)
        if tau == 0:
            mem = mem + kv_dma('v', 2)
        if tau == 40:
            mem = [[x] for x in comb_writes(3)]
        n = len(mf)
        gaps = [[] for _ in range(n)]
        if 0 <= tau < 40:
            e, c = sm(tau)
            epos = [0, 2, 4, 6, 8, 10, 12, 14]
            cpos = [3, 7, 11, 15]
            if n < 17:
                epos = list(range(8)); cpos = [min(n - 1, x) for x in (2, 4, 6, 8)]
            free = [x for x in range(n) if x not in epos]
            if len(free) < 4: free = list(range(n))
        else:
            e, c, epos, cpos = [], [], [], []
            free = list(range(n))
        for k_, gq in enumerate(mem):
            gaps[free[(k_ * len(free)) // len(mem)]] += gq
        for x, p_ in zip(e, epos): gaps[p_].append(x)
        for x, p_ in zip(c, cpos): gaps[p_].append(x)
        sg.addall(interleave(mf, gaps))

def combine(sg):
    sg.addall(comb_writes(4))
    for q in range(5):
        sg.add(dswr('ds_write_b32', V_LW, ('v', V_L + q * 4), 1, q * 4))
    OWN = 204
    for q in range(5):
        for e in range(2):
            for r in range(4):
                a_ = AO(e, q)[1] + r
                sg.add(V(f"v_accvgpr_read_b32 v{OWN + (q*2+e)*4 + r}, a{a_}", [('a', a_)], [OWN + (q*2+e)*4 + r]))
    sg.add(barrier())
    LS = 56
    for src in range(4):
        sg.add(dsrd('ds_read_b128', ('v', LS + src * 4), 4, V_LR, src * 8 * KB))
        sg.add(dsrd('ds_read_b32', ('v', LS + 16 + src), 1, V_LR, src * 8 * KB + 16))
    PR = 80
    for q in range(5):
        for jd in range(1, 4):
            for e in range(2):
                u = q * 6 + (jd - 1) * 2 + e
                row = u >> 3
                sg.add(dsrd('ds_read_b128', ('v', PR + u * 4), 4, V_CR + 2 * (jd - 1) + (row >> 1), (row & 1) * 32 * KB + (u & 7) * KB))
    RI = 36
    def lreg(src, q): return LS + src * 4 + q if q < 4 else LS + 16 + src
    for q in range(5):
        d = V_T0 + q
        sg.add(V(f"v_add_f32 v{d}, v{lreg(0,q)}, v{lreg(1,q)}", [lreg(0,q), lreg(1,q)], [d]))
        sg.add(V(f"v_add_f32 v{lreg(2,q)}, v{lreg(2,q)}, v{lreg(3,q)}", [lreg(2,q), lreg(3,q)], [lreg(2,q)]))
        sg.add(V(f"v_add_f32 v{d}, v{d}, v{lreg(2,q)}", [d, lreg(2,q)], [d]))
    for q in range(5):
        d = V_T0 + q
        sg.add(valu(f"v_rcp_f32 v{d}, v{d}", [('v', d)], [('v', d)], trans=True))
    for q in range(5):
        for e in range(2):
            o_ = OWN + (q * 2 + e) * 4
            for jd in range(1, 4):
                p_ = PR + (q * 6 + (jd - 1) * 2 + e) * 4
                for r in (0, 2):
                    sg.add(V(f"v_pk_add_f32 v[{o_+r}:{o_+r+1}], v[{o_+r}:{o_+r+1}], v[{p_+r}:{p_+r+1}]", [o_+r, o_+r+1, p_+r, p_+r+1], [o_+r, o_+r+1]))
            for r in range(4):
                sg.add(V(f"v_mul_f32 v{o_+r}, v{V_T0+q}, v{o_+r}", [o_+r, V_T0+q], [o_+r]))
        o_ = OWN + q * 8
        for r in range(4):
            sg.add(V(f"v_cvt_pk_bf16_f32 v{o_+r}, v{o_+2*r}, v{o_+2*r+1}", [o_+2*r, o_+2*r+1], [o_+r]))
        sg.add(S(f"s_mov_b32 s{S_SO}, {q*128*KB}", [], [S_SO]))
        sg.add(vstore(('v', o_), 4, V_OST, S_O, S_SO, 0))

def retile(sg):
    a = sg.add
    a(S(f"s_lshr_b32 s{S_T0}, s2, 1", [2], [S_T0]))
    a(S(f"s_and_b32 s{S_T1}, s2, 1", [2], [S_T1]))
    a(S(f"s_lshl_b32 s{S_T1}, s{S_T1}, 2", [S_T1], [S_T1]))
    a(S(f"s_add_u32 s{S_T1}, s{S_T1}, s{S_W}", [S_T1, S_W], [S_T1]))
    a(S(f"s_lshl_b32 s{S_T2}, s{S_T0}, 15", [S_T0], [S_T2]))
    a(S(f"s_lshl_b32 s{S_SO}, s{S_T1}, 7", [S_T1], [S_SO]))
    a(S(f"s_add_u32 s{S_T2}, s{S_T2}, s{S_SO}", [S_T2, S_SO], [S_T2]))
    a(V(f"v_lshrrev_b32 v{V_T0}, 3, v{V_LANE}", [V_LANE], [V_T0]))
    a(V(f"v_and_b32 v{V_T1}, 7, v{V_LANE}", [V_LANE], [V_T1]))
    a(V(f"v_lshlrev_b32 v{V_T1}, 4, v{V_T1}", [V_T1], [V_T1]))
    a(V(f"v_lshl_add_u32 v{V_T0}, v{V_T0}, 10, v{V_T1}", [V_T0, V_T1], [V_T0]))
    a(V(f"v_add_u32 v{V_T0}, s{S_T2}, v{V_T0}", [V_T0, ('s', S_T2)], [V_T0]))
    for i in range(4):
        a(S(f"s_mov_b32 s{S_SO}, {i*8192}", [], [S_SO]))
        a(S(f"s_add_u32 m0, s{S_W8K}, {128*KB + i*KB}", [S_W8K], [M0]))
        a(dma(V_T0, S_WO, S_SO, 0, 'wt'))
    a(V(f"v_lshrrev_b32 v{V_T1}, 2, v{V_N}", [V_N], [V_T1]))
    a(V(f"v_lshl_add_u32 v{V_T1}, v{V_G}, 2, v{V_T1}", [V_G, V_T1], [V_T1]))
    a(V(f"v_and_b32 v{V_T2}, 3, v{V_N}", [V_N], [V_T2]))
    a(V(f"v_lshlrev_b32 v{V_T2}, 3, v{V_T2}", [V_T2], [V_T2]))
    a(V(f"v_lshl_add_u32 v{V_T1}, v{V_T1}, 7, v{V_T2}", [V_T1, V_T2], [V_T1]))
    a(S(f"s_add_u32 s{S_SO}, s{S_W8K}, {128*KB}", [S_W8K], [S_SO]))
    a(V(f"v_add_u32 v{V_T1}, s{S_SO}, v{V_T1}", [V_T1, ('s', S_SO)], [V_T1]))
    for e in range(4):
        for h in range(2):
            a(dsrd('ds_read_b64_tr_b16', ('v', 80 + e * 4 + h * 2), 2, V_T1, h * 2048 + e * 32, needvm=['wt']))
    a(S(f"s_lshl_b32 s{S_T1}, s{S_T1}, 19", [S_T1], [S_T1]))
    a(S(f"s_lshl_b32 s{S_T0}, s{S_T0}, 10", [S_T0], [S_T0]))
    a(S(f"s_add_u32 s{S_T0}, s{S_T0}, s{S_T1}", [S_T0, S_T1], [S_T0]))
    a(V(f"v_lshl_add_u32 v{V_T2}, v{V_LANE}, 4, s{S_T0}", [V_LANE, ('s', S_T0)], [V_T2]))
    for e in range(4):
        a(S(f"s_mov_b32 s{S_SO}, {e*128*KB}", [], [S_SO]))
        a(vstore(('v', 80 + e * 4), 4, V_T2, S_WT, S_SO, 0))

def kernel1():
    sg = Seg()
    sg.text("attn_kernel:")
    sg.text("s_cmp_ge_u32 s2, 256")
    sg.text("s_cbranch_scc1 L1_end")
    sg.addall(prologue1())
    sg.addall(x_dma(0) + w_dma(0) + w_dma(1) + x_dma(1) + w_dma(2) + w_dma(3) + x_dma(2) + w_dma(4) + x_dma(3))
    sg.addall(prologue2())
    sg.addall(zero_acc())
    phase_a(sg)
    phase_b(sg)
    combine(sg)
    retile(sg)
    sg.text("L1_end:")
    sg.text("s_endpgm")
    return sg.out

def kernel2():
    sg = Seg()
    a = sg.add
    D = 10
    ACC, RING = 8, 32
    sg.text("proj_kernel:")
    sg.text("s_cmp_ge_u32 s2, 240")
    sg.text("s_cbranch_scc1 L2_end")
    a(raw("s_load_dwordx2 s[60:61], s[0:1], 40"))
    a(raw("s_load_dwordx2 s[62:63], s[0:1], 56"))
    a(V("v_lshrrev_b32 v4, 6, v0", [0], [4]))
    a(V("v_and_b32 v1, 63, v0", [0], [1]))
    a(V("v_readfirstlane_b32 s32, v4", [4], [('s', 32)]))
    a(S("s_and_b32 s33, s2, 7", [2], [33]))
    a(S("s_lshr_b32 s34, s2, 3", [2], [34]))
    a(S("s_mul_i32 s35, s34, 52", [34], [35]))
    a(S("s_lshr_b32 s35, s35, 8", [35], [35]))
    a(S("s_mul_i32 s36, s35, 5", [35], [36]))
    a(S("s_sub_u32 s36, s34, s36", [34, 36], [36]))
    a(S("s_lshr_b32 s37, s33, 1", [33], [37]))
    a(S("s_mul_i32 s37, s37, 5", [37], [37]))
    a(S("s_add_u32 s36, s36, s37", [36, 37], [36]))
    a(S("s_and_b32 s37, s33, 1", [33], [37]))
    a(S("s_mul_i32 s37, s37, 6", [37], [37]))
    a(S("s_add_u32 s35, s35, s37", [35, 37], [35]))
    sg.text("s_cmp_ge_u32 s35, 11")
    sg.text("s_cbranch_scc1 L2_end")
    a(raw("s_waitcnt lgkmcnt(0)", 'wait'))
    sg.addall(srd(4, 62, size=8*5*128*1024))
    sg.addall(srd(8, 62, add_imm=WS_WO, size=4194304))
    sg.addall(srd(12, 60, size=655360))
    a(S("s_lshl_b32 s38, s32, 15", [32], [38]))
    a(S("s_lshl_b32 s39, s36, 18", [36], [39]))
    a(S("s_add_u32 s39, s39, s38", [39, 38], [39]))
    a(V("v_lshl_add_u32 v2, v1, 4, s39", [1, ('s', 39)], [2]))
    a(V(f"v_add_u32 v3, {128*KB}, v2", [2], [3]))
    a(S(f"s_mul_i32 s39, s35, {3*128*KB}", [35], [39]))
    a(S("s_add_u32 s39, s39, s38", [39, 38], [39]))
    a(V("v_lshl_add_u32 v4, v1, 4, s39", [1, ('s', 39)], [4]))
    a(V(f"v_add_u32 v5, {128*KB}, v4", [4], [5]))
    a(V(f"v_add_u32 v6, {256*KB}, v4", [4], [6]))
    for i in range(8):
        a(S(f"s_mov_b32 s{40+i}, {i*4096}", [], [40+i]))
    def loads(ks):
        b = RING + (ks % D) * 20
        so, off = 40 + (ks >> 2), (ks & 3) * 1024
        return [vload(('v', b + 0), 4, 4, 8, so, off), vload(('v', b + 12), 4, 2, 4, so, off), vload(('v', b + 4), 4, 5, 8, so, off),
                vload(('v', b + 16), 4, 3, 4, so, off), vload(('v', b + 8), 4, 6, 8, so, off)]
    for ks in range(D): sg.addall(loads(ks))
    for ks in range(32):
        b = RING + (ks % D) * 20
        for e in range(3):
            for m in range(2):
                d = ('v', ACC + (e * 2 + m) * 4)
                a(mfma(d, ('v', b + e * 4), ('v', b + 12 + m * 4), 0 if ks == 0 else d))
        if ks + D < 32: sg.addall(loads(ks + D))
    a(S("s_mul_i32 s38, s32, 6144", [32], [38]))
    a(V("v_lshlrev_b32 v2, 4, v1", [1], [2]))
    a(V("v_add_u32 v3, s38, v2", [2, ('s', 38)], [3]))
    for t in range(6):
        a(dswr('ds_write_b128', 3, ('v', ACC + t * 4), 4, t * 1024))
    a(barrier())
    a(S("s_mul_i32 s39, s35, 3", [35], [39]))
    a(S("s_add_u32 s39, s39, s32", [39, 32], [39]))
    sg.text("s_cmp_ge_u32 s32, 3")
    sg.text("s_cbranch_scc1 L2_end")
    sg.text("s_cmp_ge_u32 s39, 32")
    sg.text("s_cbranch_scc1 L2_end")
    a(S("s_lshl_b32 s38, s32, 11", [32], [38]))
    a(V("v_add_u32 v3, s38, v2", [2, ('s', 38)], [3]))
    for m in range(2):
        for src in range(4):
            a(dsrd('ds_read_b128', ('v', 32 + (m * 4 + src) * 4), 4, 3, src * 6144 + m * 1024))
    a(V("v_and_b32 v4, 15, v1", [1], [4]))
    a(V("v_lshrrev_b32 v5, 4, v1", [1], [5]))
    a(V("v_lshlrev_b32 v5, 3, v5", [5], [5]))
    a(V("v_lshl_add_u32 v4, v4, 10, v5", [4, 5], [4]))
    a(S("s_lshl_b32 s38, s36, 15", [36], [38]))
    a(S("s_lshl_b32 s39, s39, 5", [39], [39]))
    a(S("s_add_u32 s38, s38, s39", [38, 39], [38]))
    a(V("v_add_u32 v4, s38, v4", [4, ('s', 38)], [4]))
    a(S("s_mov_b32 s40, 16384", [], [40]))
    for m in range(2):
        b = 32 + m * 16
        for src in range(1, 4):
            for r in range(4):
                a(V(f"v_add_f32 v{b+r}, v{b+r}, v{b+src*4+r}", [b+r, b+src*4+r], [b+r]))
        a(V(f"v_cvt_pk_bf16_f32 v{b}, v{b}, v{b+1}", [b, b+1], [b]))
        a(V(f"v_cvt_pk_bf16_f32 v{b+1}, v{b+2}, v{b+3}", [b+2, b+3], [b+1]))
        a(vstore(('v', b), 2, 4, 12, 40 if m else None, 0))
    sg.text("L2_end:")
    sg.text("s_endpgm")
    return sg.out

def desc(name, vgpr, acc):
    return f""".amdhsa_kernel {name}
  .amdhsa_next_free_vgpr {vgpr}
  .amdhsa_next_free_sgpr 102
  .amdhsa_accum_offset {acc}
  .amdhsa_group_segment_fixed_size 0
  .amdhsa_kernarg_size 64
  .amdhsa_user_sgpr_count 2
  .amdhsa_user_sgpr_kernarg_segment_ptr 1
  .amdhsa_system_sgpr_workgroup_id_x 1
  .amdhsa_float_denorm_mode_32 3
.end_amdhsa_kernel
"""
def build():
    def fmt(l): return "\n".join(x if x.endswith(':') else "    " + x for x in l)
    s = "; @launch kernel=attn_kernel grid=(256,1,1) block=(256,1,1) lds=163840\n"
    s += "; @launch kernel=proj_kernel grid=(240,1,1) block=(256,1,1) lds=24576\n"
    s += '.amdgcn_target "amdgcn-amd-amdhsa--gfx950"\n.text\n'
    for nm, k in (('attn_kernel', kernel1), ('proj_kernel', kernel2)):
        s += f".globl {nm}\n.p2align 8\n.type {nm},@function\n" + fmt(k()) + "\n"
    s += '.section .rodata,"a"\n.p2align 6\n' + desc('attn_kernel', 512, 256) + ".p2align 6\n" + desc('proj_kernel', 256, 256)
    return s

if __name__ == '__main__':
    out = sys.argv[1] if len(sys.argv) > 1 else 'cdna_kernels/' + NAME + '.s'
    for a_ in sys.argv[2:]:
        k, v = a_.split('=', 1)
        setattr(opt, k, (' ' + v) if k.endswith('flags') and v else v)
    txt = build()
    open(out, 'w').write(txt)
```

```python
import sys, struct
from dsl import *

KB = 1024
NAME = 'standalone__gqa_block_cached__near_ridge'
def f2h(x): return hex(struct.unpack('<I', struct.pack('<f', x))[0])
QSCALE = 1.4426950408889634 / (128 ** 0.5)
WS_WO = 8 << 20
WS_CT = 12 << 20

class Opt:
    stamps = ''
    report = ''
    kv_flags = ''
    a_flags = ''
    n0 = 33
    warm = 1
    perstep = 5
    lo_exp = -40
    hi_exp = 40
    spin = 2000000
    rt_at = 2
    arr_at = 17
    cw = 2
    shadow = 16
    bst = '0,5,10,15,20'
    no_rt = 0
    clk = 'r'
    lg0 = 0
    vpos = '1,5,9,13'
opt = Opt()

S_X, S_WQ, S_K, S_V, S_O, S_WO, S_WT, S_WL, S_C, S_D, S_OUT = 4, 8, 12, 16, 20, 24, 28, 52, 56, 60, 64
S_W, S_B, S_HKV, S_HQ = 32, 33, 34, 35
S_W1K, S_W8K, S_SO, S_T0, S_T1, S_T2, S_SK, S_SV = 36, 37, 38, 39, 40, 41, 42, 43
S_TAB = 44
S_REDO, S_MT, S_NT, S_VALID, S_RT, S_SPIN = 68, 69, 70, 71, 72, 73
S_EX = 74
S_P = 76
S_ST = 80
V_LANE, V_N, V_G, V_T0, V_T1, V_T2, V_T3, V_T4, V_T5 = 1, 2, 3, 4, 5, 6, 7, 8, 9
V_WL, V_OL, V_PL = 244, 247, 249
V_KA, V_VA, V_KD, V_VD = 10, 14, 22, 26
V_OST, V_CW, V_LW = 28, 29, 31
V_ONES, V_NEGM, V_L, V_S, V_P, V_KF, V_VF = 32, 36, 56, 76, 92, 100, 164
V_XA, V_XB, V_WA, V_WB, V_XD, V_WD, V_QW = 228, 232, 236, 238, 240, 241, 242
V_GC, V_GA = 250, 251
V_RT = 252
A_O, A_Q = 0, 160
def AO(lam, q): return ('a', A_O + 4 * (q * 8 + lam))
def AQ(q, s): return ('a', A_Q + 4 * (q * 4 + s))

def XU(c, q):
    if c == 0: return q * 4 * KB
    if c == 1: return 20 * KB + q * 4 * KB
    if c == 2: return 128 * KB + q * 4 * KB
    return [120, 124, 148, 152, 156][q] * KB
def WU(slot, ks):
    return {0: [40, 48], 1: [56, 96], 2: [104, 112], 3: [64, 72], 4: [80, 88]}[slot][ks] * KB
WSLOT = [0, 1, 2, 3, 4, 0, 1, 2]
QBUF = 128 * KB

def V(t, r=(), w=()):
    return valu(t, r=[('v', x) if isinstance(x, int) else x for x in r], w=[('v', x) if isinstance(x, int) else x for x in w])
def T(t, r=(), w=()):
    return valu(t, r=[('v', x) for x in r], w=[('v', x) for x in w], trans=True)
def S(t, r=(), w=()):
    return salu(t, r=[('s', x) if isinstance(x, int) else x for x in r], w=[('s', x) if isinstance(x, int) else x for x in w])
M0 = ('m0', 0)
VCC = ('vcc', 0)
def flat(l): return [x for y in l for x in y]

def srd(dst, plo, add_s=None, add_imm=0, size=0):
    o = []
    if add_s is not None:
        o.append(S(f"s_add_u32 s{dst}, s{plo}, s{add_s}", [plo, add_s], [dst]))
        o.append(S(f"s_addc_u32 s{dst+1}, s{plo+1}, 0", [plo+1], [dst+1]))
        o.append(S(f"s_and_b32 s{dst+1}, s{dst+1}, 0xffff", [dst+1], [dst+1]))
    elif add_imm:
        o.append(S(f"s_add_u32 s{dst}, s{plo}, {add_imm}", [plo], [dst]))
        o.append(S(f"s_addc_u32 s{dst+1}, s{plo+1}, 0", [plo+1], [dst+1]))
        o.append(S(f"s_and_b32 s{dst+1}, s{dst+1}, 0xffff", [dst+1], [dst+1]))
    else:
        o.append(S(f"s_mov_b32 s{dst}, s{plo}", [plo], [dst]))
        o.append(S(f"s_and_b32 s{dst+1}, s{plo+1}, 0xffff", [plo+1], [dst+1]))
    if isinstance(size, str):
        o.append(S(f"s_mov_b32 s{dst+2}, {size}", [int(size[1:])], [dst+2]))
    else:
        o.append(S(f"s_mov_b32 s{dst+2}, {size}", [], [dst+2]))
    o.append(S(f"s_mov_b32 s{dst+3}, 0x20000", [], [dst+3]))
    return o

class Item:
    def __init__(s, pre, ins, after=None): s.pre, s.ins, s.after = pre, ins, after
def x_dma(c, after=None):
    return [Item([S(f"s_add_u32 m0, s{S_W1K}, {XU(c,q) - c*256}", [S_W1K], [M0])],
                 dma(V_XD, S_X, S_TAB + q, c * 256, ('x', c), flags=opt.a_flags), after) for q in range(5)]
def w_dma(u, after=None):
    return [Item([S(f"s_mov_b32 s{S_SO}, {u*524288 + k*131072}", [], [S_SO]),
                  S(f"s_add_u32 m0, s{S_W1K}, {WU(WSLOT[u], k>>1) + (k&1)*4*KB}", [S_W1K], [M0])],
                 dma(V_WD, S_WQ, S_SO, 0, ('w', u), flags=opt.a_flags), after) for k in range(4)]
def kv_dma(kind, i, after=None):
    o = []
    base = (i & 1) * 32 * KB + (0 if kind == 'k' else 64 * KB)
    sr, so = (S_K, S_SK) if kind == 'k' else (S_V, S_SV)
    for j in range(8):
        pre = []
        if j % 4 == 0:
            pre.append(S(f"s_mov_b32 s{so}, {i*8192 + (j>>2)*4096}", [], [so]))
            pre.append(S(f"s_add_u32 m0, s{S_W8K}, {base + (j>>2)*4096}", [S_W8K], [M0]))
        va = V_KD + (j & 3) if kind == 'k' else V_VD + (j & 1)
        tag = (kind + 'r', i - 2, j >> 2)
        o.append(Item(pre, dma(va, sr, so, 1024 * (j & 3), (kind, i, j >> 2), needlg=[tag], flags=opt.kv_flags), after if i < 2 else tag))
    return o
def rt_dma():
    return [Item([S(f"s_mov_b32 s{S_SO}, {i*8192 - i*1024}", [], [S_SO])] + ([S(f"s_mov_b32 m0, s{S_RT}", [S_RT], [M0])] if i == 0 else []),
                 dma(V_RT, S_WO, S_SO, i * 1024, 'rt'), None) for i in range(4)]
RTF = 240
def rt_reads():
    return [dsrd('ds_read_b64_tr_b16', ('a', RTF + e * 4 + h * 2), 2, V_RT + 1, h * 2048 + e * 32, needvm=['rt']) for e in range(4) for h in range(2)]
def rt_stores(after):
    return [Item([S(f"s_mov_b32 s{S_SO}, {e*128*KB}", [], [S_SO])], vstore(('a', RTF + e * 4), 4, V_RT + 2, S_WT, S_SO, 0, flags=' sc1', tag='rts'), after) for e in range(4)]
def k_reads(i):
    return [dsrd('ds_read_b128', ('v', V_KF + (i & 1) * 32 + (t * 4 + s) * 4), 4, V_KA + s, (i & 1) * 32 * KB + t * 4096,
                 needvm=[('k', i, t)], lgtag=('kr', i, t)) for t in range(2) for s in range(4)]
def v_reads(i):
    return [dsrd('ds_read_b64_tr_b16', ('v', V_VF + (i & 1) * 32 + lam * 4 + h * 2), 2, V_VA + lam, (i & 1) * 32 * KB + h * 4096,
                 needvm=[('v', i, h)], lgtag=('vr', i, h)) for h in range(2) for lam in range(8)]

class Queue:
    def __init__(s): s.q = []; s.pts = set()
    def push(s, items): s.q += items
    def mark(s, p): s.pts.add(p)
    def pop(s):
        if s.q and (s.q[0].after is None or s.q[0].after in s.pts): return s.q.pop(0)
        return None

def place(gaps, Q, pos):
    last = -1
    for p in pos:
        if p >= len(gaps): continue
        it = Q.pop()
        if it is None: break
        pre = list(it.pre)
        g = p - 1
        front = []
        while pre:
            x = pre.pop()
            if g > last: gaps[g].insert(0, x); g -= 1
            else: front.insert(0, x)
        k = 0
        while k < len(gaps[p]) and gaps[p][k].k == 'salu': k += 1
        gaps[p][k:k] = front + [it.ins]
        last = p
def weave(sg, Q, fill, n, per):
    for _ in range(n):
        it = Q.pop()
        if it is not None: sg.addall(it.pre + [it.ins])
        for _ in range(per):
            if fill: sg.add(fill.pop(0))

NST = 12
def stamp(sg, i, grp='1'):
    if not opt.stamps: return
    if 5 <= i <= 9 and grp != opt.stamps: return
    sg.text(f"{'s_memtime' if opt.clk == 'c' else 's_memrealtime'} s[{76+2*i}:{77+2*i}]")

def prologue1():
    o = []; a = o.append
    a(raw("s_load_dwordx2 s[92:93], s[0:1], 0"))
    a(raw("s_load_dwordx4 s[96:99], s[0:1], 24"))
    a(V(f"v_lshrrev_b32 v{V_T0}, 6, v0", [0], [V_T0]))
    a(V(f"v_and_b32 v{V_LANE}, 63, v0", [0], [V_LANE]))
    a(V(f"v_readfirstlane_b32 s{S_W}, v{V_T0}", [V_T0], [('s', S_W)]))
    a(S(f"s_and_b32 s{S_HKV}, s2, 7", [2], [S_HKV]))
    a(S(f"s_lshr_b32 s{S_B}, s2, 5", [2], [S_B]))
    a(S(f"s_bfe_u32 s{S_T0}, s2, 0x20003", [2], [S_T0]))
    a(S(f"s_lshl_b32 s{S_HQ}, s{S_HKV}, 2", [S_HKV], [S_HQ]))
    a(S(f"s_add_u32 s{S_HQ}, s{S_HQ}, s{S_T0}", [S_HQ, S_T0], [S_HQ]))
    a(V(f"v_and_b32 v{V_N}, 15, v{V_LANE}", [V_LANE], [V_N]))
    a(V(f"v_lshrrev_b32 v{V_G}, 4, v{V_LANE}", [V_LANE], [V_G]))
    a(S(f"s_lshl_b32 s{S_W1K}, s{S_W}, 10", [S_W], [S_W1K]))
    a(S(f"s_lshl_b32 s{S_W8K}, s{S_W}, 13", [S_W], [S_W8K]))
    a(V(f"v_lshl_add_u32 v{V_T0}, s{S_W}, 2, v{V_G}", [V_G, ('s', S_W)], [V_T0]))
    a(V(f"v_xor_b32 v{V_T1}, v{V_N}, v{V_T0}", [V_N, V_T0], [V_T1]))
    a(V(f"v_lshlrev_b32 v{V_T1}, 4, v{V_T1}", [V_T1], [V_T1]))
    a(V(f"v_lshl_add_u32 v{V_XD}, v{V_T0}, 10, v{V_T1}", [V_T0, V_T1], [V_XD]))
    a(S(f"s_and_b32 s{S_T0}, s{S_W}, 2", [S_W], [S_T0]))
    a(S(f"s_lshl_b32 s{S_T0}, s{S_T0}, 2", [S_T0], [S_T0]))
    a(V(f"v_lshl_add_u32 v{V_T1}, v{V_G}, 1, s{S_T0}", [V_G, ('s', S_T0)], [V_T1]))
    a(V(f"v_xor_b32 v{V_T1}, v{V_N}, v{V_T1}", [V_N, V_T1], [V_T1]))
    a(V(f"v_lshlrev_b32 v{V_T1}, 4, v{V_T1}", [V_T1], [V_T1]))
    a(V(f"v_lshl_add_u32 v{V_WD}, v{V_T0}, 13, v{V_T1}", [V_T0, V_T1], [V_WD]))
    a(S(f"s_mul_i32 s{S_T0}, s{S_B}, 81920", [S_B], [S_T0]))
    a(S(f"s_lshl_b32 s{S_T2}, s{S_HQ}, 8", [S_HQ], [S_T2]))
    a(S(f"s_sub_u32 s{S_T1}, 4194304, s{S_T2}", [S_T2], [S_T1]))
    a(S(f"s_mov_b32 s{S_REDO}, 0", [], [S_REDO]))
    a(S(f"s_and_b32 s{S_SK}, s2, 1", [2], [S_SK]))
    a(S(f"s_lshl_b32 s{S_SK}, s{S_SK}, 2", [S_SK], [S_SK]))
    a(S(f"s_add_u32 s{S_SK}, s{S_SK}, s{S_W}", [S_SK, S_W], [S_SK]))
    a(S(f"s_lshr_b32 s{S_SV}, s2, 1", [2], [S_SV]))
    a(S(f"s_lshl_b32 s{S_SO}, s{S_SV}, 15", [S_SV], [S_SO]))
    a(S(f"s_lshl_b32 s{S_RT}, s{S_SK}, 7", [S_SK], [S_RT]))
    a(S(f"s_add_u32 s{S_SO}, s{S_SO}, s{S_RT}", [S_SO, S_RT], [S_SO]))
    a(V(f"v_lshrrev_b32 v{V_T0}, 3, v{V_LANE}", [V_LANE], [V_T0]))
    a(V(f"v_and_b32 v{V_T1}, 7, v{V_LANE}", [V_LANE], [V_T1]))
    a(V(f"v_lshlrev_b32 v{V_T1}, 4, v{V_T1}", [V_T1], [V_T1]))
    a(V(f"v_lshl_add_u32 v{V_T0}, v{V_T0}, 10, v{V_T1}", [V_T0, V_T1], [V_T0]))
    a(V(f"v_add_u32 v{V_RT}, s{S_SO}, v{V_T0}", [V_T0, ('s', S_SO)], [V_RT]))
    a(S(f"s_lshl_b32 s{S_SK}, s{S_SK}, 19", [S_SK], [S_SK]))
    a(S(f"s_lshl_b32 s{S_SV}, s{S_SV}, 10", [S_SV], [S_SV]))
    a(S(f"s_add_u32 s{S_SK}, s{S_SK}, s{S_SV}", [S_SK, S_SV], [S_SK]))
    a(V(f"v_lshl_add_u32 v{V_RT+2}, v{V_LANE}, 4, s{S_SK}", [V_LANE, ('s', S_SK)], [V_RT+2]))
    a(S(f"s_lshl_b32 s{S_RT}, s{S_W}, 12", [S_W], [S_RT]))
    a(S(f"s_cmp_lt_u32 s{S_W}, 2", [S_W], []))
    a(S(f"s_cselect_b32 s{S_SO}, 0, {20*KB}", [], [S_SO]))
    a(S(f"s_add_u32 s{S_RT}, s{S_RT}, s{S_SO}", [S_RT, S_SO], [S_RT]))
    a(S(f"s_add_u32 s{S_RT}, s{S_RT}, {120*KB}", [S_RT], [S_RT]))
    a(raw("s_waitcnt lgkmcnt(0)", 'wait'))
    o += srd(S_X, 92, add_s=S_T0, size=81920)
    o += srd(S_WQ, 96, add_s=S_T2, size=f"s{S_T1}")
    o += srd(S_WO, 98, size=4194304)
    a(raw("s_load_dwordx4 s[92:95], s[0:1], 8"))
    a(raw("s_load_dwordx4 s[96:99], s[0:1], 40"))
    a(raw("s_load_dwordx2 s[100:101], s[0:1], 56"))
    return o

def restart_setup():
    return [S(f"s_mov_b32 s{S_TAB+q}, {q*16384}", [], [S_TAB+q]) for q in range(5)]

def prologue2():
    o = []; a = o.append
    a(raw("s_waitcnt lgkmcnt(0)", 'wait'))
    a(S(f"s_lshl_b32 s{S_T0}, s{S_B}, 3", [S_B], [S_T0]))
    a(S(f"s_add_u32 s{S_T0}, s{S_T0}, s{S_HKV}", [S_T0, S_HKV], [S_T0]))
    a(S(f"s_lshl_b32 s{S_T0}, s{S_T0}, 2", [S_T0], [S_T0]))
    a(S(f"s_add_u32 s{S_T0}, s{S_T0}, s{S_W}", [S_T0, S_W], [S_T0]))
    a(S(f"s_lshl_b32 s{S_T0}, s{S_T0}, 16", [S_T0], [S_T0]))
    o += srd(S_K, 92, add_s=S_T0, size=65536)
    o += srd(S_V, 94, add_s=S_T0, size=65536)
    o += srd(S_O, 100, size=8*5*128*1024)
    o += srd(S_WT, 100, add_imm=WS_WO, size=4194304)
    o += srd(S_C, 100, add_imm=WS_CT, size=8192)
    o += srd(S_D, 98, size=256)
    o += srd(S_OUT, 96, size=655360)
    a(S(f"s_lshr_b32 s{S_T0}, s2, 3", [2], [S_T0]))
    a(S(f"s_mul_i32 s{S_NT}, s{S_T0}, 52", [S_T0], [S_NT]))
    a(S(f"s_lshr_b32 s{S_NT}, s{S_NT}, 8", [S_NT], [S_NT]))
    a(S(f"s_mul_i32 s{S_MT}, s{S_NT}, 5", [S_NT], [S_MT]))
    a(S(f"s_sub_u32 s{S_MT}, s{S_T0}, s{S_MT}", [S_T0, S_MT], [S_MT]))
    a(S(f"s_lshr_b32 s{S_T1}, s{S_HKV}, 1", [S_HKV], [S_T1]))
    a(S(f"s_mul_i32 s{S_T1}, s{S_T1}, 5", [S_T1], [S_T1]))
    a(S(f"s_add_u32 s{S_MT}, s{S_MT}, s{S_T1}", [S_MT, S_T1], [S_MT]))
    a(S(f"s_and_b32 s{S_T1}, s{S_HKV}, 1", [S_HKV], [S_T1]))
    a(S(f"s_sub_u32 s{S_T2}, 6, s{S_T1}", [S_T1], [S_T2]))
    a(S(f"s_cmp_lt_u32 s{S_NT}, s{S_T2}", [S_NT, S_T2], []))
    a(S(f"s_cselect_b32 s{S_VALID}, 1, 0", [], [S_VALID]))
    a(S(f"s_mul_i32 s{S_T1}, s{S_T1}, 6", [S_T1], [S_T1]))
    a(S(f"s_add_u32 s{S_NT}, s{S_NT}, s{S_T1}", [S_NT, S_T1], [S_NT]))
    a(S(f"s_mov_b32 s{S_WL}, s{S_WT}", [S_WT], [S_WL]))
    a(S(f"s_mov_b32 s{S_WL+1}, s{S_WT+1}", [S_WT+1], [S_WL+1]))
    a(S(f"s_lshl_b32 s{S_WL+2}, s{S_VALID}, 22", [S_VALID], [S_WL+2]))
    a(S(f"s_mov_b32 s{S_WL+3}, 0x20000", [], [S_WL+3]))
    a(S(f"s_lshl_b32 s{S_T0}, s{S_W}, 15", [S_W], [S_T0]))
    a(S(f"s_mul_i32 s{S_T1}, s{S_NT}, {3*128*KB}", [S_NT], [S_T1]))
    a(S(f"s_add_u32 s{S_T1}, s{S_T1}, s{S_T0}", [S_T1, S_T0], [S_T1]))
    a(V(f"v_lshl_add_u32 v{V_WL}, v{V_LANE}, 4, s{S_T1}", [V_LANE, ('s', S_T1)], [V_WL]))
    a(V(f"v_add_u32 v{V_WL+1}, {128*KB}, v{V_WL}", [V_WL], [V_WL+1]))
    a(V(f"v_add_u32 v{V_WL+2}, {256*KB}, v{V_WL}", [V_WL], [V_WL+2]))
    a(S(f"s_lshl_b32 s{S_T1}, s{S_MT}, 18", [S_MT], [S_T1]))
    a(S(f"s_add_u32 s{S_T1}, s{S_T1}, s{S_T0}", [S_T1, S_T0], [S_T1]))
    a(V(f"v_lshl_add_u32 v{V_OL}, v{V_LANE}, 4, s{S_T1}", [V_LANE, ('s', S_T1)], [V_OL]))
    a(V(f"v_add_u32 v{V_OL+1}, {128*KB}, v{V_OL}", [V_OL], [V_OL+1]))
    a(V(f"v_and_b32 v{V_T0}, 1, v{V_LANE}", [V_LANE], [V_T0]))
    a(V(f"v_lshlrev_b32 v{V_GA}, 7, v{V_T0}", [V_T0], [V_GA]))
    a(V(f"v_lshl_add_u32 v{V_T0}, s{S_MT}, 1, v{V_T0}", [V_T0, ('s', S_MT)], [V_T0]))
    a(V(f"v_mul_u32_u24 v{V_T0}, 52, v{V_T0}", [V_T0], [V_T0]))
    a(V(f"v_lshrrev_b32 v{V_T0}, 8, v{V_T0}", [V_T0], [V_T0]))
    a(V(f"v_lshl_add_u32 v{V_T0}, v{V_T0}, 2, s{S_W}", [V_T0, ('s', S_W)], [V_T0]))
    a(V(f"v_lshlrev_b32 v{V_PL}, 7, v{V_T0}", [V_T0], [V_PL]))
    return o

def prologue3():
    o = []; a = o.append
    for s in range(4):
        a(V(f"v_add_u32 v{V_T0}, {4*s}, v{V_G}", [V_G], [V_T0]))
        a(V(f"v_xor_b32 v{V_T0}, v{V_T0}, v{V_N}", [V_T0, V_N], [V_T0]))
        a(V(f"v_lshlrev_b32 v{V_T0}, 4, v{V_T0}", [V_T0], [V_T0]))
        a(V(f"v_lshl_add_u32 v{V_XA+s}, v{V_N}, 8, v{V_T0}", [V_N, V_T0], [V_XA+s]))
        a(V(f"v_add_u32 v{V_XB+s}, {120*KB}, v{V_XA+s}", [V_XA+s], [V_XB+s]))
    a(V(f"v_lshrrev_b32 v{V_T2}, 2, v{V_N}", [V_N], [V_T2]))
    a(V(f"v_bfe_u32 v{V_T3}, v{V_N}, 1, 1", [V_N], [V_T3]))
    a(V(f"v_and_b32 v{V_T4}, 1, v{V_N}", [V_N], [V_T4]))
    a(V(f"v_lshlrev_b32 v{V_T4}, 3, v{V_T4}", [V_T4], [V_T4]))
    a(V(f"v_and_b32 v{V_T5}, 1, v{V_G}", [V_G], [V_T5]))
    a(V(f"v_lshl_add_u32 v{V_T5}, v{V_T5}, 2, v{V_T2}", [V_T5, V_T2], [V_T5]))
    a(V(f"v_lshlrev_b32 v{V_T5}, 1, v{V_T5}", [V_T5], [V_T5]))
    a(S(f"s_lshl_b32 s{S_T1}, s{S_W}, 2", [S_W], [S_T1]))
    a(V(f"v_lshl_add_u32 v{V_T1}, v{V_G}, 3, v{V_T2}", [V_G, V_T2], [V_T1]))
    a(V(f"v_lshl_add_u32 v{V_T1}, v{V_T1}, 8, v{V_T4}", [V_T1, V_T4], [V_T1]))
    for e in range(2):
        a(V(f"v_add3_u32 v{V_T0}, s{S_T1}, v{V_T3}, {2*e}", [V_T3, ('s', S_T1)], [V_T0]))
        a(V(f"v_xor_b32 v{V_T0}, v{V_T0}, v{V_T5}", [V_T0, V_T5], [V_T0]))
        a(V(f"v_lshl_add_u32 v{V_T0}, v{V_T0}, 4, v{V_T1}", [V_T0, V_T1], [V_T0]))
        a(V(f"v_add_u32 v{V_WA+e}, {40*KB}, v{V_T0}", [V_T0], [V_WA+e]))
        a(V(f"v_add_u32 v{V_WB+e}, {96*KB}, v{V_T0}", [V_T0], [V_WB+e]))
    a(V(f"v_lshl_add_u32 v{V_T1}, v{V_G}, 2, v{V_T2}", [V_G, V_T2], [V_T1]))
    a(V(f"v_and_b32 v{V_T0}, 3, v{V_N}", [V_N], [V_T0]))
    a(V(f"v_lshlrev_b32 v{V_T0}, 3, v{V_T0}", [V_T0], [V_T0]))
    a(V(f"v_lshl_add_u32 v{V_T0}, v{V_T1}, 7, v{V_T0}", [V_T0, V_T1], [V_T0]))
    a(V(f"v_add_u32 v{V_RT+1}, s{S_RT}, v{V_T0}", [V_T0, ('s', S_RT)], [V_RT+1]))
    n_early = len(o)
    for s in range(4):
        a(V(f"v_add_u32 v{V_KA+s}, s{S_W8K}, v{V_XA+s}", [V_XA+s, ('s', S_W8K)], [V_KA+s]))
    a(V(f"v_lshl_add_u32 v{V_T1}, v{V_T1}, 8, v{V_T4}", [V_T1, V_T4], [V_T1]))
    a(S(f"s_add_u32 s{S_T2}, s{S_W8K}, {64*KB}", [S_W8K], [S_T2]))
    a(V(f"v_add_u32 v{V_T1}, s{S_T2}, v{V_T1}", [V_T1, ('s', S_T2)], [V_T1]))
    a(V(f"v_add_u32 v{V_T3}, s{S_T1}, v{V_T3}", [V_T3, ('s', S_T1)], [V_T3]))
    for lam in range(8):
        a(V(f"v_add_u32 v{V_T0}, {2*lam}, v{V_T3}", [V_T3], [V_T0]))
        a(V(f"v_and_b32 v{V_T0}, 15, v{V_T0}", [V_T0], [V_T0]))
        a(V(f"v_xor_b32 v{V_T0}, v{V_T0}, v{V_T5}", [V_T0, V_T5], [V_T0]))
        a(V(f"v_lshl_add_u32 v{V_VA+lam}, v{V_T0}, 4, v{V_T1}", [V_T0, V_T1], [V_VA+lam]))
    a(V(f"v_xor_b32 v{V_T0}, v{V_N}, v{V_G}", [V_N, V_G], [V_T0]))
    a(V(f"v_lshlrev_b32 v{V_T0}, 4, v{V_T0}", [V_T0], [V_T0]))
    a(V(f"v_lshl_add_u32 v{V_KD}, v{V_G}, 8, v{V_T0}", [V_G, V_T0], [V_KD]))
    for j in range(1, 4):
        a(V(f"v_xor_b32 v{V_KD+j}, {64*j}, v{V_KD}", [V_KD], [V_KD+j]))
    a(V(f"v_lshlrev_b32 v{V_T0}, 1, v{V_G}", [V_G], [V_T0]))
    a(V(f"v_xor_b32 v{V_T0}, v{V_N}, v{V_T0}", [V_N, V_T0], [V_T0]))
    a(V(f"v_lshlrev_b32 v{V_T0}, 4, v{V_T0}", [V_T0], [V_T0]))
    a(V(f"v_lshl_add_u32 v{V_VD}, v{V_G}, 8, v{V_T0}", [V_G, V_T0], [V_VD]))
    a(V(f"v_xor_b32 v{V_VD+1}, 128, v{V_VD}", [V_VD], [V_VD+1]))
    a(V(f"v_lshrrev_b32 v{V_T0}, 1, v{V_G}", [V_G], [V_T0]))
    a(V(f"v_add_u32 v{V_T0}, s{S_T1}, v{V_T0}", [V_T0, ('s', S_T1)], [V_T0]))
    a(V(f"v_xor_b32 v{V_T0}, v{V_T0}, v{V_N}", [V_T0, V_N], [V_T0]))
    a(V(f"v_lshlrev_b32 v{V_T0}, 4, v{V_T0}", [V_T0], [V_T0]))
    a(V(f"v_lshl_add_u32 v{V_T0}, v{V_N}, 8, v{V_T0}", [V_N, V_T0], [V_T0]))
    a(V(f"v_and_b32 v{V_T1}, 1, v{V_G}", [V_G], [V_T1]))
    a(V(f"v_lshl_add_u32 v{V_T0}, v{V_T1}, 3, v{V_T0}", [V_T0, V_T1], [V_T0]))
    a(V(f"v_add_u32 v{V_QW}, {QBUF}, v{V_T0}", [V_T0], [V_QW]))
    a(V(f"v_xor_b32 v{V_QW+1}, 32, v{V_QW}", [V_QW], [V_QW+1]))
    a(V(f"v_lshl_add_u32 v{V_CW}, v{V_LANE}, 4, s{S_W8K}", [V_LANE, ('s', S_W8K)], [V_CW]))
    a(V(f"v_add_u32 v{V_CW+1}, {64*KB}, v{V_CW}", [V_CW], [V_CW+1]))
    a(S(f"s_add_u32 s{S_T0}, s{S_W8K}, {102*KB}", [S_W8K], [S_T0]))
    a(V(f"v_lshl_add_u32 v{V_LW}, v{V_LANE}, 5, s{S_T0}", [V_LANE, ('s', S_T0)], [V_LW]))
    a(S(f"s_mul_i32 s{S_T0}, s{S_B}, 640", [S_B], [S_T0]))
    a(S(f"s_lshl_b32 s{S_T2}, s{S_HQ}, 2", [S_HQ], [S_T2]))
    a(S(f"s_add_u32 s{S_T0}, s{S_T0}, s{S_T2}", [S_T0, S_T2], [S_T0]))
    a(S(f"s_add_u32 s{S_T0}, s{S_T0}, s{S_W}", [S_T0, S_W], [S_T0]))
    a(S(f"s_lshl_b32 s{S_T0}, s{S_T0}, 10", [S_T0], [S_T0]))
    a(V(f"v_lshl_add_u32 v{V_OST}, v{V_LANE}, 4, s{S_T0}", [V_LANE, ('s', S_T0)], [V_OST]))
    a(V(f"v_cmp_eq_u32 vcc, 0, v{V_N}", [V_N], [VCC]))
    a(V(f"v_mov_b32 v{V_T0}, 0x3f803f80", [], [V_T0]))
    for i in range(4):
        a(V(f"v_cndmask_b32 v{V_ONES+i}, 0, v{V_T0}, vcc", [V_T0, VCC], [V_ONES+i]))
    for i in range(20):
        a(V(f"v_mov_b32 v{V_NEGM+i}, 0", [], [V_NEGM+i]))
    return o[:n_early], o[n_early:]

V_QACC = V_VF
V_XF = V_KF
V_WF = V_KF + 40
def a_reads(kap):
    u, ks = kap >> 1, kap & 1
    c, s = u >> 1, kap & 3
    o = []
    wb = WU(WSLOT[u], ks)
    xr = []
    for q in range(5):
        xb = XU(c, q)
        reg, base = (V_XA, 0) if xb < 64 * KB else (V_XB, 120 * KB)
        xr.append(dsrd('ds_read_b128', ('v', V_XF + (kap & 1) * 20 + q * 4), 4, reg + s, xb - base))
    wr = []
    for e in range(2):
        for h in range(2):
            reg, base = (V_WA, 40 * KB) if wb < 96 * KB else (V_WB, 96 * KB)
            wr.append(dsrd('ds_read_b64_tr_b16', ('v', V_WF + (kap & 1) * 8 + e * 4 + h * 2), 2, reg + e, wb - base + h * 1024))
    return wr[:2] + xr[:1] + wr[2:] + xr[1:]
def a_mfmas(kap):
    o = []
    for q in range(5):
        for e in range(2):
            d = ('v', V_QACC + (e * 5 + q) * 4)
            o.append(mfma(d, ('v', V_WF + (kap & 1) * 8 + e * 4), ('v', V_XF + (kap & 1) * 20 + q * 4), 0 if kap == 0 else d))
    return o
def lane0(sg, body, lab):
    sg.text(f"s_cmp_lg_u32 s{S_W}, 0"); sg.text(f"s_cbranch_scc1 {lab}")
    sg.text(f"s_mov_b64 s[{S_EX}:{S_EX+1}], exec"); sg.text("s_mov_b64 exec, 1")
    for x in body: sg.text(x)
    sg.text(f"s_mov_b64 exec, s[{S_EX}:{S_EX+1}]")
    sg.text(f"{lab}:")
def phase_a(sg, Q, late):
    stamp(sg, 1)
    sg.add(barrier(needvm=[('x', 0), ('w', 0)])); Q.mark('B0')
    stamp(sg, 2)
    sg.addall(a_reads(0))
    for kap in range(16):
        mf = a_mfmas(kap)
        gaps = [[] for _ in mf]
        if kap < 15:
            nx = kap + 1
            if nx % 2 == 0:
                u = nx >> 1
                need = [('x', u >> 1), ('w', u)]
                while any(it.ins.vmtag in need for it in Q.q):
                    weave(sg, Q, [], 1, 0)
                sg.add(barrier(needvm=need, lg0=bool(int(opt.lg0)))); Q.mark(f'B{u}')
                if u in (1, 3, 5, 7): stamp(sg, 5 + u // 2, 'A')
            for i, r in enumerate(a_reads(nx)): gaps[i].append(r)
        if kap == 0:
            for i, r in enumerate(rt_reads()): gaps[i + 1].append(r)
        if kap == 1: Q.mark('RT')
        pos = [1, 5, 9] if kap % 2 == 0 else [3, 7]
        if int(opt.perstep) == 6: pos = [1, 4, 7] if kap % 2 == 0 else [1, 4, 8]
        place(gaps, Q, pos)
        if kap >= 1:
            for gi in range(10):
                if len([x for x in gaps[gi] if x.k != 'salu']) < 2 and late: gaps[gi].append(late.pop(0))
                while late and late[0].k == 'salu': gaps[gi].append(late.pop(0))
        sg.addall(interleave(mf, gaps))
    stamp(sg, 9, 'A')
    sg.addall(late); del late[:]
    fin = [S(f"s_mov_b32 s{S_T2}, {f2h(QSCALE)}", [], [S_T2])]
    for q in range(5):
        for e in range(2):
            b = V_QACC + (e * 5 + q) * 4
            for r in range(4):
                fin.append(V(f"v_mul_f32 v{b+r}, s{S_T2}, v{b+r}", [b+r, ('s', S_T2)], [b+r]))
            fin.append(V(f"v_cvt_pk_bf16_f32 v{b}, v{b}, v{b+1}", [b, b+1], [b]))
            fin.append(V(f"v_cvt_pk_bf16_f32 v{b+1}, v{b+2}, v{b+3}", [b+2, b+3], [b+1]))
            fin.append(dswr('ds_write_b64', V_QW + e, ('v', b), 2, q * 4096))
    weave(sg, Q, fin, 5, 14)
    sg.addall(fin)
    sg.add(barrier()); Q.mark('BQ')
    qr = [dsrd('ds_read_b128', AQ(q, s), 4, V_XB + s, QBUF - 120 * KB + q * 4096) for q in range(5) for s in range(4)]
    return qr

def qk(tau):
    i, q = divmod(tau, 5)
    o = []
    for s in range(4):
        for t in range(2):
            d = ('v', V_S + (tau & 1) * 8 + t * 4)
            o.append(mfma(d, ('v', V_KF + (i & 1) * 32 + (t * 4 + s) * 4), AQ(q, s), ('v', V_NEGM + q * 4) if s == 0 else d))
    return o
def pv(tau):
    i, q = divmod(tau, 5)
    p = ('v', V_P + (tau & 1) * 4)
    o = [mfma(AO(lam, q), ('v', V_VF + (i & 1) * 32 + lam * 4), p, AO(lam, q) if i else 0) for lam in range(8)]
    o.insert(0, mfma(('v', V_L + q * 4), ('v', V_ONES), p, ('v', V_L + q * 4) if i else 0))
    return o
def sm(tau):
    b = V_S + (tau & 1) * 8
    p = V_P + (tau & 1) * 4
    e = [T(f"v_exp_f32 v{b+i}, v{b+i}", [b+i], [b+i]) for i in range(8)]
    c = [V(f"v_cvt_pk_bf16_f32 v{p+i}, v{b+2*i}, v{b+2*i+1}", [b+2*i, b+2*i+1], [p+i]) for i in range(4)]
    return e, c
def comb_writes(q):
    o = []
    for jd in range(1, 4):
        for e in range(2):
            u = q * 6 + (jd - 1) * 2 + e
            row = u >> 3
            o.append(dswr('ds_write_b128', V_CW + (row >> 1), AO(2 * jd + e, q), 4, (row & 1) * 32 * KB + (u & 7) * KB, lgtag=('cw', q)))
    return o

class Regs:
    def __init__(s): s.free = []; s.F = {}; s.nxt = 0
    def give(s, f, lo, n, tag=None): s.free += [((f, lo + 4 * i), tag) for i in range(n)]
    def wo_items(s, limit=1000):
        out = []
        while s.free and s.nxt < 96 and len(out) < limit:
            quad, tag = s.free.pop(0)
            ks, e = divmod(s.nxt, 3); s.nxt += 1
            s.F[(ks, e)] = quad
            ins = vload(quad, 4, V_WL + e, S_WL, S_TAB + (ks >> 2), (ks & 3) * 1024, flags=' sc1')
            if tag: ins.needlg = (tag,)
            out.append(Item([], ins))
        return out

def phase_b(sg, Q, qr, RG):
    NT = 8
    sg.addall(qr[:4])
    while any(it.ins.vmtag in (('k', 0, 0), ('k', 0, 1)) for it in Q.q): weave(sg, Q, [], 1, 0)
    sg.addall(k_reads(0)); Q.mark(('kr', 0, 0)); Q.mark(('kr', 0, 1))
    qr = qr[4:]
    for tau in range(-1, 41):
        i, q = divmod(tau, 5) if tau >= 0 else (-1, 4)
        mf = []
        bst = [int(x) for x in opt.bst.split(',')]
        if tau in bst: stamp(sg, 5 + bst.index(tau), 'B')
        if tau + 1 < 40: mf += qk(tau + 1)
        if tau - 1 >= 0: mf += pv(tau - 1)
        ds, marks = [], []
        if tau == -1: ds = qr
        elif tau == 0: ds = v_reads(0); marks = [('vr', 0, 0), ('vr', 0, 1)]
        elif i < NT:
            if q == 2 and i + 1 < NT: ds = k_reads(i + 1)[:4]; marks = [('kr', i + 1, 0)]
            if q == 3 and i + 1 < NT: ds = k_reads(i + 1)[4:]; marks = [('kr', i + 1, 1)]
            if q == 4 and i + 1 < NT: ds = v_reads(i + 1)[:8]; marks = [('vr', i + 1, 0)]
            if q == 0: ds = v_reads(i)[8:]; marks = [('vr', i, 1)]
            if i == NT - 1 and q >= 2: ds = comb_writes(q - 2)
        if tau == 40: ds = comb_writes(3)
        n = len(mf)
        gaps = [[] for _ in range(n)]
        e, c = sm(tau) if 0 <= tau < 40 else ([], [])
        if n == 17:
            epos = [0, 2, 4, 6, 8, 10, 12, 14]; cpos = [3, 7, 11, 15]
            dpos = [1, 3, 5, 7, 9, 11, 13, 15] if len(ds) > 4 else [1, 3, 5, 7]
            vpos = [int(x) for x in opt.vpos.split(',')]
        else:
            epos = list(range(8)); cpos = [min(n - 1, x) for x in (2, 4, 6, 8)]
            dpos = [(k * n) // max(1, len(ds)) for k in range(len(ds))]
            vpos = [1, 5]
        for x, p_ in zip(ds, dpos): gaps[p_].append(x)
        if tau == int(opt.arr_at):
            assert not any(it.ins.vmtag == 'rts' for it in Q.q)
            sg.add(barrier(needvm=['rts'], lg0=False))
            sg.text(f"s_cmp_lg_u32 s{S_REDO}, 0"); sg.text("s_cbranch_scc1 L_noarr")
            lane0(sg, [f"s_and_b32 s{S_SPIN}, s2, 1", f"s_lshl_b32 s{S_SPIN}, s{S_SPIN}, 7", f"v_mov_b32 v253, s{S_SPIN}", "v_mov_b32 v255, 1",
                       f"buffer_atomic_add v255, v253, s[{S_D}:{S_D+3}], 0 offen"], "L_noarr")
        for x in ds:
            while any(it.ins.vmtag in x.needvm for it in Q.q): weave(sg, Q, [], 1, 0)
        if tau == 20:
            for k in range(8): gaps[2 * k].insert(0, S(f"s_mov_b32 s{S_TAB+k}, {k*4096}", [], [S_TAB+k]))
        if tau == 27:
            Q.push([Item([], vload(('v', V_GC), 1, V_GA, S_D, None, 0, flags=' sc1'))])
        if tau == 32:
            assert not Q.q
            sg.add(V(f"v_cmp_ne_u32 vcc, 128, v{V_GC}", [V_GC], [VCC]))
            sg.text("s_nop 4"); sg.text("s_cbranch_vccnz L_spin_g"); sg.text("L_back_g:")
            RG.give('a', 240, 4); RG.give('v', 228, 4)
        if tau == 34: RG.give('v', V_KF, 8)
        if 35 <= tau <= 39: RG.give('a', A_Q + 16 * (tau - 35), 4)
        if tau == 36: RG.give('v', V_VF, 8)
        if tau == 39: RG.give('v', V_KF + 32, 8)
        if tau >= 32 and len(Q.q) < 4: Q.push(RG.wo_items(4 - len(Q.q)))
        place(gaps, Q, vpos)
        for x, p_ in zip(e, epos): gaps[p_].append(x)
        for x, p_ in zip(c, cpos): gaps[p_].append(x)
        sg.addall(interleave(mf, gaps))
        for m in marks: Q.mark(m)

def combine(sg, Q, RG):
    V_CR, V_LR = V_KA, V_KA + 6
    pre = []
    a = pre.append
    a(V(f"v_lshlrev_b32 v{V_T0}, 4, v{V_LANE}", [V_LANE], [V_T0]))
    for jd in range(1, 4):
        a(S(f"s_sub_u32 s{S_T0}, s{S_W}, {jd}", [S_W], [S_T0]))
        a(S(f"s_and_b32 s{S_T0}, s{S_T0}, 3", [S_T0], [S_T0]))
        a(S(f"s_lshl_b32 s{S_T0}, s{S_T0}, 13", [S_T0], [S_T0]))
        a(V(f"v_add_u32 v{V_CR+2*(jd-1)}, s{S_T0}, v{V_T0}", [V_T0, ('s', S_T0)], [V_CR+2*(jd-1)]))
        a(V(f"v_add_u32 v{V_CR+2*(jd-1)+1}, {64*KB}, v{V_CR+2*(jd-1)}", [V_CR+2*(jd-1)], [V_CR+2*(jd-1)+1]))
    a(S(f"s_mov_b32 s{S_T0}, {102*KB}", [], [S_T0]))
    a(V(f"v_lshl_add_u32 v{V_LR}, v{V_N}, 5, s{S_T0}", [V_N, ('s', S_T0)], [V_LR]))
    sg.addall(pre)
    for q in range(5):
        sg.add(dswr('ds_write_b32', V_LW, ('v', V_L + q * 4), 1, q * 4))
    sg.addall(comb_writes(4))
    SETS = [(196, 204), (76, None)]
    def own(q): return 196 if q % 2 == 0 else 76
    def part(q, k):
        return 204 + 4 * k if q % 2 == 0 else (84 + 4 * k if k < 4 else 36 + 4 * (k - 4))
    def accreads(q):
        return [V(f"v_accvgpr_read_b32 v{own(q) + e*4 + r}, a{AO(e, q)[1] + r}", [('a', AO(e, q)[1] + r)], [own(q) + e*4 + r]) for e in range(2) for r in range(4)]
    def preads(q):
        o = []
        for jd in range(1, 4):
            for e in range(2):
                k = (jd - 1) * 2 + e; u = q * 6 + k; row = u >> 3
                o.append(dsrd('ds_read_b128', ('v', part(q, k)), 4, V_CR + 2 * (jd - 1) + (row >> 1), (row & 1) * 32 * KB + (u & 7) * KB))
        return o
    for q in range(4): RG.give('a', AO(2, q)[1], 6, ('cw', q))
    Q.push(RG.wo_items(3))
    weave(sg, Q, accreads(0) + accreads(1), 2, 8)
    sg.add(barrier())
    stamp(sg, 5)
    LS = V_L
    for src in range(4):
        sg.add(dsrd('ds_read_b128', ('v', LS + src * 4), 4, V_LR, src * 8 * KB))
        sg.add(dsrd('ds_read_b32', ('v', LS + 16 + src), 1, V_LR, src * 8 * KB + 16))
    sg.addall(preads(0)); sg.addall(preads(1))
    RG.give('a', AO(2, 4)[1], 6); RG.give('a', AO(0, 0)[1], 2); RG.give('a', AO(0, 1)[1], 2)
    def lreg(src, q): return LS + src * 4 + q if q < 4 else LS + 16 + src
    w = []
    for q in range(5):
        d = V_T0 + q
        w.append(V(f"v_add_f32 v{d}, v{lreg(0,q)}, v{lreg(1,q)}", [lreg(0,q), lreg(1,q)], [d]))
        w.append(V(f"v_add_f32 v{lreg(2,q)}, v{lreg(2,q)}, v{lreg(3,q)}", [lreg(2,q), lreg(3,q)], [lreg(2,q)]))
        w.append(V(f"v_add_f32 v{d}, v{d}, v{lreg(2,q)}", [d, lreg(2,q)], [d]))
    w.append(V(f"v_min3_f32 v{LS}, v{V_T0}, v{V_T0+1}, v{V_T0+2}", [V_T0, V_T0+1, V_T0+2], [LS]))
    w.append(V(f"v_min3_f32 v{LS}, v{LS}, v{V_T0+3}, v{V_T0+4}", [LS, V_T0+3, V_T0+4], [LS]))
    w.append(V(f"v_add_f32 v{LS+1}, v{V_T0}, v{V_T0+1}", [V_T0, V_T0+1], [LS+1]))
    w.append(V(f"v_add_f32 v{LS+2}, v{V_T0+2}, v{V_T0+3}", [V_T0+2, V_T0+3], [LS+2]))
    w.append(V(f"v_add_f32 v{LS+1}, v{LS+1}, v{V_T0+4}", [LS+1, V_T0+4], [LS+1]))
    w.append(V(f"v_add_f32 v{LS+1}, v{LS+1}, v{LS+2}", [LS+1, LS+2], [LS+1]))
    w.append(V(f"v_cmp_nle_f32 vcc, {f2h(2.0**int(opt.lo_exp))}, v{LS}", [LS], [VCC]))
    w.append(S(f"s_mov_b64 s[{S_EX}:{S_EX+1}], vcc", [VCC], [S_EX, S_EX+1]))
    w.append(V(f"v_cmp_nge_f32 vcc, {f2h(2.0**int(opt.hi_exp))}, v{LS+1}", [LS+1], [VCC]))
    w.append(S(f"s_or_b64 vcc, vcc, s[{S_EX}:{S_EX+1}]", [VCC, S_EX, S_EX+1], [VCC]))
    Q.push(RG.wo_items(2))
    weave(sg, Q, w, 2, 12)
    sg.addall(w)
    sg.text("s_cbranch_vccnz L_redo"); sg.text("L_back_redo:")
    for q in range(5):
        d = V_T0 + q
        sg.add(T(f"v_rcp_f32 v{d}, v{d}", [d], [d]))
    for q in range(5):
        w = []
        for e in range(2):
            o_ = own(q) + e * 4
            for jd in range(1, 4):
                p_ = part(q, (jd - 1) * 2 + e)
                for r in (0, 2):
                    w.append(V(f"v_pk_add_f32 v[{o_+r}:{o_+r+1}], v[{o_+r}:{o_+r+1}], v[{p_+r}:{p_+r+1}]", [o_+r, o_+r+1, p_+r, p_+r+1], [o_+r, o_+r+1]))
        if q + 2 < 5: w += preads(q + 2)
        o_ = own(q)
        ri = V_T0 + (q & ~1); sel = "op_sel:[0,1] op_sel_hi:[1,1]" if q & 1 else "op_sel:[0,0] op_sel_hi:[1,0]"
        for r in range(0, 8, 2):
            w.append(V(f"v_pk_mul_f32 v[{o_+r}:{o_+r+1}], v[{o_+r}:{o_+r+1}], v[{ri}:{ri+1}] {sel}", [o_+r, o_+r+1, V_T0+q], [o_+r, o_+r+1]))
        res = 20 + 4 * (q % 2)
        for r in range(4):
            w.append(V(f"v_cvt_pk_bf16_f32 v{res+r}, v{o_+2*r}, v{o_+2*r+1}", [o_+2*r, o_+2*r+1], [res+r]))
        w.append(S(f"s_mov_b32 s{S_SO}, {q*128*KB}", [], [S_SO]))
        w.append(vstore(('v', res), 4, V_OST, S_O, S_SO, 0, flags=' sc1', tag='ost'))
        if q + 2 < 5: w += accreads(q + 2)
        cw = int(opt.cw)
        Q.push(RG.wo_items(cw))
        weave(sg, Q, w, cw, len(w) // (cw + 1))
        sg.addall(w)
        if q + 2 < 5: RG.give('a', AO(0, q + 2)[1], 2)
    stamp(sg, 6)

def phase_c(sg, Q, RG):
    a = sg.add
    RG.give('v', 196, 8)
    Q.push(RG.wo_items(int(opt.shadow)))
    weave(sg, Q, [], len(Q.q), 0)
    a(barrier(needvm=['ost']))
    stamp(sg, 7)
    lane0(sg, [f"s_lshr_b32 s{S_T0}, s{S_HQ}, 3", f"s_lshl_b32 s{S_T1}, s{S_B}, 2", f"s_add_u32 s{S_T0}, s{S_T0}, s{S_T1}", f"s_lshl_b32 s{S_T0}, s{S_T0}, 7",
               f"v_mov_b32 v{V_T0}, s{S_T0}", f"v_mov_b32 v{V_T1}, 1", f"buffer_atomic_add v{V_T1}, v{V_T0}, s[{S_C}:{S_C+3}], 0 offen"], "L_sig")
    sg.text(f"s_cmp_eq_u32 s{S_VALID}, 0"); sg.text("s_cbranch_scc1 L_fin")
    Q.push(RG.wo_items())
    weave(sg, Q, [], len(Q.q), 0)
    assert RG.nxt == 96, RG.nxt
    sg.text(f"s_mov_b32 s{S_SPIN}, {opt.spin}")
    sg.text("L_poll:")
    sg.text(f"buffer_load_dword v{V_T0}, v{V_PL}, s[{S_C}:{S_C+3}], 0 offen sc1")
    sg.text(f"s_sub_u32 s{S_SPIN}, s{S_SPIN}, 1")
    sg.text("s_waitcnt vmcnt(0)")
    sg.text(f"v_cmp_ne_u32 vcc, 8, v{V_T0}")
    sg.text(f"s_cmp_eq_u32 s{S_SPIN}, 0")
    sg.text("s_cbranch_scc1 L_polled")
    sg.text("s_nop 2")
    sg.text("s_cbranch_vccnz L_poll")
    sg.text("L_polled:")
    sg.vm = []
    stamp(sg, 8)
    ACC = 12
    RG.give('v', 36, 16); RG.give('v', 252, 1)
    free = [x[0] for x in RG.free]
    O = {}
    nxt = 0
    def oloads():
        nonlocal nxt
        while free and nxt < 64 and len(sg.vm) < 60:
            ks, m = divmod(nxt, 2); nxt += 1
            O[(ks, m)] = free.pop(0)
            a(vload(O[(ks, m)], 4, V_OL + m, S_O, S_TAB + (ks >> 2), (ks & 3) * 1024, flags=' sc1'))
    oloads()
    for ks in range(32):
        for m in range(2):
            for e in range(3):
                d = ('v', ACC + (e * 2 + m) * 4)
                a(mfma(d, RG.F[(ks, e)], O[(ks, m)], 0 if ks == 0 else d))
        free += [O[(ks, 0)], O[(ks, 1)]] + [RG.F[(ks, e)] for e in range(3)]
        oloads()
    stamp(sg, 9)
    a(S(f"s_mul_i32 s{S_T0}, s{S_W}, 6144", [S_W], [S_T0]))
    a(V(f"v_lshlrev_b32 v{V_T0}, 4, v{V_LANE}", [V_LANE], [V_T0]))
    a(V(f"v_add_u32 v{V_T1}, s{S_T0}, v{V_T0}", [V_T0, ('s', S_T0)], [V_T1]))
    a(S(f"s_mul_i32 s{S_T1}, s{S_NT}, 3", [S_NT], [S_T1]))
    a(S(f"s_add_u32 s{S_T1}, s{S_T1}, s{S_W}", [S_T1, S_W], [S_T1]))
    a(S(f"s_lshl_b32 s{S_T0}, s{S_W}, 11", [S_W], [S_T0]))
    a(V(f"v_add_u32 v{V_T2}, s{S_T0}, v{V_T0}", [V_T0, ('s', S_T0)], [V_T2]))
    a(V(f"v_lshlrev_b32 v{V_T3}, 3, v{V_G}", [V_G], [V_T3]))
    a(V(f"v_lshl_add_u32 v{V_T3}, v{V_N}, 10, v{V_T3}", [V_N, V_T3], [V_T3]))
    a(S(f"s_lshl_b32 s{S_T0}, s{S_MT}, 15", [S_MT], [S_T0]))
    a(S(f"s_lshl_b32 s{S_T2}, s{S_T1}, 5", [S_T1], [S_T2]))
    a(S(f"s_add_u32 s{S_T0}, s{S_T0}, s{S_T2}", [S_T0, S_T2], [S_T0]))
    a(V(f"v_add_u32 v{V_T3}, s{S_T0}, v{V_T3}", [V_T3, ('s', S_T0)], [V_T3]))
    for t in range(6):
        a(dswr('ds_write_b128', V_T1, ('v', ACC + t * 4), 4, t * 1024))
    a(barrier())
    sg.text(f"s_cmp_ge_u32 s{S_W}, 3"); sg.text("s_cbranch_scc1 L_fin")
    sg.text(f"s_cmp_ge_u32 s{S_T1}, 32"); sg.text("s_cbranch_scc1 L_fin")
    for m in range(2):
        for src in range(4):
            a(dsrd('ds_read_b128', ('v', 40 + (m * 4 + src) * 4), 4, V_T2, src * 6144 + m * 1024))
    a(S(f"s_mov_b32 s{S_SO}, 16384", [], [S_SO]))
    for m in range(2):
        b = 40 + m * 16
        for src in range(1, 4):
            for r in (0, 2):
                a(V(f"v_pk_add_f32 v[{b+r}:{b+r+1}], v[{b+r}:{b+r+1}], v[{b+src*4+r}:{b+src*4+r+1}]", [b+r, b+r+1, b+src*4+r, b+src*4+r+1], [b+r, b+r+1]))
        a(V(f"v_cvt_pk_bf16_f32 v{b}, v{b}, v{b+1}", [b, b+1], [b]))
        a(V(f"v_cvt_pk_bf16_f32 v{b+1}, v{b+2}, v{b+3}", [b+2, b+3], [b+1]))
        a(vstore(('v', b), 2, V_T3, S_OUT, S_SO if m else None, 0))

def out_of_line():
    t = []
    t += ["L_spin_g:", f"s_mov_b32 s{S_SPIN}, {opt.spin}", "L_spin_g1:",
          f"buffer_load_dword v{V_GC}, v{V_GA}, s[{S_D}:{S_D+3}], 0 offen sc1", f"s_sub_u32 s{S_SPIN}, s{S_SPIN}, 1", "s_waitcnt vmcnt(0)",
          f"v_cmp_ne_u32 vcc, 128, v{V_GC}", f"s_cmp_eq_u32 s{S_SPIN}, 0", "s_cbranch_scc1 L_back_g", "s_nop 2", "s_cbranch_vccnz L_spin_g1", "s_branch L_back_g"]
    t += ["L_redo:", f"s_cmp_lg_u32 s{S_REDO}, 0", "s_cbranch_scc1 L_back_redo", f"s_mov_b32 s{S_REDO}, 1",
          "s_waitcnt vmcnt(0) lgkmcnt(0)", "s_barrier"]
    sg = Seg()
    p1 = prologue1()
    a = sg.add
    a(V(f"v_lshl_add_u32 v{V_T0}, s{S_W}, 2, v{V_G}", [V_G], [V_T0]))
    a(V(f"v_xor_b32 v{V_T1}, v{V_N}, v{V_T0}", [V_N, V_T0], [V_T1]))
    a(V(f"v_lshlrev_b32 v{V_T1}, 4, v{V_T1}", [V_T1], [V_T1]))
    a(V(f"v_lshl_add_u32 v{V_XD}, v{V_T0}, 10, v{V_T1}", [V_T0, V_T1], [V_XD]))
    a(S(f"s_and_b32 s{S_T0}, s{S_W}, 2", [S_W], [S_T0]))
    a(S(f"s_lshl_b32 s{S_T0}, s{S_T0}, 2", [S_T0], [S_T0]))
    a(V(f"v_lshl_add_u32 v{V_T1}, v{V_G}, 1, s{S_T0}", [V_G], [V_T1]))
    a(V(f"v_xor_b32 v{V_T1}, v{V_N}, v{V_T1}", [V_N, V_T1], [V_T1]))
    a(V(f"v_lshlrev_b32 v{V_T1}, 4, v{V_T1}", [V_T1], [V_T1]))
    a(V(f"v_lshl_add_u32 v{V_WD}, v{V_T0}, 13, v{V_T1}", [V_T0, V_T1], [V_WD]))
    t += sg.out + ["s_nop 4", "s_branch L_restart"]
    sg = Seg(); a = sg.add
    sg.text("L_max:")
    sg.text(f"s_mov_b32 s{S_SPIN}, m0")
    sg.drain()
    sg.text("s_barrier")
    MX, KF, AD = 76, V_VF, 84
    for q in range(5): a(V(f"v_mov_b32 v{MX+q}, 0xff800000", [], [MX+q]))
    for s in range(4): a(V(f"v_add_u32 v{AD+s}, {96*KB}, v{V_KA+s}", [V_KA+s], [AD+s]))
    a(S(f"s_mov_b32 s{S_T2}, 0", [], [S_T2]))
    sg.text("L_max_loop:"); sg.reset_hist()
    for j in range(8):
        if j % 4 == 0:
            a(S(f"s_add_u32 s{S_T1}, s{S_T2}, {(j>>2)*4096}", [S_T2], [S_T1]))
            a(S(f"s_add_u32 m0, s{S_W8K}, {96*KB + (j>>2)*4096}", [S_W8K], [M0]))
        a(dma(V_KD + (j & 3), S_K, S_T1, 1024 * (j & 3), 'mk'))
    for t_ in range(2):
        for s in range(4):
            a(dsrd('ds_read_b128', ('v', KF + (t_ * 4 + s) * 4), 4, AD + s, t_ * 4096, needvm=['mk']))
    for q in range(5):
        for t_ in range(2):
            d = ('v', 88 + t_ * 4)
            for s in range(4): a(mfma(d, ('v', KF + (t_ * 4 + s) * 4), AQ(q, s), 0 if s == 0 else d))
        for k in range(4):
            a(V(f"v_max3_f32 v{MX+q}, v{MX+q}, v{88+2*k}, v{89+2*k}", [MX+q, 88+2*k, 89+2*k], [MX+q]))
    sg.drain()
    a(S(f"s_add_u32 s{S_T2}, s{S_T2}, 8192", [S_T2], [S_T2]))
    sg.text(f"s_cmp_lt_u32 s{S_T2}, 65536"); sg.text("s_nop 4"); sg.text("s_cbranch_scc1 L_max_loop")
    sg.text("s_barrier")
    a(S(f"s_mul_i32 s{S_T0}, s{S_W}, 1280", [S_W], [S_T0]))
    a(S(f"s_add_u32 s{S_T0}, s{S_T0}, {96*KB}", [S_T0], [S_T0]))
    a(V(f"v_lshl_add_u32 v{AD}, v{V_LANE}, 2, s{S_T0}", [V_LANE], [AD]))
    a(S(f"s_mov_b32 s{S_T0}, {96*KB}", [], [S_T0]))
    a(V(f"v_lshl_add_u32 v{AD+1}, v{V_N}, 2, s{S_T0}", [V_N], [AD+1]))
    for q in range(5): a(dswr('ds_write_b32', AD, ('v', MX + q), 1, q * 256))
    a(barrier())
    for q in range(5):
        for k in range(16):
            a(dsrd('ds_read_b32', ('v', KF + k), 1, AD + 1, (k >> 2) * 1280 + q * 256 + (k & 3) * 64))
        for k in range(8):
            a(V(f"v_max3_f32 v{MX+q}, v{MX+q}, v{KF+2*k}, v{KF+2*k+1}", [MX+q, KF+2*k, KF+2*k+1], [MX+q]))
        for r in range(4):
            a(V(f"v_sub_f32 v{V_NEGM+q*4+r}, 0, v{MX+q}", [MX+q], [V_NEGM+q*4+r]))
    sg.drain()
    sg.text("s_barrier"); sg.text(f"s_mov_b32 m0, s{S_SPIN}"); sg.text("s_nop 4"); sg.text("s_branch L_back_max")
    return t + sg.out

def stamp_out(sg, n):
    if not opt.stamps: return
    stamp(sg, n - 1)
    t = ["s_load_dwordx2 s[4:5], s[0:1], 56", "s_waitcnt lgkmcnt(0)", f"s_add_u32 s4, s4, {16<<20}", "s_addc_u32 s5, s5, 0", "s_and_b32 s5, s5, 0xffff",
         "s_mov_b32 s6, 0x100000", "s_mov_b32 s7, 0x20000", "s_lshl_b32 s8, s2, 2", "s_add_u32 s8, s8, s32", "s_lshl_b32 s8, s8, 6", "v_mov_b32 v2, s8"]
    for i in range(n):
        t += [f"v_mov_b32 v3, s{3 if i == 0 else 76+2*i}", f"buffer_store_dword v3, v2, s[4:7], 0 offen offset:{4*i}"]
    for x in t: sg.text(x)

def kernel():
    sg = Seg()
    sg.text(NAME + "_kernel:")
    sg.text("s_cmp_ge_u32 s2, 256")
    sg.text("s_cbranch_scc1 L_end")
    if opt.stamps:
        stamp(sg, 0)
    sg.addall(prologue1())
    if opt.stamps:
        sg.text("s_mov_b32 s3, s76")
        for i in range(1, NST): sg.text(f"s_mov_b32 s{76+2*i}, 0") if 76 + 2*i < 92 else None
    p2 = prologue2()
    Q = Queue()
    first = x_dma(0) + w_dma(0)
    sg.addall(restart_setup())
    Q.push(first)
    weave(sg, Q, [], 9, 0)
    sg.addall(p2)
    sg.text("s_cmp_ge_u32 s2, 32"); sg.text("s_cbranch_scc1 L_nocz")
    lane0(sg, [f"s_lshl_b32 s{S_SPIN}, s2, 7", f"v_mov_b32 v253, s{S_SPIN}", "v_mov_b32 v255, 0",
               f"buffer_store_dword v255, v253, s[{S_C}:{S_C+3}], 0 offen sc1"], "L_nocz")
    sg.text("s_branch L_first")
    sg.text("L_restart:")
    s2 = Seg(); s2.addall(restart_setup()); Q2 = Queue(); Q2.push(x_dma(0) + w_dma(0)); weave(s2, Q2, [], 9, 0)
    for x in s2.out: sg.text(x)
    sg.text("L_first:")
    early, late = prologue3()
    def BB(u): return f"B{u if int(opt.lg0) else u + 1}"
    Q.push(rt_dma() + w_dma(1) + x_dma(1) + w_dma(2) + w_dma(3) + x_dma(2) + w_dma(4) + (rt_stores('RT') if int(opt.rt_at) < 0 else []) + x_dma(3, BB(1)) + w_dma(5, BB(1)) + w_dma(6, BB(2)) + w_dma(7, BB(3))
           + kv_dma('k', 0, BB(4)) + kv_dma('v', 0, BB(5)) + kv_dma('k', 1, 'B7') + kv_dma('v', 1, 'BQ'))
    for i in range(2, 8):
        Q.push(kv_dma('k', i) + kv_dma('v', i))
        if i == int(opt.rt_at) and not int(opt.no_rt): Q.push(rt_stores(None))
    n0 = int(opt.n0) - 9
    weave(sg, Q, early, n0, (len(early) + n0 - 1) // n0)
    sg.addall(early)
    qr = phase_a(sg, Q, late)
    sg.addall(qr[:0])
    stamp(sg, 3)
    sg.text(f"s_cmp_eq_u32 s{S_REDO}, 0"); sg.text("s_cbranch_scc1 L_back_max")
    s2 = Seg(); s2.addall(qr)
    for x in s2.out: sg.text(x)
    sg.text("s_branch L_max")
    sg.text("L_back_max:")
    RG = Regs()
    phase_b(sg, Q, qr, RG)
    stamp(sg, 4)
    combine(sg, Q, RG)
    phase_c(sg, Q, RG)
    sg.text("L_fin:")
    stamp_out(sg, 11)
    sg.text("L_end:")
    sg.text("s_endpgm")
    return sg.out + out_of_line()

def build():
    def fmt(l): return "\n".join(x if x.endswith(':') else "    " + x for x in l)
    nm = NAME + "_kernel"
    s = "; @launch grid=(256,1,1) block=(256,1,1) lds=163840\n"
    s += '.amdgcn_target "amdgcn-amd-amdhsa--gfx950"\n.text\n'
    s += f".globl {nm}\n.p2align 8\n.type {nm},@function\n" + fmt(kernel()) + "\n"
    s += f""".section .rodata,"a"
.p2align 6
.amdhsa_kernel {nm}
  .amdhsa_next_free_vgpr 512
  .amdhsa_next_free_sgpr 102
  .amdhsa_accum_offset 256
  .amdhsa_group_segment_fixed_size 0
  .amdhsa_kernarg_size 64
  .amdhsa_user_sgpr_count 2
  .amdhsa_user_sgpr_kernarg_segment_ptr 1
  .amdhsa_system_sgpr_workgroup_id_x 1
  .amdhsa_float_denorm_mode_32 3
.end_amdhsa_kernel
"""
    return s

if __name__ == '__main__':
    out = sys.argv[1] if len(sys.argv) > 1 else 'cdna_kernels/' + NAME + '.s'
    for a_ in sys.argv[2:]:
        k, v = a_.split('=', 1)
        setattr(opt, k, (' ' + v) if k.endswith('flags') and v else v)
    txt = build()
    open(out, 'w').write(txt)
```

```python
import sys, struct
from dsl import *

KB = 1024
NAME = 'standalone__gqa_block_cached__near_ridge'
def f2h(x): return hex(struct.unpack('<I', struct.pack('<f', x))[0])
QSCALE = 1.4426950408889634 / (128 ** 0.5)
WS_WO = 8 << 20
WS_CT = 12 << 20

class Opt:
    stamps = ''
    report = ''
    kv_flags = ''
    a_flags = ''
    n0 = 33
    warm = 1
    perstep = 5
    lo_exp = -40
    hi_exp = 40
    spin = 2000000
    rt_at = 2
    arr_at = 17
    cw = 2
    shadow = 16
    bst = '0,5,10,15,20'
    no_rt = 0
    clk = 'r'
    lg0 = 0
    vpos = '1,5,9,13'
opt = Opt()

S_X, S_WQ, S_K, S_V, S_O, S_WO, S_WT, S_WL, S_C, S_D, S_OUT = 4, 8, 12, 16, 20, 24, 28, 52, 56, 60, 64
S_W, S_B, S_HKV, S_HQ = 32, 33, 34, 35
S_W1K, S_W8K, S_SO, S_T0, S_T1, S_T2, S_SK, S_SV = 36, 37, 38, 39, 40, 41, 42, 43
S_TAB = 44
S_REDO, S_MT, S_NT, S_VALID, S_RT, S_SPIN = 68, 69, 70, 71, 72, 73
S_EX = 74
S_P = 76
S_ST = 80
V_LANE, V_N, V_G, V_T0, V_T1, V_T2, V_T3, V_T4, V_T5 = 1, 2, 3, 4, 5, 6, 7, 8, 9
V_WL, V_OL, V_PL = 244, 247, 249
V_KA, V_VA, V_KD, V_VD = 10, 14, 22, 26
V_OST, V_CW, V_LW = 28, 29, 31
V_ONES, V_NEGM, V_L, V_S, V_P, V_KF, V_VF = 32, 36, 56, 76, 92, 100, 164
V_XA, V_XB, V_WA, V_WB, V_XD, V_WD, V_QW = 228, 232, 236, 238, 240, 241, 242
V_GC, V_GA = 250, 251
V_RT = 252
A_O, A_Q = 0, 160
def AO(lam, q): return ('a', A_O + 4 * (q * 8 + lam))
def AQ(q, s): return ('a', A_Q + 4 * (q * 4 + s))

def XU(c, q):
    if c == 0: return q * 4 * KB
    if c == 1: return 20 * KB + q * 4 * KB
    if c == 2: return 128 * KB + q * 4 * KB
    return [120, 124, 148, 152, 156][q] * KB
def WU(slot, ks):
    return {0: [40, 48], 1: [56, 96], 2: [104, 112], 3: [64, 72], 4: [80, 88]}[slot][ks] * KB
WSLOT = [0, 1, 2, 3, 4, 0, 1, 2]
QBUF = 128 * KB

def V(t, r=(), w=()):
    return valu(t, r=[('v', x) if isinstance(x, int) else x for x in r], w=[('v', x) if isinstance(x, int) else x for x in w])
def T(t, r=(), w=()):
    return valu(t, r=[('v', x) for x in r], w=[('v', x) for x in w], trans=True)
def S(t, r=(), w=()):
    return salu(t, r=[('s', x) if isinstance(x, int) else x for x in r], w=[('s', x) if isinstance(x, int) else x for x in w])
M0 = ('m0', 0)
VCC = ('vcc', 0)
def flat(l): return [x for y in l for x in y]

def srd(dst, plo, add_s=None, add_imm=0, size=0):
    o = []
    if add_s is not None:
        o.append(S(f"s_add_u32 s{dst}, s{plo}, s{add_s}", [plo, add_s], [dst]))
        o.append(S(f"s_addc_u32 s{dst+1}, s{plo+1}, 0", [plo+1], [dst+1]))
        o.append(S(f"s_and_b32 s{dst+1}, s{dst+1}, 0xffff", [dst+1], [dst+1]))
    elif add_imm:
        o.append(S(f"s_add_u32 s{dst}, s{plo}, {add_imm}", [plo], [dst]))
        o.append(S(f"s_addc_u32 s{dst+1}, s{plo+1}, 0", [plo+1], [dst+1]))
        o.append(S(f"s_and_b32 s{dst+1}, s{dst+1}, 0xffff", [dst+1], [dst+1]))
    else:
        o.append(S(f"s_mov_b32 s{dst}, s{plo}", [plo], [dst]))
        o.append(S(f"s_and_b32 s{dst+1}, s{plo+1}, 0xffff", [plo+1], [dst+1]))
    if isinstance(size, str):
        o.append(S(f"s_mov_b32 s{dst+2}, {size}", [int(size[1:])], [dst+2]))
    else:
        o.append(S(f"s_mov_b32 s{dst+2}, {size}", [], [dst+2]))
    o.append(S(f"s_mov_b32 s{dst+3}, 0x20000", [], [dst+3]))
    return o

class Item:
    def __init__(s, pre, ins, after=None): s.pre, s.ins, s.after = pre, ins, after
def x_dma(c, after=None):
    return [Item([S(f"s_add_u32 m0, s{S_W1K}, {XU(c,q) - c*256}", [S_W1K], [M0])],
                 dma(V_XD, S_X, S_TAB + q, c * 256, ('x', c), flags=opt.a_flags), after) for q in range(5)]
def w_dma(u, after=None):
    return [Item([S(f"s_mov_b32 s{S_SO}, {u*524288 + k*131072}", [], [S_SO]),
                  S(f"s_add_u32 m0, s{S_W1K}, {WU(WSLOT[u], k>>1) + (k&1)*4*KB}", [S_W1K], [M0])],
                 dma(V_WD, S_WQ, S_SO, 0, ('w', u), flags=opt.a_flags), after) for k in range(4)]
def kv_dma(kind, i, after=None):
    o = []
    base = (i & 1) * 32 * KB + (0 if kind == 'k' else 64 * KB)
    sr, so = (S_K, S_SK) if kind == 'k' else (S_V, S_SV)
    for j in range(8):
        pre = []
        if j % 4 == 0:
            pre.append(S(f"s_mov_b32 s{so}, {i*8192 + (j>>2)*4096}", [], [so]))
            pre.append(S(f"s_add_u32 m0, s{S_W8K}, {base + (j>>2)*4096}", [S_W8K], [M0]))
        va = V_KD + (j & 3) if kind == 'k' else V_VD + (j & 1)
        tag = (kind + 'r', i - 2, j >> 2)
        o.append(Item(pre, dma(va, sr, so, 1024 * (j & 3), (kind, i, j >> 2), needlg=[tag], flags=opt.kv_flags), after if i < 2 else tag))
    return o
def rt_dma():
    return [Item([S(f"s_mov_b32 s{S_SO}, {i*8192 - i*1024}", [], [S_SO])] + ([S(f"s_mov_b32 m0, s{S_RT}", [S_RT], [M0])] if i == 0 else []),
                 dma(V_RT, S_WO, S_SO, i * 1024, 'rt'), None) for i in range(4)]
RTF = 240
def rt_reads():
    return [dsrd('ds_read_b64_tr_b16', ('a', RTF + e * 4 + h * 2), 2, V_RT + 1, h * 2048 + e * 32, needvm=['rt']) for e in range(4) for h in range(2)]
def rt_stores(after):
    return [Item([S(f"s_mov_b32 s{S_SO}, {e*128*KB}", [], [S_SO])], vstore(('a', RTF + e * 4), 4, V_RT + 2, S_WT, S_SO, 0, flags=' sc1', tag='rts'), after) for e in range(4)]
def k_reads(i):
    return [dsrd('ds_read_b128', ('v', V_KF + (i & 1) * 32 + (t * 4 + s) * 4), 4, V_KA + s, (i & 1) * 32 * KB + t * 4096,
                 needvm=[('k', i, t)], lgtag=('kr', i, t)) for t in range(2) for s in range(4)]
def v_reads(i):
    return [dsrd('ds_read_b64_tr_b16', ('v', V_VF + (i & 1) * 32 + lam * 4 + h * 2), 2, V_VA + lam, (i & 1) * 32 * KB + h * 4096,
                 needvm=[('v', i, h)], lgtag=('vr', i, h)) for h in range(2) for lam in range(8)]

class Queue:
    def __init__(s): s.q = []; s.pts = set()
    def push(s, items): s.q += items
    def mark(s, p): s.pts.add(p)
    def pop(s):
        if s.q and (s.q[0].after is None or s.q[0].after in s.pts): return s.q.pop(0)
        return None

def place(gaps, Q, pos):
    last = -1
    for p in pos:
        if p >= len(gaps): continue
        it = Q.pop()
        if it is None: break
        pre = list(it.pre)
        g = p - 1
        front = []
        while pre:
            x = pre.pop()
            if g > last: gaps[g].insert(0, x); g -= 1
            else: front.insert(0, x)
        k = 0
        while k < len(gaps[p]) and gaps[p][k].k == 'salu': k += 1
        gaps[p][k:k] = front + [it.ins]
        last = p
def weave(sg, Q, fill, n, per):
    for _ in range(n):
        it = Q.pop()
        if it is not None: sg.addall(it.pre + [it.ins])
        for _ in range(per):
            if fill: sg.add(fill.pop(0))

NST = 12
def stamp(sg, i, grp='1'):
    if not opt.stamps: return
    if 5 <= i <= 9 and grp != opt.stamps: return
    sg.text(f"{'s_memtime' if opt.clk == 'c' else 's_memrealtime'} s[{76+2*i}:{77+2*i}]")

def prologue1():
    o = []; a = o.append
    a(raw("s_load_dwordx2 s[92:93], s[0:1], 0"))
    a(raw("s_load_dwordx4 s[96:99], s[0:1], 24"))
    a(V(f"v_lshrrev_b32 v{V_T0}, 6, v0", [0], [V_T0]))
    a(V(f"v_and_b32 v{V_LANE}, 63, v0", [0], [V_LANE]))
    a(V(f"v_readfirstlane_b32 s{S_W}, v{V_T0}", [V_T0], [('s', S_W)]))
    a(S(f"s_and_b32 s{S_HKV}, s2, 7", [2], [S_HKV]))
    a(S(f"s_lshr_b32 s{S_B}, s2, 5", [2], [S_B]))
    a(S(f"s_bfe_u32 s{S_T0}, s2, 0x20003", [2], [S_T0]))
    a(S(f"s_lshl_b32 s{S_HQ}, s{S_HKV}, 2", [S_HKV], [S_HQ]))
    a(S(f"s_add_u32 s{S_HQ}, s{S_HQ}, s{S_T0}", [S_HQ, S_T0], [S_HQ]))
    a(V(f"v_and_b32 v{V_N}, 15, v{V_LANE}", [V_LANE], [V_N]))
    a(V(f"v_lshrrev_b32 v{V_G}, 4, v{V_LANE}", [V_LANE], [V_G]))
    a(S(f"s_lshl_b32 s{S_W1K}, s{S_W}, 10", [S_W], [S_W1K]))
    a(S(f"s_lshl_b32 s{S_W8K}, s{S_W}, 13", [S_W], [S_W8K]))
    a(V(f"v_lshl_add_u32 v{V_T0}, s{S_W}, 2, v{V_G}", [V_G, ('s', S_W)], [V_T0]))
    a(V(f"v_xor_b32 v{V_T1}, v{V_N}, v{V_T0}", [V_N, V_T0], [V_T1]))
    a(V(f"v_lshlrev_b32 v{V_T1}, 4, v{V_T1}", [V_T1], [V_T1]))
    a(V(f"v_lshl_add_u32 v{V_XD}, v{V_T0}, 10, v{V_T1}", [V_T0, V_T1], [V_XD]))
    a(S(f"s_and_b32 s{S_T0}, s{S_W}, 2", [S_W], [S_T0]))
    a(S(f"s_lshl_b32 s{S_T0}, s{S_T0}, 2", [S_T0], [S_T0]))
    a(V(f"v_lshl_add_u32 v{V_T1}, v{V_G}, 1, s{S_T0}", [V_G, ('s', S_T0)], [V_T1]))
    a(V(f"v_xor_b32 v{V_T1}, v{V_N}, v{V_T1}", [V_N, V_T1], [V_T1]))
    a(V(f"v_lshlrev_b32 v{V_T1}, 4, v{V_T1}", [V_T1], [V_T1]))
    a(V(f"v_lshl_add_u32 v{V_WD}, v{V_T0}, 13, v{V_T1}", [V_T0, V_T1], [V_WD]))
    a(S(f"s_mul_i32 s{S_T0}, s{S_B}, 81920", [S_B], [S_T0]))
    a(S(f"s_lshl_b32 s{S_T2}, s{S_HQ}, 8", [S_HQ], [S_T2]))
    a(S(f"s_sub_u32 s{S_T1}, 4194304, s{S_T2}", [S_T2], [S_T1]))
    a(S(f"s_mov_b32 s{S_REDO}, 0", [], [S_REDO]))
    a(S(f"s_and_b32 s{S_SK}, s2, 1", [2], [S_SK]))
    a(S(f"s_lshl_b32 s{S_SK}, s{S_SK}, 2", [S_SK], [S_SK]))
    a(S(f"s_add_u32 s{S_SK}, s{S_SK}, s{S_W}", [S_SK, S_W], [S_SK]))
    a(S(f"s_lshr_b32 s{S_SV}, s2, 1", [2], [S_SV]))
    a(S(f"s_lshl_b32 s{S_SO}, s{S_SV}, 15", [S_SV], [S_SO]))
    a(S(f"s_lshl_b32 s{S_RT}, s{S_SK}, 7", [S_SK], [S_RT]))
    a(S(f"s_add_u32 s{S_SO}, s{S_SO}, s{S_RT}", [S_SO, S_RT], [S_SO]))
    a(V(f"v_lshrrev_b32 v{V_T0}, 3, v{V_LANE}", [V_LANE], [V_T0]))
    a(V(f"v_and_b32 v{V_T1}, 7, v{V_LANE}", [V_LANE], [V_T1]))
    a(V(f"v_lshlrev_b32 v{V_T1}, 4, v{V_T1}", [V_T1], [V_T1]))
    a(V(f"v_lshl_add_u32 v{V_T0}, v{V_T0}, 10, v{V_T1}", [V_T0, V_T1], [V_T0]))
    a(V(f"v_add_u32 v{V_RT}, s{S_SO}, v{V_T0}", [V_T0, ('s', S_SO)], [V_RT]))
    a(S(f"s_lshl_b32 s{S_SK}, s{S_SK}, 19", [S_SK], [S_SK]))
    a(S(f"s_lshl_b32 s{S_SV}, s{S_SV}, 10", [S_SV], [S_SV]))
    a(S(f"s_add_u32 s{S_SK}, s{S_SK}, s{S_SV}", [S_SK, S_SV], [S_SK]))
    a(V(f"v_lshl_add_u32 v{V_RT+2}, v{V_LANE}, 4, s{S_SK}", [V_LANE, ('s', S_SK)], [V_RT+2]))
    a(S(f"s_lshl_b32 s{S_RT}, s{S_W}, 12", [S_W], [S_RT]))
    a(S(f"s_cmp_lt_u32 s{S_W}, 2", [S_W], []))
    a(S(f"s_cselect_b32 s{S_SO}, 0, {20*KB}", [], [S_SO]))
    a(S(f"s_add_u32 s{S_RT}, s{S_RT}, s{S_SO}", [S_RT, S_SO], [S_RT]))
    a(S(f"s_add_u32 s{S_RT}, s{S_RT}, {120*KB}", [S_RT], [S_RT]))
    a(raw("s_waitcnt lgkmcnt(0)", 'wait'))
    o += srd(S_X, 92, add_s=S_T0, size=81920)
    o += srd(S_WQ, 96, add_s=S_T2, size=f"s{S_T1}")
    o += srd(S_WO, 98, size=4194304)
    a(raw("s_load_dwordx4 s[92:95], s[0:1], 8"))
    a(raw("s_load_dwordx4 s[96:99], s[0:1], 40"))
    a(raw("s_load_dwordx2 s[100:101], s[0:1], 56"))
    return o

def restart_setup():
    return [S(f"s_mov_b32 s{S_TAB+q}, {q*16384}", [], [S_TAB+q]) for q in range(5)]

def prologue2():
    o = []; a = o.append
    a(raw("s_waitcnt lgkmcnt(0)", 'wait'))
    a(S(f"s_lshl_b32 s{S_T0}, s{S_B}, 3", [S_B], [S_T0]))
    a(S(f"s_add_u32 s{S_T0}, s{S_T0}, s{S_HKV}", [S_T0, S_HKV], [S_T0]))
    a(S(f"s_lshl_b32 s{S_T0}, s{S_T0}, 2", [S_T0], [S_T0]))
    a(S(f"s_add_u32 s{S_T0}, s{S_T0}, s{S_W}", [S_T0, S_W], [S_T0]))
    a(S(f"s_lshl_b32 s{S_T0}, s{S_T0}, 16", [S_T0], [S_T0]))
    o += srd(S_K, 92, add_s=S_T0, size=65536)
    o += srd(S_V, 94, add_s=S_T0, size=65536)
    o += srd(S_O, 100, size=8*5*128*1024)
    o += srd(S_WT, 100, add_imm=WS_WO, size=4194304)
    o += srd(S_C, 100, add_imm=WS_CT, size=8192)
    o += srd(S_D, 98, size=256)
    o += srd(S_OUT, 96, size=655360)
    a(S(f"s_lshr_b32 s{S_T0}, s2, 3", [2], [S_T0]))
    a(S(f"s_mul_i32 s{S_NT}, s{S_T0}, 52", [S_T0], [S_NT]))
    a(S(f"s_lshr_b32 s{S_NT}, s{S_NT}, 8", [S_NT], [S_NT]))
    a(S(f"s_mul_i32 s{S_MT}, s{S_NT}, 5", [S_NT], [S_MT]))
    a(S(f"s_sub_u32 s{S_MT}, s{S_T0}, s{S_MT}", [S_T0, S_MT], [S_MT]))
    a(S(f"s_lshr_b32 s{S_T1}, s{S_HKV}, 1", [S_HKV], [S_T1]))
    a(S(f"s_mul_i32 s{S_T1}, s{S_T1}, 5", [S_T1], [S_T1]))
    a(S(f"s_add_u32 s{S_MT}, s{S_MT}, s{S_T1}", [S_MT, S_T1], [S_MT]))
    a(S(f"s_and_b32 s{S_T1}, s{S_HKV}, 1", [S_HKV], [S_T1]))
    a(S(f"s_sub_u32 s{S_T2}, 6, s{S_T1}", [S_T1], [S_T2]))
    a(S(f"s_cmp_lt_u32 s{S_NT}, s{S_T2}", [S_NT, S_T2], []))
    a(S(f"s_cselect_b32 s{S_VALID}, 1, 0", [], [S_VALID]))
    a(S(f"s_mul_i32 s{S_T1}, s{S_T1}, 6", [S_T1], [S_T1]))
    a(S(f"s_add_u32 s{S_NT}, s{S_NT}, s{S_T1}", [S_NT, S_T1], [S_NT]))
    a(S(f"s_mov_b32 s{S_WL}, s{S_WT}", [S_WT], [S_WL]))
    a(S(f"s_mov_b32 s{S_WL+1}, s{S_WT+1}", [S_WT+1], [S_WL+1]))
    a(S(f"s_lshl_b32 s{S_WL+2}, s{S_VALID}, 22", [S_VALID], [S_WL+2]))
    a(S(f"s_mov_b32 s{S_WL+3}, 0x20000", [], [S_WL+3]))
    a(S(f"s_lshl_b32 s{S_T0}, s{S_W}, 15", [S_W], [S_T0]))
    a(S(f"s_mul_i32 s{S_T1}, s{S_NT}, {3*128*KB}", [S_NT], [S_T1]))
    a(S(f"s_add_u32 s{S_T1}, s{S_T1}, s{S_T0}", [S_T1, S_T0], [S_T1]))
    a(V(f"v_lshl_add_u32 v{V_WL}, v{V_LANE}, 4, s{S_T1}", [V_LANE, ('s', S_T1)], [V_WL]))
    a(V(f"v_add_u32 v{V_WL+1}, {128*KB}, v{V_WL}", [V_WL], [V_WL+1]))
    a(V(f"v_add_u32 v{V_WL+2}, {256*KB}, v{V_WL}", [V_WL], [V_WL+2]))
    a(S(f"s_lshl_b32 s{S_T1}, s{S_MT}, 18", [S_MT], [S_T1]))
    a(S(f"s_add_u32 s{S_T1}, s{S_T1}, s{S_T0}", [S_T1, S_T0], [S_T1]))
    a(V(f"v_lshl_add_u32 v{V_OL}, v{V_LANE}, 4, s{S_T1}", [V_LANE, ('s', S_T1)], [V_OL]))
    a(V(f"v_add_u32 v{V_OL+1}, {128*KB}, v{V_OL}", [V_OL], [V_OL+1]))
    a(V(f"v_and_b32 v{V_T0}, 1, v{V_LANE}", [V_LANE], [V_T0]))
    a(V(f"v_lshlrev_b32 v{V_GA}, 7, v{V_T0}", [V_T0], [V_GA]))
    a(V(f"v_lshl_add_u32 v{V_T0}, s{S_MT}, 1, v{V_T0}", [V_T0, ('s', S_MT)], [V_T0]))
    a(V(f"v_mul_u32_u24 v{V_T0}, 52, v{V_T0}", [V_T0], [V_T0]))
    a(V(f"v_lshrrev_b32 v{V_T0}, 8, v{V_T0}", [V_T0], [V_T0]))
    a(V(f"v_lshl_add_u32 v{V_T0}, v{V_T0}, 2, s{S_W}", [V_T0, ('s', S_W)], [V_T0]))
    a(V(f"v_lshlrev_b32 v{V_PL}, 7, v{V_T0}", [V_T0], [V_PL]))
    return o

def prologue3():
    o = []; a = o.append
    for s in range(4):
        a(V(f"v_add_u32 v{V_T0}, {4*s}, v{V_G}", [V_G], [V_T0]))
        a(V(f"v_xor_b32 v{V_T0}, v{V_T0}, v{V_N}", [V_T0, V_N], [V_T0]))
        a(V(f"v_lshlrev_b32 v{V_T0}, 4, v{V_T0}", [V_T0], [V_T0]))
        a(V(f"v_lshl_add_u32 v{V_XA+s}, v{V_N}, 8, v{V_T0}", [V_N, V_T0], [V_XA+s]))
        a(V(f"v_add_u32 v{V_XB+s}, {120*KB}, v{V_XA+s}", [V_XA+s], [V_XB+s]))
    a(V(f"v_lshrrev_b32 v{V_T2}, 2, v{V_N}", [V_N], [V_T2]))
    a(V(f"v_bfe_u32 v{V_T3}, v{V_N}, 1, 1", [V_N], [V_T3]))
    a(V(f"v_and_b32 v{V_T4}, 1, v{V_N}", [V_N], [V_T4]))
    a(V(f"v_lshlrev_b32 v{V_T4}, 3, v{V_T4}", [V_T4], [V_T4]))
    a(V(f"v_and_b32 v{V_T5}, 1, v{V_G}", [V_G], [V_T5]))
    a(V(f"v_lshl_add_u32 v{V_T5}, v{V_T5}, 2, v{V_T2}", [V_T5, V_T2], [V_T5]))
    a(V(f"v_lshlrev_b32 v{V_T5}, 1, v{V_T5}", [V_T5], [V_T5]))
    a(S(f"s_lshl_b32 s{S_T1}, s{S_W}, 2", [S_W], [S_T1]))
    a(V(f"v_lshl_add_u32 v{V_T1}, v{V_G}, 3, v{V_T2}", [V_G, V_T2], [V_T1]))
    a(V(f"v_lshl_add_u32 v{V_T1}, v{V_T1}, 8, v{V_T4}", [V_T1, V_T4], [V_T1]))
    for e in range(2):
        a(V(f"v_add3_u32 v{V_T0}, s{S_T1}, v{V_T3}, {2*e}", [V_T3, ('s', S_T1)], [V_T0]))
        a(V(f"v_xor_b32 v{V_T0}, v{V_T0}, v{V_T5}", [V_T0, V_T5], [V_T0]))
        a(V(f"v_lshl_add_u32 v{V_T0}, v{V_T0}, 4, v{V_T1}", [V_T0, V_T1], [V_T0]))
        a(V(f"v_add_u32 v{V_WA+e}, {40*KB}, v{V_T0}", [V_T0], [V_WA+e]))
        a(V(f"v_add_u32 v{V_WB+e}, {96*KB}, v{V_T0}", [V_T0], [V_WB+e]))
    a(V(f"v_lshl_add_u32 v{V_T1}, v{V_G}, 2, v{V_T2}", [V_G, V_T2], [V_T1]))
    a(V(f"v_and_b32 v{V_T0}, 3, v{V_N}", [V_N], [V_T0]))
    a(V(f"v_lshlrev_b32 v{V_T0}, 3, v{V_T0}", [V_T0], [V_T0]))
    a(V(f"v_lshl_add_u32 v{V_T0}, v{V_T1}, 7, v{V_T0}", [V_T0, V_T1], [V_T0]))
    a(V(f"v_add_u32 v{V_RT+1}, s{S_RT}, v{V_T0}", [V_T0, ('s', S_RT)], [V_RT+1]))
    n_early = len(o)
    for s in range(4):
        a(V(f"v_add_u32 v{V_KA+s}, s{S_W8K}, v{V_XA+s}", [V_XA+s, ('s', S_W8K)], [V_KA+s]))
    a(V(f"v_lshl_add_u32 v{V_T1}, v{V_T1}, 8, v{V_T4}", [V_T1, V_T4], [V_T1]))
    a(S(f"s_add_u32 s{S_T2}, s{S_W8K}, {64*KB}", [S_W8K], [S_T2]))
    a(V(f"v_add_u32 v{V_T1}, s{S_T2}, v{V_T1}", [V_T1, ('s', S_T2)], [V_T1]))
    a(V(f"v_add_u32 v{V_T3}, s{S_T1}, v{V_T3}", [V_T3, ('s', S_T1)], [V_T3]))
    for lam in range(8):
        a(V(f"v_add_u32 v{V_T0}, {2*lam}, v{V_T3}", [V_T3], [V_T0]))
        a(V(f"v_and_b32 v{V_T0}, 15, v{V_T0}", [V_T0], [V_T0]))
        a(V(f"v_xor_b32 v{V_T0}, v{V_T0}, v{V_T5}", [V_T0, V_T5], [V_T0]))
        a(V(f"v_lshl_add_u32 v{V_VA+lam}, v{V_T0}, 4, v{V_T1}", [V_T0, V_T1], [V_VA+lam]))
    a(V(f"v_xor_b32 v{V_T0}, v{V_N}, v{V_G}", [V_N, V_G], [V_T0]))
    a(V(f"v_lshlrev_b32 v{V_T0}, 4, v{V_T0}", [V_T0], [V_T0]))
    a(V(f"v_lshl_add_u32 v{V_KD}, v{V_G}, 8, v{V_T0}", [V_G, V_T0], [V_KD]))
    for j in range(1, 4):
        a(V(f"v_xor_b32 v{V_KD+j}, {64*j}, v{V_KD}", [V_KD], [V_KD+j]))
    a(V(f"v_lshlrev_b32 v{V_T0}, 1, v{V_G}", [V_G], [V_T0]))
    a(V(f"v_xor_b32 v{V_T0}, v{V_N}, v{V_T0}", [V_N, V_T0], [V_T0]))
    a(V(f"v_lshlrev_b32 v{V_T0}, 4, v{V_T0}", [V_T0], [V_T0]))
    a(V(f"v_lshl_add_u32 v{V_VD}, v{V_G}, 8, v{V_T0}", [V_G, V_T0], [V_VD]))
    a(V(f"v_xor_b32 v{V_VD+1}, 128, v{V_VD}", [V_VD], [V_VD+1]))
    a(V(f"v_lshrrev_b32 v{V_T0}, 1, v{V_G}", [V_G], [V_T0]))
    a(V(f"v_add_u32 v{V_T0}, s{S_T1}, v{V_T0}", [V_T0, ('s', S_T1)], [V_T0]))
    a(V(f"v_xor_b32 v{V_T0}, v{V_T0}, v{V_N}", [V_T0, V_N], [V_T0]))
    a(V(f"v_lshlrev_b32 v{V_T0}, 4, v{V_T0}", [V_T0], [V_T0]))
    a(V(f"v_lshl_add_u32 v{V_T0}, v{V_N}, 8, v{V_T0}", [V_N, V_T0], [V_T0]))
    a(V(f"v_and_b32 v{V_T1}, 1, v{V_G}", [V_G], [V_T1]))
    a(V(f"v_lshl_add_u32 v{V_T0}, v{V_T1}, 3, v{V_T0}", [V_T0, V_T1], [V_T0]))
    a(V(f"v_add_u32 v{V_QW}, {QBUF}, v{V_T0}", [V_T0], [V_QW]))
    a(V(f"v_xor_b32 v{V_QW+1}, 32, v{V_QW}", [V_QW], [V_QW+1]))
    a(V(f"v_lshl_add_u32 v{V_CW}, v{V_LANE}, 4, s{S_W8K}", [V_LANE, ('s', S_W8K)], [V_CW]))
    a(V(f"v_add_u32 v{V_CW+1}, {64*KB}, v{V_CW}", [V_CW], [V_CW+1]))
    a(S(f"s_add_u32 s{S_T0}, s{S_W8K}, {102*KB}", [S_W8K], [S_T0]))
    a(V(f"v_lshl_add_u32 v{V_LW}, v{V_LANE}, 5, s{S_T0}", [V_LANE, ('s', S_T0)], [V_LW]))
    a(S(f"s_mul_i32 s{S_T0}, s{S_B}, 640", [S_B], [S_T0]))
    a(S(f"s_lshl_b32 s{S_T2}, s{S_HQ}, 2", [S_HQ], [S_T2]))
    a(S(f"s_add_u32 s{S_T0}, s{S_T0}, s{S_T2}", [S_T0, S_T2], [S_T0]))
    a(S(f"s_add_u32 s{S_T0}, s{S_T0}, s{S_W}", [S_T0, S_W], [S_T0]))
    a(S(f"s_lshl_b32 s{S_T0}, s{S_T0}, 10", [S_T0], [S_T0]))
    a(V(f"v_lshl_add_u32 v{V_OST}, v{V_LANE}, 4, s{S_T0}", [V_LANE, ('s', S_T0)], [V_OST]))
    a(V(f"v_cmp_eq_u32 vcc, 0, v{V_N}", [V_N], [VCC]))
    a(V(f"v_mov_b32 v{V_T0}, 0x3f803f80", [], [V_T0]))
    for i in range(4):
        a(V(f"v_cndmask_b32 v{V_ONES+i}, 0, v{V_T0}, vcc", [V_T0, VCC], [V_ONES+i]))
    for i in range(20):
        a(V(f"v_mov_b32 v{V_NEGM+i}, 0", [], [V_NEGM+i]))
    return o[:n_early], o[n_early:]

V_QACC = V_VF
V_XF = V_KF
V_WF = V_KF + 40
def a_reads(kap):
    u, ks = kap >> 1, kap & 1
    c, s = u >> 1, kap & 3
    o = []
    wb = WU(WSLOT[u], ks)
    xr = []
    for q in range(5):
        xb = XU(c, q)
        reg, base = (V_XA, 0) if xb < 64 * KB else (V_XB, 120 * KB)
        xr.append(dsrd('ds_read_b128', ('v', V_XF + (kap & 1) * 20 + q * 4), 4, reg + s, xb - base))
    wr = []
    for e in range(2):
        for h in range(2):
            reg, base = (V_WA, 40 * KB) if wb < 96 * KB else (V_WB, 96 * KB)
            wr.append(dsrd('ds_read_b64_tr_b16', ('v', V_WF + (kap & 1) * 8 + e * 4 + h * 2), 2, reg + e, wb - base + h * 1024))
    return wr[:2] + xr[:1] + wr[2:] + xr[1:]
def a_mfmas(kap):
    o = []
    for q in range(5):
        for e in range(2):
            d = ('v', V_QACC + (e * 5 + q) * 4)
            o.append(mfma(d, ('v', V_WF + (kap & 1) * 8 + e * 4), ('v', V_XF + (kap & 1) * 20 + q * 4), 0 if kap == 0 else d))
    return o
def lane0(sg, body, lab):
    sg.text(f"s_cmp_lg_u32 s{S_W}, 0"); sg.text(f"s_cbranch_scc1 {lab}")
    sg.text(f"s_mov_b64 s[{S_EX}:{S_EX+1}], exec"); sg.text("s_mov_b64 exec, 1")
    for x in body: sg.text(x)
    sg.text(f"s_mov_b64 exec, s[{S_EX}:{S_EX+1}]")
    sg.text(f"{lab}:")
def phase_a(sg, Q, late):
    stamp(sg, 1)
    sg.add(barrier(needvm=[('x', 0), ('w', 0)])); Q.mark('B0')
    stamp(sg, 2)
    sg.addall(a_reads(0))
    for kap in range(16):
        mf = a_mfmas(kap)
        gaps = [[] for _ in mf]
        if kap < 15:
            nx = kap + 1
            if nx % 2 == 0:
                u = nx >> 1
                need = [('x', u >> 1), ('w', u)]
                while any(it.ins.vmtag in need for it in Q.q):
                    weave(sg, Q, [], 1, 0)
                sg.add(barrier(needvm=need, lg0=bool(int(opt.lg0)))); Q.mark(f'B{u}')
                if u in (1, 3, 5, 7): stamp(sg, 5 + u // 2, 'A')
            for i, r in enumerate(a_reads(nx)): gaps[i].append(r)
        if kap == 0:
            for i, r in enumerate(rt_reads()): gaps[i + 1].append(r)
        if kap == 1: Q.mark('RT')
        pos = [1, 5, 9] if kap % 2 == 0 else [3, 7]
        if int(opt.perstep) == 6: pos = [1, 4, 7] if kap % 2 == 0 else [1, 4, 8]
        place(gaps, Q, pos)
        if kap >= 1:
            for gi in range(10):
                if len([x for x in gaps[gi] if x.k != 'salu']) < 2 and late: gaps[gi].append(late.pop(0))
                while late and late[0].k == 'salu': gaps[gi].append(late.pop(0))
        sg.addall(interleave(mf, gaps))
    stamp(sg, 9, 'A')
    sg.addall(late); del late[:]
    fin = [S(f"s_mov_b32 s{S_T2}, {f2h(QSCALE)}", [], [S_T2])]
    for q in range(5):
        for e in range(2):
            b = V_QACC + (e * 5 + q) * 4
            for r in range(4):
                fin.append(V(f"v_mul_f32 v{b+r}, s{S_T2}, v{b+r}", [b+r, ('s', S_T2)], [b+r]))
            fin.append(V(f"v_cvt_pk_bf16_f32 v{b}, v{b}, v{b+1}", [b, b+1], [b]))
            fin.append(V(f"v_cvt_pk_bf16_f32 v{b+1}, v{b+2}, v{b+3}", [b+2, b+3], [b+1]))
            fin.append(dswr('ds_write_b64', V_QW + e, ('v', b), 2, q * 4096))
    weave(sg, Q, fin, 5, 14)
    sg.addall(fin)
    sg.add(barrier()); Q.mark('BQ')
    qr = [dsrd('ds_read_b128', AQ(q, s), 4, V_XB + s, QBUF - 120 * KB + q * 4096) for q in range(5) for s in range(4)]
    return qr

def qk(tau):
    i, q = divmod(tau, 5)
    o = []
    for s in range(4):
        for t in range(2):
            d = ('v', V_S + (tau & 1) * 8 + t * 4)
            o.append(mfma(d, ('v', V_KF + (i & 1) * 32 + (t * 4 + s) * 4), AQ(q, s), ('v', V_NEGM + q * 4) if s == 0 else d))
    return o
def pv(tau):
    i, q = divmod(tau, 5)
    p = ('v', V_P + (tau & 1) * 4)
    o = [mfma(AO(lam, q), ('v', V_VF + (i & 1) * 32 + lam * 4), p, AO(lam, q) if i else 0) for lam in range(8)]
    o.insert(0, mfma(('v', V_L + q * 4), ('v', V_ONES), p, ('v', V_L + q * 4) if i else 0))
    return o
def sm(tau):
    b = V_S + (tau & 1) * 8
    p = V_P + (tau & 1) * 4
    e = [T(f"v_exp_f32 v{b+i}, v{b+i}", [b+i], [b+i]) for i in range(8)]
    c = [V(f"v_cvt_pk_bf16_f32 v{p+i}, v{b+2*i}, v{b+2*i+1}", [b+2*i, b+2*i+1], [p+i]) for i in range(4)]
    return e, c
def comb_writes(q):
    o = []
    for jd in range(1, 4):
        for e in range(2):
            u = q * 6 + (jd - 1) * 2 + e
            row = u >> 3
            o.append(dswr('ds_write_b128', V_CW + (row >> 1), AO(2 * jd + e, q), 4, (row & 1) * 32 * KB + (u & 7) * KB, lgtag=('cw', q)))
    return o

class Regs:
    def __init__(s): s.free = []; s.F = {}; s.nxt = 0
    def give(s, f, lo, n, tag=None): s.free += [((f, lo + 4 * i), tag) for i in range(n)]
    def wo_items(s, limit=1000):
        out = []
        while s.free and s.nxt < 96 and len(out) < limit:
            quad, tag = s.free.pop(0)
            ks, e = divmod(s.nxt, 3); s.nxt += 1
            s.F[(ks, e)] = quad
            ins = vload(quad, 4, V_WL + e, S_WL, S_TAB + (ks >> 2), (ks & 3) * 1024, flags=' sc1')
            if tag: ins.needlg = (tag,)
            out.append(Item([], ins))
        return out

def phase_b(sg, Q, qr, RG):
    NT = 8
    sg.addall(qr[:4])
    while any(it.ins.vmtag in (('k', 0, 0), ('k', 0, 1)) for it in Q.q): weave(sg, Q, [], 1, 0)
    sg.addall(k_reads(0)); Q.mark(('kr', 0, 0)); Q.mark(('kr', 0, 1))
    qr = qr[4:]
    for tau in range(-1, 41):
        i, q = divmod(tau, 5) if tau >= 0 else (-1, 4)
        mf = []
        bst = [int(x) for x in opt.bst.split(',')]
        if tau in bst: stamp(sg, 5 + bst.index(tau), 'B')
        if tau + 1 < 40: mf += qk(tau + 1)
        if tau - 1 >= 0: mf += pv(tau - 1)
        ds, marks = [], []
        if tau == -1: ds = qr
        elif tau == 0: ds = v_reads(0); marks = [('vr', 0, 0), ('vr', 0, 1)]
        elif i < NT:
            if q == 2 and i + 1 < NT: ds = k_reads(i + 1)[:4]; marks = [('kr', i + 1, 0)]
            if q == 3 and i + 1 < NT: ds = k_reads(i + 1)[4:]; marks = [('kr', i + 1, 1)]
            if q == 4 and i + 1 < NT: ds = v_reads(i + 1)[:8]; marks = [('vr', i + 1, 0)]
            if q == 0: ds = v_reads(i)[8:]; marks = [('vr', i, 1)]
            if i == NT - 1 and q >= 2: ds = comb_writes(q - 2)
        if tau == 40: ds = comb_writes(3)
        n = len(mf)
        gaps = [[] for _ in range(n)]
        e, c = sm(tau) if 0 <= tau < 40 else ([], [])
        if n == 17:
            epos = [0, 2, 4, 6, 8, 10, 12, 14]; cpos = [3, 7, 11, 15]
            dpos = [1, 3, 5, 7, 9, 11, 13, 15] if len(ds) > 4 else [1, 3, 5, 7]
            vpos = [int(x) for x in opt.vpos.split(',')]
        else:
            epos = list(range(8)); cpos = [min(n - 1, x) for x in (2, 4, 6, 8)]
            dpos = [(k * n) // max(1, len(ds)) for k in range(len(ds))]
            vpos = [1, 5]
        for x, p_ in zip(ds, dpos): gaps[p_].append(x)
        if tau == int(opt.arr_at):
            assert not any(it.ins.vmtag == 'rts' for it in Q.q)
            sg.add(barrier(needvm=['rts'], lg0=False))
            sg.text(f"s_cmp_lg_u32 s{S_REDO}, 0"); sg.text("s_cbranch_scc1 L_noarr")
            lane0(sg, [f"s_and_b32 s{S_SPIN}, s2, 1", f"s_lshl_b32 s{S_SPIN}, s{S_SPIN}, 7", f"v_mov_b32 v253, s{S_SPIN}", "v_mov_b32 v255, 1",
                       f"buffer_atomic_add v255, v253, s[{S_D}:{S_D+3}], 0 offen"], "L_noarr")
        for x in ds:
            while any(it.ins.vmtag in x.needvm for it in Q.q): weave(sg, Q, [], 1, 0)
        if tau == 20:
            for k in range(8): gaps[2 * k].insert(0, S(f"s_mov_b32 s{S_TAB+k}, {k*4096}", [], [S_TAB+k]))
        if tau == 27:
            Q.push([Item([], vload(('v', V_GC), 1, V_GA, S_D, None, 0, flags=' sc1'))])
        if tau == 32:
            assert not Q.q
            sg.add(V(f"v_cmp_gt_u32 vcc, 128, v{V_GC}", [V_GC], [VCC]))
            sg.text("s_nop 4"); sg.text("s_cbranch_vccnz L_spin_g"); sg.text("L_back_g:")
            RG.give('a', 240, 4); RG.give('v', 228, 4)
        if tau == 34: RG.give('v', V_KF, 8)
        if 35 <= tau <= 39: RG.give('a', A_Q + 16 * (tau - 35), 4)
        if tau == 36: RG.give('v', V_VF, 8)
        if tau == 39: RG.give('v', V_KF + 32, 8)
        if tau >= 32 and len(Q.q) < 4: Q.push(RG.wo_items(4 - len(Q.q)))
        place(gaps, Q, vpos)
        for x, p_ in zip(e, epos): gaps[p_].append(x)
        for x, p_ in zip(c, cpos): gaps[p_].append(x)
        sg.addall(interleave(mf, gaps))
        for m in marks: Q.mark(m)

def combine(sg, Q, RG):
    V_CR, V_LR = V_KA, V_KA + 6
    pre = []
    a = pre.append
    a(V(f"v_lshlrev_b32 v{V_T0}, 4, v{V_LANE}", [V_LANE], [V_T0]))
    for jd in range(1, 4):
        a(S(f"s_sub_u32 s{S_T0}, s{S_W}, {jd}", [S_W], [S_T0]))
        a(S(f"s_and_b32 s{S_T0}, s{S_T0}, 3", [S_T0], [S_T0]))
        a(S(f"s_lshl_b32 s{S_T0}, s{S_T0}, 13", [S_T0], [S_T0]))
        a(V(f"v_add_u32 v{V_CR+2*(jd-1)}, s{S_T0}, v{V_T0}", [V_T0, ('s', S_T0)], [V_CR+2*(jd-1)]))
        a(V(f"v_add_u32 v{V_CR+2*(jd-1)+1}, {64*KB}, v{V_CR+2*(jd-1)}", [V_CR+2*(jd-1)], [V_CR+2*(jd-1)+1]))
    a(S(f"s_mov_b32 s{S_T0}, {102*KB}", [], [S_T0]))
    a(V(f"v_lshl_add_u32 v{V_LR}, v{V_N}, 5, s{S_T0}", [V_N, ('s', S_T0)], [V_LR]))
    sg.addall(pre)
    for q in range(5):
        sg.add(dswr('ds_write_b32', V_LW, ('v', V_L + q * 4), 1, q * 4))
    sg.addall(comb_writes(4))
    SETS = [(196, 204), (76, None)]
    def own(q): return 196 if q % 2 == 0 else 76
    def part(q, k):
        return 204 + 4 * k if q % 2 == 0 else (84 + 4 * k if k < 4 else 36 + 4 * (k - 4))
    def accreads(q):
        return [V(f"v_accvgpr_read_b32 v{own(q) + e*4 + r}, a{AO(e, q)[1] + r}", [('a', AO(e, q)[1] + r)], [own(q) + e*4 + r]) for e in range(2) for r in range(4)]
    def preads(q):
        o = []
        for jd in range(1, 4):
            for e in range(2):
                k = (jd - 1) * 2 + e; u = q * 6 + k; row = u >> 3
                o.append(dsrd('ds_read_b128', ('v', part(q, k)), 4, V_CR + 2 * (jd - 1) + (row >> 1), (row & 1) * 32 * KB + (u & 7) * KB))
        return o
    for q in range(4): RG.give('a', AO(2, q)[1], 6, ('cw', q))
    Q.push(RG.wo_items(3))
    weave(sg, Q, accreads(0) + accreads(1), 2, 8)
    sg.add(barrier())
    stamp(sg, 5)
    LS = V_L
    for src in range(4):
        sg.add(dsrd('ds_read_b128', ('v', LS + src * 4), 4, V_LR, src * 8 * KB))
        sg.add(dsrd('ds_read_b32', ('v', LS + 16 + src), 1, V_LR, src * 8 * KB + 16))
    sg.addall(preads(0)); sg.addall(preads(1))
    RG.give('a', AO(2, 4)[1], 6); RG.give('a', AO(0, 0)[1], 2); RG.give('a', AO(0, 1)[1], 2)
    def lreg(src, q): return LS + src * 4 + q if q < 4 else LS + 16 + src
    w = []
    for q in range(5):
        d = V_T0 + q
        w.append(V(f"v_add_f32 v{d}, v{lreg(0,q)}, v{lreg(1,q)}", [lreg(0,q), lreg(1,q)], [d]))
        w.append(V(f"v_add_f32 v{lreg(2,q)}, v{lreg(2,q)}, v{lreg(3,q)}", [lreg(2,q), lreg(3,q)], [lreg(2,q)]))
        w.append(V(f"v_add_f32 v{d}, v{d}, v{lreg(2,q)}", [d, lreg(2,q)], [d]))
    w.append(V(f"v_min3_f32 v{LS}, v{V_T0}, v{V_T0+1}, v{V_T0+2}", [V_T0, V_T0+1, V_T0+2], [LS]))
    w.append(V(f"v_min3_f32 v{LS}, v{LS}, v{V_T0+3}, v{V_T0+4}", [LS, V_T0+3, V_T0+4], [LS]))
    w.append(V(f"v_add_f32 v{LS+1}, v{V_T0}, v{V_T0+1}", [V_T0, V_T0+1], [LS+1]))
    w.append(V(f"v_add_f32 v{LS+2}, v{V_T0+2}, v{V_T0+3}", [V_T0+2, V_T0+3], [LS+2]))
    w.append(V(f"v_add_f32 v{LS+1}, v{LS+1}, v{V_T0+4}", [LS+1, V_T0+4], [LS+1]))
    w.append(V(f"v_add_f32 v{LS+1}, v{LS+1}, v{LS+2}", [LS+1, LS+2], [LS+1]))
    w.append(V(f"v_cmp_nle_f32 vcc, {f2h(2.0**int(opt.lo_exp))}, v{LS}", [LS], [VCC]))
    w.append(S(f"s_mov_b64 s[{S_EX}:{S_EX+1}], vcc", [VCC], [S_EX, S_EX+1]))
    w.append(V(f"v_cmp_nge_f32 vcc, {f2h(2.0**int(opt.hi_exp))}, v{LS+1}", [LS+1], [VCC]))
    w.append(S(f"s_or_b64 vcc, vcc, s[{S_EX}:{S_EX+1}]", [VCC, S_EX, S_EX+1], [VCC]))
    Q.push(RG.wo_items(2))
    weave(sg, Q, w, 2, 12)
    sg.addall(w)
    sg.text("s_cbranch_vccnz L_redo"); sg.text("L_back_redo:")
    for q in range(5):
        d = V_T0 + q
        sg.add(T(f"v_rcp_f32 v{d}, v{d}", [d], [d]))
    for q in range(5):
        w = []
        for e in range(2):
            o_ = own(q) + e * 4
            for jd in range(1, 4):
                p_ = part(q, (jd - 1) * 2 + e)
                for r in (0, 2):
                    w.append(V(f"v_pk_add_f32 v[{o_+r}:{o_+r+1}], v[{o_+r}:{o_+r+1}], v[{p_+r}:{p_+r+1}]", [o_+r, o_+r+1, p_+r, p_+r+1], [o_+r, o_+r+1]))
        if q + 2 < 5: w += preads(q + 2)
        o_ = own(q)
        ri = V_T0 + (q & ~1); sel = "op_sel:[0,1] op_sel_hi:[1,1]" if q & 1 else "op_sel:[0,0] op_sel_hi:[1,0]"
        for r in range(0, 8, 2):
            w.append(V(f"v_pk_mul_f32 v[{o_+r}:{o_+r+1}], v[{o_+r}:{o_+r+1}], v[{ri}:{ri+1}] {sel}", [o_+r, o_+r+1, V_T0+q], [o_+r, o_+r+1]))
        res = 20 + 4 * (q % 2)
        for r in range(4):
            w.append(V(f"v_cvt_pk_bf16_f32 v{res+r}, v{o_+2*r}, v{o_+2*r+1}", [o_+2*r, o_+2*r+1], [res+r]))
        w.append(S(f"s_mov_b32 s{S_SO}, {q*128*KB}", [], [S_SO]))
        w.append(vstore(('v', res), 4, V_OST, S_O, S_SO, 0, flags=' sc1', tag='ost'))
        if q + 2 < 5: w += accreads(q + 2)
        cw = int(opt.cw)
        Q.push(RG.wo_items(cw))
        weave(sg, Q, w, cw, len(w) // (cw + 1))
        sg.addall(w)
        if q + 2 < 5: RG.give('a', AO(0, q + 2)[1], 2)
    stamp(sg, 6)

def phase_c(sg, Q, RG):
    a = sg.add
    RG.give('v', 196, 8)
    Q.push(RG.wo_items(int(opt.shadow)))
    weave(sg, Q, [], len(Q.q), 0)
    a(barrier(needvm=['ost']))
    stamp(sg, 7)
    lane0(sg, [f"s_lshr_b32 s{S_T0}, s{S_HQ}, 3", f"s_lshl_b32 s{S_T1}, s{S_B}, 2", f"s_add_u32 s{S_T0}, s{S_T0}, s{S_T1}", f"s_lshl_b32 s{S_T0}, s{S_T0}, 7",
               f"v_mov_b32 v{V_T0}, s{S_T0}", f"v_mov_b32 v{V_T1}, 1", f"buffer_atomic_add v{V_T1}, v{V_T0}, s[{S_C}:{S_C+3}], 0 offen"], "L_sig")
    sg.text(f"s_cmp_eq_u32 s{S_VALID}, 0"); sg.text("s_cbranch_scc1 L_fin")
    Q.push(RG.wo_items())
    weave(sg, Q, [], len(Q.q), 0)
    assert RG.nxt == 96, RG.nxt
    sg.text(f"s_mov_b32 s{S_SPIN}, {opt.spin}")
    sg.text("L_poll:")
    sg.text(f"buffer_load_dword v{V_T0}, v{V_PL}, s[{S_C}:{S_C+3}], 0 offen sc1")
    sg.text(f"s_sub_u32 s{S_SPIN}, s{S_SPIN}, 1")
    sg.text("s_waitcnt vmcnt(0)")
    sg.text(f"v_cmp_gt_u32 vcc, 8, v{V_T0}")
    sg.text(f"s_cmp_eq_u32 s{S_SPIN}, 0")
    sg.text("s_cbranch_scc1 L_polled")
    sg.text("s_nop 2")
    sg.text("s_cbranch_vccnz L_poll")
    sg.text("L_polled:")
    sg.vm = []
    stamp(sg, 8)
    ACC = 12
    RG.give('v', 36, 16); RG.give('v', 252, 1)
    free = [x[0] for x in RG.free]
    O = {}
    nxt = 0
    def oloads():
        nonlocal nxt
        while free and nxt < 64 and len(sg.vm) < 60:
            ks, m = divmod(nxt, 2); nxt += 1
            O[(ks, m)] = free.pop(0)
            a(vload(O[(ks, m)], 4, V_OL + m, S_O, S_TAB + (ks >> 2), (ks & 3) * 1024, flags=' sc1'))
    oloads()
    for ks in range(32):
        for m in range(2):
            for e in range(3):
                d = ('v', ACC + (e * 2 + m) * 4)
                a(mfma(d, RG.F[(ks, e)], O[(ks, m)], 0 if ks == 0 else d))
        free += [O[(ks, 0)], O[(ks, 1)]] + [RG.F[(ks, e)] for e in range(3)]
        oloads()
    stamp(sg, 9)
    a(S(f"s_mul_i32 s{S_T0}, s{S_W}, 6144", [S_W], [S_T0]))
    a(V(f"v_lshlrev_b32 v{V_T0}, 4, v{V_LANE}", [V_LANE], [V_T0]))
    a(V(f"v_add_u32 v{V_T1}, s{S_T0}, v{V_T0}", [V_T0, ('s', S_T0)], [V_T1]))
    a(S(f"s_mul_i32 s{S_T1}, s{S_NT}, 3", [S_NT], [S_T1]))
    a(S(f"s_add_u32 s{S_T1}, s{S_T1}, s{S_W}", [S_T1, S_W], [S_T1]))
    a(S(f"s_lshl_b32 s{S_T0}, s{S_W}, 11", [S_W], [S_T0]))
    a(V(f"v_add_u32 v{V_T2}, s{S_T0}, v{V_T0}", [V_T0, ('s', S_T0)], [V_T2]))
    a(V(f"v_lshlrev_b32 v{V_T3}, 3, v{V_G}", [V_G], [V_T3]))
    a(V(f"v_lshl_add_u32 v{V_T3}, v{V_N}, 10, v{V_T3}", [V_N, V_T3], [V_T3]))
    a(S(f"s_lshl_b32 s{S_T0}, s{S_MT}, 15", [S_MT], [S_T0]))
    a(S(f"s_lshl_b32 s{S_T2}, s{S_T1}, 5", [S_T1], [S_T2]))
    a(S(f"s_add_u32 s{S_T0}, s{S_T0}, s{S_T2}", [S_T0, S_T2], [S_T0]))
    a(V(f"v_add_u32 v{V_T3}, s{S_T0}, v{V_T3}", [V_T3, ('s', S_T0)], [V_T3]))
    for t in range(6):
        a(dswr('ds_write_b128', V_T1, ('v', ACC + t * 4), 4, t * 1024))
    a(barrier())
    sg.text(f"s_cmp_ge_u32 s{S_W}, 3"); sg.text("s_cbranch_scc1 L_fin")
    sg.text(f"s_cmp_ge_u32 s{S_T1}, 32"); sg.text("s_cbranch_scc1 L_fin")
    for m in range(2):
        for src in range(4):
            a(dsrd('ds_read_b128', ('v', 40 + (m * 4 + src) * 4), 4, V_T2, src * 6144 + m * 1024))
    a(S(f"s_mov_b32 s{S_SO}, 16384", [], [S_SO]))
    for m in range(2):
        b = 40 + m * 16
        for src in range(1, 4):
            for r in (0, 2):
                a(V(f"v_pk_add_f32 v[{b+r}:{b+r+1}], v[{b+r}:{b+r+1}], v[{b+src*4+r}:{b+src*4+r+1}]", [b+r, b+r+1, b+src*4+r, b+src*4+r+1], [b+r, b+r+1]))
        a(V(f"v_cvt_pk_bf16_f32 v{b}, v{b}, v{b+1}", [b, b+1], [b]))
        a(V(f"v_cvt_pk_bf16_f32 v{b+1}, v{b+2}, v{b+3}", [b+2, b+3], [b+1]))
        a(vstore(('v', b), 2, V_T3, S_OUT, S_SO if m else None, 0))

def out_of_line():
    t = []
    t += ["L_spin_g:", f"s_mov_b32 s{S_SPIN}, {opt.spin}", "L_spin_g1:",
          f"buffer_load_dword v{V_GC}, v{V_GA}, s[{S_D}:{S_D+3}], 0 offen sc1", f"s_sub_u32 s{S_SPIN}, s{S_SPIN}, 1", "s_waitcnt vmcnt(0)",
          f"v_cmp_gt_u32 vcc, 128, v{V_GC}", f"s_cmp_eq_u32 s{S_SPIN}, 0", "s_cbranch_scc1 L_back_g", "s_nop 2", "s_cbranch_vccnz L_spin_g1", "s_branch L_back_g"]
    t += ["L_redo:", f"s_cmp_lg_u32 s{S_REDO}, 0", "s_cbranch_scc1 L_back_redo", f"s_mov_b32 s{S_REDO}, 1",
          "s_waitcnt vmcnt(0) lgkmcnt(0)", "s_barrier"]
    sg = Seg()
    p1 = prologue1()
    a = sg.add
    a(V(f"v_lshl_add_u32 v{V_T0}, s{S_W}, 2, v{V_G}", [V_G], [V_T0]))
    a(V(f"v_xor_b32 v{V_T1}, v{V_N}, v{V_T0}", [V_N, V_T0], [V_T1]))
    a(V(f"v_lshlrev_b32 v{V_T1}, 4, v{V_T1}", [V_T1], [V_T1]))
    a(V(f"v_lshl_add_u32 v{V_XD}, v{V_T0}, 10, v{V_T1}", [V_T0, V_T1], [V_XD]))
    a(S(f"s_and_b32 s{S_T0}, s{S_W}, 2", [S_W], [S_T0]))
    a(S(f"s_lshl_b32 s{S_T0}, s{S_T0}, 2", [S_T0], [S_T0]))
    a(V(f"v_lshl_add_u32 v{V_T1}, v{V_G}, 1, s{S_T0}", [V_G], [V_T1]))
    a(V(f"v_xor_b32 v{V_T1}, v{V_N}, v{V_T1}", [V_N, V_T1], [V_T1]))
    a(V(f"v_lshlrev_b32 v{V_T1}, 4, v{V_T1}", [V_T1], [V_T1]))
    a(V(f"v_lshl_add_u32 v{V_WD}, v{V_T0}, 13, v{V_T1}", [V_T0, V_T1], [V_WD]))
    t += sg.out + ["s_nop 4", "s_branch L_restart"]
    sg = Seg(); a = sg.add
    sg.text("L_max:")
    sg.text(f"s_mov_b32 s{S_SPIN}, m0")
    sg.drain()
    sg.text("s_barrier")
    MX, KF, AD = 76, V_VF, 84
    for q in range(5): a(V(f"v_mov_b32 v{MX+q}, 0xff800000", [], [MX+q]))
    for s in range(4): a(V(f"v_add_u32 v{AD+s}, {96*KB}, v{V_KA+s}", [V_KA+s], [AD+s]))
    a(S(f"s_mov_b32 s{S_T2}, 0", [], [S_T2]))
    sg.text("L_max_loop:"); sg.reset_hist()
    for j in range(8):
        if j % 4 == 0:
            a(S(f"s_add_u32 s{S_T1}, s{S_T2}, {(j>>2)*4096}", [S_T2], [S_T1]))
            a(S(f"s_add_u32 m0, s{S_W8K}, {96*KB + (j>>2)*4096}", [S_W8K], [M0]))
        a(dma(V_KD + (j & 3), S_K, S_T1, 1024 * (j & 3), 'mk'))
    for t_ in range(2):
        for s in range(4):
            a(dsrd('ds_read_b128', ('v', KF + (t_ * 4 + s) * 4), 4, AD + s, t_ * 4096, needvm=['mk']))
    for q in range(5):
        for t_ in range(2):
            d = ('v', 88 + t_ * 4)
            for s in range(4): a(mfma(d, ('v', KF + (t_ * 4 + s) * 4), AQ(q, s), 0 if s == 0 else d))
        for k in range(4):
            a(V(f"v_max3_f32 v{MX+q}, v{MX+q}, v{88+2*k}, v{89+2*k}", [MX+q, 88+2*k, 89+2*k], [MX+q]))
    sg.drain()
    a(S(f"s_add_u32 s{S_T2}, s{S_T2}, 8192", [S_T2], [S_T2]))
    sg.text(f"s_cmp_lt_u32 s{S_T2}, 65536"); sg.text("s_nop 4"); sg.text("s_cbranch_scc1 L_max_loop")
    sg.text("s_barrier")
    a(S(f"s_mul_i32 s{S_T0}, s{S_W}, 1280", [S_W], [S_T0]))
    a(S(f"s_add_u32 s{S_T0}, s{S_T0}, {96*KB}", [S_T0], [S_T0]))
    a(V(f"v_lshl_add_u32 v{AD}, v{V_LANE}, 2, s{S_T0}", [V_LANE], [AD]))
    a(S(f"s_mov_b32 s{S_T0}, {96*KB}", [], [S_T0]))
    a(V(f"v_lshl_add_u32 v{AD+1}, v{V_N}, 2, s{S_T0}", [V_N], [AD+1]))
    for q in range(5): a(dswr('ds_write_b32', AD, ('v', MX + q), 1, q * 256))
    a(barrier())
    for q in range(5):
        for k in range(16):
            a(dsrd('ds_read_b32', ('v', KF + k), 1, AD + 1, (k >> 2) * 1280 + q * 256 + (k & 3) * 64))
        for k in range(8):
            a(V(f"v_max3_f32 v{MX+q}, v{MX+q}, v{KF+2*k}, v{KF+2*k+1}", [MX+q, KF+2*k, KF+2*k+1], [MX+q]))
        for r in range(4):
            a(V(f"v_sub_f32 v{V_NEGM+q*4+r}, 0, v{MX+q}", [MX+q], [V_NEGM+q*4+r]))
    sg.drain()
    sg.text("s_barrier"); sg.text(f"s_mov_b32 m0, s{S_SPIN}"); sg.text("s_nop 4"); sg.text("s_branch L_back_max")
    return t + sg.out

def stamp_out(sg, n):
    if not opt.stamps: return
    stamp(sg, n - 1)
    t = ["s_load_dwordx2 s[4:5], s[0:1], 56", "s_waitcnt lgkmcnt(0)", f"s_add_u32 s4, s4, {16<<20}", "s_addc_u32 s5, s5, 0", "s_and_b32 s5, s5, 0xffff",
         "s_mov_b32 s6, 0x100000", "s_mov_b32 s7, 0x20000", "s_lshl_b32 s8, s2, 2", "s_add_u32 s8, s8, s32", "s_lshl_b32 s8, s8, 6", "v_mov_b32 v2, s8"]
    for i in range(n):
        t += [f"v_mov_b32 v3, s{3 if i == 0 else 76+2*i}", f"buffer_store_dword v3, v2, s[4:7], 0 offen offset:{4*i}"]
    for x in t: sg.text(x)

def kernel():
    sg = Seg()
    sg.text(NAME + "_kernel:")
    sg.text("s_cmp_ge_u32 s2, 256")
    sg.text("s_cbranch_scc1 L_end")
    if opt.stamps:
        stamp(sg, 0)
    sg.addall(prologue1())
    if opt.stamps:
        sg.text("s_mov_b32 s3, s76")
        for i in range(1, NST): sg.text(f"s_mov_b32 s{76+2*i}, 0") if 76 + 2*i < 92 else None
    p2 = prologue2()
    Q = Queue()
    first = x_dma(0) + w_dma(0)
    sg.addall(restart_setup())
    Q.push(first)
    weave(sg, Q, [], 9, 0)
    sg.addall(p2)
    sg.text("s_cmp_ge_u32 s2, 32"); sg.text("s_cbranch_scc1 L_nocz")
    lane0(sg, [f"s_lshl_b32 s{S_SPIN}, s2, 7", f"v_mov_b32 v253, s{S_SPIN}", "v_mov_b32 v255, 0",
               f"buffer_store_dword v255, v253, s[{S_C}:{S_C+3}], 0 offen sc1"], "L_nocz")
    sg.text("s_branch L_first")
    sg.text("L_restart:")
    s2 = Seg(); s2.addall(restart_setup()); Q2 = Queue(); Q2.push(x_dma(0) + w_dma(0)); weave(s2, Q2, [], 9, 0)
    for x in s2.out: sg.text(x)
    sg.text("L_first:")
    early, late = prologue3()
    def BB(u): return f"B{u if int(opt.lg0) else u + 1}"
    Q.push(rt_dma() + w_dma(1) + x_dma(1) + w_dma(2) + w_dma(3) + x_dma(2) + w_dma(4) + (rt_stores('RT') if int(opt.rt_at) < 0 else []) + x_dma(3, BB(1)) + w_dma(5, BB(1)) + w_dma(6, BB(2)) + w_dma(7, BB(3))
           + kv_dma('k', 0, BB(4)) + kv_dma('v', 0, BB(5)) + kv_dma('k', 1, 'B7') + kv_dma('v', 1, 'BQ'))
    for i in range(2, 8):
        Q.push(kv_dma('k', i) + kv_dma('v', i))
        if i == int(opt.rt_at) and not int(opt.no_rt): Q.push(rt_stores(None))
    n0 = int(opt.n0) - 9
    weave(sg, Q, early, n0, (len(early) + n0 - 1) // n0)
    sg.addall(early)
    qr = phase_a(sg, Q, late)
    sg.addall(qr[:0])
    stamp(sg, 3)
    sg.text(f"s_cmp_eq_u32 s{S_REDO}, 0"); sg.text("s_cbranch_scc1 L_back_max")
    s2 = Seg(); s2.addall(qr)
    for x in s2.out: sg.text(x)
    sg.text("s_branch L_max")
    sg.text("L_back_max:")
    RG = Regs()
    phase_b(sg, Q, qr, RG)
    stamp(sg, 4)
    combine(sg, Q, RG)
    phase_c(sg, Q, RG)
    sg.text("L_fin:")
    stamp_out(sg, 11)
    sg.text("L_end:")
    sg.text("s_endpgm")
    return sg.out + out_of_line()

def report_kernel():
    idx, mode = opt.report.split(',')
    t = ["report_kernel:", "s_cmp_ge_u32 s2, 1", "s_cbranch_scc1 L3_end", "s_load_dwordx2 s[4:5], s[0:1], 56", "s_waitcnt lgkmcnt(0)",
         f"s_add_u32 s4, s4, {16<<20}", "s_addc_u32 s5, s5, 0", "s_and_b32 s5, s5, 0xffff", "s_mov_b32 s6, 0x100000", "s_mov_b32 s7, 0x20000",
         "v_lshlrev_b32 v1, 8, v0", f"buffer_load_dword v2, v1, s[4:7], 0 offen offset:{4*int(idx)}", "buffer_load_dword v3, v1, s[4:7], 0 offen",
         "v_mov_b32 v4, 0", "v_mov_b32 v5, 0", "v_mov_b32 v6, -1", "ds_write_b32 v4, v5", "ds_write_b32 v4, v6 offset:8", "s_waitcnt vmcnt(0) lgkmcnt(0)", "s_barrier",
         "ds_min_u32 v4, v3 offset:8", "s_waitcnt lgkmcnt(0)", "s_barrier", "ds_read_b32 v6, v4 offset:8", "s_waitcnt lgkmcnt(0)", "v_sub_u32 v2, v2, v6",
         "v_lshrrev_b32 v7, 3, v0", "v_mul_u32_u24 v7, 52, v7", "v_lshrrev_b32 v7, 8, v7", "v_and_b32 v8, 1, v0", "v_sub_u32 v8, 6, v8", "v_cmp_lt_u32 vcc, v7, v8",
         "s_nop 4", "v_cndmask_b32 v2, 0, v2, vcc", "v_min_u32 v2, 10000, v2",
         ("ds_add_u32 v4, v2" if mode == 'mean' else "ds_max_u32 v4, v2"), "s_waitcnt lgkmcnt(0)", "s_barrier", "ds_read_b32 v6, v4", "s_memrealtime s[12:13]", "s_waitcnt lgkmcnt(0)",
         "v_readfirstlane_b32 s10, v6", "s_nop 4"]
    if mode == 'mean': t += ["s_mul_i32 s10, s10, 745", "s_lshr_b32 s10, s10, 14"]
    elif mode == 'max': t += ["s_mul_i32 s10, s10, 10"]
    else: t += ["s_mov_b32 s10, 0"]
    t += ["L3_spin:", "s_memrealtime s[14:15]", "s_waitcnt lgkmcnt(0)", "s_sub_u32 s14, s14, s12",
          "s_cmp_lt_u32 s14, s10", "s_cbranch_scc1 L3_spin", "L3_end:", "s_endpgm"]
    return t

def build():
    def fmt(l): return "\n".join(x if x.endswith(':') else "    " + x for x in l)
    nm = NAME + "_kernel"
    s = "; @launch grid=(256,1,1) block=(256,1,1) lds=163840\n"
    if opt.report:
        s = f"; @launch kernel={nm} grid=(256,1,1) block=(256,1,1) lds=163840\n; @launch kernel=report_kernel grid=(1,1,1) block=(256,1,1) lds=64\n"
    s += '.amdgcn_target "amdgcn-amd-amdhsa--gfx950"\n.text\n'
    s += f".globl {nm}\n.p2align 8\n.type {nm},@function\n" + fmt(kernel()) + "\n"
    if opt.report: s += ".globl report_kernel\n.p2align 8\n.type report_kernel,@function\n" + fmt(report_kernel()) + "\n"
    s += f""".section .rodata,"a"
.p2align 6
.amdhsa_kernel {nm}
  .amdhsa_next_free_vgpr 512
  .amdhsa_next_free_sgpr 102
  .amdhsa_accum_offset 256
  .amdhsa_group_segment_fixed_size 0
  .amdhsa_kernarg_size 64
  .amdhsa_user_sgpr_count 2
  .amdhsa_user_sgpr_kernarg_segment_ptr 1
  .amdhsa_system_sgpr_workgroup_id_x 1
  .amdhsa_float_denorm_mode_32 3
.end_amdhsa_kernel
"""
    if opt.report:
        s += """.p2align 6
.amdhsa_kernel report_kernel
  .amdhsa_next_free_vgpr 32
  .amdhsa_next_free_sgpr 32
  .amdhsa_accum_offset 32
  .amdhsa_group_segment_fixed_size 0
  .amdhsa_kernarg_size 64
  .amdhsa_user_sgpr_count 2
  .amdhsa_user_sgpr_kernarg_segment_ptr 1
  .amdhsa_system_sgpr_workgroup_id_x 1
.end_amdhsa_kernel
"""
    return s

if __name__ == '__main__':
    out = sys.argv[1] if len(sys.argv) > 1 else 'cdna_kernels/' + NAME + '.s'
    for a_ in sys.argv[2:]:
        k, v = a_.split('=', 1)
        setattr(opt, k, (' ' + v) if k.endswith('flags') and v else v)
    txt = build()
    open(out, 'w').write(txt)
```

```python
import sys, struct
from dsl import *

KB = 1024
NAME = 'standalone__gqa_block_cached__near_ridge'
def f2h(x): return hex(struct.unpack('<I', struct.pack('<f', x))[0])
QSCALE = 1.4426950408889634 / (128 ** 0.5)
WS_WO = 8 << 20
WS_CT = 12 << 20

class Opt:
    stamps = ''
    report = ''
    kv_flags = ''
    a_flags = ''
    n0 = 33
    warm = 1
    perstep = 5
    lo_exp = -40
    hi_exp = 40
    spin = 2000000
    rt_at = 2
    arr_at = 17
    cw = 2
    shadow = 16
    bst = '0,5,10,15,20'
    no_rt = 0
    clk = 'r'
    lg0 = 0
    vpos = '1,5,9,13'
    rot_kv = 1
    rot_a = 1
    rot_c = 1
opt = Opt()

S_X, S_WQ, S_K, S_V, S_O, S_WO, S_WT, S_WL, S_C, S_D, S_OUT = 4, 8, 12, 16, 20, 24, 28, 52, 56, 60, 64
S_W, S_B, S_HKV, S_HQ = 32, 33, 34, 35
S_W1K, S_W8K, S_SO, S_T0, S_T1, S_T2, S_SK, S_SV = 36, 37, 38, 39, 40, 41, 42, 43
S_TAB = 44
S_REDO, S_MT, S_NT, S_VALID, S_RT, S_SPIN = 68, 69, 70, 71, 72, 73
S_EX = 74
S_RC = 100
S_J = 3
S_P = 76
S_ST = 80
V_LANE, V_N, V_G, V_T0, V_T1, V_T2, V_T3, V_T4, V_T5 = 1, 2, 3, 4, 5, 6, 7, 8, 9
V_WL, V_OL, V_PL = 244, 247, 249
V_KA, V_VA, V_KD, V_VD = 10, 14, 22, 26
V_OST, V_CW, V_LW = 28, 29, 31
V_ONES, V_NEGM, V_L, V_S, V_P, V_KF, V_VF = 32, 36, 56, 76, 92, 100, 164
V_XA, V_XB, V_WA, V_WB, V_XD, V_WD, V_QW = 228, 232, 236, 238, 240, 241, 242
V_GC, V_GA = 250, 251
V_RT = 252
A_O, A_Q = 0, 160
def AO(lam, q): return ('a', A_O + 4 * (q * 8 + lam))
def AQ(q, s): return ('a', A_Q + 4 * (q * 4 + s))

def XU(c, q):
    if c == 0: return q * 4 * KB
    if c == 1: return 20 * KB + q * 4 * KB
    if c == 2: return 128 * KB + q * 4 * KB
    return [120, 124, 148, 152, 156][q] * KB
def WU(slot, ks):
    return {0: [40, 48], 1: [56, 96], 2: [104, 112], 3: [64, 72], 4: [80, 88]}[slot][ks] * KB
WSLOT = [0, 1, 2, 3, 4, 0, 1, 2]
QBUF = 128 * KB

def V(t, r=(), w=()):
    return valu(t, r=[('v', x) if isinstance(x, int) else x for x in r], w=[('v', x) if isinstance(x, int) else x for x in w])
def T(t, r=(), w=()):
    return valu(t, r=[('v', x) for x in r], w=[('v', x) for x in w], trans=True)
def S(t, r=(), w=()):
    return salu(t, r=[('s', x) if isinstance(x, int) else x for x in r], w=[('s', x) if isinstance(x, int) else x for x in w])
M0 = ('m0', 0)
VCC = ('vcc', 0)
def flat(l): return [x for y in l for x in y]

def srd(dst, plo, add_s=None, add_imm=0, size=0):
    o = []
    if add_s is not None:
        o.append(S(f"s_add_u32 s{dst}, s{plo}, s{add_s}", [plo, add_s], [dst]))
        o.append(S(f"s_addc_u32 s{dst+1}, s{plo+1}, 0", [plo+1], [dst+1]))
        o.append(S(f"s_and_b32 s{dst+1}, s{dst+1}, 0xffff", [dst+1], [dst+1]))
    elif add_imm:
        o.append(S(f"s_add_u32 s{dst}, s{plo}, {add_imm}", [plo], [dst]))
        o.append(S(f"s_addc_u32 s{dst+1}, s{plo+1}, 0", [plo+1], [dst+1]))
        o.append(S(f"s_and_b32 s{dst+1}, s{dst+1}, 0xffff", [dst+1], [dst+1]))
    else:
        o.append(S(f"s_mov_b32 s{dst}, s{plo}", [plo], [dst]))
        o.append(S(f"s_and_b32 s{dst+1}, s{plo+1}, 0xffff", [plo+1], [dst+1]))
    if isinstance(size, str):
        o.append(S(f"s_mov_b32 s{dst+2}, {size}", [int(size[1:])], [dst+2]))
    else:
        o.append(S(f"s_mov_b32 s{dst+2}, {size}", [], [dst+2]))
    o.append(S(f"s_mov_b32 s{dst+3}, 0x20000", [], [dst+3]))
    return o

KV_ORDER = [[0, 2, 1, 3, 4, 6, 5, 7], [0, 1, 3, 2, 4, 5, 7, 6], [1, 0, 2, 4, 3, 5, 6, 7], [1, 0, 2, 3, 5, 4, 6, 7]]
def kv_pack(j):
    o = KV_ORDER[j] if int(opt.rot_kv) else list(range(8))
    return sum(t << (4 * i) for i, t in enumerate(o))
S_KVO = 98
V_XD4 = 204
S_WC = 99

class Item:
    def __init__(s, pre, ins, after=None): s.pre, s.ins, s.after = pre, ins, after
def x_dma(c, after=None):
    return [Item([S(f"s_add_u32 m0, s{S_W1K}, {XU(c,q)}", [S_W1K], [M0])],
                 dma(V_XD4 + c, S_X, S_TAB + q, 0, ('x', c), flags=opt.a_flags), after) for q in range(5)]
def w_dma(u, after=None):
    o = []
    for k in range(4):
        pre = []
        if k == 0:
            pre.append(S(f"s_add_u32 s{S_SK}, s{S_WC}, {(u & 6) << 19}", [S_WC], [S_SK]))
            pre.append(S(f"s_and_b32 s{S_SK}, s{S_SK}, {7 << 19}", [S_SK], [S_SK]))
            if u & 1: pre.append(S(f"s_xor_b32 s{S_SK}, s{S_SK}, {1 << 19}", [S_SK], [S_SK]))
        pre.append(S(f"s_add_u32 s{S_SO}, s{S_SK}, {k*131072}", [S_SK], [S_SO]))
        pre.append(S(f"s_add_u32 m0, s{S_W1K}, {WU(WSLOT[u], k>>1) + (k&1)*4*KB}", [S_W1K], [M0]))
        o.append(Item(pre, dma(V_WD, S_WQ, S_SO, 0, ('w', u), flags=opt.a_flags), after))
    return o
def kv_dma(kind, i, after=None):
    o = []
    base = (i & 1) * 32 * KB + (0 if kind == 'k' else 64 * KB)
    sr, so = (S_K, S_SK) if kind == 'k' else (S_V, S_SV)
    for j in range(8):
        pre = []
        if j % 4 == 0:
            if j == 0:
                pre.append(S(f"s_bfe_u32 s{so}, s{S_KVO}, {hex((3 << 16) | (4 * i))}", [S_KVO], [so]))
                pre.append(S(f"s_lshl_b32 s{so}, s{so}, 13", [so], [so]))
            else:
                pre.append(S(f"s_add_u32 s{so}, s{so}, 4096", [so], [so]))
            pre.append(S(f"s_add_u32 m0, s{S_W8K}, {base + (j>>2)*4096}", [S_W8K], [M0]))
        va = V_KD + (j & 3) if kind == 'k' else V_VD + (j & 1)
        tag = (kind + 'r', i - 2, j >> 2)
        o.append(Item(pre, dma(va, sr, so, 1024 * (j & 3), (kind, i, j >> 2), needlg=[tag], flags=opt.kv_flags), after if i < 2 else tag))
    return o
def rt_dma():
    return [Item([S(f"s_mov_b32 s{S_SO}, {i*8192 - i*1024}", [], [S_SO])] + ([S(f"s_mov_b32 m0, s{S_RT}", [S_RT], [M0])] if i == 0 else []),
                 dma(V_RT, S_WO, S_SO, i * 1024, 'rt'), None) for i in range(4)]
RTF = 240
def rt_reads():
    return [dsrd('ds_read_b64_tr_b16', ('a', RTF + e * 4 + h * 2), 2, V_RT + 1, h * 2048 + e * 32, needvm=['rt']) for e in range(4) for h in range(2)]
def rt_stores(after):
    return [Item([S(f"s_mov_b32 s{S_SO}, {e*128*KB}", [], [S_SO])], vstore(('a', RTF + e * 4), 4, V_RT + 2, S_WT, S_SO, 0, flags=' sc1', tag='rts'), after) for e in range(4)]
def k_reads(i):
    return [dsrd('ds_read_b128', ('v', V_KF + (i & 1) * 32 + (t * 4 + s) * 4), 4, V_KA + s, (i & 1) * 32 * KB + t * 4096,
                 needvm=[('k', i, t)], lgtag=('kr', i, t)) for t in range(2) for s in range(4)]
def v_reads(i):
    return [dsrd('ds_read_b64_tr_b16', ('v', V_VF + (i & 1) * 32 + lam * 4 + h * 2), 2, V_VA + lam, (i & 1) * 32 * KB + h * 4096,
                 needvm=[('v', i, h)], lgtag=('vr', i, h)) for h in range(2) for lam in range(8)]

class Queue:
    def __init__(s): s.q = []; s.pts = set()
    def push(s, items): s.q += items
    def mark(s, p): s.pts.add(p)
    def pop(s):
        if s.q and (s.q[0].after is None or s.q[0].after in s.pts): return s.q.pop(0)
        return None

def place(gaps, Q, pos):
    last = -1
    for p in pos:
        if p >= len(gaps): continue
        it = Q.pop()
        if it is None: break
        pre = list(it.pre)
        avail = list(range(last + 1, p))
        front = []
        if not avail: front = pre
        else:
            slots = [[] for _ in avail]
            for k_, x in enumerate(reversed(pre)):
                slots[max(0, len(avail) - 1 - k_)].insert(0, x)
            for g, sl in zip(avail, slots):
                k_ = 0
                while k_ < len(gaps[g]) and gaps[g][k_].k == 'salu': k_ += 1
                gaps[g][k_:k_] = sl
        k = 0
        while k < len(gaps[p]) and gaps[p][k].k == 'salu': k += 1
        gaps[p][k:k] = front + [it.ins]
        last = p
def weave(sg, Q, fill, n, per):
    for _ in range(n):
        it = Q.pop()
        if it is not None: sg.addall(it.pre + [it.ins])
        for _ in range(per):
            if fill: sg.add(fill.pop(0))

NST = 12
def stamp(sg, i, grp='1'):
    if not opt.stamps: return
    if 5 <= i <= 9 and grp != opt.stamps: return
    sg.text(f"{'s_memtime' if opt.clk == 'c' else 's_memrealtime'} s[{76+2*i}:{77+2*i}]")

def prologue1():
    o = []; a = o.append
    a(raw("s_load_dwordx2 s[92:93], s[0:1], 0"))
    a(raw("s_load_dwordx4 s[96:99], s[0:1], 24"))
    a(V(f"v_lshrrev_b32 v{V_T0}, 6, v0", [0], [V_T0]))
    a(V(f"v_and_b32 v{V_LANE}, 63, v0", [0], [V_LANE]))
    a(V(f"v_readfirstlane_b32 s{S_W}, v{V_T0}", [V_T0], [('s', S_W)]))
    a(S(f"s_and_b32 s{S_HKV}, s2, 7", [2], [S_HKV]))
    a(S(f"s_lshr_b32 s{S_B}, s2, 5", [2], [S_B]))
    a(S(f"s_bfe_u32 s{S_T0}, s2, 0x20003", [2], [S_T0]))
    a(S(f"s_lshl_b32 s{S_HQ}, s{S_HKV}, 2", [S_HKV], [S_HQ]))
    a(S(f"s_add_u32 s{S_HQ}, s{S_HQ}, s{S_T0}", [S_HQ, S_T0], [S_HQ]))
    if int(opt.rot_a):
        a(S(f"s_lshl_b32 s{S_T0}, s{S_T0}, 1", [S_T0], [S_T0]))
        a(S(f"s_add_u32 s{S_VALID}, s{S_T0}, s{S_B}", [S_T0, S_B], [S_VALID]))
        a(S(f"s_and_b32 s{S_VALID}, s{S_VALID}, 7", [S_VALID], [S_VALID]))
    else:
        a(S(f"s_mov_b32 s{S_VALID}, 0", [], [S_VALID]))
    a(V(f"v_and_b32 v{V_N}, 15, v{V_LANE}", [V_LANE], [V_N]))
    a(V(f"v_lshrrev_b32 v{V_G}, 4, v{V_LANE}", [V_LANE], [V_G]))
    a(S(f"s_lshl_b32 s{S_W1K}, s{S_W}, 10", [S_W], [S_W1K]))
    a(S(f"s_lshl_b32 s{S_W8K}, s{S_W}, 13", [S_W], [S_W8K]))
    a(V(f"v_lshl_add_u32 v{V_T0}, s{S_W}, 2, v{V_G}", [V_G, ('s', S_W)], [V_T0]))
    a(V(f"v_xor_b32 v{V_T1}, v{V_N}, v{V_T0}", [V_N, V_T0], [V_T1]))
    a(V(f"v_lshlrev_b32 v{V_T1}, 4, v{V_T1}", [V_T1], [V_T1]))
    a(V(f"v_lshl_add_u32 v{V_XD}, v{V_T0}, 10, v{V_T1}", [V_T0, V_T1], [V_XD]))
    a(S(f"s_and_b32 s{S_T0}, s{S_W}, 2", [S_W], [S_T0]))
    a(S(f"s_lshl_b32 s{S_T0}, s{S_T0}, 2", [S_T0], [S_T0]))
    a(V(f"v_lshl_add_u32 v{V_T1}, v{V_G}, 1, s{S_T0}", [V_G, ('s', S_T0)], [V_T1]))
    a(V(f"v_xor_b32 v{V_T1}, v{V_N}, v{V_T1}", [V_N, V_T1], [V_T1]))
    a(V(f"v_lshlrev_b32 v{V_T1}, 4, v{V_T1}", [V_T1], [V_T1]))
    a(V(f"v_lshl_add_u32 v{V_WD}, v{V_T0}, 13, v{V_T1}", [V_T0, V_T1], [V_WD]))
    a(S(f"s_mul_i32 s{S_T0}, s{S_B}, 81920", [S_B], [S_T0]))
    a(S(f"s_lshl_b32 s{S_T2}, s{S_HQ}, 8", [S_HQ], [S_T2]))
    a(S(f"s_sub_u32 s{S_T1}, 4194304, s{S_T2}", [S_T2], [S_T1]))
    a(S(f"s_mov_b32 s{S_REDO}, 0", [], [S_REDO]))
    a(S(f"s_and_b32 s{S_SK}, s2, 1", [2], [S_SK]))
    a(S(f"s_lshl_b32 s{S_SK}, s{S_SK}, 2", [S_SK], [S_SK]))
    a(S(f"s_add_u32 s{S_SK}, s{S_SK}, s{S_W}", [S_SK, S_W], [S_SK]))
    a(S(f"s_lshr_b32 s{S_SV}, s2, 1", [2], [S_SV]))
    a(S(f"s_lshl_b32 s{S_SO}, s{S_SV}, 15", [S_SV], [S_SO]))
    a(S(f"s_lshl_b32 s{S_RT}, s{S_SK}, 7", [S_SK], [S_RT]))
    a(S(f"s_add_u32 s{S_SO}, s{S_SO}, s{S_RT}", [S_SO, S_RT], [S_SO]))
    a(V(f"v_lshrrev_b32 v{V_T0}, 3, v{V_LANE}", [V_LANE], [V_T0]))
    a(V(f"v_and_b32 v{V_T1}, 7, v{V_LANE}", [V_LANE], [V_T1]))
    a(V(f"v_lshlrev_b32 v{V_T1}, 4, v{V_T1}", [V_T1], [V_T1]))
    a(V(f"v_lshl_add_u32 v{V_T0}, v{V_T0}, 10, v{V_T1}", [V_T0, V_T1], [V_T0]))
    a(V(f"v_add_u32 v{V_RT}, s{S_SO}, v{V_T0}", [V_T0, ('s', S_SO)], [V_RT]))
    a(S(f"s_lshl_b32 s{S_SK}, s{S_SK}, 19", [S_SK], [S_SK]))
    a(S(f"s_lshl_b32 s{S_SV}, s{S_SV}, 10", [S_SV], [S_SV]))
    a(S(f"s_add_u32 s{S_SK}, s{S_SK}, s{S_SV}", [S_SK, S_SV], [S_SK]))
    a(V(f"v_lshl_add_u32 v{V_RT+2}, v{V_LANE}, 4, s{S_SK}", [V_LANE, ('s', S_SK)], [V_RT+2]))
    a(S(f"s_lshl_b32 s{S_RT}, s{S_W}, 12", [S_W], [S_RT]))
    a(S(f"s_cmp_lt_u32 s{S_W}, 2", [S_W], []))
    a(S(f"s_cselect_b32 s{S_SO}, 0, {20*KB}", [], [S_SO]))
    a(S(f"s_add_u32 s{S_RT}, s{S_RT}, s{S_SO}", [S_RT, S_SO], [S_RT]))
    a(S(f"s_add_u32 s{S_RT}, s{S_RT}, {120*KB}", [S_RT], [S_RT]))
    a(raw("s_waitcnt lgkmcnt(0)", 'wait'))
    o += srd(S_X, 92, add_s=S_T0, size=81920)
    o += srd(S_WQ, 96, add_s=S_T2, size=f"s{S_T1}")
    o += srd(S_WO, 98, size=4194304)
    a(S(f"s_lshl_b32 s{S_WC}, s{S_VALID}, 19", [S_VALID], [S_WC]))
    a(raw("s_load_dwordx4 s[92:95], s[0:1], 8"))
    a(raw(f"s_load_dwordx4 s[{S_C}:{S_C+3}], s[0:1], 40"))
    a(raw("s_load_dwordx2 s[100:101], s[0:1], 56"))
    return o

def restart_setup():
    o = [S(f"s_mov_b32 s{S_TAB+q}, {q*16384}", [], [S_TAB+q]) for q in range(5)]
    for c in range(4):
        o.append(S(f"s_lshr_b32 s{S_T0}, s{S_WC}, 12", [S_WC], [S_T0]))
        o.append(S(f"s_add_u32 s{S_T0}, s{S_T0}, {c*256}", [S_T0], [S_T0]))
        o.append(S(f"s_and_b32 s{S_T0}, s{S_T0}, 0x300", [S_T0], [S_T0]))
        o.append(V(f"v_add_u32 v{V_XD4+c}, s{S_T0}, v{V_XD}", [V_XD, ('s', S_T0)], [V_XD4+c]))
    return o

def prologue2():
    o = []; a = o.append
    a(raw("s_waitcnt lgkmcnt(0)", 'wait'))
    a(S(f"s_lshl_b32 s{S_T0}, s{S_B}, 3", [S_B], [S_T0]))
    a(S(f"s_add_u32 s{S_T0}, s{S_T0}, s{S_HKV}", [S_T0, S_HKV], [S_T0]))
    a(S(f"s_lshl_b32 s{S_T0}, s{S_T0}, 2", [S_T0], [S_T0]))
    a(S(f"s_add_u32 s{S_T0}, s{S_T0}, s{S_W}", [S_T0, S_W], [S_T0]))
    a(S(f"s_lshl_b32 s{S_T0}, s{S_T0}, 16", [S_T0], [S_T0]))
    o += srd(S_K, 92, add_s=S_T0, size=65536)
    o += srd(S_V, 94, add_s=S_T0, size=65536)
    o += srd(S_O, 100, size=8*5*128*1024)
    o += srd(S_WT, 100, add_imm=WS_WO, size=4194304)
    o += srd(S_D, S_C + 2, size=256)
    o += srd(S_OUT, S_C, size=655360)
    o += srd(S_C, 100, add_imm=WS_CT, size=8192)
    a(S(f"s_bitcmp1_b32 s{S_HQ}, 0", [S_HQ], []))
    a(S(f"s_mov_b32 s{S_T0}, {hex(kv_pack(0))}", [], [S_T0]))
    a(S(f"s_cselect_b32 s{S_T0}, {hex(kv_pack(1))}, s{S_T0}", [S_T0], [S_T0]))
    a(S(f"s_mov_b32 s{S_T1}, {hex(kv_pack(2))}", [], [S_T1]))
    a(S(f"s_cselect_b32 s{S_T1}, {hex(kv_pack(3))}, s{S_T1}", [S_T1], [S_T1]))
    a(S(f"s_bitcmp1_b32 s{S_HQ}, 1", [S_HQ], []))
    a(S(f"s_cselect_b32 s{S_KVO}, s{S_T1}, s{S_T0}", [S_T0, S_T1], [S_KVO]))
    a(S(f"s_lshr_b32 s{S_T0}, s2, 3", [2], [S_T0]))
    a(S(f"s_mul_i32 s{S_NT}, s{S_T0}, 52", [S_T0], [S_NT]))
    a(S(f"s_lshr_b32 s{S_NT}, s{S_NT}, 8", [S_NT], [S_NT]))
    a(S(f"s_mul_i32 s{S_MT}, s{S_NT}, 5", [S_NT], [S_MT]))
    a(S(f"s_sub_u32 s{S_MT}, s{S_T0}, s{S_MT}", [S_T0, S_MT], [S_MT]))
    a(S(f"s_lshl_b32 s{S_RC}, s{S_T0}, 12", [S_T0], [S_RC]) if int(opt.rot_c) else S(f"s_mov_b32 s{S_RC}, 0", [], [S_RC]))
    a(S(f"s_lshr_b32 s{S_T1}, s{S_HKV}, 1", [S_HKV], [S_T1]))
    a(S(f"s_mul_i32 s{S_T1}, s{S_T1}, 5", [S_T1], [S_T1]))
    a(S(f"s_add_u32 s{S_MT}, s{S_MT}, s{S_T1}", [S_MT, S_T1], [S_MT]))
    a(S(f"s_and_b32 s{S_T1}, s{S_HKV}, 1", [S_HKV], [S_T1]))
    a(S(f"s_sub_u32 s{S_T2}, 6, s{S_T1}", [S_T1], [S_T2]))
    a(S(f"s_cmp_lt_u32 s{S_NT}, s{S_T2}", [S_NT, S_T2], []))
    a(S(f"s_cselect_b32 s{S_VALID}, 1, 0", [], [S_VALID]))
    a(S(f"s_mul_i32 s{S_T1}, s{S_T1}, 6", [S_T1], [S_T1]))
    a(S(f"s_add_u32 s{S_NT}, s{S_NT}, s{S_T1}", [S_NT, S_T1], [S_NT]))
    a(S(f"s_mov_b32 s{S_WL}, s{S_WT}", [S_WT], [S_WL]))
    a(S(f"s_mov_b32 s{S_WL+1}, s{S_WT+1}", [S_WT+1], [S_WL+1]))
    a(S(f"s_lshl_b32 s{S_WL+2}, s{S_VALID}, 22", [S_VALID], [S_WL+2]))
    a(S(f"s_mov_b32 s{S_WL+3}, 0x20000", [], [S_WL+3]))
    a(S(f"s_lshl_b32 s{S_T0}, s{S_W}, 15", [S_W], [S_T0]))
    a(S(f"s_mul_i32 s{S_T1}, s{S_NT}, {3*128*KB}", [S_NT], [S_T1]))
    a(S(f"s_add_u32 s{S_T1}, s{S_T1}, s{S_T0}", [S_T1, S_T0], [S_T1]))
    a(V(f"v_lshl_add_u32 v{V_WL}, v{V_LANE}, 4, s{S_T1}", [V_LANE, ('s', S_T1)], [V_WL]))
    a(V(f"v_add_u32 v{V_WL+1}, {128*KB}, v{V_WL}", [V_WL], [V_WL+1]))
    a(V(f"v_add_u32 v{V_WL+2}, {256*KB}, v{V_WL}", [V_WL], [V_WL+2]))
    a(S(f"s_lshl_b32 s{S_T1}, s{S_MT}, 18", [S_MT], [S_T1]))
    a(S(f"s_add_u32 s{S_T1}, s{S_T1}, s{S_T0}", [S_T1, S_T0], [S_T1]))
    a(V(f"v_lshl_add_u32 v{V_OL}, v{V_LANE}, 4, s{S_T1}", [V_LANE, ('s', S_T1)], [V_OL]))
    a(V(f"v_add_u32 v{V_OL+1}, {128*KB}, v{V_OL}", [V_OL], [V_OL+1]))
    a(V(f"v_and_b32 v{V_T0}, 1, v{V_LANE}", [V_LANE], [V_T0]))
    a(V(f"v_lshlrev_b32 v{V_GA}, 7, v{V_T0}", [V_T0], [V_GA]))
    a(V(f"v_lshl_add_u32 v{V_T0}, s{S_MT}, 1, v{V_T0}", [V_T0, ('s', S_MT)], [V_T0]))
    a(V(f"v_mul_u32_u24 v{V_T0}, 52, v{V_T0}", [V_T0], [V_T0]))
    a(V(f"v_lshrrev_b32 v{V_T0}, 8, v{V_T0}", [V_T0], [V_T0]))
    a(V(f"v_lshl_add_u32 v{V_T0}, v{V_T0}, 2, s{S_W}", [V_T0, ('s', S_W)], [V_T0]))
    a(V(f"v_lshlrev_b32 v{V_PL}, 7, v{V_T0}", [V_T0], [V_PL]))
    return o

def prologue3():
    o = []; a = o.append
    a(S(f"s_bfe_u32 s{S_T1}, s{S_WC}, 0x10013", [S_WC], [S_T1]))
    a(S(f"s_lshl_b32 s{S_T1}, s{S_T1}, 3", [S_T1], [S_T1]))
    a(V(f"v_xor_b32 v{V_T1}, s{S_T1}, v{V_N}", [V_N, ('s', S_T1)], [V_T1]))
    for s in range(4):
        a(V(f"v_add_u32 v{V_T0}, {4*s}, v{V_G}", [V_G], [V_T0]))
        a(V(f"v_xor_b32 v{V_T0}, v{V_T0}, v{V_T1}", [V_T0, V_T1], [V_T0]))
        a(V(f"v_lshlrev_b32 v{V_T0}, 4, v{V_T0}", [V_T0], [V_T0]))
        a(V(f"v_lshl_add_u32 v{V_XA+s}, v{V_N}, 8, v{V_T0}", [V_N, V_T0], [V_XA+s]))
        a(V(f"v_add_u32 v{V_XB+s}, {120*KB}, v{V_XA+s}", [V_XA+s], [V_XB+s]))
    a(V(f"v_lshrrev_b32 v{V_T2}, 2, v{V_N}", [V_N], [V_T2]))
    a(V(f"v_bfe_u32 v{V_T3}, v{V_N}, 1, 1", [V_N], [V_T3]))
    a(V(f"v_and_b32 v{V_T4}, 1, v{V_N}", [V_N], [V_T4]))
    a(V(f"v_lshlrev_b32 v{V_T4}, 3, v{V_T4}", [V_T4], [V_T4]))
    a(V(f"v_and_b32 v{V_T5}, 1, v{V_G}", [V_G], [V_T5]))
    a(V(f"v_lshl_add_u32 v{V_T5}, v{V_T5}, 2, v{V_T2}", [V_T5, V_T2], [V_T5]))
    a(V(f"v_lshlrev_b32 v{V_T5}, 1, v{V_T5}", [V_T5], [V_T5]))
    a(S(f"s_lshl_b32 s{S_T1}, s{S_W}, 2", [S_W], [S_T1]))
    a(V(f"v_lshl_add_u32 v{V_T1}, v{V_G}, 3, v{V_T2}", [V_G, V_T2], [V_T1]))
    a(V(f"v_lshl_add_u32 v{V_T1}, v{V_T1}, 8, v{V_T4}", [V_T1, V_T4], [V_T1]))
    for e in range(2):
        a(V(f"v_add3_u32 v{V_T0}, s{S_T1}, v{V_T3}, {2*e}", [V_T3, ('s', S_T1)], [V_T0]))
        a(V(f"v_xor_b32 v{V_T0}, v{V_T0}, v{V_T5}", [V_T0, V_T5], [V_T0]))
        a(V(f"v_lshl_add_u32 v{V_T0}, v{V_T0}, 4, v{V_T1}", [V_T0, V_T1], [V_T0]))
        a(V(f"v_add_u32 v{V_WA+e}, {40*KB}, v{V_T0}", [V_T0], [V_WA+e]))
        a(V(f"v_add_u32 v{V_WB+e}, {96*KB}, v{V_T0}", [V_T0], [V_WB+e]))
    a(V(f"v_lshl_add_u32 v{V_T1}, v{V_G}, 2, v{V_T2}", [V_G, V_T2], [V_T1]))
    a(V(f"v_and_b32 v{V_T0}, 3, v{V_N}", [V_N], [V_T0]))
    a(V(f"v_lshlrev_b32 v{V_T0}, 3, v{V_T0}", [V_T0], [V_T0]))
    a(V(f"v_lshl_add_u32 v{V_T0}, v{V_T1}, 7, v{V_T0}", [V_T0, V_T1], [V_T0]))
    a(V(f"v_add_u32 v{V_RT+1}, s{S_RT}, v{V_T0}", [V_T0, ('s', S_RT)], [V_RT+1]))
    n_early = len(o)
    for s in range(4):
        a(V(f"v_add_u32 v{V_KA+s}, s{S_W8K}, v{V_XA+s}", [V_XA+s, ('s', S_W8K)], [V_KA+s]))
    a(V(f"v_lshl_add_u32 v{V_T1}, v{V_T1}, 8, v{V_T4}", [V_T1, V_T4], [V_T1]))
    a(S(f"s_add_u32 s{S_T2}, s{S_W8K}, {64*KB}", [S_W8K], [S_T2]))
    a(V(f"v_add_u32 v{V_T1}, s{S_T2}, v{V_T1}", [V_T1, ('s', S_T2)], [V_T1]))
    a(V(f"v_add_u32 v{V_T3}, s{S_T1}, v{V_T3}", [V_T3, ('s', S_T1)], [V_T3]))
    for lam in range(8):
        a(V(f"v_add_u32 v{V_T0}, {2*lam}, v{V_T3}", [V_T3], [V_T0]))
        a(V(f"v_and_b32 v{V_T0}, 15, v{V_T0}", [V_T0], [V_T0]))
        a(V(f"v_xor_b32 v{V_T0}, v{V_T0}, v{V_T5}", [V_T0, V_T5], [V_T0]))
        a(V(f"v_lshl_add_u32 v{V_VA+lam}, v{V_T0}, 4, v{V_T1}", [V_T0, V_T1], [V_VA+lam]))
    a(V(f"v_xor_b32 v{V_T0}, v{V_N}, v{V_G}", [V_N, V_G], [V_T0]))
    a(V(f"v_lshlrev_b32 v{V_T0}, 4, v{V_T0}", [V_T0], [V_T0]))
    a(V(f"v_lshl_add_u32 v{V_KD}, v{V_G}, 8, v{V_T0}", [V_G, V_T0], [V_KD]))
    for j in range(1, 4):
        a(V(f"v_xor_b32 v{V_KD+j}, {64*j}, v{V_KD}", [V_KD], [V_KD+j]))
    a(V(f"v_lshlrev_b32 v{V_T0}, 1, v{V_G}", [V_G], [V_T0]))
    a(V(f"v_xor_b32 v{V_T0}, v{V_N}, v{V_T0}", [V_N, V_T0], [V_T0]))
    a(V(f"v_lshlrev_b32 v{V_T0}, 4, v{V_T0}", [V_T0], [V_T0]))
    a(V(f"v_lshl_add_u32 v{V_VD}, v{V_G}, 8, v{V_T0}", [V_G, V_T0], [V_VD]))
    a(V(f"v_xor_b32 v{V_VD+1}, 128, v{V_VD}", [V_VD], [V_VD+1]))
    a(V(f"v_lshrrev_b32 v{V_T0}, 1, v{V_G}", [V_G], [V_T0]))
    a(V(f"v_add_u32 v{V_T0}, s{S_T1}, v{V_T0}", [V_T0, ('s', S_T1)], [V_T0]))
    a(V(f"v_xor_b32 v{V_T0}, v{V_T0}, v{V_N}", [V_T0, V_N], [V_T0]))
    a(V(f"v_lshlrev_b32 v{V_T0}, 4, v{V_T0}", [V_T0], [V_T0]))
    a(V(f"v_lshl_add_u32 v{V_T0}, v{V_N}, 8, v{V_T0}", [V_N, V_T0], [V_T0]))
    a(V(f"v_and_b32 v{V_T1}, 1, v{V_G}", [V_G], [V_T1]))
    a(V(f"v_lshl_add_u32 v{V_T0}, v{V_T1}, 3, v{V_T0}", [V_T0, V_T1], [V_T0]))
    a(V(f"v_add_u32 v{V_QW}, {QBUF}, v{V_T0}", [V_T0], [V_QW]))
    a(V(f"v_xor_b32 v{V_QW+1}, 32, v{V_QW}", [V_QW], [V_QW+1]))
    a(V(f"v_lshl_add_u32 v{V_CW}, v{V_LANE}, 4, s{S_W8K}", [V_LANE, ('s', S_W8K)], [V_CW]))
    a(V(f"v_add_u32 v{V_CW+1}, {64*KB}, v{V_CW}", [V_CW], [V_CW+1]))
    a(S(f"s_add_u32 s{S_T0}, s{S_W8K}, {102*KB}", [S_W8K], [S_T0]))
    a(V(f"v_lshl_add_u32 v{V_LW}, v{V_LANE}, 5, s{S_T0}", [V_LANE, ('s', S_T0)], [V_LW]))
    a(S(f"s_mul_i32 s{S_T0}, s{S_B}, 640", [S_B], [S_T0]))
    a(S(f"s_lshl_b32 s{S_T2}, s{S_HQ}, 2", [S_HQ], [S_T2]))
    a(S(f"s_add_u32 s{S_T0}, s{S_T0}, s{S_T2}", [S_T0, S_T2], [S_T0]))
    a(S(f"s_add_u32 s{S_T0}, s{S_T0}, s{S_W}", [S_T0, S_W], [S_T0]))
    a(S(f"s_lshl_b32 s{S_T0}, s{S_T0}, 10", [S_T0], [S_T0]))
    a(V(f"v_lshl_add_u32 v{V_OST}, v{V_LANE}, 4, s{S_T0}", [V_LANE, ('s', S_T0)], [V_OST]))
    a(V(f"v_cmp_eq_u32 vcc, 0, v{V_N}", [V_N], [VCC]))
    a(V(f"v_mov_b32 v{V_T0}, 0x3f803f80", [], [V_T0]))
    for i in range(4):
        a(V(f"v_cndmask_b32 v{V_ONES+i}, 0, v{V_T0}, vcc", [V_T0, VCC], [V_ONES+i]))
    for i in range(20):
        a(V(f"v_mov_b32 v{V_NEGM+i}, 0", [], [V_NEGM+i]))
    return o[:n_early], o[n_early:]

V_QACC = V_VF
V_XF = V_KF
V_WF = V_KF + 40
def a_reads(kap):
    u, ks = kap >> 1, kap & 1
    c, s = u >> 1, kap & 3
    o = []
    wb = WU(WSLOT[u], ks)
    xr = []
    for q in range(5):
        xb = XU(c, q)
        reg, base = (V_XA, 0) if xb < 64 * KB else (V_XB, 120 * KB)
        xr.append(dsrd('ds_read_b128', ('v', V_XF + (kap & 1) * 20 + q * 4), 4, reg + s, xb - base))
    wr = []
    for e in range(2):
        for h in range(2):
            reg, base = (V_WA, 40 * KB) if wb < 96 * KB else (V_WB, 96 * KB)
            wr.append(dsrd('ds_read_b64_tr_b16', ('v', V_WF + (kap & 1) * 8 + e * 4 + h * 2), 2, reg + e, wb - base + h * 1024))
    return wr[:2] + xr[:1] + wr[2:] + xr[1:]
def a_mfmas(kap):
    o = []
    for q in range(5):
        for e in range(2):
            d = ('v', V_QACC + (e * 5 + q) * 4)
            o.append(mfma(d, ('v', V_WF + (kap & 1) * 8 + e * 4), ('v', V_XF + (kap & 1) * 20 + q * 4), 0 if kap == 0 else d))
    return o
def lane0(sg, body, lab):
    sg.text(f"s_cmp_lg_u32 s{S_W}, 0"); sg.text(f"s_cbranch_scc1 {lab}")
    sg.text(f"s_mov_b64 s[{S_EX}:{S_EX+1}], exec"); sg.text("s_mov_b64 exec, 1")
    for x in body: sg.text(x)
    sg.text(f"s_mov_b64 exec, s[{S_EX}:{S_EX+1}]")
    sg.text(f"{lab}:")
def phase_a(sg, Q, late):
    stamp(sg, 1)
    sg.add(barrier(needvm=[('x', 0), ('w', 0)])); Q.mark('B0')
    stamp(sg, 2)
    sg.addall(a_reads(0))
    for kap in range(16):
        mf = a_mfmas(kap)
        gaps = [[] for _ in mf]
        if kap < 15:
            nx = kap + 1
            if nx % 2 == 0:
                u = nx >> 1
                need = [('x', u >> 1), ('w', u)]
                while any(it.ins.vmtag in need for it in Q.q):
                    weave(sg, Q, [], 1, 0)
                sg.add(barrier(needvm=need, lg0=bool(int(opt.lg0)))); Q.mark(f'B{u}')
                if u in (1, 3, 5, 7): stamp(sg, 5 + u // 2, 'A')
            for i, r in enumerate(a_reads(nx)): gaps[i].append(r)
        if kap == 0:
            for i, r in enumerate(rt_reads()): gaps[i + 1].append(r)
        if kap == 1: Q.mark('RT')
        pos = [1, 5, 9] if kap % 2 == 0 else [3, 7]
        if int(opt.perstep) == 6: pos = [1, 4, 7] if kap % 2 == 0 else [1, 4, 8]
        place(gaps, Q, pos)
        if kap >= 1:
            for gi in range(10):
                if len([x for x in gaps[gi] if x.k != 'salu']) < 2 and late: gaps[gi].append(late.pop(0))
                while late and late[0].k == 'salu': gaps[gi].append(late.pop(0))
        sg.addall(interleave(mf, gaps))
    stamp(sg, 9, 'A')
    sg.addall(late); del late[:]
    fin = [S(f"s_mov_b32 s{S_T2}, {f2h(QSCALE)}", [], [S_T2])]
    for q in range(5):
        for e in range(2):
            b = V_QACC + (e * 5 + q) * 4
            for r in range(4):
                fin.append(V(f"v_mul_f32 v{b+r}, s{S_T2}, v{b+r}", [b+r, ('s', S_T2)], [b+r]))
            fin.append(V(f"v_cvt_pk_bf16_f32 v{b}, v{b}, v{b+1}", [b, b+1], [b]))
            fin.append(V(f"v_cvt_pk_bf16_f32 v{b+1}, v{b+2}, v{b+3}", [b+2, b+3], [b+1]))
            fin.append(dswr('ds_write_b64', V_QW + e, ('v', b), 2, q * 4096))
    weave(sg, Q, fin, 5, 14)
    sg.addall(fin)
    sg.add(barrier()); Q.mark('BQ')
    qr = [dsrd('ds_read_b128', AQ(q, s), 4, V_XB + s, QBUF - 120 * KB + q * 4096) for q in range(5) for s in range(4)]
    return qr

def qk(tau):
    i, q = divmod(tau, 5)
    o = []
    for s in range(4):
        for t in range(2):
            d = ('v', V_S + (tau & 1) * 8 + t * 4)
            o.append(mfma(d, ('v', V_KF + (i & 1) * 32 + (t * 4 + s) * 4), AQ(q, s), ('v', V_NEGM + q * 4) if s == 0 else d))
    return o
def pv(tau):
    i, q = divmod(tau, 5)
    p = ('v', V_P + (tau & 1) * 4)
    o = [mfma(AO(lam, q), ('v', V_VF + (i & 1) * 32 + lam * 4), p, AO(lam, q) if i else 0) for lam in range(8)]
    o.insert(0, mfma(('v', V_L + q * 4), ('v', V_ONES), p, ('v', V_L + q * 4) if i else 0))
    return o
def sm(tau):
    b = V_S + (tau & 1) * 8
    p = V_P + (tau & 1) * 4
    e = [T(f"v_exp_f32 v{b+i}, v{b+i}", [b+i], [b+i]) for i in range(8)]
    c = [V(f"v_cvt_pk_bf16_f32 v{p+i}, v{b+2*i}, v{b+2*i+1}", [b+2*i, b+2*i+1], [p+i]) for i in range(4)]
    return e, c
def comb_writes(q):
    o = []
    for jd in range(1, 4):
        for e in range(2):
            u = q * 6 + (jd - 1) * 2 + e
            row = u >> 3
            o.append(dswr('ds_write_b128', V_CW + (row >> 1), AO(2 * jd + e, q), 4, (row & 1) * 32 * KB + (u & 7) * KB, lgtag=('cw', q)))
    return o

class Regs:
    def __init__(s): s.free = []; s.F = {}; s.nxt = 0
    def give(s, f, lo, n, tag=None): s.free += [((f, lo + 4 * i), tag) for i in range(n)]
    def wo_items(s, limit=1000):
        out = []
        while s.free and s.nxt < 96 and len(out) < limit:
            quad, tag = s.free.pop(0)
            ks, e = divmod(s.nxt, 3); s.nxt += 1
            s.F[(ks, e)] = quad
            ins = vload(quad, 4, V_WL + e, S_WL, S_TAB + (ks >> 2), (ks & 3) * 1024, flags=' sc1')
            if tag: ins.needlg = (tag,)
            out.append(Item([], ins))
        return out

def phase_b(sg, Q, qr, RG):
    NT = 8
    sg.addall(qr[:4])
    while any(it.ins.vmtag in (('k', 0, 0), ('k', 0, 1)) for it in Q.q): weave(sg, Q, [], 1, 0)
    sg.addall(k_reads(0)); Q.mark(('kr', 0, 0)); Q.mark(('kr', 0, 1))
    qr = qr[4:]
    for tau in range(-1, 41):
        i, q = divmod(tau, 5) if tau >= 0 else (-1, 4)
        mf = []
        bst = [int(x) for x in opt.bst.split(',')]
        if tau in bst: stamp(sg, 5 + bst.index(tau), 'B')
        if tau + 1 < 40: mf += qk(tau + 1)
        if tau - 1 >= 0: mf += pv(tau - 1)
        ds, marks = [], []
        if tau == -1: ds = qr
        elif tau == 0: ds = v_reads(0); marks = [('vr', 0, 0), ('vr', 0, 1)]
        elif i < NT:
            if q == 2 and i + 1 < NT: ds = k_reads(i + 1)[:4]; marks = [('kr', i + 1, 0)]
            if q == 3 and i + 1 < NT: ds = k_reads(i + 1)[4:]; marks = [('kr', i + 1, 1)]
            if q == 4 and i + 1 < NT: ds = v_reads(i + 1)[:8]; marks = [('vr', i + 1, 0)]
            if q == 0: ds = v_reads(i)[8:]; marks = [('vr', i, 1)]
            if i == NT - 1 and q >= 2: ds = comb_writes(q - 2)
        if tau == 40: ds = comb_writes(3)
        n = len(mf)
        gaps = [[] for _ in range(n)]
        e, c = sm(tau) if 0 <= tau < 40 else ([], [])
        if n == 17:
            epos = [0, 2, 4, 6, 8, 10, 12, 14]; cpos = [3, 7, 11, 15]
            dpos = [1, 3, 5, 7, 9, 11, 13, 15] if len(ds) > 4 else [1, 3, 5, 7]
            vpos = [int(x) for x in opt.vpos.split(',')]
        else:
            epos = list(range(8)); cpos = [min(n - 1, x) for x in (2, 4, 6, 8)]
            dpos = [(k * n) // max(1, len(ds)) for k in range(len(ds))]
            vpos = [1, 5]
        for x, p_ in zip(ds, dpos): gaps[p_].append(x)
        if tau == int(opt.arr_at):
            assert not any(it.ins.vmtag == 'rts' for it in Q.q)
            sg.add(barrier(needvm=['rts'], lg0=False))
            sg.text(f"s_cmp_lg_u32 s{S_REDO}, 0"); sg.text("s_cbranch_scc1 L_noarr")
            lane0(sg, [f"s_and_b32 s{S_SPIN}, s2, 1", f"s_lshl_b32 s{S_SPIN}, s{S_SPIN}, 7", f"v_mov_b32 v253, s{S_SPIN}", "v_mov_b32 v255, 1",
                       f"buffer_atomic_add v255, v253, s[{S_D}:{S_D+3}], 0 offen"], "L_noarr")
        for x in ds:
            while any(it.ins.vmtag in x.needvm for it in Q.q): weave(sg, Q, [], 1, 0)
        if tau == 20:
            for k in range(8):
                gaps[2 * k].insert(0, S(f"s_add_u32 s{S_TAB+k}, s{S_RC}, {k*4096}", [S_RC], [S_TAB+k]))
                gaps[2 * k + 2].insert(0, S(f"s_and_b32 s{S_TAB+k}, s{S_TAB+k}, 0x7000", [S_TAB+k], [S_TAB+k]))
        if tau == 27:
            Q.push([Item([], vload(('v', V_GC), 1, V_GA, S_D, None, 0, flags=' sc1'))])
        if tau == 32:
            assert not Q.q
            sg.add(V(f"v_cmp_gt_u32 vcc, 128, v{V_GC}", [V_GC], [VCC]))
            sg.text("s_nop 4"); sg.text("s_cbranch_vccnz L_spin_g"); sg.text("L_back_g:")
            RG.give('a', 240, 4); RG.give('v', 228, 4)
        if tau == 34: RG.give('v', V_KF, 8)
        if 35 <= tau <= 39: RG.give('a', A_Q + 16 * (tau - 35), 4)
        if tau == 36: RG.give('v', V_VF, 8)
        if tau == 39: RG.give('v', V_KF + 32, 8)
        if tau >= 32 and len(Q.q) < 4: Q.push(RG.wo_items(4 - len(Q.q)))
        place(gaps, Q, vpos)
        for x, p_ in zip(e, epos): gaps[p_].append(x)
        for x, p_ in zip(c, cpos): gaps[p_].append(x)
        sg.addall(interleave(mf, gaps))
        for m in marks: Q.mark(m)

def combine(sg, Q, RG):
    V_CR, V_LR = V_KA, V_KA + 6
    pre = []
    a = pre.append
    a(V(f"v_lshlrev_b32 v{V_T0}, 4, v{V_LANE}", [V_LANE], [V_T0]))
    for jd in range(1, 4):
        a(S(f"s_sub_u32 s{S_T0}, s{S_W}, {jd}", [S_W], [S_T0]))
        a(S(f"s_and_b32 s{S_T0}, s{S_T0}, 3", [S_T0], [S_T0]))
        a(S(f"s_lshl_b32 s{S_T0}, s{S_T0}, 13", [S_T0], [S_T0]))
        a(V(f"v_add_u32 v{V_CR+2*(jd-1)}, s{S_T0}, v{V_T0}", [V_T0, ('s', S_T0)], [V_CR+2*(jd-1)]))
        a(V(f"v_add_u32 v{V_CR+2*(jd-1)+1}, {64*KB}, v{V_CR+2*(jd-1)}", [V_CR+2*(jd-1)], [V_CR+2*(jd-1)+1]))
    a(S(f"s_mov_b32 s{S_T0}, {102*KB}", [], [S_T0]))
    a(V(f"v_lshl_add_u32 v{V_LR}, v{V_N}, 5, s{S_T0}", [V_N, ('s', S_T0)], [V_LR]))
    sg.addall(pre)
    for q in range(5):
        sg.add(dswr('ds_write_b32', V_LW, ('v', V_L + q * 4), 1, q * 4))
    sg.addall(comb_writes(4))
    SETS = [(196, 204), (76, None)]
    def own(q): return 196 if q % 2 == 0 else 76
    def part(q, k):
        return 204 + 4 * k if q % 2 == 0 else (84 + 4 * k if k < 4 else 36 + 4 * (k - 4))
    def accreads(q):
        return [V(f"v_accvgpr_read_b32 v{own(q) + e*4 + r}, a{AO(e, q)[1] + r}", [('a', AO(e, q)[1] + r)], [own(q) + e*4 + r]) for e in range(2) for r in range(4)]
    def preads(q):
        o = []
        for jd in range(1, 4):
            for e in range(2):
                k = (jd - 1) * 2 + e; u = q * 6 + k; row = u >> 3
                o.append(dsrd('ds_read_b128', ('v', part(q, k)), 4, V_CR + 2 * (jd - 1) + (row >> 1), (row & 1) * 32 * KB + (u & 7) * KB))
        return o
    for q in range(4): RG.give('a', AO(2, q)[1], 6, ('cw', q))
    Q.push(RG.wo_items(3))
    weave(sg, Q, accreads(0) + accreads(1), 2, 8)
    sg.add(barrier())
    stamp(sg, 5)
    LS = V_L
    for src in range(4):
        sg.add(dsrd('ds_read_b128', ('v', LS + src * 4), 4, V_LR, src * 8 * KB))
        sg.add(dsrd('ds_read_b32', ('v', LS + 16 + src), 1, V_LR, src * 8 * KB + 16))
    sg.addall(preads(0)); sg.addall(preads(1))
    RG.give('a', AO(2, 4)[1], 6); RG.give('a', AO(0, 0)[1], 2); RG.give('a', AO(0, 1)[1], 2)
    def lreg(src, q): return LS + src * 4 + q if q < 4 else LS + 16 + src
    w = []
    for q in range(5):
        d = V_T0 + q
        w.append(V(f"v_add_f32 v{d}, v{lreg(0,q)}, v{lreg(1,q)}", [lreg(0,q), lreg(1,q)], [d]))
        w.append(V(f"v_add_f32 v{lreg(2,q)}, v{lreg(2,q)}, v{lreg(3,q)}", [lreg(2,q), lreg(3,q)], [lreg(2,q)]))
        w.append(V(f"v_add_f32 v{d}, v{d}, v{lreg(2,q)}", [d, lreg(2,q)], [d]))
    w.append(V(f"v_min3_f32 v{LS}, v{V_T0}, v{V_T0+1}, v{V_T0+2}", [V_T0, V_T0+1, V_T0+2], [LS]))
    w.append(V(f"v_min3_f32 v{LS}, v{LS}, v{V_T0+3}, v{V_T0+4}", [LS, V_T0+3, V_T0+4], [LS]))
    w.append(V(f"v_add_f32 v{LS+1}, v{V_T0}, v{V_T0+1}", [V_T0, V_T0+1], [LS+1]))
    w.append(V(f"v_add_f32 v{LS+2}, v{V_T0+2}, v{V_T0+3}", [V_T0+2, V_T0+3], [LS+2]))
    w.append(V(f"v_add_f32 v{LS+1}, v{LS+1}, v{V_T0+4}", [LS+1, V_T0+4], [LS+1]))
    w.append(V(f"v_add_f32 v{LS+1}, v{LS+1}, v{LS+2}", [LS+1, LS+2], [LS+1]))
    w.append(V(f"v_cmp_nle_f32 vcc, {f2h(2.0**int(opt.lo_exp))}, v{LS}", [LS], [VCC]))
    w.append(S(f"s_mov_b64 s[{S_EX}:{S_EX+1}], vcc", [VCC], [S_EX, S_EX+1]))
    w.append(V(f"v_cmp_nge_f32 vcc, {f2h(2.0**int(opt.hi_exp))}, v{LS+1}", [LS+1], [VCC]))
    w.append(S(f"s_or_b64 vcc, vcc, s[{S_EX}:{S_EX+1}]", [VCC, S_EX, S_EX+1], [VCC]))
    Q.push(RG.wo_items(2))
    weave(sg, Q, w, 2, 12)
    sg.addall(w)
    sg.text("s_cbranch_vccnz L_redo"); sg.text("L_back_redo:")
    for q in range(5):
        d = V_T0 + q
        sg.add(T(f"v_rcp_f32 v{d}, v{d}", [d], [d]))
    for q in range(5):
        w = []
        for e in range(2):
            o_ = own(q) + e * 4
            for jd in range(1, 4):
                p_ = part(q, (jd - 1) * 2 + e)
                for r in (0, 2):
                    w.append(V(f"v_pk_add_f32 v[{o_+r}:{o_+r+1}], v[{o_+r}:{o_+r+1}], v[{p_+r}:{p_+r+1}]", [o_+r, o_+r+1, p_+r, p_+r+1], [o_+r, o_+r+1]))
        if q + 2 < 5: w += preads(q + 2)
        o_ = own(q)
        ri = V_T0 + (q & ~1); sel = "op_sel:[0,1] op_sel_hi:[1,1]" if q & 1 else "op_sel:[0,0] op_sel_hi:[1,0]"
        for r in range(0, 8, 2):
            w.append(V(f"v_pk_mul_f32 v[{o_+r}:{o_+r+1}], v[{o_+r}:{o_+r+1}], v[{ri}:{ri+1}] {sel}", [o_+r, o_+r+1, V_T0+q], [o_+r, o_+r+1]))
        res = 20 + 4 * (q % 2)
        for r in range(4):
            w.append(V(f"v_cvt_pk_bf16_f32 v{res+r}, v{o_+2*r}, v{o_+2*r+1}", [o_+2*r, o_+2*r+1], [res+r]))
        w.append(S(f"s_mov_b32 s{S_SO}, {q*128*KB}", [], [S_SO]))
        w.append(vstore(('v', res), 4, V_OST, S_O, S_SO, 0, flags=' sc1', tag='ost'))
        if q + 2 < 5: w += accreads(q + 2)
        cw = int(opt.cw)
        Q.push(RG.wo_items(cw))
        weave(sg, Q, w, cw, len(w) // (cw + 1))
        sg.addall(w)
        if q + 2 < 5: RG.give('a', AO(0, q + 2)[1], 2)
    stamp(sg, 6)

def phase_c(sg, Q, RG):
    a = sg.add
    RG.give('v', 196, 8)
    Q.push(RG.wo_items(int(opt.shadow)))
    weave(sg, Q, [], len(Q.q), 0)
    a(barrier(needvm=['ost']))
    stamp(sg, 7)
    lane0(sg, [f"s_lshr_b32 s{S_T0}, s{S_HQ}, 3", f"s_lshl_b32 s{S_T1}, s{S_B}, 2", f"s_add_u32 s{S_T0}, s{S_T0}, s{S_T1}", f"s_lshl_b32 s{S_T0}, s{S_T0}, 7",
               f"v_mov_b32 v{V_T0}, s{S_T0}", f"v_mov_b32 v{V_T1}, 1", f"buffer_atomic_add v{V_T1}, v{V_T0}, s[{S_C}:{S_C+3}], 0 offen"], "L_sig")
    sg.text(f"s_cmp_eq_u32 s{S_VALID}, 0"); sg.text("s_cbranch_scc1 L_fin")
    Q.push(RG.wo_items())
    weave(sg, Q, [], len(Q.q), 0)
    assert RG.nxt == 96, RG.nxt
    sg.text(f"s_mov_b32 s{S_SPIN}, {opt.spin}")
    sg.text("L_poll:")
    sg.text(f"buffer_load_dword v{V_T0}, v{V_PL}, s[{S_C}:{S_C+3}], 0 offen sc1")
    sg.text(f"s_sub_u32 s{S_SPIN}, s{S_SPIN}, 1")
    sg.text("s_waitcnt vmcnt(0)")
    sg.text(f"v_cmp_gt_u32 vcc, 8, v{V_T0}")
    sg.text(f"s_cmp_eq_u32 s{S_SPIN}, 0")
    sg.text("s_cbranch_scc1 L_polled")
    sg.text("s_nop 2")
    sg.text("s_cbranch_vccnz L_poll")
    sg.text("L_polled:")
    sg.vm = []
    stamp(sg, 8)
    ACC = 12
    RG.give('v', 36, 16); RG.give('v', 252, 1)
    free = [x[0] for x in RG.free]
    O = {}
    nxt = 0
    def oloads():
        nonlocal nxt
        while free and nxt < 64 and len(sg.vm) < 60:
            ks, m = divmod(nxt, 2); nxt += 1
            O[(ks, m)] = free.pop(0)
            a(vload(O[(ks, m)], 4, V_OL + m, S_O, S_TAB + (ks >> 2), (ks & 3) * 1024, flags=' sc1'))
    oloads()
    for ks in range(32):
        for m in range(2):
            for e in range(3):
                d = ('v', ACC + (e * 2 + m) * 4)
                a(mfma(d, RG.F[(ks, e)], O[(ks, m)], 0 if ks == 0 else d))
        free += [O[(ks, 0)], O[(ks, 1)]] + [RG.F[(ks, e)] for e in range(3)]
        oloads()
    stamp(sg, 9)
    a(S(f"s_mul_i32 s{S_T0}, s{S_W}, 6144", [S_W], [S_T0]))
    a(V(f"v_lshlrev_b32 v{V_T0}, 4, v{V_LANE}", [V_LANE], [V_T0]))
    a(V(f"v_add_u32 v{V_T1}, s{S_T0}, v{V_T0}", [V_T0, ('s', S_T0)], [V_T1]))
    a(S(f"s_mul_i32 s{S_T1}, s{S_NT}, 3", [S_NT], [S_T1]))
    a(S(f"s_add_u32 s{S_T1}, s{S_T1}, s{S_W}", [S_T1, S_W], [S_T1]))
    a(S(f"s_lshl_b32 s{S_T0}, s{S_W}, 11", [S_W], [S_T0]))
    a(V(f"v_add_u32 v{V_T2}, s{S_T0}, v{V_T0}", [V_T0, ('s', S_T0)], [V_T2]))
    a(V(f"v_lshlrev_b32 v{V_T3}, 3, v{V_G}", [V_G], [V_T3]))
    a(V(f"v_lshl_add_u32 v{V_T3}, v{V_N}, 10, v{V_T3}", [V_N, V_T3], [V_T3]))
    a(S(f"s_lshl_b32 s{S_T0}, s{S_MT}, 15", [S_MT], [S_T0]))
    a(S(f"s_lshl_b32 s{S_T2}, s{S_T1}, 5", [S_T1], [S_T2]))
    a(S(f"s_add_u32 s{S_T0}, s{S_T0}, s{S_T2}", [S_T0, S_T2], [S_T0]))
    a(V(f"v_add_u32 v{V_T3}, s{S_T0}, v{V_T3}", [V_T3, ('s', S_T0)], [V_T3]))
    for t in range(6):
        a(dswr('ds_write_b128', V_T1, ('v', ACC + t * 4), 4, t * 1024))
    a(barrier())
    sg.text(f"s_cmp_ge_u32 s{S_W}, 3"); sg.text("s_cbranch_scc1 L_fin")
    sg.text(f"s_cmp_ge_u32 s{S_T1}, 32"); sg.text("s_cbranch_scc1 L_fin")
    for m in range(2):
        for src in range(4):
            a(dsrd('ds_read_b128', ('v', 40 + (m * 4 + src) * 4), 4, V_T2, src * 6144 + m * 1024))
    a(S(f"s_mov_b32 s{S_SO}, 16384", [], [S_SO]))
    for m in range(2):
        b = 40 + m * 16
        for src in range(1, 4):
            for r in (0, 2):
                a(V(f"v_pk_add_f32 v[{b+r}:{b+r+1}], v[{b+r}:{b+r+1}], v[{b+src*4+r}:{b+src*4+r+1}]", [b+r, b+r+1, b+src*4+r, b+src*4+r+1], [b+r, b+r+1]))
        a(V(f"v_cvt_pk_bf16_f32 v{b}, v{b}, v{b+1}", [b, b+1], [b]))
        a(V(f"v_cvt_pk_bf16_f32 v{b+1}, v{b+2}, v{b+3}", [b+2, b+3], [b+1]))
        a(vstore(('v', b), 2, V_T3, S_OUT, S_SO if m else None, 0))

def out_of_line():
    t = []
    t += ["L_spin_g:", f"s_mov_b32 s{S_SPIN}, {opt.spin}", "L_spin_g1:",
          f"buffer_load_dword v{V_GC}, v{V_GA}, s[{S_D}:{S_D+3}], 0 offen sc1", f"s_sub_u32 s{S_SPIN}, s{S_SPIN}, 1", "s_waitcnt vmcnt(0)",
          f"v_cmp_gt_u32 vcc, 128, v{V_GC}", f"s_cmp_eq_u32 s{S_SPIN}, 0", "s_cbranch_scc1 L_back_g", "s_nop 2", "s_cbranch_vccnz L_spin_g1", "s_branch L_back_g"]
    t += ["L_redo:", f"s_cmp_lg_u32 s{S_REDO}, 0", "s_cbranch_scc1 L_back_redo", f"s_mov_b32 s{S_REDO}, 1",
          "s_waitcnt vmcnt(0) lgkmcnt(0)", "s_barrier"]
    sg = Seg()
    p1 = prologue1()
    a = sg.add
    a(V(f"v_lshl_add_u32 v{V_T0}, s{S_W}, 2, v{V_G}", [V_G], [V_T0]))
    a(V(f"v_xor_b32 v{V_T1}, v{V_N}, v{V_T0}", [V_N, V_T0], [V_T1]))
    a(V(f"v_lshlrev_b32 v{V_T1}, 4, v{V_T1}", [V_T1], [V_T1]))
    a(V(f"v_lshl_add_u32 v{V_XD}, v{V_T0}, 10, v{V_T1}", [V_T0, V_T1], [V_XD]))
    a(S(f"s_and_b32 s{S_T0}, s{S_W}, 2", [S_W], [S_T0]))
    a(S(f"s_lshl_b32 s{S_T0}, s{S_T0}, 2", [S_T0], [S_T0]))
    a(V(f"v_lshl_add_u32 v{V_T1}, v{V_G}, 1, s{S_T0}", [V_G], [V_T1]))
    a(V(f"v_xor_b32 v{V_T1}, v{V_N}, v{V_T1}", [V_N, V_T1], [V_T1]))
    a(V(f"v_lshlrev_b32 v{V_T1}, 4, v{V_T1}", [V_T1], [V_T1]))
    a(V(f"v_lshl_add_u32 v{V_WD}, v{V_T0}, 13, v{V_T1}", [V_T0, V_T1], [V_WD]))
    t += sg.out + ["s_nop 4", "s_branch L_restart"]
    sg = Seg(); a = sg.add
    sg.text("L_max:")
    sg.text(f"s_mov_b32 s{S_SPIN}, m0")
    sg.drain()
    sg.text("s_barrier")
    MX, KF, AD = 76, V_VF, 84
    for q in range(5): a(V(f"v_mov_b32 v{MX+q}, 0xff800000", [], [MX+q]))
    for s in range(4): a(V(f"v_add_u32 v{AD+s}, {96*KB}, v{V_KA+s}", [V_KA+s], [AD+s]))
    a(S(f"s_mov_b32 s{S_T2}, 0", [], [S_T2]))
    sg.text("L_max_loop:"); sg.reset_hist()
    for j in range(8):
        if j % 4 == 0:
            a(S(f"s_add_u32 s{S_T1}, s{S_T2}, {(j>>2)*4096}", [S_T2], [S_T1]))
            a(S(f"s_add_u32 m0, s{S_W8K}, {96*KB + (j>>2)*4096}", [S_W8K], [M0]))
        a(dma(V_KD + (j & 3), S_K, S_T1, 1024 * (j & 3), 'mk'))
    for t_ in range(2):
        for s in range(4):
            a(dsrd('ds_read_b128', ('v', KF + (t_ * 4 + s) * 4), 4, AD + s, t_ * 4096, needvm=['mk']))
    for q in range(5):
        for t_ in range(2):
            d = ('v', 88 + t_ * 4)
            for s in range(4): a(mfma(d, ('v', KF + (t_ * 4 + s) * 4), AQ(q, s), 0 if s == 0 else d))
        for k in range(4):
            a(V(f"v_max3_f32 v{MX+q}, v{MX+q}, v{88+2*k}, v{89+2*k}", [MX+q, 88+2*k, 89+2*k], [MX+q]))
    sg.drain()
    a(S(f"s_add_u32 s{S_T2}, s{S_T2}, 8192", [S_T2], [S_T2]))
    sg.text(f"s_cmp_lt_u32 s{S_T2}, 65536"); sg.text("s_nop 4"); sg.text("s_cbranch_scc1 L_max_loop")
    sg.text("s_barrier")
    a(S(f"s_mul_i32 s{S_T0}, s{S_W}, 1280", [S_W], [S_T0]))
    a(S(f"s_add_u32 s{S_T0}, s{S_T0}, {96*KB}", [S_T0], [S_T0]))
    a(V(f"v_lshl_add_u32 v{AD}, v{V_LANE}, 2, s{S_T0}", [V_LANE], [AD]))
    a(S(f"s_mov_b32 s{S_T0}, {96*KB}", [], [S_T0]))
    a(V(f"v_lshl_add_u32 v{AD+1}, v{V_N}, 2, s{S_T0}", [V_N], [AD+1]))
    for q in range(5): a(dswr('ds_write_b32', AD, ('v', MX + q), 1, q * 256))
    a(barrier())
    for q in range(5):
        for k in range(16):
            a(dsrd('ds_read_b32', ('v', KF + k), 1, AD + 1, (k >> 2) * 1280 + q * 256 + (k & 3) * 64))
        for k in range(8):
            a(V(f"v_max3_f32 v{MX+q}, v{MX+q}, v{KF+2*k}, v{KF+2*k+1}", [MX+q, KF+2*k, KF+2*k+1], [MX+q]))
        for r in range(4):
            a(V(f"v_sub_f32 v{V_NEGM+q*4+r}, 0, v{MX+q}", [MX+q], [V_NEGM+q*4+r]))
    sg.drain()
    sg.text("s_barrier"); sg.text(f"s_mov_b32 m0, s{S_SPIN}"); sg.text("s_nop 4"); sg.text("s_branch L_back_max")
    return t + sg.out

def stamp_out(sg, n):
    if not opt.stamps: return
    stamp(sg, n - 1)
    t = ["s_load_dwordx2 s[4:5], s[0:1], 56", "s_waitcnt lgkmcnt(0)", f"s_add_u32 s4, s4, {16<<20}", "s_addc_u32 s5, s5, 0", "s_and_b32 s5, s5, 0xffff",
         "s_mov_b32 s6, 0x100000", "s_mov_b32 s7, 0x20000", "s_lshl_b32 s8, s2, 2", "s_add_u32 s8, s8, s32", "s_lshl_b32 s8, s8, 6", "v_mov_b32 v2, s8"]
    for i in range(n):
        t += [f"v_mov_b32 v3, s{3 if i == 0 else 76+2*i}", f"buffer_store_dword v3, v2, s[4:7], 0 offen offset:{4*i}"]
    for x in t: sg.text(x)

def kernel():
    sg = Seg()
    sg.text(NAME + "_kernel:")
    sg.text("s_cmp_ge_u32 s2, 256")
    sg.text("s_cbranch_scc1 L_end")
    if opt.stamps:
        stamp(sg, 0)
    sg.addall(prologue1())
    if opt.stamps:
        sg.text("s_mov_b32 s3, s76")
        for i in range(1, NST): sg.text(f"s_mov_b32 s{76+2*i}, 0") if 76 + 2*i < 92 else None
    p2 = prologue2()
    Q = Queue()
    first = x_dma(0) + w_dma(0)
    sg.addall(restart_setup())
    Q.push(first)
    weave(sg, Q, [], 9, 0)
    sg.addall(p2)
    sg.text("s_cmp_ge_u32 s2, 32"); sg.text("s_cbranch_scc1 L_nocz")
    lane0(sg, [f"s_lshl_b32 s{S_SPIN}, s2, 7", f"v_mov_b32 v253, s{S_SPIN}", "v_mov_b32 v255, 0",
               f"buffer_store_dword v255, v253, s[{S_C}:{S_C+3}], 0 offen sc1"], "L_nocz")
    sg.text("s_branch L_first")
    sg.text("L_restart:")
    s2 = Seg(); s2.addall(restart_setup()); Q2 = Queue(); Q2.push(x_dma(0) + w_dma(0)); weave(s2, Q2, [], 9, 0)
    for x in s2.out: sg.text(x)
    sg.text("L_first:")
    early, late = prologue3()
    def BB(u): return f"B{u if int(opt.lg0) else u + 1}"
    Q.push(rt_dma() + w_dma(1) + x_dma(1) + w_dma(2) + w_dma(3) + x_dma(2) + w_dma(4) + (rt_stores('RT') if int(opt.rt_at) < 0 else []) + x_dma(3, BB(1)) + w_dma(5, BB(1)) + w_dma(6, BB(2)) + w_dma(7, BB(3))
           + kv_dma('k', 0, BB(4)) + kv_dma('v', 0, BB(5)) + kv_dma('k', 1, 'B7') + kv_dma('v', 1, 'BQ'))
    for i in range(2, 8):
        Q.push(kv_dma('k', i) + kv_dma('v', i))
        if i == int(opt.rt_at) and not int(opt.no_rt): Q.push(rt_stores(None))
    n0 = int(opt.n0) - 9
    weave(sg, Q, early, n0, (len(early) + n0 - 1) // n0)
    sg.addall(early)
    qr = phase_a(sg, Q, late)
    sg.addall(qr[:0])
    stamp(sg, 3)
    sg.text(f"s_cmp_eq_u32 s{S_REDO}, 0"); sg.text("s_cbranch_scc1 L_back_max")
    s2 = Seg(); s2.addall(qr)
    for x in s2.out: sg.text(x)
    sg.text("s_branch L_max")
    sg.text("L_back_max:")
    RG = Regs()
    phase_b(sg, Q, qr, RG)
    stamp(sg, 4)
    combine(sg, Q, RG)
    phase_c(sg, Q, RG)
    sg.text("L_fin:")
    stamp_out(sg, 11)
    sg.text("L_end:")
    sg.text("s_endpgm")
    return sg.out + out_of_line()

def report_kernel():
    idx, mode = opt.report.split(',')
    t = ["report_kernel:", "s_cmp_ge_u32 s2, 1", "s_cbranch_scc1 L3_end", "s_load_dwordx2 s[4:5], s[0:1], 56", "s_waitcnt lgkmcnt(0)",
         f"s_add_u32 s4, s4, {16<<20}", "s_addc_u32 s5, s5, 0", "s_and_b32 s5, s5, 0xffff", "s_mov_b32 s6, 0x100000", "s_mov_b32 s7, 0x20000",
         "v_lshlrev_b32 v1, 8, v0", f"buffer_load_dword v2, v1, s[4:7], 0 offen offset:{4*int(idx)}", "buffer_load_dword v3, v1, s[4:7], 0 offen",
         "v_mov_b32 v4, 0", "v_mov_b32 v5, 0", "v_mov_b32 v6, -1", "ds_write_b32 v4, v5", "ds_write_b32 v4, v6 offset:8", "s_waitcnt vmcnt(0) lgkmcnt(0)", "s_barrier",
         "ds_min_u32 v4, v3 offset:8", "s_waitcnt lgkmcnt(0)", "s_barrier", "ds_read_b32 v6, v4 offset:8", "s_waitcnt lgkmcnt(0)", "v_sub_u32 v2, v2, v6",
         "v_lshrrev_b32 v7, 3, v0", "v_mul_u32_u24 v7, 52, v7", "v_lshrrev_b32 v7, 8, v7", "v_and_b32 v8, 1, v0", "v_sub_u32 v8, 6, v8", "v_cmp_lt_u32 vcc, v7, v8",
         "s_nop 4", "v_cndmask_b32 v2, 0, v2, vcc", "v_min_u32 v2, 10000, v2",
         ("ds_add_u32 v4, v2" if mode == 'mean' else "ds_max_u32 v4, v2"), "s_waitcnt lgkmcnt(0)", "s_barrier", "ds_read_b32 v6, v4", "s_memrealtime s[12:13]", "s_waitcnt lgkmcnt(0)",
         "v_readfirstlane_b32 s10, v6", "s_nop 4"]
    if mode == 'mean': t += ["s_mul_i32 s10, s10, 745", "s_lshr_b32 s10, s10, 14"]
    elif mode == 'max': t += ["s_mul_i32 s10, s10, 10"]
    else: t += ["s_mov_b32 s10, 0"]
    t += ["L3_spin:", "s_memrealtime s[14:15]", "s_waitcnt lgkmcnt(0)", "s_sub_u32 s14, s14, s12",
          "s_cmp_lt_u32 s14, s10", "s_cbranch_scc1 L3_spin", "L3_end:", "s_endpgm"]
    return t

def build():
    def fmt(l): return "\n".join(x if x.endswith(':') else "    " + x for x in l)
    nm = NAME + "_kernel"
    s = "; @launch grid=(256,1,1) block=(256,1,1) lds=163840\n"
    if opt.report:
        s = f"; @launch kernel={nm} grid=(256,1,1) block=(256,1,1) lds=163840\n; @launch kernel=report_kernel grid=(1,1,1) block=(256,1,1) lds=64\n"
    s += '.amdgcn_target "amdgcn-amd-amdhsa--gfx950"\n.text\n'
    s += f".globl {nm}\n.p2align 8\n.type {nm},@function\n" + fmt(kernel()) + "\n"
    if opt.report: s += ".globl report_kernel\n.p2align 8\n.type report_kernel,@function\n" + fmt(report_kernel()) + "\n"
    s += f""".section .rodata,"a"
.p2align 6
.amdhsa_kernel {nm}
  .amdhsa_next_free_vgpr 512
  .amdhsa_next_free_sgpr 102
  .amdhsa_accum_offset 256
  .amdhsa_group_segment_fixed_size 0
  .amdhsa_kernarg_size 64
  .amdhsa_user_sgpr_count 2
  .amdhsa_user_sgpr_kernarg_segment_ptr 1
  .amdhsa_system_sgpr_workgroup_id_x 1
  .amdhsa_float_denorm_mode_32 3
.end_amdhsa_kernel
"""
    if opt.report:
        s += """.p2align 6
.amdhsa_kernel report_kernel
  .amdhsa_next_free_vgpr 32
  .amdhsa_next_free_sgpr 32
  .amdhsa_accum_offset 32
  .amdhsa_group_segment_fixed_size 0
  .amdhsa_kernarg_size 64
  .amdhsa_user_sgpr_count 2
  .amdhsa_user_sgpr_kernarg_segment_ptr 1
  .amdhsa_system_sgpr_workgroup_id_x 1
.end_amdhsa_kernel
"""
    return s

if __name__ == '__main__':
    out = sys.argv[1] if len(sys.argv) > 1 else 'cdna_kernels/' + NAME + '.s'
    for a_ in sys.argv[2:]:
        k, v = a_.split('=', 1)
        setattr(opt, k, (' ' + v) if k.endswith('flags') and v else v)
    txt = build()
    open(out, 'w').write(txt)
```

```python
import sys, struct
from dsl import *

KB = 1024
NAME = 'standalone__gqa_block_cached__near_ridge'
def f2h(x): return hex(struct.unpack('<I', struct.pack('<f', x))[0])
QSCALE = 1.4426950408889634 / (128 ** 0.5)
WS_WO = 8 << 20
WS_CT = 12 << 20

class Opt:
    stamps = ''
    report = ''
    kv_flags = ''
    a_flags = ''
    n0 = 26
    warm = 1
    perstep = 5
    lo_exp = -40
    hi_exp = 40
    spin = 300000
    rt_at = 5
    bar_at = 12
    wo_at = 32
    calc_at = 16
    nl_at = 8
    nc_at = 13
    cw = 2
    shadow = 14
    bst = '0,5,10,15,20'
    no_rt = 0
    clk = 'r'
    lg0 = 0
    vpos = '1,5,9,13'
    rot_kv = 1
    rot_a = 2
    rot_c = 1
    gl_at = 29
    gc_at = 33
opt = Opt()

S_X, S_WQ, S_K, S_V, S_O, S_WO, S_WT, S_WL, S_C, S_D, S_OUT = 4, 8, 12, 16, 20, 24, 28, 52, 56, 60, 64
S_W, S_B, S_HKV, S_HQ = 32, 33, 34, 35
S_W1K, S_W8K, S_SO, S_T0, S_T1, S_T2, S_SK, S_SV = 36, 37, 38, 39, 40, 41, 42, 43
S_TAB = 44
S_REDO, S_MT, S_NT, S_VALID, S_RT, S_SPIN = 68, 69, 70, 71, 72, 73
S_EX = 74
S_RC = 100
S_J_UNUSED = 3
S_P = 76
S_ST = 80
V_LANE, V_N, V_G, V_T0, V_T1, V_T2, V_T3, V_T4, V_T5 = 1, 2, 3, 4, 5, 6, 7, 8, 9
V_KA, V_VA, V_KD, V_VD = 10, 14, 22, 26
V_OST, V_CW, V_LW = 28, 29, 31
V_ONES, V_NEGM, V_L, V_S, V_P, V_KF, V_VF = 32, 36, 56, 76, 92, 100, 164
V_XA, V_XB, V_WA, V_WB, V_XD, V_WD, V_QW = 228, 232, 236, 238, 240, 241, 242
V_GC = 250
S_NON = 96
V_CR, V_LR, V_WOD, V_WT, V_OL, V_OW, V_OD, V_PS, V_PLD, V_OUT, V_P1, V_P2 = 228, 234, 235, 236, 242, 243, 244, 245, 246, 247, 248, 249
S_H = 52
S_W5K = 55
S_J = 69
A_O, A_Q = 0, 160
def AO(lam, q): return ('a', A_O + 4 * (q * 8 + lam))
def AQ(q, s): return ('a', A_Q + 4 * (q * 4 + s))

def XU(c, q):
    if c == 0: return q * 4 * KB
    if c == 1: return 20 * KB + q * 4 * KB
    if c == 2: return 128 * KB + q * 4 * KB
    return [120, 124, 148, 152, 156][q] * KB
def WU(slot, ks):
    return {0: [40, 48], 1: [56, 96], 2: [104, 112], 3: [64, 72], 4: [80, 88]}[slot][ks] * KB
WSLOT = [0, 1, 2, 3, 4, 0, 1, 2]
QBUF = 128 * KB

def V(t, r=(), w=()):
    return valu(t, r=[('v', x) if isinstance(x, int) else x for x in r], w=[('v', x) if isinstance(x, int) else x for x in w])
def T(t, r=(), w=()):
    return valu(t, r=[('v', x) for x in r], w=[('v', x) for x in w], trans=True)
def S(t, r=(), w=()):
    return salu(t, r=[('s', x) if isinstance(x, int) else x for x in r], w=[('s', x) if isinstance(x, int) else x for x in w])
M0 = ('m0', 0)
VCC = ('vcc', 0)
def flat(l): return [x for y in l for x in y]

def srd(dst, plo, add_s=None, add_imm=0, size=0):
    o = []
    if add_s is not None:
        o.append(S(f"s_add_u32 s{dst}, s{plo}, s{add_s}", [plo, add_s], [dst]))
        o.append(S(f"s_addc_u32 s{dst+1}, s{plo+1}, 0", [plo+1], [dst+1]))
        o.append(S(f"s_and_b32 s{dst+1}, s{dst+1}, 0xffff", [dst+1], [dst+1]))
    elif add_imm:
        o.append(S(f"s_add_u32 s{dst}, s{plo}, {add_imm}", [plo], [dst]))
        o.append(S(f"s_addc_u32 s{dst+1}, s{plo+1}, 0", [plo+1], [dst+1]))
        o.append(S(f"s_and_b32 s{dst+1}, s{dst+1}, 0xffff", [dst+1], [dst+1]))
    else:
        o.append(S(f"s_mov_b32 s{dst}, s{plo}", [plo], [dst]))
        o.append(S(f"s_and_b32 s{dst+1}, s{plo+1}, 0xffff", [plo+1], [dst+1]))
    if isinstance(size, str):
        o.append(S(f"s_mov_b32 s{dst+2}, {size}", [int(size[1:])], [dst+2]))
    else:
        o.append(S(f"s_mov_b32 s{dst+2}, {size}", [], [dst+2]))
    o.append(S(f"s_mov_b32 s{dst+3}, 0x20000", [], [dst+3]))
    return o

KV_ORDER = [[0, 2, 1, 3, 4, 6, 5, 7], [0, 1, 3, 2, 4, 5, 7, 6], [1, 0, 2, 4, 3, 5, 6, 7], [1, 0, 2, 3, 5, 4, 6, 7]]
def kv_pack(j):
    o = KV_ORDER[j] if int(opt.rot_kv) else list(range(8))
    return sum(t << (4 * i) for i, t in enumerate(o))
S_KVO = 98
V_XD4 = 204
S_WC = 99

class Item:
    def __init__(s, pre, ins, after=None): s.pre, s.ins, s.after = pre, ins, after
def x_dma(c, after=None):
    return [Item([S(f"s_add_u32 m0, s{S_W1K}, {XU(c,q)}", [S_W1K], [M0])],
                 dma(V_XD4 + c, S_X, S_TAB + q, 0, ('x', c), flags=opt.a_flags), after) for q in range(5)]
def w_dma(u, after=None):
    o = []
    for k in range(4):
        pre = []
        if k == 0:
            pre.append(S(f"s_add_u32 s{S_SK}, s{S_WC}, {(u & 6) << 19}", [S_WC], [S_SK]))
            pre.append(S(f"s_and_b32 s{S_SK}, s{S_SK}, {7 << 19}", [S_SK], [S_SK]))
            if u & 1: pre.append(S(f"s_xor_b32 s{S_SK}, s{S_SK}, {1 << 19}", [S_SK], [S_SK]))
        pre.append(S(f"s_add_u32 s{S_SO}, s{S_SK}, {k*131072}", [S_SK], [S_SO]))
        pre.append(S(f"s_add_u32 m0, s{S_W1K}, {WU(WSLOT[u], k>>1) + (k&1)*4*KB}", [S_W1K], [M0]))
        o.append(Item(pre, dma(V_WD, S_WQ, S_SO, 0, ('w', u), flags=opt.a_flags), after))
    return o
def kv_dma(kind, i, after=None):
    o = []
    base = (i & 1) * 32 * KB + (0 if kind == 'k' else 64 * KB)
    sr, so = (S_K, S_SK) if kind == 'k' else (S_V, S_SV)
    for j in range(8):
        pre = []
        if j % 4 == 0:
            if j == 0:
                pre.append(S(f"s_bfe_u32 s{so}, s{S_KVO}, {hex((3 << 16) | (4 * i))}", [S_KVO], [so]))
                pre.append(S(f"s_lshl_b32 s{so}, s{so}, 13", [so], [so]))
            else:
                pre.append(S(f"s_add_u32 s{so}, s{so}, 4096", [so], [so]))
            pre.append(S(f"s_add_u32 m0, s{S_W8K}, {base + (j>>2)*4096}", [S_W8K], [M0]))
        va = V_KD + (j & 3) if kind == 'k' else V_VD + (j & 1)
        tag = (kind + 'r', i - 2, j >> 2)
        o.append(Item(pre, dma(va, sr, so, 1024 * (j & 3), (kind, i, j >> 2), needlg=[tag], flags=opt.kv_flags), after if i < 2 else tag))
    return o
def k_reads(i):
    return [dsrd('ds_read_b128', ('v', V_KF + (i & 1) * 32 + (t * 4 + s) * 4), 4, V_KA + s, (i & 1) * 32 * KB + t * 4096,
                 needvm=[('k', i, t)], lgtag=('kr', i, t)) for t in range(2) for s in range(4)]
def v_reads(i):
    return [dsrd('ds_read_b64_tr_b16', ('v', V_VF + (i & 1) * 32 + lam * 4 + h * 2), 2, V_VA + lam, (i & 1) * 32 * KB + h * 4096,
                 needvm=[('v', i, h)], lgtag=('vr', i, h)) for h in range(2) for lam in range(8)]

class Queue:
    def __init__(s): s.q = []; s.pts = set()
    def push(s, items): s.q += items
    def mark(s, p): s.pts.add(p)
    def pop(s):
        if s.q and (s.q[0].after is None or s.q[0].after in s.pts): return s.q.pop(0)
        return None

def place(gaps, Q, pos):
    last = -1
    for p in pos:
        if p >= len(gaps): continue
        it = Q.pop()
        if it is None: break
        pre = list(it.pre)
        avail = list(range(last + 1, p))
        front = []
        if not avail: front = pre
        else:
            slots = [[] for _ in avail]
            for k_, x in enumerate(reversed(pre)):
                slots[max(0, len(avail) - 1 - k_)].insert(0, x)
            for g, sl in zip(avail, slots):
                k_ = 0
                while k_ < len(gaps[g]) and gaps[g][k_].k == 'salu': k_ += 1
                gaps[g][k_:k_] = sl
        k = 0
        while k < len(gaps[p]) and gaps[p][k].k == 'salu': k += 1
        gaps[p][k:k] = front + [it.ins]
        last = p
def weave(sg, Q, fill, n, per):
    for _ in range(n):
        it = Q.pop()
        if it is not None: sg.addall(it.pre + [it.ins])
        for _ in range(per):
            if fill: sg.add(fill.pop(0))

NST = 12
def stamp(sg, i, grp='1'):
    if not opt.stamps: return
    if 5 <= i <= 9 and grp != opt.stamps: return
    sg.text(f"{'s_memtime' if opt.clk == 'c' else 's_memrealtime'} s[{76+2*i}:{77+2*i}]")

def prologue1():
    o = []; a = o.append
    a(raw("s_load_dwordx2 s[92:93], s[0:1], 0"))
    a(raw("s_load_dwordx4 s[96:99], s[0:1], 24"))
    a(V(f"v_lshrrev_b32 v{V_T0}, 6, v0", [0], [V_T0]))
    a(V(f"v_and_b32 v{V_LANE}, 63, v0", [0], [V_LANE]))
    a(V(f"v_readfirstlane_b32 s{S_W}, v{V_T0}", [V_T0], [('s', S_W)]))
    a(S(f"s_and_b32 s{S_HKV}, s2, 7", [2], [S_HKV]))
    a(S(f"s_lshr_b32 s{S_B}, s2, 5", [2], [S_B]))
    a(S(f"s_bfe_u32 s{S_T0}, s2, 0x20003", [2], [S_T0]))
    a(S(f"s_mov_b32 s{S_J}, s{S_T0}", [S_T0], [S_J]))
    a(S(f"s_lshl_b32 s{S_HQ}, s{S_HKV}, 2", [S_HKV], [S_HQ]))
    a(S(f"s_add_u32 s{S_HQ}, s{S_HQ}, s{S_T0}", [S_HQ, S_T0], [S_HQ]))
    if int(opt.rot_a) == 2:
        a(S(f"s_add_u32 s{S_VALID}, s{S_T0}, s{S_B}", [S_T0, S_B], [S_VALID]))
        a(S(f"s_and_b32 s{S_VALID}, s{S_VALID}, 1", [S_VALID], [S_VALID]))
        a(S(f"s_lshl_b32 s{S_VALID}, s{S_VALID}, 2", [S_VALID], [S_VALID]))
    elif int(opt.rot_a) == 4:
        a(S(f"s_add_u32 s{S_VALID}, s{S_T0}, s{S_B}", [S_T0, S_B], [S_VALID]))
        a(S(f"s_and_b32 s{S_VALID}, s{S_VALID}, 3", [S_VALID], [S_VALID]))
        a(S(f"s_lshl_b32 s{S_VALID}, s{S_VALID}, 1", [S_VALID], [S_VALID]))
    elif int(opt.rot_a):
        a(S(f"s_lshl_b32 s{S_T0}, s{S_T0}, 1", [S_T0], [S_T0]))
        a(S(f"s_add_u32 s{S_VALID}, s{S_T0}, s{S_B}", [S_T0, S_B], [S_VALID]))
        a(S(f"s_and_b32 s{S_VALID}, s{S_VALID}, 7", [S_VALID], [S_VALID]))
    else:
        a(S(f"s_mov_b32 s{S_VALID}, 0", [], [S_VALID]))
    a(V(f"v_and_b32 v{V_N}, 15, v{V_LANE}", [V_LANE], [V_N]))
    a(V(f"v_lshrrev_b32 v{V_G}, 4, v{V_LANE}", [V_LANE], [V_G]))
    a(S(f"s_lshl_b32 s{S_W1K}, s{S_W}, 10", [S_W], [S_W1K]))
    a(S(f"s_lshl_b32 s{S_W8K}, s{S_W}, 13", [S_W], [S_W8K]))
    a(V(f"v_lshl_add_u32 v{V_T0}, s{S_W}, 2, v{V_G}", [V_G, ('s', S_W)], [V_T0]))
    a(V(f"v_xor_b32 v{V_T1}, v{V_N}, v{V_T0}", [V_N, V_T0], [V_T1]))
    a(V(f"v_lshlrev_b32 v{V_T1}, 4, v{V_T1}", [V_T1], [V_T1]))
    a(V(f"v_lshl_add_u32 v{V_XD}, v{V_T0}, 10, v{V_T1}", [V_T0, V_T1], [V_XD]))
    a(S(f"s_and_b32 s{S_T0}, s{S_W}, 2", [S_W], [S_T0]))
    a(S(f"s_lshl_b32 s{S_T0}, s{S_T0}, 2", [S_T0], [S_T0]))
    a(V(f"v_lshl_add_u32 v{V_T1}, v{V_G}, 1, s{S_T0}", [V_G, ('s', S_T0)], [V_T1]))
    a(V(f"v_xor_b32 v{V_T1}, v{V_N}, v{V_T1}", [V_N, V_T1], [V_T1]))
    a(V(f"v_lshlrev_b32 v{V_T1}, 4, v{V_T1}", [V_T1], [V_T1]))
    a(V(f"v_lshl_add_u32 v{V_WD}, v{V_T0}, 13, v{V_T1}", [V_T0, V_T1], [V_WD]))
    a(S(f"s_mul_i32 s{S_T0}, s{S_B}, 81920", [S_B], [S_T0]))
    a(S(f"s_lshl_b32 s{S_T2}, s{S_HQ}, 8", [S_HQ], [S_T2]))
    a(S(f"s_sub_u32 s{S_T1}, 4194304, s{S_T2}", [S_T2], [S_T1]))
    a(S(f"s_mov_b32 s{S_REDO}, 0", [], [S_REDO]))
    a(raw("s_waitcnt lgkmcnt(0)", 'wait'))
    o += srd(S_X, 92, add_s=S_T0, size=81920)
    o += srd(S_WQ, 96, add_s=S_T2, size=f"s{S_T1}")
    a(S(f"s_lshl_b32 s{S_T0}, s{S_HKV}, 19", [S_HKV], [S_T0]))
    o += srd(S_WO, 98, add_s=S_T0, size=524288)
    a(S(f"s_lshl_b32 s{S_WC}, s{S_VALID}, 19", [S_VALID], [S_WC]))
    a(raw("s_load_dwordx4 s[92:95], s[0:1], 8"))
    a(raw(f"s_load_dwordx4 s[{S_C}:{S_C+3}], s[0:1], 40"))
    a(raw("s_load_dwordx2 s[100:101], s[0:1], 56"))
    return o

def restart_setup():
    o = [S(f"s_mov_b32 s{S_TAB+q}, {q*16384}", [], [S_TAB+q]) for q in range(5)]
    for c in range(4):
        o.append(S(f"s_lshr_b32 s{S_T0}, s{S_WC}, 12", [S_WC], [S_T0]))
        o.append(S(f"s_add_u32 s{S_T0}, s{S_T0}, {c*256}", [S_T0], [S_T0]))
        o.append(S(f"s_and_b32 s{S_T0}, s{S_T0}, 0x300", [S_T0], [S_T0]))
        o.append(V(f"v_add_u32 v{V_XD4+c}, s{S_T0}, v{V_XD}", [V_XD, ('s', S_T0)], [V_XD4+c]))
    return o

def prologue2():
    o = []; a = o.append
    a(raw("s_waitcnt lgkmcnt(0)", 'wait'))
    a(S(f"s_lshl_b32 s{S_T0}, s{S_B}, 3", [S_B], [S_T0]))
    a(S(f"s_add_u32 s{S_T0}, s{S_T0}, s{S_HKV}", [S_T0, S_HKV], [S_T0]))
    a(S(f"s_lshl_b32 s{S_T0}, s{S_T0}, 2", [S_T0], [S_T0]))
    a(S(f"s_add_u32 s{S_T0}, s{S_T0}, s{S_W}", [S_T0, S_W], [S_T0]))
    a(S(f"s_lshl_b32 s{S_T0}, s{S_T0}, 16", [S_T0], [S_T0]))
    o += srd(S_K, 92, add_s=S_T0, size=65536)
    o += srd(S_V, 94, add_s=S_T0, size=65536)
    o += srd(S_O, 100, size=8*5*128*1024)
    o += srd(S_WT, 100, add_imm=WS_WO, size=8*4*20*8*1024)
    o += srd(S_D, S_C + 2, size=256)
    o += srd(S_OUT, S_C, size=655360)
    o += srd(S_C, 100, add_imm=WS_CT, size=8192)
    a(S(f"s_bitcmp1_b32 s{S_HQ}, 0", [S_HQ], []))
    a(S(f"s_mov_b32 s{S_T0}, {hex(kv_pack(0))}", [], [S_T0]))
    a(S(f"s_cselect_b32 s{S_T0}, {hex(kv_pack(1))}, s{S_T0}", [S_T0], [S_T0]))
    a(S(f"s_mov_b32 s{S_T1}, {hex(kv_pack(2))}", [], [S_T1]))
    a(S(f"s_cselect_b32 s{S_T1}, {hex(kv_pack(3))}, s{S_T1}", [S_T1], [S_T1]))
    a(S(f"s_bitcmp1_b32 s{S_HQ}, 1", [S_HQ], []))
    a(S(f"s_cselect_b32 s{S_KVO}, s{S_T1}, s{S_T0}", [S_T0, S_T1], [S_KVO]))
    a(S(f"s_mul_i32 s{S_T0}, s{S_B}, 43", [S_B], [S_T0]))
    a(S(f"s_lshr_b32 s{S_T0}, s{S_T0}, 7", [S_T0], [S_T0]))
    a(S(f"s_mul_i32 s{S_T0}, s{S_T0}, 3", [S_T0], [S_T0]))
    a(S(f"s_sub_u32 s{S_T0}, s{S_B}, s{S_T0}", [S_B, S_T0], [S_T0]) if int(opt.rot_c) else S(f"s_mov_b32 s{S_T0}, 0", [], [S_T0]))
    for p in range(3):
        a(S(f"s_add_u32 s{S_T1}, s{S_T0}, {p}", [S_T0], [S_T1]))
        a(S(f"s_cmp_ge_u32 s{S_T1}, 3", [S_T1], []))
        a(S(f"s_cselect_b32 s{S_T2}, 2, -1", [], [S_T2]))
        a(S(f"s_sub_u32 s{S_T1}, s{S_T1}, s{S_T2}", [S_T1, S_T2], [S_T1]))
        a(S(f"s_add_u32 s{S_T1}, s{S_T1}, s{S_J}", [S_T1, S_J], [S_T1]))
        a(S(f"s_and_b32 s{S_T1}, s{S_T1}, 3", [S_T1], [S_T1]))
        a(S(f"s_lshl_b32 s{S_H+p}, s{S_T1}, 17", [S_T1], [S_H+p]))
    a(S(f"s_mul_i32 s{S_W5K}, s{S_W}, 5120", [S_W], [S_W5K]))
    return o

def prologue3():
    o = []; a = o.append
    a(S(f"s_bfe_u32 s{S_T1}, s{S_WC}, 0x10013", [S_WC], [S_T1]))
    a(S(f"s_lshl_b32 s{S_T1}, s{S_T1}, 3", [S_T1], [S_T1]))
    a(V(f"v_xor_b32 v{V_T1}, s{S_T1}, v{V_N}", [V_N, ('s', S_T1)], [V_T1]))
    for s in range(4):
        a(V(f"v_add_u32 v{V_T0}, {4*s}, v{V_G}", [V_G], [V_T0]))
        a(V(f"v_xor_b32 v{V_T0}, v{V_T0}, v{V_T1}", [V_T0, V_T1], [V_T0]))
        a(V(f"v_lshlrev_b32 v{V_T0}, 4, v{V_T0}", [V_T0], [V_T0]))
        a(V(f"v_lshl_add_u32 v{V_XA+s}, v{V_N}, 8, v{V_T0}", [V_N, V_T0], [V_XA+s]))
        a(V(f"v_add_u32 v{V_XB+s}, {120*KB}, v{V_XA+s}", [V_XA+s], [V_XB+s]))
    a(V(f"v_lshrrev_b32 v{V_T2}, 2, v{V_N}", [V_N], [V_T2]))
    a(V(f"v_bfe_u32 v{V_T3}, v{V_N}, 1, 1", [V_N], [V_T3]))
    a(V(f"v_and_b32 v{V_T4}, 1, v{V_N}", [V_N], [V_T4]))
    a(V(f"v_lshlrev_b32 v{V_T4}, 3, v{V_T4}", [V_T4], [V_T4]))
    a(V(f"v_and_b32 v{V_T5}, 1, v{V_G}", [V_G], [V_T5]))
    a(V(f"v_lshl_add_u32 v{V_T5}, v{V_T5}, 2, v{V_T2}", [V_T5, V_T2], [V_T5]))
    a(V(f"v_lshlrev_b32 v{V_T5}, 1, v{V_T5}", [V_T5], [V_T5]))
    a(S(f"s_lshl_b32 s{S_T1}, s{S_W}, 2", [S_W], [S_T1]))
    a(V(f"v_lshl_add_u32 v{V_T1}, v{V_G}, 3, v{V_T2}", [V_G, V_T2], [V_T1]))
    a(V(f"v_lshl_add_u32 v{V_T1}, v{V_T1}, 8, v{V_T4}", [V_T1, V_T4], [V_T1]))
    for e in range(2):
        a(V(f"v_add3_u32 v{V_T0}, s{S_T1}, v{V_T3}, {2*e}", [V_T3, ('s', S_T1)], [V_T0]))
        a(V(f"v_xor_b32 v{V_T0}, v{V_T0}, v{V_T5}", [V_T0, V_T5], [V_T0]))
        a(V(f"v_lshl_add_u32 v{V_T0}, v{V_T0}, 4, v{V_T1}", [V_T0, V_T1], [V_T0]))
        a(V(f"v_add_u32 v{V_WA+e}, {40*KB}, v{V_T0}", [V_T0], [V_WA+e]))
        a(V(f"v_add_u32 v{V_WB+e}, {96*KB}, v{V_T0}", [V_T0], [V_WB+e]))
    a(V(f"v_lshl_add_u32 v{V_T1}, v{V_G}, 2, v{V_T2}", [V_G, V_T2], [V_T1]))
    n_early = len(o)
    for s in range(4):
        a(V(f"v_add_u32 v{V_KA+s}, s{S_W8K}, v{V_XA+s}", [V_XA+s, ('s', S_W8K)], [V_KA+s]))
    a(V(f"v_lshl_add_u32 v{V_T1}, v{V_T1}, 8, v{V_T4}", [V_T1, V_T4], [V_T1]))
    a(S(f"s_add_u32 s{S_T2}, s{S_W8K}, {64*KB}", [S_W8K], [S_T2]))
    a(V(f"v_add_u32 v{V_T1}, s{S_T2}, v{V_T1}", [V_T1, ('s', S_T2)], [V_T1]))
    a(V(f"v_add_u32 v{V_T3}, s{S_T1}, v{V_T3}", [V_T3, ('s', S_T1)], [V_T3]))
    for lam in range(8):
        a(V(f"v_add_u32 v{V_T0}, {2*lam}, v{V_T3}", [V_T3], [V_T0]))
        a(V(f"v_and_b32 v{V_T0}, 15, v{V_T0}", [V_T0], [V_T0]))
        a(V(f"v_xor_b32 v{V_T0}, v{V_T0}, v{V_T5}", [V_T0, V_T5], [V_T0]))
        a(V(f"v_lshl_add_u32 v{V_VA+lam}, v{V_T0}, 4, v{V_T1}", [V_T0, V_T1], [V_VA+lam]))
    a(V(f"v_xor_b32 v{V_T0}, v{V_N}, v{V_G}", [V_N, V_G], [V_T0]))
    a(V(f"v_lshlrev_b32 v{V_T0}, 4, v{V_T0}", [V_T0], [V_T0]))
    a(V(f"v_lshl_add_u32 v{V_KD}, v{V_G}, 8, v{V_T0}", [V_G, V_T0], [V_KD]))
    for j in range(1, 4):
        a(V(f"v_xor_b32 v{V_KD+j}, {64*j}, v{V_KD}", [V_KD], [V_KD+j]))
    a(V(f"v_lshlrev_b32 v{V_T0}, 1, v{V_G}", [V_G], [V_T0]))
    a(V(f"v_xor_b32 v{V_T0}, v{V_N}, v{V_T0}", [V_N, V_T0], [V_T0]))
    a(V(f"v_lshlrev_b32 v{V_T0}, 4, v{V_T0}", [V_T0], [V_T0]))
    a(V(f"v_lshl_add_u32 v{V_VD}, v{V_G}, 8, v{V_T0}", [V_G, V_T0], [V_VD]))
    a(V(f"v_xor_b32 v{V_VD+1}, 128, v{V_VD}", [V_VD], [V_VD+1]))
    a(V(f"v_lshrrev_b32 v{V_T0}, 1, v{V_G}", [V_G], [V_T0]))
    a(V(f"v_add_u32 v{V_T0}, s{S_T1}, v{V_T0}", [V_T0, ('s', S_T1)], [V_T0]))
    a(V(f"v_xor_b32 v{V_T0}, v{V_T0}, v{V_N}", [V_T0, V_N], [V_T0]))
    a(V(f"v_lshlrev_b32 v{V_T0}, 4, v{V_T0}", [V_T0], [V_T0]))
    a(V(f"v_lshl_add_u32 v{V_T0}, v{V_N}, 8, v{V_T0}", [V_N, V_T0], [V_T0]))
    a(V(f"v_and_b32 v{V_T1}, 1, v{V_G}", [V_G], [V_T1]))
    a(V(f"v_lshl_add_u32 v{V_T0}, v{V_T1}, 3, v{V_T0}", [V_T0, V_T1], [V_T0]))
    a(V(f"v_add_u32 v{V_QW}, {QBUF}, v{V_T0}", [V_T0], [V_QW]))
    a(V(f"v_xor_b32 v{V_QW+1}, 32, v{V_QW}", [V_QW], [V_QW+1]))
    a(V(f"v_lshl_add_u32 v{V_CW}, v{V_LANE}, 4, s{S_W8K}", [V_LANE, ('s', S_W8K)], [V_CW]))
    a(V(f"v_add_u32 v{V_CW+1}, {64*KB}, v{V_CW}", [V_CW], [V_CW+1]))
    a(S(f"s_add_u32 s{S_T0}, s{S_W8K}, {102*KB}", [S_W8K], [S_T0]))
    a(V(f"v_lshl_add_u32 v{V_LW}, v{V_LANE}, 5, s{S_T0}", [V_LANE, ('s', S_T0)], [V_LW]))
    a(S(f"s_mul_i32 s{S_T0}, s{S_B}, 640", [S_B], [S_T0]))
    a(S(f"s_lshl_b32 s{S_T2}, s{S_HQ}, 2", [S_HQ], [S_T2]))
    a(S(f"s_add_u32 s{S_T0}, s{S_T0}, s{S_T2}", [S_T0, S_T2], [S_T0]))
    a(S(f"s_add_u32 s{S_T0}, s{S_T0}, s{S_W}", [S_T0, S_W], [S_T0]))
    a(S(f"s_lshl_b32 s{S_T0}, s{S_T0}, 10", [S_T0], [S_T0]))
    a(V(f"v_lshl_add_u32 v{V_OST}, v{V_LANE}, 4, s{S_T0}", [V_LANE, ('s', S_T0)], [V_OST]))
    a(V(f"v_cmp_eq_u32 vcc, 0, v{V_N}", [V_N], [VCC]))
    a(V(f"v_mov_b32 v{V_T0}, 0x3f803f80", [], [V_T0]))
    for i in range(4):
        a(V(f"v_cndmask_b32 v{V_ONES+i}, 0, v{V_T0}, vcc", [V_T0, VCC], [V_ONES+i]))
    for i in range(20):
        a(V(f"v_mov_b32 v{V_NEGM+i}, 0", [], [V_NEGM+i]))
    return o[:n_early], o[n_early:]

V_QACC = V_VF
def AF(kap):
    return [(100, 120), (128, 148), (208, 156)][kap % 3]
def a_reads(kap):
    u, ks = kap >> 1, kap & 1
    c, s = u >> 1, kap & 3
    xf, wf = AF(kap)
    wb = WU(WSLOT[u], ks)
    xr = []
    for q in range(5):
        xb = XU(c, q)
        reg, base = (V_XA, 0) if xb < 64 * KB else (V_XB, 120 * KB)
        xr.append(dsrd('ds_read_b128', ('v', xf + q * 4), 4, reg + s, xb - base))
    wr = []
    for e in range(2):
        for h in range(2):
            reg, base = (V_WA, 40 * KB) if wb < 96 * KB else (V_WB, 96 * KB)
            wr.append(dsrd('ds_read_b64_tr_b16', ('v', wf + e * 4 + h * 2), 2, reg + e, wb - base + h * 1024))
    return wr[:2] + xr[:1] + wr[2:] + xr[1:]
def a_mfmas(kap):
    o = []
    xf, wf = AF(kap)
    for q in range(5):
        for e in range(2):
            d = ('v', V_QACC + (e * 5 + q) * 4)
            o.append(mfma(d, ('v', wf + e * 4), ('v', xf + q * 4), 0 if kap == 0 else d))
    return o
def lane0(sg, body, lab):
    sg.text(f"s_cmp_lg_u32 s{S_W}, 0"); sg.text(f"s_cbranch_scc1 {lab}")
    sg.text(f"s_mov_b64 s[{S_EX}:{S_EX+1}], exec"); sg.text("s_mov_b64 exec, 1")
    for x in body: sg.text(x)
    sg.text(f"s_mov_b64 exec, s[{S_EX}:{S_EX+1}]")
    sg.text(f"{lab}:")
def phase_a(sg, Q):
    stamp(sg, 1)
    sg.add(barrier(needvm=[('x', 0), ('w', 0)])); Q.mark('B0')
    stamp(sg, 2)
    sg.addall(a_reads(0)); sg.addall(a_reads(1))
    for kap in range(16):
        mf = a_mfmas(kap)
        gaps = [[] for _ in mf]
        nx = kap + 2
        if nx < 16:
            if nx % 2 == 0:
                u = nx >> 1
                need = [('x', u >> 1), ('w', u)]
                while any(it.ins.vmtag in need for it in Q.q):
                    n_ = len(Q.q); weave(sg, Q, [], 1, 0); assert len(Q.q) < n_, (u, Q.q[0].after)
                sg.add(barrier(needvm=need, lg0=False)); Q.mark(f'B{u}')
                if u in (1, 3, 5, 7): stamp(sg, 5 + u // 2, 'A')
            for i, r in enumerate(a_reads(nx)): gaps[i].append(r)
        mf[0].r |= set(R('v', AF(kap)[0], 20) + R('v', AF(kap)[1], 8))
        pos = [1, 5, 9] if kap % 2 == 0 else [3, 7]
        if int(opt.perstep) == 6: pos = [1, 4, 7] if kap % 2 == 0 else [1, 4, 8]
        place(gaps, Q, pos)
        sg.addall(interleave(mf, gaps))
    stamp(sg, 9, 'A')
    fin = []
    for q in range(5):
        for e in range(2):
            b = V_QACC + (e * 5 + q) * 4
            for r in (0, 2):
                fin.append(V(f"v_pk_mul_f32 v[{b+r}:{b+r+1}], v[{b+r}:{b+r+1}], s[{S_T1}:{S_T1+1}]", [b+r, b+r+1], [b+r, b+r+1]))
            fin.append(V(f"v_cvt_pk_bf16_f32 v{b}, v{b}, v{b+1}", [b, b+1], [b]))
            fin.append(V(f"v_cvt_pk_bf16_f32 v{b+1}, v{b+2}, v{b+3}", [b+2, b+3], [b+1]))
            fin.append(dswr('ds_write_b64', V_QW + e, ('v', b), 2, q * 4096))
    sg.add(S(f"s_mov_b32 s{S_T1}, {f2h(QSCALE)}", [], [S_T1]))
    sg.add(S(f"s_mov_b32 s{S_T2}, {f2h(QSCALE)}", [], [S_T2]))
    weave(sg, Q, fin, 3, 15)
    sg.addall(fin)
    sg.add(barrier()); Q.mark('BQ')
    qr = [dsrd('ds_read_b128', AQ(q, s), 4, V_XB + s, QBUF - 120 * KB + q * 4096) for q in range(5) for s in range(4)]
    return qr

def qk(tau):
    i, q = divmod(tau, 5)
    o = []
    for s in range(4):
        for t in range(2):
            d = ('v', V_S + (tau & 1) * 8 + t * 4)
            o.append(mfma(d, ('v', V_KF + (i & 1) * 32 + (t * 4 + s) * 4), AQ(q, s), ('v', V_NEGM + q * 4) if s == 0 else d))
    return o
def pv(tau):
    i, q = divmod(tau, 5)
    p = ('v', V_P + (tau & 1) * 4)
    o = [mfma(AO(lam, q), ('v', V_VF + (i & 1) * 32 + lam * 4), p, AO(lam, q) if i else 0) for lam in range(8)]
    o.insert(0, mfma(('v', V_L + q * 4), ('v', V_ONES), p, ('v', V_L + q * 4) if i else 0))
    return o
def sm(tau):
    b = V_S + (tau & 1) * 8
    p = V_P + (tau & 1) * 4
    e = [T(f"v_exp_f32 v{b+i}, v{b+i}", [b+i], [b+i]) for i in range(8)]
    c = [V(f"v_cvt_pk_bf16_f32 v{p+i}, v{b+2*i}, v{b+2*i+1}", [b+2*i, b+2*i+1], [p+i]) for i in range(4)]
    return e, c
def comb_writes(q):
    o = []
    for jd in range(1, 4):
        for e in range(2):
            u = q * 6 + (jd - 1) * 2 + e
            row = u >> 3
            o.append(dswr('ds_write_b128', V_CW + (row >> 1), AO(2 * jd + e, q), 4, (row & 1) * 32 * KB + (u & 7) * KB, lgtag=('cw', q)))
    return o

def wo_dma(pos, after=None):
    o = []
    for ks in range(4):
        for half in range(2):
            base = (128 * KB if pos < 0 else pos * 32 * KB) + ks * 8 * KB + half * 4 * KB
            if pos < 0:
                pre = [S(f"s_lshl_b32 s{S_SK}, s{S_J}, 17", [S_J], [S_SK])] if ks + half == 0 else []
                h = S_SK
            else: pre, h = [], S_H + pos
            pre += [S(f"s_add_u32 s{S_SO}, s{h}, {ks*32768 + half*16384}", [h], [S_SO]), S(f"s_add_u32 m0, s{S_W1K}, {base}", [S_W1K], [M0])]
            o.append(Item(pre, dma(V_WOD, S_WO, S_SO, 0, ('wo', pos)), after))
    return o
def osib_dma(pos):
    o = []
    for q in range(5):
        pre = [S(f"s_lshr_b32 s{S_SK}, s{S_H+pos}, 5", [S_H+pos], [S_SK])] if q == 0 else []
        pre += [S(f"s_add_u32 s{S_SO}, s{S_SK}, {q*128*KB}", [S_SK], [S_SO]), S(f"s_add_u32 m0, s{S_W5K}, {(140 - 20*pos + q)*KB}", [S_W5K], [M0])]
        o.append(Item(pre, dma(V_OD, S_O, S_SO, 0, ('os', pos), flags=' sc1')))
    return o
def tail_calc():
    o = []; a = o.append
    T0, T1, T2 = 252, 253, 254
    a(V(f"v_lshlrev_b32 v{T0}, 4, v{V_LANE}", [V_LANE], [T0]))
    for jd in range(1, 4):
        a(S(f"s_sub_u32 s{S_T0}, s{S_W}, {jd}", [S_W], [S_T0]))
        a(S(f"s_and_b32 s{S_T0}, s{S_T0}, 3", [S_T0], [S_T0]))
        a(S(f"s_lshl_b32 s{S_T0}, s{S_T0}, 13", [S_T0], [S_T0]))
        a(V(f"v_add_u32 v{V_CR+2*(jd-1)}, s{S_T0}, v{T0}", [T0, ('s', S_T0)], [V_CR+2*(jd-1)]))
        a(V(f"v_add_u32 v{V_CR+2*(jd-1)+1}, {64*KB}, v{V_CR+2*(jd-1)}", [V_CR+2*(jd-1)], [V_CR+2*(jd-1)+1]))
    a(V(f"v_add_u32 v{V_OL}, {96*KB}, v{T0}", [T0], [V_OL]))
    a(V(f"v_add_u32 v{V_OW}, s{S_W5K}, v{V_OL}", [V_OL, ('s', S_W5K)], [V_OW]))
    a(S(f"s_mov_b32 s{S_T0}, {102*KB}", [], [S_T0]))
    a(V(f"v_lshl_add_u32 v{V_LR}, v{V_N}, 5, s{S_T0}", [V_N, ('s', S_T0)], [V_LR]))
    a(S(f"s_add_u32 s{S_T0}, s{S_W8K}, {64*KB}", [S_W8K], [S_T0]))
    for e in range(2):
        a(V(f"v_subrev_u32 v{V_WT+e}, s{S_T0}, v{V_VA+e}", [V_VA+e, ('s', S_T0)], [V_WT+e]))
        a(V(f"v_add_u32 v{V_WT+2+e}, {64*KB}, v{V_WT+e}", [V_WT+e], [V_WT+2+e]))
        a(V(f"v_add_u32 v{V_WT+4+e}, {128*KB}, v{V_WT+e}", [V_WT+e], [V_WT+4+e]))
    a(S(f"s_lshl_b32 s{S_T0}, s{S_J}, 12", [S_J], [S_T0]))
    a(V(f"v_subrev_u32 v{V_OD}, s{S_T0}, v{V_OST}", [V_OST, ('s', S_T0)], [V_OD]))
    a(S(f"s_lshl_b32 s{S_T0}, s{S_B}, 2", [S_B], [S_T0]))
    a(S(f"s_add_u32 s{S_T0}, s{S_T0}, s{S_J}", [S_T0, S_J], [S_T0]))
    a(S(f"s_lshl_b32 s{S_T2}, s{S_T0}, 7", [S_T0], [S_T2]))
    a(S(f"s_add_u32 s{S_T2}, s{S_T2}, 4096", [S_T2], [S_T2]))
    a(V(f"v_and_b32 v{T1}, 7, v{V_LANE}", [V_LANE], [T1]))
    a(V(f"v_lshl_add_u32 v{V_P2}, v{T1}, 4, s{S_T2}", [T1, ('s', S_T2)], [V_P2]))
    a(S(f"s_lshl_b32 s{S_T0}, s{S_T0}, 2", [S_T0], [S_T0]))
    a(S(f"s_add_u32 s{S_T0}, s{S_T0}, s{S_W}", [S_T0, S_W], [S_T0]))
    a(S(f"s_mul_i32 s{S_T0}, s{S_T0}, {5*8*KB}", [S_T0], [S_T0]))
    a(S(f"s_lshl_b32 s{S_T2}, s{S_HKV}, 10", [S_HKV], [S_T2]))
    a(S(f"s_add_u32 s{S_T2}, s{S_T2}, s{S_T0}", [S_T2, S_T0], [S_T2]))
    a(V(f"v_add_u32 v{V_PS}, s{S_T2}, v{T0}", [T0, ('s', S_T2)], [V_PS]))
    a(V(f"v_lshl_add_u32 v{T1}, s{S_HKV}, 3, v{T1}", [T1, ('s', S_HKV)], [T1]))
    a(V(f"v_lshrrev_b32 v{T2}, 3, v{V_LANE}", [V_LANE], [T2]))
    a(V(f"v_lshl_add_u32 v{V_PLD}, v{T1}, 4, s{S_T0}", [T1, ('s', S_T0)], [V_PLD]))
    a(V(f"v_lshl_add_u32 v{V_PLD}, v{T2}, 13, v{V_PLD}", [T2, V_PLD], [V_PLD]))
    a(V(f"v_lshlrev_b32 v{T2}, 14, v{T2}", [T2], [T2]))
    a(V(f"v_and_b32 v{T0}, 15, v{T1}", [T1], [T0]))
    a(V(f"v_lshl_add_u32 v{T2}, v{T0}, 10, v{T2}", [T0, T2], [T2]))
    a(V(f"v_lshrrev_b32 v{T1}, 4, v{T1}", [T1], [T1]))
    a(V(f"v_lshl_add_u32 v{T2}, v{T1}, 3, v{T2}", [T1, T2], [T2]))
    a(S(f"s_mul_i32 s{S_T0}, s{S_B}, 81920", [S_B], [S_T0]))
    a(S(f"s_lshl_b32 s{S_T2}, s{S_J}, 8", [S_J], [S_T2]))
    a(S(f"s_add_u32 s{S_T0}, s{S_T0}, s{S_T2}", [S_T0, S_T2], [S_T0]))
    a(S(f"s_lshl_b32 s{S_T2}, s{S_W}, 6", [S_W], [S_T2]))
    a(S(f"s_add_u32 s{S_T0}, s{S_T0}, s{S_T2}", [S_T0, S_T2], [S_T0]))
    a(V(f"v_add_u32 v{V_OUT}, s{S_T0}, v{T2}", [T2, ('s', S_T0)], [V_OUT]))
    a(V(f"v_cmp_gt_u32 vcc, 40, v{V_LANE}", [V_LANE], [VCC]))
    a(V(f"v_mov_b32 v{T0}, 0x7ff00000", [], [T0]))
    a(V(f"v_cndmask_b32 v{V_PLD}, v{T0}, v{V_PLD}, vcc", [T0, V_PLD, VCC], [V_PLD]))
    a(V(f"v_cndmask_b32 v{V_OUT}, v{T0}, v{V_OUT}, vcc", [T0, V_OUT, VCC], [V_OUT]))
    a(S(f"s_lshl_b32 s{S_T0}, s{S_B}, 3", [S_B], [S_T0]))
    a(S(f"s_add_u32 s{S_T0}, s{S_T0}, s{S_HKV}", [S_T0, S_HKV], [S_T0]))
    a(S(f"s_lshl_b32 s{S_T0}, s{S_T0}, 6", [S_T0], [S_T0]))
    a(V(f"v_and_b32 v{T1}, 3, v{V_LANE}", [V_LANE], [T1]))
    a(V(f"v_lshl_add_u32 v{V_P1}, v{T1}, 4, s{S_T0}", [T1, ('s', S_T0)], [V_P1]))
    for k in range(5): a(S(f"s_mov_b32 s{S_TAB+k}, {k*8192}", [], [S_TAB+k]))
    return o
def wod_calc():
    o = []; a = o.append
    T0, T1 = 252, 253
    a(S(f"s_and_b32 s{S_T0}, s{S_W}, 1", [S_W], [S_T0]))
    a(S(f"s_lshl_b32 s{S_T0}, s{S_T0}, 3", [S_T0], [S_T0]))
    a(V(f"v_lshl_add_u32 v{T0}, v{V_G}, 1, s{S_T0}", [V_G, ('s', S_T0)], [T0]))
    a(V(f"v_xor_b32 v{T0}, v{V_N}, v{T0}", [V_N, T0], [T0]))
    a(S(f"s_lshl_b32 s{S_T0}, s{S_J}, 8", [S_J], [S_T0]))
    a(V(f"v_lshl_add_u32 v{T0}, v{T0}, 4, s{S_T0}", [T0, ('s', S_T0)], [T0]))
    a(V(f"v_lshl_add_u32 v{T1}, s{S_W}, 2, v{V_G}", [V_G, ('s', S_W)], [T1]))
    a(V(f"v_lshl_add_u32 v{V_WOD}, v{T1}, 10, v{T0}", [T0, T1], [V_WOD]))
    return o

def phase_b(sg, Q, qr):
    NT = 8
    calc = wod_calc() + tail_calc()
    sg.addall(qr[:4])
    while any(it.ins.vmtag in (('k', 0, 0), ('k', 0, 1)) for it in Q.q): weave(sg, Q, [], 1, 0)
    sg.addall(k_reads(0)); Q.mark(('kr', 0, 0)); Q.mark(('kr', 0, 1))
    qr = qr[4:]
    for tau in range(-1, 41):
        i, q = divmod(tau, 5) if tau >= 0 else (-1, 4)
        mf = []
        bst = [int(x) for x in opt.bst.split(',')]
        if tau in bst: stamp(sg, 5 + bst.index(tau), 'B')
        if tau + 1 < 40: mf += qk(tau + 1)
        if tau - 1 >= 0: mf += pv(tau - 1)
        ds, marks = [], []
        if tau == -1: ds = qr
        elif tau == 0: ds = v_reads(0); marks = [('vr', 0, 0), ('vr', 0, 1)]
        elif i < NT:
            if q == 2 and i + 1 < NT: ds = k_reads(i + 1)[:4]; marks = [('kr', i + 1, 0)]
            if q == 3 and i + 1 < NT: ds = k_reads(i + 1)[4:]; marks = [('kr', i + 1, 1)]
            if q == 4 and i + 1 < NT: ds = v_reads(i + 1)[:8]; marks = [('vr', i + 1, 0)]
            if q == 0: ds = v_reads(i)[8:]; marks = [('vr', i, 1)]
            if i == NT - 1 and q >= 2: ds = comb_writes(q - 2)
        if tau == 40: ds = comb_writes(3)
        n = len(mf)
        gaps = [[] for _ in range(n)]
        e, c = sm(tau) if 0 <= tau < 40 else ([], [])
        if n == 17:
            epos = [0, 2, 4, 6, 8, 10, 12, 14]; cpos = [3, 7, 11, 15]
            dpos = [1, 3, 5, 7, 9, 11, 13, 15] if len(ds) > 4 else [1, 3, 5, 7]
            vpos = [int(x) for x in opt.vpos.split(',')]
        else:
            epos = list(range(8)); cpos = [min(n - 1, x) for x in (2, 4, 6, 8)]
            dpos = [(k * n) // max(1, len(ds)) for k in range(len(ds))]
            vpos = [1, 5]
        for x, p_ in zip(ds, dpos): gaps[p_].append(x)
        if tau == int(opt.nl_at):
            sg.add(V("v_mov_b32 v9, 0", [], [9]))
            Q.q.insert(0, Item([], vload(('v', V_GC), 2, 9, S_D, None, 0, flags=' sc1', tag='non')))
        if tau == int(opt.nc_at):
            assert not any(it.ins.vmtag == 'non' for it in Q.q)
            sg.add(V(f"v_readfirstlane_b32 s{S_NON}, v{V_GC}", [V_GC], [('s', S_NON)]))
            sg.add(V(f"v_readfirstlane_b32 s{S_NON+1}, v{V_GC+1}", [V_GC+1], [('s', S_NON+1)]))
            sg.add(S(f"s_cmp_eq_u64 s[{S_NON}:{S_NON+1}], 0", [S_NON, S_NON+1], []))
            sg.text("s_cbranch_scc1 L_spin_n"); sg.text("L_back_n:")
        if tau == int(opt.bar_at): sg.add(barrier(lg0=False))
        for x in ds:
            while any(it.ins.vmtag in x.needvm for it in Q.q): weave(sg, Q, [], 1, 0)
        if tau == int(opt.wo_at): assert not calc; Q.push(wo_dma(-1))
        place(gaps, Q, vpos)
        for x, p_ in zip(e, epos): gaps[p_].append(x)
        for x, p_ in zip(c, cpos): gaps[p_].append(x)
        if tau >= int(opt.calc_at) and n == 17:
            for gi in range(17):
                if calc and calc[0].k == 'salu' and not any(y.k == 'salu' for y in gaps[gi]): gaps[gi].insert(0, calc.pop(0))
                cost = sum(8 if y.k == 'trans' else 0 if y.k == 'salu' else 4 for y in gaps[gi])
                while calc and calc[0].k != 'salu' and cost <= 4: gaps[gi].append(calc.pop(0)); cost += 4
        sg.addall(interleave(mf, gaps))
        for m in marks: Q.mark(m)

def poll(sg, lab, vaddr):
    sg.text(f"s_mov_b32 s{S_SPIN}, {opt.spin}")
    sg.text(f"{lab}:")
    sg.text(f"buffer_load_dwordx2 v[250:251], v{vaddr}, s[{S_C}:{S_C+3}], 0 offen sc1")
    sg.text(f"s_sub_u32 s{S_SPIN}, s{S_SPIN}, 1")
    sg.text("s_waitcnt vmcnt(0)")
    sg.text(f"v_cmp_ne_u64 vcc, s[{S_NON}:{S_NON+1}], v[250:251]")
    sg.text(f"s_cmp_eq_u32 s{S_SPIN}, 0")
    sg.text(f"s_cbranch_scc1 {lab}_done")
    sg.text("s_nop 2")
    sg.text(f"s_cbranch_vccnz {lab}")
    sg.text(f"{lab}_done:")
    sg.vm = []
def raise_flag(sg, calc, lab):
    lane0(sg, calc + [f"v_mov_b32 v9, s{S_T0}", f"v_mov_b32 v250, s{S_NON}", f"v_mov_b32 v251, s{S_NON+1}",
                      f"buffer_store_dwordx2 v[250:251], v9, s[{S_C}:{S_C+3}], 0 offen sc1"], lab)
WOF = A_Q
RES = 100
def combine(sg, Q):
    OWN, PR, LS = 76, 100, V_L
    def own(q): return [76, 84, 92, 220, 44][q]
    for q in range(5):
        sg.add(dswr('ds_write_b32', V_LW, ('v', V_L + q * 4), 1, q * 4))
    sg.addall(comb_writes(4))
    for q in range(5):
        for e in range(2):
            for r in range(4):
                a_ = AO(e, q)[1] + r
                sg.add(V(f"v_accvgpr_read_b32 v{own(q) + e*4 + r}, a{a_}", [('a', a_)], [own(q) + e*4 + r]))
    assert not Q.q
    sg.add(barrier(needvm=[('wo', -1)]))
    stamp(sg, 5)
    for src in range(4):
        sg.add(dsrd('ds_read_b128', ('v', LS + src * 4), 4, V_LR, src * 8 * KB))
        sg.add(dsrd('ds_read_b32', ('v', LS + 16 + src), 1, V_LR, src * 8 * KB + 16))
    def preads(q):
        o = []
        for jd in range(1, 4):
            for e in range(2):
                u = q * 6 + (jd - 1) * 2 + e; row = u >> 3
                o.append(dsrd('ds_read_b128', ('v', PR + u * 4), 4, V_CR + 2 * (jd - 1) + (row >> 1), (row & 1) * 32 * KB + (u & 7) * KB))
        return o
    wor = [dsrd('ds_read_b64_tr_b16', ('a', WOF + (ks * 2 + e) * 4 + h * 2), 2, V_WT + 4 + e, ks * 8 * KB + h * 4096) for ks in range(4) for e in range(2) for h in range(2)]
    sg.addall(preads(0))
    def lreg(src, q): return LS + src * 4 + q if q < 4 else LS + 16 + src
    w = []
    for q in range(5):
        d = V_T0 + q
        w.append(V(f"v_add_f32 v{d}, v{lreg(0,q)}, v{lreg(1,q)}", [lreg(0,q), lreg(1,q)], [d]))
        w.append(V(f"v_add_f32 v{lreg(2,q)}, v{lreg(2,q)}, v{lreg(3,q)}", [lreg(2,q), lreg(3,q)], [lreg(2,q)]))
        w.append(V(f"v_add_f32 v{d}, v{d}, v{lreg(2,q)}", [d, lreg(2,q)], [d]))
    w.append(V(f"v_min3_f32 v{LS}, v{V_T0}, v{V_T0+1}, v{V_T0+2}", [V_T0, V_T0+1, V_T0+2], [LS]))
    w.append(V(f"v_min3_f32 v{LS}, v{LS}, v{V_T0+3}, v{V_T0+4}", [LS, V_T0+3, V_T0+4], [LS]))
    w.append(V(f"v_add_f32 v{LS+1}, v{V_T0}, v{V_T0+1}", [V_T0, V_T0+1], [LS+1]))
    w.append(V(f"v_add_f32 v{LS+2}, v{V_T0+2}, v{V_T0+3}", [V_T0+2, V_T0+3], [LS+2]))
    w.append(V(f"v_add_f32 v{LS+1}, v{LS+1}, v{V_T0+4}", [LS+1, V_T0+4], [LS+1]))
    w.append(V(f"v_add_f32 v{LS+1}, v{LS+1}, v{LS+2}", [LS+1, LS+2], [LS+1]))
    w.append(V(f"v_cmp_nle_f32 vcc, {f2h(2.0**int(opt.lo_exp))}, v{LS}", [LS], [VCC]))
    w.append(S(f"s_mov_b64 s[{S_EX}:{S_EX+1}], vcc", [VCC], [S_EX, S_EX+1]))
    w.append(V(f"v_cmp_nge_f32 vcc, {f2h(2.0**int(opt.hi_exp))}, v{LS+1}", [LS+1], [VCC]))
    w.append(S(f"s_or_b64 vcc, vcc, s[{S_EX}:{S_EX+1}]", [VCC, S_EX, S_EX+1], [VCC]))
    sg.addall(preads(1))
    sg.addall(w)
    sg.text("s_cbranch_vccnz L_redo"); sg.text("L_back_redo:")
    sg.addall(preads(2))
    for q in range(5):
        d = V_T0 + q
        sg.add(T(f"v_rcp_f32 v{d}, v{d}", [d], [d]))
    for q in range(5):
        if q == 0: sg.addall(preads(3))
        if q == 1: sg.addall(preads(4))
        if q == 2: sg.addall(wor[:8])
        if q == 3: sg.addall(wor[8:])
        for e in range(2):
            o_ = own(q) + e * 4
            for jd in range(1, 4):
                p_ = PR + (q * 6 + (jd - 1) * 2 + e) * 4
                for r in (0, 2):
                    sg.add(V(f"v_pk_add_f32 v[{o_+r}:{o_+r+1}], v[{o_+r}:{o_+r+1}], v[{p_+r}:{p_+r+1}]", [o_+r, o_+r+1, p_+r, p_+r+1], [o_+r, o_+r+1]))
        o_ = own(q)
        ri = V_T0 + (q & ~1); sel = "op_sel:[0,1] op_sel_hi:[1,1]" if q & 1 else "op_sel:[0,0] op_sel_hi:[1,0]"
        for r in range(0, 8, 2):
            sg.add(V(f"v_pk_mul_f32 v[{o_+r}:{o_+r+1}], v[{o_+r}:{o_+r+1}], v[{ri}:{ri+1}] {sel}", [o_+r, o_+r+1, V_T0+q], [o_+r, o_+r+1]))
        res = RES + 4 * q
        for r in range(4):
            sg.add(V(f"v_cvt_pk_bf16_f32 v{res+r}, v{o_+2*r}, v{o_+2*r+1}", [o_+2*r, o_+2*r+1], [res+r]))
        sg.add(S(f"s_mov_b32 s{S_SO}, {q*128*KB}", [], [S_SO]))
        sg.add(vstore(('v', res), 4, V_OST, S_O, S_SO, 0, flags=' sc1', tag='ost'))
    stamp(sg, 6)

def phase_c(sg, Q):
    a = sg.add
    ACC = 164
    a(barrier())
    for q in range(5): a(dswr('ds_write_b128', V_OW, ('v', RES + 4 * q), 4, q * KB))
    Q.push(wo_dma(0) + wo_dma(1) + wo_dma(2))
    weave(sg, Q, [], int(opt.shadow), 0)
    a(barrier(needvm=['ost']))
    stamp(sg, 7)
    raise_flag(sg, [f"s_lshl_b32 s{S_T0}, s{S_B}, 5", f"s_add_u32 s{S_T0}, s{S_T0}, s{S_HQ}", f"s_lshl_b32 s{S_T0}, s{S_T0}, 4"], "L_sig1")
    def CF(k): return [(120, 140), (44, 64), (208, 148)][k % 3]
    def c_reads(k):
        pos, ks = divmod(k, 4); pos -= 1
        xf, wf = CF(k)
        ob = 0 if pos < 0 else (44 - 20 * pos) * KB
        xr = [dsrd('ds_read_b128', ('v', xf + q * 4), 4, V_OL, ob + (ks * 5 + q) * KB) for q in range(5)]
        if pos < 0: return xr
        wb = (pos * 4 + ks) * 8 * KB
        wr = [dsrd('ds_read_b64_tr_b16', ('v', wf + e * 4 + h * 2), 2, V_WT + (2 if wb >= 64 * KB else 0) + e, (wb % (64 * KB)) + h * 4096) for e in range(2) for h in range(2)]
        return wr[:2] + xr[:1] + wr[2:] + xr[1:]
    def c_mfmas(k):
        xf, wf = CF(k)
        ff = 'v'
        if k < 4: wf, ff = WOF + k * 8, 'a'
        o = []
        for q in range(5):
            for e in range(2):
                d = ('v', ACC + (q * 2 + e) * 4)
                o.append(mfma(d, (ff, wf + e * 4), ('v', xf + q * 4), 0 if k == 0 else d))
        o[0].r |= set(R('v', xf, 20) + R(ff, wf, 8))
        return o
    def step(k, nx, pos=()):
        mf = c_mfmas(k); gaps = [[] for _ in mf]
        if nx is not None:
            for i, r in enumerate(c_reads(nx)): gaps[i].append(r)
        place(gaps, Q, pos)
        sg.addall(interleave(mf, gaps))
    sg.addall(c_reads(0)); sg.addall(c_reads(1))
    step(0, 2, [1, 5, 9]); step(1, 3, [3, 7]); step(2, None, [1, 5, 9]); step(3, None, [3, 7])
    weave(sg, Q, [], len(Q.q), 0)
    poll(sg, "L_poll1", V_P1)
    stamp(sg, 8)
    Q.push(osib_dma(0) + osib_dma(1))
    weave(sg, Q, [], 10, 0)
    a(barrier(needvm=[('os', 0)]))
    Q.push(osib_dma(2))
    sg.addall(c_reads(4)); sg.addall(c_reads(5))
    for k in range(4, 16):
        nx = k + 2 if k + 2 < 16 else None
        if nx in (8, 12):
            assert not Q.q or nx == 8
            a(barrier(needvm=[('os', nx // 4 - 1)], lg0=False))
        step(k, nx, [1, 5, 9] if k % 2 == 0 else [3, 7])
    stamp(sg, 9)
    for q in range(5):
        b = ACC + q * 8
        for r in range(4):
            a(V(f"v_cvt_pk_bf16_f32 v{b+r}, v{b+2*r}, v{b+2*r+1}", [b+2*r, b+2*r+1], [b+r]))
        a(vstore(('v', b), 4, V_PS, S_WT, S_TAB + q, 0, flags=' sc1', tag='pst'))
    a(barrier(needvm=['pst'], lg0=False))
    stamp(sg, 5, '2')
    raise_flag(sg, [f"s_lshl_b32 s{S_T0}, s{S_B}, 2", f"s_add_u32 s{S_T0}, s{S_T0}, s{S_J}", f"s_lshl_b32 s{S_T0}, s{S_T0}, 3", f"s_add_u32 s{S_T0}, s{S_T0}, s{S_HKV}",
                    f"s_lshl_b32 s{S_T0}, s{S_T0}, 4", f"s_add_u32 s{S_T0}, s{S_T0}, 4096"], "L_sig2")
    a(S(f"s_mov_b32 s{S_SO}, 4096", [], [S_SO]))
    a(S(f"s_mov_b32 s{S_T1}, 0xffff0000", [], [S_T1]))
    poll(sg, "L_poll2", V_P2)
    stamp(sg, 6, '2')
    PB, SM, U = 100, 140, 148
    for h in range(8):
        a(vload(('v', PB + 4 * h), 4, V_PLD, S_WT, S_SO if h >= 4 else None, (h & 3) * 1024, flags=' sc1'))
    for h in range(8):
        d = SM if h == 0 else U
        for r in range(4):
            a(V(f"v_lshlrev_b32 v{d+2*r}, 16, v{PB+4*h+r}", [PB+4*h+r], [d+2*r]))
            a(V(f"v_and_b32 v{d+2*r+1}, s{S_T1}, v{PB+4*h+r}", [PB+4*h+r], [d+2*r+1]))
        if h:
            for r in range(0, 8, 2):
                a(V(f"v_pk_add_f32 v[{SM+r}:{SM+r+1}], v[{SM+r}:{SM+r+1}], v[{U+r}:{U+r+1}]", [SM+r, SM+r+1, U+r, U+r+1], [SM+r, SM+r+1]))
    for r in range(4):
        a(V(f"v_cvt_pk_bf16_f32 v{SM+r}, v{SM+2*r}, v{SM+2*r+1}", [SM+2*r, SM+2*r+1], [SM+r]))
    a(vstore(('v', SM), 2, V_OUT, S_OUT, None, 0))
    a(vstore(('v', SM + 2), 2, V_OUT, S_OUT, None, 32))

def out_of_line():
    t = []
    t += ["L_spin_n:", f"s_mov_b32 s{S_SPIN}, {opt.spin}", "L_spin_n1:",
          f"buffer_load_dwordx2 v[{V_GC}:{V_GC+1}], v9, s[{S_D}:{S_D+3}], 0 offen sc1", f"s_sub_u32 s{S_SPIN}, s{S_SPIN}, 1", "s_waitcnt vmcnt(0)",
          f"v_readfirstlane_b32 s{S_NON}, v{V_GC}", f"v_readfirstlane_b32 s{S_NON+1}, v{V_GC+1}", f"s_cmp_eq_u32 s{S_SPIN}, 0", "s_cbranch_scc1 L_back_n", "s_nop 2",
          f"s_cmp_eq_u64 s[{S_NON}:{S_NON+1}], 0", "s_cbranch_scc1 L_spin_n1", "s_branch L_back_n"]
    t += ["L_redo:", f"s_cmp_lg_u32 s{S_REDO}, 0", "s_cbranch_scc1 L_back_redo", f"s_mov_b32 s{S_REDO}, 1",
          "s_waitcnt vmcnt(0) lgkmcnt(0)", "s_barrier"]
    sg = Seg()
    p1 = prologue1()
    a = sg.add
    a(V(f"v_lshl_add_u32 v{V_T0}, s{S_W}, 2, v{V_G}", [V_G], [V_T0]))
    a(V(f"v_xor_b32 v{V_T1}, v{V_N}, v{V_T0}", [V_N, V_T0], [V_T1]))
    a(V(f"v_lshlrev_b32 v{V_T1}, 4, v{V_T1}", [V_T1], [V_T1]))
    a(V(f"v_lshl_add_u32 v{V_XD}, v{V_T0}, 10, v{V_T1}", [V_T0, V_T1], [V_XD]))
    a(S(f"s_and_b32 s{S_T0}, s{S_W}, 2", [S_W], [S_T0]))
    a(S(f"s_lshl_b32 s{S_T0}, s{S_T0}, 2", [S_T0], [S_T0]))
    a(V(f"v_lshl_add_u32 v{V_T1}, v{V_G}, 1, s{S_T0}", [V_G], [V_T1]))
    a(V(f"v_xor_b32 v{V_T1}, v{V_N}, v{V_T1}", [V_N, V_T1], [V_T1]))
    a(V(f"v_lshlrev_b32 v{V_T1}, 4, v{V_T1}", [V_T1], [V_T1]))
    a(V(f"v_lshl_add_u32 v{V_WD}, v{V_T0}, 13, v{V_T1}", [V_T0, V_T1], [V_WD]))
    t += sg.out + ["s_nop 4", "s_branch L_restart"]
    sg = Seg(); a = sg.add
    sg.text("L_max:")
    sg.text(f"s_mov_b32 s{S_SPIN}, m0")
    sg.drain()
    sg.text("s_barrier")
    MX, KF, AD = 76, V_VF, 84
    for q in range(5): a(V(f"v_mov_b32 v{MX+q}, 0xff800000", [], [MX+q]))
    for s in range(4): a(V(f"v_add_u32 v{AD+s}, {96*KB}, v{V_KA+s}", [V_KA+s], [AD+s]))
    a(S(f"s_mov_b32 s{S_T2}, 0", [], [S_T2]))
    sg.text("L_max_loop:"); sg.reset_hist()
    for j in range(8):
        if j % 4 == 0:
            a(S(f"s_add_u32 s{S_T1}, s{S_T2}, {(j>>2)*4096}", [S_T2], [S_T1]))
            a(S(f"s_add_u32 m0, s{S_W8K}, {96*KB + (j>>2)*4096}", [S_W8K], [M0]))
        a(dma(V_KD + (j & 3), S_K, S_T1, 1024 * (j & 3), 'mk'))
    for t_ in range(2):
        for s in range(4):
            a(dsrd('ds_read_b128', ('v', KF + (t_ * 4 + s) * 4), 4, AD + s, t_ * 4096, needvm=['mk']))
    for q in range(5):
        for t_ in range(2):
            d = ('v', 88 + t_ * 4)
            for s in range(4): a(mfma(d, ('v', KF + (t_ * 4 + s) * 4), AQ(q, s), 0 if s == 0 else d))
        for k in range(4):
            a(V(f"v_max3_f32 v{MX+q}, v{MX+q}, v{88+2*k}, v{89+2*k}", [MX+q, 88+2*k, 89+2*k], [MX+q]))
    sg.drain()
    a(S(f"s_add_u32 s{S_T2}, s{S_T2}, 8192", [S_T2], [S_T2]))
    sg.text(f"s_cmp_lt_u32 s{S_T2}, 65536"); sg.text("s_nop 4"); sg.text("s_cbranch_scc1 L_max_loop")
    sg.text("s_barrier")
    a(S(f"s_mul_i32 s{S_T0}, s{S_W}, 1280", [S_W], [S_T0]))
    a(S(f"s_add_u32 s{S_T0}, s{S_T0}, {96*KB}", [S_T0], [S_T0]))
    a(V(f"v_lshl_add_u32 v{AD}, v{V_LANE}, 2, s{S_T0}", [V_LANE], [AD]))
    a(S(f"s_mov_b32 s{S_T0}, {96*KB}", [], [S_T0]))
    a(V(f"v_lshl_add_u32 v{AD+1}, v{V_N}, 2, s{S_T0}", [V_N], [AD+1]))
    for q in range(5): a(dswr('ds_write_b32', AD, ('v', MX + q), 1, q * 256))
    a(barrier())
    for q in range(5):
        for k in range(16):
            a(dsrd('ds_read_b32', ('v', KF + k), 1, AD + 1, (k >> 2) * 1280 + q * 256 + (k & 3) * 64))
        for k in range(8):
            a(V(f"v_max3_f32 v{MX+q}, v{MX+q}, v{KF+2*k}, v{KF+2*k+1}", [MX+q, KF+2*k, KF+2*k+1], [MX+q]))
        for r in range(4):
            a(V(f"v_sub_f32 v{V_NEGM+q*4+r}, 0, v{MX+q}", [MX+q], [V_NEGM+q*4+r]))
    sg.drain()
    sg.text("s_barrier"); sg.text(f"s_mov_b32 m0, s{S_SPIN}"); sg.text("s_nop 4"); sg.text("s_branch L_back_max")
    return t + sg.out

def stamp_out(sg, n):
    if not opt.stamps: return
    stamp(sg, n - 1)
    t = ["s_load_dwordx2 s[4:5], s[0:1], 56", "s_waitcnt lgkmcnt(0)", f"s_add_u32 s4, s4, {16<<20}", "s_addc_u32 s5, s5, 0", "s_and_b32 s5, s5, 0xffff",
         "s_mov_b32 s6, 0x100000", "s_mov_b32 s7, 0x20000", "s_lshl_b32 s8, s2, 2", "s_add_u32 s8, s8, s32", "s_lshl_b32 s8, s8, 6", "v_mov_b32 v2, s8"]
    for i in range(n):
        t += [f"v_mov_b32 v3, s{3 if i == 0 else 76+2*i}", f"buffer_store_dword v3, v2, s[4:7], 0 offen offset:{4*i}"]
    for x in t: sg.text(x)

def kernel():
    sg = Seg()
    sg.text(NAME + "_kernel:")
    sg.text("s_cmp_ge_u32 s2, 256")
    sg.text("s_cbranch_scc1 L_end")
    if opt.stamps:
        stamp(sg, 0)
    sg.addall(prologue1())
    if opt.stamps:
        sg.text("s_mov_b32 s3, s76")
        for i in range(1, NST): sg.text(f"s_mov_b32 s{76+2*i}, 0") if 76 + 2*i < 92 else None
    p2 = prologue2()
    Q = Queue()
    first = x_dma(0) + w_dma(0)
    sg.addall(restart_setup())
    Q.push(first)
    weave(sg, Q, [], 9, 0)
    sg.addall(p2)
    sg.text("s_cmp_lg_u32 s2, 0"); sg.text("s_cbranch_scc1 L_nocz")
    lane0(sg, ["v_mov_b32 v9, 0", f"buffer_load_dwordx2 v[250:251], v9, s[{S_D}:{S_D+3}], 0 offen sc1", f"s_memrealtime s[{S_NON}:{S_NON+1}]", "s_waitcnt vmcnt(0) lgkmcnt(0)",
               "v_or_b32 v250, v250, v251", "v_cmp_eq_u32 vcc, 0, v250", f"v_mov_b32 v250, s{S_NON}", f"v_mov_b32 v251, s{S_NON+1}", "s_nop 1", "s_and_b64 exec, exec, vcc",
               "s_cbranch_execz L_nocz2", f"buffer_store_dwordx2 v[250:251], v9, s[{S_D}:{S_D+3}], 0 offen sc1", "L_nocz2:"], "L_nocz")
    sg.text("s_branch L_first")
    sg.text("L_restart:")
    s2 = Seg(); s2.addall(restart_setup()); Q2 = Queue(); Q2.push(x_dma(0) + w_dma(0)); weave(s2, Q2, [], 9, 0)
    for x in s2.out: sg.text(x)
    sg.text("L_first:")
    early, late = prologue3()
    early = early + late
    def BB(u): return f"B{u + 1}"
    Q.push(w_dma(1) + x_dma(1) + w_dma(2) + w_dma(3) + x_dma(2) + w_dma(4) + x_dma(3) + w_dma(5, 'B2') + w_dma(6, 'B3') + w_dma(7, 'B4')
           + kv_dma('k', 0, 'B5') + kv_dma('v', 0, 'B6') + kv_dma('k', 1, 'BQ') + kv_dma('v', 1, 'BQ'))
    for i in range(2, 8):
        Q.push(kv_dma('k', i) + kv_dma('v', i))
    n0 = int(opt.n0) - 9
    weave(sg, Q, early, n0, (len(early) + n0 - 1) // n0)
    sg.addall(early)
    qr = phase_a(sg, Q)
    sg.addall(qr[:0])
    stamp(sg, 3)
    sg.text(f"s_cmp_eq_u32 s{S_REDO}, 0"); sg.text("s_cbranch_scc1 L_back_max")
    s2 = Seg(); s2.addall(qr)
    for x in s2.out: sg.text(x)
    sg.text("s_branch L_max")
    sg.text("L_back_max:")
    phase_b(sg, Q, qr)
    stamp(sg, 4)
    combine(sg, Q)
    phase_c(sg, Q)
    sg.text("L_fin:")
    stamp_out(sg, 11)
    sg.text("L_end:")
    sg.text("s_endpgm")
    return sg.out + out_of_line()

def report_kernel():
    idx, mode = opt.report.split(',')
    t = ["report_kernel:", "s_cmp_ge_u32 s2, 1", "s_cbranch_scc1 L3_end", "s_load_dwordx2 s[4:5], s[0:1], 56", "s_waitcnt lgkmcnt(0)",
         f"s_add_u32 s4, s4, {16<<20}", "s_addc_u32 s5, s5, 0", "s_and_b32 s5, s5, 0xffff", "s_mov_b32 s6, 0x100000", "s_mov_b32 s7, 0x20000",
         "v_lshlrev_b32 v1, 8, v0", f"buffer_load_dword v2, v1, s[4:7], 0 offen offset:{4*int(idx)}", "buffer_load_dword v3, v1, s[4:7], 0 offen",
         "v_mov_b32 v4, 0", "v_mov_b32 v5, 0", "v_mov_b32 v6, -1", "ds_write_b32 v4, v5", "ds_write_b32 v4, v6 offset:8", "s_waitcnt vmcnt(0) lgkmcnt(0)", "s_barrier",
         "ds_min_u32 v4, v3 offset:8", "s_waitcnt lgkmcnt(0)", "s_barrier", "ds_read_b32 v6, v4 offset:8", "s_waitcnt lgkmcnt(0)", "v_sub_u32 v2, v2, v6",
         "v_lshrrev_b32 v7, 3, v0", "v_mul_u32_u24 v7, 52, v7", "v_lshrrev_b32 v7, 8, v7", "v_and_b32 v8, 1, v0", "v_sub_u32 v8, 6, v8", "v_cmp_lt_u32 vcc, v7, v8",
         "v_min_u32 v2, 10000, v2",
         ("ds_add_u32 v4, v2" if mode == 'mean' else "ds_max_u32 v4, v2"), "s_waitcnt lgkmcnt(0)", "s_barrier", "ds_read_b32 v6, v4", "s_memrealtime s[12:13]", "s_waitcnt lgkmcnt(0)",
         "v_readfirstlane_b32 s10, v6", "s_nop 4"]
    if mode == 'mean': t += ["s_mul_i32 s10, s10, 10", "s_lshr_b32 s10, s10, 8"]
    elif mode == 'max': t += ["s_mul_i32 s10, s10, 10"]
    else: t += ["s_mov_b32 s10, 0"]
    t += ["L3_spin:", "s_memrealtime s[14:15]", "s_waitcnt lgkmcnt(0)", "s_sub_u32 s14, s14, s12",
          "s_cmp_lt_u32 s14, s10", "s_cbranch_scc1 L3_spin", "L3_end:", "s_endpgm"]
    return t

def build():
    def fmt(l): return "\n".join(x if x.endswith(':') else "    " + x for x in l)
    nm = NAME + "_kernel"
    s = "; @launch grid=(256,1,1) block=(256,1,1) lds=163840\n"
    if opt.report:
        s = f"; @launch kernel={nm} grid=(256,1,1) block=(256,1,1) lds=163840\n; @launch kernel=report_kernel grid=(1,1,1) block=(256,1,1) lds=64\n"
    s += '.amdgcn_target "amdgcn-amd-amdhsa--gfx950"\n.text\n'
    s += f".globl {nm}\n.p2align 8\n.type {nm},@function\n" + fmt(kernel()) + "\n"
    if opt.report: s += ".globl report_kernel\n.p2align 8\n.type report_kernel,@function\n" + fmt(report_kernel()) + "\n"
    s += f""".section .rodata,"a"
.p2align 6
.amdhsa_kernel {nm}
  .amdhsa_next_free_vgpr 512
  .amdhsa_next_free_sgpr 102
  .amdhsa_accum_offset 256
  .amdhsa_group_segment_fixed_size 0
  .amdhsa_kernarg_size 64
  .amdhsa_user_sgpr_count 2
  .amdhsa_user_sgpr_kernarg_segment_ptr 1
  .amdhsa_system_sgpr_workgroup_id_x 1
  .amdhsa_float_denorm_mode_32 3
.end_amdhsa_kernel
"""
    if opt.report:
        s += """.p2align 6
.amdhsa_kernel report_kernel
  .amdhsa_next_free_vgpr 32
  .amdhsa_next_free_sgpr 32
  .amdhsa_accum_offset 32
  .amdhsa_group_segment_fixed_size 0
  .amdhsa_kernarg_size 64
  .amdhsa_user_sgpr_count 2
  .amdhsa_user_sgpr_kernarg_segment_ptr 1
  .amdhsa_system_sgpr_workgroup_id_x 1
.end_amdhsa_kernel
"""
    return s

if __name__ == '__main__':
    out = sys.argv[1] if len(sys.argv) > 1 else 'cdna_kernels/' + NAME + '.s'
    for a_ in sys.argv[2:]:
        k, v = a_.split('=', 1)
        setattr(opt, k, (' ' + v) if k.endswith('flags') and v else v)
    txt = build()
    open(out, 'w').write(txt)
```

```python
import sys, struct
from dsl import *

KB = 1024
NAME = 'standalone__gqa_block_cached__near_ridge'
def f2h(x): return hex(struct.unpack('<I', struct.pack('<f', x))[0])
QSCALE = 1.4426950408889634 / (128 ** 0.5)
WS_WO = 8 << 20
WS_CT = 12 << 20

class Opt:
    stamps = ''
    report = ''
    kv_flags = ''
    a_flags = ''
    n0 = 26
    warm = 1
    perstep = 5
    lo_exp = -40
    hi_exp = 40
    spin = 300000
    rt_at = 5
    bar_at = 12
    nodma = 0
    cpf = 1
    chain = 1
    wo_at = 32
    calc_at = 16
    nl_at = 8
    nc_at = 13
    cw = 2
    shadow = 14
    bst = '0,5,10,15,20'
    no_rt = 0
    clk = 'r'
    lg0 = 0
    vpos = '1,5,9,13'
    rot_kv = 1
    rot_a = 2
    rot_c = 1
    gl_at = 29
    gc_at = 33
opt = Opt()

S_X, S_WQ, S_K, S_V, S_O, S_WO, S_WT, S_WL, S_C, S_D, S_OUT = 4, 8, 12, 16, 20, 24, 28, 52, 56, 60, 64
S_W, S_B, S_HKV, S_HQ = 32, 33, 34, 35
S_W1K, S_W8K, S_SO, S_T0, S_T1, S_T2, S_SK, S_SV = 36, 37, 38, 39, 40, 41, 42, 43
S_TAB = 44
S_REDO, S_MT, S_NT, S_VALID, S_RT, S_SPIN = 68, 69, 70, 71, 72, 73
S_EX = 74
S_RC = 100
S_J_UNUSED = 3
S_P = 76
S_ST = 80
V_LANE, V_N, V_G, V_T0, V_T1, V_T2, V_T3, V_T4, V_T5 = 1, 2, 3, 4, 5, 6, 7, 8, 9
V_KA, V_VA, V_KD, V_VD = 10, 14, 22, 26
V_OST, V_CW, V_LW = 28, 29, 31
V_ONES, V_NEGM, V_L, V_S, V_P, V_KF, V_VF = 32, 36, 56, 76, 92, 100, 164
V_XA, V_XB, V_WA, V_WB, V_XD, V_WD, V_QW = 228, 232, 236, 238, 240, 241, 242
V_GC = 250
S_NON = 96
V_CR, V_LR, V_WOD, V_WT, V_OL, V_OW, V_OD, V_PS, V_PLD, V_OUT, V_P1, V_P2 = 228, 234, 235, 236, 242, 243, 244, 245, 246, 247, 248, 249
S_H = 52
S_W5K = 55
S_J = 69
A_O, A_Q = 0, 160
def AO(lam, q): return ('a', A_O + 4 * (q * 8 + lam))
def AQ(q, s): return ('a', A_Q + 4 * (q * 4 + s))

def XU(c, q):
    if c == 0: return q * 4 * KB
    if c == 1: return 20 * KB + q * 4 * KB
    if c == 2: return 128 * KB + q * 4 * KB
    return [120, 124, 148, 152, 156][q] * KB
def WU(slot, ks):
    return {0: [40, 48], 1: [56, 96], 2: [104, 112], 3: [64, 72], 4: [80, 88]}[slot][ks] * KB
WSLOT = [0, 1, 2, 3, 4, 0, 1, 2]
QBUF = 128 * KB

def V(t, r=(), w=()):
    return valu(t, r=[('v', x) if isinstance(x, int) else x for x in r], w=[('v', x) if isinstance(x, int) else x for x in w])
def T(t, r=(), w=()):
    return valu(t, r=[('v', x) for x in r], w=[('v', x) for x in w], trans=True)
def S(t, r=(), w=()):
    return salu(t, r=[('s', x) if isinstance(x, int) else x for x in r], w=[('s', x) if isinstance(x, int) else x for x in w])
M0 = ('m0', 0)
VCC = ('vcc', 0)
def flat(l): return [x for y in l for x in y]

def srd(dst, plo, add_s=None, add_imm=0, size=0):
    o = []
    if add_s is not None:
        o.append(S(f"s_add_u32 s{dst}, s{plo}, s{add_s}", [plo, add_s], [dst]))
        o.append(S(f"s_addc_u32 s{dst+1}, s{plo+1}, 0", [plo+1], [dst+1]))
        o.append(S(f"s_and_b32 s{dst+1}, s{dst+1}, 0xffff", [dst+1], [dst+1]))
    elif add_imm:
        o.append(S(f"s_add_u32 s{dst}, s{plo}, {add_imm}", [plo], [dst]))
        o.append(S(f"s_addc_u32 s{dst+1}, s{plo+1}, 0", [plo+1], [dst+1]))
        o.append(S(f"s_and_b32 s{dst+1}, s{dst+1}, 0xffff", [dst+1], [dst+1]))
    else:
        o.append(S(f"s_mov_b32 s{dst}, s{plo}", [plo], [dst]))
        o.append(S(f"s_and_b32 s{dst+1}, s{plo+1}, 0xffff", [plo+1], [dst+1]))
    if isinstance(size, str):
        o.append(S(f"s_mov_b32 s{dst+2}, {size}", [int(size[1:])], [dst+2]))
    else:
        o.append(S(f"s_mov_b32 s{dst+2}, {size}", [], [dst+2]))
    o.append(S(f"s_mov_b32 s{dst+3}, 0x20000", [], [dst+3]))
    return o

KV_ORDER = [[0, 2, 1, 3, 4, 6, 5, 7], [0, 1, 3, 2, 4, 5, 7, 6], [1, 0, 2, 4, 3, 5, 6, 7], [1, 0, 2, 3, 5, 4, 6, 7]]
def kv_pack(j):
    o = KV_ORDER[j] if int(opt.rot_kv) else list(range(8))
    return sum(t << (4 * i) for i, t in enumerate(o))
S_KVO = 98
V_XD4 = 204
S_WC = 99

class Item:
    def __init__(s, pre, ins, after=None): s.pre, s.ins, s.after = pre, ins, after
def x_dma(c, after=None):
    return [Item([S(f"s_add_u32 m0, s{S_W1K}, {XU(c,q)}", [S_W1K], [M0])],
                 dma(V_XD4 + c, S_X, S_TAB + q, 0, ('x', c), flags=opt.a_flags), after) for q in range(5)]
def w_dma(u, after=None):
    o = []
    for k in range(4):
        pre = []
        if k == 0:
            pre.append(S(f"s_add_u32 s{S_SK}, s{S_WC}, {(u & 6) << 19}", [S_WC], [S_SK]))
            pre.append(S(f"s_and_b32 s{S_SK}, s{S_SK}, {7 << 19}", [S_SK], [S_SK]))
            if u & 1: pre.append(S(f"s_xor_b32 s{S_SK}, s{S_SK}, {1 << 19}", [S_SK], [S_SK]))
        pre.append(S(f"s_add_u32 s{S_SO}, s{S_SK}, {k*131072}", [S_SK], [S_SO]))
        pre.append(S(f"s_add_u32 m0, s{S_W1K}, {WU(WSLOT[u], k>>1) + (k&1)*4*KB}", [S_W1K], [M0]))
        o.append(Item(pre, dma(V_WD, S_WQ, S_SO, 0, ('w', u), flags=opt.a_flags), after))
    return o
def kv_dma(kind, i, after=None):
    o = []
    base = (i & 1) * 32 * KB + (0 if kind == 'k' else 64 * KB)
    sr, so = (S_K, S_SK) if kind == 'k' else (S_V, S_SV)
    for j in range(8):
        pre = []
        if j % 4 == 0:
            if j == 0:
                pre.append(S(f"s_bfe_u32 s{so}, s{S_KVO}, {hex((3 << 16) | (4 * i))}", [S_KVO], [so]))
                pre.append(S(f"s_lshl_b32 s{so}, s{so}, 13", [so], [so]))
            else:
                pre.append(S(f"s_add_u32 s{so}, s{so}, 4096", [so], [so]))
            pre.append(S(f"s_add_u32 m0, s{S_W8K}, {base + (j>>2)*4096}", [S_W8K], [M0]))
        va = V_KD + (j & 3) if kind == 'k' else V_VD + (j & 1)
        tag = (kind + 'r', i - 2, j >> 2)
        o.append(Item(pre, dma(va, sr, so, 1024 * (j & 3), (kind, i, j >> 2), needlg=[tag], flags=opt.kv_flags), after if i < 2 else tag))
    return o
def k_reads(i):
    return [dsrd('ds_read_b128', ('v', V_KF + (i & 1) * 32 + (t * 4 + s) * 4), 4, V_KA + s, (i & 1) * 32 * KB + t * 4096,
                 needvm=[('k', i, t)], lgtag=('kr', i, t)) for t in range(2) for s in range(4)]
def v_reads(i):
    return [dsrd('ds_read_b64_tr_b16', ('v', V_VF + (i & 1) * 32 + lam * 4 + h * 2), 2, V_VA + lam, (i & 1) * 32 * KB + h * 4096,
                 needvm=[('v', i, h)], lgtag=('vr', i, h)) for h in range(2) for lam in range(8)]

class Queue:
    def __init__(s): s.q = []; s.pts = set()
    def push(s, items): s.q += items
    def mark(s, p): s.pts.add(p)
    def pop(s):
        if s.q and (s.q[0].after is None or s.q[0].after in s.pts): return s.q.pop(0)
        return None

def place(gaps, Q, pos):
    last = -1
    for p in pos:
        if p >= len(gaps): continue
        it = Q.pop()
        if it is None: break
        pre = list(it.pre)
        avail = list(range(last + 1, p))
        front = []
        if not avail: front = pre
        else:
            slots = [[] for _ in avail]
            for k_, x in enumerate(reversed(pre)):
                slots[max(0, len(avail) - 1 - k_)].insert(0, x)
            for g, sl in zip(avail, slots):
                k_ = 0
                while k_ < len(gaps[g]) and gaps[g][k_].k == 'salu': k_ += 1
                gaps[g][k_:k_] = sl
        k = 0
        while k < len(gaps[p]) and gaps[p][k].k == 'salu': k += 1
        gaps[p][k:k] = front + [it.ins]
        last = p
def weave(sg, Q, fill, n, per):
    for _ in range(n):
        it = Q.pop()
        if it is not None: sg.addall(it.pre + [it.ins])
        for _ in range(per):
            if fill: sg.add(fill.pop(0))

NST = 12
def stamp(sg, i, grp='1'):
    if not opt.stamps: return
    if 5 <= i <= 9 and grp != opt.stamps: return
    sg.text(f"{'s_memtime' if opt.clk == 'c' else 's_memrealtime'} s[{76+2*i}:{77+2*i}]")

def prologue1():
    o = []; a = o.append
    a(raw("s_load_dwordx2 s[92:93], s[0:1], 0"))
    a(raw("s_load_dwordx4 s[96:99], s[0:1], 24"))
    a(V(f"v_lshrrev_b32 v{V_T0}, 6, v0", [0], [V_T0]))
    a(V(f"v_and_b32 v{V_LANE}, 63, v0", [0], [V_LANE]))
    a(V(f"v_readfirstlane_b32 s{S_W}, v{V_T0}", [V_T0], [('s', S_W)]))
    a(S(f"s_and_b32 s{S_HKV}, s2, 7", [2], [S_HKV]))
    a(S(f"s_lshr_b32 s{S_B}, s2, 5", [2], [S_B]))
    a(S(f"s_bfe_u32 s{S_T0}, s2, 0x20003", [2], [S_T0]))
    a(S(f"s_mov_b32 s{S_J}, s{S_T0}", [S_T0], [S_J]))
    a(S(f"s_lshl_b32 s{S_HQ}, s{S_HKV}, 2", [S_HKV], [S_HQ]))
    a(S(f"s_add_u32 s{S_HQ}, s{S_HQ}, s{S_T0}", [S_HQ, S_T0], [S_HQ]))
    if int(opt.rot_a) == 2:
        a(S(f"s_add_u32 s{S_VALID}, s{S_T0}, s{S_B}", [S_T0, S_B], [S_VALID]))
        a(S(f"s_and_b32 s{S_VALID}, s{S_VALID}, 1", [S_VALID], [S_VALID]))
        a(S(f"s_lshl_b32 s{S_VALID}, s{S_VALID}, 2", [S_VALID], [S_VALID]))
    elif int(opt.rot_a) == 4:
        a(S(f"s_add_u32 s{S_VALID}, s{S_T0}, s{S_B}", [S_T0, S_B], [S_VALID]))
        a(S(f"s_and_b32 s{S_VALID}, s{S_VALID}, 3", [S_VALID], [S_VALID]))
        a(S(f"s_lshl_b32 s{S_VALID}, s{S_VALID}, 1", [S_VALID], [S_VALID]))
    elif int(opt.rot_a):
        a(S(f"s_lshl_b32 s{S_T0}, s{S_T0}, 1", [S_T0], [S_T0]))
        a(S(f"s_add_u32 s{S_VALID}, s{S_T0}, s{S_B}", [S_T0, S_B], [S_VALID]))
        a(S(f"s_and_b32 s{S_VALID}, s{S_VALID}, 7", [S_VALID], [S_VALID]))
    else:
        a(S(f"s_mov_b32 s{S_VALID}, 0", [], [S_VALID]))
    a(V(f"v_and_b32 v{V_N}, 15, v{V_LANE}", [V_LANE], [V_N]))
    a(V(f"v_lshrrev_b32 v{V_G}, 4, v{V_LANE}", [V_LANE], [V_G]))
    a(S(f"s_lshl_b32 s{S_W1K}, s{S_W}, 10", [S_W], [S_W1K]))
    a(S(f"s_lshl_b32 s{S_W8K}, s{S_W}, 13", [S_W], [S_W8K]))
    a(V(f"v_lshl_add_u32 v{V_T0}, s{S_W}, 2, v{V_G}", [V_G, ('s', S_W)], [V_T0]))
    a(V(f"v_xor_b32 v{V_T1}, v{V_N}, v{V_T0}", [V_N, V_T0], [V_T1]))
    a(V(f"v_lshlrev_b32 v{V_T1}, 4, v{V_T1}", [V_T1], [V_T1]))
    a(V(f"v_lshl_add_u32 v{V_XD}, v{V_T0}, 10, v{V_T1}", [V_T0, V_T1], [V_XD]))
    a(S(f"s_and_b32 s{S_T0}, s{S_W}, 2", [S_W], [S_T0]))
    a(S(f"s_lshl_b32 s{S_T0}, s{S_T0}, 2", [S_T0], [S_T0]))
    a(V(f"v_lshl_add_u32 v{V_T1}, v{V_G}, 1, s{S_T0}", [V_G, ('s', S_T0)], [V_T1]))
    a(V(f"v_xor_b32 v{V_T1}, v{V_N}, v{V_T1}", [V_N, V_T1], [V_T1]))
    a(V(f"v_lshlrev_b32 v{V_T1}, 4, v{V_T1}", [V_T1], [V_T1]))
    a(V(f"v_lshl_add_u32 v{V_WD}, v{V_T0}, 13, v{V_T1}", [V_T0, V_T1], [V_WD]))
    a(S(f"s_mul_i32 s{S_T0}, s{S_B}, 81920", [S_B], [S_T0]))
    a(S(f"s_lshl_b32 s{S_T2}, s{S_HQ}, 8", [S_HQ], [S_T2]))
    a(S(f"s_sub_u32 s{S_T1}, 4194304, s{S_T2}", [S_T2], [S_T1]))
    a(S(f"s_mov_b32 s{S_REDO}, 0", [], [S_REDO]))
    a(raw("s_waitcnt lgkmcnt(0)", 'wait'))
    o += srd(S_X, 92, add_s=S_T0, size=81920)
    o += srd(S_WQ, 96, add_s=S_T2, size=f"s{S_T1}")
    a(S(f"s_lshl_b32 s{S_T0}, s{S_HKV}, 19", [S_HKV], [S_T0]))
    o += srd(S_WO, 98, add_s=S_T0, size=524288)
    a(S(f"s_lshl_b32 s{S_WC}, s{S_VALID}, 19", [S_VALID], [S_WC]))
    a(raw("s_load_dwordx4 s[92:95], s[0:1], 8"))
    a(raw(f"s_load_dwordx4 s[{S_C}:{S_C+3}], s[0:1], 40"))
    a(raw("s_load_dwordx2 s[100:101], s[0:1], 56"))
    return o

def restart_setup():
    o = [S(f"s_mov_b32 s{S_TAB+q}, {q*16384}", [], [S_TAB+q]) for q in range(5)]
    for c in range(4):
        o.append(S(f"s_lshr_b32 s{S_T0}, s{S_WC}, 12", [S_WC], [S_T0]))
        o.append(S(f"s_add_u32 s{S_T0}, s{S_T0}, {c*256}", [S_T0], [S_T0]))
        o.append(S(f"s_and_b32 s{S_T0}, s{S_T0}, 0x300", [S_T0], [S_T0]))
        o.append(V(f"v_add_u32 v{V_XD4+c}, s{S_T0}, v{V_XD}", [V_XD, ('s', S_T0)], [V_XD4+c]))
    return o

def prologue2():
    o = []; a = o.append
    a(raw("s_waitcnt lgkmcnt(0)", 'wait'))
    a(S(f"s_lshl_b32 s{S_T0}, s{S_B}, 3", [S_B], [S_T0]))
    a(S(f"s_add_u32 s{S_T0}, s{S_T0}, s{S_HKV}", [S_T0, S_HKV], [S_T0]))
    a(S(f"s_lshl_b32 s{S_T0}, s{S_T0}, 2", [S_T0], [S_T0]))
    a(S(f"s_add_u32 s{S_T0}, s{S_T0}, s{S_W}", [S_T0, S_W], [S_T0]))
    a(S(f"s_lshl_b32 s{S_T0}, s{S_T0}, 16", [S_T0], [S_T0]))
    o += srd(S_K, 92, add_s=S_T0, size=65536)
    o += srd(S_V, 94, add_s=S_T0, size=65536)
    o += srd(S_O, 100, size=8*5*128*1024)
    o += srd(S_WT, 100, add_imm=WS_WO, size=8*4*20*8*1024)
    o += srd(S_D, S_C + 2, size=256)
    o += srd(S_OUT, S_C, size=655360)
    o += srd(S_C, 100, add_imm=WS_CT, size=8192)
    a(S(f"s_bitcmp1_b32 s{S_HQ}, 0", [S_HQ], []))
    a(S(f"s_mov_b32 s{S_T0}, {hex(kv_pack(0))}", [], [S_T0]))
    a(S(f"s_cselect_b32 s{S_T0}, {hex(kv_pack(1))}, s{S_T0}", [S_T0], [S_T0]))
    a(S(f"s_mov_b32 s{S_T1}, {hex(kv_pack(2))}", [], [S_T1]))
    a(S(f"s_cselect_b32 s{S_T1}, {hex(kv_pack(3))}, s{S_T1}", [S_T1], [S_T1]))
    a(S(f"s_bitcmp1_b32 s{S_HQ}, 1", [S_HQ], []))
    a(S(f"s_cselect_b32 s{S_KVO}, s{S_T1}, s{S_T0}", [S_T0, S_T1], [S_KVO]))
    a(S(f"s_mul_i32 s{S_T0}, s{S_B}, 43", [S_B], [S_T0]))
    a(S(f"s_lshr_b32 s{S_T0}, s{S_T0}, 7", [S_T0], [S_T0]))
    a(S(f"s_mul_i32 s{S_T0}, s{S_T0}, 3", [S_T0], [S_T0]))
    a(S(f"s_sub_u32 s{S_T0}, s{S_B}, s{S_T0}", [S_B, S_T0], [S_T0]) if int(opt.rot_c) else S(f"s_mov_b32 s{S_T0}, 0", [], [S_T0]))
    for p in range(3):
        a(S(f"s_add_u32 s{S_T1}, s{S_T0}, {p}", [S_T0], [S_T1]))
        a(S(f"s_cmp_ge_u32 s{S_T1}, 3", [S_T1], []))
        a(S(f"s_cselect_b32 s{S_T2}, 2, -1", [], [S_T2]))
        a(S(f"s_sub_u32 s{S_T1}, s{S_T1}, s{S_T2}", [S_T1, S_T2], [S_T1]))
        a(S(f"s_add_u32 s{S_T1}, s{S_T1}, s{S_J}", [S_T1, S_J], [S_T1]))
        a(S(f"s_and_b32 s{S_T1}, s{S_T1}, 3", [S_T1], [S_T1]))
        a(S(f"s_lshl_b32 s{S_H+p}, s{S_T1}, 17", [S_T1], [S_H+p]))
    a(S(f"s_mul_i32 s{S_W5K}, s{S_W}, 5120", [S_W], [S_W5K]))
    return o

def prologue3():
    o = []; a = o.append
    a(S(f"s_bfe_u32 s{S_T1}, s{S_WC}, 0x10013", [S_WC], [S_T1]))
    a(S(f"s_lshl_b32 s{S_T1}, s{S_T1}, 3", [S_T1], [S_T1]))
    a(V(f"v_xor_b32 v{V_T1}, s{S_T1}, v{V_N}", [V_N, ('s', S_T1)], [V_T1]))
    for s in range(4):
        a(V(f"v_add_u32 v{V_T0}, {4*s}, v{V_G}", [V_G], [V_T0]))
        a(V(f"v_xor_b32 v{V_T0}, v{V_T0}, v{V_T1}", [V_T0, V_T1], [V_T0]))
        a(V(f"v_lshlrev_b32 v{V_T0}, 4, v{V_T0}", [V_T0], [V_T0]))
        a(V(f"v_lshl_add_u32 v{V_XA+s}, v{V_N}, 8, v{V_T0}", [V_N, V_T0], [V_XA+s]))
        a(V(f"v_add_u32 v{V_XB+s}, {120*KB}, v{V_XA+s}", [V_XA+s], [V_XB+s]))
    a(V(f"v_lshrrev_b32 v{V_T2}, 2, v{V_N}", [V_N], [V_T2]))
    a(V(f"v_bfe_u32 v{V_T3}, v{V_N}, 1, 1", [V_N], [V_T3]))
    a(V(f"v_and_b32 v{V_T4}, 1, v{V_N}", [V_N], [V_T4]))
    a(V(f"v_lshlrev_b32 v{V_T4}, 3, v{V_T4}", [V_T4], [V_T4]))
    a(V(f"v_and_b32 v{V_T5}, 1, v{V_G}", [V_G], [V_T5]))
    a(V(f"v_lshl_add_u32 v{V_T5}, v{V_T5}, 2, v{V_T2}", [V_T5, V_T2], [V_T5]))
    a(V(f"v_lshlrev_b32 v{V_T5}, 1, v{V_T5}", [V_T5], [V_T5]))
    a(S(f"s_lshl_b32 s{S_T1}, s{S_W}, 2", [S_W], [S_T1]))
    a(V(f"v_lshl_add_u32 v{V_T1}, v{V_G}, 3, v{V_T2}", [V_G, V_T2], [V_T1]))
    a(V(f"v_lshl_add_u32 v{V_T1}, v{V_T1}, 8, v{V_T4}", [V_T1, V_T4], [V_T1]))
    for e in range(2):
        a(V(f"v_add3_u32 v{V_T0}, s{S_T1}, v{V_T3}, {2*e}", [V_T3, ('s', S_T1)], [V_T0]))
        a(V(f"v_xor_b32 v{V_T0}, v{V_T0}, v{V_T5}", [V_T0, V_T5], [V_T0]))
        a(V(f"v_lshl_add_u32 v{V_T0}, v{V_T0}, 4, v{V_T1}", [V_T0, V_T1], [V_T0]))
        a(V(f"v_add_u32 v{V_WA+e}, {40*KB}, v{V_T0}", [V_T0], [V_WA+e]))
        a(V(f"v_add_u32 v{V_WB+e}, {96*KB}, v{V_T0}", [V_T0], [V_WB+e]))
    a(V(f"v_lshl_add_u32 v{V_T1}, v{V_G}, 2, v{V_T2}", [V_G, V_T2], [V_T1]))
    n_early = len(o)
    for s in range(4):
        a(V(f"v_add_u32 v{V_KA+s}, s{S_W8K}, v{V_XA+s}", [V_XA+s, ('s', S_W8K)], [V_KA+s]))
    a(V(f"v_lshl_add_u32 v{V_T1}, v{V_T1}, 8, v{V_T4}", [V_T1, V_T4], [V_T1]))
    a(S(f"s_add_u32 s{S_T2}, s{S_W8K}, {64*KB}", [S_W8K], [S_T2]))
    a(V(f"v_add_u32 v{V_T1}, s{S_T2}, v{V_T1}", [V_T1, ('s', S_T2)], [V_T1]))
    a(V(f"v_add_u32 v{V_T3}, s{S_T1}, v{V_T3}", [V_T3, ('s', S_T1)], [V_T3]))
    for lam in range(8):
        a(V(f"v_add_u32 v{V_T0}, {2*lam}, v{V_T3}", [V_T3], [V_T0]))
        a(V(f"v_and_b32 v{V_T0}, 15, v{V_T0}", [V_T0], [V_T0]))
        a(V(f"v_xor_b32 v{V_T0}, v{V_T0}, v{V_T5}", [V_T0, V_T5], [V_T0]))
        a(V(f"v_lshl_add_u32 v{V_VA+lam}, v{V_T0}, 4, v{V_T1}", [V_T0, V_T1], [V_VA+lam]))
    a(V(f"v_xor_b32 v{V_T0}, v{V_N}, v{V_G}", [V_N, V_G], [V_T0]))
    a(V(f"v_lshlrev_b32 v{V_T0}, 4, v{V_T0}", [V_T0], [V_T0]))
    a(V(f"v_lshl_add_u32 v{V_KD}, v{V_G}, 8, v{V_T0}", [V_G, V_T0], [V_KD]))
    for j in range(1, 4):
        a(V(f"v_xor_b32 v{V_KD+j}, {64*j}, v{V_KD}", [V_KD], [V_KD+j]))
    a(V(f"v_lshlrev_b32 v{V_T0}, 1, v{V_G}", [V_G], [V_T0]))
    a(V(f"v_xor_b32 v{V_T0}, v{V_N}, v{V_T0}", [V_N, V_T0], [V_T0]))
    a(V(f"v_lshlrev_b32 v{V_T0}, 4, v{V_T0}", [V_T0], [V_T0]))
    a(V(f"v_lshl_add_u32 v{V_VD}, v{V_G}, 8, v{V_T0}", [V_G, V_T0], [V_VD]))
    a(V(f"v_xor_b32 v{V_VD+1}, 128, v{V_VD}", [V_VD], [V_VD+1]))
    a(V(f"v_lshrrev_b32 v{V_T0}, 1, v{V_G}", [V_G], [V_T0]))
    a(V(f"v_add_u32 v{V_T0}, s{S_T1}, v{V_T0}", [V_T0, ('s', S_T1)], [V_T0]))
    a(V(f"v_xor_b32 v{V_T0}, v{V_T0}, v{V_N}", [V_T0, V_N], [V_T0]))
    a(V(f"v_lshlrev_b32 v{V_T0}, 4, v{V_T0}", [V_T0], [V_T0]))
    a(V(f"v_lshl_add_u32 v{V_T0}, v{V_N}, 8, v{V_T0}", [V_N, V_T0], [V_T0]))
    a(V(f"v_and_b32 v{V_T1}, 1, v{V_G}", [V_G], [V_T1]))
    a(V(f"v_lshl_add_u32 v{V_T0}, v{V_T1}, 3, v{V_T0}", [V_T0, V_T1], [V_T0]))
    a(V(f"v_add_u32 v{V_QW}, {QBUF}, v{V_T0}", [V_T0], [V_QW]))
    a(V(f"v_xor_b32 v{V_QW+1}, 32, v{V_QW}", [V_QW], [V_QW+1]))
    a(V(f"v_lshl_add_u32 v{V_CW}, v{V_LANE}, 4, s{S_W8K}", [V_LANE, ('s', S_W8K)], [V_CW]))
    a(V(f"v_add_u32 v{V_CW+1}, {64*KB}, v{V_CW}", [V_CW], [V_CW+1]))
    a(S(f"s_add_u32 s{S_T0}, s{S_W8K}, {102*KB}", [S_W8K], [S_T0]))
    a(V(f"v_lshl_add_u32 v{V_LW}, v{V_LANE}, 5, s{S_T0}", [V_LANE, ('s', S_T0)], [V_LW]))
    a(S(f"s_mul_i32 s{S_T0}, s{S_B}, 640", [S_B], [S_T0]))
    a(S(f"s_lshl_b32 s{S_T2}, s{S_HQ}, 2", [S_HQ], [S_T2]))
    a(S(f"s_add_u32 s{S_T0}, s{S_T0}, s{S_T2}", [S_T0, S_T2], [S_T0]))
    a(S(f"s_add_u32 s{S_T0}, s{S_T0}, s{S_W}", [S_T0, S_W], [S_T0]))
    a(S(f"s_lshl_b32 s{S_T0}, s{S_T0}, 10", [S_T0], [S_T0]))
    a(V(f"v_lshl_add_u32 v{V_OST}, v{V_LANE}, 4, s{S_T0}", [V_LANE, ('s', S_T0)], [V_OST]))
    a(V(f"v_cmp_eq_u32 vcc, 0, v{V_N}", [V_N], [VCC]))
    a(V(f"v_mov_b32 v{V_T0}, 0x3f803f80", [], [V_T0]))
    for i in range(4):
        a(V(f"v_cndmask_b32 v{V_ONES+i}, 0, v{V_T0}, vcc", [V_T0, VCC], [V_ONES+i]))
    for i in range(20):
        a(V(f"v_mov_b32 v{V_NEGM+i}, 0", [], [V_NEGM+i]))
    return o[:n_early], o[n_early:]

V_QACC = V_VF
def AF(kap):
    return [(100, 120), (128, 148), (208, 156)][kap % 3]
def a_reads(kap):
    u, ks = kap >> 1, kap & 1
    c, s = u >> 1, kap & 3
    xf, wf = AF(kap)
    wb = WU(WSLOT[u], ks)
    xr = []
    for q in range(5):
        xb = XU(c, q)
        reg, base = (V_XA, 0) if xb < 64 * KB else (V_XB, 120 * KB)
        xr.append(dsrd('ds_read_b128', ('v', xf + q * 4), 4, reg + s, xb - base))
    wr = []
    for e in range(2):
        for h in range(2):
            reg, base = (V_WA, 40 * KB) if wb < 96 * KB else (V_WB, 96 * KB)
            wr.append(dsrd('ds_read_b64_tr_b16', ('v', wf + e * 4 + h * 2), 2, reg + e, wb - base + h * 1024))
    return wr[:2] + xr[:1] + wr[2:] + xr[1:]
def a_mfmas(kap):
    o = []
    xf, wf = AF(kap)
    for q in range(5):
        for e in range(2):
            d = ('v', V_QACC + (e * 5 + q) * 4)
            o.append(mfma(d, ('v', wf + e * 4), ('v', xf + q * 4), 0 if kap == 0 else d))
    return o
def lane0(sg, body, lab):
    sg.text(f"s_cmp_lg_u32 s{S_W}, 0"); sg.text(f"s_cbranch_scc1 {lab}")
    sg.text(f"s_mov_b64 s[{S_EX}:{S_EX+1}], exec"); sg.text("s_mov_b64 exec, 1")
    for x in body: sg.text(x)
    sg.text(f"s_mov_b64 exec, s[{S_EX}:{S_EX+1}]")
    sg.text(f"{lab}:")
def phase_a(sg, Q):
    stamp(sg, 1)
    sg.add(barrier(needvm=[('x', 0), ('w', 0)])); Q.mark('B0')
    stamp(sg, 2)
    sg.addall(a_reads(0)); sg.addall(a_reads(1))
    for kap in range(16):
        mf = a_mfmas(kap)
        gaps = [[] for _ in mf]
        nx = kap + 2
        if nx < 16:
            if nx % 2 == 0:
                u = nx >> 1
                need = [('x', u >> 1), ('w', u)]
                while any(it.ins.vmtag in need for it in Q.q):
                    n_ = len(Q.q); weave(sg, Q, [], 1, 0); assert len(Q.q) < n_, (u, Q.q[0].after)
                sg.add(barrier(needvm=need, lg0=False)); Q.mark(f'B{u}')
                if u in (1, 3, 5, 7): stamp(sg, 5 + u // 2, 'A')
            for i, r in enumerate(a_reads(nx)): gaps[i].append(r)
        mf[0].r |= set(R('v', AF(kap)[0], 20) + R('v', AF(kap)[1], 8))
        pos = [1, 5, 9] if kap % 2 == 0 else [3, 7]
        if int(opt.perstep) == 6: pos = [1, 4, 7] if kap % 2 == 0 else [1, 4, 8]
        place(gaps, Q, pos)
        sg.addall(interleave(mf, gaps))
    stamp(sg, 9, 'A')
    fin = []
    for q in range(5):
        for e in range(2):
            b = V_QACC + (e * 5 + q) * 4
            for r in (0, 2):
                fin.append(V(f"v_pk_mul_f32 v[{b+r}:{b+r+1}], v[{b+r}:{b+r+1}], s[{S_T1}:{S_T1+1}]", [b+r, b+r+1], [b+r, b+r+1]))
            fin.append(V(f"v_cvt_pk_bf16_f32 v{b}, v{b}, v{b+1}", [b, b+1], [b]))
            fin.append(V(f"v_cvt_pk_bf16_f32 v{b+1}, v{b+2}, v{b+3}", [b+2, b+3], [b+1]))
            fin.append(dswr('ds_write_b64', V_QW + e, ('v', b), 2, q * 4096))
    sg.add(S(f"s_mov_b32 s{S_T1}, {f2h(QSCALE)}", [], [S_T1]))
    sg.add(S(f"s_mov_b32 s{S_T2}, {f2h(QSCALE)}", [], [S_T2]))
    weave(sg, Q, fin, 3, 15)
    sg.addall(fin)
    sg.add(barrier()); Q.mark('BQ')
    qr = [dsrd('ds_read_b128', AQ(q, s), 4, V_XB + s, QBUF - 120 * KB + q * 4096) for q in range(5) for s in range(4)]
    return qr

def qk(tau):
    i, q = divmod(tau, 5)
    o = []
    for s, t in ([(s, t) for t in range(2) for s in range(4)] if int(opt.chain) else [(s, t) for s in range(4) for t in range(2)]):
        if True:
            d = ('v', V_S + (tau & 1) * 8 + t * 4)
            o.append(mfma(d, ('v', V_KF + (i & 1) * 32 + (t * 4 + s) * 4), AQ(q, s), ('v', V_NEGM + q * 4) if s == 0 else d))
    return o
def pv(tau):
    i, q = divmod(tau, 5)
    p = ('v', V_P + (tau & 1) * 4)
    o = [mfma(AO(lam, q), ('v', V_VF + (i & 1) * 32 + lam * 4), p, AO(lam, q) if i else 0) for lam in range(8)]
    o.insert(0, mfma(('v', V_L + q * 4), ('v', V_ONES), p, ('v', V_L + q * 4) if i else 0))
    return o
def sm(tau):
    b = V_S + (tau & 1) * 8
    p = V_P + (tau & 1) * 4
    e = [T(f"v_exp_f32 v{b+i}, v{b+i}", [b+i], [b+i]) for i in range(8)]
    c = [V(f"v_cvt_pk_bf16_f32 v{p+i}, v{b+2*i}, v{b+2*i+1}", [b+2*i, b+2*i+1], [p+i]) for i in range(4)]
    return e, c
def comb_writes(q):
    o = []
    for jd in range(1, 4):
        for e in range(2):
            u = q * 6 + (jd - 1) * 2 + e
            row = u >> 3
            o.append(dswr('ds_write_b128', V_CW + (row >> 1), AO(2 * jd + e, q), 4, (row & 1) * 32 * KB + (u & 7) * KB, lgtag=('cw', q)))
    return o

def wo_dma(pos, after=None):
    o = []
    for ks in range(4):
        for half in range(2):
            base = (128 * KB if pos < 0 else pos * 32 * KB) + ks * 8 * KB + half * 4 * KB
            if pos < 0:
                pre = [S(f"s_lshl_b32 s{S_SK}, s{S_J}, 17", [S_J], [S_SK])] if ks + half == 0 else []
                h = S_SK
            else: pre, h = [], S_H + pos
            pre += [S(f"s_add_u32 s{S_SO}, s{h}, {ks*32768 + half*16384}", [h], [S_SO]), S(f"s_add_u32 m0, s{S_W1K}, {base}", [S_W1K], [M0])]
            o.append(Item(pre, dma(V_WOD, S_WO, S_SO, 0, ('wo', pos)), after))
    return o
def osib_dma(pos):
    o = []
    for q in range(5):
        pre = [S(f"s_lshr_b32 s{S_SK}, s{S_H+pos}, 5", [S_H+pos], [S_SK])] if q == 0 else []
        pre += [S(f"s_add_u32 s{S_SO}, s{S_SK}, {q*128*KB}", [S_SK], [S_SO]), S(f"s_add_u32 m0, s{S_W5K}, {(140 - 20*pos + q)*KB}", [S_W5K], [M0])]
        o.append(Item(pre, dma(V_OD, S_O, S_SO, 0, ('os', pos), flags=' sc1')))
    return o
def tail_calc():
    o = []; a = o.append
    T0, T1, T2 = 252, 253, 254
    a(V(f"v_lshlrev_b32 v{T0}, 4, v{V_LANE}", [V_LANE], [T0]))
    for jd in range(1, 4):
        a(S(f"s_sub_u32 s{S_T0}, s{S_W}, {jd}", [S_W], [S_T0]))
        a(S(f"s_and_b32 s{S_T0}, s{S_T0}, 3", [S_T0], [S_T0]))
        a(S(f"s_lshl_b32 s{S_T0}, s{S_T0}, 13", [S_T0], [S_T0]))
        a(V(f"v_add_u32 v{V_CR+2*(jd-1)}, s{S_T0}, v{T0}", [T0, ('s', S_T0)], [V_CR+2*(jd-1)]))
        a(V(f"v_add_u32 v{V_CR+2*(jd-1)+1}, {64*KB}, v{V_CR+2*(jd-1)}", [V_CR+2*(jd-1)], [V_CR+2*(jd-1)+1]))
    a(V(f"v_add_u32 v{V_OL}, {96*KB}, v{T0}", [T0], [V_OL]))
    a(V(f"v_add_u32 v{V_OW}, s{S_W5K}, v{V_OL}", [V_OL, ('s', S_W5K)], [V_OW]))
    a(S(f"s_mov_b32 s{S_T0}, {102*KB}", [], [S_T0]))
    a(V(f"v_lshl_add_u32 v{V_LR}, v{V_N}, 5, s{S_T0}", [V_N, ('s', S_T0)], [V_LR]))
    a(S(f"s_add_u32 s{S_T0}, s{S_W8K}, {64*KB}", [S_W8K], [S_T0]))
    for e in range(2):
        a(V(f"v_subrev_u32 v{V_WT+e}, s{S_T0}, v{V_VA+e}", [V_VA+e, ('s', S_T0)], [V_WT+e]))
        a(V(f"v_add_u32 v{V_WT+2+e}, {64*KB}, v{V_WT+e}", [V_WT+e], [V_WT+2+e]))
        a(V(f"v_add_u32 v{V_WT+4+e}, {128*KB}, v{V_WT+e}", [V_WT+e], [V_WT+4+e]))
    a(S(f"s_lshl_b32 s{S_T0}, s{S_J}, 12", [S_J], [S_T0]))
    a(V(f"v_subrev_u32 v{V_OD}, s{S_T0}, v{V_OST}", [V_OST, ('s', S_T0)], [V_OD]))
    a(S(f"s_lshl_b32 s{S_T0}, s{S_B}, 2", [S_B], [S_T0]))
    a(S(f"s_add_u32 s{S_T0}, s{S_T0}, s{S_J}", [S_T0, S_J], [S_T0]))
    a(S(f"s_lshl_b32 s{S_T2}, s{S_T0}, 7", [S_T0], [S_T2]))
    a(S(f"s_add_u32 s{S_T2}, s{S_T2}, 4096", [S_T2], [S_T2]))
    a(V(f"v_and_b32 v{T1}, 7, v{V_LANE}", [V_LANE], [T1]))
    a(V(f"v_lshl_add_u32 v{V_P2}, v{T1}, 4, s{S_T2}", [T1, ('s', S_T2)], [V_P2]))
    a(S(f"s_lshl_b32 s{S_T0}, s{S_T0}, 2", [S_T0], [S_T0]))
    a(S(f"s_add_u32 s{S_T0}, s{S_T0}, s{S_W}", [S_T0, S_W], [S_T0]))
    a(S(f"s_mul_i32 s{S_T0}, s{S_T0}, {5*8*KB}", [S_T0], [S_T0]))
    a(S(f"s_lshl_b32 s{S_T2}, s{S_HKV}, 10", [S_HKV], [S_T2]))
    a(S(f"s_add_u32 s{S_T2}, s{S_T2}, s{S_T0}", [S_T2, S_T0], [S_T2]))
    a(V(f"v_add_u32 v{V_PS}, s{S_T2}, v{T0}", [T0, ('s', S_T2)], [V_PS]))
    a(V(f"v_lshl_add_u32 v{T1}, s{S_HKV}, 3, v{T1}", [T1, ('s', S_HKV)], [T1]))
    a(V(f"v_lshrrev_b32 v{T2}, 3, v{V_LANE}", [V_LANE], [T2]))
    a(V(f"v_lshl_add_u32 v{V_PLD}, v{T1}, 4, s{S_T0}", [T1, ('s', S_T0)], [V_PLD]))
    a(V(f"v_lshl_add_u32 v{V_PLD}, v{T2}, 13, v{V_PLD}", [T2, V_PLD], [V_PLD]))
    a(V(f"v_lshlrev_b32 v{T2}, 14, v{T2}", [T2], [T2]))
    a(V(f"v_and_b32 v{T0}, 15, v{T1}", [T1], [T0]))
    a(V(f"v_lshl_add_u32 v{T2}, v{T0}, 10, v{T2}", [T0, T2], [T2]))
    a(V(f"v_lshrrev_b32 v{T1}, 4, v{T1}", [T1], [T1]))
    a(V(f"v_lshl_add_u32 v{T2}, v{T1}, 3, v{T2}", [T1, T2], [T2]))
    a(S(f"s_mul_i32 s{S_T0}, s{S_B}, 81920", [S_B], [S_T0]))
    a(S(f"s_lshl_b32 s{S_T2}, s{S_J}, 8", [S_J], [S_T2]))
    a(S(f"s_add_u32 s{S_T0}, s{S_T0}, s{S_T2}", [S_T0, S_T2], [S_T0]))
    a(S(f"s_lshl_b32 s{S_T2}, s{S_W}, 6", [S_W], [S_T2]))
    a(S(f"s_add_u32 s{S_T0}, s{S_T0}, s{S_T2}", [S_T0, S_T2], [S_T0]))
    a(V(f"v_add_u32 v{V_OUT}, s{S_T0}, v{T2}", [T2, ('s', S_T0)], [V_OUT]))
    a(V(f"v_cmp_gt_u32 vcc, 40, v{V_LANE}", [V_LANE], [VCC]))
    a(V(f"v_mov_b32 v{T0}, 0x7ff00000", [], [T0]))
    a(V(f"v_cndmask_b32 v{V_PLD}, v{T0}, v{V_PLD}, vcc", [T0, V_PLD, VCC], [V_PLD]))
    a(V(f"v_cndmask_b32 v{V_OUT}, v{T0}, v{V_OUT}, vcc", [T0, V_OUT, VCC], [V_OUT]))
    a(S(f"s_lshl_b32 s{S_T0}, s{S_B}, 3", [S_B], [S_T0]))
    a(S(f"s_add_u32 s{S_T0}, s{S_T0}, s{S_HKV}", [S_T0, S_HKV], [S_T0]))
    a(S(f"s_lshl_b32 s{S_T0}, s{S_T0}, 6", [S_T0], [S_T0]))
    a(V(f"v_and_b32 v{T1}, 3, v{V_LANE}", [V_LANE], [T1]))
    a(V(f"v_lshl_add_u32 v{V_P1}, v{T1}, 4, s{S_T0}", [T1, ('s', S_T0)], [V_P1]))
    for k in range(5): a(S(f"s_mov_b32 s{S_TAB+k}, {k*8192}", [], [S_TAB+k]))
    return o
def wod_calc():
    o = []; a = o.append
    T0, T1 = 252, 253
    a(S(f"s_and_b32 s{S_T0}, s{S_W}, 1", [S_W], [S_T0]))
    a(S(f"s_lshl_b32 s{S_T0}, s{S_T0}, 3", [S_T0], [S_T0]))
    a(V(f"v_lshl_add_u32 v{T0}, v{V_G}, 1, s{S_T0}", [V_G, ('s', S_T0)], [T0]))
    a(V(f"v_xor_b32 v{T0}, v{V_N}, v{T0}", [V_N, T0], [T0]))
    a(S(f"s_lshl_b32 s{S_T0}, s{S_J}, 8", [S_J], [S_T0]))
    a(V(f"v_lshl_add_u32 v{T0}, v{T0}, 4, s{S_T0}", [T0, ('s', S_T0)], [T0]))
    a(V(f"v_lshl_add_u32 v{T1}, s{S_W}, 2, v{V_G}", [V_G, ('s', S_W)], [T1]))
    a(V(f"v_lshl_add_u32 v{V_WOD}, v{T1}, 10, v{T0}", [T0, T1], [V_WOD]))
    return o

def phase_b(sg, Q, qr):
    NT = 8
    calc = wod_calc() + tail_calc()
    sg.addall(qr[:4])
    while any(it.ins.vmtag in (('k', 0, 0), ('k', 0, 1)) for it in Q.q): weave(sg, Q, [], 1, 0)
    sg.addall(k_reads(0)); Q.mark(('kr', 0, 0)); Q.mark(('kr', 0, 1))
    qr = qr[4:]
    for tau in range(-1, 41):
        i, q = divmod(tau, 5) if tau >= 0 else (-1, 4)
        mf = []
        bst = [int(x) for x in opt.bst.split(',')]
        if tau in bst: stamp(sg, 5 + bst.index(tau), 'B')
        if tau + 1 < 40: mf += qk(tau + 1)
        if tau - 1 >= 0: mf += pv(tau - 1)
        ds, marks = [], []
        if tau == -1: ds = qr
        elif tau == 0: ds = v_reads(0); marks = [('vr', 0, 0), ('vr', 0, 1)]
        elif i < NT:
            if q == 2 and i + 1 < NT: ds = k_reads(i + 1)[:4]; marks = [('kr', i + 1, 0)]
            if q == 3 and i + 1 < NT: ds = k_reads(i + 1)[4:]; marks = [('kr', i + 1, 1)]
            if q == 4 and i + 1 < NT: ds = v_reads(i + 1)[:8]; marks = [('vr', i + 1, 0)]
            if q == 0: ds = v_reads(i)[8:]; marks = [('vr', i, 1)]
            if i == NT - 1 and q >= 2: ds = comb_writes(q - 2)
        if tau == 40: ds = comb_writes(3)
        n = len(mf)
        gaps = [[] for _ in range(n)]
        e, c = sm(tau) if 0 <= tau < 40 else ([], [])
        if n == 17:
            epos = [0, 2, 4, 6, 8, 10, 12, 14]; cpos = [3, 7, 11, 15]
            dpos = [1, 3, 5, 7, 9, 11, 13, 15] if len(ds) > 4 else [1, 3, 5, 7]
            vpos = [int(x) for x in opt.vpos.split(',')]
        else:
            epos = list(range(8)); cpos = [min(n - 1, x) for x in (2, 4, 6, 8)]
            dpos = [(k * n) // max(1, len(ds)) for k in range(len(ds))]
            vpos = [1, 5]
        for x, p_ in zip(ds, dpos): gaps[p_].append(x)
        if tau == int(opt.nl_at):
            sg.add(V("v_mov_b32 v9, 0", [], [9]))
            Q.q.insert(0, Item([], vload(('v', V_GC), 2, 9, S_D, None, 0, flags=' sc1', tag='non')))
        if tau == int(opt.nc_at):
            assert not any(it.ins.vmtag == 'non' for it in Q.q)
            sg.add(V(f"v_readfirstlane_b32 s{S_NON}, v{V_GC}", [V_GC], [('s', S_NON)]))
            sg.add(V(f"v_readfirstlane_b32 s{S_NON+1}, v{V_GC+1}", [V_GC+1], [('s', S_NON+1)]))
            sg.add(S(f"s_cmp_eq_u64 s[{S_NON}:{S_NON+1}], 0", [S_NON, S_NON+1], []))
            sg.text("s_cbranch_scc1 L_spin_n"); sg.text("L_back_n:")
        if tau == int(opt.bar_at): sg.add(barrier(lg0=False))
        for x in ds:
            while any(it.ins.vmtag in x.needvm for it in Q.q): weave(sg, Q, [], 1, 0)
        if tau == int(opt.wo_at): assert not calc; Q.push(wo_dma(-1))
        place(gaps, Q, vpos)
        for x, p_ in zip(e, epos): gaps[p_].append(x)
        for x, p_ in zip(c, cpos): gaps[p_].append(x)
        if tau >= int(opt.calc_at) and n == 17:
            for gi in range(17):
                if calc and calc[0].k == 'salu' and not any(y.k == 'salu' for y in gaps[gi]): gaps[gi].insert(0, calc.pop(0))
                cost = sum(8 if y.k == 'trans' else 0 if y.k == 'salu' else 4 for y in gaps[gi])
                while calc and calc[0].k != 'salu' and cost <= 4: gaps[gi].append(calc.pop(0)); cost += 4
        sg.addall(interleave(mf, gaps))
        for m in marks: Q.mark(m)

def poll(sg, lab, vaddr):
    sg.text(f"s_mov_b32 s{S_SPIN}, {opt.spin}")
    sg.text(f"{lab}:")
    sg.text(f"buffer_load_dwordx2 v[250:251], v{vaddr}, s[{S_C}:{S_C+3}], 0 offen sc1")
    sg.text(f"s_sub_u32 s{S_SPIN}, s{S_SPIN}, 1")
    sg.text("s_waitcnt vmcnt(0)")
    sg.text(f"v_cmp_ne_u64 vcc, s[{S_NON}:{S_NON+1}], v[250:251]")
    sg.text(f"s_cmp_eq_u32 s{S_SPIN}, 0")
    sg.text(f"s_cbranch_scc1 {lab}_done")
    sg.text("s_nop 2")
    sg.text(f"s_cbranch_vccnz {lab}")
    sg.text(f"{lab}_done:")
    sg.vm = []
def raise_flag(sg, calc, lab):
    lane0(sg, calc + [f"v_mov_b32 v9, s{S_T0}", f"v_mov_b32 v250, s{S_NON}", f"v_mov_b32 v251, s{S_NON+1}",
                      f"buffer_store_dwordx2 v[250:251], v9, s[{S_C}:{S_C+3}], 0 offen sc1"], lab)
WOF = A_Q
RES = 100
def combine(sg, Q):
    OWN, PR, LS = 76, 100, V_L
    def own(q): return [76, 84, 92, 220, 44][q]
    for q in range(5):
        sg.add(dswr('ds_write_b32', V_LW, ('v', V_L + q * 4), 1, q * 4))
    sg.addall(comb_writes(4))
    for q in range(5):
        for e in range(2):
            for r in range(4):
                a_ = AO(e, q)[1] + r
                sg.add(V(f"v_accvgpr_read_b32 v{own(q) + e*4 + r}, a{a_}", [('a', a_)], [own(q) + e*4 + r]))
    assert not Q.q
    sg.add(barrier(needvm=[('wo', -1)]))
    stamp(sg, 5)
    for src in range(4):
        sg.add(dsrd('ds_read_b128', ('v', LS + src * 4), 4, V_LR, src * 8 * KB))
        sg.add(dsrd('ds_read_b32', ('v', LS + 16 + src), 1, V_LR, src * 8 * KB + 16))
    def preads(q):
        o = []
        for jd in range(1, 4):
            for e in range(2):
                u = q * 6 + (jd - 1) * 2 + e; row = u >> 3
                o.append(dsrd('ds_read_b128', ('v', PR + u * 4), 4, V_CR + 2 * (jd - 1) + (row >> 1), (row & 1) * 32 * KB + (u & 7) * KB))
        return o
    wor = [dsrd('ds_read_b64_tr_b16', ('a', WOF + (ks * 2 + e) * 4 + h * 2), 2, V_WT + 4 + e, ks * 8 * KB + h * 4096) for ks in range(4) for e in range(2) for h in range(2)]
    sg.addall(preads(0))
    def lreg(src, q): return LS + src * 4 + q if q < 4 else LS + 16 + src
    w = []
    for q in range(5):
        d = V_T0 + q
        w.append(V(f"v_add_f32 v{d}, v{lreg(0,q)}, v{lreg(1,q)}", [lreg(0,q), lreg(1,q)], [d]))
        w.append(V(f"v_add_f32 v{lreg(2,q)}, v{lreg(2,q)}, v{lreg(3,q)}", [lreg(2,q), lreg(3,q)], [lreg(2,q)]))
        w.append(V(f"v_add_f32 v{d}, v{d}, v{lreg(2,q)}", [d, lreg(2,q)], [d]))
    w.append(V(f"v_min3_f32 v{LS}, v{V_T0}, v{V_T0+1}, v{V_T0+2}", [V_T0, V_T0+1, V_T0+2], [LS]))
    w.append(V(f"v_min3_f32 v{LS}, v{LS}, v{V_T0+3}, v{V_T0+4}", [LS, V_T0+3, V_T0+4], [LS]))
    w.append(V(f"v_add_f32 v{LS+1}, v{V_T0}, v{V_T0+1}", [V_T0, V_T0+1], [LS+1]))
    w.append(V(f"v_add_f32 v{LS+2}, v{V_T0+2}, v{V_T0+3}", [V_T0+2, V_T0+3], [LS+2]))
    w.append(V(f"v_add_f32 v{LS+1}, v{LS+1}, v{V_T0+4}", [LS+1, V_T0+4], [LS+1]))
    w.append(V(f"v_add_f32 v{LS+1}, v{LS+1}, v{LS+2}", [LS+1, LS+2], [LS+1]))
    w.append(V(f"v_cmp_nle_f32 vcc, {f2h(2.0**int(opt.lo_exp))}, v{LS}", [LS], [VCC]))
    w.append(S(f"s_mov_b64 s[{S_EX}:{S_EX+1}], vcc", [VCC], [S_EX, S_EX+1]))
    w.append(V(f"v_cmp_nge_f32 vcc, {f2h(2.0**int(opt.hi_exp))}, v{LS+1}", [LS+1], [VCC]))
    w.append(S(f"s_or_b64 vcc, vcc, s[{S_EX}:{S_EX+1}]", [VCC, S_EX, S_EX+1], [VCC]))
    sg.addall(preads(1))
    sg.addall(w)
    sg.text("s_cbranch_vccnz L_redo"); sg.text("L_back_redo:")
    sg.addall(preads(2))
    for q in range(5):
        d = V_T0 + q
        sg.add(T(f"v_rcp_f32 v{d}, v{d}", [d], [d]))
    for q in range(5):
        if q == 0: sg.addall(preads(3))
        if q == 1: sg.addall(preads(4))
        if q == 2: sg.addall(wor[:8])
        if q == 3: sg.addall(wor[8:])
        for e in range(2):
            o_ = own(q) + e * 4
            for jd in range(1, 4):
                p_ = PR + (q * 6 + (jd - 1) * 2 + e) * 4
                for r in (0, 2):
                    sg.add(V(f"v_pk_add_f32 v[{o_+r}:{o_+r+1}], v[{o_+r}:{o_+r+1}], v[{p_+r}:{p_+r+1}]", [o_+r, o_+r+1, p_+r, p_+r+1], [o_+r, o_+r+1]))
        o_ = own(q)
        ri = V_T0 + (q & ~1); sel = "op_sel:[0,1] op_sel_hi:[1,1]" if q & 1 else "op_sel:[0,0] op_sel_hi:[1,0]"
        for r in range(0, 8, 2):
            sg.add(V(f"v_pk_mul_f32 v[{o_+r}:{o_+r+1}], v[{o_+r}:{o_+r+1}], v[{ri}:{ri+1}] {sel}", [o_+r, o_+r+1, V_T0+q], [o_+r, o_+r+1]))
        res = RES + 4 * q
        for r in range(4):
            sg.add(V(f"v_cvt_pk_bf16_f32 v{res+r}, v{o_+2*r}, v{o_+2*r+1}", [o_+2*r, o_+2*r+1], [res+r]))
        sg.add(S(f"s_mov_b32 s{S_SO}, {q*128*KB}", [], [S_SO]))
        sg.add(vstore(('v', res), 4, V_OST, S_O, S_SO, 0, flags=' sc1', tag='ost'))
    stamp(sg, 6)

def phase_c(sg, Q):
    a = sg.add
    ACC = 164
    a(barrier())
    for q in range(5): a(dswr('ds_write_b128', V_OW, ('v', RES + 4 * q), 4, q * KB))
    Q.push(wo_dma(0) + wo_dma(1) + wo_dma(2))
    weave(sg, Q, [], int(opt.shadow), 0)
    a(barrier(needvm=['ost']))
    stamp(sg, 7)
    raise_flag(sg, [f"s_lshl_b32 s{S_T0}, s{S_B}, 5", f"s_add_u32 s{S_T0}, s{S_T0}, s{S_HQ}", f"s_lshl_b32 s{S_T0}, s{S_T0}, 4"], "L_sig1")
    def CF(k): return [(120, 140), (44, 64), (208, 148)][k % 3]
    def c_reads(k):
        pos, ks = divmod(k, 4); pos -= 1
        xf, wf = CF(k)
        ob = 0 if pos < 0 else (44 - 20 * pos) * KB
        xr = [dsrd('ds_read_b128', ('v', xf + q * 4), 4, V_OL, ob + (ks * 5 + q) * KB) for q in range(5)]
        if pos < 0: return xr
        wb = (pos * 4 + ks) * 8 * KB
        wr = [dsrd('ds_read_b64_tr_b16', ('v', wf + e * 4 + h * 2), 2, V_WT + (2 if wb >= 64 * KB else 0) + e, (wb % (64 * KB)) + h * 4096) for e in range(2) for h in range(2)]
        return wr[:2] + xr[:1] + wr[2:] + xr[1:]
    def c_mfmas(k):
        xf, wf = CF(k)
        ff = 'v'
        if k < 4: wf, ff = WOF + k * 8, 'a'
        o = []
        for q in range(5):
            for e in range(2):
                d = ('v', ACC + (q * 2 + e) * 4)
                o.append(mfma(d, (ff, wf + e * 4), ('v', xf + q * 4), 0 if k == 0 else d))
        o[0].r |= set(R('v', xf, 20) + R(ff, wf, 8))
        return o
    def step(k, nx, pos=()):
        mf = c_mfmas(k); gaps = [[] for _ in mf]
        if nx is not None:
            for i, r in enumerate(c_reads(nx)): gaps[i].append(r)
        place(gaps, Q, pos)
        sg.addall(interleave(mf, gaps))
    sg.addall(c_reads(0)); sg.addall(c_reads(1))
    step(0, 2, [1, 5, 9]); step(1, 3, [3, 7]); step(2, None, [1, 5, 9]); step(3, None, [3, 7])
    weave(sg, Q, [], len(Q.q), 0)
    poll(sg, "L_poll1", V_P1)
    stamp(sg, 8)
    Q.push(osib_dma(0) + osib_dma(1))
    weave(sg, Q, [], 10, 0)
    a(barrier(needvm=[('os', 0)]))
    Q.push(osib_dma(2))
    sg.addall(c_reads(4)); sg.addall(c_reads(5))
    for k in range(4, 16):
        nx = k + 2 if k + 2 < 16 else None
        if nx in (8, 12):
            assert not Q.q or nx == 8
            a(barrier(needvm=[('os', nx // 4 - 1)], lg0=False))
        step(k, nx, [1, 5, 9] if k % 2 == 0 else [3, 7])
    stamp(sg, 9)
    for q in range(5):
        b = ACC + q * 8
        for r in range(4):
            a(V(f"v_cvt_pk_bf16_f32 v{b+r}, v{b+2*r}, v{b+2*r+1}", [b+2*r, b+2*r+1], [b+r]))
        a(vstore(('v', b), 4, V_PS, S_WT, S_TAB + q, 0, flags=' sc1', tag='pst'))
    a(barrier(needvm=['pst'], lg0=False))
    stamp(sg, 5, '2')
    raise_flag(sg, [f"s_lshl_b32 s{S_T0}, s{S_B}, 2", f"s_add_u32 s{S_T0}, s{S_T0}, s{S_J}", f"s_lshl_b32 s{S_T0}, s{S_T0}, 3", f"s_add_u32 s{S_T0}, s{S_T0}, s{S_HKV}",
                    f"s_lshl_b32 s{S_T0}, s{S_T0}, 4", f"s_add_u32 s{S_T0}, s{S_T0}, 4096"], "L_sig2")
    a(S(f"s_mov_b32 s{S_SO}, 4096", [], [S_SO]))
    a(S(f"s_mov_b32 s{S_T1}, 0xffff0000", [], [S_T1]))
    poll(sg, "L_poll2", V_P2)
    stamp(sg, 6, '2')
    PB, SM, U = 100, 140, 148
    for h in range(8):
        a(vload(('v', PB + 4 * h), 4, V_PLD, S_WT, S_SO if h >= 4 else None, (h & 3) * 1024, flags=' sc1'))
    for h in range(8):
        d = SM if h == 0 else U
        for r in range(4):
            a(V(f"v_lshlrev_b32 v{d+2*r}, 16, v{PB+4*h+r}", [PB+4*h+r], [d+2*r]))
            a(V(f"v_and_b32 v{d+2*r+1}, s{S_T1}, v{PB+4*h+r}", [PB+4*h+r], [d+2*r+1]))
        if h:
            for r in range(0, 8, 2):
                a(V(f"v_pk_add_f32 v[{SM+r}:{SM+r+1}], v[{SM+r}:{SM+r+1}], v[{U+r}:{U+r+1}]", [SM+r, SM+r+1, U+r, U+r+1], [SM+r, SM+r+1]))
    for r in range(4):
        a(V(f"v_cvt_pk_bf16_f32 v{SM+r}, v{SM+2*r}, v{SM+2*r+1}", [SM+2*r, SM+2*r+1], [SM+r]))
    a(vstore(('v', SM), 2, V_OUT, S_OUT, None, 0))
    a(vstore(('v', SM + 2), 2, V_OUT, S_OUT, None, 32))

def out_of_line():
    t = []
    t += ["L_spin_n:", f"s_mov_b32 s{S_SPIN}, {opt.spin}", "L_spin_n1:",
          f"buffer_load_dwordx2 v[{V_GC}:{V_GC+1}], v9, s[{S_D}:{S_D+3}], 0 offen sc1", f"s_sub_u32 s{S_SPIN}, s{S_SPIN}, 1", "s_waitcnt vmcnt(0)",
          f"v_readfirstlane_b32 s{S_NON}, v{V_GC}", f"v_readfirstlane_b32 s{S_NON+1}, v{V_GC+1}", f"s_cmp_eq_u32 s{S_SPIN}, 0", "s_cbranch_scc1 L_back_n", "s_nop 2",
          f"s_cmp_eq_u64 s[{S_NON}:{S_NON+1}], 0", "s_cbranch_scc1 L_spin_n1", "s_branch L_back_n"]
    t += ["L_redo:", f"s_cmp_lg_u32 s{S_REDO}, 0", "s_cbranch_scc1 L_back_redo", f"s_mov_b32 s{S_REDO}, 1",
          "s_waitcnt vmcnt(0) lgkmcnt(0)", "s_barrier"]
    sg = Seg()
    p1 = prologue1()
    a = sg.add
    a(V(f"v_lshl_add_u32 v{V_T0}, s{S_W}, 2, v{V_G}", [V_G], [V_T0]))
    a(V(f"v_xor_b32 v{V_T1}, v{V_N}, v{V_T0}", [V_N, V_T0], [V_T1]))
    a(V(f"v_lshlrev_b32 v{V_T1}, 4, v{V_T1}", [V_T1], [V_T1]))
    a(V(f"v_lshl_add_u32 v{V_XD}, v{V_T0}, 10, v{V_T1}", [V_T0, V_T1], [V_XD]))
    a(S(f"s_and_b32 s{S_T0}, s{S_W}, 2", [S_W], [S_T0]))
    a(S(f"s_lshl_b32 s{S_T0}, s{S_T0}, 2", [S_T0], [S_T0]))
    a(V(f"v_lshl_add_u32 v{V_T1}, v{V_G}, 1, s{S_T0}", [V_G], [V_T1]))
    a(V(f"v_xor_b32 v{V_T1}, v{V_N}, v{V_T1}", [V_N, V_T1], [V_T1]))
    a(V(f"v_lshlrev_b32 v{V_T1}, 4, v{V_T1}", [V_T1], [V_T1]))
    a(V(f"v_lshl_add_u32 v{V_WD}, v{V_T0}, 13, v{V_T1}", [V_T0, V_T1], [V_WD]))
    t += sg.out + ["s_nop 4", "s_branch L_restart"]
    sg = Seg(); a = sg.add
    sg.text("L_max:")
    sg.text(f"s_mov_b32 s{S_SPIN}, m0")
    sg.drain()
    sg.text("s_barrier")
    MX, KF, AD = 76, V_VF, 84
    for q in range(5): a(V(f"v_mov_b32 v{MX+q}, 0xff800000", [], [MX+q]))
    for s in range(4): a(V(f"v_add_u32 v{AD+s}, {96*KB}, v{V_KA+s}", [V_KA+s], [AD+s]))
    a(S(f"s_mov_b32 s{S_T2}, 0", [], [S_T2]))
    sg.text("L_max_loop:"); sg.reset_hist()
    for j in range(8):
        if j % 4 == 0:
            a(S(f"s_add_u32 s{S_T1}, s{S_T2}, {(j>>2)*4096}", [S_T2], [S_T1]))
            a(S(f"s_add_u32 m0, s{S_W8K}, {96*KB + (j>>2)*4096}", [S_W8K], [M0]))
        a(dma(V_KD + (j & 3), S_K, S_T1, 1024 * (j & 3), 'mk'))
    for t_ in range(2):
        for s in range(4):
            a(dsrd('ds_read_b128', ('v', KF + (t_ * 4 + s) * 4), 4, AD + s, t_ * 4096, needvm=['mk']))
    for q in range(5):
        for t_ in range(2):
            d = ('v', 88 + t_ * 4)
            for s in range(4): a(mfma(d, ('v', KF + (t_ * 4 + s) * 4), AQ(q, s), 0 if s == 0 else d))
        for k in range(4):
            a(V(f"v_max3_f32 v{MX+q}, v{MX+q}, v{88+2*k}, v{89+2*k}", [MX+q, 88+2*k, 89+2*k], [MX+q]))
    sg.drain()
    a(S(f"s_add_u32 s{S_T2}, s{S_T2}, 8192", [S_T2], [S_T2]))
    sg.text(f"s_cmp_lt_u32 s{S_T2}, 65536"); sg.text("s_nop 4"); sg.text("s_cbranch_scc1 L_max_loop")
    sg.text("s_barrier")
    a(S(f"s_mul_i32 s{S_T0}, s{S_W}, 1280", [S_W], [S_T0]))
    a(S(f"s_add_u32 s{S_T0}, s{S_T0}, {96*KB}", [S_T0], [S_T0]))
    a(V(f"v_lshl_add_u32 v{AD}, v{V_LANE}, 2, s{S_T0}", [V_LANE], [AD]))
    a(S(f"s_mov_b32 s{S_T0}, {96*KB}", [], [S_T0]))
    a(V(f"v_lshl_add_u32 v{AD+1}, v{V_N}, 2, s{S_T0}", [V_N], [AD+1]))
    for q in range(5): a(dswr('ds_write_b32', AD, ('v', MX + q), 1, q * 256))
    a(barrier())
    for q in range(5):
        for k in range(16):
            a(dsrd('ds_read_b32', ('v', KF + k), 1, AD + 1, (k >> 2) * 1280 + q * 256 + (k & 3) * 64))
        for k in range(8):
            a(V(f"v_max3_f32 v{MX+q}, v{MX+q}, v{KF+2*k}, v{KF+2*k+1}", [MX+q, KF+2*k, KF+2*k+1], [MX+q]))
        for r in range(4):
            a(V(f"v_sub_f32 v{V_NEGM+q*4+r}, 0, v{MX+q}", [MX+q], [V_NEGM+q*4+r]))
    sg.drain()
    sg.text("s_barrier"); sg.text(f"s_mov_b32 m0, s{S_SPIN}"); sg.text("s_nop 4"); sg.text("s_branch L_back_max")
    return t + sg.out

def stamp_out(sg, n):
    if not opt.stamps: return
    stamp(sg, n - 1)
    t = ["s_load_dwordx2 s[4:5], s[0:1], 56", "s_waitcnt lgkmcnt(0)", f"s_add_u32 s4, s4, {16<<20}", "s_addc_u32 s5, s5, 0", "s_and_b32 s5, s5, 0xffff",
         "s_mov_b32 s6, 0x100000", "s_mov_b32 s7, 0x20000", "s_lshl_b32 s8, s2, 2", "s_add_u32 s8, s8, s32", "s_lshl_b32 s8, s8, 6", "v_mov_b32 v2, s8"]
    for i in range(n):
        t += [f"v_mov_b32 v3, s{3 if i == 0 else 76+2*i}", f"buffer_store_dword v3, v2, s[4:7], 0 offen offset:{4*i}"]
    for x in t: sg.text(x)

def kernel():
    sg = Seg()
    sg.text(NAME + "_kernel:")
    sg.text("s_cmp_ge_u32 s2, 256")
    sg.text("s_cbranch_scc1 L_end")
    if opt.stamps:
        stamp(sg, 0)
    p1 = prologue1()
    sg.addall(p1[:2])
    if int(opt.cpf):
        for x in ["s_getpc_b64 s[94:95]", "L_pc:", "s_lshr_b32 s3, s2, 3", "v_lshrrev_b32 v8, 6, v0", "v_and_b32 v9, 1, v0", "v_lshl_add_u32 v8, v8, 1, v9",
                  "v_lshl_add_u32 v8, s3, 3, v8", "v_lshlrev_b32 v8, 7, v8", "v_min_u32 v8, (L_code_end - L_pc - 4) & 0xffffff80, v8", "global_load_dword v255, v8, s[94:95]"]: sg.text(x)
    sg.addall(p1[2:])
    if opt.stamps:
        sg.text("s_mov_b32 s3, s76")
        for i in range(1, NST): sg.text(f"s_mov_b32 s{76+2*i}, 0") if 76 + 2*i < 92 else None
    p2 = prologue2()
    Q = Queue()
    first = x_dma(0) + w_dma(0)
    sg.addall(restart_setup())
    Q.push(first)
    weave(sg, Q, [], 9, 0)
    sg.addall(p2)
    sg.text("s_cmp_lg_u32 s2, 0"); sg.text("s_cbranch_scc1 L_nocz")
    lane0(sg, ["v_mov_b32 v9, 0", f"buffer_load_dwordx2 v[250:251], v9, s[{S_D}:{S_D+3}], 0 offen sc1", f"s_memrealtime s[{S_NON}:{S_NON+1}]", "s_waitcnt vmcnt(0) lgkmcnt(0)",
               "v_or_b32 v250, v250, v251", "v_cmp_eq_u32 vcc, 0, v250", f"v_mov_b32 v250, s{S_NON}", f"v_mov_b32 v251, s{S_NON+1}", "s_nop 1", "s_and_b64 exec, exec, vcc",
               "s_cbranch_execz L_nocz2", f"buffer_store_dwordx2 v[250:251], v9, s[{S_D}:{S_D+3}], 0 offen sc1", "L_nocz2:"], "L_nocz")
    sg.text("s_branch L_first")
    sg.text("L_restart:")
    s2 = Seg(); s2.addall(restart_setup()); Q2 = Queue(); Q2.push(x_dma(0) + w_dma(0)); weave(s2, Q2, [], 9, 0)
    for x in s2.out: sg.text(x)
    sg.text("L_first:")
    early, late = prologue3()
    early = early + late
    def BB(u): return f"B{u + 1}"
    Q.push(w_dma(1) + x_dma(1) + w_dma(2) + w_dma(3) + x_dma(2) + w_dma(4) + x_dma(3) + w_dma(5, 'B2') + w_dma(6, 'B3') + w_dma(7, 'B4')
           + kv_dma('k', 0, 'B5') + kv_dma('v', 0, 'B6') + kv_dma('k', 1, 'BQ') + kv_dma('v', 1, 'BQ'))
    for i in range(2, 8):
        if not int(opt.nodma): Q.push(kv_dma('k', i) + kv_dma('v', i))
    n0 = int(opt.n0) - 9
    weave(sg, Q, early, n0, (len(early) + n0 - 1) // n0)
    sg.addall(early)
    qr = phase_a(sg, Q)
    sg.addall(qr[:0])
    stamp(sg, 3)
    sg.text(f"s_cmp_eq_u32 s{S_REDO}, 0"); sg.text("s_cbranch_scc1 L_back_max")
    s2 = Seg(); s2.addall(qr)
    for x in s2.out: sg.text(x)
    sg.text("s_branch L_max")
    sg.text("L_back_max:")
    phase_b(sg, Q, qr)
    stamp(sg, 4)
    combine(sg, Q)
    phase_c(sg, Q)
    sg.text("L_fin:")
    stamp_out(sg, 11)
    sg.text("L_end:")
    sg.text("s_endpgm")
    return sg.out + ['L_code_end:'] + out_of_line()

def report_kernel():
    idx, mode = opt.report.split(',')
    t = ["report_kernel:", "s_cmp_ge_u32 s2, 1", "s_cbranch_scc1 L3_end", "s_load_dwordx2 s[4:5], s[0:1], 56", "s_waitcnt lgkmcnt(0)",
         f"s_add_u32 s4, s4, {16<<20}", "s_addc_u32 s5, s5, 0", "s_and_b32 s5, s5, 0xffff", "s_mov_b32 s6, 0x100000", "s_mov_b32 s7, 0x20000",
         "v_lshlrev_b32 v1, 8, v0", f"buffer_load_dword v2, v1, s[4:7], 0 offen offset:{4*int(idx)}", "buffer_load_dword v3, v1, s[4:7], 0 offen",
         "v_mov_b32 v4, 0", "v_mov_b32 v5, 0", "v_mov_b32 v6, -1", "ds_write_b32 v4, v5", "ds_write_b32 v4, v6 offset:8", "s_waitcnt vmcnt(0) lgkmcnt(0)", "s_barrier",
         "ds_min_u32 v4, v3 offset:8", "s_waitcnt lgkmcnt(0)", "s_barrier", "ds_read_b32 v6, v4 offset:8", "s_waitcnt lgkmcnt(0)", "v_sub_u32 v2, v2, v6",
         "v_lshrrev_b32 v7, 3, v0", "v_mul_u32_u24 v7, 52, v7", "v_lshrrev_b32 v7, 8, v7", "v_and_b32 v8, 1, v0", "v_sub_u32 v8, 6, v8", "v_cmp_lt_u32 vcc, v7, v8",
         "v_min_u32 v2, 10000, v2",
         ("ds_add_u32 v4, v2" if mode == 'mean' else "ds_max_u32 v4, v2"), "s_waitcnt lgkmcnt(0)", "s_barrier", "ds_read_b32 v6, v4", "s_memrealtime s[12:13]", "s_waitcnt lgkmcnt(0)",
         "v_readfirstlane_b32 s10, v6", "s_nop 4"]
    if mode == 'mean': t += ["s_mul_i32 s10, s10, 10", "s_lshr_b32 s10, s10, 8"]
    elif mode == 'max': t += ["s_mul_i32 s10, s10, 10"]
    else: t += ["s_mov_b32 s10, 0"]
    t += ["L3_spin:", "s_memrealtime s[14:15]", "s_waitcnt lgkmcnt(0)", "s_sub_u32 s14, s14, s12",
          "s_cmp_lt_u32 s14, s10", "s_cbranch_scc1 L3_spin", "L3_end:", "s_endpgm"]
    return t

def build():
    def fmt(l): return "\n".join(x if x.endswith(':') else "    " + x for x in l)
    nm = NAME + "_kernel"
    s = "; @launch grid=(256,1,1) block=(256,1,1) lds=163840\n"
    if opt.report:
        s = f"; @launch kernel={nm} grid=(256,1,1) block=(256,1,1) lds=163840\n; @launch kernel=report_kernel grid=(1,1,1) block=(256,1,1) lds=64\n"
    s += '.amdgcn_target "amdgcn-amd-amdhsa--gfx950"\n.text\n'
    s += f".globl {nm}\n.p2align 8\n.type {nm},@function\n" + fmt(kernel()) + "\n"
    if opt.report: s += ".globl report_kernel\n.p2align 8\n.type report_kernel,@function\n" + fmt(report_kernel()) + "\n"
    s += f""".section .rodata,"a"
.p2align 6
.amdhsa_kernel {nm}
  .amdhsa_next_free_vgpr 512
  .amdhsa_next_free_sgpr 102
  .amdhsa_accum_offset 256
  .amdhsa_group_segment_fixed_size 0
  .amdhsa_kernarg_size 64
  .amdhsa_user_sgpr_count 2
  .amdhsa_user_sgpr_kernarg_segment_ptr 1
  .amdhsa_system_sgpr_workgroup_id_x 1
  .amdhsa_float_denorm_mode_32 3
.end_amdhsa_kernel
"""
    if opt.report:
        s += """.p2align 6
.amdhsa_kernel report_kernel
  .amdhsa_next_free_vgpr 32
  .amdhsa_next_free_sgpr 32
  .amdhsa_accum_offset 32
  .amdhsa_group_segment_fixed_size 0
  .amdhsa_kernarg_size 64
  .amdhsa_user_sgpr_count 2
  .amdhsa_user_sgpr_kernarg_segment_ptr 1
  .amdhsa_system_sgpr_workgroup_id_x 1
.end_amdhsa_kernel
"""
    return s

if __name__ == '__main__':
    out = sys.argv[1] if len(sys.argv) > 1 else 'cdna_kernels/' + NAME + '.s'
    for a_ in sys.argv[2:]:
        k, v = a_.split('=', 1)
        setattr(opt, k, (' ' + v) if k.endswith('flags') and v else v)
    txt = build()
    open(out, 'w').write(txt)
```

```python
import sys, struct
from dsl import *

KB = 1024
NAME = 'standalone__gqa_block_cached__near_ridge'
def f2h(x): return hex(struct.unpack('<I', struct.pack('<f', x))[0])
QSCALE = 1.4426950408889634 / (128 ** 0.5)
WS_WO = 8 << 20
WS_CT = 12 << 20

class Opt:
    stamps = ''
    report = ''
    kv_flags = ''
    a_flags = ''
    n0 = 26
    warm = 1
    perstep = 5
    lo_exp = -40
    hi_exp = 40
    spin = 300000
    rt_at = 5
    bar_at = 12
    nodma = 0
    p1w = 0
    p2w = 0
    pollk = '19,29,39'
    dyn2 = 1
    qmaj = 1
    tch_at = 27
    even_at = 15
    pdepth = 1
    kvo = 4
    finw = 0
    alim = 10
    cpf = 1
    chain = 1
    wo_at = 32
    calc_at = 16
    nl_at = 8
    nc_at = 13
    cw = 8
    shadow = 8
    bst = '0,5,10,15,20'
    no_rt = 0
    clk = 'r'
    lg0 = 0
    vpos = '1,5,9,13'
    rot_kv = 1
    rot_a = 2
    rot_c = 1
    gl_at = 29
    gc_at = 33
opt = Opt()

S_X, S_WQ, S_K, S_V, S_O, S_WO, S_WT, S_WL, S_C, S_D, S_OUT = 4, 8, 12, 16, 20, 24, 28, 52, 56, 60, 64
S_W, S_B, S_HKV, S_HQ = 32, 33, 34, 35
S_W1K, S_W8K, S_SO, S_T0, S_T1, S_T2, S_SK, S_SV = 36, 37, 38, 39, 40, 41, 42, 43
S_TAB = 44
S_REDO, S_MT, S_NT, S_VALID, S_RT, S_SPIN = 68, 69, 70, 71, 72, 73
S_EX = 74
S_F1, S_F2, S_G1, S_G2 = 100, 101, 72, 51
S_GM = 70
S_J_UNUSED = 3
S_P = 76
S_ST = 80
V_LANE, V_N, V_G, V_T0, V_T1, V_T2, V_T3, V_T4, V_T5 = 1, 2, 3, 4, 5, 6, 7, 8, 9
V_KA, V_VA, V_KD, V_VD = 10, 14, 22, 26
V_OST, V_CW, V_LW = 28, 29, 31
V_ONES, V_NEGM, V_L, V_S, V_P, V_KF, V_VF = 32, 36, 56, 76, 92, 100, 164
V_XA, V_XB, V_WA, V_WB, V_XD, V_WD, V_QW = 228, 232, 236, 238, 240, 241, 242
V_GC = 250
S_NON = 96
V_CR, V_LR, V_WOD, V_WT, V_OL, V_OW, V_OD, V_PS, V_PLD, V_OUT, V_P1, V_P2 = 228, 234, 235, 236, 242, 243, 244, 245, 246, 247, 248, 249
V_TCH = 64
S_H = 52
S_W5K = 55
S_J = 69
A_O, A_Q = 0, 160
V_OWN = [132, 140, 148, 156, 56]
A_KF1, A_L = 120, 240
def AO(lam, q):
    if lam < 2: return ('v', V_OWN[q] + 4 * lam)
    return ('a', A_O + 4 * (q * 6 + lam - 2))
def KF(i, k): return ('v', V_KF + 4 * k) if i % 2 == 0 else ('a', A_KF1 + 4 * k)
def LA(q): return ('a', A_L + 4 * q) if q < 4 else ('a', 152)
def AQ(q, s): return ('a', A_Q + 4 * (q * 4 + s))

def XU(c, q):
    if c == 0: return q * 4 * KB
    if c == 1: return 20 * KB + q * 4 * KB
    if c == 2: return 128 * KB + q * 4 * KB
    return [120, 124, 148, 152, 156][q] * KB
def WU(slot, ks):
    return {0: [40, 48], 1: [56, 96], 2: [104, 112], 3: [64, 72], 4: [80, 88]}[slot][ks] * KB
WSLOT = [0, 1, 2, 3, 4, 0, 1, 2]
QBUF = 128 * KB

def V(t, r=(), w=()):
    return valu(t, r=[('v', x) if isinstance(x, int) else x for x in r], w=[('v', x) if isinstance(x, int) else x for x in w])
def T(t, r=(), w=()):
    return valu(t, r=[('v', x) for x in r], w=[('v', x) for x in w], trans=True)
def S(t, r=(), w=()):
    return salu(t, r=[('s', x) if isinstance(x, int) else x for x in r], w=[('s', x) if isinstance(x, int) else x for x in w])
M0 = ('m0', 0)
VCC = ('vcc', 0)
def flat(l): return [x for y in l for x in y]

def srd(dst, plo, add_s=None, add_imm=0, size=0):
    o = []
    if add_s is not None:
        o.append(S(f"s_add_u32 s{dst}, s{plo}, s{add_s}", [plo, add_s], [dst]))
        o.append(S(f"s_addc_u32 s{dst+1}, s{plo+1}, 0", [plo+1], [dst+1]))
        o.append(S(f"s_and_b32 s{dst+1}, s{dst+1}, 0xffff", [dst+1], [dst+1]))
    elif add_imm:
        o.append(S(f"s_add_u32 s{dst}, s{plo}, {add_imm}", [plo], [dst]))
        o.append(S(f"s_addc_u32 s{dst+1}, s{plo+1}, 0", [plo+1], [dst+1]))
        o.append(S(f"s_and_b32 s{dst+1}, s{dst+1}, 0xffff", [dst+1], [dst+1]))
    else:
        o.append(S(f"s_mov_b32 s{dst}, s{plo}", [plo], [dst]))
        o.append(S(f"s_and_b32 s{dst+1}, s{plo+1}, 0xffff", [plo+1], [dst+1]))
    if isinstance(size, str):
        o.append(S(f"s_mov_b32 s{dst+2}, {size}", [int(size[1:])], [dst+2]))
    else:
        o.append(S(f"s_mov_b32 s{dst+2}, {size}", [], [dst+2]))
    o.append(S(f"s_mov_b32 s{dst+3}, 0x20000", [], [dst+3]))
    return o

KV_ORDER = [[0, 2, 1, 3, 4, 6, 5, 7], [0, 1, 3, 2, 4, 5, 7, 6], [1, 0, 2, 4, 3, 5, 6, 7], [1, 0, 2, 3, 5, 4, 6, 7]]
KV_ORDERS = [KV_ORDER,
  [[0, 4, 1, 2, 3, 5, 6, 7], [1, 0, 5, 2, 3, 4, 6, 7], [2, 0, 1, 6, 3, 4, 5, 7], [3, 0, 1, 2, 7, 4, 5, 6]],
  [[0, 1, 2, 3, 4, 5, 6, 7], [0, 1, 2, 3, 4, 5, 6, 7], [4, 5, 6, 7, 0, 1, 2, 3], [4, 5, 6, 7, 0, 1, 2, 3]],
  [[0, 2, 1, 3, 5, 4, 6, 7], [1, 0, 3, 2, 4, 6, 5, 7], [2, 1, 0, 4, 3, 5, 7, 6], [0, 1, 2, 3, 5, 4, 6, 7]],
  [[0, 1, 2, 4, 3, 5, 6, 7], [1, 0, 2, 3, 5, 4, 6, 7], [2, 0, 1, 3, 4, 6, 5, 7], [0, 1, 3, 2, 4, 5, 7, 6]],
  [[0, 1, 4, 2, 3, 5, 6, 7], [1, 0, 2, 5, 3, 4, 6, 7], [2, 0, 1, 3, 6, 4, 5, 7], [0, 3, 1, 2, 4, 7, 5, 6]]]
def kv_pack(j):
    o = KV_ORDERS[int(opt.kvo)][j] if int(opt.rot_kv) else list(range(8))
    return sum(t << (4 * i) for i, t in enumerate(o))
S_KVO = 98
V_XD4 = 204
S_WC = 99

class Item:
    def __init__(s, pre, ins, after=None): s.pre, s.ins, s.after = pre, ins, after
def x_dma(c, after=None):
    return [Item([S(f"s_add_u32 m0, s{S_W1K}, {XU(c,q)}", [S_W1K], [M0])],
                 dma(V_XD4 + c, S_X, S_TAB + q, 0, ('x', c), flags=opt.a_flags), after) for q in range(5)]
def w_dma(u, after=None):
    o = []
    for k in range(4):
        pre = []
        if k == 0:
            pre.append(S(f"s_add_u32 s{S_SK}, s{S_WC}, {(u & 6) << 19}", [S_WC], [S_SK]))
            pre.append(S(f"s_and_b32 s{S_SK}, s{S_SK}, {7 << 19}", [S_SK], [S_SK]))
            if u & 1: pre.append(S(f"s_xor_b32 s{S_SK}, s{S_SK}, {1 << 19}", [S_SK], [S_SK]))
        pre.append(S(f"s_add_u32 s{S_SO}, s{S_SK}, {k*131072}", [S_SK], [S_SO]))
        pre.append(S(f"s_add_u32 m0, s{S_W1K}, {WU(WSLOT[u], k>>1) + (k&1)*4*KB}", [S_W1K], [M0]))
        o.append(Item(pre, dma(V_WD, S_WQ, S_SO, 0, ('w', u), flags=opt.a_flags), after))
    return o
def kv_dma(kind, i, after=None):
    o = []
    base = (i & 1) * 32 * KB + (0 if kind == 'k' else 64 * KB)
    sr, so = (S_K, S_SK) if kind == 'k' else (S_V, S_SV)
    for j in range(8):
        pre = []
        if j % 4 == 0:
            if j == 0:
                pre.append(S(f"s_bfe_u32 s{so}, s{S_KVO}, {hex((3 << 16) | (4 * i))}", [S_KVO], [so]))
                pre.append(S(f"s_lshl_b32 s{so}, s{so}, 13", [so], [so]))
            else:
                pre.append(S(f"s_add_u32 s{so}, s{so}, 4096", [so], [so]))
            pre.append(S(f"s_add_u32 m0, s{S_W8K}, {base + (j>>2)*4096}", [S_W8K], [M0]))
        va = V_KD + (j & 3) if kind == 'k' else V_VD + (j & 1)
        tag = (kind + 'r', i - 2, j >> 2)
        o.append(Item(pre, dma(va, sr, so, 1024 * (j & 3), (kind, i, j >> 2), needlg=[tag], flags=opt.kv_flags), after if i < 2 else tag))
    return o
def k_reads(i):
    return [dsrd('ds_read_b128', KF(i, t * 4 + s), 4, V_KA + s, (i & 1) * 32 * KB + t * 4096,
                 needvm=[('k', i, t)], lgtag=('kr', i, t)) for t in range(2) for s in range(4)]
def v_reads(i):
    return [dsrd('ds_read_b64_tr_b16', ('v', V_VF + (i & 1) * 32 + lam * 4 + h * 2), 2, V_VA + lam, (i & 1) * 32 * KB + h * 4096,
                 needvm=[('v', i, h)], lgtag=('vr', i, h)) for h in range(2) for lam in range(8)]

class Queue:
    def __init__(s): s.q = []; s.pts = set()
    def push(s, items): s.q += items
    def mark(s, p): s.pts.add(p)
    def pop(s):
        if s.q and (s.q[0].after is None or s.q[0].after in s.pts): return s.q.pop(0)
        return None

def place(gaps, Q, pos):
    last = -1
    for p in pos:
        if p >= len(gaps): continue
        it = Q.pop()
        if it is None: break
        pre = list(it.pre)
        avail = list(range(last + 1, p))
        front = []
        if not avail: front = pre
        else:
            slots = [[] for _ in avail]
            for k_, x in enumerate(reversed(pre)):
                slots[max(0, len(avail) - 1 - k_)].insert(0, x)
            for g, sl in zip(avail, slots):
                k_ = 0
                while k_ < len(gaps[g]) and gaps[g][k_].k == 'salu': k_ += 1
                gaps[g][k_:k_] = sl
        k = 0
        while k < len(gaps[p]) and gaps[p][k].k == 'salu': k += 1
        gaps[p][k:k] = front + [it.ins]
        last = p
def weave(sg, Q, fill, n, per):
    for _ in range(n):
        it = Q.pop()
        if it is not None: sg.addall(it.pre + [it.ins])
        for _ in range(per):
            if fill: sg.add(fill.pop(0))

NST = 12
def stamp(sg, i, grp='1'):
    if not opt.stamps: return
    if 5 <= i <= 9 and grp != opt.stamps: return
    sg.text(f"{'s_memtime' if opt.clk == 'c' else 's_memrealtime'} s[{76+2*i}:{77+2*i}]")

def prologue1():
    o = []; a = o.append
    a(raw("s_load_dwordx2 s[92:93], s[0:1], 0"))
    a(raw("s_load_dwordx4 s[96:99], s[0:1], 24"))
    a(V(f"v_lshrrev_b32 v{V_T0}, 6, v0", [0], [V_T0]))
    a(V(f"v_and_b32 v{V_LANE}, 63, v0", [0], [V_LANE]))
    a(V(f"v_readfirstlane_b32 s{S_W}, v{V_T0}", [V_T0], [('s', S_W)]))
    a(S(f"s_and_b32 s{S_HKV}, s2, 7", [2], [S_HKV]))
    a(S(f"s_lshr_b32 s{S_B}, s2, 5", [2], [S_B]))
    a(S(f"s_bfe_u32 s{S_T0}, s2, 0x20003", [2], [S_T0]))
    a(S(f"s_mov_b32 s{S_J}, s{S_T0}", [S_T0], [S_J]))
    a(S(f"s_lshl_b32 s{S_HQ}, s{S_HKV}, 2", [S_HKV], [S_HQ]))
    a(S(f"s_add_u32 s{S_HQ}, s{S_HQ}, s{S_T0}", [S_HQ, S_T0], [S_HQ]))
    if int(opt.rot_a) == 2:
        a(S(f"s_add_u32 s{S_VALID}, s{S_T0}, s{S_B}", [S_T0, S_B], [S_VALID]))
        a(S(f"s_and_b32 s{S_VALID}, s{S_VALID}, 1", [S_VALID], [S_VALID]))
        a(S(f"s_lshl_b32 s{S_VALID}, s{S_VALID}, 2", [S_VALID], [S_VALID]))
    elif int(opt.rot_a) == 4:
        a(S(f"s_add_u32 s{S_VALID}, s{S_T0}, s{S_B}", [S_T0, S_B], [S_VALID]))
        a(S(f"s_and_b32 s{S_VALID}, s{S_VALID}, 3", [S_VALID], [S_VALID]))
        a(S(f"s_lshl_b32 s{S_VALID}, s{S_VALID}, 1", [S_VALID], [S_VALID]))
    elif int(opt.rot_a):
        a(S(f"s_lshl_b32 s{S_T0}, s{S_T0}, 1", [S_T0], [S_T0]))
        a(S(f"s_add_u32 s{S_VALID}, s{S_T0}, s{S_B}", [S_T0, S_B], [S_VALID]))
        a(S(f"s_and_b32 s{S_VALID}, s{S_VALID}, 7", [S_VALID], [S_VALID]))
    else:
        a(S(f"s_mov_b32 s{S_VALID}, 0", [], [S_VALID]))
    a(V(f"v_and_b32 v{V_N}, 15, v{V_LANE}", [V_LANE], [V_N]))
    a(V(f"v_lshrrev_b32 v{V_G}, 4, v{V_LANE}", [V_LANE], [V_G]))
    a(S(f"s_lshl_b32 s{S_W1K}, s{S_W}, 10", [S_W], [S_W1K]))
    a(S(f"s_lshl_b32 s{S_W8K}, s{S_W}, 13", [S_W], [S_W8K]))
    a(V(f"v_lshl_add_u32 v{V_T0}, s{S_W}, 2, v{V_G}", [V_G, ('s', S_W)], [V_T0]))
    a(V(f"v_xor_b32 v{V_T1}, v{V_N}, v{V_T0}", [V_N, V_T0], [V_T1]))
    a(V(f"v_lshlrev_b32 v{V_T1}, 4, v{V_T1}", [V_T1], [V_T1]))
    a(V(f"v_lshl_add_u32 v{V_XD}, v{V_T0}, 10, v{V_T1}", [V_T0, V_T1], [V_XD]))
    a(S(f"s_and_b32 s{S_T0}, s{S_W}, 2", [S_W], [S_T0]))
    a(S(f"s_lshl_b32 s{S_T0}, s{S_T0}, 2", [S_T0], [S_T0]))
    a(V(f"v_lshl_add_u32 v{V_T1}, v{V_G}, 1, s{S_T0}", [V_G, ('s', S_T0)], [V_T1]))
    a(V(f"v_xor_b32 v{V_T1}, v{V_N}, v{V_T1}", [V_N, V_T1], [V_T1]))
    a(V(f"v_lshlrev_b32 v{V_T1}, 4, v{V_T1}", [V_T1], [V_T1]))
    a(V(f"v_lshl_add_u32 v{V_WD}, v{V_T0}, 13, v{V_T1}", [V_T0, V_T1], [V_WD]))
    a(S(f"s_mul_i32 s{S_T0}, s{S_B}, 81920", [S_B], [S_T0]))
    a(S(f"s_lshl_b32 s{S_T2}, s{S_HQ}, 8", [S_HQ], [S_T2]))
    a(S(f"s_sub_u32 s{S_T1}, 4194304, s{S_T2}", [S_T2], [S_T1]))
    a(S(f"s_mov_b32 s{S_REDO}, 0", [], [S_REDO]))
    a(raw("s_waitcnt lgkmcnt(0)", 'wait'))
    o += srd(S_X, 92, add_s=S_T0, size=81920)
    o += srd(S_WQ, 96, add_s=S_T2, size=f"s{S_T1}")
    a(S(f"s_lshl_b32 s{S_T0}, s{S_HKV}, 19", [S_HKV], [S_T0]))
    o += srd(S_WO, 98, add_s=S_T0, size=524288)
    a(S(f"s_lshl_b32 s{S_WC}, s{S_VALID}, 19", [S_VALID], [S_WC]))
    a(S(f"s_mov_b64 s[{S_GM}:{S_GM+1}], -1", [], [S_GM, S_GM+1]))
    a(raw("s_load_dwordx4 s[92:95], s[0:1], 8"))
    a(raw(f"s_load_dwordx4 s[{S_C}:{S_C+3}], s[0:1], 40"))
    a(raw("s_load_dwordx2 s[100:101], s[0:1], 56"))
    return o

def restart_setup():
    o = [S(f"s_mov_b32 s{S_TAB+q}, {q*16384}", [], [S_TAB+q]) for q in range(5)]
    for c in range(4):
        o.append(S(f"s_lshr_b32 s{S_T0}, s{S_WC}, 12", [S_WC], [S_T0]))
        o.append(S(f"s_add_u32 s{S_T0}, s{S_T0}, {c*256}", [S_T0], [S_T0]))
        o.append(S(f"s_and_b32 s{S_T0}, s{S_T0}, 0x300", [S_T0], [S_T0]))
        o.append(V(f"v_add_u32 v{V_XD4+c}, s{S_T0}, v{V_XD}", [V_XD, ('s', S_T0)], [V_XD4+c]))
    return o

def prologue2():
    o = []; a = o.append
    a(raw("s_waitcnt lgkmcnt(0)", 'wait'))
    a(S(f"s_lshl_b32 s{S_T0}, s{S_B}, 3", [S_B], [S_T0]))
    a(S(f"s_add_u32 s{S_T0}, s{S_T0}, s{S_HKV}", [S_T0, S_HKV], [S_T0]))
    a(S(f"s_lshl_b32 s{S_T0}, s{S_T0}, 2", [S_T0], [S_T0]))
    a(S(f"s_add_u32 s{S_T0}, s{S_T0}, s{S_W}", [S_T0, S_W], [S_T0]))
    a(S(f"s_lshl_b32 s{S_T0}, s{S_T0}, 16", [S_T0], [S_T0]))
    o += srd(S_K, 92, add_s=S_T0, size=65536)
    o += srd(S_V, 94, add_s=S_T0, size=65536)
    o += srd(S_O, 100, size=8*5*128*1024)
    o += srd(S_WT, 100, add_imm=WS_WO, size=8*4*20*8*1024)
    o += srd(S_D, S_C + 2, size=256)
    o += srd(S_OUT, S_C, size=655360)
    o += srd(S_C, 100, add_imm=WS_CT, size=65536)
    a(S(f"s_bitcmp1_b32 s{S_HQ}, 0", [S_HQ], []))
    a(S(f"s_mov_b32 s{S_T0}, {hex(kv_pack(0))}", [], [S_T0]))
    a(S(f"s_cselect_b32 s{S_T0}, {hex(kv_pack(1))}, s{S_T0}", [S_T0], [S_T0]))
    a(S(f"s_mov_b32 s{S_T1}, {hex(kv_pack(2))}", [], [S_T1]))
    a(S(f"s_cselect_b32 s{S_T1}, {hex(kv_pack(3))}, s{S_T1}", [S_T1], [S_T1]))
    a(S(f"s_bitcmp1_b32 s{S_HQ}, 1", [S_HQ], []))
    a(S(f"s_cselect_b32 s{S_KVO}, s{S_T1}, s{S_T0}", [S_T0, S_T1], [S_KVO]))
    for p in range(3):
        a(S(f"s_cmp_le_u32 s{S_J}, {p}", [S_J], []))
        a(S(f"s_cselect_b32 s{S_T1}, {p + 1}, {p}", [], [S_T1]))
        a(S(f"s_lshl_b32 s{S_H+p}, s{S_T1}, 17", [S_T1], [S_H+p]))
    a(S(f"s_mul_i32 s{S_W5K}, s{S_W}, 5120", [S_W], [S_W5K]))
    a(S(f"s_lshl_b32 s{S_T0}, s{S_B}, 12", [S_B], [S_T0]))
    a(S(f"s_lshl_b32 s{S_F1}, s{S_HQ}, 7", [S_HQ], [S_F1]))
    a(S(f"s_add_u32 s{S_F1}, s{S_F1}, s{S_T0}", [S_F1, S_T0], [S_F1]))
    a(S(f"s_add_u32 s{S_F2}, s{S_F1}, 32768", [S_F1], [S_F2]))
    a(S(f"s_lshl_b32 s{S_T1}, s{S_HKV}, 9", [S_HKV], [S_T1]))
    a(S(f"s_lshl_b32 s{S_G1}, s{S_J}, 3", [S_J], [S_G1]))
    a(S(f"s_add_u32 s{S_G1}, s{S_G1}, s{S_T1}", [S_G1, S_T1], [S_G1]))
    a(S(f"s_add_u32 s{S_G1}, s{S_G1}, s{S_T0}", [S_G1, S_T0], [S_G1]))
    a(S(f"s_lshl_b32 s{S_T1}, s{S_J}, 7", [S_J], [S_T1]))
    a(S(f"s_lshl_b32 s{S_G2}, s{S_HKV}, 3", [S_HKV], [S_G2]))
    a(S(f"s_add_u32 s{S_G2}, s{S_G2}, s{S_T1}", [S_G2, S_T1], [S_G2]))
    a(S(f"s_add_u32 s{S_G2}, s{S_G2}, s{S_T0}", [S_G2, S_T0], [S_G2]))
    a(S(f"s_add_u32 s{S_G2}, s{S_G2}, 32768", [S_G2], [S_G2]))
    return o

def prologue3():
    o = []; a = o.append
    a(S(f"s_bfe_u32 s{S_T1}, s{S_WC}, 0x10013", [S_WC], [S_T1]))
    a(S(f"s_lshl_b32 s{S_T1}, s{S_T1}, 3", [S_T1], [S_T1]))
    a(V(f"v_xor_b32 v{V_T1}, s{S_T1}, v{V_N}", [V_N, ('s', S_T1)], [V_T1]))
    for s in range(4):
        a(V(f"v_add_u32 v{V_T0}, {4*s}, v{V_G}", [V_G], [V_T0]))
        a(V(f"v_xor_b32 v{V_T0}, v{V_T0}, v{V_T1}", [V_T0, V_T1], [V_T0]))
        a(V(f"v_lshlrev_b32 v{V_T0}, 4, v{V_T0}", [V_T0], [V_T0]))
        a(V(f"v_lshl_add_u32 v{V_XA+s}, v{V_N}, 8, v{V_T0}", [V_N, V_T0], [V_XA+s]))
        a(V(f"v_add_u32 v{V_XB+s}, {120*KB}, v{V_XA+s}", [V_XA+s], [V_XB+s]))
    a(V(f"v_lshrrev_b32 v{V_T2}, 2, v{V_N}", [V_N], [V_T2]))
    a(V(f"v_bfe_u32 v{V_T3}, v{V_N}, 1, 1", [V_N], [V_T3]))
    a(V(f"v_and_b32 v{V_T4}, 1, v{V_N}", [V_N], [V_T4]))
    a(V(f"v_lshlrev_b32 v{V_T4}, 3, v{V_T4}", [V_T4], [V_T4]))
    a(V(f"v_and_b32 v{V_T5}, 1, v{V_G}", [V_G], [V_T5]))
    a(V(f"v_lshl_add_u32 v{V_T5}, v{V_T5}, 2, v{V_T2}", [V_T5, V_T2], [V_T5]))
    a(V(f"v_lshlrev_b32 v{V_T5}, 1, v{V_T5}", [V_T5], [V_T5]))
    a(S(f"s_lshl_b32 s{S_T1}, s{S_W}, 2", [S_W], [S_T1]))
    a(V(f"v_lshl_add_u32 v{V_T1}, v{V_G}, 3, v{V_T2}", [V_G, V_T2], [V_T1]))
    a(V(f"v_lshl_add_u32 v{V_T1}, v{V_T1}, 8, v{V_T4}", [V_T1, V_T4], [V_T1]))
    for e in range(2):
        a(V(f"v_add3_u32 v{V_T0}, s{S_T1}, v{V_T3}, {2*e}", [V_T3, ('s', S_T1)], [V_T0]))
        a(V(f"v_xor_b32 v{V_T0}, v{V_T0}, v{V_T5}", [V_T0, V_T5], [V_T0]))
        a(V(f"v_lshl_add_u32 v{V_T0}, v{V_T0}, 4, v{V_T1}", [V_T0, V_T1], [V_T0]))
        a(V(f"v_add_u32 v{V_WA+e}, {40*KB}, v{V_T0}", [V_T0], [V_WA+e]))
        a(V(f"v_add_u32 v{V_WB+e}, {96*KB}, v{V_T0}", [V_T0], [V_WB+e]))
    a(V(f"v_lshl_add_u32 v{V_T1}, v{V_G}, 2, v{V_T2}", [V_G, V_T2], [V_T1]))
    n_early = len(o)
    for s in range(4):
        a(V(f"v_add_u32 v{V_KA+s}, s{S_W8K}, v{V_XA+s}", [V_XA+s, ('s', S_W8K)], [V_KA+s]))
    a(V(f"v_lshl_add_u32 v{V_T1}, v{V_T1}, 8, v{V_T4}", [V_T1, V_T4], [V_T1]))
    a(S(f"s_add_u32 s{S_T2}, s{S_W8K}, {64*KB}", [S_W8K], [S_T2]))
    a(V(f"v_add_u32 v{V_T1}, s{S_T2}, v{V_T1}", [V_T1, ('s', S_T2)], [V_T1]))
    a(V(f"v_add_u32 v{V_T3}, s{S_T1}, v{V_T3}", [V_T3, ('s', S_T1)], [V_T3]))
    for lam in range(8):
        a(V(f"v_add_u32 v{V_T0}, {2*lam}, v{V_T3}", [V_T3], [V_T0]))
        a(V(f"v_and_b32 v{V_T0}, 15, v{V_T0}", [V_T0], [V_T0]))
        a(V(f"v_xor_b32 v{V_T0}, v{V_T0}, v{V_T5}", [V_T0, V_T5], [V_T0]))
        a(V(f"v_lshl_add_u32 v{V_VA+lam}, v{V_T0}, 4, v{V_T1}", [V_T0, V_T1], [V_VA+lam]))
    a(V(f"v_xor_b32 v{V_T0}, v{V_N}, v{V_G}", [V_N, V_G], [V_T0]))
    a(V(f"v_lshlrev_b32 v{V_T0}, 4, v{V_T0}", [V_T0], [V_T0]))
    a(V(f"v_lshl_add_u32 v{V_KD}, v{V_G}, 8, v{V_T0}", [V_G, V_T0], [V_KD]))
    for j in range(1, 4):
        a(V(f"v_xor_b32 v{V_KD+j}, {64*j}, v{V_KD}", [V_KD], [V_KD+j]))
    a(V(f"v_lshlrev_b32 v{V_T0}, 1, v{V_G}", [V_G], [V_T0]))
    a(V(f"v_xor_b32 v{V_T0}, v{V_N}, v{V_T0}", [V_N, V_T0], [V_T0]))
    a(V(f"v_lshlrev_b32 v{V_T0}, 4, v{V_T0}", [V_T0], [V_T0]))
    a(V(f"v_lshl_add_u32 v{V_VD}, v{V_G}, 8, v{V_T0}", [V_G, V_T0], [V_VD]))
    a(V(f"v_xor_b32 v{V_VD+1}, 128, v{V_VD}", [V_VD], [V_VD+1]))
    a(V(f"v_lshrrev_b32 v{V_T0}, 1, v{V_G}", [V_G], [V_T0]))
    a(V(f"v_add_u32 v{V_T0}, s{S_T1}, v{V_T0}", [V_T0, ('s', S_T1)], [V_T0]))
    a(V(f"v_xor_b32 v{V_T0}, v{V_T0}, v{V_N}", [V_T0, V_N], [V_T0]))
    a(V(f"v_lshlrev_b32 v{V_T0}, 4, v{V_T0}", [V_T0], [V_T0]))
    a(V(f"v_lshl_add_u32 v{V_T0}, v{V_N}, 8, v{V_T0}", [V_N, V_T0], [V_T0]))
    a(V(f"v_and_b32 v{V_T1}, 1, v{V_G}", [V_G], [V_T1]))
    a(V(f"v_lshl_add_u32 v{V_T0}, v{V_T1}, 3, v{V_T0}", [V_T0, V_T1], [V_T0]))
    a(V(f"v_add_u32 v{V_QW}, {QBUF}, v{V_T0}", [V_T0], [V_QW]))
    a(V(f"v_xor_b32 v{V_QW+1}, 32, v{V_QW}", [V_QW], [V_QW+1]))
    a(V(f"v_lshl_add_u32 v{V_CW}, v{V_LANE}, 4, s{S_W8K}", [V_LANE, ('s', S_W8K)], [V_CW]))
    a(V(f"v_add_u32 v{V_CW+1}, {64*KB}, v{V_CW}", [V_CW], [V_CW+1]))
    a(S(f"s_add_u32 s{S_T0}, s{S_W8K}, {102*KB}", [S_W8K], [S_T0]))
    a(V(f"v_lshl_add_u32 v{V_LW}, v{V_LANE}, 5, s{S_T0}", [V_LANE, ('s', S_T0)], [V_LW]))
    a(S(f"s_mul_i32 s{S_T0}, s{S_B}, 640", [S_B], [S_T0]))
    a(S(f"s_lshl_b32 s{S_T2}, s{S_HQ}, 2", [S_HQ], [S_T2]))
    a(S(f"s_add_u32 s{S_T0}, s{S_T0}, s{S_T2}", [S_T0, S_T2], [S_T0]))
    a(S(f"s_add_u32 s{S_T0}, s{S_T0}, s{S_W}", [S_T0, S_W], [S_T0]))
    a(S(f"s_lshl_b32 s{S_T0}, s{S_T0}, 10", [S_T0], [S_T0]))
    a(V(f"v_lshl_add_u32 v{V_OST}, v{V_LANE}, 4, s{S_T0}", [V_LANE, ('s', S_T0)], [V_OST]))
    a(V(f"v_cmp_eq_u32 vcc, 0, v{V_N}", [V_N], [VCC]))
    a(V(f"v_mov_b32 v{V_T0}, 0x3f803f80", [], [V_T0]))
    for i in range(4):
        a(V(f"v_cndmask_b32 v{V_ONES+i}, 0, v{V_T0}, vcc", [V_T0, VCC], [V_ONES+i]))
    for i in range(20):
        a(V(f"v_mov_b32 v{V_NEGM+i}, 0", [], [V_NEGM+i]))
    return o[:n_early], o[n_early:]

V_QACC = V_VF
def AF(kap):
    return [(100, 120), (128, 148), (208, 156)][kap % 3]
def a_reads(kap):
    u, ks = kap >> 1, kap & 1
    c, s = u >> 1, kap & 3
    xf, wf = AF(kap)
    wb = WU(WSLOT[u], ks)
    xr = []
    for q in range(5):
        xb = XU(c, q)
        reg, base = (V_XA, 0) if xb < 64 * KB else (V_XB, 120 * KB)
        xr.append(dsrd('ds_read_b128', ('v', xf + q * 4), 4, reg + s, xb - base))
    wr = []
    for e in range(2):
        for h in range(2):
            reg, base = (V_WA, 40 * KB) if wb < 96 * KB else (V_WB, 96 * KB)
            wr.append(dsrd('ds_read_b64_tr_b16', ('v', wf + e * 4 + h * 2), 2, reg + e, wb - base + h * 1024))
    return wr[:2] + xr[:1] + wr[2:] + xr[1:]
def a_mfmas(kap):
    o = []
    xf, wf = AF(kap)
    for q in range(5):
        for e in range(2):
            d = ('v', V_QACC + (e * 5 + q) * 4)
            o.append(mfma(d, ('v', wf + e * 4), ('v', xf + q * 4), 0 if kap == 0 else d))
    return o
def lane0(sg, body, lab):
    sg.text(f"s_cmp_lg_u32 s{S_W}, 0"); sg.text(f"s_cbranch_scc1 {lab}")
    sg.text(f"s_mov_b64 s[{S_EX}:{S_EX+1}], exec"); sg.text("s_mov_b64 exec, 1")
    for x in body: sg.text(x)
    sg.text(f"s_mov_b64 exec, s[{S_EX}:{S_EX+1}]")
    sg.text(f"{lab}:")
def phase_a(sg, Q):
    stamp(sg, 1)
    sg.add(barrier(needvm=[('x', 0), ('w', 0)])); Q.mark('B0')
    stamp(sg, 2)
    sg.addall(a_reads(0)); sg.addall(a_reads(1))
    for kap in range(16):
        mf = a_mfmas(kap)
        gaps = [[] for _ in mf]
        nx = kap + 2
        if nx < 16:
            if nx % 2 == 0:
                u = nx >> 1
                need = [('x', u >> 1), ('w', u)]
                while any(it.ins.vmtag in need for it in Q.q):
                    n_ = len(Q.q); weave(sg, Q, [], 1, 0); assert len(Q.q) < n_, (u, Q.q[0].after)
                sg.add(barrier(needvm=need, lg0=False)); Q.mark(f'B{u}')
                if u in (1, 3, 5, 7): stamp(sg, 5 + u // 2, 'A')
            for i, r in enumerate(a_reads(nx)): gaps[i].append(r)
        mf[0].r |= set(R('v', AF(kap)[0], 20) + R('v', AF(kap)[1], 8))
        pos = [1, 5, 9] if kap % 2 == 0 else [3, 7]
        if int(opt.perstep) == 6: pos = [1, 4, 7] if kap % 2 == 0 else [1, 4, 8]
        nkv = sum(1 for it in Q.q if it.ins.vmtag[0] in 'kv')
        room = int(opt.alim) - (128 - nkv) + (len(Q.q) - nkv)
        place(gaps, Q, pos[:max(0, room)])
        sg.addall(interleave(mf, gaps))
    stamp(sg, 9, 'A')
    fin = []
    for q in range(5):
        for e in range(2):
            b = V_QACC + (e * 5 + q) * 4
            for r in (0, 2):
                fin.append(V(f"v_pk_mul_f32 v[{b+r}:{b+r+1}], v[{b+r}:{b+r+1}], s[{S_T1}:{S_T1+1}]", [b+r, b+r+1], [b+r, b+r+1]))
            fin.append(V(f"v_cvt_pk_bf16_f32 v{b}, v{b}, v{b+1}", [b, b+1], [b]))
            fin.append(V(f"v_cvt_pk_bf16_f32 v{b+1}, v{b+2}, v{b+3}", [b+2, b+3], [b+1]))
            fin.append(dswr('ds_write_b64', V_QW + e, ('v', b), 2, q * 4096, lgtag='qw'))
    sg.add(S(f"s_mov_b32 s{S_T1}, {f2h(QSCALE)}", [], [S_T1]))
    sg.add(S(f"s_mov_b32 s{S_T2}, {f2h(QSCALE)}", [], [S_T2]))
    weave(sg, Q, fin, int(opt.finw), 15)
    sg.addall(fin)
    while any(it.ins.vmtag in (('k', 0, 0), ('k', 0, 1)) for it in Q.q): weave(sg, Q, [], 1, 0)
    b = barrier(lg0=False); b.needlg = ('qw',)
    sg.addall(k_reads(0)); Q.mark(('kr', 0, 0)); Q.mark(('kr', 0, 1))
    sg.add(b); Q.mark('BQ')
    qr = [dsrd('ds_read_b128', AQ(q, s), 4, V_XB + s, QBUF - 120 * KB + q * 4096) for q in range(5) for s in range(4)]
    return qr

def qk(tau):
    i, q = divmod(tau, 5)
    o = []
    for s, t in ([(s, t) for t in range(2) for s in range(4)] if int(opt.chain) else [(s, t) for s in range(4) for t in range(2)]):
        if True:
            d = ('v', V_S + (tau & 1) * 8 + t * 4)
            o.append(mfma(d, KF(i, t * 4 + s), AQ(q, s), ('v', V_NEGM + q * 4) if s == 0 else d))
    return o
def pv(tau):
    i, q = divmod(tau, 5)
    p = ('v', V_P + (tau & 1) * 4)
    o = [mfma(AO(lam, q), ('v', V_VF + (i & 1) * 32 + lam * 4), p, AO(lam, q) if i else 0) for lam in range(8)]
    o.insert(0, mfma(LA(q), ('v', V_ONES), p, LA(q) if i else 0))
    return o
def sm(tau):
    b = V_S + (tau & 1) * 8
    p = V_P + (tau & 1) * 4
    e = [T(f"v_exp_f32 v{b+i}, v{b+i}", [b+i], [b+i]) for i in range(8)]
    c = [V(f"v_cvt_pk_bf16_f32 v{p+i}, v{b+2*i}, v{b+2*i+1}", [b+2*i, b+2*i+1], [p+i]) for i in range(4)]
    return e, c
def comb_writes(q):
    o = []
    for jd in range(1, 4):
        for e in range(2):
            u = q * 6 + (jd - 1) * 2 + e
            row = u >> 3
            o.append(dswr('ds_write_b128', V_CW + (row >> 1), AO(2 * jd + e, q), 4, (row & 1) * 32 * KB + (u & 7) * KB, lgtag=('cw', q)))
    o.insert(0, dswr('ds_write_b32', V_LW, LA(q), 1, [0, 4, 16, 20, 24][q], lgtag=('cw', q)))
    return o

def wo_dma(pos, after=None):
    o = []
    for ks in range(4):
        for half in range(2):
            base = (128 * KB if pos < 0 else pos * 32 * KB) + ks * 8 * KB + half * 4 * KB
            if pos < 0:
                pre = [S(f"s_lshl_b32 s{S_SK}, s{S_J}, 17", [S_J], [S_SK])] if ks + half == 0 else []
                h = S_SK
            else: pre, h = [], S_H + pos
            pre += [S(f"s_add_u32 s{S_SO}, s{h}, {ks*32768 + half*16384}", [h], [S_SO]), S(f"s_add_u32 m0, s{S_W1K}, {base}", [S_W1K], [M0])]
            o.append(Item(pre, dma(V_WOD, S_WO, S_SO, 0, ('wo', pos)), after))
    return o
def osib_dma(pos):
    o = []
    for q in range(5):
        pre = [S(f"s_lshr_b32 s{S_SK}, s{S_H+pos}, 5", [S_H+pos], [S_SK])] if q == 0 else []
        pre += [S(f"s_add_u32 s{S_SO}, s{S_SK}, {q*128*KB}", [S_SK], [S_SO]), S(f"s_add_u32 m0, s{S_W5K}, {(140 - 20*pos + q)*KB}", [S_W5K], [M0])]
        o.append(Item(pre, dma(V_OD, S_O, S_SO, 0, ('os', pos), flags=' sc1')))
    return o
def tail_calc():
    o = []; a = o.append
    T0, T1, T2 = 252, 253, 254
    a(V(f"v_lshlrev_b32 v{T0}, 4, v{V_LANE}", [V_LANE], [T0]))
    for jd in range(1, 4):
        a(S(f"s_sub_u32 s{S_T0}, s{S_W}, {jd}", [S_W], [S_T0]))
        a(S(f"s_and_b32 s{S_T0}, s{S_T0}, 3", [S_T0], [S_T0]))
        a(S(f"s_lshl_b32 s{S_T0}, s{S_T0}, 13", [S_T0], [S_T0]))
        a(V(f"v_add_u32 v{V_CR+2*(jd-1)}, s{S_T0}, v{T0}", [T0, ('s', S_T0)], [V_CR+2*(jd-1)]))
        a(V(f"v_add_u32 v{V_CR+2*(jd-1)+1}, {64*KB}, v{V_CR+2*(jd-1)}", [V_CR+2*(jd-1)], [V_CR+2*(jd-1)+1]))
    a(V(f"v_add_u32 v{V_OL}, {96*KB}, v{T0}", [T0], [V_OL]))
    a(V(f"v_add_u32 v{V_OW}, s{S_W5K}, v{V_OL}", [V_OL, ('s', S_W5K)], [V_OW]))
    a(S(f"s_mov_b32 s{S_T0}, {102*KB}", [], [S_T0]))
    a(V(f"v_lshl_add_u32 v{V_LR}, v{V_N}, 5, s{S_T0}", [V_N, ('s', S_T0)], [V_LR]))
    a(S(f"s_add_u32 s{S_T0}, s{S_W8K}, {64*KB}", [S_W8K], [S_T0]))
    for e in range(2):
        a(V(f"v_subrev_u32 v{V_WT+e}, s{S_T0}, v{V_VA+e}", [V_VA+e, ('s', S_T0)], [V_WT+e]))
        a(V(f"v_add_u32 v{V_WT+2+e}, {64*KB}, v{V_WT+e}", [V_WT+e], [V_WT+2+e]))
        a(V(f"v_add_u32 v{V_WT+4+e}, {128*KB}, v{V_WT+e}", [V_WT+e], [V_WT+4+e]))
    a(S(f"s_lshl_b32 s{S_T0}, s{S_J}, 12", [S_J], [S_T0]))
    a(V(f"v_subrev_u32 v{V_OD}, s{S_T0}, v{V_OST}", [V_OST, ('s', S_T0)], [V_OD]))
    a(S(f"s_lshl_b32 s{S_T0}, s{S_B}, 2", [S_B], [S_T0]))
    a(S(f"s_add_u32 s{S_T0}, s{S_T0}, s{S_J}", [S_T0, S_J], [S_T0]))
    a(V(f"v_and_b32 v{T1}, 7, v{V_LANE}", [V_LANE], [T1]))
    a(S(f"s_lshl_b32 s{S_T0}, s{S_T0}, 2", [S_T0], [S_T0]))
    a(S(f"s_add_u32 s{S_T0}, s{S_T0}, s{S_W}", [S_T0, S_W], [S_T0]))
    a(S(f"s_mul_i32 s{S_T0}, s{S_T0}, {5*8*KB}", [S_T0], [S_T0]))
    a(S(f"s_lshl_b32 s{S_T2}, s{S_HKV}, 10", [S_HKV], [S_T2]))
    a(S(f"s_add_u32 s{S_T2}, s{S_T2}, s{S_T0}", [S_T2, S_T0], [S_T2]))
    a(V(f"v_add_u32 v{V_PS}, s{S_T2}, v{T0}", [T0, ('s', S_T2)], [V_PS]))
    a(V(f"v_lshl_add_u32 v{T1}, s{S_HKV}, 3, v{T1}", [T1, ('s', S_HKV)], [T1]))
    a(V(f"v_lshrrev_b32 v{T2}, 3, v{V_LANE}", [V_LANE], [T2]))
    a(V(f"v_lshl_add_u32 v{V_PLD}, v{T1}, 4, s{S_T0}", [T1, ('s', S_T0)], [V_PLD]))
    a(V(f"v_lshl_add_u32 v{V_PLD}, v{T2}, 13, v{V_PLD}", [T2, V_PLD], [V_PLD]))
    a(V(f"v_lshlrev_b32 v{T2}, 14, v{T2}", [T2], [T2]))
    a(V(f"v_and_b32 v{T0}, 15, v{T1}", [T1], [T0]))
    a(V(f"v_lshl_add_u32 v{T2}, v{T0}, 10, v{T2}", [T0, T2], [T2]))
    a(V(f"v_lshrrev_b32 v{T1}, 4, v{T1}", [T1], [T1]))
    a(V(f"v_lshl_add_u32 v{T2}, v{T1}, 3, v{T2}", [T1, T2], [T2]))
    a(S(f"s_mul_i32 s{S_T0}, s{S_B}, 81920", [S_B], [S_T0]))
    a(S(f"s_lshl_b32 s{S_T2}, s{S_J}, 8", [S_J], [S_T2]))
    a(S(f"s_add_u32 s{S_T0}, s{S_T0}, s{S_T2}", [S_T0, S_T2], [S_T0]))
    a(S(f"s_lshl_b32 s{S_T2}, s{S_W}, 6", [S_W], [S_T2]))
    a(S(f"s_add_u32 s{S_T0}, s{S_T0}, s{S_T2}", [S_T0, S_T2], [S_T0]))
    a(V(f"v_add_u32 v{V_OUT}, s{S_T0}, v{T2}", [T2, ('s', S_T0)], [V_OUT]))
    a(V(f"v_cmp_gt_u32 vcc, 40, v{V_LANE}", [V_LANE], [VCC]))
    a(V(f"v_mov_b32 v{T0}, 0x7ff00000", [], [T0]))
    a(V(f"v_cndmask_b32 v{V_PLD}, v{T0}, v{V_PLD}, vcc", [T0, V_PLD, VCC], [V_PLD]))
    a(V(f"v_cndmask_b32 v{V_OUT}, v{T0}, v{V_OUT}, vcc", [T0, V_OUT, VCC], [V_OUT]))
    for k in range(5): a(S(f"s_mov_b32 s{S_TAB+k}, {k*8192}", [], [S_TAB+k]))
    return o
def wod_calc():
    o = []; a = o.append
    T0, T1 = 252, 253
    a(S(f"s_lshl_b32 s{S_T0}, s{S_B}, 2", [S_B], [S_T0]))
    a(S(f"s_add_u32 s{S_T0}, s{S_T0}, s{S_W}", [S_T0, S_W], [S_T0]))
    a(S(f"s_lshl_b32 s{S_T0}, s{S_T0}, 14", [S_T0], [S_T0]))
    a(S(f"s_lshl_b32 s{S_T2}, s{S_J}, 8", [S_J], [S_T2]))
    a(S(f"s_add_u32 s{S_T0}, s{S_T0}, s{S_T2}", [S_T0, S_T2], [S_T0]))
    a(V(f"v_bfe_u32 v{T0}, v{V_LANE}, 1, 4", [V_LANE], [T0]))
    a(V(f"v_and_b32 v{T1}, 1, v{V_LANE}", [V_LANE], [T1]))
    a(V(f"v_lshlrev_b32 v{T1}, 7, v{T1}", [T1], [T1]))
    a(V(f"v_lshl_add_u32 v{T0}, v{T0}, 10, v{T1}", [T0, T1], [T0]))
    a(V(f"v_add_u32 v{V_TCH}, s{S_T0}, v{T0}", [T0, ('s', S_T0)], [V_TCH]))
    a(S(f"s_and_b32 s{S_T0}, s{S_W}, 1", [S_W], [S_T0]))
    a(S(f"s_lshl_b32 s{S_T0}, s{S_T0}, 3", [S_T0], [S_T0]))
    a(V(f"v_lshl_add_u32 v{T0}, v{V_G}, 1, s{S_T0}", [V_G, ('s', S_T0)], [T0]))
    a(V(f"v_xor_b32 v{T0}, v{V_N}, v{T0}", [V_N, T0], [T0]))
    a(S(f"s_lshl_b32 s{S_T0}, s{S_J}, 8", [S_J], [S_T0]))
    a(V(f"v_lshl_add_u32 v{T0}, v{T0}, 4, s{S_T0}", [T0, ('s', S_T0)], [T0]))
    a(V(f"v_lshl_add_u32 v{T1}, s{S_W}, 2, v{V_G}", [V_G, ('s', S_W)], [T1]))
    a(V(f"v_lshl_add_u32 v{V_WOD}, v{T1}, 10, v{T0}", [T0, T1], [V_WOD]))
    return o

def phase_b(sg, Q, qr):
    NT = 8
    calc = wod_calc() + tail_calc()
    sg.addall(qr[:4])
    qr = qr[4:]
    for tau in range(-1, 40):
        i, q = divmod(tau, 5) if tau >= 0 else (-1, 4)
        mf = []
        bst = [int(x) for x in opt.bst.split(',')]
        if tau in bst: stamp(sg, 5 + bst.index(tau), 'B')
        if tau + 1 < 40: mf += qk(tau + 1)
        if tau - 1 >= 0: mf += pv(tau - 1)
        ds, marks = [], []
        if tau == -1: ds = qr
        elif tau == 0: ds = v_reads(0); marks = [('vr', 0, 0), ('vr', 0, 1)]
        elif i < NT:
            if q == 2 and i + 1 < NT: ds = k_reads(i + 1)[:4]; marks = [('kr', i + 1, 0)]
            if q == 3 and i + 1 < NT: ds = k_reads(i + 1)[4:]; marks = [('kr', i + 1, 1)]
            if q == 4 and i + 1 < NT: ds = v_reads(i + 1)[:8]; marks = [('vr', i + 1, 0)]
            if q == 0: ds = v_reads(i)[8:]; marks = [('vr', i, 1)]
            if i == NT - 1 and q >= 2: ds = comb_writes(q - 2)
        n = len(mf)
        gaps = [[] for _ in range(n)]
        e, c = sm(tau) if 0 <= tau < 40 else ([], [])
        if n == 17:
            epos = [0, 2, 4, 6, 8, 10, 12, 14]; cpos = [3, 7, 11, 15]
            dpos = [1, 3, 5, 7, 9, 11, 13, 15] if len(ds) > 4 else [1, 3, 5, 7]
            if ds and ds[0].k == 'dswr': dpos = [1, 1, 3, 7, 9, 13, 16]
            vpos = [1, 5, 9, 13] if (tau < int(opt.even_at) or q == 1) else [1, 7, 13]
        else:
            epos = list(range(8)); cpos = [min(n - 1, x) for x in (2, 4, 6, 8)]
            dpos = [(k * n) // max(1, len(ds)) for k in range(len(ds))]
            vpos = [1, 5]
        for x, p_ in zip(ds, dpos): gaps[p_].append(x)
        if tau == int(opt.nl_at):
            sg.add(V("v_mov_b32 v9, 0", [], [9]))
            Q.q.insert(0, Item([], vload(('v', V_GC), 2, 9, S_D, None, 0, flags=' sc1', tag='non')))
        if tau == int(opt.nc_at):
            assert not any(it.ins.vmtag == 'non' for it in Q.q)
            sg.add(V(f"v_readfirstlane_b32 s{S_NON}, v{V_GC}", [V_GC], [('s', S_NON)]))
            sg.add(V(f"v_readfirstlane_b32 s{S_NON+1}, v{V_GC+1}", [V_GC+1], [('s', S_NON+1)]))
            sg.add(S(f"s_cmp_eq_u64 s[{S_NON}:{S_NON+1}], 0", [S_NON, S_NON+1], []))
            sg.text("s_cbranch_scc1 L_spin_n"); sg.text("L_back_n:")
        if tau == int(opt.bar_at): sg.add(barrier(lg0=False))
        for x in ds:
            while any(it.ins.vmtag in x.needvm for it in Q.q): weave(sg, Q, [], 1, 0)
        if tau == int(opt.tch_at): Q.push([Item([], vload(('v', V_TCH + 1), 1, V_TCH, S_WO, None, 0))])
        if tau == int(opt.wo_at): assert not calc; Q.push(wo_dma(-1))
        place(gaps, Q, vpos)
        for x, p_ in zip(e, epos): gaps[p_].append(x)
        for x, p_ in zip(c, cpos): gaps[p_].append(x)
        if tau >= int(opt.calc_at) and n == 17:
            for gi in range(17):
                if calc and calc[0].k == 'salu' and not any(y.k == 'salu' for y in gaps[gi]): gaps[gi].insert(0, calc.pop(0))
                cost = sum(8 if y.k == 'trans' else 0 if y.k == 'salu' else 4 for y in gaps[gi])
                while calc and calc[0].k != 'salu' and cost <= 4: gaps[gi].append(calc.pop(0)); cost += 4
        sg.addall(interleave(mf, gaps))
        for m in marks: Q.mark(m)

def poll(sg, lab, vaddr):
    sg.text(f"s_mov_b32 s{S_SPIN}, {opt.spin}")
    sg.text(f"{lab}:")
    sg.text(f"buffer_load_dwordx2 v[250:251], v{vaddr}, s[{S_C}:{S_C+3}], 0 offen sc1")
    sg.text(f"s_sub_u32 s{S_SPIN}, s{S_SPIN}, 1")
    sg.text("s_waitcnt vmcnt(0)")
    sg.text(f"v_cmp_ne_u64 vcc, s[{S_NON}:{S_NON+1}], v[250:251]")
    sg.text(f"s_cmp_eq_u32 s{S_SPIN}, 0")
    sg.text(f"s_cbranch_scc1 {lab}_done")
    sg.text("s_nop 2")
    sg.text(f"s_cbranch_vccnz {lab}")
    sg.text(f"{lab}_done:")
    sg.vm = []
def raise_flag(sg, stage, lab):
    n, sh = (4, 7) if stage == 1 else (8, 9)
    sg.text(f"s_cmp_lg_u32 s{S_W}, 0"); sg.text(f"s_cbranch_scc1 {lab}")
    sg.text(f"s_mov_b64 s[{S_EX}:{S_EX+1}], exec"); sg.text(f"s_mov_b64 exec, {(1 << n) - 1 if n < 7 else '0xff'}")
    for x in [f"v_lshl_add_u32 v9, v{V_LANE}, {sh}, s{S_G1 if stage == 1 else S_G2}", f"v_mov_b32 v250, s{S_NON}", f"v_mov_b32 v251, s{S_NON+1}",
              f"buffer_store_dwordx2 v[250:251], v9, s[{S_C}:{S_C+3}], 0 offen sc1"]: sg.text(x)
    sg.text(f"s_mov_b64 exec, s[{S_EX}:{S_EX+1}]")
    sg.text(f"{lab}:")
WOF = A_Q
RES = 100
def combine(sg, Q):
    LS = 76
    def PRB(q): return [100, 164, 188, 212 - 0, 0][q]
    def part(q, k):
        base = {0: 196, 1: 100, 2: 164, 3: 36, 4: 196}[q]
        r = base + 4 * k
        if q == 3 and k >= 5: r = 64 + 4 * (k - 5)
        return r
    def preads(q):
        o = []
        for jd in range(1, 4):
            for e in range(2):
                k = (jd - 1) * 2 + e; u = q * 6 + k; row = u >> 3
                o.append(dsrd('ds_read_b128', ('v', part(q, k)), 4, V_CR + 2 * (jd - 1) + (row >> 1), (row & 1) * 32 * KB + (u & 7) * KB))
        return o
    def lreg(src, q): return LS + src * 5 + q
    def lreads(qs):
        o = []
        for src in range(4):
            if qs == (0, 1): o.append(dsrd('ds_read_b64', ('v', LS + src * 2), 2, V_LR, src * 8 * KB))
            else: o.append(dsrd('ds_read_b128', ('v', LS + 8 + src * 4), 4, V_LR, src * 8 * KB + 16))
        return o
    def lsum(qs):
        w = []
        def lr(src, q): return LS + src * 2 + q if q < 2 else LS + 8 + src * 4 + q - 2
        for q in qs:
            d = V_T0 + q
            w.append(V(f"v_add_f32 v{d}, v{lr(0,q)}, v{lr(1,q)}", [lr(0,q), lr(1,q)], [d]))
            w.append(V(f"v_add_f32 v{lr(2,q)}, v{lr(2,q)}, v{lr(3,q)}", [lr(2,q), lr(3,q)], [lr(2,q)]))
            w.append(V(f"v_add_f32 v{d}, v{d}, v{lr(2,q)}", [d, lr(2,q)], [d]))
        a_, b_, c_ = V_T0 + qs[0], V_T0 + qs[1], V_T0 + qs[-1]
        w.append(V(f"v_min3_f32 v{LS}, v{a_}, v{b_}, v{c_}", [a_, b_, c_], [LS]))
        w.append(V(f"v_add_f32 v{LS+1}, v{a_}, v{b_}", [a_, b_], [LS+1]))
        w.append(V(f"v_add_f32 v{LS+1}, v{LS+1}, v{c_}", [LS+1, c_], [LS+1]))
        w.append(V(f"v_cmp_nle_f32 vcc, {f2h(2.0**int(opt.lo_exp))}, v{LS}", [LS], [VCC]))
        w.append(S(f"s_mov_b64 s[{S_EX}:{S_EX+1}], vcc", [VCC], [S_EX, S_EX+1]))
        w.append(V(f"v_cmp_nge_f32 vcc, {f2h(2.0**int(opt.hi_exp))}, v{LS+1}", [LS+1], [VCC]))
        w.append(S(f"s_or_b64 vcc, vcc, s[{S_EX}:{S_EX+1}]", [VCC, S_EX, S_EX+1], [VCC]))
        w.append(S(f"s_and_b64 vcc, vcc, s[{S_GM}:{S_GM+1}]", [VCC], [VCC]))
        w.append(raw("s_cbranch_vccnz L_redo"))
        for q in qs: w.append(T(f"v_rcp_f32 v{V_T0+q}, v{V_T0+q}", [V_T0+q], [V_T0+q]))
        return w
    def finish(q):
        w = []
        for e in range(2):
            o_ = V_OWN[q] + e * 4
            for jd in range(1, 4):
                p_ = part(q, (jd - 1) * 2 + e)
                for r in (0, 2):
                    w.append(V(f"v_pk_add_f32 v[{o_+r}:{o_+r+1}], v[{o_+r}:{o_+r+1}], v[{p_+r}:{p_+r+1}]", [o_+r, o_+r+1, p_+r, p_+r+1], [o_+r, o_+r+1]))
        o_ = V_OWN[q]
        ri = V_T0 + (q & ~1); sel = "op_sel:[0,1] op_sel_hi:[1,1]" if q & 1 else "op_sel:[0,0] op_sel_hi:[1,0]"
        for r in range(0, 8, 2):
            w.append(V(f"v_pk_mul_f32 v[{o_+r}:{o_+r+1}], v[{o_+r}:{o_+r+1}], v[{ri}:{ri+1}] {sel}", [o_+r, o_+r+1, V_T0+q], [o_+r, o_+r+1]))
        for r in range(4):
            w.append(V(f"v_cvt_pk_bf16_f32 v{o_+r}, v{o_+2*r}, v{o_+2*r+1}", [o_+2*r, o_+2*r+1], [o_+r]))
        w.append(S(f"s_mov_b32 s{S_SV}, {q*128*KB}", [], [S_SV]))
        w.append(vstore(('v', o_), 4, V_OST, S_O, S_SV, 0, flags=' sc1', tag='ost'))
        return w
    assert not Q.q
    b = barrier(needvm=[('wo', -1)], lg0=False); b.needlg = (('cw', 0), ('cw', 1)); sg.add(b)
    wor = [dsrd('ds_read_b64_tr_b16', ('a', WOF + (ks * 2 + e) * 4 + h * 2), 2, V_WT + 4 + e, ks * 8 * KB + h * 4096) for ks in range(4) for e in range(2) for h in range(2)]
    mf = pv(39); gaps = [[] for _ in mf]
    rd = lreads((0, 1)) + preads(1); wr = comb_writes(3)
    for k, x in enumerate(rd): gaps[min(8, k)].append(x)
    for k, x in enumerate(wr): gaps[min(8, (k * 9) // len(wr))].append(x)
    sg.addall(interleave(mf, gaps))
    stamp(sg, 4)
    sg.addall(preads(0))
    w4 = comb_writes(4)
    w = lsum((0, 1)) + finish(1) + finish(0)
    for k, x in enumerate(w4): w.insert(min(len(w), 4 + k * 8), x)
    for k, x in enumerate(wor): w.insert(min(len(w), 22 + k * 3), x)
    sg.addall(w)
    sg.add(barrier())
    stamp(sg, 5)
    Q.push(wo_dma(0))
    rd = lreads((2, 3, 4)) + preads(2) + preads(3)
    weave(sg, Q, rd, int(opt.cw), 2)
    sg.addall(rd)
    sg.addall(lsum((2, 3, 4)) + preads(4) + finish(2) + finish(3) + finish(4))
    stamp(sg, 6)

def phase_c(sg, Q):
    a = sg.add
    ACC = 164
    a(barrier())
    stamp(sg, 5, 'D')
    for q in range(5): a(dswr('ds_write_b128', V_OW, ('v', V_OWN[q]), 4, q * KB))
    Q.push(wo_dma(1) + wo_dma(2))
    weave(sg, Q, [], int(opt.shadow), 0)
    stamp(sg, 6, 'D')
    a(barrier(needvm=['ost']))
    stamp(sg, 7, 'D')
    stamp(sg, 7)
    raise_flag(sg, 1, "L_sig1")
    def CF(k): return [(100, 120), (64, 84), (204, 36)][k % 3]
    def c_reads(k):
        pos, ks = divmod(k, 4); pos -= 1
        xf, wf = CF(k)
        ob = 0 if pos < 0 else (44 - 20 * pos) * KB
        xr = [dsrd('ds_read_b128', ('v', xf + q * 4), 4, V_OL, ob + (ks * 5 + q) * KB) for q in range(5)]
        if pos < 0: return xr
        wb = (pos * 4 + ks) * 8 * KB
        wr = [dsrd('ds_read_b64_tr_b16', ('v', wf + e * 4 + h * 2), 2, V_WT + (2 if wb >= 64 * KB else 0) + e, (wb % (64 * KB)) + h * 4096) for e in range(2) for h in range(2)]
        return wr[:2] + xr[:1] + wr[2:] + xr[1:]
    def c_mfmas(k):
        xf, wf = CF(k)
        ff = 'v'
        if k < 4: wf, ff = WOF + k * 8, 'a'
        o = []
        for q in range(5):
            for e in range(2):
                d = ('v', ACC + (q * 2 + e) * 4)
                o.append(mfma(d, (ff, wf + e * 4), ('v', xf + q * 4), 0 if k == 0 else d))
        o[0].r |= set(R('v', xf, 20) + R(ff, wf, 8))
        return o
    def step(k, nx, pos=()):
        mf = c_mfmas(k); gaps = [[] for _ in mf]
        if nx is not None:
            for i, r in enumerate(c_reads(nx)): gaps[i].append(r)
        place(gaps, Q, pos)
        sg.addall(interleave(mf, gaps))
    sg.addall(c_reads(0)); sg.addall(c_reads(1))
    for k in range(4): step(k, k + 2 if k < 2 else None, [1, 5, 9] if k % 2 == 0 else [3, 7])
    assert not Q.q
    stamp(sg, 8, 'D')
    t = [f"s_mov_b32 s{S_SPIN}, {opt.spin}", "L_poll1:", f"s_load_dwordx8 s[4:11], s[{S_C}:{S_C+1}], s{S_F1} glc", f"s_sub_u32 s{S_SPIN}, s{S_SPIN}, 1", "s_waitcnt lgkmcnt(0)",
         f"s_cmp_eq_u32 s{S_SPIN}, 0", "s_cbranch_scc1 L_poll1_done"]
    for h in range(4): t += [f"s_cmp_lg_u64 s[{4+2*h}:{5+2*h}], s[{S_NON}:{S_NON+1}]", "s_cbranch_scc1 L_poll1"]
    t += ["L_poll1_done:"]
    if int(opt.p1w): t = [f"s_cmp_lg_u32 s{S_W}, 0", "s_cbranch_scc1 L_poll1_done"] + t + ["s_waitcnt lgkmcnt(0)", "s_barrier"]
    for x in t: sg.text(x)
    sg.lg = []
    stamp(sg, 9, 'D')
    stamp(sg, 5, 'E')
    stamp(sg, 8)
    Q.push(osib_dma(0) + osib_dma(1))
    weave(sg, Q, [], 10, 0)
    stamp(sg, 6, 'E')
    a(barrier(needvm=[('os', 0), ('wo', 2)]))
    stamp(sg, 7, 'E')
    Q.push(osib_dma(2))
    sg.addall(c_reads(4)); sg.addall(c_reads(5))
    def pfin(q):
        b = ACC + q * 8
        return [V(f"v_cvt_pk_bf16_f32 v{b+r}, v{b+2*r}, v{b+2*r+1}", [b+2*r, b+2*r+1], [b+r]) for r in range(4)] + [vstore(('v', b), 4, V_PS, S_WT, S_TAB + q, 0, flags=' sc1', tag='pst')]
    last = 16 - (2 if int(opt.qmaj) else 0)
    for k in range(4, last):
        nx = k + 2 if k + 2 < 16 else None
        if nx in (8, 12):
            assert not Q.q or nx == 8
            a(barrier(needvm=[('os', nx // 4 - 1)], lg0=False))
            stamp(sg, 8 if nx == 8 else 9, 'E')
        step(k, nx, [1, 5, 9] if k % 2 == 0 else [3, 7])
    if int(opt.qmaj):
        m14, m15 = c_mfmas(14), c_mfmas(15)
        m15[0].r -= set(R('v', CF(15)[0] + 4, 16))
        mf = flat([[m14[2*q], m15[2*q], m14[2*q+1], m15[2*q+1]] for q in range(5)])
        gaps = [[] for _ in mf]
        for q in range(4):
            f_ = pfin(q)
            g0 = 4 * q + 6
            if g0 + 2 < 20:
                gaps[g0] += f_[0:2]; gaps[g0 + 1] += f_[2:4]; gaps[g0 + 2] += f_[4:]
        sg.addall(interleave(mf, gaps))
        stamp(sg, 9)
        sg.addall(pfin(3) + pfin(4))
    else:
        stamp(sg, 9)
        for q in range(5): sg.addall(pfin(q))
    a(barrier(needvm=['pst'], lg0=False))
    stamp(sg, 5, '2')
    raise_flag(sg, 2, "L_sig2")
    a(S(f"s_mov_b32 s{S_SO}, 4096", [], [S_SO]))
    a(S(f"s_mov_b32 s{S_T1}, 0xffff0000", [], [S_T1]))
    PB, SM, U = 100, 140, 148
    def pl(h): return vload(('v', PB + 4 * h), 4, V_PLD, S_WT, S_SO if h >= 4 else None, (h & 3) * 1024, flags=' sc1')
    t = [f"s_mov_b32 s{S_SPIN}, {opt.spin}", f"s_mov_b32 s{S_T2}, 0", "L_poll2:", f"s_load_dwordx16 s[4:19], s[{S_C}:{S_C+1}], s{S_F2} glc", f"s_sub_u32 s{S_SPIN}, s{S_SPIN}, 1",
         "s_waitcnt lgkmcnt(0)", f"s_cmp_eq_u32 s{S_SPIN}, 0", "s_cbranch_scc1 L_poll2_done"]
    for h in range(8):
        t += [f"s_cmp_lg_u64 s[{4+2*h}:{5+2*h}], s[{S_NON}:{S_NON+1}]", f"s_cbranch_scc1 L_g{h}", f"s_bitcmp1_b32 s{S_T2}, {h}", f"s_cbranch_scc1 L_g{h}",
              f"s_bitset1_b32 s{S_T2}, {h}", pl(h).t, f"L_g{h}:"]
    t += [f"s_cmp_lg_u32 s{S_T2}, 0xff", "s_cbranch_scc1 L_poll2", "L_poll2_done:"]
    if int(opt.p2w):
        t = [f"s_cmp_lg_u32 s{S_W}, 0", "s_cbranch_scc1 L_poll2_done", f"s_mov_b32 s{S_SPIN}, {opt.spin}", "L_poll2:", f"s_load_dwordx16 s[4:19], s[{S_C}:{S_C+1}], s{S_F2} glc",
             f"s_sub_u32 s{S_SPIN}, s{S_SPIN}, 1", "s_waitcnt lgkmcnt(0)", f"s_cmp_eq_u32 s{S_SPIN}, 0", "s_cbranch_scc1 L_poll2_done"]
        for h in range(8): t += [f"s_cmp_lg_u64 s[{4+2*h}:{5+2*h}], s[{S_NON}:{S_NON+1}]", "s_cbranch_scc1 L_poll2"]
        t += ["L_poll2_done:", "s_barrier"] + [pl(h).t for h in range(8)]
    for x in t: sg.text(x)
    stamp(sg, 6, '2')
    sg.drain()
    for h in range(8):
        d = SM if h == 0 else U
        for r in range(4):
            a(V(f"v_lshlrev_b32 v{d+2*r}, 16, v{PB+4*h+r}", [PB+4*h+r], [d+2*r]))
            a(V(f"v_and_b32 v{d+2*r+1}, s{S_T1}, v{PB+4*h+r}", [PB+4*h+r], [d+2*r+1]))
        if h:
            for r in range(0, 8, 2):
                a(V(f"v_pk_add_f32 v[{SM+r}:{SM+r+1}], v[{SM+r}:{SM+r+1}], v[{U+r}:{U+r+1}]", [SM+r, SM+r+1, U+r, U+r+1], [SM+r, SM+r+1]))
    for r in range(4):
        a(V(f"v_cvt_pk_bf16_f32 v{SM+r}, v{SM+2*r}, v{SM+2*r+1}", [SM+2*r, SM+2*r+1], [SM+r]))
    a(vstore(('v', SM), 2, V_OUT, S_OUT, None, 0))
    a(vstore(('v', SM + 2), 2, V_OUT, S_OUT, None, 32))

def out_of_line():
    t = []
    t += ["L_spin_n:", f"s_mov_b32 s{S_SPIN}, {opt.spin}", "L_spin_n1:",
          f"buffer_load_dwordx2 v[{V_GC}:{V_GC+1}], v9, s[{S_D}:{S_D+3}], 0 offen sc1", f"s_sub_u32 s{S_SPIN}, s{S_SPIN}, 1", "s_waitcnt vmcnt(0)",
          f"v_readfirstlane_b32 s{S_NON}, v{V_GC}", f"v_readfirstlane_b32 s{S_NON+1}, v{V_GC+1}", f"s_cmp_eq_u32 s{S_SPIN}, 0", "s_cbranch_scc1 L_back_n", "s_nop 2",
          f"s_cmp_eq_u64 s[{S_NON}:{S_NON+1}], 0", "s_cbranch_scc1 L_spin_n1", "s_branch L_back_n"]
    t += ["L_redo:", f"s_mov_b64 s[{S_GM}:{S_GM+1}], 0", f"s_mov_b32 s{S_REDO}, 1",
          "s_waitcnt vmcnt(0) lgkmcnt(0)", "s_barrier"]
    sg = Seg()
    p1 = prologue1()
    a = sg.add
    a(V(f"v_lshl_add_u32 v{V_T0}, s{S_W}, 2, v{V_G}", [V_G], [V_T0]))
    a(V(f"v_xor_b32 v{V_T1}, v{V_N}, v{V_T0}", [V_N, V_T0], [V_T1]))
    a(V(f"v_lshlrev_b32 v{V_T1}, 4, v{V_T1}", [V_T1], [V_T1]))
    a(V(f"v_lshl_add_u32 v{V_XD}, v{V_T0}, 10, v{V_T1}", [V_T0, V_T1], [V_XD]))
    a(S(f"s_and_b32 s{S_T0}, s{S_W}, 2", [S_W], [S_T0]))
    a(S(f"s_lshl_b32 s{S_T0}, s{S_T0}, 2", [S_T0], [S_T0]))
    a(V(f"v_lshl_add_u32 v{V_T1}, v{V_G}, 1, s{S_T0}", [V_G], [V_T1]))
    a(V(f"v_xor_b32 v{V_T1}, v{V_N}, v{V_T1}", [V_N, V_T1], [V_T1]))
    a(V(f"v_lshlrev_b32 v{V_T1}, 4, v{V_T1}", [V_T1], [V_T1]))
    a(V(f"v_lshl_add_u32 v{V_WD}, v{V_T0}, 13, v{V_T1}", [V_T0, V_T1], [V_WD]))
    t += sg.out + ["s_nop 4", "s_branch L_restart"]
    sg = Seg(); a = sg.add
    sg.text("L_max:")
    sg.text(f"s_mov_b32 s{S_SPIN}, m0")
    sg.drain()
    sg.text("s_barrier")
    MX, KF, AD = 76, V_VF, 84
    for q in range(5): a(V(f"v_mov_b32 v{MX+q}, 0xff800000", [], [MX+q]))
    for s in range(4): a(V(f"v_add_u32 v{AD+s}, {96*KB}, v{V_KA+s}", [V_KA+s], [AD+s]))
    a(S(f"s_mov_b32 s{S_T2}, 0", [], [S_T2]))
    sg.text("L_max_loop:"); sg.reset_hist()
    for j in range(8):
        if j % 4 == 0:
            a(S(f"s_add_u32 s{S_T1}, s{S_T2}, {(j>>2)*4096}", [S_T2], [S_T1]))
            a(S(f"s_add_u32 m0, s{S_W8K}, {96*KB + (j>>2)*4096}", [S_W8K], [M0]))
        a(dma(V_KD + (j & 3), S_K, S_T1, 1024 * (j & 3), 'mk'))
    for t_ in range(2):
        for s in range(4):
            a(dsrd('ds_read_b128', ('v', KF + (t_ * 4 + s) * 4), 4, AD + s, t_ * 4096, needvm=['mk']))
    for q in range(5):
        for t_ in range(2):
            d = ('v', 88 + t_ * 4)
            for s in range(4): a(mfma(d, ('v', KF + (t_ * 4 + s) * 4), AQ(q, s), 0 if s == 0 else d))
        for k in range(4):
            a(V(f"v_max3_f32 v{MX+q}, v{MX+q}, v{88+2*k}, v{89+2*k}", [MX+q, 88+2*k, 89+2*k], [MX+q]))
    sg.drain()
    a(S(f"s_add_u32 s{S_T2}, s{S_T2}, 8192", [S_T2], [S_T2]))
    sg.text(f"s_cmp_lt_u32 s{S_T2}, 65536"); sg.text("s_nop 4"); sg.text("s_cbranch_scc1 L_max_loop")
    sg.text("s_barrier")
    a(S(f"s_mul_i32 s{S_T0}, s{S_W}, 1280", [S_W], [S_T0]))
    a(S(f"s_add_u32 s{S_T0}, s{S_T0}, {96*KB}", [S_T0], [S_T0]))
    a(V(f"v_lshl_add_u32 v{AD}, v{V_LANE}, 2, s{S_T0}", [V_LANE], [AD]))
    a(S(f"s_mov_b32 s{S_T0}, {96*KB}", [], [S_T0]))
    a(V(f"v_lshl_add_u32 v{AD+1}, v{V_N}, 2, s{S_T0}", [V_N], [AD+1]))
    for q in range(5): a(dswr('ds_write_b32', AD, ('v', MX + q), 1, q * 256))
    a(barrier())
    for q in range(5):
        for k in range(16):
            a(dsrd('ds_read_b32', ('v', KF + k), 1, AD + 1, (k >> 2) * 1280 + q * 256 + (k & 3) * 64))
        for k in range(8):
            a(V(f"v_max3_f32 v{MX+q}, v{MX+q}, v{KF+2*k}, v{KF+2*k+1}", [MX+q, KF+2*k, KF+2*k+1], [MX+q]))
        for r in range(4):
            a(V(f"v_sub_f32 v{V_NEGM+q*4+r}, 0, v{MX+q}", [MX+q], [V_NEGM+q*4+r]))
    sg.drain()
    sg.text("s_barrier"); sg.text(f"s_mov_b32 m0, s{S_SPIN}"); sg.text("s_nop 4"); sg.text("s_branch L_back_max")
    return t + sg.out

def stamp_out(sg, n):
    if not opt.stamps: return
    stamp(sg, n - 1)
    t = ["s_load_dwordx2 s[4:5], s[0:1], 56", "s_waitcnt lgkmcnt(0)", f"s_add_u32 s4, s4, {16<<20}", "s_addc_u32 s5, s5, 0", "s_and_b32 s5, s5, 0xffff",
         "s_mov_b32 s6, 0x100000", "s_mov_b32 s7, 0x20000", "s_lshl_b32 s8, s2, 2", "s_add_u32 s8, s8, s32", "s_lshl_b32 s8, s8, 6", "v_mov_b32 v2, s8"]
    for i in range(n):
        t += [f"v_mov_b32 v3, s{3 if i == 0 else 76+2*i}", f"buffer_store_dword v3, v2, s[4:7], 0 offen offset:{4*i}"]
    for x in t: sg.text(x)

def kernel():
    sg = Seg()
    sg.text(NAME + "_kernel:")
    sg.text("s_cmp_ge_u32 s2, 256")
    sg.text("s_cbranch_scc1 L_end")
    if opt.stamps:
        stamp(sg, 0)
    p1 = prologue1()
    sg.addall(p1[:2])
    if int(opt.cpf):
        for x in ["s_getpc_b64 s[94:95]", "L_pc:", "s_lshr_b32 s3, s2, 3", "v_lshrrev_b32 v8, 6, v0", "v_and_b32 v9, 1, v0", "v_lshl_add_u32 v8, v8, 1, v9",
                  "v_lshl_add_u32 v8, s3, 3, v8", "v_lshlrev_b32 v8, 7, v8", "v_min_u32 v8, (L_code_end - L_pc - 4) & 0xffffff80, v8", "global_load_dword v255, v8, s[94:95]"]: sg.text(x)
    sg.addall(p1[2:])
    if opt.stamps:
        sg.text("s_mov_b32 s3, s76")
    p2 = prologue2()
    Q = Queue()
    first = x_dma(0) + w_dma(0)
    sg.addall(restart_setup())
    stamp(sg, 5, 'P')
    Q.push(first)
    weave(sg, Q, [], 9, 0)
    stamp(sg, 6, 'P')
    sg.addall(p2)
    stamp(sg, 7, 'P')
    sg.text("s_cmp_lg_u32 s2, 0"); sg.text("s_cbranch_scc1 L_nocz")
    lane0(sg, ["v_mov_b32 v9, 0", f"buffer_load_dwordx2 v[250:251], v9, s[{S_D}:{S_D+3}], 0 offen sc1", f"s_memrealtime s[{S_NON}:{S_NON+1}]", "s_waitcnt vmcnt(0) lgkmcnt(0)",
               "v_or_b32 v250, v250, v251", "v_cmp_eq_u32 vcc, 0, v250", f"v_mov_b32 v250, s{S_NON}", f"v_mov_b32 v251, s{S_NON+1}", "s_nop 1", "s_and_b64 exec, exec, vcc",
               "s_cbranch_execz L_nocz2", f"buffer_store_dwordx2 v[250:251], v9, s[{S_D}:{S_D+3}], 0 offen sc1", "L_nocz2:"], "L_nocz")
    sg.text("s_branch L_first")
    sg.text("L_restart:")
    s2 = Seg(); s2.addall(restart_setup()); Q2 = Queue(); Q2.push(x_dma(0) + w_dma(0)); weave(s2, Q2, [], 9, 0)
    for x in s2.out: sg.text(x)
    sg.text("L_first:")
    early, late = prologue3()
    early = early + late
    def BB(u): return f"B{u + 1}"
    Q.push(w_dma(1) + x_dma(1) + w_dma(2) + w_dma(3) + x_dma(2) + w_dma(4) + x_dma(3) + w_dma(5, 'B2') + w_dma(6, 'B3') + w_dma(7, 'B4')
           + kv_dma('k', 0, 'B5') + kv_dma('v', 0, 'B6') + kv_dma('k', 1, 'BQ') + kv_dma('v', 1, 'BQ'))
    for i in range(2, 8):
        if not int(opt.nodma): Q.push(kv_dma('k', i) + kv_dma('v', i))
    n0 = int(opt.n0) - 9
    weave(sg, Q, early, n0, (len(early) + n0 - 1) // n0)
    sg.addall(early)
    qr = phase_a(sg, Q)
    sg.addall(qr[:0])
    stamp(sg, 3)
    sg.text(f"s_cmp_eq_u32 s{S_REDO}, 0"); sg.text("s_cbranch_scc1 L_back_max")
    s2 = Seg(); s2.addall(qr)
    for x in s2.out: sg.text(x)
    sg.text("s_branch L_max")
    sg.text("L_back_max:")
    phase_b(sg, Q, qr)
    combine(sg, Q)
    phase_c(sg, Q)
    sg.text("L_fin:")
    stamp_out(sg, 11)
    sg.text("L_end:")
    sg.text("s_endpgm")
    return sg.out + ['L_code_end:'] + out_of_line()

def report_kernel():
    idx, mode = opt.report.split(',')
    t = ["report_kernel:", "s_cmp_ge_u32 s2, 1", "s_cbranch_scc1 L3_end", "s_load_dwordx2 s[4:5], s[0:1], 56", "s_waitcnt lgkmcnt(0)",
         f"s_add_u32 s4, s4, {16<<20}", "s_addc_u32 s5, s5, 0", "s_and_b32 s5, s5, 0xffff", "s_mov_b32 s6, 0x100000", "s_mov_b32 s7, 0x20000",
         "v_lshlrev_b32 v1, 8, v0", f"buffer_load_dword v2, v1, s[4:7], 0 offen offset:{4*int(idx)}", "buffer_load_dword v3, v1, s[4:7], 0 offen",
         "v_mov_b32 v4, 0", "v_mov_b32 v5, 0", "v_mov_b32 v6, -1", "ds_write_b32 v4, v5", "ds_write_b32 v4, v6 offset:8", "s_waitcnt vmcnt(0) lgkmcnt(0)", "s_barrier",
         "ds_min_u32 v4, v3 offset:8", "s_waitcnt lgkmcnt(0)", "s_barrier", "ds_read_b32 v6, v4 offset:8", "s_waitcnt lgkmcnt(0)", "v_sub_u32 v2, v2, v6",
         "v_lshrrev_b32 v7, 3, v0", "v_mul_u32_u24 v7, 52, v7", "v_lshrrev_b32 v7, 8, v7", "v_and_b32 v8, 1, v0", "v_sub_u32 v8, 6, v8", "v_cmp_lt_u32 vcc, v7, v8",
         "v_min_u32 v2, 10000, v2",
         ("ds_add_u32 v4, v2" if mode == 'mean' else "ds_max_u32 v4, v2"), "s_waitcnt lgkmcnt(0)", "s_barrier", "ds_read_b32 v6, v4", "s_memrealtime s[12:13]", "s_waitcnt lgkmcnt(0)",
         "v_readfirstlane_b32 s10, v6", "s_nop 4"]
    if mode == 'mean': t += ["s_mul_i32 s10, s10, 10", "s_lshr_b32 s10, s10, 8"]
    elif mode == 'max': t += ["s_mul_i32 s10, s10, 10"]
    else: t += ["s_mov_b32 s10, 0"]
    t += ["L3_spin:", "s_memrealtime s[14:15]", "s_waitcnt lgkmcnt(0)", "s_sub_u32 s14, s14, s12",
          "s_cmp_lt_u32 s14, s10", "s_cbranch_scc1 L3_spin", "L3_end:", "s_endpgm"]
    return t

def build():
    def fmt(l): return "\n".join(x if x.endswith(':') else "    " + x for x in l)
    nm = NAME + "_kernel"
    s = "; @launch grid=(256,1,1) block=(256,1,1) lds=163840\n"
    if opt.report:
        s = f"; @launch kernel={nm} grid=(256,1,1) block=(256,1,1) lds=163840\n; @launch kernel=report_kernel grid=(1,1,1) block=(256,1,1) lds=64\n"
    s += '.amdgcn_target "amdgcn-amd-amdhsa--gfx950"\n.text\n'
    s += f".globl {nm}\n.p2align 8\n.type {nm},@function\n" + fmt(kernel()) + "\n"
    if opt.report: s += ".globl report_kernel\n.p2align 8\n.type report_kernel,@function\n" + fmt(report_kernel()) + "\n"
    s += f""".section .rodata,"a"
.p2align 6
.amdhsa_kernel {nm}
  .amdhsa_next_free_vgpr 512
  .amdhsa_next_free_sgpr 102
  .amdhsa_accum_offset 256
  .amdhsa_group_segment_fixed_size 0
  .amdhsa_kernarg_size 64
  .amdhsa_user_sgpr_count 2
  .amdhsa_user_sgpr_kernarg_segment_ptr 1
  .amdhsa_system_sgpr_workgroup_id_x 1
  .amdhsa_float_denorm_mode_32 3
.end_amdhsa_kernel
"""
    if opt.report:
        s += """.p2align 6
.amdhsa_kernel report_kernel
  .amdhsa_next_free_vgpr 32
  .amdhsa_next_free_sgpr 32
  .amdhsa_accum_offset 32
  .amdhsa_group_segment_fixed_size 0
  .amdhsa_kernarg_size 64
  .amdhsa_user_sgpr_count 2
  .amdhsa_user_sgpr_kernarg_segment_ptr 1
  .amdhsa_system_sgpr_workgroup_id_x 1
.end_amdhsa_kernel
"""
    return s

if __name__ == '__main__':
    out = sys.argv[1] if len(sys.argv) > 1 else 'cdna_kernels/' + NAME + '.s'
    for a_ in sys.argv[2:]:
        k, v = a_.split('=', 1)
        setattr(opt, k, (' ' + v) if k.endswith('flags') and v else v)
    txt = build()
    open(out, 'w').write(txt)
```

```python
import sys, struct
from dsl import *

KB = 1024
NAME = 'standalone__gqa_block_cached__near_ridge'
def f2h(x): return hex(struct.unpack('<I', struct.pack('<f', x))[0])
QSCALE = 1.4426950408889634 / (128 ** 0.5)
WS_WO = 8 << 20
WS_CT = 12 << 20

class Opt:
    stamps = ''
    report = ''
    kv_flags = ''
    a_flags = ''
    n0 = 26
    warm = 1
    perstep = 6
    lo_exp = -40
    hi_exp = 40
    spin = 300000
    rt_at = 5
    bar_at = 12
    nodma = 0
    out_flags = ''
    bsched = 1
    p1w = 1
    p2w = 0
    pollk = '19,29,39'
    dyn2 = 1
    qmaj = 1
    tch_at = 27
    even_at = 15
    pdepth = 1
    kvo = 4
    finw = 0
    alim = 13
    cpf = 1
    chain = 1
    wo_at = 32
    calc_at = 16
    nl_at = 8
    nc_at = 13
    cw = 8
    shadow = 8
    bst = '0,5,10,15,20'
    no_rt = 0
    clk = 'r'
    lg0 = 0
    vpos = '1,5,9,13'
    rot_kv = 1
    rot_a = 2
    rot_c = 1
    gl_at = 29
    gc_at = 33
opt = Opt()

S_X, S_WQ, S_K, S_V, S_O, S_WO, S_WT, S_WL, S_C, S_D, S_OUT = 4, 8, 12, 16, 20, 24, 28, 52, 56, 60, 64
S_W, S_B, S_HKV, S_HQ = 32, 33, 34, 35
S_W1K, S_W8K, S_SO, S_T0, S_T1, S_T2, S_SK, S_SV = 36, 37, 38, 39, 40, 41, 42, 43
S_TAB = 44
S_REDO, S_MT, S_NT, S_VALID, S_RT, S_SPIN = 68, 69, 70, 71, 72, 73
S_EX = 74
S_F1, S_F2, S_G1, S_G2 = 100, 101, 72, 51
S_GM = 70
S_J_UNUSED = 3
S_P = 76
S_ST = 80
V_LANE, V_N, V_G, V_T0, V_T1, V_T2, V_T3, V_T4, V_T5 = 1, 2, 3, 4, 5, 6, 7, 8, 9
V_KA, V_VA, V_KD, V_VD = 10, 14, 22, 26
V_OST, V_CW, V_LW = 28, 29, 31
V_ONES, V_NEGM, V_L, V_S, V_P, V_KF, V_VF = 32, 36, 56, 76, 92, 100, 164
V_XA, V_XB, V_WA, V_WB, V_XD, V_WD, V_QW = 228, 232, 236, 238, 240, 241, 242
V_GC = 250
S_NON = 96
V_CR, V_LR, V_WOD, V_WT, V_OL, V_OW, V_OD, V_PS, V_PLD, V_OUT, V_P1, V_P2 = 228, 234, 235, 236, 242, 243, 244, 245, 246, 247, 248, 249
V_TCH = 64
S_H = 52
S_W5K = 55
S_J = 69
A_O, A_Q = 0, 160
V_OWN = [132, 140, 148, 156, 56]
A_KF1, A_L = 120, 240
def AO(lam, q):
    if lam < 2: return ('v', V_OWN[q] + 4 * lam)
    return ('a', A_O + 4 * (q * 6 + lam - 2))
def KF(i, k): return ('v', V_KF + 4 * k) if i % 2 == 0 else ('a', A_KF1 + 4 * k)
def LA(q): return ('a', A_L + 4 * q) if q < 4 else ('a', 152)
def AQ(q, s): return ('a', A_Q + 4 * (q * 4 + s))

def XU(c, q):
    if c == 0: return q * 4 * KB
    if c == 1: return 20 * KB + q * 4 * KB
    if c == 2: return 128 * KB + q * 4 * KB
    return [120, 124, 148, 152, 156][q] * KB
def WU(slot, ks):
    return {0: [40, 48], 1: [56, 96], 2: [104, 112], 3: [64, 72], 4: [80, 88]}[slot][ks] * KB
WSLOT = [0, 1, 2, 3, 4, 0, 1, 2]
QBUF = 128 * KB

def V(t, r=(), w=()):
    return valu(t, r=[('v', x) if isinstance(x, int) else x for x in r], w=[('v', x) if isinstance(x, int) else x for x in w])
def T(t, r=(), w=()):
    return valu(t, r=[('v', x) for x in r], w=[('v', x) for x in w], trans=True)
def S(t, r=(), w=()):
    return salu(t, r=[('s', x) if isinstance(x, int) else x for x in r], w=[('s', x) if isinstance(x, int) else x for x in w])
M0 = ('m0', 0)
VCC = ('vcc', 0)
def flat(l): return [x for y in l for x in y]

def srd(dst, plo, add_s=None, add_imm=0, size=0):
    o = []
    if add_s is not None:
        o.append(S(f"s_add_u32 s{dst}, s{plo}, s{add_s}", [plo, add_s], [dst]))
        o.append(S(f"s_addc_u32 s{dst+1}, s{plo+1}, 0", [plo+1], [dst+1]))
        o.append(S(f"s_and_b32 s{dst+1}, s{dst+1}, 0xffff", [dst+1], [dst+1]))
    elif add_imm:
        o.append(S(f"s_add_u32 s{dst}, s{plo}, {add_imm}", [plo], [dst]))
        o.append(S(f"s_addc_u32 s{dst+1}, s{plo+1}, 0", [plo+1], [dst+1]))
        o.append(S(f"s_and_b32 s{dst+1}, s{dst+1}, 0xffff", [dst+1], [dst+1]))
    else:
        o.append(S(f"s_mov_b32 s{dst}, s{plo}", [plo], [dst]))
        o.append(S(f"s_and_b32 s{dst+1}, s{plo+1}, 0xffff", [plo+1], [dst+1]))
    if isinstance(size, str):
        o.append(S(f"s_mov_b32 s{dst+2}, {size}", [int(size[1:])], [dst+2]))
    else:
        o.append(S(f"s_mov_b32 s{dst+2}, {size}", [], [dst+2]))
    o.append(S(f"s_mov_b32 s{dst+3}, 0x20000", [], [dst+3]))
    return o

KV_ORDER = [[0, 2, 1, 3, 4, 6, 5, 7], [0, 1, 3, 2, 4, 5, 7, 6], [1, 0, 2, 4, 3, 5, 6, 7], [1, 0, 2, 3, 5, 4, 6, 7]]
KV_ORDERS = [KV_ORDER,
  [[0, 4, 1, 2, 3, 5, 6, 7], [1, 0, 5, 2, 3, 4, 6, 7], [2, 0, 1, 6, 3, 4, 5, 7], [3, 0, 1, 2, 7, 4, 5, 6]],
  [[0, 1, 2, 3, 4, 5, 6, 7], [0, 1, 2, 3, 4, 5, 6, 7], [4, 5, 6, 7, 0, 1, 2, 3], [4, 5, 6, 7, 0, 1, 2, 3]],
  [[0, 2, 1, 3, 5, 4, 6, 7], [1, 0, 3, 2, 4, 6, 5, 7], [2, 1, 0, 4, 3, 5, 7, 6], [0, 1, 2, 3, 5, 4, 6, 7]],
  [[0, 1, 2, 4, 3, 5, 6, 7], [1, 0, 2, 3, 5, 4, 6, 7], [2, 0, 1, 3, 4, 6, 5, 7], [0, 1, 3, 2, 4, 5, 7, 6]],
  [[0, 1, 4, 2, 3, 5, 6, 7], [1, 0, 2, 5, 3, 4, 6, 7], [2, 0, 1, 3, 6, 4, 5, 7], [0, 3, 1, 2, 4, 7, 5, 6]]]
def kv_pack(j):
    o = KV_ORDERS[int(opt.kvo)][j] if int(opt.rot_kv) else list(range(8))
    return sum(t << (4 * i) for i, t in enumerate(o))
S_KVO = 98
V_XD4 = 204
S_WC = 99

class Item:
    def __init__(s, pre, ins, after=None): s.pre, s.ins, s.after = pre, ins, after
def x_dma(c, after=None):
    return [Item([S(f"s_add_u32 m0, s{S_W1K}, {XU(c,q)}", [S_W1K], [M0])],
                 dma(V_XD4 + c, S_X, S_TAB + q, 0, ('x', c), flags=opt.a_flags), after) for q in range(5)]
def w_dma(u, after=None):
    o = []
    for k in range(4):
        pre = []
        if k == 0:
            pre.append(S(f"s_add_u32 s{S_SK}, s{S_WC}, {(u & 6) << 19}", [S_WC], [S_SK]))
            pre.append(S(f"s_and_b32 s{S_SK}, s{S_SK}, {7 << 19}", [S_SK], [S_SK]))
            if u & 1: pre.append(S(f"s_xor_b32 s{S_SK}, s{S_SK}, {1 << 19}", [S_SK], [S_SK]))
        pre.append(S(f"s_add_u32 s{S_SO}, s{S_SK}, {k*131072}", [S_SK], [S_SO]))
        pre.append(S(f"s_add_u32 m0, s{S_W1K}, {WU(WSLOT[u], k>>1) + (k&1)*4*KB}", [S_W1K], [M0]))
        o.append(Item(pre, dma(V_WD, S_WQ, S_SO, 0, ('w', u), flags=opt.a_flags), after))
    return o
def kv_dma(kind, i, after=None):
    o = []
    base = (i & 1) * 32 * KB + (0 if kind == 'k' else 64 * KB)
    sr, so = (S_K, S_SK) if kind == 'k' else (S_V, S_SV)
    for j in range(8):
        pre = []
        if j % 4 == 0:
            if j == 0:
                pre.append(S(f"s_bfe_u32 s{so}, s{S_KVO}, {hex((3 << 16) | (4 * i))}", [S_KVO], [so]))
                pre.append(S(f"s_lshl_b32 s{so}, s{so}, 13", [so], [so]))
            else:
                pre.append(S(f"s_add_u32 s{so}, s{so}, 4096", [so], [so]))
            pre.append(S(f"s_add_u32 m0, s{S_W8K}, {base + (j>>2)*4096}", [S_W8K], [M0]))
        va = V_KD + (j & 3) if kind == 'k' else V_VD + (j & 1)
        tag = (kind + 'r', i - 2, j >> 2)
        o.append(Item(pre, dma(va, sr, so, 1024 * (j & 3), (kind, i, j >> 2), needlg=[tag], flags=opt.kv_flags), after if i < 2 else tag))
    return o
def k_reads(i):
    return [dsrd('ds_read_b128', KF(i, t * 4 + s), 4, V_KA + s, (i & 1) * 32 * KB + t * 4096,
                 needvm=[('k', i, t)], lgtag=('kr', i, t)) for t in range(2) for s in range(4)]
def v_reads(i):
    return [dsrd('ds_read_b64_tr_b16', ('v', V_VF + (i & 1) * 32 + lam * 4 + h * 2), 2, V_VA + lam, (i & 1) * 32 * KB + h * 4096,
                 needvm=[('v', i, h)], lgtag=('vr', i, h)) for h in range(2) for lam in range(8)]

class Queue:
    def __init__(s): s.q = []; s.pts = set()
    def push(s, items): s.q += items
    def mark(s, p): s.pts.add(p)
    def pop(s):
        if s.q and (s.q[0].after is None or s.q[0].after in s.pts): return s.q.pop(0)
        return None

def place(gaps, Q, pos):
    last = -1
    for p in pos:
        if p >= len(gaps): continue
        it = Q.pop()
        if it is None: break
        pre = list(it.pre)
        avail = list(range(last + 1, p))
        front = []
        if not avail: front = pre
        else:
            slots = [[] for _ in avail]
            for k_, x in enumerate(reversed(pre)):
                slots[max(0, len(avail) - 1 - k_)].insert(0, x)
            for g, sl in zip(avail, slots):
                k_ = 0
                while k_ < len(gaps[g]) and gaps[g][k_].k == 'salu': k_ += 1
                gaps[g][k_:k_] = sl
        k = 0
        while k < len(gaps[p]) and gaps[p][k].k == 'salu': k += 1
        gaps[p][k:k] = front + [it.ins]
        last = p
def weave(sg, Q, fill, n, per):
    for _ in range(n):
        it = Q.pop()
        if it is not None: sg.addall(it.pre + [it.ins])
        for _ in range(per):
            if fill: sg.add(fill.pop(0))

NST = 12
def stamp(sg, i, grp='1'):
    if not opt.stamps: return
    if 5 <= i <= 9 and grp != opt.stamps: return
    sg.text(f"{'s_memtime' if opt.clk == 'c' else 's_memrealtime'} s[{76+2*i}:{77+2*i}]")

def prologue1():
    o = []; a = o.append
    a(raw("s_load_dwordx2 s[92:93], s[0:1], 0"))
    a(raw("s_load_dwordx4 s[96:99], s[0:1], 24"))
    a(V(f"v_lshrrev_b32 v{V_T0}, 6, v0", [0], [V_T0]))
    a(V(f"v_and_b32 v{V_LANE}, 63, v0", [0], [V_LANE]))
    a(V(f"v_readfirstlane_b32 s{S_W}, v{V_T0}", [V_T0], [('s', S_W)]))
    a(S(f"s_and_b32 s{S_HKV}, s2, 7", [2], [S_HKV]))
    a(S(f"s_lshr_b32 s{S_B}, s2, 5", [2], [S_B]))
    a(S(f"s_bfe_u32 s{S_T0}, s2, 0x20003", [2], [S_T0]))
    a(S(f"s_mov_b32 s{S_J}, s{S_T0}", [S_T0], [S_J]))
    a(S(f"s_lshl_b32 s{S_HQ}, s{S_HKV}, 2", [S_HKV], [S_HQ]))
    a(S(f"s_add_u32 s{S_HQ}, s{S_HQ}, s{S_T0}", [S_HQ, S_T0], [S_HQ]))
    if int(opt.rot_a) == 2:
        a(S(f"s_add_u32 s{S_VALID}, s{S_T0}, s{S_B}", [S_T0, S_B], [S_VALID]))
        a(S(f"s_and_b32 s{S_VALID}, s{S_VALID}, 1", [S_VALID], [S_VALID]))
        a(S(f"s_lshl_b32 s{S_VALID}, s{S_VALID}, 2", [S_VALID], [S_VALID]))
    elif int(opt.rot_a) == 4:
        a(S(f"s_add_u32 s{S_VALID}, s{S_T0}, s{S_B}", [S_T0, S_B], [S_VALID]))
        a(S(f"s_and_b32 s{S_VALID}, s{S_VALID}, 3", [S_VALID], [S_VALID]))
        a(S(f"s_lshl_b32 s{S_VALID}, s{S_VALID}, 1", [S_VALID], [S_VALID]))
    elif int(opt.rot_a):
        a(S(f"s_lshl_b32 s{S_T0}, s{S_T0}, 1", [S_T0], [S_T0]))
        a(S(f"s_add_u32 s{S_VALID}, s{S_T0}, s{S_B}", [S_T0, S_B], [S_VALID]))
        a(S(f"s_and_b32 s{S_VALID}, s{S_VALID}, 7", [S_VALID], [S_VALID]))
    else:
        a(S(f"s_mov_b32 s{S_VALID}, 0", [], [S_VALID]))
    a(V(f"v_and_b32 v{V_N}, 15, v{V_LANE}", [V_LANE], [V_N]))
    a(V(f"v_lshrrev_b32 v{V_G}, 4, v{V_LANE}", [V_LANE], [V_G]))
    a(S(f"s_lshl_b32 s{S_W1K}, s{S_W}, 10", [S_W], [S_W1K]))
    a(S(f"s_lshl_b32 s{S_W8K}, s{S_W}, 13", [S_W], [S_W8K]))
    a(V(f"v_lshl_add_u32 v{V_T0}, s{S_W}, 2, v{V_G}", [V_G, ('s', S_W)], [V_T0]))
    a(V(f"v_xor_b32 v{V_T1}, v{V_N}, v{V_T0}", [V_N, V_T0], [V_T1]))
    a(V(f"v_lshlrev_b32 v{V_T1}, 4, v{V_T1}", [V_T1], [V_T1]))
    a(V(f"v_lshl_add_u32 v{V_XD}, v{V_T0}, 10, v{V_T1}", [V_T0, V_T1], [V_XD]))
    a(S(f"s_and_b32 s{S_T0}, s{S_W}, 2", [S_W], [S_T0]))
    a(S(f"s_lshl_b32 s{S_T0}, s{S_T0}, 2", [S_T0], [S_T0]))
    a(V(f"v_lshl_add_u32 v{V_T1}, v{V_G}, 1, s{S_T0}", [V_G, ('s', S_T0)], [V_T1]))
    a(V(f"v_xor_b32 v{V_T1}, v{V_N}, v{V_T1}", [V_N, V_T1], [V_T1]))
    a(V(f"v_lshlrev_b32 v{V_T1}, 4, v{V_T1}", [V_T1], [V_T1]))
    a(V(f"v_lshl_add_u32 v{V_WD}, v{V_T0}, 13, v{V_T1}", [V_T0, V_T1], [V_WD]))
    a(S(f"s_mul_i32 s{S_T0}, s{S_B}, 81920", [S_B], [S_T0]))
    a(S(f"s_lshl_b32 s{S_T2}, s{S_HQ}, 8", [S_HQ], [S_T2]))
    a(S(f"s_sub_u32 s{S_T1}, 4194304, s{S_T2}", [S_T2], [S_T1]))
    a(S(f"s_mov_b32 s{S_REDO}, 0", [], [S_REDO]))
    a(raw("s_waitcnt lgkmcnt(0)", 'wait'))
    o += srd(S_X, 92, add_s=S_T0, size=81920)
    o += srd(S_WQ, 96, add_s=S_T2, size=f"s{S_T1}")
    a(S(f"s_lshl_b32 s{S_T0}, s{S_HKV}, 19", [S_HKV], [S_T0]))
    o += srd(S_WO, 98, add_s=S_T0, size=524288)
    a(S(f"s_lshl_b32 s{S_WC}, s{S_VALID}, 19", [S_VALID], [S_WC]))
    a(S(f"s_mov_b64 s[{S_GM}:{S_GM+1}], -1", [], [S_GM, S_GM+1]))
    a(raw("s_load_dwordx4 s[92:95], s[0:1], 8"))
    a(raw(f"s_load_dwordx4 s[{S_C}:{S_C+3}], s[0:1], 40"))
    a(raw("s_load_dwordx2 s[100:101], s[0:1], 56"))
    return o

def restart_setup():
    o = [S(f"s_mov_b32 s{S_TAB+q}, {q*16384}", [], [S_TAB+q]) for q in range(5)]
    for c in range(4):
        o.append(S(f"s_lshr_b32 s{S_T0}, s{S_WC}, 12", [S_WC], [S_T0]))
        o.append(S(f"s_add_u32 s{S_T0}, s{S_T0}, {c*256}", [S_T0], [S_T0]))
        o.append(S(f"s_and_b32 s{S_T0}, s{S_T0}, 0x300", [S_T0], [S_T0]))
        o.append(V(f"v_add_u32 v{V_XD4+c}, s{S_T0}, v{V_XD}", [V_XD, ('s', S_T0)], [V_XD4+c]))
    return o

def prologue2():
    o = []; a = o.append
    a(raw("s_waitcnt lgkmcnt(0)", 'wait'))
    a(S(f"s_lshl_b32 s{S_T0}, s{S_B}, 3", [S_B], [S_T0]))
    a(S(f"s_add_u32 s{S_T0}, s{S_T0}, s{S_HKV}", [S_T0, S_HKV], [S_T0]))
    a(S(f"s_lshl_b32 s{S_T0}, s{S_T0}, 2", [S_T0], [S_T0]))
    a(S(f"s_add_u32 s{S_T0}, s{S_T0}, s{S_W}", [S_T0, S_W], [S_T0]))
    a(S(f"s_lshl_b32 s{S_T0}, s{S_T0}, 16", [S_T0], [S_T0]))
    o += srd(S_K, 92, add_s=S_T0, size=65536)
    o += srd(S_V, 94, add_s=S_T0, size=65536)
    o += srd(S_O, 100, size=8*5*128*1024)
    o += srd(S_WT, 100, add_imm=WS_WO, size=8*4*20*8*1024)
    o += srd(S_D, S_C + 2, size=256)
    o += srd(S_OUT, S_C, size=655360)
    o += srd(S_C, 100, add_imm=WS_CT, size=65536)
    a(S(f"s_bitcmp1_b32 s{S_HQ}, 0", [S_HQ], []))
    a(S(f"s_mov_b32 s{S_T0}, {hex(kv_pack(0))}", [], [S_T0]))
    a(S(f"s_cselect_b32 s{S_T0}, {hex(kv_pack(1))}, s{S_T0}", [S_T0], [S_T0]))
    a(S(f"s_mov_b32 s{S_T1}, {hex(kv_pack(2))}", [], [S_T1]))
    a(S(f"s_cselect_b32 s{S_T1}, {hex(kv_pack(3))}, s{S_T1}", [S_T1], [S_T1]))
    a(S(f"s_bitcmp1_b32 s{S_HQ}, 1", [S_HQ], []))
    a(S(f"s_cselect_b32 s{S_KVO}, s{S_T1}, s{S_T0}", [S_T0, S_T1], [S_KVO]))
    for p in range(3):
        a(S(f"s_cmp_le_u32 s{S_J}, {p}", [S_J], []))
        a(S(f"s_cselect_b32 s{S_T1}, {p + 1}, {p}", [], [S_T1]))
        a(S(f"s_lshl_b32 s{S_H+p}, s{S_T1}, 17", [S_T1], [S_H+p]))
    a(S(f"s_mul_i32 s{S_W5K}, s{S_W}, 5120", [S_W], [S_W5K]))
    a(S(f"s_lshl_b32 s{S_T0}, s{S_B}, 12", [S_B], [S_T0]))
    a(S(f"s_lshl_b32 s{S_F1}, s{S_HQ}, 7", [S_HQ], [S_F1]))
    a(S(f"s_add_u32 s{S_F1}, s{S_F1}, s{S_T0}", [S_F1, S_T0], [S_F1]))
    a(S(f"s_add_u32 s{S_F2}, s{S_F1}, 32768", [S_F1], [S_F2]))
    a(S(f"s_lshl_b32 s{S_T1}, s{S_HKV}, 9", [S_HKV], [S_T1]))
    a(S(f"s_lshl_b32 s{S_G1}, s{S_J}, 3", [S_J], [S_G1]))
    a(S(f"s_add_u32 s{S_G1}, s{S_G1}, s{S_T1}", [S_G1, S_T1], [S_G1]))
    a(S(f"s_add_u32 s{S_G1}, s{S_G1}, s{S_T0}", [S_G1, S_T0], [S_G1]))
    a(S(f"s_lshl_b32 s{S_T1}, s{S_J}, 7", [S_J], [S_T1]))
    a(S(f"s_lshl_b32 s{S_G2}, s{S_HKV}, 3", [S_HKV], [S_G2]))
    a(S(f"s_add_u32 s{S_G2}, s{S_G2}, s{S_T1}", [S_G2, S_T1], [S_G2]))
    a(S(f"s_add_u32 s{S_G2}, s{S_G2}, s{S_T0}", [S_G2, S_T0], [S_G2]))
    a(S(f"s_add_u32 s{S_G2}, s{S_G2}, 32768", [S_G2], [S_G2]))
    return o

def prologue3():
    o = []; a = o.append
    a(S(f"s_bfe_u32 s{S_T1}, s{S_WC}, 0x10013", [S_WC], [S_T1]))
    a(S(f"s_lshl_b32 s{S_T1}, s{S_T1}, 3", [S_T1], [S_T1]))
    a(V(f"v_xor_b32 v{V_T1}, s{S_T1}, v{V_N}", [V_N, ('s', S_T1)], [V_T1]))
    for s in range(4):
        a(V(f"v_add_u32 v{V_T0}, {4*s}, v{V_G}", [V_G], [V_T0]))
        a(V(f"v_xor_b32 v{V_T0}, v{V_T0}, v{V_T1}", [V_T0, V_T1], [V_T0]))
        a(V(f"v_lshlrev_b32 v{V_T0}, 4, v{V_T0}", [V_T0], [V_T0]))
        a(V(f"v_lshl_add_u32 v{V_XA+s}, v{V_N}, 8, v{V_T0}", [V_N, V_T0], [V_XA+s]))
        a(V(f"v_add_u32 v{V_XB+s}, {120*KB}, v{V_XA+s}", [V_XA+s], [V_XB+s]))
    a(V(f"v_lshrrev_b32 v{V_T2}, 2, v{V_N}", [V_N], [V_T2]))
    a(V(f"v_bfe_u32 v{V_T3}, v{V_N}, 1, 1", [V_N], [V_T3]))
    a(V(f"v_and_b32 v{V_T4}, 1, v{V_N}", [V_N], [V_T4]))
    a(V(f"v_lshlrev_b32 v{V_T4}, 3, v{V_T4}", [V_T4], [V_T4]))
    a(V(f"v_and_b32 v{V_T5}, 1, v{V_G}", [V_G], [V_T5]))
    a(V(f"v_lshl_add_u32 v{V_T5}, v{V_T5}, 2, v{V_T2}", [V_T5, V_T2], [V_T5]))
    a(V(f"v_lshlrev_b32 v{V_T5}, 1, v{V_T5}", [V_T5], [V_T5]))
    a(S(f"s_lshl_b32 s{S_T1}, s{S_W}, 2", [S_W], [S_T1]))
    a(V(f"v_lshl_add_u32 v{V_T1}, v{V_G}, 3, v{V_T2}", [V_G, V_T2], [V_T1]))
    a(V(f"v_lshl_add_u32 v{V_T1}, v{V_T1}, 8, v{V_T4}", [V_T1, V_T4], [V_T1]))
    for e in range(2):
        a(V(f"v_add3_u32 v{V_T0}, s{S_T1}, v{V_T3}, {2*e}", [V_T3, ('s', S_T1)], [V_T0]))
        a(V(f"v_xor_b32 v{V_T0}, v{V_T0}, v{V_T5}", [V_T0, V_T5], [V_T0]))
        a(V(f"v_lshl_add_u32 v{V_T0}, v{V_T0}, 4, v{V_T1}", [V_T0, V_T1], [V_T0]))
        a(V(f"v_add_u32 v{V_WA+e}, {40*KB}, v{V_T0}", [V_T0], [V_WA+e]))
        a(V(f"v_add_u32 v{V_WB+e}, {96*KB}, v{V_T0}", [V_T0], [V_WB+e]))
    a(V(f"v_lshl_add_u32 v{V_T1}, v{V_G}, 2, v{V_T2}", [V_G, V_T2], [V_T1]))
    n_early = len(o)
    for s in range(4):
        a(V(f"v_add_u32 v{V_KA+s}, s{S_W8K}, v{V_XA+s}", [V_XA+s, ('s', S_W8K)], [V_KA+s]))
    a(V(f"v_lshl_add_u32 v{V_T1}, v{V_T1}, 8, v{V_T4}", [V_T1, V_T4], [V_T1]))
    a(S(f"s_add_u32 s{S_T2}, s{S_W8K}, {64*KB}", [S_W8K], [S_T2]))
    a(V(f"v_add_u32 v{V_T1}, s{S_T2}, v{V_T1}", [V_T1, ('s', S_T2)], [V_T1]))
    a(V(f"v_add_u32 v{V_T3}, s{S_T1}, v{V_T3}", [V_T3, ('s', S_T1)], [V_T3]))
    for lam in range(8):
        a(V(f"v_add_u32 v{V_T0}, {2*lam}, v{V_T3}", [V_T3], [V_T0]))
        a(V(f"v_and_b32 v{V_T0}, 15, v{V_T0}", [V_T0], [V_T0]))
        a(V(f"v_xor_b32 v{V_T0}, v{V_T0}, v{V_T5}", [V_T0, V_T5], [V_T0]))
        a(V(f"v_lshl_add_u32 v{V_VA+lam}, v{V_T0}, 4, v{V_T1}", [V_T0, V_T1], [V_VA+lam]))
    a(V(f"v_xor_b32 v{V_T0}, v{V_N}, v{V_G}", [V_N, V_G], [V_T0]))
    a(V(f"v_lshlrev_b32 v{V_T0}, 4, v{V_T0}", [V_T0], [V_T0]))
    a(V(f"v_lshl_add_u32 v{V_KD}, v{V_G}, 8, v{V_T0}", [V_G, V_T0], [V_KD]))
    for j in range(1, 4):
        a(V(f"v_xor_b32 v{V_KD+j}, {64*j}, v{V_KD}", [V_KD], [V_KD+j]))
    a(V(f"v_lshlrev_b32 v{V_T0}, 1, v{V_G}", [V_G], [V_T0]))
    a(V(f"v_xor_b32 v{V_T0}, v{V_N}, v{V_T0}", [V_N, V_T0], [V_T0]))
    a(V(f"v_lshlrev_b32 v{V_T0}, 4, v{V_T0}", [V_T0], [V_T0]))
    a(V(f"v_lshl_add_u32 v{V_VD}, v{V_G}, 8, v{V_T0}", [V_G, V_T0], [V_VD]))
    a(V(f"v_xor_b32 v{V_VD+1}, 128, v{V_VD}", [V_VD], [V_VD+1]))
    a(V(f"v_lshrrev_b32 v{V_T0}, 1, v{V_G}", [V_G], [V_T0]))
    a(V(f"v_add_u32 v{V_T0}, s{S_T1}, v{V_T0}", [V_T0, ('s', S_T1)], [V_T0]))
    a(V(f"v_xor_b32 v{V_T0}, v{V_T0}, v{V_N}", [V_T0, V_N], [V_T0]))
    a(V(f"v_lshlrev_b32 v{V_T0}, 4, v{V_T0}", [V_T0], [V_T0]))
    a(V(f"v_lshl_add_u32 v{V_T0}, v{V_N}, 8, v{V_T0}", [V_N, V_T0], [V_T0]))
    a(V(f"v_and_b32 v{V_T1}, 1, v{V_G}", [V_G], [V_T1]))
    a(V(f"v_lshl_add_u32 v{V_T0}, v{V_T1}, 3, v{V_T0}", [V_T0, V_T1], [V_T0]))
    a(V(f"v_add_u32 v{V_QW}, {QBUF}, v{V_T0}", [V_T0], [V_QW]))
    a(V(f"v_xor_b32 v{V_QW+1}, 32, v{V_QW}", [V_QW], [V_QW+1]))
    a(V(f"v_lshl_add_u32 v{V_CW}, v{V_LANE}, 4, s{S_W8K}", [V_LANE, ('s', S_W8K)], [V_CW]))
    a(V(f"v_add_u32 v{V_CW+1}, {64*KB}, v{V_CW}", [V_CW], [V_CW+1]))
    a(S(f"s_add_u32 s{S_T0}, s{S_W8K}, {102*KB}", [S_W8K], [S_T0]))
    a(V(f"v_lshl_add_u32 v{V_LW}, v{V_LANE}, 5, s{S_T0}", [V_LANE, ('s', S_T0)], [V_LW]))
    a(S(f"s_mul_i32 s{S_T0}, s{S_B}, 640", [S_B], [S_T0]))
    a(S(f"s_lshl_b32 s{S_T2}, s{S_HQ}, 2", [S_HQ], [S_T2]))
    a(S(f"s_add_u32 s{S_T0}, s{S_T0}, s{S_T2}", [S_T0, S_T2], [S_T0]))
    a(S(f"s_add_u32 s{S_T0}, s{S_T0}, s{S_W}", [S_T0, S_W], [S_T0]))
    a(S(f"s_lshl_b32 s{S_T0}, s{S_T0}, 10", [S_T0], [S_T0]))
    a(V(f"v_lshl_add_u32 v{V_OST}, v{V_LANE}, 4, s{S_T0}", [V_LANE, ('s', S_T0)], [V_OST]))
    a(V(f"v_cmp_eq_u32 vcc, 0, v{V_N}", [V_N], [VCC]))
    a(V(f"v_mov_b32 v{V_T0}, 0x3f803f80", [], [V_T0]))
    for i in range(4):
        a(V(f"v_cndmask_b32 v{V_ONES+i}, 0, v{V_T0}, vcc", [V_T0, VCC], [V_ONES+i]))
    for i in range(20):
        a(V(f"v_mov_b32 v{V_NEGM+i}, 0", [], [V_NEGM+i]))
    return o[:n_early], o[n_early:]

V_QACC = V_VF
def AF(kap):
    return [(100, 120), (128, 148), (208, 156)][kap % 3]
def a_reads(kap):
    u, ks = kap >> 1, kap & 1
    c, s = u >> 1, kap & 3
    xf, wf = AF(kap)
    wb = WU(WSLOT[u], ks)
    xr = []
    for q in range(5):
        xb = XU(c, q)
        reg, base = (V_XA, 0) if xb < 64 * KB else (V_XB, 120 * KB)
        xr.append(dsrd('ds_read_b128', ('v', xf + q * 4), 4, reg + s, xb - base))
    wr = []
    for e in range(2):
        for h in range(2):
            reg, base = (V_WA, 40 * KB) if wb < 96 * KB else (V_WB, 96 * KB)
            wr.append(dsrd('ds_read_b64_tr_b16', ('v', wf + e * 4 + h * 2), 2, reg + e, wb - base + h * 1024))
    return wr[:2] + xr[:1] + wr[2:] + xr[1:]
def a_mfmas(kap):
    o = []
    xf, wf = AF(kap)
    for q in range(5):
        for e in range(2):
            d = ('v', V_QACC + (e * 5 + q) * 4)
            o.append(mfma(d, ('v', wf + e * 4), ('v', xf + q * 4), 0 if kap == 0 else d))
    return o
def lane0(sg, body, lab):
    sg.text(f"s_cmp_lg_u32 s{S_W}, 0"); sg.text(f"s_cbranch_scc1 {lab}")
    sg.text(f"s_mov_b64 s[{S_EX}:{S_EX+1}], exec"); sg.text("s_mov_b64 exec, 1")
    for x in body: sg.text(x)
    sg.text(f"s_mov_b64 exec, s[{S_EX}:{S_EX+1}]")
    sg.text(f"{lab}:")
def phase_a(sg, Q):
    stamp(sg, 1)
    sg.add(barrier(needvm=[('x', 0), ('w', 0)])); Q.mark('B0')
    stamp(sg, 2)
    sg.addall(a_reads(0)); sg.addall(a_reads(1))
    for kap in range(16):
        mf = a_mfmas(kap)
        gaps = [[] for _ in mf]
        nx = kap + 2
        if nx < 16:
            if nx % 2 == 0:
                u = nx >> 1
                need = [('x', u >> 1), ('w', u)]
                while any(it.ins.vmtag in need for it in Q.q):
                    n_ = len(Q.q); weave(sg, Q, [], 1, 0); assert len(Q.q) < n_, (u, Q.q[0].after)
                sg.add(barrier(needvm=need, lg0=False)); Q.mark(f'B{u}')
                if u in (1, 3, 5, 7): stamp(sg, 5 + u // 2, 'A')
            for i, r in enumerate(a_reads(nx)): gaps[i].append(r)
        mf[0].r |= set(R('v', AF(kap)[0], 20) + R('v', AF(kap)[1], 8))
        pos = [1, 5, 9] if kap % 2 == 0 else [3, 7]
        if int(opt.perstep) == 6: pos = [1, 4, 7] if kap % 2 == 0 else [1, 4, 8]
        if int(opt.perstep) == 7: pos = [1, 4, 6, 9] if kap % 2 == 0 else [2, 5, 8]
        if int(opt.perstep) == 8: pos = [1, 4, 6, 9]
        nkv = sum(1 for it in Q.q if it.ins.vmtag[0] in 'kv')
        room = int(opt.alim) - (128 - nkv) + (len(Q.q) - nkv)
        place(gaps, Q, pos[:max(0, room)])
        sg.addall(interleave(mf, gaps))
    stamp(sg, 9, 'A')
    fin = []
    for q in range(5):
        for e in range(2):
            b = V_QACC + (e * 5 + q) * 4
            for r in (0, 2):
                fin.append(V(f"v_pk_mul_f32 v[{b+r}:{b+r+1}], v[{b+r}:{b+r+1}], s[{S_T1}:{S_T1+1}]", [b+r, b+r+1], [b+r, b+r+1]))
            fin.append(V(f"v_cvt_pk_bf16_f32 v{b}, v{b}, v{b+1}", [b, b+1], [b]))
            fin.append(V(f"v_cvt_pk_bf16_f32 v{b+1}, v{b+2}, v{b+3}", [b+2, b+3], [b+1]))
            fin.append(dswr('ds_write_b64', V_QW + e, ('v', b), 2, q * 4096, lgtag='qw'))
    sg.add(S(f"s_mov_b32 s{S_T1}, {f2h(QSCALE)}", [], [S_T1]))
    sg.add(S(f"s_mov_b32 s{S_T2}, {f2h(QSCALE)}", [], [S_T2]))
    weave(sg, Q, fin, int(opt.finw), 15)
    sg.addall(fin)
    while any(it.ins.vmtag in (('k', 0, 0), ('k', 0, 1)) for it in Q.q): weave(sg, Q, [], 1, 0)
    b = barrier(lg0=False); b.needlg = ('qw',)
    sg.addall(k_reads(0)); Q.mark(('kr', 0, 0)); Q.mark(('kr', 0, 1))
    sg.add(b); Q.mark('BQ')
    qr = [dsrd('ds_read_b128', AQ(q, s), 4, V_XB + s, QBUF - 120 * KB + q * 4096) for q in range(5) for s in range(4)]
    return qr

def qk(tau):
    i, q = divmod(tau, 5)
    o = []
    for s, t in ([(s, t) for t in range(2) for s in range(4)] if int(opt.chain) else [(s, t) for s in range(4) for t in range(2)]):
        if True:
            d = ('v', V_S + (tau & 1) * 8 + t * 4)
            o.append(mfma(d, KF(i, t * 4 + s), AQ(q, s), ('v', V_NEGM + q * 4) if s == 0 else d))
    return o
def pv(tau):
    i, q = divmod(tau, 5)
    p = ('v', V_P + (tau & 1) * 4)
    o = [mfma(AO(lam, q), ('v', V_VF + (i & 1) * 32 + lam * 4), p, AO(lam, q) if i else 0) for lam in range(8)]
    o.insert(0, mfma(LA(q), ('v', V_ONES), p, LA(q) if i else 0))
    return o
def sm(tau):
    b = V_S + (tau & 1) * 8
    p = V_P + (tau & 1) * 4
    e = [T(f"v_exp_f32 v{b+i}, v{b+i}", [b+i], [b+i]) for i in range(8)]
    c = [V(f"v_cvt_pk_bf16_f32 v{p+i}, v{b+2*i}, v{b+2*i+1}", [b+2*i, b+2*i+1], [p+i]) for i in range(4)]
    return e, c
def comb_writes(q):
    o = []
    for jd in range(1, 4):
        for e in range(2):
            u = q * 6 + (jd - 1) * 2 + e
            row = u >> 3
            o.append(dswr('ds_write_b128', V_CW + (row >> 1), AO(2 * jd + e, q), 4, (row & 1) * 32 * KB + (u & 7) * KB, lgtag=('cw', q)))
    o.insert(0, dswr('ds_write_b32', V_LW, LA(q), 1, [0, 4, 16, 20, 24][q], lgtag=('cw', q)))
    return o

def wo_dma(pos, after=None):
    o = []
    for ks in range(4):
        for half in range(2):
            base = (128 * KB if pos < 0 else pos * 32 * KB) + ks * 8 * KB + half * 4 * KB
            if pos < 0:
                pre = [S(f"s_lshl_b32 s{S_SK}, s{S_J}, 17", [S_J], [S_SK])] if ks + half == 0 else []
                h = S_SK
            else: pre, h = [], S_H + pos
            pre += [S(f"s_add_u32 s{S_SO}, s{h}, {ks*32768 + half*16384}", [h], [S_SO]), S(f"s_add_u32 m0, s{S_W1K}, {base}", [S_W1K], [M0])]
            o.append(Item(pre, dma(V_WOD, S_WO, S_SO, 0, ('wo', pos)), after))
    return o
def osib_dma(pos):
    o = []
    for q in range(5):
        pre = [S(f"s_lshr_b32 s{S_SK}, s{S_H+pos}, 5", [S_H+pos], [S_SK])] if q == 0 else []
        pre += [S(f"s_add_u32 s{S_SO}, s{S_SK}, {q*128*KB}", [S_SK], [S_SO]), S(f"s_add_u32 m0, s{S_W5K}, {(140 - 20*pos + q)*KB}", [S_W5K], [M0])]
        o.append(Item(pre, dma(V_OD, S_O, S_SO, 0, ('os', pos), flags=' sc1')))
    return o
def tail_calc():
    o = []; a = o.append
    T0, T1, T2 = 252, 253, 254
    a(V(f"v_lshlrev_b32 v{T0}, 4, v{V_LANE}", [V_LANE], [T0]))
    for jd in range(1, 4):
        a(S(f"s_sub_u32 s{S_T0}, s{S_W}, {jd}", [S_W], [S_T0]))
        a(S(f"s_and_b32 s{S_T0}, s{S_T0}, 3", [S_T0], [S_T0]))
        a(S(f"s_lshl_b32 s{S_T0}, s{S_T0}, 13", [S_T0], [S_T0]))
        a(V(f"v_add_u32 v{V_CR+2*(jd-1)}, s{S_T0}, v{T0}", [T0, ('s', S_T0)], [V_CR+2*(jd-1)]))
        a(V(f"v_add_u32 v{V_CR+2*(jd-1)+1}, {64*KB}, v{V_CR+2*(jd-1)}", [V_CR+2*(jd-1)], [V_CR+2*(jd-1)+1]))
    a(V(f"v_add_u32 v{V_OL}, {96*KB}, v{T0}", [T0], [V_OL]))
    a(V(f"v_add_u32 v{V_OW}, s{S_W5K}, v{V_OL}", [V_OL, ('s', S_W5K)], [V_OW]))
    a(S(f"s_mov_b32 s{S_T0}, {102*KB}", [], [S_T0]))
    a(V(f"v_lshl_add_u32 v{V_LR}, v{V_N}, 5, s{S_T0}", [V_N, ('s', S_T0)], [V_LR]))
    a(S(f"s_add_u32 s{S_T0}, s{S_W8K}, {64*KB}", [S_W8K], [S_T0]))
    for e in range(2):
        a(V(f"v_subrev_u32 v{V_WT+e}, s{S_T0}, v{V_VA+e}", [V_VA+e, ('s', S_T0)], [V_WT+e]))
        a(V(f"v_add_u32 v{V_WT+2+e}, {64*KB}, v{V_WT+e}", [V_WT+e], [V_WT+2+e]))
        a(V(f"v_add_u32 v{V_WT+4+e}, {128*KB}, v{V_WT+e}", [V_WT+e], [V_WT+4+e]))
    a(S(f"s_lshl_b32 s{S_T0}, s{S_J}, 12", [S_J], [S_T0]))
    a(V(f"v_subrev_u32 v{V_OD}, s{S_T0}, v{V_OST}", [V_OST, ('s', S_T0)], [V_OD]))
    a(S(f"s_lshl_b32 s{S_T0}, s{S_B}, 2", [S_B], [S_T0]))
    a(S(f"s_add_u32 s{S_T0}, s{S_T0}, s{S_J}", [S_T0, S_J], [S_T0]))
    a(V(f"v_and_b32 v{T1}, 7, v{V_LANE}", [V_LANE], [T1]))
    a(S(f"s_lshl_b32 s{S_T0}, s{S_T0}, 2", [S_T0], [S_T0]))
    a(S(f"s_add_u32 s{S_T0}, s{S_T0}, s{S_W}", [S_T0, S_W], [S_T0]))
    a(S(f"s_mul_i32 s{S_T0}, s{S_T0}, {5*8*KB}", [S_T0], [S_T0]))
    a(S(f"s_lshl_b32 s{S_T2}, s{S_HKV}, 10", [S_HKV], [S_T2]))
    a(S(f"s_add_u32 s{S_T2}, s{S_T2}, s{S_T0}", [S_T2, S_T0], [S_T2]))
    a(V(f"v_add_u32 v{V_PS}, s{S_T2}, v{T0}", [T0, ('s', S_T2)], [V_PS]))
    a(V(f"v_lshl_add_u32 v{T1}, s{S_HKV}, 3, v{T1}", [T1, ('s', S_HKV)], [T1]))
    a(V(f"v_lshrrev_b32 v{T2}, 3, v{V_LANE}", [V_LANE], [T2]))
    a(V(f"v_lshl_add_u32 v{V_PLD}, v{T1}, 4, s{S_T0}", [T1, ('s', S_T0)], [V_PLD]))
    a(V(f"v_lshl_add_u32 v{V_PLD}, v{T2}, 13, v{V_PLD}", [T2, V_PLD], [V_PLD]))
    a(V(f"v_lshlrev_b32 v{T2}, 14, v{T2}", [T2], [T2]))
    a(V(f"v_and_b32 v{T0}, 15, v{T1}", [T1], [T0]))
    a(V(f"v_lshl_add_u32 v{T2}, v{T0}, 10, v{T2}", [T0, T2], [T2]))
    a(V(f"v_lshrrev_b32 v{T1}, 4, v{T1}", [T1], [T1]))
    a(V(f"v_lshl_add_u32 v{T2}, v{T1}, 3, v{T2}", [T1, T2], [T2]))
    a(S(f"s_mul_i32 s{S_T0}, s{S_B}, 81920", [S_B], [S_T0]))
    a(S(f"s_lshl_b32 s{S_T2}, s{S_J}, 8", [S_J], [S_T2]))
    a(S(f"s_add_u32 s{S_T0}, s{S_T0}, s{S_T2}", [S_T0, S_T2], [S_T0]))
    a(S(f"s_lshl_b32 s{S_T2}, s{S_W}, 6", [S_W], [S_T2]))
    a(S(f"s_add_u32 s{S_T0}, s{S_T0}, s{S_T2}", [S_T0, S_T2], [S_T0]))
    a(V(f"v_add_u32 v{V_OUT}, s{S_T0}, v{T2}", [T2, ('s', S_T0)], [V_OUT]))
    a(V(f"v_cmp_gt_u32 vcc, 40, v{V_LANE}", [V_LANE], [VCC]))
    a(V(f"v_mov_b32 v{T0}, 0x7ff00000", [], [T0]))
    a(V(f"v_cndmask_b32 v{V_PLD}, v{T0}, v{V_PLD}, vcc", [T0, V_PLD, VCC], [V_PLD]))
    a(V(f"v_cndmask_b32 v{V_OUT}, v{T0}, v{V_OUT}, vcc", [T0, V_OUT, VCC], [V_OUT]))
    for k in range(5): a(S(f"s_mov_b32 s{S_TAB+k}, {k*8192}", [], [S_TAB+k]))
    return o
def wod_calc():
    o = []; a = o.append
    T0, T1 = 252, 253
    a(S(f"s_lshl_b32 s{S_T0}, s{S_B}, 2", [S_B], [S_T0]))
    a(S(f"s_add_u32 s{S_T0}, s{S_T0}, s{S_W}", [S_T0, S_W], [S_T0]))
    a(S(f"s_lshl_b32 s{S_T0}, s{S_T0}, 14", [S_T0], [S_T0]))
    a(S(f"s_lshl_b32 s{S_T2}, s{S_J}, 8", [S_J], [S_T2]))
    a(S(f"s_add_u32 s{S_T0}, s{S_T0}, s{S_T2}", [S_T0, S_T2], [S_T0]))
    a(V(f"v_bfe_u32 v{T0}, v{V_LANE}, 1, 4", [V_LANE], [T0]))
    a(V(f"v_and_b32 v{T1}, 1, v{V_LANE}", [V_LANE], [T1]))
    a(V(f"v_lshlrev_b32 v{T1}, 7, v{T1}", [T1], [T1]))
    a(V(f"v_lshl_add_u32 v{T0}, v{T0}, 10, v{T1}", [T0, T1], [T0]))
    a(V(f"v_add_u32 v{V_TCH}, s{S_T0}, v{T0}", [T0, ('s', S_T0)], [V_TCH]))
    a(S(f"s_and_b32 s{S_T0}, s{S_W}, 1", [S_W], [S_T0]))
    a(S(f"s_lshl_b32 s{S_T0}, s{S_T0}, 3", [S_T0], [S_T0]))
    a(V(f"v_lshl_add_u32 v{T0}, v{V_G}, 1, s{S_T0}", [V_G, ('s', S_T0)], [T0]))
    a(V(f"v_xor_b32 v{T0}, v{V_N}, v{T0}", [V_N, T0], [T0]))
    a(S(f"s_lshl_b32 s{S_T0}, s{S_J}, 8", [S_J], [S_T0]))
    a(V(f"v_lshl_add_u32 v{T0}, v{T0}, 4, s{S_T0}", [T0, ('s', S_T0)], [T0]))
    a(V(f"v_lshl_add_u32 v{T1}, s{S_W}, 2, v{V_G}", [V_G, ('s', S_W)], [T1]))
    a(V(f"v_lshl_add_u32 v{V_WOD}, v{T1}, 10, v{T0}", [T0, T1], [V_WOD]))
    return o

def phase_b(sg, Q, qr):
    NT = 8
    calc = wod_calc() + tail_calc()
    sg.addall(qr[:4])
    qr = qr[4:]
    for tau in range(-1, 40):
        i, q = divmod(tau, 5) if tau >= 0 else (-1, 4)
        mf = []
        bst = [int(x) for x in opt.bst.split(',')]
        if tau in bst: stamp(sg, 5 + bst.index(tau), 'B')
        if tau + 1 < 40: mf += qk(tau + 1)
        if tau - 1 >= 0: mf += pv(tau - 1)
        ds, marks = [], []
        if tau == -1: ds = qr
        elif tau == 0: ds = v_reads(0); marks = [('vr', 0, 0), ('vr', 0, 1)]
        elif i < NT:
            if int(opt.bsched):
                if q == 2 and i + 1 < NT: ds = k_reads(i + 1)[:4]; marks = [('kr', i + 1, 0)]
                if q == 3 and i + 1 < NT: ds = k_reads(i + 1)[4:] + v_reads(i + 1)[:2]; marks = [('kr', i + 1, 1)]
                if q == 4 and i + 1 < NT: ds = v_reads(i + 1)[2:8]; marks = [('vr', i + 1, 0)]
                if q == 0: ds = v_reads(i)[8:14]
                if q == 1 and i > 0: ds = v_reads(i)[14:]; Q.mark(('vr', i, 1))
            else:
                if q == 2 and i + 1 < NT: ds = k_reads(i + 1)[:4]; marks = [('kr', i + 1, 0)]
                if q == 3 and i + 1 < NT: ds = k_reads(i + 1)[4:]; marks = [('kr', i + 1, 1)]
                if q == 4 and i + 1 < NT: ds = v_reads(i + 1)[:8]; marks = [('vr', i + 1, 0)]
                if q == 0: ds = v_reads(i)[8:]; marks = [('vr', i, 1)]
            if i == NT - 1 and q >= 2: ds = comb_writes(q - 2)
        n = len(mf)
        gaps = [[] for _ in range(n)]
        e, c = sm(tau) if 0 <= tau < 40 else ([], [])
        if n == 17:
            epos = [0, 2, 4, 6, 8, 10, 12, 14]; cpos = [3, 7, 11, 15]
            dpos = [1, 3, 5, 7, 9, 11, 13, 15] if len(ds) > 4 else [1, 3, 5, 7]
            if ds and ds[0].k == 'dswr': dpos = [1, 1, 3, 7, 9, 13, 16]
            vpos = [1, 5, 9, 13] if (tau < int(opt.even_at) or q == 1) else [1, 7, 13]
            if int(opt.bsched) and not (ds and ds[0].k == 'dswr'):
                if q == 1: dpos, vpos = [1, 3], [5, 9, 13, 16]
                elif tau < int(opt.even_at): dpos, vpos = [3, 7, 11, 15, 16, 16], [1, 5, 9, 13]
                else: dpos, vpos = [3, 5, 9, 11, 15, 16], [1, 7, 13]
        else:
            epos = list(range(8)); cpos = [min(n - 1, x) for x in (2, 4, 6, 8)]
            dpos = [(k * n) // max(1, len(ds)) for k in range(len(ds))]
            vpos = [1, 5]
        for x, p_ in zip(ds, dpos): gaps[p_].append(x)
        if tau == int(opt.nl_at):
            sg.add(V("v_mov_b32 v9, 0", [], [9]))
            Q.q.insert(0, Item([], vload(('v', V_GC), 2, 9, S_D, None, 0, flags=' sc1', tag='non')))
        if tau == int(opt.nc_at):
            assert not any(it.ins.vmtag == 'non' for it in Q.q)
            sg.add(V(f"v_readfirstlane_b32 s{S_NON}, v{V_GC}", [V_GC], [('s', S_NON)]))
            sg.add(V(f"v_readfirstlane_b32 s{S_NON+1}, v{V_GC+1}", [V_GC+1], [('s', S_NON+1)]))
            sg.add(S(f"s_cmp_eq_u64 s[{S_NON}:{S_NON+1}], 0", [S_NON, S_NON+1], []))
            sg.text("s_cbranch_scc1 L_spin_n"); sg.text("L_back_n:")
        if tau == int(opt.bar_at): sg.add(barrier(lg0=False))
        for x in ds:
            while any(it.ins.vmtag in x.needvm for it in Q.q): weave(sg, Q, [], 1, 0)
        if tau == int(opt.tch_at): Q.push([Item([], vload(('v', V_TCH + 1), 1, V_TCH, S_WO, None, 0))])
        if tau == int(opt.wo_at): assert not calc; Q.push(wo_dma(-1))
        place(gaps, Q, vpos)
        for x, p_ in zip(e, epos): gaps[p_].append(x)
        for x, p_ in zip(c, cpos): gaps[p_].append(x)
        if tau >= int(opt.calc_at) and n == 17:
            for gi in range(17):
                if calc and calc[0].k == 'salu' and not any(y.k == 'salu' for y in gaps[gi]): gaps[gi].insert(0, calc.pop(0))
                cost = sum(8 if y.k == 'trans' else 0 if y.k == 'salu' else 4 for y in gaps[gi])
                while calc and calc[0].k != 'salu' and cost <= 4: gaps[gi].append(calc.pop(0)); cost += 4
        sg.addall(interleave(mf, gaps))
        for m in marks: Q.mark(m)

def poll(sg, lab, vaddr):
    sg.text(f"s_mov_b32 s{S_SPIN}, {opt.spin}")
    sg.text(f"{lab}:")
    sg.text(f"buffer_load_dwordx2 v[250:251], v{vaddr}, s[{S_C}:{S_C+3}], 0 offen sc1")
    sg.text(f"s_sub_u32 s{S_SPIN}, s{S_SPIN}, 1")
    sg.text("s_waitcnt vmcnt(0)")
    sg.text(f"v_cmp_ne_u64 vcc, s[{S_NON}:{S_NON+1}], v[250:251]")
    sg.text(f"s_cmp_eq_u32 s{S_SPIN}, 0")
    sg.text(f"s_cbranch_scc1 {lab}_done")
    sg.text("s_nop 2")
    sg.text(f"s_cbranch_vccnz {lab}")
    sg.text(f"{lab}_done:")
    sg.vm = []
def raise_flag(sg, stage, lab):
    n, sh = (4, 7) if stage == 1 else (8, 9)
    sg.text(f"s_cmp_lg_u32 s{S_W}, 0"); sg.text(f"s_cbranch_scc1 {lab}")
    sg.text(f"s_mov_b64 s[{S_EX}:{S_EX+1}], exec"); sg.text(f"s_mov_b64 exec, {(1 << n) - 1 if n < 7 else '0xff'}")
    for x in [f"v_lshl_add_u32 v9, v{V_LANE}, {sh}, s{S_G1 if stage == 1 else S_G2}", f"v_mov_b32 v250, s{S_NON}", f"v_mov_b32 v251, s{S_NON+1}",
              f"buffer_store_dwordx2 v[250:251], v9, s[{S_C}:{S_C+3}], 0 offen sc1"]: sg.text(x)
    sg.text(f"s_mov_b64 exec, s[{S_EX}:{S_EX+1}]")
    sg.text(f"{lab}:")
WOF = A_Q
RES = 100
def combine(sg, Q):
    LS = 76
    def PRB(q): return [100, 164, 188, 212 - 0, 0][q]
    def part(q, k):
        base = {0: 196, 1: 100, 2: 164, 3: 36, 4: 196}[q]
        r = base + 4 * k
        if q == 3 and k >= 5: r = 64 + 4 * (k - 5)
        return r
    def preads(q):
        o = []
        for jd in range(1, 4):
            for e in range(2):
                k = (jd - 1) * 2 + e; u = q * 6 + k; row = u >> 3
                o.append(dsrd('ds_read_b128', ('v', part(q, k)), 4, V_CR + 2 * (jd - 1) + (row >> 1), (row & 1) * 32 * KB + (u & 7) * KB))
        return o
    def lreg(src, q): return LS + src * 5 + q
    def lreads(qs):
        o = []
        for src in range(4):
            if qs == (0, 1): o.append(dsrd('ds_read_b64', ('v', LS + src * 2), 2, V_LR, src * 8 * KB))
            else: o.append(dsrd('ds_read_b128', ('v', LS + 8 + src * 4), 4, V_LR, src * 8 * KB + 16))
        return o
    def lsum(qs):
        w = []
        def lr(src, q): return LS + src * 2 + q if q < 2 else LS + 8 + src * 4 + q - 2
        for q in qs:
            d = V_T0 + q
            w.append(V(f"v_add_f32 v{d}, v{lr(0,q)}, v{lr(1,q)}", [lr(0,q), lr(1,q)], [d]))
            w.append(V(f"v_add_f32 v{lr(2,q)}, v{lr(2,q)}, v{lr(3,q)}", [lr(2,q), lr(3,q)], [lr(2,q)]))
            w.append(V(f"v_add_f32 v{d}, v{d}, v{lr(2,q)}", [d, lr(2,q)], [d]))
        a_, b_, c_ = V_T0 + qs[0], V_T0 + qs[1], V_T0 + qs[-1]
        w.append(V(f"v_min3_f32 v{LS}, v{a_}, v{b_}, v{c_}", [a_, b_, c_], [LS]))
        w.append(V(f"v_add_f32 v{LS+1}, v{a_}, v{b_}", [a_, b_], [LS+1]))
        w.append(V(f"v_add_f32 v{LS+1}, v{LS+1}, v{c_}", [LS+1, c_], [LS+1]))
        w.append(V(f"v_cmp_nle_f32 vcc, {f2h(2.0**int(opt.lo_exp))}, v{LS}", [LS], [VCC]))
        w.append(S(f"s_mov_b64 s[{S_EX}:{S_EX+1}], vcc", [VCC], [S_EX, S_EX+1]))
        w.append(V(f"v_cmp_nge_f32 vcc, {f2h(2.0**int(opt.hi_exp))}, v{LS+1}", [LS+1], [VCC]))
        w.append(S(f"s_or_b64 vcc, vcc, s[{S_EX}:{S_EX+1}]", [VCC, S_EX, S_EX+1], [VCC]))
        w.append(S(f"s_and_b64 vcc, vcc, s[{S_GM}:{S_GM+1}]", [VCC], [VCC]))
        w.append(raw("s_cbranch_vccnz L_redo"))
        for q in qs: w.append(T(f"v_rcp_f32 v{V_T0+q}, v{V_T0+q}", [V_T0+q], [V_T0+q]))
        return w
    def finish(q):
        w = []
        for e in range(2):
            o_ = V_OWN[q] + e * 4
            for jd in range(1, 4):
                p_ = part(q, (jd - 1) * 2 + e)
                for r in (0, 2):
                    w.append(V(f"v_pk_add_f32 v[{o_+r}:{o_+r+1}], v[{o_+r}:{o_+r+1}], v[{p_+r}:{p_+r+1}]", [o_+r, o_+r+1, p_+r, p_+r+1], [o_+r, o_+r+1]))
        o_ = V_OWN[q]
        ri = V_T0 + (q & ~1); sel = "op_sel:[0,1] op_sel_hi:[1,1]" if q & 1 else "op_sel:[0,0] op_sel_hi:[1,0]"
        for r in range(0, 8, 2):
            w.append(V(f"v_pk_mul_f32 v[{o_+r}:{o_+r+1}], v[{o_+r}:{o_+r+1}], v[{ri}:{ri+1}] {sel}", [o_+r, o_+r+1, V_T0+q], [o_+r, o_+r+1]))
        for r in range(4):
            w.append(V(f"v_cvt_pk_bf16_f32 v{o_+r}, v{o_+2*r}, v{o_+2*r+1}", [o_+2*r, o_+2*r+1], [o_+r]))
        w.append(S(f"s_mov_b32 s{S_SV}, {q*128*KB}", [], [S_SV]))
        w.append(vstore(('v', o_), 4, V_OST, S_O, S_SV, 0, flags=' sc1', tag='ost'))
        return w
    assert not Q.q
    b = barrier(needvm=[('wo', -1)], lg0=False); b.needlg = (('cw', 0), ('cw', 1)); sg.add(b)
    wor = [dsrd('ds_read_b64_tr_b16', ('a', WOF + (ks * 2 + e) * 4 + h * 2), 2, V_WT + 4 + e, ks * 8 * KB + h * 4096) for ks in range(4) for e in range(2) for h in range(2)]
    mf = pv(39); gaps = [[] for _ in mf]
    rd = lreads((0, 1)) + preads(1); wr = comb_writes(3)
    for k, x in enumerate(rd): gaps[min(8, k)].append(x)
    for k, x in enumerate(wr): gaps[min(8, (k * 9) // len(wr))].append(x)
    sg.addall(interleave(mf, gaps))
    stamp(sg, 4)
    sg.addall(preads(0))
    w4 = comb_writes(4)
    w = lsum((0, 1)) + finish(1) + finish(0)
    for k, x in enumerate(w4): w.insert(min(len(w), 4 + k * 8), x)
    for k, x in enumerate(wor): w.insert(min(len(w), 22 + k * 3), x)
    sg.addall(w)
    sg.add(barrier())
    stamp(sg, 5)
    Q.push(wo_dma(0))
    rd = lreads((2, 3, 4)) + preads(2) + preads(3)
    weave(sg, Q, rd, int(opt.cw), 2)
    sg.addall(rd)
    sg.addall(lsum((2, 3, 4)) + preads(4) + finish(2) + finish(3) + finish(4))
    stamp(sg, 6)

def phase_c(sg, Q):
    a = sg.add
    ACC = 164
    a(barrier())
    stamp(sg, 5, 'D')
    for q in range(5): a(dswr('ds_write_b128', V_OW, ('v', V_OWN[q]), 4, q * KB))
    Q.push(wo_dma(1) + wo_dma(2))
    weave(sg, Q, [], int(opt.shadow), 0)
    stamp(sg, 6, 'D')
    a(barrier(needvm=['ost']))
    stamp(sg, 7, 'D')
    stamp(sg, 7)
    raise_flag(sg, 1, "L_sig1")
    def CF(k): return [(100, 120), (64, 84), (204, 36)][k % 3]
    def c_reads(k):
        pos, ks = divmod(k, 4); pos -= 1
        xf, wf = CF(k)
        ob = 0 if pos < 0 else (44 - 20 * pos) * KB
        xr = [dsrd('ds_read_b128', ('v', xf + q * 4), 4, V_OL, ob + (ks * 5 + q) * KB) for q in range(5)]
        if pos < 0: return xr
        wb = (pos * 4 + ks) * 8 * KB
        wr = [dsrd('ds_read_b64_tr_b16', ('v', wf + e * 4 + h * 2), 2, V_WT + (2 if wb >= 64 * KB else 0) + e, (wb % (64 * KB)) + h * 4096) for e in range(2) for h in range(2)]
        return wr[:2] + xr[:1] + wr[2:] + xr[1:]
    def c_mfmas(k):
        xf, wf = CF(k)
        ff = 'v'
        if k < 4: wf, ff = WOF + k * 8, 'a'
        o = []
        for q in range(5):
            for e in range(2):
                d = ('v', ACC + (q * 2 + e) * 4)
                o.append(mfma(d, (ff, wf + e * 4), ('v', xf + q * 4), 0 if k == 0 else d))
        o[0].r |= set(R('v', xf, 20) + R(ff, wf, 8))
        return o
    def step(k, nx, pos=()):
        mf = c_mfmas(k); gaps = [[] for _ in mf]
        if nx is not None:
            for i, r in enumerate(c_reads(nx)): gaps[i].append(r)
        place(gaps, Q, pos)
        sg.addall(interleave(mf, gaps))
    sg.addall(c_reads(0)); sg.addall(c_reads(1))
    for k in range(4): step(k, k + 2 if k < 2 else None, [1, 5, 9] if k % 2 == 0 else [3, 7])
    assert not Q.q
    stamp(sg, 8, 'D')
    t = [f"s_mov_b32 s{S_SPIN}, {opt.spin}", "L_poll1:", f"s_load_dwordx8 s[4:11], s[{S_C}:{S_C+1}], s{S_F1} glc", f"s_sub_u32 s{S_SPIN}, s{S_SPIN}, 1", "s_waitcnt lgkmcnt(0)",
         f"s_cmp_eq_u32 s{S_SPIN}, 0", "s_cbranch_scc1 L_poll1_done"]
    for h in range(4): t += [f"s_cmp_lg_u64 s[{4+2*h}:{5+2*h}], s[{S_NON}:{S_NON+1}]", "s_cbranch_scc1 L_poll1"]
    t += ["L_poll1_done:"]
    if int(opt.p1w): t = [f"s_cmp_lg_u32 s{S_W}, 0", "s_cbranch_scc1 L_poll1_done"] + t + ["s_waitcnt lgkmcnt(0)", "s_barrier"]
    for x in t: sg.text(x)
    sg.lg = []
    stamp(sg, 9, 'D')
    stamp(sg, 5, 'E')
    stamp(sg, 8)
    Q.push(osib_dma(0) + osib_dma(1))
    weave(sg, Q, [], 10, 0)
    stamp(sg, 6, 'E')
    a(barrier(needvm=[('os', 0), ('wo', 2)]))
    stamp(sg, 7, 'E')
    Q.push(osib_dma(2))
    sg.addall(c_reads(4)); sg.addall(c_reads(5))
    def pfin(q):
        b = ACC + q * 8
        return [V(f"v_cvt_pk_bf16_f32 v{b+r}, v{b+2*r}, v{b+2*r+1}", [b+2*r, b+2*r+1], [b+r]) for r in range(4)] + [vstore(('v', b), 4, V_PS, S_WT, S_TAB + q, 0, flags=' sc1', tag='pst')]
    last = 16 - (2 if int(opt.qmaj) else 0)
    for k in range(4, last):
        nx = k + 2 if k + 2 < 16 else None
        if nx in (8, 12):
            assert not Q.q or nx == 8
            a(barrier(needvm=[('os', nx // 4 - 1)], lg0=False))
            stamp(sg, 8 if nx == 8 else 9, 'E')
        step(k, nx, [1, 5, 9] if k % 2 == 0 else [3, 7])
    if int(opt.qmaj):
        m14, m15 = c_mfmas(14), c_mfmas(15)
        m15[0].r -= set(R('v', CF(15)[0] + 4, 16))
        mf = flat([[m14[2*q], m15[2*q], m14[2*q+1], m15[2*q+1]] for q in range(5)])
        gaps = [[] for _ in mf]
        for q in range(4):
            f_ = pfin(q)
            g0 = 4 * q + 6
            if g0 + 2 < 20:
                gaps[g0] += f_[0:2]; gaps[g0 + 1] += f_[2:4]; gaps[g0 + 2] += f_[4:]
        sg.addall(interleave(mf, gaps))
        stamp(sg, 9)
        sg.addall(pfin(3) + pfin(4))
    else:
        stamp(sg, 9)
        for q in range(5): sg.addall(pfin(q))
    a(barrier(needvm=['pst'], lg0=False))
    stamp(sg, 5, '2')
    raise_flag(sg, 2, "L_sig2")
    a(S(f"s_mov_b32 s{S_SO}, 4096", [], [S_SO]))
    a(S(f"s_mov_b32 s{S_T1}, 0xffff0000", [], [S_T1]))
    PB, SM, U = 100, 140, 148
    def pl(h): return vload(('v', PB + 4 * h), 4, V_PLD, S_WT, S_SO if h >= 4 else None, (h & 3) * 1024, flags=' sc1')
    t = [f"s_mov_b32 s{S_SPIN}, {opt.spin}", f"s_mov_b32 s{S_T2}, 0", "L_poll2:", f"s_load_dwordx16 s[4:19], s[{S_C}:{S_C+1}], s{S_F2} glc", f"s_sub_u32 s{S_SPIN}, s{S_SPIN}, 1",
         "s_waitcnt lgkmcnt(0)", f"s_cmp_eq_u32 s{S_SPIN}, 0", "s_cbranch_scc1 L_poll2_done"]
    for h in range(8):
        t += [f"s_cmp_lg_u64 s[{4+2*h}:{5+2*h}], s[{S_NON}:{S_NON+1}]", f"s_cbranch_scc1 L_g{h}", f"s_bitcmp1_b32 s{S_T2}, {h}", f"s_cbranch_scc1 L_g{h}",
              f"s_bitset1_b32 s{S_T2}, {h}", pl(h).t, f"L_g{h}:"]
    t += [f"s_cmp_lg_u32 s{S_T2}, 0xff", "s_cbranch_scc1 L_poll2", "L_poll2_done:"]
    if int(opt.p2w):
        t = [f"s_cmp_lg_u32 s{S_W}, 0", "s_cbranch_scc1 L_poll2_done", f"s_mov_b32 s{S_SPIN}, {opt.spin}", "L_poll2:", f"s_load_dwordx16 s[4:19], s[{S_C}:{S_C+1}], s{S_F2} glc",
             f"s_sub_u32 s{S_SPIN}, s{S_SPIN}, 1", "s_waitcnt lgkmcnt(0)", f"s_cmp_eq_u32 s{S_SPIN}, 0", "s_cbranch_scc1 L_poll2_done"]
        for h in range(8): t += [f"s_cmp_lg_u64 s[{4+2*h}:{5+2*h}], s[{S_NON}:{S_NON+1}]", "s_cbranch_scc1 L_poll2"]
        t += ["L_poll2_done:", "s_barrier"] + [pl(h).t for h in range(8)]
    for x in t: sg.text(x)
    stamp(sg, 6, '2')
    sg.drain()
    for h in range(8):
        d = SM if h == 0 else U
        for r in range(4):
            a(V(f"v_lshlrev_b32 v{d+2*r}, 16, v{PB+4*h+r}", [PB+4*h+r], [d+2*r]))
            a(V(f"v_and_b32 v{d+2*r+1}, s{S_T1}, v{PB+4*h+r}", [PB+4*h+r], [d+2*r+1]))
        if h:
            for r in range(0, 8, 2):
                a(V(f"v_pk_add_f32 v[{SM+r}:{SM+r+1}], v[{SM+r}:{SM+r+1}], v[{U+r}:{U+r+1}]", [SM+r, SM+r+1, U+r, U+r+1], [SM+r, SM+r+1]))
    for r in range(4):
        a(V(f"v_cvt_pk_bf16_f32 v{SM+r}, v{SM+2*r}, v{SM+2*r+1}", [SM+2*r, SM+2*r+1], [SM+r]))
    a(vstore(('v', SM), 2, V_OUT, S_OUT, None, 0, flags=opt.out_flags))
    a(vstore(('v', SM + 2), 2, V_OUT, S_OUT, None, 32, flags=opt.out_flags))

def out_of_line():
    t = []
    t += ["L_spin_n:", f"s_mov_b32 s{S_SPIN}, {opt.spin}", "L_spin_n1:",
          f"buffer_load_dwordx2 v[{V_GC}:{V_GC+1}], v9, s[{S_D}:{S_D+3}], 0 offen sc1", f"s_sub_u32 s{S_SPIN}, s{S_SPIN}, 1", "s_waitcnt vmcnt(0)",
          f"v_readfirstlane_b32 s{S_NON}, v{V_GC}", f"v_readfirstlane_b32 s{S_NON+1}, v{V_GC+1}", f"s_cmp_eq_u32 s{S_SPIN}, 0", "s_cbranch_scc1 L_back_n", "s_nop 2",
          f"s_cmp_eq_u64 s[{S_NON}:{S_NON+1}], 0", "s_cbranch_scc1 L_spin_n1", "s_branch L_back_n"]
    t += ["L_redo:", f"s_mov_b64 s[{S_GM}:{S_GM+1}], 0", f"s_mov_b32 s{S_REDO}, 1",
          "s_waitcnt vmcnt(0) lgkmcnt(0)", "s_barrier"]
    sg = Seg()
    p1 = prologue1()
    a = sg.add
    a(V(f"v_lshl_add_u32 v{V_T0}, s{S_W}, 2, v{V_G}", [V_G], [V_T0]))
    a(V(f"v_xor_b32 v{V_T1}, v{V_N}, v{V_T0}", [V_N, V_T0], [V_T1]))
    a(V(f"v_lshlrev_b32 v{V_T1}, 4, v{V_T1}", [V_T1], [V_T1]))
    a(V(f"v_lshl_add_u32 v{V_XD}, v{V_T0}, 10, v{V_T1}", [V_T0, V_T1], [V_XD]))
    a(S(f"s_and_b32 s{S_T0}, s{S_W}, 2", [S_W], [S_T0]))
    a(S(f"s_lshl_b32 s{S_T0}, s{S_T0}, 2", [S_T0], [S_T0]))
    a(V(f"v_lshl_add_u32 v{V_T1}, v{V_G}, 1, s{S_T0}", [V_G], [V_T1]))
    a(V(f"v_xor_b32 v{V_T1}, v{V_N}, v{V_T1}", [V_N, V_T1], [V_T1]))
    a(V(f"v_lshlrev_b32 v{V_T1}, 4, v{V_T1}", [V_T1], [V_T1]))
    a(V(f"v_lshl_add_u32 v{V_WD}, v{V_T0}, 13, v{V_T1}", [V_T0, V_T1], [V_WD]))
    t += sg.out + ["s_nop 4", "s_branch L_restart"]
    sg = Seg(); a = sg.add
    sg.text("L_max:")
    sg.text(f"s_mov_b32 s{S_SPIN}, m0")
    sg.drain()
    sg.text("s_barrier")
    MX, KF, AD = 76, V_VF, 84
    for q in range(5): a(V(f"v_mov_b32 v{MX+q}, 0xff800000", [], [MX+q]))
    for s in range(4): a(V(f"v_add_u32 v{AD+s}, {96*KB}, v{V_KA+s}", [V_KA+s], [AD+s]))
    a(S(f"s_mov_b32 s{S_T2}, 0", [], [S_T2]))
    sg.text("L_max_loop:"); sg.reset_hist()
    for j in range(8):
        if j % 4 == 0:
            a(S(f"s_add_u32 s{S_T1}, s{S_T2}, {(j>>2)*4096}", [S_T2], [S_T1]))
            a(S(f"s_add_u32 m0, s{S_W8K}, {96*KB + (j>>2)*4096}", [S_W8K], [M0]))
        a(dma(V_KD + (j & 3), S_K, S_T1, 1024 * (j & 3), 'mk'))
    for t_ in range(2):
        for s in range(4):
            a(dsrd('ds_read_b128', ('v', KF + (t_ * 4 + s) * 4), 4, AD + s, t_ * 4096, needvm=['mk']))
    for q in range(5):
        for t_ in range(2):
            d = ('v', 88 + t_ * 4)
            for s in range(4): a(mfma(d, ('v', KF + (t_ * 4 + s) * 4), AQ(q, s), 0 if s == 0 else d))
        for k in range(4):
            a(V(f"v_max3_f32 v{MX+q}, v{MX+q}, v{88+2*k}, v{89+2*k}", [MX+q, 88+2*k, 89+2*k], [MX+q]))
    sg.drain()
    a(S(f"s_add_u32 s{S_T2}, s{S_T2}, 8192", [S_T2], [S_T2]))
    sg.text(f"s_cmp_lt_u32 s{S_T2}, 65536"); sg.text("s_nop 4"); sg.text("s_cbranch_scc1 L_max_loop")
    sg.text("s_barrier")
    a(S(f"s_mul_i32 s{S_T0}, s{S_W}, 1280", [S_W], [S_T0]))
    a(S(f"s_add_u32 s{S_T0}, s{S_T0}, {96*KB}", [S_T0], [S_T0]))
    a(V(f"v_lshl_add_u32 v{AD}, v{V_LANE}, 2, s{S_T0}", [V_LANE], [AD]))
    a(S(f"s_mov_b32 s{S_T0}, {96*KB}", [], [S_T0]))
    a(V(f"v_lshl_add_u32 v{AD+1}, v{V_N}, 2, s{S_T0}", [V_N], [AD+1]))
    for q in range(5): a(dswr('ds_write_b32', AD, ('v', MX + q), 1, q * 256))
    a(barrier())
    for q in range(5):
        for k in range(16):
            a(dsrd('ds_read_b32', ('v', KF + k), 1, AD + 1, (k >> 2) * 1280 + q * 256 + (k & 3) * 64))
        for k in range(8):
            a(V(f"v_max3_f32 v{MX+q}, v{MX+q}, v{KF+2*k}, v{KF+2*k+1}", [MX+q, KF+2*k, KF+2*k+1], [MX+q]))
        for r in range(4):
            a(V(f"v_sub_f32 v{V_NEGM+q*4+r}, 0, v{MX+q}", [MX+q], [V_NEGM+q*4+r]))
    sg.drain()
    sg.text("s_barrier"); sg.text(f"s_mov_b32 m0, s{S_SPIN}"); sg.text("s_nop 4"); sg.text("s_branch L_back_max")
    return t + sg.out

def stamp_out(sg, n):
    if not opt.stamps: return
    stamp(sg, n - 1)
    t = ["s_load_dwordx2 s[4:5], s[0:1], 56", "s_waitcnt lgkmcnt(0)", f"s_add_u32 s4, s4, {16<<20}", "s_addc_u32 s5, s5, 0", "s_and_b32 s5, s5, 0xffff",
         "s_mov_b32 s6, 0x100000", "s_mov_b32 s7, 0x20000", "s_lshl_b32 s8, s2, 2", "s_add_u32 s8, s8, s32", "s_lshl_b32 s8, s8, 6", "v_mov_b32 v2, s8"]
    for i in range(n):
        t += [f"v_mov_b32 v3, s{3 if i == 0 else 76+2*i}", f"buffer_store_dword v3, v2, s[4:7], 0 offen offset:{4*i}"]
    for x in t: sg.text(x)

def kernel():
    sg = Seg()
    sg.text(NAME + "_kernel:")
    sg.text("s_cmp_ge_u32 s2, 256")
    sg.text("s_cbranch_scc1 L_end")
    if opt.stamps:
        stamp(sg, 0)
    p1 = prologue1()
    sg.addall(p1[:2])
    if int(opt.cpf):
        for x in ["s_getpc_b64 s[94:95]", "L_pc:", "s_lshr_b32 s3, s2, 3", "v_lshrrev_b32 v8, 6, v0", "v_and_b32 v9, 1, v0", "v_lshl_add_u32 v8, v8, 1, v9",
                  "v_lshl_add_u32 v8, s3, 3, v8", "v_lshlrev_b32 v8, 7, v8", "v_min_u32 v8, (L_code_end - L_pc - 4) & 0xffffff80, v8", "global_load_dword v255, v8, s[94:95]"]: sg.text(x)
    sg.addall(p1[2:])
    if opt.stamps:
        sg.text("s_mov_b32 s3, s76")
    p2 = prologue2()
    Q = Queue()
    first = x_dma(0) + w_dma(0)
    sg.addall(restart_setup())
    stamp(sg, 5, 'P')
    Q.push(first)
    weave(sg, Q, [], 9, 0)
    stamp(sg, 6, 'P')
    sg.addall(p2)
    stamp(sg, 7, 'P')
    sg.text("s_cmp_lg_u32 s2, 0"); sg.text("s_cbranch_scc1 L_nocz")
    lane0(sg, ["v_mov_b32 v9, 0", f"buffer_load_dwordx2 v[250:251], v9, s[{S_D}:{S_D+3}], 0 offen sc1", f"s_memrealtime s[{S_NON}:{S_NON+1}]", "s_waitcnt vmcnt(0) lgkmcnt(0)",
               "v_or_b32 v250, v250, v251", "v_cmp_eq_u32 vcc, 0, v250", f"v_mov_b32 v250, s{S_NON}", f"v_mov_b32 v251, s{S_NON+1}", "s_nop 1", "s_and_b64 exec, exec, vcc",
               "s_cbranch_execz L_nocz2", f"buffer_store_dwordx2 v[250:251], v9, s[{S_D}:{S_D+3}], 0 offen sc1", "L_nocz2:"], "L_nocz")
    sg.text("s_branch L_first")
    sg.text("L_restart:")
    s2 = Seg(); s2.addall(restart_setup()); Q2 = Queue(); Q2.push(x_dma(0) + w_dma(0)); weave(s2, Q2, [], 9, 0)
    for x in s2.out: sg.text(x)
    sg.text("L_first:")
    early, late = prologue3()
    early = early + late
    def BB(u): return f"B{u + 1}"
    Q.push(w_dma(1) + x_dma(1) + w_dma(2) + w_dma(3) + x_dma(2) + w_dma(4) + x_dma(3) + w_dma(5, 'B2') + w_dma(6, 'B3') + w_dma(7, 'B4')
           + kv_dma('k', 0, 'B5') + kv_dma('v', 0, 'B6') + kv_dma('k', 1, 'BQ') + kv_dma('v', 1, 'BQ'))
    for i in range(2, 8):
        if not int(opt.nodma): Q.push(kv_dma('k', i) + kv_dma('v', i))
    n0 = int(opt.n0) - 9
    weave(sg, Q, early, n0, (len(early) + n0 - 1) // n0)
    sg.addall(early)
    qr = phase_a(sg, Q)
    sg.addall(qr[:0])
    stamp(sg, 3)
    sg.text(f"s_cmp_eq_u32 s{S_REDO}, 0"); sg.text("s_cbranch_scc1 L_back_max")
    s2 = Seg(); s2.addall(qr)
    for x in s2.out: sg.text(x)
    sg.text("s_branch L_max")
    sg.text("L_back_max:")
    phase_b(sg, Q, qr)
    combine(sg, Q)
    phase_c(sg, Q)
    sg.text("L_fin:")
    stamp_out(sg, 11)
    sg.text("L_end:")
    sg.text("s_endpgm")
    return sg.out + ['L_code_end:'] + out_of_line()

def report_kernel():
    idx, mode = opt.report.split(',')
    t = ["report_kernel:", "s_cmp_ge_u32 s2, 1", "s_cbranch_scc1 L3_end", "s_load_dwordx2 s[4:5], s[0:1], 56", "s_waitcnt lgkmcnt(0)",
         f"s_add_u32 s4, s4, {16<<20}", "s_addc_u32 s5, s5, 0", "s_and_b32 s5, s5, 0xffff", "s_mov_b32 s6, 0x100000", "s_mov_b32 s7, 0x20000",
         "v_lshlrev_b32 v1, 8, v0", f"buffer_load_dword v2, v1, s[4:7], 0 offen offset:{4*int(idx)}", "buffer_load_dword v3, v1, s[4:7], 0 offen",
         "v_mov_b32 v4, 0", "v_mov_b32 v5, 0", "v_mov_b32 v6, -1", "ds_write_b32 v4, v5", "ds_write_b32 v4, v6 offset:8", "s_waitcnt vmcnt(0) lgkmcnt(0)", "s_barrier",
         "ds_min_u32 v4, v3 offset:8", "s_waitcnt lgkmcnt(0)", "s_barrier", "ds_read_b32 v6, v4 offset:8", "s_waitcnt lgkmcnt(0)", "v_sub_u32 v2, v2, v6",
         "v_lshrrev_b32 v7, 3, v0", "v_mul_u32_u24 v7, 52, v7", "v_lshrrev_b32 v7, 8, v7", "v_and_b32 v8, 1, v0", "v_sub_u32 v8, 6, v8", "v_cmp_lt_u32 vcc, v7, v8",
         "v_min_u32 v2, 10000, v2",
         ("ds_add_u32 v4, v2" if mode == 'mean' else "ds_max_u32 v4, v2"), "s_waitcnt lgkmcnt(0)", "s_barrier", "ds_read_b32 v6, v4", "s_memrealtime s[12:13]", "s_waitcnt lgkmcnt(0)",
         "v_readfirstlane_b32 s10, v6", "s_nop 4"]
    if mode == 'mean': t += ["s_mul_i32 s10, s10, 10", "s_lshr_b32 s10, s10, 8"]
    elif mode == 'max': t += ["s_mul_i32 s10, s10, 10"]
    else: t += ["s_mov_b32 s10, 0"]
    t += ["L3_spin:", "s_memrealtime s[14:15]", "s_waitcnt lgkmcnt(0)", "s_sub_u32 s14, s14, s12",
          "s_cmp_lt_u32 s14, s10", "s_cbranch_scc1 L3_spin", "L3_end:", "s_endpgm"]
    return t

def build():
    def fmt(l): return "\n".join(x if x.endswith(':') else "    " + x for x in l)
    nm = NAME + "_kernel"
    s = "; @launch grid=(256,1,1) block=(256,1,1) lds=163840\n"
    if opt.report:
        s = f"; @launch kernel={nm} grid=(256,1,1) block=(256,1,1) lds=163840\n; @launch kernel=report_kernel grid=(1,1,1) block=(256,1,1) lds=64\n"
    s += '.amdgcn_target "amdgcn-amd-amdhsa--gfx950"\n.text\n'
    s += f".globl {nm}\n.p2align 8\n.type {nm},@function\n" + fmt(kernel()) + "\n"
    if opt.report: s += ".globl report_kernel\n.p2align 8\n.type report_kernel,@function\n" + fmt(report_kernel()) + "\n"
    s += f""".section .rodata,"a"
.p2align 6
.amdhsa_kernel {nm}
  .amdhsa_next_free_vgpr 512
  .amdhsa_next_free_sgpr 102
  .amdhsa_accum_offset 256
  .amdhsa_group_segment_fixed_size 0
  .amdhsa_kernarg_size 64
  .amdhsa_user_sgpr_count 2
  .amdhsa_user_sgpr_kernarg_segment_ptr 1
  .amdhsa_system_sgpr_workgroup_id_x 1
  .amdhsa_float_denorm_mode_32 3
.end_amdhsa_kernel
"""
    if opt.report:
        s += """.p2align 6
.amdhsa_kernel report_kernel
  .amdhsa_next_free_vgpr 32
  .amdhsa_next_free_sgpr 32
  .amdhsa_accum_offset 32
  .amdhsa_group_segment_fixed_size 0
  .amdhsa_kernarg_size 64
  .amdhsa_user_sgpr_count 2
  .amdhsa_user_sgpr_kernarg_segment_ptr 1
  .amdhsa_system_sgpr_workgroup_id_x 1
.end_amdhsa_kernel
"""
    return s

if __name__ == '__main__':
    out = sys.argv[1] if len(sys.argv) > 1 else 'cdna_kernels/' + NAME + '.s'
    for a_ in sys.argv[2:]:
        k, v = a_.split('=', 1)
        setattr(opt, k, (' ' + v) if k.endswith('flags') and v else v)
    txt = build()
    open(out, 'w').write(txt)
```

```python
import sys, struct, re
from dsl import *

KB = 1024
NAME = 'standalone__gqa_block_cached__near_ridge'
def f2h(x): return hex(struct.unpack('<I', struct.pack('<f', x))[0])
QSCALE = 1.4426950408889634 / (128 ** 0.5)
WS_WO = 8 << 20
WS_CT = 12 << 20

class Opt:
    stamps = ''
    report = ''
    kv_flags = ''
    a_flags = ''
    n0 = 22
    warm = 1
    perstep = 6
    lo_exp = -40
    hi_exp = 40
    spin = 300000
    rt_at = 5
    bar_at = 12
    nodma = 0
    tlb_at = 99
    aonly = 0
    la = 10
    aq = 1
    ownlate = 1
    o_flags = ' sc1'
    f1_flags = ' sc1'
    w64 = 0
    out_flags = ''
    bsched = 1
    p1w = 1
    p2w = 0
    pollk = '19,29,39'
    dyn2 = 1
    qmaj = 1
    tch_at = 27
    even_at = 99
    pdepth = 1
    kvo = 4
    finw = 0
    alim = 13
    cpf = 1
    chain = 1
    wo_at = 35
    calc_at = 16
    nl_at = 8
    nc_at = 13
    cw = 8
    shadow = 8
    bst = '0,5,10,15,20'
    no_rt = 0
    clk = 'r'
    lg0 = 0
    vpos = '1,5,9,13'
    rot_kv = 1
    rot_a = 2
    rot_c = 1
    gl_at = 29
    gc_at = 33
opt = Opt()

S_X, S_WQ, S_K, S_V, S_O, S_WO, S_WT, S_WL, S_C, S_D, S_OUT = 4, 8, 12, 16, 20, 24, 28, 52, 56, 60, 64
S_W, S_B, S_HKV, S_HQ = 32, 33, 34, 35
S_W1K, S_W8K, S_SO, S_T0, S_T1, S_T2, S_SK, S_SV = 36, 37, 38, 39, 40, 41, 42, 43
S_TAB = 44
S_REDO, S_MT, S_NT, S_VALID, S_RT, S_SPIN = 68, 69, 70, 71, 72, 73
S_EX = 74
S_F1, S_F2, S_G1, S_G2 = 100, 101, 72, 51
S_GM = 70
S_J_UNUSED = 3
S_P = 76
S_ST = 80
V_LANE, V_N, V_G, V_T0, V_T1, V_T2, V_T3, V_T4, V_T5 = 1, 2, 3, 4, 5, 6, 7, 8, 9
V_KA, V_VA, V_KD, V_VD = 10, 14, 22, 26
V_OST, V_CW, V_LW = 28, 29, 31
V_ONES, V_NEGM, V_L, V_S, V_P, V_KF, V_VF = 32, 36, 56, 76, 92, 100, 164
V_XA, V_XB, V_WA, V_WB, V_XD, V_WD, V_QW = 228, 232, 236, 238, 240, 241, 242
V_GC = 250
S_NON = 96
V_CR, V_LR, V_WOD, V_WT, V_OL, V_OW, V_OD, V_PS, V_PLD, V_OUT, V_P1, V_P2 = 228, 234, 235, 236, 242, 243, 244, 245, 246, 247, 248, 249
V_ZERO = 9
V_TCH = 64
S_H = 52
S_W5K = 55
S_J = 69
A_O, A_Q = 0, 160
V_OWN = [132, 140, 148, 156, 56]
A_KF1, A_L = 120, 240
def AO(lam, q):
    if lam < 2: return ('v', V_OWN[q] + 4 * lam)
    return ('a', A_O + 4 * (q * 6 + lam - 2))
def KF(i, k): return ('v', V_KF + 4 * k) if i % 2 == 0 else ('a', A_KF1 + 4 * k)
def LA(q): return ('a', A_L + 4 * q) if q < 4 else ('a', 152)
def AQ(q, s): return ('a', A_Q + 4 * (q * 4 + s))

def XU(c, q):
    if c == 0: return q * 4 * KB
    if c == 1: return 20 * KB + q * 4 * KB
    if c == 2: return 128 * KB + q * 4 * KB
    return [120, 124, 148, 152, 156][q] * KB
def WU(slot, ks):
    return {0: [40, 48], 1: [56, 96], 2: [104, 112], 3: [64, 72], 4: [80, 88]}[slot][ks] * KB
WSLOT = [0, 1, 2, 3, 4, 0, 1, 2]
QBUF = 128 * KB

def V(t, r=(), w=()):
    return valu(t, r=[('v', x) if isinstance(x, int) else x for x in r], w=[('v', x) if isinstance(x, int) else x for x in w])
def T(t, r=(), w=()):
    return valu(t, r=[('v', x) for x in r], w=[('v', x) for x in w], trans=True)
def S(t, r=(), w=()):
    return salu(t, r=[('s', x) if isinstance(x, int) else x for x in r], w=[('s', x) if isinstance(x, int) else x for x in w])
M0 = ('m0', 0)
VCC = ('vcc', 0)
def flat(l): return [x for y in l for x in y]

def srd(dst, plo, add_s=None, add_imm=0, size=0):
    o = []
    if add_s is not None:
        o.append(S(f"s_add_u32 s{dst}, s{plo}, s{add_s}", [plo, add_s], [dst]))
        o.append(S(f"s_addc_u32 s{dst+1}, s{plo+1}, 0", [plo+1], [dst+1]))
        o.append(S(f"s_and_b32 s{dst+1}, s{dst+1}, 0xffff", [dst+1], [dst+1]))
    elif add_imm:
        o.append(S(f"s_add_u32 s{dst}, s{plo}, {add_imm}", [plo], [dst]))
        o.append(S(f"s_addc_u32 s{dst+1}, s{plo+1}, 0", [plo+1], [dst+1]))
        o.append(S(f"s_and_b32 s{dst+1}, s{dst+1}, 0xffff", [dst+1], [dst+1]))
    else:
        o.append(S(f"s_mov_b32 s{dst}, s{plo}", [plo], [dst]))
        o.append(S(f"s_and_b32 s{dst+1}, s{plo+1}, 0xffff", [plo+1], [dst+1]))
    if isinstance(size, str):
        o.append(S(f"s_mov_b32 s{dst+2}, {size}", [int(size[1:])], [dst+2]))
    else:
        o.append(S(f"s_mov_b32 s{dst+2}, {size}", [], [dst+2]))
    o.append(S(f"s_mov_b32 s{dst+3}, 0x20000", [], [dst+3]))
    return o

KV_ORDER = [[0, 2, 1, 3, 4, 6, 5, 7], [0, 1, 3, 2, 4, 5, 7, 6], [1, 0, 2, 4, 3, 5, 6, 7], [1, 0, 2, 3, 5, 4, 6, 7]]
KV_ORDERS = [KV_ORDER,
  [[0, 4, 1, 2, 3, 5, 6, 7], [1, 0, 5, 2, 3, 4, 6, 7], [2, 0, 1, 6, 3, 4, 5, 7], [3, 0, 1, 2, 7, 4, 5, 6]],
  [[0, 1, 2, 3, 4, 5, 6, 7], [0, 1, 2, 3, 4, 5, 6, 7], [4, 5, 6, 7, 0, 1, 2, 3], [4, 5, 6, 7, 0, 1, 2, 3]],
  [[0, 2, 1, 3, 5, 4, 6, 7], [1, 0, 3, 2, 4, 6, 5, 7], [2, 1, 0, 4, 3, 5, 7, 6], [0, 1, 2, 3, 5, 4, 6, 7]],
  [[0, 1, 2, 4, 3, 5, 6, 7], [1, 0, 2, 3, 5, 4, 6, 7], [2, 0, 1, 3, 4, 6, 5, 7], [0, 1, 3, 2, 4, 5, 7, 6]],
  [[0, 1, 4, 2, 3, 5, 6, 7], [1, 0, 2, 5, 3, 4, 6, 7], [2, 0, 1, 3, 6, 4, 5, 7], [0, 3, 1, 2, 4, 7, 5, 6]],
  [[0, 1, 3, 2, 4, 5, 7, 6], [0, 1, 2, 4, 3, 5, 6, 7], [0, 2, 1, 3, 5, 4, 6, 7], [0, 2, 1, 3, 4, 6, 5, 7]],
  [[0, 1, 2, 4, 3, 5, 6, 7], [1, 0, 3, 2, 5, 4, 6, 7], [2, 3, 0, 1, 4, 6, 5, 7], [3, 2, 1, 0, 4, 5, 7, 6]],
  [[0, 1, 2, 4, 3, 5, 6, 7], [1, 2, 0, 3, 5, 4, 6, 7], [2, 0, 1, 3, 4, 6, 5, 7], [0, 3, 1, 2, 4, 5, 7, 6]]]
def kv_pack(j):
    o = KV_ORDERS[int(opt.kvo)][j] if int(opt.rot_kv) else list(range(8))
    return sum(t << (4 * i) for i, t in enumerate(o))
S_KVO = 98
V_XD4 = 204
S_WC = 99

class Item:
    def __init__(s, pre, ins, after=None): s.pre, s.ins, s.after = pre, ins, after
def x_dma(c, after=None):
    return [Item([S(f"s_add_u32 m0, s{S_W1K}, {XU(c,q)}", [S_W1K], [M0])],
                 dma(V_XD4 + c, S_X, S_TAB + q, 0, ('x', c), flags=opt.a_flags), after) for q in range(5)]
def w_dma(u, after=None):
    o = []
    for k in range(4):
        pre = []
        if k == 0:
            pre.append(S(f"s_add_u32 s{S_SK}, s{S_WC}, {(u & 6) << 19}", [S_WC], [S_SK]))
            pre.append(S(f"s_and_b32 s{S_SK}, s{S_SK}, {7 << 19}", [S_SK], [S_SK]))
            if u & 1: pre.append(S(f"s_xor_b32 s{S_SK}, s{S_SK}, {1 << 19}", [S_SK], [S_SK]))
        pre.append(S(f"s_add_u32 s{S_SO}, s{S_SK}, {k*131072}", [S_SK], [S_SO]))
        pre.append(S(f"s_add_u32 m0, s{S_W1K}, {WU(WSLOT[u], k>>1) + (k&1)*4*KB}", [S_W1K], [M0]))
        o.append(Item(pre, dma(V_WD, S_WQ, S_SO, 0, ('w', u), flags=opt.a_flags), after))
    return o
def kv_dma(kind, i, after=None):
    o = []
    base = (i & 1) * 32 * KB + (0 if kind == 'k' else 64 * KB)
    sr, so = (S_K, S_SK) if kind == 'k' else (S_V, S_SV)
    for j in range(8):
        pre = []
        if j % 4 == 0:
            if j == 0:
                pre.append(S(f"s_bfe_u32 s{so}, s{S_KVO}, {hex((3 << 16) | (4 * i))}", [S_KVO], [so]))
                pre.append(S(f"s_lshl_b32 s{so}, s{so}, 13", [so], [so]))
            else:
                pre.append(S(f"s_add_u32 s{so}, s{so}, 4096", [so], [so]))
            pre.append(S(f"s_add_u32 m0, s{S_W8K}, {base + (j>>2)*4096}", [S_W8K], [M0]))
        va = V_KD + (j & 3) if kind == 'k' else V_VD + (j & 1)
        tag = (kind + 'r', i - 2, j >> 2)
        o.append(Item(pre, dma(va, sr, so, 1024 * (j & 3), (kind, i, j >> 2), needlg=[tag], flags=opt.kv_flags), after if i < 2 else tag))
    return o
def k_reads(i):
    return [dsrd('ds_read_b128', KF(i, t * 4 + s), 4, V_KA + s, (i & 1) * 32 * KB + t * 4096,
                 needvm=[('k', i, t)], lgtag=('kr', i, t)) for t in range(2) for s in range(4)]
def v_reads(i):
    return [dsrd('ds_read_b64_tr_b16', ('v', V_VF + (i & 1) * 32 + lam * 4 + h * 2), 2, V_VA + lam, (i & 1) * 32 * KB + h * 4096,
                 needvm=[('v', i, h)], lgtag=('vr', i, h)) for h in range(2) for lam in range(8)]

class Queue:
    def __init__(s): s.q = []; s.pts = set()
    def push(s, items): s.q += items
    def mark(s, p): s.pts.add(p)
    def pop(s):
        if s.q and (s.q[0].after is None or s.q[0].after in s.pts): return s.q.pop(0)
        return None

def place(gaps, Q, pos):
    last = -1
    for p in pos:
        if p >= len(gaps): continue
        it = Q.pop()
        if it is None: break
        pre = list(it.pre)
        avail = list(range(last + 1, p))
        front = []
        if not avail: front = pre
        else:
            slots = [[] for _ in avail]
            for k_, x in enumerate(reversed(pre)):
                slots[max(0, len(avail) - 1 - k_)].insert(0, x)
            for g, sl in zip(avail, slots):
                k_ = 0
                while k_ < len(gaps[g]) and gaps[g][k_].k == 'salu': k_ += 1
                gaps[g][k_:k_] = sl
        k = 0
        while k < len(gaps[p]) and gaps[p][k].k == 'salu': k += 1
        gaps[p][k:k] = front + [it.ins]
        last = p
def weave(sg, Q, fill, n, per):
    for _ in range(n):
        it = Q.pop()
        if it is not None: sg.addall(it.pre + [it.ins])
        for _ in range(per):
            if fill: sg.add(fill.pop(0))

NST = 12
def stamp(sg, i, grp='1'):
    if not opt.stamps: return
    if 5 <= i <= 9 and grp != opt.stamps: return
    sg.text(f"{'s_memtime' if opt.clk == 'c' else 's_memrealtime'} s[{76+2*i}:{77+2*i}]")

def prologue1():
    o = []; a = o.append
    a(raw("s_load_dwordx2 s[92:93], s[0:1], 0"))
    a(raw("s_load_dwordx2 s[26:27], s[0:1], 24"))
    a(V(f"v_lshrrev_b32 v{V_T0}, 6, v0", [0], [V_T0]))
    a(V(f"v_and_b32 v{V_LANE}, 63, v0", [0], [V_LANE]))
    a(V(f"v_readfirstlane_b32 s{S_W}, v{V_T0}", [V_T0], [('s', S_W)]))
    a(S(f"s_and_b32 s{S_HKV}, s2, 7", [2], [S_HKV]))
    a(S(f"s_lshr_b32 s{S_B}, s2, 5", [2], [S_B]))
    a(S(f"s_bfe_u32 s{S_T0}, s2, 0x20003", [2], [S_T0]))
    a(S(f"s_mov_b32 s{S_J}, s{S_T0}", [S_T0], [S_J]))
    a(S(f"s_lshl_b32 s{S_HQ}, s{S_HKV}, 2", [S_HKV], [S_HQ]))
    a(S(f"s_add_u32 s{S_HQ}, s{S_HQ}, s{S_T0}", [S_HQ, S_T0], [S_HQ]))
    if int(opt.rot_a) == 2:
        a(S(f"s_add_u32 s{S_VALID}, s{S_T0}, s{S_B}", [S_T0, S_B], [S_VALID]))
        a(S(f"s_and_b32 s{S_VALID}, s{S_VALID}, 1", [S_VALID], [S_VALID]))
        a(S(f"s_lshl_b32 s{S_VALID}, s{S_VALID}, 2", [S_VALID], [S_VALID]))
    elif int(opt.rot_a) == 4:
        a(S(f"s_add_u32 s{S_VALID}, s{S_T0}, s{S_B}", [S_T0, S_B], [S_VALID]))
        a(S(f"s_and_b32 s{S_VALID}, s{S_VALID}, 3", [S_VALID], [S_VALID]))
        a(S(f"s_lshl_b32 s{S_VALID}, s{S_VALID}, 1", [S_VALID], [S_VALID]))
    elif int(opt.rot_a):
        a(S(f"s_lshl_b32 s{S_T0}, s{S_T0}, 1", [S_T0], [S_T0]))
        a(S(f"s_add_u32 s{S_VALID}, s{S_T0}, s{S_B}", [S_T0, S_B], [S_VALID]))
        a(S(f"s_and_b32 s{S_VALID}, s{S_VALID}, 7", [S_VALID], [S_VALID]))
    else:
        a(S(f"s_mov_b32 s{S_VALID}, 0", [], [S_VALID]))
    a(V(f"v_and_b32 v{V_N}, 15, v{V_LANE}", [V_LANE], [V_N]))
    a(V(f"v_lshrrev_b32 v{V_G}, 4, v{V_LANE}", [V_LANE], [V_G]))
    a(S(f"s_lshl_b32 s{S_W1K}, s{S_W}, 10", [S_W], [S_W1K]))
    a(S(f"s_lshl_b32 s{S_W8K}, s{S_W}, 13", [S_W], [S_W8K]))
    a(V(f"v_lshl_add_u32 v{V_T0}, s{S_W}, 2, v{V_G}", [V_G, ('s', S_W)], [V_T0]))
    a(V(f"v_xor_b32 v{V_T1}, v{V_N}, v{V_T0}", [V_N, V_T0], [V_T1]))
    a(V(f"v_lshlrev_b32 v{V_T1}, 4, v{V_T1}", [V_T1], [V_T1]))
    a(V(f"v_lshl_add_u32 v{V_XD}, v{V_T0}, 10, v{V_T1}", [V_T0, V_T1], [V_XD]))
    a(S(f"s_and_b32 s{S_T0}, s{S_W}, 2", [S_W], [S_T0]))
    a(S(f"s_lshl_b32 s{S_T0}, s{S_T0}, 2", [S_T0], [S_T0]))
    a(V(f"v_lshl_add_u32 v{V_T1}, v{V_G}, 1, s{S_T0}", [V_G, ('s', S_T0)], [V_T1]))
    a(V(f"v_xor_b32 v{V_T1}, v{V_N}, v{V_T1}", [V_N, V_T1], [V_T1]))
    a(V(f"v_lshlrev_b32 v{V_T1}, 4, v{V_T1}", [V_T1], [V_T1]))
    a(V(f"v_lshl_add_u32 v{V_WD}, v{V_T0}, 13, v{V_T1}", [V_T0, V_T1], [V_WD]))
    a(S(f"s_mul_i32 s{S_T0}, s{S_B}, 81920", [S_B], [S_T0]))
    a(S(f"s_lshl_b32 s{S_T2}, s{S_HQ}, 8", [S_HQ], [S_T2]))
    a(S(f"s_sub_u32 s{S_T1}, 4194304, s{S_T2}", [S_T2], [S_T1]))
    a(S(f"s_mov_b32 s{S_REDO}, 0", [], [S_REDO]))
    a(S(f"s_lshl_b32 s{S_WC}, s{S_VALID}, 19", [S_VALID], [S_WC]))
    a(S(f"s_mov_b64 s[{S_GM}:{S_GM+1}], -1", [], [S_GM, S_GM+1]))
    o += restart_setup()
    a(S(f"s_mov_b32 s{S_X+2}, 81920", [], [S_X+2])); a(S(f"s_mov_b32 s{S_X+3}, 0x20000", [], [S_X+3]))
    a(S(f"s_mov_b32 s{S_WQ+2}, s{S_T1}", [S_T1], [S_WQ+2])); a(S(f"s_mov_b32 s{S_WQ+3}, 0x20000", [], [S_WQ+3]))
    a(raw("s_waitcnt lgkmcnt(0)", 'wait'))
    o += srd(S_X, 92, add_s=S_T0, size=81920)[:3]
    o += srd(S_WQ, 26, add_s=S_T2, size=0)[:3]
    a(raw("s_load_dwordx4 s[92:95], s[0:1], 8"))
    a(raw(f"s_load_dwordx2 s[{S_WO}:{S_WO+1}], s[0:1], 32"))
    a(raw(f"s_load_dwordx4 s[{S_C}:{S_C+3}], s[0:1], 40"))
    a(raw("s_load_dwordx2 s[100:101], s[0:1], 56"))
    return o

def restart_setup():
    o = [S(f"s_mov_b32 s{S_TAB+q}, {q*16384}", [], [S_TAB+q]) for q in range(5)]
    for c in range(4):
        o.append(S(f"s_lshr_b32 s{S_SO}, s{S_WC}, 12", [S_WC], [S_SO]))
        o.append(S(f"s_add_u32 s{S_SO}, s{S_SO}, {c*256}", [S_SO], [S_SO]))
        o.append(S(f"s_and_b32 s{S_SO}, s{S_SO}, 0x300", [S_SO], [S_SO]))
        o.append(V(f"v_add_u32 v{V_XD4+c}, s{S_SO}, v{V_XD}", [V_XD, ('s', S_SO)], [V_XD4+c]))
    return o

def prologue2():
    o = []; a = o.append
    a(raw("s_waitcnt lgkmcnt(0)", 'wait'))
    a(S(f"s_lshl_b32 s{S_T0}, s{S_B}, 3", [S_B], [S_T0]))
    a(S(f"s_add_u32 s{S_T0}, s{S_T0}, s{S_HKV}", [S_T0, S_HKV], [S_T0]))
    a(S(f"s_lshl_b32 s{S_T0}, s{S_T0}, 2", [S_T0], [S_T0]))
    a(S(f"s_add_u32 s{S_T0}, s{S_T0}, s{S_W}", [S_T0, S_W], [S_T0]))
    a(S(f"s_lshl_b32 s{S_T0}, s{S_T0}, 16", [S_T0], [S_T0]))
    o += srd(S_K, 92, add_s=S_T0, size=65536)
    o += srd(S_V, 94, add_s=S_T0, size=65536)
    a(S(f"s_lshl_b32 s{S_T0}, s{S_HKV}, 19", [S_HKV], [S_T0]))
    o += srd(S_WO, S_WO, add_s=S_T0, size=524288)
    o += srd(S_O, 100, size=8*5*128*1024)
    o += srd(S_WT, 100, add_imm=WS_WO, size=8*4*20*8*1024)
    o += srd(S_D, S_C + 2, size=256)
    o += srd(S_OUT, S_C, size=655360)
    o += srd(S_C, 100, add_imm=WS_CT, size=65536)
    a(S(f"s_bitcmp1_b32 s{S_HQ}, 0", [S_HQ], []))
    a(S(f"s_mov_b32 s{S_T0}, {hex(kv_pack(0))}", [], [S_T0]))
    a(S(f"s_cselect_b32 s{S_T0}, {hex(kv_pack(1))}, s{S_T0}", [S_T0], [S_T0]))
    a(S(f"s_mov_b32 s{S_T1}, {hex(kv_pack(2))}", [], [S_T1]))
    a(S(f"s_cselect_b32 s{S_T1}, {hex(kv_pack(3))}, s{S_T1}", [S_T1], [S_T1]))
    a(S(f"s_bitcmp1_b32 s{S_HQ}, 1", [S_HQ], []))
    a(S(f"s_cselect_b32 s{S_KVO}, s{S_T1}, s{S_T0}", [S_T0, S_T1], [S_KVO]))
    for p in range(3):
        a(S(f"s_cmp_le_u32 s{S_J}, {p}", [S_J], []))
        a(S(f"s_cselect_b32 s{S_T1}, {p + 1}, {p}", [], [S_T1]))
        a(S(f"s_lshl_b32 s{S_H+p}, s{S_T1}, 17", [S_T1], [S_H+p]))
    a(S(f"s_mul_i32 s{S_W5K}, s{S_W}, 5120", [S_W], [S_W5K]))
    a(S(f"s_lshl_b32 s{S_T0}, s{S_B}, 12", [S_B], [S_T0]))
    a(S(f"s_lshl_b32 s{S_F1}, s{S_HQ}, 7", [S_HQ], [S_F1]))
    a(S(f"s_add_u32 s{S_F1}, s{S_F1}, s{S_T0}", [S_F1, S_T0], [S_F1]))
    a(S(f"s_add_u32 s{S_F2}, s{S_F1}, 32768", [S_F1], [S_F2]))
    a(S(f"s_lshl_b32 s{S_T1}, s{S_HKV}, 9", [S_HKV], [S_T1]))
    a(S(f"s_lshl_b32 s{S_G1}, s{S_J}, 3", [S_J], [S_G1]))
    a(S(f"s_add_u32 s{S_G1}, s{S_G1}, s{S_T1}", [S_G1, S_T1], [S_G1]))
    a(S(f"s_add_u32 s{S_G1}, s{S_G1}, s{S_T0}", [S_G1, S_T0], [S_G1]))
    a(S(f"s_lshl_b32 s{S_T1}, s{S_J}, 7", [S_J], [S_T1]))
    a(S(f"s_lshl_b32 s{S_G2}, s{S_HKV}, 3", [S_HKV], [S_G2]))
    a(S(f"s_add_u32 s{S_G2}, s{S_G2}, s{S_T1}", [S_G2, S_T1], [S_G2]))
    a(S(f"s_add_u32 s{S_G2}, s{S_G2}, s{S_T0}", [S_G2, S_T0], [S_G2]))
    a(S(f"s_add_u32 s{S_G2}, s{S_G2}, 32768", [S_G2], [S_G2]))
    return o

def prologue3():
    o = []; a = o.append
    a(S(f"s_bfe_u32 s{S_T1}, s{S_WC}, 0x10013", [S_WC], [S_T1]))
    a(S(f"s_lshl_b32 s{S_T1}, s{S_T1}, 3", [S_T1], [S_T1]))
    a(V(f"v_xor_b32 v{V_T1}, s{S_T1}, v{V_N}", [V_N, ('s', S_T1)], [V_T1]))
    for s in range(4):
        a(V(f"v_add_u32 v{V_T0}, {4*s}, v{V_G}", [V_G], [V_T0]))
        a(V(f"v_xor_b32 v{V_T0}, v{V_T0}, v{V_T1}", [V_T0, V_T1], [V_T0]))
        a(V(f"v_lshlrev_b32 v{V_T0}, 4, v{V_T0}", [V_T0], [V_T0]))
        a(V(f"v_lshl_add_u32 v{V_XA+s}, v{V_N}, 8, v{V_T0}", [V_N, V_T0], [V_XA+s]))
        a(V(f"v_add_u32 v{V_XB+s}, {120*KB}, v{V_XA+s}", [V_XA+s], [V_XB+s]))
    a(V(f"v_lshrrev_b32 v{V_T2}, 2, v{V_N}", [V_N], [V_T2]))
    a(V(f"v_bfe_u32 v{V_T3}, v{V_N}, 1, 1", [V_N], [V_T3]))
    a(V(f"v_and_b32 v{V_T4}, 1, v{V_N}", [V_N], [V_T4]))
    a(V(f"v_lshlrev_b32 v{V_T4}, 3, v{V_T4}", [V_T4], [V_T4]))
    a(V(f"v_and_b32 v{V_T5}, 1, v{V_G}", [V_G], [V_T5]))
    a(V(f"v_lshl_add_u32 v{V_T5}, v{V_T5}, 2, v{V_T2}", [V_T5, V_T2], [V_T5]))
    a(V(f"v_lshlrev_b32 v{V_T5}, 1, v{V_T5}", [V_T5], [V_T5]))
    a(S(f"s_lshl_b32 s{S_T1}, s{S_W}, 2", [S_W], [S_T1]))
    a(V(f"v_lshl_add_u32 v{V_T1}, v{V_G}, 3, v{V_T2}", [V_G, V_T2], [V_T1]))
    a(V(f"v_lshl_add_u32 v{V_T1}, v{V_T1}, 8, v{V_T4}", [V_T1, V_T4], [V_T1]))
    for e in range(2):
        a(V(f"v_add3_u32 v{V_T0}, s{S_T1}, v{V_T3}, {2*e}", [V_T3, ('s', S_T1)], [V_T0]))
        a(V(f"v_xor_b32 v{V_T0}, v{V_T0}, v{V_T5}", [V_T0, V_T5], [V_T0]))
        a(V(f"v_lshl_add_u32 v{V_T0}, v{V_T0}, 4, v{V_T1}", [V_T0, V_T1], [V_T0]))
        a(V(f"v_add_u32 v{V_WA+e}, {40*KB}, v{V_T0}", [V_T0], [V_WA+e]))
        a(V(f"v_add_u32 v{V_WB+e}, {96*KB}, v{V_T0}", [V_T0], [V_WB+e]))
    a(V(f"v_lshl_add_u32 v{V_T1}, v{V_G}, 2, v{V_T2}", [V_G, V_T2], [V_T1]))
    n_early = len(o)
    for s in range(4):
        a(V(f"v_add_u32 v{V_KA+s}, s{S_W8K}, v{V_XA+s}", [V_XA+s, ('s', S_W8K)], [V_KA+s]))
    a(V(f"v_lshl_add_u32 v{V_T1}, v{V_T1}, 8, v{V_T4}", [V_T1, V_T4], [V_T1]))
    a(S(f"s_add_u32 s{S_T2}, s{S_W8K}, {64*KB}", [S_W8K], [S_T2]))
    a(V(f"v_add_u32 v{V_T1}, s{S_T2}, v{V_T1}", [V_T1, ('s', S_T2)], [V_T1]))
    a(V(f"v_add_u32 v{V_T3}, s{S_T1}, v{V_T3}", [V_T3, ('s', S_T1)], [V_T3]))
    for lam in range(8):
        a(V(f"v_add_u32 v{V_T0}, {2*lam}, v{V_T3}", [V_T3], [V_T0]))
        a(V(f"v_and_b32 v{V_T0}, 15, v{V_T0}", [V_T0], [V_T0]))
        a(V(f"v_xor_b32 v{V_T0}, v{V_T0}, v{V_T5}", [V_T0, V_T5], [V_T0]))
        a(V(f"v_lshl_add_u32 v{V_VA+lam}, v{V_T0}, 4, v{V_T1}", [V_T0, V_T1], [V_VA+lam]))
    a(V(f"v_xor_b32 v{V_T0}, v{V_N}, v{V_G}", [V_N, V_G], [V_T0]))
    a(V(f"v_lshlrev_b32 v{V_T0}, 4, v{V_T0}", [V_T0], [V_T0]))
    a(V(f"v_lshl_add_u32 v{V_KD}, v{V_G}, 8, v{V_T0}", [V_G, V_T0], [V_KD]))
    for j in range(1, 4):
        a(V(f"v_xor_b32 v{V_KD+j}, {64*j}, v{V_KD}", [V_KD], [V_KD+j]))
    a(V(f"v_lshlrev_b32 v{V_T0}, 1, v{V_G}", [V_G], [V_T0]))
    a(V(f"v_xor_b32 v{V_T0}, v{V_N}, v{V_T0}", [V_N, V_T0], [V_T0]))
    a(V(f"v_lshlrev_b32 v{V_T0}, 4, v{V_T0}", [V_T0], [V_T0]))
    a(V(f"v_lshl_add_u32 v{V_VD}, v{V_G}, 8, v{V_T0}", [V_G, V_T0], [V_VD]))
    a(V(f"v_xor_b32 v{V_VD+1}, 128, v{V_VD}", [V_VD], [V_VD+1]))
    a(V(f"v_lshrrev_b32 v{V_T0}, 1, v{V_G}", [V_G], [V_T0]))
    a(V(f"v_add_u32 v{V_T0}, s{S_T1}, v{V_T0}", [V_T0, ('s', S_T1)], [V_T0]))
    a(V(f"v_xor_b32 v{V_T0}, v{V_T0}, v{V_N}", [V_T0, V_N], [V_T0]))
    a(V(f"v_lshlrev_b32 v{V_T0}, 4, v{V_T0}", [V_T0], [V_T0]))
    a(V(f"v_lshl_add_u32 v{V_T0}, v{V_N}, 8, v{V_T0}", [V_N, V_T0], [V_T0]))
    a(V(f"v_and_b32 v{V_T1}, 1, v{V_G}", [V_G], [V_T1]))
    a(V(f"v_lshl_add_u32 v{V_T0}, v{V_T1}, 3, v{V_T0}", [V_T0, V_T1], [V_T0]))
    a(V(f"v_add_u32 v{V_QW}, {QBUF}, v{V_T0}", [V_T0], [V_QW]))
    a(V(f"v_xor_b32 v{V_QW+1}, 32, v{V_QW}", [V_QW], [V_QW+1]))
    a(V(f"v_lshl_add_u32 v{V_CW}, v{V_LANE}, 4, s{S_W8K}", [V_LANE, ('s', S_W8K)], [V_CW]))
    a(V(f"v_add_u32 v{V_CW+1}, {64*KB}, v{V_CW}", [V_CW], [V_CW+1]))
    a(S(f"s_add_u32 s{S_T0}, s{S_W8K}, {102*KB}", [S_W8K], [S_T0]))
    a(V(f"v_lshl_add_u32 v{V_LW}, v{V_LANE}, 5, s{S_T0}", [V_LANE, ('s', S_T0)], [V_LW]))
    a(S(f"s_mul_i32 s{S_T0}, s{S_B}, 640", [S_B], [S_T0]))
    a(S(f"s_lshl_b32 s{S_T2}, s{S_HQ}, 2", [S_HQ], [S_T2]))
    a(S(f"s_add_u32 s{S_T0}, s{S_T0}, s{S_T2}", [S_T0, S_T2], [S_T0]))
    a(S(f"s_add_u32 s{S_T0}, s{S_T0}, s{S_W}", [S_T0, S_W], [S_T0]))
    a(S(f"s_lshl_b32 s{S_T0}, s{S_T0}, 10", [S_T0], [S_T0]))
    a(V(f"v_lshl_add_u32 v{V_OST}, v{V_LANE}, 4, s{S_T0}", [V_LANE, ('s', S_T0)], [V_OST]))
    a(V(f"v_cmp_eq_u32 vcc, 0, v{V_N}", [V_N], [VCC]))
    a(V(f"v_mov_b32 v{V_T0}, 0x3f803f80", [], [V_T0]))
    for i in range(4):
        a(V(f"v_cndmask_b32 v{V_ONES+i}, 0, v{V_T0}, vcc", [V_T0, VCC], [V_ONES+i]))
    for i in range(20):
        a(V(f"v_mov_b32 v{V_NEGM+i}, 0", [], [V_NEGM+i]))
    return o[:n_early], o[n_early:]

V_QACC = V_VF
def AF(kap):
    return [(100, 120), (128, 148), (208, 156)][kap % 3]
def a_reads(kap):
    u, ks = kap >> 1, kap & 1
    c, s = u >> 1, kap & 3
    xf, wf = AF(kap)
    wb = WU(WSLOT[u], ks)
    xr = []
    for q in range(5):
        xb = XU(c, q)
        reg, base = (V_XA, 0) if xb < 64 * KB else (V_XB, 120 * KB)
        xr.append(dsrd('ds_read_b128', ('v', xf + q * 4), 4, reg + s, xb - base))
    wr = []
    for e in range(2):
        for h in range(2):
            reg, base = (V_WA, 40 * KB) if wb < 96 * KB else (V_WB, 96 * KB)
            wr.append(dsrd('ds_read_b64_tr_b16', ('v', wf + e * 4 + h * 2), 2, reg + e, wb - base + h * 1024))
    return wr[:2] + xr[:1] + wr[2:] + xr[1:]
def a_mfmas(kap):
    o = []
    xf, wf = AF(kap)
    for q in range(5):
        for e in range(2):
            d = ('v', V_QACC + (e * 5 + q) * 4)
            o.append(mfma(d, ('v', wf + e * 4), ('v', xf + q * 4), 0 if kap == 0 else d))
    return o
def lane0(sg, body, lab):
    sg.text(f"s_cmp_lg_u32 s{S_W}, 0"); sg.text(f"s_cbranch_scc1 {lab}")
    sg.text(f"s_mov_b64 s[{S_EX}:{S_EX+1}], exec"); sg.text("s_mov_b64 exec, 1")
    for x in body: sg.text(x)
    sg.text(f"s_mov_b64 exec, s[{S_EX}:{S_EX+1}]")
    sg.text(f"{lab}:")
def phase_a(sg, Q):
    stamp(sg, 1)
    sg.add(barrier(needvm=[('x', 0), ('w', 0)])); Q.mark('B0')
    stamp(sg, 2)
    sg.addall(a_reads(0)); sg.addall(a_reads(1))
    sg.add(S(f"s_mov_b32 s{S_T1}, {f2h(QSCALE)}", [], [S_T1]))
    sg.add(S(f"s_mov_b32 s{S_T2}, {f2h(QSCALE)}", [], [S_T2]))
    for kap in range(14 if int(opt.aq) else 16):
        mf = a_mfmas(kap)
        gaps = [[] for _ in mf]
        nx = kap + 2
        if nx < 16:
            if nx % 2 == 0:
                u = nx >> 1
                need = [('x', u >> 1), ('w', u)]
                while any(it.ins.vmtag in need for it in Q.q):
                    n_ = len(Q.q); weave(sg, Q, [], 1, 0); assert len(Q.q) < n_, (u, Q.q[0].after)
                while True:
                    younger = 0
                    for tg, _w in reversed(sg.vm):
                        if tg in need: break
                        younger += 1
                    n_ = len(Q.q)
                    if younger >= int(opt.la): break
                    weave(sg, Q, [], 1, 0)
                    if len(Q.q) == n_: break
                sg.add(barrier(needvm=need, lg0=False)); Q.mark(f'B{u}')
                if u in (1, 3, 5, 7): stamp(sg, 5 + u // 2, 'A')
            for i, r in enumerate(a_reads(nx)): gaps[i].append(r)
        mf[0].r |= set(R('v', AF(kap)[0], 20) + R('v', AF(kap)[1], 8))
        pos = [1, 5, 9] if kap % 2 == 0 else [3, 7]
        if int(opt.perstep) == 6: pos = [1, 4, 7] if kap % 2 == 0 else [1, 4, 8]
        if int(opt.perstep) == 7: pos = [1, 4, 6, 9] if kap % 2 == 0 else [2, 5, 8]
        if int(opt.perstep) == 8: pos = [1, 4, 6, 9]
        nkv = sum(1 for it in Q.q if it.ins.vmtag[0] in 'kv')
        room = int(opt.alim) - (128 - nkv) + (len(Q.q) - nkv)
        place(gaps, Q, pos[:max(0, room)])
        if int(opt.aonly): sg.addall([x for x in interleave(mf, gaps) if x.k not in ('mfma', 'dsrd')])
        else: sg.addall(interleave(mf, gaps))
    def qfin(q, e, packed):
        b = V_QACC + (e * 5 + q) * 4
        if packed: f_ = [V(f"v_pk_mul_f32 v[{b+r}:{b+r+1}], v[{b+r}:{b+r+1}], s[{S_T1}:{S_T1+1}]", [b+r, b+r+1], [b+r, b+r+1]) for r in (0, 2)]
        else: f_ = [V(f"v_mul_f32 v{b+r}, s{S_T1}, v{b+r}", [b+r], [b+r]) for r in range(4)]
        f_.append(V(f"v_cvt_pk_bf16_f32 v{b}, v{b}, v{b+1}", [b, b+1], [b]))
        f_.append(V(f"v_cvt_pk_bf16_f32 v{b+1}, v{b+2}, v{b+3}", [b+2, b+3], [b+1]))
        f_.append(dswr('ds_write_b64', V_QW + e, ('v', b), 2, q * 4096, lgtag='qw'))
        return f_
    todo = [(q, e) for q in range(5) for e in range(2)]
    if int(opt.aq):
        m14, m15 = a_mfmas(14), a_mfmas(15)
        m14[0].r |= set(R('v', AF(14)[0], 20) + R('v', AF(14)[1], 8))
        mf = flat([[m14[k], m15[k]] for k in range(10)])
        gaps = [[] for _ in mf]
        gi = 5
        while todo and gi + 3 <= 19:
            f_ = qfin(*todo.pop(0), False)
            gaps[gi] += f_[0:2]; gaps[gi + 1] += f_[2:4]; gaps[gi + 2] += f_[4:6]; gaps[gi + 3] = [f_[6]] + gaps[gi + 3]
            gi += 3
        nkv = sum(1 for it in Q.q if it.ins.vmtag[0] in 'kv')
        place(gaps, Q, [1, 4][:max(0, int(opt.alim) - (128 - nkv))])
        sg.addall(interleave(mf, gaps))
    stamp(sg, 9, 'A')
    for q, e in todo: sg.addall(qfin(q, e, True))
    while any(it.ins.vmtag in (('k', 0, 0), ('k', 0, 1)) for it in Q.q): weave(sg, Q, [], 1, 0)
    b = barrier(lg0=False); b.needlg = ('qw',)
    sg.addall(k_reads(0)); Q.mark(('kr', 0, 0)); Q.mark(('kr', 0, 1))
    sg.add(b); Q.mark('BQ')
    qr = [dsrd('ds_read_b128', AQ(q, s), 4, V_XB + s, QBUF - 120 * KB + q * 4096) for q in range(5) for s in range(4)]
    return qr

def TQ(tau):
    return divmod(tau, 5) if tau < 30 else (6 + ((tau - 30) & 1), (tau - 30) >> 1)
def qk(tau):
    i, q = TQ(tau)
    o = []
    for s, t in ([(s, t) for t in range(2) for s in range(4)] if int(opt.chain) else [(s, t) for s in range(4) for t in range(2)]):
        if True:
            d = ('v', V_S + (tau & 1) * 8 + t * 4)
            o.append(mfma(d, KF(i, t * 4 + s), AQ(q, s), ('v', V_NEGM + q * 4) if s == 0 else d))
    return o
def pv(tau):
    i, q = TQ(tau)
    p = ('v', V_P + (tau & 1) * 4)
    o = [mfma(AO(lam, q), ('v', V_VF + (i & 1) * 32 + lam * 4), p, AO(lam, q) if i else 0) for lam in range(8)]
    o.insert(0, mfma(LA(q), ('v', V_ONES), p, LA(q) if i else 0))
    return o
def sm(tau):
    b = V_S + (tau & 1) * 8
    p = V_P + (tau & 1) * 4
    e = [T(f"v_exp_f32 v{b+i}, v{b+i}", [b+i], [b+i]) for i in range(8)]
    c = [V(f"v_cvt_pk_bf16_f32 v{p+i}, v{b+2*i}, v{b+2*i+1}", [b+2*i, b+2*i+1], [p+i]) for i in range(4)]
    return e, c
def comb_writes(q):
    o = []
    for jd in range(1, 4):
        for e in range(2):
            u = q * 6 + (jd - 1) * 2 + e
            row = u >> 3
            o.append(dswr('ds_write_b128', V_CW + (row >> 1), AO(2 * jd + e, q), 4, (row & 1) * 32 * KB + (u & 7) * KB, lgtag=('cw', q)))
    o.insert(0, dswr('ds_write_b32', V_LW, LA(q), 1, [0, 4, 16, 20, 24][q], lgtag=('cw', q)))
    return o

def wo_dma(pos, after=None):
    o = []
    for ks in range(4):
        for half in range(2):
            base = (128 * KB if pos < 0 else pos * 32 * KB) + ks * 8 * KB + half * 4 * KB
            if pos < 0:
                pre = [S(f"s_lshl_b32 s{S_SK}, s{S_J}, 17", [S_J], [S_SK])] if ks + half == 0 else []
                h = S_SK
            else: pre, h = [], S_H + pos
            pre += [S(f"s_add_u32 s{S_SO}, s{h}, {ks*32768 + half*16384}", [h], [S_SO]), S(f"s_add_u32 m0, s{S_W1K}, {base}", [S_W1K], [M0])]
            o.append(Item(pre, dma(V_WOD, S_WO, S_SO, 0, ('wo', pos)), after))
    return o
def osib_dma(pos):
    o = []
    for q in range(5):
        pre = [S(f"s_lshr_b32 s{S_SK}, s{S_H+pos}, 5", [S_H+pos], [S_SK])] if q == 0 else []
        pre += [S(f"s_add_u32 s{S_SO}, s{S_SK}, {q*128*KB}", [S_SK], [S_SO]), S(f"s_add_u32 m0, s{S_W5K}, {(140 - 20*pos + q)*KB}", [S_W5K], [M0])]
        o.append(Item(pre, dma(V_OD, S_O, S_SO, 0, ('os', pos), flags=' sc1')))
    return o
def tail_calc():
    o = []; a = o.append
    T0, T1, T2 = 252, 253, 254
    a(V(f"v_lshlrev_b32 v{T0}, 4, v{V_LANE}", [V_LANE], [T0]))
    for jd in range(1, 4):
        a(S(f"s_sub_u32 s{S_T0}, s{S_W}, {jd}", [S_W], [S_T0]))
        a(S(f"s_and_b32 s{S_T0}, s{S_T0}, 3", [S_T0], [S_T0]))
        a(S(f"s_lshl_b32 s{S_T0}, s{S_T0}, 13", [S_T0], [S_T0]))
        a(V(f"v_add_u32 v{V_CR+2*(jd-1)}, s{S_T0}, v{T0}", [T0, ('s', S_T0)], [V_CR+2*(jd-1)]))
        a(V(f"v_add_u32 v{V_CR+2*(jd-1)+1}, {64*KB}, v{V_CR+2*(jd-1)}", [V_CR+2*(jd-1)], [V_CR+2*(jd-1)+1]))
    a(V(f"v_add_u32 v{V_OL}, {96*KB}, v{T0}", [T0], [V_OL]))
    a(V(f"v_add_u32 v{V_OW}, s{S_W5K}, v{V_OL}", [V_OL, ('s', S_W5K)], [V_OW]))
    a(S(f"s_mov_b32 s{S_T0}, {102*KB}", [], [S_T0]))
    a(V(f"v_lshl_add_u32 v{V_LR}, v{V_N}, 5, s{S_T0}", [V_N, ('s', S_T0)], [V_LR]))
    a(S(f"s_add_u32 s{S_T0}, s{S_W8K}, {64*KB}", [S_W8K], [S_T0]))
    for e in range(2):
        a(V(f"v_subrev_u32 v{V_WT+e}, s{S_T0}, v{V_VA+e}", [V_VA+e, ('s', S_T0)], [V_WT+e]))
        a(V(f"v_add_u32 v{V_WT+2+e}, {64*KB}, v{V_WT+e}", [V_WT+e], [V_WT+2+e]))
        a(V(f"v_add_u32 v{V_WT+4+e}, {128*KB}, v{V_WT+e}", [V_WT+e], [V_WT+4+e]))
    a(S(f"s_lshl_b32 s{S_T0}, s{S_J}, 12", [S_J], [S_T0]))
    a(V(f"v_subrev_u32 v{V_OD}, s{S_T0}, v{V_OST}", [V_OST, ('s', S_T0)], [V_OD]))
    a(S(f"s_lshl_b32 s{S_T0}, s{S_B}, 2", [S_B], [S_T0]))
    a(S(f"s_add_u32 s{S_T0}, s{S_T0}, s{S_J}", [S_T0, S_J], [S_T0]))
    a(V(f"v_and_b32 v{T1}, 7, v{V_LANE}", [V_LANE], [T1]))
    a(S(f"s_lshl_b32 s{S_T0}, s{S_T0}, 2", [S_T0], [S_T0]))
    a(S(f"s_add_u32 s{S_T0}, s{S_T0}, s{S_W}", [S_T0, S_W], [S_T0]))
    a(S(f"s_mul_i32 s{S_T0}, s{S_T0}, {5*8*KB}", [S_T0], [S_T0]))
    a(S(f"s_lshl_b32 s{S_T2}, s{S_HKV}, 10", [S_HKV], [S_T2]))
    a(S(f"s_add_u32 s{S_T2}, s{S_T2}, s{S_T0}", [S_T2, S_T0], [S_T2]))
    a(V(f"v_add_u32 v{V_PS}, s{S_T2}, v{T0}", [T0, ('s', S_T2)], [V_PS]))
    a(V(f"v_lshl_add_u32 v{T1}, s{S_HKV}, 3, v{T1}", [T1, ('s', S_HKV)], [T1]))
    a(V(f"v_lshrrev_b32 v{T2}, 3, v{V_LANE}", [V_LANE], [T2]))
    a(V(f"v_lshl_add_u32 v{V_PLD}, v{T1}, 4, s{S_T0}", [T1, ('s', S_T0)], [V_PLD]))
    a(V(f"v_lshl_add_u32 v{V_PLD}, v{T2}, 13, v{V_PLD}", [T2, V_PLD], [V_PLD]))
    a(V(f"v_lshlrev_b32 v{T2}, 14, v{T2}", [T2], [T2]))
    a(V(f"v_and_b32 v{T0}, 15, v{T1}", [T1], [T0]))
    a(V(f"v_lshl_add_u32 v{T2}, v{T0}, 10, v{T2}", [T0, T2], [T2]))
    a(V(f"v_lshrrev_b32 v{T1}, 4, v{T1}", [T1], [T1]))
    a(V(f"v_lshl_add_u32 v{T2}, v{T1}, 3, v{T2}", [T1, T2], [T2]))
    a(S(f"s_mul_i32 s{S_T0}, s{S_B}, 81920", [S_B], [S_T0]))
    a(S(f"s_lshl_b32 s{S_T2}, s{S_J}, 8", [S_J], [S_T2]))
    a(S(f"s_add_u32 s{S_T0}, s{S_T0}, s{S_T2}", [S_T0, S_T2], [S_T0]))
    a(S(f"s_lshl_b32 s{S_T2}, s{S_W}, 6", [S_W], [S_T2]))
    a(S(f"s_add_u32 s{S_T0}, s{S_T0}, s{S_T2}", [S_T0, S_T2], [S_T0]))
    a(V(f"v_add_u32 v{V_OUT}, s{S_T0}, v{T2}", [T2, ('s', S_T0)], [V_OUT]))
    a(V(f"v_cmp_gt_u32 vcc, 40, v{V_LANE}", [V_LANE], [VCC]))
    a(V(f"v_mov_b32 v{T0}, 0x7ff00000", [], [T0]))
    a(V(f"v_cndmask_b32 v{V_PLD}, v{T0}, v{V_PLD}, vcc", [T0, V_PLD, VCC], [V_PLD]))
    a(V(f"v_cndmask_b32 v{V_OUT}, v{T0}, v{V_OUT}, vcc", [T0, V_OUT, VCC], [V_OUT]))
    for k in range(5): a(S(f"s_mov_b32 s{S_TAB+k}, {k*8192}", [], [S_TAB+k]))
    return o
def wod_calc():
    o = []; a = o.append
    T0, T1 = 252, 253
    a(S(f"s_lshl_b32 s{S_T0}, s{S_B}, 2", [S_B], [S_T0]))
    a(S(f"s_add_u32 s{S_T0}, s{S_T0}, s{S_W}", [S_T0, S_W], [S_T0]))
    a(S(f"s_lshl_b32 s{S_T0}, s{S_T0}, 14", [S_T0], [S_T0]))
    a(S(f"s_lshl_b32 s{S_T2}, s{S_J}, 8", [S_J], [S_T2]))
    a(S(f"s_add_u32 s{S_T0}, s{S_T0}, s{S_T2}", [S_T0, S_T2], [S_T0]))
    a(V(f"v_bfe_u32 v{T0}, v{V_LANE}, 1, 4", [V_LANE], [T0]))
    a(V(f"v_and_b32 v{T1}, 1, v{V_LANE}", [V_LANE], [T1]))
    a(V(f"v_lshlrev_b32 v{T1}, 7, v{T1}", [T1], [T1]))
    a(V(f"v_lshl_add_u32 v{T0}, v{T0}, 10, v{T1}", [T0, T1], [T0]))
    a(V(f"v_add_u32 v{V_TCH}, s{S_T0}, v{T0}", [T0, ('s', S_T0)], [V_TCH]))
    a(S(f"s_and_b32 s{S_T0}, s{S_W}, 1", [S_W], [S_T0]))
    a(S(f"s_lshl_b32 s{S_T0}, s{S_T0}, 3", [S_T0], [S_T0]))
    a(V(f"v_lshl_add_u32 v{T0}, v{V_G}, 1, s{S_T0}", [V_G, ('s', S_T0)], [T0]))
    a(V(f"v_xor_b32 v{T0}, v{V_N}, v{T0}", [V_N, T0], [T0]))
    a(S(f"s_lshl_b32 s{S_T0}, s{S_J}, 8", [S_J], [S_T0]))
    a(V(f"v_lshl_add_u32 v{T0}, v{T0}, 4, s{S_T0}", [T0, ('s', S_T0)], [T0]))
    a(V(f"v_lshl_add_u32 v{T1}, s{S_W}, 2, v{V_G}", [V_G, ('s', S_W)], [T1]))
    a(V(f"v_lshl_add_u32 v{V_WOD}, v{T1}, 10, v{T0}", [T0, T1], [V_WOD]))
    return o

def phase_b(sg, Q, qr):
    NT = 8
    calc = wod_calc() + tail_calc()
    sg.addall(qr[:4])
    qr = qr[4:]
    for tau in range(-1, 40):
        i, q = divmod(tau, 5) if tau >= 0 else (-1, 4)
        mf = []
        bst = [int(x) for x in opt.bst.split(',')]
        if tau in bst: stamp(sg, 5 + bst.index(tau), 'B')
        if tau + 1 < 40: mf += qk(tau + 1)
        if tau - 1 >= 0: mf += pv(tau - 1)
        ds, marks = [], []
        if tau == -1: ds = qr
        elif tau == 0: ds = v_reads(0); marks = [('vr', 0, 0), ('vr', 0, 1)]
        elif tau < 27:
            if q == 2: ds = k_reads(i + 1)[:4]; marks = [('kr', i + 1, 0)]
            if q == 3: ds = k_reads(i + 1)[4:] + v_reads(i + 1)[:2]; marks = [('kr', i + 1, 1)]
            if q == 4: ds = v_reads(i + 1)[2:8]; marks = [('vr', i + 1, 0)]
            if q == 0: ds = v_reads(i)[8:14]
            if q == 1 and i > 0: ds = v_reads(i)[14:]; Q.mark(('vr', i, 1))
        xp = None
        if tau >= 27:
            k6, k7, v6, v7 = k_reads(6), k_reads(7), v_reads(6), v_reads(7)
            vo = [v7[l + 8 * h] for l in range(8) for h in range(2)]
            G = [1, 3, 5, 7, 9, 11, 13, 15, 16]
            def cwp(q_, second):
                w_ = comb_writes(q_)
                if int(opt.w64) and q_ < 2:
                    h_ = []
                    for x in w_[1:]:
                        m_ = re.match(r"ds_write_b128 v(\d+), a\[(\d+):\d+\] offset:(\d+)", x.t)
                        for z in range(2): h_.append(dswr('ds_write_b64', int(m_.group(1)), ('a', int(m_.group(2)) + 2 * z), 2, int(m_.group(3)) + 8 * z, lgtag=x.lgtag))
                    return list(zip([1, 3, 5, 9, 13, 16], h_[6:])) if second else list(zip([7, 1, 3, 5, 9, 13, 16], [w_[0]] + h_[:6]))
                return list(zip([1, 9, 13], w_[4:])) if second else list(zip([7, 1, 9, 13], w_[:4]))
            xp = {27: list(zip([3, 5, 9, 11, 15, 16], k6[:4] + v6[:2])),
                  28: list(zip([1, 3, 5, 7, 9, 11, 13, 15, 16], k6[4:] + k7[:5])),
                  29: list(zip(G, k7[5:] + v6[2:8])),
                  30: list(zip([1, 3, 5, 7, 9, 11, 13, 15, 16, 16], v6[8:] + vo[:2])),
                  31: list(zip([1, 1, 3, 5, 5, 7, 9, 9, 11, 13, 13, 15, 16, 16], vo[2:])),
                  32: [], 33: cwp(0, 0), 34: cwp(0, 1), 35: cwp(1, 0), 36: cwp(1, 1), 37: cwp(2, 0),
                  38: cwp(2, 1) + list(zip([3, 5, 5, 7, 11, 15, 16, 16], lreads((0, 1)) + preads(0)[:4])),
                  39: list(zip([0, 2, 4, 6], comb_writes(3)[:4])) + list(zip([1, 1, 3, 3, 5, 5, 7, 7], preads(0)[4:] + preads(1)))}[tau]
            ds = [x for _, x in xp]; marks = []
            if tau == 38:
                b = barrier(needvm=[('wo', -1)], lg0=False); b.needlg = (('cw', 0), ('cw', 1)); sg.add(b)
        n = len(mf)
        gaps = [[] for _ in range(n)]
        e, c = sm(tau) if 0 <= tau < 40 else ([], [])
        if n == 17:
            epos = [0, 2, 4, 6, 8, 10, 12, 14]; cpos = [3, 7, 11, 15]
            dpos = [1, 3, 5, 7, 9, 11, 13, 15] if len(ds) > 4 else [1, 3, 5, 7]
            if ds and ds[0].k == 'dswr': dpos = [1, 1, 3, 7, 9, 13, 16]
            vpos = [1, 5, 9, 13] if (tau < int(opt.even_at) or q == 1) else [1, 7, 13]
            if int(opt.bsched) and not (ds and ds[0].k == 'dswr'):
                if q == 1: dpos, vpos = [1, 3], [5, 9, 13, 16]
                elif tau < int(opt.even_at): dpos, vpos = [3, 7, 11, 15, 16, 16], [1, 5, 9, 13]
                else: dpos, vpos = [3, 5, 9, 11, 15, 16], [1, 7, 13]
        else:
            epos = list(range(8)); cpos = [min(n - 1, x) for x in (2, 4, 6, 8)]
            dpos = [(k * n) // max(1, len(ds)) for k in range(len(ds))]
            vpos = [1, 5]
        if xp is not None:
            dpos = [g_ for g_, _ in xp]; vpos = [7, 11, 15] if tau >= 32 else [13]
            if tau == 27: vpos = [1, 7, 13]
        for x, p_ in zip(ds, dpos): gaps[p_].append(x)
        if tau == int(opt.nl_at):
            sg.add(V("v_mov_b32 v9, 0", [], [9]))
            Q.q.insert(0, Item([], vload(('v', V_GC), 2, 9, S_D, None, 0, flags=' sc1', tag='non')))
        if tau == int(opt.nc_at):
            assert not any(it.ins.vmtag == 'non' for it in Q.q)
            sg.add(V(f"v_readfirstlane_b32 s{S_NON}, v{V_GC}", [V_GC], [('s', S_NON)]))
            sg.add(V(f"v_readfirstlane_b32 s{S_NON+1}, v{V_GC+1}", [V_GC+1], [('s', S_NON+1)]))
            sg.add(S(f"s_cmp_eq_u64 s[{S_NON}:{S_NON+1}], 0", [S_NON, S_NON+1], []))
            sg.text("s_cbranch_scc1 L_spin_n"); sg.text("L_back_n:")
        if tau == int(opt.bar_at): sg.add(barrier(lg0=False))
        for x in ds:
            while any(it.ins.vmtag in x.needvm for it in Q.q): weave(sg, Q, [], 1, 0)
        if tau == int(opt.tch_at): Q.push([Item([], vload(('v', V_TCH + 1), 1, V_TCH, S_WO, None, 0))])
        if tau == int(opt.tlb_at):
            assert not calc
            Q.push([Item([S(f"s_mov_b32 s{S_SO}, {q*256*KB}", [], [S_SO])], vload(('v', 66), 1, V_OD, S_O, S_SO, 0, flags=' sc1')) for q in (0, 2)]
                   + [Item([], vload(('v', 66), 1, V_PLD, S_WT, None, 0, flags=' sc1')), Item([], vload(('v', 66), 1, V_OUT, S_OUT, None, 0, flags=' sc1')),
                      Item([S(f"s_add_u32 s{S_SO}, s{S_F1}, 64", [S_F1], [S_SO])], vload(('v', 66), 1, V_ZERO, S_C, S_SO, 0, flags=' sc1'))])
        if tau == int(opt.wo_at): assert not calc; Q.push(wo_dma(-1))
        place(gaps, Q, vpos)
        for x, p_ in zip(e, epos): gaps[p_].append(x)
        for x, p_ in zip(c, cpos): gaps[p_].append(x)
        if tau >= int(opt.calc_at) and n == 17:
            for gi in range(17):
                if calc and calc[0].k == 'salu' and not any(y.k == 'salu' for y in gaps[gi]): gaps[gi].insert(0, calc.pop(0))
                cost = sum(8 if y.k == 'trans' else 0 if y.k == 'salu' else 4 for y in gaps[gi])
                while calc and calc[0].k != 'salu' and cost <= 4: gaps[gi].append(calc.pop(0)); cost += 4
        sg.addall(interleave(mf, gaps))
        for m in marks: Q.mark(m)

def poll(sg, lab, vaddr):
    sg.text(f"s_mov_b32 s{S_SPIN}, {opt.spin}")
    sg.text(f"{lab}:")
    sg.text(f"buffer_load_dwordx2 v[250:251], v{vaddr}, s[{S_C}:{S_C+3}], 0 offen sc1")
    sg.text(f"s_sub_u32 s{S_SPIN}, s{S_SPIN}, 1")
    sg.text("s_waitcnt vmcnt(0)")
    sg.text(f"v_cmp_ne_u64 vcc, s[{S_NON}:{S_NON+1}], v[250:251]")
    sg.text(f"s_cmp_eq_u32 s{S_SPIN}, 0")
    sg.text(f"s_cbranch_scc1 {lab}_done")
    sg.text("s_nop 2")
    sg.text(f"s_cbranch_vccnz {lab}")
    sg.text(f"{lab}_done:")
    sg.vm = []
def raise_flag(sg, stage, lab):
    n, sh = (4, 7) if stage == 1 else (8, 9)
    sg.text(f"s_cmp_lg_u32 s{S_W}, 0"); sg.text(f"s_cbranch_scc1 {lab}")
    sg.text(f"s_mov_b64 s[{S_EX}:{S_EX+1}], exec"); sg.text(f"s_mov_b64 exec, {(1 << n) - 1 if n < 7 else '0xff'}")
    for x in [f"v_lshl_add_u32 v9, v{V_LANE}, {sh}, s{S_G1 if stage == 1 else S_G2}", f"v_mov_b32 v250, s{S_NON}", f"v_mov_b32 v251, s{S_NON+1}",
              f"buffer_store_dwordx2 v[250:251], v9, s[{S_C}:{S_C+3}], 0 offen{opt.f1_flags if stage == 1 else ' sc1'}"]: sg.text(x)
    sg.text(f"s_mov_b64 exec, s[{S_EX}:{S_EX+1}]")
    sg.text(f"{lab}:")
WOF = A_Q
RES = 100
def part(q, k):
    if q == 0: return 36 + 4 * k if k < 4 else 64 + 4 * (k - 4)
    return {1: 100, 2: 164, 3: 188, 4: 100}[q] + 4 * k
def preads(q):
    o = []
    for jd in range(1, 4):
        for e in range(2):
            k = (jd - 1) * 2 + e; u = q * 6 + k; row = u >> 3
            o.append(dsrd('ds_read_b128', ('v', part(q, k)), 4, V_CR + 2 * (jd - 1) + (row >> 1), (row & 1) * 32 * KB + (u & 7) * KB))
    return o
LSA, LSB = 124, 76
def lreads(qs):
    if qs == (0, 1): return [dsrd('ds_read_b64', ('v', LSA + src * 2), 2, V_LR, src * 8 * KB) for src in range(4)]
    return [dsrd('ds_read_b128', ('v', LSB + src * 4), 4, V_LR, src * 8 * KB + 16) for src in range(4)]
def lsum(qs):
    w = []
    def lr(src, q): return LSA + src * 2 + q if q < 2 else LSB + src * 4 + q - 2
    LS = lr(0, qs[0])
    for q in qs:
        d = V_T0 + q
        w.append(V(f"v_add_f32 v{d}, v{lr(0,q)}, v{lr(1,q)}", [lr(0,q), lr(1,q)], [d]))
        w.append(V(f"v_add_f32 v{lr(2,q)}, v{lr(2,q)}, v{lr(3,q)}", [lr(2,q), lr(3,q)], [lr(2,q)]))
        w.append(V(f"v_add_f32 v{d}, v{d}, v{lr(2,q)}", [d, lr(2,q)], [d]))
    a_, b_, c_ = V_T0 + qs[0], V_T0 + qs[1], V_T0 + qs[-1]
    w.append(V(f"v_min3_f32 v{LS}, v{a_}, v{b_}, v{c_}", [a_, b_, c_], [LS]))
    w.append(V(f"v_add_f32 v{LS+1}, v{a_}, v{b_}", [a_, b_], [LS+1]))
    w.append(V(f"v_add_f32 v{LS+1}, v{LS+1}, v{c_}", [LS+1, c_], [LS+1]))
    w.append(V(f"v_cmp_nle_f32 vcc, {f2h(2.0**int(opt.lo_exp))}, v{LS}", [LS], [VCC]))
    w.append(S(f"s_mov_b64 s[{S_EX}:{S_EX+1}], vcc", [VCC], [S_EX, S_EX+1]))
    w.append(V(f"v_cmp_nge_f32 vcc, {f2h(2.0**int(opt.hi_exp))}, v{LS+1}", [LS+1], [VCC]))
    w.append(S(f"s_or_b64 vcc, vcc, s[{S_EX}:{S_EX+1}]", [VCC, S_EX, S_EX+1], [VCC]))
    w.append(S(f"s_and_b64 vcc, vcc, s[{S_GM}:{S_GM+1}]", [VCC], [VCC]))
    w.append(raw("s_cbranch_vccnz L_redo"))
    for q in qs: w.append(T(f"v_rcp_f32 v{V_T0+q}, v{V_T0+q}", [V_T0+q], [V_T0+q]))
    return w
def finish(q):
    w = []
    for e in range(2):
        o_ = V_OWN[q] + e * 4
        for jd in range(1, 4):
            p_ = part(q, (jd - 1) * 2 + e)
            for r in (0, 2):
                w.append(V(f"v_pk_add_f32 v[{o_+r}:{o_+r+1}], v[{o_+r}:{o_+r+1}], v[{p_+r}:{p_+r+1}]", [o_+r, o_+r+1, p_+r, p_+r+1], [o_+r, o_+r+1]))
    o_ = V_OWN[q]
    ri = V_T0 + (q & ~1); sel = "op_sel:[0,1] op_sel_hi:[1,1]" if q & 1 else "op_sel:[0,0] op_sel_hi:[1,0]"
    for r in range(0, 8, 2):
        w.append(V(f"v_pk_mul_f32 v[{o_+r}:{o_+r+1}], v[{o_+r}:{o_+r+1}], v[{ri}:{ri+1}] {sel}", [o_+r, o_+r+1, V_T0+q], [o_+r, o_+r+1]))
    for r in range(4):
        w.append(V(f"v_cvt_pk_bf16_f32 v{o_+r}, v{o_+2*r}, v{o_+2*r+1}", [o_+2*r, o_+2*r+1], [o_+r]))
    w.append(S(f"s_mov_b32 s{S_SV}, {q*128*KB}", [], [S_SV]))
    w.append(vstore(('v', o_), 4, V_OST, S_O, S_SV, 0, flags=opt.o_flags, tag='ost'))
    return w
def wor():
    return [dsrd('ds_read_b64_tr_b16', ('a', WOF + (ks * 2 + e) * 4 + h * 2), 2, V_WT + 4 + e, ks * 8 * KB + h * 4096) for ks in range(4) for e in range(2) for h in range(2)]
def combine(sg, Q):
    assert not Q.q
    mf = pv(39); gaps = [[] for _ in mf]
    wr = comb_writes(3)[4:]; ls = lsum((0, 1))
    for k, x in enumerate(wr): gaps[3 * k].append(x)
    k = 0
    for gi in range(9):
        n_ = 2 - len(gaps[gi])
        while ls and (n_ > 0 or ls[0].k == 'salu') and gi < 9:
            x = ls.pop(0); gaps[gi].append(x)
            n_ -= 0 if x.k == 'salu' else 2 if x.k == 'trans' else 1
    sg.addall(interleave(mf, gaps))
    stamp(sg, 4)
    w4 = comb_writes(4)
    w = ls + finish(0) + finish(1)
    for k, x in enumerate(w4): w.insert(min(len(w), 6 + k * 6), x)
    sg.addall(w)
    sg.add(barrier())
    stamp(sg, 5)
    Q.push(wo_dma(0))
    rd = lreads((2, 3, 4)) + preads(2) + preads(3)
    weave(sg, Q, rd, int(opt.cw), 2)
    sg.addall(rd)
    w = lsum((2, 3, 4)) + preads(4) + finish(2) + finish(3) + finish(4)
    for k, x in enumerate(wor()): w.insert(30 + 3 * k, x)
    sg.addall(w)
    stamp(sg, 6)

def phase_c(sg, Q):
    a = sg.add
    ACC = 164
    a(barrier())
    stamp(sg, 5, 'D')
    for q in range(5): a(dswr('ds_write_b128', V_OW, ('v', V_OWN[q]), 4, q * KB))
    Q.push(wo_dma(1) + wo_dma(2))
    weave(sg, Q, [], int(opt.shadow), 0)
    stamp(sg, 6, 'D')
    a(barrier(needvm=['ost']))
    stamp(sg, 7, 'D')
    stamp(sg, 7)
    raise_flag(sg, 1, "L_sig1")
    def CF(k): return [(100, 120), (64, 84), (204, 36)][k % 3]
    def c_reads(k):
        pos, ks = divmod(k, 4); pos -= 1
        xf, wf = CF(k)
        ob = 0 if pos < 0 else (44 - 20 * pos) * KB
        xr = [dsrd('ds_read_b128', ('v', xf + q * 4), 4, V_OL, ob + (ks * 5 + q) * KB) for q in range(5)]
        if pos < 0: return xr
        wb = (pos * 4 + ks) * 8 * KB
        wr = [dsrd('ds_read_b64_tr_b16', ('v', wf + e * 4 + h * 2), 2, V_WT + (2 if wb >= 64 * KB else 0) + e, (wb % (64 * KB)) + h * 4096) for e in range(2) for h in range(2)]
        return wr[:2] + xr[:1] + wr[2:] + xr[1:]
    def c_mfmas(k):
        xf, wf = CF(k)
        ff = 'v'
        if k < 4: wf, ff = WOF + k * 8, 'a'
        o = []
        for q in range(5):
            for e in range(2):
                d = ('v', ACC + (q * 2 + e) * 4)
                o.append(mfma(d, (ff, wf + e * 4), ('v', xf + q * 4), 0 if k == 0 else d))
        o[0].r |= set(R('v', xf, 20) + R(ff, wf, 8))
        return o
    def step(k, nx, pos=()):
        mf = c_mfmas(k); gaps = [[] for _ in mf]
        if nx is not None:
            for i, r in enumerate(c_reads(nx)): gaps[i].append(r)
        place(gaps, Q, pos)
        sg.addall(interleave(mf, gaps))
    def own_steps():
        for k in range(4): step(k, k + 2 if k < 2 else None, [1, 5, 9] if k % 2 == 0 else [3, 7])
    sg.addall(c_reads(0)); sg.addall(c_reads(1))
    held = []
    if int(opt.ownlate) == 2: held = Q.q; Q.q = []
    elif int(opt.ownlate): weave(sg, Q, [], len(Q.q), 0)
    else: own_steps()
    assert not Q.q
    stamp(sg, 8, 'D')
    t = [f"s_mov_b32 s{S_SPIN}, {opt.spin}", "L_poll1:", f"s_load_dwordx8 s[4:11], s[{S_C}:{S_C+1}], s{S_F1} glc", f"s_sub_u32 s{S_SPIN}, s{S_SPIN}, 1", "s_waitcnt lgkmcnt(0)",
         f"s_cmp_eq_u32 s{S_SPIN}, 0", "s_cbranch_scc1 L_poll1_done"]
    for h in range(4): t += [f"s_cmp_lg_u64 s[{4+2*h}:{5+2*h}], s[{S_NON}:{S_NON+1}]", "s_cbranch_scc1 L_poll1"]
    t += ["L_poll1_done:"]
    if int(opt.p1w): t = [f"s_cmp_lg_u32 s{S_W}, 0", "s_cbranch_scc1 L_poll1_done"] + t + ["s_waitcnt lgkmcnt(0)", "s_barrier"]
    for x in t: sg.text(x)
    sg.lg = []
    stamp(sg, 9, 'D')
    stamp(sg, 5, 'E')
    stamp(sg, 8)
    Q.push(osib_dma(0) + osib_dma(1) + held)
    if int(opt.ownlate):
        weave(sg, Q, [], 5, 0); own_steps()
    weave(sg, Q, [], len(Q.q), 0)
    stamp(sg, 6, 'E')
    a(barrier(needvm=[('os', 0), ('wo', 0), ('wo', 1)]))
    stamp(sg, 7, 'E')
    Q.push(osib_dma(2))
    sg.addall(c_reads(4)); sg.addall(c_reads(5))
    def pfin(q):
        b = ACC + q * 8
        return [V(f"v_cvt_pk_bf16_f32 v{b+r}, v{b+2*r}, v{b+2*r+1}", [b+2*r, b+2*r+1], [b+r]) for r in range(4)] + [vstore(('v', b), 4, V_PS, S_WT, S_TAB + q, 0, flags=' sc1', tag='pst')]
    last = 16 - (2 if int(opt.qmaj) else 0)
    for k in range(4, last):
        nx = k + 2 if k + 2 < 16 else None
        if nx in (8, 12):
            assert not Q.q or nx == 8
            a(barrier(needvm=[('os', nx // 4 - 1), ('wo', nx // 4 - 1)], lg0=False))
            stamp(sg, 8 if nx == 8 else 9, 'E')
        step(k, nx, [1, 5, 9] if k % 2 == 0 else [3, 7])
    if int(opt.qmaj):
        m14, m15 = c_mfmas(14), c_mfmas(15)
        m15[0].r -= set(R('v', CF(15)[0] + 4, 16))
        mf = flat([[m14[2*q], m15[2*q], m14[2*q+1], m15[2*q+1]] for q in range(5)])
        gaps = [[] for _ in mf]
        for q in range(4):
            f_ = pfin(q)
            g0 = 4 * q + 6
            if g0 + 2 < 20:
                gaps[g0] += f_[0:2]; gaps[g0 + 1] += f_[2:4]; gaps[g0 + 2] += f_[4:]
        sg.addall(interleave(mf, gaps))
        stamp(sg, 9)
        sg.addall(pfin(3) + pfin(4))
    else:
        stamp(sg, 9)
        for q in range(5): sg.addall(pfin(q))
    a(barrier(needvm=['pst'], lg0=False))
    stamp(sg, 5, '2')
    raise_flag(sg, 2, "L_sig2")
    a(S(f"s_mov_b32 s{S_SO}, 4096", [], [S_SO]))
    a(S(f"s_mov_b32 s{S_T1}, 0xffff0000", [], [S_T1]))
    PB, SM, U = 100, 140, 148
    def pl(h): return vload(('v', PB + 4 * h), 4, V_PLD, S_WT, S_SO if h >= 4 else None, (h & 3) * 1024, flags=' sc1')
    t = [f"s_mov_b32 s{S_SPIN}, {opt.spin}", f"s_mov_b32 s{S_T2}, 0", "L_poll2:", f"s_load_dwordx16 s[4:19], s[{S_C}:{S_C+1}], s{S_F2} glc", f"s_sub_u32 s{S_SPIN}, s{S_SPIN}, 1",
         "s_waitcnt lgkmcnt(0)", f"s_cmp_eq_u32 s{S_SPIN}, 0", "s_cbranch_scc1 L_poll2_done"]
    for h in range(8):
        t += [f"s_cmp_lg_u64 s[{4+2*h}:{5+2*h}], s[{S_NON}:{S_NON+1}]", f"s_cbranch_scc1 L_g{h}", f"s_bitcmp1_b32 s{S_T2}, {h}", f"s_cbranch_scc1 L_g{h}",
              f"s_bitset1_b32 s{S_T2}, {h}", pl(h).t, f"L_g{h}:"]
    t += [f"s_cmp_lg_u32 s{S_T2}, 0xff", "s_cbranch_scc1 L_poll2", "L_poll2_done:"]
    if int(opt.p2w):
        t = [f"s_cmp_lg_u32 s{S_W}, 0", "s_cbranch_scc1 L_poll2_done", f"s_mov_b32 s{S_SPIN}, {opt.spin}", "L_poll2:", f"s_load_dwordx16 s[4:19], s[{S_C}:{S_C+1}], s{S_F2} glc",
             f"s_sub_u32 s{S_SPIN}, s{S_SPIN}, 1", "s_waitcnt lgkmcnt(0)", f"s_cmp_eq_u32 s{S_SPIN}, 0", "s_cbranch_scc1 L_poll2_done"]
        for h in range(8): t += [f"s_cmp_lg_u64 s[{4+2*h}:{5+2*h}], s[{S_NON}:{S_NON+1}]", "s_cbranch_scc1 L_poll2"]
        t += ["L_poll2_done:", "s_barrier"] + [pl(h).t for h in range(8)]
    for x in t: sg.text(x)
    stamp(sg, 6, '2')
    sg.drain()
    for h in range(8):
        d = SM if h == 0 else U
        for r in range(4):
            a(V(f"v_lshlrev_b32 v{d+2*r}, 16, v{PB+4*h+r}", [PB+4*h+r], [d+2*r]))
            a(V(f"v_and_b32 v{d+2*r+1}, s{S_T1}, v{PB+4*h+r}", [PB+4*h+r], [d+2*r+1]))
        if h:
            for r in range(0, 8, 2):
                a(V(f"v_pk_add_f32 v[{SM+r}:{SM+r+1}], v[{SM+r}:{SM+r+1}], v[{U+r}:{U+r+1}]", [SM+r, SM+r+1, U+r, U+r+1], [SM+r, SM+r+1]))
    for r in range(4):
        a(V(f"v_cvt_pk_bf16_f32 v{SM+r}, v{SM+2*r}, v{SM+2*r+1}", [SM+2*r, SM+2*r+1], [SM+r]))
    a(vstore(('v', SM), 2, V_OUT, S_OUT, None, 0, flags=opt.out_flags))
    a(vstore(('v', SM + 2), 2, V_OUT, S_OUT, None, 32, flags=opt.out_flags))

def out_of_line():
    t = []
    t += ["L_spin_n:", f"s_mov_b32 s{S_SPIN}, {opt.spin}", "L_spin_n1:",
          f"buffer_load_dwordx2 v[{V_GC}:{V_GC+1}], v9, s[{S_D}:{S_D+3}], 0 offen sc1", f"s_sub_u32 s{S_SPIN}, s{S_SPIN}, 1", "s_waitcnt vmcnt(0)",
          f"v_readfirstlane_b32 s{S_NON}, v{V_GC}", f"v_readfirstlane_b32 s{S_NON+1}, v{V_GC+1}", f"s_cmp_eq_u32 s{S_SPIN}, 0", "s_cbranch_scc1 L_back_n", "s_nop 2",
          f"s_cmp_eq_u64 s[{S_NON}:{S_NON+1}], 0", "s_cbranch_scc1 L_spin_n1", "s_branch L_back_n"]
    t += ["L_redo:", f"s_mov_b64 s[{S_GM}:{S_GM+1}], 0", f"s_mov_b32 s{S_REDO}, 1",
          "s_waitcnt vmcnt(0) lgkmcnt(0)", "s_barrier"]
    sg = Seg()
    p1 = prologue1()
    a = sg.add
    a(V(f"v_lshl_add_u32 v{V_T0}, s{S_W}, 2, v{V_G}", [V_G], [V_T0]))
    a(V(f"v_xor_b32 v{V_T1}, v{V_N}, v{V_T0}", [V_N, V_T0], [V_T1]))
    a(V(f"v_lshlrev_b32 v{V_T1}, 4, v{V_T1}", [V_T1], [V_T1]))
    a(V(f"v_lshl_add_u32 v{V_XD}, v{V_T0}, 10, v{V_T1}", [V_T0, V_T1], [V_XD]))
    a(S(f"s_and_b32 s{S_T0}, s{S_W}, 2", [S_W], [S_T0]))
    a(S(f"s_lshl_b32 s{S_T0}, s{S_T0}, 2", [S_T0], [S_T0]))
    a(V(f"v_lshl_add_u32 v{V_T1}, v{V_G}, 1, s{S_T0}", [V_G], [V_T1]))
    a(V(f"v_xor_b32 v{V_T1}, v{V_N}, v{V_T1}", [V_N, V_T1], [V_T1]))
    a(V(f"v_lshlrev_b32 v{V_T1}, 4, v{V_T1}", [V_T1], [V_T1]))
    a(V(f"v_lshl_add_u32 v{V_WD}, v{V_T0}, 13, v{V_T1}", [V_T0, V_T1], [V_WD]))
    t += sg.out + ["s_nop 4", "s_branch L_restart"]
    sg = Seg(); a = sg.add
    sg.text("L_max:")
    sg.text(f"s_mov_b32 s{S_SPIN}, m0")
    sg.drain()
    sg.text("s_barrier")
    MX, KF, AD = 76, V_VF, 84
    for q in range(5): a(V(f"v_mov_b32 v{MX+q}, 0xff800000", [], [MX+q]))
    for s in range(4): a(V(f"v_add_u32 v{AD+s}, {96*KB}, v{V_KA+s}", [V_KA+s], [AD+s]))
    a(S(f"s_mov_b32 s{S_T2}, 0", [], [S_T2]))
    sg.text("L_max_loop:"); sg.reset_hist()
    for j in range(8):
        if j % 4 == 0:
            a(S(f"s_add_u32 s{S_T1}, s{S_T2}, {(j>>2)*4096}", [S_T2], [S_T1]))
            a(S(f"s_add_u32 m0, s{S_W8K}, {96*KB + (j>>2)*4096}", [S_W8K], [M0]))
        a(dma(V_KD + (j & 3), S_K, S_T1, 1024 * (j & 3), 'mk'))
    for t_ in range(2):
        for s in range(4):
            a(dsrd('ds_read_b128', ('v', KF + (t_ * 4 + s) * 4), 4, AD + s, t_ * 4096, needvm=['mk']))
    for q in range(5):
        for t_ in range(2):
            d = ('v', 88 + t_ * 4)
            for s in range(4): a(mfma(d, ('v', KF + (t_ * 4 + s) * 4), AQ(q, s), 0 if s == 0 else d))
        for k in range(4):
            a(V(f"v_max3_f32 v{MX+q}, v{MX+q}, v{88+2*k}, v{89+2*k}", [MX+q, 88+2*k, 89+2*k], [MX+q]))
    sg.drain()
    a(S(f"s_add_u32 s{S_T2}, s{S_T2}, 8192", [S_T2], [S_T2]))
    sg.text(f"s_cmp_lt_u32 s{S_T2}, 65536"); sg.text("s_nop 4"); sg.text("s_cbranch_scc1 L_max_loop")
    sg.text("s_barrier")
    a(S(f"s_mul_i32 s{S_T0}, s{S_W}, 1280", [S_W], [S_T0]))
    a(S(f"s_add_u32 s{S_T0}, s{S_T0}, {96*KB}", [S_T0], [S_T0]))
    a(V(f"v_lshl_add_u32 v{AD}, v{V_LANE}, 2, s{S_T0}", [V_LANE], [AD]))
    a(S(f"s_mov_b32 s{S_T0}, {96*KB}", [], [S_T0]))
    a(V(f"v_lshl_add_u32 v{AD+1}, v{V_N}, 2, s{S_T0}", [V_N], [AD+1]))
    for q in range(5): a(dswr('ds_write_b32', AD, ('v', MX + q), 1, q * 256))
    a(barrier())
    for q in range(5):
        for k in range(16):
            a(dsrd('ds_read_b32', ('v', KF + k), 1, AD + 1, (k >> 2) * 1280 + q * 256 + (k & 3) * 64))
        for k in range(8):
            a(V(f"v_max3_f32 v{MX+q}, v{MX+q}, v{KF+2*k}, v{KF+2*k+1}", [MX+q, KF+2*k, KF+2*k+1], [MX+q]))
        for r in range(4):
            a(V(f"v_sub_f32 v{V_NEGM+q*4+r}, 0, v{MX+q}", [MX+q], [V_NEGM+q*4+r]))
    sg.drain()
    sg.text("s_barrier"); sg.text(f"s_mov_b32 m0, s{S_SPIN}"); sg.text("s_nop 4"); sg.text("s_branch L_back_max")
    return t + sg.out

def stamp_out(sg, n):
    if not opt.stamps: return
    stamp(sg, n - 1)
    t = ["s_load_dwordx2 s[4:5], s[0:1], 56", "s_waitcnt lgkmcnt(0)", f"s_add_u32 s4, s4, {16<<20}", "s_addc_u32 s5, s5, 0", "s_and_b32 s5, s5, 0xffff",
         "s_mov_b32 s6, 0x100000", "s_mov_b32 s7, 0x20000", "s_lshl_b32 s8, s2, 2", "s_add_u32 s8, s8, s32", "s_lshl_b32 s8, s8, 6", "v_mov_b32 v2, s8"]
    for i in range(n):
        t += [f"v_mov_b32 v3, s{3 if i == 0 else 76+2*i}", f"buffer_store_dword v3, v2, s[4:7], 0 offen offset:{4*i}"]
    for x in t: sg.text(x)

def kernel():
    sg = Seg()
    sg.text(NAME + "_kernel:")
    sg.text("s_cmp_ge_u32 s2, 256")
    sg.text("s_cbranch_scc1 L_end")
    if opt.stamps:
        stamp(sg, 0)
    p1 = prologue1()
    sg.addall(p1[:2])
    if int(opt.cpf):
        for x in ["s_getpc_b64 s[94:95]", "L_pc:", "s_lshr_b32 s3, s2, 3", "v_lshrrev_b32 v8, 6, v0", "v_and_b32 v9, 1, v0", "v_lshl_add_u32 v8, v8, 1, v9",
                  "v_lshl_add_u32 v8, s3, 3, v8", "v_lshlrev_b32 v8, 7, v8", "v_min_u32 v8, (L_code_end - L_pc - 4) & 0xffffff80, v8", "global_load_dword v255, v8, s[94:95]"]: sg.text(x)
    sg.addall(p1[2:])
    if opt.stamps:
        sg.text("s_mov_b32 s3, s76")
    p2 = prologue2()
    Q = Queue()
    first = x_dma(0) + w_dma(0)
    stamp(sg, 5, 'P')
    Q.push(first)
    weave(sg, Q, [], 9, 0)
    stamp(sg, 6, 'P')
    sg.addall(p2)
    stamp(sg, 7, 'P')
    sg.text("s_cmp_lg_u32 s2, 0"); sg.text("s_cbranch_scc1 L_nocz")
    lane0(sg, ["v_mov_b32 v9, 0", f"s_memrealtime s[{S_NON}:{S_NON+1}]", "s_waitcnt lgkmcnt(0)", f"s_or_b32 s{S_NON}, s{S_NON}, 1", f"v_mov_b32 v250, s{S_NON}", f"v_mov_b32 v251, s{S_NON+1}",
               f"buffer_store_dwordx2 v[250:251], v9, s[{S_D}:{S_D+3}], 0 offen sc1"], "L_nocz")
    sg.text("s_branch L_first")
    sg.text("L_restart:")
    s2 = Seg(); s2.addall(restart_setup()); Q2 = Queue(); Q2.push(x_dma(0) + w_dma(0)); weave(s2, Q2, [], 9, 0)
    for x in s2.out: sg.text(x)
    sg.text("L_first:")
    early, late = prologue3()
    early = early + late
    def BB(u): return f"B{u + 1}"
    Q.push(w_dma(1) + x_dma(1) + w_dma(2) + w_dma(3) + x_dma(2) + w_dma(4) + ((w_dma(5, 'B2') + x_dma(3)) if int(opt.la) else (x_dma(3) + w_dma(5, 'B2'))) + w_dma(6, 'B3') + w_dma(7, 'B4')
           + kv_dma('k', 0, 'B5') + kv_dma('v', 0, 'B6') + kv_dma('k', 1, 'BQ') + kv_dma('v', 1, 'BQ'))
    for i in range(2, 8):
        if not int(opt.nodma): Q.push(kv_dma('k', i) + kv_dma('v', i))
    n0 = int(opt.n0) - 9
    weave(sg, Q, early, n0, (len(early) + n0 - 1) // n0)
    sg.addall(early)
    qr = phase_a(sg, Q)
    sg.addall(qr[:0])
    stamp(sg, 3)
    sg.text(f"s_cmp_eq_u32 s{S_REDO}, 0"); sg.text("s_cbranch_scc1 L_back_max")
    s2 = Seg(); s2.addall(qr)
    for x in s2.out: sg.text(x)
    sg.text("s_branch L_max")
    sg.text("L_back_max:")
    phase_b(sg, Q, qr)
    combine(sg, Q)
    phase_c(sg, Q)
    sg.text("L_fin:")
    stamp_out(sg, 11)
    sg.text("L_end:")
    sg.text("s_endpgm")
    return sg.out + ['L_code_end:'] + out_of_line()

def report_kernel():
    idx, mode = opt.report.split(',')
    if mode == 'next':
        return ["report_kernel:", "s_cmp_ge_u32 s2, 1", "s_cbranch_scc1 L3_end", "s_memrealtime s[12:13]", "s_load_dwordx2 s[4:5], s[0:1], 56", "s_waitcnt lgkmcnt(0)",
                f"s_add_u32 s4, s4, {17<<20}", "s_addc_u32 s5, s5, 0", "s_and_b32 s5, s5, 0xffff", "s_mov_b32 s6, 64", "s_mov_b32 s7, 0x20000", "v_mov_b32 v1, 0", "v_mov_b32 v2, s12",
                "buffer_store_dword v2, v1, s[4:7], 0 offen", "L3_end:", "s_endpgm"]
    t = ["report_kernel:", "s_cmp_ge_u32 s2, 1", "s_cbranch_scc1 L3_end", "s_load_dwordx2 s[4:5], s[0:1], 56", "s_waitcnt lgkmcnt(0)",
         f"s_add_u32 s4, s4, {16<<20}", "s_addc_u32 s5, s5, 0", "s_and_b32 s5, s5, 0xffff", "s_mov_b32 s6, 0x100000", "s_mov_b32 s7, 0x20000",
         "v_lshlrev_b32 v1, 8, v0", f"buffer_load_dword v2, v1, s[4:7], 0 offen offset:{4*int(idx)}", "buffer_load_dword v3, v1, s[4:7], 0 offen",
         "v_mov_b32 v4, 0", "v_mov_b32 v5, 0", "v_mov_b32 v6, -1", "ds_write_b32 v4, v5", "ds_write_b32 v4, v6 offset:8", "s_waitcnt vmcnt(0) lgkmcnt(0)", "s_barrier",
         "ds_min_u32 v4, v3 offset:8", "s_waitcnt lgkmcnt(0)", "s_barrier", "ds_read_b32 v6, v4 offset:8", "s_waitcnt lgkmcnt(0)", "v_sub_u32 v2, v2, v6",
         "v_lshrrev_b32 v7, 3, v0", "v_mul_u32_u24 v7, 52, v7", "v_lshrrev_b32 v7, 8, v7", "v_and_b32 v8, 1, v0", "v_sub_u32 v8, 6, v8", "v_cmp_lt_u32 vcc, v7, v8",
         "v_min_u32 v2, 10000, v2",
         ("ds_add_u32 v4, v2" if mode == 'mean' else "ds_max_u32 v4, v2"), "s_waitcnt lgkmcnt(0)", "s_barrier", "ds_read_b32 v6, v4", "s_memrealtime s[12:13]", "s_waitcnt lgkmcnt(0)",
         "v_readfirstlane_b32 s10, v6", "s_nop 4"]
    if mode == 'mean': t += ["s_mul_i32 s10, s10, 10", "s_lshr_b32 s10, s10, 8"]
    elif mode == 'max': t += ["s_mul_i32 s10, s10, 10"]
    else: t += ["s_mov_b32 s10, 0"]
    t += ["L3_spin:", "s_memrealtime s[14:15]", "s_waitcnt lgkmcnt(0)", "s_sub_u32 s14, s14, s12",
          "s_cmp_lt_u32 s14, s10", "s_cbranch_scc1 L3_spin", "L3_end:", "s_endpgm"]
    return t

def build():
    def fmt(l): return "\n".join(x if x.endswith(':') else "    " + x for x in l)
    nm = NAME + "_kernel"
    s = "; @launch grid=(256,1,1) block=(256,1,1) lds=163840\n"
    if opt.report:
        s = f"; @launch kernel={nm} grid=(256,1,1) block=(256,1,1) lds=163840\n; @launch kernel=report_kernel grid=(1,1,1) block=(256,1,1) lds=64\n"
    s += '.amdgcn_target "amdgcn-amd-amdhsa--gfx950"\n.text\n'
    s += f".globl {nm}\n.p2align 8\n.type {nm},@function\n" + fmt(kernel()) + "\n"
    if opt.report: s += ".globl report_kernel\n.p2align 8\n.type report_kernel,@function\n" + fmt(report_kernel()) + "\n"
    s += f""".section .rodata,"a"
.p2align 6
.amdhsa_kernel {nm}
  .amdhsa_next_free_vgpr 512
  .amdhsa_next_free_sgpr 102
  .amdhsa_accum_offset 256
  .amdhsa_group_segment_fixed_size 0
  .amdhsa_kernarg_size 64
  .amdhsa_user_sgpr_count 2
  .amdhsa_user_sgpr_kernarg_segment_ptr 1
  .amdhsa_system_sgpr_workgroup_id_x 1
  .amdhsa_float_denorm_mode_32 3
.end_amdhsa_kernel
"""
    if opt.report:
        s += """.p2align 6
.amdhsa_kernel report_kernel
  .amdhsa_next_free_vgpr 32
  .amdhsa_next_free_sgpr 32
  .amdhsa_accum_offset 32
  .amdhsa_group_segment_fixed_size 0
  .amdhsa_kernarg_size 64
  .amdhsa_user_sgpr_count 2
  .amdhsa_user_sgpr_kernarg_segment_ptr 1
  .amdhsa_system_sgpr_workgroup_id_x 1
.end_amdhsa_kernel
"""
    return s

if __name__ == '__main__':
    out = sys.argv[1] if len(sys.argv) > 1 else 'cdna_kernels/' + NAME + '.s'
    for a_ in sys.argv[2:]:
        k, v = a_.split('=', 1)
        setattr(opt, k, (' ' + v) if k.endswith('flags') and v else v)
    txt = build()
    open(out, 'w').write(txt)
```

```python
import sys, struct, re
from dsl import *

KB = 1024
NAME = 'standalone__gqa_block_cached__near_ridge'
def f2h(x): return hex(struct.unpack('<I', struct.pack('<f', x))[0])
QSCALE = 1.4426950408889634 / (128 ** 0.5)
WS_WO = 8 << 20
WS_CT = 12 << 20

class Opt:
    stamps = ''
    report = ''
    kv_flags = ''
    a_flags = ''
    n0 = 22
    warm = 1
    perstep = 6
    lo_exp = -40
    hi_exp = 40
    spin = 300000
    rt_at = 5
    bar_at = 12
    nodma = 0
    drain = '45'
    tlb_at = 99
    aonly = 0
    la = 10
    aq = 1
    ownlate = 1
    o_flags = ' sc1'
    f1_flags = ' sc1'
    w64 = 0
    out_flags = ''
    bsched = 1
    p1w = 1
    p2w = 0
    pollk = '19,29,39'
    dyn2 = 1
    qmaj = 1
    tch_at = 27
    even_at = 99
    pdepth = 1
    kvo = 4
    finw = 0
    alim = 16
    cpf = 1
    chain = 1
    wo_at = 35
    calc_at = 16
    nl_at = 8
    nc_at = 13
    cw = 8
    shadow = 8
    bst = '0,5,10,15,20'
    no_rt = 0
    clk = 'r'
    lg0 = 0
    vpos = '1,5,9,13'
    rot_kv = 1
    rot_a = 2
    rot_c = 1
    gl_at = 29
    gc_at = 33
opt = Opt()

S_X, S_WQ, S_K, S_V, S_O, S_WO, S_WT, S_WL, S_C, S_D, S_OUT = 4, 8, 12, 16, 20, 24, 28, 52, 56, 60, 64
S_W, S_B, S_HKV, S_HQ = 32, 33, 34, 35
S_W1K, S_W8K, S_SO, S_T0, S_T1, S_T2, S_SK, S_SV = 36, 37, 38, 39, 40, 41, 42, 43
S_TAB = 44
S_REDO, S_MT, S_NT, S_VALID, S_RT, S_SPIN = 68, 69, 70, 71, 72, 73
S_EX = 74
S_F1, S_F2, S_G1, S_G2 = 100, 101, 72, 51
S_GM = 70
S_J_UNUSED = 3
S_P = 76
S_ST = 80
V_LANE, V_N, V_G, V_T0, V_T1, V_T2, V_T3, V_T4, V_T5 = 1, 2, 3, 4, 5, 6, 7, 8, 9
V_KA, V_VA, V_KD, V_VD = 10, 14, 22, 26
V_OST, V_CW, V_LW = 28, 29, 31
V_ONES, V_NEGM, V_L, V_S, V_P, V_KF, V_VF = 32, 36, 56, 76, 92, 100, 164
V_XA, V_XB, V_WA, V_WB, V_XD, V_WD, V_QW = 228, 232, 236, 238, 240, 241, 242
V_GC = 250
S_NON = 96
V_CR, V_LR, V_WOD, V_WT, V_OL, V_OW, V_OD, V_PS, V_PLD, V_OUT, V_P1, V_P2 = 228, 234, 235, 236, 242, 243, 244, 245, 246, 247, 248, 249
V_ZERO = 9
V_TCH = 64
S_H = 52
S_W5K = 55
S_J = 69
A_O, A_Q = 0, 160
V_OWN = [132, 140, 148, 156, 56]
A_KF1, A_L = 120, 240
def AO(lam, q):
    if lam < 2: return ('v', V_OWN[q] + 4 * lam)
    return ('a', A_O + 4 * (q * 6 + lam - 2))
def KF(i, k): return ('v', V_KF + 4 * k) if i % 2 == 0 else ('a', A_KF1 + 4 * k)
def LA(q): return ('a', A_L + 4 * q) if q < 4 else ('a', 152)
def AQ(q, s): return ('a', A_Q + 4 * (q * 4 + s))

def XU(c, q):
    if c == 0: return q * 4 * KB
    if c == 1: return 20 * KB + q * 4 * KB
    if c == 2: return 128 * KB + q * 4 * KB
    return [120, 124, 148, 152, 156][q] * KB
def WU(slot, ks):
    return {0: [40, 48], 1: [56, 96], 2: [104, 112], 3: [64, 72], 4: [80, 88]}[slot][ks] * KB
WSLOT = [0, 1, 2, 3, 4, 0, 1, 2]
QBUF = 128 * KB

def V(t, r=(), w=()):
    return valu(t, r=[('v', x) if isinstance(x, int) else x for x in r], w=[('v', x) if isinstance(x, int) else x for x in w])
def T(t, r=(), w=()):
    return valu(t, r=[('v', x) for x in r], w=[('v', x) for x in w], trans=True)
def S(t, r=(), w=()):
    return salu(t, r=[('s', x) if isinstance(x, int) else x for x in r], w=[('s', x) if isinstance(x, int) else x for x in w])
M0 = ('m0', 0)
VCC = ('vcc', 0)
def flat(l): return [x for y in l for x in y]

def srd(dst, plo, add_s=None, add_imm=0, size=0):
    o = []
    if add_s is not None:
        o.append(S(f"s_add_u32 s{dst}, s{plo}, s{add_s}", [plo, add_s], [dst]))
        o.append(S(f"s_addc_u32 s{dst+1}, s{plo+1}, 0", [plo+1], [dst+1]))
        o.append(S(f"s_and_b32 s{dst+1}, s{dst+1}, 0xffff", [dst+1], [dst+1]))
    elif add_imm:
        o.append(S(f"s_add_u32 s{dst}, s{plo}, {add_imm}", [plo], [dst]))
        o.append(S(f"s_addc_u32 s{dst+1}, s{plo+1}, 0", [plo+1], [dst+1]))
        o.append(S(f"s_and_b32 s{dst+1}, s{dst+1}, 0xffff", [dst+1], [dst+1]))
    else:
        o.append(S(f"s_mov_b32 s{dst}, s{plo}", [plo], [dst]))
        o.append(S(f"s_and_b32 s{dst+1}, s{plo+1}, 0xffff", [plo+1], [dst+1]))
    if isinstance(size, str):
        o.append(S(f"s_mov_b32 s{dst+2}, {size}", [int(size[1:])], [dst+2]))
    else:
        o.append(S(f"s_mov_b32 s{dst+2}, {size}", [], [dst+2]))
    o.append(S(f"s_mov_b32 s{dst+3}, 0x20000", [], [dst+3]))
    return o

KV_ORDER = [[0, 2, 1, 3, 4, 6, 5, 7], [0, 1, 3, 2, 4, 5, 7, 6], [1, 0, 2, 4, 3, 5, 6, 7], [1, 0, 2, 3, 5, 4, 6, 7]]
KV_ORDERS = [KV_ORDER,
  [[0, 4, 1, 2, 3, 5, 6, 7], [1, 0, 5, 2, 3, 4, 6, 7], [2, 0, 1, 6, 3, 4, 5, 7], [3, 0, 1, 2, 7, 4, 5, 6]],
  [[0, 1, 2, 3, 4, 5, 6, 7], [0, 1, 2, 3, 4, 5, 6, 7], [4, 5, 6, 7, 0, 1, 2, 3], [4, 5, 6, 7, 0, 1, 2, 3]],
  [[0, 2, 1, 3, 5, 4, 6, 7], [1, 0, 3, 2, 4, 6, 5, 7], [2, 1, 0, 4, 3, 5, 7, 6], [0, 1, 2, 3, 5, 4, 6, 7]],
  [[0, 1, 2, 4, 3, 5, 6, 7], [1, 0, 2, 3, 5, 4, 6, 7], [2, 0, 1, 3, 4, 6, 5, 7], [0, 1, 3, 2, 4, 5, 7, 6]],
  [[0, 1, 4, 2, 3, 5, 6, 7], [1, 0, 2, 5, 3, 4, 6, 7], [2, 0, 1, 3, 6, 4, 5, 7], [0, 3, 1, 2, 4, 7, 5, 6]],
  [[0, 1, 3, 2, 4, 5, 7, 6], [0, 1, 2, 4, 3, 5, 6, 7], [0, 2, 1, 3, 5, 4, 6, 7], [0, 2, 1, 3, 4, 6, 5, 7]],
  [[0, 1, 2, 4, 3, 5, 6, 7], [1, 0, 3, 2, 5, 4, 6, 7], [2, 3, 0, 1, 4, 6, 5, 7], [3, 2, 1, 0, 4, 5, 7, 6]],
  [[0, 1, 2, 4, 3, 5, 6, 7], [1, 2, 0, 3, 5, 4, 6, 7], [2, 0, 1, 3, 4, 6, 5, 7], [0, 3, 1, 2, 4, 5, 7, 6]]]
def kv_pack(j):
    o = KV_ORDERS[int(opt.kvo)][j] if int(opt.rot_kv) else list(range(8))
    return sum(t << (4 * i) for i, t in enumerate(o))
S_KVO = 98
V_XD4 = 204
S_WC = 99

class Item:
    def __init__(s, pre, ins, after=None): s.pre, s.ins, s.after = pre, ins, after
def x_dma(c, after=None):
    return [Item([S(f"s_add_u32 m0, s{S_W1K}, {XU(c,q)}", [S_W1K], [M0])],
                 dma(V_XD4 + c, S_X, S_TAB + q, 0, ('x', c), flags=opt.a_flags), after) for q in range(5)]
def w_dma(u, after=None):
    o = []
    for k in range(4):
        pre = []
        if k == 0:
            pre.append(S(f"s_add_u32 s{S_SK}, s{S_WC}, {(u & 6) << 19}", [S_WC], [S_SK]))
            pre.append(S(f"s_and_b32 s{S_SK}, s{S_SK}, {7 << 19}", [S_SK], [S_SK]))
            if u & 1: pre.append(S(f"s_xor_b32 s{S_SK}, s{S_SK}, {1 << 19}", [S_SK], [S_SK]))
        pre.append(S(f"s_add_u32 s{S_SO}, s{S_SK}, {k*131072}", [S_SK], [S_SO]))
        pre.append(S(f"s_add_u32 m0, s{S_W1K}, {WU(WSLOT[u], k>>1) + (k&1)*4*KB}", [S_W1K], [M0]))
        o.append(Item(pre, dma(V_WD, S_WQ, S_SO, 0, ('w', u), flags=opt.a_flags), after))
    return o
def kv_dma(kind, i, after=None):
    o = []
    base = (i & 1) * 32 * KB + (0 if kind == 'k' else 64 * KB)
    sr, so = (S_K, S_SK) if kind == 'k' else (S_V, S_SV)
    for j in range(8):
        pre = []
        if j % 4 == 0:
            if j == 0:
                pre.append(S(f"s_bfe_u32 s{so}, s{S_KVO}, {hex((3 << 16) | (4 * i))}", [S_KVO], [so]))
                pre.append(S(f"s_lshl_b32 s{so}, s{so}, 13", [so], [so]))
            else:
                pre.append(S(f"s_add_u32 s{so}, s{so}, 4096", [so], [so]))
            pre.append(S(f"s_add_u32 m0, s{S_W8K}, {base + (j>>2)*4096}", [S_W8K], [M0]))
        va = V_KD + (j & 3) if kind == 'k' else V_VD + (j & 1)
        tag = (kind + 'r', i - 2, j >> 2)
        o.append(Item(pre, dma(va, sr, so, 1024 * (j & 3), (kind, i, j >> 2), needlg=[tag], flags=opt.kv_flags), after if i < 2 else tag))
    return o
def k_reads(i):
    return [dsrd('ds_read_b128', KF(i, t * 4 + s), 4, V_KA + s, (i & 1) * 32 * KB + t * 4096,
                 needvm=[('k', i, t)], lgtag=('kr', i, t)) for t in range(2) for s in range(4)]
def v_reads(i):
    return [dsrd('ds_read_b64_tr_b16', ('v', V_VF + (i & 1) * 32 + lam * 4 + h * 2), 2, V_VA + lam, (i & 1) * 32 * KB + h * 4096,
                 needvm=[('v', i, h)], lgtag=('vr', i, h)) for h in range(2) for lam in range(8)]

class Queue:
    def __init__(s): s.q = []; s.pts = set()
    def push(s, items): s.q += items
    def mark(s, p): s.pts.add(p)
    def pop(s):
        if s.q and (s.q[0].after is None or s.q[0].after in s.pts): return s.q.pop(0)
        return None

def place(gaps, Q, pos):
    last = -1
    for p in pos:
        if p >= len(gaps): continue
        it = Q.pop()
        if it is None: break
        pre = list(it.pre)
        avail = list(range(last + 1, p))
        front = []
        if not avail: front = pre
        else:
            slots = [[] for _ in avail]
            for k_, x in enumerate(reversed(pre)):
                slots[max(0, len(avail) - 1 - k_)].insert(0, x)
            for g, sl in zip(avail, slots):
                k_ = 0
                while k_ < len(gaps[g]) and gaps[g][k_].k == 'salu': k_ += 1
                gaps[g][k_:k_] = sl
        k = 0
        while k < len(gaps[p]) and gaps[p][k].k == 'salu': k += 1
        gaps[p][k:k] = front + [it.ins]
        last = p
def weave(sg, Q, fill, n, per):
    for _ in range(n):
        it = Q.pop()
        if it is not None: sg.addall(it.pre + [it.ins])
        for _ in range(per):
            if fill: sg.add(fill.pop(0))

NST = 12
def stamp(sg, i, grp='1'):
    if not opt.stamps: return
    if 5 <= i <= 9 and grp != opt.stamps: return
    sg.text(f"{'s_memtime' if opt.clk == 'c' else 's_memrealtime'} s[{76+2*i}:{77+2*i}]")

def prologue1():
    o = []; a = o.append
    a(raw("s_load_dwordx2 s[92:93], s[0:1], 0"))
    a(raw("s_load_dwordx2 s[26:27], s[0:1], 24"))
    a(V(f"v_lshrrev_b32 v{V_T0}, 6, v0", [0], [V_T0]))
    a(V(f"v_and_b32 v{V_LANE}, 63, v0", [0], [V_LANE]))
    a(V(f"v_readfirstlane_b32 s{S_W}, v{V_T0}", [V_T0], [('s', S_W)]))
    a(S(f"s_and_b32 s{S_HKV}, s2, 7", [2], [S_HKV]))
    a(S(f"s_lshr_b32 s{S_B}, s2, 5", [2], [S_B]))
    a(S(f"s_bfe_u32 s{S_T0}, s2, 0x20003", [2], [S_T0]))
    a(S(f"s_mov_b32 s{S_J}, s{S_T0}", [S_T0], [S_J]))
    a(S(f"s_lshl_b32 s{S_HQ}, s{S_HKV}, 2", [S_HKV], [S_HQ]))
    a(S(f"s_add_u32 s{S_HQ}, s{S_HQ}, s{S_T0}", [S_HQ, S_T0], [S_HQ]))
    if int(opt.rot_a) == 2:
        a(S(f"s_add_u32 s{S_VALID}, s{S_T0}, s{S_B}", [S_T0, S_B], [S_VALID]))
        a(S(f"s_and_b32 s{S_VALID}, s{S_VALID}, 1", [S_VALID], [S_VALID]))
        a(S(f"s_lshl_b32 s{S_VALID}, s{S_VALID}, 2", [S_VALID], [S_VALID]))
    elif int(opt.rot_a) == 4:
        a(S(f"s_add_u32 s{S_VALID}, s{S_T0}, s{S_B}", [S_T0, S_B], [S_VALID]))
        a(S(f"s_and_b32 s{S_VALID}, s{S_VALID}, 3", [S_VALID], [S_VALID]))
        a(S(f"s_lshl_b32 s{S_VALID}, s{S_VALID}, 1", [S_VALID], [S_VALID]))
    elif int(opt.rot_a):
        a(S(f"s_lshl_b32 s{S_T0}, s{S_T0}, 1", [S_T0], [S_T0]))
        a(S(f"s_add_u32 s{S_VALID}, s{S_T0}, s{S_B}", [S_T0, S_B], [S_VALID]))
        a(S(f"s_and_b32 s{S_VALID}, s{S_VALID}, 7", [S_VALID], [S_VALID]))
    else:
        a(S(f"s_mov_b32 s{S_VALID}, 0", [], [S_VALID]))
    a(V(f"v_and_b32 v{V_N}, 15, v{V_LANE}", [V_LANE], [V_N]))
    a(V(f"v_lshrrev_b32 v{V_G}, 4, v{V_LANE}", [V_LANE], [V_G]))
    a(S(f"s_lshl_b32 s{S_W1K}, s{S_W}, 10", [S_W], [S_W1K]))
    a(S(f"s_lshl_b32 s{S_W8K}, s{S_W}, 13", [S_W], [S_W8K]))
    a(V(f"v_lshl_add_u32 v{V_T0}, s{S_W}, 2, v{V_G}", [V_G, ('s', S_W)], [V_T0]))
    a(V(f"v_xor_b32 v{V_T1}, v{V_N}, v{V_T0}", [V_N, V_T0], [V_T1]))
    a(V(f"v_lshlrev_b32 v{V_T1}, 4, v{V_T1}", [V_T1], [V_T1]))
    a(V(f"v_lshl_add_u32 v{V_XD}, v{V_T0}, 10, v{V_T1}", [V_T0, V_T1], [V_XD]))
    a(S(f"s_and_b32 s{S_T0}, s{S_W}, 2", [S_W], [S_T0]))
    a(S(f"s_lshl_b32 s{S_T0}, s{S_T0}, 2", [S_T0], [S_T0]))
    a(V(f"v_lshl_add_u32 v{V_T1}, v{V_G}, 1, s{S_T0}", [V_G, ('s', S_T0)], [V_T1]))
    a(V(f"v_xor_b32 v{V_T1}, v{V_N}, v{V_T1}", [V_N, V_T1], [V_T1]))
    a(V(f"v_lshlrev_b32 v{V_T1}, 4, v{V_T1}", [V_T1], [V_T1]))
    a(V(f"v_lshl_add_u32 v{V_WD}, v{V_T0}, 13, v{V_T1}", [V_T0, V_T1], [V_WD]))
    a(S(f"s_mul_i32 s{S_T0}, s{S_B}, 81920", [S_B], [S_T0]))
    a(S(f"s_lshl_b32 s{S_T2}, s{S_HQ}, 8", [S_HQ], [S_T2]))
    a(S(f"s_sub_u32 s{S_T1}, 4194304, s{S_T2}", [S_T2], [S_T1]))
    a(S(f"s_mov_b32 s{S_REDO}, 0", [], [S_REDO]))
    a(S(f"s_lshl_b32 s{S_WC}, s{S_VALID}, 19", [S_VALID], [S_WC]))
    a(S(f"s_mov_b64 s[{S_GM}:{S_GM+1}], -1", [], [S_GM, S_GM+1]))
    o += restart_setup()
    a(S(f"s_mov_b32 s{S_X+2}, 81920", [], [S_X+2])); a(S(f"s_mov_b32 s{S_X+3}, 0x20000", [], [S_X+3]))
    a(S(f"s_mov_b32 s{S_WQ+2}, s{S_T1}", [S_T1], [S_WQ+2])); a(S(f"s_mov_b32 s{S_WQ+3}, 0x20000", [], [S_WQ+3]))
    a(raw("s_waitcnt lgkmcnt(0)", 'wait'))
    o += srd(S_X, 92, add_s=S_T0, size=81920)[:3]
    o += srd(S_WQ, 26, add_s=S_T2, size=0)[:3]
    a(raw("s_load_dwordx4 s[92:95], s[0:1], 8"))
    a(raw(f"s_load_dwordx2 s[{S_WO}:{S_WO+1}], s[0:1], 32"))
    a(raw(f"s_load_dwordx4 s[{S_C}:{S_C+3}], s[0:1], 40"))
    a(raw("s_load_dwordx2 s[100:101], s[0:1], 56"))
    return o

def restart_setup():
    o = [S(f"s_mov_b32 s{S_TAB+q}, {q*16384}", [], [S_TAB+q]) for q in range(5)]
    for c in range(4):
        o.append(S(f"s_lshr_b32 s{S_SO}, s{S_WC}, 12", [S_WC], [S_SO]))
        o.append(S(f"s_add_u32 s{S_SO}, s{S_SO}, {c*256}", [S_SO], [S_SO]))
        o.append(S(f"s_and_b32 s{S_SO}, s{S_SO}, 0x300", [S_SO], [S_SO]))
        o.append(V(f"v_add_u32 v{V_XD4+c}, s{S_SO}, v{V_XD}", [V_XD, ('s', S_SO)], [V_XD4+c]))
    return o

def prologue2():
    o = []; a = o.append
    a(raw("s_waitcnt lgkmcnt(0)", 'wait'))
    a(S(f"s_lshl_b32 s{S_T0}, s{S_B}, 3", [S_B], [S_T0]))
    a(S(f"s_add_u32 s{S_T0}, s{S_T0}, s{S_HKV}", [S_T0, S_HKV], [S_T0]))
    a(S(f"s_lshl_b32 s{S_T0}, s{S_T0}, 2", [S_T0], [S_T0]))
    a(S(f"s_add_u32 s{S_T0}, s{S_T0}, s{S_W}", [S_T0, S_W], [S_T0]))
    a(S(f"s_lshl_b32 s{S_T0}, s{S_T0}, 16", [S_T0], [S_T0]))
    o += srd(S_K, 92, add_s=S_T0, size=65536)
    o += srd(S_V, 94, add_s=S_T0, size=65536)
    a(S(f"s_lshl_b32 s{S_T0}, s{S_HKV}, 19", [S_HKV], [S_T0]))
    o += srd(S_WO, S_WO, add_s=S_T0, size=524288)
    o += srd(S_O, 100, size=8*5*128*1024)
    o += srd(S_WT, 100, add_imm=WS_WO, size=8*4*20*8*1024)
    o += srd(S_D, S_C + 2, size=256)
    o += srd(S_OUT, S_C, size=655360)
    o += srd(S_C, 100, add_imm=WS_CT, size=65536)
    a(S(f"s_bitcmp1_b32 s{S_HQ}, 0", [S_HQ], []))
    a(S(f"s_mov_b32 s{S_T0}, {hex(kv_pack(0))}", [], [S_T0]))
    a(S(f"s_cselect_b32 s{S_T0}, {hex(kv_pack(1))}, s{S_T0}", [S_T0], [S_T0]))
    a(S(f"s_mov_b32 s{S_T1}, {hex(kv_pack(2))}", [], [S_T1]))
    a(S(f"s_cselect_b32 s{S_T1}, {hex(kv_pack(3))}, s{S_T1}", [S_T1], [S_T1]))
    a(S(f"s_bitcmp1_b32 s{S_HQ}, 1", [S_HQ], []))
    a(S(f"s_cselect_b32 s{S_KVO}, s{S_T1}, s{S_T0}", [S_T0, S_T1], [S_KVO]))
    for p in range(3):
        a(S(f"s_cmp_le_u32 s{S_J}, {p}", [S_J], []))
        a(S(f"s_cselect_b32 s{S_T1}, {p + 1}, {p}", [], [S_T1]))
        a(S(f"s_lshl_b32 s{S_H+p}, s{S_T1}, 17", [S_T1], [S_H+p]))
    a(S(f"s_mul_i32 s{S_W5K}, s{S_W}, 5120", [S_W], [S_W5K]))
    a(S(f"s_lshl_b32 s{S_T0}, s{S_B}, 12", [S_B], [S_T0]))
    a(S(f"s_lshl_b32 s{S_F1}, s{S_HQ}, 7", [S_HQ], [S_F1]))
    a(S(f"s_add_u32 s{S_F1}, s{S_F1}, s{S_T0}", [S_F1, S_T0], [S_F1]))
    a(S(f"s_add_u32 s{S_F2}, s{S_F1}, 32768", [S_F1], [S_F2]))
    a(S(f"s_lshl_b32 s{S_T1}, s{S_HKV}, 9", [S_HKV], [S_T1]))
    a(S(f"s_lshl_b32 s{S_G1}, s{S_J}, 3", [S_J], [S_G1]))
    a(S(f"s_add_u32 s{S_G1}, s{S_G1}, s{S_T1}", [S_G1, S_T1], [S_G1]))
    a(S(f"s_add_u32 s{S_G1}, s{S_G1}, s{S_T0}", [S_G1, S_T0], [S_G1]))
    a(S(f"s_lshl_b32 s{S_T1}, s{S_J}, 7", [S_J], [S_T1]))
    a(S(f"s_lshl_b32 s{S_G2}, s{S_HKV}, 3", [S_HKV], [S_G2]))
    a(S(f"s_add_u32 s{S_G2}, s{S_G2}, s{S_T1}", [S_G2, S_T1], [S_G2]))
    a(S(f"s_add_u32 s{S_G2}, s{S_G2}, s{S_T0}", [S_G2, S_T0], [S_G2]))
    a(S(f"s_add_u32 s{S_G2}, s{S_G2}, 32768", [S_G2], [S_G2]))
    return o

def prologue3():
    o = []; a = o.append
    a(S(f"s_bfe_u32 s{S_T1}, s{S_WC}, 0x10013", [S_WC], [S_T1]))
    a(S(f"s_lshl_b32 s{S_T1}, s{S_T1}, 3", [S_T1], [S_T1]))
    a(V(f"v_xor_b32 v{V_T1}, s{S_T1}, v{V_N}", [V_N, ('s', S_T1)], [V_T1]))
    for s in range(4):
        a(V(f"v_add_u32 v{V_T0}, {4*s}, v{V_G}", [V_G], [V_T0]))
        a(V(f"v_xor_b32 v{V_T0}, v{V_T0}, v{V_T1}", [V_T0, V_T1], [V_T0]))
        a(V(f"v_lshlrev_b32 v{V_T0}, 4, v{V_T0}", [V_T0], [V_T0]))
        a(V(f"v_lshl_add_u32 v{V_XA+s}, v{V_N}, 8, v{V_T0}", [V_N, V_T0], [V_XA+s]))
        a(V(f"v_add_u32 v{V_XB+s}, {120*KB}, v{V_XA+s}", [V_XA+s], [V_XB+s]))
    a(V(f"v_lshrrev_b32 v{V_T2}, 2, v{V_N}", [V_N], [V_T2]))
    a(V(f"v_bfe_u32 v{V_T3}, v{V_N}, 1, 1", [V_N], [V_T3]))
    a(V(f"v_and_b32 v{V_T4}, 1, v{V_N}", [V_N], [V_T4]))
    a(V(f"v_lshlrev_b32 v{V_T4}, 3, v{V_T4}", [V_T4], [V_T4]))
    a(V(f"v_and_b32 v{V_T5}, 1, v{V_G}", [V_G], [V_T5]))
    a(V(f"v_lshl_add_u32 v{V_T5}, v{V_T5}, 2, v{V_T2}", [V_T5, V_T2], [V_T5]))
    a(V(f"v_lshlrev_b32 v{V_T5}, 1, v{V_T5}", [V_T5], [V_T5]))
    a(S(f"s_lshl_b32 s{S_T1}, s{S_W}, 2", [S_W], [S_T1]))
    a(V(f"v_lshl_add_u32 v{V_T1}, v{V_G}, 3, v{V_T2}", [V_G, V_T2], [V_T1]))
    a(V(f"v_lshl_add_u32 v{V_T1}, v{V_T1}, 8, v{V_T4}", [V_T1, V_T4], [V_T1]))
    for e in range(2):
        a(V(f"v_add3_u32 v{V_T0}, s{S_T1}, v{V_T3}, {2*e}", [V_T3, ('s', S_T1)], [V_T0]))
        a(V(f"v_xor_b32 v{V_T0}, v{V_T0}, v{V_T5}", [V_T0, V_T5], [V_T0]))
        a(V(f"v_lshl_add_u32 v{V_T0}, v{V_T0}, 4, v{V_T1}", [V_T0, V_T1], [V_T0]))
        a(V(f"v_add_u32 v{V_WA+e}, {40*KB}, v{V_T0}", [V_T0], [V_WA+e]))
        a(V(f"v_add_u32 v{V_WB+e}, {96*KB}, v{V_T0}", [V_T0], [V_WB+e]))
    a(V(f"v_lshl_add_u32 v{V_T1}, v{V_G}, 2, v{V_T2}", [V_G, V_T2], [V_T1]))
    n_early = len(o)
    for s in range(4):
        a(V(f"v_add_u32 v{V_KA+s}, s{S_W8K}, v{V_XA+s}", [V_XA+s, ('s', S_W8K)], [V_KA+s]))
    a(V(f"v_lshl_add_u32 v{V_T1}, v{V_T1}, 8, v{V_T4}", [V_T1, V_T4], [V_T1]))
    a(S(f"s_add_u32 s{S_T2}, s{S_W8K}, {64*KB}", [S_W8K], [S_T2]))
    a(V(f"v_add_u32 v{V_T1}, s{S_T2}, v{V_T1}", [V_T1, ('s', S_T2)], [V_T1]))
    a(V(f"v_add_u32 v{V_T3}, s{S_T1}, v{V_T3}", [V_T3, ('s', S_T1)], [V_T3]))
    for lam in range(8):
        a(V(f"v_add_u32 v{V_T0}, {2*lam}, v{V_T3}", [V_T3], [V_T0]))
        a(V(f"v_and_b32 v{V_T0}, 15, v{V_T0}", [V_T0], [V_T0]))
        a(V(f"v_xor_b32 v{V_T0}, v{V_T0}, v{V_T5}", [V_T0, V_T5], [V_T0]))
        a(V(f"v_lshl_add_u32 v{V_VA+lam}, v{V_T0}, 4, v{V_T1}", [V_T0, V_T1], [V_VA+lam]))
    a(V(f"v_xor_b32 v{V_T0}, v{V_N}, v{V_G}", [V_N, V_G], [V_T0]))
    a(V(f"v_lshlrev_b32 v{V_T0}, 4, v{V_T0}", [V_T0], [V_T0]))
    a(V(f"v_lshl_add_u32 v{V_KD}, v{V_G}, 8, v{V_T0}", [V_G, V_T0], [V_KD]))
    for j in range(1, 4):
        a(V(f"v_xor_b32 v{V_KD+j}, {64*j}, v{V_KD}", [V_KD], [V_KD+j]))
    a(V(f"v_lshlrev_b32 v{V_T0}, 1, v{V_G}", [V_G], [V_T0]))
    a(V(f"v_xor_b32 v{V_T0}, v{V_N}, v{V_T0}", [V_N, V_T0], [V_T0]))
    a(V(f"v_lshlrev_b32 v{V_T0}, 4, v{V_T0}", [V_T0], [V_T0]))
    a(V(f"v_lshl_add_u32 v{V_VD}, v{V_G}, 8, v{V_T0}", [V_G, V_T0], [V_VD]))
    a(V(f"v_xor_b32 v{V_VD+1}, 128, v{V_VD}", [V_VD], [V_VD+1]))
    a(V(f"v_lshrrev_b32 v{V_T0}, 1, v{V_G}", [V_G], [V_T0]))
    a(V(f"v_add_u32 v{V_T0}, s{S_T1}, v{V_T0}", [V_T0, ('s', S_T1)], [V_T0]))
    a(V(f"v_xor_b32 v{V_T0}, v{V_T0}, v{V_N}", [V_T0, V_N], [V_T0]))
    a(V(f"v_lshlrev_b32 v{V_T0}, 4, v{V_T0}", [V_T0], [V_T0]))
    a(V(f"v_lshl_add_u32 v{V_T0}, v{V_N}, 8, v{V_T0}", [V_N, V_T0], [V_T0]))
    a(V(f"v_and_b32 v{V_T1}, 1, v{V_G}", [V_G], [V_T1]))
    a(V(f"v_lshl_add_u32 v{V_T0}, v{V_T1}, 3, v{V_T0}", [V_T0, V_T1], [V_T0]))
    a(V(f"v_add_u32 v{V_QW}, {QBUF}, v{V_T0}", [V_T0], [V_QW]))
    a(V(f"v_xor_b32 v{V_QW+1}, 32, v{V_QW}", [V_QW], [V_QW+1]))
    a(V(f"v_lshl_add_u32 v{V_CW}, v{V_LANE}, 4, s{S_W8K}", [V_LANE, ('s', S_W8K)], [V_CW]))
    a(V(f"v_add_u32 v{V_CW+1}, {64*KB}, v{V_CW}", [V_CW], [V_CW+1]))
    a(S(f"s_add_u32 s{S_T0}, s{S_W8K}, {102*KB}", [S_W8K], [S_T0]))
    a(V(f"v_lshl_add_u32 v{V_LW}, v{V_LANE}, 5, s{S_T0}", [V_LANE, ('s', S_T0)], [V_LW]))
    a(S(f"s_mul_i32 s{S_T0}, s{S_B}, 640", [S_B], [S_T0]))
    a(S(f"s_lshl_b32 s{S_T2}, s{S_HQ}, 2", [S_HQ], [S_T2]))
    a(S(f"s_add_u32 s{S_T0}, s{S_T0}, s{S_T2}", [S_T0, S_T2], [S_T0]))
    a(S(f"s_add_u32 s{S_T0}, s{S_T0}, s{S_W}", [S_T0, S_W], [S_T0]))
    a(S(f"s_lshl_b32 s{S_T0}, s{S_T0}, 10", [S_T0], [S_T0]))
    a(V(f"v_lshl_add_u32 v{V_OST}, v{V_LANE}, 4, s{S_T0}", [V_LANE, ('s', S_T0)], [V_OST]))
    a(V(f"v_cmp_eq_u32 vcc, 0, v{V_N}", [V_N], [VCC]))
    a(V(f"v_mov_b32 v{V_T0}, 0x3f803f80", [], [V_T0]))
    for i in range(4):
        a(V(f"v_cndmask_b32 v{V_ONES+i}, 0, v{V_T0}, vcc", [V_T0, VCC], [V_ONES+i]))
    for i in range(20):
        a(V(f"v_mov_b32 v{V_NEGM+i}, 0", [], [V_NEGM+i]))
    return o[:n_early], o[n_early:]

V_QACC = V_VF
def AF(kap):
    return [(100, 120), (128, 148), (208, 156)][kap % 3]
def a_reads(kap):
    u, ks = kap >> 1, kap & 1
    c, s = u >> 1, kap & 3
    xf, wf = AF(kap)
    wb = WU(WSLOT[u], ks)
    xr = []
    for q in range(5):
        xb = XU(c, q)
        reg, base = (V_XA, 0) if xb < 64 * KB else (V_XB, 120 * KB)
        xr.append(dsrd('ds_read_b128', ('v', xf + q * 4), 4, reg + s, xb - base))
    wr = []
    for e in range(2):
        for h in range(2):
            reg, base = (V_WA, 40 * KB) if wb < 96 * KB else (V_WB, 96 * KB)
            wr.append(dsrd('ds_read_b64_tr_b16', ('v', wf + e * 4 + h * 2), 2, reg + e, wb - base + h * 1024))
    return wr[:2] + xr[:1] + wr[2:] + xr[1:]
def a_mfmas(kap):
    o = []
    xf, wf = AF(kap)
    for q in range(5):
        for e in range(2):
            d = ('v', V_QACC + (e * 5 + q) * 4)
            o.append(mfma(d, ('v', wf + e * 4), ('v', xf + q * 4), 0 if kap == 0 else d))
    return o
def lane0(sg, body, lab):
    sg.text(f"s_cmp_lg_u32 s{S_W}, 0"); sg.text(f"s_cbranch_scc1 {lab}")
    sg.text(f"s_mov_b64 s[{S_EX}:{S_EX+1}], exec"); sg.text("s_mov_b64 exec, 1")
    for x in body: sg.text(x)
    sg.text(f"s_mov_b64 exec, s[{S_EX}:{S_EX+1}]")
    sg.text(f"{lab}:")
def phase_a(sg, Q):
    stamp(sg, 1)
    sg.add(barrier(needvm=[('x', 0), ('w', 0)])); Q.mark('B0')
    stamp(sg, 2)
    sg.addall(a_reads(0)); sg.addall(a_reads(1))
    sg.add(S(f"s_mov_b32 s{S_T1}, {f2h(QSCALE)}", [], [S_T1]))
    sg.add(S(f"s_mov_b32 s{S_T2}, {f2h(QSCALE)}", [], [S_T2]))
    for kap in range(14 if int(opt.aq) else 16):
        mf = a_mfmas(kap)
        gaps = [[] for _ in mf]
        nx = kap + 2
        if nx < 16:
            if nx % 2 == 0:
                u = nx >> 1
                need = [('x', u >> 1), ('w', u)]
                while any(it.ins.vmtag in need for it in Q.q):
                    n_ = len(Q.q); weave(sg, Q, [], 1, 0); assert len(Q.q) < n_, (u, Q.q[0].after)
                while True:
                    younger = 0
                    for tg, _w in reversed(sg.vm):
                        if tg in need: break
                        younger += 1
                    n_ = len(Q.q)
                    if younger >= int(opt.la): break
                    weave(sg, Q, [], 1, 0)
                    if len(Q.q) == n_: break
                dr = str(u) in str(opt.drain)
                sg.add(barrier(needvm=need, lg0=dr)); Q.mark(f'B{u}')
                if dr: Q.mark(f'B{u+1}')
                if u in (1, 3, 5, 7): stamp(sg, 5 + u // 2, 'A')
            for i, r in enumerate(a_reads(nx)): gaps[i].append(r)
        mf[0].r |= set(R('v', AF(kap)[0], 20) + R('v', AF(kap)[1], 8))
        pos = [1, 5, 9] if kap % 2 == 0 else [3, 7]
        if int(opt.perstep) == 6: pos = [1, 4, 7] if kap % 2 == 0 else [1, 4, 8]
        if int(opt.perstep) == 7: pos = [1, 4, 6, 9] if kap % 2 == 0 else [2, 5, 8]
        if int(opt.perstep) == 8: pos = [1, 4, 6, 9]
        nkv = sum(1 for it in Q.q if it.ins.vmtag[0] in 'kv')
        room = int(opt.alim) - (128 - nkv) + (len(Q.q) - nkv)
        place(gaps, Q, pos[:max(0, room)])
        if int(opt.aonly): sg.addall([x for x in interleave(mf, gaps) if x.k not in ('mfma', 'dsrd')])
        else: sg.addall(interleave(mf, gaps))
    def qfin(q, e, packed):
        b = V_QACC + (e * 5 + q) * 4
        if packed: f_ = [V(f"v_pk_mul_f32 v[{b+r}:{b+r+1}], v[{b+r}:{b+r+1}], s[{S_T1}:{S_T1+1}]", [b+r, b+r+1], [b+r, b+r+1]) for r in (0, 2)]
        else: f_ = [V(f"v_mul_f32 v{b+r}, s{S_T1}, v{b+r}", [b+r], [b+r]) for r in range(4)]
        f_.append(V(f"v_cvt_pk_bf16_f32 v{b}, v{b}, v{b+1}", [b, b+1], [b]))
        f_.append(V(f"v_cvt_pk_bf16_f32 v{b+1}, v{b+2}, v{b+3}", [b+2, b+3], [b+1]))
        f_.append(dswr('ds_write_b64', V_QW + e, ('v', b), 2, q * 4096, lgtag='qw'))
        return f_
    todo = [(q, e) for q in range(5) for e in range(2)]
    if int(opt.aq):
        m14, m15 = a_mfmas(14), a_mfmas(15)
        m14[0].r |= set(R('v', AF(14)[0], 20) + R('v', AF(14)[1], 8))
        mf = flat([[m14[k], m15[k]] for k in range(10)])
        gaps = [[] for _ in mf]
        gi = 5
        while todo and gi + 3 <= 19:
            f_ = qfin(*todo.pop(0), False)
            gaps[gi] += f_[0:2]; gaps[gi + 1] += f_[2:4]; gaps[gi + 2] += f_[4:6]; gaps[gi + 3] = [f_[6]] + gaps[gi + 3]
            gi += 3
        nkv = sum(1 for it in Q.q if it.ins.vmtag[0] in 'kv')
        place(gaps, Q, [1, 4][:max(0, int(opt.alim) - (128 - nkv))])
        sg.addall(interleave(mf, gaps))
    stamp(sg, 9, 'A')
    for q, e in todo: sg.addall(qfin(q, e, True))
    while any(it.ins.vmtag in (('k', 0, 0), ('k', 0, 1)) for it in Q.q): weave(sg, Q, [], 1, 0)
    b = barrier(lg0=False); b.needlg = ('qw',)
    sg.addall(k_reads(0)); Q.mark(('kr', 0, 0)); Q.mark(('kr', 0, 1))
    sg.add(b); Q.mark('BQ'); Q.mark('B8')
    qr = [dsrd('ds_read_b128', AQ(q, s), 4, V_XB + s, QBUF - 120 * KB + q * 4096) for q in range(5) for s in range(4)]
    return qr

def TQ(tau):
    return divmod(tau, 5) if tau < 30 else (6 + ((tau - 30) & 1), (tau - 30) >> 1)
def qk(tau):
    i, q = TQ(tau)
    o = []
    for s, t in ([(s, t) for t in range(2) for s in range(4)] if int(opt.chain) else [(s, t) for s in range(4) for t in range(2)]):
        if True:
            d = ('v', V_S + (tau & 1) * 8 + t * 4)
            o.append(mfma(d, KF(i, t * 4 + s), AQ(q, s), ('v', V_NEGM + q * 4) if s == 0 else d))
    return o
def pv(tau):
    i, q = TQ(tau)
    p = ('v', V_P + (tau & 1) * 4)
    o = [mfma(AO(lam, q), ('v', V_VF + (i & 1) * 32 + lam * 4), p, AO(lam, q) if i else 0) for lam in range(8)]
    o.insert(0, mfma(LA(q), ('v', V_ONES), p, LA(q) if i else 0))
    return o
def sm(tau):
    b = V_S + (tau & 1) * 8
    p = V_P + (tau & 1) * 4
    e = [T(f"v_exp_f32 v{b+i}, v{b+i}", [b+i], [b+i]) for i in range(8)]
    c = [V(f"v_cvt_pk_bf16_f32 v{p+i}, v{b+2*i}, v{b+2*i+1}", [b+2*i, b+2*i+1], [p+i]) for i in range(4)]
    return e, c
def comb_writes(q):
    o = []
    for jd in range(1, 4):
        for e in range(2):
            u = q * 6 + (jd - 1) * 2 + e
            row = u >> 3
            o.append(dswr('ds_write_b128', V_CW + (row >> 1), AO(2 * jd + e, q), 4, (row & 1) * 32 * KB + (u & 7) * KB, lgtag=('cw', q)))
    o.insert(0, dswr('ds_write_b32', V_LW, LA(q), 1, [0, 4, 16, 20, 24][q], lgtag=('cw', q)))
    return o

def wo_dma(pos, after=None):
    o = []
    for ks in range(4):
        for half in range(2):
            base = (128 * KB if pos < 0 else pos * 32 * KB) + ks * 8 * KB + half * 4 * KB
            if pos < 0:
                pre = [S(f"s_lshl_b32 s{S_SK}, s{S_J}, 17", [S_J], [S_SK])] if ks + half == 0 else []
                h = S_SK
            else: pre, h = [], S_H + pos
            pre += [S(f"s_add_u32 s{S_SO}, s{h}, {ks*32768 + half*16384}", [h], [S_SO]), S(f"s_add_u32 m0, s{S_W1K}, {base}", [S_W1K], [M0])]
            o.append(Item(pre, dma(V_WOD, S_WO, S_SO, 0, ('wo', pos)), after))
    return o
def osib_dma(pos):
    o = []
    for q in range(5):
        pre = [S(f"s_lshr_b32 s{S_SK}, s{S_H+pos}, 5", [S_H+pos], [S_SK])] if q == 0 else []
        pre += [S(f"s_add_u32 s{S_SO}, s{S_SK}, {q*128*KB}", [S_SK], [S_SO]), S(f"s_add_u32 m0, s{S_W5K}, {(140 - 20*pos + q)*KB}", [S_W5K], [M0])]
        o.append(Item(pre, dma(V_OD, S_O, S_SO, 0, ('os', pos), flags=' sc1')))
    return o
def tail_calc():
    o = []; a = o.append
    T0, T1, T2 = 252, 253, 254
    a(V(f"v_lshlrev_b32 v{T0}, 4, v{V_LANE}", [V_LANE], [T0]))
    for jd in range(1, 4):
        a(S(f"s_sub_u32 s{S_T0}, s{S_W}, {jd}", [S_W], [S_T0]))
        a(S(f"s_and_b32 s{S_T0}, s{S_T0}, 3", [S_T0], [S_T0]))
        a(S(f"s_lshl_b32 s{S_T0}, s{S_T0}, 13", [S_T0], [S_T0]))
        a(V(f"v_add_u32 v{V_CR+2*(jd-1)}, s{S_T0}, v{T0}", [T0, ('s', S_T0)], [V_CR+2*(jd-1)]))
        a(V(f"v_add_u32 v{V_CR+2*(jd-1)+1}, {64*KB}, v{V_CR+2*(jd-1)}", [V_CR+2*(jd-1)], [V_CR+2*(jd-1)+1]))
    a(V(f"v_add_u32 v{V_OL}, {96*KB}, v{T0}", [T0], [V_OL]))
    a(V(f"v_add_u32 v{V_OW}, s{S_W5K}, v{V_OL}", [V_OL, ('s', S_W5K)], [V_OW]))
    a(S(f"s_mov_b32 s{S_T0}, {102*KB}", [], [S_T0]))
    a(V(f"v_lshl_add_u32 v{V_LR}, v{V_N}, 5, s{S_T0}", [V_N, ('s', S_T0)], [V_LR]))
    a(S(f"s_add_u32 s{S_T0}, s{S_W8K}, {64*KB}", [S_W8K], [S_T0]))
    for e in range(2):
        a(V(f"v_subrev_u32 v{V_WT+e}, s{S_T0}, v{V_VA+e}", [V_VA+e, ('s', S_T0)], [V_WT+e]))
        a(V(f"v_add_u32 v{V_WT+2+e}, {64*KB}, v{V_WT+e}", [V_WT+e], [V_WT+2+e]))
        a(V(f"v_add_u32 v{V_WT+4+e}, {128*KB}, v{V_WT+e}", [V_WT+e], [V_WT+4+e]))
    a(S(f"s_lshl_b32 s{S_T0}, s{S_J}, 12", [S_J], [S_T0]))
    a(V(f"v_subrev_u32 v{V_OD}, s{S_T0}, v{V_OST}", [V_OST, ('s', S_T0)], [V_OD]))
    a(S(f"s_lshl_b32 s{S_T0}, s{S_B}, 2", [S_B], [S_T0]))
    a(S(f"s_add_u32 s{S_T0}, s{S_T0}, s{S_J}", [S_T0, S_J], [S_T0]))
    a(V(f"v_and_b32 v{T1}, 7, v{V_LANE}", [V_LANE], [T1]))
    a(S(f"s_lshl_b32 s{S_T0}, s{S_T0}, 2", [S_T0], [S_T0]))
    a(S(f"s_add_u32 s{S_T0}, s{S_T0}, s{S_W}", [S_T0, S_W], [S_T0]))
    a(S(f"s_mul_i32 s{S_T0}, s{S_T0}, {5*8*KB}", [S_T0], [S_T0]))
    a(S(f"s_lshl_b32 s{S_T2}, s{S_HKV}, 10", [S_HKV], [S_T2]))
    a(S(f"s_add_u32 s{S_T2}, s{S_T2}, s{S_T0}", [S_T2, S_T0], [S_T2]))
    a(V(f"v_add_u32 v{V_PS}, s{S_T2}, v{T0}", [T0, ('s', S_T2)], [V_PS]))
    a(V(f"v_lshl_add_u32 v{T1}, s{S_HKV}, 3, v{T1}", [T1, ('s', S_HKV)], [T1]))
    a(V(f"v_lshrrev_b32 v{T2}, 3, v{V_LANE}", [V_LANE], [T2]))
    a(V(f"v_lshl_add_u32 v{V_PLD}, v{T1}, 4, s{S_T0}", [T1, ('s', S_T0)], [V_PLD]))
    a(V(f"v_lshl_add_u32 v{V_PLD}, v{T2}, 13, v{V_PLD}", [T2, V_PLD], [V_PLD]))
    a(V(f"v_lshlrev_b32 v{T2}, 14, v{T2}", [T2], [T2]))
    a(V(f"v_and_b32 v{T0}, 15, v{T1}", [T1], [T0]))
    a(V(f"v_lshl_add_u32 v{T2}, v{T0}, 10, v{T2}", [T0, T2], [T2]))
    a(V(f"v_lshrrev_b32 v{T1}, 4, v{T1}", [T1], [T1]))
    a(V(f"v_lshl_add_u32 v{T2}, v{T1}, 3, v{T2}", [T1, T2], [T2]))
    a(S(f"s_mul_i32 s{S_T0}, s{S_B}, 81920", [S_B], [S_T0]))
    a(S(f"s_lshl_b32 s{S_T2}, s{S_J}, 8", [S_J], [S_T2]))
    a(S(f"s_add_u32 s{S_T0}, s{S_T0}, s{S_T2}", [S_T0, S_T2], [S_T0]))
    a(S(f"s_lshl_b32 s{S_T2}, s{S_W}, 6", [S_W], [S_T2]))
    a(S(f"s_add_u32 s{S_T0}, s{S_T0}, s{S_T2}", [S_T0, S_T2], [S_T0]))
    a(V(f"v_add_u32 v{V_OUT}, s{S_T0}, v{T2}", [T2, ('s', S_T0)], [V_OUT]))
    a(V(f"v_cmp_gt_u32 vcc, 40, v{V_LANE}", [V_LANE], [VCC]))
    a(V(f"v_mov_b32 v{T0}, 0x7ff00000", [], [T0]))
    a(V(f"v_cndmask_b32 v{V_PLD}, v{T0}, v{V_PLD}, vcc", [T0, V_PLD, VCC], [V_PLD]))
    a(V(f"v_cndmask_b32 v{V_OUT}, v{T0}, v{V_OUT}, vcc", [T0, V_OUT, VCC], [V_OUT]))
    for k in range(5): a(S(f"s_mov_b32 s{S_TAB+k}, {k*8192}", [], [S_TAB+k]))
    return o
def wod_calc():
    o = []; a = o.append
    T0, T1 = 252, 253
    a(S(f"s_lshl_b32 s{S_T0}, s{S_B}, 2", [S_B], [S_T0]))
    a(S(f"s_add_u32 s{S_T0}, s{S_T0}, s{S_W}", [S_T0, S_W], [S_T0]))
    a(S(f"s_lshl_b32 s{S_T0}, s{S_T0}, 14", [S_T0], [S_T0]))
    a(S(f"s_lshl_b32 s{S_T2}, s{S_J}, 8", [S_J], [S_T2]))
    a(S(f"s_add_u32 s{S_T0}, s{S_T0}, s{S_T2}", [S_T0, S_T2], [S_T0]))
    a(V(f"v_bfe_u32 v{T0}, v{V_LANE}, 1, 4", [V_LANE], [T0]))
    a(V(f"v_and_b32 v{T1}, 1, v{V_LANE}", [V_LANE], [T1]))
    a(V(f"v_lshlrev_b32 v{T1}, 7, v{T1}", [T1], [T1]))
    a(V(f"v_lshl_add_u32 v{T0}, v{T0}, 10, v{T1}", [T0, T1], [T0]))
    a(V(f"v_add_u32 v{V_TCH}, s{S_T0}, v{T0}", [T0, ('s', S_T0)], [V_TCH]))
    a(S(f"s_and_b32 s{S_T0}, s{S_W}, 1", [S_W], [S_T0]))
    a(S(f"s_lshl_b32 s{S_T0}, s{S_T0}, 3", [S_T0], [S_T0]))
    a(V(f"v_lshl_add_u32 v{T0}, v{V_G}, 1, s{S_T0}", [V_G, ('s', S_T0)], [T0]))
    a(V(f"v_xor_b32 v{T0}, v{V_N}, v{T0}", [V_N, T0], [T0]))
    a(S(f"s_lshl_b32 s{S_T0}, s{S_J}, 8", [S_J], [S_T0]))
    a(V(f"v_lshl_add_u32 v{T0}, v{T0}, 4, s{S_T0}", [T0, ('s', S_T0)], [T0]))
    a(V(f"v_lshl_add_u32 v{T1}, s{S_W}, 2, v{V_G}", [V_G, ('s', S_W)], [T1]))
    a(V(f"v_lshl_add_u32 v{V_WOD}, v{T1}, 10, v{T0}", [T0, T1], [V_WOD]))
    return o

def phase_b(sg, Q, qr):
    NT = 8
    calc = wod_calc() + tail_calc()
    sg.addall(qr[:4])
    qr = qr[4:]
    for tau in range(-1, 40):
        i, q = divmod(tau, 5) if tau >= 0 else (-1, 4)
        mf = []
        bst = [int(x) for x in opt.bst.split(',')]
        if tau in bst: stamp(sg, 5 + bst.index(tau), 'B')
        if tau + 1 < 40: mf += qk(tau + 1)
        if tau - 1 >= 0: mf += pv(tau - 1)
        ds, marks = [], []
        if tau == -1: ds = qr
        elif tau == 0: ds = v_reads(0); marks = [('vr', 0, 0), ('vr', 0, 1)]
        elif tau < 27:
            if q == 2: ds = k_reads(i + 1)[:4]; marks = [('kr', i + 1, 0)]
            if q == 3: ds = k_reads(i + 1)[4:] + v_reads(i + 1)[:2]; marks = [('kr', i + 1, 1)]
            if q == 4: ds = v_reads(i + 1)[2:8]; marks = [('vr', i + 1, 0)]
            if q == 0: ds = v_reads(i)[8:14]
            if q == 1 and i > 0: ds = v_reads(i)[14:]; Q.mark(('vr', i, 1))
        xp = None
        if tau >= 27:
            k6, k7, v6, v7 = k_reads(6), k_reads(7), v_reads(6), v_reads(7)
            vo = [v7[l + 8 * h] for l in range(8) for h in range(2)]
            G = [1, 3, 5, 7, 9, 11, 13, 15, 16]
            def cwp(q_, second):
                w_ = comb_writes(q_)
                if int(opt.w64) and q_ < 2:
                    h_ = []
                    for x in w_[1:]:
                        m_ = re.match(r"ds_write_b128 v(\d+), a\[(\d+):\d+\] offset:(\d+)", x.t)
                        for z in range(2): h_.append(dswr('ds_write_b64', int(m_.group(1)), ('a', int(m_.group(2)) + 2 * z), 2, int(m_.group(3)) + 8 * z, lgtag=x.lgtag))
                    return list(zip([1, 3, 5, 9, 13, 16], h_[6:])) if second else list(zip([7, 1, 3, 5, 9, 13, 16], [w_[0]] + h_[:6]))
                return list(zip([1, 9, 13], w_[4:])) if second else list(zip([7, 1, 9, 13], w_[:4]))
            xp = {27: list(zip([3, 5, 9, 11, 15, 16], k6[:4] + v6[:2])),
                  28: list(zip([1, 3, 5, 7, 9, 11, 13, 15, 16], k6[4:] + k7[:5])),
                  29: list(zip(G, k7[5:] + v6[2:8])),
                  30: list(zip([1, 3, 5, 7, 9, 11, 13, 15, 16, 16], v6[8:] + vo[:2])),
                  31: list(zip([1, 1, 3, 5, 5, 7, 9, 9, 11, 13, 13, 15, 16, 16], vo[2:])),
                  32: [], 33: cwp(0, 0), 34: cwp(0, 1), 35: cwp(1, 0), 36: cwp(1, 1), 37: cwp(2, 0),
                  38: cwp(2, 1) + list(zip([3, 5, 5, 7, 11, 15, 16, 16], lreads((0, 1)) + preads(0)[:4])),
                  39: list(zip([0, 2, 4, 6], comb_writes(3)[:4])) + list(zip([1, 1, 3, 3, 5, 5, 7, 7], preads(0)[4:] + preads(1)))}[tau]
            ds = [x for _, x in xp]; marks = []
            if tau == 38:
                b = barrier(needvm=[('wo', -1)], lg0=False); b.needlg = (('cw', 0), ('cw', 1)); sg.add(b)
        n = len(mf)
        gaps = [[] for _ in range(n)]
        e, c = sm(tau) if 0 <= tau < 40 else ([], [])
        if n == 17:
            epos = [0, 2, 4, 6, 8, 10, 12, 14]; cpos = [3, 7, 11, 15]
            dpos = [1, 3, 5, 7, 9, 11, 13, 15] if len(ds) > 4 else [1, 3, 5, 7]
            if ds and ds[0].k == 'dswr': dpos = [1, 1, 3, 7, 9, 13, 16]
            vpos = [1, 5, 9, 13] if (tau < int(opt.even_at) or q == 1) else [1, 7, 13]
            if int(opt.bsched) and not (ds and ds[0].k == 'dswr'):
                if q == 1: dpos, vpos = [1, 3], [5, 9, 13, 16]
                elif tau < int(opt.even_at): dpos, vpos = [3, 7, 11, 15, 16, 16], [1, 5, 9, 13]
                else: dpos, vpos = [3, 5, 9, 11, 15, 16], [1, 7, 13]
        else:
            epos = list(range(8)); cpos = [min(n - 1, x) for x in (2, 4, 6, 8)]
            dpos = [(k * n) // max(1, len(ds)) for k in range(len(ds))]
            vpos = [1, 5]
        if xp is not None:
            dpos = [g_ for g_, _ in xp]; vpos = [7, 11, 15] if tau >= 32 else [13]
            if tau == 27: vpos = [1, 7, 13]
        for x, p_ in zip(ds, dpos): gaps[p_].append(x)
        if tau == int(opt.nl_at):
            sg.add(V("v_mov_b32 v9, 0", [], [9]))
            Q.q.insert(0, Item([], vload(('v', V_GC), 2, 9, S_D, None, 0, flags=' sc1', tag='non')))
        if tau == int(opt.nc_at):
            assert not any(it.ins.vmtag == 'non' for it in Q.q)
            sg.add(V(f"v_readfirstlane_b32 s{S_NON}, v{V_GC}", [V_GC], [('s', S_NON)]))
            sg.add(V(f"v_readfirstlane_b32 s{S_NON+1}, v{V_GC+1}", [V_GC+1], [('s', S_NON+1)]))
            sg.add(S(f"s_cmp_eq_u64 s[{S_NON}:{S_NON+1}], 0", [S_NON, S_NON+1], []))
            sg.text("s_cbranch_scc1 L_spin_n"); sg.text("L_back_n:")
        if tau == int(opt.bar_at): sg.add(barrier(lg0=False))
        for x in ds:
            while any(it.ins.vmtag in x.needvm for it in Q.q): weave(sg, Q, [], 1, 0)
        if tau == int(opt.tch_at): Q.push([Item([], vload(('v', V_TCH + 1), 1, V_TCH, S_WO, None, 0))])
        if tau == int(opt.tlb_at):
            assert not calc
            Q.push([Item([S(f"s_mov_b32 s{S_SO}, {q*256*KB}", [], [S_SO])], vload(('v', 66), 1, V_OD, S_O, S_SO, 0, flags=' sc1')) for q in (0, 2)]
                   + [Item([], vload(('v', 66), 1, V_PLD, S_WT, None, 0, flags=' sc1')), Item([], vload(('v', 66), 1, V_OUT, S_OUT, None, 0, flags=' sc1')),
                      Item([S(f"s_add_u32 s{S_SO}, s{S_F1}, 64", [S_F1], [S_SO])], vload(('v', 66), 1, V_ZERO, S_C, S_SO, 0, flags=' sc1'))])
        if tau == int(opt.wo_at): assert not calc; Q.push(wo_dma(-1))
        place(gaps, Q, vpos)
        for x, p_ in zip(e, epos): gaps[p_].append(x)
        for x, p_ in zip(c, cpos): gaps[p_].append(x)
        if tau >= int(opt.calc_at) and n == 17:
            for gi in range(17):
                if calc and calc[0].k == 'salu' and not any(y.k == 'salu' for y in gaps[gi]): gaps[gi].insert(0, calc.pop(0))
                cost = sum(8 if y.k == 'trans' else 0 if y.k == 'salu' else 4 for y in gaps[gi])
                while calc and calc[0].k != 'salu' and cost <= 4: gaps[gi].append(calc.pop(0)); cost += 4
        sg.addall(interleave(mf, gaps))
        for m in marks: Q.mark(m)

def poll(sg, lab, vaddr):
    sg.text(f"s_mov_b32 s{S_SPIN}, {opt.spin}")
    sg.text(f"{lab}:")
    sg.text(f"buffer_load_dwordx2 v[250:251], v{vaddr}, s[{S_C}:{S_C+3}], 0 offen sc1")
    sg.text(f"s_sub_u32 s{S_SPIN}, s{S_SPIN}, 1")
    sg.text("s_waitcnt vmcnt(0)")
    sg.text(f"v_cmp_ne_u64 vcc, s[{S_NON}:{S_NON+1}], v[250:251]")
    sg.text(f"s_cmp_eq_u32 s{S_SPIN}, 0")
    sg.text(f"s_cbranch_scc1 {lab}_done")
    sg.text("s_nop 2")
    sg.text(f"s_cbranch_vccnz {lab}")
    sg.text(f"{lab}_done:")
    sg.vm = []
def raise_flag(sg, stage, lab):
    n, sh = (4, 7) if stage == 1 else (8, 9)
    sg.text(f"s_cmp_lg_u32 s{S_W}, 0"); sg.text(f"s_cbranch_scc1 {lab}")
    sg.text(f"s_mov_b64 s[{S_EX}:{S_EX+1}], exec"); sg.text(f"s_mov_b64 exec, {(1 << n) - 1 if n < 7 else '0xff'}")
    for x in [f"v_lshl_add_u32 v9, v{V_LANE}, {sh}, s{S_G1 if stage == 1 else S_G2}", f"v_mov_b32 v250, s{S_NON}", f"v_mov_b32 v251, s{S_NON+1}",
              f"buffer_store_dwordx2 v[250:251], v9, s[{S_C}:{S_C+3}], 0 offen{opt.f1_flags if stage == 1 else ' sc1'}"]: sg.text(x)
    sg.text(f"s_mov_b64 exec, s[{S_EX}:{S_EX+1}]")
    sg.text(f"{lab}:")
WOF = A_Q
RES = 100
def part(q, k):
    if q == 0: return 36 + 4 * k if k < 4 else 64 + 4 * (k - 4)
    return {1: 100, 2: 164, 3: 188, 4: 100}[q] + 4 * k
def preads(q):
    o = []
    for jd in range(1, 4):
        for e in range(2):
            k = (jd - 1) * 2 + e; u = q * 6 + k; row = u >> 3
            o.append(dsrd('ds_read_b128', ('v', part(q, k)), 4, V_CR + 2 * (jd - 1) + (row >> 1), (row & 1) * 32 * KB + (u & 7) * KB))
    return o
LSA, LSB = 124, 76
def lreads(qs):
    if qs == (0, 1): return [dsrd('ds_read_b64', ('v', LSA + src * 2), 2, V_LR, src * 8 * KB) for src in range(4)]
    return [dsrd('ds_read_b128', ('v', LSB + src * 4), 4, V_LR, src * 8 * KB + 16) for src in range(4)]
def lsum(qs):
    w = []
    def lr(src, q): return LSA + src * 2 + q if q < 2 else LSB + src * 4 + q - 2
    LS = lr(0, qs[0])
    for q in qs:
        d = V_T0 + q
        w.append(V(f"v_add_f32 v{d}, v{lr(0,q)}, v{lr(1,q)}", [lr(0,q), lr(1,q)], [d]))
        w.append(V(f"v_add_f32 v{lr(2,q)}, v{lr(2,q)}, v{lr(3,q)}", [lr(2,q), lr(3,q)], [lr(2,q)]))
        w.append(V(f"v_add_f32 v{d}, v{d}, v{lr(2,q)}", [d, lr(2,q)], [d]))
    a_, b_, c_ = V_T0 + qs[0], V_T0 + qs[1], V_T0 + qs[-1]
    w.append(V(f"v_min3_f32 v{LS}, v{a_}, v{b_}, v{c_}", [a_, b_, c_], [LS]))
    w.append(V(f"v_add_f32 v{LS+1}, v{a_}, v{b_}", [a_, b_], [LS+1]))
    w.append(V(f"v_add_f32 v{LS+1}, v{LS+1}, v{c_}", [LS+1, c_], [LS+1]))
    w.append(V(f"v_cmp_nle_f32 vcc, {f2h(2.0**int(opt.lo_exp))}, v{LS}", [LS], [VCC]))
    w.append(S(f"s_mov_b64 s[{S_EX}:{S_EX+1}], vcc", [VCC], [S_EX, S_EX+1]))
    w.append(V(f"v_cmp_nge_f32 vcc, {f2h(2.0**int(opt.hi_exp))}, v{LS+1}", [LS+1], [VCC]))
    w.append(S(f"s_or_b64 vcc, vcc, s[{S_EX}:{S_EX+1}]", [VCC, S_EX, S_EX+1], [VCC]))
    w.append(S(f"s_and_b64 vcc, vcc, s[{S_GM}:{S_GM+1}]", [VCC], [VCC]))
    w.append(raw("s_cbranch_vccnz L_redo"))
    for q in qs: w.append(T(f"v_rcp_f32 v{V_T0+q}, v{V_T0+q}", [V_T0+q], [V_T0+q]))
    return w
def finish(q):
    w = []
    for e in range(2):
        o_ = V_OWN[q] + e * 4
        for jd in range(1, 4):
            p_ = part(q, (jd - 1) * 2 + e)
            for r in (0, 2):
                w.append(V(f"v_pk_add_f32 v[{o_+r}:{o_+r+1}], v[{o_+r}:{o_+r+1}], v[{p_+r}:{p_+r+1}]", [o_+r, o_+r+1, p_+r, p_+r+1], [o_+r, o_+r+1]))
    o_ = V_OWN[q]
    ri = V_T0 + (q & ~1); sel = "op_sel:[0,1] op_sel_hi:[1,1]" if q & 1 else "op_sel:[0,0] op_sel_hi:[1,0]"
    for r in range(0, 8, 2):
        w.append(V(f"v_pk_mul_f32 v[{o_+r}:{o_+r+1}], v[{o_+r}:{o_+r+1}], v[{ri}:{ri+1}] {sel}", [o_+r, o_+r+1, V_T0+q], [o_+r, o_+r+1]))
    for r in range(4):
        w.append(V(f"v_cvt_pk_bf16_f32 v{o_+r}, v{o_+2*r}, v{o_+2*r+1}", [o_+2*r, o_+2*r+1], [o_+r]))
    w.append(S(f"s_mov_b32 s{S_SV}, {q*128*KB}", [], [S_SV]))
    w.append(vstore(('v', o_), 4, V_OST, S_O, S_SV, 0, flags=opt.o_flags, tag='ost'))
    return w
def wor():
    return [dsrd('ds_read_b64_tr_b16', ('a', WOF + (ks * 2 + e) * 4 + h * 2), 2, V_WT + 4 + e, ks * 8 * KB + h * 4096) for ks in range(4) for e in range(2) for h in range(2)]
def combine(sg, Q):
    assert not Q.q
    mf = pv(39); gaps = [[] for _ in mf]
    wr = comb_writes(3)[4:]; ls = lsum((0, 1))
    for k, x in enumerate(wr): gaps[3 * k].append(x)
    k = 0
    for gi in range(9):
        n_ = 2 - len(gaps[gi])
        while ls and (n_ > 0 or ls[0].k == 'salu') and gi < 9:
            x = ls.pop(0); gaps[gi].append(x)
            n_ -= 0 if x.k == 'salu' else 2 if x.k == 'trans' else 1
    sg.addall(interleave(mf, gaps))
    stamp(sg, 4)
    w4 = comb_writes(4)
    w = ls + finish(0) + finish(1)
    for k, x in enumerate(w4): w.insert(min(len(w), 6 + k * 6), x)
    sg.addall(w)
    sg.add(barrier())
    stamp(sg, 5)
    Q.push(wo_dma(0))
    rd = lreads((2, 3, 4)) + preads(2) + preads(3)
    weave(sg, Q, rd, int(opt.cw), 2)
    sg.addall(rd)
    w = lsum((2, 3, 4)) + preads(4) + finish(2) + finish(3) + finish(4)
    for k, x in enumerate(wor()): w.insert(30 + 3 * k, x)
    sg.addall(w)
    stamp(sg, 6)

def phase_c(sg, Q):
    a = sg.add
    ACC = 164
    a(barrier())
    stamp(sg, 5, 'D')
    for q in range(5): a(dswr('ds_write_b128', V_OW, ('v', V_OWN[q]), 4, q * KB))
    Q.push(wo_dma(1) + wo_dma(2))
    weave(sg, Q, [], int(opt.shadow), 0)
    stamp(sg, 6, 'D')
    a(barrier(needvm=['ost']))
    stamp(sg, 7, 'D')
    stamp(sg, 7)
    raise_flag(sg, 1, "L_sig1")
    def CF(k): return [(100, 120), (64, 84), (204, 36)][k % 3]
    def c_reads(k):
        pos, ks = divmod(k, 4); pos -= 1
        xf, wf = CF(k)
        ob = 0 if pos < 0 else (44 - 20 * pos) * KB
        xr = [dsrd('ds_read_b128', ('v', xf + q * 4), 4, V_OL, ob + (ks * 5 + q) * KB) for q in range(5)]
        if pos < 0: return xr
        wb = (pos * 4 + ks) * 8 * KB
        wr = [dsrd('ds_read_b64_tr_b16', ('v', wf + e * 4 + h * 2), 2, V_WT + (2 if wb >= 64 * KB else 0) + e, (wb % (64 * KB)) + h * 4096) for e in range(2) for h in range(2)]
        return wr[:2] + xr[:1] + wr[2:] + xr[1:]
    def c_mfmas(k):
        xf, wf = CF(k)
        ff = 'v'
        if k < 4: wf, ff = WOF + k * 8, 'a'
        o = []
        for q in range(5):
            for e in range(2):
                d = ('v', ACC + (q * 2 + e) * 4)
                o.append(mfma(d, (ff, wf + e * 4), ('v', xf + q * 4), 0 if k == 0 else d))
        o[0].r |= set(R('v', xf, 20) + R(ff, wf, 8))
        return o
    def step(k, nx, pos=()):
        mf = c_mfmas(k); gaps = [[] for _ in mf]
        if nx is not None:
            for i, r in enumerate(c_reads(nx)): gaps[i].append(r)
        place(gaps, Q, pos)
        sg.addall(interleave(mf, gaps))
    def own_steps():
        for k in range(4): step(k, k + 2 if k < 2 else None, [1, 5, 9] if k % 2 == 0 else [3, 7])
    sg.addall(c_reads(0)); sg.addall(c_reads(1))
    held = []
    if int(opt.ownlate) == 2: held = Q.q; Q.q = []
    elif int(opt.ownlate): weave(sg, Q, [], len(Q.q), 0)
    else: own_steps()
    assert not Q.q
    stamp(sg, 8, 'D')
    t = [f"s_mov_b32 s{S_SPIN}, {opt.spin}", "L_poll1:", f"s_load_dwordx8 s[4:11], s[{S_C}:{S_C+1}], s{S_F1} glc", f"s_sub_u32 s{S_SPIN}, s{S_SPIN}, 1", "s_waitcnt lgkmcnt(0)",
         f"s_cmp_eq_u32 s{S_SPIN}, 0", "s_cbranch_scc1 L_poll1_done"]
    for h in range(4): t += [f"s_cmp_lg_u64 s[{4+2*h}:{5+2*h}], s[{S_NON}:{S_NON+1}]", "s_cbranch_scc1 L_poll1"]
    t += ["L_poll1_done:"]
    if int(opt.p1w): t = [f"s_cmp_lg_u32 s{S_W}, 0", "s_cbranch_scc1 L_poll1_done"] + t + ["s_waitcnt lgkmcnt(0)", "s_barrier"]
    for x in t: sg.text(x)
    sg.lg = []
    stamp(sg, 9, 'D')
    stamp(sg, 5, 'E')
    stamp(sg, 8)
    Q.push(osib_dma(0) + osib_dma(1) + held)
    if int(opt.ownlate):
        weave(sg, Q, [], 5, 0); own_steps()
    weave(sg, Q, [], len(Q.q), 0)
    stamp(sg, 6, 'E')
    a(barrier(needvm=[('os', 0), ('wo', 0), ('wo', 1)]))
    stamp(sg, 7, 'E')
    Q.push(osib_dma(2))
    sg.addall(c_reads(4)); sg.addall(c_reads(5))
    def pfin(q):
        b = ACC + q * 8
        return [V(f"v_cvt_pk_bf16_f32 v{b+r}, v{b+2*r}, v{b+2*r+1}", [b+2*r, b+2*r+1], [b+r]) for r in range(4)] + [vstore(('v', b), 4, V_PS, S_WT, S_TAB + q, 0, flags=' sc1', tag='pst')]
    last = 16 - (2 if int(opt.qmaj) else 0)
    for k in range(4, last):
        nx = k + 2 if k + 2 < 16 else None
        if nx in (8, 12):
            assert not Q.q or nx == 8
            a(barrier(needvm=[('os', nx // 4 - 1), ('wo', nx // 4 - 1)], lg0=False))
            stamp(sg, 8 if nx == 8 else 9, 'E')
        step(k, nx, [1, 5, 9] if k % 2 == 0 else [3, 7])
    if int(opt.qmaj):
        m14, m15 = c_mfmas(14), c_mfmas(15)
        m15[0].r -= set(R('v', CF(15)[0] + 4, 16))
        mf = flat([[m14[2*q], m15[2*q], m14[2*q+1], m15[2*q+1]] for q in range(5)])
        gaps = [[] for _ in mf]
        for q in range(4):
            f_ = pfin(q)
            g0 = 4 * q + 6
            if g0 + 2 < 20:
                gaps[g0] += f_[0:2]; gaps[g0 + 1] += f_[2:4]; gaps[g0 + 2] += f_[4:]
        sg.addall(interleave(mf, gaps))
        stamp(sg, 9)
        sg.addall(pfin(3) + pfin(4))
    else:
        stamp(sg, 9)
        for q in range(5): sg.addall(pfin(q))
    a(barrier(needvm=['pst'], lg0=False))
    stamp(sg, 5, '2')
    raise_flag(sg, 2, "L_sig2")
    a(S(f"s_mov_b32 s{S_SO}, 4096", [], [S_SO]))
    a(S(f"s_mov_b32 s{S_T1}, 0xffff0000", [], [S_T1]))
    PB, SM, U = 100, 140, 148
    def pl(h): return vload(('v', PB + 4 * h), 4, V_PLD, S_WT, S_SO if h >= 4 else None, (h & 3) * 1024, flags=' sc1')
    t = [f"s_mov_b32 s{S_SPIN}, {opt.spin}", f"s_mov_b32 s{S_T2}, 0", "L_poll2:", f"s_load_dwordx16 s[4:19], s[{S_C}:{S_C+1}], s{S_F2} glc", f"s_sub_u32 s{S_SPIN}, s{S_SPIN}, 1",
         "s_waitcnt lgkmcnt(0)", f"s_cmp_eq_u32 s{S_SPIN}, 0", "s_cbranch_scc1 L_poll2_done"]
    for h in range(8):
        t += [f"s_cmp_lg_u64 s[{4+2*h}:{5+2*h}], s[{S_NON}:{S_NON+1}]", f"s_cbranch_scc1 L_g{h}", f"s_bitcmp1_b32 s{S_T2}, {h}", f"s_cbranch_scc1 L_g{h}",
              f"s_bitset1_b32 s{S_T2}, {h}", pl(h).t, f"L_g{h}:"]
    t += [f"s_cmp_lg_u32 s{S_T2}, 0xff", "s_cbranch_scc1 L_poll2", "L_poll2_done:"]
    if int(opt.p2w):
        t = [f"s_cmp_lg_u32 s{S_W}, 0", "s_cbranch_scc1 L_poll2_done", f"s_mov_b32 s{S_SPIN}, {opt.spin}", "L_poll2:", f"s_load_dwordx16 s[4:19], s[{S_C}:{S_C+1}], s{S_F2} glc",
             f"s_sub_u32 s{S_SPIN}, s{S_SPIN}, 1", "s_waitcnt lgkmcnt(0)", f"s_cmp_eq_u32 s{S_SPIN}, 0", "s_cbranch_scc1 L_poll2_done"]
        for h in range(8): t += [f"s_cmp_lg_u64 s[{4+2*h}:{5+2*h}], s[{S_NON}:{S_NON+1}]", "s_cbranch_scc1 L_poll2"]
        t += ["L_poll2_done:", "s_barrier"] + [pl(h).t for h in range(8)]
    for x in t: sg.text(x)
    stamp(sg, 6, '2')
    sg.drain()
    for h in range(8):
        d = SM if h == 0 else U
        for r in range(4):
            a(V(f"v_lshlrev_b32 v{d+2*r}, 16, v{PB+4*h+r}", [PB+4*h+r], [d+2*r]))
            a(V(f"v_and_b32 v{d+2*r+1}, s{S_T1}, v{PB+4*h+r}", [PB+4*h+r], [d+2*r+1]))
        if h:
            for r in range(0, 8, 2):
                a(V(f"v_pk_add_f32 v[{SM+r}:{SM+r+1}], v[{SM+r}:{SM+r+1}], v[{U+r}:{U+r+1}]", [SM+r, SM+r+1, U+r, U+r+1], [SM+r, SM+r+1]))
    for r in range(4):
        a(V(f"v_cvt_pk_bf16_f32 v{SM+r}, v{SM+2*r}, v{SM+2*r+1}", [SM+2*r, SM+2*r+1], [SM+r]))
    a(vstore(('v', SM), 2, V_OUT, S_OUT, None, 0, flags=opt.out_flags))
    a(vstore(('v', SM + 2), 2, V_OUT, S_OUT, None, 32, flags=opt.out_flags))

def out_of_line():
    t = []
    t += ["L_spin_n:", f"s_mov_b32 s{S_SPIN}, {opt.spin}", "L_spin_n1:",
          f"buffer_load_dwordx2 v[{V_GC}:{V_GC+1}], v9, s[{S_D}:{S_D+3}], 0 offen sc1", f"s_sub_u32 s{S_SPIN}, s{S_SPIN}, 1", "s_waitcnt vmcnt(0)",
          f"v_readfirstlane_b32 s{S_NON}, v{V_GC}", f"v_readfirstlane_b32 s{S_NON+1}, v{V_GC+1}", f"s_cmp_eq_u32 s{S_SPIN}, 0", "s_cbranch_scc1 L_back_n", "s_nop 2",
          f"s_cmp_eq_u64 s[{S_NON}:{S_NON+1}], 0", "s_cbranch_scc1 L_spin_n1", "s_branch L_back_n"]
    t += ["L_redo:", f"s_mov_b64 s[{S_GM}:{S_GM+1}], 0", f"s_mov_b32 s{S_REDO}, 1",
          "s_waitcnt vmcnt(0) lgkmcnt(0)", "s_barrier"]
    sg = Seg()
    p1 = prologue1()
    a = sg.add
    a(V(f"v_lshl_add_u32 v{V_T0}, s{S_W}, 2, v{V_G}", [V_G], [V_T0]))
    a(V(f"v_xor_b32 v{V_T1}, v{V_N}, v{V_T0}", [V_N, V_T0], [V_T1]))
    a(V(f"v_lshlrev_b32 v{V_T1}, 4, v{V_T1}", [V_T1], [V_T1]))
    a(V(f"v_lshl_add_u32 v{V_XD}, v{V_T0}, 10, v{V_T1}", [V_T0, V_T1], [V_XD]))
    a(S(f"s_and_b32 s{S_T0}, s{S_W}, 2", [S_W], [S_T0]))
    a(S(f"s_lshl_b32 s{S_T0}, s{S_T0}, 2", [S_T0], [S_T0]))
    a(V(f"v_lshl_add_u32 v{V_T1}, v{V_G}, 1, s{S_T0}", [V_G], [V_T1]))
    a(V(f"v_xor_b32 v{V_T1}, v{V_N}, v{V_T1}", [V_N, V_T1], [V_T1]))
    a(V(f"v_lshlrev_b32 v{V_T1}, 4, v{V_T1}", [V_T1], [V_T1]))
    a(V(f"v_lshl_add_u32 v{V_WD}, v{V_T0}, 13, v{V_T1}", [V_T0, V_T1], [V_WD]))
    t += sg.out + ["s_nop 4", "s_branch L_restart"]
    sg = Seg(); a = sg.add
    sg.text("L_max:")
    sg.text(f"s_mov_b32 s{S_SPIN}, m0")
    sg.drain()
    sg.text("s_barrier")
    MX, KF, AD = 76, V_VF, 84
    for q in range(5): a(V(f"v_mov_b32 v{MX+q}, 0xff800000", [], [MX+q]))
    for s in range(4): a(V(f"v_add_u32 v{AD+s}, {96*KB}, v{V_KA+s}", [V_KA+s], [AD+s]))
    a(S(f"s_mov_b32 s{S_T2}, 0", [], [S_T2]))
    sg.text("L_max_loop:"); sg.reset_hist()
    for j in range(8):
        if j % 4 == 0:
            a(S(f"s_add_u32 s{S_T1}, s{S_T2}, {(j>>2)*4096}", [S_T2], [S_T1]))
            a(S(f"s_add_u32 m0, s{S_W8K}, {96*KB + (j>>2)*4096}", [S_W8K], [M0]))
        a(dma(V_KD + (j & 3), S_K, S_T1, 1024 * (j & 3), 'mk'))
    for t_ in range(2):
        for s in range(4):
            a(dsrd('ds_read_b128', ('v', KF + (t_ * 4 + s) * 4), 4, AD + s, t_ * 4096, needvm=['mk']))
    for q in range(5):
        for t_ in range(2):
            d = ('v', 88 + t_ * 4)
            for s in range(4): a(mfma(d, ('v', KF + (t_ * 4 + s) * 4), AQ(q, s), 0 if s == 0 else d))
        for k in range(4):
            a(V(f"v_max3_f32 v{MX+q}, v{MX+q}, v{88+2*k}, v{89+2*k}", [MX+q, 88+2*k, 89+2*k], [MX+q]))
    sg.drain()
    a(S(f"s_add_u32 s{S_T2}, s{S_T2}, 8192", [S_T2], [S_T2]))
    sg.text(f"s_cmp_lt_u32 s{S_T2}, 65536"); sg.text("s_nop 4"); sg.text("s_cbranch_scc1 L_max_loop")
    sg.text("s_barrier")
    a(S(f"s_mul_i32 s{S_T0}, s{S_W}, 1280", [S_W], [S_T0]))
    a(S(f"s_add_u32 s{S_T0}, s{S_T0}, {96*KB}", [S_T0], [S_T0]))
    a(V(f"v_lshl_add_u32 v{AD}, v{V_LANE}, 2, s{S_T0}", [V_LANE], [AD]))
    a(S(f"s_mov_b32 s{S_T0}, {96*KB}", [], [S_T0]))
    a(V(f"v_lshl_add_u32 v{AD+1}, v{V_N}, 2, s{S_T0}", [V_N], [AD+1]))
    for q in range(5): a(dswr('ds_write_b32', AD, ('v', MX + q), 1, q * 256))
    a(barrier())
    for q in range(5):
        for k in range(16):
            a(dsrd('ds_read_b32', ('v', KF + k), 1, AD + 1, (k >> 2) * 1280 + q * 256 + (k & 3) * 64))
        for k in range(8):
            a(V(f"v_max3_f32 v{MX+q}, v{MX+q}, v{KF+2*k}, v{KF+2*k+1}", [MX+q, KF+2*k, KF+2*k+1], [MX+q]))
        for r in range(4):
            a(V(f"v_sub_f32 v{V_NEGM+q*4+r}, 0, v{MX+q}", [MX+q], [V_NEGM+q*4+r]))
    sg.drain()
    sg.text("s_barrier"); sg.text(f"s_mov_b32 m0, s{S_SPIN}"); sg.text("s_nop 4"); sg.text("s_branch L_back_max")
    return t + sg.out

def stamp_out(sg, n):
    if not opt.stamps: return
    stamp(sg, n - 1)
    t = ["s_load_dwordx2 s[4:5], s[0:1], 56", "s_waitcnt lgkmcnt(0)", f"s_add_u32 s4, s4, {16<<20}", "s_addc_u32 s5, s5, 0", "s_and_b32 s5, s5, 0xffff",
         "s_mov_b32 s6, 0x100000", "s_mov_b32 s7, 0x20000", "s_lshl_b32 s8, s2, 2", "s_add_u32 s8, s8, s32", "s_lshl_b32 s8, s8, 6", "v_mov_b32 v2, s8"]
    for i in range(n):
        t += [f"v_mov_b32 v3, s{3 if i == 0 else 76+2*i}", f"buffer_store_dword v3, v2, s[4:7], 0 offen offset:{4*i}"]
    for x in t: sg.text(x)

def kernel():
    sg = Seg()
    sg.text(NAME + "_kernel:")
    sg.text("s_cmp_ge_u32 s2, 256")
    sg.text("s_cbranch_scc1 L_end")
    if opt.stamps:
        stamp(sg, 0)
    p1 = prologue1()
    sg.addall(p1[:2])
    if int(opt.cpf):
        for x in ["s_getpc_b64 s[94:95]", "L_pc:", "s_lshr_b32 s3, s2, 3", "v_lshrrev_b32 v8, 6, v0", "v_and_b32 v9, 1, v0", "v_lshl_add_u32 v8, v8, 1, v9",
                  "v_lshl_add_u32 v8, s3, 3, v8", "v_lshlrev_b32 v8, 7, v8", "v_min_u32 v8, (L_code_end - L_pc - 4) & 0xffffff80, v8", "global_load_dword v255, v8, s[94:95]"]: sg.text(x)
    sg.addall(p1[2:])
    if opt.stamps:
        sg.text("s_mov_b32 s3, s76")
    p2 = prologue2()
    Q = Queue()
    first = x_dma(0) + w_dma(0)
    stamp(sg, 5, 'P')
    Q.push(first)
    weave(sg, Q, [], 9, 0)
    stamp(sg, 6, 'P')
    sg.addall(p2)
    stamp(sg, 7, 'P')
    sg.text("s_cmp_lg_u32 s2, 0"); sg.text("s_cbranch_scc1 L_nocz")
    lane0(sg, ["v_mov_b32 v9, 0", f"s_memrealtime s[{S_NON}:{S_NON+1}]", "s_waitcnt lgkmcnt(0)", f"s_or_b32 s{S_NON}, s{S_NON}, 1", f"v_mov_b32 v250, s{S_NON}", f"v_mov_b32 v251, s{S_NON+1}",
               f"buffer_store_dwordx2 v[250:251], v9, s[{S_D}:{S_D+3}], 0 offen sc1"], "L_nocz")
    sg.text("s_branch L_first")
    sg.text("L_restart:")
    s2 = Seg(); s2.addall(restart_setup()); Q2 = Queue(); Q2.push(x_dma(0) + w_dma(0)); weave(s2, Q2, [], 9, 0)
    for x in s2.out: sg.text(x)
    sg.text("L_first:")
    early, late = prologue3()
    early = early + late
    def BB(u): return f"B{u + 1}"
    Q.push(w_dma(1) + x_dma(1) + w_dma(2) + w_dma(3) + x_dma(2) + w_dma(4) + ((w_dma(5, 'B2') + x_dma(3)) if int(opt.la) else (x_dma(3) + w_dma(5, 'B2'))) + w_dma(6, 'B3') + w_dma(7, 'B4')
           + kv_dma('k', 0, 'B5') + kv_dma('v', 0, 'B6') + kv_dma('k', 1, 'B8') + kv_dma('v', 1, 'BQ'))
    for i in range(2, 8):
        if not int(opt.nodma): Q.push(kv_dma('k', i) + kv_dma('v', i))
    n0 = int(opt.n0) - 9
    weave(sg, Q, early, n0, (len(early) + n0 - 1) // n0)
    sg.addall(early)
    qr = phase_a(sg, Q)
    sg.addall(qr[:0])
    stamp(sg, 3)
    sg.text(f"s_cmp_eq_u32 s{S_REDO}, 0"); sg.text("s_cbranch_scc1 L_back_max")
    s2 = Seg(); s2.addall(qr)
    for x in s2.out: sg.text(x)
    sg.text("s_branch L_max")
    sg.text("L_back_max:")
    phase_b(sg, Q, qr)
    combine(sg, Q)
    phase_c(sg, Q)
    sg.text("L_fin:")
    stamp_out(sg, 11)
    sg.text("L_end:")
    sg.text("s_endpgm")
    return sg.out + ['L_code_end:'] + out_of_line()

def report_kernel():
    idx, mode = opt.report.split(',')
    if mode == 'next':
        return ["report_kernel:", "s_cmp_ge_u32 s2, 1", "s_cbranch_scc1 L3_end", "s_memrealtime s[12:13]", "s_load_dwordx2 s[4:5], s[0:1], 56", "s_waitcnt lgkmcnt(0)",
                f"s_add_u32 s4, s4, {17<<20}", "s_addc_u32 s5, s5, 0", "s_and_b32 s5, s5, 0xffff", "s_mov_b32 s6, 64", "s_mov_b32 s7, 0x20000", "v_mov_b32 v1, 0", "v_mov_b32 v2, s12",
                "buffer_store_dword v2, v1, s[4:7], 0 offen", "L3_end:", "s_endpgm"]
    t = ["report_kernel:", "s_cmp_ge_u32 s2, 1", "s_cbranch_scc1 L3_end", "s_load_dwordx2 s[4:5], s[0:1], 56", "s_waitcnt lgkmcnt(0)",
         f"s_add_u32 s4, s4, {16<<20}", "s_addc_u32 s5, s5, 0", "s_and_b32 s5, s5, 0xffff", "s_mov_b32 s6, 0x100000", "s_mov_b32 s7, 0x20000",
         "v_lshlrev_b32 v1, 8, v0", f"buffer_load_dword v2, v1, s[4:7], 0 offen offset:{4*int(idx)}", "buffer_load_dword v3, v1, s[4:7], 0 offen",
         "v_mov_b32 v4, 0", "v_mov_b32 v5, 0", "v_mov_b32 v6, -1", "ds_write_b32 v4, v5", "ds_write_b32 v4, v6 offset:8", "s_waitcnt vmcnt(0) lgkmcnt(0)", "s_barrier",
         "ds_min_u32 v4, v3 offset:8", "s_waitcnt lgkmcnt(0)", "s_barrier", "ds_read_b32 v6, v4 offset:8", "s_waitcnt lgkmcnt(0)", "v_sub_u32 v2, v2, v6",
         "v_lshrrev_b32 v7, 3, v0", "v_mul_u32_u24 v7, 52, v7", "v_lshrrev_b32 v7, 8, v7", "v_and_b32 v8, 1, v0", "v_sub_u32 v8, 6, v8", "v_cmp_lt_u32 vcc, v7, v8",
         "v_min_u32 v2, 10000, v2",
         ("ds_add_u32 v4, v2" if mode == 'mean' else "ds_max_u32 v4, v2"), "s_waitcnt lgkmcnt(0)", "s_barrier", "ds_read_b32 v6, v4", "s_memrealtime s[12:13]", "s_waitcnt lgkmcnt(0)",
         "v_readfirstlane_b32 s10, v6", "s_nop 4"]
    if mode == 'mean': t += ["s_mul_i32 s10, s10, 10", "s_lshr_b32 s10, s10, 8"]
    elif mode == 'max': t += ["s_mul_i32 s10, s10, 10"]
    else: t += ["s_mov_b32 s10, 0"]
    t += ["L3_spin:", "s_memrealtime s[14:15]", "s_waitcnt lgkmcnt(0)", "s_sub_u32 s14, s14, s12",
          "s_cmp_lt_u32 s14, s10", "s_cbranch_scc1 L3_spin", "L3_end:", "s_endpgm"]
    return t

def build():
    def fmt(l): return "\n".join(x if x.endswith(':') else "    " + x for x in l)
    nm = NAME + "_kernel"
    s = "; @launch grid=(256,1,1) block=(256,1,1) lds=163840\n"
    if opt.report:
        s = f"; @launch kernel={nm} grid=(256,1,1) block=(256,1,1) lds=163840\n; @launch kernel=report_kernel grid=(1,1,1) block=(256,1,1) lds=64\n"
    s += '.amdgcn_target "amdgcn-amd-amdhsa--gfx950"\n.text\n'
    s += f".globl {nm}\n.p2align 8\n.type {nm},@function\n" + fmt(kernel()) + "\n"
    if opt.report: s += ".globl report_kernel\n.p2align 8\n.type report_kernel,@function\n" + fmt(report_kernel()) + "\n"
    s += f""".section .rodata,"a"
.p2align 6
.amdhsa_kernel {nm}
  .amdhsa_next_free_vgpr 512
  .amdhsa_next_free_sgpr 102
  .amdhsa_accum_offset 256
  .amdhsa_group_segment_fixed_size 0
  .amdhsa_kernarg_size 64
  .amdhsa_user_sgpr_count 2
  .amdhsa_user_sgpr_kernarg_segment_ptr 1
  .amdhsa_system_sgpr_workgroup_id_x 1
  .amdhsa_float_denorm_mode_32 3
.end_amdhsa_kernel
"""
    if opt.report:
        s += """.p2align 6
.amdhsa_kernel report_kernel
  .amdhsa_next_free_vgpr 32
  .amdhsa_next_free_sgpr 32
  .amdhsa_accum_offset 32
  .amdhsa_group_segment_fixed_size 0
  .amdhsa_kernarg_size 64
  .amdhsa_user_sgpr_count 2
  .amdhsa_user_sgpr_kernarg_segment_ptr 1
  .amdhsa_system_sgpr_workgroup_id_x 1
.end_amdhsa_kernel
"""
    return s

if __name__ == '__main__':
    out = sys.argv[1] if len(sys.argv) > 1 else 'cdna_kernels/' + NAME + '.s'
    for a_ in sys.argv[2:]:
        k, v = a_.split('=', 1)
        setattr(opt, k, (' ' + v) if k.endswith('flags') and v else v)
    txt = build()
    open(out, 'w').write(txt)
```

```python
import sys, struct, re
from dsl import *

KB = 1024
NAME = 'standalone__gqa_block_cached__near_ridge'
def f2h(x): return hex(struct.unpack('<I', struct.pack('<f', x))[0])
QSCALE = 1.4426950408889634 / (128 ** 0.5)
WS_WO = 8 << 20
WS_CT = 12 << 20

class Opt:
    stamps = ''
    report = ''
    kv_flags = ''
    a_flags = ''
    n0 = 22
    warm = 1
    perstep = 6
    lo_exp = -40
    hi_exp = 40
    spin = 300000
    rt_at = 5
    bar_at = 12
    nodma = 0
    wsb = 0
    drain = '45'
    tlb_at = 99
    aonly = 0
    la = 10
    aq = 1
    ownlate = 1
    o_flags = ' sc1'
    f1_flags = ' sc1'
    w64 = 0
    out_flags = ''
    bsched = 1
    p1w = 1
    p2w = 0
    pollk = '19,29,39'
    dyn2 = 1
    qmaj = 1
    tch_at = 27
    even_at = 99
    pdepth = 1
    kvo = 4
    finw = 0
    alim = 16
    cpf = 1
    chain = 1
    wo_at = 35
    calc_at = 16
    nl_at = 8
    nc_at = 13
    cw = 8
    shadow = 6
    bst = '0,5,10,15,20'
    no_rt = 0
    clk = 'r'
    lg0 = 0
    vpos = '1,5,9,13'
    rot_kv = 1
    rot_a = 2
    rot_c = 1
    gl_at = 29
    gc_at = 33
opt = Opt()

S_X, S_WQ, S_K, S_V, S_O, S_WO, S_WT, S_WL, S_C, S_D, S_OUT = 4, 8, 12, 16, 20, 24, 28, 52, 56, 60, 64
S_W, S_B, S_HKV, S_HQ = 32, 33, 34, 35
S_W1K, S_W8K, S_SO, S_T0, S_T1, S_T2, S_SK, S_SV = 36, 37, 38, 39, 40, 41, 42, 43
S_TAB = 44
S_REDO, S_MT, S_NT, S_VALID, S_RT, S_SPIN = 68, 69, 70, 71, 72, 73
S_EX = 74
S_F1, S_F2, S_G1, S_G2 = 100, 101, 72, 51
S_GM = 70
S_J_UNUSED = 3
S_P = 76
S_ST = 80
V_LANE, V_N, V_G, V_T0, V_T1, V_T2, V_T3, V_T4, V_T5 = 1, 2, 3, 4, 5, 6, 7, 8, 9
V_KA, V_VA, V_KD, V_VD = 10, 14, 22, 26
V_OST, V_CW, V_LW = 28, 29, 31
V_ONES, V_NEGM, V_L, V_S, V_P, V_KF, V_VF = 32, 36, 56, 76, 92, 100, 164
V_XA, V_XB, V_WA, V_WB, V_XD, V_WD, V_QW = 228, 232, 236, 238, 240, 241, 242
V_GC = 250
S_NON = 96
V_CR, V_LR, V_WOD, V_WT, V_OL, V_OW, V_OD, V_PS, V_PLD, V_OUT, V_P1, V_P2 = 228, 234, 235, 236, 242, 243, 244, 245, 246, 247, 248, 249
V_ZERO = 9
V_TCH = 64
S_H = 52
S_W5K = 55
S_J = 69
A_O, A_Q = 0, 160
V_OWN = [132, 140, 148, 156, 56]
A_KF1, A_L = 120, 240
def AO(lam, q):
    if lam < 2: return ('v', V_OWN[q] + 4 * lam)
    return ('a', A_O + 4 * (q * 6 + lam - 2))
def KF(i, k): return ('v', V_KF + 4 * k) if i % 2 == 0 else ('a', A_KF1 + 4 * k)
def LA(q): return ('a', A_L + 4 * q) if q < 4 else ('a', 152)
def AQ(q, s): return ('a', A_Q + 4 * (q * 4 + s))

def XU(c, q):
    if c == 0: return q * 4 * KB
    if c == 1: return 20 * KB + q * 4 * KB
    if c == 2: return 128 * KB + q * 4 * KB
    return [120, 124, 148, 152, 156][q] * KB
def WU(slot, ks):
    return {0: [40, 48], 1: [56, 96], 2: [104, 112], 3: [64, 72], 4: [80, 88]}[slot][ks] * KB
WSLOT = [0, 1, 2, 3, 4, 0, 1, 2]
QBUF = 128 * KB

def V(t, r=(), w=()):
    return valu(t, r=[('v', x) if isinstance(x, int) else x for x in r], w=[('v', x) if isinstance(x, int) else x for x in w])
def T(t, r=(), w=()):
    return valu(t, r=[('v', x) for x in r], w=[('v', x) for x in w], trans=True)
def S(t, r=(), w=()):
    return salu(t, r=[('s', x) if isinstance(x, int) else x for x in r], w=[('s', x) if isinstance(x, int) else x for x in w])
M0 = ('m0', 0)
VCC = ('vcc', 0)
def flat(l): return [x for y in l for x in y]

def srd(dst, plo, add_s=None, add_imm=0, size=0):
    o = []
    if add_s is not None:
        o.append(S(f"s_add_u32 s{dst}, s{plo}, s{add_s}", [plo, add_s], [dst]))
        o.append(S(f"s_addc_u32 s{dst+1}, s{plo+1}, 0", [plo+1], [dst+1]))
        o.append(S(f"s_and_b32 s{dst+1}, s{dst+1}, 0xffff", [dst+1], [dst+1]))
    elif add_imm:
        o.append(S(f"s_add_u32 s{dst}, s{plo}, {add_imm}", [plo], [dst]))
        o.append(S(f"s_addc_u32 s{dst+1}, s{plo+1}, 0", [plo+1], [dst+1]))
        o.append(S(f"s_and_b32 s{dst+1}, s{dst+1}, 0xffff", [dst+1], [dst+1]))
    else:
        o.append(S(f"s_mov_b32 s{dst}, s{plo}", [plo], [dst]))
        o.append(S(f"s_and_b32 s{dst+1}, s{plo+1}, 0xffff", [plo+1], [dst+1]))
    if isinstance(size, str):
        o.append(S(f"s_mov_b32 s{dst+2}, {size}", [int(size[1:])], [dst+2]))
    else:
        o.append(S(f"s_mov_b32 s{dst+2}, {size}", [], [dst+2]))
    o.append(S(f"s_mov_b32 s{dst+3}, 0x20000", [], [dst+3]))
    return o

KV_ORDER = [[0, 2, 1, 3, 4, 6, 5, 7], [0, 1, 3, 2, 4, 5, 7, 6], [1, 0, 2, 4, 3, 5, 6, 7], [1, 0, 2, 3, 5, 4, 6, 7]]
KV_ORDERS = [KV_ORDER,
  [[0, 4, 1, 2, 3, 5, 6, 7], [1, 0, 5, 2, 3, 4, 6, 7], [2, 0, 1, 6, 3, 4, 5, 7], [3, 0, 1, 2, 7, 4, 5, 6]],
  [[0, 1, 2, 3, 4, 5, 6, 7], [0, 1, 2, 3, 4, 5, 6, 7], [4, 5, 6, 7, 0, 1, 2, 3], [4, 5, 6, 7, 0, 1, 2, 3]],
  [[0, 2, 1, 3, 5, 4, 6, 7], [1, 0, 3, 2, 4, 6, 5, 7], [2, 1, 0, 4, 3, 5, 7, 6], [0, 1, 2, 3, 5, 4, 6, 7]],
  [[0, 1, 2, 4, 3, 5, 6, 7], [1, 0, 2, 3, 5, 4, 6, 7], [2, 0, 1, 3, 4, 6, 5, 7], [0, 1, 3, 2, 4, 5, 7, 6]],
  [[0, 1, 4, 2, 3, 5, 6, 7], [1, 0, 2, 5, 3, 4, 6, 7], [2, 0, 1, 3, 6, 4, 5, 7], [0, 3, 1, 2, 4, 7, 5, 6]],
  [[0, 1, 3, 2, 4, 5, 7, 6], [0, 1, 2, 4, 3, 5, 6, 7], [0, 2, 1, 3, 5, 4, 6, 7], [0, 2, 1, 3, 4, 6, 5, 7]],
  [[0, 1, 2, 4, 3, 5, 6, 7], [1, 0, 3, 2, 5, 4, 6, 7], [2, 3, 0, 1, 4, 6, 5, 7], [3, 2, 1, 0, 4, 5, 7, 6]],
  [[0, 1, 2, 4, 3, 5, 6, 7], [1, 2, 0, 3, 5, 4, 6, 7], [2, 0, 1, 3, 4, 6, 5, 7], [0, 3, 1, 2, 4, 5, 7, 6]]]
def kv_pack(j):
    o = KV_ORDERS[int(opt.kvo)][j] if int(opt.rot_kv) else list(range(8))
    return sum(t << (4 * i) for i, t in enumerate(o))
S_KVO = 98
V_XD4 = 204
S_WC = 99

class Item:
    def __init__(s, pre, ins, after=None): s.pre, s.ins, s.after = pre, ins, after
def x_dma(c, after=None):
    return [Item([S(f"s_add_u32 m0, s{S_W1K}, {XU(c,q)}", [S_W1K], [M0])],
                 dma(V_XD4 + c, S_X, S_TAB + q, 0, ('x', c), flags=opt.a_flags), after) for q in range(5)]
def w_dma(u, after=None):
    o = []
    for k in range(4):
        pre = []
        if k == 0:
            pre.append(S(f"s_add_u32 s{S_SK}, s{S_WC}, {(u & 6) << 19}", [S_WC], [S_SK]))
            pre.append(S(f"s_and_b32 s{S_SK}, s{S_SK}, {7 << 19}", [S_SK], [S_SK]))
            if u & 1: pre.append(S(f"s_xor_b32 s{S_SK}, s{S_SK}, {1 << 19}", [S_SK], [S_SK]))
        pre.append(S(f"s_add_u32 s{S_SO}, s{S_SK}, {k*131072}", [S_SK], [S_SO]))
        pre.append(S(f"s_add_u32 m0, s{S_W1K}, {WU(WSLOT[u], k>>1) + (k&1)*4*KB}", [S_W1K], [M0]))
        o.append(Item(pre, dma(V_WD, S_WQ, S_SO, 0, ('w', u), flags=opt.a_flags), after))
    return o
def kv_dma(kind, i, after=None):
    o = []
    base = (i & 1) * 32 * KB + (0 if kind == 'k' else 64 * KB)
    sr, so = (S_K, S_SK) if kind == 'k' else (S_V, S_SV)
    for j in range(8):
        pre = []
        if j % 4 == 0:
            if j == 0:
                pre.append(S(f"s_bfe_u32 s{so}, s{S_KVO}, {hex((3 << 16) | (4 * i))}", [S_KVO], [so]))
                pre.append(S(f"s_lshl_b32 s{so}, s{so}, 13", [so], [so]))
            else:
                pre.append(S(f"s_add_u32 s{so}, s{so}, 4096", [so], [so]))
            pre.append(S(f"s_add_u32 m0, s{S_W8K}, {base + (j>>2)*4096}", [S_W8K], [M0]))
        va = V_KD + (j & 3) if kind == 'k' else V_VD + (j & 1)
        tag = (kind + 'r', i - 2, j >> 2)
        o.append(Item(pre, dma(va, sr, so, 1024 * (j & 3), (kind, i, j >> 2), needlg=[tag], flags=opt.kv_flags), after if i < 2 else tag))
    return o
def k_reads(i):
    return [dsrd('ds_read_b128', KF(i, t * 4 + s), 4, V_KA + s, (i & 1) * 32 * KB + t * 4096,
                 needvm=[('k', i, t)], lgtag=('kr', i, t)) for t in range(2) for s in range(4)]
def v_reads(i):
    return [dsrd('ds_read_b64_tr_b16', ('v', V_VF + (i & 1) * 32 + lam * 4 + h * 2), 2, V_VA + lam, (i & 1) * 32 * KB + h * 4096,
                 needvm=[('v', i, h)], lgtag=('vr', i, h)) for h in range(2) for lam in range(8)]

class Queue:
    def __init__(s): s.q = []; s.pts = set()
    def push(s, items): s.q += items
    def mark(s, p): s.pts.add(p)
    def pop(s):
        if s.q and (s.q[0].after is None or s.q[0].after in s.pts): return s.q.pop(0)
        return None

def place(gaps, Q, pos):
    last = -1
    for p in pos:
        if p >= len(gaps): continue
        it = Q.pop()
        if it is None: break
        pre = list(it.pre)
        avail = list(range(last + 1, p))
        front = []
        if not avail: front = pre
        else:
            slots = [[] for _ in avail]
            for k_, x in enumerate(reversed(pre)):
                slots[max(0, len(avail) - 1 - k_)].insert(0, x)
            for g, sl in zip(avail, slots):
                k_ = 0
                while k_ < len(gaps[g]) and gaps[g][k_].k == 'salu': k_ += 1
                gaps[g][k_:k_] = sl
        k = 0
        while k < len(gaps[p]) and gaps[p][k].k == 'salu': k += 1
        gaps[p][k:k] = front + [it.ins]
        last = p
def weave(sg, Q, fill, n, per):
    for _ in range(n):
        it = Q.pop()
        if it is not None: sg.addall(it.pre + [it.ins])
        for _ in range(per):
            if fill: sg.add(fill.pop(0))

NST = 12
def stamp(sg, i, grp='1'):
    if not opt.stamps: return
    if 5 <= i <= 9 and grp != opt.stamps: return
    sg.text(f"{'s_memtime' if opt.clk == 'c' else 's_memrealtime'} s[{76+2*i}:{77+2*i}]")

def prologue1():
    o = []; a = o.append
    a(raw("s_load_dwordx2 s[92:93], s[0:1], 0"))
    a(raw("s_load_dwordx2 s[26:27], s[0:1], 24"))
    a(V(f"v_lshrrev_b32 v{V_T0}, 6, v0", [0], [V_T0]))
    a(V(f"v_and_b32 v{V_LANE}, 63, v0", [0], [V_LANE]))
    a(V(f"v_readfirstlane_b32 s{S_W}, v{V_T0}", [V_T0], [('s', S_W)]))
    a(S(f"s_and_b32 s{S_HKV}, s2, 7", [2], [S_HKV]))
    a(S(f"s_lshr_b32 s{S_B}, s2, 5", [2], [S_B]))
    a(S(f"s_bfe_u32 s{S_T0}, s2, 0x20003", [2], [S_T0]))
    a(S(f"s_mov_b32 s{S_J}, s{S_T0}", [S_T0], [S_J]))
    a(S(f"s_lshl_b32 s{S_HQ}, s{S_HKV}, 2", [S_HKV], [S_HQ]))
    a(S(f"s_add_u32 s{S_HQ}, s{S_HQ}, s{S_T0}", [S_HQ, S_T0], [S_HQ]))
    if int(opt.rot_a) == 2:
        a(S(f"s_add_u32 s{S_VALID}, s{S_T0}, s{S_B}", [S_T0, S_B], [S_VALID]))
        a(S(f"s_and_b32 s{S_VALID}, s{S_VALID}, 1", [S_VALID], [S_VALID]))
        a(S(f"s_lshl_b32 s{S_VALID}, s{S_VALID}, 2", [S_VALID], [S_VALID]))
    elif int(opt.rot_a) == 4:
        a(S(f"s_add_u32 s{S_VALID}, s{S_T0}, s{S_B}", [S_T0, S_B], [S_VALID]))
        a(S(f"s_and_b32 s{S_VALID}, s{S_VALID}, 3", [S_VALID], [S_VALID]))
        a(S(f"s_lshl_b32 s{S_VALID}, s{S_VALID}, 1", [S_VALID], [S_VALID]))
    elif int(opt.rot_a):
        a(S(f"s_lshl_b32 s{S_T0}, s{S_T0}, 1", [S_T0], [S_T0]))
        a(S(f"s_add_u32 s{S_VALID}, s{S_T0}, s{S_B}", [S_T0, S_B], [S_VALID]))
        a(S(f"s_and_b32 s{S_VALID}, s{S_VALID}, 7", [S_VALID], [S_VALID]))
    else:
        a(S(f"s_mov_b32 s{S_VALID}, 0", [], [S_VALID]))
    a(V(f"v_and_b32 v{V_N}, 15, v{V_LANE}", [V_LANE], [V_N]))
    a(V(f"v_lshrrev_b32 v{V_G}, 4, v{V_LANE}", [V_LANE], [V_G]))
    a(S(f"s_lshl_b32 s{S_W1K}, s{S_W}, 10", [S_W], [S_W1K]))
    a(S(f"s_lshl_b32 s{S_W8K}, s{S_W}, 13", [S_W], [S_W8K]))
    a(V(f"v_lshl_add_u32 v{V_T0}, s{S_W}, 2, v{V_G}", [V_G, ('s', S_W)], [V_T0]))
    a(V(f"v_xor_b32 v{V_T1}, v{V_N}, v{V_T0}", [V_N, V_T0], [V_T1]))
    a(V(f"v_lshlrev_b32 v{V_T1}, 4, v{V_T1}", [V_T1], [V_T1]))
    a(V(f"v_lshl_add_u32 v{V_XD}, v{V_T0}, 10, v{V_T1}", [V_T0, V_T1], [V_XD]))
    a(S(f"s_and_b32 s{S_T0}, s{S_W}, 2", [S_W], [S_T0]))
    a(S(f"s_lshl_b32 s{S_T0}, s{S_T0}, 2", [S_T0], [S_T0]))
    a(V(f"v_lshl_add_u32 v{V_T1}, v{V_G}, 1, s{S_T0}", [V_G, ('s', S_T0)], [V_T1]))
    a(V(f"v_xor_b32 v{V_T1}, v{V_N}, v{V_T1}", [V_N, V_T1], [V_T1]))
    a(V(f"v_lshlrev_b32 v{V_T1}, 4, v{V_T1}", [V_T1], [V_T1]))
    a(V(f"v_lshl_add_u32 v{V_WD}, v{V_T0}, 13, v{V_T1}", [V_T0, V_T1], [V_WD]))
    a(S(f"s_mul_i32 s{S_T0}, s{S_B}, 81920", [S_B], [S_T0]))
    a(S(f"s_lshl_b32 s{S_T2}, s{S_HQ}, 8", [S_HQ], [S_T2]))
    a(S(f"s_sub_u32 s{S_T1}, 4194304, s{S_T2}", [S_T2], [S_T1]))
    a(S(f"s_mov_b32 s{S_REDO}, 0", [], [S_REDO]))
    a(S(f"s_lshl_b32 s{S_WC}, s{S_VALID}, 19", [S_VALID], [S_WC]))
    a(S(f"s_mov_b64 s[{S_GM}:{S_GM+1}], -1", [], [S_GM, S_GM+1]))
    o += restart_setup()
    a(S(f"s_mov_b32 s{S_X+2}, 81920", [], [S_X+2])); a(S(f"s_mov_b32 s{S_X+3}, 0x20000", [], [S_X+3]))
    a(S(f"s_mov_b32 s{S_WQ+2}, s{S_T1}", [S_T1], [S_WQ+2])); a(S(f"s_mov_b32 s{S_WQ+3}, 0x20000", [], [S_WQ+3]))
    a(raw("s_waitcnt lgkmcnt(0)", 'wait'))
    o += srd(S_X, 92, add_s=S_T0, size=81920)[:3]
    o += srd(S_WQ, 26, add_s=S_T2, size=0)[:3]
    a(raw("s_load_dwordx4 s[92:95], s[0:1], 8"))
    a(raw(f"s_load_dwordx2 s[{S_WO}:{S_WO+1}], s[0:1], 32"))
    a(raw(f"s_load_dwordx4 s[{S_C}:{S_C+3}], s[0:1], 40"))
    a(raw("s_load_dwordx2 s[100:101], s[0:1], 56"))
    return o

def restart_setup():
    o = [S(f"s_mov_b32 s{S_TAB+q}, {q*16384}", [], [S_TAB+q]) for q in range(5)]
    for c in range(4):
        o.append(S(f"s_lshr_b32 s{S_SO}, s{S_WC}, 12", [S_WC], [S_SO]))
        o.append(S(f"s_add_u32 s{S_SO}, s{S_SO}, {c*256}", [S_SO], [S_SO]))
        o.append(S(f"s_and_b32 s{S_SO}, s{S_SO}, 0x300", [S_SO], [S_SO]))
        o.append(V(f"v_add_u32 v{V_XD4+c}, s{S_SO}, v{V_XD}", [V_XD, ('s', S_SO)], [V_XD4+c]))
    return o

def prologue2():
    o = []; a = o.append
    a(raw("s_waitcnt lgkmcnt(0)", 'wait'))
    a(S(f"s_lshl_b32 s{S_T0}, s{S_B}, 3", [S_B], [S_T0]))
    a(S(f"s_add_u32 s{S_T0}, s{S_T0}, s{S_HKV}", [S_T0, S_HKV], [S_T0]))
    a(S(f"s_lshl_b32 s{S_T0}, s{S_T0}, 2", [S_T0], [S_T0]))
    a(S(f"s_add_u32 s{S_T0}, s{S_T0}, s{S_W}", [S_T0, S_W], [S_T0]))
    a(S(f"s_lshl_b32 s{S_T0}, s{S_T0}, 16", [S_T0], [S_T0]))
    o += srd(S_K, 92, add_s=S_T0, size=65536)
    o += srd(S_V, 94, add_s=S_T0, size=65536)
    a(S(f"s_lshl_b32 s{S_T0}, s{S_HKV}, 19", [S_HKV], [S_T0]))
    o += srd(S_WO, S_WO, add_s=S_T0, size=524288)
    WB = int(opt.wsb) << 20
    o += srd(S_O, 100, add_imm=WB, size=8*5*128*1024)
    o += srd(S_WT, 100, add_imm=WB + WS_WO, size=8*4*20*8*1024)
    o += srd(S_D, S_C + 2, size=256)
    o += srd(S_OUT, S_C, size=655360)
    o += srd(S_C, 100, add_imm=WB + WS_CT, size=65536)
    a(S(f"s_bitcmp1_b32 s{S_HQ}, 0", [S_HQ], []))
    a(S(f"s_mov_b32 s{S_T0}, {hex(kv_pack(0))}", [], [S_T0]))
    a(S(f"s_cselect_b32 s{S_T0}, {hex(kv_pack(1))}, s{S_T0}", [S_T0], [S_T0]))
    a(S(f"s_mov_b32 s{S_T1}, {hex(kv_pack(2))}", [], [S_T1]))
    a(S(f"s_cselect_b32 s{S_T1}, {hex(kv_pack(3))}, s{S_T1}", [S_T1], [S_T1]))
    a(S(f"s_bitcmp1_b32 s{S_HQ}, 1", [S_HQ], []))
    a(S(f"s_cselect_b32 s{S_KVO}, s{S_T1}, s{S_T0}", [S_T0, S_T1], [S_KVO]))
    for p in range(3):
        a(S(f"s_cmp_le_u32 s{S_J}, {p}", [S_J], []))
        a(S(f"s_cselect_b32 s{S_T1}, {p + 1}, {p}", [], [S_T1]))
        a(S(f"s_lshl_b32 s{S_H+p}, s{S_T1}, 17", [S_T1], [S_H+p]))
    a(S(f"s_mul_i32 s{S_W5K}, s{S_W}, 5120", [S_W], [S_W5K]))
    a(S(f"s_lshl_b32 s{S_T0}, s{S_B}, 12", [S_B], [S_T0]))
    a(S(f"s_lshl_b32 s{S_F1}, s{S_HQ}, 7", [S_HQ], [S_F1]))
    a(S(f"s_add_u32 s{S_F1}, s{S_F1}, s{S_T0}", [S_F1, S_T0], [S_F1]))
    a(S(f"s_add_u32 s{S_F2}, s{S_F1}, 32768", [S_F1], [S_F2]))
    a(S(f"s_lshl_b32 s{S_T1}, s{S_HKV}, 9", [S_HKV], [S_T1]))
    a(S(f"s_lshl_b32 s{S_G1}, s{S_J}, 3", [S_J], [S_G1]))
    a(S(f"s_add_u32 s{S_G1}, s{S_G1}, s{S_T1}", [S_G1, S_T1], [S_G1]))
    a(S(f"s_add_u32 s{S_G1}, s{S_G1}, s{S_T0}", [S_G1, S_T0], [S_G1]))
    a(S(f"s_lshl_b32 s{S_T1}, s{S_J}, 7", [S_J], [S_T1]))
    a(S(f"s_lshl_b32 s{S_G2}, s{S_HKV}, 3", [S_HKV], [S_G2]))
    a(S(f"s_add_u32 s{S_G2}, s{S_G2}, s{S_T1}", [S_G2, S_T1], [S_G2]))
    a(S(f"s_add_u32 s{S_G2}, s{S_G2}, s{S_T0}", [S_G2, S_T0], [S_G2]))
    a(S(f"s_add_u32 s{S_G2}, s{S_G2}, 32768", [S_G2], [S_G2]))
    return o

def prologue3():
    o = []; a = o.append
    a(S(f"s_bfe_u32 s{S_T1}, s{S_WC}, 0x10013", [S_WC], [S_T1]))
    a(S(f"s_lshl_b32 s{S_T1}, s{S_T1}, 3", [S_T1], [S_T1]))
    a(V(f"v_xor_b32 v{V_T1}, s{S_T1}, v{V_N}", [V_N, ('s', S_T1)], [V_T1]))
    for s in range(4):
        a(V(f"v_add_u32 v{V_T0}, {4*s}, v{V_G}", [V_G], [V_T0]))
        a(V(f"v_xor_b32 v{V_T0}, v{V_T0}, v{V_T1}", [V_T0, V_T1], [V_T0]))
        a(V(f"v_lshlrev_b32 v{V_T0}, 4, v{V_T0}", [V_T0], [V_T0]))
        a(V(f"v_lshl_add_u32 v{V_XA+s}, v{V_N}, 8, v{V_T0}", [V_N, V_T0], [V_XA+s]))
        a(V(f"v_add_u32 v{V_XB+s}, {120*KB}, v{V_XA+s}", [V_XA+s], [V_XB+s]))
    a(V(f"v_lshrrev_b32 v{V_T2}, 2, v{V_N}", [V_N], [V_T2]))
    a(V(f"v_bfe_u32 v{V_T3}, v{V_N}, 1, 1", [V_N], [V_T3]))
    a(V(f"v_and_b32 v{V_T4}, 1, v{V_N}", [V_N], [V_T4]))
    a(V(f"v_lshlrev_b32 v{V_T4}, 3, v{V_T4}", [V_T4], [V_T4]))
    a(V(f"v_and_b32 v{V_T5}, 1, v{V_G}", [V_G], [V_T5]))
    a(V(f"v_lshl_add_u32 v{V_T5}, v{V_T5}, 2, v{V_T2}", [V_T5, V_T2], [V_T5]))
    a(V(f"v_lshlrev_b32 v{V_T5}, 1, v{V_T5}", [V_T5], [V_T5]))
    a(S(f"s_lshl_b32 s{S_T1}, s{S_W}, 2", [S_W], [S_T1]))
    a(V(f"v_lshl_add_u32 v{V_T1}, v{V_G}, 3, v{V_T2}", [V_G, V_T2], [V_T1]))
    a(V(f"v_lshl_add_u32 v{V_T1}, v{V_T1}, 8, v{V_T4}", [V_T1, V_T4], [V_T1]))
    for e in range(2):
        a(V(f"v_add3_u32 v{V_T0}, s{S_T1}, v{V_T3}, {2*e}", [V_T3, ('s', S_T1)], [V_T0]))
        a(V(f"v_xor_b32 v{V_T0}, v{V_T0}, v{V_T5}", [V_T0, V_T5], [V_T0]))
        a(V(f"v_lshl_add_u32 v{V_T0}, v{V_T0}, 4, v{V_T1}", [V_T0, V_T1], [V_T0]))
        a(V(f"v_add_u32 v{V_WA+e}, {40*KB}, v{V_T0}", [V_T0], [V_WA+e]))
        a(V(f"v_add_u32 v{V_WB+e}, {96*KB}, v{V_T0}", [V_T0], [V_WB+e]))
    a(V(f"v_lshl_add_u32 v{V_T1}, v{V_G}, 2, v{V_T2}", [V_G, V_T2], [V_T1]))
    n_early = len(o)
    for s in range(4):
        a(V(f"v_add_u32 v{V_KA+s}, s{S_W8K}, v{V_XA+s}", [V_XA+s, ('s', S_W8K)], [V_KA+s]))
    a(V(f"v_lshl_add_u32 v{V_T1}, v{V_T1}, 8, v{V_T4}", [V_T1, V_T4], [V_T1]))
    a(S(f"s_add_u32 s{S_T2}, s{S_W8K}, {64*KB}", [S_W8K], [S_T2]))
    a(V(f"v_add_u32 v{V_T1}, s{S_T2}, v{V_T1}", [V_T1, ('s', S_T2)], [V_T1]))
    a(V(f"v_add_u32 v{V_T3}, s{S_T1}, v{V_T3}", [V_T3, ('s', S_T1)], [V_T3]))
    for lam in range(8):
        a(V(f"v_add_u32 v{V_T0}, {2*lam}, v{V_T3}", [V_T3], [V_T0]))
        a(V(f"v_and_b32 v{V_T0}, 15, v{V_T0}", [V_T0], [V_T0]))
        a(V(f"v_xor_b32 v{V_T0}, v{V_T0}, v{V_T5}", [V_T0, V_T5], [V_T0]))
        a(V(f"v_lshl_add_u32 v{V_VA+lam}, v{V_T0}, 4, v{V_T1}", [V_T0, V_T1], [V_VA+lam]))
    a(V(f"v_xor_b32 v{V_T0}, v{V_N}, v{V_G}", [V_N, V_G], [V_T0]))
    a(V(f"v_lshlrev_b32 v{V_T0}, 4, v{V_T0}", [V_T0], [V_T0]))
    a(V(f"v_lshl_add_u32 v{V_KD}, v{V_G}, 8, v{V_T0}", [V_G, V_T0], [V_KD]))
    for j in range(1, 4):
        a(V(f"v_xor_b32 v{V_KD+j}, {64*j}, v{V_KD}", [V_KD], [V_KD+j]))
    a(V(f"v_lshlrev_b32 v{V_T0}, 1, v{V_G}", [V_G], [V_T0]))
    a(V(f"v_xor_b32 v{V_T0}, v{V_N}, v{V_T0}", [V_N, V_T0], [V_T0]))
    a(V(f"v_lshlrev_b32 v{V_T0}, 4, v{V_T0}", [V_T0], [V_T0]))
    a(V(f"v_lshl_add_u32 v{V_VD}, v{V_G}, 8, v{V_T0}", [V_G, V_T0], [V_VD]))
    a(V(f"v_xor_b32 v{V_VD+1}, 128, v{V_VD}", [V_VD], [V_VD+1]))
    a(V(f"v_lshrrev_b32 v{V_T0}, 1, v{V_G}", [V_G], [V_T0]))
    a(V(f"v_add_u32 v{V_T0}, s{S_T1}, v{V_T0}", [V_T0, ('s', S_T1)], [V_T0]))
    a(V(f"v_xor_b32 v{V_T0}, v{V_T0}, v{V_N}", [V_T0, V_N], [V_T0]))
    a(V(f"v_lshlrev_b32 v{V_T0}, 4, v{V_T0}", [V_T0], [V_T0]))
    a(V(f"v_lshl_add_u32 v{V_T0}, v{V_N}, 8, v{V_T0}", [V_N, V_T0], [V_T0]))
    a(V(f"v_and_b32 v{V_T1}, 1, v{V_G}", [V_G], [V_T1]))
    a(V(f"v_lshl_add_u32 v{V_T0}, v{V_T1}, 3, v{V_T0}", [V_T0, V_T1], [V_T0]))
    a(V(f"v_add_u32 v{V_QW}, {QBUF}, v{V_T0}", [V_T0], [V_QW]))
    a(V(f"v_xor_b32 v{V_QW+1}, 32, v{V_QW}", [V_QW], [V_QW+1]))
    a(V(f"v_lshl_add_u32 v{V_CW}, v{V_LANE}, 4, s{S_W8K}", [V_LANE, ('s', S_W8K)], [V_CW]))
    a(V(f"v_add_u32 v{V_CW+1}, {64*KB}, v{V_CW}", [V_CW], [V_CW+1]))
    a(S(f"s_add_u32 s{S_T0}, s{S_W8K}, {102*KB}", [S_W8K], [S_T0]))
    a(V(f"v_lshl_add_u32 v{V_LW}, v{V_LANE}, 5, s{S_T0}", [V_LANE, ('s', S_T0)], [V_LW]))
    a(S(f"s_mul_i32 s{S_T0}, s{S_B}, 640", [S_B], [S_T0]))
    a(S(f"s_lshl_b32 s{S_T2}, s{S_HQ}, 2", [S_HQ], [S_T2]))
    a(S(f"s_add_u32 s{S_T0}, s{S_T0}, s{S_T2}", [S_T0, S_T2], [S_T0]))
    a(S(f"s_add_u32 s{S_T0}, s{S_T0}, s{S_W}", [S_T0, S_W], [S_T0]))
    a(S(f"s_lshl_b32 s{S_T0}, s{S_T0}, 10", [S_T0], [S_T0]))
    a(V(f"v_lshl_add_u32 v{V_OST}, v{V_LANE}, 4, s{S_T0}", [V_LANE, ('s', S_T0)], [V_OST]))
    a(V(f"v_cmp_eq_u32 vcc, 0, v{V_N}", [V_N], [VCC]))
    a(V(f"v_mov_b32 v{V_T0}, 0x3f803f80", [], [V_T0]))
    for i in range(4):
        a(V(f"v_cndmask_b32 v{V_ONES+i}, 0, v{V_T0}, vcc", [V_T0, VCC], [V_ONES+i]))
    for i in range(20):
        a(V(f"v_mov_b32 v{V_NEGM+i}, 0", [], [V_NEGM+i]))
    return o[:n_early], o[n_early:]

V_QACC = V_VF
def AF(kap):
    return [(100, 120), (128, 148), (208, 156)][kap % 3]
def a_reads(kap):
    u, ks = kap >> 1, kap & 1
    c, s = u >> 1, kap & 3
    xf, wf = AF(kap)
    wb = WU(WSLOT[u], ks)
    xr = []
    for q in range(5):
        xb = XU(c, q)
        reg, base = (V_XA, 0) if xb < 64 * KB else (V_XB, 120 * KB)
        xr.append(dsrd('ds_read_b128', ('v', xf + q * 4), 4, reg + s, xb - base))
    wr = []
    for e in range(2):
        for h in range(2):
            reg, base = (V_WA, 40 * KB) if wb < 96 * KB else (V_WB, 96 * KB)
            wr.append(dsrd('ds_read_b64_tr_b16', ('v', wf + e * 4 + h * 2), 2, reg + e, wb - base + h * 1024))
    return wr[:2] + xr[:1] + wr[2:] + xr[1:]
def a_mfmas(kap):
    o = []
    xf, wf = AF(kap)
    for q in range(5):
        for e in range(2):
            d = ('v', V_QACC + (e * 5 + q) * 4)
            o.append(mfma(d, ('v', wf + e * 4), ('v', xf + q * 4), 0 if kap == 0 else d))
    return o
def lane0(sg, body, lab):
    sg.text(f"s_cmp_lg_u32 s{S_W}, 0"); sg.text(f"s_cbranch_scc1 {lab}")
    sg.text(f"s_mov_b64 s[{S_EX}:{S_EX+1}], exec"); sg.text("s_mov_b64 exec, 1")
    for x in body: sg.text(x)
    sg.text(f"s_mov_b64 exec, s[{S_EX}:{S_EX+1}]")
    sg.text(f"{lab}:")
def phase_a(sg, Q):
    stamp(sg, 1)
    sg.add(barrier(needvm=[('x', 0), ('w', 0)])); Q.mark('B0')
    stamp(sg, 2)
    sg.addall(a_reads(0)); sg.addall(a_reads(1))
    sg.add(S(f"s_mov_b32 s{S_T1}, {f2h(QSCALE)}", [], [S_T1]))
    sg.add(S(f"s_mov_b32 s{S_T2}, {f2h(QSCALE)}", [], [S_T2]))
    for kap in range(14 if int(opt.aq) else 16):
        mf = a_mfmas(kap)
        gaps = [[] for _ in mf]
        nx = kap + 2
        if nx < 16:
            if nx % 2 == 0:
                u = nx >> 1
                need = [('x', u >> 1), ('w', u)]
                while any(it.ins.vmtag in need for it in Q.q):
                    n_ = len(Q.q); weave(sg, Q, [], 1, 0); assert len(Q.q) < n_, (u, Q.q[0].after)
                while True:
                    younger = 0
                    for tg, _w in reversed(sg.vm):
                        if tg in need: break
                        younger += 1
                    n_ = len(Q.q)
                    if younger >= int(opt.la): break
                    weave(sg, Q, [], 1, 0)
                    if len(Q.q) == n_: break
                dr = str(u) in str(opt.drain)
                sg.add(barrier(needvm=need, lg0=dr)); Q.mark(f'B{u}')
                if dr: Q.mark(f'B{u+1}')
                if u in (1, 3, 5, 7): stamp(sg, 5 + u // 2, 'A')
            for i, r in enumerate(a_reads(nx)): gaps[i].append(r)
        mf[0].r |= set(R('v', AF(kap)[0], 20) + R('v', AF(kap)[1], 8))
        pos = [1, 5, 9] if kap % 2 == 0 else [3, 7]
        if int(opt.perstep) == 6: pos = [1, 4, 7] if kap % 2 == 0 else [1, 4, 8]
        if int(opt.perstep) == 7: pos = [1, 4, 6, 9] if kap % 2 == 0 else [2, 5, 8]
        if int(opt.perstep) == 8: pos = [1, 4, 6, 9]
        nkv = sum(1 for it in Q.q if it.ins.vmtag[0] in 'kv')
        room = int(opt.alim) - (128 - nkv) + (len(Q.q) - nkv)
        place(gaps, Q, pos[:max(0, room)])
        if int(opt.aonly): sg.addall([x for x in interleave(mf, gaps) if x.k not in ('mfma', 'dsrd')])
        else: sg.addall(interleave(mf, gaps))
    def qfin(q, e, packed):
        b = V_QACC + (e * 5 + q) * 4
        if packed: f_ = [V(f"v_pk_mul_f32 v[{b+r}:{b+r+1}], v[{b+r}:{b+r+1}], s[{S_T1}:{S_T1+1}]", [b+r, b+r+1], [b+r, b+r+1]) for r in (0, 2)]
        else: f_ = [V(f"v_mul_f32 v{b+r}, s{S_T1}, v{b+r}", [b+r], [b+r]) for r in range(4)]
        f_.append(V(f"v_cvt_pk_bf16_f32 v{b}, v{b}, v{b+1}", [b, b+1], [b]))
        f_.append(V(f"v_cvt_pk_bf16_f32 v{b+1}, v{b+2}, v{b+3}", [b+2, b+3], [b+1]))
        f_.append(dswr('ds_write_b64', V_QW + e, ('v', b), 2, q * 4096, lgtag='qw'))
        return f_
    todo = [(q, e) for q in range(5) for e in range(2)]
    if int(opt.aq):
        m14, m15 = a_mfmas(14), a_mfmas(15)
        m14[0].r |= set(R('v', AF(14)[0], 20) + R('v', AF(14)[1], 8))
        mf = flat([[m14[k], m15[k]] for k in range(10)])
        gaps = [[] for _ in mf]
        gi = 5
        while todo and gi + 3 <= 19:
            f_ = qfin(*todo.pop(0), False)
            gaps[gi] += f_[0:2]; gaps[gi + 1] += f_[2:4]; gaps[gi + 2] += f_[4:6]; gaps[gi + 3] = [f_[6]] + gaps[gi + 3]
            gi += 3
        nkv = sum(1 for it in Q.q if it.ins.vmtag[0] in 'kv')
        place(gaps, Q, [1, 4][:max(0, int(opt.alim) - (128 - nkv))])
        sg.addall(interleave(mf, gaps))
    stamp(sg, 9, 'A')
    for q, e in todo: sg.addall(qfin(q, e, True))
    while any(it.ins.vmtag in (('k', 0, 0), ('k', 0, 1)) for it in Q.q): weave(sg, Q, [], 1, 0)
    b = barrier(lg0=False); b.needlg = ('qw',)
    sg.addall(k_reads(0)); Q.mark(('kr', 0, 0)); Q.mark(('kr', 0, 1))
    sg.add(b); Q.mark('BQ'); Q.mark('B8')
    qr = [dsrd('ds_read_b128', AQ(q, s), 4, V_XB + s, QBUF - 120 * KB + q * 4096) for q in range(5) for s in range(4)]
    return qr

def TQ(tau):
    return divmod(tau, 5) if tau < 30 else (6 + ((tau - 30) & 1), (tau - 30) >> 1)
def qk(tau):
    i, q = TQ(tau)
    o = []
    for s, t in ([(s, t) for t in range(2) for s in range(4)] if int(opt.chain) else [(s, t) for s in range(4) for t in range(2)]):
        if True:
            d = ('v', V_S + (tau & 1) * 8 + t * 4)
            o.append(mfma(d, KF(i, t * 4 + s), AQ(q, s), ('v', V_NEGM + q * 4) if s == 0 else d))
    return o
def pv(tau):
    i, q = TQ(tau)
    p = ('v', V_P + (tau & 1) * 4)
    o = [mfma(AO(lam, q), ('v', V_VF + (i & 1) * 32 + lam * 4), p, AO(lam, q) if i else 0) for lam in range(8)]
    o.insert(0, mfma(LA(q), ('v', V_ONES), p, LA(q) if i else 0))
    return o
def sm(tau):
    b = V_S + (tau & 1) * 8
    p = V_P + (tau & 1) * 4
    e = [T(f"v_exp_f32 v{b+i}, v{b+i}", [b+i], [b+i]) for i in range(8)]
    c = [V(f"v_cvt_pk_bf16_f32 v{p+i}, v{b+2*i}, v{b+2*i+1}", [b+2*i, b+2*i+1], [p+i]) for i in range(4)]
    return e, c
def comb_writes(q):
    o = []
    for jd in range(1, 4):
        for e in range(2):
            u = q * 6 + (jd - 1) * 2 + e
            row = u >> 3
            o.append(dswr('ds_write_b128', V_CW + (row >> 1), AO(2 * jd + e, q), 4, (row & 1) * 32 * KB + (u & 7) * KB, lgtag=('cw', q)))
    o.insert(0, dswr('ds_write_b32', V_LW, LA(q), 1, [0, 4, 16, 20, 24][q], lgtag=('cw', q)))
    return o

def wo_dma(pos, after=None):
    o = []
    for ks in range(4):
        for half in range(2):
            base = (128 * KB if pos < 0 else pos * 32 * KB) + ks * 8 * KB + half * 4 * KB
            if pos < 0:
                pre = [S(f"s_lshl_b32 s{S_SK}, s{S_J}, 17", [S_J], [S_SK])] if ks + half == 0 else []
                h = S_SK
            else: pre, h = [], S_H + pos
            pre += [S(f"s_add_u32 s{S_SO}, s{h}, {ks*32768 + half*16384}", [h], [S_SO]), S(f"s_add_u32 m0, s{S_W1K}, {base}", [S_W1K], [M0])]
            o.append(Item(pre, dma(V_WOD, S_WO, S_SO, 0, ('wo', pos)), after))
    return o
def osib_dma(pos):
    o = []
    for q in range(5):
        pre = [S(f"s_lshr_b32 s{S_SK}, s{S_H+pos}, 5", [S_H+pos], [S_SK])] if q == 0 else []
        pre += [S(f"s_add_u32 s{S_SO}, s{S_SK}, {q*128*KB}", [S_SK], [S_SO]), S(f"s_add_u32 m0, s{S_W5K}, {(140 - 20*pos + q)*KB}", [S_W5K], [M0])]
        o.append(Item(pre, dma(V_OD, S_O, S_SO, 0, ('os', pos), flags=' sc1')))
    return o
def tail_calc():
    o = []; a = o.append
    T0, T1, T2 = 252, 253, 254
    a(V(f"v_lshlrev_b32 v{T0}, 4, v{V_LANE}", [V_LANE], [T0]))
    for jd in range(1, 4):
        a(S(f"s_sub_u32 s{S_T0}, s{S_W}, {jd}", [S_W], [S_T0]))
        a(S(f"s_and_b32 s{S_T0}, s{S_T0}, 3", [S_T0], [S_T0]))
        a(S(f"s_lshl_b32 s{S_T0}, s{S_T0}, 13", [S_T0], [S_T0]))
        a(V(f"v_add_u32 v{V_CR+2*(jd-1)}, s{S_T0}, v{T0}", [T0, ('s', S_T0)], [V_CR+2*(jd-1)]))
        a(V(f"v_add_u32 v{V_CR+2*(jd-1)+1}, {64*KB}, v{V_CR+2*(jd-1)}", [V_CR+2*(jd-1)], [V_CR+2*(jd-1)+1]))
    a(V(f"v_add_u32 v{V_OL}, {96*KB}, v{T0}", [T0], [V_OL]))
    a(V(f"v_add_u32 v{V_OW}, s{S_W5K}, v{V_OL}", [V_OL, ('s', S_W5K)], [V_OW]))
    a(S(f"s_mov_b32 s{S_T0}, {102*KB}", [], [S_T0]))
    a(V(f"v_lshl_add_u32 v{V_LR}, v{V_N}, 5, s{S_T0}", [V_N, ('s', S_T0)], [V_LR]))
    a(S(f"s_add_u32 s{S_T0}, s{S_W8K}, {64*KB}", [S_W8K], [S_T0]))
    for e in range(2):
        a(V(f"v_subrev_u32 v{V_WT+e}, s{S_T0}, v{V_VA+e}", [V_VA+e, ('s', S_T0)], [V_WT+e]))
        a(V(f"v_add_u32 v{V_WT+2+e}, {64*KB}, v{V_WT+e}", [V_WT+e], [V_WT+2+e]))
        a(V(f"v_add_u32 v{V_WT+4+e}, {128*KB}, v{V_WT+e}", [V_WT+e], [V_WT+4+e]))
    a(S(f"s_lshl_b32 s{S_T0}, s{S_J}, 12", [S_J], [S_T0]))
    a(V(f"v_subrev_u32 v{V_OD}, s{S_T0}, v{V_OST}", [V_OST, ('s', S_T0)], [V_OD]))
    a(S(f"s_lshl_b32 s{S_T0}, s{S_B}, 2", [S_B], [S_T0]))
    a(S(f"s_add_u32 s{S_T0}, s{S_T0}, s{S_J}", [S_T0, S_J], [S_T0]))
    a(V(f"v_and_b32 v{T1}, 7, v{V_LANE}", [V_LANE], [T1]))
    a(S(f"s_lshl_b32 s{S_T0}, s{S_T0}, 2", [S_T0], [S_T0]))
    a(S(f"s_add_u32 s{S_T0}, s{S_T0}, s{S_W}", [S_T0, S_W], [S_T0]))
    a(S(f"s_mul_i32 s{S_T0}, s{S_T0}, {5*8*KB}", [S_T0], [S_T0]))
    a(S(f"s_lshl_b32 s{S_T2}, s{S_HKV}, 10", [S_HKV], [S_T2]))
    a(S(f"s_add_u32 s{S_T2}, s{S_T2}, s{S_T0}", [S_T2, S_T0], [S_T2]))
    a(V(f"v_add_u32 v{V_PS}, s{S_T2}, v{T0}", [T0, ('s', S_T2)], [V_PS]))
    a(V(f"v_lshl_add_u32 v{T1}, s{S_HKV}, 3, v{T1}", [T1, ('s', S_HKV)], [T1]))
    a(V(f"v_lshrrev_b32 v{T2}, 3, v{V_LANE}", [V_LANE], [T2]))
    a(V(f"v_lshl_add_u32 v{V_PLD}, v{T1}, 4, s{S_T0}", [T1, ('s', S_T0)], [V_PLD]))
    a(V(f"v_lshl_add_u32 v{V_PLD}, v{T2}, 13, v{V_PLD}", [T2, V_PLD], [V_PLD]))
    a(V(f"v_lshlrev_b32 v{T2}, 14, v{T2}", [T2], [T2]))
    a(V(f"v_and_b32 v{T0}, 15, v{T1}", [T1], [T0]))
    a(V(f"v_lshl_add_u32 v{T2}, v{T0}, 10, v{T2}", [T0, T2], [T2]))
    a(V(f"v_lshrrev_b32 v{T1}, 4, v{T1}", [T1], [T1]))
    a(V(f"v_lshl_add_u32 v{T2}, v{T1}, 3, v{T2}", [T1, T2], [T2]))
    a(S(f"s_mul_i32 s{S_T0}, s{S_B}, 81920", [S_B], [S_T0]))
    a(S(f"s_lshl_b32 s{S_T2}, s{S_J}, 8", [S_J], [S_T2]))
    a(S(f"s_add_u32 s{S_T0}, s{S_T0}, s{S_T2}", [S_T0, S_T2], [S_T0]))
    a(S(f"s_lshl_b32 s{S_T2}, s{S_W}, 6", [S_W], [S_T2]))
    a(S(f"s_add_u32 s{S_T0}, s{S_T0}, s{S_T2}", [S_T0, S_T2], [S_T0]))
    a(V(f"v_add_u32 v{V_OUT}, s{S_T0}, v{T2}", [T2, ('s', S_T0)], [V_OUT]))
    a(V(f"v_cmp_gt_u32 vcc, 40, v{V_LANE}", [V_LANE], [VCC]))
    a(V(f"v_mov_b32 v{T0}, 0x7ff00000", [], [T0]))
    a(V(f"v_cndmask_b32 v{V_PLD}, v{T0}, v{V_PLD}, vcc", [T0, V_PLD, VCC], [V_PLD]))
    a(V(f"v_cndmask_b32 v{V_OUT}, v{T0}, v{V_OUT}, vcc", [T0, V_OUT, VCC], [V_OUT]))
    for k in range(5): a(S(f"s_mov_b32 s{S_TAB+k}, {k*8192}", [], [S_TAB+k]))
    return o
def wod_calc():
    o = []; a = o.append
    T0, T1 = 252, 253
    a(S(f"s_lshl_b32 s{S_T0}, s{S_B}, 2", [S_B], [S_T0]))
    a(S(f"s_add_u32 s{S_T0}, s{S_T0}, s{S_W}", [S_T0, S_W], [S_T0]))
    a(S(f"s_lshl_b32 s{S_T0}, s{S_T0}, 14", [S_T0], [S_T0]))
    a(S(f"s_lshl_b32 s{S_T2}, s{S_J}, 8", [S_J], [S_T2]))
    a(S(f"s_add_u32 s{S_T0}, s{S_T0}, s{S_T2}", [S_T0, S_T2], [S_T0]))
    a(V(f"v_bfe_u32 v{T0}, v{V_LANE}, 1, 4", [V_LANE], [T0]))
    a(V(f"v_and_b32 v{T1}, 1, v{V_LANE}", [V_LANE], [T1]))
    a(V(f"v_lshlrev_b32 v{T1}, 7, v{T1}", [T1], [T1]))
    a(V(f"v_lshl_add_u32 v{T0}, v{T0}, 10, v{T1}", [T0, T1], [T0]))
    a(V(f"v_add_u32 v{V_TCH}, s{S_T0}, v{T0}", [T0, ('s', S_T0)], [V_TCH]))
    a(S(f"s_and_b32 s{S_T0}, s{S_W}, 1", [S_W], [S_T0]))
    a(S(f"s_lshl_b32 s{S_T0}, s{S_T0}, 3", [S_T0], [S_T0]))
    a(V(f"v_lshl_add_u32 v{T0}, v{V_G}, 1, s{S_T0}", [V_G, ('s', S_T0)], [T0]))
    a(V(f"v_xor_b32 v{T0}, v{V_N}, v{T0}", [V_N, T0], [T0]))
    a(S(f"s_lshl_b32 s{S_T0}, s{S_J}, 8", [S_J], [S_T0]))
    a(V(f"v_lshl_add_u32 v{T0}, v{T0}, 4, s{S_T0}", [T0, ('s', S_T0)], [T0]))
    a(V(f"v_lshl_add_u32 v{T1}, s{S_W}, 2, v{V_G}", [V_G, ('s', S_W)], [T1]))
    a(V(f"v_lshl_add_u32 v{V_WOD}, v{T1}, 10, v{T0}", [T0, T1], [V_WOD]))
    return o

def phase_b(sg, Q, qr):
    NT = 8
    calc = wod_calc() + tail_calc()
    sg.addall(qr[:4])
    qr = qr[4:]
    for tau in range(-1, 40):
        i, q = divmod(tau, 5) if tau >= 0 else (-1, 4)
        mf = []
        bst = [int(x) for x in opt.bst.split(',')]
        if tau in bst: stamp(sg, 5 + bst.index(tau), 'B')
        if tau + 1 < 40: mf += qk(tau + 1)
        if tau - 1 >= 0: mf += pv(tau - 1)
        ds, marks = [], []
        if tau == -1: ds = qr
        elif tau == 0: ds = v_reads(0); marks = [('vr', 0, 0), ('vr', 0, 1)]
        elif tau < 27:
            if q == 2: ds = k_reads(i + 1)[:4]; marks = [('kr', i + 1, 0)]
            if q == 3: ds = k_reads(i + 1)[4:] + v_reads(i + 1)[:2]; marks = [('kr', i + 1, 1)]
            if q == 4: ds = v_reads(i + 1)[2:8]; marks = [('vr', i + 1, 0)]
            if q == 0: ds = v_reads(i)[8:14]
            if q == 1 and i > 0: ds = v_reads(i)[14:]; Q.mark(('vr', i, 1))
        xp = None
        if tau >= 27:
            k6, k7, v6, v7 = k_reads(6), k_reads(7), v_reads(6), v_reads(7)
            vo = [v7[l + 8 * h] for l in range(8) for h in range(2)]
            G = [1, 3, 5, 7, 9, 11, 13, 15, 16]
            def cwp(q_, second):
                w_ = comb_writes(q_)
                if int(opt.w64) and q_ < 2:
                    h_ = []
                    for x in w_[1:]:
                        m_ = re.match(r"ds_write_b128 v(\d+), a\[(\d+):\d+\] offset:(\d+)", x.t)
                        for z in range(2): h_.append(dswr('ds_write_b64', int(m_.group(1)), ('a', int(m_.group(2)) + 2 * z), 2, int(m_.group(3)) + 8 * z, lgtag=x.lgtag))
                    return list(zip([1, 3, 5, 9, 13, 16], h_[6:])) if second else list(zip([7, 1, 3, 5, 9, 13, 16], [w_[0]] + h_[:6]))
                return list(zip([1, 9, 13], w_[4:])) if second else list(zip([7, 1, 9, 13], w_[:4]))
            xp = {27: list(zip([3, 5, 9, 11, 15, 16], k6[:4] + v6[:2])),
                  28: list(zip([1, 3, 5, 7, 9, 11, 13, 15, 16], k6[4:] + k7[:5])),
                  29: list(zip(G, k7[5:] + v6[2:8])),
                  30: list(zip([1, 3, 5, 7, 9, 11, 13, 15, 16, 16], v6[8:] + vo[:2])),
                  31: list(zip([1, 1, 3, 5, 5, 7, 9, 9, 11, 13, 13, 15, 16, 16], vo[2:])),
                  32: [], 33: cwp(0, 0), 34: cwp(0, 1), 35: cwp(1, 0), 36: cwp(1, 1), 37: cwp(2, 0),
                  38: cwp(2, 1) + list(zip([3, 5, 5, 7, 11, 15, 16, 16], lreads((0, 1)) + preads(0)[:4])),
                  39: list(zip([0, 2, 4, 6], comb_writes(3)[:4])) + list(zip([1, 1, 3, 3, 5, 5, 7, 7], preads(0)[4:] + preads(1)))}[tau]
            ds = [x for _, x in xp]; marks = []
            if tau == 38:
                b = barrier(needvm=[('wo', -1)], lg0=False); b.needlg = (('cw', 0), ('cw', 1)); sg.add(b)
        n = len(mf)
        gaps = [[] for _ in range(n)]
        e, c = sm(tau) if 0 <= tau < 40 else ([], [])
        if n == 17:
            epos = [0, 2, 4, 6, 8, 10, 12, 14]; cpos = [3, 7, 11, 15]
            dpos = [1, 3, 5, 7, 9, 11, 13, 15] if len(ds) > 4 else [1, 3, 5, 7]
            if ds and ds[0].k == 'dswr': dpos = [1, 1, 3, 7, 9, 13, 16]
            vpos = [1, 5, 9, 13] if (tau < int(opt.even_at) or q == 1) else [1, 7, 13]
            if int(opt.bsched) and not (ds and ds[0].k == 'dswr'):
                if q == 1: dpos, vpos = [1, 3], [5, 9, 13, 16]
                elif tau < int(opt.even_at): dpos, vpos = [3, 7, 11, 15, 16, 16], [1, 5, 9, 13]
                else: dpos, vpos = [3, 5, 9, 11, 15, 16], [1, 7, 13]
        else:
            epos = list(range(8)); cpos = [min(n - 1, x) for x in (2, 4, 6, 8)]
            dpos = [(k * n) // max(1, len(ds)) for k in range(len(ds))]
            vpos = [1, 5]
        if xp is not None:
            dpos = [g_ for g_, _ in xp]; vpos = [7, 11, 15] if tau >= 32 else [13]
            if tau == 27: vpos = [1, 7, 13]
        for x, p_ in zip(ds, dpos): gaps[p_].append(x)
        if tau == int(opt.nl_at):
            sg.add(V("v_mov_b32 v9, 0", [], [9]))
            Q.q.insert(0, Item([], vload(('v', V_GC), 2, 9, S_D, None, 0, flags=' sc1', tag='non')))
        if tau == int(opt.nc_at):
            assert not any(it.ins.vmtag == 'non' for it in Q.q)
            sg.add(V(f"v_readfirstlane_b32 s{S_NON}, v{V_GC}", [V_GC], [('s', S_NON)]))
            sg.add(V(f"v_readfirstlane_b32 s{S_NON+1}, v{V_GC+1}", [V_GC+1], [('s', S_NON+1)]))
            sg.add(S(f"s_cmp_eq_u64 s[{S_NON}:{S_NON+1}], 0", [S_NON, S_NON+1], []))
            sg.text("s_cbranch_scc1 L_spin_n"); sg.text("L_back_n:")
        if tau == int(opt.bar_at): sg.add(barrier(lg0=False))
        for x in ds:
            while any(it.ins.vmtag in x.needvm for it in Q.q): weave(sg, Q, [], 1, 0)
        if tau == int(opt.tch_at): Q.push([Item([], vload(('v', V_TCH + 1), 1, V_TCH, S_WO, None, 0))])
        if tau == int(opt.tlb_at):
            assert not calc
            Q.push([Item([S(f"s_mov_b32 s{S_SO}, {q*256*KB}", [], [S_SO])], vload(('v', 72 + q // 2), 1, V_OD, S_O, S_SO, 0, flags=' sc1')) for q in (0, 2)]
                   + [Item([], vload(('v', 74), 1, V_PLD, S_WT, None, 0, flags=' sc1')), Item([], vload(('v', 75), 1, V_OUT, S_OUT, None, 0, flags=' sc1')),
                      Item([S(f"s_add_u32 s{S_SO}, s{S_F1}, 64", [S_F1], [S_SO])], vload(('v', 254), 1, V_ZERO, S_C, S_SO, 0, flags=' sc1'))])
        if tau == int(opt.wo_at): assert not calc; Q.push(wo_dma(-1))
        place(gaps, Q, vpos)
        for x, p_ in zip(e, epos): gaps[p_].append(x)
        for x, p_ in zip(c, cpos): gaps[p_].append(x)
        if tau >= int(opt.calc_at) and n == 17:
            for gi in range(17):
                if calc and calc[0].k == 'salu' and not any(y.k == 'salu' for y in gaps[gi]): gaps[gi].insert(0, calc.pop(0))
                cost = sum(8 if y.k == 'trans' else 0 if y.k == 'salu' else 4 for y in gaps[gi])
                while calc and calc[0].k != 'salu' and cost <= 4: gaps[gi].append(calc.pop(0)); cost += 4
        sg.addall(interleave(mf, gaps))
        for m in marks: Q.mark(m)

def poll(sg, lab, vaddr):
    sg.text(f"s_mov_b32 s{S_SPIN}, {opt.spin}")
    sg.text(f"{lab}:")
    sg.text(f"buffer_load_dwordx2 v[250:251], v{vaddr}, s[{S_C}:{S_C+3}], 0 offen sc1")
    sg.text(f"s_sub_u32 s{S_SPIN}, s{S_SPIN}, 1")
    sg.text("s_waitcnt vmcnt(0)")
    sg.text(f"v_cmp_ne_u64 vcc, s[{S_NON}:{S_NON+1}], v[250:251]")
    sg.text(f"s_cmp_eq_u32 s{S_SPIN}, 0")
    sg.text(f"s_cbranch_scc1 {lab}_done")
    sg.text("s_nop 2")
    sg.text(f"s_cbranch_vccnz {lab}")
    sg.text(f"{lab}_done:")
    sg.vm = []
def raise_flag(sg, stage, lab):
    n, sh = (4, 7) if stage == 1 else (8, 9)
    sg.text(f"s_cmp_lg_u32 s{S_W}, 0"); sg.text(f"s_cbranch_scc1 {lab}")
    sg.text(f"s_mov_b64 s[{S_EX}:{S_EX+1}], exec"); sg.text(f"s_mov_b64 exec, {(1 << n) - 1 if n < 7 else '0xff'}")
    for x in [f"v_lshl_add_u32 v9, v{V_LANE}, {sh}, s{S_G1 if stage == 1 else S_G2}", f"v_mov_b32 v250, s{S_NON}", f"v_mov_b32 v251, s{S_NON+1}",
              f"buffer_store_dwordx2 v[250:251], v9, s[{S_C}:{S_C+3}], 0 offen{opt.f1_flags if stage == 1 else ' sc1'}"]: sg.text(x)
    sg.text(f"s_mov_b64 exec, s[{S_EX}:{S_EX+1}]")
    sg.text(f"{lab}:")
WOF = A_Q
RES = 100
def part(q, k):
    if q == 0: return 36 + 4 * k if k < 4 else 64 + 4 * (k - 4)
    return {1: 100, 2: 164, 3: 188, 4: 100}[q] + 4 * k
def preads(q):
    o = []
    for jd in range(1, 4):
        for e in range(2):
            k = (jd - 1) * 2 + e; u = q * 6 + k; row = u >> 3
            o.append(dsrd('ds_read_b128', ('v', part(q, k)), 4, V_CR + 2 * (jd - 1) + (row >> 1), (row & 1) * 32 * KB + (u & 7) * KB))
    return o
LSA, LSB = 124, 76
def lreads(qs):
    if qs == (0, 1): return [dsrd('ds_read_b64', ('v', LSA + src * 2), 2, V_LR, src * 8 * KB) for src in range(4)]
    return [dsrd('ds_read_b128', ('v', LSB + src * 4), 4, V_LR, src * 8 * KB + 16) for src in range(4)]
def lsum(qs):
    w = []
    def lr(src, q): return LSA + src * 2 + q if q < 2 else LSB + src * 4 + q - 2
    LS = lr(0, qs[0])
    for q in qs:
        d = V_T0 + q
        w.append(V(f"v_add_f32 v{d}, v{lr(0,q)}, v{lr(1,q)}", [lr(0,q), lr(1,q)], [d]))
        w.append(V(f"v_add_f32 v{lr(2,q)}, v{lr(2,q)}, v{lr(3,q)}", [lr(2,q), lr(3,q)], [lr(2,q)]))
        w.append(V(f"v_add_f32 v{d}, v{d}, v{lr(2,q)}", [d, lr(2,q)], [d]))
    a_, b_, c_ = V_T0 + qs[0], V_T0 + qs[1], V_T0 + qs[-1]
    w.append(V(f"v_min3_f32 v{LS}, v{a_}, v{b_}, v{c_}", [a_, b_, c_], [LS]))
    w.append(V(f"v_add_f32 v{LS+1}, v{a_}, v{b_}", [a_, b_], [LS+1]))
    w.append(V(f"v_add_f32 v{LS+1}, v{LS+1}, v{c_}", [LS+1, c_], [LS+1]))
    w.append(V(f"v_cmp_nle_f32 vcc, {f2h(2.0**int(opt.lo_exp))}, v{LS}", [LS], [VCC]))
    w.append(S(f"s_mov_b64 s[{S_EX}:{S_EX+1}], vcc", [VCC], [S_EX, S_EX+1]))
    w.append(V(f"v_cmp_nge_f32 vcc, {f2h(2.0**int(opt.hi_exp))}, v{LS+1}", [LS+1], [VCC]))
    w.append(S(f"s_or_b64 vcc, vcc, s[{S_EX}:{S_EX+1}]", [VCC, S_EX, S_EX+1], [VCC]))
    w.append(S(f"s_and_b64 vcc, vcc, s[{S_GM}:{S_GM+1}]", [VCC], [VCC]))
    w.append(raw("s_cbranch_vccnz L_redo"))
    for q in qs: w.append(T(f"v_rcp_f32 v{V_T0+q}, v{V_T0+q}", [V_T0+q], [V_T0+q]))
    return w
def finish(q):
    w = []
    for e in range(2):
        o_ = V_OWN[q] + e * 4
        for jd in range(1, 4):
            p_ = part(q, (jd - 1) * 2 + e)
            for r in (0, 2):
                w.append(V(f"v_pk_add_f32 v[{o_+r}:{o_+r+1}], v[{o_+r}:{o_+r+1}], v[{p_+r}:{p_+r+1}]", [o_+r, o_+r+1, p_+r, p_+r+1], [o_+r, o_+r+1]))
    o_ = V_OWN[q]
    ri = V_T0 + (q & ~1); sel = "op_sel:[0,1] op_sel_hi:[1,1]" if q & 1 else "op_sel:[0,0] op_sel_hi:[1,0]"
    for r in range(0, 8, 2):
        w.append(V(f"v_pk_mul_f32 v[{o_+r}:{o_+r+1}], v[{o_+r}:{o_+r+1}], v[{ri}:{ri+1}] {sel}", [o_+r, o_+r+1, V_T0+q], [o_+r, o_+r+1]))
    for r in range(4):
        w.append(V(f"v_cvt_pk_bf16_f32 v{o_+r}, v{o_+2*r}, v{o_+2*r+1}", [o_+2*r, o_+2*r+1], [o_+r]))
    w.append(S(f"s_mov_b32 s{S_SV}, {q*128*KB}", [], [S_SV]))
    w.append(vstore(('v', o_), 4, V_OST, S_O, S_SV, 0, flags=opt.o_flags, tag='ost'))
    return w
def wor():
    return [dsrd('ds_read_b64_tr_b16', ('a', WOF + (ks * 2 + e) * 4 + h * 2), 2, V_WT + 4 + e, ks * 8 * KB + h * 4096) for ks in range(4) for e in range(2) for h in range(2)]
def combine(sg, Q):
    assert not Q.q
    mf = pv(39); gaps = [[] for _ in mf]
    wr = comb_writes(3)[4:]; ls = lsum((0, 1))
    for k, x in enumerate(wr): gaps[3 * k].append(x)
    k = 0
    for gi in range(9):
        n_ = 2 - len(gaps[gi])
        while ls and (n_ > 0 or ls[0].k == 'salu') and gi < 9:
            x = ls.pop(0); gaps[gi].append(x)
            n_ -= 0 if x.k == 'salu' else 2 if x.k == 'trans' else 1
    sg.addall(interleave(mf, gaps))
    stamp(sg, 4)
    w4 = comb_writes(4)
    w = ls + finish(0) + finish(1)
    for k, x in enumerate(w4): w.insert(min(len(w), 6 + k * 6), x)
    sg.addall(w)
    sg.add(barrier())
    stamp(sg, 5)
    Q.push(wo_dma(0))
    rd = lreads((2, 3, 4)) + preads(2) + preads(3)
    weave(sg, Q, rd, int(opt.cw), 2)
    sg.addall(rd)
    w = lsum((2, 3, 4)) + preads(4) + finish(2) + finish(3) + finish(4)
    for k, x in enumerate(wor()): w.insert(30 + 3 * k, x)
    sg.addall(w)
    stamp(sg, 6)

def phase_c(sg, Q):
    a = sg.add
    ACC = 164
    a(barrier())
    stamp(sg, 5, 'D')
    for q in range(5): a(dswr('ds_write_b128', V_OW, ('v', V_OWN[q]), 4, q * KB))
    Q.push(wo_dma(1) + wo_dma(2))
    weave(sg, Q, [], int(opt.shadow), 0)
    stamp(sg, 6, 'D')
    a(barrier(needvm=['ost']))
    stamp(sg, 7, 'D')
    stamp(sg, 7)
    raise_flag(sg, 1, "L_sig1")
    def CF(k): return [(100, 120), (64, 84), (204, 36)][k % 3]
    def c_reads(k):
        pos, ks = divmod(k, 4); pos -= 1
        xf, wf = CF(k)
        ob = 0 if pos < 0 else (44 - 20 * pos) * KB
        xr = [dsrd('ds_read_b128', ('v', xf + q * 4), 4, V_OL, ob + (ks * 5 + q) * KB) for q in range(5)]
        if pos < 0: return xr
        wb = (pos * 4 + ks) * 8 * KB
        wr = [dsrd('ds_read_b64_tr_b16', ('v', wf + e * 4 + h * 2), 2, V_WT + (2 if wb >= 64 * KB else 0) + e, (wb % (64 * KB)) + h * 4096) for e in range(2) for h in range(2)]
        return wr[:2] + xr[:1] + wr[2:] + xr[1:]
    def c_mfmas(k):
        xf, wf = CF(k)
        ff = 'v'
        if k < 4: wf, ff = WOF + k * 8, 'a'
        o = []
        for q in range(5):
            for e in range(2):
                d = ('v', ACC + (q * 2 + e) * 4)
                o.append(mfma(d, (ff, wf + e * 4), ('v', xf + q * 4), 0 if k == 0 else d))
        o[0].r |= set(R('v', xf, 20) + R(ff, wf, 8))
        return o
    def step(k, nx, pos=()):
        mf = c_mfmas(k); gaps = [[] for _ in mf]
        if nx is not None:
            for i, r in enumerate(c_reads(nx)): gaps[i].append(r)
        place(gaps, Q, pos)
        sg.addall(interleave(mf, gaps))
    def own_steps():
        for k in range(4): step(k, k + 2 if k < 2 else None, [1, 5, 9] if k % 2 == 0 else [3, 7])
    sg.addall(c_reads(0)); sg.addall(c_reads(1))
    held = []
    if int(opt.ownlate) == 2: held = Q.q; Q.q = []
    elif int(opt.ownlate): weave(sg, Q, [], len(Q.q), 0)
    else: own_steps()
    assert not Q.q
    stamp(sg, 8, 'D')
    t = [f"s_mov_b32 s{S_SPIN}, {opt.spin}", "L_poll1:", f"s_load_dwordx8 s[4:11], s[{S_C}:{S_C+1}], s{S_F1} glc", f"s_sub_u32 s{S_SPIN}, s{S_SPIN}, 1", "s_waitcnt lgkmcnt(0)",
         f"s_cmp_eq_u32 s{S_SPIN}, 0", "s_cbranch_scc1 L_poll1_done"]
    for h in range(4): t += [f"s_cmp_lg_u64 s[{4+2*h}:{5+2*h}], s[{S_NON}:{S_NON+1}]", "s_cbranch_scc1 L_poll1"]
    t += ["L_poll1_done:"]
    if int(opt.p1w): t = [f"s_cmp_lg_u32 s{S_W}, 0", "s_cbranch_scc1 L_poll1_done"] + t + ["s_waitcnt lgkmcnt(0)", "s_barrier"]
    for x in t: sg.text(x)
    sg.lg = []
    stamp(sg, 9, 'D')
    stamp(sg, 5, 'E')
    stamp(sg, 8)
    Q.push(osib_dma(0) + osib_dma(1) + held)
    if int(opt.ownlate):
        weave(sg, Q, [], 5, 0); own_steps()
    weave(sg, Q, [], len(Q.q), 0)
    stamp(sg, 6, 'E')
    a(barrier(needvm=[('os', 0), ('wo', 0), ('wo', 1)]))
    stamp(sg, 7, 'E')
    Q.push(osib_dma(2))
    sg.addall(c_reads(4)); sg.addall(c_reads(5))
    def pfin(q):
        b = ACC + q * 8
        return [V(f"v_cvt_pk_bf16_f32 v{b+r}, v{b+2*r}, v{b+2*r+1}", [b+2*r, b+2*r+1], [b+r]) for r in range(4)] + [vstore(('v', b), 4, V_PS, S_WT, S_TAB + q, 0, flags=' sc1', tag='pst')]
    last = 16 - (2 if int(opt.qmaj) else 0)
    for k in range(4, last):
        nx = k + 2 if k + 2 < 16 else None
        if nx in (8, 12):
            assert not Q.q or nx == 8
            a(barrier(needvm=[('os', nx // 4 - 1), ('wo', nx // 4 - 1)], lg0=False))
            stamp(sg, 8 if nx == 8 else 9, 'E')
        step(k, nx, [1, 5, 9] if k % 2 == 0 else [3, 7])
    if int(opt.qmaj):
        m14, m15 = c_mfmas(14), c_mfmas(15)
        m15[0].r -= set(R('v', CF(15)[0] + 4, 16))
        mf = flat([[m14[2*q], m15[2*q], m14[2*q+1], m15[2*q+1]] for q in range(5)])
        gaps = [[] for _ in mf]
        for q in range(4):
            f_ = pfin(q)
            g0 = 4 * q + 6
            if g0 + 2 < 20:
                gaps[g0] += f_[0:2]; gaps[g0 + 1] += f_[2:4]; gaps[g0 + 2] += f_[4:]
        sg.addall(interleave(mf, gaps))
        stamp(sg, 9)
        sg.addall(pfin(3) + pfin(4))
    else:
        stamp(sg, 9)
        for q in range(5): sg.addall(pfin(q))
    a(barrier(needvm=['pst'], lg0=False))
    stamp(sg, 5, '2')
    raise_flag(sg, 2, "L_sig2")
    a(S(f"s_mov_b32 s{S_SO}, 4096", [], [S_SO]))
    a(S(f"s_mov_b32 s{S_T1}, 0xffff0000", [], [S_T1]))
    PB, SM, U = 100, 140, 148
    def pl(h): return vload(('v', PB + 4 * h), 4, V_PLD, S_WT, S_SO if h >= 4 else None, (h & 3) * 1024, flags=' sc1')
    t = [f"s_mov_b32 s{S_SPIN}, {opt.spin}", f"s_mov_b32 s{S_T2}, 0", "L_poll2:", f"s_load_dwordx16 s[4:19], s[{S_C}:{S_C+1}], s{S_F2} glc", f"s_sub_u32 s{S_SPIN}, s{S_SPIN}, 1",
         "s_waitcnt lgkmcnt(0)", f"s_cmp_eq_u32 s{S_SPIN}, 0", "s_cbranch_scc1 L_poll2_done"]
    for h in range(8):
        t += [f"s_cmp_lg_u64 s[{4+2*h}:{5+2*h}], s[{S_NON}:{S_NON+1}]", f"s_cbranch_scc1 L_g{h}", f"s_bitcmp1_b32 s{S_T2}, {h}", f"s_cbranch_scc1 L_g{h}",
              f"s_bitset1_b32 s{S_T2}, {h}", pl(h).t, f"L_g{h}:"]
    t += [f"s_cmp_lg_u32 s{S_T2}, 0xff", "s_cbranch_scc1 L_poll2", "L_poll2_done:"]
    if int(opt.p2w):
        t = [f"s_cmp_lg_u32 s{S_W}, 0", "s_cbranch_scc1 L_poll2_done", f"s_mov_b32 s{S_SPIN}, {opt.spin}", "L_poll2:", f"s_load_dwordx16 s[4:19], s[{S_C}:{S_C+1}], s{S_F2} glc",
             f"s_sub_u32 s{S_SPIN}, s{S_SPIN}, 1", "s_waitcnt lgkmcnt(0)", f"s_cmp_eq_u32 s{S_SPIN}, 0", "s_cbranch_scc1 L_poll2_done"]
        for h in range(8): t += [f"s_cmp_lg_u64 s[{4+2*h}:{5+2*h}], s[{S_NON}:{S_NON+1}]", "s_cbranch_scc1 L_poll2"]
        t += ["L_poll2_done:", "s_barrier"] + [pl(h).t for h in range(8)]
    for x in t: sg.text(x)
    stamp(sg, 6, '2')
    sg.drain()
    for h in range(8):
        d = SM if h == 0 else U
        for r in range(4):
            a(V(f"v_lshlrev_b32 v{d+2*r}, 16, v{PB+4*h+r}", [PB+4*h+r], [d+2*r]))
            a(V(f"v_and_b32 v{d+2*r+1}, s{S_T1}, v{PB+4*h+r}", [PB+4*h+r], [d+2*r+1]))
        if h:
            for r in range(0, 8, 2):
                a(V(f"v_pk_add_f32 v[{SM+r}:{SM+r+1}], v[{SM+r}:{SM+r+1}], v[{U+r}:{U+r+1}]", [SM+r, SM+r+1, U+r, U+r+1], [SM+r, SM+r+1]))
    for r in range(4):
        a(V(f"v_cvt_pk_bf16_f32 v{SM+r}, v{SM+2*r}, v{SM+2*r+1}", [SM+2*r, SM+2*r+1], [SM+r]))
    a(vstore(('v', SM), 2, V_OUT, S_OUT, None, 0, flags=opt.out_flags))
    a(vstore(('v', SM + 2), 2, V_OUT, S_OUT, None, 32, flags=opt.out_flags))

def out_of_line():
    t = []
    t += ["L_spin_n:", f"s_mov_b32 s{S_SPIN}, {opt.spin}", "L_spin_n1:",
          f"buffer_load_dwordx2 v[{V_GC}:{V_GC+1}], v9, s[{S_D}:{S_D+3}], 0 offen sc1", f"s_sub_u32 s{S_SPIN}, s{S_SPIN}, 1", "s_waitcnt vmcnt(0)",
          f"v_readfirstlane_b32 s{S_NON}, v{V_GC}", f"v_readfirstlane_b32 s{S_NON+1}, v{V_GC+1}", f"s_cmp_eq_u32 s{S_SPIN}, 0", "s_cbranch_scc1 L_back_n", "s_nop 2",
          f"s_cmp_eq_u64 s[{S_NON}:{S_NON+1}], 0", "s_cbranch_scc1 L_spin_n1", "s_branch L_back_n"]
    t += ["L_redo:", f"s_mov_b64 s[{S_GM}:{S_GM+1}], 0", f"s_mov_b32 s{S_REDO}, 1",
          "s_waitcnt vmcnt(0) lgkmcnt(0)", "s_barrier"]
    sg = Seg()
    p1 = prologue1()
    a = sg.add
    a(V(f"v_lshl_add_u32 v{V_T0}, s{S_W}, 2, v{V_G}", [V_G], [V_T0]))
    a(V(f"v_xor_b32 v{V_T1}, v{V_N}, v{V_T0}", [V_N, V_T0], [V_T1]))
    a(V(f"v_lshlrev_b32 v{V_T1}, 4, v{V_T1}", [V_T1], [V_T1]))
    a(V(f"v_lshl_add_u32 v{V_XD}, v{V_T0}, 10, v{V_T1}", [V_T0, V_T1], [V_XD]))
    a(S(f"s_and_b32 s{S_T0}, s{S_W}, 2", [S_W], [S_T0]))
    a(S(f"s_lshl_b32 s{S_T0}, s{S_T0}, 2", [S_T0], [S_T0]))
    a(V(f"v_lshl_add_u32 v{V_T1}, v{V_G}, 1, s{S_T0}", [V_G], [V_T1]))
    a(V(f"v_xor_b32 v{V_T1}, v{V_N}, v{V_T1}", [V_N, V_T1], [V_T1]))
    a(V(f"v_lshlrev_b32 v{V_T1}, 4, v{V_T1}", [V_T1], [V_T1]))
    a(V(f"v_lshl_add_u32 v{V_WD}, v{V_T0}, 13, v{V_T1}", [V_T0, V_T1], [V_WD]))
    t += sg.out + ["s_nop 4", "s_branch L_restart"]
    sg = Seg(); a = sg.add
    sg.text("L_max:")
    sg.text(f"s_mov_b32 s{S_SPIN}, m0")
    sg.drain()
    sg.text("s_barrier")
    MX, KF, AD = 76, V_VF, 84
    for q in range(5): a(V(f"v_mov_b32 v{MX+q}, 0xff800000", [], [MX+q]))
    for s in range(4): a(V(f"v_add_u32 v{AD+s}, {96*KB}, v{V_KA+s}", [V_KA+s], [AD+s]))
    a(S(f"s_mov_b32 s{S_T2}, 0", [], [S_T2]))
    sg.text("L_max_loop:"); sg.reset_hist()
    for j in range(8):
        if j % 4 == 0:
            a(S(f"s_add_u32 s{S_T1}, s{S_T2}, {(j>>2)*4096}", [S_T2], [S_T1]))
            a(S(f"s_add_u32 m0, s{S_W8K}, {96*KB + (j>>2)*4096}", [S_W8K], [M0]))
        a(dma(V_KD + (j & 3), S_K, S_T1, 1024 * (j & 3), 'mk'))
    for t_ in range(2):
        for s in range(4):
            a(dsrd('ds_read_b128', ('v', KF + (t_ * 4 + s) * 4), 4, AD + s, t_ * 4096, needvm=['mk']))
    for q in range(5):
        for t_ in range(2):
            d = ('v', 88 + t_ * 4)
            for s in range(4): a(mfma(d, ('v', KF + (t_ * 4 + s) * 4), AQ(q, s), 0 if s == 0 else d))
        for k in range(4):
            a(V(f"v_max3_f32 v{MX+q}, v{MX+q}, v{88+2*k}, v{89+2*k}", [MX+q, 88+2*k, 89+2*k], [MX+q]))
    sg.drain()
    a(S(f"s_add_u32 s{S_T2}, s{S_T2}, 8192", [S_T2], [S_T2]))
    sg.text(f"s_cmp_lt_u32 s{S_T2}, 65536"); sg.text("s_nop 4"); sg.text("s_cbranch_scc1 L_max_loop")
    sg.text("s_barrier")
    a(S(f"s_mul_i32 s{S_T0}, s{S_W}, 1280", [S_W], [S_T0]))
    a(S(f"s_add_u32 s{S_T0}, s{S_T0}, {96*KB}", [S_T0], [S_T0]))
    a(V(f"v_lshl_add_u32 v{AD}, v{V_LANE}, 2, s{S_T0}", [V_LANE], [AD]))
    a(S(f"s_mov_b32 s{S_T0}, {96*KB}", [], [S_T0]))
    a(V(f"v_lshl_add_u32 v{AD+1}, v{V_N}, 2, s{S_T0}", [V_N], [AD+1]))
    for q in range(5): a(dswr('ds_write_b32', AD, ('v', MX + q), 1, q * 256))
    a(barrier())
    for q in range(5):
        for k in range(16):
            a(dsrd('ds_read_b32', ('v', KF + k), 1, AD + 1, (k >> 2) * 1280 + q * 256 + (k & 3) * 64))
        for k in range(8):
            a(V(f"v_max3_f32 v{MX+q}, v{MX+q}, v{KF+2*k}, v{KF+2*k+1}", [MX+q, KF+2*k, KF+2*k+1], [MX+q]))
        for r in range(4):
            a(V(f"v_sub_f32 v{V_NEGM+q*4+r}, 0, v{MX+q}", [MX+q], [V_NEGM+q*4+r]))
    sg.drain()
    sg.text("s_barrier"); sg.text(f"s_mov_b32 m0, s{S_SPIN}"); sg.text("s_nop 4"); sg.text("s_branch L_back_max")
    return t + sg.out

def stamp_out(sg, n):
    if not opt.stamps: return
    stamp(sg, n - 1)
    t = ["s_load_dwordx2 s[4:5], s[0:1], 56", "s_waitcnt lgkmcnt(0)", f"s_add_u32 s4, s4, {16<<20}", "s_addc_u32 s5, s5, 0", "s_and_b32 s5, s5, 0xffff",
         "s_mov_b32 s6, 0x100000", "s_mov_b32 s7, 0x20000", "s_lshl_b32 s8, s2, 2", "s_add_u32 s8, s8, s32", "s_lshl_b32 s8, s8, 6", "v_mov_b32 v2, s8"]
    for i in range(n):
        t += [f"v_mov_b32 v3, s{3 if i == 0 else 76+2*i}", f"buffer_store_dword v3, v2, s[4:7], 0 offen offset:{4*i}"]
    for x in t: sg.text(x)

def kernel():
    sg = Seg()
    sg.text(NAME + "_kernel:")
    sg.text("s_cmp_ge_u32 s2, 256")
    sg.text("s_cbranch_scc1 L_end")
    if opt.stamps:
        stamp(sg, 0)
    p1 = prologue1()
    sg.addall(p1[:2])
    if int(opt.cpf):
        for x in ["s_getpc_b64 s[94:95]", "L_pc:", "s_lshr_b32 s3, s2, 3", "v_lshrrev_b32 v8, 6, v0", "v_and_b32 v9, 1, v0", "v_lshl_add_u32 v8, v8, 1, v9",
                  "v_lshl_add_u32 v8, s3, 3, v8", "v_lshlrev_b32 v8, 7, v8", "v_min_u32 v8, (L_code_end - L_pc - 4) & 0xffffff80, v8", "global_load_dword v255, v8, s[94:95]"]: sg.text(x)
    sg.addall(p1[2:])
    if opt.stamps:
        sg.text("s_mov_b32 s3, s76")
    p2 = prologue2()
    Q = Queue()
    first = x_dma(0) + w_dma(0)
    stamp(sg, 5, 'P')
    Q.push(first)
    weave(sg, Q, [], 9, 0)
    stamp(sg, 6, 'P')
    sg.addall(p2)
    stamp(sg, 7, 'P')
    sg.text("s_cmp_lg_u32 s2, 0"); sg.text("s_cbranch_scc1 L_nocz")
    lane0(sg, ["v_mov_b32 v9, 0", f"s_memrealtime s[{S_NON}:{S_NON+1}]", "s_waitcnt lgkmcnt(0)", f"s_or_b32 s{S_NON}, s{S_NON}, 1", f"v_mov_b32 v250, s{S_NON}", f"v_mov_b32 v251, s{S_NON+1}",
               f"buffer_store_dwordx2 v[250:251], v9, s[{S_D}:{S_D+3}], 0 offen sc1"], "L_nocz")
    sg.text("s_branch L_first")
    sg.text("L_restart:")
    s2 = Seg(); s2.addall(restart_setup()); Q2 = Queue(); Q2.push(x_dma(0) + w_dma(0)); weave(s2, Q2, [], 9, 0)
    for x in s2.out: sg.text(x)
    sg.text("L_first:")
    early, late = prologue3()
    early = early + late
    def BB(u): return f"B{u + 1}"
    Q.push(w_dma(1) + x_dma(1) + w_dma(2) + w_dma(3) + x_dma(2) + w_dma(4) + ((w_dma(5, 'B2') + x_dma(3)) if int(opt.la) else (x_dma(3) + w_dma(5, 'B2'))) + w_dma(6, 'B3') + w_dma(7, 'B4')
           + kv_dma('k', 0, 'B5') + kv_dma('v', 0, 'B6') + kv_dma('k', 1, 'B8') + kv_dma('v', 1, 'BQ'))
    for i in range(2, 8):
        if not int(opt.nodma): Q.push(kv_dma('k', i) + kv_dma('v', i))
    n0 = int(opt.n0) - 9
    weave(sg, Q, early, n0, (len(early) + n0 - 1) // n0)
    sg.addall(early)
    qr = phase_a(sg, Q)
    sg.addall(qr[:0])
    stamp(sg, 3)
    sg.text(f"s_cmp_eq_u32 s{S_REDO}, 0"); sg.text("s_cbranch_scc1 L_back_max")
    s2 = Seg(); s2.addall(qr)
    for x in s2.out: sg.text(x)
    sg.text("s_branch L_max")
    sg.text("L_back_max:")
    phase_b(sg, Q, qr)
    combine(sg, Q)
    phase_c(sg, Q)
    sg.text("L_fin:")
    stamp_out(sg, 11)
    sg.text("L_end:")
    sg.text("s_endpgm")
    return sg.out + ['L_code_end:'] + out_of_line()

def report_kernel():
    idx, mode = opt.report.split(',')
    if mode == 'next':
        return ["report_kernel:", "s_cmp_ge_u32 s2, 1", "s_cbranch_scc1 L3_end", "s_memrealtime s[12:13]", "s_load_dwordx2 s[4:5], s[0:1], 56", "s_waitcnt lgkmcnt(0)",
                f"s_add_u32 s4, s4, {17<<20}", "s_addc_u32 s5, s5, 0", "s_and_b32 s5, s5, 0xffff", "s_mov_b32 s6, 64", "s_mov_b32 s7, 0x20000", "v_mov_b32 v1, 0", "v_mov_b32 v2, s12",
                "buffer_store_dword v2, v1, s[4:7], 0 offen", "L3_end:", "s_endpgm"]
    t = ["report_kernel:", "s_cmp_ge_u32 s2, 1", "s_cbranch_scc1 L3_end", "s_load_dwordx2 s[4:5], s[0:1], 56", "s_waitcnt lgkmcnt(0)",
         f"s_add_u32 s4, s4, {16<<20}", "s_addc_u32 s5, s5, 0", "s_and_b32 s5, s5, 0xffff", "s_mov_b32 s6, 0x100000", "s_mov_b32 s7, 0x20000",
         "v_lshlrev_b32 v1, 8, v0", f"buffer_load_dword v2, v1, s[4:7], 0 offen offset:{4*int(idx)}", "buffer_load_dword v3, v1, s[4:7], 0 offen",
         "v_mov_b32 v4, 0", "v_mov_b32 v5, 0", "v_mov_b32 v6, -1", "ds_write_b32 v4, v5", "ds_write_b32 v4, v6 offset:8", "s_waitcnt vmcnt(0) lgkmcnt(0)", "s_barrier",
         "ds_min_u32 v4, v3 offset:8", "s_waitcnt lgkmcnt(0)", "s_barrier", "ds_read_b32 v6, v4 offset:8", "s_waitcnt lgkmcnt(0)", "v_sub_u32 v2, v2, v6",
         "v_lshrrev_b32 v7, 3, v0", "v_mul_u32_u24 v7, 52, v7", "v_lshrrev_b32 v7, 8, v7", "v_and_b32 v8, 1, v0", "v_sub_u32 v8, 6, v8", "v_cmp_lt_u32 vcc, v7, v8",
         "v_min_u32 v2, 10000, v2",
         ("ds_add_u32 v4, v2" if mode == 'mean' else "ds_max_u32 v4, v2"), "s_waitcnt lgkmcnt(0)", "s_barrier", "ds_read_b32 v6, v4", "s_memrealtime s[12:13]", "s_waitcnt lgkmcnt(0)",
         "v_readfirstlane_b32 s10, v6", "s_nop 4"]
    if mode == 'mean': t += ["s_mul_i32 s10, s10, 10", "s_lshr_b32 s10, s10, 8"]
    elif mode == 'max': t += ["s_mul_i32 s10, s10, 10"]
    else: t += ["s_mov_b32 s10, 0"]
    t += ["L3_spin:", "s_memrealtime s[14:15]", "s_waitcnt lgkmcnt(0)", "s_sub_u32 s14, s14, s12",
          "s_cmp_lt_u32 s14, s10", "s_cbranch_scc1 L3_spin", "L3_end:", "s_endpgm"]
    return t

def build():
    def fmt(l): return "\n".join(x if x.endswith(':') else "    " + x for x in l)
    nm = NAME + "_kernel"
    s = "; @launch grid=(256,1,1) block=(256,1,1) lds=163840\n"
    if opt.report:
        s = f"; @launch kernel={nm} grid=(256,1,1) block=(256,1,1) lds=163840\n; @launch kernel=report_kernel grid=(1,1,1) block=(256,1,1) lds=64\n"
    s += '.amdgcn_target "amdgcn-amd-amdhsa--gfx950"\n.text\n'
    s += f".globl {nm}\n.p2align 8\n.type {nm},@function\n" + fmt(kernel()) + "\n"
    if opt.report: s += ".globl report_kernel\n.p2align 8\n.type report_kernel,@function\n" + fmt(report_kernel()) + "\n"
    s += f""".section .rodata,"a"
.p2align 6
.amdhsa_kernel {nm}
  .amdhsa_next_free_vgpr 512
  .amdhsa_next_free_sgpr 102
  .amdhsa_accum_offset 256
  .amdhsa_group_segment_fixed_size 0
  .amdhsa_kernarg_size 64
  .amdhsa_user_sgpr_count 2
  .amdhsa_user_sgpr_kernarg_segment_ptr 1
  .amdhsa_system_sgpr_workgroup_id_x 1
  .amdhsa_float_denorm_mode_32 3
.end_amdhsa_kernel
"""
    if opt.report:
        s += """.p2align 6
.amdhsa_kernel report_kernel
  .amdhsa_next_free_vgpr 32
  .amdhsa_next_free_sgpr 32
  .amdhsa_accum_offset 32
  .amdhsa_group_segment_fixed_size 0
  .amdhsa_kernarg_size 64
  .amdhsa_user_sgpr_count 2
  .amdhsa_user_sgpr_kernarg_segment_ptr 1
  .amdhsa_system_sgpr_workgroup_id_x 1
.end_amdhsa_kernel
"""
    return s

if __name__ == '__main__':
    out = sys.argv[1] if len(sys.argv) > 1 else 'cdna_kernels/' + NAME + '.s'
    for a_ in sys.argv[2:]:
        k, v = a_.split('=', 1)
        setattr(opt, k, (' ' + v) if k.endswith('flags') and v else v)
    txt = build()
    open(out, 'w').write(txt)
```

```python
import sys, struct, re
from dsl import *

KB = 1024
NAME = 'standalone__gqa_block_cached__near_ridge'
def f2h(x): return hex(struct.unpack('<I', struct.pack('<f', x))[0])
QSCALE = 1.4426950408889634 / (128 ** 0.5)
WS_WO = 8 << 20
WS_CT = 12 << 20

class Opt:
    stamps = ''
    report = ''
    kv_flags = ''
    a_flags = ''
    n0 = 22
    warm = 1
    perstep = 6
    lo_exp = -40
    hi_exp = 40
    spin = 300000
    rt_at = 5
    bar_at = 12
    nodma = 0
    kvnt = 'x'
    ant = ''
    tch_flags = ''
    wsb = 0
    drain = '45'
    tlb_at = 99
    aonly = 0
    la = 10
    aq = 1
    ownlate = 1
    o_flags = ' sc1'
    f1_flags = ' sc1'
    w64 = 0
    out_flags = ''
    bsched = 1
    p1w = 1
    p2w = 0
    pollk = '19,29,39'
    dyn2 = 1
    qmaj = 1
    tch_at = 27
    even_at = 99
    pdepth = 1
    kvo = 4
    finw = 0
    alim = 16
    cpf = 1
    chain = 1
    wo_at = 35
    calc_at = 16
    nl_at = 8
    nc_at = 13
    cw = 8
    shadow = 6
    bst = '0,5,10,15,20'
    no_rt = 0
    clk = 'r'
    lg0 = 0
    vpos = '1,5,9,13'
    rot_kv = 1
    rot_a = 2
    rot_c = 1
    gl_at = 29
    gc_at = 33
opt = Opt()

S_X, S_WQ, S_K, S_V, S_O, S_WO, S_WT, S_WL, S_C, S_D, S_OUT = 4, 8, 12, 16, 20, 24, 28, 52, 56, 60, 64
S_W, S_B, S_HKV, S_HQ = 32, 33, 34, 35
S_W1K, S_W8K, S_SO, S_T0, S_T1, S_T2, S_SK, S_SV = 36, 37, 38, 39, 40, 41, 42, 43
S_TAB = 44
S_REDO, S_MT, S_NT, S_VALID, S_RT, S_SPIN = 68, 69, 70, 71, 72, 73
S_EX = 74
S_F1, S_F2, S_G1, S_G2 = 100, 101, 72, 51
S_GM = 70
S_J_UNUSED = 3
S_P = 76
S_ST = 80
V_LANE, V_N, V_G, V_T0, V_T1, V_T2, V_T3, V_T4, V_T5 = 1, 2, 3, 4, 5, 6, 7, 8, 9
V_KA, V_VA, V_KD, V_VD = 10, 14, 22, 26
V_OST, V_CW, V_LW = 28, 29, 31
V_ONES, V_NEGM, V_L, V_S, V_P, V_KF, V_VF = 32, 36, 56, 76, 92, 100, 164
V_XA, V_XB, V_WA, V_WB, V_XD, V_WD, V_QW = 228, 232, 236, 238, 240, 241, 242
V_GC = 250
S_NON = 96
V_CR, V_LR, V_WOD, V_WT, V_OL, V_OW, V_OD, V_PS, V_PLD, V_OUT, V_P1, V_P2 = 228, 234, 235, 236, 242, 243, 244, 245, 246, 247, 248, 249
V_ZERO = 9
V_TCH = 64
S_H = 52
S_W5K = 55
S_J = 69
A_O, A_Q = 0, 160
V_OWN = [132, 140, 148, 156, 56]
A_KF1, A_L = 120, 240
def AO(lam, q):
    if lam < 2: return ('v', V_OWN[q] + 4 * lam)
    return ('a', A_O + 4 * (q * 6 + lam - 2))
def KF(i, k): return ('v', V_KF + 4 * k) if i % 2 == 0 else ('a', A_KF1 + 4 * k)
def LA(q): return ('a', A_L + 4 * q) if q < 4 else ('a', 152)
def AQ(q, s): return ('a', A_Q + 4 * (q * 4 + s))

def XU(c, q):
    if c == 0: return q * 4 * KB
    if c == 1: return 20 * KB + q * 4 * KB
    if c == 2: return 128 * KB + q * 4 * KB
    return [120, 124, 148, 152, 156][q] * KB
def WU(slot, ks):
    return {0: [40, 48], 1: [56, 96], 2: [104, 112], 3: [64, 72], 4: [80, 88]}[slot][ks] * KB
WSLOT = [0, 1, 2, 3, 4, 0, 1, 2]
QBUF = 128 * KB

def V(t, r=(), w=()):
    return valu(t, r=[('v', x) if isinstance(x, int) else x for x in r], w=[('v', x) if isinstance(x, int) else x for x in w])
def T(t, r=(), w=()):
    return valu(t, r=[('v', x) for x in r], w=[('v', x) for x in w], trans=True)
def S(t, r=(), w=()):
    return salu(t, r=[('s', x) if isinstance(x, int) else x for x in r], w=[('s', x) if isinstance(x, int) else x for x in w])
M0 = ('m0', 0)
VCC = ('vcc', 0)
def flat(l): return [x for y in l for x in y]

def srd(dst, plo, add_s=None, add_imm=0, size=0):
    o = []
    if add_s is not None:
        o.append(S(f"s_add_u32 s{dst}, s{plo}, s{add_s}", [plo, add_s], [dst]))
        o.append(S(f"s_addc_u32 s{dst+1}, s{plo+1}, 0", [plo+1], [dst+1]))
        o.append(S(f"s_and_b32 s{dst+1}, s{dst+1}, 0xffff", [dst+1], [dst+1]))
    elif add_imm:
        o.append(S(f"s_add_u32 s{dst}, s{plo}, {add_imm}", [plo], [dst]))
        o.append(S(f"s_addc_u32 s{dst+1}, s{plo+1}, 0", [plo+1], [dst+1]))
        o.append(S(f"s_and_b32 s{dst+1}, s{dst+1}, 0xffff", [dst+1], [dst+1]))
    else:
        o.append(S(f"s_mov_b32 s{dst}, s{plo}", [plo], [dst]))
        o.append(S(f"s_and_b32 s{dst+1}, s{plo+1}, 0xffff", [plo+1], [dst+1]))
    if isinstance(size, str):
        o.append(S(f"s_mov_b32 s{dst+2}, {size}", [int(size[1:])], [dst+2]))
    else:
        o.append(S(f"s_mov_b32 s{dst+2}, {size}", [], [dst+2]))
    o.append(S(f"s_mov_b32 s{dst+3}, 0x20000", [], [dst+3]))
    return o

KV_ORDER = [[0, 2, 1, 3, 4, 6, 5, 7], [0, 1, 3, 2, 4, 5, 7, 6], [1, 0, 2, 4, 3, 5, 6, 7], [1, 0, 2, 3, 5, 4, 6, 7]]
KV_ORDERS = [KV_ORDER,
  [[0, 4, 1, 2, 3, 5, 6, 7], [1, 0, 5, 2, 3, 4, 6, 7], [2, 0, 1, 6, 3, 4, 5, 7], [3, 0, 1, 2, 7, 4, 5, 6]],
  [[0, 1, 2, 3, 4, 5, 6, 7], [0, 1, 2, 3, 4, 5, 6, 7], [4, 5, 6, 7, 0, 1, 2, 3], [4, 5, 6, 7, 0, 1, 2, 3]],
  [[0, 2, 1, 3, 5, 4, 6, 7], [1, 0, 3, 2, 4, 6, 5, 7], [2, 1, 0, 4, 3, 5, 7, 6], [0, 1, 2, 3, 5, 4, 6, 7]],
  [[0, 1, 2, 4, 3, 5, 6, 7], [1, 0, 2, 3, 5, 4, 6, 7], [2, 0, 1, 3, 4, 6, 5, 7], [0, 1, 3, 2, 4, 5, 7, 6]],
  [[0, 1, 4, 2, 3, 5, 6, 7], [1, 0, 2, 5, 3, 4, 6, 7], [2, 0, 1, 3, 6, 4, 5, 7], [0, 3, 1, 2, 4, 7, 5, 6]],
  [[0, 1, 3, 2, 4, 5, 7, 6], [0, 1, 2, 4, 3, 5, 6, 7], [0, 2, 1, 3, 5, 4, 6, 7], [0, 2, 1, 3, 4, 6, 5, 7]],
  [[0, 1, 2, 4, 3, 5, 6, 7], [1, 0, 3, 2, 5, 4, 6, 7], [2, 3, 0, 1, 4, 6, 5, 7], [3, 2, 1, 0, 4, 5, 7, 6]],
  [[0, 1, 2, 4, 3, 5, 6, 7], [1, 2, 0, 3, 5, 4, 6, 7], [2, 0, 1, 3, 4, 6, 5, 7], [0, 3, 1, 2, 4, 5, 7, 6]]]
def kv_pack(j):
    o = KV_ORDERS[int(opt.kvo)][j] if int(opt.rot_kv) else list(range(8))
    return sum(t << (4 * i) for i, t in enumerate(o))
S_KVO = 98
V_XD4 = 204
S_WC = 99

class Item:
    def __init__(s, pre, ins, after=None): s.pre, s.ins, s.after = pre, ins, after
def x_dma(c, after=None):
    return [Item([S(f"s_add_u32 m0, s{S_W1K}, {XU(c,q)}", [S_W1K], [M0])],
                 dma(V_XD4 + c, S_X, S_TAB + q, 0, ('x', c), flags=(' nt' if 'x' in opt.ant and c < 2 else opt.a_flags)), after) for q in range(5)]
def w_dma(u, after=None):
    o = []
    for k in range(4):
        pre = []
        if k == 0:
            pre.append(S(f"s_add_u32 s{S_SK}, s{S_WC}, {(u & 6) << 19}", [S_WC], [S_SK]))
            pre.append(S(f"s_and_b32 s{S_SK}, s{S_SK}, {7 << 19}", [S_SK], [S_SK]))
            if u & 1: pre.append(S(f"s_xor_b32 s{S_SK}, s{S_SK}, {1 << 19}", [S_SK], [S_SK]))
        pre.append(S(f"s_add_u32 s{S_SO}, s{S_SK}, {k*131072}", [S_SK], [S_SO]))
        pre.append(S(f"s_add_u32 m0, s{S_W1K}, {WU(WSLOT[u], k>>1) + (k&1)*4*KB}", [S_W1K], [M0]))
        o.append(Item(pre, dma(V_WD, S_WQ, S_SO, 0, ('w', u), flags=(' nt' if 'w' in opt.ant and u < 4 else opt.a_flags)), after))
    return o
def kv_dma(kind, i, after=None):
    o = []
    base = (i & 1) * 32 * KB + (0 if kind == 'k' else 64 * KB)
    sr, so = (S_K, S_SK) if kind == 'k' else (S_V, S_SV)
    for j in range(8):
        pre = []
        if j % 4 == 0:
            if j == 0:
                pre.append(S(f"s_bfe_u32 s{so}, s{S_KVO}, {hex((3 << 16) | (4 * i))}", [S_KVO], [so]))
                pre.append(S(f"s_lshl_b32 s{so}, s{so}, 13", [so], [so]))
            else:
                pre.append(S(f"s_add_u32 s{so}, s{so}, 4096", [so], [so]))
            pre.append(S(f"s_add_u32 m0, s{S_W8K}, {base + (j>>2)*4096}", [S_W8K], [M0]))
        va = V_KD + (j & 3) if kind == 'k' else V_VD + (j & 1)
        tag = (kind + 'r', i - 2, j >> 2)
        o.append(Item(pre, dma(va, sr, so, 1024 * (j & 3), (kind, i, j >> 2), needlg=[tag], flags=(' nt' if str(i) in str(opt.kvnt) else opt.kv_flags)), after if i < 2 else tag))
    return o
def k_reads(i):
    return [dsrd('ds_read_b128', KF(i, t * 4 + s), 4, V_KA + s, (i & 1) * 32 * KB + t * 4096,
                 needvm=[('k', i, t)], lgtag=('kr', i, t)) for t in range(2) for s in range(4)]
def v_reads(i):
    return [dsrd('ds_read_b64_tr_b16', ('v', V_VF + (i & 1) * 32 + lam * 4 + h * 2), 2, V_VA + lam, (i & 1) * 32 * KB + h * 4096,
                 needvm=[('v', i, h)], lgtag=('vr', i, h)) for h in range(2) for lam in range(8)]

class Queue:
    def __init__(s): s.q = []; s.pts = set()
    def push(s, items): s.q += items
    def mark(s, p): s.pts.add(p)
    def pop(s):
        if s.q and (s.q[0].after is None or s.q[0].after in s.pts): return s.q.pop(0)
        return None

def place(gaps, Q, pos):
    last = -1
    for p in pos:
        if p >= len(gaps): continue
        it = Q.pop()
        if it is None: break
        pre = list(it.pre)
        avail = list(range(last + 1, p))
        front = []
        if not avail: front = pre
        else:
            slots = [[] for _ in avail]
            for k_, x in enumerate(reversed(pre)):
                slots[max(0, len(avail) - 1 - k_)].insert(0, x)
            for g, sl in zip(avail, slots):
                k_ = 0
                while k_ < len(gaps[g]) and gaps[g][k_].k == 'salu': k_ += 1
                gaps[g][k_:k_] = sl
        k = 0
        while k < len(gaps[p]) and gaps[p][k].k == 'salu': k += 1
        gaps[p][k:k] = front + [it.ins]
        last = p
def weave(sg, Q, fill, n, per):
    for _ in range(n):
        it = Q.pop()
        if it is not None: sg.addall(it.pre + [it.ins])
        for _ in range(per):
            if fill: sg.add(fill.pop(0))

NST = 12
def stamp(sg, i, grp='1'):
    if not opt.stamps: return
    if 5 <= i <= 9 and grp != opt.stamps: return
    sg.text(f"{'s_memtime' if opt.clk == 'c' else 's_memrealtime'} s[{76+2*i}:{77+2*i}]")

def prologue1():
    o = []; a = o.append
    a(raw("s_load_dwordx2 s[92:93], s[0:1], 0"))
    a(raw("s_load_dwordx2 s[26:27], s[0:1], 24"))
    a(V(f"v_lshrrev_b32 v{V_T0}, 6, v0", [0], [V_T0]))
    a(V(f"v_and_b32 v{V_LANE}, 63, v0", [0], [V_LANE]))
    a(V(f"v_readfirstlane_b32 s{S_W}, v{V_T0}", [V_T0], [('s', S_W)]))
    a(S(f"s_and_b32 s{S_HKV}, s2, 7", [2], [S_HKV]))
    a(S(f"s_lshr_b32 s{S_B}, s2, 5", [2], [S_B]))
    a(S(f"s_bfe_u32 s{S_T0}, s2, 0x20003", [2], [S_T0]))
    a(S(f"s_mov_b32 s{S_J}, s{S_T0}", [S_T0], [S_J]))
    a(S(f"s_lshl_b32 s{S_HQ}, s{S_HKV}, 2", [S_HKV], [S_HQ]))
    a(S(f"s_add_u32 s{S_HQ}, s{S_HQ}, s{S_T0}", [S_HQ, S_T0], [S_HQ]))
    if int(opt.rot_a) == 2:
        a(S(f"s_add_u32 s{S_VALID}, s{S_T0}, s{S_B}", [S_T0, S_B], [S_VALID]))
        a(S(f"s_and_b32 s{S_VALID}, s{S_VALID}, 1", [S_VALID], [S_VALID]))
        a(S(f"s_lshl_b32 s{S_VALID}, s{S_VALID}, 2", [S_VALID], [S_VALID]))
    elif int(opt.rot_a) == 4:
        a(S(f"s_add_u32 s{S_VALID}, s{S_T0}, s{S_B}", [S_T0, S_B], [S_VALID]))
        a(S(f"s_and_b32 s{S_VALID}, s{S_VALID}, 3", [S_VALID], [S_VALID]))
        a(S(f"s_lshl_b32 s{S_VALID}, s{S_VALID}, 1", [S_VALID], [S_VALID]))
    elif int(opt.rot_a):
        a(S(f"s_lshl_b32 s{S_T0}, s{S_T0}, 1", [S_T0], [S_T0]))
        a(S(f"s_add_u32 s{S_VALID}, s{S_T0}, s{S_B}", [S_T0, S_B], [S_VALID]))
        a(S(f"s_and_b32 s{S_VALID}, s{S_VALID}, 7", [S_VALID], [S_VALID]))
    else:
        a(S(f"s_mov_b32 s{S_VALID}, 0", [], [S_VALID]))
    a(V(f"v_and_b32 v{V_N}, 15, v{V_LANE}", [V_LANE], [V_N]))
    a(V(f"v_lshrrev_b32 v{V_G}, 4, v{V_LANE}", [V_LANE], [V_G]))
    a(S(f"s_lshl_b32 s{S_W1K}, s{S_W}, 10", [S_W], [S_W1K]))
    a(S(f"s_lshl_b32 s{S_W8K}, s{S_W}, 13", [S_W], [S_W8K]))
    a(V(f"v_lshl_add_u32 v{V_T0}, s{S_W}, 2, v{V_G}", [V_G, ('s', S_W)], [V_T0]))
    a(V(f"v_xor_b32 v{V_T1}, v{V_N}, v{V_T0}", [V_N, V_T0], [V_T1]))
    a(V(f"v_lshlrev_b32 v{V_T1}, 4, v{V_T1}", [V_T1], [V_T1]))
    a(V(f"v_lshl_add_u32 v{V_XD}, v{V_T0}, 10, v{V_T1}", [V_T0, V_T1], [V_XD]))
    a(S(f"s_and_b32 s{S_T0}, s{S_W}, 2", [S_W], [S_T0]))
    a(S(f"s_lshl_b32 s{S_T0}, s{S_T0}, 2", [S_T0], [S_T0]))
    a(V(f"v_lshl_add_u32 v{V_T1}, v{V_G}, 1, s{S_T0}", [V_G, ('s', S_T0)], [V_T1]))
    a(V(f"v_xor_b32 v{V_T1}, v{V_N}, v{V_T1}", [V_N, V_T1], [V_T1]))
    a(V(f"v_lshlrev_b32 v{V_T1}, 4, v{V_T1}", [V_T1], [V_T1]))
    a(V(f"v_lshl_add_u32 v{V_WD}, v{V_T0}, 13, v{V_T1}", [V_T0, V_T1], [V_WD]))
    a(S(f"s_mul_i32 s{S_T0}, s{S_B}, 81920", [S_B], [S_T0]))
    a(S(f"s_lshl_b32 s{S_T2}, s{S_HQ}, 8", [S_HQ], [S_T2]))
    a(S(f"s_sub_u32 s{S_T1}, 4194304, s{S_T2}", [S_T2], [S_T1]))
    a(S(f"s_mov_b32 s{S_REDO}, 0", [], [S_REDO]))
    a(S(f"s_lshl_b32 s{S_WC}, s{S_VALID}, 19", [S_VALID], [S_WC]))
    a(S(f"s_mov_b64 s[{S_GM}:{S_GM+1}], -1", [], [S_GM, S_GM+1]))
    o += restart_setup()
    a(S(f"s_mov_b32 s{S_X+2}, 81920", [], [S_X+2])); a(S(f"s_mov_b32 s{S_X+3}, 0x20000", [], [S_X+3]))
    a(S(f"s_mov_b32 s{S_WQ+2}, s{S_T1}", [S_T1], [S_WQ+2])); a(S(f"s_mov_b32 s{S_WQ+3}, 0x20000", [], [S_WQ+3]))
    a(raw("s_waitcnt lgkmcnt(0)", 'wait'))
    o += srd(S_X, 92, add_s=S_T0, size=81920)[:3]
    o += srd(S_WQ, 26, add_s=S_T2, size=0)[:3]
    a(raw("s_load_dwordx4 s[92:95], s[0:1], 8"))
    a(raw(f"s_load_dwordx2 s[{S_WO}:{S_WO+1}], s[0:1], 32"))
    a(raw(f"s_load_dwordx4 s[{S_C}:{S_C+3}], s[0:1], 40"))
    a(raw("s_load_dwordx2 s[100:101], s[0:1], 56"))
    return o

def restart_setup():
    o = [S(f"s_mov_b32 s{S_TAB+q}, {q*16384}", [], [S_TAB+q]) for q in range(5)]
    for c in range(4):
        o.append(S(f"s_lshr_b32 s{S_SO}, s{S_WC}, 12", [S_WC], [S_SO]))
        o.append(S(f"s_add_u32 s{S_SO}, s{S_SO}, {c*256}", [S_SO], [S_SO]))
        o.append(S(f"s_and_b32 s{S_SO}, s{S_SO}, 0x300", [S_SO], [S_SO]))
        o.append(V(f"v_add_u32 v{V_XD4+c}, s{S_SO}, v{V_XD}", [V_XD, ('s', S_SO)], [V_XD4+c]))
    return o

def prologue2():
    o = []; a = o.append
    a(raw("s_waitcnt lgkmcnt(0)", 'wait'))
    a(S(f"s_lshl_b32 s{S_T0}, s{S_B}, 3", [S_B], [S_T0]))
    a(S(f"s_add_u32 s{S_T0}, s{S_T0}, s{S_HKV}", [S_T0, S_HKV], [S_T0]))
    a(S(f"s_lshl_b32 s{S_T0}, s{S_T0}, 2", [S_T0], [S_T0]))
    a(S(f"s_add_u32 s{S_T0}, s{S_T0}, s{S_W}", [S_T0, S_W], [S_T0]))
    a(S(f"s_lshl_b32 s{S_T0}, s{S_T0}, 16", [S_T0], [S_T0]))
    o += srd(S_K, 92, add_s=S_T0, size=65536)
    o += srd(S_V, 94, add_s=S_T0, size=65536)
    a(S(f"s_lshl_b32 s{S_T0}, s{S_HKV}, 19", [S_HKV], [S_T0]))
    o += srd(S_WO, S_WO, add_s=S_T0, size=524288)
    WB = int(opt.wsb) << 20
    o += srd(S_O, 100, add_imm=WB, size=8*5*128*1024)
    o += srd(S_WT, 100, add_imm=WB + WS_WO, size=8*4*20*8*1024)
    o += srd(S_D, S_C + 2, size=256)
    o += srd(S_OUT, S_C, size=655360)
    o += srd(S_C, 100, add_imm=WB + WS_CT, size=65536)
    a(S(f"s_bitcmp1_b32 s{S_HQ}, 0", [S_HQ], []))
    a(S(f"s_mov_b32 s{S_T0}, {hex(kv_pack(0))}", [], [S_T0]))
    a(S(f"s_cselect_b32 s{S_T0}, {hex(kv_pack(1))}, s{S_T0}", [S_T0], [S_T0]))
    a(S(f"s_mov_b32 s{S_T1}, {hex(kv_pack(2))}", [], [S_T1]))
    a(S(f"s_cselect_b32 s{S_T1}, {hex(kv_pack(3))}, s{S_T1}", [S_T1], [S_T1]))
    a(S(f"s_bitcmp1_b32 s{S_HQ}, 1", [S_HQ], []))
    a(S(f"s_cselect_b32 s{S_KVO}, s{S_T1}, s{S_T0}", [S_T0, S_T1], [S_KVO]))
    for p in range(3):
        a(S(f"s_cmp_le_u32 s{S_J}, {p}", [S_J], []))
        a(S(f"s_cselect_b32 s{S_T1}, {p + 1}, {p}", [], [S_T1]))
        a(S(f"s_lshl_b32 s{S_H+p}, s{S_T1}, 17", [S_T1], [S_H+p]))
    a(S(f"s_mul_i32 s{S_W5K}, s{S_W}, 5120", [S_W], [S_W5K]))
    a(S(f"s_lshl_b32 s{S_T0}, s{S_B}, 12", [S_B], [S_T0]))
    a(S(f"s_lshl_b32 s{S_F1}, s{S_HQ}, 7", [S_HQ], [S_F1]))
    a(S(f"s_add_u32 s{S_F1}, s{S_F1}, s{S_T0}", [S_F1, S_T0], [S_F1]))
    a(S(f"s_add_u32 s{S_F2}, s{S_F1}, 32768", [S_F1], [S_F2]))
    a(S(f"s_lshl_b32 s{S_T1}, s{S_HKV}, 9", [S_HKV], [S_T1]))
    a(S(f"s_lshl_b32 s{S_G1}, s{S_J}, 3", [S_J], [S_G1]))
    a(S(f"s_add_u32 s{S_G1}, s{S_G1}, s{S_T1}", [S_G1, S_T1], [S_G1]))
    a(S(f"s_add_u32 s{S_G1}, s{S_G1}, s{S_T0}", [S_G1, S_T0], [S_G1]))
    a(S(f"s_lshl_b32 s{S_T1}, s{S_J}, 7", [S_J], [S_T1]))
    a(S(f"s_lshl_b32 s{S_G2}, s{S_HKV}, 3", [S_HKV], [S_G2]))
    a(S(f"s_add_u32 s{S_G2}, s{S_G2}, s{S_T1}", [S_G2, S_T1], [S_G2]))
    a(S(f"s_add_u32 s{S_G2}, s{S_G2}, s{S_T0}", [S_G2, S_T0], [S_G2]))
    a(S(f"s_add_u32 s{S_G2}, s{S_G2}, 32768", [S_G2], [S_G2]))
    return o

def prologue3():
    o = []; a = o.append
    a(S(f"s_bfe_u32 s{S_T1}, s{S_WC}, 0x10013", [S_WC], [S_T1]))
    a(S(f"s_lshl_b32 s{S_T1}, s{S_T1}, 3", [S_T1], [S_T1]))
    a(V(f"v_xor_b32 v{V_T1}, s{S_T1}, v{V_N}", [V_N, ('s', S_T1)], [V_T1]))
    for s in range(4):
        a(V(f"v_add_u32 v{V_T0}, {4*s}, v{V_G}", [V_G], [V_T0]))
        a(V(f"v_xor_b32 v{V_T0}, v{V_T0}, v{V_T1}", [V_T0, V_T1], [V_T0]))
        a(V(f"v_lshlrev_b32 v{V_T0}, 4, v{V_T0}", [V_T0], [V_T0]))
        a(V(f"v_lshl_add_u32 v{V_XA+s}, v{V_N}, 8, v{V_T0}", [V_N, V_T0], [V_XA+s]))
        a(V(f"v_add_u32 v{V_XB+s}, {120*KB}, v{V_XA+s}", [V_XA+s], [V_XB+s]))
    a(V(f"v_lshrrev_b32 v{V_T2}, 2, v{V_N}", [V_N], [V_T2]))
    a(V(f"v_bfe_u32 v{V_T3}, v{V_N}, 1, 1", [V_N], [V_T3]))
    a(V(f"v_and_b32 v{V_T4}, 1, v{V_N}", [V_N], [V_T4]))
    a(V(f"v_lshlrev_b32 v{V_T4}, 3, v{V_T4}", [V_T4], [V_T4]))
    a(V(f"v_and_b32 v{V_T5}, 1, v{V_G}", [V_G], [V_T5]))
    a(V(f"v_lshl_add_u32 v{V_T5}, v{V_T5}, 2, v{V_T2}", [V_T5, V_T2], [V_T5]))
    a(V(f"v_lshlrev_b32 v{V_T5}, 1, v{V_T5}", [V_T5], [V_T5]))
    a(S(f"s_lshl_b32 s{S_T1}, s{S_W}, 2", [S_W], [S_T1]))
    a(V(f"v_lshl_add_u32 v{V_T1}, v{V_G}, 3, v{V_T2}", [V_G, V_T2], [V_T1]))
    a(V(f"v_lshl_add_u32 v{V_T1}, v{V_T1}, 8, v{V_T4}", [V_T1, V_T4], [V_T1]))
    for e in range(2):
        a(V(f"v_add3_u32 v{V_T0}, s{S_T1}, v{V_T3}, {2*e}", [V_T3, ('s', S_T1)], [V_T0]))
        a(V(f"v_xor_b32 v{V_T0}, v{V_T0}, v{V_T5}", [V_T0, V_T5], [V_T0]))
        a(V(f"v_lshl_add_u32 v{V_T0}, v{V_T0}, 4, v{V_T1}", [V_T0, V_T1], [V_T0]))
        a(V(f"v_add_u32 v{V_WA+e}, {40*KB}, v{V_T0}", [V_T0], [V_WA+e]))
        a(V(f"v_add_u32 v{V_WB+e}, {96*KB}, v{V_T0}", [V_T0], [V_WB+e]))
    a(V(f"v_lshl_add_u32 v{V_T1}, v{V_G}, 2, v{V_T2}", [V_G, V_T2], [V_T1]))
    n_early = len(o)
    for s in range(4):
        a(V(f"v_add_u32 v{V_KA+s}, s{S_W8K}, v{V_XA+s}", [V_XA+s, ('s', S_W8K)], [V_KA+s]))
    a(V(f"v_lshl_add_u32 v{V_T1}, v{V_T1}, 8, v{V_T4}", [V_T1, V_T4], [V_T1]))
    a(S(f"s_add_u32 s{S_T2}, s{S_W8K}, {64*KB}", [S_W8K], [S_T2]))
    a(V(f"v_add_u32 v{V_T1}, s{S_T2}, v{V_T1}", [V_T1, ('s', S_T2)], [V_T1]))
    a(V(f"v_add_u32 v{V_T3}, s{S_T1}, v{V_T3}", [V_T3, ('s', S_T1)], [V_T3]))
    for lam in range(8):
        a(V(f"v_add_u32 v{V_T0}, {2*lam}, v{V_T3}", [V_T3], [V_T0]))
        a(V(f"v_and_b32 v{V_T0}, 15, v{V_T0}", [V_T0], [V_T0]))
        a(V(f"v_xor_b32 v{V_T0}, v{V_T0}, v{V_T5}", [V_T0, V_T5], [V_T0]))
        a(V(f"v_lshl_add_u32 v{V_VA+lam}, v{V_T0}, 4, v{V_T1}", [V_T0, V_T1], [V_VA+lam]))
    a(V(f"v_xor_b32 v{V_T0}, v{V_N}, v{V_G}", [V_N, V_G], [V_T0]))
    a(V(f"v_lshlrev_b32 v{V_T0}, 4, v{V_T0}", [V_T0], [V_T0]))
    a(V(f"v_lshl_add_u32 v{V_KD}, v{V_G}, 8, v{V_T0}", [V_G, V_T0], [V_KD]))
    for j in range(1, 4):
        a(V(f"v_xor_b32 v{V_KD+j}, {64*j}, v{V_KD}", [V_KD], [V_KD+j]))
    a(V(f"v_lshlrev_b32 v{V_T0}, 1, v{V_G}", [V_G], [V_T0]))
    a(V(f"v_xor_b32 v{V_T0}, v{V_N}, v{V_T0}", [V_N, V_T0], [V_T0]))
    a(V(f"v_lshlrev_b32 v{V_T0}, 4, v{V_T0}", [V_T0], [V_T0]))
    a(V(f"v_lshl_add_u32 v{V_VD}, v{V_G}, 8, v{V_T0}", [V_G, V_T0], [V_VD]))
    a(V(f"v_xor_b32 v{V_VD+1}, 128, v{V_VD}", [V_VD], [V_VD+1]))
    a(V(f"v_lshrrev_b32 v{V_T0}, 1, v{V_G}", [V_G], [V_T0]))
    a(V(f"v_add_u32 v{V_T0}, s{S_T1}, v{V_T0}", [V_T0, ('s', S_T1)], [V_T0]))
    a(V(f"v_xor_b32 v{V_T0}, v{V_T0}, v{V_N}", [V_T0, V_N], [V_T0]))
    a(V(f"v_lshlrev_b32 v{V_T0}, 4, v{V_T0}", [V_T0], [V_T0]))
    a(V(f"v_lshl_add_u32 v{V_T0}, v{V_N}, 8, v{V_T0}", [V_N, V_T0], [V_T0]))
    a(V(f"v_and_b32 v{V_T1}, 1, v{V_G}", [V_G], [V_T1]))
    a(V(f"v_lshl_add_u32 v{V_T0}, v{V_T1}, 3, v{V_T0}", [V_T0, V_T1], [V_T0]))
    a(V(f"v_add_u32 v{V_QW}, {QBUF}, v{V_T0}", [V_T0], [V_QW]))
    a(V(f"v_xor_b32 v{V_QW+1}, 32, v{V_QW}", [V_QW], [V_QW+1]))
    a(V(f"v_lshl_add_u32 v{V_CW}, v{V_LANE}, 4, s{S_W8K}", [V_LANE, ('s', S_W8K)], [V_CW]))
    a(V(f"v_add_u32 v{V_CW+1}, {64*KB}, v{V_CW}", [V_CW], [V_CW+1]))
    a(S(f"s_add_u32 s{S_T0}, s{S_W8K}, {102*KB}", [S_W8K], [S_T0]))
    a(V(f"v_lshl_add_u32 v{V_LW}, v{V_LANE}, 5, s{S_T0}", [V_LANE, ('s', S_T0)], [V_LW]))
    a(S(f"s_mul_i32 s{S_T0}, s{S_B}, 640", [S_B], [S_T0]))
    a(S(f"s_lshl_b32 s{S_T2}, s{S_HQ}, 2", [S_HQ], [S_T2]))
    a(S(f"s_add_u32 s{S_T0}, s{S_T0}, s{S_T2}", [S_T0, S_T2], [S_T0]))
    a(S(f"s_add_u32 s{S_T0}, s{S_T0}, s{S_W}", [S_T0, S_W], [S_T0]))
    a(S(f"s_lshl_b32 s{S_T0}, s{S_T0}, 10", [S_T0], [S_T0]))
    a(V(f"v_lshl_add_u32 v{V_OST}, v{V_LANE}, 4, s{S_T0}", [V_LANE, ('s', S_T0)], [V_OST]))
    a(V(f"v_cmp_eq_u32 vcc, 0, v{V_N}", [V_N], [VCC]))
    a(V(f"v_mov_b32 v{V_T0}, 0x3f803f80", [], [V_T0]))
    for i in range(4):
        a(V(f"v_cndmask_b32 v{V_ONES+i}, 0, v{V_T0}, vcc", [V_T0, VCC], [V_ONES+i]))
    for i in range(20):
        a(V(f"v_mov_b32 v{V_NEGM+i}, 0", [], [V_NEGM+i]))
    return o[:n_early], o[n_early:]

V_QACC = V_VF
def AF(kap):
    return [(100, 120), (128, 148), (208, 156)][kap % 3]
def a_reads(kap):
    u, ks = kap >> 1, kap & 1
    c, s = u >> 1, kap & 3
    xf, wf = AF(kap)
    wb = WU(WSLOT[u], ks)
    xr = []
    for q in range(5):
        xb = XU(c, q)
        reg, base = (V_XA, 0) if xb < 64 * KB else (V_XB, 120 * KB)
        xr.append(dsrd('ds_read_b128', ('v', xf + q * 4), 4, reg + s, xb - base))
    wr = []
    for e in range(2):
        for h in range(2):
            reg, base = (V_WA, 40 * KB) if wb < 96 * KB else (V_WB, 96 * KB)
            wr.append(dsrd('ds_read_b64_tr_b16', ('v', wf + e * 4 + h * 2), 2, reg + e, wb - base + h * 1024))
    return wr[:2] + xr[:1] + wr[2:] + xr[1:]
def a_mfmas(kap):
    o = []
    xf, wf = AF(kap)
    for q in range(5):
        for e in range(2):
            d = ('v', V_QACC + (e * 5 + q) * 4)
            o.append(mfma(d, ('v', wf + e * 4), ('v', xf + q * 4), 0 if kap == 0 else d))
    return o
def lane0(sg, body, lab):
    sg.text(f"s_cmp_lg_u32 s{S_W}, 0"); sg.text(f"s_cbranch_scc1 {lab}")
    sg.text(f"s_mov_b64 s[{S_EX}:{S_EX+1}], exec"); sg.text("s_mov_b64 exec, 1")
    for x in body: sg.text(x)
    sg.text(f"s_mov_b64 exec, s[{S_EX}:{S_EX+1}]")
    sg.text(f"{lab}:")
def phase_a(sg, Q):
    stamp(sg, 1)
    sg.add(barrier(needvm=[('x', 0), ('w', 0)])); Q.mark('B0')
    stamp(sg, 2)
    sg.addall(a_reads(0)); sg.addall(a_reads(1))
    sg.add(S(f"s_mov_b32 s{S_T1}, {f2h(QSCALE)}", [], [S_T1]))
    sg.add(S(f"s_mov_b32 s{S_T2}, {f2h(QSCALE)}", [], [S_T2]))
    for kap in range(14 if int(opt.aq) else 16):
        mf = a_mfmas(kap)
        gaps = [[] for _ in mf]
        nx = kap + 2
        if nx < 16:
            if nx % 2 == 0:
                u = nx >> 1
                need = [('x', u >> 1), ('w', u)]
                while any(it.ins.vmtag in need for it in Q.q):
                    n_ = len(Q.q); weave(sg, Q, [], 1, 0); assert len(Q.q) < n_, (u, Q.q[0].after)
                while True:
                    younger = 0
                    for tg, _w in reversed(sg.vm):
                        if tg in need: break
                        younger += 1
                    n_ = len(Q.q)
                    if younger >= int(opt.la): break
                    weave(sg, Q, [], 1, 0)
                    if len(Q.q) == n_: break
                dr = str(u) in str(opt.drain)
                sg.add(barrier(needvm=need, lg0=dr)); Q.mark(f'B{u}')
                if dr: Q.mark(f'B{u+1}')
                if u in (1, 3, 5, 7): stamp(sg, 5 + u // 2, 'A')
            for i, r in enumerate(a_reads(nx)): gaps[i].append(r)
        mf[0].r |= set(R('v', AF(kap)[0], 20) + R('v', AF(kap)[1], 8))
        pos = [1, 5, 9] if kap % 2 == 0 else [3, 7]
        if int(opt.perstep) == 6: pos = [1, 4, 7] if kap % 2 == 0 else [1, 4, 8]
        if int(opt.perstep) == 7: pos = [1, 4, 6, 9] if kap % 2 == 0 else [2, 5, 8]
        if int(opt.perstep) == 8: pos = [1, 4, 6, 9]
        nkv = sum(1 for it in Q.q if it.ins.vmtag[0] in 'kv')
        room = int(opt.alim) - (128 - nkv) + (len(Q.q) - nkv)
        place(gaps, Q, pos[:max(0, room)])
        if int(opt.aonly): sg.addall([x for x in interleave(mf, gaps) if x.k not in ('mfma', 'dsrd')])
        else: sg.addall(interleave(mf, gaps))
    def qfin(q, e, packed):
        b = V_QACC + (e * 5 + q) * 4
        if packed: f_ = [V(f"v_pk_mul_f32 v[{b+r}:{b+r+1}], v[{b+r}:{b+r+1}], s[{S_T1}:{S_T1+1}]", [b+r, b+r+1], [b+r, b+r+1]) for r in (0, 2)]
        else: f_ = [V(f"v_mul_f32 v{b+r}, s{S_T1}, v{b+r}", [b+r], [b+r]) for r in range(4)]
        f_.append(V(f"v_cvt_pk_bf16_f32 v{b}, v{b}, v{b+1}", [b, b+1], [b]))
        f_.append(V(f"v_cvt_pk_bf16_f32 v{b+1}, v{b+2}, v{b+3}", [b+2, b+3], [b+1]))
        f_.append(dswr('ds_write_b64', V_QW + e, ('v', b), 2, q * 4096, lgtag='qw'))
        return f_
    todo = [(q, e) for q in range(5) for e in range(2)]
    if int(opt.aq):
        m14, m15 = a_mfmas(14), a_mfmas(15)
        m14[0].r |= set(R('v', AF(14)[0], 20) + R('v', AF(14)[1], 8))
        mf = flat([[m14[k], m15[k]] for k in range(10)])
        gaps = [[] for _ in mf]
        gi = 5
        while todo and gi + 3 <= 19:
            f_ = qfin(*todo.pop(0), False)
            gaps[gi] += f_[0:2]; gaps[gi + 1] += f_[2:4]; gaps[gi + 2] += f_[4:6]; gaps[gi + 3] = [f_[6]] + gaps[gi + 3]
            gi += 3
        nkv = sum(1 for it in Q.q if it.ins.vmtag[0] in 'kv')
        place(gaps, Q, [1, 4][:max(0, int(opt.alim) - (128 - nkv))])
        sg.addall(interleave(mf, gaps))
    stamp(sg, 9, 'A')
    for q, e in todo: sg.addall(qfin(q, e, True))
    while any(it.ins.vmtag in (('k', 0, 0), ('k', 0, 1)) for it in Q.q): weave(sg, Q, [], 1, 0)
    b = barrier(lg0=False); b.needlg = ('qw',)
    sg.addall(k_reads(0)); Q.mark(('kr', 0, 0)); Q.mark(('kr', 0, 1))
    sg.add(b); Q.mark('BQ'); Q.mark('B8')
    qr = [dsrd('ds_read_b128', AQ(q, s), 4, V_XB + s, QBUF - 120 * KB + q * 4096) for q in range(5) for s in range(4)]
    return qr

def TQ(tau):
    return divmod(tau, 5) if tau < 30 else (6 + ((tau - 30) & 1), (tau - 30) >> 1)
def qk(tau):
    i, q = TQ(tau)
    o = []
    for s, t in ([(s, t) for t in range(2) for s in range(4)] if int(opt.chain) else [(s, t) for s in range(4) for t in range(2)]):
        if True:
            d = ('v', V_S + (tau & 1) * 8 + t * 4)
            o.append(mfma(d, KF(i, t * 4 + s), AQ(q, s), ('v', V_NEGM + q * 4) if s == 0 else d))
    return o
def pv(tau):
    i, q = TQ(tau)
    p = ('v', V_P + (tau & 1) * 4)
    o = [mfma(AO(lam, q), ('v', V_VF + (i & 1) * 32 + lam * 4), p, AO(lam, q) if i else 0) for lam in range(8)]
    o.insert(0, mfma(LA(q), ('v', V_ONES), p, LA(q) if i else 0))
    return o
def sm(tau):
    b = V_S + (tau & 1) * 8
    p = V_P + (tau & 1) * 4
    e = [T(f"v_exp_f32 v{b+i}, v{b+i}", [b+i], [b+i]) for i in range(8)]
    c = [V(f"v_cvt_pk_bf16_f32 v{p+i}, v{b+2*i}, v{b+2*i+1}", [b+2*i, b+2*i+1], [p+i]) for i in range(4)]
    return e, c
def comb_writes(q):
    o = []
    for jd in range(1, 4):
        for e in range(2):
            u = q * 6 + (jd - 1) * 2 + e
            row = u >> 3
            o.append(dswr('ds_write_b128', V_CW + (row >> 1), AO(2 * jd + e, q), 4, (row & 1) * 32 * KB + (u & 7) * KB, lgtag=('cw', q)))
    o.insert(0, dswr('ds_write_b32', V_LW, LA(q), 1, [0, 4, 16, 20, 24][q], lgtag=('cw', q)))
    return o

def wo_dma(pos, after=None):
    o = []
    for ks in range(4):
        for half in range(2):
            base = (128 * KB if pos < 0 else pos * 32 * KB) + ks * 8 * KB + half * 4 * KB
            if pos < 0:
                pre = [S(f"s_lshl_b32 s{S_SK}, s{S_J}, 17", [S_J], [S_SK])] if ks + half == 0 else []
                h = S_SK
            else: pre, h = [], S_H + pos
            pre += [S(f"s_add_u32 s{S_SO}, s{h}, {ks*32768 + half*16384}", [h], [S_SO]), S(f"s_add_u32 m0, s{S_W1K}, {base}", [S_W1K], [M0])]
            o.append(Item(pre, dma(V_WOD, S_WO, S_SO, 0, ('wo', pos)), after))
    return o
def osib_dma(pos):
    o = []
    for q in range(5):
        pre = [S(f"s_lshr_b32 s{S_SK}, s{S_H+pos}, 5", [S_H+pos], [S_SK])] if q == 0 else []
        pre += [S(f"s_add_u32 s{S_SO}, s{S_SK}, {q*128*KB}", [S_SK], [S_SO]), S(f"s_add_u32 m0, s{S_W5K}, {(140 - 20*pos + q)*KB}", [S_W5K], [M0])]
        o.append(Item(pre, dma(V_OD, S_O, S_SO, 0, ('os', pos), flags=' sc1')))
    return o
def tail_calc():
    o = []; a = o.append
    T0, T1, T2 = 252, 253, 254
    a(V(f"v_lshlrev_b32 v{T0}, 4, v{V_LANE}", [V_LANE], [T0]))
    for jd in range(1, 4):
        a(S(f"s_sub_u32 s{S_T0}, s{S_W}, {jd}", [S_W], [S_T0]))
        a(S(f"s_and_b32 s{S_T0}, s{S_T0}, 3", [S_T0], [S_T0]))
        a(S(f"s_lshl_b32 s{S_T0}, s{S_T0}, 13", [S_T0], [S_T0]))
        a(V(f"v_add_u32 v{V_CR+2*(jd-1)}, s{S_T0}, v{T0}", [T0, ('s', S_T0)], [V_CR+2*(jd-1)]))
        a(V(f"v_add_u32 v{V_CR+2*(jd-1)+1}, {64*KB}, v{V_CR+2*(jd-1)}", [V_CR+2*(jd-1)], [V_CR+2*(jd-1)+1]))
    a(V(f"v_add_u32 v{V_OL}, {96*KB}, v{T0}", [T0], [V_OL]))
    a(V(f"v_add_u32 v{V_OW}, s{S_W5K}, v{V_OL}", [V_OL, ('s', S_W5K)], [V_OW]))
    a(S(f"s_mov_b32 s{S_T0}, {102*KB}", [], [S_T0]))
    a(V(f"v_lshl_add_u32 v{V_LR}, v{V_N}, 5, s{S_T0}", [V_N, ('s', S_T0)], [V_LR]))
    a(S(f"s_add_u32 s{S_T0}, s{S_W8K}, {64*KB}", [S_W8K], [S_T0]))
    for e in range(2):
        a(V(f"v_subrev_u32 v{V_WT+e}, s{S_T0}, v{V_VA+e}", [V_VA+e, ('s', S_T0)], [V_WT+e]))
        a(V(f"v_add_u32 v{V_WT+2+e}, {64*KB}, v{V_WT+e}", [V_WT+e], [V_WT+2+e]))
        a(V(f"v_add_u32 v{V_WT+4+e}, {128*KB}, v{V_WT+e}", [V_WT+e], [V_WT+4+e]))
    a(S(f"s_lshl_b32 s{S_T0}, s{S_J}, 12", [S_J], [S_T0]))
    a(V(f"v_subrev_u32 v{V_OD}, s{S_T0}, v{V_OST}", [V_OST, ('s', S_T0)], [V_OD]))
    a(S(f"s_lshl_b32 s{S_T0}, s{S_B}, 2", [S_B], [S_T0]))
    a(S(f"s_add_u32 s{S_T0}, s{S_T0}, s{S_J}", [S_T0, S_J], [S_T0]))
    a(V(f"v_and_b32 v{T1}, 7, v{V_LANE}", [V_LANE], [T1]))
    a(S(f"s_lshl_b32 s{S_T0}, s{S_T0}, 2", [S_T0], [S_T0]))
    a(S(f"s_add_u32 s{S_T0}, s{S_T0}, s{S_W}", [S_T0, S_W], [S_T0]))
    a(S(f"s_mul_i32 s{S_T0}, s{S_T0}, {5*8*KB}", [S_T0], [S_T0]))
    a(S(f"s_lshl_b32 s{S_T2}, s{S_HKV}, 10", [S_HKV], [S_T2]))
    a(S(f"s_add_u32 s{S_T2}, s{S_T2}, s{S_T0}", [S_T2, S_T0], [S_T2]))
    a(V(f"v_add_u32 v{V_PS}, s{S_T2}, v{T0}", [T0, ('s', S_T2)], [V_PS]))
    a(V(f"v_lshl_add_u32 v{T1}, s{S_HKV}, 3, v{T1}", [T1, ('s', S_HKV)], [T1]))
    a(V(f"v_lshrrev_b32 v{T2}, 3, v{V_LANE}", [V_LANE], [T2]))
    a(V(f"v_lshl_add_u32 v{V_PLD}, v{T1}, 4, s{S_T0}", [T1, ('s', S_T0)], [V_PLD]))
    a(V(f"v_lshl_add_u32 v{V_PLD}, v{T2}, 13, v{V_PLD}", [T2, V_PLD], [V_PLD]))
    a(V(f"v_lshlrev_b32 v{T2}, 14, v{T2}", [T2], [T2]))
    a(V(f"v_and_b32 v{T0}, 15, v{T1}", [T1], [T0]))
    a(V(f"v_lshl_add_u32 v{T2}, v{T0}, 10, v{T2}", [T0, T2], [T2]))
    a(V(f"v_lshrrev_b32 v{T1}, 4, v{T1}", [T1], [T1]))
    a(V(f"v_lshl_add_u32 v{T2}, v{T1}, 3, v{T2}", [T1, T2], [T2]))
    a(S(f"s_mul_i32 s{S_T0}, s{S_B}, 81920", [S_B], [S_T0]))
    a(S(f"s_lshl_b32 s{S_T2}, s{S_J}, 8", [S_J], [S_T2]))
    a(S(f"s_add_u32 s{S_T0}, s{S_T0}, s{S_T2}", [S_T0, S_T2], [S_T0]))
    a(S(f"s_lshl_b32 s{S_T2}, s{S_W}, 6", [S_W], [S_T2]))
    a(S(f"s_add_u32 s{S_T0}, s{S_T0}, s{S_T2}", [S_T0, S_T2], [S_T0]))
    a(V(f"v_add_u32 v{V_OUT}, s{S_T0}, v{T2}", [T2, ('s', S_T0)], [V_OUT]))
    a(V(f"v_cmp_gt_u32 vcc, 40, v{V_LANE}", [V_LANE], [VCC]))
    a(V(f"v_mov_b32 v{T0}, 0x7ff00000", [], [T0]))
    a(V(f"v_cndmask_b32 v{V_PLD}, v{T0}, v{V_PLD}, vcc", [T0, V_PLD, VCC], [V_PLD]))
    a(V(f"v_cndmask_b32 v{V_OUT}, v{T0}, v{V_OUT}, vcc", [T0, V_OUT, VCC], [V_OUT]))
    for k in range(5): a(S(f"s_mov_b32 s{S_TAB+k}, {k*8192}", [], [S_TAB+k]))
    return o
def wod_calc():
    o = []; a = o.append
    T0, T1 = 252, 253
    a(S(f"s_lshl_b32 s{S_T0}, s{S_B}, 2", [S_B], [S_T0]))
    a(S(f"s_add_u32 s{S_T0}, s{S_T0}, s{S_W}", [S_T0, S_W], [S_T0]))
    a(S(f"s_lshl_b32 s{S_T0}, s{S_T0}, 14", [S_T0], [S_T0]))
    a(S(f"s_lshl_b32 s{S_T2}, s{S_J}, 8", [S_J], [S_T2]))
    a(S(f"s_add_u32 s{S_T0}, s{S_T0}, s{S_T2}", [S_T0, S_T2], [S_T0]))
    a(V(f"v_bfe_u32 v{T0}, v{V_LANE}, 1, 4", [V_LANE], [T0]))
    a(V(f"v_and_b32 v{T1}, 1, v{V_LANE}", [V_LANE], [T1]))
    a(V(f"v_lshlrev_b32 v{T1}, 7, v{T1}", [T1], [T1]))
    a(V(f"v_lshl_add_u32 v{T0}, v{T0}, 10, v{T1}", [T0, T1], [T0]))
    a(V(f"v_add_u32 v{V_TCH}, s{S_T0}, v{T0}", [T0, ('s', S_T0)], [V_TCH]))
    a(S(f"s_and_b32 s{S_T0}, s{S_W}, 1", [S_W], [S_T0]))
    a(S(f"s_lshl_b32 s{S_T0}, s{S_T0}, 3", [S_T0], [S_T0]))
    a(V(f"v_lshl_add_u32 v{T0}, v{V_G}, 1, s{S_T0}", [V_G, ('s', S_T0)], [T0]))
    a(V(f"v_xor_b32 v{T0}, v{V_N}, v{T0}", [V_N, T0], [T0]))
    a(S(f"s_lshl_b32 s{S_T0}, s{S_J}, 8", [S_J], [S_T0]))
    a(V(f"v_lshl_add_u32 v{T0}, v{T0}, 4, s{S_T0}", [T0, ('s', S_T0)], [T0]))
    a(V(f"v_lshl_add_u32 v{T1}, s{S_W}, 2, v{V_G}", [V_G, ('s', S_W)], [T1]))
    a(V(f"v_lshl_add_u32 v{V_WOD}, v{T1}, 10, v{T0}", [T0, T1], [V_WOD]))
    return o

def phase_b(sg, Q, qr):
    NT = 8
    calc = wod_calc() + tail_calc()
    sg.addall(qr[:4])
    qr = qr[4:]
    for tau in range(-1, 40):
        i, q = divmod(tau, 5) if tau >= 0 else (-1, 4)
        mf = []
        bst = [int(x) for x in opt.bst.split(',')]
        if tau in bst: stamp(sg, 5 + bst.index(tau), 'B')
        if tau + 1 < 40: mf += qk(tau + 1)
        if tau - 1 >= 0: mf += pv(tau - 1)
        ds, marks = [], []
        if tau == -1: ds = qr
        elif tau == 0: ds = v_reads(0); marks = [('vr', 0, 0), ('vr', 0, 1)]
        elif tau < 27:
            if q == 2: ds = k_reads(i + 1)[:4]; marks = [('kr', i + 1, 0)]
            if q == 3: ds = k_reads(i + 1)[4:] + v_reads(i + 1)[:2]; marks = [('kr', i + 1, 1)]
            if q == 4: ds = v_reads(i + 1)[2:8]; marks = [('vr', i + 1, 0)]
            if q == 0: ds = v_reads(i)[8:14]
            if q == 1 and i > 0: ds = v_reads(i)[14:]; Q.mark(('vr', i, 1))
        xp = None
        if tau >= 27:
            k6, k7, v6, v7 = k_reads(6), k_reads(7), v_reads(6), v_reads(7)
            vo = [v7[l + 8 * h] for l in range(8) for h in range(2)]
            G = [1, 3, 5, 7, 9, 11, 13, 15, 16]
            def cwp(q_, second):
                w_ = comb_writes(q_)
                if int(opt.w64) and q_ < 2:
                    h_ = []
                    for x in w_[1:]:
                        m_ = re.match(r"ds_write_b128 v(\d+), a\[(\d+):\d+\] offset:(\d+)", x.t)
                        for z in range(2): h_.append(dswr('ds_write_b64', int(m_.group(1)), ('a', int(m_.group(2)) + 2 * z), 2, int(m_.group(3)) + 8 * z, lgtag=x.lgtag))
                    return list(zip([1, 3, 5, 9, 13, 16], h_[6:])) if second else list(zip([7, 1, 3, 5, 9, 13, 16], [w_[0]] + h_[:6]))
                return list(zip([1, 9, 13], w_[4:])) if second else list(zip([7, 1, 9, 13], w_[:4]))
            xp = {27: list(zip([3, 5, 9, 11, 15, 16], k6[:4] + v6[:2])),
                  28: list(zip([1, 3, 5, 7, 9, 11, 13, 15, 16], k6[4:] + k7[:5])),
                  29: list(zip(G, k7[5:] + v6[2:8])),
                  30: list(zip([1, 3, 5, 7, 9, 11, 13, 15, 16, 16], v6[8:] + vo[:2])),
                  31: list(zip([1, 1, 3, 5, 5, 7, 9, 9, 11, 13, 13, 15, 16, 16], vo[2:])),
                  32: [], 33: cwp(0, 0), 34: cwp(0, 1), 35: cwp(1, 0), 36: cwp(1, 1), 37: cwp(2, 0),
                  38: cwp(2, 1) + list(zip([3, 5, 5, 7, 11, 15, 16, 16], lreads((0, 1)) + preads(0)[:4])),
                  39: list(zip([0, 2, 4, 6], comb_writes(3)[:4])) + list(zip([1, 1, 3, 3, 5, 5, 7, 7], preads(0)[4:] + preads(1)))}[tau]
            ds = [x for _, x in xp]; marks = []
            if tau == 38:
                b = barrier(needvm=[('wo', -1)], lg0=False); b.needlg = (('cw', 0), ('cw', 1)); sg.add(b)
        n = len(mf)
        gaps = [[] for _ in range(n)]
        e, c = sm(tau) if 0 <= tau < 40 else ([], [])
        if n == 17:
            epos = [0, 2, 4, 6, 8, 10, 12, 14]; cpos = [3, 7, 11, 15]
            dpos = [1, 3, 5, 7, 9, 11, 13, 15] if len(ds) > 4 else [1, 3, 5, 7]
            if ds and ds[0].k == 'dswr': dpos = [1, 1, 3, 7, 9, 13, 16]
            vpos = [1, 5, 9, 13] if (tau < int(opt.even_at) or q == 1) else [1, 7, 13]
            if int(opt.bsched) and not (ds and ds[0].k == 'dswr'):
                if q == 1: dpos, vpos = [1, 3], [5, 9, 13, 16]
                elif tau < int(opt.even_at): dpos, vpos = [3, 7, 11, 15, 16, 16], [1, 5, 9, 13]
                else: dpos, vpos = [3, 5, 9, 11, 15, 16], [1, 7, 13]
        else:
            epos = list(range(8)); cpos = [min(n - 1, x) for x in (2, 4, 6, 8)]
            dpos = [(k * n) // max(1, len(ds)) for k in range(len(ds))]
            vpos = [1, 5]
        if xp is not None:
            dpos = [g_ for g_, _ in xp]; vpos = [7, 11, 15] if tau >= 32 else [13]
            if tau == 27: vpos = [1, 7, 13]
        for x, p_ in zip(ds, dpos): gaps[p_].append(x)
        if tau == int(opt.nl_at):
            sg.add(V("v_mov_b32 v9, 0", [], [9]))
            Q.q.insert(0, Item([], vload(('v', V_GC), 2, 9, S_D, None, 0, flags=' sc1', tag='non')))
        if tau == int(opt.nc_at):
            assert not any(it.ins.vmtag == 'non' for it in Q.q)
            sg.add(V(f"v_readfirstlane_b32 s{S_NON}, v{V_GC}", [V_GC], [('s', S_NON)]))
            sg.add(V(f"v_readfirstlane_b32 s{S_NON+1}, v{V_GC+1}", [V_GC+1], [('s', S_NON+1)]))
            sg.add(S(f"s_cmp_eq_u64 s[{S_NON}:{S_NON+1}], 0", [S_NON, S_NON+1], []))
            sg.text("s_cbranch_scc1 L_spin_n"); sg.text("L_back_n:")
        if tau == int(opt.bar_at): sg.add(barrier(lg0=False))
        for x in ds:
            while any(it.ins.vmtag in x.needvm for it in Q.q): weave(sg, Q, [], 1, 0)
        if tau == int(opt.tch_at): Q.push([Item([], vload(('v', V_TCH + 1), 1, V_TCH, S_WO, None, 0, flags=opt.tch_flags))])
        if tau == int(opt.tlb_at):
            assert not calc
            Q.push([Item([S(f"s_mov_b32 s{S_SO}, {q*256*KB}", [], [S_SO])], vload(('v', 72 + q // 2), 1, V_OD, S_O, S_SO, 0, flags=' sc1')) for q in (0, 2)]
                   + [Item([], vload(('v', 74), 1, V_PLD, S_WT, None, 0, flags=' sc1')), Item([], vload(('v', 75), 1, V_OUT, S_OUT, None, 0, flags=' sc1')),
                      Item([S(f"s_add_u32 s{S_SO}, s{S_F1}, 64", [S_F1], [S_SO])], vload(('v', 254), 1, V_ZERO, S_C, S_SO, 0, flags=' sc1'))])
        if tau == int(opt.wo_at): assert not calc; Q.push(wo_dma(-1))
        place(gaps, Q, vpos)
        for x, p_ in zip(e, epos): gaps[p_].append(x)
        for x, p_ in zip(c, cpos): gaps[p_].append(x)
        if tau >= int(opt.calc_at) and n == 17:
            for gi in range(17):
                if calc and calc[0].k == 'salu' and not any(y.k == 'salu' for y in gaps[gi]): gaps[gi].insert(0, calc.pop(0))
                cost = sum(8 if y.k == 'trans' else 0 if y.k == 'salu' else 4 for y in gaps[gi])
                while calc and calc[0].k != 'salu' and cost <= 4: gaps[gi].append(calc.pop(0)); cost += 4
        sg.addall(interleave(mf, gaps))
        for m in marks: Q.mark(m)

def poll(sg, lab, vaddr):
    sg.text(f"s_mov_b32 s{S_SPIN}, {opt.spin}")
    sg.text(f"{lab}:")
    sg.text(f"buffer_load_dwordx2 v[250:251], v{vaddr}, s[{S_C}:{S_C+3}], 0 offen sc1")
    sg.text(f"s_sub_u32 s{S_SPIN}, s{S_SPIN}, 1")
    sg.text("s_waitcnt vmcnt(0)")
    sg.text(f"v_cmp_ne_u64 vcc, s[{S_NON}:{S_NON+1}], v[250:251]")
    sg.text(f"s_cmp_eq_u32 s{S_SPIN}, 0")
    sg.text(f"s_cbranch_scc1 {lab}_done")
    sg.text("s_nop 2")
    sg.text(f"s_cbranch_vccnz {lab}")
    sg.text(f"{lab}_done:")
    sg.vm = []
def raise_flag(sg, stage, lab):
    n, sh = (4, 7) if stage == 1 else (8, 9)
    sg.text(f"s_cmp_lg_u32 s{S_W}, 0"); sg.text(f"s_cbranch_scc1 {lab}")
    sg.text(f"s_mov_b64 s[{S_EX}:{S_EX+1}], exec"); sg.text(f"s_mov_b64 exec, {(1 << n) - 1 if n < 7 else '0xff'}")
    for x in [f"v_lshl_add_u32 v9, v{V_LANE}, {sh}, s{S_G1 if stage == 1 else S_G2}", f"v_mov_b32 v250, s{S_NON}", f"v_mov_b32 v251, s{S_NON+1}",
              f"buffer_store_dwordx2 v[250:251], v9, s[{S_C}:{S_C+3}], 0 offen{opt.f1_flags if stage == 1 else ' sc1'}"]: sg.text(x)
    sg.text(f"s_mov_b64 exec, s[{S_EX}:{S_EX+1}]")
    sg.text(f"{lab}:")
WOF = A_Q
RES = 100
def part(q, k):
    if q == 0: return 36 + 4 * k if k < 4 else 64 + 4 * (k - 4)
    return {1: 100, 2: 164, 3: 188, 4: 100}[q] + 4 * k
def preads(q):
    o = []
    for jd in range(1, 4):
        for e in range(2):
            k = (jd - 1) * 2 + e; u = q * 6 + k; row = u >> 3
            o.append(dsrd('ds_read_b128', ('v', part(q, k)), 4, V_CR + 2 * (jd - 1) + (row >> 1), (row & 1) * 32 * KB + (u & 7) * KB))
    return o
LSA, LSB = 124, 76
def lreads(qs):
    if qs == (0, 1): return [dsrd('ds_read_b64', ('v', LSA + src * 2), 2, V_LR, src * 8 * KB) for src in range(4)]
    return [dsrd('ds_read_b128', ('v', LSB + src * 4), 4, V_LR, src * 8 * KB + 16) for src in range(4)]
def lsum(qs):
    w = []
    def lr(src, q): return LSA + src * 2 + q if q < 2 else LSB + src * 4 + q - 2
    LS = lr(0, qs[0])
    for q in qs:
        d = V_T0 + q
        w.append(V(f"v_add_f32 v{d}, v{lr(0,q)}, v{lr(1,q)}", [lr(0,q), lr(1,q)], [d]))
        w.append(V(f"v_add_f32 v{lr(2,q)}, v{lr(2,q)}, v{lr(3,q)}", [lr(2,q), lr(3,q)], [lr(2,q)]))
        w.append(V(f"v_add_f32 v{d}, v{d}, v{lr(2,q)}", [d, lr(2,q)], [d]))
    a_, b_, c_ = V_T0 + qs[0], V_T0 + qs[1], V_T0 + qs[-1]
    w.append(V(f"v_min3_f32 v{LS}, v{a_}, v{b_}, v{c_}", [a_, b_, c_], [LS]))
    w.append(V(f"v_add_f32 v{LS+1}, v{a_}, v{b_}", [a_, b_], [LS+1]))
    w.append(V(f"v_add_f32 v{LS+1}, v{LS+1}, v{c_}", [LS+1, c_], [LS+1]))
    w.append(V(f"v_cmp_nle_f32 vcc, {f2h(2.0**int(opt.lo_exp))}, v{LS}", [LS], [VCC]))
    w.append(S(f"s_mov_b64 s[{S_EX}:{S_EX+1}], vcc", [VCC], [S_EX, S_EX+1]))
    w.append(V(f"v_cmp_nge_f32 vcc, {f2h(2.0**int(opt.hi_exp))}, v{LS+1}", [LS+1], [VCC]))
    w.append(S(f"s_or_b64 vcc, vcc, s[{S_EX}:{S_EX+1}]", [VCC, S_EX, S_EX+1], [VCC]))
    w.append(S(f"s_and_b64 vcc, vcc, s[{S_GM}:{S_GM+1}]", [VCC], [VCC]))
    w.append(raw("s_cbranch_vccnz L_redo"))
    for q in qs: w.append(T(f"v_rcp_f32 v{V_T0+q}, v{V_T0+q}", [V_T0+q], [V_T0+q]))
    return w
def finish(q):
    w = []
    for e in range(2):
        o_ = V_OWN[q] + e * 4
        for jd in range(1, 4):
            p_ = part(q, (jd - 1) * 2 + e)
            for r in (0, 2):
                w.append(V(f"v_pk_add_f32 v[{o_+r}:{o_+r+1}], v[{o_+r}:{o_+r+1}], v[{p_+r}:{p_+r+1}]", [o_+r, o_+r+1, p_+r, p_+r+1], [o_+r, o_+r+1]))
    o_ = V_OWN[q]
    ri = V_T0 + (q & ~1); sel = "op_sel:[0,1] op_sel_hi:[1,1]" if q & 1 else "op_sel:[0,0] op_sel_hi:[1,0]"
    for r in range(0, 8, 2):
        w.append(V(f"v_pk_mul_f32 v[{o_+r}:{o_+r+1}], v[{o_+r}:{o_+r+1}], v[{ri}:{ri+1}] {sel}", [o_+r, o_+r+1, V_T0+q], [o_+r, o_+r+1]))
    for r in range(4):
        w.append(V(f"v_cvt_pk_bf16_f32 v{o_+r}, v{o_+2*r}, v{o_+2*r+1}", [o_+2*r, o_+2*r+1], [o_+r]))
    w.append(S(f"s_mov_b32 s{S_SV}, {q*128*KB}", [], [S_SV]))
    w.append(vstore(('v', o_), 4, V_OST, S_O, S_SV, 0, flags=opt.o_flags, tag='ost'))
    return w
def wor():
    return [dsrd('ds_read_b64_tr_b16', ('a', WOF + (ks * 2 + e) * 4 + h * 2), 2, V_WT + 4 + e, ks * 8 * KB + h * 4096) for ks in range(4) for e in range(2) for h in range(2)]
def combine(sg, Q):
    assert not Q.q
    mf = pv(39); gaps = [[] for _ in mf]
    wr = comb_writes(3)[4:]; ls = lsum((0, 1))
    for k, x in enumerate(wr): gaps[3 * k].append(x)
    k = 0
    for gi in range(9):
        n_ = 2 - len(gaps[gi])
        while ls and (n_ > 0 or ls[0].k == 'salu') and gi < 9:
            x = ls.pop(0); gaps[gi].append(x)
            n_ -= 0 if x.k == 'salu' else 2 if x.k == 'trans' else 1
    sg.addall(interleave(mf, gaps))
    stamp(sg, 4)
    w4 = comb_writes(4)
    w = ls + finish(0) + finish(1)
    for k, x in enumerate(w4): w.insert(min(len(w), 6 + k * 6), x)
    sg.addall(w)
    sg.add(barrier())
    stamp(sg, 5)
    Q.push(wo_dma(0))
    rd = lreads((2, 3, 4)) + preads(2) + preads(3)
    weave(sg, Q, rd, int(opt.cw), 2)
    sg.addall(rd)
    w = lsum((2, 3, 4)) + preads(4) + finish(2) + finish(3) + finish(4)
    for k, x in enumerate(wor()): w.insert(30 + 3 * k, x)
    sg.addall(w)
    stamp(sg, 6)

def phase_c(sg, Q):
    a = sg.add
    ACC = 164
    a(barrier())
    stamp(sg, 5, 'D')
    for q in range(5): a(dswr('ds_write_b128', V_OW, ('v', V_OWN[q]), 4, q * KB))
    Q.push(wo_dma(1) + wo_dma(2))
    weave(sg, Q, [], int(opt.shadow), 0)
    stamp(sg, 6, 'D')
    a(barrier(needvm=['ost']))
    stamp(sg, 7, 'D')
    stamp(sg, 7)
    raise_flag(sg, 1, "L_sig1")
    def CF(k): return [(100, 120), (64, 84), (204, 36)][k % 3]
    def c_reads(k):
        pos, ks = divmod(k, 4); pos -= 1
        xf, wf = CF(k)
        ob = 0 if pos < 0 else (44 - 20 * pos) * KB
        xr = [dsrd('ds_read_b128', ('v', xf + q * 4), 4, V_OL, ob + (ks * 5 + q) * KB) for q in range(5)]
        if pos < 0: return xr
        wb = (pos * 4 + ks) * 8 * KB
        wr = [dsrd('ds_read_b64_tr_b16', ('v', wf + e * 4 + h * 2), 2, V_WT + (2 if wb >= 64 * KB else 0) + e, (wb % (64 * KB)) + h * 4096) for e in range(2) for h in range(2)]
        return wr[:2] + xr[:1] + wr[2:] + xr[1:]
    def c_mfmas(k):
        xf, wf = CF(k)
        ff = 'v'
        if k < 4: wf, ff = WOF + k * 8, 'a'
        o = []
        for q in range(5):
            for e in range(2):
                d = ('v', ACC + (q * 2 + e) * 4)
                o.append(mfma(d, (ff, wf + e * 4), ('v', xf + q * 4), 0 if k == 0 else d))
        o[0].r |= set(R('v', xf, 20) + R(ff, wf, 8))
        return o
    def step(k, nx, pos=()):
        mf = c_mfmas(k); gaps = [[] for _ in mf]
        if nx is not None:
            for i, r in enumerate(c_reads(nx)): gaps[i].append(r)
        place(gaps, Q, pos)
        sg.addall(interleave(mf, gaps))
    def own_steps():
        for k in range(4): step(k, k + 2 if k < 2 else None, [1, 5, 9] if k % 2 == 0 else [3, 7])
    sg.addall(c_reads(0)); sg.addall(c_reads(1))
    held = []
    if int(opt.ownlate) == 2: held = Q.q; Q.q = []
    elif int(opt.ownlate): weave(sg, Q, [], len(Q.q), 0)
    else: own_steps()
    assert not Q.q
    stamp(sg, 8, 'D')
    t = [f"s_mov_b32 s{S_SPIN}, {opt.spin}", "L_poll1:", f"s_load_dwordx8 s[4:11], s[{S_C}:{S_C+1}], s{S_F1} glc", f"s_sub_u32 s{S_SPIN}, s{S_SPIN}, 1", "s_waitcnt lgkmcnt(0)",
         f"s_cmp_eq_u32 s{S_SPIN}, 0", "s_cbranch_scc1 L_poll1_done"]
    for h in range(4): t += [f"s_cmp_lg_u64 s[{4+2*h}:{5+2*h}], s[{S_NON}:{S_NON+1}]", "s_cbranch_scc1 L_poll1"]
    t += ["L_poll1_done:"]
    if int(opt.p1w): t = [f"s_cmp_lg_u32 s{S_W}, 0", "s_cbranch_scc1 L_poll1_done"] + t + ["s_waitcnt lgkmcnt(0)", "s_barrier"]
    for x in t: sg.text(x)
    sg.lg = []
    stamp(sg, 9, 'D')
    stamp(sg, 5, 'E')
    stamp(sg, 8)
    Q.push(osib_dma(0) + osib_dma(1) + held)
    if int(opt.ownlate):
        weave(sg, Q, [], 5, 0); own_steps()
    weave(sg, Q, [], len(Q.q), 0)
    stamp(sg, 6, 'E')
    a(barrier(needvm=[('os', 0), ('wo', 0), ('wo', 1)]))
    stamp(sg, 7, 'E')
    Q.push(osib_dma(2))
    sg.addall(c_reads(4)); sg.addall(c_reads(5))
    def pfin(q):
        b = ACC + q * 8
        return [V(f"v_cvt_pk_bf16_f32 v{b+r}, v{b+2*r}, v{b+2*r+1}", [b+2*r, b+2*r+1], [b+r]) for r in range(4)] + [vstore(('v', b), 4, V_PS, S_WT, S_TAB + q, 0, flags=' sc1', tag='pst')]
    last = 16 - (2 if int(opt.qmaj) else 0)
    for k in range(4, last):
        nx = k + 2 if k + 2 < 16 else None
        if nx in (8, 12):
            assert not Q.q or nx == 8
            a(barrier(needvm=[('os', nx // 4 - 1), ('wo', nx // 4 - 1)], lg0=False))
            stamp(sg, 8 if nx == 8 else 9, 'E')
        step(k, nx, [1, 5, 9] if k % 2 == 0 else [3, 7])
    if int(opt.qmaj):
        m14, m15 = c_mfmas(14), c_mfmas(15)
        m15[0].r -= set(R('v', CF(15)[0] + 4, 16))
        mf = flat([[m14[2*q], m15[2*q], m14[2*q+1], m15[2*q+1]] for q in range(5)])
        gaps = [[] for _ in mf]
        for q in range(4):
            f_ = pfin(q)
            g0 = 4 * q + 6
            if g0 + 2 < 20:
                gaps[g0] += f_[0:2]; gaps[g0 + 1] += f_[2:4]; gaps[g0 + 2] += f_[4:]
        sg.addall(interleave(mf, gaps))
        stamp(sg, 9)
        sg.addall(pfin(3) + pfin(4))
    else:
        stamp(sg, 9)
        for q in range(5): sg.addall(pfin(q))
    a(barrier(needvm=['pst'], lg0=False))
    stamp(sg, 5, '2')
    raise_flag(sg, 2, "L_sig2")
    a(S(f"s_mov_b32 s{S_SO}, 4096", [], [S_SO]))
    a(S(f"s_mov_b32 s{S_T1}, 0xffff0000", [], [S_T1]))
    PB, SM, U = 100, 140, 148
    def pl(h): return vload(('v', PB + 4 * h), 4, V_PLD, S_WT, S_SO if h >= 4 else None, (h & 3) * 1024, flags=' sc1')
    t = [f"s_mov_b32 s{S_SPIN}, {opt.spin}", f"s_mov_b32 s{S_T2}, 0", "L_poll2:", f"s_load_dwordx16 s[4:19], s[{S_C}:{S_C+1}], s{S_F2} glc", f"s_sub_u32 s{S_SPIN}, s{S_SPIN}, 1",
         "s_waitcnt lgkmcnt(0)", f"s_cmp_eq_u32 s{S_SPIN}, 0", "s_cbranch_scc1 L_poll2_done"]
    for h in range(8):
        t += [f"s_cmp_lg_u64 s[{4+2*h}:{5+2*h}], s[{S_NON}:{S_NON+1}]", f"s_cbranch_scc1 L_g{h}", f"s_bitcmp1_b32 s{S_T2}, {h}", f"s_cbranch_scc1 L_g{h}",
              f"s_bitset1_b32 s{S_T2}, {h}", pl(h).t, f"L_g{h}:"]
    t += [f"s_cmp_lg_u32 s{S_T2}, 0xff", "s_cbranch_scc1 L_poll2", "L_poll2_done:"]
    if int(opt.p2w):
        t = [f"s_cmp_lg_u32 s{S_W}, 0", "s_cbranch_scc1 L_poll2_done", f"s_mov_b32 s{S_SPIN}, {opt.spin}", "L_poll2:", f"s_load_dwordx16 s[4:19], s[{S_C}:{S_C+1}], s{S_F2} glc",
             f"s_sub_u32 s{S_SPIN}, s{S_SPIN}, 1", "s_waitcnt lgkmcnt(0)", f"s_cmp_eq_u32 s{S_SPIN}, 0", "s_cbranch_scc1 L_poll2_done"]
        for h in range(8): t += [f"s_cmp_lg_u64 s[{4+2*h}:{5+2*h}], s[{S_NON}:{S_NON+1}]", "s_cbranch_scc1 L_poll2"]
        t += ["L_poll2_done:", "s_barrier"] + [pl(h).t for h in range(8)]
    for x in t: sg.text(x)
    stamp(sg, 6, '2')
    sg.drain()
    for h in range(8):
        d = SM if h == 0 else U
        for r in range(4):
            a(V(f"v_lshlrev_b32 v{d+2*r}, 16, v{PB+4*h+r}", [PB+4*h+r], [d+2*r]))
            a(V(f"v_and_b32 v{d+2*r+1}, s{S_T1}, v{PB+4*h+r}", [PB+4*h+r], [d+2*r+1]))
        if h:
            for r in range(0, 8, 2):
                a(V(f"v_pk_add_f32 v[{SM+r}:{SM+r+1}], v[{SM+r}:{SM+r+1}], v[{U+r}:{U+r+1}]", [SM+r, SM+r+1, U+r, U+r+1], [SM+r, SM+r+1]))
    for r in range(4):
        a(V(f"v_cvt_pk_bf16_f32 v{SM+r}, v{SM+2*r}, v{SM+2*r+1}", [SM+2*r, SM+2*r+1], [SM+r]))
    a(vstore(('v', SM), 2, V_OUT, S_OUT, None, 0, flags=opt.out_flags))
    a(vstore(('v', SM + 2), 2, V_OUT, S_OUT, None, 32, flags=opt.out_flags))

def out_of_line():
    t = []
    t += ["L_spin_n:", f"s_mov_b32 s{S_SPIN}, {opt.spin}", "L_spin_n1:",
          f"buffer_load_dwordx2 v[{V_GC}:{V_GC+1}], v9, s[{S_D}:{S_D+3}], 0 offen sc1", f"s_sub_u32 s{S_SPIN}, s{S_SPIN}, 1", "s_waitcnt vmcnt(0)",
          f"v_readfirstlane_b32 s{S_NON}, v{V_GC}", f"v_readfirstlane_b32 s{S_NON+1}, v{V_GC+1}", f"s_cmp_eq_u32 s{S_SPIN}, 0", "s_cbranch_scc1 L_back_n", "s_nop 2",
          f"s_cmp_eq_u64 s[{S_NON}:{S_NON+1}], 0", "s_cbranch_scc1 L_spin_n1", "s_branch L_back_n"]
    t += ["L_redo:", f"s_mov_b64 s[{S_GM}:{S_GM+1}], 0", f"s_mov_b32 s{S_REDO}, 1",
          "s_waitcnt vmcnt(0) lgkmcnt(0)", "s_barrier"]
    sg = Seg()
    p1 = prologue1()
    a = sg.add
    a(V(f"v_lshl_add_u32 v{V_T0}, s{S_W}, 2, v{V_G}", [V_G], [V_T0]))
    a(V(f"v_xor_b32 v{V_T1}, v{V_N}, v{V_T0}", [V_N, V_T0], [V_T1]))
    a(V(f"v_lshlrev_b32 v{V_T1}, 4, v{V_T1}", [V_T1], [V_T1]))
    a(V(f"v_lshl_add_u32 v{V_XD}, v{V_T0}, 10, v{V_T1}", [V_T0, V_T1], [V_XD]))
    a(S(f"s_and_b32 s{S_T0}, s{S_W}, 2", [S_W], [S_T0]))
    a(S(f"s_lshl_b32 s{S_T0}, s{S_T0}, 2", [S_T0], [S_T0]))
    a(V(f"v_lshl_add_u32 v{V_T1}, v{V_G}, 1, s{S_T0}", [V_G], [V_T1]))
    a(V(f"v_xor_b32 v{V_T1}, v{V_N}, v{V_T1}", [V_N, V_T1], [V_T1]))
    a(V(f"v_lshlrev_b32 v{V_T1}, 4, v{V_T1}", [V_T1], [V_T1]))
    a(V(f"v_lshl_add_u32 v{V_WD}, v{V_T0}, 13, v{V_T1}", [V_T0, V_T1], [V_WD]))
    t += sg.out + ["s_nop 4", "s_branch L_restart"]
    sg = Seg(); a = sg.add
    sg.text("L_max:")
    sg.text(f"s_mov_b32 s{S_SPIN}, m0")
    sg.drain()
    sg.text("s_barrier")
    MX, KF, AD = 76, V_VF, 84
    for q in range(5): a(V(f"v_mov_b32 v{MX+q}, 0xff800000", [], [MX+q]))
    for s in range(4): a(V(f"v_add_u32 v{AD+s}, {96*KB}, v{V_KA+s}", [V_KA+s], [AD+s]))
    a(S(f"s_mov_b32 s{S_T2}, 0", [], [S_T2]))
    sg.text("L_max_loop:"); sg.reset_hist()
    for j in range(8):
        if j % 4 == 0:
            a(S(f"s_add_u32 s{S_T1}, s{S_T2}, {(j>>2)*4096}", [S_T2], [S_T1]))
            a(S(f"s_add_u32 m0, s{S_W8K}, {96*KB + (j>>2)*4096}", [S_W8K], [M0]))
        a(dma(V_KD + (j & 3), S_K, S_T1, 1024 * (j & 3), 'mk'))
    for t_ in range(2):
        for s in range(4):
            a(dsrd('ds_read_b128', ('v', KF + (t_ * 4 + s) * 4), 4, AD + s, t_ * 4096, needvm=['mk']))
    for q in range(5):
        for t_ in range(2):
            d = ('v', 88 + t_ * 4)
            for s in range(4): a(mfma(d, ('v', KF + (t_ * 4 + s) * 4), AQ(q, s), 0 if s == 0 else d))
        for k in range(4):
            a(V(f"v_max3_f32 v{MX+q}, v{MX+q}, v{88+2*k}, v{89+2*k}", [MX+q, 88+2*k, 89+2*k], [MX+q]))
    sg.drain()
    a(S(f"s_add_u32 s{S_T2}, s{S_T2}, 8192", [S_T2], [S_T2]))
    sg.text(f"s_cmp_lt_u32 s{S_T2}, 65536"); sg.text("s_nop 4"); sg.text("s_cbranch_scc1 L_max_loop")
    sg.text("s_barrier")
    a(S(f"s_mul_i32 s{S_T0}, s{S_W}, 1280", [S_W], [S_T0]))
    a(S(f"s_add_u32 s{S_T0}, s{S_T0}, {96*KB}", [S_T0], [S_T0]))
    a(V(f"v_lshl_add_u32 v{AD}, v{V_LANE}, 2, s{S_T0}", [V_LANE], [AD]))
    a(S(f"s_mov_b32 s{S_T0}, {96*KB}", [], [S_T0]))
    a(V(f"v_lshl_add_u32 v{AD+1}, v{V_N}, 2, s{S_T0}", [V_N], [AD+1]))
    for q in range(5): a(dswr('ds_write_b32', AD, ('v', MX + q), 1, q * 256))
    a(barrier())
    for q in range(5):
        for k in range(16):
            a(dsrd('ds_read_b32', ('v', KF + k), 1, AD + 1, (k >> 2) * 1280 + q * 256 + (k & 3) * 64))
        for k in range(8):
            a(V(f"v_max3_f32 v{MX+q}, v{MX+q}, v{KF+2*k}, v{KF+2*k+1}", [MX+q, KF+2*k, KF+2*k+1], [MX+q]))
        for r in range(4):
            a(V(f"v_sub_f32 v{V_NEGM+q*4+r}, 0, v{MX+q}", [MX+q], [V_NEGM+q*4+r]))
    sg.drain()
    sg.text("s_barrier"); sg.text(f"s_mov_b32 m0, s{S_SPIN}"); sg.text("s_nop 4"); sg.text("s_branch L_back_max")
    return t + sg.out

def stamp_out(sg, n):
    if not opt.stamps: return
    stamp(sg, n - 1)
    t = ["s_load_dwordx2 s[4:5], s[0:1], 56", "s_waitcnt lgkmcnt(0)", f"s_add_u32 s4, s4, {16<<20}", "s_addc_u32 s5, s5, 0", "s_and_b32 s5, s5, 0xffff",
         "s_mov_b32 s6, 0x100000", "s_mov_b32 s7, 0x20000", "s_lshl_b32 s8, s2, 2", "s_add_u32 s8, s8, s32", "s_lshl_b32 s8, s8, 6", "v_mov_b32 v2, s8"]
    for i in range(n):
        t += [f"v_mov_b32 v3, s{3 if i == 0 else 76+2*i}", f"buffer_store_dword v3, v2, s[4:7], 0 offen offset:{4*i}"]
    for x in t: sg.text(x)

def kernel():
    sg = Seg()
    sg.text(NAME + "_kernel:")
    sg.text("s_cmp_ge_u32 s2, 256")
    sg.text("s_cbranch_scc1 L_end")
    if opt.stamps:
        stamp(sg, 0)
    p1 = prologue1()
    sg.addall(p1[:2])
    if int(opt.cpf):
        for x in ["s_getpc_b64 s[94:95]", "L_pc:", "s_lshr_b32 s3, s2, 3", "v_lshrrev_b32 v8, 6, v0", "v_and_b32 v9, 1, v0", "v_lshl_add_u32 v8, v8, 1, v9",
                  "v_lshl_add_u32 v8, s3, 3, v8", "v_lshlrev_b32 v8, 7, v8", "v_min_u32 v8, (L_code_end - L_pc - 4) & 0xffffff80, v8"] + (["global_load_dword v255, v8, s[94:95]"] if int(opt.cpf) == 1 else ["s_mov_b64 s[12:13], s[94:95]"]): sg.text(x)
    sg.addall(p1[2:])
    if opt.stamps:
        sg.text("s_mov_b32 s3, s76")
    p2 = prologue2()
    Q = Queue()
    first = x_dma(0) + w_dma(0)
    stamp(sg, 5, 'P')
    Q.push(first)
    weave(sg, Q, [], 9, 0)
    if int(opt.cpf) == 2: sg.text("global_load_dword v255, v8, s[12:13]")
    stamp(sg, 6, 'P')
    sg.addall(p2)
    stamp(sg, 7, 'P')
    sg.text("s_cmp_lg_u32 s2, 0"); sg.text("s_cbranch_scc1 L_nocz")
    lane0(sg, ["v_mov_b32 v9, 0", f"s_memrealtime s[{S_NON}:{S_NON+1}]", "s_waitcnt lgkmcnt(0)", f"s_or_b32 s{S_NON}, s{S_NON}, 1", f"v_mov_b32 v250, s{S_NON}", f"v_mov_b32 v251, s{S_NON+1}",
               f"buffer_store_dwordx2 v[250:251], v9, s[{S_D}:{S_D+3}], 0 offen sc1"], "L_nocz")
    sg.text("s_branch L_first")
    sg.text("L_restart:")
    s2 = Seg(); s2.addall(restart_setup()); Q2 = Queue(); Q2.push(x_dma(0) + w_dma(0)); weave(s2, Q2, [], 9, 0)
    for x in s2.out: sg.text(x)
    sg.text("L_first:")
    early, late = prologue3()
    early = early + late
    def BB(u): return f"B{u + 1}"
    Q.push(w_dma(1) + x_dma(1) + w_dma(2) + w_dma(3) + x_dma(2) + w_dma(4) + ((w_dma(5, 'B2') + x_dma(3)) if int(opt.la) else (x_dma(3) + w_dma(5, 'B2'))) + w_dma(6, 'B3') + w_dma(7, 'B4')
           + kv_dma('k', 0, 'B5') + kv_dma('v', 0, 'B6') + kv_dma('k', 1, 'B8') + kv_dma('v', 1, 'BQ'))
    for i in range(2, 8):
        if not int(opt.nodma): Q.push(kv_dma('k', i) + kv_dma('v', i))
    n0 = int(opt.n0) - 9
    weave(sg, Q, early, n0, (len(early) + n0 - 1) // n0)
    sg.addall(early)
    qr = phase_a(sg, Q)
    sg.addall(qr[:0])
    stamp(sg, 3)
    sg.text(f"s_cmp_eq_u32 s{S_REDO}, 0"); sg.text("s_cbranch_scc1 L_back_max")
    s2 = Seg(); s2.addall(qr)
    for x in s2.out: sg.text(x)
    sg.text("s_branch L_max")
    sg.text("L_back_max:")
    phase_b(sg, Q, qr)
    combine(sg, Q)
    phase_c(sg, Q)
    sg.text("L_fin:")
    stamp_out(sg, 11)
    sg.text("L_end:")
    sg.text("s_endpgm")
    return sg.out + ['L_code_end:'] + out_of_line()

def report_kernel():
    idx, mode = opt.report.split(',')
    if mode == 'next':
        return ["report_kernel:", "s_cmp_ge_u32 s2, 1", "s_cbranch_scc1 L3_end", "s_memrealtime s[12:13]", "s_load_dwordx2 s[4:5], s[0:1], 56", "s_waitcnt lgkmcnt(0)",
                f"s_add_u32 s4, s4, {17<<20}", "s_addc_u32 s5, s5, 0", "s_and_b32 s5, s5, 0xffff", "s_mov_b32 s6, 64", "s_mov_b32 s7, 0x20000", "v_mov_b32 v1, 0", "v_mov_b32 v2, s12",
                "buffer_store_dword v2, v1, s[4:7], 0 offen", "L3_end:", "s_endpgm"]
    t = ["report_kernel:", "s_cmp_ge_u32 s2, 1", "s_cbranch_scc1 L3_end", "s_load_dwordx2 s[4:5], s[0:1], 56", "s_waitcnt lgkmcnt(0)",
         f"s_add_u32 s4, s4, {16<<20}", "s_addc_u32 s5, s5, 0", "s_and_b32 s5, s5, 0xffff", "s_mov_b32 s6, 0x100000", "s_mov_b32 s7, 0x20000",
         "v_lshlrev_b32 v1, 8, v0", f"buffer_load_dword v2, v1, s[4:7], 0 offen offset:{4*int(idx)}", "buffer_load_dword v3, v1, s[4:7], 0 offen",
         "v_mov_b32 v4, 0", "v_mov_b32 v5, 0", "v_mov_b32 v6, -1", "ds_write_b32 v4, v5", "ds_write_b32 v4, v6 offset:8", "s_waitcnt vmcnt(0) lgkmcnt(0)", "s_barrier",
         "ds_min_u32 v4, v3 offset:8", "s_waitcnt lgkmcnt(0)", "s_barrier", "ds_read_b32 v6, v4 offset:8", "s_waitcnt lgkmcnt(0)", "v_sub_u32 v2, v2, v6",
         "v_lshrrev_b32 v7, 3, v0", "v_mul_u32_u24 v7, 52, v7", "v_lshrrev_b32 v7, 8, v7", "v_and_b32 v8, 1, v0", "v_sub_u32 v8, 6, v8", "v_cmp_lt_u32 vcc, v7, v8",
         "v_min_u32 v2, 10000, v2",
         ("ds_add_u32 v4, v2" if mode == 'mean' else "ds_max_u32 v4, v2"), "s_waitcnt lgkmcnt(0)", "s_barrier", "ds_read_b32 v6, v4", "s_memrealtime s[12:13]", "s_waitcnt lgkmcnt(0)",
         "v_readfirstlane_b32 s10, v6", "s_nop 4"]
    if mode == 'mean': t += ["s_mul_i32 s10, s10, 10", "s_lshr_b32 s10, s10, 8"]
    elif mode == 'max': t += ["s_mul_i32 s10, s10, 10"]
    else: t += ["s_mov_b32 s10, 0"]
    t += ["L3_spin:", "s_memrealtime s[14:15]", "s_waitcnt lgkmcnt(0)", "s_sub_u32 s14, s14, s12",
          "s_cmp_lt_u32 s14, s10", "s_cbranch_scc1 L3_spin", "L3_end:", "s_endpgm"]
    return t

def build():
    def fmt(l): return "\n".join(x if x.endswith(':') else "    " + x for x in l)
    nm = NAME + "_kernel"
    s = "; @launch grid=(256,1,1) block=(256,1,1) lds=163840\n"
    if opt.report:
        s = f"; @launch kernel={nm} grid=(256,1,1) block=(256,1,1) lds=163840\n; @launch kernel=report_kernel grid=(1,1,1) block=(256,1,1) lds=64\n"
    s += '.amdgcn_target "amdgcn-amd-amdhsa--gfx950"\n.text\n'
    s += f".globl {nm}\n.p2align 8\n.type {nm},@function\n" + fmt(kernel()) + "\n"
    if opt.report: s += ".globl report_kernel\n.p2align 8\n.type report_kernel,@function\n" + fmt(report_kernel()) + "\n"
    s += f""".section .rodata,"a"
.p2align 6
.amdhsa_kernel {nm}
  .amdhsa_next_free_vgpr 512
  .amdhsa_next_free_sgpr 102
  .amdhsa_accum_offset 256
  .amdhsa_group_segment_fixed_size 0
  .amdhsa_kernarg_size 64
  .amdhsa_user_sgpr_count 2
  .amdhsa_user_sgpr_kernarg_segment_ptr 1
  .amdhsa_system_sgpr_workgroup_id_x 1
  .amdhsa_float_denorm_mode_32 3
.end_amdhsa_kernel
"""
    if opt.report:
        s += """.p2align 6
.amdhsa_kernel report_kernel
  .amdhsa_next_free_vgpr 32
  .amdhsa_next_free_sgpr 32
  .amdhsa_accum_offset 32
  .amdhsa_group_segment_fixed_size 0
  .amdhsa_kernarg_size 64
  .amdhsa_user_sgpr_count 2
  .amdhsa_user_sgpr_kernarg_segment_ptr 1
  .amdhsa_system_sgpr_workgroup_id_x 1
.end_amdhsa_kernel
"""
    return s

if __name__ == '__main__':
    out = sys.argv[1] if len(sys.argv) > 1 else 'cdna_kernels/' + NAME + '.s'
    for a_ in sys.argv[2:]:
        k, v = a_.split('=', 1)
        setattr(opt, k, (' ' + v) if k.endswith('flags') and v else v)
    txt = build()
    open(out, 'w').write(txt)
```

```python
import sys, struct, re
from dsl import *

KB = 1024
NAME = 'standalone__gqa_block_cached__near_ridge'
def f2h(x): return hex(struct.unpack('<I', struct.pack('<f', x))[0])
QSCALE = 1.4426950408889634 / (128 ** 0.5)
WS_WO = 8 << 20
WS_CT = 12 << 20

class Opt:
    stamps = ''
    report = ''
    kv_flags = ''
    a_flags = ''
    n0 = 22
    warm = 1
    perstep = 6
    lo_exp = -40
    hi_exp = 40
    spin = 300000
    rt_at = 5
    bar_at = 12
    nodma = 0
    kvnt = 'x'
    ant = ''
    tch_flags = ''
    wsb = 0
    drain = '45'
    tlb_at = 99
    aonly = 0
    la = 10
    aq = 1
    ownlate = 1
    o_flags = ' sc1'
    f1_flags = ' sc1'
    w64 = 0
    out_flags = ''
    bsched = 1
    p1w = 1
    p2w = 0
    pollk = '19,29,39'
    dyn2 = 1
    qmaj = 1
    tch_at = 27
    even_at = 99
    pdepth = 1
    kvo = 4
    finw = 0
    alim = 16
    cpf = 1
    chain = 1
    wo_at = 35
    calc_at = 16
    nl_at = 8
    nc_at = 13
    cw = 8
    shadow = 6
    bst = '0,5,10,15,20'
    no_rt = 0
    clk = 'r'
    lg0 = 0
    vpos = '1,5,9,13'
    rot_kv = 1
    rot_a = 2
    rot_c = 1
    gl_at = 29
    gc_at = 33
opt = Opt()

S_X, S_WQ, S_K, S_V, S_O, S_WO, S_WT, S_WL, S_C, S_D, S_OUT = 4, 8, 12, 16, 20, 24, 28, 52, 56, 60, 64
S_W, S_B, S_HKV, S_HQ = 32, 33, 34, 35
S_W1K, S_W8K, S_SO, S_T0, S_T1, S_T2, S_SK, S_SV = 36, 37, 38, 39, 40, 41, 42, 43
S_TAB = 44
S_REDO, S_MT, S_NT, S_VALID, S_RT, S_SPIN = 68, 69, 70, 71, 72, 73
S_EX = 74
S_F1, S_F2, S_G1, S_G2 = 100, 101, 72, 51
S_GM = 70
S_J_UNUSED = 3
S_P = 76
S_ST = 80
V_LANE, V_N, V_G, V_T0, V_T1, V_T2, V_T3, V_T4, V_T5 = 1, 2, 3, 4, 5, 6, 7, 8, 9
V_KA, V_VA, V_KD, V_VD = 10, 14, 22, 26
V_OST, V_CW, V_LW = 28, 29, 31
V_ONES, V_NEGM, V_L, V_S, V_P, V_KF, V_VF = 32, 36, 56, 76, 92, 100, 164
V_XA, V_XB, V_WA, V_WB, V_XD, V_WD, V_QW = 228, 232, 236, 238, 240, 241, 242
V_GC = 250
S_NON = 96
V_CR, V_LR, V_WOD, V_WT, V_OL, V_OW, V_OD, V_PS, V_PLD, V_OUT, V_P1, V_P2 = 228, 234, 235, 236, 242, 243, 244, 245, 246, 247, 248, 249
V_ZERO = 9
V_TCH = 64
S_H = 52
S_W5K = 55
S_J = 69
A_O, A_Q = 0, 160
V_OWN = [132, 140, 148, 156, 56]
A_KF1, A_L = 120, 240
def AO(lam, q):
    if lam < 2: return ('v', V_OWN[q] + 4 * lam)
    return ('a', A_O + 4 * (q * 6 + lam - 2))
def KF(i, k): return ('v', V_KF + 4 * k) if i % 2 == 0 else ('a', A_KF1 + 4 * k)
def LA(q): return ('a', A_L + 4 * q) if q < 4 else ('a', 152)
def AQ(q, s): return ('a', A_Q + 4 * (q * 4 + s))

def XU(c, q):
    if c == 0: return q * 4 * KB
    if c == 1: return 20 * KB + q * 4 * KB
    if c == 2: return 128 * KB + q * 4 * KB
    return [120, 124, 148, 152, 156][q] * KB
def WU(slot, ks):
    return {0: [40, 48], 1: [56, 96], 2: [104, 112], 3: [64, 72], 4: [80, 88]}[slot][ks] * KB
WSLOT = [0, 1, 2, 3, 4, 0, 1, 2]
QBUF = 128 * KB

def V(t, r=(), w=()):
    return valu(t, r=[('v', x) if isinstance(x, int) else x for x in r], w=[('v', x) if isinstance(x, int) else x for x in w])
def T(t, r=(), w=()):
    return valu(t, r=[('v', x) for x in r], w=[('v', x) for x in w], trans=True)
def S(t, r=(), w=()):
    return salu(t, r=[('s', x) if isinstance(x, int) else x for x in r], w=[('s', x) if isinstance(x, int) else x for x in w])
M0 = ('m0', 0)
VCC = ('vcc', 0)
def flat(l): return [x for y in l for x in y]

def srd(dst, plo, add_s=None, add_imm=0, size=0):
    o = []
    if add_s is not None:
        o.append(S(f"s_add_u32 s{dst}, s{plo}, s{add_s}", [plo, add_s], [dst]))
        o.append(S(f"s_addc_u32 s{dst+1}, s{plo+1}, 0", [plo+1], [dst+1]))
        o.append(S(f"s_and_b32 s{dst+1}, s{dst+1}, 0xffff", [dst+1], [dst+1]))
    elif add_imm:
        o.append(S(f"s_add_u32 s{dst}, s{plo}, {add_imm}", [plo], [dst]))
        o.append(S(f"s_addc_u32 s{dst+1}, s{plo+1}, 0", [plo+1], [dst+1]))
        o.append(S(f"s_and_b32 s{dst+1}, s{dst+1}, 0xffff", [dst+1], [dst+1]))
    else:
        o.append(S(f"s_mov_b32 s{dst}, s{plo}", [plo], [dst]))
        o.append(S(f"s_and_b32 s{dst+1}, s{plo+1}, 0xffff", [plo+1], [dst+1]))
    if isinstance(size, str):
        o.append(S(f"s_mov_b32 s{dst+2}, {size}", [int(size[1:])], [dst+2]))
    else:
        o.append(S(f"s_mov_b32 s{dst+2}, {size}", [], [dst+2]))
    o.append(S(f"s_mov_b32 s{dst+3}, 0x20000", [], [dst+3]))
    return o

KV_ORDER = [[0, 2, 1, 3, 4, 6, 5, 7], [0, 1, 3, 2, 4, 5, 7, 6], [1, 0, 2, 4, 3, 5, 6, 7], [1, 0, 2, 3, 5, 4, 6, 7]]
KV_ORDERS = [KV_ORDER,
  [[0, 4, 1, 2, 3, 5, 6, 7], [1, 0, 5, 2, 3, 4, 6, 7], [2, 0, 1, 6, 3, 4, 5, 7], [3, 0, 1, 2, 7, 4, 5, 6]],
  [[0, 1, 2, 3, 4, 5, 6, 7], [0, 1, 2, 3, 4, 5, 6, 7], [4, 5, 6, 7, 0, 1, 2, 3], [4, 5, 6, 7, 0, 1, 2, 3]],
  [[0, 2, 1, 3, 5, 4, 6, 7], [1, 0, 3, 2, 4, 6, 5, 7], [2, 1, 0, 4, 3, 5, 7, 6], [0, 1, 2, 3, 5, 4, 6, 7]],
  [[0, 1, 2, 4, 3, 5, 6, 7], [1, 0, 2, 3, 5, 4, 6, 7], [2, 0, 1, 3, 4, 6, 5, 7], [0, 1, 3, 2, 4, 5, 7, 6]],
  [[0, 1, 4, 2, 3, 5, 6, 7], [1, 0, 2, 5, 3, 4, 6, 7], [2, 0, 1, 3, 6, 4, 5, 7], [0, 3, 1, 2, 4, 7, 5, 6]],
  [[0, 1, 3, 2, 4, 5, 7, 6], [0, 1, 2, 4, 3, 5, 6, 7], [0, 2, 1, 3, 5, 4, 6, 7], [0, 2, 1, 3, 4, 6, 5, 7]],
  [[0, 1, 2, 4, 3, 5, 6, 7], [1, 0, 3, 2, 5, 4, 6, 7], [2, 3, 0, 1, 4, 6, 5, 7], [3, 2, 1, 0, 4, 5, 7, 6]],
  [[0, 1, 2, 4, 3, 5, 6, 7], [1, 2, 0, 3, 5, 4, 6, 7], [2, 0, 1, 3, 4, 6, 5, 7], [0, 3, 1, 2, 4, 5, 7, 6]]]
def kv_pack(j):
    o = KV_ORDERS[int(opt.kvo)][j] if int(opt.rot_kv) else list(range(8))
    return sum(t << (4 * i) for i, t in enumerate(o))
S_KVO = 98
V_XD4 = 204
S_WC = 99

class Item:
    def __init__(s, pre, ins, after=None): s.pre, s.ins, s.after = pre, ins, after
def x_dma(c, after=None):
    return [Item([S(f"s_add_u32 m0, s{S_W1K}, {XU(c,q)}", [S_W1K], [M0])],
                 dma(V_XD4 + c, S_X, S_TAB + q, 0, ('x', c), flags=(' nt' if 'x' in opt.ant and c < 2 else opt.a_flags)), after) for q in range(5)]
def w_dma(u, after=None):
    o = []
    for k in range(4):
        pre = []
        if k == 0:
            pre.append(S(f"s_add_u32 s{S_SK}, s{S_WC}, {(u & 6) << 19}", [S_WC], [S_SK]))
            pre.append(S(f"s_and_b32 s{S_SK}, s{S_SK}, {7 << 19}", [S_SK], [S_SK]))
            if u & 1: pre.append(S(f"s_xor_b32 s{S_SK}, s{S_SK}, {1 << 19}", [S_SK], [S_SK]))
        pre.append(S(f"s_add_u32 s{S_SO}, s{S_SK}, {k*131072}", [S_SK], [S_SO]))
        pre.append(S(f"s_add_u32 m0, s{S_W1K}, {WU(WSLOT[u], k>>1) + (k&1)*4*KB}", [S_W1K], [M0]))
        o.append(Item(pre, dma(V_WD, S_WQ, S_SO, 0, ('w', u), flags=(' nt' if 'w' in opt.ant and u < 4 else opt.a_flags)), after))
    return o
def kv_dma(kind, i, after=None):
    o = []
    base = (i & 1) * 32 * KB + (0 if kind == 'k' else 64 * KB)
    sr, so = (S_K, S_SK) if kind == 'k' else (S_V, S_SV)
    for j in range(8):
        pre = []
        if j % 4 == 0:
            if j == 0:
                pre.append(S(f"s_bfe_u32 s{so}, s{S_KVO}, {hex((3 << 16) | (4 * i))}", [S_KVO], [so]))
                pre.append(S(f"s_lshl_b32 s{so}, s{so}, 13", [so], [so]))
            else:
                pre.append(S(f"s_add_u32 s{so}, s{so}, 4096", [so], [so]))
            pre.append(S(f"s_add_u32 m0, s{S_W8K}, {base + (j>>2)*4096}", [S_W8K], [M0]))
        va = V_KD + (j & 3) if kind == 'k' else V_VD + (j & 1)
        tag = (kind + 'r', i - 2, j >> 2)
        o.append(Item(pre, dma(va, sr, so, 1024 * (j & 3), (kind, i, j >> 2), needlg=[tag], flags=(' nt' if str(i) in str(opt.kvnt) else opt.kv_flags)), after if i < 2 else tag))
    return o
def k_reads(i):
    return [dsrd('ds_read_b128', KF(i, t * 4 + s), 4, V_KA + s, (i & 1) * 32 * KB + t * 4096,
                 needvm=[('k', i, t)], lgtag=('kr', i, t)) for t in range(2) for s in range(4)]
def v_reads(i):
    return [dsrd('ds_read_b64_tr_b16', ('v', V_VF + (i & 1) * 32 + lam * 4 + h * 2), 2, V_VA + lam, (i & 1) * 32 * KB + h * 4096,
                 needvm=[('v', i, h)], lgtag=('vr', i, h)) for h in range(2) for lam in range(8)]

class Queue:
    def __init__(s): s.q = []; s.pts = set()
    def push(s, items): s.q += items
    def mark(s, p): s.pts.add(p)
    def pop(s):
        if s.q and (s.q[0].after is None or s.q[0].after in s.pts): return s.q.pop(0)
        return None

def place(gaps, Q, pos):
    last = -1
    for p in pos:
        if p >= len(gaps): continue
        it = Q.pop()
        if it is None: break
        pre = list(it.pre)
        avail = list(range(last + 1, p))
        front = []
        if not avail: front = pre
        else:
            slots = [[] for _ in avail]
            for k_, x in enumerate(reversed(pre)):
                slots[max(0, len(avail) - 1 - k_)].insert(0, x)
            for g, sl in zip(avail, slots):
                k_ = 0
                while k_ < len(gaps[g]) and gaps[g][k_].k == 'salu': k_ += 1
                gaps[g][k_:k_] = sl
        k = 0
        while k < len(gaps[p]) and gaps[p][k].k == 'salu': k += 1
        gaps[p][k:k] = front + [it.ins]
        last = p
def weave(sg, Q, fill, n, per):
    for _ in range(n):
        it = Q.pop()
        if it is not None: sg.addall(it.pre + [it.ins])
        for _ in range(per):
            if fill: sg.add(fill.pop(0))

NST = 12
def stamp(sg, i, grp='1'):
    if not opt.stamps: return
    if 5 <= i <= 9 and grp != opt.stamps: return
    sg.text(f"{'s_memtime' if opt.clk == 'c' else 's_memrealtime'} s[{76+2*i}:{77+2*i}]")

def prologue1():
    o = []; a = o.append
    a(raw("s_load_dwordx2 s[92:93], s[0:1], 0"))
    a(raw("s_load_dwordx2 s[26:27], s[0:1], 24"))
    a(V(f"v_lshrrev_b32 v{V_T0}, 6, v0", [0], [V_T0]))
    a(V(f"v_and_b32 v{V_LANE}, 63, v0", [0], [V_LANE]))
    a(V(f"v_readfirstlane_b32 s{S_W}, v{V_T0}", [V_T0], [('s', S_W)]))
    a(S(f"s_and_b32 s{S_HKV}, s2, 7", [2], [S_HKV]))
    a(S(f"s_lshr_b32 s{S_B}, s2, 5", [2], [S_B]))
    a(S(f"s_bfe_u32 s{S_T0}, s2, 0x20003", [2], [S_T0]))
    a(S(f"s_mov_b32 s{S_J}, s{S_T0}", [S_T0], [S_J]))
    a(S(f"s_lshl_b32 s{S_HQ}, s{S_HKV}, 2", [S_HKV], [S_HQ]))
    a(S(f"s_add_u32 s{S_HQ}, s{S_HQ}, s{S_T0}", [S_HQ, S_T0], [S_HQ]))
    if int(opt.rot_a) == 2:
        a(S(f"s_add_u32 s{S_VALID}, s{S_T0}, s{S_B}", [S_T0, S_B], [S_VALID]))
        a(S(f"s_and_b32 s{S_VALID}, s{S_VALID}, 1", [S_VALID], [S_VALID]))
        a(S(f"s_lshl_b32 s{S_VALID}, s{S_VALID}, 2", [S_VALID], [S_VALID]))
    elif int(opt.rot_a) in (5, 6):
        a_, b_ = (S_B, S_T0) if int(opt.rot_a) == 5 else (S_T0, S_B)
        a(S(f"s_lshl_b32 s{S_VALID}, s{b_}, 1", [b_], [S_VALID]))
        a(S(f"s_add_u32 s{S_VALID}, s{S_VALID}, s{a_}", [S_VALID, a_], [S_VALID]))
        a(S(f"s_and_b32 s{S_VALID}, s{S_VALID}, 3", [S_VALID], [S_VALID]))
        a(S(f"s_lshl_b32 s{S_VALID}, s{S_VALID}, 1", [S_VALID], [S_VALID]))
    elif int(opt.rot_a) == 7:
        a(S(f"s_add_u32 s{S_VALID}, s{S_T0}, s{S_B}", [S_T0, S_B], [S_VALID]))
        a(S(f"s_and_b32 s{S_VALID}, s{S_VALID}, 1", [S_VALID], [S_VALID]))
        a(S(f"s_lshl_b32 s{S_VALID}, s{S_VALID}, 2", [S_VALID], [S_VALID]))
        a(S(f"s_bfe_u32 s{S_T1}, s{S_B}, 0x10001", [S_B], [S_T1]))
        a(S(f"s_or_b32 s{S_VALID}, s{S_VALID}, s{S_T1}", [S_VALID, S_T1], [S_VALID]))
    elif int(opt.rot_a) == 4:
        a(S(f"s_add_u32 s{S_VALID}, s{S_T0}, s{S_B}", [S_T0, S_B], [S_VALID]))
        a(S(f"s_and_b32 s{S_VALID}, s{S_VALID}, 3", [S_VALID], [S_VALID]))
        a(S(f"s_lshl_b32 s{S_VALID}, s{S_VALID}, 1", [S_VALID], [S_VALID]))
    elif int(opt.rot_a):
        a(S(f"s_lshl_b32 s{S_T0}, s{S_T0}, 1", [S_T0], [S_T0]))
        a(S(f"s_add_u32 s{S_VALID}, s{S_T0}, s{S_B}", [S_T0, S_B], [S_VALID]))
        a(S(f"s_and_b32 s{S_VALID}, s{S_VALID}, 7", [S_VALID], [S_VALID]))
    else:
        a(S(f"s_mov_b32 s{S_VALID}, 0", [], [S_VALID]))
    a(V(f"v_and_b32 v{V_N}, 15, v{V_LANE}", [V_LANE], [V_N]))
    a(V(f"v_lshrrev_b32 v{V_G}, 4, v{V_LANE}", [V_LANE], [V_G]))
    a(S(f"s_lshl_b32 s{S_W1K}, s{S_W}, 10", [S_W], [S_W1K]))
    a(S(f"s_lshl_b32 s{S_W8K}, s{S_W}, 13", [S_W], [S_W8K]))
    a(V(f"v_lshl_add_u32 v{V_T0}, s{S_W}, 2, v{V_G}", [V_G, ('s', S_W)], [V_T0]))
    a(V(f"v_xor_b32 v{V_T1}, v{V_N}, v{V_T0}", [V_N, V_T0], [V_T1]))
    a(V(f"v_lshlrev_b32 v{V_T1}, 4, v{V_T1}", [V_T1], [V_T1]))
    a(V(f"v_lshl_add_u32 v{V_XD}, v{V_T0}, 10, v{V_T1}", [V_T0, V_T1], [V_XD]))
    a(S(f"s_and_b32 s{S_T0}, s{S_W}, 2", [S_W], [S_T0]))
    a(S(f"s_lshl_b32 s{S_T0}, s{S_T0}, 2", [S_T0], [S_T0]))
    a(V(f"v_lshl_add_u32 v{V_T1}, v{V_G}, 1, s{S_T0}", [V_G, ('s', S_T0)], [V_T1]))
    a(V(f"v_xor_b32 v{V_T1}, v{V_N}, v{V_T1}", [V_N, V_T1], [V_T1]))
    a(V(f"v_lshlrev_b32 v{V_T1}, 4, v{V_T1}", [V_T1], [V_T1]))
    a(V(f"v_lshl_add_u32 v{V_WD}, v{V_T0}, 13, v{V_T1}", [V_T0, V_T1], [V_WD]))
    a(S(f"s_mul_i32 s{S_T0}, s{S_B}, 81920", [S_B], [S_T0]))
    a(S(f"s_lshl_b32 s{S_T2}, s{S_HQ}, 8", [S_HQ], [S_T2]))
    a(S(f"s_sub_u32 s{S_T1}, 4194304, s{S_T2}", [S_T2], [S_T1]))
    a(S(f"s_mov_b32 s{S_REDO}, 0", [], [S_REDO]))
    a(S(f"s_lshl_b32 s{S_WC}, s{S_VALID}, 19", [S_VALID], [S_WC]))
    a(S(f"s_mov_b64 s[{S_GM}:{S_GM+1}], -1", [], [S_GM, S_GM+1]))
    o += restart_setup()
    a(S(f"s_mov_b32 s{S_X+2}, 81920", [], [S_X+2])); a(S(f"s_mov_b32 s{S_X+3}, 0x20000", [], [S_X+3]))
    a(S(f"s_mov_b32 s{S_WQ+2}, s{S_T1}", [S_T1], [S_WQ+2])); a(S(f"s_mov_b32 s{S_WQ+3}, 0x20000", [], [S_WQ+3]))
    a(raw("s_waitcnt lgkmcnt(0)", 'wait'))
    o += srd(S_X, 92, add_s=S_T0, size=81920)[:3]
    o += srd(S_WQ, 26, add_s=S_T2, size=0)[:3]
    a(raw("s_load_dwordx4 s[92:95], s[0:1], 8"))
    a(raw(f"s_load_dwordx2 s[{S_WO}:{S_WO+1}], s[0:1], 32"))
    a(raw(f"s_load_dwordx4 s[{S_C}:{S_C+3}], s[0:1], 40"))
    a(raw("s_load_dwordx2 s[100:101], s[0:1], 56"))
    return o

def restart_setup():
    o = [S(f"s_mov_b32 s{S_TAB+q}, {q*16384}", [], [S_TAB+q]) for q in range(5)]
    for c in range(4):
        o.append(S(f"s_lshr_b32 s{S_SO}, s{S_WC}, 12", [S_WC], [S_SO]))
        o.append(S(f"s_add_u32 s{S_SO}, s{S_SO}, {c*256}", [S_SO], [S_SO]))
        o.append(S(f"s_and_b32 s{S_SO}, s{S_SO}, 0x300", [S_SO], [S_SO]))
        o.append(V(f"v_add_u32 v{V_XD4+c}, s{S_SO}, v{V_XD}", [V_XD, ('s', S_SO)], [V_XD4+c]))
    return o

def prologue2():
    o = []; a = o.append
    a(raw("s_waitcnt lgkmcnt(0)", 'wait'))
    a(S(f"s_lshl_b32 s{S_T0}, s{S_B}, 3", [S_B], [S_T0]))
    a(S(f"s_add_u32 s{S_T0}, s{S_T0}, s{S_HKV}", [S_T0, S_HKV], [S_T0]))
    a(S(f"s_lshl_b32 s{S_T0}, s{S_T0}, 2", [S_T0], [S_T0]))
    a(S(f"s_add_u32 s{S_T0}, s{S_T0}, s{S_W}", [S_T0, S_W], [S_T0]))
    a(S(f"s_lshl_b32 s{S_T0}, s{S_T0}, 16", [S_T0], [S_T0]))
    o += srd(S_K, 92, add_s=S_T0, size=65536)
    o += srd(S_V, 94, add_s=S_T0, size=65536)
    a(S(f"s_lshl_b32 s{S_T0}, s{S_HKV}, 19", [S_HKV], [S_T0]))
    o += srd(S_WO, S_WO, add_s=S_T0, size=524288)
    WB = int(opt.wsb) << 20
    o += srd(S_O, 100, add_imm=WB, size=8*5*128*1024)
    o += srd(S_WT, 100, add_imm=WB + WS_WO, size=8*4*20*8*1024)
    o += srd(S_D, S_C + 2, size=256)
    o += srd(S_OUT, S_C, size=655360)
    o += srd(S_C, 100, add_imm=WB + WS_CT, size=65536)
    a(S(f"s_bitcmp1_b32 s{S_HQ}, 0", [S_HQ], []))
    a(S(f"s_mov_b32 s{S_T0}, {hex(kv_pack(0))}", [], [S_T0]))
    a(S(f"s_cselect_b32 s{S_T0}, {hex(kv_pack(1))}, s{S_T0}", [S_T0], [S_T0]))
    a(S(f"s_mov_b32 s{S_T1}, {hex(kv_pack(2))}", [], [S_T1]))
    a(S(f"s_cselect_b32 s{S_T1}, {hex(kv_pack(3))}, s{S_T1}", [S_T1], [S_T1]))
    a(S(f"s_bitcmp1_b32 s{S_HQ}, 1", [S_HQ], []))
    a(S(f"s_cselect_b32 s{S_KVO}, s{S_T1}, s{S_T0}", [S_T0, S_T1], [S_KVO]))
    for p in range(3):
        a(S(f"s_cmp_le_u32 s{S_J}, {p}", [S_J], []))
        a(S(f"s_cselect_b32 s{S_T1}, {p + 1}, {p}", [], [S_T1]))
        a(S(f"s_lshl_b32 s{S_H+p}, s{S_T1}, 17", [S_T1], [S_H+p]))
    a(S(f"s_mul_i32 s{S_W5K}, s{S_W}, 5120", [S_W], [S_W5K]))
    a(S(f"s_lshl_b32 s{S_T0}, s{S_B}, 12", [S_B], [S_T0]))
    a(S(f"s_lshl_b32 s{S_F1}, s{S_HQ}, 7", [S_HQ], [S_F1]))
    a(S(f"s_add_u32 s{S_F1}, s{S_F1}, s{S_T0}", [S_F1, S_T0], [S_F1]))
    a(S(f"s_add_u32 s{S_F2}, s{S_F1}, 32768", [S_F1], [S_F2]))
    a(S(f"s_lshl_b32 s{S_T1}, s{S_HKV}, 9", [S_HKV], [S_T1]))
    a(S(f"s_lshl_b32 s{S_G1}, s{S_J}, 3", [S_J], [S_G1]))
    a(S(f"s_add_u32 s{S_G1}, s{S_G1}, s{S_T1}", [S_G1, S_T1], [S_G1]))
    a(S(f"s_add_u32 s{S_G1}, s{S_G1}, s{S_T0}", [S_G1, S_T0], [S_G1]))
    a(S(f"s_lshl_b32 s{S_T1}, s{S_J}, 7", [S_J], [S_T1]))
    a(S(f"s_lshl_b32 s{S_G2}, s{S_HKV}, 3", [S_HKV], [S_G2]))
    a(S(f"s_add_u32 s{S_G2}, s{S_G2}, s{S_T1}", [S_G2, S_T1], [S_G2]))
    a(S(f"s_add_u32 s{S_G2}, s{S_G2}, s{S_T0}", [S_G2, S_T0], [S_G2]))
    a(S(f"s_add_u32 s{S_G2}, s{S_G2}, 32768", [S_G2], [S_G2]))
    return o

def prologue3():
    o = []; a = o.append
    a(S(f"s_bfe_u32 s{S_T1}, s{S_WC}, 0x10013", [S_WC], [S_T1]))
    a(S(f"s_lshl_b32 s{S_T1}, s{S_T1}, 3", [S_T1], [S_T1]))
    a(V(f"v_xor_b32 v{V_T1}, s{S_T1}, v{V_N}", [V_N, ('s', S_T1)], [V_T1]))
    for s in range(4):
        a(V(f"v_add_u32 v{V_T0}, {4*s}, v{V_G}", [V_G], [V_T0]))
        a(V(f"v_xor_b32 v{V_T0}, v{V_T0}, v{V_T1}", [V_T0, V_T1], [V_T0]))
        a(V(f"v_lshlrev_b32 v{V_T0}, 4, v{V_T0}", [V_T0], [V_T0]))
        a(V(f"v_lshl_add_u32 v{V_XA+s}, v{V_N}, 8, v{V_T0}", [V_N, V_T0], [V_XA+s]))
        a(V(f"v_add_u32 v{V_XB+s}, {120*KB}, v{V_XA+s}", [V_XA+s], [V_XB+s]))
    a(V(f"v_lshrrev_b32 v{V_T2}, 2, v{V_N}", [V_N], [V_T2]))
    a(V(f"v_bfe_u32 v{V_T3}, v{V_N}, 1, 1", [V_N], [V_T3]))
    a(V(f"v_and_b32 v{V_T4}, 1, v{V_N}", [V_N], [V_T4]))
    a(V(f"v_lshlrev_b32 v{V_T4}, 3, v{V_T4}", [V_T4], [V_T4]))
    a(V(f"v_and_b32 v{V_T5}, 1, v{V_G}", [V_G], [V_T5]))
    a(V(f"v_lshl_add_u32 v{V_T5}, v{V_T5}, 2, v{V_T2}", [V_T5, V_T2], [V_T5]))
    a(V(f"v_lshlrev_b32 v{V_T5}, 1, v{V_T5}", [V_T5], [V_T5]))
    a(S(f"s_lshl_b32 s{S_T1}, s{S_W}, 2", [S_W], [S_T1]))
    a(V(f"v_lshl_add_u32 v{V_T1}, v{V_G}, 3, v{V_T2}", [V_G, V_T2], [V_T1]))
    a(V(f"v_lshl_add_u32 v{V_T1}, v{V_T1}, 8, v{V_T4}", [V_T1, V_T4], [V_T1]))
    for e in range(2):
        a(V(f"v_add3_u32 v{V_T0}, s{S_T1}, v{V_T3}, {2*e}", [V_T3, ('s', S_T1)], [V_T0]))
        a(V(f"v_xor_b32 v{V_T0}, v{V_T0}, v{V_T5}", [V_T0, V_T5], [V_T0]))
        a(V(f"v_lshl_add_u32 v{V_T0}, v{V_T0}, 4, v{V_T1}", [V_T0, V_T1], [V_T0]))
        a(V(f"v_add_u32 v{V_WA+e}, {40*KB}, v{V_T0}", [V_T0], [V_WA+e]))
        a(V(f"v_add_u32 v{V_WB+e}, {96*KB}, v{V_T0}", [V_T0], [V_WB+e]))
    a(V(f"v_lshl_add_u32 v{V_T1}, v{V_G}, 2, v{V_T2}", [V_G, V_T2], [V_T1]))
    n_early = len(o)
    for s in range(4):
        a(V(f"v_add_u32 v{V_KA+s}, s{S_W8K}, v{V_XA+s}", [V_XA+s, ('s', S_W8K)], [V_KA+s]))
    a(V(f"v_lshl_add_u32 v{V_T1}, v{V_T1}, 8, v{V_T4}", [V_T1, V_T4], [V_T1]))
    a(S(f"s_add_u32 s{S_T2}, s{S_W8K}, {64*KB}", [S_W8K], [S_T2]))
    a(V(f"v_add_u32 v{V_T1}, s{S_T2}, v{V_T1}", [V_T1, ('s', S_T2)], [V_T1]))
    a(V(f"v_add_u32 v{V_T3}, s{S_T1}, v{V_T3}", [V_T3, ('s', S_T1)], [V_T3]))
    for lam in range(8):
        a(V(f"v_add_u32 v{V_T0}, {2*lam}, v{V_T3}", [V_T3], [V_T0]))
        a(V(f"v_and_b32 v{V_T0}, 15, v{V_T0}", [V_T0], [V_T0]))
        a(V(f"v_xor_b32 v{V_T0}, v{V_T0}, v{V_T5}", [V_T0, V_T5], [V_T0]))
        a(V(f"v_lshl_add_u32 v{V_VA+lam}, v{V_T0}, 4, v{V_T1}", [V_T0, V_T1], [V_VA+lam]))
    a(V(f"v_xor_b32 v{V_T0}, v{V_N}, v{V_G}", [V_N, V_G], [V_T0]))
    a(V(f"v_lshlrev_b32 v{V_T0}, 4, v{V_T0}", [V_T0], [V_T0]))
    a(V(f"v_lshl_add_u32 v{V_KD}, v{V_G}, 8, v{V_T0}", [V_G, V_T0], [V_KD]))
    for j in range(1, 4):
        a(V(f"v_xor_b32 v{V_KD+j}, {64*j}, v{V_KD}", [V_KD], [V_KD+j]))
    a(V(f"v_lshlrev_b32 v{V_T0}, 1, v{V_G}", [V_G], [V_T0]))
    a(V(f"v_xor_b32 v{V_T0}, v{V_N}, v{V_T0}", [V_N, V_T0], [V_T0]))
    a(V(f"v_lshlrev_b32 v{V_T0}, 4, v{V_T0}", [V_T0], [V_T0]))
    a(V(f"v_lshl_add_u32 v{V_VD}, v{V_G}, 8, v{V_T0}", [V_G, V_T0], [V_VD]))
    a(V(f"v_xor_b32 v{V_VD+1}, 128, v{V_VD}", [V_VD], [V_VD+1]))
    a(V(f"v_lshrrev_b32 v{V_T0}, 1, v{V_G}", [V_G], [V_T0]))
    a(V(f"v_add_u32 v{V_T0}, s{S_T1}, v{V_T0}", [V_T0, ('s', S_T1)], [V_T0]))
    a(V(f"v_xor_b32 v{V_T0}, v{V_T0}, v{V_N}", [V_T0, V_N], [V_T0]))
    a(V(f"v_lshlrev_b32 v{V_T0}, 4, v{V_T0}", [V_T0], [V_T0]))
    a(V(f"v_lshl_add_u32 v{V_T0}, v{V_N}, 8, v{V_T0}", [V_N, V_T0], [V_T0]))
    a(V(f"v_and_b32 v{V_T1}, 1, v{V_G}", [V_G], [V_T1]))
    a(V(f"v_lshl_add_u32 v{V_T0}, v{V_T1}, 3, v{V_T0}", [V_T0, V_T1], [V_T0]))
    a(V(f"v_add_u32 v{V_QW}, {QBUF}, v{V_T0}", [V_T0], [V_QW]))
    a(V(f"v_xor_b32 v{V_QW+1}, 32, v{V_QW}", [V_QW], [V_QW+1]))
    a(V(f"v_lshl_add_u32 v{V_CW}, v{V_LANE}, 4, s{S_W8K}", [V_LANE, ('s', S_W8K)], [V_CW]))
    a(V(f"v_add_u32 v{V_CW+1}, {64*KB}, v{V_CW}", [V_CW], [V_CW+1]))
    a(S(f"s_add_u32 s{S_T0}, s{S_W8K}, {102*KB}", [S_W8K], [S_T0]))
    a(V(f"v_lshl_add_u32 v{V_LW}, v{V_LANE}, 5, s{S_T0}", [V_LANE, ('s', S_T0)], [V_LW]))
    a(S(f"s_mul_i32 s{S_T0}, s{S_B}, 640", [S_B], [S_T0]))
    a(S(f"s_lshl_b32 s{S_T2}, s{S_HQ}, 2", [S_HQ], [S_T2]))
    a(S(f"s_add_u32 s{S_T0}, s{S_T0}, s{S_T2}", [S_T0, S_T2], [S_T0]))
    a(S(f"s_add_u32 s{S_T0}, s{S_T0}, s{S_W}", [S_T0, S_W], [S_T0]))
    a(S(f"s_lshl_b32 s{S_T0}, s{S_T0}, 10", [S_T0], [S_T0]))
    a(V(f"v_lshl_add_u32 v{V_OST}, v{V_LANE}, 4, s{S_T0}", [V_LANE, ('s', S_T0)], [V_OST]))
    a(V(f"v_cmp_eq_u32 vcc, 0, v{V_N}", [V_N], [VCC]))
    a(V(f"v_mov_b32 v{V_T0}, 0x3f803f80", [], [V_T0]))
    for i in range(4):
        a(V(f"v_cndmask_b32 v{V_ONES+i}, 0, v{V_T0}, vcc", [V_T0, VCC], [V_ONES+i]))
    for i in range(20):
        a(V(f"v_mov_b32 v{V_NEGM+i}, 0", [], [V_NEGM+i]))
    return o[:n_early], o[n_early:]

V_QACC = V_VF
def AF(kap):
    return [(100, 120), (128, 148), (208, 156)][kap % 3]
def a_reads(kap):
    u, ks = kap >> 1, kap & 1
    c, s = u >> 1, kap & 3
    xf, wf = AF(kap)
    wb = WU(WSLOT[u], ks)
    xr = []
    for q in range(5):
        xb = XU(c, q)
        reg, base = (V_XA, 0) if xb < 64 * KB else (V_XB, 120 * KB)
        xr.append(dsrd('ds_read_b128', ('v', xf + q * 4), 4, reg + s, xb - base))
    wr = []
    for e in range(2):
        for h in range(2):
            reg, base = (V_WA, 40 * KB) if wb < 96 * KB else (V_WB, 96 * KB)
            wr.append(dsrd('ds_read_b64_tr_b16', ('v', wf + e * 4 + h * 2), 2, reg + e, wb - base + h * 1024))
    return wr[:2] + xr[:1] + wr[2:] + xr[1:]
def a_mfmas(kap):
    o = []
    xf, wf = AF(kap)
    for q in range(5):
        for e in range(2):
            d = ('v', V_QACC + (e * 5 + q) * 4)
            o.append(mfma(d, ('v', wf + e * 4), ('v', xf + q * 4), 0 if kap == 0 else d))
    return o
def lane0(sg, body, lab):
    sg.text(f"s_cmp_lg_u32 s{S_W}, 0"); sg.text(f"s_cbranch_scc1 {lab}")
    sg.text(f"s_mov_b64 s[{S_EX}:{S_EX+1}], exec"); sg.text("s_mov_b64 exec, 1")
    for x in body: sg.text(x)
    sg.text(f"s_mov_b64 exec, s[{S_EX}:{S_EX+1}]")
    sg.text(f"{lab}:")
def phase_a(sg, Q):
    stamp(sg, 1)
    sg.add(barrier(needvm=[('x', 0), ('w', 0)])); Q.mark('B0')
    stamp(sg, 2)
    sg.addall(a_reads(0)); sg.addall(a_reads(1))
    sg.add(S(f"s_mov_b32 s{S_T1}, {f2h(QSCALE)}", [], [S_T1]))
    sg.add(S(f"s_mov_b32 s{S_T2}, {f2h(QSCALE)}", [], [S_T2]))
    for kap in range(14 if int(opt.aq) else 16):
        mf = a_mfmas(kap)
        gaps = [[] for _ in mf]
        nx = kap + 2
        if nx < 16:
            if nx % 2 == 0:
                u = nx >> 1
                need = [('x', u >> 1), ('w', u)]
                while any(it.ins.vmtag in need for it in Q.q):
                    n_ = len(Q.q); weave(sg, Q, [], 1, 0); assert len(Q.q) < n_, (u, Q.q[0].after)
                while True:
                    younger = 0
                    for tg, _w in reversed(sg.vm):
                        if tg in need: break
                        younger += 1
                    n_ = len(Q.q)
                    if younger >= int(opt.la): break
                    weave(sg, Q, [], 1, 0)
                    if len(Q.q) == n_: break
                dr = str(u) in str(opt.drain)
                sg.add(barrier(needvm=need, lg0=dr)); Q.mark(f'B{u}')
                if dr: Q.mark(f'B{u+1}')
                if u in (1, 3, 5, 7): stamp(sg, 5 + u // 2, 'A')
            for i, r in enumerate(a_reads(nx)): gaps[i].append(r)
        mf[0].r |= set(R('v', AF(kap)[0], 20) + R('v', AF(kap)[1], 8))
        pos = [1, 5, 9] if kap % 2 == 0 else [3, 7]
        if int(opt.perstep) == 6: pos = [1, 4, 7] if kap % 2 == 0 else [1, 4, 8]
        if int(opt.perstep) == 7: pos = [1, 4, 6, 9] if kap % 2 == 0 else [2, 5, 8]
        if int(opt.perstep) == 8: pos = [1, 4, 6, 9]
        nkv = sum(1 for it in Q.q if it.ins.vmtag[0] in 'kv')
        room = int(opt.alim) - (128 - nkv) + (len(Q.q) - nkv)
        place(gaps, Q, pos[:max(0, room)])
        if int(opt.aonly): sg.addall([x for x in interleave(mf, gaps) if x.k not in ('mfma', 'dsrd')])
        else: sg.addall(interleave(mf, gaps))
    def qfin(q, e, packed):
        b = V_QACC + (e * 5 + q) * 4
        if packed: f_ = [V(f"v_pk_mul_f32 v[{b+r}:{b+r+1}], v[{b+r}:{b+r+1}], s[{S_T1}:{S_T1+1}]", [b+r, b+r+1], [b+r, b+r+1]) for r in (0, 2)]
        else: f_ = [V(f"v_mul_f32 v{b+r}, s{S_T1}, v{b+r}", [b+r], [b+r]) for r in range(4)]
        f_.append(V(f"v_cvt_pk_bf16_f32 v{b}, v{b}, v{b+1}", [b, b+1], [b]))
        f_.append(V(f"v_cvt_pk_bf16_f32 v{b+1}, v{b+2}, v{b+3}", [b+2, b+3], [b+1]))
        f_.append(dswr('ds_write_b64', V_QW + e, ('v', b), 2, q * 4096, lgtag='qw'))
        return f_
    todo = [(q, e) for q in range(5) for e in range(2)]
    if int(opt.aq):
        m14, m15 = a_mfmas(14), a_mfmas(15)
        m14[0].r |= set(R('v', AF(14)[0], 20) + R('v', AF(14)[1], 8))
        mf = flat([[m14[k], m15[k]] for k in range(10)])
        gaps = [[] for _ in mf]
        gi = 5
        while todo and gi + 3 <= 19:
            f_ = qfin(*todo.pop(0), False)
            gaps[gi] += f_[0:2]; gaps[gi + 1] += f_[2:4]; gaps[gi + 2] += f_[4:6]; gaps[gi + 3] = [f_[6]] + gaps[gi + 3]
            gi += 3
        nkv = sum(1 for it in Q.q if it.ins.vmtag[0] in 'kv')
        place(gaps, Q, [1, 4][:max(0, int(opt.alim) - (128 - nkv))])
        sg.addall(interleave(mf, gaps))
    stamp(sg, 9, 'A')
    for q, e in todo: sg.addall(qfin(q, e, True))
    while any(it.ins.vmtag in (('k', 0, 0), ('k', 0, 1)) for it in Q.q): weave(sg, Q, [], 1, 0)
    b = barrier(lg0=False); b.needlg = ('qw',)
    sg.addall(k_reads(0)); Q.mark(('kr', 0, 0)); Q.mark(('kr', 0, 1))
    sg.add(b); Q.mark('BQ'); Q.mark('B8')
    qr = [dsrd('ds_read_b128', AQ(q, s), 4, V_XB + s, QBUF - 120 * KB + q * 4096) for q in range(5) for s in range(4)]
    return qr

def TQ(tau):
    return divmod(tau, 5) if tau < 30 else (6 + ((tau - 30) & 1), (tau - 30) >> 1)
def qk(tau):
    i, q = TQ(tau)
    o = []
    for s, t in ([(s, t) for t in range(2) for s in range(4)] if int(opt.chain) else [(s, t) for s in range(4) for t in range(2)]):
        if True:
            d = ('v', V_S + (tau & 1) * 8 + t * 4)
            o.append(mfma(d, KF(i, t * 4 + s), AQ(q, s), ('v', V_NEGM + q * 4) if s == 0 else d))
    return o
def pv(tau):
    i, q = TQ(tau)
    p = ('v', V_P + (tau & 1) * 4)
    o = [mfma(AO(lam, q), ('v', V_VF + (i & 1) * 32 + lam * 4), p, AO(lam, q) if i else 0) for lam in range(8)]
    o.insert(0, mfma(LA(q), ('v', V_ONES), p, LA(q) if i else 0))
    return o
def sm(tau):
    b = V_S + (tau & 1) * 8
    p = V_P + (tau & 1) * 4
    e = [T(f"v_exp_f32 v{b+i}, v{b+i}", [b+i], [b+i]) for i in range(8)]
    c = [V(f"v_cvt_pk_bf16_f32 v{p+i}, v{b+2*i}, v{b+2*i+1}", [b+2*i, b+2*i+1], [p+i]) for i in range(4)]
    return e, c
def comb_writes(q):
    o = []
    for jd in range(1, 4):
        for e in range(2):
            u = q * 6 + (jd - 1) * 2 + e
            row = u >> 3
            o.append(dswr('ds_write_b128', V_CW + (row >> 1), AO(2 * jd + e, q), 4, (row & 1) * 32 * KB + (u & 7) * KB, lgtag=('cw', q)))
    o.insert(0, dswr('ds_write_b32', V_LW, LA(q), 1, [0, 4, 16, 20, 24][q], lgtag=('cw', q)))
    return o

def wo_dma(pos, after=None):
    o = []
    for ks in range(4):
        for half in range(2):
            base = (128 * KB if pos < 0 else pos * 32 * KB) + ks * 8 * KB + half * 4 * KB
            if pos < 0:
                pre = [S(f"s_lshl_b32 s{S_SK}, s{S_J}, 17", [S_J], [S_SK])] if ks + half == 0 else []
                h = S_SK
            else: pre, h = [], S_H + pos
            pre += [S(f"s_add_u32 s{S_SO}, s{h}, {ks*32768 + half*16384}", [h], [S_SO]), S(f"s_add_u32 m0, s{S_W1K}, {base}", [S_W1K], [M0])]
            o.append(Item(pre, dma(V_WOD, S_WO, S_SO, 0, ('wo', pos)), after))
    return o
def osib_dma(pos):
    o = []
    for q in range(5):
        pre = [S(f"s_lshr_b32 s{S_SK}, s{S_H+pos}, 5", [S_H+pos], [S_SK])] if q == 0 else []
        pre += [S(f"s_add_u32 s{S_SO}, s{S_SK}, {q*128*KB}", [S_SK], [S_SO]), S(f"s_add_u32 m0, s{S_W5K}, {(140 - 20*pos + q)*KB}", [S_W5K], [M0])]
        o.append(Item(pre, dma(V_OD, S_O, S_SO, 0, ('os', pos), flags=' sc1')))
    return o
def tail_calc():
    o = []; a = o.append
    T0, T1, T2 = 252, 253, 254
    a(V(f"v_lshlrev_b32 v{T0}, 4, v{V_LANE}", [V_LANE], [T0]))
    for jd in range(1, 4):
        a(S(f"s_sub_u32 s{S_T0}, s{S_W}, {jd}", [S_W], [S_T0]))
        a(S(f"s_and_b32 s{S_T0}, s{S_T0}, 3", [S_T0], [S_T0]))
        a(S(f"s_lshl_b32 s{S_T0}, s{S_T0}, 13", [S_T0], [S_T0]))
        a(V(f"v_add_u32 v{V_CR+2*(jd-1)}, s{S_T0}, v{T0}", [T0, ('s', S_T0)], [V_CR+2*(jd-1)]))
        a(V(f"v_add_u32 v{V_CR+2*(jd-1)+1}, {64*KB}, v{V_CR+2*(jd-1)}", [V_CR+2*(jd-1)], [V_CR+2*(jd-1)+1]))
    a(V(f"v_add_u32 v{V_OL}, {96*KB}, v{T0}", [T0], [V_OL]))
    a(V(f"v_add_u32 v{V_OW}, s{S_W5K}, v{V_OL}", [V_OL, ('s', S_W5K)], [V_OW]))
    a(S(f"s_mov_b32 s{S_T0}, {102*KB}", [], [S_T0]))
    a(V(f"v_lshl_add_u32 v{V_LR}, v{V_N}, 5, s{S_T0}", [V_N, ('s', S_T0)], [V_LR]))
    a(S(f"s_add_u32 s{S_T0}, s{S_W8K}, {64*KB}", [S_W8K], [S_T0]))
    for e in range(2):
        a(V(f"v_subrev_u32 v{V_WT+e}, s{S_T0}, v{V_VA+e}", [V_VA+e, ('s', S_T0)], [V_WT+e]))
        a(V(f"v_add_u32 v{V_WT+2+e}, {64*KB}, v{V_WT+e}", [V_WT+e], [V_WT+2+e]))
        a(V(f"v_add_u32 v{V_WT+4+e}, {128*KB}, v{V_WT+e}", [V_WT+e], [V_WT+4+e]))
    a(S(f"s_lshl_b32 s{S_T0}, s{S_J}, 12", [S_J], [S_T0]))
    a(V(f"v_subrev_u32 v{V_OD}, s{S_T0}, v{V_OST}", [V_OST, ('s', S_T0)], [V_OD]))
    a(S(f"s_lshl_b32 s{S_T0}, s{S_B}, 2", [S_B], [S_T0]))
    a(S(f"s_add_u32 s{S_T0}, s{S_T0}, s{S_J}", [S_T0, S_J], [S_T0]))
    a(V(f"v_and_b32 v{T1}, 7, v{V_LANE}", [V_LANE], [T1]))
    a(S(f"s_lshl_b32 s{S_T0}, s{S_T0}, 2", [S_T0], [S_T0]))
    a(S(f"s_add_u32 s{S_T0}, s{S_T0}, s{S_W}", [S_T0, S_W], [S_T0]))
    a(S(f"s_mul_i32 s{S_T0}, s{S_T0}, {5*8*KB}", [S_T0], [S_T0]))
    a(S(f"s_lshl_b32 s{S_T2}, s{S_HKV}, 10", [S_HKV], [S_T2]))
    a(S(f"s_add_u32 s{S_T2}, s{S_T2}, s{S_T0}", [S_T2, S_T0], [S_T2]))
    a(V(f"v_add_u32 v{V_PS}, s{S_T2}, v{T0}", [T0, ('s', S_T2)], [V_PS]))
    a(V(f"v_lshl_add_u32 v{T1}, s{S_HKV}, 3, v{T1}", [T1, ('s', S_HKV)], [T1]))
    a(V(f"v_lshrrev_b32 v{T2}, 3, v{V_LANE}", [V_LANE], [T2]))
    a(V(f"v_lshl_add_u32 v{V_PLD}, v{T1}, 4, s{S_T0}", [T1, ('s', S_T0)], [V_PLD]))
    a(V(f"v_lshl_add_u32 v{V_PLD}, v{T2}, 13, v{V_PLD}", [T2, V_PLD], [V_PLD]))
    a(V(f"v_lshlrev_b32 v{T2}, 14, v{T2}", [T2], [T2]))
    a(V(f"v_and_b32 v{T0}, 15, v{T1}", [T1], [T0]))
    a(V(f"v_lshl_add_u32 v{T2}, v{T0}, 10, v{T2}", [T0, T2], [T2]))
    a(V(f"v_lshrrev_b32 v{T1}, 4, v{T1}", [T1], [T1]))
    a(V(f"v_lshl_add_u32 v{T2}, v{T1}, 3, v{T2}", [T1, T2], [T2]))
    a(S(f"s_mul_i32 s{S_T0}, s{S_B}, 81920", [S_B], [S_T0]))
    a(S(f"s_lshl_b32 s{S_T2}, s{S_J}, 8", [S_J], [S_T2]))
    a(S(f"s_add_u32 s{S_T0}, s{S_T0}, s{S_T2}", [S_T0, S_T2], [S_T0]))
    a(S(f"s_lshl_b32 s{S_T2}, s{S_W}, 6", [S_W], [S_T2]))
    a(S(f"s_add_u32 s{S_T0}, s{S_T0}, s{S_T2}", [S_T0, S_T2], [S_T0]))
    a(V(f"v_add_u32 v{V_OUT}, s{S_T0}, v{T2}", [T2, ('s', S_T0)], [V_OUT]))
    a(V(f"v_cmp_gt_u32 vcc, 40, v{V_LANE}", [V_LANE], [VCC]))
    a(V(f"v_mov_b32 v{T0}, 0x7ff00000", [], [T0]))
    a(V(f"v_cndmask_b32 v{V_PLD}, v{T0}, v{V_PLD}, vcc", [T0, V_PLD, VCC], [V_PLD]))
    a(V(f"v_cndmask_b32 v{V_OUT}, v{T0}, v{V_OUT}, vcc", [T0, V_OUT, VCC], [V_OUT]))
    for k in range(5): a(S(f"s_mov_b32 s{S_TAB+k}, {k*8192}", [], [S_TAB+k]))
    return o
def wod_calc():
    o = []; a = o.append
    T0, T1 = 252, 253
    a(S(f"s_lshl_b32 s{S_T0}, s{S_B}, 2", [S_B], [S_T0]))
    a(S(f"s_add_u32 s{S_T0}, s{S_T0}, s{S_W}", [S_T0, S_W], [S_T0]))
    a(S(f"s_lshl_b32 s{S_T0}, s{S_T0}, 14", [S_T0], [S_T0]))
    a(S(f"s_lshl_b32 s{S_T2}, s{S_J}, 8", [S_J], [S_T2]))
    a(S(f"s_add_u32 s{S_T0}, s{S_T0}, s{S_T2}", [S_T0, S_T2], [S_T0]))
    a(V(f"v_bfe_u32 v{T0}, v{V_LANE}, 1, 4", [V_LANE], [T0]))
    a(V(f"v_and_b32 v{T1}, 1, v{V_LANE}", [V_LANE], [T1]))
    a(V(f"v_lshlrev_b32 v{T1}, 7, v{T1}", [T1], [T1]))
    a(V(f"v_lshl_add_u32 v{T0}, v{T0}, 10, v{T1}", [T0, T1], [T0]))
    a(V(f"v_add_u32 v{V_TCH}, s{S_T0}, v{T0}", [T0, ('s', S_T0)], [V_TCH]))
    a(S(f"s_and_b32 s{S_T0}, s{S_W}, 1", [S_W], [S_T0]))
    a(S(f"s_lshl_b32 s{S_T0}, s{S_T0}, 3", [S_T0], [S_T0]))
    a(V(f"v_lshl_add_u32 v{T0}, v{V_G}, 1, s{S_T0}", [V_G, ('s', S_T0)], [T0]))
    a(V(f"v_xor_b32 v{T0}, v{V_N}, v{T0}", [V_N, T0], [T0]))
    a(S(f"s_lshl_b32 s{S_T0}, s{S_J}, 8", [S_J], [S_T0]))
    a(V(f"v_lshl_add_u32 v{T0}, v{T0}, 4, s{S_T0}", [T0, ('s', S_T0)], [T0]))
    a(V(f"v_lshl_add_u32 v{T1}, s{S_W}, 2, v{V_G}", [V_G, ('s', S_W)], [T1]))
    a(V(f"v_lshl_add_u32 v{V_WOD}, v{T1}, 10, v{T0}", [T0, T1], [V_WOD]))
    return o

def phase_b(sg, Q, qr):
    NT = 8
    calc = wod_calc() + tail_calc()
    sg.addall(qr[:4])
    qr = qr[4:]
    for tau in range(-1, 40):
        i, q = divmod(tau, 5) if tau >= 0 else (-1, 4)
        mf = []
        bst = [int(x) for x in opt.bst.split(',')]
        if tau in bst: stamp(sg, 5 + bst.index(tau), 'B')
        if tau + 1 < 40: mf += qk(tau + 1)
        if tau - 1 >= 0: mf += pv(tau - 1)
        ds, marks = [], []
        if tau == -1: ds = qr
        elif tau == 0: ds = v_reads(0); marks = [('vr', 0, 0), ('vr', 0, 1)]
        elif tau < 27:
            if q == 2: ds = k_reads(i + 1)[:4]; marks = [('kr', i + 1, 0)]
            if q == 3: ds = k_reads(i + 1)[4:] + v_reads(i + 1)[:2]; marks = [('kr', i + 1, 1)]
            if q == 4: ds = v_reads(i + 1)[2:8]; marks = [('vr', i + 1, 0)]
            if q == 0: ds = v_reads(i)[8:14]
            if q == 1 and i > 0: ds = v_reads(i)[14:]; Q.mark(('vr', i, 1))
        xp = None
        if tau >= 27:
            k6, k7, v6, v7 = k_reads(6), k_reads(7), v_reads(6), v_reads(7)
            vo = [v7[l + 8 * h] for l in range(8) for h in range(2)]
            G = [1, 3, 5, 7, 9, 11, 13, 15, 16]
            def cwp(q_, second):
                w_ = comb_writes(q_)
                if int(opt.w64) and q_ < 2:
                    h_ = []
                    for x in w_[1:]:
                        m_ = re.match(r"ds_write_b128 v(\d+), a\[(\d+):\d+\] offset:(\d+)", x.t)
                        for z in range(2): h_.append(dswr('ds_write_b64', int(m_.group(1)), ('a', int(m_.group(2)) + 2 * z), 2, int(m_.group(3)) + 8 * z, lgtag=x.lgtag))
                    return list(zip([1, 3, 5, 9, 13, 16], h_[6:])) if second else list(zip([7, 1, 3, 5, 9, 13, 16], [w_[0]] + h_[:6]))
                return list(zip([1, 9, 13], w_[4:])) if second else list(zip([7, 1, 9, 13], w_[:4]))
            xp = {27: list(zip([3, 5, 9, 11, 15, 16], k6[:4] + v6[:2])),
                  28: list(zip([1, 3, 5, 7, 9, 11, 13, 15, 16], k6[4:] + k7[:5])),
                  29: list(zip(G, k7[5:] + v6[2:8])),
                  30: list(zip([1, 3, 5, 7, 9, 11, 13, 15, 16, 16], v6[8:] + vo[:2])),
                  31: list(zip([1, 1, 3, 5, 5, 7, 9, 9, 11, 13, 13, 15, 16, 16], vo[2:])),
                  32: [], 33: cwp(0, 0), 34: cwp(0, 1), 35: cwp(1, 0), 36: cwp(1, 1), 37: cwp(2, 0),
                  38: cwp(2, 1) + list(zip([3, 5, 5, 7, 11, 15, 16, 16], lreads((0, 1)) + preads(0)[:4])),
                  39: list(zip([0, 2, 4, 6], comb_writes(3)[:4])) + list(zip([1, 1, 3, 3, 5, 5, 7, 7], preads(0)[4:] + preads(1)))}[tau]
            ds = [x for _, x in xp]; marks = []
            if tau == 38:
                b = barrier(needvm=[('wo', -1)], lg0=False); b.needlg = (('cw', 0), ('cw', 1)); sg.add(b)
        n = len(mf)
        gaps = [[] for _ in range(n)]
        e, c = sm(tau) if 0 <= tau < 40 else ([], [])
        if n == 17:
            epos = [0, 2, 4, 6, 8, 10, 12, 14]; cpos = [3, 7, 11, 15]
            dpos = [1, 3, 5, 7, 9, 11, 13, 15] if len(ds) > 4 else [1, 3, 5, 7]
            if ds and ds[0].k == 'dswr': dpos = [1, 1, 3, 7, 9, 13, 16]
            vpos = [1, 5, 9, 13] if (tau < int(opt.even_at) or q == 1) else [1, 7, 13]
            if int(opt.bsched) and not (ds and ds[0].k == 'dswr'):
                if q == 1: dpos, vpos = [1, 3], [5, 9, 13, 16]
                elif tau < int(opt.even_at): dpos, vpos = [3, 7, 11, 15, 16, 16], [1, 5, 9, 13]
                else: dpos, vpos = [3, 5, 9, 11, 15, 16], [1, 7, 13]
        else:
            epos = list(range(8)); cpos = [min(n - 1, x) for x in (2, 4, 6, 8)]
            dpos = [(k * n) // max(1, len(ds)) for k in range(len(ds))]
            vpos = [1, 5]
        if xp is not None:
            dpos = [g_ for g_, _ in xp]; vpos = [7, 11, 15] if tau >= 32 else [13]
            if tau == 27: vpos = [1, 7, 13]
        for x, p_ in zip(ds, dpos): gaps[p_].append(x)
        if tau == int(opt.nl_at):
            sg.add(V("v_mov_b32 v9, 0", [], [9]))
            Q.q.insert(0, Item([], vload(('v', V_GC), 2, 9, S_D, None, 0, flags=' sc1', tag='non')))
        if tau == int(opt.nc_at):
            assert not any(it.ins.vmtag == 'non' for it in Q.q)
            sg.add(V(f"v_readfirstlane_b32 s{S_NON}, v{V_GC}", [V_GC], [('s', S_NON)]))
            sg.add(V(f"v_readfirstlane_b32 s{S_NON+1}, v{V_GC+1}", [V_GC+1], [('s', S_NON+1)]))
            sg.add(S(f"s_cmp_eq_u64 s[{S_NON}:{S_NON+1}], 0", [S_NON, S_NON+1], []))
            sg.text("s_cbranch_scc1 L_spin_n"); sg.text("L_back_n:")
        if tau == int(opt.bar_at): sg.add(barrier(lg0=False))
        for x in ds:
            while any(it.ins.vmtag in x.needvm for it in Q.q): weave(sg, Q, [], 1, 0)
        if tau == int(opt.tch_at): Q.push([Item([], vload(('v', V_TCH + 1), 1, V_TCH, S_WO, None, 0, flags=opt.tch_flags))])
        if tau == int(opt.tlb_at):
            assert not calc
            Q.push([Item([S(f"s_mov_b32 s{S_SO}, {q*256*KB}", [], [S_SO])], vload(('v', 72 + q // 2), 1, V_OD, S_O, S_SO, 0, flags=' sc1')) for q in (0, 2)]
                   + [Item([], vload(('v', 74), 1, V_PLD, S_WT, None, 0, flags=' sc1')), Item([], vload(('v', 75), 1, V_OUT, S_OUT, None, 0, flags=' sc1')),
                      Item([S(f"s_add_u32 s{S_SO}, s{S_F1}, 64", [S_F1], [S_SO])], vload(('v', 254), 1, V_ZERO, S_C, S_SO, 0, flags=' sc1'))])
        if tau == int(opt.wo_at): assert not calc; Q.push(wo_dma(-1))
        place(gaps, Q, vpos)
        for x, p_ in zip(e, epos): gaps[p_].append(x)
        for x, p_ in zip(c, cpos): gaps[p_].append(x)
        if tau >= int(opt.calc_at) and n == 17:
            for gi in range(17):
                if calc and calc[0].k == 'salu' and not any(y.k == 'salu' for y in gaps[gi]): gaps[gi].insert(0, calc.pop(0))
                cost = sum(8 if y.k == 'trans' else 0 if y.k == 'salu' else 4 for y in gaps[gi])
                while calc and calc[0].k != 'salu' and cost <= 4: gaps[gi].append(calc.pop(0)); cost += 4
        sg.addall(interleave(mf, gaps))
        for m in marks: Q.mark(m)

def poll(sg, lab, vaddr):
    sg.text(f"s_mov_b32 s{S_SPIN}, {opt.spin}")
    sg.text(f"{lab}:")
    sg.text(f"buffer_load_dwordx2 v[250:251], v{vaddr}, s[{S_C}:{S_C+3}], 0 offen sc1")
    sg.text(f"s_sub_u32 s{S_SPIN}, s{S_SPIN}, 1")
    sg.text("s_waitcnt vmcnt(0)")
    sg.text(f"v_cmp_ne_u64 vcc, s[{S_NON}:{S_NON+1}], v[250:251]")
    sg.text(f"s_cmp_eq_u32 s{S_SPIN}, 0")
    sg.text(f"s_cbranch_scc1 {lab}_done")
    sg.text("s_nop 2")
    sg.text(f"s_cbranch_vccnz {lab}")
    sg.text(f"{lab}_done:")
    sg.vm = []
def raise_flag(sg, stage, lab):
    n, sh = (4, 7) if stage == 1 else (8, 9)
    sg.text(f"s_cmp_lg_u32 s{S_W}, 0"); sg.text(f"s_cbranch_scc1 {lab}")
    sg.text(f"s_mov_b64 s[{S_EX}:{S_EX+1}], exec"); sg.text(f"s_mov_b64 exec, {(1 << n) - 1 if n < 7 else '0xff'}")
    for x in [f"v_lshl_add_u32 v9, v{V_LANE}, {sh}, s{S_G1 if stage == 1 else S_G2}", f"v_mov_b32 v250, s{S_NON}", f"v_mov_b32 v251, s{S_NON+1}",
              f"buffer_store_dwordx2 v[250:251], v9, s[{S_C}:{S_C+3}], 0 offen{opt.f1_flags if stage == 1 else ' sc1'}"]: sg.text(x)
    sg.text(f"s_mov_b64 exec, s[{S_EX}:{S_EX+1}]")
    sg.text(f"{lab}:")
WOF = A_Q
RES = 100
def part(q, k):
    if q == 0: return 36 + 4 * k if k < 4 else 64 + 4 * (k - 4)
    return {1: 100, 2: 164, 3: 188, 4: 100}[q] + 4 * k
def preads(q):
    o = []
    for jd in range(1, 4):
        for e in range(2):
            k = (jd - 1) * 2 + e; u = q * 6 + k; row = u >> 3
            o.append(dsrd('ds_read_b128', ('v', part(q, k)), 4, V_CR + 2 * (jd - 1) + (row >> 1), (row & 1) * 32 * KB + (u & 7) * KB))
    return o
LSA, LSB = 124, 76
def lreads(qs):
    if qs == (0, 1): return [dsrd('ds_read_b64', ('v', LSA + src * 2), 2, V_LR, src * 8 * KB) for src in range(4)]
    return [dsrd('ds_read_b128', ('v', LSB + src * 4), 4, V_LR, src * 8 * KB + 16) for src in range(4)]
def lsum(qs):
    w = []
    def lr(src, q): return LSA + src * 2 + q if q < 2 else LSB + src * 4 + q - 2
    LS = lr(0, qs[0])
    for q in qs:
        d = V_T0 + q
        w.append(V(f"v_add_f32 v{d}, v{lr(0,q)}, v{lr(1,q)}", [lr(0,q), lr(1,q)], [d]))
        w.append(V(f"v_add_f32 v{lr(2,q)}, v{lr(2,q)}, v{lr(3,q)}", [lr(2,q), lr(3,q)], [lr(2,q)]))
        w.append(V(f"v_add_f32 v{d}, v{d}, v{lr(2,q)}", [d, lr(2,q)], [d]))
    a_, b_, c_ = V_T0 + qs[0], V_T0 + qs[1], V_T0 + qs[-1]
    w.append(V(f"v_min3_f32 v{LS}, v{a_}, v{b_}, v{c_}", [a_, b_, c_], [LS]))
    w.append(V(f"v_add_f32 v{LS+1}, v{a_}, v{b_}", [a_, b_], [LS+1]))
    w.append(V(f"v_add_f32 v{LS+1}, v{LS+1}, v{c_}", [LS+1, c_], [LS+1]))
    w.append(V(f"v_cmp_nle_f32 vcc, {f2h(2.0**int(opt.lo_exp))}, v{LS}", [LS], [VCC]))
    w.append(S(f"s_mov_b64 s[{S_EX}:{S_EX+1}], vcc", [VCC], [S_EX, S_EX+1]))
    w.append(V(f"v_cmp_nge_f32 vcc, {f2h(2.0**int(opt.hi_exp))}, v{LS+1}", [LS+1], [VCC]))
    w.append(S(f"s_or_b64 vcc, vcc, s[{S_EX}:{S_EX+1}]", [VCC, S_EX, S_EX+1], [VCC]))
    w.append(S(f"s_and_b64 vcc, vcc, s[{S_GM}:{S_GM+1}]", [VCC], [VCC]))
    w.append(raw("s_cbranch_vccnz L_redo"))
    for q in qs: w.append(T(f"v_rcp_f32 v{V_T0+q}, v{V_T0+q}", [V_T0+q], [V_T0+q]))
    return w
def finish(q):
    w = []
    for e in range(2):
        o_ = V_OWN[q] + e * 4
        for jd in range(1, 4):
            p_ = part(q, (jd - 1) * 2 + e)
            for r in (0, 2):
                w.append(V(f"v_pk_add_f32 v[{o_+r}:{o_+r+1}], v[{o_+r}:{o_+r+1}], v[{p_+r}:{p_+r+1}]", [o_+r, o_+r+1, p_+r, p_+r+1], [o_+r, o_+r+1]))
    o_ = V_OWN[q]
    ri = V_T0 + (q & ~1); sel = "op_sel:[0,1] op_sel_hi:[1,1]" if q & 1 else "op_sel:[0,0] op_sel_hi:[1,0]"
    for r in range(0, 8, 2):
        w.append(V(f"v_pk_mul_f32 v[{o_+r}:{o_+r+1}], v[{o_+r}:{o_+r+1}], v[{ri}:{ri+1}] {sel}", [o_+r, o_+r+1, V_T0+q], [o_+r, o_+r+1]))
    for r in range(4):
        w.append(V(f"v_cvt_pk_bf16_f32 v{o_+r}, v{o_+2*r}, v{o_+2*r+1}", [o_+2*r, o_+2*r+1], [o_+r]))
    w.append(S(f"s_mov_b32 s{S_SV}, {q*128*KB}", [], [S_SV]))
    w.append(vstore(('v', o_), 4, V_OST, S_O, S_SV, 0, flags=opt.o_flags, tag='ost'))
    return w
def wor():
    return [dsrd('ds_read_b64_tr_b16', ('a', WOF + (ks * 2 + e) * 4 + h * 2), 2, V_WT + 4 + e, ks * 8 * KB + h * 4096) for ks in range(4) for e in range(2) for h in range(2)]
def combine(sg, Q):
    assert not Q.q
    mf = pv(39); gaps = [[] for _ in mf]
    wr = comb_writes(3)[4:]; ls = lsum((0, 1))
    for k, x in enumerate(wr): gaps[3 * k].append(x)
    k = 0
    for gi in range(9):
        n_ = 2 - len(gaps[gi])
        while ls and (n_ > 0 or ls[0].k == 'salu') and gi < 9:
            x = ls.pop(0); gaps[gi].append(x)
            n_ -= 0 if x.k == 'salu' else 2 if x.k == 'trans' else 1
    sg.addall(interleave(mf, gaps))
    stamp(sg, 4)
    w4 = comb_writes(4)
    w = ls + finish(0) + finish(1)
    for k, x in enumerate(w4): w.insert(min(len(w), 6 + k * 6), x)
    sg.addall(w)
    sg.add(barrier())
    stamp(sg, 5)
    Q.push(wo_dma(0))
    rd = lreads((2, 3, 4)) + preads(2) + preads(3)
    weave(sg, Q, rd, int(opt.cw), 2)
    sg.addall(rd)
    w = lsum((2, 3, 4)) + preads(4) + finish(2) + finish(3) + finish(4)
    for k, x in enumerate(wor()): w.insert(30 + 3 * k, x)
    sg.addall(w)
    stamp(sg, 6)

def phase_c(sg, Q):
    a = sg.add
    ACC = 164
    a(barrier())
    stamp(sg, 5, 'D')
    for q in range(5): a(dswr('ds_write_b128', V_OW, ('v', V_OWN[q]), 4, q * KB))
    Q.push(wo_dma(1) + wo_dma(2))
    weave(sg, Q, [], int(opt.shadow), 0)
    stamp(sg, 6, 'D')
    a(barrier(needvm=['ost']))
    stamp(sg, 7, 'D')
    stamp(sg, 7)
    raise_flag(sg, 1, "L_sig1")
    def CF(k): return [(100, 120), (64, 84), (204, 36)][k % 3]
    def c_reads(k):
        pos, ks = divmod(k, 4); pos -= 1
        xf, wf = CF(k)
        ob = 0 if pos < 0 else (44 - 20 * pos) * KB
        xr = [dsrd('ds_read_b128', ('v', xf + q * 4), 4, V_OL, ob + (ks * 5 + q) * KB) for q in range(5)]
        if pos < 0: return xr
        wb = (pos * 4 + ks) * 8 * KB
        wr = [dsrd('ds_read_b64_tr_b16', ('v', wf + e * 4 + h * 2), 2, V_WT + (2 if wb >= 64 * KB else 0) + e, (wb % (64 * KB)) + h * 4096) for e in range(2) for h in range(2)]
        return wr[:2] + xr[:1] + wr[2:] + xr[1:]
    def c_mfmas(k):
        xf, wf = CF(k)
        ff = 'v'
        if k < 4: wf, ff = WOF + k * 8, 'a'
        o = []
        for q in range(5):
            for e in range(2):
                d = ('v', ACC + (q * 2 + e) * 4)
                o.append(mfma(d, (ff, wf + e * 4), ('v', xf + q * 4), 0 if k == 0 else d))
        o[0].r |= set(R('v', xf, 20) + R(ff, wf, 8))
        return o
    def step(k, nx, pos=()):
        mf = c_mfmas(k); gaps = [[] for _ in mf]
        if nx is not None:
            for i, r in enumerate(c_reads(nx)): gaps[i].append(r)
        place(gaps, Q, pos)
        sg.addall(interleave(mf, gaps))
    def own_steps():
        for k in range(4): step(k, k + 2 if k < 2 else None, [1, 5, 9] if k % 2 == 0 else [3, 7])
    sg.addall(c_reads(0)); sg.addall(c_reads(1))
    held = []
    if int(opt.ownlate) == 2: held = Q.q; Q.q = []
    elif int(opt.ownlate): weave(sg, Q, [], len(Q.q), 0)
    else: own_steps()
    assert not Q.q
    stamp(sg, 8, 'D')
    t = [f"s_mov_b32 s{S_SPIN}, {opt.spin}", "L_poll1:", f"s_load_dwordx8 s[4:11], s[{S_C}:{S_C+1}], s{S_F1} glc", f"s_sub_u32 s{S_SPIN}, s{S_SPIN}, 1", "s_waitcnt lgkmcnt(0)",
         f"s_cmp_eq_u32 s{S_SPIN}, 0", "s_cbranch_scc1 L_poll1_done"]
    for h in range(4): t += [f"s_cmp_lg_u64 s[{4+2*h}:{5+2*h}], s[{S_NON}:{S_NON+1}]", "s_cbranch_scc1 L_poll1"]
    t += ["L_poll1_done:"]
    if int(opt.p1w): t = [f"s_cmp_lg_u32 s{S_W}, 0", "s_cbranch_scc1 L_poll1_done"] + t + ["s_waitcnt lgkmcnt(0)", "s_barrier"]
    for x in t: sg.text(x)
    sg.lg = []
    stamp(sg, 9, 'D')
    stamp(sg, 5, 'E')
    stamp(sg, 8)
    Q.push(osib_dma(0) + osib_dma(1) + held)
    if int(opt.ownlate):
        weave(sg, Q, [], 5, 0); own_steps()
    weave(sg, Q, [], len(Q.q), 0)
    stamp(sg, 6, 'E')
    a(barrier(needvm=[('os', 0), ('wo', 0), ('wo', 1)]))
    stamp(sg, 7, 'E')
    Q.push(osib_dma(2))
    sg.addall(c_reads(4)); sg.addall(c_reads(5))
    def pfin(q):
        b = ACC + q * 8
        return [V(f"v_cvt_pk_bf16_f32 v{b+r}, v{b+2*r}, v{b+2*r+1}", [b+2*r, b+2*r+1], [b+r]) for r in range(4)] + [vstore(('v', b), 4, V_PS, S_WT, S_TAB + q, 0, flags=' sc1', tag='pst')]
    last = 16 - (2 if int(opt.qmaj) else 0)
    for k in range(4, last):
        nx = k + 2 if k + 2 < 16 else None
        if nx in (8, 12):
            assert not Q.q or nx == 8
            a(barrier(needvm=[('os', nx // 4 - 1), ('wo', nx // 4 - 1)], lg0=False))
            stamp(sg, 8 if nx == 8 else 9, 'E')
        step(k, nx, [1, 5, 9] if k % 2 == 0 else [3, 7])
    if int(opt.qmaj):
        m14, m15 = c_mfmas(14), c_mfmas(15)
        m15[0].r -= set(R('v', CF(15)[0] + 4, 16))
        mf = flat([[m14[2*q], m15[2*q], m14[2*q+1], m15[2*q+1]] for q in range(5)])
        gaps = [[] for _ in mf]
        for q in range(4):
            f_ = pfin(q)
            g0 = 4 * q + 6
            if g0 + 2 < 20:
                gaps[g0] += f_[0:2]; gaps[g0 + 1] += f_[2:4]; gaps[g0 + 2] += f_[4:]
        sg.addall(interleave(mf, gaps))
        stamp(sg, 9)
        sg.addall(pfin(3) + pfin(4))
    else:
        stamp(sg, 9)
        for q in range(5): sg.addall(pfin(q))
    a(barrier(needvm=['pst'], lg0=False))
    stamp(sg, 5, '2')
    raise_flag(sg, 2, "L_sig2")
    a(S(f"s_mov_b32 s{S_SO}, 4096", [], [S_SO]))
    a(S(f"s_mov_b32 s{S_T1}, 0xffff0000", [], [S_T1]))
    PB, SM, U = 100, 140, 148
    def pl(h): return vload(('v', PB + 4 * h), 4, V_PLD, S_WT, S_SO if h >= 4 else None, (h & 3) * 1024, flags=' sc1')
    t = [f"s_mov_b32 s{S_SPIN}, {opt.spin}", f"s_mov_b32 s{S_T2}, 0", "L_poll2:", f"s_load_dwordx16 s[4:19], s[{S_C}:{S_C+1}], s{S_F2} glc", f"s_sub_u32 s{S_SPIN}, s{S_SPIN}, 1",
         "s_waitcnt lgkmcnt(0)", f"s_cmp_eq_u32 s{S_SPIN}, 0", "s_cbranch_scc1 L_poll2_done"]
    for h in range(8):
        t += [f"s_cmp_lg_u64 s[{4+2*h}:{5+2*h}], s[{S_NON}:{S_NON+1}]", f"s_cbranch_scc1 L_g{h}", f"s_bitcmp1_b32 s{S_T2}, {h}", f"s_cbranch_scc1 L_g{h}",
              f"s_bitset1_b32 s{S_T2}, {h}", pl(h).t, f"L_g{h}:"]
    t += [f"s_cmp_lg_u32 s{S_T2}, 0xff", "s_cbranch_scc1 L_poll2", "L_poll2_done:"]
    if int(opt.p2w):
        t = [f"s_cmp_lg_u32 s{S_W}, 0", "s_cbranch_scc1 L_poll2_done", f"s_mov_b32 s{S_SPIN}, {opt.spin}", "L_poll2:", f"s_load_dwordx16 s[4:19], s[{S_C}:{S_C+1}], s{S_F2} glc",
             f"s_sub_u32 s{S_SPIN}, s{S_SPIN}, 1", "s_waitcnt lgkmcnt(0)", f"s_cmp_eq_u32 s{S_SPIN}, 0", "s_cbranch_scc1 L_poll2_done"]
        for h in range(8): t += [f"s_cmp_lg_u64 s[{4+2*h}:{5+2*h}], s[{S_NON}:{S_NON+1}]", "s_cbranch_scc1 L_poll2"]
        t += ["L_poll2_done:", "s_barrier"] + [pl(h).t for h in range(8)]
    for x in t: sg.text(x)
    stamp(sg, 6, '2')
    sg.drain()
    for h in range(8):
        d = SM if h == 0 else U
        for r in range(4):
            a(V(f"v_lshlrev_b32 v{d+2*r}, 16, v{PB+4*h+r}", [PB+4*h+r], [d+2*r]))
            a(V(f"v_and_b32 v{d+2*r+1}, s{S_T1}, v{PB+4*h+r}", [PB+4*h+r], [d+2*r+1]))
        if h:
            for r in range(0, 8, 2):
                a(V(f"v_pk_add_f32 v[{SM+r}:{SM+r+1}], v[{SM+r}:{SM+r+1}], v[{U+r}:{U+r+1}]", [SM+r, SM+r+1, U+r, U+r+1], [SM+r, SM+r+1]))
    for r in range(4):
        a(V(f"v_cvt_pk_bf16_f32 v{SM+r}, v{SM+2*r}, v{SM+2*r+1}", [SM+2*r, SM+2*r+1], [SM+r]))
    a(vstore(('v', SM), 2, V_OUT, S_OUT, None, 0, flags=opt.out_flags))
    a(vstore(('v', SM + 2), 2, V_OUT, S_OUT, None, 32, flags=opt.out_flags))

def out_of_line():
    t = []
    t += ["L_spin_n:", f"s_mov_b32 s{S_SPIN}, {opt.spin}", "L_spin_n1:",
          f"buffer_load_dwordx2 v[{V_GC}:{V_GC+1}], v9, s[{S_D}:{S_D+3}], 0 offen sc1", f"s_sub_u32 s{S_SPIN}, s{S_SPIN}, 1", "s_waitcnt vmcnt(0)",
          f"v_readfirstlane_b32 s{S_NON}, v{V_GC}", f"v_readfirstlane_b32 s{S_NON+1}, v{V_GC+1}", f"s_cmp_eq_u32 s{S_SPIN}, 0", "s_cbranch_scc1 L_back_n", "s_nop 2",
          f"s_cmp_eq_u64 s[{S_NON}:{S_NON+1}], 0", "s_cbranch_scc1 L_spin_n1", "s_branch L_back_n"]
    t += ["L_redo:", f"s_mov_b64 s[{S_GM}:{S_GM+1}], 0", f"s_mov_b32 s{S_REDO}, 1",
          "s_waitcnt vmcnt(0) lgkmcnt(0)", "s_barrier"]
    sg = Seg()
    p1 = prologue1()
    a = sg.add
    a(V(f"v_lshl_add_u32 v{V_T0}, s{S_W}, 2, v{V_G}", [V_G], [V_T0]))
    a(V(f"v_xor_b32 v{V_T1}, v{V_N}, v{V_T0}", [V_N, V_T0], [V_T1]))
    a(V(f"v_lshlrev_b32 v{V_T1}, 4, v{V_T1}", [V_T1], [V_T1]))
    a(V(f"v_lshl_add_u32 v{V_XD}, v{V_T0}, 10, v{V_T1}", [V_T0, V_T1], [V_XD]))
    a(S(f"s_and_b32 s{S_T0}, s{S_W}, 2", [S_W], [S_T0]))
    a(S(f"s_lshl_b32 s{S_T0}, s{S_T0}, 2", [S_T0], [S_T0]))
    a(V(f"v_lshl_add_u32 v{V_T1}, v{V_G}, 1, s{S_T0}", [V_G], [V_T1]))
    a(V(f"v_xor_b32 v{V_T1}, v{V_N}, v{V_T1}", [V_N, V_T1], [V_T1]))
    a(V(f"v_lshlrev_b32 v{V_T1}, 4, v{V_T1}", [V_T1], [V_T1]))
    a(V(f"v_lshl_add_u32 v{V_WD}, v{V_T0}, 13, v{V_T1}", [V_T0, V_T1], [V_WD]))
    t += sg.out + ["s_nop 4", "s_branch L_restart"]
    sg = Seg(); a = sg.add
    sg.text("L_max:")
    sg.text(f"s_mov_b32 s{S_SPIN}, m0")
    sg.drain()
    sg.text("s_barrier")
    MX, KF, AD = 76, V_VF, 84
    for q in range(5): a(V(f"v_mov_b32 v{MX+q}, 0xff800000", [], [MX+q]))
    for s in range(4): a(V(f"v_add_u32 v{AD+s}, {96*KB}, v{V_KA+s}", [V_KA+s], [AD+s]))
    a(S(f"s_mov_b32 s{S_T2}, 0", [], [S_T2]))
    sg.text("L_max_loop:"); sg.reset_hist()
    for j in range(8):
        if j % 4 == 0:
            a(S(f"s_add_u32 s{S_T1}, s{S_T2}, {(j>>2)*4096}", [S_T2], [S_T1]))
            a(S(f"s_add_u32 m0, s{S_W8K}, {96*KB + (j>>2)*4096}", [S_W8K], [M0]))
        a(dma(V_KD + (j & 3), S_K, S_T1, 1024 * (j & 3), 'mk'))
    for t_ in range(2):
        for s in range(4):
            a(dsrd('ds_read_b128', ('v', KF + (t_ * 4 + s) * 4), 4, AD + s, t_ * 4096, needvm=['mk']))
    for q in range(5):
        for t_ in range(2):
            d = ('v', 88 + t_ * 4)
            for s in range(4): a(mfma(d, ('v', KF + (t_ * 4 + s) * 4), AQ(q, s), 0 if s == 0 else d))
        for k in range(4):
            a(V(f"v_max3_f32 v{MX+q}, v{MX+q}, v{88+2*k}, v{89+2*k}", [MX+q, 88+2*k, 89+2*k], [MX+q]))
    sg.drain()
    a(S(f"s_add_u32 s{S_T2}, s{S_T2}, 8192", [S_T2], [S_T2]))
    sg.text(f"s_cmp_lt_u32 s{S_T2}, 65536"); sg.text("s_nop 4"); sg.text("s_cbranch_scc1 L_max_loop")
    sg.text("s_barrier")
    a(S(f"s_mul_i32 s{S_T0}, s{S_W}, 1280", [S_W], [S_T0]))
    a(S(f"s_add_u32 s{S_T0}, s{S_T0}, {96*KB}", [S_T0], [S_T0]))
    a(V(f"v_lshl_add_u32 v{AD}, v{V_LANE}, 2, s{S_T0}", [V_LANE], [AD]))
    a(S(f"s_mov_b32 s{S_T0}, {96*KB}", [], [S_T0]))
    a(V(f"v_lshl_add_u32 v{AD+1}, v{V_N}, 2, s{S_T0}", [V_N], [AD+1]))
    for q in range(5): a(dswr('ds_write_b32', AD, ('v', MX + q), 1, q * 256))
    a(barrier())
    for q in range(5):
        for k in range(16):
            a(dsrd('ds_read_b32', ('v', KF + k), 1, AD + 1, (k >> 2) * 1280 + q * 256 + (k & 3) * 64))
        for k in range(8):
            a(V(f"v_max3_f32 v{MX+q}, v{MX+q}, v{KF+2*k}, v{KF+2*k+1}", [MX+q, KF+2*k, KF+2*k+1], [MX+q]))
        for r in range(4):
            a(V(f"v_sub_f32 v{V_NEGM+q*4+r}, 0, v{MX+q}", [MX+q], [V_NEGM+q*4+r]))
    sg.drain()
    sg.text("s_barrier"); sg.text(f"s_mov_b32 m0, s{S_SPIN}"); sg.text("s_nop 4"); sg.text("s_branch L_back_max")
    return t + sg.out

def stamp_out(sg, n):
    if not opt.stamps: return
    stamp(sg, n - 1)
    t = ["s_load_dwordx2 s[4:5], s[0:1], 56", "s_waitcnt lgkmcnt(0)", f"s_add_u32 s4, s4, {16<<20}", "s_addc_u32 s5, s5, 0", "s_and_b32 s5, s5, 0xffff",
         "s_mov_b32 s6, 0x100000", "s_mov_b32 s7, 0x20000", "s_lshl_b32 s8, s2, 2", "s_add_u32 s8, s8, s32", "s_lshl_b32 s8, s8, 6", "v_mov_b32 v2, s8"]
    for i in range(n):
        t += [f"v_mov_b32 v3, s{3 if i == 0 else 76+2*i}", f"buffer_store_dword v3, v2, s[4:7], 0 offen offset:{4*i}"]
    for x in t: sg.text(x)

def kernel():
    sg = Seg()
    sg.text(NAME + "_kernel:")
    sg.text("s_cmp_ge_u32 s2, 256")
    sg.text("s_cbranch_scc1 L_end")
    if opt.stamps:
        stamp(sg, 0)
    p1 = prologue1()
    sg.addall(p1[:2])
    if int(opt.cpf):
        for x in ["s_getpc_b64 s[94:95]", "L_pc:", "s_lshr_b32 s3, s2, 3", "v_lshrrev_b32 v8, 6, v0", "v_and_b32 v9, 1, v0", "v_lshl_add_u32 v8, v8, 1, v9",
                  "v_lshl_add_u32 v8, s3, 3, v8", "v_lshlrev_b32 v8, 7, v8", "v_min_u32 v8, (L_code_end - L_pc - 4) & 0xffffff80, v8"] + (["global_load_dword v255, v8, s[94:95]"] if int(opt.cpf) == 1 else ["s_mov_b64 s[12:13], s[94:95]"]): sg.text(x)
    sg.addall(p1[2:])
    if opt.stamps:
        sg.text("s_mov_b32 s3, s76")
    p2 = prologue2()
    Q = Queue()
    first = x_dma(0) + w_dma(0)
    stamp(sg, 5, 'P')
    Q.push(first)
    weave(sg, Q, [], 9, 0)
    if int(opt.cpf) == 2: sg.text("global_load_dword v255, v8, s[12:13]")
    stamp(sg, 6, 'P')
    sg.addall(p2)
    stamp(sg, 7, 'P')
    sg.text("s_cmp_lg_u32 s2, 0"); sg.text("s_cbranch_scc1 L_nocz")
    lane0(sg, ["v_mov_b32 v9, 0", f"s_memrealtime s[{S_NON}:{S_NON+1}]", "s_waitcnt lgkmcnt(0)", f"s_or_b32 s{S_NON}, s{S_NON}, 1", f"v_mov_b32 v250, s{S_NON}", f"v_mov_b32 v251, s{S_NON+1}",
               f"buffer_store_dwordx2 v[250:251], v9, s[{S_D}:{S_D+3}], 0 offen sc1"], "L_nocz")
    sg.text("s_branch L_first")
    sg.text("L_restart:")
    s2 = Seg(); s2.addall(restart_setup()); Q2 = Queue(); Q2.push(x_dma(0) + w_dma(0)); weave(s2, Q2, [], 9, 0)
    for x in s2.out: sg.text(x)
    sg.text("L_first:")
    early, late = prologue3()
    early = early + late
    def BB(u): return f"B{u + 1}"
    Q.push(w_dma(1) + x_dma(1) + w_dma(2) + w_dma(3) + x_dma(2) + w_dma(4) + ((w_dma(5, 'B2') + x_dma(3)) if int(opt.la) else (x_dma(3) + w_dma(5, 'B2'))) + w_dma(6, 'B3') + w_dma(7, 'B4')
           + kv_dma('k', 0, 'B5') + kv_dma('v', 0, 'B6') + kv_dma('k', 1, 'B8') + kv_dma('v', 1, 'BQ'))
    for i in range(2, 8):
        if not int(opt.nodma): Q.push(kv_dma('k', i) + kv_dma('v', i))
    n0 = int(opt.n0) - 9
    weave(sg, Q, early, n0, (len(early) + n0 - 1) // n0)
    sg.addall(early)
    qr = phase_a(sg, Q)
    sg.addall(qr[:0])
    stamp(sg, 3)
    sg.text(f"s_cmp_eq_u32 s{S_REDO}, 0"); sg.text("s_cbranch_scc1 L_back_max")
    s2 = Seg(); s2.addall(qr)
    for x in s2.out: sg.text(x)
    sg.text("s_branch L_max")
    sg.text("L_back_max:")
    phase_b(sg, Q, qr)
    combine(sg, Q)
    phase_c(sg, Q)
    sg.text("L_fin:")
    stamp_out(sg, 11)
    sg.text("L_end:")
    sg.text("s_endpgm")
    return sg.out + ['L_code_end:'] + out_of_line()

def report_kernel():
    idx, mode = opt.report.split(',')
    if mode == 'next':
        return ["report_kernel:", "s_cmp_ge_u32 s2, 1", "s_cbranch_scc1 L3_end", "s_memrealtime s[12:13]", "s_load_dwordx2 s[4:5], s[0:1], 56", "s_waitcnt lgkmcnt(0)",
                f"s_add_u32 s4, s4, {17<<20}", "s_addc_u32 s5, s5, 0", "s_and_b32 s5, s5, 0xffff", "s_mov_b32 s6, 64", "s_mov_b32 s7, 0x20000", "v_mov_b32 v1, 0", "v_mov_b32 v2, s12",
                "buffer_store_dword v2, v1, s[4:7], 0 offen", "L3_end:", "s_endpgm"]
    t = ["report_kernel:", "s_cmp_ge_u32 s2, 1", "s_cbranch_scc1 L3_end", "s_load_dwordx2 s[4:5], s[0:1], 56", "s_waitcnt lgkmcnt(0)",
         f"s_add_u32 s4, s4, {16<<20}", "s_addc_u32 s5, s5, 0", "s_and_b32 s5, s5, 0xffff", "s_mov_b32 s6, 0x100000", "s_mov_b32 s7, 0x20000",
         "v_lshlrev_b32 v1, 8, v0", f"buffer_load_dword v2, v1, s[4:7], 0 offen offset:{4*int(idx)}", "buffer_load_dword v3, v1, s[4:7], 0 offen",
         "v_mov_b32 v4, 0", "v_mov_b32 v5, 0", "v_mov_b32 v6, -1", "ds_write_b32 v4, v5", "ds_write_b32 v4, v6 offset:8", "s_waitcnt vmcnt(0) lgkmcnt(0)", "s_barrier",
         "ds_min_u32 v4, v3 offset:8", "s_waitcnt lgkmcnt(0)", "s_barrier", "ds_read_b32 v6, v4 offset:8", "s_waitcnt lgkmcnt(0)", "v_sub_u32 v2, v2, v6",
         "v_lshrrev_b32 v7, 3, v0", "v_mul_u32_u24 v7, 52, v7", "v_lshrrev_b32 v7, 8, v7", "v_and_b32 v8, 1, v0", "v_sub_u32 v8, 6, v8", "v_cmp_lt_u32 vcc, v7, v8",
         "v_min_u32 v2, 10000, v2",
         ("ds_add_u32 v4, v2" if mode == 'mean' else "ds_max_u32 v4, v2"), "s_waitcnt lgkmcnt(0)", "s_barrier", "ds_read_b32 v6, v4", "s_memrealtime s[12:13]", "s_waitcnt lgkmcnt(0)",
         "v_readfirstlane_b32 s10, v6", "s_nop 4"]
    if mode == 'mean': t += ["s_mul_i32 s10, s10, 10", "s_lshr_b32 s10, s10, 8"]
    elif mode == 'max': t += ["s_mul_i32 s10, s10, 10"]
    else: t += ["s_mov_b32 s10, 0"]
    t += ["L3_spin:", "s_memrealtime s[14:15]", "s_waitcnt lgkmcnt(0)", "s_sub_u32 s14, s14, s12",
          "s_cmp_lt_u32 s14, s10", "s_cbranch_scc1 L3_spin", "L3_end:", "s_endpgm"]
    return t

def build():
    def fmt(l): return "\n".join(x if x.endswith(':') else "    " + x for x in l)
    nm = NAME + "_kernel"
    s = "; @launch grid=(256,1,1) block=(256,1,1) lds=163840\n"
    if opt.report:
        s = f"; @launch kernel={nm} grid=(256,1,1) block=(256,1,1) lds=163840\n; @launch kernel=report_kernel grid=(1,1,1) block=(256,1,1) lds=64\n"
    s += '.amdgcn_target "amdgcn-amd-amdhsa--gfx950"\n.text\n'
    s += f".globl {nm}\n.p2align 8\n.type {nm},@function\n" + fmt(kernel()) + "\n"
    if opt.report: s += ".globl report_kernel\n.p2align 8\n.type report_kernel,@function\n" + fmt(report_kernel()) + "\n"
    s += f""".section .rodata,"a"
.p2align 6
.amdhsa_kernel {nm}
  .amdhsa_next_free_vgpr 512
  .amdhsa_next_free_sgpr 102
  .amdhsa_accum_offset 256
  .amdhsa_group_segment_fixed_size 0
  .amdhsa_kernarg_size 64
  .amdhsa_user_sgpr_count 2
  .amdhsa_user_sgpr_kernarg_segment_ptr 1
  .amdhsa_system_sgpr_workgroup_id_x 1
  .amdhsa_float_denorm_mode_32 3
.end_amdhsa_kernel
"""
    if opt.report:
        s += """.p2align 6
.amdhsa_kernel report_kernel
  .amdhsa_next_free_vgpr 32
  .amdhsa_next_free_sgpr 32
  .amdhsa_accum_offset 32
  .amdhsa_group_segment_fixed_size 0
  .amdhsa_kernarg_size 64
  .amdhsa_user_sgpr_count 2
  .amdhsa_user_sgpr_kernarg_segment_ptr 1
  .amdhsa_system_sgpr_workgroup_id_x 1
.end_amdhsa_kernel
"""
    return s

if __name__ == '__main__':
    out = sys.argv[1] if len(sys.argv) > 1 else 'cdna_kernels/' + NAME + '.s'
    for a_ in sys.argv[2:]:
        k, v = a_.split('=', 1)
        setattr(opt, k, (' ' + v) if k.endswith('flags') and v else v)
    txt = build()
    open(out, 'w').write(txt)
```

```python
import sys, struct, re
from dsl import *

KB = 1024
NAME = 'standalone__gqa_block_cached__near_ridge'
def f2h(x): return hex(struct.unpack('<I', struct.pack('<f', x))[0])
QSCALE = 1.4426950408889634 / (128 ** 0.5)
WS_WO = 8 << 20
WS_CT = 12 << 20

class Opt:
    stamps = ''
    report = ''
    kv_flags = ''
    a_flags = ''
    n0 = 22
    warm = 1
    perstep = 6
    lo_exp = -40
    hi_exp = 40
    spin = 300000
    rt_at = 5
    bar_at = 12
    nodma = 0
    wfirst = 0
    kvnt = 'x'
    ant = ''
    tch_flags = ''
    wsb = 0
    drain = '45'
    tlb_at = 99
    aonly = 0
    la = 10
    aq = 1
    ownlate = 1
    o_flags = ' sc1'
    f1_flags = ' sc1'
    w64 = 0
    out_flags = ''
    bsched = 1
    p1w = 1
    p2w = 0
    pollk = '19,29,39'
    dyn2 = 1
    qmaj = 1
    tch_at = 27
    even_at = 99
    pdepth = 1
    kvo = 4
    finw = 0
    alim = 16
    cpf = 1
    chain = 1
    wo_at = 35
    calc_at = 16
    nl_at = 8
    nc_at = 13
    cw = 8
    shadow = 6
    bst = '0,5,10,15,20'
    no_rt = 0
    clk = 'r'
    lg0 = 0
    vpos = '1,5,9,13'
    rot_kv = 1
    rot_a = 8
    rot_c = 1
    gl_at = 29
    gc_at = 33
opt = Opt()

S_X, S_WQ, S_K, S_V, S_O, S_WO, S_WT, S_WL, S_C, S_D, S_OUT = 4, 8, 12, 16, 20, 24, 28, 52, 56, 60, 64
S_W, S_B, S_HKV, S_HQ = 32, 33, 34, 35
S_W1K, S_W8K, S_SO, S_T0, S_T1, S_T2, S_SK, S_SV = 36, 37, 38, 39, 40, 41, 42, 43
S_TAB = 44
S_REDO, S_MT, S_NT, S_VALID, S_RT, S_SPIN = 68, 69, 70, 71, 72, 73
S_EX = 74
S_F1, S_F2, S_G1, S_G2 = 100, 101, 72, 51
S_GM = 70
S_J_UNUSED = 3
S_P = 76
S_ST = 80
V_LANE, V_N, V_G, V_T0, V_T1, V_T2, V_T3, V_T4, V_T5 = 1, 2, 3, 4, 5, 6, 7, 8, 9
V_KA, V_VA, V_KD, V_VD = 10, 14, 22, 26
V_OST, V_CW, V_LW = 28, 29, 31
V_ONES, V_NEGM, V_L, V_S, V_P, V_KF, V_VF = 32, 36, 56, 76, 92, 100, 164
V_XA, V_XB, V_WA, V_WB, V_XD, V_WD, V_QW = 228, 232, 236, 238, 240, 241, 242
V_GC = 250
S_NON = 96
V_CR, V_LR, V_WOD, V_WT, V_OL, V_OW, V_OD, V_PS, V_PLD, V_OUT, V_P1, V_P2 = 228, 234, 235, 236, 242, 243, 244, 245, 246, 247, 248, 249
V_ZERO = 9
V_TCH = 64
S_H = 52
S_W5K = 55
S_J = 69
A_O, A_Q = 0, 160
V_OWN = [132, 140, 148, 156, 56]
A_KF1, A_L = 120, 240
def AO(lam, q):
    if lam < 2: return ('v', V_OWN[q] + 4 * lam)
    return ('a', A_O + 4 * (q * 6 + lam - 2))
def KF(i, k): return ('v', V_KF + 4 * k) if i % 2 == 0 else ('a', A_KF1 + 4 * k)
def LA(q): return ('a', A_L + 4 * q) if q < 4 else ('a', 152)
def AQ(q, s): return ('a', A_Q + 4 * (q * 4 + s))

def XU(c, q):
    if c == 0: return q * 4 * KB
    if c == 1: return 20 * KB + q * 4 * KB
    if c == 2: return 128 * KB + q * 4 * KB
    return [120, 124, 148, 152, 156][q] * KB
def WU(slot, ks):
    return {0: [40, 48], 1: [56, 96], 2: [104, 112], 3: [64, 72], 4: [80, 88]}[slot][ks] * KB
WSLOT = [0, 1, 2, 3, 4, 0, 1, 2]
QBUF = 128 * KB

def V(t, r=(), w=()):
    return valu(t, r=[('v', x) if isinstance(x, int) else x for x in r], w=[('v', x) if isinstance(x, int) else x for x in w])
def T(t, r=(), w=()):
    return valu(t, r=[('v', x) for x in r], w=[('v', x) for x in w], trans=True)
def S(t, r=(), w=()):
    return salu(t, r=[('s', x) if isinstance(x, int) else x for x in r], w=[('s', x) if isinstance(x, int) else x for x in w])
M0 = ('m0', 0)
VCC = ('vcc', 0)
def flat(l): return [x for y in l for x in y]

def srd(dst, plo, add_s=None, add_imm=0, size=0):
    o = []
    if add_s is not None:
        o.append(S(f"s_add_u32 s{dst}, s{plo}, s{add_s}", [plo, add_s], [dst]))
        o.append(S(f"s_addc_u32 s{dst+1}, s{plo+1}, 0", [plo+1], [dst+1]))
        o.append(S(f"s_and_b32 s{dst+1}, s{dst+1}, 0xffff", [dst+1], [dst+1]))
    elif add_imm:
        o.append(S(f"s_add_u32 s{dst}, s{plo}, {add_imm}", [plo], [dst]))
        o.append(S(f"s_addc_u32 s{dst+1}, s{plo+1}, 0", [plo+1], [dst+1]))
        o.append(S(f"s_and_b32 s{dst+1}, s{dst+1}, 0xffff", [dst+1], [dst+1]))
    else:
        o.append(S(f"s_mov_b32 s{dst}, s{plo}", [plo], [dst]))
        o.append(S(f"s_and_b32 s{dst+1}, s{plo+1}, 0xffff", [plo+1], [dst+1]))
    if isinstance(size, str):
        o.append(S(f"s_mov_b32 s{dst+2}, {size}", [int(size[1:])], [dst+2]))
    else:
        o.append(S(f"s_mov_b32 s{dst+2}, {size}", [], [dst+2]))
    o.append(S(f"s_mov_b32 s{dst+3}, 0x20000", [], [dst+3]))
    return o

KV_ORDER = [[0, 2, 1, 3, 4, 6, 5, 7], [0, 1, 3, 2, 4, 5, 7, 6], [1, 0, 2, 4, 3, 5, 6, 7], [1, 0, 2, 3, 5, 4, 6, 7]]
KV_ORDERS = [KV_ORDER,
  [[0, 4, 1, 2, 3, 5, 6, 7], [1, 0, 5, 2, 3, 4, 6, 7], [2, 0, 1, 6, 3, 4, 5, 7], [3, 0, 1, 2, 7, 4, 5, 6]],
  [[0, 1, 2, 3, 4, 5, 6, 7], [0, 1, 2, 3, 4, 5, 6, 7], [4, 5, 6, 7, 0, 1, 2, 3], [4, 5, 6, 7, 0, 1, 2, 3]],
  [[0, 2, 1, 3, 5, 4, 6, 7], [1, 0, 3, 2, 4, 6, 5, 7], [2, 1, 0, 4, 3, 5, 7, 6], [0, 1, 2, 3, 5, 4, 6, 7]],
  [[0, 1, 2, 4, 3, 5, 6, 7], [1, 0, 2, 3, 5, 4, 6, 7], [2, 0, 1, 3, 4, 6, 5, 7], [0, 1, 3, 2, 4, 5, 7, 6]],
  [[0, 1, 4, 2, 3, 5, 6, 7], [1, 0, 2, 5, 3, 4, 6, 7], [2, 0, 1, 3, 6, 4, 5, 7], [0, 3, 1, 2, 4, 7, 5, 6]],
  [[0, 1, 3, 2, 4, 5, 7, 6], [0, 1, 2, 4, 3, 5, 6, 7], [0, 2, 1, 3, 5, 4, 6, 7], [0, 2, 1, 3, 4, 6, 5, 7]],
  [[0, 1, 2, 4, 3, 5, 6, 7], [1, 0, 3, 2, 5, 4, 6, 7], [2, 3, 0, 1, 4, 6, 5, 7], [3, 2, 1, 0, 4, 5, 7, 6]],
  [[0, 1, 2, 4, 3, 5, 6, 7], [1, 2, 0, 3, 5, 4, 6, 7], [2, 0, 1, 3, 4, 6, 5, 7], [0, 3, 1, 2, 4, 5, 7, 6]]]
def kv_pack(j):
    o = KV_ORDERS[int(opt.kvo)][j] if int(opt.rot_kv) else list(range(8))
    return sum(t << (4 * i) for i, t in enumerate(o))
S_KVO = 98
V_XD4 = 204
S_WC = 99

class Item:
    def __init__(s, pre, ins, after=None): s.pre, s.ins, s.after = pre, ins, after
def x_dma(c, after=None):
    return [Item([S(f"s_add_u32 m0, s{S_W1K}, {XU(c,q)}", [S_W1K], [M0])],
                 dma(V_XD4 + c, S_X, S_TAB + q, 0, ('x', c), flags=(' nt' if 'x' in opt.ant and c < 2 else opt.a_flags)), after) for q in range(5)]
def w_dma(u, after=None):
    o = []
    for k in range(4):
        pre = []
        if k == 0:
            pre.append(S(f"s_add_u32 s{S_SK}, s{S_WC}, {(u & 6) << 19}", [S_WC], [S_SK]))
            pre.append(S(f"s_and_b32 s{S_SK}, s{S_SK}, {7 << 19}", [S_SK], [S_SK]))
            if u & 1: pre.append(S(f"s_xor_b32 s{S_SK}, s{S_SK}, {1 << 19}", [S_SK], [S_SK]))
        pre.append(S(f"s_add_u32 s{S_SO}, s{S_SK}, {k*131072}", [S_SK], [S_SO]))
        pre.append(S(f"s_add_u32 m0, s{S_W1K}, {WU(WSLOT[u], k>>1) + (k&1)*4*KB}", [S_W1K], [M0]))
        o.append(Item(pre, dma(V_WD, S_WQ, S_SO, 0, ('w', u), flags=(' nt' if 'w' in opt.ant and u < 4 else opt.a_flags)), after))
    return o
def kv_dma(kind, i, after=None):
    o = []
    base = (i & 1) * 32 * KB + (0 if kind == 'k' else 64 * KB)
    sr, so = (S_K, S_SK) if kind == 'k' else (S_V, S_SV)
    for j in range(8):
        pre = []
        if j % 4 == 0:
            if j == 0:
                pre.append(S(f"s_bfe_u32 s{so}, s{S_KVO}, {hex((3 << 16) | (4 * i))}", [S_KVO], [so]))
                pre.append(S(f"s_lshl_b32 s{so}, s{so}, 13", [so], [so]))
            else:
                pre.append(S(f"s_add_u32 s{so}, s{so}, 4096", [so], [so]))
            pre.append(S(f"s_add_u32 m0, s{S_W8K}, {base + (j>>2)*4096}", [S_W8K], [M0]))
        va = V_KD + (j & 3) if kind == 'k' else V_VD + (j & 1)
        tag = (kind + 'r', i - 2, j >> 2)
        o.append(Item(pre, dma(va, sr, so, 1024 * (j & 3), (kind, i, j >> 2), needlg=[tag], flags=(' nt' if str(i) in str(opt.kvnt) else opt.kv_flags)), after if i < 2 else tag))
    return o
def k_reads(i):
    return [dsrd('ds_read_b128', KF(i, t * 4 + s), 4, V_KA + s, (i & 1) * 32 * KB + t * 4096,
                 needvm=[('k', i, t)], lgtag=('kr', i, t)) for t in range(2) for s in range(4)]
def v_reads(i):
    return [dsrd('ds_read_b64_tr_b16', ('v', V_VF + (i & 1) * 32 + lam * 4 + h * 2), 2, V_VA + lam, (i & 1) * 32 * KB + h * 4096,
                 needvm=[('v', i, h)], lgtag=('vr', i, h)) for h in range(2) for lam in range(8)]

class Queue:
    def __init__(s): s.q = []; s.pts = set()
    def push(s, items): s.q += items
    def mark(s, p): s.pts.add(p)
    def pop(s):
        if s.q and (s.q[0].after is None or s.q[0].after in s.pts): return s.q.pop(0)
        return None

def place(gaps, Q, pos):
    last = -1
    for p in pos:
        if p >= len(gaps): continue
        it = Q.pop()
        if it is None: break
        pre = list(it.pre)
        avail = list(range(last + 1, p))
        front = []
        if not avail: front = pre
        else:
            slots = [[] for _ in avail]
            for k_, x in enumerate(reversed(pre)):
                slots[max(0, len(avail) - 1 - k_)].insert(0, x)
            for g, sl in zip(avail, slots):
                k_ = 0
                while k_ < len(gaps[g]) and gaps[g][k_].k == 'salu': k_ += 1
                gaps[g][k_:k_] = sl
        k = 0
        while k < len(gaps[p]) and gaps[p][k].k == 'salu': k += 1
        gaps[p][k:k] = front + [it.ins]
        last = p
def weave(sg, Q, fill, n, per):
    for _ in range(n):
        it = Q.pop()
        if it is not None: sg.addall(it.pre + [it.ins])
        for _ in range(per):
            if fill: sg.add(fill.pop(0))

NST = 12
def stamp(sg, i, grp='1'):
    if not opt.stamps: return
    if 5 <= i <= 9 and grp != opt.stamps: return
    sg.text(f"{'s_memtime' if opt.clk == 'c' else 's_memrealtime'} s[{76+2*i}:{77+2*i}]")

def prologue1():
    o = []; a = o.append
    a(raw("s_load_dwordx2 s[92:93], s[0:1], 0"))
    a(raw("s_load_dwordx2 s[26:27], s[0:1], 24"))
    a(V(f"v_lshrrev_b32 v{V_T0}, 6, v0", [0], [V_T0]))
    a(V(f"v_and_b32 v{V_LANE}, 63, v0", [0], [V_LANE]))
    a(V(f"v_readfirstlane_b32 s{S_W}, v{V_T0}", [V_T0], [('s', S_W)]))
    a(S(f"s_and_b32 s{S_HKV}, s2, 7", [2], [S_HKV]))
    a(S(f"s_lshr_b32 s{S_B}, s2, 5", [2], [S_B]))
    a(S(f"s_bfe_u32 s{S_T0}, s2, 0x20003", [2], [S_T0]))
    a(S(f"s_mov_b32 s{S_J}, s{S_T0}", [S_T0], [S_J]))
    a(S(f"s_lshl_b32 s{S_HQ}, s{S_HKV}, 2", [S_HKV], [S_HQ]))
    a(S(f"s_add_u32 s{S_HQ}, s{S_HQ}, s{S_T0}", [S_HQ, S_T0], [S_HQ]))
    if int(opt.rot_a) == 2:
        a(S(f"s_add_u32 s{S_VALID}, s{S_T0}, s{S_B}", [S_T0, S_B], [S_VALID]))
        a(S(f"s_and_b32 s{S_VALID}, s{S_VALID}, 1", [S_VALID], [S_VALID]))
        a(S(f"s_lshl_b32 s{S_VALID}, s{S_VALID}, 2", [S_VALID], [S_VALID]))
    elif int(opt.rot_a) in (5, 6):
        a_, b_ = (S_B, S_T0) if int(opt.rot_a) == 5 else (S_T0, S_B)
        a(S(f"s_lshl_b32 s{S_VALID}, s{b_}, 1", [b_], [S_VALID]))
        a(S(f"s_add_u32 s{S_VALID}, s{S_VALID}, s{a_}", [S_VALID, a_], [S_VALID]))
        a(S(f"s_and_b32 s{S_VALID}, s{S_VALID}, 3", [S_VALID], [S_VALID]))
        a(S(f"s_lshl_b32 s{S_VALID}, s{S_VALID}, 1", [S_VALID], [S_VALID]))
    elif int(opt.rot_a) in (8, 9):
        a(S(f"s_add_u32 s{S_VALID}, s{S_T0}, s{S_B}", [S_T0, S_B], [S_VALID]))
        a(S(f"s_lshl_b32 s{S_VALID}, s{S_VALID}, 1", [S_VALID], [S_VALID]))
        a(S(f"s_and_b32 s{S_T1}, s{S_HKV}, {1 if int(opt.rot_a) == 8 else 3}", [S_HKV], [S_T1]))
        a(S(f"s_add_u32 s{S_VALID}, s{S_VALID}, s{S_T1}", [S_VALID, S_T1], [S_VALID]))
        a(S(f"s_and_b32 s{S_VALID}, s{S_VALID}, 3", [S_VALID], [S_VALID]))
        a(S(f"s_lshl_b32 s{S_VALID}, s{S_VALID}, 1", [S_VALID], [S_VALID]))
    elif int(opt.rot_a) == 7:
        a(S(f"s_add_u32 s{S_VALID}, s{S_T0}, s{S_B}", [S_T0, S_B], [S_VALID]))
        a(S(f"s_and_b32 s{S_VALID}, s{S_VALID}, 1", [S_VALID], [S_VALID]))
        a(S(f"s_lshl_b32 s{S_VALID}, s{S_VALID}, 2", [S_VALID], [S_VALID]))
        a(S(f"s_bfe_u32 s{S_T1}, s{S_B}, 0x10001", [S_B], [S_T1]))
        a(S(f"s_or_b32 s{S_VALID}, s{S_VALID}, s{S_T1}", [S_VALID, S_T1], [S_VALID]))
    elif int(opt.rot_a) == 4:
        a(S(f"s_add_u32 s{S_VALID}, s{S_T0}, s{S_B}", [S_T0, S_B], [S_VALID]))
        a(S(f"s_and_b32 s{S_VALID}, s{S_VALID}, 3", [S_VALID], [S_VALID]))
        a(S(f"s_lshl_b32 s{S_VALID}, s{S_VALID}, 1", [S_VALID], [S_VALID]))
    elif int(opt.rot_a):
        a(S(f"s_lshl_b32 s{S_T0}, s{S_T0}, 1", [S_T0], [S_T0]))
        a(S(f"s_add_u32 s{S_VALID}, s{S_T0}, s{S_B}", [S_T0, S_B], [S_VALID]))
        a(S(f"s_and_b32 s{S_VALID}, s{S_VALID}, 7", [S_VALID], [S_VALID]))
    else:
        a(S(f"s_mov_b32 s{S_VALID}, 0", [], [S_VALID]))
    a(V(f"v_and_b32 v{V_N}, 15, v{V_LANE}", [V_LANE], [V_N]))
    a(V(f"v_lshrrev_b32 v{V_G}, 4, v{V_LANE}", [V_LANE], [V_G]))
    a(S(f"s_lshl_b32 s{S_W1K}, s{S_W}, 10", [S_W], [S_W1K]))
    a(S(f"s_lshl_b32 s{S_W8K}, s{S_W}, 13", [S_W], [S_W8K]))
    a(V(f"v_lshl_add_u32 v{V_T0}, s{S_W}, 2, v{V_G}", [V_G, ('s', S_W)], [V_T0]))
    a(V(f"v_xor_b32 v{V_T1}, v{V_N}, v{V_T0}", [V_N, V_T0], [V_T1]))
    a(V(f"v_lshlrev_b32 v{V_T1}, 4, v{V_T1}", [V_T1], [V_T1]))
    a(V(f"v_lshl_add_u32 v{V_XD}, v{V_T0}, 10, v{V_T1}", [V_T0, V_T1], [V_XD]))
    a(S(f"s_and_b32 s{S_T0}, s{S_W}, 2", [S_W], [S_T0]))
    a(S(f"s_lshl_b32 s{S_T0}, s{S_T0}, 2", [S_T0], [S_T0]))
    a(V(f"v_lshl_add_u32 v{V_T1}, v{V_G}, 1, s{S_T0}", [V_G, ('s', S_T0)], [V_T1]))
    a(V(f"v_xor_b32 v{V_T1}, v{V_N}, v{V_T1}", [V_N, V_T1], [V_T1]))
    a(V(f"v_lshlrev_b32 v{V_T1}, 4, v{V_T1}", [V_T1], [V_T1]))
    a(V(f"v_lshl_add_u32 v{V_WD}, v{V_T0}, 13, v{V_T1}", [V_T0, V_T1], [V_WD]))
    a(S(f"s_mul_i32 s{S_T0}, s{S_B}, 81920", [S_B], [S_T0]))
    a(S(f"s_lshl_b32 s{S_T2}, s{S_HQ}, 8", [S_HQ], [S_T2]))
    a(S(f"s_sub_u32 s{S_T1}, 4194304, s{S_T2}", [S_T2], [S_T1]))
    a(S(f"s_mov_b32 s{S_REDO}, 0", [], [S_REDO]))
    a(S(f"s_lshl_b32 s{S_WC}, s{S_VALID}, 19", [S_VALID], [S_WC]))
    a(S(f"s_mov_b64 s[{S_GM}:{S_GM+1}], -1", [], [S_GM, S_GM+1]))
    o += restart_setup()
    a(S(f"s_mov_b32 s{S_X+2}, 81920", [], [S_X+2])); a(S(f"s_mov_b32 s{S_X+3}, 0x20000", [], [S_X+3]))
    a(S(f"s_mov_b32 s{S_WQ+2}, s{S_T1}", [S_T1], [S_WQ+2])); a(S(f"s_mov_b32 s{S_WQ+3}, 0x20000", [], [S_WQ+3]))
    a(raw("s_waitcnt lgkmcnt(0)", 'wait'))
    o += srd(S_X, 92, add_s=S_T0, size=81920)[:3]
    o += srd(S_WQ, 26, add_s=S_T2, size=0)[:3]
    a(raw("s_load_dwordx4 s[92:95], s[0:1], 8"))
    a(raw(f"s_load_dwordx2 s[{S_WO}:{S_WO+1}], s[0:1], 32"))
    a(raw(f"s_load_dwordx4 s[{S_C}:{S_C+3}], s[0:1], 40"))
    a(raw("s_load_dwordx2 s[100:101], s[0:1], 56"))
    return o

def restart_setup():
    o = [S(f"s_mov_b32 s{S_TAB+q}, {q*16384}", [], [S_TAB+q]) for q in range(5)]
    for c in range(4):
        o.append(S(f"s_lshr_b32 s{S_SO}, s{S_WC}, 12", [S_WC], [S_SO]))
        o.append(S(f"s_add_u32 s{S_SO}, s{S_SO}, {c*256}", [S_SO], [S_SO]))
        o.append(S(f"s_and_b32 s{S_SO}, s{S_SO}, 0x300", [S_SO], [S_SO]))
        o.append(V(f"v_add_u32 v{V_XD4+c}, s{S_SO}, v{V_XD}", [V_XD, ('s', S_SO)], [V_XD4+c]))
    return o

def prologue2():
    o = []; a = o.append
    a(raw("s_waitcnt lgkmcnt(0)", 'wait'))
    a(S(f"s_lshl_b32 s{S_T0}, s{S_B}, 3", [S_B], [S_T0]))
    a(S(f"s_add_u32 s{S_T0}, s{S_T0}, s{S_HKV}", [S_T0, S_HKV], [S_T0]))
    a(S(f"s_lshl_b32 s{S_T0}, s{S_T0}, 2", [S_T0], [S_T0]))
    a(S(f"s_add_u32 s{S_T0}, s{S_T0}, s{S_W}", [S_T0, S_W], [S_T0]))
    a(S(f"s_lshl_b32 s{S_T0}, s{S_T0}, 16", [S_T0], [S_T0]))
    o += srd(S_K, 92, add_s=S_T0, size=65536)
    o += srd(S_V, 94, add_s=S_T0, size=65536)
    a(S(f"s_lshl_b32 s{S_T0}, s{S_HKV}, 19", [S_HKV], [S_T0]))
    o += srd(S_WO, S_WO, add_s=S_T0, size=524288)
    WB = int(opt.wsb) << 20
    o += srd(S_O, 100, add_imm=WB, size=8*5*128*1024)
    o += srd(S_WT, 100, add_imm=WB + WS_WO, size=8*4*20*8*1024)
    o += srd(S_D, S_C + 2, size=256)
    o += srd(S_OUT, S_C, size=655360)
    o += srd(S_C, 100, add_imm=WB + WS_CT, size=65536)
    a(S(f"s_bitcmp1_b32 s{S_HQ}, 0", [S_HQ], []))
    a(S(f"s_mov_b32 s{S_T0}, {hex(kv_pack(0))}", [], [S_T0]))
    a(S(f"s_cselect_b32 s{S_T0}, {hex(kv_pack(1))}, s{S_T0}", [S_T0], [S_T0]))
    a(S(f"s_mov_b32 s{S_T1}, {hex(kv_pack(2))}", [], [S_T1]))
    a(S(f"s_cselect_b32 s{S_T1}, {hex(kv_pack(3))}, s{S_T1}", [S_T1], [S_T1]))
    a(S(f"s_bitcmp1_b32 s{S_HQ}, 1", [S_HQ], []))
    a(S(f"s_cselect_b32 s{S_KVO}, s{S_T1}, s{S_T0}", [S_T0, S_T1], [S_KVO]))
    for p in range(3):
        a(S(f"s_cmp_le_u32 s{S_J}, {p}", [S_J], []))
        a(S(f"s_cselect_b32 s{S_T1}, {p + 1}, {p}", [], [S_T1]))
        a(S(f"s_lshl_b32 s{S_H+p}, s{S_T1}, 17", [S_T1], [S_H+p]))
    a(S(f"s_mul_i32 s{S_W5K}, s{S_W}, 5120", [S_W], [S_W5K]))
    a(S(f"s_lshl_b32 s{S_T0}, s{S_B}, 12", [S_B], [S_T0]))
    a(S(f"s_lshl_b32 s{S_F1}, s{S_HQ}, 7", [S_HQ], [S_F1]))
    a(S(f"s_add_u32 s{S_F1}, s{S_F1}, s{S_T0}", [S_F1, S_T0], [S_F1]))
    a(S(f"s_add_u32 s{S_F2}, s{S_F1}, 32768", [S_F1], [S_F2]))
    a(S(f"s_lshl_b32 s{S_T1}, s{S_HKV}, 9", [S_HKV], [S_T1]))
    a(S(f"s_lshl_b32 s{S_G1}, s{S_J}, 3", [S_J], [S_G1]))
    a(S(f"s_add_u32 s{S_G1}, s{S_G1}, s{S_T1}", [S_G1, S_T1], [S_G1]))
    a(S(f"s_add_u32 s{S_G1}, s{S_G1}, s{S_T0}", [S_G1, S_T0], [S_G1]))
    a(S(f"s_lshl_b32 s{S_T1}, s{S_J}, 7", [S_J], [S_T1]))
    a(S(f"s_lshl_b32 s{S_G2}, s{S_HKV}, 3", [S_HKV], [S_G2]))
    a(S(f"s_add_u32 s{S_G2}, s{S_G2}, s{S_T1}", [S_G2, S_T1], [S_G2]))
    a(S(f"s_add_u32 s{S_G2}, s{S_G2}, s{S_T0}", [S_G2, S_T0], [S_G2]))
    a(S(f"s_add_u32 s{S_G2}, s{S_G2}, 32768", [S_G2], [S_G2]))
    return o

def prologue3():
    o = []; a = o.append
    a(S(f"s_bfe_u32 s{S_T1}, s{S_WC}, 0x10013", [S_WC], [S_T1]))
    a(S(f"s_lshl_b32 s{S_T1}, s{S_T1}, 3", [S_T1], [S_T1]))
    a(V(f"v_xor_b32 v{V_T1}, s{S_T1}, v{V_N}", [V_N, ('s', S_T1)], [V_T1]))
    for s in range(4):
        a(V(f"v_add_u32 v{V_T0}, {4*s}, v{V_G}", [V_G], [V_T0]))
        a(V(f"v_xor_b32 v{V_T0}, v{V_T0}, v{V_T1}", [V_T0, V_T1], [V_T0]))
        a(V(f"v_lshlrev_b32 v{V_T0}, 4, v{V_T0}", [V_T0], [V_T0]))
        a(V(f"v_lshl_add_u32 v{V_XA+s}, v{V_N}, 8, v{V_T0}", [V_N, V_T0], [V_XA+s]))
        a(V(f"v_add_u32 v{V_XB+s}, {120*KB}, v{V_XA+s}", [V_XA+s], [V_XB+s]))
    a(V(f"v_lshrrev_b32 v{V_T2}, 2, v{V_N}", [V_N], [V_T2]))
    a(V(f"v_bfe_u32 v{V_T3}, v{V_N}, 1, 1", [V_N], [V_T3]))
    a(V(f"v_and_b32 v{V_T4}, 1, v{V_N}", [V_N], [V_T4]))
    a(V(f"v_lshlrev_b32 v{V_T4}, 3, v{V_T4}", [V_T4], [V_T4]))
    a(V(f"v_and_b32 v{V_T5}, 1, v{V_G}", [V_G], [V_T5]))
    a(V(f"v_lshl_add_u32 v{V_T5}, v{V_T5}, 2, v{V_T2}", [V_T5, V_T2], [V_T5]))
    a(V(f"v_lshlrev_b32 v{V_T5}, 1, v{V_T5}", [V_T5], [V_T5]))
    a(S(f"s_lshl_b32 s{S_T1}, s{S_W}, 2", [S_W], [S_T1]))
    a(V(f"v_lshl_add_u32 v{V_T1}, v{V_G}, 3, v{V_T2}", [V_G, V_T2], [V_T1]))
    a(V(f"v_lshl_add_u32 v{V_T1}, v{V_T1}, 8, v{V_T4}", [V_T1, V_T4], [V_T1]))
    for e in range(2):
        a(V(f"v_add3_u32 v{V_T0}, s{S_T1}, v{V_T3}, {2*e}", [V_T3, ('s', S_T1)], [V_T0]))
        a(V(f"v_xor_b32 v{V_T0}, v{V_T0}, v{V_T5}", [V_T0, V_T5], [V_T0]))
        a(V(f"v_lshl_add_u32 v{V_T0}, v{V_T0}, 4, v{V_T1}", [V_T0, V_T1], [V_T0]))
        a(V(f"v_add_u32 v{V_WA+e}, {40*KB}, v{V_T0}", [V_T0], [V_WA+e]))
        a(V(f"v_add_u32 v{V_WB+e}, {96*KB}, v{V_T0}", [V_T0], [V_WB+e]))
    a(V(f"v_lshl_add_u32 v{V_T1}, v{V_G}, 2, v{V_T2}", [V_G, V_T2], [V_T1]))
    n_early = len(o)
    for s in range(4):
        a(V(f"v_add_u32 v{V_KA+s}, s{S_W8K}, v{V_XA+s}", [V_XA+s, ('s', S_W8K)], [V_KA+s]))
    a(V(f"v_lshl_add_u32 v{V_T1}, v{V_T1}, 8, v{V_T4}", [V_T1, V_T4], [V_T1]))
    a(S(f"s_add_u32 s{S_T2}, s{S_W8K}, {64*KB}", [S_W8K], [S_T2]))
    a(V(f"v_add_u32 v{V_T1}, s{S_T2}, v{V_T1}", [V_T1, ('s', S_T2)], [V_T1]))
    a(V(f"v_add_u32 v{V_T3}, s{S_T1}, v{V_T3}", [V_T3, ('s', S_T1)], [V_T3]))
    for lam in range(8):
        a(V(f"v_add_u32 v{V_T0}, {2*lam}, v{V_T3}", [V_T3], [V_T0]))
        a(V(f"v_and_b32 v{V_T0}, 15, v{V_T0}", [V_T0], [V_T0]))
        a(V(f"v_xor_b32 v{V_T0}, v{V_T0}, v{V_T5}", [V_T0, V_T5], [V_T0]))
        a(V(f"v_lshl_add_u32 v{V_VA+lam}, v{V_T0}, 4, v{V_T1}", [V_T0, V_T1], [V_VA+lam]))
    a(V(f"v_xor_b32 v{V_T0}, v{V_N}, v{V_G}", [V_N, V_G], [V_T0]))
    a(V(f"v_lshlrev_b32 v{V_T0}, 4, v{V_T0}", [V_T0], [V_T0]))
    a(V(f"v_lshl_add_u32 v{V_KD}, v{V_G}, 8, v{V_T0}", [V_G, V_T0], [V_KD]))
    for j in range(1, 4):
        a(V(f"v_xor_b32 v{V_KD+j}, {64*j}, v{V_KD}", [V_KD], [V_KD+j]))
    a(V(f"v_lshlrev_b32 v{V_T0}, 1, v{V_G}", [V_G], [V_T0]))
    a(V(f"v_xor_b32 v{V_T0}, v{V_N}, v{V_T0}", [V_N, V_T0], [V_T0]))
    a(V(f"v_lshlrev_b32 v{V_T0}, 4, v{V_T0}", [V_T0], [V_T0]))
    a(V(f"v_lshl_add_u32 v{V_VD}, v{V_G}, 8, v{V_T0}", [V_G, V_T0], [V_VD]))
    a(V(f"v_xor_b32 v{V_VD+1}, 128, v{V_VD}", [V_VD], [V_VD+1]))
    a(V(f"v_lshrrev_b32 v{V_T0}, 1, v{V_G}", [V_G], [V_T0]))
    a(V(f"v_add_u32 v{V_T0}, s{S_T1}, v{V_T0}", [V_T0, ('s', S_T1)], [V_T0]))
    a(V(f"v_xor_b32 v{V_T0}, v{V_T0}, v{V_N}", [V_T0, V_N], [V_T0]))
    a(V(f"v_lshlrev_b32 v{V_T0}, 4, v{V_T0}", [V_T0], [V_T0]))
    a(V(f"v_lshl_add_u32 v{V_T0}, v{V_N}, 8, v{V_T0}", [V_N, V_T0], [V_T0]))
    a(V(f"v_and_b32 v{V_T1}, 1, v{V_G}", [V_G], [V_T1]))
    a(V(f"v_lshl_add_u32 v{V_T0}, v{V_T1}, 3, v{V_T0}", [V_T0, V_T1], [V_T0]))
    a(V(f"v_add_u32 v{V_QW}, {QBUF}, v{V_T0}", [V_T0], [V_QW]))
    a(V(f"v_xor_b32 v{V_QW+1}, 32, v{V_QW}", [V_QW], [V_QW+1]))
    a(V(f"v_lshl_add_u32 v{V_CW}, v{V_LANE}, 4, s{S_W8K}", [V_LANE, ('s', S_W8K)], [V_CW]))
    a(V(f"v_add_u32 v{V_CW+1}, {64*KB}, v{V_CW}", [V_CW], [V_CW+1]))
    a(S(f"s_add_u32 s{S_T0}, s{S_W8K}, {102*KB}", [S_W8K], [S_T0]))
    a(V(f"v_lshl_add_u32 v{V_LW}, v{V_LANE}, 5, s{S_T0}", [V_LANE, ('s', S_T0)], [V_LW]))
    a(S(f"s_mul_i32 s{S_T0}, s{S_B}, 640", [S_B], [S_T0]))
    a(S(f"s_lshl_b32 s{S_T2}, s{S_HQ}, 2", [S_HQ], [S_T2]))
    a(S(f"s_add_u32 s{S_T0}, s{S_T0}, s{S_T2}", [S_T0, S_T2], [S_T0]))
    a(S(f"s_add_u32 s{S_T0}, s{S_T0}, s{S_W}", [S_T0, S_W], [S_T0]))
    a(S(f"s_lshl_b32 s{S_T0}, s{S_T0}, 10", [S_T0], [S_T0]))
    a(V(f"v_lshl_add_u32 v{V_OST}, v{V_LANE}, 4, s{S_T0}", [V_LANE, ('s', S_T0)], [V_OST]))
    a(V(f"v_cmp_eq_u32 vcc, 0, v{V_N}", [V_N], [VCC]))
    a(V(f"v_mov_b32 v{V_T0}, 0x3f803f80", [], [V_T0]))
    for i in range(4):
        a(V(f"v_cndmask_b32 v{V_ONES+i}, 0, v{V_T0}, vcc", [V_T0, VCC], [V_ONES+i]))
    for i in range(20):
        a(V(f"v_mov_b32 v{V_NEGM+i}, 0", [], [V_NEGM+i]))
    return o[:n_early], o[n_early:]

V_QACC = V_VF
def AF(kap):
    return [(100, 120), (128, 148), (208, 156)][kap % 3]
def a_reads(kap):
    u, ks = kap >> 1, kap & 1
    c, s = u >> 1, kap & 3
    xf, wf = AF(kap)
    wb = WU(WSLOT[u], ks)
    xr = []
    for q in range(5):
        xb = XU(c, q)
        reg, base = (V_XA, 0) if xb < 64 * KB else (V_XB, 120 * KB)
        xr.append(dsrd('ds_read_b128', ('v', xf + q * 4), 4, reg + s, xb - base))
    wr = []
    for e in range(2):
        for h in range(2):
            reg, base = (V_WA, 40 * KB) if wb < 96 * KB else (V_WB, 96 * KB)
            wr.append(dsrd('ds_read_b64_tr_b16', ('v', wf + e * 4 + h * 2), 2, reg + e, wb - base + h * 1024))
    return wr[:2] + xr[:1] + wr[2:] + xr[1:]
def a_mfmas(kap):
    o = []
    xf, wf = AF(kap)
    for q in range(5):
        for e in range(2):
            d = ('v', V_QACC + (e * 5 + q) * 4)
            o.append(mfma(d, ('v', wf + e * 4), ('v', xf + q * 4), 0 if kap == 0 else d))
    return o
def lane0(sg, body, lab):
    sg.text(f"s_cmp_lg_u32 s{S_W}, 0"); sg.text(f"s_cbranch_scc1 {lab}")
    sg.text(f"s_mov_b64 s[{S_EX}:{S_EX+1}], exec"); sg.text("s_mov_b64 exec, 1")
    for x in body: sg.text(x)
    sg.text(f"s_mov_b64 exec, s[{S_EX}:{S_EX+1}]")
    sg.text(f"{lab}:")
def phase_a(sg, Q):
    stamp(sg, 1)
    sg.add(barrier(needvm=[('x', 0), ('w', 0)])); Q.mark('B0')
    stamp(sg, 2)
    sg.addall(a_reads(0)); sg.addall(a_reads(1))
    sg.add(S(f"s_mov_b32 s{S_T1}, {f2h(QSCALE)}", [], [S_T1]))
    sg.add(S(f"s_mov_b32 s{S_T2}, {f2h(QSCALE)}", [], [S_T2]))
    for kap in range(14 if int(opt.aq) else 16):
        mf = a_mfmas(kap)
        gaps = [[] for _ in mf]
        nx = kap + 2
        if nx < 16:
            if nx % 2 == 0:
                u = nx >> 1
                need = [('x', u >> 1), ('w', u)]
                while any(it.ins.vmtag in need for it in Q.q):
                    n_ = len(Q.q); weave(sg, Q, [], 1, 0); assert len(Q.q) < n_, (u, Q.q[0].after)
                while True:
                    younger = 0
                    for tg, _w in reversed(sg.vm):
                        if tg in need: break
                        younger += 1
                    n_ = len(Q.q)
                    if younger >= int(opt.la): break
                    weave(sg, Q, [], 1, 0)
                    if len(Q.q) == n_: break
                dr = str(u) in str(opt.drain)
                sg.add(barrier(needvm=need, lg0=dr)); Q.mark(f'B{u}')
                if dr: Q.mark(f'B{u+1}')
                if u in (1, 3, 5, 7): stamp(sg, 5 + u // 2, 'A')
            for i, r in enumerate(a_reads(nx)): gaps[i].append(r)
        mf[0].r |= set(R('v', AF(kap)[0], 20) + R('v', AF(kap)[1], 8))
        pos = [1, 5, 9] if kap % 2 == 0 else [3, 7]
        if int(opt.perstep) == 6: pos = [1, 4, 7] if kap % 2 == 0 else [1, 4, 8]
        if int(opt.perstep) == 7: pos = [1, 4, 6, 9] if kap % 2 == 0 else [2, 5, 8]
        if int(opt.perstep) == 8: pos = [1, 4, 6, 9]
        nkv = sum(1 for it in Q.q if it.ins.vmtag[0] in 'kv')
        room = int(opt.alim) - (128 - nkv) + (len(Q.q) - nkv)
        place(gaps, Q, pos[:max(0, room)])
        if int(opt.aonly): sg.addall([x for x in interleave(mf, gaps) if x.k not in ('mfma', 'dsrd')])
        else: sg.addall(interleave(mf, gaps))
    def qfin(q, e, packed):
        b = V_QACC + (e * 5 + q) * 4
        if packed: f_ = [V(f"v_pk_mul_f32 v[{b+r}:{b+r+1}], v[{b+r}:{b+r+1}], s[{S_T1}:{S_T1+1}]", [b+r, b+r+1], [b+r, b+r+1]) for r in (0, 2)]
        else: f_ = [V(f"v_mul_f32 v{b+r}, s{S_T1}, v{b+r}", [b+r], [b+r]) for r in range(4)]
        f_.append(V(f"v_cvt_pk_bf16_f32 v{b}, v{b}, v{b+1}", [b, b+1], [b]))
        f_.append(V(f"v_cvt_pk_bf16_f32 v{b+1}, v{b+2}, v{b+3}", [b+2, b+3], [b+1]))
        f_.append(dswr('ds_write_b64', V_QW + e, ('v', b), 2, q * 4096, lgtag='qw'))
        return f_
    todo = [(q, e) for q in range(5) for e in range(2)]
    if int(opt.aq):
        m14, m15 = a_mfmas(14), a_mfmas(15)
        m14[0].r |= set(R('v', AF(14)[0], 20) + R('v', AF(14)[1], 8))
        mf = flat([[m14[k], m15[k]] for k in range(10)])
        gaps = [[] for _ in mf]
        gi = 5
        while todo and gi + 3 <= 19:
            f_ = qfin(*todo.pop(0), False)
            gaps[gi] += f_[0:2]; gaps[gi + 1] += f_[2:4]; gaps[gi + 2] += f_[4:6]; gaps[gi + 3] = [f_[6]] + gaps[gi + 3]
            gi += 3
        nkv = sum(1 for it in Q.q if it.ins.vmtag[0] in 'kv')
        place(gaps, Q, [1, 4][:max(0, int(opt.alim) - (128 - nkv))])
        sg.addall(interleave(mf, gaps))
    stamp(sg, 9, 'A')
    for q, e in todo: sg.addall(qfin(q, e, True))
    while any(it.ins.vmtag in (('k', 0, 0), ('k', 0, 1)) for it in Q.q): weave(sg, Q, [], 1, 0)
    b = barrier(lg0=False); b.needlg = ('qw',)
    sg.addall(k_reads(0)); Q.mark(('kr', 0, 0)); Q.mark(('kr', 0, 1))
    sg.add(b); Q.mark('BQ'); Q.mark('B8')
    qr = [dsrd('ds_read_b128', AQ(q, s), 4, V_XB + s, QBUF - 120 * KB + q * 4096) for q in range(5) for s in range(4)]
    return qr

def TQ(tau):
    return divmod(tau, 5) if tau < 30 else (6 + ((tau - 30) & 1), (tau - 30) >> 1)
def qk(tau):
    i, q = TQ(tau)
    o = []
    for s, t in ([(s, t) for t in range(2) for s in range(4)] if int(opt.chain) else [(s, t) for s in range(4) for t in range(2)]):
        if True:
            d = ('v', V_S + (tau & 1) * 8 + t * 4)
            o.append(mfma(d, KF(i, t * 4 + s), AQ(q, s), ('v', V_NEGM + q * 4) if s == 0 else d))
    return o
def pv(tau):
    i, q = TQ(tau)
    p = ('v', V_P + (tau & 1) * 4)
    o = [mfma(AO(lam, q), ('v', V_VF + (i & 1) * 32 + lam * 4), p, AO(lam, q) if i else 0) for lam in range(8)]
    o.insert(0, mfma(LA(q), ('v', V_ONES), p, LA(q) if i else 0))
    return o
def sm(tau):
    b = V_S + (tau & 1) * 8
    p = V_P + (tau & 1) * 4
    e = [T(f"v_exp_f32 v{b+i}, v{b+i}", [b+i], [b+i]) for i in range(8)]
    c = [V(f"v_cvt_pk_bf16_f32 v{p+i}, v{b+2*i}, v{b+2*i+1}", [b+2*i, b+2*i+1], [p+i]) for i in range(4)]
    return e, c
def comb_writes(q):
    o = []
    for jd in range(1, 4):
        for e in range(2):
            u = q * 6 + (jd - 1) * 2 + e
            row = u >> 3
            o.append(dswr('ds_write_b128', V_CW + (row >> 1), AO(2 * jd + e, q), 4, (row & 1) * 32 * KB + (u & 7) * KB, lgtag=('cw', q)))
    o.insert(0, dswr('ds_write_b32', V_LW, LA(q), 1, [0, 4, 16, 20, 24][q], lgtag=('cw', q)))
    return o

def wo_dma(pos, after=None):
    o = []
    for ks in range(4):
        for half in range(2):
            base = (128 * KB if pos < 0 else pos * 32 * KB) + ks * 8 * KB + half * 4 * KB
            if pos < 0:
                pre = [S(f"s_lshl_b32 s{S_SK}, s{S_J}, 17", [S_J], [S_SK])] if ks + half == 0 else []
                h = S_SK
            else: pre, h = [], S_H + pos
            pre += [S(f"s_add_u32 s{S_SO}, s{h}, {ks*32768 + half*16384}", [h], [S_SO]), S(f"s_add_u32 m0, s{S_W1K}, {base}", [S_W1K], [M0])]
            o.append(Item(pre, dma(V_WOD, S_WO, S_SO, 0, ('wo', pos)), after))
    return o
def osib_dma(pos):
    o = []
    for q in range(5):
        pre = [S(f"s_lshr_b32 s{S_SK}, s{S_H+pos}, 5", [S_H+pos], [S_SK])] if q == 0 else []
        pre += [S(f"s_add_u32 s{S_SO}, s{S_SK}, {q*128*KB}", [S_SK], [S_SO]), S(f"s_add_u32 m0, s{S_W5K}, {(140 - 20*pos + q)*KB}", [S_W5K], [M0])]
        o.append(Item(pre, dma(V_OD, S_O, S_SO, 0, ('os', pos), flags=' sc1')))
    return o
def tail_calc():
    o = []; a = o.append
    T0, T1, T2 = 252, 253, 254
    a(V(f"v_lshlrev_b32 v{T0}, 4, v{V_LANE}", [V_LANE], [T0]))
    for jd in range(1, 4):
        a(S(f"s_sub_u32 s{S_T0}, s{S_W}, {jd}", [S_W], [S_T0]))
        a(S(f"s_and_b32 s{S_T0}, s{S_T0}, 3", [S_T0], [S_T0]))
        a(S(f"s_lshl_b32 s{S_T0}, s{S_T0}, 13", [S_T0], [S_T0]))
        a(V(f"v_add_u32 v{V_CR+2*(jd-1)}, s{S_T0}, v{T0}", [T0, ('s', S_T0)], [V_CR+2*(jd-1)]))
        a(V(f"v_add_u32 v{V_CR+2*(jd-1)+1}, {64*KB}, v{V_CR+2*(jd-1)}", [V_CR+2*(jd-1)], [V_CR+2*(jd-1)+1]))
    a(V(f"v_add_u32 v{V_OL}, {96*KB}, v{T0}", [T0], [V_OL]))
    a(V(f"v_add_u32 v{V_OW}, s{S_W5K}, v{V_OL}", [V_OL, ('s', S_W5K)], [V_OW]))
    a(S(f"s_mov_b32 s{S_T0}, {102*KB}", [], [S_T0]))
    a(V(f"v_lshl_add_u32 v{V_LR}, v{V_N}, 5, s{S_T0}", [V_N, ('s', S_T0)], [V_LR]))
    a(S(f"s_add_u32 s{S_T0}, s{S_W8K}, {64*KB}", [S_W8K], [S_T0]))
    for e in range(2):
        a(V(f"v_subrev_u32 v{V_WT+e}, s{S_T0}, v{V_VA+e}", [V_VA+e, ('s', S_T0)], [V_WT+e]))
        a(V(f"v_add_u32 v{V_WT+2+e}, {64*KB}, v{V_WT+e}", [V_WT+e], [V_WT+2+e]))
        a(V(f"v_add_u32 v{V_WT+4+e}, {128*KB}, v{V_WT+e}", [V_WT+e], [V_WT+4+e]))
    a(S(f"s_lshl_b32 s{S_T0}, s{S_J}, 12", [S_J], [S_T0]))
    a(V(f"v_subrev_u32 v{V_OD}, s{S_T0}, v{V_OST}", [V_OST, ('s', S_T0)], [V_OD]))
    a(S(f"s_lshl_b32 s{S_T0}, s{S_B}, 2", [S_B], [S_T0]))
    a(S(f"s_add_u32 s{S_T0}, s{S_T0}, s{S_J}", [S_T0, S_J], [S_T0]))
    a(V(f"v_and_b32 v{T1}, 7, v{V_LANE}", [V_LANE], [T1]))
    a(S(f"s_lshl_b32 s{S_T0}, s{S_T0}, 2", [S_T0], [S_T0]))
    a(S(f"s_add_u32 s{S_T0}, s{S_T0}, s{S_W}", [S_T0, S_W], [S_T0]))
    a(S(f"s_mul_i32 s{S_T0}, s{S_T0}, {5*8*KB}", [S_T0], [S_T0]))
    a(S(f"s_lshl_b32 s{S_T2}, s{S_HKV}, 10", [S_HKV], [S_T2]))
    a(S(f"s_add_u32 s{S_T2}, s{S_T2}, s{S_T0}", [S_T2, S_T0], [S_T2]))
    a(V(f"v_add_u32 v{V_PS}, s{S_T2}, v{T0}", [T0, ('s', S_T2)], [V_PS]))
    a(V(f"v_lshl_add_u32 v{T1}, s{S_HKV}, 3, v{T1}", [T1, ('s', S_HKV)], [T1]))
    a(V(f"v_lshrrev_b32 v{T2}, 3, v{V_LANE}", [V_LANE], [T2]))
    a(V(f"v_lshl_add_u32 v{V_PLD}, v{T1}, 4, s{S_T0}", [T1, ('s', S_T0)], [V_PLD]))
    a(V(f"v_lshl_add_u32 v{V_PLD}, v{T2}, 13, v{V_PLD}", [T2, V_PLD], [V_PLD]))
    a(V(f"v_lshlrev_b32 v{T2}, 14, v{T2}", [T2], [T2]))
    a(V(f"v_and_b32 v{T0}, 15, v{T1}", [T1], [T0]))
    a(V(f"v_lshl_add_u32 v{T2}, v{T0}, 10, v{T2}", [T0, T2], [T2]))
    a(V(f"v_lshrrev_b32 v{T1}, 4, v{T1}", [T1], [T1]))
    a(V(f"v_lshl_add_u32 v{T2}, v{T1}, 3, v{T2}", [T1, T2], [T2]))
    a(S(f"s_mul_i32 s{S_T0}, s{S_B}, 81920", [S_B], [S_T0]))
    a(S(f"s_lshl_b32 s{S_T2}, s{S_J}, 8", [S_J], [S_T2]))
    a(S(f"s_add_u32 s{S_T0}, s{S_T0}, s{S_T2}", [S_T0, S_T2], [S_T0]))
    a(S(f"s_lshl_b32 s{S_T2}, s{S_W}, 6", [S_W], [S_T2]))
    a(S(f"s_add_u32 s{S_T0}, s{S_T0}, s{S_T2}", [S_T0, S_T2], [S_T0]))
    a(V(f"v_add_u32 v{V_OUT}, s{S_T0}, v{T2}", [T2, ('s', S_T0)], [V_OUT]))
    a(V(f"v_cmp_gt_u32 vcc, 40, v{V_LANE}", [V_LANE], [VCC]))
    a(V(f"v_mov_b32 v{T0}, 0x7ff00000", [], [T0]))
    a(V(f"v_cndmask_b32 v{V_PLD}, v{T0}, v{V_PLD}, vcc", [T0, V_PLD, VCC], [V_PLD]))
    a(V(f"v_cndmask_b32 v{V_OUT}, v{T0}, v{V_OUT}, vcc", [T0, V_OUT, VCC], [V_OUT]))
    for k in range(5): a(S(f"s_mov_b32 s{S_TAB+k}, {k*8192}", [], [S_TAB+k]))
    return o
def wod_calc():
    o = []; a = o.append
    T0, T1 = 252, 253
    a(S(f"s_lshl_b32 s{S_T0}, s{S_B}, 2", [S_B], [S_T0]))
    a(S(f"s_add_u32 s{S_T0}, s{S_T0}, s{S_W}", [S_T0, S_W], [S_T0]))
    a(S(f"s_lshl_b32 s{S_T0}, s{S_T0}, 14", [S_T0], [S_T0]))
    a(S(f"s_lshl_b32 s{S_T2}, s{S_J}, 8", [S_J], [S_T2]))
    a(S(f"s_add_u32 s{S_T0}, s{S_T0}, s{S_T2}", [S_T0, S_T2], [S_T0]))
    a(V(f"v_bfe_u32 v{T0}, v{V_LANE}, 1, 4", [V_LANE], [T0]))
    a(V(f"v_and_b32 v{T1}, 1, v{V_LANE}", [V_LANE], [T1]))
    a(V(f"v_lshlrev_b32 v{T1}, 7, v{T1}", [T1], [T1]))
    a(V(f"v_lshl_add_u32 v{T0}, v{T0}, 10, v{T1}", [T0, T1], [T0]))
    a(V(f"v_add_u32 v{V_TCH}, s{S_T0}, v{T0}", [T0, ('s', S_T0)], [V_TCH]))
    a(S(f"s_and_b32 s{S_T0}, s{S_W}, 1", [S_W], [S_T0]))
    a(S(f"s_lshl_b32 s{S_T0}, s{S_T0}, 3", [S_T0], [S_T0]))
    a(V(f"v_lshl_add_u32 v{T0}, v{V_G}, 1, s{S_T0}", [V_G, ('s', S_T0)], [T0]))
    a(V(f"v_xor_b32 v{T0}, v{V_N}, v{T0}", [V_N, T0], [T0]))
    a(S(f"s_lshl_b32 s{S_T0}, s{S_J}, 8", [S_J], [S_T0]))
    a(V(f"v_lshl_add_u32 v{T0}, v{T0}, 4, s{S_T0}", [T0, ('s', S_T0)], [T0]))
    a(V(f"v_lshl_add_u32 v{T1}, s{S_W}, 2, v{V_G}", [V_G, ('s', S_W)], [T1]))
    a(V(f"v_lshl_add_u32 v{V_WOD}, v{T1}, 10, v{T0}", [T0, T1], [V_WOD]))
    return o

def phase_b(sg, Q, qr):
    NT = 8
    calc = wod_calc() + tail_calc()
    sg.addall(qr[:4])
    qr = qr[4:]
    for tau in range(-1, 40):
        i, q = divmod(tau, 5) if tau >= 0 else (-1, 4)
        mf = []
        bst = [int(x) for x in opt.bst.split(',')]
        if tau in bst: stamp(sg, 5 + bst.index(tau), 'B')
        if tau + 1 < 40: mf += qk(tau + 1)
        if tau - 1 >= 0: mf += pv(tau - 1)
        ds, marks = [], []
        if tau == -1: ds = qr
        elif tau == 0: ds = v_reads(0); marks = [('vr', 0, 0), ('vr', 0, 1)]
        elif tau < 27:
            if q == 2: ds = k_reads(i + 1)[:4]; marks = [('kr', i + 1, 0)]
            if q == 3: ds = k_reads(i + 1)[4:] + v_reads(i + 1)[:2]; marks = [('kr', i + 1, 1)]
            if q == 4: ds = v_reads(i + 1)[2:8]; marks = [('vr', i + 1, 0)]
            if q == 0: ds = v_reads(i)[8:14]
            if q == 1 and i > 0: ds = v_reads(i)[14:]; Q.mark(('vr', i, 1))
        xp = None
        if tau >= 27:
            k6, k7, v6, v7 = k_reads(6), k_reads(7), v_reads(6), v_reads(7)
            vo = [v7[l + 8 * h] for l in range(8) for h in range(2)]
            G = [1, 3, 5, 7, 9, 11, 13, 15, 16]
            def cwp(q_, second):
                w_ = comb_writes(q_)
                if int(opt.w64) and q_ < 2:
                    h_ = []
                    for x in w_[1:]:
                        m_ = re.match(r"ds_write_b128 v(\d+), a\[(\d+):\d+\] offset:(\d+)", x.t)
                        for z in range(2): h_.append(dswr('ds_write_b64', int(m_.group(1)), ('a', int(m_.group(2)) + 2 * z), 2, int(m_.group(3)) + 8 * z, lgtag=x.lgtag))
                    return list(zip([1, 3, 5, 9, 13, 16], h_[6:])) if second else list(zip([7, 1, 3, 5, 9, 13, 16], [w_[0]] + h_[:6]))
                return list(zip([1, 9, 13], w_[4:])) if second else list(zip([7, 1, 9, 13], w_[:4]))
            xp = {27: list(zip([3, 5, 9, 11, 15, 16], k6[:4] + v6[:2])),
                  28: list(zip([1, 3, 5, 7, 9, 11, 13, 15, 16], k6[4:] + k7[:5])),
                  29: list(zip(G, k7[5:] + v6[2:8])),
                  30: list(zip([1, 3, 5, 7, 9, 11, 13, 15, 16, 16], v6[8:] + vo[:2])),
                  31: list(zip([1, 1, 3, 5, 5, 7, 9, 9, 11, 13, 13, 15, 16, 16], vo[2:])),
                  32: [], 33: cwp(0, 0), 34: cwp(0, 1), 35: cwp(1, 0), 36: cwp(1, 1), 37: cwp(2, 0),
                  38: cwp(2, 1) + list(zip([3, 5, 5, 7, 11, 15, 16, 16], lreads((0, 1)) + preads(0)[:4])),
                  39: list(zip([0, 2, 4, 6], comb_writes(3)[:4])) + list(zip([1, 1, 3, 3, 5, 5, 7, 7], preads(0)[4:] + preads(1)))}[tau]
            ds = [x for _, x in xp]; marks = []
            if tau == 38:
                b = barrier(needvm=[('wo', -1)], lg0=False); b.needlg = (('cw', 0), ('cw', 1)); sg.add(b)
        n = len(mf)
        gaps = [[] for _ in range(n)]
        e, c = sm(tau) if 0 <= tau < 40 else ([], [])
        if n == 17:
            epos = [0, 2, 4, 6, 8, 10, 12, 14]; cpos = [3, 7, 11, 15]
            dpos = [1, 3, 5, 7, 9, 11, 13, 15] if len(ds) > 4 else [1, 3, 5, 7]
            if ds and ds[0].k == 'dswr': dpos = [1, 1, 3, 7, 9, 13, 16]
            vpos = [1, 5, 9, 13] if (tau < int(opt.even_at) or q == 1) else [1, 7, 13]
            if int(opt.bsched) and not (ds and ds[0].k == 'dswr'):
                if q == 1: dpos, vpos = [1, 3], [5, 9, 13, 16]
                elif tau < int(opt.even_at): dpos, vpos = [3, 7, 11, 15, 16, 16], [1, 5, 9, 13]
                else: dpos, vpos = [3, 5, 9, 11, 15, 16], [1, 7, 13]
        else:
            epos = list(range(8)); cpos = [min(n - 1, x) for x in (2, 4, 6, 8)]
            dpos = [(k * n) // max(1, len(ds)) for k in range(len(ds))]
            vpos = [1, 5]
        if xp is not None:
            dpos = [g_ for g_, _ in xp]; vpos = [7, 11, 15] if tau >= 32 else [13]
            if tau == 27: vpos = [1, 7, 13]
        for x, p_ in zip(ds, dpos): gaps[p_].append(x)
        if tau == int(opt.nl_at):
            sg.add(V("v_mov_b32 v9, 0", [], [9]))
            Q.q.insert(0, Item([], vload(('v', V_GC), 2, 9, S_D, None, 0, flags=' sc1', tag='non')))
        if tau == int(opt.nc_at):
            assert not any(it.ins.vmtag == 'non' for it in Q.q)
            sg.add(V(f"v_readfirstlane_b32 s{S_NON}, v{V_GC}", [V_GC], [('s', S_NON)]))
            sg.add(V(f"v_readfirstlane_b32 s{S_NON+1}, v{V_GC+1}", [V_GC+1], [('s', S_NON+1)]))
            sg.add(S(f"s_cmp_eq_u64 s[{S_NON}:{S_NON+1}], 0", [S_NON, S_NON+1], []))
            sg.text("s_cbranch_scc1 L_spin_n"); sg.text("L_back_n:")
        if tau == int(opt.bar_at): sg.add(barrier(lg0=False))
        for x in ds:
            while any(it.ins.vmtag in x.needvm for it in Q.q): weave(sg, Q, [], 1, 0)
        if tau == int(opt.tch_at): Q.push([Item([], vload(('v', V_TCH + 1), 1, V_TCH, S_WO, None, 0, flags=opt.tch_flags))])
        if tau == int(opt.tlb_at):
            assert not calc
            Q.push([Item([S(f"s_mov_b32 s{S_SO}, {q*256*KB}", [], [S_SO])], vload(('v', 72 + q // 2), 1, V_OD, S_O, S_SO, 0, flags=' sc1')) for q in (0, 2)]
                   + [Item([], vload(('v', 74), 1, V_PLD, S_WT, None, 0, flags=' sc1')), Item([], vload(('v', 75), 1, V_OUT, S_OUT, None, 0, flags=' sc1')),
                      Item([S(f"s_add_u32 s{S_SO}, s{S_F1}, 64", [S_F1], [S_SO])], vload(('v', 254), 1, V_ZERO, S_C, S_SO, 0, flags=' sc1'))])
        if tau == int(opt.wo_at): assert not calc; Q.push(wo_dma(-1))
        place(gaps, Q, vpos)
        for x, p_ in zip(e, epos): gaps[p_].append(x)
        for x, p_ in zip(c, cpos): gaps[p_].append(x)
        if tau >= int(opt.calc_at) and n == 17:
            for gi in range(17):
                if calc and calc[0].k == 'salu' and not any(y.k == 'salu' for y in gaps[gi]): gaps[gi].insert(0, calc.pop(0))
                cost = sum(8 if y.k == 'trans' else 0 if y.k == 'salu' else 4 for y in gaps[gi])
                while calc and calc[0].k != 'salu' and cost <= 4: gaps[gi].append(calc.pop(0)); cost += 4
        sg.addall(interleave(mf, gaps))
        for m in marks: Q.mark(m)

def poll(sg, lab, vaddr):
    sg.text(f"s_mov_b32 s{S_SPIN}, {opt.spin}")
    sg.text(f"{lab}:")
    sg.text(f"buffer_load_dwordx2 v[250:251], v{vaddr}, s[{S_C}:{S_C+3}], 0 offen sc1")
    sg.text(f"s_sub_u32 s{S_SPIN}, s{S_SPIN}, 1")
    sg.text("s_waitcnt vmcnt(0)")
    sg.text(f"v_cmp_ne_u64 vcc, s[{S_NON}:{S_NON+1}], v[250:251]")
    sg.text(f"s_cmp_eq_u32 s{S_SPIN}, 0")
    sg.text(f"s_cbranch_scc1 {lab}_done")
    sg.text("s_nop 2")
    sg.text(f"s_cbranch_vccnz {lab}")
    sg.text(f"{lab}_done:")
    sg.vm = []
def raise_flag(sg, stage, lab):
    n, sh = (4, 7) if stage == 1 else (8, 9)
    sg.text(f"s_cmp_lg_u32 s{S_W}, 0"); sg.text(f"s_cbranch_scc1 {lab}")
    sg.text(f"s_mov_b64 s[{S_EX}:{S_EX+1}], exec"); sg.text(f"s_mov_b64 exec, {(1 << n) - 1 if n < 7 else '0xff'}")
    for x in [f"v_lshl_add_u32 v9, v{V_LANE}, {sh}, s{S_G1 if stage == 1 else S_G2}", f"v_mov_b32 v250, s{S_NON}", f"v_mov_b32 v251, s{S_NON+1}",
              f"buffer_store_dwordx2 v[250:251], v9, s[{S_C}:{S_C+3}], 0 offen{opt.f1_flags if stage == 1 else ' sc1'}"]: sg.text(x)
    sg.text(f"s_mov_b64 exec, s[{S_EX}:{S_EX+1}]")
    sg.text(f"{lab}:")
WOF = A_Q
RES = 100
def part(q, k):
    if q == 0: return 36 + 4 * k if k < 4 else 64 + 4 * (k - 4)
    return {1: 100, 2: 164, 3: 188, 4: 100}[q] + 4 * k
def preads(q):
    o = []
    for jd in range(1, 4):
        for e in range(2):
            k = (jd - 1) * 2 + e; u = q * 6 + k; row = u >> 3
            o.append(dsrd('ds_read_b128', ('v', part(q, k)), 4, V_CR + 2 * (jd - 1) + (row >> 1), (row & 1) * 32 * KB + (u & 7) * KB))
    return o
LSA, LSB = 124, 76
def lreads(qs):
    if qs == (0, 1): return [dsrd('ds_read_b64', ('v', LSA + src * 2), 2, V_LR, src * 8 * KB) for src in range(4)]
    return [dsrd('ds_read_b128', ('v', LSB + src * 4), 4, V_LR, src * 8 * KB + 16) for src in range(4)]
def lsum(qs):
    w = []
    def lr(src, q): return LSA + src * 2 + q if q < 2 else LSB + src * 4 + q - 2
    LS = lr(0, qs[0])
    for q in qs:
        d = V_T0 + q
        w.append(V(f"v_add_f32 v{d}, v{lr(0,q)}, v{lr(1,q)}", [lr(0,q), lr(1,q)], [d]))
        w.append(V(f"v_add_f32 v{lr(2,q)}, v{lr(2,q)}, v{lr(3,q)}", [lr(2,q), lr(3,q)], [lr(2,q)]))
        w.append(V(f"v_add_f32 v{d}, v{d}, v{lr(2,q)}", [d, lr(2,q)], [d]))
    a_, b_, c_ = V_T0 + qs[0], V_T0 + qs[1], V_T0 + qs[-1]
    w.append(V(f"v_min3_f32 v{LS}, v{a_}, v{b_}, v{c_}", [a_, b_, c_], [LS]))
    w.append(V(f"v_add_f32 v{LS+1}, v{a_}, v{b_}", [a_, b_], [LS+1]))
    w.append(V(f"v_add_f32 v{LS+1}, v{LS+1}, v{c_}", [LS+1, c_], [LS+1]))
    w.append(V(f"v_cmp_nle_f32 vcc, {f2h(2.0**int(opt.lo_exp))}, v{LS}", [LS], [VCC]))
    w.append(S(f"s_mov_b64 s[{S_EX}:{S_EX+1}], vcc", [VCC], [S_EX, S_EX+1]))
    w.append(V(f"v_cmp_nge_f32 vcc, {f2h(2.0**int(opt.hi_exp))}, v{LS+1}", [LS+1], [VCC]))
    w.append(S(f"s_or_b64 vcc, vcc, s[{S_EX}:{S_EX+1}]", [VCC, S_EX, S_EX+1], [VCC]))
    w.append(S(f"s_and_b64 vcc, vcc, s[{S_GM}:{S_GM+1}]", [VCC], [VCC]))
    w.append(raw("s_cbranch_vccnz L_redo"))
    for q in qs: w.append(T(f"v_rcp_f32 v{V_T0+q}, v{V_T0+q}", [V_T0+q], [V_T0+q]))
    return w
def finish(q):
    w = []
    for e in range(2):
        o_ = V_OWN[q] + e * 4
        for jd in range(1, 4):
            p_ = part(q, (jd - 1) * 2 + e)
            for r in (0, 2):
                w.append(V(f"v_pk_add_f32 v[{o_+r}:{o_+r+1}], v[{o_+r}:{o_+r+1}], v[{p_+r}:{p_+r+1}]", [o_+r, o_+r+1, p_+r, p_+r+1], [o_+r, o_+r+1]))
    o_ = V_OWN[q]
    ri = V_T0 + (q & ~1); sel = "op_sel:[0,1] op_sel_hi:[1,1]" if q & 1 else "op_sel:[0,0] op_sel_hi:[1,0]"
    for r in range(0, 8, 2):
        w.append(V(f"v_pk_mul_f32 v[{o_+r}:{o_+r+1}], v[{o_+r}:{o_+r+1}], v[{ri}:{ri+1}] {sel}", [o_+r, o_+r+1, V_T0+q], [o_+r, o_+r+1]))
    for r in range(4):
        w.append(V(f"v_cvt_pk_bf16_f32 v{o_+r}, v{o_+2*r}, v{o_+2*r+1}", [o_+2*r, o_+2*r+1], [o_+r]))
    w.append(S(f"s_mov_b32 s{S_SV}, {q*128*KB}", [], [S_SV]))
    w.append(vstore(('v', o_), 4, V_OST, S_O, S_SV, 0, flags=opt.o_flags, tag='ost'))
    return w
def wor():
    return [dsrd('ds_read_b64_tr_b16', ('a', WOF + (ks * 2 + e) * 4 + h * 2), 2, V_WT + 4 + e, ks * 8 * KB + h * 4096) for ks in range(4) for e in range(2) for h in range(2)]
def combine(sg, Q):
    assert not Q.q
    mf = pv(39); gaps = [[] for _ in mf]
    wr = comb_writes(3)[4:]; ls = lsum((0, 1))
    for k, x in enumerate(wr): gaps[3 * k].append(x)
    k = 0
    for gi in range(9):
        n_ = 2 - len(gaps[gi])
        while ls and (n_ > 0 or ls[0].k == 'salu') and gi < 9:
            x = ls.pop(0); gaps[gi].append(x)
            n_ -= 0 if x.k == 'salu' else 2 if x.k == 'trans' else 1
    sg.addall(interleave(mf, gaps))
    stamp(sg, 4)
    w4 = comb_writes(4)
    w = ls + finish(0) + finish(1)
    for k, x in enumerate(w4): w.insert(min(len(w), 6 + k * 6), x)
    sg.addall(w)
    sg.add(barrier())
    stamp(sg, 5)
    Q.push(wo_dma(0))
    rd = lreads((2, 3, 4)) + preads(2) + preads(3)
    weave(sg, Q, rd, int(opt.cw), 2)
    sg.addall(rd)
    w = lsum((2, 3, 4)) + preads(4) + finish(2) + finish(3) + finish(4)
    for k, x in enumerate(wor()): w.insert(30 + 3 * k, x)
    sg.addall(w)
    stamp(sg, 6)

def phase_c(sg, Q):
    a = sg.add
    ACC = 164
    a(barrier())
    stamp(sg, 5, 'D')
    for q in range(5): a(dswr('ds_write_b128', V_OW, ('v', V_OWN[q]), 4, q * KB))
    Q.push(wo_dma(1) + wo_dma(2))
    weave(sg, Q, [], int(opt.shadow), 0)
    stamp(sg, 6, 'D')
    a(barrier(needvm=['ost']))
    stamp(sg, 7, 'D')
    stamp(sg, 7)
    raise_flag(sg, 1, "L_sig1")
    def CF(k): return [(100, 120), (64, 84), (204, 36)][k % 3]
    def c_reads(k):
        pos, ks = divmod(k, 4); pos -= 1
        xf, wf = CF(k)
        ob = 0 if pos < 0 else (44 - 20 * pos) * KB
        xr = [dsrd('ds_read_b128', ('v', xf + q * 4), 4, V_OL, ob + (ks * 5 + q) * KB) for q in range(5)]
        if pos < 0: return xr
        wb = (pos * 4 + ks) * 8 * KB
        wr = [dsrd('ds_read_b64_tr_b16', ('v', wf + e * 4 + h * 2), 2, V_WT + (2 if wb >= 64 * KB else 0) + e, (wb % (64 * KB)) + h * 4096) for e in range(2) for h in range(2)]
        return wr[:2] + xr[:1] + wr[2:] + xr[1:]
    def c_mfmas(k):
        xf, wf = CF(k)
        ff = 'v'
        if k < 4: wf, ff = WOF + k * 8, 'a'
        o = []
        for q in range(5):
            for e in range(2):
                d = ('v', ACC + (q * 2 + e) * 4)
                o.append(mfma(d, (ff, wf + e * 4), ('v', xf + q * 4), 0 if k == 0 else d))
        o[0].r |= set(R('v', xf, 20) + R(ff, wf, 8))
        return o
    def step(k, nx, pos=()):
        mf = c_mfmas(k); gaps = [[] for _ in mf]
        if nx is not None:
            for i, r in enumerate(c_reads(nx)): gaps[i].append(r)
        place(gaps, Q, pos)
        sg.addall(interleave(mf, gaps))
    def own_steps():
        for k in range(4): step(k, k + 2 if k < 2 else None, [1, 5, 9] if k % 2 == 0 else [3, 7])
    sg.addall(c_reads(0)); sg.addall(c_reads(1))
    held = []
    if int(opt.ownlate) == 2: held = Q.q; Q.q = []
    elif int(opt.ownlate): weave(sg, Q, [], len(Q.q), 0)
    else: own_steps()
    assert not Q.q
    stamp(sg, 8, 'D')
    t = [f"s_mov_b32 s{S_SPIN}, {opt.spin}", "L_poll1:", f"s_load_dwordx8 s[4:11], s[{S_C}:{S_C+1}], s{S_F1} glc", f"s_sub_u32 s{S_SPIN}, s{S_SPIN}, 1", "s_waitcnt lgkmcnt(0)",
         f"s_cmp_eq_u32 s{S_SPIN}, 0", "s_cbranch_scc1 L_poll1_done"]
    for h in range(4): t += [f"s_cmp_lg_u64 s[{4+2*h}:{5+2*h}], s[{S_NON}:{S_NON+1}]", "s_cbranch_scc1 L_poll1"]
    t += ["L_poll1_done:"]
    if int(opt.p1w): t = [f"s_cmp_lg_u32 s{S_W}, 0", "s_cbranch_scc1 L_poll1_done"] + t + ["s_waitcnt lgkmcnt(0)", "s_barrier"]
    for x in t: sg.text(x)
    sg.lg = []
    stamp(sg, 9, 'D')
    stamp(sg, 5, 'E')
    stamp(sg, 8)
    Q.push(osib_dma(0) + osib_dma(1) + held)
    if int(opt.ownlate):
        weave(sg, Q, [], 5, 0); own_steps()
    weave(sg, Q, [], len(Q.q), 0)
    stamp(sg, 6, 'E')
    a(barrier(needvm=[('os', 0), ('wo', 0), ('wo', 1)]))
    stamp(sg, 7, 'E')
    Q.push(osib_dma(2))
    sg.addall(c_reads(4)); sg.addall(c_reads(5))
    def pfin(q):
        b = ACC + q * 8
        return [V(f"v_cvt_pk_bf16_f32 v{b+r}, v{b+2*r}, v{b+2*r+1}", [b+2*r, b+2*r+1], [b+r]) for r in range(4)] + [vstore(('v', b), 4, V_PS, S_WT, S_TAB + q, 0, flags=' sc1', tag='pst')]
    last = 16 - (2 if int(opt.qmaj) else 0)
    for k in range(4, last):
        nx = k + 2 if k + 2 < 16 else None
        if nx in (8, 12):
            assert not Q.q or nx == 8
            a(barrier(needvm=[('os', nx // 4 - 1), ('wo', nx // 4 - 1)], lg0=False))
            stamp(sg, 8 if nx == 8 else 9, 'E')
        step(k, nx, [1, 5, 9] if k % 2 == 0 else [3, 7])
    if int(opt.qmaj):
        m14, m15 = c_mfmas(14), c_mfmas(15)
        m15[0].r -= set(R('v', CF(15)[0] + 4, 16))
        mf = flat([[m14[2*q], m15[2*q], m14[2*q+1], m15[2*q+1]] for q in range(5)])
        gaps = [[] for _ in mf]
        for q in range(4):
            f_ = pfin(q)
            g0 = 4 * q + 6
            if g0 + 2 < 20:
                gaps[g0] += f_[0:2]; gaps[g0 + 1] += f_[2:4]; gaps[g0 + 2] += f_[4:]
        sg.addall(interleave(mf, gaps))
        stamp(sg, 9)
        sg.addall(pfin(3) + pfin(4))
    else:
        stamp(sg, 9)
        for q in range(5): sg.addall(pfin(q))
    a(barrier(needvm=['pst'], lg0=False))
    stamp(sg, 5, '2')
    raise_flag(sg, 2, "L_sig2")
    a(S(f"s_mov_b32 s{S_SO}, 4096", [], [S_SO]))
    a(S(f"s_mov_b32 s{S_T1}, 0xffff0000", [], [S_T1]))
    PB, SM, U = 100, 140, 148
    def pl(h): return vload(('v', PB + 4 * h), 4, V_PLD, S_WT, S_SO if h >= 4 else None, (h & 3) * 1024, flags=' sc1')
    t = [f"s_mov_b32 s{S_SPIN}, {opt.spin}", f"s_mov_b32 s{S_T2}, 0", "L_poll2:", f"s_load_dwordx16 s[4:19], s[{S_C}:{S_C+1}], s{S_F2} glc", f"s_sub_u32 s{S_SPIN}, s{S_SPIN}, 1",
         "s_waitcnt lgkmcnt(0)", f"s_cmp_eq_u32 s{S_SPIN}, 0", "s_cbranch_scc1 L_poll2_done"]
    for h in range(8):
        t += [f"s_cmp_lg_u64 s[{4+2*h}:{5+2*h}], s[{S_NON}:{S_NON+1}]", f"s_cbranch_scc1 L_g{h}", f"s_bitcmp1_b32 s{S_T2}, {h}", f"s_cbranch_scc1 L_g{h}",
              f"s_bitset1_b32 s{S_T2}, {h}", pl(h).t, f"L_g{h}:"]
    t += [f"s_cmp_lg_u32 s{S_T2}, 0xff", "s_cbranch_scc1 L_poll2", "L_poll2_done:"]
    if int(opt.p2w):
        t = [f"s_cmp_lg_u32 s{S_W}, 0", "s_cbranch_scc1 L_poll2_done", f"s_mov_b32 s{S_SPIN}, {opt.spin}", "L_poll2:", f"s_load_dwordx16 s[4:19], s[{S_C}:{S_C+1}], s{S_F2} glc",
             f"s_sub_u32 s{S_SPIN}, s{S_SPIN}, 1", "s_waitcnt lgkmcnt(0)", f"s_cmp_eq_u32 s{S_SPIN}, 0", "s_cbranch_scc1 L_poll2_done"]
        for h in range(8): t += [f"s_cmp_lg_u64 s[{4+2*h}:{5+2*h}], s[{S_NON}:{S_NON+1}]", "s_cbranch_scc1 L_poll2"]
        t += ["L_poll2_done:", "s_barrier"] + [pl(h).t for h in range(8)]
    for x in t: sg.text(x)
    stamp(sg, 6, '2')
    sg.drain()
    for h in range(8):
        d = SM if h == 0 else U
        for r in range(4):
            a(V(f"v_lshlrev_b32 v{d+2*r}, 16, v{PB+4*h+r}", [PB+4*h+r], [d+2*r]))
            a(V(f"v_and_b32 v{d+2*r+1}, s{S_T1}, v{PB+4*h+r}", [PB+4*h+r], [d+2*r+1]))
        if h:
            for r in range(0, 8, 2):
                a(V(f"v_pk_add_f32 v[{SM+r}:{SM+r+1}], v[{SM+r}:{SM+r+1}], v[{U+r}:{U+r+1}]", [SM+r, SM+r+1, U+r, U+r+1], [SM+r, SM+r+1]))
    for r in range(4):
        a(V(f"v_cvt_pk_bf16_f32 v{SM+r}, v{SM+2*r}, v{SM+2*r+1}", [SM+2*r, SM+2*r+1], [SM+r]))
    a(vstore(('v', SM), 2, V_OUT, S_OUT, None, 0, flags=opt.out_flags))
    a(vstore(('v', SM + 2), 2, V_OUT, S_OUT, None, 32, flags=opt.out_flags))

def out_of_line():
    t = []
    t += ["L_spin_n:", f"s_mov_b32 s{S_SPIN}, {opt.spin}", "L_spin_n1:",
          f"buffer_load_dwordx2 v[{V_GC}:{V_GC+1}], v9, s[{S_D}:{S_D+3}], 0 offen sc1", f"s_sub_u32 s{S_SPIN}, s{S_SPIN}, 1", "s_waitcnt vmcnt(0)",
          f"v_readfirstlane_b32 s{S_NON}, v{V_GC}", f"v_readfirstlane_b32 s{S_NON+1}, v{V_GC+1}", f"s_cmp_eq_u32 s{S_SPIN}, 0", "s_cbranch_scc1 L_back_n", "s_nop 2",
          f"s_cmp_eq_u64 s[{S_NON}:{S_NON+1}], 0", "s_cbranch_scc1 L_spin_n1", "s_branch L_back_n"]
    t += ["L_redo:", f"s_mov_b64 s[{S_GM}:{S_GM+1}], 0", f"s_mov_b32 s{S_REDO}, 1",
          "s_waitcnt vmcnt(0) lgkmcnt(0)", "s_barrier"]
    sg = Seg()
    p1 = prologue1()
    a = sg.add
    a(V(f"v_lshl_add_u32 v{V_T0}, s{S_W}, 2, v{V_G}", [V_G], [V_T0]))
    a(V(f"v_xor_b32 v{V_T1}, v{V_N}, v{V_T0}", [V_N, V_T0], [V_T1]))
    a(V(f"v_lshlrev_b32 v{V_T1}, 4, v{V_T1}", [V_T1], [V_T1]))
    a(V(f"v_lshl_add_u32 v{V_XD}, v{V_T0}, 10, v{V_T1}", [V_T0, V_T1], [V_XD]))
    a(S(f"s_and_b32 s{S_T0}, s{S_W}, 2", [S_W], [S_T0]))
    a(S(f"s_lshl_b32 s{S_T0}, s{S_T0}, 2", [S_T0], [S_T0]))
    a(V(f"v_lshl_add_u32 v{V_T1}, v{V_G}, 1, s{S_T0}", [V_G], [V_T1]))
    a(V(f"v_xor_b32 v{V_T1}, v{V_N}, v{V_T1}", [V_N, V_T1], [V_T1]))
    a(V(f"v_lshlrev_b32 v{V_T1}, 4, v{V_T1}", [V_T1], [V_T1]))
    a(V(f"v_lshl_add_u32 v{V_WD}, v{V_T0}, 13, v{V_T1}", [V_T0, V_T1], [V_WD]))
    t += sg.out + ["s_nop 4", "s_branch L_restart"]
    sg = Seg(); a = sg.add
    sg.text("L_max:")
    sg.text(f"s_mov_b32 s{S_SPIN}, m0")
    sg.drain()
    sg.text("s_barrier")
    MX, KF, AD = 76, V_VF, 84
    for q in range(5): a(V(f"v_mov_b32 v{MX+q}, 0xff800000", [], [MX+q]))
    for s in range(4): a(V(f"v_add_u32 v{AD+s}, {96*KB}, v{V_KA+s}", [V_KA+s], [AD+s]))
    a(S(f"s_mov_b32 s{S_T2}, 0", [], [S_T2]))
    sg.text("L_max_loop:"); sg.reset_hist()
    for j in range(8):
        if j % 4 == 0:
            a(S(f"s_add_u32 s{S_T1}, s{S_T2}, {(j>>2)*4096}", [S_T2], [S_T1]))
            a(S(f"s_add_u32 m0, s{S_W8K}, {96*KB + (j>>2)*4096}", [S_W8K], [M0]))
        a(dma(V_KD + (j & 3), S_K, S_T1, 1024 * (j & 3), 'mk'))
    for t_ in range(2):
        for s in range(4):
            a(dsrd('ds_read_b128', ('v', KF + (t_ * 4 + s) * 4), 4, AD + s, t_ * 4096, needvm=['mk']))
    for q in range(5):
        for t_ in range(2):
            d = ('v', 88 + t_ * 4)
            for s in range(4): a(mfma(d, ('v', KF + (t_ * 4 + s) * 4), AQ(q, s), 0 if s == 0 else d))
        for k in range(4):
            a(V(f"v_max3_f32 v{MX+q}, v{MX+q}, v{88+2*k}, v{89+2*k}", [MX+q, 88+2*k, 89+2*k], [MX+q]))
    sg.drain()
    a(S(f"s_add_u32 s{S_T2}, s{S_T2}, 8192", [S_T2], [S_T2]))
    sg.text(f"s_cmp_lt_u32 s{S_T2}, 65536"); sg.text("s_nop 4"); sg.text("s_cbranch_scc1 L_max_loop")
    sg.text("s_barrier")
    a(S(f"s_mul_i32 s{S_T0}, s{S_W}, 1280", [S_W], [S_T0]))
    a(S(f"s_add_u32 s{S_T0}, s{S_T0}, {96*KB}", [S_T0], [S_T0]))
    a(V(f"v_lshl_add_u32 v{AD}, v{V_LANE}, 2, s{S_T0}", [V_LANE], [AD]))
    a(S(f"s_mov_b32 s{S_T0}, {96*KB}", [], [S_T0]))
    a(V(f"v_lshl_add_u32 v{AD+1}, v{V_N}, 2, s{S_T0}", [V_N], [AD+1]))
    for q in range(5): a(dswr('ds_write_b32', AD, ('v', MX + q), 1, q * 256))
    a(barrier())
    for q in range(5):
        for k in range(16):
            a(dsrd('ds_read_b32', ('v', KF + k), 1, AD + 1, (k >> 2) * 1280 + q * 256 + (k & 3) * 64))
        for k in range(8):
            a(V(f"v_max3_f32 v{MX+q}, v{MX+q}, v{KF+2*k}, v{KF+2*k+1}", [MX+q, KF+2*k, KF+2*k+1], [MX+q]))
        for r in range(4):
            a(V(f"v_sub_f32 v{V_NEGM+q*4+r}, 0, v{MX+q}", [MX+q], [V_NEGM+q*4+r]))
    sg.drain()
    sg.text("s_barrier"); sg.text(f"s_mov_b32 m0, s{S_SPIN}"); sg.text("s_nop 4"); sg.text("s_branch L_back_max")
    return t + sg.out

def stamp_out(sg, n):
    if not opt.stamps: return
    stamp(sg, n - 1)
    t = ["s_load_dwordx2 s[4:5], s[0:1], 56", "s_waitcnt lgkmcnt(0)", f"s_add_u32 s4, s4, {16<<20}", "s_addc_u32 s5, s5, 0", "s_and_b32 s5, s5, 0xffff",
         "s_mov_b32 s6, 0x100000", "s_mov_b32 s7, 0x20000", "s_lshl_b32 s8, s2, 2", "s_add_u32 s8, s8, s32", "s_lshl_b32 s8, s8, 6", "v_mov_b32 v2, s8"]
    for i in range(n):
        t += [f"v_mov_b32 v3, s{3 if i == 0 else 76+2*i}", f"buffer_store_dword v3, v2, s[4:7], 0 offen offset:{4*i}"]
    for x in t: sg.text(x)

def kernel():
    sg = Seg()
    sg.text(NAME + "_kernel:")
    sg.text("s_cmp_ge_u32 s2, 256")
    sg.text("s_cbranch_scc1 L_end")
    if opt.stamps:
        stamp(sg, 0)
    p1 = prologue1()
    sg.addall(p1[:2])
    if int(opt.cpf):
        for x in ["s_getpc_b64 s[94:95]", "L_pc:", "s_lshr_b32 s3, s2, 3", "v_lshrrev_b32 v8, 6, v0", "v_and_b32 v9, 1, v0", "v_lshl_add_u32 v8, v8, 1, v9",
                  "v_lshl_add_u32 v8, s3, 3, v8", "v_lshlrev_b32 v8, 7, v8", "v_min_u32 v8, (L_code_end - L_pc - 4) & 0xffffff80, v8"] + (["global_load_dword v255, v8, s[94:95]"] if int(opt.cpf) == 1 else ["s_mov_b64 s[12:13], s[94:95]"]): sg.text(x)
    sg.addall(p1[2:])
    if opt.stamps:
        sg.text("s_mov_b32 s3, s76")
    p2 = prologue2()
    Q = Queue()
    first = x_dma(0) + w_dma(0) if not int(opt.wfirst) else w_dma(0) + x_dma(0)
    stamp(sg, 5, 'P')
    Q.push(first)
    weave(sg, Q, [], 9, 0)
    if int(opt.cpf) == 2: sg.text("global_load_dword v255, v8, s[12:13]")
    stamp(sg, 6, 'P')
    sg.addall(p2)
    stamp(sg, 7, 'P')
    sg.text("s_cmp_lg_u32 s2, 0"); sg.text("s_cbranch_scc1 L_nocz")
    lane0(sg, ["v_mov_b32 v9, 0", f"s_memrealtime s[{S_NON}:{S_NON+1}]", "s_waitcnt lgkmcnt(0)", f"s_or_b32 s{S_NON}, s{S_NON}, 1", f"v_mov_b32 v250, s{S_NON}", f"v_mov_b32 v251, s{S_NON+1}",
               f"buffer_store_dwordx2 v[250:251], v9, s[{S_D}:{S_D+3}], 0 offen sc1"], "L_nocz")
    sg.text("s_branch L_first")
    sg.text("L_restart:")
    s2 = Seg(); s2.addall(restart_setup()); Q2 = Queue(); Q2.push(x_dma(0) + w_dma(0) if not int(opt.wfirst) else w_dma(0) + x_dma(0)); weave(s2, Q2, [], 9, 0)
    for x in s2.out: sg.text(x)
    sg.text("L_first:")
    early, late = prologue3()
    early = early + late
    def BB(u): return f"B{u + 1}"
    Q.push(w_dma(1) + x_dma(1) + w_dma(2) + w_dma(3) + x_dma(2) + w_dma(4) + ((w_dma(5, 'B2') + x_dma(3)) if int(opt.la) else (x_dma(3) + w_dma(5, 'B2'))) + w_dma(6, 'B3') + w_dma(7, 'B4')
           + kv_dma('k', 0, 'B5') + kv_dma('v', 0, 'B6') + kv_dma('k', 1, 'B8') + kv_dma('v', 1, 'BQ'))
    for i in range(2, 8):
        if not int(opt.nodma): Q.push(kv_dma('k', i) + kv_dma('v', i))
    n0 = int(opt.n0) - 9
    weave(sg, Q, early, n0, (len(early) + n0 - 1) // n0)
    sg.addall(early)
    qr = phase_a(sg, Q)
    sg.addall(qr[:0])
    stamp(sg, 3)
    sg.text(f"s_cmp_eq_u32 s{S_REDO}, 0"); sg.text("s_cbranch_scc1 L_back_max")
    s2 = Seg(); s2.addall(qr)
    for x in s2.out: sg.text(x)
    sg.text("s_branch L_max")
    sg.text("L_back_max:")
    phase_b(sg, Q, qr)
    combine(sg, Q)
    phase_c(sg, Q)
    sg.text("L_fin:")
    stamp_out(sg, 11)
    sg.text("L_end:")
    sg.text("s_endpgm")
    return sg.out + ['L_code_end:'] + out_of_line()

def report_kernel():
    idx, mode = opt.report.split(',')
    if mode == 'next':
        return ["report_kernel:", "s_cmp_ge_u32 s2, 1", "s_cbranch_scc1 L3_end", "s_memrealtime s[12:13]", "s_load_dwordx2 s[4:5], s[0:1], 56", "s_waitcnt lgkmcnt(0)",
                f"s_add_u32 s4, s4, {17<<20}", "s_addc_u32 s5, s5, 0", "s_and_b32 s5, s5, 0xffff", "s_mov_b32 s6, 64", "s_mov_b32 s7, 0x20000", "v_mov_b32 v1, 0", "v_mov_b32 v2, s12",
                "buffer_store_dword v2, v1, s[4:7], 0 offen", "L3_end:", "s_endpgm"]
    t = ["report_kernel:", "s_cmp_ge_u32 s2, 1", "s_cbranch_scc1 L3_end", "s_load_dwordx2 s[4:5], s[0:1], 56", "s_waitcnt lgkmcnt(0)",
         f"s_add_u32 s4, s4, {16<<20}", "s_addc_u32 s5, s5, 0", "s_and_b32 s5, s5, 0xffff", "s_mov_b32 s6, 0x100000", "s_mov_b32 s7, 0x20000",
         "v_lshlrev_b32 v1, 8, v0", f"buffer_load_dword v2, v1, s[4:7], 0 offen offset:{4*int(idx)}", "buffer_load_dword v3, v1, s[4:7], 0 offen",
         "v_mov_b32 v4, 0", "v_mov_b32 v5, 0", "v_mov_b32 v6, -1", "ds_write_b32 v4, v5", "ds_write_b32 v4, v6 offset:8", "s_waitcnt vmcnt(0) lgkmcnt(0)", "s_barrier",
         "ds_min_u32 v4, v3 offset:8", "s_waitcnt lgkmcnt(0)", "s_barrier", "ds_read_b32 v6, v4 offset:8", "s_waitcnt lgkmcnt(0)", "v_sub_u32 v2, v2, v6",
         "v_lshrrev_b32 v7, 3, v0", "v_mul_u32_u24 v7, 52, v7", "v_lshrrev_b32 v7, 8, v7", "v_and_b32 v8, 1, v0", "v_sub_u32 v8, 6, v8", "v_cmp_lt_u32 vcc, v7, v8",
         "v_min_u32 v2, 10000, v2",
         ("ds_add_u32 v4, v2" if mode == 'mean' else "ds_max_u32 v4, v2"), "s_waitcnt lgkmcnt(0)", "s_barrier", "ds_read_b32 v6, v4", "s_memrealtime s[12:13]", "s_waitcnt lgkmcnt(0)",
         "v_readfirstlane_b32 s10, v6", "s_nop 4"]
    if mode == 'mean': t += ["s_mul_i32 s10, s10, 10", "s_lshr_b32 s10, s10, 8"]
    elif mode == 'max': t += ["s_mul_i32 s10, s10, 10"]
    else: t += ["s_mov_b32 s10, 0"]
    t += ["L3_spin:", "s_memrealtime s[14:15]", "s_waitcnt lgkmcnt(0)", "s_sub_u32 s14, s14, s12",
          "s_cmp_lt_u32 s14, s10", "s_cbranch_scc1 L3_spin", "L3_end:", "s_endpgm"]
    return t

def build():
    def fmt(l): return "\n".join(x if x.endswith(':') else "    " + x for x in l)
    nm = NAME + "_kernel"
    s = "; @launch grid=(256,1,1) block=(256,1,1) lds=163840\n"
    if opt.report:
        s = f"; @launch kernel={nm} grid=(256,1,1) block=(256,1,1) lds=163840\n; @launch kernel=report_kernel grid=(1,1,1) block=(256,1,1) lds=64\n"
    s += '.amdgcn_target "amdgcn-amd-amdhsa--gfx950"\n.text\n'
    s += f".globl {nm}\n.p2align 8\n.type {nm},@function\n" + fmt(kernel()) + "\n"
    if opt.report: s += ".globl report_kernel\n.p2align 8\n.type report_kernel,@function\n" + fmt(report_kernel()) + "\n"
    s += f""".section .rodata,"a"
.p2align 6
.amdhsa_kernel {nm}
  .amdhsa_next_free_vgpr 512
  .amdhsa_next_free_sgpr 102
  .amdhsa_accum_offset 256
  .amdhsa_group_segment_fixed_size 0
  .amdhsa_kernarg_size 64
  .amdhsa_user_sgpr_count 2
  .amdhsa_user_sgpr_kernarg_segment_ptr 1
  .amdhsa_system_sgpr_workgroup_id_x 1
  .amdhsa_float_denorm_mode_32 3
.end_amdhsa_kernel
"""
    if opt.report:
        s += """.p2align 6
.amdhsa_kernel report_kernel
  .amdhsa_next_free_vgpr 32
  .amdhsa_next_free_sgpr 32
  .amdhsa_accum_offset 32
  .amdhsa_group_segment_fixed_size 0
  .amdhsa_kernarg_size 64
  .amdhsa_user_sgpr_count 2
  .amdhsa_user_sgpr_kernarg_segment_ptr 1
  .amdhsa_system_sgpr_workgroup_id_x 1
.end_amdhsa_kernel
"""
    return s

if __name__ == '__main__':
    out = sys.argv[1] if len(sys.argv) > 1 else 'cdna_kernels/' + NAME + '.s'
    for a_ in sys.argv[2:]:
        k, v = a_.split('=', 1)
        setattr(opt, k, (' ' + v) if k.endswith('flags') and v else v)
    txt = build()
    open(out, 'w').write(txt)
```

```python
import sys, struct, re
from dsl import *

KB = 1024
NAME = 'standalone__gqa_block_cached__near_ridge'
def f2h(x): return hex(struct.unpack('<I', struct.pack('<f', x))[0])
QSCALE = 1.4426950408889634 / (128 ** 0.5)
WS_WO = 8 << 20
WS_CT = 12 << 20

class Opt:
    stamps = ''
    report = ''
    kv_flags = ''
    a_flags = ''
    n0 = 22
    warm = 1
    perstep = 6
    lo_exp = -40
    hi_exp = 40
    spin = 300000
    rt_at = 5
    bar_at = 12
    nodma = 0
    wfirst = 0
    kvnt = 'x'
    ant = ''
    tch_flags = ''
    wsb = 0
    drain = '45'
    tlb_at = 99
    aonly = 0
    la = 10
    aq = 1
    ownlate = 1
    o_flags = ' sc1'
    f1_flags = ' sc1'
    w64 = 0
    out_flags = ''
    bsched = 1
    p1w = 1
    p2w = 0
    pollk = '19,29,39'
    dyn2 = 1
    qmaj = 1
    tch_at = 27
    even_at = 99
    pdepth = 1
    kvo = 4
    finw = 0
    alim = 16
    cpf = 1
    chain = 1
    wo_at = 35
    calc_at = 16
    nl_at = 8
    nc_at = 13
    cw = 8
    shadow = 6
    bst = '0,5,10,15,20'
    no_rt = 0
    clk = 'r'
    lg0 = 0
    vpos = '1,5,9,13'
    rot_kv = 1
    rot_a = 8
    rot_c = 1
    gl_at = 29
    gc_at = 33
opt = Opt()

S_X, S_WQ, S_K, S_V, S_O, S_WO, S_WT, S_WL, S_C, S_D, S_OUT = 4, 8, 12, 16, 20, 24, 28, 52, 56, 60, 64
S_W, S_B, S_HKV, S_HQ = 32, 33, 34, 35
S_W1K, S_W8K, S_SO, S_T0, S_T1, S_T2, S_SK, S_SV = 36, 37, 38, 39, 40, 41, 42, 43
S_TAB = 44
S_REDO, S_MT, S_NT, S_VALID, S_RT, S_SPIN = 68, 69, 70, 71, 72, 73
S_EX = 74
S_F1, S_F2, S_G1, S_G2 = 100, 101, 72, 51
S_GM = 70
S_J_UNUSED = 3
S_P = 76
S_ST = 80
V_LANE, V_N, V_G, V_T0, V_T1, V_T2, V_T3, V_T4, V_T5 = 1, 2, 3, 4, 5, 6, 7, 8, 9
V_KA, V_VA, V_KD, V_VD = 10, 14, 22, 26
V_OST, V_CW, V_LW = 28, 29, 31
V_ONES, V_NEGM, V_L, V_S, V_P, V_KF, V_VF = 32, 36, 56, 76, 92, 100, 164
V_XA, V_XB, V_WA, V_WB, V_XD, V_WD, V_QW = 228, 232, 236, 238, 240, 241, 242
V_GC = 250
S_NON = 96
V_CR, V_LR, V_WOD, V_WT, V_OL, V_OW, V_OD, V_PS, V_PLD, V_OUT, V_P1, V_P2 = 228, 234, 235, 236, 242, 243, 244, 245, 246, 247, 248, 249
V_ZERO = 9
V_TCH = 64
S_H = 52
S_W5K = 55
S_J = 69
A_O, A_Q = 0, 160
V_OWN = [132, 140, 148, 156, 56]
A_KF1, A_L = 120, 240
def AO(lam, q):
    if lam < 2: return ('v', V_OWN[q] + 4 * lam)
    return ('a', A_O + 4 * (q * 6 + lam - 2))
def KF(i, k): return ('v', V_KF + 4 * k) if i % 2 == 0 else ('a', A_KF1 + 4 * k)
def LA(q): return ('a', A_L + 4 * q) if q < 4 else ('a', 152)
def AQ(q, s): return ('a', A_Q + 4 * (q * 4 + s))

def XU(c, q):
    if c == 0: return q * 4 * KB
    if c == 1: return 20 * KB + q * 4 * KB
    if c == 2: return 128 * KB + q * 4 * KB
    return [120, 124, 148, 152, 156][q] * KB
def WU(slot, ks):
    return {0: [40, 48], 1: [56, 96], 2: [104, 112], 3: [64, 72], 4: [80, 88]}[slot][ks] * KB
WSLOT = [0, 1, 2, 3, 4, 0, 1, 2]
QBUF = 128 * KB

def V(t, r=(), w=()):
    return valu(t, r=[('v', x) if isinstance(x, int) else x for x in r], w=[('v', x) if isinstance(x, int) else x for x in w])
def T(t, r=(), w=()):
    return valu(t, r=[('v', x) for x in r], w=[('v', x) for x in w], trans=True)
def S(t, r=(), w=()):
    return salu(t, r=[('s', x) if isinstance(x, int) else x for x in r], w=[('s', x) if isinstance(x, int) else x for x in w])
M0 = ('m0', 0)
VCC = ('vcc', 0)
def flat(l): return [x for y in l for x in y]

def srd(dst, plo, add_s=None, add_imm=0, size=0):
    o = []
    if add_s is not None:
        o.append(S(f"s_add_u32 s{dst}, s{plo}, s{add_s}", [plo, add_s], [dst]))
        o.append(S(f"s_addc_u32 s{dst+1}, s{plo+1}, 0", [plo+1], [dst+1]))
        o.append(S(f"s_and_b32 s{dst+1}, s{dst+1}, 0xffff", [dst+1], [dst+1]))
    elif add_imm:
        o.append(S(f"s_add_u32 s{dst}, s{plo}, {add_imm}", [plo], [dst]))
        o.append(S(f"s_addc_u32 s{dst+1}, s{plo+1}, 0", [plo+1], [dst+1]))
        o.append(S(f"s_and_b32 s{dst+1}, s{dst+1}, 0xffff", [dst+1], [dst+1]))
    else:
        o.append(S(f"s_mov_b32 s{dst}, s{plo}", [plo], [dst]))
        o.append(S(f"s_and_b32 s{dst+1}, s{plo+1}, 0xffff", [plo+1], [dst+1]))
    if isinstance(size, str):
        o.append(S(f"s_mov_b32 s{dst+2}, {size}", [int(size[1:])], [dst+2]))
    else:
        o.append(S(f"s_mov_b32 s{dst+2}, {size}", [], [dst+2]))
    o.append(S(f"s_mov_b32 s{dst+3}, 0x20000", [], [dst+3]))
    return o

KV_ORDER = [[0, 2, 1, 3, 4, 6, 5, 7], [0, 1, 3, 2, 4, 5, 7, 6], [1, 0, 2, 4, 3, 5, 6, 7], [1, 0, 2, 3, 5, 4, 6, 7]]
KV_ORDERS = [KV_ORDER,
  [[0, 4, 1, 2, 3, 5, 6, 7], [1, 0, 5, 2, 3, 4, 6, 7], [2, 0, 1, 6, 3, 4, 5, 7], [3, 0, 1, 2, 7, 4, 5, 6]],
  [[0, 1, 2, 3, 4, 5, 6, 7], [0, 1, 2, 3, 4, 5, 6, 7], [4, 5, 6, 7, 0, 1, 2, 3], [4, 5, 6, 7, 0, 1, 2, 3]],
  [[0, 2, 1, 3, 5, 4, 6, 7], [1, 0, 3, 2, 4, 6, 5, 7], [2, 1, 0, 4, 3, 5, 7, 6], [0, 1, 2, 3, 5, 4, 6, 7]],
  [[0, 1, 2, 4, 3, 5, 6, 7], [1, 0, 2, 3, 5, 4, 6, 7], [2, 0, 1, 3, 4, 6, 5, 7], [0, 1, 3, 2, 4, 5, 7, 6]],
  [[0, 1, 4, 2, 3, 5, 6, 7], [1, 0, 2, 5, 3, 4, 6, 7], [2, 0, 1, 3, 6, 4, 5, 7], [0, 3, 1, 2, 4, 7, 5, 6]],
  [[0, 1, 3, 2, 4, 5, 7, 6], [0, 1, 2, 4, 3, 5, 6, 7], [0, 2, 1, 3, 5, 4, 6, 7], [0, 2, 1, 3, 4, 6, 5, 7]],
  [[0, 1, 2, 4, 3, 5, 6, 7], [1, 0, 3, 2, 5, 4, 6, 7], [2, 3, 0, 1, 4, 6, 5, 7], [3, 2, 1, 0, 4, 5, 7, 6]],
  [[0, 1, 2, 4, 3, 5, 6, 7], [1, 2, 0, 3, 5, 4, 6, 7], [2, 0, 1, 3, 4, 6, 5, 7], [0, 3, 1, 2, 4, 5, 7, 6]]]
def kv_pack(j):
    o = KV_ORDERS[int(opt.kvo)][j] if int(opt.rot_kv) else list(range(8))
    return sum(t << (4 * i) for i, t in enumerate(o))
S_KVO = 98
V_XD4 = 204
S_WC = 99

class Item:
    def __init__(s, pre, ins, after=None): s.pre, s.ins, s.after = pre, ins, after
def x_dma(c, after=None):
    return [Item([S(f"s_add_u32 m0, s{S_W1K}, {XU(c,q)}", [S_W1K], [M0])],
                 dma(V_XD4 + c, S_X, S_TAB + q, 0, ('x', c), flags=(' nt' if 'x' in opt.ant and c < 2 else opt.a_flags)), after) for q in range(5)]
def w_dma(u, after=None):
    o = []
    for k in range(4):
        pre = []
        if k == 0:
            pre.append(S(f"s_add_u32 s{S_SK}, s{S_WC}, {(u & 6) << 19}", [S_WC], [S_SK]))
            pre.append(S(f"s_and_b32 s{S_SK}, s{S_SK}, {7 << 19}", [S_SK], [S_SK]))
            if u & 1: pre.append(S(f"s_xor_b32 s{S_SK}, s{S_SK}, {1 << 19}", [S_SK], [S_SK]))
        pre.append(S(f"s_add_u32 s{S_SO}, s{S_SK}, {k*131072}", [S_SK], [S_SO]))
        pre.append(S(f"s_add_u32 m0, s{S_W1K}, {WU(WSLOT[u], k>>1) + (k&1)*4*KB}", [S_W1K], [M0]))
        o.append(Item(pre, dma(V_WD, S_WQ, S_SO, 0, ('w', u), flags=(' nt' if 'w' in opt.ant and u < 4 else opt.a_flags)), after))
    return o
def kv_dma(kind, i, after=None):
    o = []
    base = (i & 1) * 32 * KB + (0 if kind == 'k' else 64 * KB)
    sr, so = (S_K, S_SK) if kind == 'k' else (S_V, S_SV)
    for j in range(8):
        pre = []
        if j % 4 == 0:
            if j == 0:
                pre.append(S(f"s_bfe_u32 s{so}, s{S_KVO}, {hex((3 << 16) | (4 * i))}", [S_KVO], [so]))
                pre.append(S(f"s_lshl_b32 s{so}, s{so}, 13", [so], [so]))
            else:
                pre.append(S(f"s_add_u32 s{so}, s{so}, 4096", [so], [so]))
            pre.append(S(f"s_add_u32 m0, s{S_W8K}, {base + (j>>2)*4096}", [S_W8K], [M0]))
        va = V_KD + (j & 3) if kind == 'k' else V_VD + (j & 1)
        tag = (kind + 'r', i - 2, j >> 2)
        o.append(Item(pre, dma(va, sr, so, 1024 * (j & 3), (kind, i, j >> 2), needlg=[tag], flags=(' nt' if str(i) in str(opt.kvnt) else opt.kv_flags)), after if i < 2 else tag))
    return o
def k_reads(i):
    return [dsrd('ds_read_b128', KF(i, t * 4 + s), 4, V_KA + s, (i & 1) * 32 * KB + t * 4096,
                 needvm=[('k', i, t)], lgtag=('kr', i, t)) for t in range(2) for s in range(4)]
def v_reads(i):
    return [dsrd('ds_read_b64_tr_b16', ('v', V_VF + (i & 1) * 32 + lam * 4 + h * 2), 2, V_VA + lam, (i & 1) * 32 * KB + h * 4096,
                 needvm=[('v', i, h)], lgtag=('vr', i, h)) for h in range(2) for lam in range(8)]

class Queue:
    def __init__(s): s.q = []; s.pts = set()
    def push(s, items): s.q += items
    def mark(s, p): s.pts.add(p)
    def pop(s):
        if s.q and (s.q[0].after is None or s.q[0].after in s.pts): return s.q.pop(0)
        return None

def place(gaps, Q, pos):
    last = -1
    for p in pos:
        if p >= len(gaps): continue
        it = Q.pop()
        if it is None: break
        pre = list(it.pre)
        avail = list(range(last + 1, p))
        front = []
        if not avail: front = pre
        else:
            slots = [[] for _ in avail]
            for k_, x in enumerate(reversed(pre)):
                slots[max(0, len(avail) - 1 - k_)].insert(0, x)
            for g, sl in zip(avail, slots):
                k_ = 0
                while k_ < len(gaps[g]) and gaps[g][k_].k == 'salu': k_ += 1
                gaps[g][k_:k_] = sl
        k = 0
        while k < len(gaps[p]) and gaps[p][k].k == 'salu': k += 1
        gaps[p][k:k] = front + [it.ins]
        last = p
def weave(sg, Q, fill, n, per):
    for _ in range(n):
        it = Q.pop()
        if it is not None: sg.addall(it.pre + [it.ins])
        for _ in range(per):
            if fill: sg.add(fill.pop(0))

NST = 12
def stamp(sg, i, grp='1'):
    if not opt.stamps: return
    if 5 <= i <= 9 and grp != opt.stamps: return
    sg.text(f"{'s_memtime' if opt.clk == 'c' else 's_memrealtime'} s[{76+2*i}:{77+2*i}]")

def prologue1():
    o = []; a = o.append
    a(raw("s_load_dwordx2 s[92:93], s[0:1], 0"))
    a(raw("s_load_dwordx2 s[26:27], s[0:1], 24"))
    a(V(f"v_lshrrev_b32 v{V_T0}, 6, v0", [0], [V_T0]))
    a(V(f"v_and_b32 v{V_LANE}, 63, v0", [0], [V_LANE]))
    a(V(f"v_readfirstlane_b32 s{S_W}, v{V_T0}", [V_T0], [('s', S_W)]))
    a(S(f"s_and_b32 s{S_HKV}, s2, 7", [2], [S_HKV]))
    a(S(f"s_lshr_b32 s{S_B}, s2, 5", [2], [S_B]))
    a(S(f"s_bfe_u32 s{S_T0}, s2, 0x20003", [2], [S_T0]))
    a(S(f"s_mov_b32 s{S_J}, s{S_T0}", [S_T0], [S_J]))
    a(S(f"s_lshl_b32 s{S_HQ}, s{S_HKV}, 2", [S_HKV], [S_HQ]))
    a(S(f"s_add_u32 s{S_HQ}, s{S_HQ}, s{S_T0}", [S_HQ, S_T0], [S_HQ]))
    if int(opt.rot_a) == 2:
        a(S(f"s_add_u32 s{S_VALID}, s{S_T0}, s{S_B}", [S_T0, S_B], [S_VALID]))
        a(S(f"s_and_b32 s{S_VALID}, s{S_VALID}, 1", [S_VALID], [S_VALID]))
        a(S(f"s_lshl_b32 s{S_VALID}, s{S_VALID}, 2", [S_VALID], [S_VALID]))
    elif int(opt.rot_a) in (5, 6):
        a_, b_ = (S_B, S_T0) if int(opt.rot_a) == 5 else (S_T0, S_B)
        a(S(f"s_lshl_b32 s{S_VALID}, s{b_}, 1", [b_], [S_VALID]))
        a(S(f"s_add_u32 s{S_VALID}, s{S_VALID}, s{a_}", [S_VALID, a_], [S_VALID]))
        a(S(f"s_and_b32 s{S_VALID}, s{S_VALID}, 3", [S_VALID], [S_VALID]))
        a(S(f"s_lshl_b32 s{S_VALID}, s{S_VALID}, 1", [S_VALID], [S_VALID]))
    elif int(opt.rot_a) in (8, 9):
        a(S(f"s_add_u32 s{S_VALID}, s{S_T0}, s{S_B}", [S_T0, S_B], [S_VALID]))
        a(S(f"s_lshl_b32 s{S_VALID}, s{S_VALID}, 1", [S_VALID], [S_VALID]))
        a(S(f"s_and_b32 s{S_T1}, s{S_HKV}, {1 if int(opt.rot_a) == 8 else 3}", [S_HKV], [S_T1]))
        a(S(f"s_add_u32 s{S_VALID}, s{S_VALID}, s{S_T1}", [S_VALID, S_T1], [S_VALID]))
        a(S(f"s_and_b32 s{S_VALID}, s{S_VALID}, 3", [S_VALID], [S_VALID]))
        a(S(f"s_lshl_b32 s{S_VALID}, s{S_VALID}, 1", [S_VALID], [S_VALID]))
    elif int(opt.rot_a) == 7:
        a(S(f"s_add_u32 s{S_VALID}, s{S_T0}, s{S_B}", [S_T0, S_B], [S_VALID]))
        a(S(f"s_and_b32 s{S_VALID}, s{S_VALID}, 1", [S_VALID], [S_VALID]))
        a(S(f"s_lshl_b32 s{S_VALID}, s{S_VALID}, 2", [S_VALID], [S_VALID]))
        a(S(f"s_bfe_u32 s{S_T1}, s{S_B}, 0x10001", [S_B], [S_T1]))
        a(S(f"s_or_b32 s{S_VALID}, s{S_VALID}, s{S_T1}", [S_VALID, S_T1], [S_VALID]))
    elif int(opt.rot_a) == 4:
        a(S(f"s_add_u32 s{S_VALID}, s{S_T0}, s{S_B}", [S_T0, S_B], [S_VALID]))
        a(S(f"s_and_b32 s{S_VALID}, s{S_VALID}, 3", [S_VALID], [S_VALID]))
        a(S(f"s_lshl_b32 s{S_VALID}, s{S_VALID}, 1", [S_VALID], [S_VALID]))
    elif int(opt.rot_a):
        a(S(f"s_lshl_b32 s{S_T0}, s{S_T0}, 1", [S_T0], [S_T0]))
        a(S(f"s_add_u32 s{S_VALID}, s{S_T0}, s{S_B}", [S_T0, S_B], [S_VALID]))
        a(S(f"s_and_b32 s{S_VALID}, s{S_VALID}, 7", [S_VALID], [S_VALID]))
    else:
        a(S(f"s_mov_b32 s{S_VALID}, 0", [], [S_VALID]))
    a(V(f"v_and_b32 v{V_N}, 15, v{V_LANE}", [V_LANE], [V_N]))
    a(V(f"v_lshrrev_b32 v{V_G}, 4, v{V_LANE}", [V_LANE], [V_G]))
    a(S(f"s_lshl_b32 s{S_W1K}, s{S_W}, 10", [S_W], [S_W1K]))
    a(S(f"s_lshl_b32 s{S_W8K}, s{S_W}, 13", [S_W], [S_W8K]))
    a(V(f"v_lshl_add_u32 v{V_T0}, s{S_W}, 2, v{V_G}", [V_G, ('s', S_W)], [V_T0]))
    a(V(f"v_xor_b32 v{V_T1}, v{V_N}, v{V_T0}", [V_N, V_T0], [V_T1]))
    a(V(f"v_lshlrev_b32 v{V_T1}, 4, v{V_T1}", [V_T1], [V_T1]))
    a(V(f"v_lshl_add_u32 v{V_XD}, v{V_T0}, 10, v{V_T1}", [V_T0, V_T1], [V_XD]))
    a(S(f"s_and_b32 s{S_T0}, s{S_W}, 2", [S_W], [S_T0]))
    a(S(f"s_lshl_b32 s{S_T0}, s{S_T0}, 2", [S_T0], [S_T0]))
    a(V(f"v_lshl_add_u32 v{V_T1}, v{V_G}, 1, s{S_T0}", [V_G, ('s', S_T0)], [V_T1]))
    a(V(f"v_xor_b32 v{V_T1}, v{V_N}, v{V_T1}", [V_N, V_T1], [V_T1]))
    a(V(f"v_lshlrev_b32 v{V_T1}, 4, v{V_T1}", [V_T1], [V_T1]))
    a(V(f"v_lshl_add_u32 v{V_WD}, v{V_T0}, 13, v{V_T1}", [V_T0, V_T1], [V_WD]))
    a(S(f"s_mul_i32 s{S_T0}, s{S_B}, 81920", [S_B], [S_T0]))
    a(S(f"s_lshl_b32 s{S_T2}, s{S_HQ}, 8", [S_HQ], [S_T2]))
    a(S(f"s_sub_u32 s{S_T1}, 4194304, s{S_T2}", [S_T2], [S_T1]))
    a(S(f"s_mov_b32 s{S_REDO}, 0", [], [S_REDO]))
    a(S(f"s_lshl_b32 s{S_WC}, s{S_VALID}, 19", [S_VALID], [S_WC]))
    a(S(f"s_mov_b64 s[{S_GM}:{S_GM+1}], -1", [], [S_GM, S_GM+1]))
    o += restart_setup()
    a(S(f"s_mov_b32 s{S_X+2}, 81920", [], [S_X+2])); a(S(f"s_mov_b32 s{S_X+3}, 0x20000", [], [S_X+3]))
    a(S(f"s_mov_b32 s{S_WQ+2}, s{S_T1}", [S_T1], [S_WQ+2])); a(S(f"s_mov_b32 s{S_WQ+3}, 0x20000", [], [S_WQ+3]))
    a(raw("s_waitcnt lgkmcnt(0)", 'wait'))
    o += srd(S_X, 92, add_s=S_T0, size=81920)[:3]
    o += srd(S_WQ, 26, add_s=S_T2, size=0)[:3]
    a(raw("s_load_dwordx4 s[92:95], s[0:1], 8"))
    a(raw(f"s_load_dwordx2 s[{S_WO}:{S_WO+1}], s[0:1], 32"))
    a(raw(f"s_load_dwordx4 s[{S_C}:{S_C+3}], s[0:1], 40"))
    a(raw("s_load_dwordx2 s[100:101], s[0:1], 56"))
    return o

def restart_setup():
    o = [S(f"s_mov_b32 s{S_TAB+q}, {q*16384}", [], [S_TAB+q]) for q in range(5)]
    for c in range(4):
        o.append(S(f"s_lshr_b32 s{S_SO}, s{S_WC}, 12", [S_WC], [S_SO]))
        o.append(S(f"s_add_u32 s{S_SO}, s{S_SO}, {c*256}", [S_SO], [S_SO]))
        o.append(S(f"s_and_b32 s{S_SO}, s{S_SO}, 0x300", [S_SO], [S_SO]))
        o.append(V(f"v_add_u32 v{V_XD4+c}, s{S_SO}, v{V_XD}", [V_XD, ('s', S_SO)], [V_XD4+c]))
    return o

def prologue2():
    o = []; a = o.append
    a(raw("s_waitcnt lgkmcnt(0)", 'wait'))
    a(S(f"s_lshl_b32 s{S_T0}, s{S_B}, 3", [S_B], [S_T0]))
    a(S(f"s_add_u32 s{S_T0}, s{S_T0}, s{S_HKV}", [S_T0, S_HKV], [S_T0]))
    a(S(f"s_lshl_b32 s{S_T0}, s{S_T0}, 2", [S_T0], [S_T0]))
    a(S(f"s_add_u32 s{S_T0}, s{S_T0}, s{S_W}", [S_T0, S_W], [S_T0]))
    a(S(f"s_lshl_b32 s{S_T0}, s{S_T0}, 16", [S_T0], [S_T0]))
    o += srd(S_K, 92, add_s=S_T0, size=65536)
    o += srd(S_V, 94, add_s=S_T0, size=65536)
    a(S(f"s_lshl_b32 s{S_T0}, s{S_HKV}, 19", [S_HKV], [S_T0]))
    o += srd(S_WO, S_WO, add_s=S_T0, size=524288)
    WB = int(opt.wsb) << 20
    o += srd(S_O, 100, add_imm=WB, size=8*5*128*1024)
    o += srd(S_WT, 100, add_imm=WB + WS_WO, size=8*4*20*8*1024)
    o += srd(S_D, S_C + 2, size=256)
    o += srd(S_OUT, S_C, size=655360)
    o += srd(S_C, 100, add_imm=WB + WS_CT, size=65536)
    a(S(f"s_bitcmp1_b32 s{S_HQ}, 0", [S_HQ], []))
    a(S(f"s_mov_b32 s{S_T0}, {hex(kv_pack(0))}", [], [S_T0]))
    a(S(f"s_cselect_b32 s{S_T0}, {hex(kv_pack(1))}, s{S_T0}", [S_T0], [S_T0]))
    a(S(f"s_mov_b32 s{S_T1}, {hex(kv_pack(2))}", [], [S_T1]))
    a(S(f"s_cselect_b32 s{S_T1}, {hex(kv_pack(3))}, s{S_T1}", [S_T1], [S_T1]))
    a(S(f"s_bitcmp1_b32 s{S_HQ}, 1", [S_HQ], []))
    a(S(f"s_cselect_b32 s{S_KVO}, s{S_T1}, s{S_T0}", [S_T0, S_T1], [S_KVO]))
    for p in range(3):
        a(S(f"s_cmp_le_u32 s{S_J}, {p}", [S_J], []))
        a(S(f"s_cselect_b32 s{S_T1}, {p + 1}, {p}", [], [S_T1]))
        a(S(f"s_lshl_b32 s{S_H+p}, s{S_T1}, 17", [S_T1], [S_H+p]))
    a(S(f"s_mul_i32 s{S_W5K}, s{S_W}, 5120", [S_W], [S_W5K]))
    a(S(f"s_lshl_b32 s{S_T0}, s{S_B}, 12", [S_B], [S_T0]))
    a(S(f"s_lshl_b32 s{S_F1}, s{S_HQ}, 7", [S_HQ], [S_F1]))
    a(S(f"s_add_u32 s{S_F1}, s{S_F1}, s{S_T0}", [S_F1, S_T0], [S_F1]))
    a(S(f"s_add_u32 s{S_F2}, s{S_F1}, 32768", [S_F1], [S_F2]))
    a(S(f"s_lshl_b32 s{S_T1}, s{S_HKV}, 9", [S_HKV], [S_T1]))
    a(S(f"s_lshl_b32 s{S_G1}, s{S_J}, 3", [S_J], [S_G1]))
    a(S(f"s_add_u32 s{S_G1}, s{S_G1}, s{S_T1}", [S_G1, S_T1], [S_G1]))
    a(S(f"s_add_u32 s{S_G1}, s{S_G1}, s{S_T0}", [S_G1, S_T0], [S_G1]))
    a(S(f"s_lshl_b32 s{S_T1}, s{S_J}, 7", [S_J], [S_T1]))
    a(S(f"s_lshl_b32 s{S_G2}, s{S_HKV}, 3", [S_HKV], [S_G2]))
    a(S(f"s_add_u32 s{S_G2}, s{S_G2}, s{S_T1}", [S_G2, S_T1], [S_G2]))
    a(S(f"s_add_u32 s{S_G2}, s{S_G2}, s{S_T0}", [S_G2, S_T0], [S_G2]))
    a(S(f"s_add_u32 s{S_G2}, s{S_G2}, 32768", [S_G2], [S_G2]))
    return o

def prologue3():
    o = []; a = o.append
    a(S(f"s_bfe_u32 s{S_T1}, s{S_WC}, 0x10013", [S_WC], [S_T1]))
    a(S(f"s_lshl_b32 s{S_T1}, s{S_T1}, 3", [S_T1], [S_T1]))
    a(V(f"v_xor_b32 v{V_T1}, s{S_T1}, v{V_N}", [V_N, ('s', S_T1)], [V_T1]))
    for s in range(4):
        a(V(f"v_add_u32 v{V_T0}, {4*s}, v{V_G}", [V_G], [V_T0]))
        a(V(f"v_xor_b32 v{V_T0}, v{V_T0}, v{V_T1}", [V_T0, V_T1], [V_T0]))
        a(V(f"v_lshlrev_b32 v{V_T0}, 4, v{V_T0}", [V_T0], [V_T0]))
        a(V(f"v_lshl_add_u32 v{V_XA+s}, v{V_N}, 8, v{V_T0}", [V_N, V_T0], [V_XA+s]))
        a(V(f"v_add_u32 v{V_XB+s}, {120*KB}, v{V_XA+s}", [V_XA+s], [V_XB+s]))
    a(V(f"v_lshrrev_b32 v{V_T2}, 2, v{V_N}", [V_N], [V_T2]))
    a(V(f"v_bfe_u32 v{V_T3}, v{V_N}, 1, 1", [V_N], [V_T3]))
    a(V(f"v_and_b32 v{V_T4}, 1, v{V_N}", [V_N], [V_T4]))
    a(V(f"v_lshlrev_b32 v{V_T4}, 3, v{V_T4}", [V_T4], [V_T4]))
    a(V(f"v_and_b32 v{V_T5}, 1, v{V_G}", [V_G], [V_T5]))
    a(V(f"v_lshl_add_u32 v{V_T5}, v{V_T5}, 2, v{V_T2}", [V_T5, V_T2], [V_T5]))
    a(V(f"v_lshlrev_b32 v{V_T5}, 1, v{V_T5}", [V_T5], [V_T5]))
    a(S(f"s_lshl_b32 s{S_T1}, s{S_W}, 2", [S_W], [S_T1]))
    a(V(f"v_lshl_add_u32 v{V_T1}, v{V_G}, 3, v{V_T2}", [V_G, V_T2], [V_T1]))
    a(V(f"v_lshl_add_u32 v{V_T1}, v{V_T1}, 8, v{V_T4}", [V_T1, V_T4], [V_T1]))
    for e in range(2):
        a(V(f"v_add3_u32 v{V_T0}, s{S_T1}, v{V_T3}, {2*e}", [V_T3, ('s', S_T1)], [V_T0]))
        a(V(f"v_xor_b32 v{V_T0}, v{V_T0}, v{V_T5}", [V_T0, V_T5], [V_T0]))
        a(V(f"v_lshl_add_u32 v{V_T0}, v{V_T0}, 4, v{V_T1}", [V_T0, V_T1], [V_T0]))
        a(V(f"v_add_u32 v{V_WA+e}, {40*KB}, v{V_T0}", [V_T0], [V_WA+e]))
        a(V(f"v_add_u32 v{V_WB+e}, {96*KB}, v{V_T0}", [V_T0], [V_WB+e]))
    a(V(f"v_lshl_add_u32 v{V_T1}, v{V_G}, 2, v{V_T2}", [V_G, V_T2], [V_T1]))
    n_early = len(o)
    for s in range(4):
        a(V(f"v_add_u32 v{V_KA+s}, s{S_W8K}, v{V_XA+s}", [V_XA+s, ('s', S_W8K)], [V_KA+s]))
    a(V(f"v_lshl_add_u32 v{V_T1}, v{V_T1}, 8, v{V_T4}", [V_T1, V_T4], [V_T1]))
    a(S(f"s_add_u32 s{S_T2}, s{S_W8K}, {64*KB}", [S_W8K], [S_T2]))
    a(V(f"v_add_u32 v{V_T1}, s{S_T2}, v{V_T1}", [V_T1, ('s', S_T2)], [V_T1]))
    a(V(f"v_add_u32 v{V_T3}, s{S_T1}, v{V_T3}", [V_T3, ('s', S_T1)], [V_T3]))
    for lam in range(8):
        a(V(f"v_add_u32 v{V_T0}, {2*lam}, v{V_T3}", [V_T3], [V_T0]))
        a(V(f"v_and_b32 v{V_T0}, 15, v{V_T0}", [V_T0], [V_T0]))
        a(V(f"v_xor_b32 v{V_T0}, v{V_T0}, v{V_T5}", [V_T0, V_T5], [V_T0]))
        a(V(f"v_lshl_add_u32 v{V_VA+lam}, v{V_T0}, 4, v{V_T1}", [V_T0, V_T1], [V_VA+lam]))
    a(V(f"v_xor_b32 v{V_T0}, v{V_N}, v{V_G}", [V_N, V_G], [V_T0]))
    a(V(f"v_lshlrev_b32 v{V_T0}, 4, v{V_T0}", [V_T0], [V_T0]))
    a(V(f"v_lshl_add_u32 v{V_KD}, v{V_G}, 8, v{V_T0}", [V_G, V_T0], [V_KD]))
    for j in range(1, 4):
        a(V(f"v_xor_b32 v{V_KD+j}, {64*j}, v{V_KD}", [V_KD], [V_KD+j]))
    a(V(f"v_lshlrev_b32 v{V_T0}, 1, v{V_G}", [V_G], [V_T0]))
    a(V(f"v_xor_b32 v{V_T0}, v{V_N}, v{V_T0}", [V_N, V_T0], [V_T0]))
    a(V(f"v_lshlrev_b32 v{V_T0}, 4, v{V_T0}", [V_T0], [V_T0]))
    a(V(f"v_lshl_add_u32 v{V_VD}, v{V_G}, 8, v{V_T0}", [V_G, V_T0], [V_VD]))
    a(V(f"v_xor_b32 v{V_VD+1}, 128, v{V_VD}", [V_VD], [V_VD+1]))
    a(V(f"v_lshrrev_b32 v{V_T0}, 1, v{V_G}", [V_G], [V_T0]))
    a(V(f"v_add_u32 v{V_T0}, s{S_T1}, v{V_T0}", [V_T0, ('s', S_T1)], [V_T0]))
    a(V(f"v_xor_b32 v{V_T0}, v{V_T0}, v{V_N}", [V_T0, V_N], [V_T0]))
    a(V(f"v_lshlrev_b32 v{V_T0}, 4, v{V_T0}", [V_T0], [V_T0]))
    a(V(f"v_lshl_add_u32 v{V_T0}, v{V_N}, 8, v{V_T0}", [V_N, V_T0], [V_T0]))
    a(V(f"v_and_b32 v{V_T1}, 1, v{V_G}", [V_G], [V_T1]))
    a(V(f"v_lshl_add_u32 v{V_T0}, v{V_T1}, 3, v{V_T0}", [V_T0, V_T1], [V_T0]))
    a(V(f"v_add_u32 v{V_QW}, {QBUF}, v{V_T0}", [V_T0], [V_QW]))
    a(V(f"v_xor_b32 v{V_QW+1}, 32, v{V_QW}", [V_QW], [V_QW+1]))
    a(V(f"v_lshl_add_u32 v{V_CW}, v{V_LANE}, 4, s{S_W8K}", [V_LANE, ('s', S_W8K)], [V_CW]))
    a(V(f"v_add_u32 v{V_CW+1}, {64*KB}, v{V_CW}", [V_CW], [V_CW+1]))
    a(S(f"s_add_u32 s{S_T0}, s{S_W8K}, {102*KB}", [S_W8K], [S_T0]))
    a(V(f"v_lshl_add_u32 v{V_LW}, v{V_LANE}, 5, s{S_T0}", [V_LANE, ('s', S_T0)], [V_LW]))
    a(S(f"s_mul_i32 s{S_T0}, s{S_B}, 640", [S_B], [S_T0]))
    a(S(f"s_lshl_b32 s{S_T2}, s{S_HQ}, 2", [S_HQ], [S_T2]))
    a(S(f"s_add_u32 s{S_T0}, s{S_T0}, s{S_T2}", [S_T0, S_T2], [S_T0]))
    a(S(f"s_add_u32 s{S_T0}, s{S_T0}, s{S_W}", [S_T0, S_W], [S_T0]))
    a(S(f"s_lshl_b32 s{S_T0}, s{S_T0}, 10", [S_T0], [S_T0]))
    a(V(f"v_lshl_add_u32 v{V_OST}, v{V_LANE}, 4, s{S_T0}", [V_LANE, ('s', S_T0)], [V_OST]))
    a(V(f"v_cmp_eq_u32 vcc, 0, v{V_N}", [V_N], [VCC]))
    a(V(f"v_mov_b32 v{V_T0}, 0x3f803f80", [], [V_T0]))
    for i in range(4):
        a(V(f"v_cndmask_b32 v{V_ONES+i}, 0, v{V_T0}, vcc", [V_T0, VCC], [V_ONES+i]))
    for i in range(20):
        a(V(f"v_mov_b32 v{V_NEGM+i}, 0", [], [V_NEGM+i]))
    return o[:n_early], o[n_early:]

V_QACC = V_VF
def AF(kap):
    return [(100, 120), (128, 148), (208, 156)][kap % 3]
def a_reads(kap):
    u, ks = kap >> 1, kap & 1
    c, s = u >> 1, kap & 3
    xf, wf = AF(kap)
    wb = WU(WSLOT[u], ks)
    xr = []
    for q in range(5):
        xb = XU(c, q)
        reg, base = (V_XA, 0) if xb < 64 * KB else (V_XB, 120 * KB)
        xr.append(dsrd('ds_read_b128', ('v', xf + q * 4), 4, reg + s, xb - base))
    wr = []
    for e in range(2):
        for h in range(2):
            reg, base = (V_WA, 40 * KB) if wb < 96 * KB else (V_WB, 96 * KB)
            wr.append(dsrd('ds_read_b64_tr_b16', ('v', wf + e * 4 + h * 2), 2, reg + e, wb - base + h * 1024))
    return wr[:2] + xr[:1] + wr[2:] + xr[1:]
def a_mfmas(kap):
    o = []
    xf, wf = AF(kap)
    for q in range(5):
        for e in range(2):
            d = ('v', V_QACC + (e * 5 + q) * 4)
            o.append(mfma(d, ('v', wf + e * 4), ('v', xf + q * 4), 0 if kap == 0 else d))
    return o
def lane0(sg, body, lab):
    sg.text(f"s_cmp_lg_u32 s{S_W}, 0"); sg.text(f"s_cbranch_scc1 {lab}")
    sg.text(f"s_mov_b64 s[{S_EX}:{S_EX+1}], exec"); sg.text("s_mov_b64 exec, 1")
    for x in body: sg.text(x)
    sg.text(f"s_mov_b64 exec, s[{S_EX}:{S_EX+1}]")
    sg.text(f"{lab}:")
def phase_a(sg, Q):
    stamp(sg, 1)
    sg.add(barrier(needvm=[('x', 0), ('w', 0)])); Q.mark('B0')
    stamp(sg, 2)
    sg.addall(a_reads(0)); sg.addall(a_reads(1))
    sg.add(S(f"s_mov_b32 s{S_T1}, {f2h(QSCALE)}", [], [S_T1]))
    sg.add(S(f"s_mov_b32 s{S_T2}, {f2h(QSCALE)}", [], [S_T2]))
    for kap in range(14 if int(opt.aq) else 16):
        mf = a_mfmas(kap)
        gaps = [[] for _ in mf]
        nx = kap + 2
        if nx < 16:
            if nx % 2 == 0:
                u = nx >> 1
                need = [('x', u >> 1), ('w', u)]
                while any(it.ins.vmtag in need for it in Q.q):
                    n_ = len(Q.q); weave(sg, Q, [], 1, 0); assert len(Q.q) < n_, (u, Q.q[0].after)
                while True:
                    younger = 0
                    for tg, _w in reversed(sg.vm):
                        if tg in need: break
                        younger += 1
                    n_ = len(Q.q)
                    if younger >= int(opt.la): break
                    weave(sg, Q, [], 1, 0)
                    if len(Q.q) == n_: break
                dr = str(u) in str(opt.drain)
                sg.add(barrier(needvm=need, lg0=dr)); Q.mark(f'B{u}')
                if dr: Q.mark(f'B{u+1}')
                if u in (1, 3, 5, 7): stamp(sg, 5 + u // 2, 'A')
            for i, r in enumerate(a_reads(nx)): gaps[i].append(r)
        mf[0].r |= set(R('v', AF(kap)[0], 20) + R('v', AF(kap)[1], 8))
        pos = [1, 5, 9] if kap % 2 == 0 else [3, 7]
        if int(opt.perstep) == 6: pos = [1, 4, 7] if kap % 2 == 0 else [1, 4, 8]
        if int(opt.perstep) == 7: pos = [1, 4, 6, 9] if kap % 2 == 0 else [2, 5, 8]
        if int(opt.perstep) == 8: pos = [1, 4, 6, 9]
        nkv = sum(1 for it in Q.q if it.ins.vmtag[0] in 'kv')
        room = int(opt.alim) - (128 - nkv) + (len(Q.q) - nkv)
        place(gaps, Q, pos[:max(0, room)])
        if int(opt.aonly): sg.addall([x for x in interleave(mf, gaps) if x.k not in ('mfma', 'dsrd')])
        else: sg.addall(interleave(mf, gaps))
    def qfin(q, e, packed):
        b = V_QACC + (e * 5 + q) * 4
        if packed: f_ = [V(f"v_pk_mul_f32 v[{b+r}:{b+r+1}], v[{b+r}:{b+r+1}], s[{S_T1}:{S_T1+1}]", [b+r, b+r+1], [b+r, b+r+1]) for r in (0, 2)]
        else: f_ = [V(f"v_mul_f32 v{b+r}, s{S_T1}, v{b+r}", [b+r], [b+r]) for r in range(4)]
        f_.append(V(f"v_cvt_pk_bf16_f32 v{b}, v{b}, v{b+1}", [b, b+1], [b]))
        f_.append(V(f"v_cvt_pk_bf16_f32 v{b+1}, v{b+2}, v{b+3}", [b+2, b+3], [b+1]))
        f_.append(dswr('ds_write_b64', V_QW + e, ('v', b), 2, q * 4096, lgtag='qw'))
        return f_
    todo = [(q, e) for q in range(5) for e in range(2)]
    if int(opt.aq):
        m14, m15 = a_mfmas(14), a_mfmas(15)
        m14[0].r |= set(R('v', AF(14)[0], 20) + R('v', AF(14)[1], 8))
        mf = flat([[m14[k], m15[k]] for k in range(10)])
        gaps = [[] for _ in mf]
        gi = 5
        while todo and gi + 3 <= 19:
            f_ = qfin(*todo.pop(0), False)
            gaps[gi] += f_[0:2]; gaps[gi + 1] += f_[2:4]; gaps[gi + 2] += f_[4:6]; gaps[gi + 3] = [f_[6]] + gaps[gi + 3]
            gi += 3
        nkv = sum(1 for it in Q.q if it.ins.vmtag[0] in 'kv')
        place(gaps, Q, [1, 4][:max(0, int(opt.alim) - (128 - nkv))])
        sg.addall(interleave(mf, gaps))
    stamp(sg, 9, 'A')
    for q, e in todo: sg.addall(qfin(q, e, True))
    while any(it.ins.vmtag in (('k', 0, 0), ('k', 0, 1)) for it in Q.q): weave(sg, Q, [], 1, 0)
    b = barrier(lg0=False); b.needlg = ('qw',)
    sg.addall(k_reads(0)); Q.mark(('kr', 0, 0)); Q.mark(('kr', 0, 1))
    sg.add(b); Q.mark('BQ'); Q.mark('B8')
    qr = [dsrd('ds_read_b128', AQ(q, s), 4, V_XB + s, QBUF - 120 * KB + q * 4096) for q in range(5) for s in range(4)]
    return qr

def TQ(tau):
    return divmod(tau, 5) if tau < 30 else (6 + ((tau - 30) & 1), (tau - 30) >> 1)
def qk(tau):
    i, q = TQ(tau)
    o = []
    for s, t in ([(s, t) for t in range(2) for s in range(4)] if int(opt.chain) else [(s, t) for s in range(4) for t in range(2)]):
        if True:
            d = ('v', V_S + (tau & 1) * 8 + t * 4)
            o.append(mfma(d, KF(i, t * 4 + s), AQ(q, s), ('v', V_NEGM + q * 4) if s == 0 else d))
    return o
def pv(tau):
    i, q = TQ(tau)
    p = ('v', V_P + (tau & 1) * 4)
    o = [mfma(AO(lam, q), ('v', V_VF + (i & 1) * 32 + lam * 4), p, AO(lam, q) if i else 0) for lam in range(8)]
    o.insert(0, mfma(LA(q), ('v', V_ONES), p, LA(q) if i else 0))
    return o
def sm(tau):
    b = V_S + (tau & 1) * 8
    p = V_P + (tau & 1) * 4
    e = [T(f"v_exp_f32 v{b+i}, v{b+i}", [b+i], [b+i]) for i in range(8)]
    c = [V(f"v_cvt_pk_bf16_f32 v{p+i}, v{b+2*i}, v{b+2*i+1}", [b+2*i, b+2*i+1], [p+i]) for i in range(4)]
    return e, c
def comb_writes(q):
    o = []
    for jd in range(1, 4):
        for e in range(2):
            u = q * 6 + (jd - 1) * 2 + e
            row = u >> 3
            o.append(dswr('ds_write_b128', V_CW + (row >> 1), AO(2 * jd + e, q), 4, (row & 1) * 32 * KB + (u & 7) * KB, lgtag=('cw', q)))
    o.insert(0, dswr('ds_write_b32', V_LW, LA(q), 1, [0, 4, 16, 20, 24][q], lgtag=('cw', q)))
    return o

def wo_dma(pos, after=None):
    o = []
    for ks in range(4):
        for half in range(2):
            base = (128 * KB if pos < 0 else pos * 32 * KB) + ks * 8 * KB + half * 4 * KB
            if pos < 0:
                pre = [S(f"s_lshl_b32 s{S_SK}, s{S_J}, 17", [S_J], [S_SK])] if ks + half == 0 else []
                h = S_SK
            else: pre, h = [], S_H + pos
            pre += [S(f"s_add_u32 s{S_SO}, s{h}, {ks*32768 + half*16384}", [h], [S_SO]), S(f"s_add_u32 m0, s{S_W1K}, {base}", [S_W1K], [M0])]
            o.append(Item(pre, dma(V_WOD, S_WO, S_SO, 0, ('wo', pos)), after))
    return o
def osib_dma(pos):
    o = []
    for q in range(5):
        pre = [S(f"s_lshr_b32 s{S_SK}, s{S_H+pos}, 5", [S_H+pos], [S_SK])] if q == 0 else []
        pre += [S(f"s_add_u32 s{S_SO}, s{S_SK}, {q*128*KB}", [S_SK], [S_SO]), S(f"s_add_u32 m0, s{S_W5K}, {(140 - 20*pos + q)*KB}", [S_W5K], [M0])]
        o.append(Item(pre, dma(V_OD, S_O, S_SO, 0, ('os', pos), flags=' sc1')))
    return o
def tail_calc():
    o = []; a = o.append
    T0, T1, T2 = 252, 253, 254
    a(V(f"v_lshlrev_b32 v{T0}, 4, v{V_LANE}", [V_LANE], [T0]))
    for jd in range(1, 4):
        a(S(f"s_sub_u32 s{S_T0}, s{S_W}, {jd}", [S_W], [S_T0]))
        a(S(f"s_and_b32 s{S_T0}, s{S_T0}, 3", [S_T0], [S_T0]))
        a(S(f"s_lshl_b32 s{S_T0}, s{S_T0}, 13", [S_T0], [S_T0]))
        a(V(f"v_add_u32 v{V_CR+2*(jd-1)}, s{S_T0}, v{T0}", [T0, ('s', S_T0)], [V_CR+2*(jd-1)]))
        a(V(f"v_add_u32 v{V_CR+2*(jd-1)+1}, {64*KB}, v{V_CR+2*(jd-1)}", [V_CR+2*(jd-1)], [V_CR+2*(jd-1)+1]))
    a(V(f"v_add_u32 v{V_OL}, {96*KB}, v{T0}", [T0], [V_OL]))
    a(V(f"v_add_u32 v{V_OW}, s{S_W5K}, v{V_OL}", [V_OL, ('s', S_W5K)], [V_OW]))
    a(S(f"s_mov_b32 s{S_T0}, {102*KB}", [], [S_T0]))
    a(V(f"v_lshl_add_u32 v{V_LR}, v{V_N}, 5, s{S_T0}", [V_N, ('s', S_T0)], [V_LR]))
    a(S(f"s_add_u32 s{S_T0}, s{S_W8K}, {64*KB}", [S_W8K], [S_T0]))
    for e in range(2):
        a(V(f"v_subrev_u32 v{V_WT+e}, s{S_T0}, v{V_VA+e}", [V_VA+e, ('s', S_T0)], [V_WT+e]))
        a(V(f"v_add_u32 v{V_WT+2+e}, {64*KB}, v{V_WT+e}", [V_WT+e], [V_WT+2+e]))
        a(V(f"v_add_u32 v{V_WT+4+e}, {128*KB}, v{V_WT+e}", [V_WT+e], [V_WT+4+e]))
    a(S(f"s_lshl_b32 s{S_T0}, s{S_J}, 12", [S_J], [S_T0]))
    a(V(f"v_subrev_u32 v{V_OD}, s{S_T0}, v{V_OST}", [V_OST, ('s', S_T0)], [V_OD]))
    a(S(f"s_lshl_b32 s{S_T0}, s{S_B}, 2", [S_B], [S_T0]))
    a(S(f"s_add_u32 s{S_T0}, s{S_T0}, s{S_J}", [S_T0, S_J], [S_T0]))
    a(V(f"v_and_b32 v{T1}, 7, v{V_LANE}", [V_LANE], [T1]))
    a(S(f"s_lshl_b32 s{S_T0}, s{S_T0}, 2", [S_T0], [S_T0]))
    a(S(f"s_add_u32 s{S_T0}, s{S_T0}, s{S_W}", [S_T0, S_W], [S_T0]))
    a(S(f"s_mul_i32 s{S_T0}, s{S_T0}, {5*8*KB}", [S_T0], [S_T0]))
    a(S(f"s_lshl_b32 s{S_T2}, s{S_HKV}, 10", [S_HKV], [S_T2]))
    a(S(f"s_add_u32 s{S_T2}, s{S_T2}, s{S_T0}", [S_T2, S_T0], [S_T2]))
    a(V(f"v_add_u32 v{V_PS}, s{S_T2}, v{T0}", [T0, ('s', S_T2)], [V_PS]))
    a(V(f"v_lshl_add_u32 v{T1}, s{S_HKV}, 3, v{T1}", [T1, ('s', S_HKV)], [T1]))
    a(V(f"v_lshrrev_b32 v{T2}, 3, v{V_LANE}", [V_LANE], [T2]))
    a(V(f"v_lshl_add_u32 v{V_PLD}, v{T1}, 4, s{S_T0}", [T1, ('s', S_T0)], [V_PLD]))
    a(V(f"v_lshl_add_u32 v{V_PLD}, v{T2}, 13, v{V_PLD}", [T2, V_PLD], [V_PLD]))
    a(V(f"v_lshlrev_b32 v{T2}, 14, v{T2}", [T2], [T2]))
    a(V(f"v_and_b32 v{T0}, 15, v{T1}", [T1], [T0]))
    a(V(f"v_lshl_add_u32 v{T2}, v{T0}, 10, v{T2}", [T0, T2], [T2]))
    a(V(f"v_lshrrev_b32 v{T1}, 4, v{T1}", [T1], [T1]))
    a(V(f"v_lshl_add_u32 v{T2}, v{T1}, 3, v{T2}", [T1, T2], [T2]))
    a(S(f"s_mul_i32 s{S_T0}, s{S_B}, 81920", [S_B], [S_T0]))
    a(S(f"s_lshl_b32 s{S_T2}, s{S_J}, 8", [S_J], [S_T2]))
    a(S(f"s_add_u32 s{S_T0}, s{S_T0}, s{S_T2}", [S_T0, S_T2], [S_T0]))
    a(S(f"s_lshl_b32 s{S_T2}, s{S_W}, 6", [S_W], [S_T2]))
    a(S(f"s_add_u32 s{S_T0}, s{S_T0}, s{S_T2}", [S_T0, S_T2], [S_T0]))
    a(V(f"v_add_u32 v{V_OUT}, s{S_T0}, v{T2}", [T2, ('s', S_T0)], [V_OUT]))
    a(V(f"v_cmp_gt_u32 vcc, 40, v{V_LANE}", [V_LANE], [VCC]))
    a(V(f"v_mov_b32 v{T0}, 0x7ff00000", [], [T0]))
    a(V(f"v_cndmask_b32 v{V_PLD}, v{T0}, v{V_PLD}, vcc", [T0, V_PLD, VCC], [V_PLD]))
    a(V(f"v_cndmask_b32 v{V_OUT}, v{T0}, v{V_OUT}, vcc", [T0, V_OUT, VCC], [V_OUT]))
    for k in range(5): a(S(f"s_mov_b32 s{S_TAB+k}, {k*8192}", [], [S_TAB+k]))
    return o
def wod_calc():
    o = []; a = o.append
    T0, T1 = 252, 253
    a(S(f"s_lshl_b32 s{S_T0}, s{S_B}, 2", [S_B], [S_T0]))
    a(S(f"s_add_u32 s{S_T0}, s{S_T0}, s{S_W}", [S_T0, S_W], [S_T0]))
    a(S(f"s_lshl_b32 s{S_T0}, s{S_T0}, 14", [S_T0], [S_T0]))
    a(S(f"s_lshl_b32 s{S_T2}, s{S_J}, 8", [S_J], [S_T2]))
    a(S(f"s_add_u32 s{S_T0}, s{S_T0}, s{S_T2}", [S_T0, S_T2], [S_T0]))
    a(V(f"v_bfe_u32 v{T0}, v{V_LANE}, 1, 4", [V_LANE], [T0]))
    a(V(f"v_and_b32 v{T1}, 1, v{V_LANE}", [V_LANE], [T1]))
    a(V(f"v_lshlrev_b32 v{T1}, 7, v{T1}", [T1], [T1]))
    a(V(f"v_lshl_add_u32 v{T0}, v{T0}, 10, v{T1}", [T0, T1], [T0]))
    a(V(f"v_add_u32 v{V_TCH}, s{S_T0}, v{T0}", [T0, ('s', S_T0)], [V_TCH]))
    a(S(f"s_and_b32 s{S_T0}, s{S_W}, 1", [S_W], [S_T0]))
    a(S(f"s_lshl_b32 s{S_T0}, s{S_T0}, 3", [S_T0], [S_T0]))
    a(V(f"v_lshl_add_u32 v{T0}, v{V_G}, 1, s{S_T0}", [V_G, ('s', S_T0)], [T0]))
    a(V(f"v_xor_b32 v{T0}, v{V_N}, v{T0}", [V_N, T0], [T0]))
    a(S(f"s_lshl_b32 s{S_T0}, s{S_J}, 8", [S_J], [S_T0]))
    a(V(f"v_lshl_add_u32 v{T0}, v{T0}, 4, s{S_T0}", [T0, ('s', S_T0)], [T0]))
    a(V(f"v_lshl_add_u32 v{T1}, s{S_W}, 2, v{V_G}", [V_G, ('s', S_W)], [T1]))
    a(V(f"v_lshl_add_u32 v{V_WOD}, v{T1}, 10, v{T0}", [T0, T1], [V_WOD]))
    return o

def phase_b(sg, Q, qr):
    NT = 8
    calc = wod_calc() + tail_calc()
    sg.addall(qr[:4])
    qr = qr[4:]
    for tau in range(-1, 40):
        i, q = divmod(tau, 5) if tau >= 0 else (-1, 4)
        mf = []
        bst = [int(x) for x in opt.bst.split(',')]
        if tau in bst: stamp(sg, 5 + bst.index(tau), 'B')
        if tau + 1 < 40: mf += qk(tau + 1)
        if tau - 1 >= 0: mf += pv(tau - 1)
        ds, marks = [], []
        if tau == -1: ds = qr
        elif tau == 0: ds = v_reads(0); marks = [('vr', 0, 0), ('vr', 0, 1)]
        elif tau < 27:
            if q == 2: ds = k_reads(i + 1)[:4]; marks = [('kr', i + 1, 0)]
            if q == 3: ds = k_reads(i + 1)[4:] + v_reads(i + 1)[:2]; marks = [('kr', i + 1, 1)]
            if q == 4: ds = v_reads(i + 1)[2:8]; marks = [('vr', i + 1, 0)]
            if q == 0: ds = v_reads(i)[8:14]
            if q == 1 and i > 0: ds = v_reads(i)[14:]; Q.mark(('vr', i, 1))
        xp = None
        if tau >= 27:
            k6, k7, v6, v7 = k_reads(6), k_reads(7), v_reads(6), v_reads(7)
            vo = [v7[l + 8 * h] for l in range(8) for h in range(2)]
            G = [1, 3, 5, 7, 9, 11, 13, 15, 16]
            def cwp(q_, second):
                w_ = comb_writes(q_)
                if int(opt.w64) and q_ < 2:
                    h_ = []
                    for x in w_[1:]:
                        m_ = re.match(r"ds_write_b128 v(\d+), a\[(\d+):\d+\] offset:(\d+)", x.t)
                        for z in range(2): h_.append(dswr('ds_write_b64', int(m_.group(1)), ('a', int(m_.group(2)) + 2 * z), 2, int(m_.group(3)) + 8 * z, lgtag=x.lgtag))
                    return list(zip([1, 3, 5, 9, 13, 16], h_[6:])) if second else list(zip([7, 1, 3, 5, 9, 13, 16], [w_[0]] + h_[:6]))
                return list(zip([1, 9, 13], w_[4:])) if second else list(zip([7, 1, 9, 13], w_[:4]))
            xp = {27: list(zip([3, 5, 9, 11, 15, 16], k6[:4] + v6[:2])),
                  28: list(zip([1, 3, 5, 7, 9, 11, 13, 15, 16], k6[4:] + k7[:5])),
                  29: list(zip(G, k7[5:] + v6[2:8])),
                  30: list(zip([1, 3, 5, 7, 9, 11, 13, 15, 16, 16], v6[8:] + vo[:2])),
                  31: list(zip([1, 1, 3, 5, 5, 7, 9, 9, 11, 13, 13, 15, 16, 16], vo[2:])),
                  32: [], 33: cwp(0, 0), 34: cwp(0, 1), 35: cwp(1, 0), 36: cwp(1, 1), 37: cwp(2, 0),
                  38: cwp(2, 1) + list(zip([3, 5, 5, 7, 11, 15, 16, 16], lreads((0, 1)) + preads(0)[:4])),
                  39: list(zip([0, 2, 4, 6], comb_writes(3)[:4])) + list(zip([1, 1, 3, 3, 5, 5, 7, 7], preads(0)[4:] + preads(1)))}[tau]
            ds = [x for _, x in xp]; marks = []
            if tau == 38:
                b = barrier(needvm=[('wo', -1)], lg0=False); b.needlg = (('cw', 0), ('cw', 1)); sg.add(b)
        n = len(mf)
        gaps = [[] for _ in range(n)]
        e, c = sm(tau) if 0 <= tau < 40 else ([], [])
        if n == 17:
            epos = [0, 2, 4, 6, 8, 10, 12, 14]; cpos = [3, 7, 11, 15]
            dpos = [1, 3, 5, 7, 9, 11, 13, 15] if len(ds) > 4 else [1, 3, 5, 7]
            if ds and ds[0].k == 'dswr': dpos = [1, 1, 3, 7, 9, 13, 16]
            vpos = [1, 5, 9, 13] if (tau < int(opt.even_at) or q == 1) else [1, 7, 13]
            if int(opt.bsched) and not (ds and ds[0].k == 'dswr'):
                if q == 1: dpos, vpos = [1, 3], [5, 9, 13, 16]
                elif tau < int(opt.even_at): dpos, vpos = [3, 7, 11, 15, 16, 16], [1, 5, 9, 13]
                else: dpos, vpos = [3, 5, 9, 11, 15, 16], [1, 7, 13]
        else:
            epos = list(range(8)); cpos = [min(n - 1, x) for x in (2, 4, 6, 8)]
            dpos = [(k * n) // max(1, len(ds)) for k in range(len(ds))]
            vpos = [1, 5]
        if xp is not None:
            dpos = [g_ for g_, _ in xp]; vpos = [7, 11, 15] if tau >= 32 else [13]
            if tau == 27: vpos = [1, 7, 13]
        for x, p_ in zip(ds, dpos): gaps[p_].append(x)
        if tau == int(opt.nl_at):
            sg.add(V("v_mov_b32 v9, 0", [], [9]))
            Q.q.insert(0, Item([], vload(('v', V_GC), 2, 9, S_D, None, 0, flags=' sc1', tag='non')))
        if tau == int(opt.nc_at):
            assert not any(it.ins.vmtag == 'non' for it in Q.q)
            sg.add(V(f"v_readfirstlane_b32 s{S_NON}, v{V_GC}", [V_GC], [('s', S_NON)]))
            sg.add(V(f"v_readfirstlane_b32 s{S_NON+1}, v{V_GC+1}", [V_GC+1], [('s', S_NON+1)]))
            sg.add(S(f"s_cmp_eq_u64 s[{S_NON}:{S_NON+1}], 0", [S_NON, S_NON+1], []))
            sg.text("s_cbranch_scc1 L_spin_n"); sg.text("L_back_n:")
        if tau == int(opt.bar_at): sg.add(barrier(lg0=False))
        for x in ds:
            while any(it.ins.vmtag in x.needvm for it in Q.q): weave(sg, Q, [], 1, 0)
        if tau == int(opt.tch_at): Q.push([Item([], vload(('v', V_TCH + 1), 1, V_TCH, S_WO, None, 0, flags=opt.tch_flags))])
        if tau == int(opt.tlb_at):
            Q.push([Item([], vload(('v', 72), 1, V_ZERO, S_C, S_F1, 0, flags=' sc1')), Item([], vload(('v', 73), 1, V_ZERO, S_C, S_F2, 0, flags=' sc1'))])
        if tau == int(opt.wo_at): assert not calc; Q.push(wo_dma(-1))
        place(gaps, Q, vpos)
        for x, p_ in zip(e, epos): gaps[p_].append(x)
        for x, p_ in zip(c, cpos): gaps[p_].append(x)
        if tau >= int(opt.calc_at) and n == 17:
            for gi in range(17):
                if calc and calc[0].k == 'salu' and not any(y.k == 'salu' for y in gaps[gi]): gaps[gi].insert(0, calc.pop(0))
                cost = sum(8 if y.k == 'trans' else 0 if y.k == 'salu' else 4 for y in gaps[gi])
                while calc and calc[0].k != 'salu' and cost <= 4: gaps[gi].append(calc.pop(0)); cost += 4
        sg.addall(interleave(mf, gaps))
        for m in marks: Q.mark(m)

def poll(sg, lab, vaddr):
    sg.text(f"s_mov_b32 s{S_SPIN}, {opt.spin}")
    sg.text(f"{lab}:")
    sg.text(f"buffer_load_dwordx2 v[250:251], v{vaddr}, s[{S_C}:{S_C+3}], 0 offen sc1")
    sg.text(f"s_sub_u32 s{S_SPIN}, s{S_SPIN}, 1")
    sg.text("s_waitcnt vmcnt(0)")
    sg.text(f"v_cmp_ne_u64 vcc, s[{S_NON}:{S_NON+1}], v[250:251]")
    sg.text(f"s_cmp_eq_u32 s{S_SPIN}, 0")
    sg.text(f"s_cbranch_scc1 {lab}_done")
    sg.text("s_nop 2")
    sg.text(f"s_cbranch_vccnz {lab}")
    sg.text(f"{lab}_done:")
    sg.vm = []
def raise_flag(sg, stage, lab):
    n, sh = (4, 7) if stage == 1 else (8, 9)
    sg.text(f"s_cmp_lg_u32 s{S_W}, 0"); sg.text(f"s_cbranch_scc1 {lab}")
    sg.text(f"s_mov_b64 s[{S_EX}:{S_EX+1}], exec"); sg.text(f"s_mov_b64 exec, {(1 << n) - 1 if n < 7 else '0xff'}")
    for x in [f"v_lshl_add_u32 v9, v{V_LANE}, {sh}, s{S_G1 if stage == 1 else S_G2}", f"v_mov_b32 v250, s{S_NON}", f"v_mov_b32 v251, s{S_NON+1}",
              f"buffer_store_dwordx2 v[250:251], v9, s[{S_C}:{S_C+3}], 0 offen{opt.f1_flags if stage == 1 else ' sc1'}"]: sg.text(x)
    sg.text(f"s_mov_b64 exec, s[{S_EX}:{S_EX+1}]")
    sg.text(f"{lab}:")
WOF = A_Q
RES = 100
def part(q, k):
    if q == 0: return 36 + 4 * k if k < 4 else 64 + 4 * (k - 4)
    return {1: 100, 2: 164, 3: 188, 4: 100}[q] + 4 * k
def preads(q):
    o = []
    for jd in range(1, 4):
        for e in range(2):
            k = (jd - 1) * 2 + e; u = q * 6 + k; row = u >> 3
            o.append(dsrd('ds_read_b128', ('v', part(q, k)), 4, V_CR + 2 * (jd - 1) + (row >> 1), (row & 1) * 32 * KB + (u & 7) * KB))
    return o
LSA, LSB = 124, 76
def lreads(qs):
    if qs == (0, 1): return [dsrd('ds_read_b64', ('v', LSA + src * 2), 2, V_LR, src * 8 * KB) for src in range(4)]
    return [dsrd('ds_read_b128', ('v', LSB + src * 4), 4, V_LR, src * 8 * KB + 16) for src in range(4)]
def lsum(qs):
    w = []
    def lr(src, q): return LSA + src * 2 + q if q < 2 else LSB + src * 4 + q - 2
    LS = lr(0, qs[0])
    for q in qs:
        d = V_T0 + q
        w.append(V(f"v_add_f32 v{d}, v{lr(0,q)}, v{lr(1,q)}", [lr(0,q), lr(1,q)], [d]))
        w.append(V(f"v_add_f32 v{lr(2,q)}, v{lr(2,q)}, v{lr(3,q)}", [lr(2,q), lr(3,q)], [lr(2,q)]))
        w.append(V(f"v_add_f32 v{d}, v{d}, v{lr(2,q)}", [d, lr(2,q)], [d]))
    a_, b_, c_ = V_T0 + qs[0], V_T0 + qs[1], V_T0 + qs[-1]
    w.append(V(f"v_min3_f32 v{LS}, v{a_}, v{b_}, v{c_}", [a_, b_, c_], [LS]))
    w.append(V(f"v_add_f32 v{LS+1}, v{a_}, v{b_}", [a_, b_], [LS+1]))
    w.append(V(f"v_add_f32 v{LS+1}, v{LS+1}, v{c_}", [LS+1, c_], [LS+1]))
    w.append(V(f"v_cmp_nle_f32 vcc, {f2h(2.0**int(opt.lo_exp))}, v{LS}", [LS], [VCC]))
    w.append(S(f"s_mov_b64 s[{S_EX}:{S_EX+1}], vcc", [VCC], [S_EX, S_EX+1]))
    w.append(V(f"v_cmp_nge_f32 vcc, {f2h(2.0**int(opt.hi_exp))}, v{LS+1}", [LS+1], [VCC]))
    w.append(S(f"s_or_b64 vcc, vcc, s[{S_EX}:{S_EX+1}]", [VCC, S_EX, S_EX+1], [VCC]))
    w.append(S(f"s_and_b64 vcc, vcc, s[{S_GM}:{S_GM+1}]", [VCC], [VCC]))
    w.append(raw("s_cbranch_vccnz L_redo"))
    for q in qs: w.append(T(f"v_rcp_f32 v{V_T0+q}, v{V_T0+q}", [V_T0+q], [V_T0+q]))
    return w
def finish(q):
    w = []
    for e in range(2):
        o_ = V_OWN[q] + e * 4
        for jd in range(1, 4):
            p_ = part(q, (jd - 1) * 2 + e)
            for r in (0, 2):
                w.append(V(f"v_pk_add_f32 v[{o_+r}:{o_+r+1}], v[{o_+r}:{o_+r+1}], v[{p_+r}:{p_+r+1}]", [o_+r, o_+r+1, p_+r, p_+r+1], [o_+r, o_+r+1]))
    o_ = V_OWN[q]
    ri = V_T0 + (q & ~1); sel = "op_sel:[0,1] op_sel_hi:[1,1]" if q & 1 else "op_sel:[0,0] op_sel_hi:[1,0]"
    for r in range(0, 8, 2):
        w.append(V(f"v_pk_mul_f32 v[{o_+r}:{o_+r+1}], v[{o_+r}:{o_+r+1}], v[{ri}:{ri+1}] {sel}", [o_+r, o_+r+1, V_T0+q], [o_+r, o_+r+1]))
    for r in range(4):
        w.append(V(f"v_cvt_pk_bf16_f32 v{o_+r}, v{o_+2*r}, v{o_+2*r+1}", [o_+2*r, o_+2*r+1], [o_+r]))
    w.append(S(f"s_mov_b32 s{S_SV}, {q*128*KB}", [], [S_SV]))
    w.append(vstore(('v', o_), 4, V_OST, S_O, S_SV, 0, flags=opt.o_flags, tag='ost'))
    return w
def wor():
    return [dsrd('ds_read_b64_tr_b16', ('a', WOF + (ks * 2 + e) * 4 + h * 2), 2, V_WT + 4 + e, ks * 8 * KB + h * 4096) for ks in range(4) for e in range(2) for h in range(2)]
def combine(sg, Q):
    assert not Q.q
    mf = pv(39); gaps = [[] for _ in mf]
    wr = comb_writes(3)[4:]; ls = lsum((0, 1))
    for k, x in enumerate(wr): gaps[3 * k].append(x)
    k = 0
    for gi in range(9):
        n_ = 2 - len(gaps[gi])
        while ls and (n_ > 0 or ls[0].k == 'salu') and gi < 9:
            x = ls.pop(0); gaps[gi].append(x)
            n_ -= 0 if x.k == 'salu' else 2 if x.k == 'trans' else 1
    sg.addall(interleave(mf, gaps))
    stamp(sg, 4)
    w4 = comb_writes(4)
    w = ls + finish(0) + finish(1)
    for k, x in enumerate(w4): w.insert(min(len(w), 6 + k * 6), x)
    sg.addall(w)
    sg.add(barrier())
    stamp(sg, 5)
    Q.push(wo_dma(0))
    rd = lreads((2, 3, 4)) + preads(2) + preads(3)
    weave(sg, Q, rd, int(opt.cw), 2)
    sg.addall(rd)
    w = lsum((2, 3, 4)) + preads(4) + finish(2) + finish(3) + finish(4)
    for k, x in enumerate(wor()): w.insert(30 + 3 * k, x)
    sg.addall(w)
    stamp(sg, 6)

def phase_c(sg, Q):
    a = sg.add
    ACC = 164
    a(barrier())
    stamp(sg, 5, 'D')
    for q in range(5): a(dswr('ds_write_b128', V_OW, ('v', V_OWN[q]), 4, q * KB))
    Q.push(wo_dma(1) + wo_dma(2))
    weave(sg, Q, [], int(opt.shadow), 0)
    stamp(sg, 6, 'D')
    a(barrier(needvm=['ost']))
    stamp(sg, 7, 'D')
    stamp(sg, 7)
    raise_flag(sg, 1, "L_sig1")
    def CF(k): return [(100, 120), (64, 84), (204, 36)][k % 3]
    def c_reads(k):
        pos, ks = divmod(k, 4); pos -= 1
        xf, wf = CF(k)
        ob = 0 if pos < 0 else (44 - 20 * pos) * KB
        xr = [dsrd('ds_read_b128', ('v', xf + q * 4), 4, V_OL, ob + (ks * 5 + q) * KB) for q in range(5)]
        if pos < 0: return xr
        wb = (pos * 4 + ks) * 8 * KB
        wr = [dsrd('ds_read_b64_tr_b16', ('v', wf + e * 4 + h * 2), 2, V_WT + (2 if wb >= 64 * KB else 0) + e, (wb % (64 * KB)) + h * 4096) for e in range(2) for h in range(2)]
        return wr[:2] + xr[:1] + wr[2:] + xr[1:]
    def c_mfmas(k):
        xf, wf = CF(k)
        ff = 'v'
        if k < 4: wf, ff = WOF + k * 8, 'a'
        o = []
        for q in range(5):
            for e in range(2):
                d = ('v', ACC + (q * 2 + e) * 4)
                o.append(mfma(d, (ff, wf + e * 4), ('v', xf + q * 4), 0 if k == 0 else d))
        o[0].r |= set(R('v', xf, 20) + R(ff, wf, 8))
        return o
    def step(k, nx, pos=()):
        mf = c_mfmas(k); gaps = [[] for _ in mf]
        if nx is not None:
            for i, r in enumerate(c_reads(nx)): gaps[i].append(r)
        place(gaps, Q, pos)
        sg.addall(interleave(mf, gaps))
    def own_steps():
        for k in range(4): step(k, k + 2 if k < 2 else None, [1, 5, 9] if k % 2 == 0 else [3, 7])
    sg.addall(c_reads(0)); sg.addall(c_reads(1))
    held = []
    if int(opt.ownlate) == 2: held = Q.q; Q.q = []
    elif int(opt.ownlate): weave(sg, Q, [], len(Q.q), 0)
    else: own_steps()
    assert not Q.q
    stamp(sg, 8, 'D')
    t = [f"s_mov_b32 s{S_SPIN}, {opt.spin}", "L_poll1:", f"s_load_dwordx8 s[4:11], s[{S_C}:{S_C+1}], s{S_F1} glc", f"s_sub_u32 s{S_SPIN}, s{S_SPIN}, 1", "s_waitcnt lgkmcnt(0)",
         f"s_cmp_eq_u32 s{S_SPIN}, 0", "s_cbranch_scc1 L_poll1_done"]
    for h in range(4): t += [f"s_cmp_lg_u64 s[{4+2*h}:{5+2*h}], s[{S_NON}:{S_NON+1}]", "s_cbranch_scc1 L_poll1"]
    t += ["L_poll1_done:"]
    if int(opt.p1w): t = [f"s_cmp_lg_u32 s{S_W}, 0", "s_cbranch_scc1 L_poll1_done"] + t + ["s_waitcnt lgkmcnt(0)", "s_barrier"]
    for x in t: sg.text(x)
    sg.lg = []
    stamp(sg, 9, 'D')
    stamp(sg, 5, 'E')
    stamp(sg, 8)
    Q.push(osib_dma(0) + osib_dma(1) + held)
    if int(opt.ownlate):
        weave(sg, Q, [], 5, 0); own_steps()
    weave(sg, Q, [], len(Q.q), 0)
    stamp(sg, 6, 'E')
    a(barrier(needvm=[('os', 0), ('wo', 0), ('wo', 1)]))
    stamp(sg, 7, 'E')
    Q.push(osib_dma(2))
    sg.addall(c_reads(4)); sg.addall(c_reads(5))
    def pfin(q):
        b = ACC + q * 8
        return [V(f"v_cvt_pk_bf16_f32 v{b+r}, v{b+2*r}, v{b+2*r+1}", [b+2*r, b+2*r+1], [b+r]) for r in range(4)] + [vstore(('v', b), 4, V_PS, S_WT, S_TAB + q, 0, flags=' sc1', tag='pst')]
    last = 16 - (2 if int(opt.qmaj) else 0)
    for k in range(4, last):
        nx = k + 2 if k + 2 < 16 else None
        if nx in (8, 12):
            assert not Q.q or nx == 8
            a(barrier(needvm=[('os', nx // 4 - 1), ('wo', nx // 4 - 1)], lg0=False))
            stamp(sg, 8 if nx == 8 else 9, 'E')
        step(k, nx, [1, 5, 9] if k % 2 == 0 else [3, 7])
    if int(opt.qmaj):
        m14, m15 = c_mfmas(14), c_mfmas(15)
        m15[0].r -= set(R('v', CF(15)[0] + 4, 16))
        mf = flat([[m14[2*q], m15[2*q], m14[2*q+1], m15[2*q+1]] for q in range(5)])
        gaps = [[] for _ in mf]
        for q in range(4):
            f_ = pfin(q)
            g0 = 4 * q + 6
            if g0 + 2 < 20:
                gaps[g0] += f_[0:2]; gaps[g0 + 1] += f_[2:4]; gaps[g0 + 2] += f_[4:]
        sg.addall(interleave(mf, gaps))
        stamp(sg, 9)
        sg.addall(pfin(3) + pfin(4))
    else:
        stamp(sg, 9)
        for q in range(5): sg.addall(pfin(q))
    a(barrier(needvm=['pst'], lg0=False))
    stamp(sg, 5, '2')
    raise_flag(sg, 2, "L_sig2")
    a(S(f"s_mov_b32 s{S_SO}, 4096", [], [S_SO]))
    a(S(f"s_mov_b32 s{S_T1}, 0xffff0000", [], [S_T1]))
    PB, SM, U = 100, 140, 148
    def pl(h): return vload(('v', PB + 4 * h), 4, V_PLD, S_WT, S_SO if h >= 4 else None, (h & 3) * 1024, flags=' sc1')
    t = [f"s_mov_b32 s{S_SPIN}, {opt.spin}", f"s_mov_b32 s{S_T2}, 0", "L_poll2:", f"s_load_dwordx16 s[4:19], s[{S_C}:{S_C+1}], s{S_F2} glc", f"s_sub_u32 s{S_SPIN}, s{S_SPIN}, 1",
         "s_waitcnt lgkmcnt(0)", f"s_cmp_eq_u32 s{S_SPIN}, 0", "s_cbranch_scc1 L_poll2_done"]
    for h in range(8):
        t += [f"s_cmp_lg_u64 s[{4+2*h}:{5+2*h}], s[{S_NON}:{S_NON+1}]", f"s_cbranch_scc1 L_g{h}", f"s_bitcmp1_b32 s{S_T2}, {h}", f"s_cbranch_scc1 L_g{h}",
              f"s_bitset1_b32 s{S_T2}, {h}", pl(h).t, f"L_g{h}:"]
    t += [f"s_cmp_lg_u32 s{S_T2}, 0xff", "s_cbranch_scc1 L_poll2", "L_poll2_done:"]
    if int(opt.p2w):
        t = [f"s_cmp_lg_u32 s{S_W}, 0", "s_cbranch_scc1 L_poll2_done", f"s_mov_b32 s{S_SPIN}, {opt.spin}", "L_poll2:", f"s_load_dwordx16 s[4:19], s[{S_C}:{S_C+1}], s{S_F2} glc",
             f"s_sub_u32 s{S_SPIN}, s{S_SPIN}, 1", "s_waitcnt lgkmcnt(0)", f"s_cmp_eq_u32 s{S_SPIN}, 0", "s_cbranch_scc1 L_poll2_done"]
        for h in range(8): t += [f"s_cmp_lg_u64 s[{4+2*h}:{5+2*h}], s[{S_NON}:{S_NON+1}]", "s_cbranch_scc1 L_poll2"]
        t += ["L_poll2_done:", "s_barrier"] + [pl(h).t for h in range(8)]
    for x in t: sg.text(x)
    stamp(sg, 6, '2')
    sg.drain()
    for h in range(8):
        d = SM if h == 0 else U
        for r in range(4):
            a(V(f"v_lshlrev_b32 v{d+2*r}, 16, v{PB+4*h+r}", [PB+4*h+r], [d+2*r]))
            a(V(f"v_and_b32 v{d+2*r+1}, s{S_T1}, v{PB+4*h+r}", [PB+4*h+r], [d+2*r+1]))
        if h:
            for r in range(0, 8, 2):
                a(V(f"v_pk_add_f32 v[{SM+r}:{SM+r+1}], v[{SM+r}:{SM+r+1}], v[{U+r}:{U+r+1}]", [SM+r, SM+r+1, U+r, U+r+1], [SM+r, SM+r+1]))
    for r in range(4):
        a(V(f"v_cvt_pk_bf16_f32 v{SM+r}, v{SM+2*r}, v{SM+2*r+1}", [SM+2*r, SM+2*r+1], [SM+r]))
    a(vstore(('v', SM), 2, V_OUT, S_OUT, None, 0, flags=opt.out_flags))
    a(vstore(('v', SM + 2), 2, V_OUT, S_OUT, None, 32, flags=opt.out_flags))

def out_of_line():
    t = []
    t += ["L_spin_n:", f"s_mov_b32 s{S_SPIN}, {opt.spin}", "L_spin_n1:",
          f"buffer_load_dwordx2 v[{V_GC}:{V_GC+1}], v9, s[{S_D}:{S_D+3}], 0 offen sc1", f"s_sub_u32 s{S_SPIN}, s{S_SPIN}, 1", "s_waitcnt vmcnt(0)",
          f"v_readfirstlane_b32 s{S_NON}, v{V_GC}", f"v_readfirstlane_b32 s{S_NON+1}, v{V_GC+1}", f"s_cmp_eq_u32 s{S_SPIN}, 0", "s_cbranch_scc1 L_back_n", "s_nop 2",
          f"s_cmp_eq_u64 s[{S_NON}:{S_NON+1}], 0", "s_cbranch_scc1 L_spin_n1", "s_branch L_back_n"]
    t += ["L_redo:", f"s_mov_b64 s[{S_GM}:{S_GM+1}], 0", f"s_mov_b32 s{S_REDO}, 1",
          "s_waitcnt vmcnt(0) lgkmcnt(0)", "s_barrier"]
    sg = Seg()
    p1 = prologue1()
    a = sg.add
    a(V(f"v_lshl_add_u32 v{V_T0}, s{S_W}, 2, v{V_G}", [V_G], [V_T0]))
    a(V(f"v_xor_b32 v{V_T1}, v{V_N}, v{V_T0}", [V_N, V_T0], [V_T1]))
    a(V(f"v_lshlrev_b32 v{V_T1}, 4, v{V_T1}", [V_T1], [V_T1]))
    a(V(f"v_lshl_add_u32 v{V_XD}, v{V_T0}, 10, v{V_T1}", [V_T0, V_T1], [V_XD]))
    a(S(f"s_and_b32 s{S_T0}, s{S_W}, 2", [S_W], [S_T0]))
    a(S(f"s_lshl_b32 s{S_T0}, s{S_T0}, 2", [S_T0], [S_T0]))
    a(V(f"v_lshl_add_u32 v{V_T1}, v{V_G}, 1, s{S_T0}", [V_G], [V_T1]))
    a(V(f"v_xor_b32 v{V_T1}, v{V_N}, v{V_T1}", [V_N, V_T1], [V_T1]))
    a(V(f"v_lshlrev_b32 v{V_T1}, 4, v{V_T1}", [V_T1], [V_T1]))
    a(V(f"v_lshl_add_u32 v{V_WD}, v{V_T0}, 13, v{V_T1}", [V_T0, V_T1], [V_WD]))
    t += sg.out + ["s_nop 4", "s_branch L_restart"]
    sg = Seg(); a = sg.add
    sg.text("L_max:")
    sg.text(f"s_mov_b32 s{S_SPIN}, m0")
    sg.drain()
    sg.text("s_barrier")
    MX, KF, AD = 76, V_VF, 84
    for q in range(5): a(V(f"v_mov_b32 v{MX+q}, 0xff800000", [], [MX+q]))
    for s in range(4): a(V(f"v_add_u32 v{AD+s}, {96*KB}, v{V_KA+s}", [V_KA+s], [AD+s]))
    a(S(f"s_mov_b32 s{S_T2}, 0", [], [S_T2]))
    sg.text("L_max_loop:"); sg.reset_hist()
    for j in range(8):
        if j % 4 == 0:
            a(S(f"s_add_u32 s{S_T1}, s{S_T2}, {(j>>2)*4096}", [S_T2], [S_T1]))
            a(S(f"s_add_u32 m0, s{S_W8K}, {96*KB + (j>>2)*4096}", [S_W8K], [M0]))
        a(dma(V_KD + (j & 3), S_K, S_T1, 1024 * (j & 3), 'mk'))
    for t_ in range(2):
        for s in range(4):
            a(dsrd('ds_read_b128', ('v', KF + (t_ * 4 + s) * 4), 4, AD + s, t_ * 4096, needvm=['mk']))
    for q in range(5):
        for t_ in range(2):
            d = ('v', 88 + t_ * 4)
            for s in range(4): a(mfma(d, ('v', KF + (t_ * 4 + s) * 4), AQ(q, s), 0 if s == 0 else d))
        for k in range(4):
            a(V(f"v_max3_f32 v{MX+q}, v{MX+q}, v{88+2*k}, v{89+2*k}", [MX+q, 88+2*k, 89+2*k], [MX+q]))
    sg.drain()
    a(S(f"s_add_u32 s{S_T2}, s{S_T2}, 8192", [S_T2], [S_T2]))
    sg.text(f"s_cmp_lt_u32 s{S_T2}, 65536"); sg.text("s_nop 4"); sg.text("s_cbranch_scc1 L_max_loop")
    sg.text("s_barrier")
    a(S(f"s_mul_i32 s{S_T0}, s{S_W}, 1280", [S_W], [S_T0]))
    a(S(f"s_add_u32 s{S_T0}, s{S_T0}, {96*KB}", [S_T0], [S_T0]))
    a(V(f"v_lshl_add_u32 v{AD}, v{V_LANE}, 2, s{S_T0}", [V_LANE], [AD]))
    a(S(f"s_mov_b32 s{S_T0}, {96*KB}", [], [S_T0]))
    a(V(f"v_lshl_add_u32 v{AD+1}, v{V_N}, 2, s{S_T0}", [V_N], [AD+1]))
    for q in range(5): a(dswr('ds_write_b32', AD, ('v', MX + q), 1, q * 256))
    a(barrier())
    for q in range(5):
        for k in range(16):
            a(dsrd('ds_read_b32', ('v', KF + k), 1, AD + 1, (k >> 2) * 1280 + q * 256 + (k & 3) * 64))
        for k in range(8):
            a(V(f"v_max3_f32 v{MX+q}, v{MX+q}, v{KF+2*k}, v{KF+2*k+1}", [MX+q, KF+2*k, KF+2*k+1], [MX+q]))
        for r in range(4):
            a(V(f"v_sub_f32 v{V_NEGM+q*4+r}, 0, v{MX+q}", [MX+q], [V_NEGM+q*4+r]))
    sg.drain()
    sg.text("s_barrier"); sg.text(f"s_mov_b32 m0, s{S_SPIN}"); sg.text("s_nop 4"); sg.text("s_branch L_back_max")
    return t + sg.out

def stamp_out(sg, n):
    if not opt.stamps: return
    stamp(sg, n - 1)
    t = ["s_load_dwordx2 s[4:5], s[0:1], 56", "s_waitcnt lgkmcnt(0)", f"s_add_u32 s4, s4, {16<<20}", "s_addc_u32 s5, s5, 0", "s_and_b32 s5, s5, 0xffff",
         "s_mov_b32 s6, 0x100000", "s_mov_b32 s7, 0x20000", "s_lshl_b32 s8, s2, 2", "s_add_u32 s8, s8, s32", "s_lshl_b32 s8, s8, 6", "v_mov_b32 v2, s8"]
    for i in range(n):
        t += [f"v_mov_b32 v3, s{3 if i == 0 else 76+2*i}", f"buffer_store_dword v3, v2, s[4:7], 0 offen offset:{4*i}"]
    for x in t: sg.text(x)

def kernel():
    sg = Seg()
    sg.text(NAME + "_kernel:")
    sg.text("s_cmp_ge_u32 s2, 256")
    sg.text("s_cbranch_scc1 L_end")
    if opt.stamps:
        stamp(sg, 0)
    p1 = prologue1()
    sg.addall(p1[:2])
    if int(opt.cpf):
        for x in ["s_getpc_b64 s[94:95]", "L_pc:", "s_lshr_b32 s3, s2, 3", "v_lshrrev_b32 v8, 6, v0", "v_and_b32 v9, 1, v0", "v_lshl_add_u32 v8, v8, 1, v9",
                  "v_lshl_add_u32 v8, s3, 3, v8", "v_lshlrev_b32 v8, 7, v8", "v_min_u32 v8, (L_code_end - L_pc - 4) & 0xffffff80, v8"] + (["global_load_dword v255, v8, s[94:95]"] if int(opt.cpf) == 1 else ["s_mov_b64 s[12:13], s[94:95]"]): sg.text(x)
    sg.addall(p1[2:])
    if opt.stamps:
        sg.text("s_mov_b32 s3, s76")
    p2 = prologue2()
    Q = Queue()
    first = x_dma(0) + w_dma(0) if not int(opt.wfirst) else w_dma(0) + x_dma(0)
    stamp(sg, 5, 'P')
    Q.push(first)
    weave(sg, Q, [], 9, 0)
    if int(opt.cpf) == 2: sg.text("global_load_dword v255, v8, s[12:13]")
    stamp(sg, 6, 'P')
    sg.addall(p2)
    stamp(sg, 7, 'P')
    sg.text("s_cmp_lg_u32 s2, 0"); sg.text("s_cbranch_scc1 L_nocz")
    lane0(sg, ["v_mov_b32 v9, 0", f"s_memrealtime s[{S_NON}:{S_NON+1}]", "s_waitcnt lgkmcnt(0)", f"s_or_b32 s{S_NON}, s{S_NON}, 1", f"v_mov_b32 v250, s{S_NON}", f"v_mov_b32 v251, s{S_NON+1}",
               f"buffer_store_dwordx2 v[250:251], v9, s[{S_D}:{S_D+3}], 0 offen sc1"], "L_nocz")
    sg.text("s_branch L_first")
    sg.text("L_restart:")
    s2 = Seg(); s2.addall(restart_setup()); Q2 = Queue(); Q2.push(x_dma(0) + w_dma(0) if not int(opt.wfirst) else w_dma(0) + x_dma(0)); weave(s2, Q2, [], 9, 0)
    for x in s2.out: sg.text(x)
    sg.text("L_first:")
    early, late = prologue3()
    early = early + late
    def BB(u): return f"B{u + 1}"
    Q.push(w_dma(1) + x_dma(1) + w_dma(2) + w_dma(3) + x_dma(2) + w_dma(4) + ((w_dma(5, 'B2') + x_dma(3)) if int(opt.la) else (x_dma(3) + w_dma(5, 'B2'))) + w_dma(6, 'B3') + w_dma(7, 'B4')
           + kv_dma('k', 0, 'B5') + kv_dma('v', 0, 'B6') + kv_dma('k', 1, 'B8') + kv_dma('v', 1, 'BQ'))
    for i in range(2, 8):
        if not int(opt.nodma): Q.push(kv_dma('k', i) + kv_dma('v', i))
    n0 = int(opt.n0) - 9
    weave(sg, Q, early, n0, (len(early) + n0 - 1) // n0)
    sg.addall(early)
    qr = phase_a(sg, Q)
    sg.addall(qr[:0])
    stamp(sg, 3)
    sg.text(f"s_cmp_eq_u32 s{S_REDO}, 0"); sg.text("s_cbranch_scc1 L_back_max")
    s2 = Seg(); s2.addall(qr)
    for x in s2.out: sg.text(x)
    sg.text("s_branch L_max")
    sg.text("L_back_max:")
    phase_b(sg, Q, qr)
    combine(sg, Q)
    phase_c(sg, Q)
    sg.text("L_fin:")
    stamp_out(sg, 11)
    sg.text("L_end:")
    sg.text("s_endpgm")
    return sg.out + ['L_code_end:'] + out_of_line()

def report_kernel():
    idx, mode = opt.report.split(',')
    if mode == 'next':
        return ["report_kernel:", "s_cmp_ge_u32 s2, 1", "s_cbranch_scc1 L3_end", "s_memrealtime s[12:13]", "s_load_dwordx2 s[4:5], s[0:1], 56", "s_waitcnt lgkmcnt(0)",
                f"s_add_u32 s4, s4, {17<<20}", "s_addc_u32 s5, s5, 0", "s_and_b32 s5, s5, 0xffff", "s_mov_b32 s6, 64", "s_mov_b32 s7, 0x20000", "v_mov_b32 v1, 0", "v_mov_b32 v2, s12",
                "buffer_store_dword v2, v1, s[4:7], 0 offen", "L3_end:", "s_endpgm"]
    t = ["report_kernel:", "s_cmp_ge_u32 s2, 1", "s_cbranch_scc1 L3_end", "s_load_dwordx2 s[4:5], s[0:1], 56", "s_waitcnt lgkmcnt(0)",
         f"s_add_u32 s4, s4, {16<<20}", "s_addc_u32 s5, s5, 0", "s_and_b32 s5, s5, 0xffff", "s_mov_b32 s6, 0x100000", "s_mov_b32 s7, 0x20000",
         "v_lshlrev_b32 v1, 8, v0", f"buffer_load_dword v2, v1, s[4:7], 0 offen offset:{4*int(idx)}", "buffer_load_dword v3, v1, s[4:7], 0 offen",
         "v_mov_b32 v4, 0", "v_mov_b32 v5, 0", "v_mov_b32 v6, -1", "ds_write_b32 v4, v5", "ds_write_b32 v4, v6 offset:8", "s_waitcnt vmcnt(0) lgkmcnt(0)", "s_barrier",
         "ds_min_u32 v4, v3 offset:8", "s_waitcnt lgkmcnt(0)", "s_barrier", "ds_read_b32 v6, v4 offset:8", "s_waitcnt lgkmcnt(0)", "v_sub_u32 v2, v2, v6",
         "v_lshrrev_b32 v7, 3, v0", "v_mul_u32_u24 v7, 52, v7", "v_lshrrev_b32 v7, 8, v7", "v_and_b32 v8, 1, v0", "v_sub_u32 v8, 6, v8", "v_cmp_lt_u32 vcc, v7, v8",
         "v_min_u32 v2, 10000, v2",
         ("ds_add_u32 v4, v2" if mode == 'mean' else "ds_max_u32 v4, v2"), "s_waitcnt lgkmcnt(0)", "s_barrier", "ds_read_b32 v6, v4", "s_memrealtime s[12:13]", "s_waitcnt lgkmcnt(0)",
         "v_readfirstlane_b32 s10, v6", "s_nop 4"]
    if mode == 'mean': t += ["s_mul_i32 s10, s10, 10", "s_lshr_b32 s10, s10, 8"]
    elif mode == 'max': t += ["s_mul_i32 s10, s10, 10"]
    else: t += ["s_mov_b32 s10, 0"]
    t += ["L3_spin:", "s_memrealtime s[14:15]", "s_waitcnt lgkmcnt(0)", "s_sub_u32 s14, s14, s12",
          "s_cmp_lt_u32 s14, s10", "s_cbranch_scc1 L3_spin", "L3_end:", "s_endpgm"]
    return t

def build():
    def fmt(l): return "\n".join(x if x.endswith(':') else "    " + x for x in l)
    nm = NAME + "_kernel"
    s = "; @launch grid=(256,1,1) block=(256,1,1) lds=163840\n"
    if opt.report:
        s = f"; @launch kernel={nm} grid=(256,1,1) block=(256,1,1) lds=163840\n; @launch kernel=report_kernel grid=(1,1,1) block=(256,1,1) lds=64\n"
    s += '.amdgcn_target "amdgcn-amd-amdhsa--gfx950"\n.text\n'
    s += f".globl {nm}\n.p2align 8\n.type {nm},@function\n" + fmt(kernel()) + "\n"
    if opt.report: s += ".globl report_kernel\n.p2align 8\n.type report_kernel,@function\n" + fmt(report_kernel()) + "\n"
    s += f""".section .rodata,"a"
.p2align 6
.amdhsa_kernel {nm}
  .amdhsa_next_free_vgpr 512
  .amdhsa_next_free_sgpr 102
  .amdhsa_accum_offset 256
  .amdhsa_group_segment_fixed_size 0
  .amdhsa_kernarg_size 64
  .amdhsa_user_sgpr_count 2
  .amdhsa_user_sgpr_kernarg_segment_ptr 1
  .amdhsa_system_sgpr_workgroup_id_x 1
  .amdhsa_float_denorm_mode_32 3
.end_amdhsa_kernel
"""
    if opt.report:
        s += """.p2align 6
.amdhsa_kernel report_kernel
  .amdhsa_next_free_vgpr 32
  .amdhsa_next_free_sgpr 32
  .amdhsa_accum_offset 32
  .amdhsa_group_segment_fixed_size 0
  .amdhsa_kernarg_size 64
  .amdhsa_user_sgpr_count 2
  .amdhsa_user_sgpr_kernarg_segment_ptr 1
  .amdhsa_system_sgpr_workgroup_id_x 1
.end_amdhsa_kernel
"""
    return s

if __name__ == '__main__':
    out = sys.argv[1] if len(sys.argv) > 1 else 'cdna_kernels/' + NAME + '.s'
    for a_ in sys.argv[2:]:
        k, v = a_.split('=', 1)
        setattr(opt, k, (' ' + v) if k.endswith('flags') and v else v)
    txt = build()
    open(out, 'w').write(txt)
```

```python
import sys, struct, re
from dsl import *

KB = 1024
NAME = 'standalone__gqa_block_cached__near_ridge'
def f2h(x): return hex(struct.unpack('<I', struct.pack('<f', x))[0])
QSCALE = 1.4426950408889634 / (128 ** 0.5)
WS_WO = 8 << 20
WS_CT = 12 << 20

class Opt:
    stamps = ''
    report = ''
    kv_flags = ''
    a_flags = ''
    n0 = 22
    warm = 1
    perstep = 6
    lo_exp = -40
    hi_exp = 40
    spin = 300000
    rt_at = 5
    bar_at = 12
    nodma = 0
    unp = 0
    f2wg = 0
    wfirst = 0
    kvnt = 'x'
    ant = ''
    tch_flags = ''
    wsb = 0
    drain = '45'
    tlb_at = 99
    aonly = 0
    la = 10
    aq = 1
    ownlate = 1
    o_flags = ' sc1'
    f1_flags = ' sc1'
    w64 = 0
    out_flags = ''
    bsched = 1
    p1w = 1
    p2w = 0
    pollk = '19,29,39'
    dyn2 = 1
    qmaj = 1
    tch_at = 27
    even_at = 99
    pdepth = 1
    kvo = 4
    finw = 0
    alim = 16
    cpf = 1
    chain = 1
    wo_at = 35
    calc_at = 16
    nl_at = 8
    nc_at = 13
    cw = 8
    shadow = 6
    bst = '0,5,10,15,20'
    no_rt = 0
    clk = 'r'
    lg0 = 0
    vpos = '1,5,9,13'
    rot_kv = 1
    rot_a = 8
    rot_c = 1
    gl_at = 29
    gc_at = 33
opt = Opt()

S_X, S_WQ, S_K, S_V, S_O, S_WO, S_WT, S_WL, S_C, S_D, S_OUT = 4, 8, 12, 16, 20, 24, 28, 52, 56, 60, 64
S_W, S_B, S_HKV, S_HQ = 32, 33, 34, 35
S_W1K, S_W8K, S_SO, S_T0, S_T1, S_T2, S_SK, S_SV = 36, 37, 38, 39, 40, 41, 42, 43
S_TAB = 44
S_REDO, S_MT, S_NT, S_VALID, S_RT, S_SPIN = 68, 69, 70, 71, 72, 73
S_EX = 74
S_F1, S_F2, S_G1, S_G2 = 100, 101, 72, 51
S_GM = 70
S_J_UNUSED = 3
S_P = 76
S_ST = 80
V_LANE, V_N, V_G, V_T0, V_T1, V_T2, V_T3, V_T4, V_T5 = 1, 2, 3, 4, 5, 6, 7, 8, 9
V_KA, V_VA, V_KD, V_VD = 10, 14, 22, 26
V_OST, V_CW, V_LW = 28, 29, 31
V_ONES, V_NEGM, V_L, V_S, V_P, V_KF, V_VF = 32, 36, 56, 76, 92, 100, 164
V_XA, V_XB, V_WA, V_WB, V_XD, V_WD, V_QW = 228, 232, 236, 238, 240, 241, 242
V_GC = 250
S_NON = 96
V_CR, V_LR, V_WOD, V_WT, V_OL, V_OW, V_OD, V_PS, V_PLD, V_OUT, V_P1, V_P2 = 228, 234, 235, 236, 242, 243, 244, 245, 246, 247, 248, 249
V_ZERO = 9
V_TCH = 64
S_H = 52
S_W5K = 55
S_J = 69
A_O, A_Q = 0, 160
V_OWN = [132, 140, 148, 156, 56]
A_KF1, A_L = 120, 240
def AO(lam, q):
    if lam < 2: return ('v', V_OWN[q] + 4 * lam)
    return ('a', A_O + 4 * (q * 6 + lam - 2))
def KF(i, k): return ('v', V_KF + 4 * k) if i % 2 == 0 else ('a', A_KF1 + 4 * k)
def LA(q): return ('a', A_L + 4 * q) if q < 4 else ('a', 152)
def AQ(q, s): return ('a', A_Q + 4 * (q * 4 + s))

def XU(c, q):
    if c == 0: return q * 4 * KB
    if c == 1: return 20 * KB + q * 4 * KB
    if c == 2: return 128 * KB + q * 4 * KB
    return [120, 124, 148, 152, 156][q] * KB
def WU(slot, ks):
    return {0: [40, 48], 1: [56, 96], 2: [104, 112], 3: [64, 72], 4: [80, 88]}[slot][ks] * KB
WSLOT = [0, 1, 2, 3, 4, 0, 1, 2]
QBUF = 128 * KB

def V(t, r=(), w=()):
    return valu(t, r=[('v', x) if isinstance(x, int) else x for x in r], w=[('v', x) if isinstance(x, int) else x for x in w])
def T(t, r=(), w=()):
    return valu(t, r=[('v', x) for x in r], w=[('v', x) for x in w], trans=True)
def S(t, r=(), w=()):
    return salu(t, r=[('s', x) if isinstance(x, int) else x for x in r], w=[('s', x) if isinstance(x, int) else x for x in w])
M0 = ('m0', 0)
VCC = ('vcc', 0)
def flat(l): return [x for y in l for x in y]

def srd(dst, plo, add_s=None, add_imm=0, size=0):
    o = []
    if add_s is not None:
        o.append(S(f"s_add_u32 s{dst}, s{plo}, s{add_s}", [plo, add_s], [dst]))
        o.append(S(f"s_addc_u32 s{dst+1}, s{plo+1}, 0", [plo+1], [dst+1]))
        o.append(S(f"s_and_b32 s{dst+1}, s{dst+1}, 0xffff", [dst+1], [dst+1]))
    elif add_imm:
        o.append(S(f"s_add_u32 s{dst}, s{plo}, {add_imm}", [plo], [dst]))
        o.append(S(f"s_addc_u32 s{dst+1}, s{plo+1}, 0", [plo+1], [dst+1]))
        o.append(S(f"s_and_b32 s{dst+1}, s{dst+1}, 0xffff", [dst+1], [dst+1]))
    else:
        o.append(S(f"s_mov_b32 s{dst}, s{plo}", [plo], [dst]))
        o.append(S(f"s_and_b32 s{dst+1}, s{plo+1}, 0xffff", [plo+1], [dst+1]))
    if isinstance(size, str):
        o.append(S(f"s_mov_b32 s{dst+2}, {size}", [int(size[1:])], [dst+2]))
    else:
        o.append(S(f"s_mov_b32 s{dst+2}, {size}", [], [dst+2]))
    o.append(S(f"s_mov_b32 s{dst+3}, 0x20000", [], [dst+3]))
    return o

KV_ORDER = [[0, 2, 1, 3, 4, 6, 5, 7], [0, 1, 3, 2, 4, 5, 7, 6], [1, 0, 2, 4, 3, 5, 6, 7], [1, 0, 2, 3, 5, 4, 6, 7]]
KV_ORDERS = [KV_ORDER,
  [[0, 4, 1, 2, 3, 5, 6, 7], [1, 0, 5, 2, 3, 4, 6, 7], [2, 0, 1, 6, 3, 4, 5, 7], [3, 0, 1, 2, 7, 4, 5, 6]],
  [[0, 1, 2, 3, 4, 5, 6, 7], [0, 1, 2, 3, 4, 5, 6, 7], [4, 5, 6, 7, 0, 1, 2, 3], [4, 5, 6, 7, 0, 1, 2, 3]],
  [[0, 2, 1, 3, 5, 4, 6, 7], [1, 0, 3, 2, 4, 6, 5, 7], [2, 1, 0, 4, 3, 5, 7, 6], [0, 1, 2, 3, 5, 4, 6, 7]],
  [[0, 1, 2, 4, 3, 5, 6, 7], [1, 0, 2, 3, 5, 4, 6, 7], [2, 0, 1, 3, 4, 6, 5, 7], [0, 1, 3, 2, 4, 5, 7, 6]],
  [[0, 1, 4, 2, 3, 5, 6, 7], [1, 0, 2, 5, 3, 4, 6, 7], [2, 0, 1, 3, 6, 4, 5, 7], [0, 3, 1, 2, 4, 7, 5, 6]],
  [[0, 1, 3, 2, 4, 5, 7, 6], [0, 1, 2, 4, 3, 5, 6, 7], [0, 2, 1, 3, 5, 4, 6, 7], [0, 2, 1, 3, 4, 6, 5, 7]],
  [[0, 1, 2, 4, 3, 5, 6, 7], [1, 0, 3, 2, 5, 4, 6, 7], [2, 3, 0, 1, 4, 6, 5, 7], [3, 2, 1, 0, 4, 5, 7, 6]],
  [[0, 1, 2, 4, 3, 5, 6, 7], [1, 2, 0, 3, 5, 4, 6, 7], [2, 0, 1, 3, 4, 6, 5, 7], [0, 3, 1, 2, 4, 5, 7, 6]]]
def kv_pack(j):
    o = KV_ORDERS[int(opt.kvo)][j] if int(opt.rot_kv) else list(range(8))
    return sum(t << (4 * i) for i, t in enumerate(o))
S_KVO = 98
V_XD4 = 204
S_WC = 99

class Item:
    def __init__(s, pre, ins, after=None): s.pre, s.ins, s.after = pre, ins, after
def x_dma(c, after=None):
    return [Item([S(f"s_add_u32 m0, s{S_W1K}, {XU(c,q)}", [S_W1K], [M0])],
                 dma(V_XD4 + c, S_X, S_TAB + q, 0, ('x', c), flags=(' nt' if 'x' in opt.ant and c < 2 else opt.a_flags)), after) for q in range(5)]
def w_dma(u, after=None):
    o = []
    for k in range(4):
        pre = []
        if k == 0:
            pre.append(S(f"s_add_u32 s{S_SK}, s{S_WC}, {(u & 6) << 19}", [S_WC], [S_SK]))
            pre.append(S(f"s_and_b32 s{S_SK}, s{S_SK}, {7 << 19}", [S_SK], [S_SK]))
            if u & 1: pre.append(S(f"s_xor_b32 s{S_SK}, s{S_SK}, {1 << 19}", [S_SK], [S_SK]))
        pre.append(S(f"s_add_u32 s{S_SO}, s{S_SK}, {k*131072}", [S_SK], [S_SO]))
        pre.append(S(f"s_add_u32 m0, s{S_W1K}, {WU(WSLOT[u], k>>1) + (k&1)*4*KB}", [S_W1K], [M0]))
        o.append(Item(pre, dma(V_WD, S_WQ, S_SO, 0, ('w', u), flags=(' nt' if 'w' in opt.ant and u < 4 else opt.a_flags)), after))
    return o
def kv_dma(kind, i, after=None):
    o = []
    base = (i & 1) * 32 * KB + (0 if kind == 'k' else 64 * KB)
    sr, so = (S_K, S_SK) if kind == 'k' else (S_V, S_SV)
    for j in range(8):
        pre = []
        if j % 4 == 0:
            if j == 0:
                pre.append(S(f"s_bfe_u32 s{so}, s{S_KVO}, {hex((3 << 16) | (4 * i))}", [S_KVO], [so]))
                pre.append(S(f"s_lshl_b32 s{so}, s{so}, 13", [so], [so]))
            else:
                pre.append(S(f"s_add_u32 s{so}, s{so}, 4096", [so], [so]))
            pre.append(S(f"s_add_u32 m0, s{S_W8K}, {base + (j>>2)*4096}", [S_W8K], [M0]))
        va = V_KD + (j & 3) if kind == 'k' else V_VD + (j & 1)
        tag = (kind + 'r', i - 2, j >> 2)
        o.append(Item(pre, dma(va, sr, so, 1024 * (j & 3), (kind, i, j >> 2), needlg=[tag], flags=(' nt' if str(i) in str(opt.kvnt) else opt.kv_flags)), after if i < 2 else tag))
    return o
def k_reads(i):
    return [dsrd('ds_read_b128', KF(i, t * 4 + s), 4, V_KA + s, (i & 1) * 32 * KB + t * 4096,
                 needvm=[('k', i, t)], lgtag=('kr', i, t)) for t in range(2) for s in range(4)]
def v_reads(i):
    return [dsrd('ds_read_b64_tr_b16', ('v', V_VF + (i & 1) * 32 + lam * 4 + h * 2), 2, V_VA + lam, (i & 1) * 32 * KB + h * 4096,
                 needvm=[('v', i, h)], lgtag=('vr', i, h)) for h in range(2) for lam in range(8)]

class Queue:
    def __init__(s): s.q = []; s.pts = set()
    def push(s, items): s.q += items
    def mark(s, p): s.pts.add(p)
    def pop(s):
        if s.q and (s.q[0].after is None or s.q[0].after in s.pts): return s.q.pop(0)
        return None

def place(gaps, Q, pos):
    last = -1
    for p in pos:
        if p >= len(gaps): continue
        it = Q.pop()
        if it is None: break
        pre = list(it.pre)
        avail = list(range(last + 1, p))
        front = []
        if not avail: front = pre
        else:
            slots = [[] for _ in avail]
            for k_, x in enumerate(reversed(pre)):
                slots[max(0, len(avail) - 1 - k_)].insert(0, x)
            for g, sl in zip(avail, slots):
                k_ = 0
                while k_ < len(gaps[g]) and gaps[g][k_].k == 'salu': k_ += 1
                gaps[g][k_:k_] = sl
        k = 0
        while k < len(gaps[p]) and gaps[p][k].k == 'salu': k += 1
        gaps[p][k:k] = front + [it.ins]
        last = p
def weave(sg, Q, fill, n, per):
    for _ in range(n):
        it = Q.pop()
        if it is not None: sg.addall(it.pre + [it.ins])
        for _ in range(per):
            if fill: sg.add(fill.pop(0))

NST = 12
def stamp(sg, i, grp='1'):
    if not opt.stamps: return
    if 5 <= i <= 9 and grp != opt.stamps: return
    sg.text(f"{'s_memtime' if opt.clk == 'c' else 's_memrealtime'} s[{76+2*i}:{77+2*i}]")

def prologue1():
    o = []; a = o.append
    a(raw("s_load_dwordx2 s[92:93], s[0:1], 0"))
    a(raw("s_load_dwordx2 s[26:27], s[0:1], 24"))
    a(V(f"v_lshrrev_b32 v{V_T0}, 6, v0", [0], [V_T0]))
    a(V(f"v_and_b32 v{V_LANE}, 63, v0", [0], [V_LANE]))
    a(V(f"v_readfirstlane_b32 s{S_W}, v{V_T0}", [V_T0], [('s', S_W)]))
    a(S(f"s_and_b32 s{S_HKV}, s2, 7", [2], [S_HKV]))
    a(S(f"s_lshr_b32 s{S_B}, s2, 5", [2], [S_B]))
    a(S(f"s_bfe_u32 s{S_T0}, s2, 0x20003", [2], [S_T0]))
    a(S(f"s_mov_b32 s{S_J}, s{S_T0}", [S_T0], [S_J]))
    a(S(f"s_lshl_b32 s{S_HQ}, s{S_HKV}, 2", [S_HKV], [S_HQ]))
    a(S(f"s_add_u32 s{S_HQ}, s{S_HQ}, s{S_T0}", [S_HQ, S_T0], [S_HQ]))
    if int(opt.rot_a) == 2:
        a(S(f"s_add_u32 s{S_VALID}, s{S_T0}, s{S_B}", [S_T0, S_B], [S_VALID]))
        a(S(f"s_and_b32 s{S_VALID}, s{S_VALID}, 1", [S_VALID], [S_VALID]))
        a(S(f"s_lshl_b32 s{S_VALID}, s{S_VALID}, 2", [S_VALID], [S_VALID]))
    elif int(opt.rot_a) in (5, 6):
        a_, b_ = (S_B, S_T0) if int(opt.rot_a) == 5 else (S_T0, S_B)
        a(S(f"s_lshl_b32 s{S_VALID}, s{b_}, 1", [b_], [S_VALID]))
        a(S(f"s_add_u32 s{S_VALID}, s{S_VALID}, s{a_}", [S_VALID, a_], [S_VALID]))
        a(S(f"s_and_b32 s{S_VALID}, s{S_VALID}, 3", [S_VALID], [S_VALID]))
        a(S(f"s_lshl_b32 s{S_VALID}, s{S_VALID}, 1", [S_VALID], [S_VALID]))
    elif int(opt.rot_a) in (8, 9):
        a(S(f"s_add_u32 s{S_VALID}, s{S_T0}, s{S_B}", [S_T0, S_B], [S_VALID]))
        a(S(f"s_lshl_b32 s{S_VALID}, s{S_VALID}, 1", [S_VALID], [S_VALID]))
        a(S(f"s_and_b32 s{S_T1}, s{S_HKV}, {1 if int(opt.rot_a) == 8 else 3}", [S_HKV], [S_T1]))
        a(S(f"s_add_u32 s{S_VALID}, s{S_VALID}, s{S_T1}", [S_VALID, S_T1], [S_VALID]))
        a(S(f"s_and_b32 s{S_VALID}, s{S_VALID}, 3", [S_VALID], [S_VALID]))
        a(S(f"s_lshl_b32 s{S_VALID}, s{S_VALID}, 1", [S_VALID], [S_VALID]))
    elif int(opt.rot_a) == 7:
        a(S(f"s_add_u32 s{S_VALID}, s{S_T0}, s{S_B}", [S_T0, S_B], [S_VALID]))
        a(S(f"s_and_b32 s{S_VALID}, s{S_VALID}, 1", [S_VALID], [S_VALID]))
        a(S(f"s_lshl_b32 s{S_VALID}, s{S_VALID}, 2", [S_VALID], [S_VALID]))
        a(S(f"s_bfe_u32 s{S_T1}, s{S_B}, 0x10001", [S_B], [S_T1]))
        a(S(f"s_or_b32 s{S_VALID}, s{S_VALID}, s{S_T1}", [S_VALID, S_T1], [S_VALID]))
    elif int(opt.rot_a) == 4:
        a(S(f"s_add_u32 s{S_VALID}, s{S_T0}, s{S_B}", [S_T0, S_B], [S_VALID]))
        a(S(f"s_and_b32 s{S_VALID}, s{S_VALID}, 3", [S_VALID], [S_VALID]))
        a(S(f"s_lshl_b32 s{S_VALID}, s{S_VALID}, 1", [S_VALID], [S_VALID]))
    elif int(opt.rot_a):
        a(S(f"s_lshl_b32 s{S_T0}, s{S_T0}, 1", [S_T0], [S_T0]))
        a(S(f"s_add_u32 s{S_VALID}, s{S_T0}, s{S_B}", [S_T0, S_B], [S_VALID]))
        a(S(f"s_and_b32 s{S_VALID}, s{S_VALID}, 7", [S_VALID], [S_VALID]))
    else:
        a(S(f"s_mov_b32 s{S_VALID}, 0", [], [S_VALID]))
    a(V(f"v_and_b32 v{V_N}, 15, v{V_LANE}", [V_LANE], [V_N]))
    a(V(f"v_lshrrev_b32 v{V_G}, 4, v{V_LANE}", [V_LANE], [V_G]))
    a(S(f"s_lshl_b32 s{S_W1K}, s{S_W}, 10", [S_W], [S_W1K]))
    a(S(f"s_lshl_b32 s{S_W8K}, s{S_W}, 13", [S_W], [S_W8K]))
    a(V(f"v_lshl_add_u32 v{V_T0}, s{S_W}, 2, v{V_G}", [V_G, ('s', S_W)], [V_T0]))
    a(V(f"v_xor_b32 v{V_T1}, v{V_N}, v{V_T0}", [V_N, V_T0], [V_T1]))
    a(V(f"v_lshlrev_b32 v{V_T1}, 4, v{V_T1}", [V_T1], [V_T1]))
    a(V(f"v_lshl_add_u32 v{V_XD}, v{V_T0}, 10, v{V_T1}", [V_T0, V_T1], [V_XD]))
    a(S(f"s_and_b32 s{S_T0}, s{S_W}, 2", [S_W], [S_T0]))
    a(S(f"s_lshl_b32 s{S_T0}, s{S_T0}, 2", [S_T0], [S_T0]))
    a(V(f"v_lshl_add_u32 v{V_T1}, v{V_G}, 1, s{S_T0}", [V_G, ('s', S_T0)], [V_T1]))
    a(V(f"v_xor_b32 v{V_T1}, v{V_N}, v{V_T1}", [V_N, V_T1], [V_T1]))
    a(V(f"v_lshlrev_b32 v{V_T1}, 4, v{V_T1}", [V_T1], [V_T1]))
    a(V(f"v_lshl_add_u32 v{V_WD}, v{V_T0}, 13, v{V_T1}", [V_T0, V_T1], [V_WD]))
    a(S(f"s_mul_i32 s{S_T0}, s{S_B}, 81920", [S_B], [S_T0]))
    a(S(f"s_lshl_b32 s{S_T2}, s{S_HQ}, 8", [S_HQ], [S_T2]))
    a(S(f"s_sub_u32 s{S_T1}, 4194304, s{S_T2}", [S_T2], [S_T1]))
    a(S(f"s_mov_b32 s{S_REDO}, 0", [], [S_REDO]))
    a(S(f"s_lshl_b32 s{S_WC}, s{S_VALID}, 19", [S_VALID], [S_WC]))
    a(S(f"s_mov_b64 s[{S_GM}:{S_GM+1}], -1", [], [S_GM, S_GM+1]))
    o += restart_setup()
    a(S(f"s_mov_b32 s{S_X+2}, 81920", [], [S_X+2])); a(S(f"s_mov_b32 s{S_X+3}, 0x20000", [], [S_X+3]))
    a(S(f"s_mov_b32 s{S_WQ+2}, s{S_T1}", [S_T1], [S_WQ+2])); a(S(f"s_mov_b32 s{S_WQ+3}, 0x20000", [], [S_WQ+3]))
    a(raw("s_waitcnt lgkmcnt(0)", 'wait'))
    o += srd(S_X, 92, add_s=S_T0, size=81920)[:3]
    o += srd(S_WQ, 26, add_s=S_T2, size=0)[:3]
    a(raw("s_load_dwordx4 s[92:95], s[0:1], 8"))
    a(raw(f"s_load_dwordx2 s[{S_WO}:{S_WO+1}], s[0:1], 32"))
    a(raw(f"s_load_dwordx4 s[{S_C}:{S_C+3}], s[0:1], 40"))
    a(raw("s_load_dwordx2 s[100:101], s[0:1], 56"))
    return o

def restart_setup():
    o = [S(f"s_mov_b32 s{S_TAB+q}, {q*16384}", [], [S_TAB+q]) for q in range(5)]
    for c in range(4):
        o.append(S(f"s_lshr_b32 s{S_SO}, s{S_WC}, 12", [S_WC], [S_SO]))
        o.append(S(f"s_add_u32 s{S_SO}, s{S_SO}, {c*256}", [S_SO], [S_SO]))
        o.append(S(f"s_and_b32 s{S_SO}, s{S_SO}, 0x300", [S_SO], [S_SO]))
        o.append(V(f"v_add_u32 v{V_XD4+c}, s{S_SO}, v{V_XD}", [V_XD, ('s', S_SO)], [V_XD4+c]))
    return o

def prologue2():
    o = []; a = o.append
    a(raw("s_waitcnt lgkmcnt(0)", 'wait'))
    a(S(f"s_lshl_b32 s{S_T0}, s{S_B}, 3", [S_B], [S_T0]))
    a(S(f"s_add_u32 s{S_T0}, s{S_T0}, s{S_HKV}", [S_T0, S_HKV], [S_T0]))
    a(S(f"s_lshl_b32 s{S_T0}, s{S_T0}, 2", [S_T0], [S_T0]))
    a(S(f"s_add_u32 s{S_T0}, s{S_T0}, s{S_W}", [S_T0, S_W], [S_T0]))
    a(S(f"s_lshl_b32 s{S_T0}, s{S_T0}, 16", [S_T0], [S_T0]))
    o += srd(S_K, 92, add_s=S_T0, size=65536)
    o += srd(S_V, 94, add_s=S_T0, size=65536)
    a(S(f"s_lshl_b32 s{S_T0}, s{S_HKV}, 19", [S_HKV], [S_T0]))
    o += srd(S_WO, S_WO, add_s=S_T0, size=524288)
    WB = int(opt.wsb) << 20
    o += srd(S_O, 100, add_imm=WB, size=8*5*128*1024)
    o += srd(S_WT, 100, add_imm=WB + WS_WO, size=8*4*20*8*1024)
    o += srd(S_D, S_C + 2, size=256)
    o += srd(S_OUT, S_C, size=655360)
    o += srd(S_C, 100, add_imm=WB + WS_CT, size=262144)
    a(S(f"s_bitcmp1_b32 s{S_HQ}, 0", [S_HQ], []))
    a(S(f"s_mov_b32 s{S_T0}, {hex(kv_pack(0))}", [], [S_T0]))
    a(S(f"s_cselect_b32 s{S_T0}, {hex(kv_pack(1))}, s{S_T0}", [S_T0], [S_T0]))
    a(S(f"s_mov_b32 s{S_T1}, {hex(kv_pack(2))}", [], [S_T1]))
    a(S(f"s_cselect_b32 s{S_T1}, {hex(kv_pack(3))}, s{S_T1}", [S_T1], [S_T1]))
    a(S(f"s_bitcmp1_b32 s{S_HQ}, 1", [S_HQ], []))
    a(S(f"s_cselect_b32 s{S_KVO}, s{S_T1}, s{S_T0}", [S_T0, S_T1], [S_KVO]))
    for p in range(3):
        a(S(f"s_cmp_le_u32 s{S_J}, {p}", [S_J], []))
        a(S(f"s_cselect_b32 s{S_T1}, {p + 1}, {p}", [], [S_T1]))
        a(S(f"s_lshl_b32 s{S_H+p}, s{S_T1}, 17", [S_T1], [S_H+p]))
    a(S(f"s_mul_i32 s{S_W5K}, s{S_W}, 5120", [S_W], [S_W5K]))
    a(S(f"s_lshl_b32 s{S_T0}, s{S_B}, 14", [S_B], [S_T0]))
    a(S(f"s_lshl_b32 s{S_T1}, s{S_W}, 7", [S_W], [S_T1]))
    a(S(f"s_add_u32 s{S_T0}, s{S_T0}, s{S_T1}", [S_T0, S_T1], [S_T0]))
    a(S(f"s_lshl_b32 s{S_F1}, s{S_HQ}, 9", [S_HQ], [S_F1]))
    a(S(f"s_add_u32 s{S_F1}, s{S_F1}, s{S_T0}", [S_F1, S_T0], [S_F1]))
    a(S(f"s_add_u32 s{S_F2}, s{S_F1}, 131072", [S_F1], [S_F2]))
    if int(opt.f2wg): a(S(f"s_andn2_b32 s{S_F2}, s{S_F2}, 0x180", [S_F2], [S_F2]))
    a(S(f"s_lshl_b32 s{S_T1}, s{S_HKV}, 11", [S_HKV], [S_T1]))
    a(S(f"s_lshl_b32 s{S_G1}, s{S_J}, 3", [S_J], [S_G1]))
    a(S(f"s_add_u32 s{S_G1}, s{S_G1}, s{S_T1}", [S_G1, S_T1], [S_G1]))
    a(S(f"s_add_u32 s{S_G1}, s{S_G1}, s{S_T0}", [S_G1, S_T0], [S_G1]))
    a(S(f"s_lshl_b32 s{S_T1}, s{S_J}, 9", [S_J], [S_T1]))
    a(S(f"s_lshl_b32 s{S_G2}, s{S_HKV}, 3", [S_HKV], [S_G2]))
    a(S(f"s_add_u32 s{S_G2}, s{S_G2}, s{S_T1}", [S_G2, S_T1], [S_G2]))
    a(S(f"s_add_u32 s{S_G2}, s{S_G2}, s{S_T0}", [S_G2, S_T0], [S_G2]))
    a(S(f"s_add_u32 s{S_G2}, s{S_G2}, 131072", [S_G2], [S_G2]))
    return o

def prologue3():
    o = []; a = o.append
    a(S(f"s_bfe_u32 s{S_T1}, s{S_WC}, 0x10013", [S_WC], [S_T1]))
    a(S(f"s_lshl_b32 s{S_T1}, s{S_T1}, 3", [S_T1], [S_T1]))
    a(V(f"v_xor_b32 v{V_T1}, s{S_T1}, v{V_N}", [V_N, ('s', S_T1)], [V_T1]))
    for s in range(4):
        a(V(f"v_add_u32 v{V_T0}, {4*s}, v{V_G}", [V_G], [V_T0]))
        a(V(f"v_xor_b32 v{V_T0}, v{V_T0}, v{V_T1}", [V_T0, V_T1], [V_T0]))
        a(V(f"v_lshlrev_b32 v{V_T0}, 4, v{V_T0}", [V_T0], [V_T0]))
        a(V(f"v_lshl_add_u32 v{V_XA+s}, v{V_N}, 8, v{V_T0}", [V_N, V_T0], [V_XA+s]))
        a(V(f"v_add_u32 v{V_XB+s}, {120*KB}, v{V_XA+s}", [V_XA+s], [V_XB+s]))
    a(V(f"v_lshrrev_b32 v{V_T2}, 2, v{V_N}", [V_N], [V_T2]))
    a(V(f"v_bfe_u32 v{V_T3}, v{V_N}, 1, 1", [V_N], [V_T3]))
    a(V(f"v_and_b32 v{V_T4}, 1, v{V_N}", [V_N], [V_T4]))
    a(V(f"v_lshlrev_b32 v{V_T4}, 3, v{V_T4}", [V_T4], [V_T4]))
    a(V(f"v_and_b32 v{V_T5}, 1, v{V_G}", [V_G], [V_T5]))
    a(V(f"v_lshl_add_u32 v{V_T5}, v{V_T5}, 2, v{V_T2}", [V_T5, V_T2], [V_T5]))
    a(V(f"v_lshlrev_b32 v{V_T5}, 1, v{V_T5}", [V_T5], [V_T5]))
    a(S(f"s_lshl_b32 s{S_T1}, s{S_W}, 2", [S_W], [S_T1]))
    a(V(f"v_lshl_add_u32 v{V_T1}, v{V_G}, 3, v{V_T2}", [V_G, V_T2], [V_T1]))
    a(V(f"v_lshl_add_u32 v{V_T1}, v{V_T1}, 8, v{V_T4}", [V_T1, V_T4], [V_T1]))
    for e in range(2):
        a(V(f"v_add3_u32 v{V_T0}, s{S_T1}, v{V_T3}, {2*e}", [V_T3, ('s', S_T1)], [V_T0]))
        a(V(f"v_xor_b32 v{V_T0}, v{V_T0}, v{V_T5}", [V_T0, V_T5], [V_T0]))
        a(V(f"v_lshl_add_u32 v{V_T0}, v{V_T0}, 4, v{V_T1}", [V_T0, V_T1], [V_T0]))
        a(V(f"v_add_u32 v{V_WA+e}, {40*KB}, v{V_T0}", [V_T0], [V_WA+e]))
        a(V(f"v_add_u32 v{V_WB+e}, {96*KB}, v{V_T0}", [V_T0], [V_WB+e]))
    a(V(f"v_lshl_add_u32 v{V_T1}, v{V_G}, 2, v{V_T2}", [V_G, V_T2], [V_T1]))
    n_early = len(o)
    for s in range(4):
        a(V(f"v_add_u32 v{V_KA+s}, s{S_W8K}, v{V_XA+s}", [V_XA+s, ('s', S_W8K)], [V_KA+s]))
    a(V(f"v_lshl_add_u32 v{V_T1}, v{V_T1}, 8, v{V_T4}", [V_T1, V_T4], [V_T1]))
    a(S(f"s_add_u32 s{S_T2}, s{S_W8K}, {64*KB}", [S_W8K], [S_T2]))
    a(V(f"v_add_u32 v{V_T1}, s{S_T2}, v{V_T1}", [V_T1, ('s', S_T2)], [V_T1]))
    a(V(f"v_add_u32 v{V_T3}, s{S_T1}, v{V_T3}", [V_T3, ('s', S_T1)], [V_T3]))
    for lam in range(8):
        a(V(f"v_add_u32 v{V_T0}, {2*lam}, v{V_T3}", [V_T3], [V_T0]))
        a(V(f"v_and_b32 v{V_T0}, 15, v{V_T0}", [V_T0], [V_T0]))
        a(V(f"v_xor_b32 v{V_T0}, v{V_T0}, v{V_T5}", [V_T0, V_T5], [V_T0]))
        a(V(f"v_lshl_add_u32 v{V_VA+lam}, v{V_T0}, 4, v{V_T1}", [V_T0, V_T1], [V_VA+lam]))
    a(V(f"v_xor_b32 v{V_T0}, v{V_N}, v{V_G}", [V_N, V_G], [V_T0]))
    a(V(f"v_lshlrev_b32 v{V_T0}, 4, v{V_T0}", [V_T0], [V_T0]))
    a(V(f"v_lshl_add_u32 v{V_KD}, v{V_G}, 8, v{V_T0}", [V_G, V_T0], [V_KD]))
    for j in range(1, 4):
        a(V(f"v_xor_b32 v{V_KD+j}, {64*j}, v{V_KD}", [V_KD], [V_KD+j]))
    a(V(f"v_lshlrev_b32 v{V_T0}, 1, v{V_G}", [V_G], [V_T0]))
    a(V(f"v_xor_b32 v{V_T0}, v{V_N}, v{V_T0}", [V_N, V_T0], [V_T0]))
    a(V(f"v_lshlrev_b32 v{V_T0}, 4, v{V_T0}", [V_T0], [V_T0]))
    a(V(f"v_lshl_add_u32 v{V_VD}, v{V_G}, 8, v{V_T0}", [V_G, V_T0], [V_VD]))
    a(V(f"v_xor_b32 v{V_VD+1}, 128, v{V_VD}", [V_VD], [V_VD+1]))
    a(V(f"v_lshrrev_b32 v{V_T0}, 1, v{V_G}", [V_G], [V_T0]))
    a(V(f"v_add_u32 v{V_T0}, s{S_T1}, v{V_T0}", [V_T0, ('s', S_T1)], [V_T0]))
    a(V(f"v_xor_b32 v{V_T0}, v{V_T0}, v{V_N}", [V_T0, V_N], [V_T0]))
    a(V(f"v_lshlrev_b32 v{V_T0}, 4, v{V_T0}", [V_T0], [V_T0]))
    a(V(f"v_lshl_add_u32 v{V_T0}, v{V_N}, 8, v{V_T0}", [V_N, V_T0], [V_T0]))
    a(V(f"v_and_b32 v{V_T1}, 1, v{V_G}", [V_G], [V_T1]))
    a(V(f"v_lshl_add_u32 v{V_T0}, v{V_T1}, 3, v{V_T0}", [V_T0, V_T1], [V_T0]))
    a(V(f"v_add_u32 v{V_QW}, {QBUF}, v{V_T0}", [V_T0], [V_QW]))
    a(V(f"v_xor_b32 v{V_QW+1}, 32, v{V_QW}", [V_QW], [V_QW+1]))
    a(V(f"v_lshl_add_u32 v{V_CW}, v{V_LANE}, 4, s{S_W8K}", [V_LANE, ('s', S_W8K)], [V_CW]))
    a(V(f"v_add_u32 v{V_CW+1}, {64*KB}, v{V_CW}", [V_CW], [V_CW+1]))
    a(S(f"s_add_u32 s{S_T0}, s{S_W8K}, {102*KB}", [S_W8K], [S_T0]))
    a(V(f"v_lshl_add_u32 v{V_LW}, v{V_LANE}, 5, s{S_T0}", [V_LANE, ('s', S_T0)], [V_LW]))
    a(S(f"s_mul_i32 s{S_T0}, s{S_B}, 640", [S_B], [S_T0]))
    a(S(f"s_lshl_b32 s{S_T2}, s{S_HQ}, 2", [S_HQ], [S_T2]))
    a(S(f"s_add_u32 s{S_T0}, s{S_T0}, s{S_T2}", [S_T0, S_T2], [S_T0]))
    a(S(f"s_add_u32 s{S_T0}, s{S_T0}, s{S_W}", [S_T0, S_W], [S_T0]))
    a(S(f"s_lshl_b32 s{S_T0}, s{S_T0}, 10", [S_T0], [S_T0]))
    a(V(f"v_lshl_add_u32 v{V_OST}, v{V_LANE}, 4, s{S_T0}", [V_LANE, ('s', S_T0)], [V_OST]))
    a(V(f"v_cmp_eq_u32 vcc, 0, v{V_N}", [V_N], [VCC]))
    a(V(f"v_mov_b32 v{V_T0}, 0x3f803f80", [], [V_T0]))
    for i in range(4):
        a(V(f"v_cndmask_b32 v{V_ONES+i}, 0, v{V_T0}, vcc", [V_T0, VCC], [V_ONES+i]))
    for i in range(20):
        a(V(f"v_mov_b32 v{V_NEGM+i}, 0", [], [V_NEGM+i]))
    return o[:n_early], o[n_early:]

V_QACC = V_VF
def AF(kap):
    return [(100, 120), (128, 148), (208, 156)][kap % 3]
def a_reads(kap):
    u, ks = kap >> 1, kap & 1
    c, s = u >> 1, kap & 3
    xf, wf = AF(kap)
    wb = WU(WSLOT[u], ks)
    xr = []
    for q in range(5):
        xb = XU(c, q)
        reg, base = (V_XA, 0) if xb < 64 * KB else (V_XB, 120 * KB)
        xr.append(dsrd('ds_read_b128', ('v', xf + q * 4), 4, reg + s, xb - base))
    wr = []
    for e in range(2):
        for h in range(2):
            reg, base = (V_WA, 40 * KB) if wb < 96 * KB else (V_WB, 96 * KB)
            wr.append(dsrd('ds_read_b64_tr_b16', ('v', wf + e * 4 + h * 2), 2, reg + e, wb - base + h * 1024))
    return wr[:2] + xr[:1] + wr[2:] + xr[1:]
def a_mfmas(kap):
    o = []
    xf, wf = AF(kap)
    for q in range(5):
        for e in range(2):
            d = ('v', V_QACC + (e * 5 + q) * 4)
            o.append(mfma(d, ('v', wf + e * 4), ('v', xf + q * 4), 0 if kap == 0 else d))
    return o
def lane0(sg, body, lab):
    sg.text(f"s_cmp_lg_u32 s{S_W}, 0"); sg.text(f"s_cbranch_scc1 {lab}")
    sg.text(f"s_mov_b64 s[{S_EX}:{S_EX+1}], exec"); sg.text("s_mov_b64 exec, 1")
    for x in body: sg.text(x)
    sg.text(f"s_mov_b64 exec, s[{S_EX}:{S_EX+1}]")
    sg.text(f"{lab}:")
def phase_a(sg, Q):
    stamp(sg, 1)
    sg.add(barrier(needvm=[('x', 0), ('w', 0)])); Q.mark('B0')
    stamp(sg, 2)
    sg.addall(a_reads(0)); sg.addall(a_reads(1))
    sg.add(S(f"s_mov_b32 s{S_T1}, {f2h(QSCALE)}", [], [S_T1]))
    sg.add(S(f"s_mov_b32 s{S_T2}, {f2h(QSCALE)}", [], [S_T2]))
    for kap in range(14 if int(opt.aq) else 16):
        mf = a_mfmas(kap)
        gaps = [[] for _ in mf]
        nx = kap + 2
        if nx < 16:
            if nx % 2 == 0:
                u = nx >> 1
                need = [('x', u >> 1), ('w', u)]
                while any(it.ins.vmtag in need for it in Q.q):
                    n_ = len(Q.q); weave(sg, Q, [], 1, 0); assert len(Q.q) < n_, (u, Q.q[0].after)
                while True:
                    younger = 0
                    for tg, _w in reversed(sg.vm):
                        if tg in need: break
                        younger += 1
                    n_ = len(Q.q)
                    if younger >= int(opt.la): break
                    weave(sg, Q, [], 1, 0)
                    if len(Q.q) == n_: break
                dr = str(u) in str(opt.drain)
                sg.add(barrier(needvm=need, lg0=dr)); Q.mark(f'B{u}')
                if dr: Q.mark(f'B{u+1}')
                if u in (1, 3, 5, 7): stamp(sg, 5 + u // 2, 'A')
            for i, r in enumerate(a_reads(nx)): gaps[i].append(r)
        mf[0].r |= set(R('v', AF(kap)[0], 20) + R('v', AF(kap)[1], 8))
        pos = [1, 5, 9] if kap % 2 == 0 else [3, 7]
        if int(opt.perstep) == 6: pos = [1, 4, 7] if kap % 2 == 0 else [1, 4, 8]
        if int(opt.perstep) == 7: pos = [1, 4, 6, 9] if kap % 2 == 0 else [2, 5, 8]
        if int(opt.perstep) == 8: pos = [1, 4, 6, 9]
        nkv = sum(1 for it in Q.q if it.ins.vmtag[0] in 'kv')
        room = int(opt.alim) - (128 - nkv) + (len(Q.q) - nkv)
        place(gaps, Q, pos[:max(0, room)])
        if int(opt.aonly): sg.addall([x for x in interleave(mf, gaps) if x.k not in ('mfma', 'dsrd')])
        else: sg.addall(interleave(mf, gaps))
    def qfin(q, e, packed):
        b = V_QACC + (e * 5 + q) * 4
        if packed: f_ = [V(f"v_pk_mul_f32 v[{b+r}:{b+r+1}], v[{b+r}:{b+r+1}], s[{S_T1}:{S_T1+1}]", [b+r, b+r+1], [b+r, b+r+1]) for r in (0, 2)]
        else: f_ = [V(f"v_mul_f32 v{b+r}, s{S_T1}, v{b+r}", [b+r], [b+r]) for r in range(4)]
        f_.append(V(f"v_cvt_pk_bf16_f32 v{b}, v{b}, v{b+1}", [b, b+1], [b]))
        f_.append(V(f"v_cvt_pk_bf16_f32 v{b+1}, v{b+2}, v{b+3}", [b+2, b+3], [b+1]))
        f_.append(dswr('ds_write_b64', V_QW + e, ('v', b), 2, q * 4096, lgtag='qw'))
        return f_
    todo = [(q, e) for q in range(5) for e in range(2)]
    if int(opt.aq):
        m14, m15 = a_mfmas(14), a_mfmas(15)
        m14[0].r |= set(R('v', AF(14)[0], 20) + R('v', AF(14)[1], 8))
        mf = flat([[m14[k], m15[k]] for k in range(10)])
        gaps = [[] for _ in mf]
        gi = 5
        while todo and gi + 3 <= 19:
            f_ = qfin(*todo.pop(0), False)
            gaps[gi] += f_[0:2]; gaps[gi + 1] += f_[2:4]; gaps[gi + 2] += f_[4:6]; gaps[gi + 3] = [f_[6]] + gaps[gi + 3]
            gi += 3
        nkv = sum(1 for it in Q.q if it.ins.vmtag[0] in 'kv')
        place(gaps, Q, [1, 4][:max(0, int(opt.alim) - (128 - nkv))])
        sg.addall(interleave(mf, gaps))
    stamp(sg, 9, 'A')
    for q, e in todo: sg.addall(qfin(q, e, True))
    while any(it.ins.vmtag in (('k', 0, 0), ('k', 0, 1)) for it in Q.q): weave(sg, Q, [], 1, 0)
    b = barrier(lg0=False); b.needlg = ('qw',)
    sg.addall(k_reads(0)); Q.mark(('kr', 0, 0)); Q.mark(('kr', 0, 1))
    sg.add(b); Q.mark('BQ'); Q.mark('B8')
    qr = [dsrd('ds_read_b128', AQ(q, s), 4, V_XB + s, QBUF - 120 * KB + q * 4096) for q in range(5) for s in range(4)]
    return qr

def TQ(tau):
    return divmod(tau, 5) if tau < 30 else (6 + ((tau - 30) & 1), (tau - 30) >> 1)
def qk(tau):
    i, q = TQ(tau)
    o = []
    for s, t in ([(s, t) for t in range(2) for s in range(4)] if int(opt.chain) else [(s, t) for s in range(4) for t in range(2)]):
        if True:
            d = ('v', V_S + (tau & 1) * 8 + t * 4)
            o.append(mfma(d, KF(i, t * 4 + s), AQ(q, s), ('v', V_NEGM + q * 4) if s == 0 else d))
    return o
def pv(tau):
    i, q = TQ(tau)
    p = ('v', V_P + (tau & 1) * 4)
    o = [mfma(AO(lam, q), ('v', V_VF + (i & 1) * 32 + lam * 4), p, AO(lam, q) if i else 0) for lam in range(8)]
    o.insert(0, mfma(LA(q), ('v', V_ONES), p, LA(q) if i else 0))
    return o
def sm(tau):
    b = V_S + (tau & 1) * 8
    p = V_P + (tau & 1) * 4
    e = [T(f"v_exp_f32 v{b+i}, v{b+i}", [b+i], [b+i]) for i in range(8)]
    c = [V(f"v_cvt_pk_bf16_f32 v{p+i}, v{b+2*i}, v{b+2*i+1}", [b+2*i, b+2*i+1], [p+i]) for i in range(4)]
    return e, c
def comb_writes(q):
    o = []
    for jd in range(1, 4):
        for e in range(2):
            u = q * 6 + (jd - 1) * 2 + e
            row = u >> 3
            o.append(dswr('ds_write_b128', V_CW + (row >> 1), AO(2 * jd + e, q), 4, (row & 1) * 32 * KB + (u & 7) * KB, lgtag=('cw', q)))
    o.insert(0, dswr('ds_write_b32', V_LW, LA(q), 1, [0, 4, 16, 20, 24][q], lgtag=('cw', q)))
    return o

def wo_dma(pos, after=None):
    o = []
    for ks in range(4):
        for half in range(2):
            base = (128 * KB if pos < 0 else pos * 32 * KB) + ks * 8 * KB + half * 4 * KB
            if pos < 0:
                pre = [S(f"s_lshl_b32 s{S_SK}, s{S_J}, 17", [S_J], [S_SK])] if ks + half == 0 else []
                h = S_SK
            else: pre, h = [], S_H + pos
            pre += [S(f"s_add_u32 s{S_SO}, s{h}, {ks*32768 + half*16384}", [h], [S_SO]), S(f"s_add_u32 m0, s{S_W1K}, {base}", [S_W1K], [M0])]
            o.append(Item(pre, dma(V_WOD, S_WO, S_SO, 0, ('wo', pos)), after))
    return o
def osib_dma(pos):
    o = []
    for q in range(5):
        pre = [S(f"s_lshr_b32 s{S_SK}, s{S_H+pos}, 5", [S_H+pos], [S_SK])] if q == 0 else []
        pre += [S(f"s_add_u32 s{S_SO}, s{S_SK}, {q*128*KB}", [S_SK], [S_SO]), S(f"s_add_u32 m0, s{S_W5K}, {(140 - 20*pos + q)*KB}", [S_W5K], [M0])]
        o.append(Item(pre, dma(V_OD, S_O, S_SO, 0, ('os', pos), flags=' sc1')))
    return o
def tail_calc():
    o = []; a = o.append
    T0, T1, T2 = 252, 253, 254
    a(V(f"v_lshlrev_b32 v{T0}, 4, v{V_LANE}", [V_LANE], [T0]))
    for jd in range(1, 4):
        a(S(f"s_sub_u32 s{S_T0}, s{S_W}, {jd}", [S_W], [S_T0]))
        a(S(f"s_and_b32 s{S_T0}, s{S_T0}, 3", [S_T0], [S_T0]))
        a(S(f"s_lshl_b32 s{S_T0}, s{S_T0}, 13", [S_T0], [S_T0]))
        a(V(f"v_add_u32 v{V_CR+2*(jd-1)}, s{S_T0}, v{T0}", [T0, ('s', S_T0)], [V_CR+2*(jd-1)]))
        a(V(f"v_add_u32 v{V_CR+2*(jd-1)+1}, {64*KB}, v{V_CR+2*(jd-1)}", [V_CR+2*(jd-1)], [V_CR+2*(jd-1)+1]))
    a(V(f"v_add_u32 v{V_OL}, {96*KB}, v{T0}", [T0], [V_OL]))
    a(V(f"v_add_u32 v{V_OW}, s{S_W5K}, v{V_OL}", [V_OL, ('s', S_W5K)], [V_OW]))
    a(S(f"s_mov_b32 s{S_T0}, {102*KB}", [], [S_T0]))
    a(V(f"v_lshl_add_u32 v{V_LR}, v{V_N}, 5, s{S_T0}", [V_N, ('s', S_T0)], [V_LR]))
    a(S(f"s_add_u32 s{S_T0}, s{S_W8K}, {64*KB}", [S_W8K], [S_T0]))
    for e in range(2):
        a(V(f"v_subrev_u32 v{V_WT+e}, s{S_T0}, v{V_VA+e}", [V_VA+e, ('s', S_T0)], [V_WT+e]))
        a(V(f"v_add_u32 v{V_WT+2+e}, {64*KB}, v{V_WT+e}", [V_WT+e], [V_WT+2+e]))
        a(V(f"v_add_u32 v{V_WT+4+e}, {128*KB}, v{V_WT+e}", [V_WT+e], [V_WT+4+e]))
    a(S(f"s_lshl_b32 s{S_T0}, s{S_J}, 12", [S_J], [S_T0]))
    a(V(f"v_subrev_u32 v{V_OD}, s{S_T0}, v{V_OST}", [V_OST, ('s', S_T0)], [V_OD]))
    a(S(f"s_lshl_b32 s{S_T0}, s{S_B}, 2", [S_B], [S_T0]))
    a(S(f"s_add_u32 s{S_T0}, s{S_T0}, s{S_J}", [S_T0, S_J], [S_T0]))
    a(V(f"v_and_b32 v{T1}, 7, v{V_LANE}", [V_LANE], [T1]))
    a(S(f"s_lshl_b32 s{S_T0}, s{S_T0}, 2", [S_T0], [S_T0]))
    a(S(f"s_add_u32 s{S_T0}, s{S_T0}, s{S_W}", [S_T0, S_W], [S_T0]))
    a(S(f"s_mul_i32 s{S_T0}, s{S_T0}, {5*8*KB}", [S_T0], [S_T0]))
    a(S(f"s_lshl_b32 s{S_T2}, s{S_HKV}, 10", [S_HKV], [S_T2]))
    a(S(f"s_add_u32 s{S_T2}, s{S_T2}, s{S_T0}", [S_T2, S_T0], [S_T2]))
    a(V(f"v_add_u32 v{V_PS}, s{S_T2}, v{T0}", [T0, ('s', S_T2)], [V_PS]))
    a(V(f"v_lshl_add_u32 v{T1}, s{S_HKV}, 3, v{T1}", [T1, ('s', S_HKV)], [T1]))
    a(V(f"v_lshrrev_b32 v{T2}, 3, v{V_LANE}", [V_LANE], [T2]))
    a(V(f"v_lshl_add_u32 v{V_PLD}, v{T1}, 4, s{S_T0}", [T1, ('s', S_T0)], [V_PLD]))
    a(V(f"v_lshl_add_u32 v{V_PLD}, v{T2}, 13, v{V_PLD}", [T2, V_PLD], [V_PLD]))
    a(V(f"v_lshlrev_b32 v{T2}, 14, v{T2}", [T2], [T2]))
    a(V(f"v_and_b32 v{T0}, 15, v{T1}", [T1], [T0]))
    a(V(f"v_lshl_add_u32 v{T2}, v{T0}, 10, v{T2}", [T0, T2], [T2]))
    a(V(f"v_lshrrev_b32 v{T1}, 4, v{T1}", [T1], [T1]))
    a(V(f"v_lshl_add_u32 v{T2}, v{T1}, 3, v{T2}", [T1, T2], [T2]))
    a(S(f"s_mul_i32 s{S_T0}, s{S_B}, 81920", [S_B], [S_T0]))
    a(S(f"s_lshl_b32 s{S_T2}, s{S_J}, 8", [S_J], [S_T2]))
    a(S(f"s_add_u32 s{S_T0}, s{S_T0}, s{S_T2}", [S_T0, S_T2], [S_T0]))
    a(S(f"s_lshl_b32 s{S_T2}, s{S_W}, 6", [S_W], [S_T2]))
    a(S(f"s_add_u32 s{S_T0}, s{S_T0}, s{S_T2}", [S_T0, S_T2], [S_T0]))
    a(V(f"v_add_u32 v{V_OUT}, s{S_T0}, v{T2}", [T2, ('s', S_T0)], [V_OUT]))
    a(V(f"v_cmp_gt_u32 vcc, 40, v{V_LANE}", [V_LANE], [VCC]))
    a(V(f"v_mov_b32 v{T0}, 0x7ff00000", [], [T0]))
    a(V(f"v_cndmask_b32 v{V_PLD}, v{T0}, v{V_PLD}, vcc", [T0, V_PLD, VCC], [V_PLD]))
    a(V(f"v_cndmask_b32 v{V_OUT}, v{T0}, v{V_OUT}, vcc", [T0, V_OUT, VCC], [V_OUT]))
    for pv_, n_, sh, sg_ in ((V_P1, 4, 9, S_G1), (V_P2, 8, 11, S_G2)):
        a(V(f"v_lshl_add_u32 v{pv_}, v{V_LANE}, {sh}, s{sg_}", [V_LANE, ('s', sg_)], [pv_]))
        a(V(f"v_cmp_gt_u32 vcc, {n_}, v{V_LANE}", [V_LANE], [VCC]))
        a(V(f"v_cndmask_b32 v{pv_}, v{T0}, v{pv_}, vcc", [T0, pv_, VCC], [pv_]))
    for k in range(5): a(S(f"s_mov_b32 s{S_TAB+k}, {k*8192}", [], [S_TAB+k]))
    return o
def wod_calc():
    o = []; a = o.append
    T0, T1 = 252, 253
    a(S(f"s_lshl_b32 s{S_T0}, s{S_B}, 2", [S_B], [S_T0]))
    a(S(f"s_add_u32 s{S_T0}, s{S_T0}, s{S_W}", [S_T0, S_W], [S_T0]))
    a(S(f"s_lshl_b32 s{S_T0}, s{S_T0}, 14", [S_T0], [S_T0]))
    a(S(f"s_lshl_b32 s{S_T2}, s{S_J}, 8", [S_J], [S_T2]))
    a(S(f"s_add_u32 s{S_T0}, s{S_T0}, s{S_T2}", [S_T0, S_T2], [S_T0]))
    a(V(f"v_bfe_u32 v{T0}, v{V_LANE}, 1, 4", [V_LANE], [T0]))
    a(V(f"v_and_b32 v{T1}, 1, v{V_LANE}", [V_LANE], [T1]))
    a(V(f"v_lshlrev_b32 v{T1}, 7, v{T1}", [T1], [T1]))
    a(V(f"v_lshl_add_u32 v{T0}, v{T0}, 10, v{T1}", [T0, T1], [T0]))
    a(V(f"v_add_u32 v{V_TCH}, s{S_T0}, v{T0}", [T0, ('s', S_T0)], [V_TCH]))
    a(S(f"s_and_b32 s{S_T0}, s{S_W}, 1", [S_W], [S_T0]))
    a(S(f"s_lshl_b32 s{S_T0}, s{S_T0}, 3", [S_T0], [S_T0]))
    a(V(f"v_lshl_add_u32 v{T0}, v{V_G}, 1, s{S_T0}", [V_G, ('s', S_T0)], [T0]))
    a(V(f"v_xor_b32 v{T0}, v{V_N}, v{T0}", [V_N, T0], [T0]))
    a(S(f"s_lshl_b32 s{S_T0}, s{S_J}, 8", [S_J], [S_T0]))
    a(V(f"v_lshl_add_u32 v{T0}, v{T0}, 4, s{S_T0}", [T0, ('s', S_T0)], [T0]))
    a(V(f"v_lshl_add_u32 v{T1}, s{S_W}, 2, v{V_G}", [V_G, ('s', S_W)], [T1]))
    a(V(f"v_lshl_add_u32 v{V_WOD}, v{T1}, 10, v{T0}", [T0, T1], [V_WOD]))
    return o

def phase_b(sg, Q, qr):
    NT = 8
    calc = wod_calc() + tail_calc()
    sg.addall(qr[:4])
    qr = qr[4:]
    for tau in range(-1, 40):
        i, q = divmod(tau, 5) if tau >= 0 else (-1, 4)
        mf = []
        bst = [int(x) for x in opt.bst.split(',')]
        if tau in bst: stamp(sg, 5 + bst.index(tau), 'B')
        if tau + 1 < 40: mf += qk(tau + 1)
        if tau - 1 >= 0: mf += pv(tau - 1)
        ds, marks = [], []
        if tau == -1: ds = qr
        elif tau == 0: ds = v_reads(0); marks = [('vr', 0, 0), ('vr', 0, 1)]
        elif tau < 27:
            if q == 2: ds = k_reads(i + 1)[:4]; marks = [('kr', i + 1, 0)]
            if q == 3: ds = k_reads(i + 1)[4:] + v_reads(i + 1)[:2]; marks = [('kr', i + 1, 1)]
            if q == 4: ds = v_reads(i + 1)[2:8]; marks = [('vr', i + 1, 0)]
            if q == 0: ds = v_reads(i)[8:14]
            if q == 1 and i > 0: ds = v_reads(i)[14:]; Q.mark(('vr', i, 1))
        xp = None
        if tau >= 27:
            k6, k7, v6, v7 = k_reads(6), k_reads(7), v_reads(6), v_reads(7)
            vo = [v7[l + 8 * h] for l in range(8) for h in range(2)]
            G = [1, 3, 5, 7, 9, 11, 13, 15, 16]
            def cwp(q_, second):
                w_ = comb_writes(q_)
                if int(opt.w64) and q_ < 2:
                    h_ = []
                    for x in w_[1:]:
                        m_ = re.match(r"ds_write_b128 v(\d+), a\[(\d+):\d+\] offset:(\d+)", x.t)
                        for z in range(2): h_.append(dswr('ds_write_b64', int(m_.group(1)), ('a', int(m_.group(2)) + 2 * z), 2, int(m_.group(3)) + 8 * z, lgtag=x.lgtag))
                    return list(zip([1, 3, 5, 9, 13, 16], h_[6:])) if second else list(zip([7, 1, 3, 5, 9, 13, 16], [w_[0]] + h_[:6]))
                return list(zip([1, 9, 13], w_[4:])) if second else list(zip([7, 1, 9, 13], w_[:4]))
            xp = {27: list(zip([3, 5, 9, 11, 15, 16], k6[:4] + v6[:2])),
                  28: list(zip([1, 3, 5, 7, 9, 11, 13, 15, 16], k6[4:] + k7[:5])),
                  29: list(zip(G, k7[5:] + v6[2:8])),
                  30: list(zip([1, 3, 5, 7, 9, 11, 13, 15, 16, 16], v6[8:] + vo[:2])),
                  31: list(zip([1, 1, 3, 5, 5, 7, 9, 9, 11, 13, 13, 15, 16, 16], vo[2:])),
                  32: [], 33: cwp(0, 0), 34: cwp(0, 1), 35: cwp(1, 0), 36: cwp(1, 1), 37: cwp(2, 0),
                  38: cwp(2, 1) + list(zip([3, 5, 5, 7, 11, 15, 16, 16], lreads((0, 1)) + preads(0)[:4])),
                  39: list(zip([0, 2, 4, 6], comb_writes(3)[:4])) + list(zip([1, 1, 3, 3, 5, 5, 7, 7], preads(0)[4:] + preads(1)))}[tau]
            ds = [x for _, x in xp]; marks = []
            if tau == 38:
                b = barrier(needvm=[('wo', -1)], lg0=False); b.needlg = (('cw', 0), ('cw', 1)); sg.add(b)
        n = len(mf)
        gaps = [[] for _ in range(n)]
        e, c = sm(tau) if 0 <= tau < 40 else ([], [])
        if n == 17:
            epos = [0, 2, 4, 6, 8, 10, 12, 14]; cpos = [3, 7, 11, 15]
            dpos = [1, 3, 5, 7, 9, 11, 13, 15] if len(ds) > 4 else [1, 3, 5, 7]
            if ds and ds[0].k == 'dswr': dpos = [1, 1, 3, 7, 9, 13, 16]
            vpos = [1, 5, 9, 13] if (tau < int(opt.even_at) or q == 1) else [1, 7, 13]
            if int(opt.bsched) and not (ds and ds[0].k == 'dswr'):
                if q == 1: dpos, vpos = [1, 3], [5, 9, 13, 16]
                elif tau < int(opt.even_at): dpos, vpos = [3, 7, 11, 15, 16, 16], [1, 5, 9, 13]
                else: dpos, vpos = [3, 5, 9, 11, 15, 16], [1, 7, 13]
        else:
            epos = list(range(8)); cpos = [min(n - 1, x) for x in (2, 4, 6, 8)]
            dpos = [(k * n) // max(1, len(ds)) for k in range(len(ds))]
            vpos = [1, 5]
        if xp is not None:
            dpos = [g_ for g_, _ in xp]; vpos = [7, 11, 15] if tau >= 32 else [13]
            if tau == 27: vpos = [1, 7, 13]
        for x, p_ in zip(ds, dpos): gaps[p_].append(x)
        if tau == int(opt.nl_at):
            sg.add(V("v_mov_b32 v9, 0", [], [9]))
            Q.q.insert(0, Item([], vload(('v', V_GC), 2, 9, S_D, None, 0, flags=' sc1', tag='non')))
        if tau == int(opt.nc_at):
            assert not any(it.ins.vmtag == 'non' for it in Q.q)
            sg.add(V(f"v_readfirstlane_b32 s{S_NON}, v{V_GC}", [V_GC], [('s', S_NON)]))
            sg.add(V(f"v_readfirstlane_b32 s{S_NON+1}, v{V_GC+1}", [V_GC+1], [('s', S_NON+1)]))
            sg.add(S(f"s_cmp_eq_u64 s[{S_NON}:{S_NON+1}], 0", [S_NON, S_NON+1], []))
            sg.text("s_cbranch_scc1 L_spin_n"); sg.text("L_back_n:")
        if tau == int(opt.bar_at): sg.add(barrier(lg0=False))
        for x in ds:
            while any(it.ins.vmtag in x.needvm for it in Q.q): weave(sg, Q, [], 1, 0)
        if tau == int(opt.tch_at): Q.push([Item([], vload(('v', V_TCH + 1), 1, V_TCH, S_WO, None, 0, flags=opt.tch_flags))])
        if tau == int(opt.tlb_at):
            Q.push([Item([], vload(('v', 72), 1, V_ZERO, S_C, S_F1, 0, flags=' sc1')), Item([], vload(('v', 73), 1, V_ZERO, S_C, S_F2, 0, flags=' sc1'))])
        if tau == int(opt.wo_at): assert not calc; Q.push(wo_dma(-1))
        place(gaps, Q, vpos)
        for x, p_ in zip(e, epos): gaps[p_].append(x)
        for x, p_ in zip(c, cpos): gaps[p_].append(x)
        if tau >= int(opt.calc_at) and n == 17:
            for gi in range(17):
                if calc and calc[0].k == 'salu' and not any(y.k == 'salu' for y in gaps[gi]): gaps[gi].insert(0, calc.pop(0))
                cost = sum(8 if y.k == 'trans' else 0 if y.k == 'salu' else 4 for y in gaps[gi])
                while calc and calc[0].k != 'salu' and cost <= 4: gaps[gi].append(calc.pop(0)); cost += 4
        sg.addall(interleave(mf, gaps))
        for m in marks: Q.mark(m)

def poll(sg, lab, vaddr):
    sg.text(f"s_mov_b32 s{S_SPIN}, {opt.spin}")
    sg.text(f"{lab}:")
    sg.text(f"buffer_load_dwordx2 v[250:251], v{vaddr}, s[{S_C}:{S_C+3}], 0 offen sc1")
    sg.text(f"s_sub_u32 s{S_SPIN}, s{S_SPIN}, 1")
    sg.text("s_waitcnt vmcnt(0)")
    sg.text(f"v_cmp_ne_u64 vcc, s[{S_NON}:{S_NON+1}], v[250:251]")
    sg.text(f"s_cmp_eq_u32 s{S_SPIN}, 0")
    sg.text(f"s_cbranch_scc1 {lab}_done")
    sg.text("s_nop 2")
    sg.text(f"s_cbranch_vccnz {lab}")
    sg.text(f"{lab}_done:")
    sg.vm = []
def raise_flag(sg, stage, tag):
    ins = vstore(('v', V_GC), 2, V_P1 if stage == 1 else V_P2, S_C, None, 0, flags=' sc1')
    ins.needvm = (tag,)
    sg.add(ins)
WOF = A_Q
RES = 100
def part(q, k):
    if q == 0: return 36 + 4 * k if k < 4 else 64 + 4 * (k - 4)
    return {1: 100, 2: 164, 3: 188, 4: 100}[q] + 4 * k
def preads(q):
    o = []
    for jd in range(1, 4):
        for e in range(2):
            k = (jd - 1) * 2 + e; u = q * 6 + k; row = u >> 3
            o.append(dsrd('ds_read_b128', ('v', part(q, k)), 4, V_CR + 2 * (jd - 1) + (row >> 1), (row & 1) * 32 * KB + (u & 7) * KB))
    return o
LSA, LSB = 124, 76
def lreads(qs):
    if qs == (0, 1): return [dsrd('ds_read_b64', ('v', LSA + src * 2), 2, V_LR, src * 8 * KB) for src in range(4)]
    return [dsrd('ds_read_b128', ('v', LSB + src * 4), 4, V_LR, src * 8 * KB + 16) for src in range(4)]
def lsum(qs):
    w = []
    def lr(src, q): return LSA + src * 2 + q if q < 2 else LSB + src * 4 + q - 2
    LS = lr(0, qs[0])
    for q in qs:
        d = V_T0 + q
        w.append(V(f"v_add_f32 v{d}, v{lr(0,q)}, v{lr(1,q)}", [lr(0,q), lr(1,q)], [d]))
        w.append(V(f"v_add_f32 v{lr(2,q)}, v{lr(2,q)}, v{lr(3,q)}", [lr(2,q), lr(3,q)], [lr(2,q)]))
        w.append(V(f"v_add_f32 v{d}, v{d}, v{lr(2,q)}", [d, lr(2,q)], [d]))
    a_, b_, c_ = V_T0 + qs[0], V_T0 + qs[1], V_T0 + qs[-1]
    w.append(V(f"v_min3_f32 v{LS}, v{a_}, v{b_}, v{c_}", [a_, b_, c_], [LS]))
    w.append(V(f"v_add_f32 v{LS+1}, v{a_}, v{b_}", [a_, b_], [LS+1]))
    w.append(V(f"v_add_f32 v{LS+1}, v{LS+1}, v{c_}", [LS+1, c_], [LS+1]))
    w.append(V(f"v_cmp_nle_f32 vcc, {f2h(2.0**int(opt.lo_exp))}, v{LS}", [LS], [VCC]))
    w.append(S(f"s_mov_b64 s[{S_EX}:{S_EX+1}], vcc", [VCC], [S_EX, S_EX+1]))
    w.append(V(f"v_cmp_nge_f32 vcc, {f2h(2.0**int(opt.hi_exp))}, v{LS+1}", [LS+1], [VCC]))
    w.append(S(f"s_or_b64 vcc, vcc, s[{S_EX}:{S_EX+1}]", [VCC, S_EX, S_EX+1], [VCC]))
    w.append(S(f"s_and_b64 vcc, vcc, s[{S_GM}:{S_GM+1}]", [VCC], [VCC]))
    w.append(raw("s_cbranch_vccnz L_redo"))
    for q in qs: w.append(T(f"v_rcp_f32 v{V_T0+q}, v{V_T0+q}", [V_T0+q], [V_T0+q]))
    return w
def finish(q):
    w = []
    for e in range(2):
        o_ = V_OWN[q] + e * 4
        for jd in range(1, 4):
            p_ = part(q, (jd - 1) * 2 + e)
            for r in (0, 2):
                w.append(V(f"v_pk_add_f32 v[{o_+r}:{o_+r+1}], v[{o_+r}:{o_+r+1}], v[{p_+r}:{p_+r+1}]", [o_+r, o_+r+1, p_+r, p_+r+1], [o_+r, o_+r+1]))
    o_ = V_OWN[q]
    ri = V_T0 + (q & ~1); sel = "op_sel:[0,1] op_sel_hi:[1,1]" if q & 1 else "op_sel:[0,0] op_sel_hi:[1,0]"
    for r in range(0, 8, 2):
        w.append(V(f"v_pk_mul_f32 v[{o_+r}:{o_+r+1}], v[{o_+r}:{o_+r+1}], v[{ri}:{ri+1}] {sel}", [o_+r, o_+r+1, V_T0+q], [o_+r, o_+r+1]))
    for r in range(4):
        w.append(V(f"v_cvt_pk_bf16_f32 v{o_+r}, v{o_+2*r}, v{o_+2*r+1}", [o_+2*r, o_+2*r+1], [o_+r]))
    w.append(S(f"s_mov_b32 s{S_SV}, {q*128*KB}", [], [S_SV]))
    w.append(vstore(('v', o_), 4, V_OST, S_O, S_SV, 0, flags=opt.o_flags, tag='ost'))
    return w
def wor():
    return [dsrd('ds_read_b64_tr_b16', ('a', WOF + (ks * 2 + e) * 4 + h * 2), 2, V_WT + 4 + e, ks * 8 * KB + h * 4096) for ks in range(4) for e in range(2) for h in range(2)]
def combine(sg, Q):
    assert not Q.q
    mf = pv(39); gaps = [[] for _ in mf]
    wr = comb_writes(3)[4:]; ls = lsum((0, 1))
    for k, x in enumerate(wr): gaps[3 * k].append(x)
    k = 0
    for gi in range(9):
        n_ = 2 - len(gaps[gi])
        while ls and (n_ > 0 or ls[0].k == 'salu') and gi < 9:
            x = ls.pop(0); gaps[gi].append(x)
            n_ -= 0 if x.k == 'salu' else 2 if x.k == 'trans' else 1
    sg.addall(interleave(mf, gaps))
    stamp(sg, 4)
    w4 = comb_writes(4)
    w = ls + finish(0) + finish(1)
    for k, x in enumerate(w4): w.insert(min(len(w), 6 + k * 6), x)
    sg.addall(w)
    sg.add(barrier())
    stamp(sg, 5)
    Q.push(wo_dma(0))
    rd = lreads((2, 3, 4)) + preads(2) + preads(3)
    weave(sg, Q, rd, int(opt.cw), 2)
    sg.addall(rd)
    w = lsum((2, 3, 4)) + preads(4) + finish(2) + finish(3) + finish(4)
    for k, x in enumerate(wor()): w.insert(30 + 3 * k, x)
    sg.addall(w)
    stamp(sg, 6)

def phase_c(sg, Q):
    a = sg.add
    ACC = 164
    a(barrier())
    stamp(sg, 5, 'D')
    for q in range(5): a(dswr('ds_write_b128', V_OW, ('v', V_OWN[q]), 4, q * KB))
    Q.push(wo_dma(1) + wo_dma(2))
    weave(sg, Q, [], int(opt.shadow), 0)
    stamp(sg, 6, 'D')
    a(barrier())
    def CF(k): return [(100, 120), (64, 84), (204, 36)][k % 3]
    def c_reads(k):
        pos, ks = divmod(k, 4); pos -= 1
        xf, wf = CF(k)
        ob = 0 if pos < 0 else (44 - 20 * pos) * KB
        xr = [dsrd('ds_read_b128', ('v', xf + q * 4), 4, V_OL, ob + (ks * 5 + q) * KB) for q in range(5)]
        if pos < 0: return xr
        wb = (pos * 4 + ks) * 8 * KB
        wr = [dsrd('ds_read_b64_tr_b16', ('v', wf + e * 4 + h * 2), 2, V_WT + (2 if wb >= 64 * KB else 0) + e, (wb % (64 * KB)) + h * 4096) for e in range(2) for h in range(2)]
        return wr[:2] + xr[:1] + wr[2:] + xr[1:]
    def c_mfmas(k):
        xf, wf = CF(k)
        ff = 'v'
        if k < 4: wf, ff = WOF + k * 8, 'a'
        o = []
        for q in range(5):
            for e in range(2):
                d = ('v', ACC + (q * 2 + e) * 4)
                o.append(mfma(d, (ff, wf + e * 4), ('v', xf + q * 4), 0 if k == 0 else d))
        o[0].r |= set(R('v', xf, 20) + R(ff, wf, 8))
        return o
    def step(k, nx, pos=()):
        mf = c_mfmas(k); gaps = [[] for _ in mf]
        if nx is not None:
            for i, r in enumerate(c_reads(nx)): gaps[i].append(r)
        place(gaps, Q, pos)
        sg.addall(interleave(mf, gaps))
    def own_steps():
        for k in range(4): step(k, k + 2 if k < 2 else None, [1, 5, 9] if k % 2 == 0 else [3, 7])
    sg.addall(c_reads(0)); sg.addall(c_reads(1))
    raise_flag(sg, 1, 'ost')
    stamp(sg, 7, 'D'); stamp(sg, 7)
    weave(sg, Q, [], len(Q.q), 0)
    stamp(sg, 8, 'D')
    t = [f"s_mov_b32 s{S_SPIN}, {opt.spin}", "L_poll1:", f"s_load_dwordx8 s[4:11], s[{S_C}:{S_C+1}], s{S_F1} glc", f"s_sub_u32 s{S_SPIN}, s{S_SPIN}, 1", "s_waitcnt lgkmcnt(0)",
         f"s_cmp_eq_u32 s{S_SPIN}, 0", "s_cbranch_scc1 L_poll1_done"]
    t += [f"s_lshl_b32 s{S_T0}, 1, s{S_J}"]
    for h in range(4): t += [f"s_cmp_eq_u64 s[{4+2*h}:{5+2*h}], s[{S_NON}:{S_NON+1}]", f"s_cselect_b32 s{S_T1}, {1 << h}, 0", f"s_or_b32 s{S_T0}, s{S_T0}, s{S_T1}"]
    t += [f"s_cmp_lg_u32 s{S_T0}, 15", "s_cbranch_scc1 L_poll1", "L_poll1_done:"]
    for x in t: sg.text(x)
    sg.lg = []
    stamp(sg, 9, 'D')
    stamp(sg, 5, 'E')
    stamp(sg, 8)
    Q.push(osib_dma(0) + osib_dma(1))
    weave(sg, Q, [], 5, 0); own_steps()
    weave(sg, Q, [], len(Q.q), 0)
    stamp(sg, 6, 'E')
    a(barrier(needvm=[('os', 0), ('wo', 0), ('wo', 1)]))
    stamp(sg, 7, 'E')
    Q.push(osib_dma(2))
    sg.addall(c_reads(4)); sg.addall(c_reads(5))
    def pfin(q):
        b = ACC + q * 8
        return [V(f"v_cvt_pk_bf16_f32 v{b+r}, v{b+2*r}, v{b+2*r+1}", [b+2*r, b+2*r+1], [b+r]) for r in range(4)] + [vstore(('v', b), 4, V_PS, S_WT, S_TAB + q, 0, flags=' sc1', tag='pst')]
    last = 16 - (2 if int(opt.qmaj) else 0)
    for k in range(4, last):
        nx = k + 2 if k + 2 < 16 else None
        if nx in (8, 12):
            assert not Q.q or nx == 8
            a(barrier(needvm=[('os', nx // 4 - 1), ('wo', nx // 4 - 1)], lg0=False))
            stamp(sg, 8 if nx == 8 else 9, 'E')
        step(k, nx, [1, 5, 9] if k % 2 == 0 else [3, 7])
    if int(opt.qmaj):
        m14, m15 = c_mfmas(14), c_mfmas(15)
        m15[0].r -= set(R('v', CF(15)[0] + 4, 16))
        mf = flat([[m14[2*q], m15[2*q], m14[2*q+1], m15[2*q+1]] for q in range(5)])
        gaps = [[] for _ in mf]
        for q in range(4):
            f_ = pfin(q)
            g0 = 4 * q + 6
            if g0 + 2 < 20:
                gaps[g0] += f_[0:2]; gaps[g0 + 1] += f_[2:4]; gaps[g0 + 2] += f_[4:]
        sg.addall(interleave(mf, gaps))
        stamp(sg, 9)
        sg.addall(pfin(3) + pfin(4))
    else:
        stamp(sg, 9)
        for q in range(5): sg.addall(pfin(q))
    a(S(f"s_mov_b32 s{S_SO}, 4096", [], [S_SO]))
    a(S(f"s_mov_b32 s{S_T1}, 0xffff0000", [], [S_T1]))
    a(S(f"s_mov_b32 s{S_SPIN}, {opt.spin}", [], [S_SPIN]))
    a(S(f"s_mov_b32 s{S_T2}, 0", [], [S_T2]))
    a(S(f"s_mov_b32 s{S_SK}, 0", [], [S_SK]))
    if int(opt.f2wg):
        a(barrier(needvm=['pst'], lg0=False))
        sg.text(f"s_cmp_lg_u32 s{S_W}, 0"); sg.text("s_cbranch_scc1 L_sig2"); raise_flag(sg, 2, 'pst'); sg.text("L_sig2:")
    else: raise_flag(sg, 2, 'pst')
    stamp(sg, 5, '2')
    PB, SM = 100, 132
    def pl(h): return vload(('v', PB + 4 * h), 4, V_PLD, S_WT, S_SO if h >= 4 else None, (h & 3) * 1024, flags=' sc1')
    t = ["L_poll2:", f"s_load_dwordx16 s[4:19], s[{S_C}:{S_C+1}], s{S_F2} glc", f"s_cmp_eq_u32 s{S_SK}, 0", "s_cbranch_scc1 L_nounp", "L_unp:", "s_waitcnt vmcnt(0)"]
    for h in range(8):
        t += [f"s_bitcmp1_b32 s{S_SK}, {h}", f"s_cbranch_scc0 L_u{h}"]
        for r in range(4): t += [f"v_lshlrev_b32 v{SM+8*h+2*r}, 16, v{PB+4*h+r}", f"v_and_b32 v{SM+8*h+2*r+1}, s{S_T1}, v{PB+4*h+r}"]
        t += [f"L_u{h}:"]
    t += [f"s_cmp_eq_u32 s{S_T2}, 0xff", "s_cbranch_scc1 L_poll2_done", "L_nounp:", f"s_mov_b32 s{S_SK}, 0", f"s_sub_u32 s{S_SPIN}, s{S_SPIN}, 1", "s_waitcnt lgkmcnt(0)",
          f"s_cmp_eq_u32 s{S_SPIN}, 0", "s_cbranch_scc1 L_poll2_done"]
    for h in range(8):
        t += [f"s_cmp_lg_u64 s[{4+2*h}:{5+2*h}], s[{S_NON}:{S_NON+1}]", f"s_cbranch_scc1 L_g{h}", f"s_bitcmp1_b32 s{S_T2}, {h}", f"s_cbranch_scc1 L_g{h}",
              f"s_bitset1_b32 s{S_T2}, {h}", f"s_bitset1_b32 s{S_SK}, {h}", pl(h).t, f"L_g{h}:"]
    t += [f"s_cmp_lg_u32 s{S_T2}, 0xff", "s_cbranch_scc1 L_poll2", "s_branch L_unp", "L_poll2_done:"]
    if not int(opt.unp):
        t = ["L_poll2:", f"s_load_dwordx16 s[4:19], s[{S_C}:{S_C+1}], s{S_F2} glc", f"s_sub_u32 s{S_SPIN}, s{S_SPIN}, 1", "s_waitcnt lgkmcnt(0)", f"s_cmp_eq_u32 s{S_SPIN}, 0", "s_cbranch_scc1 L_poll2_done"]
        for h in range(8):
            t += [f"s_cmp_lg_u64 s[{4+2*h}:{5+2*h}], s[{S_NON}:{S_NON+1}]", f"s_cbranch_scc1 L_g{h}", f"s_bitcmp1_b32 s{S_T2}, {h}", f"s_cbranch_scc1 L_g{h}",
                  f"s_bitset1_b32 s{S_T2}, {h}", f"s_bitset1_b32 s{S_SK}, {h}", pl(h).t, f"L_g{h}:"]
        t += [f"s_cmp_eq_u32 s{S_T2}, 0xff", "s_cbranch_scc1 L_poll2_done", f"s_mov_b32 s{S_SK}, 0", "s_branch L_poll2", "L_poll2_done:"]
        t += ["s_waitcnt vmcnt(0)"]
        for h in range(8):
            for r in range(4): t += [f"v_lshlrev_b32 v{SM+8*h+2*r}, 16, v{PB+4*h+r}", f"v_and_b32 v{SM+8*h+2*r+1}, s{S_T1}, v{PB+4*h+r}"]
    for x in t: sg.text(x)
    sg.vm = []
    stamp(sg, 6, '2')
    for h in range(1, 8):
        for r in range(0, 8, 2):
            u = SM + 8 * h + r
            a(V(f"v_pk_add_f32 v[{SM+r}:{SM+r+1}], v[{SM+r}:{SM+r+1}], v[{u}:{u+1}]", [SM+r, SM+r+1, u, u+1], [SM+r, SM+r+1]))
    for r in range(4):
        a(V(f"v_cvt_pk_bf16_f32 v{SM+r}, v{SM+2*r}, v{SM+2*r+1}", [SM+2*r, SM+2*r+1], [SM+r]))
    a(vstore(('v', SM), 2, V_OUT, S_OUT, None, 0, flags=opt.out_flags))
    a(vstore(('v', SM + 2), 2, V_OUT, S_OUT, None, 32, flags=opt.out_flags))

def out_of_line():
    t = []
    t += ["L_spin_n:", f"s_mov_b32 s{S_SPIN}, {opt.spin}", "L_spin_n1:",
          f"buffer_load_dwordx2 v[{V_GC}:{V_GC+1}], v9, s[{S_D}:{S_D+3}], 0 offen sc1", f"s_sub_u32 s{S_SPIN}, s{S_SPIN}, 1", "s_waitcnt vmcnt(0)",
          f"v_readfirstlane_b32 s{S_NON}, v{V_GC}", f"v_readfirstlane_b32 s{S_NON+1}, v{V_GC+1}", f"s_cmp_eq_u32 s{S_SPIN}, 0", "s_cbranch_scc1 L_back_n", "s_nop 2",
          f"s_cmp_eq_u64 s[{S_NON}:{S_NON+1}], 0", "s_cbranch_scc1 L_spin_n1", "s_branch L_back_n"]
    t += ["L_redo:", f"s_mov_b64 s[{S_GM}:{S_GM+1}], 0", f"s_mov_b32 s{S_REDO}, 1",
          "s_waitcnt vmcnt(0) lgkmcnt(0)", "s_barrier"]
    sg = Seg()
    p1 = prologue1()
    a = sg.add
    a(V(f"v_lshl_add_u32 v{V_T0}, s{S_W}, 2, v{V_G}", [V_G], [V_T0]))
    a(V(f"v_xor_b32 v{V_T1}, v{V_N}, v{V_T0}", [V_N, V_T0], [V_T1]))
    a(V(f"v_lshlrev_b32 v{V_T1}, 4, v{V_T1}", [V_T1], [V_T1]))
    a(V(f"v_lshl_add_u32 v{V_XD}, v{V_T0}, 10, v{V_T1}", [V_T0, V_T1], [V_XD]))
    a(S(f"s_and_b32 s{S_T0}, s{S_W}, 2", [S_W], [S_T0]))
    a(S(f"s_lshl_b32 s{S_T0}, s{S_T0}, 2", [S_T0], [S_T0]))
    a(V(f"v_lshl_add_u32 v{V_T1}, v{V_G}, 1, s{S_T0}", [V_G], [V_T1]))
    a(V(f"v_xor_b32 v{V_T1}, v{V_N}, v{V_T1}", [V_N, V_T1], [V_T1]))
    a(V(f"v_lshlrev_b32 v{V_T1}, 4, v{V_T1}", [V_T1], [V_T1]))
    a(V(f"v_lshl_add_u32 v{V_WD}, v{V_T0}, 13, v{V_T1}", [V_T0, V_T1], [V_WD]))
    t += sg.out + ["s_nop 4", "s_branch L_restart"]
    sg = Seg(); a = sg.add
    sg.text("L_max:")
    sg.text(f"s_mov_b32 s{S_SPIN}, m0")
    sg.drain()
    sg.text("s_barrier")
    MX, KF, AD = 76, V_VF, 84
    for q in range(5): a(V(f"v_mov_b32 v{MX+q}, 0xff800000", [], [MX+q]))
    for s in range(4): a(V(f"v_add_u32 v{AD+s}, {96*KB}, v{V_KA+s}", [V_KA+s], [AD+s]))
    a(S(f"s_mov_b32 s{S_T2}, 0", [], [S_T2]))
    sg.text("L_max_loop:"); sg.reset_hist()
    for j in range(8):
        if j % 4 == 0:
            a(S(f"s_add_u32 s{S_T1}, s{S_T2}, {(j>>2)*4096}", [S_T2], [S_T1]))
            a(S(f"s_add_u32 m0, s{S_W8K}, {96*KB + (j>>2)*4096}", [S_W8K], [M0]))
        a(dma(V_KD + (j & 3), S_K, S_T1, 1024 * (j & 3), 'mk'))
    for t_ in range(2):
        for s in range(4):
            a(dsrd('ds_read_b128', ('v', KF + (t_ * 4 + s) * 4), 4, AD + s, t_ * 4096, needvm=['mk']))
    for q in range(5):
        for t_ in range(2):
            d = ('v', 88 + t_ * 4)
            for s in range(4): a(mfma(d, ('v', KF + (t_ * 4 + s) * 4), AQ(q, s), 0 if s == 0 else d))
        for k in range(4):
            a(V(f"v_max3_f32 v{MX+q}, v{MX+q}, v{88+2*k}, v{89+2*k}", [MX+q, 88+2*k, 89+2*k], [MX+q]))
    sg.drain()
    a(S(f"s_add_u32 s{S_T2}, s{S_T2}, 8192", [S_T2], [S_T2]))
    sg.text(f"s_cmp_lt_u32 s{S_T2}, 65536"); sg.text("s_nop 4"); sg.text("s_cbranch_scc1 L_max_loop")
    sg.text("s_barrier")
    a(S(f"s_mul_i32 s{S_T0}, s{S_W}, 1280", [S_W], [S_T0]))
    a(S(f"s_add_u32 s{S_T0}, s{S_T0}, {96*KB}", [S_T0], [S_T0]))
    a(V(f"v_lshl_add_u32 v{AD}, v{V_LANE}, 2, s{S_T0}", [V_LANE], [AD]))
    a(S(f"s_mov_b32 s{S_T0}, {96*KB}", [], [S_T0]))
    a(V(f"v_lshl_add_u32 v{AD+1}, v{V_N}, 2, s{S_T0}", [V_N], [AD+1]))
    for q in range(5): a(dswr('ds_write_b32', AD, ('v', MX + q), 1, q * 256))
    a(barrier())
    for q in range(5):
        for k in range(16):
            a(dsrd('ds_read_b32', ('v', KF + k), 1, AD + 1, (k >> 2) * 1280 + q * 256 + (k & 3) * 64))
        for k in range(8):
            a(V(f"v_max3_f32 v{MX+q}, v{MX+q}, v{KF+2*k}, v{KF+2*k+1}", [MX+q, KF+2*k, KF+2*k+1], [MX+q]))
        for r in range(4):
            a(V(f"v_sub_f32 v{V_NEGM+q*4+r}, 0, v{MX+q}", [MX+q], [V_NEGM+q*4+r]))
    sg.drain()
    sg.text("s_barrier"); sg.text(f"s_mov_b32 m0, s{S_SPIN}"); sg.text("s_nop 4"); sg.text("s_branch L_back_max")
    return t + sg.out

def stamp_out(sg, n):
    if not opt.stamps: return
    stamp(sg, n - 1)
    t = ["s_load_dwordx2 s[4:5], s[0:1], 56", "s_waitcnt lgkmcnt(0)", f"s_add_u32 s4, s4, {16<<20}", "s_addc_u32 s5, s5, 0", "s_and_b32 s5, s5, 0xffff",
         "s_mov_b32 s6, 0x100000", "s_mov_b32 s7, 0x20000", "s_lshl_b32 s8, s2, 2", "s_add_u32 s8, s8, s32", "s_lshl_b32 s8, s8, 6", "v_mov_b32 v2, s8"]
    for i in range(n):
        t += [f"v_mov_b32 v3, s{3 if i == 0 else 76+2*i}", f"buffer_store_dword v3, v2, s[4:7], 0 offen offset:{4*i}"]
    for x in t: sg.text(x)

def kernel():
    sg = Seg()
    sg.text(NAME + "_kernel:")
    sg.text("s_cmp_ge_u32 s2, 256")
    sg.text("s_cbranch_scc1 L_end")
    if opt.stamps:
        stamp(sg, 0)
    p1 = prologue1()
    sg.addall(p1[:2])
    if int(opt.cpf):
        for x in ["s_getpc_b64 s[94:95]", "L_pc:", "s_lshr_b32 s3, s2, 3", "v_lshrrev_b32 v8, 6, v0", "v_and_b32 v9, 1, v0", "v_lshl_add_u32 v8, v8, 1, v9",
                  "v_lshl_add_u32 v8, s3, 3, v8", "v_lshlrev_b32 v8, 7, v8", "v_min_u32 v8, (L_code_end - L_pc - 4) & 0xffffff80, v8"] + (["global_load_dword v255, v8, s[94:95]"] if int(opt.cpf) == 1 else ["s_mov_b64 s[12:13], s[94:95]"]): sg.text(x)
    sg.addall(p1[2:])
    if opt.stamps:
        sg.text("s_mov_b32 s3, s76")
    p2 = prologue2()
    Q = Queue()
    first = x_dma(0) + w_dma(0) if not int(opt.wfirst) else w_dma(0) + x_dma(0)
    stamp(sg, 5, 'P')
    Q.push(first)
    weave(sg, Q, [], 9, 0)
    if int(opt.cpf) == 2: sg.text("global_load_dword v255, v8, s[12:13]")
    stamp(sg, 6, 'P')
    sg.addall(p2)
    stamp(sg, 7, 'P')
    sg.text("s_cmp_lg_u32 s2, 0"); sg.text("s_cbranch_scc1 L_nocz")
    lane0(sg, ["v_mov_b32 v9, 0", f"s_memrealtime s[{S_NON}:{S_NON+1}]", "s_waitcnt lgkmcnt(0)", f"s_or_b32 s{S_NON}, s{S_NON}, 1", f"v_mov_b32 v250, s{S_NON}", f"v_mov_b32 v251, s{S_NON+1}",
               f"buffer_store_dwordx2 v[250:251], v9, s[{S_D}:{S_D+3}], 0 offen sc1"], "L_nocz")
    sg.text("s_branch L_first")
    sg.text("L_restart:")
    s2 = Seg(); s2.addall(restart_setup()); Q2 = Queue(); Q2.push(x_dma(0) + w_dma(0) if not int(opt.wfirst) else w_dma(0) + x_dma(0)); weave(s2, Q2, [], 9, 0)
    for x in s2.out: sg.text(x)
    sg.text("L_first:")
    early, late = prologue3()
    early = early + late
    def BB(u): return f"B{u + 1}"
    Q.push(w_dma(1) + x_dma(1) + w_dma(2) + w_dma(3) + x_dma(2) + w_dma(4) + ((w_dma(5, 'B2') + x_dma(3)) if int(opt.la) else (x_dma(3) + w_dma(5, 'B2'))) + w_dma(6, 'B3') + w_dma(7, 'B4')
           + kv_dma('k', 0, 'B5') + kv_dma('v', 0, 'B6') + kv_dma('k', 1, 'B8') + kv_dma('v', 1, 'BQ'))
    for i in range(2, 8):
        if not int(opt.nodma): Q.push(kv_dma('k', i) + kv_dma('v', i))
    n0 = int(opt.n0) - 9
    weave(sg, Q, early, n0, (len(early) + n0 - 1) // n0)
    sg.addall(early)
    qr = phase_a(sg, Q)
    sg.addall(qr[:0])
    stamp(sg, 3)
    sg.text(f"s_cmp_eq_u32 s{S_REDO}, 0"); sg.text("s_cbranch_scc1 L_back_max")
    s2 = Seg(); s2.addall(qr)
    for x in s2.out: sg.text(x)
    sg.text("s_branch L_max")
    sg.text("L_back_max:")
    phase_b(sg, Q, qr)
    combine(sg, Q)
    phase_c(sg, Q)
    sg.text("L_fin:")
    stamp_out(sg, 11)
    sg.text("L_end:")
    sg.text("s_endpgm")
    return sg.out + ['L_code_end:'] + out_of_line()

def report_kernel():
    idx, mode = opt.report.split(',')
    if mode == 'next':
        return ["report_kernel:", "s_cmp_ge_u32 s2, 1", "s_cbranch_scc1 L3_end", "s_memrealtime s[12:13]", "s_load_dwordx2 s[4:5], s[0:1], 56", "s_waitcnt lgkmcnt(0)",
                f"s_add_u32 s4, s4, {17<<20}", "s_addc_u32 s5, s5, 0", "s_and_b32 s5, s5, 0xffff", "s_mov_b32 s6, 64", "s_mov_b32 s7, 0x20000", "v_mov_b32 v1, 0", "v_mov_b32 v2, s12",
                "buffer_store_dword v2, v1, s[4:7], 0 offen", "L3_end:", "s_endpgm"]
    t = ["report_kernel:", "s_cmp_ge_u32 s2, 1", "s_cbranch_scc1 L3_end", "s_load_dwordx2 s[4:5], s[0:1], 56", "s_waitcnt lgkmcnt(0)",
         f"s_add_u32 s4, s4, {16<<20}", "s_addc_u32 s5, s5, 0", "s_and_b32 s5, s5, 0xffff", "s_mov_b32 s6, 0x100000", "s_mov_b32 s7, 0x20000",
         "v_lshlrev_b32 v1, 8, v0", f"buffer_load_dword v2, v1, s[4:7], 0 offen offset:{4*int(idx)}", "buffer_load_dword v3, v1, s[4:7], 0 offen",
         "v_mov_b32 v4, 0", "v_mov_b32 v5, 0", "v_mov_b32 v6, -1", "ds_write_b32 v4, v5", "ds_write_b32 v4, v6 offset:8", "s_waitcnt vmcnt(0) lgkmcnt(0)", "s_barrier",
         "ds_min_u32 v4, v3 offset:8", "s_waitcnt lgkmcnt(0)", "s_barrier", "ds_read_b32 v6, v4 offset:8", "s_waitcnt lgkmcnt(0)", "v_sub_u32 v2, v2, v6",
         "v_lshrrev_b32 v7, 3, v0", "v_mul_u32_u24 v7, 52, v7", "v_lshrrev_b32 v7, 8, v7", "v_and_b32 v8, 1, v0", "v_sub_u32 v8, 6, v8", "v_cmp_lt_u32 vcc, v7, v8",
         "v_min_u32 v2, 10000, v2",
         ("ds_add_u32 v4, v2" if mode == 'mean' else "ds_max_u32 v4, v2"), "s_waitcnt lgkmcnt(0)", "s_barrier", "ds_read_b32 v6, v4", "s_memrealtime s[12:13]", "s_waitcnt lgkmcnt(0)",
         "v_readfirstlane_b32 s10, v6", "s_nop 4"]
    if mode == 'mean': t += ["s_mul_i32 s10, s10, 10", "s_lshr_b32 s10, s10, 8"]
    elif mode == 'max': t += ["s_mul_i32 s10, s10, 10"]
    else: t += ["s_mov_b32 s10, 0"]
    t += ["L3_spin:", "s_memrealtime s[14:15]", "s_waitcnt lgkmcnt(0)", "s_sub_u32 s14, s14, s12",
          "s_cmp_lt_u32 s14, s10", "s_cbranch_scc1 L3_spin", "L3_end:", "s_endpgm"]
    return t

def build():
    def fmt(l): return "\n".join(x if x.endswith(':') else "    " + x for x in l)
    nm = NAME + "_kernel"
    s = "; @launch grid=(256,1,1) block=(256,1,1) lds=163840\n"
    if opt.report:
        s = f"; @launch kernel={nm} grid=(256,1,1) block=(256,1,1) lds=163840\n; @launch kernel=report_kernel grid=(1,1,1) block=(256,1,1) lds=64\n"
    s += '.amdgcn_target "amdgcn-amd-amdhsa--gfx950"\n.text\n'
    s += f".globl {nm}\n.p2align 8\n.type {nm},@function\n" + fmt(kernel()) + "\n"
    if opt.report: s += ".globl report_kernel\n.p2align 8\n.type report_kernel,@function\n" + fmt(report_kernel()) + "\n"
    s += f""".section .rodata,"a"
.p2align 6
.amdhsa_kernel {nm}
  .amdhsa_next_free_vgpr 512
  .amdhsa_next_free_sgpr 102
  .amdhsa_accum_offset 256
  .amdhsa_group_segment_fixed_size 0
  .amdhsa_kernarg_size 64
  .amdhsa_user_sgpr_count 2
  .amdhsa_user_sgpr_kernarg_segment_ptr 1
  .amdhsa_system_sgpr_workgroup_id_x 1
  .amdhsa_float_denorm_mode_32 3
.end_amdhsa_kernel
"""
    if opt.report:
        s += """.p2align 6
.amdhsa_kernel report_kernel
  .amdhsa_next_free_vgpr 32
  .amdhsa_next_free_sgpr 32
  .amdhsa_accum_offset 32
  .amdhsa_group_segment_fixed_size 0
  .amdhsa_kernarg_size 64
  .amdhsa_user_sgpr_count 2
  .amdhsa_user_sgpr_kernarg_segment_ptr 1
  .amdhsa_system_sgpr_workgroup_id_x 1
.end_amdhsa_kernel
"""
    return s

if __name__ == '__main__':
    out = sys.argv[1] if len(sys.argv) > 1 else 'cdna_kernels/' + NAME + '.s'
    for a_ in sys.argv[2:]:
        k, v = a_.split('=', 1)
        setattr(opt, k, (' ' + v) if k.endswith('flags') and v else v)
    txt = build()
    open(out, 'w').write(txt)
```

```python
class I:
    __slots__ = ('t', 'k', 'r', 'w', 'vmtag', 'needvm', 'needlg', 'lgtag', 'cr')
    def __init__(s, t, k, r=(), w=(), vmtag=None, needvm=(), lgtag=None, needlg=(), cr=()):
        s.t = t; s.k = k; s.r = set(r); s.w = set(w); s.vmtag = vmtag; s.needvm = tuple(needvm)
        s.lgtag = lgtag; s.needlg = tuple(needlg); s.cr = set(cr)

def R(f, a, n=1):
    return [(f, a + i) for i in range(n)]
def rs(f, a, n=1):
    return f"{f}{a}" if n == 1 else f"{f}[{a}:{a+n-1}]"

def mfma(d, a, b, c):
    ct = '0' if c == 0 else rs(c[0], c[1], 4)
    cr = [] if c == 0 else R(c[0], c[1], 4)
    return I(f"v_mfma_f32_16x16x32_bf16 {rs(d[0],d[1],4)}, {rs(a[0],a[1],4)}, {rs(b[0],b[1],4)}, {ct}", 'mfma',
             r=R(a[0],a[1],4)+R(b[0],b[1],4)+cr, w=R(d[0],d[1],4), cr=cr)
def valu(t, r=(), w=(), trans=False):
    return I(t, 'trans' if trans else 'valu', r=r, w=w)
def salu(t, r=(), w=()):
    return I(t, 'salu', r=r, w=w)
def dsrd(op, d, n, addr, off, needvm=(), lgtag=None):
    assert 0 <= off < 65536, off
    return I(f"{op} {rs(d[0],d[1],n)}, v{addr} offset:{off}", 'dsrd', r=[('v',addr)], w=R(d[0],d[1],n), needvm=needvm, lgtag=lgtag)
def dswr(op, addr, s, n, off, lgtag=None, needvm=()):
    assert 0 <= off < 65536, off
    return I(f"{op} v{addr}, {rs(s[0],s[1],n)} offset:{off}", 'dswr', r=[('v',addr)]+R(s[0],s[1],n), lgtag=lgtag, needvm=needvm)
def dma(vaddr, srd, soff, off, tag, needlg=(), flags=''):
    assert 0 <= off < 4096
    so = f"s{soff}" if soff is not None else '0'
    return I(f"buffer_load_dwordx4 v{vaddr}, s[{srd}:{srd+3}], {so} offen offset:{off}{flags} lds", 'vmem',
             r=[('v',vaddr), ('m0',0)] + R('s',srd,4) + ([('s',soff)] if soff is not None else []), vmtag=tag, needlg=needlg)
def vload(d, n, vaddr, srd, soff, off, flags='', tag=None):
    op = {1:'buffer_load_dword',2:'buffer_load_dwordx2',4:'buffer_load_dwordx4'}[n]
    so = f"s{soff}" if soff is not None else '0'
    return I(f"{op} {rs(d[0],d[1],n)}, v{vaddr}, s[{srd}:{srd+3}], {so} offen offset:{off}{flags}", 'vmem',
             r=[('v',vaddr)] + R('s',srd,4) + ([('s',soff)] if soff is not None else []), w=R(d[0],d[1],n), vmtag=tag)
def vstore(s, n, vaddr, srd, soff, off, flags='', tag=None):
    op = {1:'buffer_store_dword',2:'buffer_store_dwordx2',4:'buffer_store_dwordx4'}[n]
    so = f"s{soff}" if soff is not None else '0'
    return I(f"{op} {rs(s[0],s[1],n)}, v{vaddr}, s[{srd}:{srd+3}], {so} offen offset:{off}{flags}", 'vmem',
             r=[('v',vaddr)] + R(s[0],s[1],n) + R('s',srd,4) + ([('s',soff)] if soff is not None else []), vmtag=tag)
def barrier(needvm=(), lg0=True):
    return I("s_barrier", 'barrier', needvm=needvm, needlg=('*',) if lg0 else ())
def raw(t, k='salu'):
    return I(t, k)

HOIST = [0]
class Seg:
    def __init__(s):
        s.vm = []
        s.lg = []
        s.hist = []
        s.out = []
        s.kinds = []
    def reset_hist(s):
        s.hist = []
    def _hoist(s, vmn, lgn):
        k = len(s.out); dv = dl = 0; seen = 0
        while k > 0 and seen < HOIST[0]:
            kind = s.kinds[k - 1]
            if kind == 'mfma':
                seen += 1
                nxt = s.kinds[k] if k < len(s.out) else None
                if nxt is None: return False
                if nxt not in ('salu', 'wait', 'nop'):
                    parts = []
                    if vmn is not None:
                        if vmn - dv < 0: return False
                        parts.append(f"vmcnt({vmn - dv})")
                    if lgn is not None:
                        if lgn - dl < 0: return False
                        parts.append(f"lgkmcnt({lgn - dl})")
                    s.out.insert(k, "s_waitcnt " + " ".join(parts)); s.kinds.insert(k, 'wait')
                    return True
            elif kind == 'vmem': dv += 1
            elif kind in ('dsrd', 'dswr'): dl += 1
            elif kind in ('text', 'barrier', 'wait'): return False
            k -= 1
        return False
    def _emit(s, ins, states=1):
        s.out.append(ins.t); s.kinds.append(ins.k)
        s.hist.append((ins, states))
        if len(s.hist) > 40: s.hist.pop(0)
    def _need_states(s, ins):
        need = 0
        dist = 0
        touch = ins.r | ins.w
        for p, st in reversed(s.hist):
            req = 0
            if p.k == 'mfma':
                if ins.k == 'mfma':
                    ab = ins.r - ins.cr
                    if p.w & ab: req = max(req, 8)
                    if p.w & ins.cr and p.w != ins.cr: req = max(req, 6)
                    if (p.w & ins.w) and not (p.w == ins.w and p.w == ins.cr): req = max(req, 8)
                elif ins.k in ('valu', 'trans', 'dsrd', 'dswr', 'vmem'):
                    if p.w & touch: req = max(req, 8)
                    if ins.k in ('valu', 'trans') and (p.cr & ins.w): req = max(req, 3)
            elif p.k in ('valu', 'trans'):
                vw = {x for x in p.w if x[0] in 'va'}
                sw = {x for x in p.w if x[0] == 's' or x[0] == 'vcc'}
                if ins.k == 'mfma' and (vw & ins.r): req = max(req, 2)
                if p.k == 'trans' and ins.k == 'valu' and (vw & ins.r): req = max(req, 1)
                if ins.k == 'vmem' and (sw & ins.r): req = max(req, 5)
                if ins.k in ('valu', 'trans') and (sw & ins.r): req = max(req, 2)
                if ins.k in ('valu',) and ('readfirstlane' in ins.t or 'readlane' in ins.t) and (vw & ins.r): req = max(req, 1)
                if ins.k == 'valu' and ('permlane' in ins.t or 'dpp' in ins.t or 'row_' in ins.t) and (vw & ins.r): req = max(req, 2)
                if ins.k == 'salu' and (sw & ins.r): req = max(req, 2)
            elif p.k == 'salu':
                if ('m0', 0) in p.w and ins.k == 'vmem' and ('m0', 0) in ins.r: req = max(req, 1)
            elif p.k == 'vmem':
                if 'store_dwordx4' in p.t and ins.k in ('valu', 'trans', 'mfma', 'dsrd') and (p.r & ins.w): req = max(req, 2)
            elif p.k == 'dswr':
                if 'b128' in p.t and ins.k in ('valu', 'trans') and (p.r & ins.w): req = max(req, 2)
            need = max(need, req - dist)
            dist += st
            if dist >= 12: break
        return need
    def add(s, ins):
        touch = ins.r | ins.w
        vmn = None
        for i, (tag, w) in enumerate(s.vm):
            if (tag is not None and tag in ins.needvm) or (w & touch) or ('*' in ins.needvm):
                vmn = len(s.vm) - 1 - i
        lgn = None
        for i, (tag, w) in enumerate(s.lg):
            if (tag is not None and tag in ins.needlg) or (w & touch) or ('*' in ins.needlg):
                lgn = len(s.lg) - 1 - i
        if vmn is not None or lgn is not None:
            parts = []
            if vmn is not None:
                vmn = min(vmn, 63); parts.append(f"vmcnt({vmn})"); s.vm = s.vm[len(s.vm)-vmn:] if vmn else []
            if lgn is not None:
                lgn = min(lgn, 15); parts.append(f"lgkmcnt({lgn})"); s.lg = s.lg[len(s.lg)-lgn:] if lgn else []
            if not (ins.k != 'barrier' and s._hoist(vmn, lgn)):
                s._emit(I("s_waitcnt " + " ".join(parts), 'wait'))
        if ins.k == 'vmem' and len(s.vm) >= 62:
            s._emit(I("s_waitcnt vmcnt(48)", 'wait')); s.vm = s.vm[len(s.vm)-48:]
        n = s._need_states(ins)
        if n > 0:
            s._emit(I(f"s_nop {n-1}", 'nop'), n)
        s._emit(ins)
        if ins.k == 'vmem':
            s.vm.append((ins.vmtag, set(ins.w)))
            assert len(s.vm) <= 63, "too many outstanding vmem"
        if ins.k in ('dsrd', 'dswr'):
            s.lg.append((ins.lgtag, set(ins.w)))
    def addall(s, l):
        for x in l: s.add(x)
    def text(s, t):
        s.out.append(t); s.kinds.append('text')
    def drain(s):
        s._emit(I("s_waitcnt vmcnt(0) lgkmcnt(0)", 'wait')); s.vm = []; s.lg = []

def interleave(mf, gaps):
    out = []
    for i, m in enumerate(mf):
        out.append(m)
        out += gaps[i]
    return out
```

```python
import sys, struct, re
from dsl import *

KB = 1024
NAME = 'standalone__gqa_block_cached__near_ridge'
def f2h(x): return hex(struct.unpack('<I', struct.pack('<f', x))[0])
QSCALE = 1.4426950408889634 / (128 ** 0.5)
WS_WO = 8 << 20
WS_CT = 12 << 20

class Opt:
    stamps = ''
    report = ''
    kv_flags = ''
    a_flags = ''
    n0 = 22
    warm = 1
    perstep = 6
    lo_exp = -40
    hi_exp = 40
    spin = 300000
    rt_at = 5
    bar_at = 12
    nodma = 0
    even_end = 23
    coal = 1
    hoist = 2
    unp = 0
    f2wg = 1
    wfirst = 0
    kvnt = 'x'
    ant = ''
    tch_flags = ''
    wsb = 0
    drain = '45'
    tlb_at = 27
    aonly = 0
    la = 10
    aq = 1
    ownlate = 1
    o_flags = ' sc1'
    f1_flags = ' sc1'
    w64 = 0
    out_flags = ''
    bsched = 1
    p1w = 1
    p2w = 0
    pollk = '19,29,39'
    dyn2 = 1
    qmaj = 1
    tch_at = 27
    even_at = 99
    pdepth = 1
    kvo = 4
    finw = 0
    alim = 16
    cpf = 1
    chain = 1
    wo_at = 35
    calc_at = 16
    nl_at = 8
    nc_at = 13
    cw = 8
    shadow = 6
    bst = '0,5,10,15,20'
    no_rt = 0
    clk = 'r'
    lg0 = 0
    vpos = '1,5,9,13'
    rot_kv = 1
    rot_a = 8
    rot_c = 1
    gl_at = 29
    gc_at = 33
opt = Opt()

S_X, S_WQ, S_K, S_V, S_O, S_WO, S_WT, S_WL, S_C, S_D, S_OUT = 4, 8, 12, 16, 20, 24, 28, 52, 56, 60, 64
S_W, S_B, S_HKV, S_HQ = 32, 33, 34, 35
S_W1K, S_W8K, S_SO, S_T0, S_T1, S_T2, S_SK, S_SV = 36, 37, 38, 39, 40, 41, 42, 43
S_TAB = 44
S_REDO, S_MT, S_NT, S_VALID, S_RT, S_SPIN = 68, 69, 70, 71, 72, 73
S_EX = 74
S_F1, S_F2, S_G1, S_G2 = 100, 101, 72, 51
S_GM = 70
S_J_UNUSED = 3
S_P = 76
S_ST = 80
V_LANE, V_N, V_G, V_T0, V_T1, V_T2, V_T3, V_T4, V_T5 = 1, 2, 3, 4, 5, 6, 7, 8, 9
V_KA, V_VA, V_KD, V_VD = 10, 14, 22, 26
V_OST, V_CW, V_LW = 28, 29, 31
V_ONES, V_NEGM, V_L, V_S, V_P, V_KF, V_VF = 32, 36, 56, 76, 92, 100, 164
V_XA, V_XB, V_WA, V_WB, V_XD, V_WD, V_QW = 228, 232, 236, 238, 240, 241, 242
V_GC = 250
S_NON = 96
V_CR, V_LR, V_WOD, V_WT, V_OL, V_OW, V_OD, V_PS, V_PLD, V_OUT, V_P1, V_P2 = 228, 234, 235, 236, 242, 243, 244, 245, 246, 247, 248, 249
V_ZERO = 9
V_TCH = 64
S_H = 52
S_W5K = 55
S_J = 69
A_O, A_Q = 0, 160
V_OWN = [132, 140, 148, 156, 56]
A_KF1, A_L = 120, 240
def AO(lam, q):
    if lam < 2: return ('v', V_OWN[q] + 4 * lam)
    return ('a', A_O + 4 * (q * 6 + lam - 2))
def KF(i, k): return ('v', V_KF + 4 * k) if i % 2 == 0 else ('a', A_KF1 + 4 * k)
def LA(q): return ('a', A_L + 4 * q) if q < 4 else ('a', 152)
def AQ(q, s): return ('a', A_Q + 4 * (q * 4 + s))

def XU(c, q):
    if c == 0: return q * 4 * KB
    if c == 1: return 20 * KB + q * 4 * KB
    if c == 2: return 128 * KB + q * 4 * KB
    return [120, 124, 148, 152, 156][q] * KB
def WU(slot, ks):
    return {0: [40, 48], 1: [56, 96], 2: [104, 112], 3: [64, 72], 4: [80, 88]}[slot][ks] * KB
WSLOT = [0, 1, 2, 3, 4, 0, 1, 2]
QBUF = 128 * KB

def V(t, r=(), w=()):
    return valu(t, r=[('v', x) if isinstance(x, int) else x for x in r], w=[('v', x) if isinstance(x, int) else x for x in w])
def T(t, r=(), w=()):
    return valu(t, r=[('v', x) for x in r], w=[('v', x) for x in w], trans=True)
def S(t, r=(), w=()):
    return salu(t, r=[('s', x) if isinstance(x, int) else x for x in r], w=[('s', x) if isinstance(x, int) else x for x in w])
M0 = ('m0', 0)
VCC = ('vcc', 0)
def flat(l): return [x for y in l for x in y]

def srd(dst, plo, add_s=None, add_imm=0, size=0):
    o = []
    if add_s is not None:
        o.append(S(f"s_add_u32 s{dst}, s{plo}, s{add_s}", [plo, add_s], [dst]))
        o.append(S(f"s_addc_u32 s{dst+1}, s{plo+1}, 0", [plo+1], [dst+1]))
        o.append(S(f"s_and_b32 s{dst+1}, s{dst+1}, 0xffff", [dst+1], [dst+1]))
    elif add_imm:
        o.append(S(f"s_add_u32 s{dst}, s{plo}, {add_imm}", [plo], [dst]))
        o.append(S(f"s_addc_u32 s{dst+1}, s{plo+1}, 0", [plo+1], [dst+1]))
        o.append(S(f"s_and_b32 s{dst+1}, s{dst+1}, 0xffff", [dst+1], [dst+1]))
    else:
        o.append(S(f"s_mov_b32 s{dst}, s{plo}", [plo], [dst]))
        o.append(S(f"s_and_b32 s{dst+1}, s{plo+1}, 0xffff", [plo+1], [dst+1]))
    if isinstance(size, str):
        o.append(S(f"s_mov_b32 s{dst+2}, {size}", [int(size[1:])], [dst+2]))
    else:
        o.append(S(f"s_mov_b32 s{dst+2}, {size}", [], [dst+2]))
    o.append(S(f"s_mov_b32 s{dst+3}, 0x20000", [], [dst+3]))
    return o

KV_ORDER = [[0, 2, 1, 3, 4, 6, 5, 7], [0, 1, 3, 2, 4, 5, 7, 6], [1, 0, 2, 4, 3, 5, 6, 7], [1, 0, 2, 3, 5, 4, 6, 7]]
KV_ORDERS = [KV_ORDER,
  [[0, 4, 1, 2, 3, 5, 6, 7], [1, 0, 5, 2, 3, 4, 6, 7], [2, 0, 1, 6, 3, 4, 5, 7], [3, 0, 1, 2, 7, 4, 5, 6]],
  [[0, 1, 2, 3, 4, 5, 6, 7], [0, 1, 2, 3, 4, 5, 6, 7], [4, 5, 6, 7, 0, 1, 2, 3], [4, 5, 6, 7, 0, 1, 2, 3]],
  [[0, 2, 1, 3, 5, 4, 6, 7], [1, 0, 3, 2, 4, 6, 5, 7], [2, 1, 0, 4, 3, 5, 7, 6], [0, 1, 2, 3, 5, 4, 6, 7]],
  [[0, 1, 2, 4, 3, 5, 6, 7], [1, 0, 2, 3, 5, 4, 6, 7], [2, 0, 1, 3, 4, 6, 5, 7], [0, 1, 3, 2, 4, 5, 7, 6]],
  [[0, 1, 4, 2, 3, 5, 6, 7], [1, 0, 2, 5, 3, 4, 6, 7], [2, 0, 1, 3, 6, 4, 5, 7], [0, 3, 1, 2, 4, 7, 5, 6]],
  [[0, 1, 3, 2, 4, 5, 7, 6], [0, 1, 2, 4, 3, 5, 6, 7], [0, 2, 1, 3, 5, 4, 6, 7], [0, 2, 1, 3, 4, 6, 5, 7]],
  [[0, 1, 2, 4, 3, 5, 6, 7], [1, 0, 3, 2, 5, 4, 6, 7], [2, 3, 0, 1, 4, 6, 5, 7], [3, 2, 1, 0, 4, 5, 7, 6]],
  [[0, 1, 2, 4, 3, 5, 6, 7], [1, 2, 0, 3, 5, 4, 6, 7], [2, 0, 1, 3, 4, 6, 5, 7], [0, 3, 1, 2, 4, 5, 7, 6]]]
def kv_pack(j):
    o = KV_ORDERS[int(opt.kvo)][j] if int(opt.rot_kv) else list(range(8))
    return sum(t << (4 * i) for i, t in enumerate(o))
S_KVO = 98
V_XD4 = 204
S_WC = 99

class Item:
    def __init__(s, pre, ins, after=None): s.pre, s.ins, s.after = pre, ins, after
def x_dma(c, after=None):
    return [Item([S(f"s_add_u32 m0, s{S_W1K}, {XU(c,q)}", [S_W1K], [M0])],
                 dma(V_XD4 + c, S_X, S_TAB + q, 0, ('x', c), flags=(' nt' if 'x' in opt.ant and c < 2 else opt.a_flags)), after) for q in range(5)]
def w_dma(u, after=None):
    o = []
    for k in range(4):
        pre = []
        if k == 0:
            pre.append(S(f"s_add_u32 s{S_SK}, s{S_WC}, {(u & 6) << 19}", [S_WC], [S_SK]))
            pre.append(S(f"s_and_b32 s{S_SK}, s{S_SK}, {7 << 19}", [S_SK], [S_SK]))
            if u & 1: pre.append(S(f"s_xor_b32 s{S_SK}, s{S_SK}, {1 << 19}", [S_SK], [S_SK]))
        pre.append(S(f"s_add_u32 s{S_SO}, s{S_SK}, {k*131072}", [S_SK], [S_SO]))
        pre.append(S(f"s_add_u32 m0, s{S_W1K}, {WU(WSLOT[u], k>>1) + (k&1)*4*KB}", [S_W1K], [M0]))
        o.append(Item(pre, dma(V_WD, S_WQ, S_SO, 0, ('w', u), flags=(' nt' if 'w' in opt.ant and u < 4 else opt.a_flags)), after))
    return o
def kv_dma(kind, i, after=None):
    o = []
    base = (i & 1) * 32 * KB + (0 if kind == 'k' else 64 * KB)
    sr, so = (S_K, S_SK) if kind == 'k' else (S_V, S_SV)
    for j in range(8):
        pre = []
        if j % 4 == 0:
            if j == 0:
                pre.append(S(f"s_bfe_u32 s{so}, s{S_KVO}, {hex((3 << 16) | (4 * i))}", [S_KVO], [so]))
                pre.append(S(f"s_lshl_b32 s{so}, s{so}, 13", [so], [so]))
            else:
                pre.append(S(f"s_add_u32 s{so}, s{so}, 4096", [so], [so]))
            pre.append(S(f"s_add_u32 m0, s{S_W8K}, {base + (j>>2)*4096}", [S_W8K], [M0]))
        va = V_KD + (j & 3) if kind == 'k' else V_VD + (j & 1)
        tag = (kind + 'r', i - 2, j >> 2)
        o.append(Item(pre, dma(va, sr, so, 1024 * (j & 3), (kind, i, j >> 2), needlg=[tag], flags=(' nt' if str(i) in str(opt.kvnt) else opt.kv_flags)), after if i < 2 else tag))
    return o
def k_reads(i):
    return [dsrd('ds_read_b128', KF(i, t * 4 + s), 4, V_KA + s, (i & 1) * 32 * KB + t * 4096,
                 needvm=[('k', i, t)], lgtag=('kr', i, t)) for t in range(2) for s in range(4)]
def v_reads(i):
    return [dsrd('ds_read_b64_tr_b16', ('v', V_VF + (i & 1) * 32 + lam * 4 + h * 2), 2, V_VA + lam, (i & 1) * 32 * KB + h * 4096,
                 needvm=[('v', i, h)], lgtag=('vr', i, h)) for h in range(2) for lam in range(8)]

class Queue:
    def __init__(s): s.q = []; s.pts = set()
    def push(s, items): s.q += items
    def mark(s, p): s.pts.add(p)
    def pop(s):
        if s.q and (s.q[0].after is None or s.q[0].after in s.pts): return s.q.pop(0)
        return None

def place(gaps, Q, pos):
    last = -1
    for p in pos:
        if p >= len(gaps): continue
        it = Q.pop()
        if it is None: break
        pre = list(it.pre)
        avail = list(range(last + 1, p))
        front = []
        if not avail: front = pre
        else:
            slots = [[] for _ in avail]
            for k_, x in enumerate(reversed(pre)):
                slots[max(0, len(avail) - 1 - k_)].insert(0, x)
            for g, sl in zip(avail, slots):
                k_ = 0
                while k_ < len(gaps[g]) and gaps[g][k_].k == 'salu': k_ += 1
                gaps[g][k_:k_] = sl
        k = 0
        while k < len(gaps[p]) and gaps[p][k].k == 'salu': k += 1
        gaps[p][k:k] = front + [it.ins]
        last = p
def weave(sg, Q, fill, n, per):
    for _ in range(n):
        it = Q.pop()
        if it is not None: sg.addall(it.pre + [it.ins])
        for _ in range(per):
            if fill: sg.add(fill.pop(0))

NST = 12
def stamp(sg, i, grp='1'):
    if not opt.stamps: return
    if 5 <= i <= 9 and grp != opt.stamps: return
    sg.text(f"{'s_memtime' if opt.clk == 'c' else 's_memrealtime'} s[{76+2*i}:{77+2*i}]")

def prologue1():
    o = []; a = o.append
    a(raw("s_load_dwordx2 s[92:93], s[0:1], 0"))
    a(raw("s_load_dwordx2 s[26:27], s[0:1], 24"))
    a(V(f"v_lshrrev_b32 v{V_T0}, 6, v0", [0], [V_T0]))
    a(V(f"v_and_b32 v{V_LANE}, 63, v0", [0], [V_LANE]))
    a(V(f"v_readfirstlane_b32 s{S_W}, v{V_T0}", [V_T0], [('s', S_W)]))
    a(S(f"s_and_b32 s{S_HKV}, s2, 7", [2], [S_HKV]))
    a(S(f"s_lshr_b32 s{S_B}, s2, 5", [2], [S_B]))
    a(S(f"s_bfe_u32 s{S_T0}, s2, 0x20003", [2], [S_T0]))
    a(S(f"s_mov_b32 s{S_J}, s{S_T0}", [S_T0], [S_J]))
    a(S(f"s_lshl_b32 s{S_HQ}, s{S_HKV}, 2", [S_HKV], [S_HQ]))
    a(S(f"s_add_u32 s{S_HQ}, s{S_HQ}, s{S_T0}", [S_HQ, S_T0], [S_HQ]))
    if int(opt.rot_a) == 2:
        a(S(f"s_add_u32 s{S_VALID}, s{S_T0}, s{S_B}", [S_T0, S_B], [S_VALID]))
        a(S(f"s_and_b32 s{S_VALID}, s{S_VALID}, 1", [S_VALID], [S_VALID]))
        a(S(f"s_lshl_b32 s{S_VALID}, s{S_VALID}, 2", [S_VALID], [S_VALID]))
    elif int(opt.rot_a) in (5, 6):
        a_, b_ = (S_B, S_T0) if int(opt.rot_a) == 5 else (S_T0, S_B)
        a(S(f"s_lshl_b32 s{S_VALID}, s{b_}, 1", [b_], [S_VALID]))
        a(S(f"s_add_u32 s{S_VALID}, s{S_VALID}, s{a_}", [S_VALID, a_], [S_VALID]))
        a(S(f"s_and_b32 s{S_VALID}, s{S_VALID}, 3", [S_VALID], [S_VALID]))
        a(S(f"s_lshl_b32 s{S_VALID}, s{S_VALID}, 1", [S_VALID], [S_VALID]))
    elif int(opt.rot_a) in (8, 9):
        a(S(f"s_add_u32 s{S_VALID}, s{S_T0}, s{S_B}", [S_T0, S_B], [S_VALID]))
        a(S(f"s_lshl_b32 s{S_VALID}, s{S_VALID}, 1", [S_VALID], [S_VALID]))
        a(S(f"s_and_b32 s{S_T1}, s{S_HKV}, {1 if int(opt.rot_a) == 8 else 3}", [S_HKV], [S_T1]))
        a(S(f"s_add_u32 s{S_VALID}, s{S_VALID}, s{S_T1}", [S_VALID, S_T1], [S_VALID]))
        a(S(f"s_and_b32 s{S_VALID}, s{S_VALID}, 3", [S_VALID], [S_VALID]))
        a(S(f"s_lshl_b32 s{S_VALID}, s{S_VALID}, 1", [S_VALID], [S_VALID]))
    elif int(opt.rot_a) == 7:
        a(S(f"s_add_u32 s{S_VALID}, s{S_T0}, s{S_B}", [S_T0, S_B], [S_VALID]))
        a(S(f"s_and_b32 s{S_VALID}, s{S_VALID}, 1", [S_VALID], [S_VALID]))
        a(S(f"s_lshl_b32 s{S_VALID}, s{S_VALID}, 2", [S_VALID], [S_VALID]))
        a(S(f"s_bfe_u32 s{S_T1}, s{S_B}, 0x10001", [S_B], [S_T1]))
        a(S(f"s_or_b32 s{S_VALID}, s{S_VALID}, s{S_T1}", [S_VALID, S_T1], [S_VALID]))
    elif int(opt.rot_a) == 4:
        a(S(f"s_add_u32 s{S_VALID}, s{S_T0}, s{S_B}", [S_T0, S_B], [S_VALID]))
        a(S(f"s_and_b32 s{S_VALID}, s{S_VALID}, 3", [S_VALID], [S_VALID]))
        a(S(f"s_lshl_b32 s{S_VALID}, s{S_VALID}, 1", [S_VALID], [S_VALID]))
    elif int(opt.rot_a):
        a(S(f"s_lshl_b32 s{S_T0}, s{S_T0}, 1", [S_T0], [S_T0]))
        a(S(f"s_add_u32 s{S_VALID}, s{S_T0}, s{S_B}", [S_T0, S_B], [S_VALID]))
        a(S(f"s_and_b32 s{S_VALID}, s{S_VALID}, 7", [S_VALID], [S_VALID]))
    else:
        a(S(f"s_mov_b32 s{S_VALID}, 0", [], [S_VALID]))
    a(V(f"v_and_b32 v{V_N}, 15, v{V_LANE}", [V_LANE], [V_N]))
    a(V(f"v_lshrrev_b32 v{V_G}, 4, v{V_LANE}", [V_LANE], [V_G]))
    a(S(f"s_lshl_b32 s{S_W1K}, s{S_W}, 10", [S_W], [S_W1K]))
    a(S(f"s_lshl_b32 s{S_W8K}, s{S_W}, 13", [S_W], [S_W8K]))
    a(V(f"v_lshl_add_u32 v{V_T0}, s{S_W}, 2, v{V_G}", [V_G, ('s', S_W)], [V_T0]))
    a(V(f"v_xor_b32 v{V_T1}, v{V_N}, v{V_T0}", [V_N, V_T0], [V_T1]))
    a(V(f"v_lshlrev_b32 v{V_T1}, 4, v{V_T1}", [V_T1], [V_T1]))
    a(V(f"v_lshl_add_u32 v{V_XD}, v{V_T0}, 10, v{V_T1}", [V_T0, V_T1], [V_XD]))
    a(S(f"s_and_b32 s{S_T0}, s{S_W}, 2", [S_W], [S_T0]))
    a(S(f"s_lshl_b32 s{S_T0}, s{S_T0}, 2", [S_T0], [S_T0]))
    a(V(f"v_lshl_add_u32 v{V_T1}, v{V_G}, 1, s{S_T0}", [V_G, ('s', S_T0)], [V_T1]))
    a(V(f"v_xor_b32 v{V_T1}, v{V_N}, v{V_T1}", [V_N, V_T1], [V_T1]))
    a(V(f"v_lshlrev_b32 v{V_T1}, 4, v{V_T1}", [V_T1], [V_T1]))
    a(V(f"v_lshl_add_u32 v{V_WD}, v{V_T0}, 13, v{V_T1}", [V_T0, V_T1], [V_WD]))
    a(S(f"s_mul_i32 s{S_T0}, s{S_B}, 81920", [S_B], [S_T0]))
    a(S(f"s_lshl_b32 s{S_T2}, s{S_HQ}, 8", [S_HQ], [S_T2]))
    a(S(f"s_sub_u32 s{S_T1}, 4194304, s{S_T2}", [S_T2], [S_T1]))
    a(S(f"s_mov_b32 s{S_REDO}, 0", [], [S_REDO]))
    a(S(f"s_lshl_b32 s{S_WC}, s{S_VALID}, 19", [S_VALID], [S_WC]))
    a(S(f"s_mov_b64 s[{S_GM}:{S_GM+1}], -1", [], [S_GM, S_GM+1]))
    o += restart_setup()
    a(S(f"s_mov_b32 s{S_X+2}, 81920", [], [S_X+2])); a(S(f"s_mov_b32 s{S_X+3}, 0x20000", [], [S_X+3]))
    a(S(f"s_mov_b32 s{S_WQ+2}, s{S_T1}", [S_T1], [S_WQ+2])); a(S(f"s_mov_b32 s{S_WQ+3}, 0x20000", [], [S_WQ+3]))
    a(raw("s_waitcnt lgkmcnt(0)", 'wait'))
    o += srd(S_X, 92, add_s=S_T0, size=81920)[:3]
    o += srd(S_WQ, 26, add_s=S_T2, size=0)[:3]
    a(raw("s_load_dwordx4 s[92:95], s[0:1], 8"))
    a(raw(f"s_load_dwordx2 s[{S_WO}:{S_WO+1}], s[0:1], 32"))
    a(raw(f"s_load_dwordx4 s[{S_C}:{S_C+3}], s[0:1], 40"))
    a(raw("s_load_dwordx2 s[100:101], s[0:1], 56"))
    return o

def restart_setup():
    o = [S(f"s_mov_b32 s{S_TAB+q}, {q*16384}", [], [S_TAB+q]) for q in range(5)]
    for c in range(4):
        o.append(S(f"s_lshr_b32 s{S_SO}, s{S_WC}, 12", [S_WC], [S_SO]))
        o.append(S(f"s_add_u32 s{S_SO}, s{S_SO}, {c*256}", [S_SO], [S_SO]))
        o.append(S(f"s_and_b32 s{S_SO}, s{S_SO}, 0x300", [S_SO], [S_SO]))
        o.append(V(f"v_add_u32 v{V_XD4+c}, s{S_SO}, v{V_XD}", [V_XD, ('s', S_SO)], [V_XD4+c]))
    return o

def prologue2():
    o = []; a = o.append
    a(raw("s_waitcnt lgkmcnt(0)", 'wait'))
    a(S(f"s_lshl_b32 s{S_T0}, s{S_B}, 3", [S_B], [S_T0]))
    a(S(f"s_add_u32 s{S_T0}, s{S_T0}, s{S_HKV}", [S_T0, S_HKV], [S_T0]))
    a(S(f"s_lshl_b32 s{S_T0}, s{S_T0}, 2", [S_T0], [S_T0]))
    a(S(f"s_add_u32 s{S_T0}, s{S_T0}, s{S_W}", [S_T0, S_W], [S_T0]))
    a(S(f"s_lshl_b32 s{S_T0}, s{S_T0}, 16", [S_T0], [S_T0]))
    o += srd(S_K, 92, add_s=S_T0, size=65536)
    o += srd(S_V, 94, add_s=S_T0, size=65536)
    a(S(f"s_lshl_b32 s{S_T0}, s{S_HKV}, 19", [S_HKV], [S_T0]))
    o += srd(S_WO, S_WO, add_s=S_T0, size=524288)
    WB = int(opt.wsb) << 20
    o += srd(S_O, 100, add_imm=WB, size=8*5*128*1024)
    o += srd(S_WT, 100, add_imm=WB + WS_WO, size=8*4*20*8*1024)
    o += srd(S_D, S_C + 2, size=256)
    o += srd(S_OUT, S_C, size=655360)
    o += srd(S_C, 100, add_imm=WB + WS_CT, size=262144)
    a(S(f"s_bitcmp1_b32 s{S_HQ}, 0", [S_HQ], []))
    a(S(f"s_mov_b32 s{S_T0}, {hex(kv_pack(0))}", [], [S_T0]))
    a(S(f"s_cselect_b32 s{S_T0}, {hex(kv_pack(1))}, s{S_T0}", [S_T0], [S_T0]))
    a(S(f"s_mov_b32 s{S_T1}, {hex(kv_pack(2))}", [], [S_T1]))
    a(S(f"s_cselect_b32 s{S_T1}, {hex(kv_pack(3))}, s{S_T1}", [S_T1], [S_T1]))
    a(S(f"s_bitcmp1_b32 s{S_HQ}, 1", [S_HQ], []))
    a(S(f"s_cselect_b32 s{S_KVO}, s{S_T1}, s{S_T0}", [S_T0, S_T1], [S_KVO]))
    for p in range(3):
        a(S(f"s_cmp_le_u32 s{S_J}, {p}", [S_J], []))
        a(S(f"s_cselect_b32 s{S_T1}, {p + 1}, {p}", [], [S_T1]))
        a(S(f"s_lshl_b32 s{S_H+p}, s{S_T1}, 17", [S_T1], [S_H+p]))
    a(S(f"s_mul_i32 s{S_W5K}, s{S_W}, 5120", [S_W], [S_W5K]))
    a(S(f"s_lshl_b32 s{S_T0}, s{S_B}, 14", [S_B], [S_T0]))
    a(S(f"s_lshl_b32 s{S_T1}, s{S_W}, 7", [S_W], [S_T1]))
    a(S(f"s_add_u32 s{S_T0}, s{S_T0}, s{S_T1}", [S_T0, S_T1], [S_T0]))
    a(S(f"s_lshl_b32 s{S_F1}, s{S_HQ}, 9", [S_HQ], [S_F1]))
    a(S(f"s_add_u32 s{S_F1}, s{S_F1}, s{S_T0}", [S_F1, S_T0], [S_F1]))
    a(S(f"s_add_u32 s{S_F2}, s{S_F1}, 131072", [S_F1], [S_F2]))
    if int(opt.f2wg): a(S(f"s_andn2_b32 s{S_F2}, s{S_F2}, 0x180", [S_F2], [S_F2]))
    a(S(f"s_lshl_b32 s{S_T1}, s{S_HKV}, 11", [S_HKV], [S_T1]))
    a(S(f"s_lshl_b32 s{S_G1}, s{S_J}, 3", [S_J], [S_G1]))
    a(S(f"s_add_u32 s{S_G1}, s{S_G1}, s{S_T1}", [S_G1, S_T1], [S_G1]))
    a(S(f"s_add_u32 s{S_G1}, s{S_G1}, s{S_T0}", [S_G1, S_T0], [S_G1]))
    a(S(f"s_lshl_b32 s{S_T1}, s{S_J}, 9", [S_J], [S_T1]))
    a(S(f"s_lshl_b32 s{S_G2}, s{S_HKV}, 3", [S_HKV], [S_G2]))
    a(S(f"s_add_u32 s{S_G2}, s{S_G2}, s{S_T1}", [S_G2, S_T1], [S_G2]))
    a(S(f"s_add_u32 s{S_G2}, s{S_G2}, s{S_T0}", [S_G2, S_T0], [S_G2]))
    a(S(f"s_add_u32 s{S_G2}, s{S_G2}, 131072", [S_G2], [S_G2]))
    return o

def prologue3():
    o = []; a = o.append
    a(S(f"s_bfe_u32 s{S_T1}, s{S_WC}, 0x10013", [S_WC], [S_T1]))
    a(S(f"s_lshl_b32 s{S_T1}, s{S_T1}, 3", [S_T1], [S_T1]))
    a(V(f"v_xor_b32 v{V_T1}, s{S_T1}, v{V_N}", [V_N, ('s', S_T1)], [V_T1]))
    for s in range(4):
        a(V(f"v_add_u32 v{V_T0}, {4*s}, v{V_G}", [V_G], [V_T0]))
        a(V(f"v_xor_b32 v{V_T0}, v{V_T0}, v{V_T1}", [V_T0, V_T1], [V_T0]))
        a(V(f"v_lshlrev_b32 v{V_T0}, 4, v{V_T0}", [V_T0], [V_T0]))
        a(V(f"v_lshl_add_u32 v{V_XA+s}, v{V_N}, 8, v{V_T0}", [V_N, V_T0], [V_XA+s]))
        a(V(f"v_add_u32 v{V_XB+s}, {120*KB}, v{V_XA+s}", [V_XA+s], [V_XB+s]))
    a(V(f"v_lshrrev_b32 v{V_T2}, 2, v{V_N}", [V_N], [V_T2]))
    a(V(f"v_bfe_u32 v{V_T3}, v{V_N}, 1, 1", [V_N], [V_T3]))
    a(V(f"v_and_b32 v{V_T4}, 1, v{V_N}", [V_N], [V_T4]))
    a(V(f"v_lshlrev_b32 v{V_T4}, 3, v{V_T4}", [V_T4], [V_T4]))
    a(V(f"v_and_b32 v{V_T5}, 1, v{V_G}", [V_G], [V_T5]))
    a(V(f"v_lshl_add_u32 v{V_T5}, v{V_T5}, 2, v{V_T2}", [V_T5, V_T2], [V_T5]))
    a(V(f"v_lshlrev_b32 v{V_T5}, 1, v{V_T5}", [V_T5], [V_T5]))
    a(S(f"s_lshl_b32 s{S_T1}, s{S_W}, 2", [S_W], [S_T1]))
    a(V(f"v_lshl_add_u32 v{V_T1}, v{V_G}, 3, v{V_T2}", [V_G, V_T2], [V_T1]))
    a(V(f"v_lshl_add_u32 v{V_T1}, v{V_T1}, 8, v{V_T4}", [V_T1, V_T4], [V_T1]))
    for e in range(2):
        a(V(f"v_add3_u32 v{V_T0}, s{S_T1}, v{V_T3}, {2*e}", [V_T3, ('s', S_T1)], [V_T0]))
        a(V(f"v_xor_b32 v{V_T0}, v{V_T0}, v{V_T5}", [V_T0, V_T5], [V_T0]))
        a(V(f"v_lshl_add_u32 v{V_T0}, v{V_T0}, 4, v{V_T1}", [V_T0, V_T1], [V_T0]))
        a(V(f"v_add_u32 v{V_WA+e}, {40*KB}, v{V_T0}", [V_T0], [V_WA+e]))
        a(V(f"v_add_u32 v{V_WB+e}, {96*KB}, v{V_T0}", [V_T0], [V_WB+e]))
    a(V(f"v_lshl_add_u32 v{V_T1}, v{V_G}, 2, v{V_T2}", [V_G, V_T2], [V_T1]))
    n_early = len(o)
    for s in range(4):
        a(V(f"v_add_u32 v{V_KA+s}, s{S_W8K}, v{V_XA+s}", [V_XA+s, ('s', S_W8K)], [V_KA+s]))
    a(V(f"v_lshl_add_u32 v{V_T1}, v{V_T1}, 8, v{V_T4}", [V_T1, V_T4], [V_T1]))
    a(S(f"s_add_u32 s{S_T2}, s{S_W8K}, {64*KB}", [S_W8K], [S_T2]))
    a(V(f"v_add_u32 v{V_T1}, s{S_T2}, v{V_T1}", [V_T1, ('s', S_T2)], [V_T1]))
    a(V(f"v_add_u32 v{V_T3}, s{S_T1}, v{V_T3}", [V_T3, ('s', S_T1)], [V_T3]))
    for lam in range(8):
        a(V(f"v_add_u32 v{V_T0}, {2*lam}, v{V_T3}", [V_T3], [V_T0]))
        a(V(f"v_and_b32 v{V_T0}, 15, v{V_T0}", [V_T0], [V_T0]))
        a(V(f"v_xor_b32 v{V_T0}, v{V_T0}, v{V_T5}", [V_T0, V_T5], [V_T0]))
        a(V(f"v_lshl_add_u32 v{V_VA+lam}, v{V_T0}, 4, v{V_T1}", [V_T0, V_T1], [V_VA+lam]))
    a(V(f"v_xor_b32 v{V_T0}, v{V_N}, v{V_G}", [V_N, V_G], [V_T0]))
    a(V(f"v_lshlrev_b32 v{V_T0}, 4, v{V_T0}", [V_T0], [V_T0]))
    a(V(f"v_lshl_add_u32 v{V_KD}, v{V_G}, 8, v{V_T0}", [V_G, V_T0], [V_KD]))
    for j in range(1, 4):
        a(V(f"v_xor_b32 v{V_KD+j}, {64*j}, v{V_KD}", [V_KD], [V_KD+j]))
    a(V(f"v_lshlrev_b32 v{V_T0}, 1, v{V_G}", [V_G], [V_T0]))
    a(V(f"v_xor_b32 v{V_T0}, v{V_N}, v{V_T0}", [V_N, V_T0], [V_T0]))
    a(V(f"v_lshlrev_b32 v{V_T0}, 4, v{V_T0}", [V_T0], [V_T0]))
    a(V(f"v_lshl_add_u32 v{V_VD}, v{V_G}, 8, v{V_T0}", [V_G, V_T0], [V_VD]))
    a(V(f"v_xor_b32 v{V_VD+1}, 128, v{V_VD}", [V_VD], [V_VD+1]))
    a(V(f"v_lshrrev_b32 v{V_T0}, 1, v{V_G}", [V_G], [V_T0]))
    a(V(f"v_add_u32 v{V_T0}, s{S_T1}, v{V_T0}", [V_T0, ('s', S_T1)], [V_T0]))
    a(V(f"v_xor_b32 v{V_T0}, v{V_T0}, v{V_N}", [V_T0, V_N], [V_T0]))
    a(V(f"v_lshlrev_b32 v{V_T0}, 4, v{V_T0}", [V_T0], [V_T0]))
    a(V(f"v_lshl_add_u32 v{V_T0}, v{V_N}, 8, v{V_T0}", [V_N, V_T0], [V_T0]))
    a(V(f"v_and_b32 v{V_T1}, 1, v{V_G}", [V_G], [V_T1]))
    a(V(f"v_lshl_add_u32 v{V_T0}, v{V_T1}, 3, v{V_T0}", [V_T0, V_T1], [V_T0]))
    a(V(f"v_add_u32 v{V_QW}, {QBUF}, v{V_T0}", [V_T0], [V_QW]))
    a(V(f"v_xor_b32 v{V_QW+1}, 32, v{V_QW}", [V_QW], [V_QW+1]))
    a(V(f"v_lshl_add_u32 v{V_CW}, v{V_LANE}, 4, s{S_W8K}", [V_LANE, ('s', S_W8K)], [V_CW]))
    a(V(f"v_add_u32 v{V_CW+1}, {64*KB}, v{V_CW}", [V_CW], [V_CW+1]))
    a(S(f"s_add_u32 s{S_T0}, s{S_W8K}, {102*KB}", [S_W8K], [S_T0]))
    a(V(f"v_lshl_add_u32 v{V_LW}, v{V_LANE}, 5, s{S_T0}", [V_LANE, ('s', S_T0)], [V_LW]))
    a(S(f"s_mul_i32 s{S_T0}, s{S_B}, 640", [S_B], [S_T0]))
    a(S(f"s_lshl_b32 s{S_T2}, s{S_HQ}, 2", [S_HQ], [S_T2]))
    a(S(f"s_add_u32 s{S_T0}, s{S_T0}, s{S_T2}", [S_T0, S_T2], [S_T0]))
    a(S(f"s_add_u32 s{S_T0}, s{S_T0}, s{S_W}", [S_T0, S_W], [S_T0]))
    a(S(f"s_lshl_b32 s{S_T0}, s{S_T0}, 10", [S_T0], [S_T0]))
    a(V(f"v_lshl_add_u32 v{V_OST}, v{V_LANE}, 4, s{S_T0}", [V_LANE, ('s', S_T0)], [V_OST]))
    a(V(f"v_cmp_eq_u32 vcc, 0, v{V_N}", [V_N], [VCC]))
    a(V(f"v_mov_b32 v{V_T0}, 0x3f803f80", [], [V_T0]))
    for i in range(4):
        a(V(f"v_cndmask_b32 v{V_ONES+i}, 0, v{V_T0}, vcc", [V_T0, VCC], [V_ONES+i]))
    for i in range(20):
        a(V(f"v_mov_b32 v{V_NEGM+i}, 0", [], [V_NEGM+i]))
    return o[:n_early], o[n_early:]

V_QACC = V_VF
def AF(kap):
    return [(100, 120), (128, 148), (208, 156)][kap % 3]
def a_reads(kap):
    u, ks = kap >> 1, kap & 1
    c, s = u >> 1, kap & 3
    xf, wf = AF(kap)
    wb = WU(WSLOT[u], ks)
    xr = []
    for q in range(5):
        xb = XU(c, q)
        reg, base = (V_XA, 0) if xb < 64 * KB else (V_XB, 120 * KB)
        xr.append(dsrd('ds_read_b128', ('v', xf + q * 4), 4, reg + s, xb - base))
    wr = []
    for e in range(2):
        for h in range(2):
            reg, base = (V_WA, 40 * KB) if wb < 96 * KB else (V_WB, 96 * KB)
            wr.append(dsrd('ds_read_b64_tr_b16', ('v', wf + e * 4 + h * 2), 2, reg + e, wb - base + h * 1024))
    return wr[:2] + xr[:1] + wr[2:] + xr[1:]
def a_mfmas(kap):
    o = []
    xf, wf = AF(kap)
    for q in range(5):
        for e in range(2):
            d = ('v', V_QACC + (e * 5 + q) * 4)
            o.append(mfma(d, ('v', wf + e * 4), ('v', xf + q * 4), 0 if kap == 0 else d))
    return o
def lane0(sg, body, lab):
    sg.text(f"s_cmp_lg_u32 s{S_W}, 0"); sg.text(f"s_cbranch_scc1 {lab}")
    sg.text(f"s_mov_b64 s[{S_EX}:{S_EX+1}], exec"); sg.text("s_mov_b64 exec, 1")
    for x in body: sg.text(x)
    sg.text(f"s_mov_b64 exec, s[{S_EX}:{S_EX+1}]")
    sg.text(f"{lab}:")
def phase_a(sg, Q):
    stamp(sg, 1)
    sg.add(barrier(needvm=[('x', 0), ('w', 0)])); Q.mark('B0')
    stamp(sg, 2)
    sg.addall(a_reads(0)); sg.addall(a_reads(1))
    sg.add(S(f"s_mov_b32 s{S_T1}, {f2h(QSCALE)}", [], [S_T1]))
    sg.add(S(f"s_mov_b32 s{S_T2}, {f2h(QSCALE)}", [], [S_T2]))
    for kap in range(14 if int(opt.aq) else 16):
        mf = a_mfmas(kap)
        gaps = [[] for _ in mf]
        nx = kap + 2
        if nx < 16:
            if nx % 2 == 0:
                u = nx >> 1
                need = [('x', u >> 1), ('w', u)]
                while any(it.ins.vmtag in need for it in Q.q):
                    n_ = len(Q.q); weave(sg, Q, [], 1, 0); assert len(Q.q) < n_, (u, Q.q[0].after)
                while True:
                    younger = 0
                    for tg, _w in reversed(sg.vm):
                        if tg in need: break
                        younger += 1
                    n_ = len(Q.q)
                    if younger >= int(opt.la): break
                    weave(sg, Q, [], 1, 0)
                    if len(Q.q) == n_: break
                dr = str(u) in str(opt.drain)
                sg.add(barrier(needvm=need, lg0=dr)); Q.mark(f'B{u}')
                if dr: Q.mark(f'B{u+1}')
                if u in (1, 3, 5, 7): stamp(sg, 5 + u // 2, 'A')
            for i, r in enumerate(a_reads(nx)): gaps[i].append(r)
        mf[0].r |= set(R('v', AF(kap)[0], 20) + R('v', AF(kap)[1], 8))
        pos = [1, 5, 9] if kap % 2 == 0 else [3, 7]
        if int(opt.perstep) == 6: pos = [1, 4, 7] if kap % 2 == 0 else [1, 4, 8]
        if int(opt.perstep) == 7: pos = [1, 4, 6, 9] if kap % 2 == 0 else [2, 5, 8]
        if int(opt.perstep) == 8: pos = [1, 4, 6, 9]
        nkv = sum(1 for it in Q.q if it.ins.vmtag[0] in 'kv')
        room = int(opt.alim) - (128 - nkv) + (len(Q.q) - nkv)
        place(gaps, Q, pos[:max(0, room)])
        if int(opt.aonly): sg.addall([x for x in interleave(mf, gaps) if x.k not in ('mfma', 'dsrd')])
        else: sg.addall(interleave(mf, gaps))
    def qfin(q, e, packed):
        b = V_QACC + (e * 5 + q) * 4
        if packed: f_ = [V(f"v_pk_mul_f32 v[{b+r}:{b+r+1}], v[{b+r}:{b+r+1}], s[{S_T1}:{S_T1+1}]", [b+r, b+r+1], [b+r, b+r+1]) for r in (0, 2)]
        else: f_ = [V(f"v_mul_f32 v{b+r}, s{S_T1}, v{b+r}", [b+r], [b+r]) for r in range(4)]
        f_.append(V(f"v_cvt_pk_bf16_f32 v{b}, v{b}, v{b+1}", [b, b+1], [b]))
        f_.append(V(f"v_cvt_pk_bf16_f32 v{b+1}, v{b+2}, v{b+3}", [b+2, b+3], [b+1]))
        f_.append(dswr('ds_write_b64', V_QW + e, ('v', b), 2, q * 4096, lgtag='qw'))
        return f_
    todo = [(q, e) for q in range(5) for e in range(2)]
    if int(opt.aq):
        m14, m15 = a_mfmas(14), a_mfmas(15)
        m14[0].r |= set(R('v', AF(14)[0], 20) + R('v', AF(14)[1], 8))
        mf = flat([[m14[k], m15[k]] for k in range(10)])
        gaps = [[] for _ in mf]
        gi = 5
        while todo and gi + 3 <= 19:
            f_ = qfin(*todo.pop(0), False)
            gaps[gi] += f_[0:2]; gaps[gi + 1] += f_[2:4]; gaps[gi + 2] += f_[4:6]; gaps[gi + 3] = [f_[6]] + gaps[gi + 3]
            gi += 3
        nkv = sum(1 for it in Q.q if it.ins.vmtag[0] in 'kv')
        place(gaps, Q, [1, 4][:max(0, int(opt.alim) - (128 - nkv))])
        sg.addall(interleave(mf, gaps))
    stamp(sg, 9, 'A')
    for q, e in todo: sg.addall(qfin(q, e, True))
    while any(it.ins.vmtag in (('k', 0, 0), ('k', 0, 1)) for it in Q.q): weave(sg, Q, [], 1, 0)
    b = barrier(lg0=False); b.needlg = ('qw',)
    sg.addall(k_reads(0)); Q.mark(('kr', 0, 0)); Q.mark(('kr', 0, 1))
    sg.add(b); Q.mark('BQ'); Q.mark('B8')
    qr = [dsrd('ds_read_b128', AQ(q, s), 4, V_XB + s, QBUF - 120 * KB + q * 4096) for q in range(5) for s in range(4)]
    return qr

def TQ(tau):
    return divmod(tau, 5) if tau < 30 else (6 + ((tau - 30) & 1), (tau - 30) >> 1)
def qk(tau):
    i, q = TQ(tau)
    o = []
    for s, t in ([(s, t) for t in range(2) for s in range(4)] if int(opt.chain) else [(s, t) for s in range(4) for t in range(2)]):
        if True:
            d = ('v', V_S + (tau & 1) * 8 + t * 4)
            o.append(mfma(d, KF(i, t * 4 + s), AQ(q, s), ('v', V_NEGM + q * 4) if s == 0 else d))
            if s == 0 and int(opt.coal) and tau > 4: o[-1].r |= set(R(*KF(i, t * 4), 16))
    return o
def pv(tau):
    i, q = TQ(tau)
    p = ('v', V_P + (tau & 1) * 4)
    o = [mfma(AO(lam, q), ('v', V_VF + (i & 1) * 32 + lam * 4), p, AO(lam, q) if i else 0) for lam in range(8)]
    if int(opt.coal) and 0 < i < 7: o[0].r |= set(R('v', V_VF + (i & 1) * 32, 24)); o[5].r |= set(R('v', V_VF + (i & 1) * 32 + 24, 8))
    o.insert(0, mfma(LA(q), ('v', V_ONES), p, LA(q) if i else 0))
    return o
def sm(tau):
    b = V_S + (tau & 1) * 8
    p = V_P + (tau & 1) * 4
    e = [T(f"v_exp_f32 v{b+i}, v{b+i}", [b+i], [b+i]) for i in range(8)]
    c = [V(f"v_cvt_pk_bf16_f32 v{p+i}, v{b+2*i}, v{b+2*i+1}", [b+2*i, b+2*i+1], [p+i]) for i in range(4)]
    return e, c
def comb_writes(q):
    o = []
    for jd in range(1, 4):
        for e in range(2):
            u = q * 6 + (jd - 1) * 2 + e
            row = u >> 3
            o.append(dswr('ds_write_b128', V_CW + (row >> 1), AO(2 * jd + e, q), 4, (row & 1) * 32 * KB + (u & 7) * KB, lgtag=('cw', q)))
    o.insert(0, dswr('ds_write_b32', V_LW, LA(q), 1, [0, 4, 16, 20, 24][q], lgtag=('cw', q)))
    return o

def wo_dma(pos, after=None):
    o = []
    for ks in range(4):
        for half in range(2):
            base = (128 * KB if pos < 0 else pos * 32 * KB) + ks * 8 * KB + half * 4 * KB
            if pos < 0:
                pre = [S(f"s_lshl_b32 s{S_SK}, s{S_J}, 17", [S_J], [S_SK])] if ks + half == 0 else []
                h = S_SK
            else: pre, h = [], S_H + pos
            pre += [S(f"s_add_u32 s{S_SO}, s{h}, {ks*32768 + half*16384}", [h], [S_SO]), S(f"s_add_u32 m0, s{S_W1K}, {base}", [S_W1K], [M0])]
            o.append(Item(pre, dma(V_WOD, S_WO, S_SO, 0, ('wo', pos)), after))
    return o
def osib_dma(pos):
    o = []
    for q in range(5):
        pre = [S(f"s_lshr_b32 s{S_SK}, s{S_H+pos}, 5", [S_H+pos], [S_SK])] if q == 0 else []
        pre += [S(f"s_add_u32 s{S_SO}, s{S_SK}, {q*128*KB}", [S_SK], [S_SO]), S(f"s_add_u32 m0, s{S_W5K}, {(140 - 20*pos + q)*KB}", [S_W5K], [M0])]
        o.append(Item(pre, dma(V_OD, S_O, S_SO, 0, ('os', pos), flags=' sc1')))
    return o
def tail_calc():
    o = []; a = o.append
    T0, T1, T2 = 252, 253, 254
    a(V(f"v_lshlrev_b32 v{T0}, 4, v{V_LANE}", [V_LANE], [T0]))
    for jd in range(1, 4):
        a(S(f"s_sub_u32 s{S_T0}, s{S_W}, {jd}", [S_W], [S_T0]))
        a(S(f"s_and_b32 s{S_T0}, s{S_T0}, 3", [S_T0], [S_T0]))
        a(S(f"s_lshl_b32 s{S_T0}, s{S_T0}, 13", [S_T0], [S_T0]))
        a(V(f"v_add_u32 v{V_CR+2*(jd-1)}, s{S_T0}, v{T0}", [T0, ('s', S_T0)], [V_CR+2*(jd-1)]))
        a(V(f"v_add_u32 v{V_CR+2*(jd-1)+1}, {64*KB}, v{V_CR+2*(jd-1)}", [V_CR+2*(jd-1)], [V_CR+2*(jd-1)+1]))
    a(V(f"v_add_u32 v{V_OL}, {96*KB}, v{T0}", [T0], [V_OL]))
    a(V(f"v_add_u32 v{V_OW}, s{S_W5K}, v{V_OL}", [V_OL, ('s', S_W5K)], [V_OW]))
    a(S(f"s_mov_b32 s{S_T0}, {102*KB}", [], [S_T0]))
    a(V(f"v_lshl_add_u32 v{V_LR}, v{V_N}, 5, s{S_T0}", [V_N, ('s', S_T0)], [V_LR]))
    a(S(f"s_add_u32 s{S_T0}, s{S_W8K}, {64*KB}", [S_W8K], [S_T0]))
    for e in range(2):
        a(V(f"v_subrev_u32 v{V_WT+e}, s{S_T0}, v{V_VA+e}", [V_VA+e, ('s', S_T0)], [V_WT+e]))
        a(V(f"v_add_u32 v{V_WT+2+e}, {64*KB}, v{V_WT+e}", [V_WT+e], [V_WT+2+e]))
        a(V(f"v_add_u32 v{V_WT+4+e}, {128*KB}, v{V_WT+e}", [V_WT+e], [V_WT+4+e]))
    a(S(f"s_lshl_b32 s{S_T0}, s{S_J}, 12", [S_J], [S_T0]))
    a(V(f"v_subrev_u32 v{V_OD}, s{S_T0}, v{V_OST}", [V_OST, ('s', S_T0)], [V_OD]))
    a(S(f"s_lshl_b32 s{S_T0}, s{S_B}, 2", [S_B], [S_T0]))
    a(S(f"s_add_u32 s{S_T0}, s{S_T0}, s{S_J}", [S_T0, S_J], [S_T0]))
    a(V(f"v_and_b32 v{T1}, 7, v{V_LANE}", [V_LANE], [T1]))
    a(S(f"s_lshl_b32 s{S_T0}, s{S_T0}, 2", [S_T0], [S_T0]))
    a(S(f"s_add_u32 s{S_T0}, s{S_T0}, s{S_W}", [S_T0, S_W], [S_T0]))
    a(S(f"s_mul_i32 s{S_T0}, s{S_T0}, {5*8*KB}", [S_T0], [S_T0]))
    a(S(f"s_lshl_b32 s{S_T2}, s{S_HKV}, 10", [S_HKV], [S_T2]))
    a(S(f"s_add_u32 s{S_T2}, s{S_T2}, s{S_T0}", [S_T2, S_T0], [S_T2]))
    a(V(f"v_add_u32 v{V_PS}, s{S_T2}, v{T0}", [T0, ('s', S_T2)], [V_PS]))
    a(V(f"v_lshl_add_u32 v{T1}, s{S_HKV}, 3, v{T1}", [T1, ('s', S_HKV)], [T1]))
    a(V(f"v_lshrrev_b32 v{T2}, 3, v{V_LANE}", [V_LANE], [T2]))
    a(V(f"v_lshl_add_u32 v{V_PLD}, v{T1}, 4, s{S_T0}", [T1, ('s', S_T0)], [V_PLD]))
    a(V(f"v_lshl_add_u32 v{V_PLD}, v{T2}, 13, v{V_PLD}", [T2, V_PLD], [V_PLD]))
    a(V(f"v_lshlrev_b32 v{T2}, 14, v{T2}", [T2], [T2]))
    a(V(f"v_and_b32 v{T0}, 15, v{T1}", [T1], [T0]))
    a(V(f"v_lshl_add_u32 v{T2}, v{T0}, 10, v{T2}", [T0, T2], [T2]))
    a(V(f"v_lshrrev_b32 v{T1}, 4, v{T1}", [T1], [T1]))
    a(V(f"v_lshl_add_u32 v{T2}, v{T1}, 3, v{T2}", [T1, T2], [T2]))
    a(S(f"s_mul_i32 s{S_T0}, s{S_B}, 81920", [S_B], [S_T0]))
    a(S(f"s_lshl_b32 s{S_T2}, s{S_J}, 8", [S_J], [S_T2]))
    a(S(f"s_add_u32 s{S_T0}, s{S_T0}, s{S_T2}", [S_T0, S_T2], [S_T0]))
    a(S(f"s_lshl_b32 s{S_T2}, s{S_W}, 6", [S_W], [S_T2]))
    a(S(f"s_add_u32 s{S_T0}, s{S_T0}, s{S_T2}", [S_T0, S_T2], [S_T0]))
    a(V(f"v_add_u32 v{V_OUT}, s{S_T0}, v{T2}", [T2, ('s', S_T0)], [V_OUT]))
    a(V(f"v_cmp_gt_u32 vcc, 40, v{V_LANE}", [V_LANE], [VCC]))
    a(V(f"v_mov_b32 v{T0}, 0x7ff00000", [], [T0]))
    a(V(f"v_cndmask_b32 v{V_PLD}, v{T0}, v{V_PLD}, vcc", [T0, V_PLD, VCC], [V_PLD]))
    a(V(f"v_cndmask_b32 v{V_OUT}, v{T0}, v{V_OUT}, vcc", [T0, V_OUT, VCC], [V_OUT]))
    for pv_, n_, sh, sg_ in ((V_P1, 4, 9, S_G1), (V_P2, 8, 11, S_G2)):
        a(V(f"v_lshl_add_u32 v{pv_}, v{V_LANE}, {sh}, s{sg_}", [V_LANE, ('s', sg_)], [pv_]))
        a(V(f"v_cmp_gt_u32 vcc, {n_}, v{V_LANE}", [V_LANE], [VCC]))
        a(V(f"v_cndmask_b32 v{pv_}, v{T0}, v{pv_}, vcc", [T0, pv_, VCC], [pv_]))
    for k in range(5): a(S(f"s_mov_b32 s{S_TAB+k}, {k*8192}", [], [S_TAB+k]))
    return o
def wod_calc():
    o = []; a = o.append
    T0, T1 = 252, 253
    a(S(f"s_lshl_b32 s{S_T0}, s{S_B}, 2", [S_B], [S_T0]))
    a(S(f"s_add_u32 s{S_T0}, s{S_T0}, s{S_W}", [S_T0, S_W], [S_T0]))
    a(S(f"s_lshl_b32 s{S_T0}, s{S_T0}, 14", [S_T0], [S_T0]))
    a(S(f"s_lshl_b32 s{S_T2}, s{S_J}, 8", [S_J], [S_T2]))
    a(S(f"s_add_u32 s{S_T0}, s{S_T0}, s{S_T2}", [S_T0, S_T2], [S_T0]))
    a(V(f"v_bfe_u32 v{T0}, v{V_LANE}, 1, 4", [V_LANE], [T0]))
    a(V(f"v_and_b32 v{T1}, 1, v{V_LANE}", [V_LANE], [T1]))
    a(V(f"v_lshlrev_b32 v{T1}, 7, v{T1}", [T1], [T1]))
    a(V(f"v_lshl_add_u32 v{T0}, v{T0}, 10, v{T1}", [T0, T1], [T0]))
    a(V(f"v_add_u32 v{V_TCH}, s{S_T0}, v{T0}", [T0, ('s', S_T0)], [V_TCH]))
    a(S(f"s_and_b32 s{S_T0}, s{S_W}, 1", [S_W], [S_T0]))
    a(S(f"s_lshl_b32 s{S_T0}, s{S_T0}, 3", [S_T0], [S_T0]))
    a(V(f"v_lshl_add_u32 v{T0}, v{V_G}, 1, s{S_T0}", [V_G, ('s', S_T0)], [T0]))
    a(V(f"v_xor_b32 v{T0}, v{V_N}, v{T0}", [V_N, T0], [T0]))
    a(S(f"s_lshl_b32 s{S_T0}, s{S_J}, 8", [S_J], [S_T0]))
    a(V(f"v_lshl_add_u32 v{T0}, v{T0}, 4, s{S_T0}", [T0, ('s', S_T0)], [T0]))
    a(V(f"v_lshl_add_u32 v{T1}, s{S_W}, 2, v{V_G}", [V_G, ('s', S_W)], [T1]))
    a(V(f"v_lshl_add_u32 v{V_WOD}, v{T1}, 10, v{T0}", [T0, T1], [V_WOD]))
    return o

def phase_b(sg, Q, qr):
    NT = 8
    calc = wod_calc() + tail_calc()
    sg.addall(qr[:4])
    qr = qr[4:]
    for tau in range(-1, 40):
        i, q = divmod(tau, 5) if tau >= 0 else (-1, 4)
        mf = []
        bst = [int(x) for x in opt.bst.split(',')]
        if tau in bst: stamp(sg, 5 + bst.index(tau), 'B')
        if tau + 1 < 40: mf += qk(tau + 1)
        if tau - 1 >= 0: mf += pv(tau - 1)
        ds, marks = [], []
        if tau == -1: ds = qr
        elif tau == 0: ds = v_reads(0); marks = [('vr', 0, 0), ('vr', 0, 1)]
        elif tau < 27:
            if q == 2: ds = k_reads(i + 1)[:4]; marks = [('kr', i + 1, 0)]
            if q == 3: ds = k_reads(i + 1)[4:] + v_reads(i + 1)[:2]; marks = [('kr', i + 1, 1)]
            if q == 4: ds = v_reads(i + 1)[2:8]; marks = [('vr', i + 1, 0)]
            if q == 0: ds = v_reads(i)[8:14]
            if q == 1 and i > 0: ds = v_reads(i)[14:]; Q.mark(('vr', i, 1))
        xp = None
        if tau >= 27:
            k6, k7, v6, v7 = k_reads(6), k_reads(7), v_reads(6), v_reads(7)
            vo = [v7[l + 8 * h] for l in range(8) for h in range(2)]
            G = [1, 3, 5, 7, 9, 11, 13, 15, 16]
            def cwp(q_, second):
                w_ = comb_writes(q_)
                if int(opt.w64) and q_ < 2:
                    h_ = []
                    for x in w_[1:]:
                        m_ = re.match(r"ds_write_b128 v(\d+), a\[(\d+):\d+\] offset:(\d+)", x.t)
                        for z in range(2): h_.append(dswr('ds_write_b64', int(m_.group(1)), ('a', int(m_.group(2)) + 2 * z), 2, int(m_.group(3)) + 8 * z, lgtag=x.lgtag))
                    return list(zip([1, 3, 5, 9, 13, 16], h_[6:])) if second else list(zip([7, 1, 3, 5, 9, 13, 16], [w_[0]] + h_[:6]))
                return list(zip([1, 9, 13], w_[4:])) if second else list(zip([7, 1, 9, 13], w_[:4]))
            xp = {27: list(zip([3, 5, 9, 11, 15, 16], k6[:4] + v6[:2])),
                  28: list(zip([1, 3, 5, 7, 9, 11, 13, 15, 16], k6[4:] + k7[:5])),
                  29: list(zip(G, k7[5:] + v6[2:8])),
                  30: list(zip([1, 3, 5, 7, 9, 11, 13, 15, 16, 16], v6[8:] + vo[:2])),
                  31: list(zip([1, 1, 3, 5, 5, 7, 9, 9, 11, 13, 13, 15, 16, 16], vo[2:])),
                  32: [], 33: cwp(0, 0), 34: cwp(0, 1), 35: cwp(1, 0), 36: cwp(1, 1), 37: cwp(2, 0),
                  38: cwp(2, 1) + list(zip([3, 5, 5, 7, 11, 15, 16, 16], lreads((0, 1)) + preads(0)[:4])),
                  39: list(zip([0, 2, 4, 6], comb_writes(3)[:4])) + list(zip([1, 1, 3, 3, 5, 5, 7, 7], preads(0)[4:] + preads(1)))}[tau]
            ds = [x for _, x in xp]; marks = []
            if tau == 38:
                b = barrier(needvm=[('wo', -1)], lg0=False); b.needlg = (('cw', 0), ('cw', 1)); sg.add(b)
        n = len(mf)
        gaps = [[] for _ in range(n)]
        e, c = sm(tau) if 0 <= tau < 40 else ([], [])
        if n == 17:
            epos = [0, 2, 4, 6, 8, 10, 12, 14]; cpos = [3, 7, 11, 15]
            dpos = [1, 3, 5, 7, 9, 11, 13, 15] if len(ds) > 4 else [1, 3, 5, 7]
            if ds and ds[0].k == 'dswr': dpos = [1, 1, 3, 7, 9, 13, 16]
            vpos = [1, 5, 9, 13] if (tau < int(opt.even_at) or q == 1) else [1, 7, 13]
            if int(opt.bsched) and not (ds and ds[0].k == 'dswr'):
                if q == 1: dpos, vpos = [1, 3], [5, 9, 13, 16]
                elif tau < int(opt.even_at) or tau >= int(opt.even_end): dpos, vpos = ([3, 7, 11, 15, 16, 16] if q != 3 else [1, 3, 7, 11, 15, 16]), ([1, 5, 9, 13] if q != 3 else [5, 9, 13, 16])
                else: dpos, vpos = [3, 5, 9, 11, 15, 16], [1, 7, 13]
        else:
            epos = list(range(8)); cpos = [min(n - 1, x) for x in (2, 4, 6, 8)]
            dpos = [(k * n) // max(1, len(ds)) for k in range(len(ds))]
            vpos = [1, 5]
        if xp is not None:
            dpos = [g_ for g_, _ in xp]; vpos = [7, 11, 15] if tau >= 32 else [13]
            if tau == 27: vpos = [1, 7, 13]
        for x, p_ in zip(ds, dpos): gaps[p_].append(x)
        if tau == int(opt.nl_at):
            sg.add(V("v_mov_b32 v9, 0", [], [9]))
            Q.q.insert(0, Item([], vload(('v', V_GC), 2, 9, S_D, None, 0, flags=' sc1', tag='non')))
        if tau == int(opt.nc_at):
            assert not any(it.ins.vmtag == 'non' for it in Q.q)
            sg.add(V(f"v_readfirstlane_b32 s{S_NON}, v{V_GC}", [V_GC], [('s', S_NON)]))
            sg.add(V(f"v_readfirstlane_b32 s{S_NON+1}, v{V_GC+1}", [V_GC+1], [('s', S_NON+1)]))
            sg.add(S(f"s_cmp_eq_u64 s[{S_NON}:{S_NON+1}], 0", [S_NON, S_NON+1], []))
            sg.text("s_cbranch_scc1 L_spin_n"); sg.text("L_back_n:")
        if tau == int(opt.bar_at): sg.add(barrier(lg0=False))
        for x in ds:
            while any(it.ins.vmtag in x.needvm for it in Q.q): weave(sg, Q, [], 1, 0)
        if tau == int(opt.tch_at): Q.push([Item([], vload(('v', V_TCH + 1), 1, V_TCH, S_WO, None, 0, flags=opt.tch_flags))])
        if tau == int(opt.tlb_at):
            Q.push([Item([], vload(('v', 72), 1, V_ZERO, S_C, S_F1, 0, flags=' sc1')), Item([], vload(('v', 73), 1, V_ZERO, S_C, S_F2, 0, flags=' sc1'))])
        if tau == int(opt.wo_at): assert not calc; Q.push(wo_dma(-1))
        place(gaps, Q, vpos)
        for x, p_ in zip(e, epos): gaps[p_].append(x)
        for x, p_ in zip(c, cpos): gaps[p_].append(x)
        if tau >= int(opt.calc_at) and n == 17:
            for gi in range(17):
                if calc and calc[0].k == 'salu' and not any(y.k == 'salu' for y in gaps[gi]): gaps[gi].insert(0, calc.pop(0))
                cost = sum(8 if y.k == 'trans' else 0 if y.k == 'salu' else 4 for y in gaps[gi])
                while calc and calc[0].k != 'salu' and cost <= 4: gaps[gi].append(calc.pop(0)); cost += 4
        sg.addall(interleave(mf, gaps))
        for m in marks: Q.mark(m)

def poll(sg, lab, vaddr):
    sg.text(f"s_mov_b32 s{S_SPIN}, {opt.spin}")
    sg.text(f"{lab}:")
    sg.text(f"buffer_load_dwordx2 v[250:251], v{vaddr}, s[{S_C}:{S_C+3}], 0 offen sc1")
    sg.text(f"s_sub_u32 s{S_SPIN}, s{S_SPIN}, 1")
    sg.text("s_waitcnt vmcnt(0)")
    sg.text(f"v_cmp_ne_u64 vcc, s[{S_NON}:{S_NON+1}], v[250:251]")
    sg.text(f"s_cmp_eq_u32 s{S_SPIN}, 0")
    sg.text(f"s_cbranch_scc1 {lab}_done")
    sg.text("s_nop 2")
    sg.text(f"s_cbranch_vccnz {lab}")
    sg.text(f"{lab}_done:")
    sg.vm = []
def raise_flag(sg, stage, tag):
    ins = vstore(('v', V_GC), 2, V_P1 if stage == 1 else V_P2, S_C, None, 0, flags=' sc1')
    ins.needvm = (tag,)
    sg.add(ins)
WOF = A_Q
RES = 100
def part(q, k):
    if q == 0: return 36 + 4 * k if k < 4 else 64 + 4 * (k - 4)
    return {1: 100, 2: 164, 3: 188, 4: 100}[q] + 4 * k
def preads(q):
    o = []
    for jd in range(1, 4):
        for e in range(2):
            k = (jd - 1) * 2 + e; u = q * 6 + k; row = u >> 3
            o.append(dsrd('ds_read_b128', ('v', part(q, k)), 4, V_CR + 2 * (jd - 1) + (row >> 1), (row & 1) * 32 * KB + (u & 7) * KB))
    return o
LSA, LSB = 124, 76
def lreads(qs):
    if qs == (0, 1): return [dsrd('ds_read_b64', ('v', LSA + src * 2), 2, V_LR, src * 8 * KB) for src in range(4)]
    return [dsrd('ds_read_b128', ('v', LSB + src * 4), 4, V_LR, src * 8 * KB + 16) for src in range(4)]
def lsum(qs):
    w = []
    def lr(src, q): return LSA + src * 2 + q if q < 2 else LSB + src * 4 + q - 2
    LS = lr(0, qs[0])
    for q in qs:
        d = V_T0 + q
        w.append(V(f"v_add_f32 v{d}, v{lr(0,q)}, v{lr(1,q)}", [lr(0,q), lr(1,q)], [d]))
        w.append(V(f"v_add_f32 v{lr(2,q)}, v{lr(2,q)}, v{lr(3,q)}", [lr(2,q), lr(3,q)], [lr(2,q)]))
        w.append(V(f"v_add_f32 v{d}, v{d}, v{lr(2,q)}", [d, lr(2,q)], [d]))
    a_, b_, c_ = V_T0 + qs[0], V_T0 + qs[1], V_T0 + qs[-1]
    w.append(V(f"v_min3_f32 v{LS}, v{a_}, v{b_}, v{c_}", [a_, b_, c_], [LS]))
    w.append(V(f"v_add_f32 v{LS+1}, v{a_}, v{b_}", [a_, b_], [LS+1]))
    w.append(V(f"v_add_f32 v{LS+1}, v{LS+1}, v{c_}", [LS+1, c_], [LS+1]))
    w.append(V(f"v_cmp_nle_f32 vcc, {f2h(2.0**int(opt.lo_exp))}, v{LS}", [LS], [VCC]))
    w.append(S(f"s_mov_b64 s[{S_EX}:{S_EX+1}], vcc", [VCC], [S_EX, S_EX+1]))
    w.append(V(f"v_cmp_nge_f32 vcc, {f2h(2.0**int(opt.hi_exp))}, v{LS+1}", [LS+1], [VCC]))
    w.append(S(f"s_or_b64 vcc, vcc, s[{S_EX}:{S_EX+1}]", [VCC, S_EX, S_EX+1], [VCC]))
    w.append(S(f"s_and_b64 vcc, vcc, s[{S_GM}:{S_GM+1}]", [VCC], [VCC]))
    w.append(raw("s_cbranch_vccnz L_redo"))
    for q in qs: w.append(T(f"v_rcp_f32 v{V_T0+q}, v{V_T0+q}", [V_T0+q], [V_T0+q]))
    return w
def finish(q):
    w = []
    for e in range(2):
        o_ = V_OWN[q] + e * 4
        for jd in range(1, 4):
            p_ = part(q, (jd - 1) * 2 + e)
            for r in (0, 2):
                w.append(V(f"v_pk_add_f32 v[{o_+r}:{o_+r+1}], v[{o_+r}:{o_+r+1}], v[{p_+r}:{p_+r+1}]", [o_+r, o_+r+1, p_+r, p_+r+1], [o_+r, o_+r+1]))
    o_ = V_OWN[q]
    ri = V_T0 + (q & ~1); sel = "op_sel:[0,1] op_sel_hi:[1,1]" if q & 1 else "op_sel:[0,0] op_sel_hi:[1,0]"
    for r in range(0, 8, 2):
        w.append(V(f"v_pk_mul_f32 v[{o_+r}:{o_+r+1}], v[{o_+r}:{o_+r+1}], v[{ri}:{ri+1}] {sel}", [o_+r, o_+r+1, V_T0+q], [o_+r, o_+r+1]))
    for r in range(4):
        w.append(V(f"v_cvt_pk_bf16_f32 v{o_+r}, v{o_+2*r}, v{o_+2*r+1}", [o_+2*r, o_+2*r+1], [o_+r]))
    w.append(S(f"s_mov_b32 s{S_SV}, {q*128*KB}", [], [S_SV]))
    w.append(vstore(('v', o_), 4, V_OST, S_O, S_SV, 0, flags=opt.o_flags, tag='ost'))
    return w
def wor():
    return [dsrd('ds_read_b64_tr_b16', ('a', WOF + (ks * 2 + e) * 4 + h * 2), 2, V_WT + 4 + e, ks * 8 * KB + h * 4096) for ks in range(4) for e in range(2) for h in range(2)]
def combine(sg, Q):
    assert not Q.q
    mf = pv(39); gaps = [[] for _ in mf]
    wr = comb_writes(3)[4:]; ls = lsum((0, 1))
    for k, x in enumerate(wr): gaps[3 * k].append(x)
    k = 0
    for gi in range(9):
        n_ = 2 - len(gaps[gi])
        while ls and (n_ > 0 or ls[0].k == 'salu') and gi < 9:
            x = ls.pop(0); gaps[gi].append(x)
            n_ -= 0 if x.k == 'salu' else 2 if x.k == 'trans' else 1
    sg.addall(interleave(mf, gaps))
    stamp(sg, 4)
    w4 = comb_writes(4)
    w = ls + finish(0) + finish(1)
    for k, x in enumerate(w4): w.insert(min(len(w), 6 + k * 6), x)
    sg.addall(w)
    sg.add(barrier())
    stamp(sg, 5)
    Q.push(wo_dma(0))
    rd = lreads((2, 3, 4)) + preads(2) + preads(3)
    weave(sg, Q, rd, int(opt.cw), 2)
    sg.addall(rd)
    w = lsum((2, 3, 4)) + preads(4) + finish(2) + finish(3) + finish(4)
    for k, x in enumerate(wor()): w.insert(30 + 3 * k, x)
    sg.addall(w)
    stamp(sg, 6)

def phase_c(sg, Q):
    a = sg.add
    ACC = 164
    a(barrier())
    stamp(sg, 5, 'D')
    for q in range(5): a(dswr('ds_write_b128', V_OW, ('v', V_OWN[q]), 4, q * KB))
    Q.push(wo_dma(1) + wo_dma(2))
    weave(sg, Q, [], int(opt.shadow), 0)
    stamp(sg, 6, 'D')
    a(barrier())
    def CF(k): return [(100, 120), (64, 84), (204, 36)][k % 3]
    def c_reads(k):
        pos, ks = divmod(k, 4); pos -= 1
        xf, wf = CF(k)
        ob = 0 if pos < 0 else (44 - 20 * pos) * KB
        xr = [dsrd('ds_read_b128', ('v', xf + q * 4), 4, V_OL, ob + (ks * 5 + q) * KB) for q in range(5)]
        if pos < 0: return xr
        wb = (pos * 4 + ks) * 8 * KB
        wr = [dsrd('ds_read_b64_tr_b16', ('v', wf + e * 4 + h * 2), 2, V_WT + (2 if wb >= 64 * KB else 0) + e, (wb % (64 * KB)) + h * 4096) for e in range(2) for h in range(2)]
        return wr[:2] + xr[:1] + wr[2:] + xr[1:]
    def c_mfmas(k):
        xf, wf = CF(k)
        ff = 'v'
        if k < 4: wf, ff = WOF + k * 8, 'a'
        o = []
        for q in range(5):
            for e in range(2):
                d = ('v', ACC + (q * 2 + e) * 4)
                o.append(mfma(d, (ff, wf + e * 4), ('v', xf + q * 4), 0 if k == 0 else d))
        o[0].r |= set(R('v', xf, 20) + R(ff, wf, 8))
        return o
    def step(k, nx, pos=()):
        mf = c_mfmas(k); gaps = [[] for _ in mf]
        if nx is not None:
            for i, r in enumerate(c_reads(nx)): gaps[i].append(r)
        place(gaps, Q, pos)
        sg.addall(interleave(mf, gaps))
    def own_steps():
        for k in range(4): step(k, k + 2 if k < 2 else None, [1, 5, 9] if k % 2 == 0 else [3, 7])
    sg.addall(c_reads(0)); sg.addall(c_reads(1))
    raise_flag(sg, 1, 'ost')
    stamp(sg, 7, 'D'); stamp(sg, 7)
    weave(sg, Q, [], len(Q.q), 0)
    stamp(sg, 8, 'D')
    t = [f"s_mov_b32 s{S_SPIN}, {opt.spin}", "L_poll1:", f"s_load_dwordx8 s[4:11], s[{S_C}:{S_C+1}], s{S_F1} glc", f"s_sub_u32 s{S_SPIN}, s{S_SPIN}, 1", "s_waitcnt lgkmcnt(0)",
         f"s_cmp_eq_u32 s{S_SPIN}, 0", "s_cbranch_scc1 L_poll1_done"]
    t += [f"s_lshl_b32 s{S_T0}, 1, s{S_J}"]
    for h in range(4): t += [f"s_cmp_eq_u64 s[{4+2*h}:{5+2*h}], s[{S_NON}:{S_NON+1}]", f"s_cselect_b32 s{S_T1}, {1 << h}, 0", f"s_or_b32 s{S_T0}, s{S_T0}, s{S_T1}"]
    t += [f"s_cmp_lg_u32 s{S_T0}, 15", "s_cbranch_scc1 L_poll1", "L_poll1_done:"]
    for x in t: sg.text(x)
    sg.lg = []
    stamp(sg, 9, 'D')
    stamp(sg, 5, 'E')
    stamp(sg, 8)
    Q.push(osib_dma(0) + osib_dma(1))
    weave(sg, Q, [], 5, 0); own_steps()
    weave(sg, Q, [], len(Q.q), 0)
    stamp(sg, 6, 'E')
    a(barrier(needvm=[('os', 0), ('wo', 0), ('wo', 1)]))
    stamp(sg, 7, 'E')
    Q.push(osib_dma(2))
    sg.addall(c_reads(4)); sg.addall(c_reads(5))
    def pfin(q):
        b = ACC + q * 8
        return [V(f"v_cvt_pk_bf16_f32 v{b+r}, v{b+2*r}, v{b+2*r+1}", [b+2*r, b+2*r+1], [b+r]) for r in range(4)] + [vstore(('v', b), 4, V_PS, S_WT, S_TAB + q, 0, flags=' sc1', tag='pst')]
    last = 16 - (2 if int(opt.qmaj) else 0)
    for k in range(4, last):
        nx = k + 2 if k + 2 < 16 else None
        if nx in (8, 12):
            assert not Q.q or nx == 8
            a(barrier(needvm=[('os', nx // 4 - 1), ('wo', nx // 4 - 1)], lg0=False))
            stamp(sg, 8 if nx == 8 else 9, 'E')
        step(k, nx, [1, 5, 9] if k % 2 == 0 else [3, 7])
    if int(opt.qmaj):
        m14, m15 = c_mfmas(14), c_mfmas(15)
        m15[0].r -= set(R('v', CF(15)[0] + 4, 16))
        mf = flat([[m14[2*q], m15[2*q], m14[2*q+1], m15[2*q+1]] for q in range(5)])
        gaps = [[] for _ in mf]
        for q in range(4):
            f_ = pfin(q)
            g0 = 4 * q + 6
            if g0 + 2 < 20:
                gaps[g0] += f_[0:2]; gaps[g0 + 1] += f_[2:4]; gaps[g0 + 2] += f_[4:]
        sg.addall(interleave(mf, gaps))
        stamp(sg, 9)
        sg.addall(pfin(3) + pfin(4))
    else:
        stamp(sg, 9)
        for q in range(5): sg.addall(pfin(q))
    a(S(f"s_mov_b32 s{S_SO}, 4096", [], [S_SO]))
    a(S(f"s_mov_b32 s{S_T1}, 0xffff0000", [], [S_T1]))
    a(S(f"s_mov_b32 s{S_SPIN}, {opt.spin}", [], [S_SPIN]))
    a(S(f"s_mov_b32 s{S_T2}, 0", [], [S_T2]))
    a(S(f"s_mov_b32 s{S_SK}, 0", [], [S_SK]))
    if int(opt.f2wg):
        a(barrier(needvm=['pst'], lg0=False))
        sg.text(f"s_cmp_lg_u32 s{S_W}, 0"); sg.text("s_cbranch_scc1 L_sig2"); raise_flag(sg, 2, 'pst'); sg.text("L_sig2:")
    else: raise_flag(sg, 2, 'pst')
    stamp(sg, 5, '2')
    PB, SM = 100, 132
    def pl(h): return vload(('v', PB + 4 * h), 4, V_PLD, S_WT, S_SO if h >= 4 else None, (h & 3) * 1024, flags=' sc1')
    t = ["L_poll2:", f"s_load_dwordx16 s[4:19], s[{S_C}:{S_C+1}], s{S_F2} glc", f"s_cmp_eq_u32 s{S_SK}, 0", "s_cbranch_scc1 L_nounp", "L_unp:", "s_waitcnt vmcnt(0)"]
    for h in range(8):
        t += [f"s_bitcmp1_b32 s{S_SK}, {h}", f"s_cbranch_scc0 L_u{h}"]
        for r in range(4): t += [f"v_lshlrev_b32 v{SM+8*h+2*r}, 16, v{PB+4*h+r}", f"v_and_b32 v{SM+8*h+2*r+1}, s{S_T1}, v{PB+4*h+r}"]
        t += [f"L_u{h}:"]
    t += [f"s_cmp_eq_u32 s{S_T2}, 0xff", "s_cbranch_scc1 L_poll2_done", "L_nounp:", f"s_mov_b32 s{S_SK}, 0", f"s_sub_u32 s{S_SPIN}, s{S_SPIN}, 1", "s_waitcnt lgkmcnt(0)",
          f"s_cmp_eq_u32 s{S_SPIN}, 0", "s_cbranch_scc1 L_poll2_done"]
    for h in range(8):
        t += [f"s_cmp_lg_u64 s[{4+2*h}:{5+2*h}], s[{S_NON}:{S_NON+1}]", f"s_cbranch_scc1 L_g{h}", f"s_bitcmp1_b32 s{S_T2}, {h}", f"s_cbranch_scc1 L_g{h}",
              f"s_bitset1_b32 s{S_T2}, {h}", f"s_bitset1_b32 s{S_SK}, {h}", pl(h).t, f"L_g{h}:"]
    t += [f"s_cmp_lg_u32 s{S_T2}, 0xff", "s_cbranch_scc1 L_poll2", "s_branch L_unp", "L_poll2_done:"]
    if not int(opt.unp):
        t = ["L_poll2:", f"s_load_dwordx16 s[4:19], s[{S_C}:{S_C+1}], s{S_F2} glc", f"s_sub_u32 s{S_SPIN}, s{S_SPIN}, 1", "s_waitcnt lgkmcnt(0)", f"s_cmp_eq_u32 s{S_SPIN}, 0", "s_cbranch_scc1 L_poll2_done"]
        for h in range(8):
            t += [f"s_cmp_lg_u64 s[{4+2*h}:{5+2*h}], s[{S_NON}:{S_NON+1}]", f"s_cbranch_scc1 L_g{h}", f"s_bitcmp1_b32 s{S_T2}, {h}", f"s_cbranch_scc1 L_g{h}",
                  f"s_bitset1_b32 s{S_T2}, {h}", f"s_bitset1_b32 s{S_SK}, {h}", pl(h).t, f"L_g{h}:"]
        t += [f"s_cmp_eq_u32 s{S_T2}, 0xff", "s_cbranch_scc1 L_poll2_done", f"s_mov_b32 s{S_SK}, 0", "s_branch L_poll2", "L_poll2_done:"]
        t += ["s_waitcnt vmcnt(0)"]
        for h in range(8):
            for r in range(4): t += [f"v_lshlrev_b32 v{SM+8*h+2*r}, 16, v{PB+4*h+r}", f"v_and_b32 v{SM+8*h+2*r+1}, s{S_T1}, v{PB+4*h+r}"]
    for x in t: sg.text(x)
    sg.vm = []
    stamp(sg, 6, '2')
    for h in range(1, 8):
        for r in range(0, 8, 2):
            u = SM + 8 * h + r
            a(V(f"v_pk_add_f32 v[{SM+r}:{SM+r+1}], v[{SM+r}:{SM+r+1}], v[{u}:{u+1}]", [SM+r, SM+r+1, u, u+1], [SM+r, SM+r+1]))
    for r in range(4):
        a(V(f"v_cvt_pk_bf16_f32 v{SM+r}, v{SM+2*r}, v{SM+2*r+1}", [SM+2*r, SM+2*r+1], [SM+r]))
    a(vstore(('v', SM), 2, V_OUT, S_OUT, None, 0, flags=opt.out_flags))
    a(vstore(('v', SM + 2), 2, V_OUT, S_OUT, None, 32, flags=opt.out_flags))

def out_of_line():
    t = []
    t += ["L_spin_n:", f"s_mov_b32 s{S_SPIN}, {opt.spin}", "L_spin_n1:",
          f"buffer_load_dwordx2 v[{V_GC}:{V_GC+1}], v9, s[{S_D}:{S_D+3}], 0 offen sc1", f"s_sub_u32 s{S_SPIN}, s{S_SPIN}, 1", "s_waitcnt vmcnt(0)",
          f"v_readfirstlane_b32 s{S_NON}, v{V_GC}", f"v_readfirstlane_b32 s{S_NON+1}, v{V_GC+1}", f"s_cmp_eq_u32 s{S_SPIN}, 0", "s_cbranch_scc1 L_back_n", "s_nop 2",
          f"s_cmp_eq_u64 s[{S_NON}:{S_NON+1}], 0", "s_cbranch_scc1 L_spin_n1", "s_branch L_back_n"]
    t += ["L_redo:", f"s_mov_b64 s[{S_GM}:{S_GM+1}], 0", f"s_mov_b32 s{S_REDO}, 1",
          "s_waitcnt vmcnt(0) lgkmcnt(0)", "s_barrier"]
    sg = Seg()
    p1 = prologue1()
    a = sg.add
    a(V(f"v_lshl_add_u32 v{V_T0}, s{S_W}, 2, v{V_G}", [V_G], [V_T0]))
    a(V(f"v_xor_b32 v{V_T1}, v{V_N}, v{V_T0}", [V_N, V_T0], [V_T1]))
    a(V(f"v_lshlrev_b32 v{V_T1}, 4, v{V_T1}", [V_T1], [V_T1]))
    a(V(f"v_lshl_add_u32 v{V_XD}, v{V_T0}, 10, v{V_T1}", [V_T0, V_T1], [V_XD]))
    a(S(f"s_and_b32 s{S_T0}, s{S_W}, 2", [S_W], [S_T0]))
    a(S(f"s_lshl_b32 s{S_T0}, s{S_T0}, 2", [S_T0], [S_T0]))
    a(V(f"v_lshl_add_u32 v{V_T1}, v{V_G}, 1, s{S_T0}", [V_G], [V_T1]))
    a(V(f"v_xor_b32 v{V_T1}, v{V_N}, v{V_T1}", [V_N, V_T1], [V_T1]))
    a(V(f"v_lshlrev_b32 v{V_T1}, 4, v{V_T1}", [V_T1], [V_T1]))
    a(V(f"v_lshl_add_u32 v{V_WD}, v{V_T0}, 13, v{V_T1}", [V_T0, V_T1], [V_WD]))
    t += sg.out + ["s_nop 4", "s_branch L_restart"]
    sg = Seg(); a = sg.add
    sg.text("L_max:")
    sg.text(f"s_mov_b32 s{S_SPIN}, m0")
    sg.drain()
    sg.text("s_barrier")
    MX, KF, AD = 76, V_VF, 84
    for q in range(5): a(V(f"v_mov_b32 v{MX+q}, 0xff800000", [], [MX+q]))
    for s in range(4): a(V(f"v_add_u32 v{AD+s}, {96*KB}, v{V_KA+s}", [V_KA+s], [AD+s]))
    a(S(f"s_mov_b32 s{S_T2}, 0", [], [S_T2]))
    sg.text("L_max_loop:"); sg.reset_hist()
    for j in range(8):
        if j % 4 == 0:
            a(S(f"s_add_u32 s{S_T1}, s{S_T2}, {(j>>2)*4096}", [S_T2], [S_T1]))
            a(S(f"s_add_u32 m0, s{S_W8K}, {96*KB + (j>>2)*4096}", [S_W8K], [M0]))
        a(dma(V_KD + (j & 3), S_K, S_T1, 1024 * (j & 3), 'mk'))
    for t_ in range(2):
        for s in range(4):
            a(dsrd('ds_read_b128', ('v', KF + (t_ * 4 + s) * 4), 4, AD + s, t_ * 4096, needvm=['mk']))
    for q in range(5):
        for t_ in range(2):
            d = ('v', 88 + t_ * 4)
            for s in range(4): a(mfma(d, ('v', KF + (t_ * 4 + s) * 4), AQ(q, s), 0 if s == 0 else d))
        for k in range(4):
            a(V(f"v_max3_f32 v{MX+q}, v{MX+q}, v{88+2*k}, v{89+2*k}", [MX+q, 88+2*k, 89+2*k], [MX+q]))
    sg.drain()
    a(S(f"s_add_u32 s{S_T2}, s{S_T2}, 8192", [S_T2], [S_T2]))
    sg.text(f"s_cmp_lt_u32 s{S_T2}, 65536"); sg.text("s_nop 4"); sg.text("s_cbranch_scc1 L_max_loop")
    sg.text("s_barrier")
    a(S(f"s_mul_i32 s{S_T0}, s{S_W}, 1280", [S_W], [S_T0]))
    a(S(f"s_add_u32 s{S_T0}, s{S_T0}, {96*KB}", [S_T0], [S_T0]))
    a(V(f"v_lshl_add_u32 v{AD}, v{V_LANE}, 2, s{S_T0}", [V_LANE], [AD]))
    a(S(f"s_mov_b32 s{S_T0}, {96*KB}", [], [S_T0]))
    a(V(f"v_lshl_add_u32 v{AD+1}, v{V_N}, 2, s{S_T0}", [V_N], [AD+1]))
    for q in range(5): a(dswr('ds_write_b32', AD, ('v', MX + q), 1, q * 256))
    a(barrier())
    for q in range(5):
        for k in range(16):
            a(dsrd('ds_read_b32', ('v', KF + k), 1, AD + 1, (k >> 2) * 1280 + q * 256 + (k & 3) * 64))
        for k in range(8):
            a(V(f"v_max3_f32 v{MX+q}, v{MX+q}, v{KF+2*k}, v{KF+2*k+1}", [MX+q, KF+2*k, KF+2*k+1], [MX+q]))
        for r in range(4):
            a(V(f"v_sub_f32 v{V_NEGM+q*4+r}, 0, v{MX+q}", [MX+q], [V_NEGM+q*4+r]))
    sg.drain()
    sg.text("s_barrier"); sg.text(f"s_mov_b32 m0, s{S_SPIN}"); sg.text("s_nop 4"); sg.text("s_branch L_back_max")
    return t + sg.out

def stamp_out(sg, n):
    if not opt.stamps: return
    stamp(sg, n - 1)
    t = ["s_load_dwordx2 s[4:5], s[0:1], 56", "s_waitcnt lgkmcnt(0)", f"s_add_u32 s4, s4, {16<<20}", "s_addc_u32 s5, s5, 0", "s_and_b32 s5, s5, 0xffff",
         "s_mov_b32 s6, 0x100000", "s_mov_b32 s7, 0x20000", "s_lshl_b32 s8, s2, 2", "s_add_u32 s8, s8, s32", "s_lshl_b32 s8, s8, 6", "v_mov_b32 v2, s8"]
    for i in range(n):
        t += [f"v_mov_b32 v3, s{3 if i == 0 else 76+2*i}", f"buffer_store_dword v3, v2, s[4:7], 0 offen offset:{4*i}"]
    for x in t: sg.text(x)

def kernel():
    sg = Seg()
    sg.text(NAME + "_kernel:")
    sg.text("s_cmp_ge_u32 s2, 256")
    sg.text("s_cbranch_scc1 L_end")
    if opt.stamps:
        stamp(sg, 0)
    p1 = prologue1()
    sg.addall(p1[:2])
    if int(opt.cpf):
        for x in ["s_getpc_b64 s[94:95]", "L_pc:", "s_lshr_b32 s3, s2, 3", "v_lshrrev_b32 v8, 6, v0", "v_and_b32 v9, 1, v0", "v_lshl_add_u32 v8, v8, 1, v9",
                  "v_lshl_add_u32 v8, s3, 3, v8", "v_lshlrev_b32 v8, 7, v8", "v_min_u32 v8, (L_code_end - L_pc - 4) & 0xffffff80, v8"] + (["global_load_dword v255, v8, s[94:95]"] if int(opt.cpf) == 1 else ["s_mov_b64 s[12:13], s[94:95]"]): sg.text(x)
    sg.addall(p1[2:])
    if opt.stamps:
        sg.text("s_mov_b32 s3, s76")
    p2 = prologue2()
    Q = Queue()
    first = x_dma(0) + w_dma(0) if not int(opt.wfirst) else w_dma(0) + x_dma(0)
    stamp(sg, 5, 'P')
    Q.push(first)
    weave(sg, Q, [], 9, 0)
    if int(opt.cpf) == 2: sg.text("global_load_dword v255, v8, s[12:13]")
    stamp(sg, 6, 'P')
    sg.addall(p2)
    stamp(sg, 7, 'P')
    sg.text("s_cmp_lg_u32 s2, 0"); sg.text("s_cbranch_scc1 L_nocz")
    lane0(sg, ["v_mov_b32 v9, 0", f"s_memrealtime s[{S_NON}:{S_NON+1}]", "s_waitcnt lgkmcnt(0)", f"s_or_b32 s{S_NON}, s{S_NON}, 1", f"v_mov_b32 v250, s{S_NON}", f"v_mov_b32 v251, s{S_NON+1}",
               f"buffer_store_dwordx2 v[250:251], v9, s[{S_D}:{S_D+3}], 0 offen sc1"], "L_nocz")
    sg.text("s_branch L_first")
    sg.text("L_restart:")
    s2 = Seg(); s2.addall(restart_setup()); Q2 = Queue(); Q2.push(x_dma(0) + w_dma(0) if not int(opt.wfirst) else w_dma(0) + x_dma(0)); weave(s2, Q2, [], 9, 0)
    for x in s2.out: sg.text(x)
    sg.text("L_first:")
    early, late = prologue3()
    early = early + late
    def BB(u): return f"B{u + 1}"
    Q.push(w_dma(1) + x_dma(1) + w_dma(2) + w_dma(3) + x_dma(2) + w_dma(4) + ((w_dma(5, 'B2') + x_dma(3)) if int(opt.la) else (x_dma(3) + w_dma(5, 'B2'))) + w_dma(6, 'B3') + w_dma(7, 'B4')
           + kv_dma('k', 0, 'B5') + kv_dma('v', 0, 'B6') + kv_dma('k', 1, 'B8') + kv_dma('v', 1, 'BQ'))
    for i in range(2, 8):
        if not int(opt.nodma): Q.push(kv_dma('k', i) + kv_dma('v', i))
    n0 = int(opt.n0) - 9
    weave(sg, Q, early, n0, (len(early) + n0 - 1) // n0)
    sg.addall(early)
    qr = phase_a(sg, Q)
    sg.addall(qr[:0])
    stamp(sg, 3)
    sg.text(f"s_cmp_eq_u32 s{S_REDO}, 0"); sg.text("s_cbranch_scc1 L_back_max")
    s2 = Seg(); s2.addall(qr)
    for x in s2.out: sg.text(x)
    sg.text("s_branch L_max")
    sg.text("L_back_max:")
    phase_b(sg, Q, qr)
    combine(sg, Q)
    phase_c(sg, Q)
    sg.text("L_fin:")
    stamp_out(sg, 11)
    sg.text("L_end:")
    sg.text("s_endpgm")
    return sg.out + ['L_code_end:'] + out_of_line()

def report_kernel():
    idx, mode = opt.report.split(',')
    if mode == 'next':
        return ["report_kernel:", "s_cmp_ge_u32 s2, 1", "s_cbranch_scc1 L3_end", "s_memrealtime s[12:13]", "s_load_dwordx2 s[4:5], s[0:1], 56", "s_waitcnt lgkmcnt(0)",
                f"s_add_u32 s4, s4, {17<<20}", "s_addc_u32 s5, s5, 0", "s_and_b32 s5, s5, 0xffff", "s_mov_b32 s6, 64", "s_mov_b32 s7, 0x20000", "v_mov_b32 v1, 0", "v_mov_b32 v2, s12",
                "buffer_store_dword v2, v1, s[4:7], 0 offen", "L3_end:", "s_endpgm"]
    t = ["report_kernel:", "s_cmp_ge_u32 s2, 1", "s_cbranch_scc1 L3_end", "s_load_dwordx2 s[4:5], s[0:1], 56", "s_waitcnt lgkmcnt(0)",
         f"s_add_u32 s4, s4, {16<<20}", "s_addc_u32 s5, s5, 0", "s_and_b32 s5, s5, 0xffff", "s_mov_b32 s6, 0x100000", "s_mov_b32 s7, 0x20000",
         "v_lshlrev_b32 v1, 8, v0", f"buffer_load_dword v2, v1, s[4:7], 0 offen offset:{4*int(idx)}", "buffer_load_dword v3, v1, s[4:7], 0 offen",
         "v_mov_b32 v4, 0", "v_mov_b32 v5, 0", "v_mov_b32 v6, -1", "ds_write_b32 v4, v5", "ds_write_b32 v4, v6 offset:8", "s_waitcnt vmcnt(0) lgkmcnt(0)", "s_barrier",
         "ds_min_u32 v4, v3 offset:8", "s_waitcnt lgkmcnt(0)", "s_barrier", "ds_read_b32 v6, v4 offset:8", "s_waitcnt lgkmcnt(0)", "v_sub_u32 v2, v2, v6",
         "v_lshrrev_b32 v7, 3, v0", "v_mul_u32_u24 v7, 52, v7", "v_lshrrev_b32 v7, 8, v7", "v_and_b32 v8, 1, v0", "v_sub_u32 v8, 6, v8", "v_cmp_lt_u32 vcc, v7, v8",
         "v_min_u32 v2, 10000, v2",
         ("ds_add_u32 v4, v2" if mode == 'mean' else "ds_max_u32 v4, v2"), "s_waitcnt lgkmcnt(0)", "s_barrier", "ds_read_b32 v6, v4", "s_memrealtime s[12:13]", "s_waitcnt lgkmcnt(0)",
         "v_readfirstlane_b32 s10, v6", "s_nop 4"]
    if mode == 'mean': t += ["s_mul_i32 s10, s10, 10", "s_lshr_b32 s10, s10, 8"]
    elif mode == 'max': t += ["s_mul_i32 s10, s10, 10"]
    else: t += ["s_mov_b32 s10, 0"]
    t += ["L3_spin:", "s_memrealtime s[14:15]", "s_waitcnt lgkmcnt(0)", "s_sub_u32 s14, s14, s12",
          "s_cmp_lt_u32 s14, s10", "s_cbranch_scc1 L3_spin", "L3_end:", "s_endpgm"]
    return t

def build():
    def fmt(l): return "\n".join(x if x.endswith(':') else "    " + x for x in l)
    nm = NAME + "_kernel"
    s = "; @launch grid=(256,1,1) block=(256,1,1) lds=163840\n"
    if opt.report:
        s = f"; @launch kernel={nm} grid=(256,1,1) block=(256,1,1) lds=163840\n; @launch kernel=report_kernel grid=(1,1,1) block=(256,1,1) lds=64\n"
    s += '.amdgcn_target "amdgcn-amd-amdhsa--gfx950"\n.text\n'
    s += f".globl {nm}\n.p2align 8\n.type {nm},@function\n" + fmt(kernel()) + "\n"
    if opt.report: s += ".globl report_kernel\n.p2align 8\n.type report_kernel,@function\n" + fmt(report_kernel()) + "\n"
    s += f""".section .rodata,"a"
.p2align 6
.amdhsa_kernel {nm}
  .amdhsa_next_free_vgpr 512
  .amdhsa_next_free_sgpr 102
  .amdhsa_accum_offset 256
  .amdhsa_group_segment_fixed_size 0
  .amdhsa_kernarg_size 64
  .amdhsa_user_sgpr_count 2
  .amdhsa_user_sgpr_kernarg_segment_ptr 1
  .amdhsa_system_sgpr_workgroup_id_x 1
  .amdhsa_float_denorm_mode_32 3
.end_amdhsa_kernel
"""
    if opt.report:
        s += """.p2align 6
.amdhsa_kernel report_kernel
  .amdhsa_next_free_vgpr 32
  .amdhsa_next_free_sgpr 32
  .amdhsa_accum_offset 32
  .amdhsa_group_segment_fixed_size 0
  .amdhsa_kernarg_size 64
  .amdhsa_user_sgpr_count 2
  .amdhsa_user_sgpr_kernarg_segment_ptr 1
  .amdhsa_system_sgpr_workgroup_id_x 1
.end_amdhsa_kernel
"""
    return s

if __name__ == '__main__':
    out = sys.argv[1] if len(sys.argv) > 1 else 'cdna_kernels/' + NAME + '.s'
    for a_ in sys.argv[2:]:
        k, v = a_.split('=', 1)
        setattr(opt, k, (' ' + v) if k.endswith('flags') and v else v)
    HOIST[0] = int(opt.hoist)
    txt = build()
    open(out, 'w').write(txt)
```

```python
import sys, struct, re
from dsl import *

KB = 1024
NAME = 'standalone__gqa_block_cached__near_ridge'
def f2h(x): return hex(struct.unpack('<I', struct.pack('<f', x))[0])
QSCALE = 1.4426950408889634 / (128 ** 0.5)
WS_WO = 8 << 20
WS_CT = 12 << 20

class Opt:
    stamps = ''
    report = ''
    kv_flags = ''
    a_flags = ''
    n0 = 22
    warm = 1
    perstep = 6
    lo_exp = -40
    hi_exp = 40
    spin = 300000
    rt_at = 5
    bar_at = 12
    nodma = 0
    noout = 0
    even_end = 23
    coal = 1
    hoist = 2
    unp = 0
    f2wg = 1
    wfirst = 0
    kvnt = 'x'
    ant = ''
    tch_flags = ''
    wsb = 0
    drain = '45'
    tlb_at = 27
    aonly = 0
    la = 10
    aq = 1
    ownlate = 1
    o_flags = ' sc1'
    f1_flags = ' sc1'
    w64 = 0
    out_flags = ''
    bsched = 1
    p1w = 1
    p2w = 0
    pollk = '19,29,39'
    dyn2 = 1
    qmaj = 1
    tch_at = 27
    even_at = 99
    pdepth = 1
    kvo = 4
    finw = 0
    alim = 16
    cpf = 1
    chain = 1
    wo_at = 35
    calc_at = 16
    nl_at = 8
    nc_at = 13
    cw = 8
    shadow = 6
    bst = '0,5,10,15,20'
    no_rt = 0
    clk = 'r'
    lg0 = 0
    vpos = '1,5,9,13'
    rot_kv = 1
    rot_a = 8
    rot_c = 1
    gl_at = 29
    gc_at = 33
opt = Opt()

S_X, S_WQ, S_K, S_V, S_O, S_WO, S_WT, S_WL, S_C, S_D, S_OUT = 4, 8, 12, 16, 20, 24, 28, 52, 56, 60, 64
S_W, S_B, S_HKV, S_HQ = 32, 33, 34, 35
S_W1K, S_W8K, S_SO, S_T0, S_T1, S_T2, S_SK, S_SV = 36, 37, 38, 39, 40, 41, 42, 43
S_TAB = 44
S_REDO, S_MT, S_NT, S_VALID, S_RT, S_SPIN = 68, 69, 70, 71, 72, 73
S_EX = 74
S_F1, S_F2, S_G1, S_G2 = 100, 101, 72, 51
S_GM = 70
S_J_UNUSED = 3
S_P = 76
S_ST = 80
V_LANE, V_N, V_G, V_T0, V_T1, V_T2, V_T3, V_T4, V_T5 = 1, 2, 3, 4, 5, 6, 7, 8, 9
V_KA, V_VA, V_KD, V_VD = 10, 14, 22, 26
V_OST, V_CW, V_LW = 28, 29, 31
V_ONES, V_NEGM, V_L, V_S, V_P, V_KF, V_VF = 32, 36, 56, 76, 92, 100, 164
V_XA, V_XB, V_WA, V_WB, V_XD, V_WD, V_QW = 228, 232, 236, 238, 240, 241, 242
V_GC = 250
S_NON = 96
V_CR, V_LR, V_WOD, V_WT, V_OL, V_OW, V_OD, V_PS, V_PLD, V_OUT, V_P1, V_P2 = 228, 234, 235, 236, 242, 243, 244, 245, 246, 247, 248, 249
V_ZERO = 9
V_TCH = 64
S_H = 52
S_W5K = 55
S_J = 69
A_O, A_Q = 0, 160
V_OWN = [132, 140, 148, 156, 56]
A_KF1, A_L = 120, 240
def AO(lam, q):
    if lam < 2: return ('v', V_OWN[q] + 4 * lam)
    return ('a', A_O + 4 * (q * 6 + lam - 2))
def KF(i, k): return ('v', V_KF + 4 * k) if i % 2 == 0 else ('a', A_KF1 + 4 * k)
def LA(q): return ('a', A_L + 4 * q) if q < 4 else ('a', 152)
def AQ(q, s): return ('a', A_Q + 4 * (q * 4 + s))

def XU(c, q):
    if c == 0: return q * 4 * KB
    if c == 1: return 20 * KB + q * 4 * KB
    if c == 2: return 128 * KB + q * 4 * KB
    return [120, 124, 148, 152, 156][q] * KB
def WU(slot, ks):
    return {0: [40, 48], 1: [56, 96], 2: [104, 112], 3: [64, 72], 4: [80, 88]}[slot][ks] * KB
WSLOT = [0, 1, 2, 3, 4, 0, 1, 2]
QBUF = 128 * KB

def V(t, r=(), w=()):
    return valu(t, r=[('v', x) if isinstance(x, int) else x for x in r], w=[('v', x) if isinstance(x, int) else x for x in w])
def T(t, r=(), w=()):
    return valu(t, r=[('v', x) for x in r], w=[('v', x) for x in w], trans=True)
def S(t, r=(), w=()):
    return salu(t, r=[('s', x) if isinstance(x, int) else x for x in r], w=[('s', x) if isinstance(x, int) else x for x in w])
M0 = ('m0', 0)
VCC = ('vcc', 0)
def flat(l): return [x for y in l for x in y]

def srd(dst, plo, add_s=None, add_imm=0, size=0):
    o = []
    if add_s is not None:
        o.append(S(f"s_add_u32 s{dst}, s{plo}, s{add_s}", [plo, add_s], [dst]))
        o.append(S(f"s_addc_u32 s{dst+1}, s{plo+1}, 0", [plo+1], [dst+1]))
        o.append(S(f"s_and_b32 s{dst+1}, s{dst+1}, 0xffff", [dst+1], [dst+1]))
    elif add_imm:
        o.append(S(f"s_add_u32 s{dst}, s{plo}, {add_imm}", [plo], [dst]))
        o.append(S(f"s_addc_u32 s{dst+1}, s{plo+1}, 0", [plo+1], [dst+1]))
        o.append(S(f"s_and_b32 s{dst+1}, s{dst+1}, 0xffff", [dst+1], [dst+1]))
    else:
        o.append(S(f"s_mov_b32 s{dst}, s{plo}", [plo], [dst]))
        o.append(S(f"s_and_b32 s{dst+1}, s{plo+1}, 0xffff", [plo+1], [dst+1]))
    if isinstance(size, str):
        o.append(S(f"s_mov_b32 s{dst+2}, {size}", [int(size[1:])], [dst+2]))
    else:
        o.append(S(f"s_mov_b32 s{dst+2}, {size}", [], [dst+2]))
    o.append(S(f"s_mov_b32 s{dst+3}, 0x20000", [], [dst+3]))
    return o

KV_ORDER = [[0, 2, 1, 3, 4, 6, 5, 7], [0, 1, 3, 2, 4, 5, 7, 6], [1, 0, 2, 4, 3, 5, 6, 7], [1, 0, 2, 3, 5, 4, 6, 7]]
KV_ORDERS = [KV_ORDER,
  [[0, 4, 1, 2, 3, 5, 6, 7], [1, 0, 5, 2, 3, 4, 6, 7], [2, 0, 1, 6, 3, 4, 5, 7], [3, 0, 1, 2, 7, 4, 5, 6]],
  [[0, 1, 2, 3, 4, 5, 6, 7], [0, 1, 2, 3, 4, 5, 6, 7], [4, 5, 6, 7, 0, 1, 2, 3], [4, 5, 6, 7, 0, 1, 2, 3]],
  [[0, 2, 1, 3, 5, 4, 6, 7], [1, 0, 3, 2, 4, 6, 5, 7], [2, 1, 0, 4, 3, 5, 7, 6], [0, 1, 2, 3, 5, 4, 6, 7]],
  [[0, 1, 2, 4, 3, 5, 6, 7], [1, 0, 2, 3, 5, 4, 6, 7], [2, 0, 1, 3, 4, 6, 5, 7], [0, 1, 3, 2, 4, 5, 7, 6]],
  [[0, 1, 4, 2, 3, 5, 6, 7], [1, 0, 2, 5, 3, 4, 6, 7], [2, 0, 1, 3, 6, 4, 5, 7], [0, 3, 1, 2, 4, 7, 5, 6]],
  [[0, 1, 3, 2, 4, 5, 7, 6], [0, 1, 2, 4, 3, 5, 6, 7], [0, 2, 1, 3, 5, 4, 6, 7], [0, 2, 1, 3, 4, 6, 5, 7]],
  [[0, 1, 2, 4, 3, 5, 6, 7], [1, 0, 3, 2, 5, 4, 6, 7], [2, 3, 0, 1, 4, 6, 5, 7], [3, 2, 1, 0, 4, 5, 7, 6]],
  [[0, 1, 2, 4, 3, 5, 6, 7], [1, 2, 0, 3, 5, 4, 6, 7], [2, 0, 1, 3, 4, 6, 5, 7], [0, 3, 1, 2, 4, 5, 7, 6]]]
def kv_pack(j):
    o = KV_ORDERS[int(opt.kvo)][j] if int(opt.rot_kv) else list(range(8))
    return sum(t << (4 * i) for i, t in enumerate(o))
S_KVO = 98
V_XD4 = 204
S_WC = 99

class Item:
    def __init__(s, pre, ins, after=None): s.pre, s.ins, s.after = pre, ins, after
def x_dma(c, after=None):
    return [Item([S(f"s_add_u32 m0, s{S_W1K}, {XU(c,q)}", [S_W1K], [M0])],
                 dma(V_XD4 + c, S_X, S_TAB + q, 0, ('x', c), flags=(' nt' if 'x' in opt.ant and c < 2 else opt.a_flags)), after) for q in range(5)]
def w_dma(u, after=None):
    o = []
    for k in range(4):
        pre = []
        if k == 0:
            pre.append(S(f"s_add_u32 s{S_SK}, s{S_WC}, {(u & 6) << 19}", [S_WC], [S_SK]))
            pre.append(S(f"s_and_b32 s{S_SK}, s{S_SK}, {7 << 19}", [S_SK], [S_SK]))
            if u & 1: pre.append(S(f"s_xor_b32 s{S_SK}, s{S_SK}, {1 << 19}", [S_SK], [S_SK]))
        pre.append(S(f"s_add_u32 s{S_SO}, s{S_SK}, {k*131072}", [S_SK], [S_SO]))
        pre.append(S(f"s_add_u32 m0, s{S_W1K}, {WU(WSLOT[u], k>>1) + (k&1)*4*KB}", [S_W1K], [M0]))
        o.append(Item(pre, dma(V_WD, S_WQ, S_SO, 0, ('w', u), flags=(' nt' if 'w' in opt.ant and u < 4 else opt.a_flags)), after))
    return o
def kv_dma(kind, i, after=None):
    o = []
    base = (i & 1) * 32 * KB + (0 if kind == 'k' else 64 * KB)
    sr, so = (S_K, S_SK) if kind == 'k' else (S_V, S_SV)
    for j in range(8):
        pre = []
        if j % 4 == 0:
            if j == 0:
                pre.append(S(f"s_bfe_u32 s{so}, s{S_KVO}, {hex((3 << 16) | (4 * i))}", [S_KVO], [so]))
                pre.append(S(f"s_lshl_b32 s{so}, s{so}, 13", [so], [so]))
            else:
                pre.append(S(f"s_add_u32 s{so}, s{so}, 4096", [so], [so]))
            pre.append(S(f"s_add_u32 m0, s{S_W8K}, {base + (j>>2)*4096}", [S_W8K], [M0]))
        va = V_KD + (j & 3) if kind == 'k' else V_VD + (j & 1)
        tag = (kind + 'r', i - 2, j >> 2)
        o.append(Item(pre, dma(va, sr, so, 1024 * (j & 3), (kind, i, j >> 2), needlg=[tag], flags=(' nt' if str(i) in str(opt.kvnt) else opt.kv_flags)), after if i < 2 else tag))
    return o
def k_reads(i):
    return [dsrd('ds_read_b128', KF(i, t * 4 + s), 4, V_KA + s, (i & 1) * 32 * KB + t * 4096,
                 needvm=[('k', i, t)], lgtag=('kr', i, t)) for t in range(2) for s in range(4)]
def v_reads(i):
    return [dsrd('ds_read_b64_tr_b16', ('v', V_VF + (i & 1) * 32 + lam * 4 + h * 2), 2, V_VA + lam, (i & 1) * 32 * KB + h * 4096,
                 needvm=[('v', i, h)], lgtag=('vr', i, h)) for h in range(2) for lam in range(8)]

class Queue:
    def __init__(s): s.q = []; s.pts = set()
    def push(s, items): s.q += items
    def mark(s, p): s.pts.add(p)
    def pop(s):
        if s.q and (s.q[0].after is None or s.q[0].after in s.pts): return s.q.pop(0)
        return None

def place(gaps, Q, pos):
    last = -1
    for p in pos:
        if p >= len(gaps): continue
        it = Q.pop()
        if it is None: break
        pre = list(it.pre)
        avail = list(range(last + 1, p))
        front = []
        if not avail: front = pre
        else:
            slots = [[] for _ in avail]
            for k_, x in enumerate(reversed(pre)):
                slots[max(0, len(avail) - 1 - k_)].insert(0, x)
            for g, sl in zip(avail, slots):
                k_ = 0
                while k_ < len(gaps[g]) and gaps[g][k_].k == 'salu': k_ += 1
                gaps[g][k_:k_] = sl
        k = 0
        while k < len(gaps[p]) and gaps[p][k].k == 'salu': k += 1
        gaps[p][k:k] = front + [it.ins]
        last = p
def weave(sg, Q, fill, n, per):
    for _ in range(n):
        it = Q.pop()
        if it is not None: sg.addall(it.pre + [it.ins])
        for _ in range(per):
            if fill: sg.add(fill.pop(0))

NST = 12
def stamp(sg, i, grp='1'):
    if not opt.stamps: return
    if 5 <= i <= 9 and grp != opt.stamps: return
    sg.text(f"{'s_memtime' if opt.clk == 'c' else 's_memrealtime'} s[{76+2*i}:{77+2*i}]")

def prologue1():
    o = []; a = o.append
    a(raw("s_load_dwordx2 s[92:93], s[0:1], 0"))
    a(raw("s_load_dwordx2 s[26:27], s[0:1], 24"))
    a(V(f"v_lshrrev_b32 v{V_T0}, 6, v0", [0], [V_T0]))
    a(V(f"v_and_b32 v{V_LANE}, 63, v0", [0], [V_LANE]))
    a(V(f"v_readfirstlane_b32 s{S_W}, v{V_T0}", [V_T0], [('s', S_W)]))
    a(S(f"s_and_b32 s{S_HKV}, s2, 7", [2], [S_HKV]))
    a(S(f"s_lshr_b32 s{S_B}, s2, 5", [2], [S_B]))
    a(S(f"s_bfe_u32 s{S_T0}, s2, 0x20003", [2], [S_T0]))
    a(S(f"s_mov_b32 s{S_J}, s{S_T0}", [S_T0], [S_J]))
    a(S(f"s_lshl_b32 s{S_HQ}, s{S_HKV}, 2", [S_HKV], [S_HQ]))
    a(S(f"s_add_u32 s{S_HQ}, s{S_HQ}, s{S_T0}", [S_HQ, S_T0], [S_HQ]))
    if int(opt.rot_a) == 2:
        a(S(f"s_add_u32 s{S_VALID}, s{S_T0}, s{S_B}", [S_T0, S_B], [S_VALID]))
        a(S(f"s_and_b32 s{S_VALID}, s{S_VALID}, 1", [S_VALID], [S_VALID]))
        a(S(f"s_lshl_b32 s{S_VALID}, s{S_VALID}, 2", [S_VALID], [S_VALID]))
    elif int(opt.rot_a) in (5, 6):
        a_, b_ = (S_B, S_T0) if int(opt.rot_a) == 5 else (S_T0, S_B)
        a(S(f"s_lshl_b32 s{S_VALID}, s{b_}, 1", [b_], [S_VALID]))
        a(S(f"s_add_u32 s{S_VALID}, s{S_VALID}, s{a_}", [S_VALID, a_], [S_VALID]))
        a(S(f"s_and_b32 s{S_VALID}, s{S_VALID}, 3", [S_VALID], [S_VALID]))
        a(S(f"s_lshl_b32 s{S_VALID}, s{S_VALID}, 1", [S_VALID], [S_VALID]))
    elif int(opt.rot_a) in (8, 9):
        a(S(f"s_add_u32 s{S_VALID}, s{S_T0}, s{S_B}", [S_T0, S_B], [S_VALID]))
        a(S(f"s_lshl_b32 s{S_VALID}, s{S_VALID}, 1", [S_VALID], [S_VALID]))
        a(S(f"s_and_b32 s{S_T1}, s{S_HKV}, {1 if int(opt.rot_a) == 8 else 3}", [S_HKV], [S_T1]))
        a(S(f"s_add_u32 s{S_VALID}, s{S_VALID}, s{S_T1}", [S_VALID, S_T1], [S_VALID]))
        a(S(f"s_and_b32 s{S_VALID}, s{S_VALID}, 3", [S_VALID], [S_VALID]))
        a(S(f"s_lshl_b32 s{S_VALID}, s{S_VALID}, 1", [S_VALID], [S_VALID]))
    elif int(opt.rot_a) == 7:
        a(S(f"s_add_u32 s{S_VALID}, s{S_T0}, s{S_B}", [S_T0, S_B], [S_VALID]))
        a(S(f"s_and_b32 s{S_VALID}, s{S_VALID}, 1", [S_VALID], [S_VALID]))
        a(S(f"s_lshl_b32 s{S_VALID}, s{S_VALID}, 2", [S_VALID], [S_VALID]))
        a(S(f"s_bfe_u32 s{S_T1}, s{S_B}, 0x10001", [S_B], [S_T1]))
        a(S(f"s_or_b32 s{S_VALID}, s{S_VALID}, s{S_T1}", [S_VALID, S_T1], [S_VALID]))
    elif int(opt.rot_a) == 4:
        a(S(f"s_add_u32 s{S_VALID}, s{S_T0}, s{S_B}", [S_T0, S_B], [S_VALID]))
        a(S(f"s_and_b32 s{S_VALID}, s{S_VALID}, 3", [S_VALID], [S_VALID]))
        a(S(f"s_lshl_b32 s{S_VALID}, s{S_VALID}, 1", [S_VALID], [S_VALID]))
    elif int(opt.rot_a):
        a(S(f"s_lshl_b32 s{S_T0}, s{S_T0}, 1", [S_T0], [S_T0]))
        a(S(f"s_add_u32 s{S_VALID}, s{S_T0}, s{S_B}", [S_T0, S_B], [S_VALID]))
        a(S(f"s_and_b32 s{S_VALID}, s{S_VALID}, 7", [S_VALID], [S_VALID]))
    else:
        a(S(f"s_mov_b32 s{S_VALID}, 0", [], [S_VALID]))
    a(V(f"v_and_b32 v{V_N}, 15, v{V_LANE}", [V_LANE], [V_N]))
    a(V(f"v_lshrrev_b32 v{V_G}, 4, v{V_LANE}", [V_LANE], [V_G]))
    a(S(f"s_lshl_b32 s{S_W1K}, s{S_W}, 10", [S_W], [S_W1K]))
    a(S(f"s_lshl_b32 s{S_W8K}, s{S_W}, 13", [S_W], [S_W8K]))
    a(V(f"v_lshl_add_u32 v{V_T0}, s{S_W}, 2, v{V_G}", [V_G, ('s', S_W)], [V_T0]))
    a(V(f"v_xor_b32 v{V_T1}, v{V_N}, v{V_T0}", [V_N, V_T0], [V_T1]))
    a(V(f"v_lshlrev_b32 v{V_T1}, 4, v{V_T1}", [V_T1], [V_T1]))
    a(V(f"v_lshl_add_u32 v{V_XD}, v{V_T0}, 10, v{V_T1}", [V_T0, V_T1], [V_XD]))
    a(S(f"s_and_b32 s{S_T0}, s{S_W}, 2", [S_W], [S_T0]))
    a(S(f"s_lshl_b32 s{S_T0}, s{S_T0}, 2", [S_T0], [S_T0]))
    a(V(f"v_lshl_add_u32 v{V_T1}, v{V_G}, 1, s{S_T0}", [V_G, ('s', S_T0)], [V_T1]))
    a(V(f"v_xor_b32 v{V_T1}, v{V_N}, v{V_T1}", [V_N, V_T1], [V_T1]))
    a(V(f"v_lshlrev_b32 v{V_T1}, 4, v{V_T1}", [V_T1], [V_T1]))
    a(V(f"v_lshl_add_u32 v{V_WD}, v{V_T0}, 13, v{V_T1}", [V_T0, V_T1], [V_WD]))
    a(S(f"s_mul_i32 s{S_T0}, s{S_B}, 81920", [S_B], [S_T0]))
    a(S(f"s_lshl_b32 s{S_T2}, s{S_HQ}, 8", [S_HQ], [S_T2]))
    a(S(f"s_sub_u32 s{S_T1}, 4194304, s{S_T2}", [S_T2], [S_T1]))
    a(S(f"s_mov_b32 s{S_REDO}, 0", [], [S_REDO]))
    a(S(f"s_lshl_b32 s{S_WC}, s{S_VALID}, 19", [S_VALID], [S_WC]))
    a(S(f"s_mov_b64 s[{S_GM}:{S_GM+1}], -1", [], [S_GM, S_GM+1]))
    o += restart_setup()
    a(S(f"s_mov_b32 s{S_X+2}, 81920", [], [S_X+2])); a(S(f"s_mov_b32 s{S_X+3}, 0x20000", [], [S_X+3]))
    a(S(f"s_mov_b32 s{S_WQ+2}, s{S_T1}", [S_T1], [S_WQ+2])); a(S(f"s_mov_b32 s{S_WQ+3}, 0x20000", [], [S_WQ+3]))
    a(raw("s_waitcnt lgkmcnt(0)", 'wait'))
    o += srd(S_X, 92, add_s=S_T0, size=81920)[:3]
    o += srd(S_WQ, 26, add_s=S_T2, size=0)[:3]
    a(raw("s_load_dwordx4 s[92:95], s[0:1], 8"))
    a(raw(f"s_load_dwordx2 s[{S_WO}:{S_WO+1}], s[0:1], 32"))
    a(raw(f"s_load_dwordx4 s[{S_C}:{S_C+3}], s[0:1], 40"))
    a(raw("s_load_dwordx2 s[100:101], s[0:1], 56"))
    return o

def restart_setup():
    o = [S(f"s_mov_b32 s{S_TAB+q}, {q*16384}", [], [S_TAB+q]) for q in range(5)]
    for c in range(4):
        o.append(S(f"s_lshr_b32 s{S_SO}, s{S_WC}, 12", [S_WC], [S_SO]))
        o.append(S(f"s_add_u32 s{S_SO}, s{S_SO}, {c*256}", [S_SO], [S_SO]))
        o.append(S(f"s_and_b32 s{S_SO}, s{S_SO}, 0x300", [S_SO], [S_SO]))
        o.append(V(f"v_add_u32 v{V_XD4+c}, s{S_SO}, v{V_XD}", [V_XD, ('s', S_SO)], [V_XD4+c]))
    return o

def prologue2():
    o = []; a = o.append
    a(raw("s_waitcnt lgkmcnt(0)", 'wait'))
    a(S(f"s_lshl_b32 s{S_T0}, s{S_B}, 3", [S_B], [S_T0]))
    a(S(f"s_add_u32 s{S_T0}, s{S_T0}, s{S_HKV}", [S_T0, S_HKV], [S_T0]))
    a(S(f"s_lshl_b32 s{S_T0}, s{S_T0}, 2", [S_T0], [S_T0]))
    a(S(f"s_add_u32 s{S_T0}, s{S_T0}, s{S_W}", [S_T0, S_W], [S_T0]))
    a(S(f"s_lshl_b32 s{S_T0}, s{S_T0}, 16", [S_T0], [S_T0]))
    o += srd(S_K, 92, add_s=S_T0, size=65536)
    o += srd(S_V, 94, add_s=S_T0, size=65536)
    a(S(f"s_lshl_b32 s{S_T0}, s{S_HKV}, 19", [S_HKV], [S_T0]))
    o += srd(S_WO, S_WO, add_s=S_T0, size=524288)
    WB = int(opt.wsb) << 20
    o += srd(S_O, 100, add_imm=WB, size=8*5*128*1024)
    o += srd(S_WT, 100, add_imm=WB + WS_WO, size=8*4*20*8*1024)
    o += srd(S_D, S_C + 2, size=256)
    o += srd(S_OUT, S_C, size=655360)
    o += srd(S_C, 100, add_imm=WB + WS_CT, size=262144)
    a(S(f"s_bitcmp1_b32 s{S_HQ}, 0", [S_HQ], []))
    a(S(f"s_mov_b32 s{S_T0}, {hex(kv_pack(0))}", [], [S_T0]))
    a(S(f"s_cselect_b32 s{S_T0}, {hex(kv_pack(1))}, s{S_T0}", [S_T0], [S_T0]))
    a(S(f"s_mov_b32 s{S_T1}, {hex(kv_pack(2))}", [], [S_T1]))
    a(S(f"s_cselect_b32 s{S_T1}, {hex(kv_pack(3))}, s{S_T1}", [S_T1], [S_T1]))
    a(S(f"s_bitcmp1_b32 s{S_HQ}, 1", [S_HQ], []))
    a(S(f"s_cselect_b32 s{S_KVO}, s{S_T1}, s{S_T0}", [S_T0, S_T1], [S_KVO]))
    for p in range(3):
        a(S(f"s_cmp_le_u32 s{S_J}, {p}", [S_J], []))
        a(S(f"s_cselect_b32 s{S_T1}, {p + 1}, {p}", [], [S_T1]))
        a(S(f"s_lshl_b32 s{S_H+p}, s{S_T1}, 17", [S_T1], [S_H+p]))
    a(S(f"s_mul_i32 s{S_W5K}, s{S_W}, 5120", [S_W], [S_W5K]))
    a(S(f"s_lshl_b32 s{S_T0}, s{S_B}, 14", [S_B], [S_T0]))
    a(S(f"s_lshl_b32 s{S_T1}, s{S_W}, 7", [S_W], [S_T1]))
    a(S(f"s_add_u32 s{S_T0}, s{S_T0}, s{S_T1}", [S_T0, S_T1], [S_T0]))
    a(S(f"s_lshl_b32 s{S_F1}, s{S_HQ}, 9", [S_HQ], [S_F1]))
    a(S(f"s_add_u32 s{S_F1}, s{S_F1}, s{S_T0}", [S_F1, S_T0], [S_F1]))
    a(S(f"s_add_u32 s{S_F2}, s{S_F1}, 131072", [S_F1], [S_F2]))
    if int(opt.f2wg): a(S(f"s_andn2_b32 s{S_F2}, s{S_F2}, 0x180", [S_F2], [S_F2]))
    a(S(f"s_lshl_b32 s{S_T1}, s{S_HKV}, 11", [S_HKV], [S_T1]))
    a(S(f"s_lshl_b32 s{S_G1}, s{S_J}, 3", [S_J], [S_G1]))
    a(S(f"s_add_u32 s{S_G1}, s{S_G1}, s{S_T1}", [S_G1, S_T1], [S_G1]))
    a(S(f"s_add_u32 s{S_G1}, s{S_G1}, s{S_T0}", [S_G1, S_T0], [S_G1]))
    a(S(f"s_lshl_b32 s{S_T1}, s{S_J}, 9", [S_J], [S_T1]))
    a(S(f"s_lshl_b32 s{S_G2}, s{S_HKV}, 3", [S_HKV], [S_G2]))
    a(S(f"s_add_u32 s{S_G2}, s{S_G2}, s{S_T1}", [S_G2, S_T1], [S_G2]))
    a(S(f"s_add_u32 s{S_G2}, s{S_G2}, s{S_T0}", [S_G2, S_T0], [S_G2]))
    a(S(f"s_add_u32 s{S_G2}, s{S_G2}, 131072", [S_G2], [S_G2]))
    return o

def prologue3():
    o = []; a = o.append
    a(S(f"s_bfe_u32 s{S_T1}, s{S_WC}, 0x10013", [S_WC], [S_T1]))
    a(S(f"s_lshl_b32 s{S_T1}, s{S_T1}, 3", [S_T1], [S_T1]))
    a(V(f"v_xor_b32 v{V_T1}, s{S_T1}, v{V_N}", [V_N, ('s', S_T1)], [V_T1]))
    for s in range(4):
        a(V(f"v_add_u32 v{V_T0}, {4*s}, v{V_G}", [V_G], [V_T0]))
        a(V(f"v_xor_b32 v{V_T0}, v{V_T0}, v{V_T1}", [V_T0, V_T1], [V_T0]))
        a(V(f"v_lshlrev_b32 v{V_T0}, 4, v{V_T0}", [V_T0], [V_T0]))
        a(V(f"v_lshl_add_u32 v{V_XA+s}, v{V_N}, 8, v{V_T0}", [V_N, V_T0], [V_XA+s]))
        a(V(f"v_add_u32 v{V_XB+s}, {120*KB}, v{V_XA+s}", [V_XA+s], [V_XB+s]))
    a(V(f"v_lshrrev_b32 v{V_T2}, 2, v{V_N}", [V_N], [V_T2]))
    a(V(f"v_bfe_u32 v{V_T3}, v{V_N}, 1, 1", [V_N], [V_T3]))
    a(V(f"v_and_b32 v{V_T4}, 1, v{V_N}", [V_N], [V_T4]))
    a(V(f"v_lshlrev_b32 v{V_T4}, 3, v{V_T4}", [V_T4], [V_T4]))
    a(V(f"v_and_b32 v{V_T5}, 1, v{V_G}", [V_G], [V_T5]))
    a(V(f"v_lshl_add_u32 v{V_T5}, v{V_T5}, 2, v{V_T2}", [V_T5, V_T2], [V_T5]))
    a(V(f"v_lshlrev_b32 v{V_T5}, 1, v{V_T5}", [V_T5], [V_T5]))
    a(S(f"s_lshl_b32 s{S_T1}, s{S_W}, 2", [S_W], [S_T1]))
    a(V(f"v_lshl_add_u32 v{V_T1}, v{V_G}, 3, v{V_T2}", [V_G, V_T2], [V_T1]))
    a(V(f"v_lshl_add_u32 v{V_T1}, v{V_T1}, 8, v{V_T4}", [V_T1, V_T4], [V_T1]))
    for e in range(2):
        a(V(f"v_add3_u32 v{V_T0}, s{S_T1}, v{V_T3}, {2*e}", [V_T3, ('s', S_T1)], [V_T0]))
        a(V(f"v_xor_b32 v{V_T0}, v{V_T0}, v{V_T5}", [V_T0, V_T5], [V_T0]))
        a(V(f"v_lshl_add_u32 v{V_T0}, v{V_T0}, 4, v{V_T1}", [V_T0, V_T1], [V_T0]))
        a(V(f"v_add_u32 v{V_WA+e}, {40*KB}, v{V_T0}", [V_T0], [V_WA+e]))
        a(V(f"v_add_u32 v{V_WB+e}, {96*KB}, v{V_T0}", [V_T0], [V_WB+e]))
    a(V(f"v_lshl_add_u32 v{V_T1}, v{V_G}, 2, v{V_T2}", [V_G, V_T2], [V_T1]))
    n_early = len(o)
    for s in range(4):
        a(V(f"v_add_u32 v{V_KA+s}, s{S_W8K}, v{V_XA+s}", [V_XA+s, ('s', S_W8K)], [V_KA+s]))
    a(V(f"v_lshl_add_u32 v{V_T1}, v{V_T1}, 8, v{V_T4}", [V_T1, V_T4], [V_T1]))
    a(S(f"s_add_u32 s{S_T2}, s{S_W8K}, {64*KB}", [S_W8K], [S_T2]))
    a(V(f"v_add_u32 v{V_T1}, s{S_T2}, v{V_T1}", [V_T1, ('s', S_T2)], [V_T1]))
    a(V(f"v_add_u32 v{V_T3}, s{S_T1}, v{V_T3}", [V_T3, ('s', S_T1)], [V_T3]))
    for lam in range(8):
        a(V(f"v_add_u32 v{V_T0}, {2*lam}, v{V_T3}", [V_T3], [V_T0]))
        a(V(f"v_and_b32 v{V_T0}, 15, v{V_T0}", [V_T0], [V_T0]))
        a(V(f"v_xor_b32 v{V_T0}, v{V_T0}, v{V_T5}", [V_T0, V_T5], [V_T0]))
        a(V(f"v_lshl_add_u32 v{V_VA+lam}, v{V_T0}, 4, v{V_T1}", [V_T0, V_T1], [V_VA+lam]))
    a(V(f"v_xor_b32 v{V_T0}, v{V_N}, v{V_G}", [V_N, V_G], [V_T0]))
    a(V(f"v_lshlrev_b32 v{V_T0}, 4, v{V_T0}", [V_T0], [V_T0]))
    a(V(f"v_lshl_add_u32 v{V_KD}, v{V_G}, 8, v{V_T0}", [V_G, V_T0], [V_KD]))
    for j in range(1, 4):
        a(V(f"v_xor_b32 v{V_KD+j}, {64*j}, v{V_KD}", [V_KD], [V_KD+j]))
    a(V(f"v_lshlrev_b32 v{V_T0}, 1, v{V_G}", [V_G], [V_T0]))
    a(V(f"v_xor_b32 v{V_T0}, v{V_N}, v{V_T0}", [V_N, V_T0], [V_T0]))
    a(V(f"v_lshlrev_b32 v{V_T0}, 4, v{V_T0}", [V_T0], [V_T0]))
    a(V(f"v_lshl_add_u32 v{V_VD}, v{V_G}, 8, v{V_T0}", [V_G, V_T0], [V_VD]))
    a(V(f"v_xor_b32 v{V_VD+1}, 128, v{V_VD}", [V_VD], [V_VD+1]))
    a(V(f"v_lshrrev_b32 v{V_T0}, 1, v{V_G}", [V_G], [V_T0]))
    a(V(f"v_add_u32 v{V_T0}, s{S_T1}, v{V_T0}", [V_T0, ('s', S_T1)], [V_T0]))
    a(V(f"v_xor_b32 v{V_T0}, v{V_T0}, v{V_N}", [V_T0, V_N], [V_T0]))
    a(V(f"v_lshlrev_b32 v{V_T0}, 4, v{V_T0}", [V_T0], [V_T0]))
    a(V(f"v_lshl_add_u32 v{V_T0}, v{V_N}, 8, v{V_T0}", [V_N, V_T0], [V_T0]))
    a(V(f"v_and_b32 v{V_T1}, 1, v{V_G}", [V_G], [V_T1]))
    a(V(f"v_lshl_add_u32 v{V_T0}, v{V_T1}, 3, v{V_T0}", [V_T0, V_T1], [V_T0]))
    a(V(f"v_add_u32 v{V_QW}, {QBUF}, v{V_T0}", [V_T0], [V_QW]))
    a(V(f"v_xor_b32 v{V_QW+1}, 32, v{V_QW}", [V_QW], [V_QW+1]))
    a(V(f"v_lshl_add_u32 v{V_CW}, v{V_LANE}, 4, s{S_W8K}", [V_LANE, ('s', S_W8K)], [V_CW]))
    a(V(f"v_add_u32 v{V_CW+1}, {64*KB}, v{V_CW}", [V_CW], [V_CW+1]))
    a(S(f"s_add_u32 s{S_T0}, s{S_W8K}, {102*KB}", [S_W8K], [S_T0]))
    a(V(f"v_lshl_add_u32 v{V_LW}, v{V_LANE}, 5, s{S_T0}", [V_LANE, ('s', S_T0)], [V_LW]))
    a(S(f"s_mul_i32 s{S_T0}, s{S_B}, 640", [S_B], [S_T0]))
    a(S(f"s_lshl_b32 s{S_T2}, s{S_HQ}, 2", [S_HQ], [S_T2]))
    a(S(f"s_add_u32 s{S_T0}, s{S_T0}, s{S_T2}", [S_T0, S_T2], [S_T0]))
    a(S(f"s_add_u32 s{S_T0}, s{S_T0}, s{S_W}", [S_T0, S_W], [S_T0]))
    a(S(f"s_lshl_b32 s{S_T0}, s{S_T0}, 10", [S_T0], [S_T0]))
    a(V(f"v_lshl_add_u32 v{V_OST}, v{V_LANE}, 4, s{S_T0}", [V_LANE, ('s', S_T0)], [V_OST]))
    a(V(f"v_cmp_eq_u32 vcc, 0, v{V_N}", [V_N], [VCC]))
    a(V(f"v_mov_b32 v{V_T0}, 0x3f803f80", [], [V_T0]))
    for i in range(4):
        a(V(f"v_cndmask_b32 v{V_ONES+i}, 0, v{V_T0}, vcc", [V_T0, VCC], [V_ONES+i]))
    for i in range(20):
        a(V(f"v_mov_b32 v{V_NEGM+i}, 0", [], [V_NEGM+i]))
    return o[:n_early], o[n_early:]

V_QACC = V_VF
def AF(kap):
    return [(100, 120), (128, 148), (208, 156)][kap % 3]
def a_reads(kap):
    u, ks = kap >> 1, kap & 1
    c, s = u >> 1, kap & 3
    xf, wf = AF(kap)
    wb = WU(WSLOT[u], ks)
    xr = []
    for q in range(5):
        xb = XU(c, q)
        reg, base = (V_XA, 0) if xb < 64 * KB else (V_XB, 120 * KB)
        xr.append(dsrd('ds_read_b128', ('v', xf + q * 4), 4, reg + s, xb - base))
    wr = []
    for e in range(2):
        for h in range(2):
            reg, base = (V_WA, 40 * KB) if wb < 96 * KB else (V_WB, 96 * KB)
            wr.append(dsrd('ds_read_b64_tr_b16', ('v', wf + e * 4 + h * 2), 2, reg + e, wb - base + h * 1024))
    return wr[:2] + xr[:1] + wr[2:] + xr[1:]
def a_mfmas(kap):
    o = []
    xf, wf = AF(kap)
    for q in range(5):
        for e in range(2):
            d = ('v', V_QACC + (e * 5 + q) * 4)
            o.append(mfma(d, ('v', wf + e * 4), ('v', xf + q * 4), 0 if kap == 0 else d))
    return o
def lane0(sg, body, lab):
    sg.text(f"s_cmp_lg_u32 s{S_W}, 0"); sg.text(f"s_cbranch_scc1 {lab}")
    sg.text(f"s_mov_b64 s[{S_EX}:{S_EX+1}], exec"); sg.text("s_mov_b64 exec, 1")
    for x in body: sg.text(x)
    sg.text(f"s_mov_b64 exec, s[{S_EX}:{S_EX+1}]")
    sg.text(f"{lab}:")
def phase_a(sg, Q):
    stamp(sg, 1)
    sg.add(barrier(needvm=[('x', 0), ('w', 0)])); Q.mark('B0')
    stamp(sg, 2)
    sg.addall(a_reads(0)); sg.addall(a_reads(1))
    sg.add(S(f"s_mov_b32 s{S_T1}, {f2h(QSCALE)}", [], [S_T1]))
    sg.add(S(f"s_mov_b32 s{S_T2}, {f2h(QSCALE)}", [], [S_T2]))
    for kap in range(14 if int(opt.aq) else 16):
        mf = a_mfmas(kap)
        gaps = [[] for _ in mf]
        nx = kap + 2
        if nx < 16:
            if nx % 2 == 0:
                u = nx >> 1
                need = [('x', u >> 1), ('w', u)]
                while any(it.ins.vmtag in need for it in Q.q):
                    n_ = len(Q.q); weave(sg, Q, [], 1, 0); assert len(Q.q) < n_, (u, Q.q[0].after)
                while True:
                    younger = 0
                    for tg, _w in reversed(sg.vm):
                        if tg in need: break
                        younger += 1
                    n_ = len(Q.q)
                    if younger >= int(opt.la): break
                    weave(sg, Q, [], 1, 0)
                    if len(Q.q) == n_: break
                dr = str(u) in str(opt.drain)
                sg.add(barrier(needvm=need, lg0=dr)); Q.mark(f'B{u}')
                if dr: Q.mark(f'B{u+1}')
                if u in (1, 3, 5, 7): stamp(sg, 5 + u // 2, 'A')
            for i, r in enumerate(a_reads(nx)): gaps[i].append(r)
        mf[0].r |= set(R('v', AF(kap)[0], 20) + R('v', AF(kap)[1], 8))
        pos = [1, 5, 9] if kap % 2 == 0 else [3, 7]
        if int(opt.perstep) == 6: pos = [1, 4, 7] if kap % 2 == 0 else [1, 4, 8]
        if int(opt.perstep) == 7: pos = [1, 4, 6, 9] if kap % 2 == 0 else [2, 5, 8]
        if int(opt.perstep) == 8: pos = [1, 4, 6, 9]
        nkv = sum(1 for it in Q.q if it.ins.vmtag[0] in 'kv')
        room = int(opt.alim) - (128 - nkv) + (len(Q.q) - nkv)
        place(gaps, Q, pos[:max(0, room)])
        if int(opt.aonly): sg.addall([x for x in interleave(mf, gaps) if x.k not in ('mfma', 'dsrd')])
        else: sg.addall(interleave(mf, gaps))
    def qfin(q, e, packed):
        b = V_QACC + (e * 5 + q) * 4
        if packed: f_ = [V(f"v_pk_mul_f32 v[{b+r}:{b+r+1}], v[{b+r}:{b+r+1}], s[{S_T1}:{S_T1+1}]", [b+r, b+r+1], [b+r, b+r+1]) for r in (0, 2)]
        else: f_ = [V(f"v_mul_f32 v{b+r}, s{S_T1}, v{b+r}", [b+r], [b+r]) for r in range(4)]
        f_.append(V(f"v_cvt_pk_bf16_f32 v{b}, v{b}, v{b+1}", [b, b+1], [b]))
        f_.append(V(f"v_cvt_pk_bf16_f32 v{b+1}, v{b+2}, v{b+3}", [b+2, b+3], [b+1]))
        f_.append(dswr('ds_write_b64', V_QW + e, ('v', b), 2, q * 4096, lgtag='qw'))
        return f_
    todo = [(q, e) for q in range(5) for e in range(2)]
    if int(opt.aq):
        m14, m15 = a_mfmas(14), a_mfmas(15)
        m14[0].r |= set(R('v', AF(14)[0], 20) + R('v', AF(14)[1], 8))
        mf = flat([[m14[k], m15[k]] for k in range(10)])
        gaps = [[] for _ in mf]
        gi = 5
        while todo and gi + 3 <= 19:
            f_ = qfin(*todo.pop(0), False)
            gaps[gi] += f_[0:2]; gaps[gi + 1] += f_[2:4]; gaps[gi + 2] += f_[4:6]; gaps[gi + 3] = [f_[6]] + gaps[gi + 3]
            gi += 3
        nkv = sum(1 for it in Q.q if it.ins.vmtag[0] in 'kv')
        place(gaps, Q, [1, 4][:max(0, int(opt.alim) - (128 - nkv))])
        sg.addall(interleave(mf, gaps))
    stamp(sg, 9, 'A')
    for q, e in todo: sg.addall(qfin(q, e, True))
    while any(it.ins.vmtag in (('k', 0, 0), ('k', 0, 1)) for it in Q.q): weave(sg, Q, [], 1, 0)
    b = barrier(lg0=False); b.needlg = ('qw',)
    sg.addall(k_reads(0)); Q.mark(('kr', 0, 0)); Q.mark(('kr', 0, 1))
    sg.add(b); Q.mark('BQ'); Q.mark('B8')
    qr = [dsrd('ds_read_b128', AQ(q, s), 4, V_XB + s, QBUF - 120 * KB + q * 4096) for q in range(5) for s in range(4)]
    return qr

def TQ(tau):
    return divmod(tau, 5) if tau < 30 else (6 + ((tau - 30) & 1), (tau - 30) >> 1)
def qk(tau):
    i, q = TQ(tau)
    o = []
    for s, t in ([(s, t) for t in range(2) for s in range(4)] if int(opt.chain) else [(s, t) for s in range(4) for t in range(2)]):
        if True:
            d = ('v', V_S + (tau & 1) * 8 + t * 4)
            o.append(mfma(d, KF(i, t * 4 + s), AQ(q, s), ('v', V_NEGM + q * 4) if s == 0 else d))
            if s == 0 and int(opt.coal) and tau > 4: o[-1].r |= set(R(*KF(i, t * 4), 16))
    return o
def pv(tau):
    i, q = TQ(tau)
    p = ('v', V_P + (tau & 1) * 4)
    o = [mfma(AO(lam, q), ('v', V_VF + (i & 1) * 32 + lam * 4), p, AO(lam, q) if i else 0) for lam in range(8)]
    if int(opt.coal) and 0 < i < 7: o[0].r |= set(R('v', V_VF + (i & 1) * 32, 24)); o[5].r |= set(R('v', V_VF + (i & 1) * 32 + 24, 8))
    o.insert(0, mfma(LA(q), ('v', V_ONES), p, LA(q) if i else 0))
    return o
def sm(tau):
    b = V_S + (tau & 1) * 8
    p = V_P + (tau & 1) * 4
    e = [T(f"v_exp_f32 v{b+i}, v{b+i}", [b+i], [b+i]) for i in range(8)]
    c = [V(f"v_cvt_pk_bf16_f32 v{p+i}, v{b+2*i}, v{b+2*i+1}", [b+2*i, b+2*i+1], [p+i]) for i in range(4)]
    return e, c
def comb_writes(q):
    o = []
    for jd in range(1, 4):
        for e in range(2):
            u = q * 6 + (jd - 1) * 2 + e
            row = u >> 3
            o.append(dswr('ds_write_b128', V_CW + (row >> 1), AO(2 * jd + e, q), 4, (row & 1) * 32 * KB + (u & 7) * KB, lgtag=('cw', q)))
    o.insert(0, dswr('ds_write_b32', V_LW, LA(q), 1, [0, 4, 16, 20, 24][q], lgtag=('cw', q)))
    return o

def wo_dma(pos, after=None):
    o = []
    for ks in range(4):
        for half in range(2):
            base = (128 * KB if pos < 0 else pos * 32 * KB) + ks * 8 * KB + half * 4 * KB
            if pos < 0:
                pre = [S(f"s_lshl_b32 s{S_SK}, s{S_J}, 17", [S_J], [S_SK])] if ks + half == 0 else []
                h = S_SK
            else: pre, h = [], S_H + pos
            pre += [S(f"s_add_u32 s{S_SO}, s{h}, {ks*32768 + half*16384}", [h], [S_SO]), S(f"s_add_u32 m0, s{S_W1K}, {base}", [S_W1K], [M0])]
            o.append(Item(pre, dma(V_WOD, S_WO, S_SO, 0, ('wo', pos)), after))
    return o
def osib_dma(pos):
    o = []
    for q in range(5):
        pre = [S(f"s_lshr_b32 s{S_SK}, s{S_H+pos}, 5", [S_H+pos], [S_SK])] if q == 0 else []
        pre += [S(f"s_add_u32 s{S_SO}, s{S_SK}, {q*128*KB}", [S_SK], [S_SO]), S(f"s_add_u32 m0, s{S_W5K}, {(140 - 20*pos + q)*KB}", [S_W5K], [M0])]
        o.append(Item(pre, dma(V_OD, S_O, S_SO, 0, ('os', pos), flags=' sc1')))
    return o
def tail_calc():
    o = []; a = o.append
    T0, T1, T2 = 252, 253, 254
    a(V(f"v_lshlrev_b32 v{T0}, 4, v{V_LANE}", [V_LANE], [T0]))
    for jd in range(1, 4):
        a(S(f"s_sub_u32 s{S_T0}, s{S_W}, {jd}", [S_W], [S_T0]))
        a(S(f"s_and_b32 s{S_T0}, s{S_T0}, 3", [S_T0], [S_T0]))
        a(S(f"s_lshl_b32 s{S_T0}, s{S_T0}, 13", [S_T0], [S_T0]))
        a(V(f"v_add_u32 v{V_CR+2*(jd-1)}, s{S_T0}, v{T0}", [T0, ('s', S_T0)], [V_CR+2*(jd-1)]))
        a(V(f"v_add_u32 v{V_CR+2*(jd-1)+1}, {64*KB}, v{V_CR+2*(jd-1)}", [V_CR+2*(jd-1)], [V_CR+2*(jd-1)+1]))
    a(V(f"v_add_u32 v{V_OL}, {96*KB}, v{T0}", [T0], [V_OL]))
    a(V(f"v_add_u32 v{V_OW}, s{S_W5K}, v{V_OL}", [V_OL, ('s', S_W5K)], [V_OW]))
    a(S(f"s_mov_b32 s{S_T0}, {102*KB}", [], [S_T0]))
    a(V(f"v_lshl_add_u32 v{V_LR}, v{V_N}, 5, s{S_T0}", [V_N, ('s', S_T0)], [V_LR]))
    a(S(f"s_add_u32 s{S_T0}, s{S_W8K}, {64*KB}", [S_W8K], [S_T0]))
    for e in range(2):
        a(V(f"v_subrev_u32 v{V_WT+e}, s{S_T0}, v{V_VA+e}", [V_VA+e, ('s', S_T0)], [V_WT+e]))
        a(V(f"v_add_u32 v{V_WT+2+e}, {64*KB}, v{V_WT+e}", [V_WT+e], [V_WT+2+e]))
        a(V(f"v_add_u32 v{V_WT+4+e}, {128*KB}, v{V_WT+e}", [V_WT+e], [V_WT+4+e]))
    for k in range(5): a(S(f"s_mov_b32 s{S_TAB+k}, {k*8192}", [], [S_TAB+k]))
    return o
def handoff_calc():
    o = []; a = o.append
    T0, T1, T2, T3 = 252, 253, 254, 9
    a(S(f"s_lshl_b32 s{S_T0}, s{S_J}, 12", [S_J], [S_T0]))
    a(V(f"v_subrev_u32 v{V_OD}, s{S_T0}, v{V_OST}", [V_OST, ('s', S_T0)], [V_OD]))
    a(S(f"s_lshl_b32 s{S_T0}, s{S_B}, 2", [S_B], [S_T0]))
    a(S(f"s_add_u32 s{S_T0}, s{S_T0}, s{S_J}", [S_T0, S_J], [S_T0]))
    a(S(f"s_mul_i32 s{S_T0}, s{S_T0}, {20*8*KB}", [S_T0], [S_T0]))
    a(S(f"s_mul_i32 s{S_T1}, s{S_W}, {5*8*KB}", [S_W], [S_T1]))
    a(S(f"s_lshl_b32 s{S_T2}, s{S_HKV}, 10", [S_HKV], [S_T2]))
    a(S(f"s_add_u32 s{S_T2}, s{S_T2}, s{S_T1}", [S_T2, S_T1], [S_T2]))
    a(S(f"s_add_u32 s{S_T2}, s{S_T2}, s{S_T0}", [S_T2, S_T0], [S_T2]))
    a(V(f"v_lshl_add_u32 v{V_PS}, v{V_LANE}, 4, s{S_T2}", [V_LANE, ('s', S_T2)], [V_PS]))
    a(S(f"s_lshl_b32 s{S_T1}, s{S_HKV}, 2", [S_HKV], [S_T1]))
    a(S(f"s_add_u32 s{S_T1}, s{S_T1}, s{S_W}", [S_T1, S_W], [S_T1]))
    a(S(f"s_mul_i32 s{S_T1}, s{S_T1}, 40", [S_T1], [S_T1]))
    a(V(f"v_add_u32 v{T0}, s{S_T1}, v{V_LANE}", [V_LANE, ('s', S_T1)], [T0]))
    a(V(f"v_bfe_u32 v{T1}, v{T0}, 5, 1", [T0], [T1]))
    a(V(f"v_and_b32 v{T2}, 7, v{T0}", [T0], [T2]))
    a(V(f"v_lshl_add_u32 v{T1}, v{T1}, 3, v{T2}", [T1, T2], [T1]))
    a(V(f"v_bfe_u32 v{T2}, v{T0}, 3, 2", [T0], [T2]))
    a(V(f"v_lshrrev_b32 v{T0}, 6, v{T0}", [T0], [T0]))
    a(V(f"v_lshl_add_u32 v{T3}, v{T2}, 4, v{T1}", [T1, T2], [T3]))
    a(V(f"v_lshl_add_u32 v{V_PLD}, v{T3}, 4, s{S_T0}", [T3, ('s', S_T0)], [V_PLD]))
    a(V(f"v_lshl_add_u32 v{V_PLD}, v{T0}, 13, v{V_PLD}", [T0, V_PLD], [V_PLD]))
    a(V(f"v_mul_u32_u24 v{T3}, 52, v{T0}", [T0], [T3]))
    a(V(f"v_lshrrev_b32 v{T3}, 8, v{T3}", [T3], [T3]))
    a(V(f"v_lshlrev_b32 v{T2}, 3, v{T2}", [T2], [T2]))
    a(V(f"v_lshl_add_u32 v{T2}, v{T3}, 6, v{T2}", [T3, T2], [T2]))
    a(V(f"v_lshl_add_u32 v{T2}, v{T1}, 10, v{T2}", [T1, T2], [T2]))
    a(V(f"v_mul_u32_u24 v{T3}, 5, v{T3}", [T3], [T3]))
    a(V(f"v_sub_u32 v{T0}, v{T0}, v{T3}", [T0, T3], [T0]))
    a(V(f"v_lshl_add_u32 v{T2}, v{T0}, 14, v{T2}", [T0, T2], [T2]))
    a(S(f"s_mul_i32 s{S_T0}, s{S_B}, 81920", [S_B], [S_T0]))
    a(S(f"s_lshl_b32 s{S_T2}, s{S_J}, 8", [S_J], [S_T2]))
    a(S(f"s_add_u32 s{S_T0}, s{S_T0}, s{S_T2}", [S_T0, S_T2], [S_T0]))
    a(V(f"v_add_u32 v{V_OUT}, s{S_T0}, v{T2}", [T2, ('s', S_T0)], [V_OUT]))
    a(V(f"v_cmp_gt_u32 vcc, 40, v{V_LANE}", [V_LANE], [VCC]))
    a(V(f"v_mov_b32 v{T0}, 0x7ff00000", [], [T0]))
    a(V(f"v_cndmask_b32 v{V_PLD}, v{T0}, v{V_PLD}, vcc", [T0, V_PLD, VCC], [V_PLD]))
    a(V(f"v_cndmask_b32 v{V_OUT}, v{T0}, v{V_OUT}, vcc", [T0, V_OUT, VCC], [V_OUT]))
    for pv_, n_, sh, sg_ in ((V_P1, 4, 9, S_G1), (V_P2, 8, 11, S_G2)):
        a(V(f"v_lshl_add_u32 v{pv_}, v{V_LANE}, {sh}, s{sg_}", [V_LANE, ('s', sg_)], [pv_]))
        a(V(f"v_cmp_gt_u32 vcc, {n_}, v{V_LANE}", [V_LANE], [VCC]))
        a(V(f"v_cndmask_b32 v{pv_}, v{T0}, v{pv_}, vcc", [T0, pv_, VCC], [pv_]))
    return o
def wod_calc():
    o = []; a = o.append
    T0, T1 = 252, 253
    a(S(f"s_lshl_b32 s{S_T0}, s{S_B}, 2", [S_B], [S_T0]))
    a(S(f"s_add_u32 s{S_T0}, s{S_T0}, s{S_W}", [S_T0, S_W], [S_T0]))
    a(S(f"s_lshl_b32 s{S_T0}, s{S_T0}, 14", [S_T0], [S_T0]))
    a(S(f"s_lshl_b32 s{S_T2}, s{S_J}, 8", [S_J], [S_T2]))
    a(S(f"s_add_u32 s{S_T0}, s{S_T0}, s{S_T2}", [S_T0, S_T2], [S_T0]))
    a(V(f"v_bfe_u32 v{T0}, v{V_LANE}, 1, 4", [V_LANE], [T0]))
    a(V(f"v_and_b32 v{T1}, 1, v{V_LANE}", [V_LANE], [T1]))
    a(V(f"v_lshlrev_b32 v{T1}, 7, v{T1}", [T1], [T1]))
    a(V(f"v_lshl_add_u32 v{T0}, v{T0}, 10, v{T1}", [T0, T1], [T0]))
    a(V(f"v_add_u32 v{V_TCH}, s{S_T0}, v{T0}", [T0, ('s', S_T0)], [V_TCH]))
    a(S(f"s_and_b32 s{S_T0}, s{S_W}, 1", [S_W], [S_T0]))
    a(S(f"s_lshl_b32 s{S_T0}, s{S_T0}, 3", [S_T0], [S_T0]))
    a(V(f"v_lshl_add_u32 v{T0}, v{V_G}, 1, s{S_T0}", [V_G, ('s', S_T0)], [T0]))
    a(V(f"v_xor_b32 v{T0}, v{V_N}, v{T0}", [V_N, T0], [T0]))
    a(S(f"s_lshl_b32 s{S_T0}, s{S_J}, 8", [S_J], [S_T0]))
    a(V(f"v_lshl_add_u32 v{T0}, v{T0}, 4, s{S_T0}", [T0, ('s', S_T0)], [T0]))
    a(V(f"v_lshl_add_u32 v{T1}, s{S_W}, 2, v{V_G}", [V_G, ('s', S_W)], [T1]))
    a(V(f"v_lshl_add_u32 v{V_WOD}, v{T1}, 10, v{T0}", [T0, T1], [V_WOD]))
    return o

def phase_b(sg, Q, qr):
    NT = 8
    calc = wod_calc() + tail_calc()
    sg.addall(qr[:4])
    qr = qr[4:]
    for tau in range(-1, 40):
        i, q = divmod(tau, 5) if tau >= 0 else (-1, 4)
        mf = []
        bst = [int(x) for x in opt.bst.split(',')]
        if tau in bst: stamp(sg, 5 + bst.index(tau), 'B')
        if tau + 1 < 40: mf += qk(tau + 1)
        if tau - 1 >= 0: mf += pv(tau - 1)
        ds, marks = [], []
        if tau == -1: ds = qr
        elif tau == 0: ds = v_reads(0); marks = [('vr', 0, 0), ('vr', 0, 1)]
        elif tau < 27:
            if q == 2: ds = k_reads(i + 1)[:4]; marks = [('kr', i + 1, 0)]
            if q == 3: ds = k_reads(i + 1)[4:] + v_reads(i + 1)[:2]; marks = [('kr', i + 1, 1)]
            if q == 4: ds = v_reads(i + 1)[2:8]; marks = [('vr', i + 1, 0)]
            if q == 0: ds = v_reads(i)[8:14]
            if q == 1 and i > 0: ds = v_reads(i)[14:]; Q.mark(('vr', i, 1))
        xp = None
        if tau >= 27:
            k6, k7, v6, v7 = k_reads(6), k_reads(7), v_reads(6), v_reads(7)
            vo = [v7[l + 8 * h] for l in range(8) for h in range(2)]
            G = [1, 3, 5, 7, 9, 11, 13, 15, 16]
            def cwp(q_, second):
                w_ = comb_writes(q_)
                if int(opt.w64) and q_ < 2:
                    h_ = []
                    for x in w_[1:]:
                        m_ = re.match(r"ds_write_b128 v(\d+), a\[(\d+):\d+\] offset:(\d+)", x.t)
                        for z in range(2): h_.append(dswr('ds_write_b64', int(m_.group(1)), ('a', int(m_.group(2)) + 2 * z), 2, int(m_.group(3)) + 8 * z, lgtag=x.lgtag))
                    return list(zip([1, 3, 5, 9, 13, 16], h_[6:])) if second else list(zip([7, 1, 3, 5, 9, 13, 16], [w_[0]] + h_[:6]))
                return list(zip([1, 9, 13], w_[4:])) if second else list(zip([7, 1, 9, 13], w_[:4]))
            xp = {27: list(zip([3, 5, 9, 11, 15, 16], k6[:4] + v6[:2])),
                  28: list(zip([1, 3, 5, 7, 9, 11, 13, 15, 16], k6[4:] + k7[:5])),
                  29: list(zip(G, k7[5:] + v6[2:8])),
                  30: list(zip([1, 3, 5, 7, 9, 11, 13, 15, 16, 16], v6[8:] + vo[:2])),
                  31: list(zip([1, 1, 3, 5, 5, 7, 9, 9, 11, 13, 13, 15, 16, 16], vo[2:])),
                  32: [], 33: cwp(0, 0), 34: cwp(0, 1), 35: cwp(1, 0), 36: cwp(1, 1), 37: cwp(2, 0),
                  38: cwp(2, 1) + list(zip([3, 5, 5, 7, 11, 15, 16, 16], lreads((0, 1)) + preads(0)[:4])),
                  39: list(zip([0, 2, 4, 6], comb_writes(3)[:4])) + list(zip([1, 1, 3, 3, 5, 5, 7, 7], preads(0)[4:] + preads(1)))}[tau]
            ds = [x for _, x in xp]; marks = []
            if tau == 38:
                b = barrier(needvm=[('wo', -1)], lg0=False); b.needlg = (('cw', 0), ('cw', 1)); sg.add(b)
        n = len(mf)
        gaps = [[] for _ in range(n)]
        e, c = sm(tau) if 0 <= tau < 40 else ([], [])
        if n == 17:
            epos = [0, 2, 4, 6, 8, 10, 12, 14]; cpos = [3, 7, 11, 15]
            dpos = [1, 3, 5, 7, 9, 11, 13, 15] if len(ds) > 4 else [1, 3, 5, 7]
            if ds and ds[0].k == 'dswr': dpos = [1, 1, 3, 7, 9, 13, 16]
            vpos = [1, 5, 9, 13] if (tau < int(opt.even_at) or q == 1) else [1, 7, 13]
            if int(opt.bsched) and not (ds and ds[0].k == 'dswr'):
                if q == 1: dpos, vpos = [1, 3], [5, 9, 13, 16]
                elif tau < int(opt.even_at) or tau >= int(opt.even_end): dpos, vpos = ([3, 7, 11, 15, 16, 16] if q != 3 else [1, 3, 7, 11, 15, 16]), ([1, 5, 9, 13] if q != 3 else [5, 9, 13, 16])
                else: dpos, vpos = [3, 5, 9, 11, 15, 16], [1, 7, 13]
        else:
            epos = list(range(8)); cpos = [min(n - 1, x) for x in (2, 4, 6, 8)]
            dpos = [(k * n) // max(1, len(ds)) for k in range(len(ds))]
            vpos = [1, 5]
        if xp is not None:
            dpos = [g_ for g_, _ in xp]; vpos = [7, 11, 15] if tau >= 32 else [13]
            if tau == 27: vpos = [1, 7, 13]
        for x, p_ in zip(ds, dpos): gaps[p_].append(x)
        if tau == int(opt.nl_at):
            sg.add(V("v_mov_b32 v9, 0", [], [9]))
            Q.q.insert(0, Item([], vload(('v', V_GC), 2, 9, S_D, None, 0, flags=' sc1', tag='non')))
        if tau == int(opt.nc_at):
            assert not any(it.ins.vmtag == 'non' for it in Q.q)
            sg.add(V(f"v_readfirstlane_b32 s{S_NON}, v{V_GC}", [V_GC], [('s', S_NON)]))
            sg.add(V(f"v_readfirstlane_b32 s{S_NON+1}, v{V_GC+1}", [V_GC+1], [('s', S_NON+1)]))
            sg.add(S(f"s_cmp_eq_u64 s[{S_NON}:{S_NON+1}], 0", [S_NON, S_NON+1], []))
            sg.text("s_cbranch_scc1 L_spin_n"); sg.text("L_back_n:")
        if tau == int(opt.bar_at): sg.add(barrier(lg0=False))
        for x in ds:
            while any(it.ins.vmtag in x.needvm for it in Q.q): weave(sg, Q, [], 1, 0)
        if tau == int(opt.tch_at): Q.push([Item([], vload(('v', V_TCH + 1), 1, V_TCH, S_WO, None, 0, flags=opt.tch_flags))])
        if tau == int(opt.tlb_at):
            Q.push([Item([], vload(('v', 72), 1, V_ZERO, S_C, S_F1, 0, flags=' sc1')), Item([], vload(('v', 73), 1, V_ZERO, S_C, S_F2, 0, flags=' sc1'))])
        if tau == int(opt.wo_at): assert not calc; Q.push(wo_dma(-1))
        place(gaps, Q, vpos)
        for x, p_ in zip(e, epos): gaps[p_].append(x)
        for x, p_ in zip(c, cpos): gaps[p_].append(x)
        if tau >= int(opt.calc_at) and n == 17:
            for gi in range(17):
                if calc and calc[0].k == 'salu' and not any(y.k == 'salu' for y in gaps[gi]): gaps[gi].insert(0, calc.pop(0))
                cost = sum(8 if y.k == 'trans' else 0 if y.k == 'salu' else 4 for y in gaps[gi])
                while calc and calc[0].k != 'salu' and cost <= 4: gaps[gi].append(calc.pop(0)); cost += 4
        sg.addall(interleave(mf, gaps))
        for m in marks: Q.mark(m)

def poll(sg, lab, vaddr):
    sg.text(f"s_mov_b32 s{S_SPIN}, {opt.spin}")
    sg.text(f"{lab}:")
    sg.text(f"buffer_load_dwordx2 v[250:251], v{vaddr}, s[{S_C}:{S_C+3}], 0 offen sc1")
    sg.text(f"s_sub_u32 s{S_SPIN}, s{S_SPIN}, 1")
    sg.text("s_waitcnt vmcnt(0)")
    sg.text(f"v_cmp_ne_u64 vcc, s[{S_NON}:{S_NON+1}], v[250:251]")
    sg.text(f"s_cmp_eq_u32 s{S_SPIN}, 0")
    sg.text(f"s_cbranch_scc1 {lab}_done")
    sg.text("s_nop 2")
    sg.text(f"s_cbranch_vccnz {lab}")
    sg.text(f"{lab}_done:")
    sg.vm = []
def raise_flag(sg, stage, tag):
    ins = vstore(('v', V_GC), 2, V_P1 if stage == 1 else V_P2, S_C, None, 0, flags=' sc1')
    ins.needvm = (tag,)
    sg.add(ins)
WOF = A_Q
RES = 100
def part(q, k):
    if q == 0: return 36 + 4 * k if k < 4 else 64 + 4 * (k - 4)
    return {1: 100, 2: 164, 3: 188, 4: 100}[q] + 4 * k
def preads(q):
    o = []
    for jd in range(1, 4):
        for e in range(2):
            k = (jd - 1) * 2 + e; u = q * 6 + k; row = u >> 3
            o.append(dsrd('ds_read_b128', ('v', part(q, k)), 4, V_CR + 2 * (jd - 1) + (row >> 1), (row & 1) * 32 * KB + (u & 7) * KB))
    return o
LSA, LSB = 124, 76
def lreads(qs):
    if qs == (0, 1): return [dsrd('ds_read_b64', ('v', LSA + src * 2), 2, V_LR, src * 8 * KB) for src in range(4)]
    return [dsrd('ds_read_b128', ('v', LSB + src * 4), 4, V_LR, src * 8 * KB + 16) for src in range(4)]
def lsum(qs):
    w = []
    def lr(src, q): return LSA + src * 2 + q if q < 2 else LSB + src * 4 + q - 2
    LS = lr(0, qs[0])
    for q in qs:
        d = V_T0 + q
        w.append(V(f"v_add_f32 v{d}, v{lr(0,q)}, v{lr(1,q)}", [lr(0,q), lr(1,q)], [d]))
        w.append(V(f"v_add_f32 v{lr(2,q)}, v{lr(2,q)}, v{lr(3,q)}", [lr(2,q), lr(3,q)], [lr(2,q)]))
        w.append(V(f"v_add_f32 v{d}, v{d}, v{lr(2,q)}", [d, lr(2,q)], [d]))
    a_, b_, c_ = V_T0 + qs[0], V_T0 + qs[1], V_T0 + qs[-1]
    w.append(V(f"v_min3_f32 v{LS}, v{a_}, v{b_}, v{c_}", [a_, b_, c_], [LS]))
    w.append(V(f"v_add_f32 v{LS+1}, v{a_}, v{b_}", [a_, b_], [LS+1]))
    w.append(V(f"v_add_f32 v{LS+1}, v{LS+1}, v{c_}", [LS+1, c_], [LS+1]))
    w.append(V(f"v_cmp_nle_f32 vcc, {f2h(2.0**int(opt.lo_exp))}, v{LS}", [LS], [VCC]))
    w.append(S(f"s_mov_b64 s[{S_EX}:{S_EX+1}], vcc", [VCC], [S_EX, S_EX+1]))
    w.append(V(f"v_cmp_nge_f32 vcc, {f2h(2.0**int(opt.hi_exp))}, v{LS+1}", [LS+1], [VCC]))
    w.append(S(f"s_or_b64 vcc, vcc, s[{S_EX}:{S_EX+1}]", [VCC, S_EX, S_EX+1], [VCC]))
    w.append(S(f"s_and_b64 vcc, vcc, s[{S_GM}:{S_GM+1}]", [VCC], [VCC]))
    w.append(raw("s_cbranch_vccnz L_redo"))
    for q in qs: w.append(T(f"v_rcp_f32 v{V_T0+q}, v{V_T0+q}", [V_T0+q], [V_T0+q]))
    return w
def finish(q):
    w = []
    for e in range(2):
        o_ = V_OWN[q] + e * 4
        for jd in range(1, 4):
            p_ = part(q, (jd - 1) * 2 + e)
            for r in (0, 2):
                w.append(V(f"v_pk_add_f32 v[{o_+r}:{o_+r+1}], v[{o_+r}:{o_+r+1}], v[{p_+r}:{p_+r+1}]", [o_+r, o_+r+1, p_+r, p_+r+1], [o_+r, o_+r+1]))
    o_ = V_OWN[q]
    ri = V_T0 + (q & ~1); sel = "op_sel:[0,1] op_sel_hi:[1,1]" if q & 1 else "op_sel:[0,0] op_sel_hi:[1,0]"
    for r in range(0, 8, 2):
        w.append(V(f"v_pk_mul_f32 v[{o_+r}:{o_+r+1}], v[{o_+r}:{o_+r+1}], v[{ri}:{ri+1}] {sel}", [o_+r, o_+r+1, V_T0+q], [o_+r, o_+r+1]))
    for r in range(4):
        w.append(V(f"v_cvt_pk_bf16_f32 v{o_+r}, v{o_+2*r}, v{o_+2*r+1}", [o_+2*r, o_+2*r+1], [o_+r]))
    w.append(S(f"s_mov_b32 s{S_SV}, {q*128*KB}", [], [S_SV]))
    w.append(vstore(('v', o_), 4, V_OST, S_O, S_SV, 0, flags=opt.o_flags, tag='ost'))
    return w
def wor():
    return [dsrd('ds_read_b64_tr_b16', ('a', WOF + (ks * 2 + e) * 4 + h * 2), 2, V_WT + 4 + e, ks * 8 * KB + h * 4096) for ks in range(4) for e in range(2) for h in range(2)]
def combine(sg, Q):
    assert not Q.q
    mf = pv(39); gaps = [[] for _ in mf]
    wr = comb_writes(3)[4:]; ls = lsum((0, 1))
    for k, x in enumerate(wr): gaps[3 * k].append(x)
    k = 0
    for gi in range(9):
        n_ = 2 - len(gaps[gi])
        while ls and (n_ > 0 or ls[0].k == 'salu') and gi < 9:
            x = ls.pop(0); gaps[gi].append(x)
            n_ -= 0 if x.k == 'salu' else 2 if x.k == 'trans' else 1
    sg.addall(interleave(mf, gaps))
    stamp(sg, 4)
    w4 = comb_writes(4)
    w = ls + finish(0) + finish(1)
    for k, x in enumerate(w4): w.insert(min(len(w), 6 + k * 6), x)
    sg.addall(w)
    sg.add(barrier())
    stamp(sg, 5)
    Q.push(wo_dma(0))
    rd = lreads((2, 3, 4)) + preads(2) + preads(3)
    weave(sg, Q, rd, int(opt.cw), 2)
    sg.addall(rd)
    w = lsum((2, 3, 4)) + preads(4) + finish(2) + finish(3) + finish(4)
    for k, x in enumerate(wor()): w.insert(30 + 3 * k, x)
    sg.addall(w)
    stamp(sg, 6)

def phase_c(sg, Q):
    a = sg.add
    ACC = 164
    a(barrier())
    stamp(sg, 5, 'D')
    for q in range(5): a(dswr('ds_write_b128', V_OW, ('v', V_OWN[q]), 4, q * KB))
    Q.push(wo_dma(1) + wo_dma(2))
    weave(sg, Q, [], int(opt.shadow), 0)
    stamp(sg, 6, 'D')
    a(barrier())
    def CF(k): return [(100, 120), (64, 84), (204, 36)][k % 3]
    def c_reads(k):
        pos, ks = divmod(k, 4); pos -= 1
        xf, wf = CF(k)
        ob = 0 if pos < 0 else (44 - 20 * pos) * KB
        xr = [dsrd('ds_read_b128', ('v', xf + q * 4), 4, V_OL, ob + (ks * 5 + q) * KB) for q in range(5)]
        if pos < 0: return xr
        wb = (pos * 4 + ks) * 8 * KB
        wr = [dsrd('ds_read_b64_tr_b16', ('v', wf + e * 4 + h * 2), 2, V_WT + (2 if wb >= 64 * KB else 0) + e, (wb % (64 * KB)) + h * 4096) for e in range(2) for h in range(2)]
        return wr[:2] + xr[:1] + wr[2:] + xr[1:]
    def c_mfmas(k):
        xf, wf = CF(k)
        ff = 'v'
        if k < 4: wf, ff = WOF + k * 8, 'a'
        o = []
        for q in range(5):
            for e in range(2):
                d = ('v', ACC + (q * 2 + e) * 4)
                o.append(mfma(d, (ff, wf + e * 4), ('v', xf + q * 4), 0 if k == 0 else d))
        o[0].r |= set(R('v', xf, 20) + R(ff, wf, 8))
        return o
    def step(k, nx, pos=()):
        mf = c_mfmas(k); gaps = [[] for _ in mf]
        if nx is not None:
            for i, r in enumerate(c_reads(nx)): gaps[i].append(r)
        place(gaps, Q, pos)
        sg.addall(interleave(mf, gaps))
    def own_steps():
        for k in range(4): step(k, k + 2 if k < 2 else None, [1, 5, 9] if k % 2 == 0 else [3, 7])
    sg.addall(c_reads(0)); sg.addall(c_reads(1))
    raise_flag(sg, 1, 'ost')
    stamp(sg, 7, 'D'); stamp(sg, 7)
    weave(sg, Q, [], len(Q.q), 0)
    stamp(sg, 8, 'D')
    t = [f"s_mov_b32 s{S_SPIN}, {opt.spin}", "L_poll1:", f"s_load_dwordx8 s[4:11], s[{S_C}:{S_C+1}], s{S_F1} glc", f"s_sub_u32 s{S_SPIN}, s{S_SPIN}, 1", "s_waitcnt lgkmcnt(0)",
         f"s_cmp_eq_u32 s{S_SPIN}, 0", "s_cbranch_scc1 L_poll1_done"]
    t += [f"s_lshl_b32 s{S_T0}, 1, s{S_J}"]
    for h in range(4): t += [f"s_cmp_eq_u64 s[{4+2*h}:{5+2*h}], s[{S_NON}:{S_NON+1}]", f"s_cselect_b32 s{S_T1}, {1 << h}, 0", f"s_or_b32 s{S_T0}, s{S_T0}, s{S_T1}"]
    t += [f"s_cmp_lg_u32 s{S_T0}, 15", "s_cbranch_scc1 L_poll1", "L_poll1_done:"]
    for x in t: sg.text(x)
    sg.lg = []
    stamp(sg, 9, 'D')
    stamp(sg, 5, 'E')
    stamp(sg, 8)
    Q.push(osib_dma(0) + osib_dma(1))
    weave(sg, Q, [], 5, 0); own_steps()
    weave(sg, Q, [], len(Q.q), 0)
    stamp(sg, 6, 'E')
    a(barrier(needvm=[('os', 0), ('wo', 0), ('wo', 1)]))
    stamp(sg, 7, 'E')
    Q.push(osib_dma(2))
    sg.addall(c_reads(4)); sg.addall(c_reads(5))
    def pfin(q):
        b = ACC + q * 8
        return [V(f"v_cvt_pk_bf16_f32 v{b+r}, v{b+2*r}, v{b+2*r+1}", [b+2*r, b+2*r+1], [b+r]) for r in range(4)] + [vstore(('v', b), 4, V_PS, S_WT, S_TAB + q, 0, flags=' sc1', tag='pst')]
    last = 16 - (2 if int(opt.qmaj) else 0)
    for k in range(4, last):
        nx = k + 2 if k + 2 < 16 else None
        if nx in (8, 12):
            assert not Q.q or nx == 8
            a(barrier(needvm=[('os', nx // 4 - 1), ('wo', nx // 4 - 1)], lg0=False))
            stamp(sg, 8 if nx == 8 else 9, 'E')
        step(k, nx, [1, 5, 9] if k % 2 == 0 else [3, 7])
    if int(opt.qmaj):
        m14, m15 = c_mfmas(14), c_mfmas(15)
        m15[0].r -= set(R('v', CF(15)[0] + 4, 16))
        mf = flat([[m14[2*q], m15[2*q], m14[2*q+1], m15[2*q+1]] for q in range(5)])
        gaps = [[] for _ in mf]
        for q in range(4):
            f_ = pfin(q)
            g0 = 4 * q + 6
            if g0 + 2 < 20:
                gaps[g0] += f_[0:2]; gaps[g0 + 1] += f_[2:4]; gaps[g0 + 2] += f_[4:]
        sg.addall(interleave(mf, gaps))
        stamp(sg, 9)
        sg.addall(pfin(3) + pfin(4))
    else:
        stamp(sg, 9)
        for q in range(5): sg.addall(pfin(q))
    a(S(f"s_mov_b32 s{S_SO}, 4096", [], [S_SO]))
    a(S(f"s_mov_b32 s{S_T1}, 0xffff0000", [], [S_T1]))
    a(S(f"s_mov_b32 s{S_SPIN}, {opt.spin}", [], [S_SPIN]))
    a(S(f"s_mov_b32 s{S_T2}, 0", [], [S_T2]))
    a(S(f"s_mov_b32 s{S_SK}, 0", [], [S_SK]))
    if int(opt.f2wg):
        a(barrier(needvm=['pst'], lg0=False))
        sg.text(f"s_cmp_lg_u32 s{S_W}, 0"); sg.text("s_cbranch_scc1 L_sig2"); raise_flag(sg, 2, 'pst'); sg.text("L_sig2:")
    else: raise_flag(sg, 2, 'pst')
    stamp(sg, 5, '2')
    PB, SM = 100, 132
    def pl(h): return vload(('v', PB + 4 * h), 4, V_PLD, S_WT, S_SO if h >= 4 else None, (h & 3) * 1024, flags=' sc1')
    t = ["L_poll2:", f"s_load_dwordx16 s[4:19], s[{S_C}:{S_C+1}], s{S_F2} glc", f"s_cmp_eq_u32 s{S_SK}, 0", "s_cbranch_scc1 L_nounp", "L_unp:", "s_waitcnt vmcnt(0)"]
    for h in range(8):
        t += [f"s_bitcmp1_b32 s{S_SK}, {h}", f"s_cbranch_scc0 L_u{h}"]
        for r in range(4): t += [f"v_lshlrev_b32 v{SM+8*h+2*r}, 16, v{PB+4*h+r}", f"v_and_b32 v{SM+8*h+2*r+1}, s{S_T1}, v{PB+4*h+r}"]
        t += [f"L_u{h}:"]
    t += [f"s_cmp_eq_u32 s{S_T2}, 0xff", "s_cbranch_scc1 L_poll2_done", "L_nounp:", f"s_mov_b32 s{S_SK}, 0", f"s_sub_u32 s{S_SPIN}, s{S_SPIN}, 1", "s_waitcnt lgkmcnt(0)",
          f"s_cmp_eq_u32 s{S_SPIN}, 0", "s_cbranch_scc1 L_poll2_done"]
    for h in range(8):
        t += [f"s_cmp_lg_u64 s[{4+2*h}:{5+2*h}], s[{S_NON}:{S_NON+1}]", f"s_cbranch_scc1 L_g{h}", f"s_bitcmp1_b32 s{S_T2}, {h}", f"s_cbranch_scc1 L_g{h}",
              f"s_bitset1_b32 s{S_T2}, {h}", f"s_bitset1_b32 s{S_SK}, {h}", pl(h).t, f"L_g{h}:"]
    t += [f"s_cmp_lg_u32 s{S_T2}, 0xff", "s_cbranch_scc1 L_poll2", "s_branch L_unp", "L_poll2_done:"]
    if not int(opt.unp):
        t = ["L_poll2:", f"s_load_dwordx16 s[4:19], s[{S_C}:{S_C+1}], s{S_F2} glc", f"s_sub_u32 s{S_SPIN}, s{S_SPIN}, 1", "s_waitcnt lgkmcnt(0)", f"s_cmp_eq_u32 s{S_SPIN}, 0", "s_cbranch_scc1 L_poll2_done"]
        for h in range(8):
            t += [f"s_cmp_lg_u64 s[{4+2*h}:{5+2*h}], s[{S_NON}:{S_NON+1}]", f"s_cbranch_scc1 L_g{h}", f"s_bitcmp1_b32 s{S_T2}, {h}", f"s_cbranch_scc1 L_g{h}",
                  f"s_bitset1_b32 s{S_T2}, {h}", f"s_bitset1_b32 s{S_SK}, {h}", pl(h).t, f"L_g{h}:"]
        t += [f"s_cmp_eq_u32 s{S_T2}, 0xff", "s_cbranch_scc1 L_poll2_done", f"s_mov_b32 s{S_SK}, 0", "s_branch L_poll2", "L_poll2_done:"]
        t += ["s_waitcnt vmcnt(0)"]
        for h in range(8):
            for r in range(4): t += [f"v_lshlrev_b32 v{SM+8*h+2*r}, 16, v{PB+4*h+r}", f"v_and_b32 v{SM+8*h+2*r+1}, s{S_T1}, v{PB+4*h+r}"]
    for x in t: sg.text(x)
    sg.vm = []
    stamp(sg, 6, '2')
    for h in range(1, 8):
        for r in range(0, 8, 2):
            u = SM + 8 * h + r
            a(V(f"v_pk_add_f32 v[{SM+r}:{SM+r+1}], v[{SM+r}:{SM+r+1}], v[{u}:{u+1}]", [SM+r, SM+r+1, u, u+1], [SM+r, SM+r+1]))
    for r in range(4):
        a(V(f"v_cvt_pk_bf16_f32 v{SM+r}, v{SM+2*r}, v{SM+2*r+1}", [SM+2*r, SM+2*r+1], [SM+r]))
    if not int(opt.noout):
        a(vstore(('v', SM), 2, V_OUT, S_OUT, None, 0, flags=opt.out_flags))
        a(vstore(('v', SM + 2), 2, V_OUT, S_OUT, None, 32, flags=opt.out_flags))

def out_of_line():
    t = []
    t += ["L_spin_n:", f"s_mov_b32 s{S_SPIN}, {opt.spin}", "L_spin_n1:",
          f"buffer_load_dwordx2 v[{V_GC}:{V_GC+1}], v9, s[{S_D}:{S_D+3}], 0 offen sc1", f"s_sub_u32 s{S_SPIN}, s{S_SPIN}, 1", "s_waitcnt vmcnt(0)",
          f"v_readfirstlane_b32 s{S_NON}, v{V_GC}", f"v_readfirstlane_b32 s{S_NON+1}, v{V_GC+1}", f"s_cmp_eq_u32 s{S_SPIN}, 0", "s_cbranch_scc1 L_back_n", "s_nop 2",
          f"s_cmp_eq_u64 s[{S_NON}:{S_NON+1}], 0", "s_cbranch_scc1 L_spin_n1", "s_branch L_back_n"]
    t += ["L_redo:", f"s_mov_b64 s[{S_GM}:{S_GM+1}], 0", f"s_mov_b32 s{S_REDO}, 1",
          "s_waitcnt vmcnt(0) lgkmcnt(0)", "s_barrier"]
    sg = Seg()
    p1 = prologue1()
    a = sg.add
    a(V(f"v_lshl_add_u32 v{V_T0}, s{S_W}, 2, v{V_G}", [V_G], [V_T0]))
    a(V(f"v_xor_b32 v{V_T1}, v{V_N}, v{V_T0}", [V_N, V_T0], [V_T1]))
    a(V(f"v_lshlrev_b32 v{V_T1}, 4, v{V_T1}", [V_T1], [V_T1]))
    a(V(f"v_lshl_add_u32 v{V_XD}, v{V_T0}, 10, v{V_T1}", [V_T0, V_T1], [V_XD]))
    a(S(f"s_and_b32 s{S_T0}, s{S_W}, 2", [S_W], [S_T0]))
    a(S(f"s_lshl_b32 s{S_T0}, s{S_T0}, 2", [S_T0], [S_T0]))
    a(V(f"v_lshl_add_u32 v{V_T1}, v{V_G}, 1, s{S_T0}", [V_G], [V_T1]))
    a(V(f"v_xor_b32 v{V_T1}, v{V_N}, v{V_T1}", [V_N, V_T1], [V_T1]))
    a(V(f"v_lshlrev_b32 v{V_T1}, 4, v{V_T1}", [V_T1], [V_T1]))
    a(V(f"v_lshl_add_u32 v{V_WD}, v{V_T0}, 13, v{V_T1}", [V_T0, V_T1], [V_WD]))
    t += sg.out + ["s_nop 4", "s_branch L_restart"]
    sg = Seg(); a = sg.add
    sg.text("L_max:")
    sg.text(f"s_mov_b32 s{S_SPIN}, m0")
    sg.drain()
    sg.text("s_barrier")
    MX, KF, AD = 76, V_VF, 84
    for q in range(5): a(V(f"v_mov_b32 v{MX+q}, 0xff800000", [], [MX+q]))
    for s in range(4): a(V(f"v_add_u32 v{AD+s}, {96*KB}, v{V_KA+s}", [V_KA+s], [AD+s]))
    a(S(f"s_mov_b32 s{S_T2}, 0", [], [S_T2]))
    sg.text("L_max_loop:"); sg.reset_hist()
    for j in range(8):
        if j % 4 == 0:
            a(S(f"s_add_u32 s{S_T1}, s{S_T2}, {(j>>2)*4096}", [S_T2], [S_T1]))
            a(S(f"s_add_u32 m0, s{S_W8K}, {96*KB + (j>>2)*4096}", [S_W8K], [M0]))
        a(dma(V_KD + (j & 3), S_K, S_T1, 1024 * (j & 3), 'mk'))
    for t_ in range(2):
        for s in range(4):
            a(dsrd('ds_read_b128', ('v', KF + (t_ * 4 + s) * 4), 4, AD + s, t_ * 4096, needvm=['mk']))
    for q in range(5):
        for t_ in range(2):
            d = ('v', 88 + t_ * 4)
            for s in range(4): a(mfma(d, ('v', KF + (t_ * 4 + s) * 4), AQ(q, s), 0 if s == 0 else d))
        for k in range(4):
            a(V(f"v_max3_f32 v{MX+q}, v{MX+q}, v{88+2*k}, v{89+2*k}", [MX+q, 88+2*k, 89+2*k], [MX+q]))
    sg.drain()
    a(S(f"s_add_u32 s{S_T2}, s{S_T2}, 8192", [S_T2], [S_T2]))
    sg.text(f"s_cmp_lt_u32 s{S_T2}, 65536"); sg.text("s_nop 4"); sg.text("s_cbranch_scc1 L_max_loop")
    sg.text("s_barrier")
    a(S(f"s_mul_i32 s{S_T0}, s{S_W}, 1280", [S_W], [S_T0]))
    a(S(f"s_add_u32 s{S_T0}, s{S_T0}, {96*KB}", [S_T0], [S_T0]))
    a(V(f"v_lshl_add_u32 v{AD}, v{V_LANE}, 2, s{S_T0}", [V_LANE], [AD]))
    a(S(f"s_mov_b32 s{S_T0}, {96*KB}", [], [S_T0]))
    a(V(f"v_lshl_add_u32 v{AD+1}, v{V_N}, 2, s{S_T0}", [V_N], [AD+1]))
    for q in range(5): a(dswr('ds_write_b32', AD, ('v', MX + q), 1, q * 256))
    a(barrier())
    for q in range(5):
        for k in range(16):
            a(dsrd('ds_read_b32', ('v', KF + k), 1, AD + 1, (k >> 2) * 1280 + q * 256 + (k & 3) * 64))
        for k in range(8):
            a(V(f"v_max3_f32 v{MX+q}, v{MX+q}, v{KF+2*k}, v{KF+2*k+1}", [MX+q, KF+2*k, KF+2*k+1], [MX+q]))
        for r in range(4):
            a(V(f"v_sub_f32 v{V_NEGM+q*4+r}, 0, v{MX+q}", [MX+q], [V_NEGM+q*4+r]))
    sg.drain()
    sg.text("s_barrier"); sg.text(f"s_mov_b32 m0, s{S_SPIN}"); sg.text("s_nop 4"); sg.text("s_branch L_back_max")
    return t + sg.out

def stamp_out(sg, n):
    if not opt.stamps: return
    stamp(sg, n - 1)
    t = ["s_load_dwordx2 s[4:5], s[0:1], 56", "s_waitcnt lgkmcnt(0)", f"s_add_u32 s4, s4, {16<<20}", "s_addc_u32 s5, s5, 0", "s_and_b32 s5, s5, 0xffff",
         "s_mov_b32 s6, 0x100000", "s_mov_b32 s7, 0x20000", "s_lshl_b32 s8, s2, 2", "s_add_u32 s8, s8, s32", "s_lshl_b32 s8, s8, 6", "v_mov_b32 v2, s8"]
    for i in range(n):
        t += [f"v_mov_b32 v3, s{3 if i == 0 else 76+2*i}", f"buffer_store_dword v3, v2, s[4:7], 0 offen offset:{4*i} sc1"]
    for x in t: sg.text(x)

def kernel():
    sg = Seg()
    sg.text(NAME + "_kernel:")
    sg.text("s_cmp_ge_u32 s2, 256")
    sg.text("s_cbranch_scc1 L_end")
    if opt.stamps:
        stamp(sg, 0)
    p1 = prologue1()
    sg.addall(p1[:2])
    if int(opt.cpf):
        for x in ["s_getpc_b64 s[94:95]", "L_pc:", "s_lshr_b32 s3, s2, 3", "v_lshrrev_b32 v8, 6, v0", "v_and_b32 v9, 1, v0", "v_lshl_add_u32 v8, v8, 1, v9",
                  "v_lshl_add_u32 v8, s3, 3, v8", "v_lshlrev_b32 v8, 7, v8", "v_min_u32 v8, (L_code_end - L_pc - 4) & 0xffffff80, v8"] + (["global_load_dword v255, v8, s[94:95]"] if int(opt.cpf) == 1 else ["s_mov_b64 s[12:13], s[94:95]"]): sg.text(x)
    sg.addall(p1[2:])
    if opt.stamps:
        sg.text("s_mov_b32 s3, s76")
    p2 = prologue2()
    Q = Queue()
    first = x_dma(0) + w_dma(0) if not int(opt.wfirst) else w_dma(0) + x_dma(0)
    stamp(sg, 5, 'P')
    Q.push(first)
    weave(sg, Q, [], 9, 0)
    if int(opt.cpf) == 2: sg.text("global_load_dword v255, v8, s[12:13]")
    stamp(sg, 6, 'P')
    sg.addall(p2)
    stamp(sg, 7, 'P')
    sg.text("s_cmp_lg_u32 s2, 0"); sg.text("s_cbranch_scc1 L_nocz")
    lane0(sg, ["v_mov_b32 v9, 0", f"s_memrealtime s[{S_NON}:{S_NON+1}]", "s_waitcnt lgkmcnt(0)", f"s_or_b32 s{S_NON}, s{S_NON}, 1", f"v_mov_b32 v250, s{S_NON}", f"v_mov_b32 v251, s{S_NON+1}",
               f"buffer_store_dwordx2 v[250:251], v9, s[{S_D}:{S_D+3}], 0 offen sc1"], "L_nocz")
    sg.text("s_branch L_first")
    sg.text("L_restart:")
    s2 = Seg(); s2.addall(restart_setup()); Q2 = Queue(); Q2.push(x_dma(0) + w_dma(0) if not int(opt.wfirst) else w_dma(0) + x_dma(0)); weave(s2, Q2, [], 9, 0)
    for x in s2.out: sg.text(x)
    sg.text("L_first:")
    early, late = prologue3()
    early = early + late + handoff_calc()
    def BB(u): return f"B{u + 1}"
    Q.push(w_dma(1) + x_dma(1) + w_dma(2) + w_dma(3) + x_dma(2) + w_dma(4) + ((w_dma(5, 'B2') + x_dma(3)) if int(opt.la) else (x_dma(3) + w_dma(5, 'B2'))) + w_dma(6, 'B3') + w_dma(7, 'B4')
           + kv_dma('k', 0, 'B5') + kv_dma('v', 0, 'B6') + kv_dma('k', 1, 'B8') + kv_dma('v', 1, 'BQ'))
    for i in range(2, 8):
        if not int(opt.nodma): Q.push(kv_dma('k', i) + kv_dma('v', i))
    n0 = int(opt.n0) - 9
    weave(sg, Q, early, n0, (len(early) + n0 - 1) // n0)
    sg.addall(early)
    qr = phase_a(sg, Q)
    sg.addall(qr[:0])
    stamp(sg, 3)
    sg.text(f"s_cmp_eq_u32 s{S_REDO}, 0"); sg.text("s_cbranch_scc1 L_back_max")
    s2 = Seg(); s2.addall(qr)
    for x in s2.out: sg.text(x)
    sg.text("s_branch L_max")
    sg.text("L_back_max:")
    phase_b(sg, Q, qr)
    combine(sg, Q)
    phase_c(sg, Q)
    sg.text("L_fin:")
    stamp_out(sg, 11)
    sg.text("L_end:")
    sg.text("s_endpgm")
    return sg.out + ['L_code_end:'] + out_of_line()

def report_kernel():
    idx, mode = opt.report.split(',')
    if mode == 'next':
        return ["report_kernel:", "s_cmp_ge_u32 s2, 1", "s_cbranch_scc1 L3_end", "s_memrealtime s[12:13]", "s_load_dwordx2 s[4:5], s[0:1], 56", "s_waitcnt lgkmcnt(0)",
                f"s_add_u32 s4, s4, {17<<20}", "s_addc_u32 s5, s5, 0", "s_and_b32 s5, s5, 0xffff", "s_mov_b32 s6, 64", "s_mov_b32 s7, 0x20000", "v_mov_b32 v1, 0", "v_mov_b32 v2, s12",
                "buffer_store_dword v2, v1, s[4:7], 0 offen", "L3_end:", "s_endpgm"]
    t = ["report_kernel:", "s_cmp_ge_u32 s2, 1", "s_cbranch_scc1 L3_end", "s_load_dwordx2 s[4:5], s[0:1], 56", "s_waitcnt lgkmcnt(0)",
         f"s_add_u32 s4, s4, {16<<20}", "s_addc_u32 s5, s5, 0", "s_and_b32 s5, s5, 0xffff", "s_mov_b32 s6, 0x100000", "s_mov_b32 s7, 0x20000",
         "v_lshlrev_b32 v1, 8, v0", f"buffer_load_dword v2, v1, s[4:7], 0 offen offset:{4*int(idx)}", "buffer_load_dword v3, v1, s[4:7], 0 offen",
         "v_mov_b32 v4, 0", "v_mov_b32 v5, 0", "v_mov_b32 v6, -1", "ds_write_b32 v4, v5", "ds_write_b32 v4, v6 offset:8", "s_waitcnt vmcnt(0) lgkmcnt(0)", "s_barrier",
         "ds_min_u32 v4, v3 offset:8", "s_waitcnt lgkmcnt(0)", "s_barrier", "ds_read_b32 v6, v4 offset:8", "s_waitcnt lgkmcnt(0)", "v_sub_u32 v2, v2, v6",
         "v_lshrrev_b32 v7, 3, v0", "v_mul_u32_u24 v7, 52, v7", "v_lshrrev_b32 v7, 8, v7", "v_and_b32 v8, 1, v0", "v_sub_u32 v8, 6, v8", "v_cmp_lt_u32 vcc, v7, v8",
         "v_min_u32 v2, 10000, v2",
         ("ds_add_u32 v4, v2" if mode == 'mean' else "ds_max_u32 v4, v2"), "s_waitcnt lgkmcnt(0)", "s_barrier", "ds_read_b32 v6, v4", "s_memrealtime s[12:13]", "s_waitcnt lgkmcnt(0)",
         "v_readfirstlane_b32 s10, v6", "s_nop 4"]
    if mode == 'mean': t += ["s_mul_i32 s10, s10, 10", "s_lshr_b32 s10, s10, 8"]
    elif mode == 'max': t += ["s_mul_i32 s10, s10, 10"]
    else: t += ["s_mov_b32 s10, 0"]
    t += ["L3_spin:", "s_memrealtime s[14:15]", "s_waitcnt lgkmcnt(0)", "s_sub_u32 s14, s14, s12",
          "s_cmp_lt_u32 s14, s10", "s_cbranch_scc1 L3_spin", "L3_end:", "s_endpgm"]
    return t

def build():
    def fmt(l): return "\n".join(x if x.endswith(':') else "    " + x for x in l)
    nm = NAME + "_kernel"
    s = "; @launch grid=(256,1,1) block=(256,1,1) lds=163840\n"
    if opt.report:
        s = f"; @launch kernel={nm} grid=(256,1,1) block=(256,1,1) lds=163840\n; @launch kernel=report_kernel grid=(1,1,1) block=(256,1,1) lds=64\n"
    s += '.amdgcn_target "amdgcn-amd-amdhsa--gfx950"\n.text\n'
    s += f".globl {nm}\n.p2align 8\n.type {nm},@function\n" + fmt(kernel()) + "\n"
    if opt.report: s += ".globl report_kernel\n.p2align 8\n.type report_kernel,@function\n" + fmt(report_kernel()) + "\n"
    s += f""".section .rodata,"a"
.p2align 6
.amdhsa_kernel {nm}
  .amdhsa_next_free_vgpr 512
  .amdhsa_next_free_sgpr 102
  .amdhsa_accum_offset 256
  .amdhsa_group_segment_fixed_size 0
  .amdhsa_kernarg_size 64
  .amdhsa_user_sgpr_count 2
  .amdhsa_user_sgpr_kernarg_segment_ptr 1
  .amdhsa_system_sgpr_workgroup_id_x 1
  .amdhsa_float_denorm_mode_32 3
.end_amdhsa_kernel
"""
    if opt.report:
        s += """.p2align 6
.amdhsa_kernel report_kernel
  .amdhsa_next_free_vgpr 32
  .amdhsa_next_free_sgpr 32
  .amdhsa_accum_offset 32
  .amdhsa_group_segment_fixed_size 0
  .amdhsa_kernarg_size 64
  .amdhsa_user_sgpr_count 2
  .amdhsa_user_sgpr_kernarg_segment_ptr 1
  .amdhsa_system_sgpr_workgroup_id_x 1
.end_amdhsa_kernel
"""
    return s

if __name__ == '__main__':
    out = sys.argv[1] if len(sys.argv) > 1 else 'cdna_kernels/' + NAME + '.s'
    for a_ in sys.argv[2:]:
        k, v = a_.split('=', 1)
        setattr(opt, k, (' ' + v) if k.endswith('flags') and v else v)
    HOIST[0] = int(opt.hoist)
    txt = build()
    open(out, 'w').write(txt)
```

```python
import sys, struct, re
from dsl import *

KB = 1024
NAME = 'standalone__gqa_block_cached__near_ridge'
def f2h(x): return hex(struct.unpack('<I', struct.pack('<f', x))[0])
QSCALE = 1.4426950408889634 / (128 ** 0.5)
WS_WO = 8 << 20
WS_CT = 12 << 20

class Opt:
    stamps = ''
    report = ''
    kv_flags = ''
    a_flags = ''
    n0 = 22
    warm = 1
    perstep = 6
    lo_exp = -40
    hi_exp = 40
    spin = 300000
    rt_at = 5
    bar_at = 12
    nodma = 0
    worlate = 1
    pf = 9
    noout = 0
    even_end = 23
    coal = 1
    hoist = 2
    unp = 0
    f2wg = 1
    wfirst = 0
    kvnt = 'x'
    ant = ''
    tch_flags = ''
    wsb = 0
    drain = '45'
    tlb_at = 27
    aonly = 0
    la = 10
    aq = 1
    ownlate = 1
    o_flags = ' sc1'
    f1_flags = ' sc1'
    w64 = 0
    out_flags = ''
    bsched = 1
    p1w = 1
    p2w = 0
    pollk = '19,29,39'
    dyn2 = 1
    qmaj = 1
    tch_at = 27
    even_at = 99
    pdepth = 1
    kvo = 4
    finw = 0
    alim = 16
    cpf = 1
    chain = 1
    wo_at = 35
    calc_at = 16
    nl_at = 8
    nc_at = 13
    cw = 2
    shadow = 9
    bst = '0,5,10,15,20'
    no_rt = 0
    clk = 'r'
    lg0 = 0
    vpos = '1,5,9,13'
    rot_kv = 1
    rot_a = 8
    rot_c = 1
    gl_at = 29
    gc_at = 33
opt = Opt()

S_X, S_WQ, S_K, S_V, S_O, S_WO, S_WT, S_WL, S_C, S_D, S_OUT = 4, 8, 12, 16, 20, 24, 28, 52, 56, 60, 64
S_W, S_B, S_HKV, S_HQ = 32, 33, 34, 35
S_W1K, S_W8K, S_SO, S_T0, S_T1, S_T2, S_SK, S_SV = 36, 37, 38, 39, 40, 41, 42, 43
S_TAB = 44
S_REDO, S_MT, S_NT, S_VALID, S_RT, S_SPIN = 68, 69, 70, 71, 72, 73
S_EX = 74
S_F1, S_F2, S_G1, S_G2 = 100, 101, 72, 51
S_GM = 70
S_J_UNUSED = 3
S_P = 76
S_ST = 80
V_LANE, V_N, V_G, V_T0, V_T1, V_T2, V_T3, V_T4, V_T5 = 1, 2, 3, 4, 5, 6, 7, 8, 9
V_KA, V_VA, V_KD, V_VD = 10, 14, 22, 26
V_OST, V_CW, V_LW = 28, 29, 31
V_ONES, V_NEGM, V_L, V_S, V_P, V_KF, V_VF = 32, 36, 56, 76, 92, 100, 164
V_XA, V_XB, V_WA, V_WB, V_XD, V_WD, V_QW = 228, 232, 236, 238, 240, 241, 242
V_GC = 250
S_NON = 96
V_CR, V_LR, V_WOD, V_WT, V_OL, V_OW, V_OD, V_PS, V_PLD, V_OUT, V_P1, V_P2 = 228, 234, 235, 236, 242, 243, 244, 245, 246, 247, 248, 249
V_ZERO = 9
V_TCH = 64
S_H = 52
S_W5K = 55
S_J = 69
A_O, A_Q = 0, 160
V_OWN = [132, 140, 148, 156, 56]
A_KF1, A_L = 120, 240
def AO(lam, q):
    if lam < 2: return ('v', V_OWN[q] + 4 * lam)
    return ('a', A_O + 4 * (q * 6 + lam - 2))
def KF(i, k): return ('v', V_KF + 4 * k) if i % 2 == 0 else ('a', A_KF1 + 4 * k)
def LA(q): return ('a', A_L + 4 * q) if q < 4 else ('a', 152)
def AQ(q, s): return ('a', A_Q + 4 * (q * 4 + s))

def XU(c, q):
    if c == 0: return q * 4 * KB
    if c == 1: return 20 * KB + q * 4 * KB
    if c == 2: return 128 * KB + q * 4 * KB
    return [120, 124, 148, 152, 156][q] * KB
def WU(slot, ks):
    return {0: [40, 48], 1: [56, 96], 2: [104, 112], 3: [64, 72], 4: [80, 88]}[slot][ks] * KB
WSLOT = [0, 1, 2, 3, 4, 0, 1, 2]
QBUF = 128 * KB

def V(t, r=(), w=()):
    return valu(t, r=[('v', x) if isinstance(x, int) else x for x in r], w=[('v', x) if isinstance(x, int) else x for x in w])
def T(t, r=(), w=()):
    return valu(t, r=[('v', x) for x in r], w=[('v', x) for x in w], trans=True)
def S(t, r=(), w=()):
    return salu(t, r=[('s', x) if isinstance(x, int) else x for x in r], w=[('s', x) if isinstance(x, int) else x for x in w])
M0 = ('m0', 0)
VCC = ('vcc', 0)
def flat(l): return [x for y in l for x in y]

def srd(dst, plo, add_s=None, add_imm=0, size=0):
    o = []
    if add_s is not None:
        o.append(S(f"s_add_u32 s{dst}, s{plo}, s{add_s}", [plo, add_s], [dst]))
        o.append(S(f"s_addc_u32 s{dst+1}, s{plo+1}, 0", [plo+1], [dst+1]))
        o.append(S(f"s_and_b32 s{dst+1}, s{dst+1}, 0xffff", [dst+1], [dst+1]))
    elif add_imm:
        o.append(S(f"s_add_u32 s{dst}, s{plo}, {add_imm}", [plo], [dst]))
        o.append(S(f"s_addc_u32 s{dst+1}, s{plo+1}, 0", [plo+1], [dst+1]))
        o.append(S(f"s_and_b32 s{dst+1}, s{dst+1}, 0xffff", [dst+1], [dst+1]))
    else:
        o.append(S(f"s_mov_b32 s{dst}, s{plo}", [plo], [dst]))
        o.append(S(f"s_and_b32 s{dst+1}, s{plo+1}, 0xffff", [plo+1], [dst+1]))
    if isinstance(size, str):
        o.append(S(f"s_mov_b32 s{dst+2}, {size}", [int(size[1:])], [dst+2]))
    else:
        o.append(S(f"s_mov_b32 s{dst+2}, {size}", [], [dst+2]))
    o.append(S(f"s_mov_b32 s{dst+3}, 0x20000", [], [dst+3]))
    return o

KV_ORDER = [[0, 2, 1, 3, 4, 6, 5, 7], [0, 1, 3, 2, 4, 5, 7, 6], [1, 0, 2, 4, 3, 5, 6, 7], [1, 0, 2, 3, 5, 4, 6, 7]]
KV_ORDERS = [KV_ORDER,
  [[0, 4, 1, 2, 3, 5, 6, 7], [1, 0, 5, 2, 3, 4, 6, 7], [2, 0, 1, 6, 3, 4, 5, 7], [3, 0, 1, 2, 7, 4, 5, 6]],
  [[0, 1, 2, 3, 4, 5, 6, 7], [0, 1, 2, 3, 4, 5, 6, 7], [4, 5, 6, 7, 0, 1, 2, 3], [4, 5, 6, 7, 0, 1, 2, 3]],
  [[0, 2, 1, 3, 5, 4, 6, 7], [1, 0, 3, 2, 4, 6, 5, 7], [2, 1, 0, 4, 3, 5, 7, 6], [0, 1, 2, 3, 5, 4, 6, 7]],
  [[0, 1, 2, 4, 3, 5, 6, 7], [1, 0, 2, 3, 5, 4, 6, 7], [2, 0, 1, 3, 4, 6, 5, 7], [0, 1, 3, 2, 4, 5, 7, 6]],
  [[0, 1, 4, 2, 3, 5, 6, 7], [1, 0, 2, 5, 3, 4, 6, 7], [2, 0, 1, 3, 6, 4, 5, 7], [0, 3, 1, 2, 4, 7, 5, 6]],
  [[0, 1, 3, 2, 4, 5, 7, 6], [0, 1, 2, 4, 3, 5, 6, 7], [0, 2, 1, 3, 5, 4, 6, 7], [0, 2, 1, 3, 4, 6, 5, 7]],
  [[0, 1, 2, 4, 3, 5, 6, 7], [1, 0, 3, 2, 5, 4, 6, 7], [2, 3, 0, 1, 4, 6, 5, 7], [3, 2, 1, 0, 4, 5, 7, 6]],
  [[0, 1, 2, 4, 3, 5, 6, 7], [1, 2, 0, 3, 5, 4, 6, 7], [2, 0, 1, 3, 4, 6, 5, 7], [0, 3, 1, 2, 4, 5, 7, 6]]]
def kv_pack(j):
    o = KV_ORDERS[int(opt.kvo)][j] if int(opt.rot_kv) else list(range(8))
    return sum(t << (4 * i) for i, t in enumerate(o))
S_KVO = 98
V_XD4 = 204
S_WC = 99

class Item:
    def __init__(s, pre, ins, after=None): s.pre, s.ins, s.after = pre, ins, after
def x_dma(c, after=None):
    return [Item([S(f"s_add_u32 m0, s{S_W1K}, {XU(c,q)}", [S_W1K], [M0])],
                 dma(V_XD4 + c, S_X, S_TAB + q, 0, ('x', c), flags=(' nt' if 'x' in opt.ant and c < 2 else opt.a_flags)), after) for q in range(5)]
def w_dma(u, after=None):
    o = []
    for k in range(4):
        pre = []
        if k == 0:
            pre.append(S(f"s_add_u32 s{S_SK}, s{S_WC}, {(u & 6) << 19}", [S_WC], [S_SK]))
            pre.append(S(f"s_and_b32 s{S_SK}, s{S_SK}, {7 << 19}", [S_SK], [S_SK]))
            if u & 1: pre.append(S(f"s_xor_b32 s{S_SK}, s{S_SK}, {1 << 19}", [S_SK], [S_SK]))
        pre.append(S(f"s_add_u32 s{S_SO}, s{S_SK}, {k*131072}", [S_SK], [S_SO]))
        pre.append(S(f"s_add_u32 m0, s{S_W1K}, {WU(WSLOT[u], k>>1) + (k&1)*4*KB}", [S_W1K], [M0]))
        o.append(Item(pre, dma(V_WD, S_WQ, S_SO, 0, ('w', u), flags=(' nt' if 'w' in opt.ant and u < 4 else opt.a_flags)), after))
    return o
def kv_dma(kind, i, after=None):
    o = []
    base = (i & 1) * 32 * KB + (0 if kind == 'k' else 64 * KB)
    sr, so = (S_K, S_SK) if kind == 'k' else (S_V, S_SV)
    for j in range(8):
        pre = []
        if j % 4 == 0:
            if j == 0:
                pre.append(S(f"s_bfe_u32 s{so}, s{S_KVO}, {hex((3 << 16) | (4 * i))}", [S_KVO], [so]))
                pre.append(S(f"s_lshl_b32 s{so}, s{so}, 13", [so], [so]))
            else:
                pre.append(S(f"s_add_u32 s{so}, s{so}, 4096", [so], [so]))
            pre.append(S(f"s_add_u32 m0, s{S_W8K}, {base + (j>>2)*4096}", [S_W8K], [M0]))
        va = V_KD + (j & 3) if kind == 'k' else V_VD + (j & 1)
        tag = (kind + 'r', i - 2, j >> 2)
        o.append(Item(pre, dma(va, sr, so, 1024 * (j & 3), (kind, i, j >> 2), needlg=[tag], flags=(' nt' if str(i) in str(opt.kvnt) else opt.kv_flags)), after if i < 2 else tag))
    return o
def k_reads(i):
    return [dsrd('ds_read_b128', KF(i, t * 4 + s), 4, V_KA + s, (i & 1) * 32 * KB + t * 4096,
                 needvm=[('k', i, t)], lgtag=('kr', i, t)) for t in range(2) for s in range(4)]
def v_reads(i):
    return [dsrd('ds_read_b64_tr_b16', ('v', V_VF + (i & 1) * 32 + lam * 4 + h * 2), 2, V_VA + lam, (i & 1) * 32 * KB + h * 4096,
                 needvm=[('v', i, h)], lgtag=('vr', i, h)) for h in range(2) for lam in range(8)]

class Queue:
    def __init__(s): s.q = []; s.pts = set()
    def push(s, items): s.q += items
    def mark(s, p): s.pts.add(p)
    def pop(s):
        if s.q and (s.q[0].after is None or s.q[0].after in s.pts): return s.q.pop(0)
        return None

def place(gaps, Q, pos):
    last = -1
    for p in pos:
        if p >= len(gaps): continue
        it = Q.pop()
        if it is None: break
        pre = list(it.pre)
        avail = list(range(last + 1, p))
        front = []
        if not avail: front = pre
        else:
            slots = [[] for _ in avail]
            for k_, x in enumerate(reversed(pre)):
                slots[max(0, len(avail) - 1 - k_)].insert(0, x)
            for g, sl in zip(avail, slots):
                k_ = 0
                while k_ < len(gaps[g]) and gaps[g][k_].k == 'salu': k_ += 1
                gaps[g][k_:k_] = sl
        k = 0
        while k < len(gaps[p]) and gaps[p][k].k == 'salu': k += 1
        gaps[p][k:k] = front + [it.ins]
        last = p
def weave(sg, Q, fill, n, per):
    for _ in range(n):
        it = Q.pop()
        if it is not None: sg.addall(it.pre + [it.ins])
        for _ in range(per):
            if fill: sg.add(fill.pop(0))

NST = 12
def stamp(sg, i, grp='1'):
    if not opt.stamps: return
    if 5 <= i <= 9 and grp != opt.stamps: return
    sg.text(f"{'s_memtime' if opt.clk == 'c' else 's_memrealtime'} s[{76+2*i}:{77+2*i}]")

def prologue1():
    o = []; a = o.append
    a(raw("s_load_dwordx2 s[92:93], s[0:1], 0"))
    a(raw("s_load_dwordx2 s[26:27], s[0:1], 24"))
    a(V(f"v_lshrrev_b32 v{V_T0}, 6, v0", [0], [V_T0]))
    a(V(f"v_and_b32 v{V_LANE}, 63, v0", [0], [V_LANE]))
    a(V(f"v_readfirstlane_b32 s{S_W}, v{V_T0}", [V_T0], [('s', S_W)]))
    a(S(f"s_and_b32 s{S_HKV}, s2, 7", [2], [S_HKV]))
    a(S(f"s_lshr_b32 s{S_B}, s2, 5", [2], [S_B]))
    a(S(f"s_bfe_u32 s{S_T0}, s2, 0x20003", [2], [S_T0]))
    a(S(f"s_mov_b32 s{S_J}, s{S_T0}", [S_T0], [S_J]))
    a(S(f"s_lshl_b32 s{S_HQ}, s{S_HKV}, 2", [S_HKV], [S_HQ]))
    a(S(f"s_add_u32 s{S_HQ}, s{S_HQ}, s{S_T0}", [S_HQ, S_T0], [S_HQ]))
    if int(opt.rot_a) == 2:
        a(S(f"s_add_u32 s{S_VALID}, s{S_T0}, s{S_B}", [S_T0, S_B], [S_VALID]))
        a(S(f"s_and_b32 s{S_VALID}, s{S_VALID}, 1", [S_VALID], [S_VALID]))
        a(S(f"s_lshl_b32 s{S_VALID}, s{S_VALID}, 2", [S_VALID], [S_VALID]))
    elif int(opt.rot_a) in (5, 6):
        a_, b_ = (S_B, S_T0) if int(opt.rot_a) == 5 else (S_T0, S_B)
        a(S(f"s_lshl_b32 s{S_VALID}, s{b_}, 1", [b_], [S_VALID]))
        a(S(f"s_add_u32 s{S_VALID}, s{S_VALID}, s{a_}", [S_VALID, a_], [S_VALID]))
        a(S(f"s_and_b32 s{S_VALID}, s{S_VALID}, 3", [S_VALID], [S_VALID]))
        a(S(f"s_lshl_b32 s{S_VALID}, s{S_VALID}, 1", [S_VALID], [S_VALID]))
    elif int(opt.rot_a) in (8, 9):
        a(S(f"s_add_u32 s{S_VALID}, s{S_T0}, s{S_B}", [S_T0, S_B], [S_VALID]))
        a(S(f"s_lshl_b32 s{S_VALID}, s{S_VALID}, 1", [S_VALID], [S_VALID]))
        a(S(f"s_and_b32 s{S_T1}, s{S_HKV}, {1 if int(opt.rot_a) == 8 else 3}", [S_HKV], [S_T1]))
        a(S(f"s_add_u32 s{S_VALID}, s{S_VALID}, s{S_T1}", [S_VALID, S_T1], [S_VALID]))
        a(S(f"s_and_b32 s{S_VALID}, s{S_VALID}, 3", [S_VALID], [S_VALID]))
        a(S(f"s_lshl_b32 s{S_VALID}, s{S_VALID}, 1", [S_VALID], [S_VALID]))
    elif int(opt.rot_a) == 7:
        a(S(f"s_add_u32 s{S_VALID}, s{S_T0}, s{S_B}", [S_T0, S_B], [S_VALID]))
        a(S(f"s_and_b32 s{S_VALID}, s{S_VALID}, 1", [S_VALID], [S_VALID]))
        a(S(f"s_lshl_b32 s{S_VALID}, s{S_VALID}, 2", [S_VALID], [S_VALID]))
        a(S(f"s_bfe_u32 s{S_T1}, s{S_B}, 0x10001", [S_B], [S_T1]))
        a(S(f"s_or_b32 s{S_VALID}, s{S_VALID}, s{S_T1}", [S_VALID, S_T1], [S_VALID]))
    elif int(opt.rot_a) == 4:
        a(S(f"s_add_u32 s{S_VALID}, s{S_T0}, s{S_B}", [S_T0, S_B], [S_VALID]))
        a(S(f"s_and_b32 s{S_VALID}, s{S_VALID}, 3", [S_VALID], [S_VALID]))
        a(S(f"s_lshl_b32 s{S_VALID}, s{S_VALID}, 1", [S_VALID], [S_VALID]))
    elif int(opt.rot_a):
        a(S(f"s_lshl_b32 s{S_T0}, s{S_T0}, 1", [S_T0], [S_T0]))
        a(S(f"s_add_u32 s{S_VALID}, s{S_T0}, s{S_B}", [S_T0, S_B], [S_VALID]))
        a(S(f"s_and_b32 s{S_VALID}, s{S_VALID}, 7", [S_VALID], [S_VALID]))
    else:
        a(S(f"s_mov_b32 s{S_VALID}, 0", [], [S_VALID]))
    a(V(f"v_and_b32 v{V_N}, 15, v{V_LANE}", [V_LANE], [V_N]))
    a(V(f"v_lshrrev_b32 v{V_G}, 4, v{V_LANE}", [V_LANE], [V_G]))
    a(S(f"s_lshl_b32 s{S_W1K}, s{S_W}, 10", [S_W], [S_W1K]))
    a(S(f"s_lshl_b32 s{S_W8K}, s{S_W}, 13", [S_W], [S_W8K]))
    a(V(f"v_lshl_add_u32 v{V_T0}, s{S_W}, 2, v{V_G}", [V_G, ('s', S_W)], [V_T0]))
    a(V(f"v_xor_b32 v{V_T1}, v{V_N}, v{V_T0}", [V_N, V_T0], [V_T1]))
    a(V(f"v_lshlrev_b32 v{V_T1}, 4, v{V_T1}", [V_T1], [V_T1]))
    a(V(f"v_lshl_add_u32 v{V_XD}, v{V_T0}, 10, v{V_T1}", [V_T0, V_T1], [V_XD]))
    a(S(f"s_and_b32 s{S_T0}, s{S_W}, 2", [S_W], [S_T0]))
    a(S(f"s_lshl_b32 s{S_T0}, s{S_T0}, 2", [S_T0], [S_T0]))
    a(V(f"v_lshl_add_u32 v{V_T1}, v{V_G}, 1, s{S_T0}", [V_G, ('s', S_T0)], [V_T1]))
    a(V(f"v_xor_b32 v{V_T1}, v{V_N}, v{V_T1}", [V_N, V_T1], [V_T1]))
    a(V(f"v_lshlrev_b32 v{V_T1}, 4, v{V_T1}", [V_T1], [V_T1]))
    a(V(f"v_lshl_add_u32 v{V_WD}, v{V_T0}, 13, v{V_T1}", [V_T0, V_T1], [V_WD]))
    a(S(f"s_mul_i32 s{S_T0}, s{S_B}, 81920", [S_B], [S_T0]))
    a(S(f"s_lshl_b32 s{S_T2}, s{S_HQ}, 8", [S_HQ], [S_T2]))
    a(S(f"s_sub_u32 s{S_T1}, 4194304, s{S_T2}", [S_T2], [S_T1]))
    a(S(f"s_mov_b32 s{S_REDO}, 0", [], [S_REDO]))
    a(S(f"s_lshl_b32 s{S_WC}, s{S_VALID}, 19", [S_VALID], [S_WC]))
    a(S(f"s_mov_b64 s[{S_GM}:{S_GM+1}], -1", [], [S_GM, S_GM+1]))
    o += restart_setup()
    a(S(f"s_mov_b32 s{S_X+2}, 81920", [], [S_X+2])); a(S(f"s_mov_b32 s{S_X+3}, 0x20000", [], [S_X+3]))
    a(S(f"s_mov_b32 s{S_WQ+2}, s{S_T1}", [S_T1], [S_WQ+2])); a(S(f"s_mov_b32 s{S_WQ+3}, 0x20000", [], [S_WQ+3]))
    a(raw("s_waitcnt lgkmcnt(0)", 'wait'))
    o += srd(S_X, 92, add_s=S_T0, size=81920)[:3]
    o += srd(S_WQ, 26, add_s=S_T2, size=0)[:3]
    a(raw("s_load_dwordx4 s[92:95], s[0:1], 8"))
    a(raw(f"s_load_dwordx2 s[{S_WO}:{S_WO+1}], s[0:1], 32"))
    a(raw(f"s_load_dwordx4 s[{S_C}:{S_C+3}], s[0:1], 40"))
    a(raw("s_load_dwordx2 s[100:101], s[0:1], 56"))
    return o

def restart_setup():
    o = [S(f"s_mov_b32 s{S_TAB+q}, {q*16384}", [], [S_TAB+q]) for q in range(5)]
    for c in range(4):
        o.append(S(f"s_lshr_b32 s{S_SO}, s{S_WC}, 12", [S_WC], [S_SO]))
        o.append(S(f"s_add_u32 s{S_SO}, s{S_SO}, {c*256}", [S_SO], [S_SO]))
        o.append(S(f"s_and_b32 s{S_SO}, s{S_SO}, 0x300", [S_SO], [S_SO]))
        o.append(V(f"v_add_u32 v{V_XD4+c}, s{S_SO}, v{V_XD}", [V_XD, ('s', S_SO)], [V_XD4+c]))
    return o

def prologue2():
    o = []; a = o.append
    a(raw("s_waitcnt lgkmcnt(0)", 'wait'))
    a(S(f"s_lshl_b32 s{S_T0}, s{S_B}, 3", [S_B], [S_T0]))
    a(S(f"s_add_u32 s{S_T0}, s{S_T0}, s{S_HKV}", [S_T0, S_HKV], [S_T0]))
    a(S(f"s_lshl_b32 s{S_T0}, s{S_T0}, 2", [S_T0], [S_T0]))
    a(S(f"s_add_u32 s{S_T0}, s{S_T0}, s{S_W}", [S_T0, S_W], [S_T0]))
    a(S(f"s_lshl_b32 s{S_T0}, s{S_T0}, 16", [S_T0], [S_T0]))
    o += srd(S_K, 92, add_s=S_T0, size=65536)
    o += srd(S_V, 94, add_s=S_T0, size=65536)
    a(S(f"s_lshl_b32 s{S_T0}, s{S_HKV}, 19", [S_HKV], [S_T0]))
    o += srd(S_WO, S_WO, add_s=S_T0, size=524288)
    WB = int(opt.wsb) << 20
    o += srd(S_O, 100, add_imm=WB, size=8*5*128*1024)
    o += srd(S_WT, 100, add_imm=WB + WS_WO, size=8*4*20*8*1024)
    o += srd(S_D, S_C + 2, size=256)
    o += srd(S_OUT, S_C, size=655360)
    o += srd(S_C, 100, add_imm=WB + WS_CT, size=262144)
    a(S(f"s_bitcmp1_b32 s{S_HQ}, 0", [S_HQ], []))
    a(S(f"s_mov_b32 s{S_T0}, {hex(kv_pack(0))}", [], [S_T0]))
    a(S(f"s_cselect_b32 s{S_T0}, {hex(kv_pack(1))}, s{S_T0}", [S_T0], [S_T0]))
    a(S(f"s_mov_b32 s{S_T1}, {hex(kv_pack(2))}", [], [S_T1]))
    a(S(f"s_cselect_b32 s{S_T1}, {hex(kv_pack(3))}, s{S_T1}", [S_T1], [S_T1]))
    a(S(f"s_bitcmp1_b32 s{S_HQ}, 1", [S_HQ], []))
    a(S(f"s_cselect_b32 s{S_KVO}, s{S_T1}, s{S_T0}", [S_T0, S_T1], [S_KVO]))
    for p in range(3):
        a(S(f"s_cmp_le_u32 s{S_J}, {p}", [S_J], []))
        a(S(f"s_cselect_b32 s{S_T1}, {p + 1}, {p}", [], [S_T1]))
        a(S(f"s_lshl_b32 s{S_H+p}, s{S_T1}, 17", [S_T1], [S_H+p]))
    a(S(f"s_mul_i32 s{S_W5K}, s{S_W}, 5120", [S_W], [S_W5K]))
    a(S(f"s_lshl_b32 s{S_T0}, s{S_B}, 14", [S_B], [S_T0]))
    a(S(f"s_lshl_b32 s{S_T1}, s{S_W}, 7", [S_W], [S_T1]))
    a(S(f"s_add_u32 s{S_T0}, s{S_T0}, s{S_T1}", [S_T0, S_T1], [S_T0]))
    a(S(f"s_lshl_b32 s{S_F1}, s{S_HQ}, 9", [S_HQ], [S_F1]))
    a(S(f"s_add_u32 s{S_F1}, s{S_F1}, s{S_T0}", [S_F1, S_T0], [S_F1]))
    a(S(f"s_add_u32 s{S_F2}, s{S_F1}, 131072", [S_F1], [S_F2]))
    if int(opt.f2wg): a(S(f"s_andn2_b32 s{S_F2}, s{S_F2}, 0x180", [S_F2], [S_F2]))
    a(S(f"s_lshl_b32 s{S_T1}, s{S_HKV}, 11", [S_HKV], [S_T1]))
    a(S(f"s_lshl_b32 s{S_G1}, s{S_J}, 3", [S_J], [S_G1]))
    a(S(f"s_add_u32 s{S_G1}, s{S_G1}, s{S_T1}", [S_G1, S_T1], [S_G1]))
    a(S(f"s_add_u32 s{S_G1}, s{S_G1}, s{S_T0}", [S_G1, S_T0], [S_G1]))
    a(S(f"s_lshl_b32 s{S_T1}, s{S_J}, 9", [S_J], [S_T1]))
    a(S(f"s_lshl_b32 s{S_G2}, s{S_HKV}, 3", [S_HKV], [S_G2]))
    a(S(f"s_add_u32 s{S_G2}, s{S_G2}, s{S_T1}", [S_G2, S_T1], [S_G2]))
    a(S(f"s_add_u32 s{S_G2}, s{S_G2}, s{S_T0}", [S_G2, S_T0], [S_G2]))
    a(S(f"s_add_u32 s{S_G2}, s{S_G2}, 131072", [S_G2], [S_G2]))
    return o

def prologue3():
    o = []; a = o.append
    a(S(f"s_bfe_u32 s{S_T1}, s{S_WC}, 0x10013", [S_WC], [S_T1]))
    a(S(f"s_lshl_b32 s{S_T1}, s{S_T1}, 3", [S_T1], [S_T1]))
    a(V(f"v_xor_b32 v{V_T1}, s{S_T1}, v{V_N}", [V_N, ('s', S_T1)], [V_T1]))
    for s in range(4):
        a(V(f"v_add_u32 v{V_T0}, {4*s}, v{V_G}", [V_G], [V_T0]))
        a(V(f"v_xor_b32 v{V_T0}, v{V_T0}, v{V_T1}", [V_T0, V_T1], [V_T0]))
        a(V(f"v_lshlrev_b32 v{V_T0}, 4, v{V_T0}", [V_T0], [V_T0]))
        a(V(f"v_lshl_add_u32 v{V_XA+s}, v{V_N}, 8, v{V_T0}", [V_N, V_T0], [V_XA+s]))
        a(V(f"v_add_u32 v{V_XB+s}, {120*KB}, v{V_XA+s}", [V_XA+s], [V_XB+s]))
    a(V(f"v_lshrrev_b32 v{V_T2}, 2, v{V_N}", [V_N], [V_T2]))
    a(V(f"v_bfe_u32 v{V_T3}, v{V_N}, 1, 1", [V_N], [V_T3]))
    a(V(f"v_and_b32 v{V_T4}, 1, v{V_N}", [V_N], [V_T4]))
    a(V(f"v_lshlrev_b32 v{V_T4}, 3, v{V_T4}", [V_T4], [V_T4]))
    a(V(f"v_and_b32 v{V_T5}, 1, v{V_G}", [V_G], [V_T5]))
    a(V(f"v_lshl_add_u32 v{V_T5}, v{V_T5}, 2, v{V_T2}", [V_T5, V_T2], [V_T5]))
    a(V(f"v_lshlrev_b32 v{V_T5}, 1, v{V_T5}", [V_T5], [V_T5]))
    a(S(f"s_lshl_b32 s{S_T1}, s{S_W}, 2", [S_W], [S_T1]))
    a(V(f"v_lshl_add_u32 v{V_T1}, v{V_G}, 3, v{V_T2}", [V_G, V_T2], [V_T1]))
    a(V(f"v_lshl_add_u32 v{V_T1}, v{V_T1}, 8, v{V_T4}", [V_T1, V_T4], [V_T1]))
    for e in range(2):
        a(V(f"v_add3_u32 v{V_T0}, s{S_T1}, v{V_T3}, {2*e}", [V_T3, ('s', S_T1)], [V_T0]))
        a(V(f"v_xor_b32 v{V_T0}, v{V_T0}, v{V_T5}", [V_T0, V_T5], [V_T0]))
        a(V(f"v_lshl_add_u32 v{V_T0}, v{V_T0}, 4, v{V_T1}", [V_T0, V_T1], [V_T0]))
        a(V(f"v_add_u32 v{V_WA+e}, {40*KB}, v{V_T0}", [V_T0], [V_WA+e]))
        a(V(f"v_add_u32 v{V_WB+e}, {96*KB}, v{V_T0}", [V_T0], [V_WB+e]))
    a(V(f"v_lshl_add_u32 v{V_T1}, v{V_G}, 2, v{V_T2}", [V_G, V_T2], [V_T1]))
    n_early = len(o)
    for s in range(4):
        a(V(f"v_add_u32 v{V_KA+s}, s{S_W8K}, v{V_XA+s}", [V_XA+s, ('s', S_W8K)], [V_KA+s]))
    a(V(f"v_lshl_add_u32 v{V_T1}, v{V_T1}, 8, v{V_T4}", [V_T1, V_T4], [V_T1]))
    a(S(f"s_add_u32 s{S_T2}, s{S_W8K}, {64*KB}", [S_W8K], [S_T2]))
    a(V(f"v_add_u32 v{V_T1}, s{S_T2}, v{V_T1}", [V_T1, ('s', S_T2)], [V_T1]))
    a(V(f"v_add_u32 v{V_T3}, s{S_T1}, v{V_T3}", [V_T3, ('s', S_T1)], [V_T3]))
    for lam in range(8):
        a(V(f"v_add_u32 v{V_T0}, {2*lam}, v{V_T3}", [V_T3], [V_T0]))
        a(V(f"v_and_b32 v{V_T0}, 15, v{V_T0}", [V_T0], [V_T0]))
        a(V(f"v_xor_b32 v{V_T0}, v{V_T0}, v{V_T5}", [V_T0, V_T5], [V_T0]))
        a(V(f"v_lshl_add_u32 v{V_VA+lam}, v{V_T0}, 4, v{V_T1}", [V_T0, V_T1], [V_VA+lam]))
    a(V(f"v_xor_b32 v{V_T0}, v{V_N}, v{V_G}", [V_N, V_G], [V_T0]))
    a(V(f"v_lshlrev_b32 v{V_T0}, 4, v{V_T0}", [V_T0], [V_T0]))
    a(V(f"v_lshl_add_u32 v{V_KD}, v{V_G}, 8, v{V_T0}", [V_G, V_T0], [V_KD]))
    for j in range(1, 4):
        a(V(f"v_xor_b32 v{V_KD+j}, {64*j}, v{V_KD}", [V_KD], [V_KD+j]))
    a(V(f"v_lshlrev_b32 v{V_T0}, 1, v{V_G}", [V_G], [V_T0]))
    a(V(f"v_xor_b32 v{V_T0}, v{V_N}, v{V_T0}", [V_N, V_T0], [V_T0]))
    a(V(f"v_lshlrev_b32 v{V_T0}, 4, v{V_T0}", [V_T0], [V_T0]))
    a(V(f"v_lshl_add_u32 v{V_VD}, v{V_G}, 8, v{V_T0}", [V_G, V_T0], [V_VD]))
    a(V(f"v_xor_b32 v{V_VD+1}, 128, v{V_VD}", [V_VD], [V_VD+1]))
    a(V(f"v_lshrrev_b32 v{V_T0}, 1, v{V_G}", [V_G], [V_T0]))
    a(V(f"v_add_u32 v{V_T0}, s{S_T1}, v{V_T0}", [V_T0, ('s', S_T1)], [V_T0]))
    a(V(f"v_xor_b32 v{V_T0}, v{V_T0}, v{V_N}", [V_T0, V_N], [V_T0]))
    a(V(f"v_lshlrev_b32 v{V_T0}, 4, v{V_T0}", [V_T0], [V_T0]))
    a(V(f"v_lshl_add_u32 v{V_T0}, v{V_N}, 8, v{V_T0}", [V_N, V_T0], [V_T0]))
    a(V(f"v_and_b32 v{V_T1}, 1, v{V_G}", [V_G], [V_T1]))
    a(V(f"v_lshl_add_u32 v{V_T0}, v{V_T1}, 3, v{V_T0}", [V_T0, V_T1], [V_T0]))
    a(V(f"v_add_u32 v{V_QW}, {QBUF}, v{V_T0}", [V_T0], [V_QW]))
    a(V(f"v_xor_b32 v{V_QW+1}, 32, v{V_QW}", [V_QW], [V_QW+1]))
    a(V(f"v_lshl_add_u32 v{V_CW}, v{V_LANE}, 4, s{S_W8K}", [V_LANE, ('s', S_W8K)], [V_CW]))
    a(V(f"v_add_u32 v{V_CW+1}, {64*KB}, v{V_CW}", [V_CW], [V_CW+1]))
    a(S(f"s_add_u32 s{S_T0}, s{S_W8K}, {102*KB}", [S_W8K], [S_T0]))
    a(V(f"v_lshl_add_u32 v{V_LW}, v{V_LANE}, 5, s{S_T0}", [V_LANE, ('s', S_T0)], [V_LW]))
    a(S(f"s_mul_i32 s{S_T0}, s{S_B}, 640", [S_B], [S_T0]))
    a(S(f"s_lshl_b32 s{S_T2}, s{S_HQ}, 2", [S_HQ], [S_T2]))
    a(S(f"s_add_u32 s{S_T0}, s{S_T0}, s{S_T2}", [S_T0, S_T2], [S_T0]))
    a(S(f"s_add_u32 s{S_T0}, s{S_T0}, s{S_W}", [S_T0, S_W], [S_T0]))
    a(S(f"s_lshl_b32 s{S_T0}, s{S_T0}, 10", [S_T0], [S_T0]))
    a(V(f"v_lshl_add_u32 v{V_OST}, v{V_LANE}, 4, s{S_T0}", [V_LANE, ('s', S_T0)], [V_OST]))
    a(V(f"v_cmp_eq_u32 vcc, 0, v{V_N}", [V_N], [VCC]))
    a(V(f"v_mov_b32 v{V_T0}, 0x3f803f80", [], [V_T0]))
    for i in range(4):
        a(V(f"v_cndmask_b32 v{V_ONES+i}, 0, v{V_T0}, vcc", [V_T0, VCC], [V_ONES+i]))
    for i in range(20):
        a(V(f"v_mov_b32 v{V_NEGM+i}, 0", [], [V_NEGM+i]))
    return o[:n_early], o[n_early:]

V_QACC = V_VF
def AF(kap):
    return [(100, 120), (128, 148), (208, 156)][kap % 3]
def a_reads(kap):
    u, ks = kap >> 1, kap & 1
    c, s = u >> 1, kap & 3
    xf, wf = AF(kap)
    wb = WU(WSLOT[u], ks)
    xr = []
    for q in range(5):
        xb = XU(c, q)
        reg, base = (V_XA, 0) if xb < 64 * KB else (V_XB, 120 * KB)
        xr.append(dsrd('ds_read_b128', ('v', xf + q * 4), 4, reg + s, xb - base))
    wr = []
    for e in range(2):
        for h in range(2):
            reg, base = (V_WA, 40 * KB) if wb < 96 * KB else (V_WB, 96 * KB)
            wr.append(dsrd('ds_read_b64_tr_b16', ('v', wf + e * 4 + h * 2), 2, reg + e, wb - base + h * 1024))
    return wr[:2] + xr[:1] + wr[2:] + xr[1:]
def a_mfmas(kap):
    o = []
    xf, wf = AF(kap)
    for q in range(5):
        for e in range(2):
            d = ('v', V_QACC + (e * 5 + q) * 4)
            o.append(mfma(d, ('v', wf + e * 4), ('v', xf + q * 4), 0 if kap == 0 else d))
    return o
def lane0(sg, body, lab):
    sg.text(f"s_cmp_lg_u32 s{S_W}, 0"); sg.text(f"s_cbranch_scc1 {lab}")
    sg.text(f"s_mov_b64 s[{S_EX}:{S_EX+1}], exec"); sg.text("s_mov_b64 exec, 1")
    for x in body: sg.text(x)
    sg.text(f"s_mov_b64 exec, s[{S_EX}:{S_EX+1}]")
    sg.text(f"{lab}:")
def phase_a(sg, Q):
    stamp(sg, 1)
    sg.add(barrier(needvm=[('x', 0), ('w', 0)])); Q.mark('B0')
    stamp(sg, 2)
    sg.addall(a_reads(0)); sg.addall(a_reads(1))
    sg.add(S(f"s_mov_b32 s{S_T1}, {f2h(QSCALE)}", [], [S_T1]))
    sg.add(S(f"s_mov_b32 s{S_T2}, {f2h(QSCALE)}", [], [S_T2]))
    for kap in range(14 if int(opt.aq) else 16):
        mf = a_mfmas(kap)
        gaps = [[] for _ in mf]
        nx = kap + 2
        if nx < 16:
            if nx % 2 == 0:
                u = nx >> 1
                need = [('x', u >> 1), ('w', u)]
                while any(it.ins.vmtag in need for it in Q.q):
                    n_ = len(Q.q); weave(sg, Q, [], 1, 0); assert len(Q.q) < n_, (u, Q.q[0].after)
                while True:
                    younger = 0
                    for tg, _w in reversed(sg.vm):
                        if tg in need: break
                        younger += 1
                    n_ = len(Q.q)
                    if younger >= int(opt.la): break
                    weave(sg, Q, [], 1, 0)
                    if len(Q.q) == n_: break
                dr = str(u) in str(opt.drain)
                sg.add(barrier(needvm=need, lg0=dr)); Q.mark(f'B{u}')
                if dr: Q.mark(f'B{u+1}')
                if u in (1, 3, 5, 7): stamp(sg, 5 + u // 2, 'A')
            for i, r in enumerate(a_reads(nx)): gaps[i].append(r)
        mf[0].r |= set(R('v', AF(kap)[0], 20) + R('v', AF(kap)[1], 8))
        pos = [1, 5, 9] if kap % 2 == 0 else [3, 7]
        if int(opt.perstep) == 6: pos = [1, 4, 7] if kap % 2 == 0 else [1, 4, 8]
        if int(opt.perstep) == 7: pos = [1, 4, 6, 9] if kap % 2 == 0 else [2, 5, 8]
        if int(opt.perstep) == 8: pos = [1, 4, 6, 9]
        nkv = sum(1 for it in Q.q if it.ins.vmtag[0] in 'kv')
        room = int(opt.alim) - (128 - nkv) + (len(Q.q) - nkv)
        place(gaps, Q, pos[:max(0, room)])
        if int(opt.aonly): sg.addall([x for x in interleave(mf, gaps) if x.k not in ('mfma', 'dsrd')])
        else: sg.addall(interleave(mf, gaps))
    def qfin(q, e, packed):
        b = V_QACC + (e * 5 + q) * 4
        if packed: f_ = [V(f"v_pk_mul_f32 v[{b+r}:{b+r+1}], v[{b+r}:{b+r+1}], s[{S_T1}:{S_T1+1}]", [b+r, b+r+1], [b+r, b+r+1]) for r in (0, 2)]
        else: f_ = [V(f"v_mul_f32 v{b+r}, s{S_T1}, v{b+r}", [b+r], [b+r]) for r in range(4)]
        f_.append(V(f"v_cvt_pk_bf16_f32 v{b}, v{b}, v{b+1}", [b, b+1], [b]))
        f_.append(V(f"v_cvt_pk_bf16_f32 v{b+1}, v{b+2}, v{b+3}", [b+2, b+3], [b+1]))
        f_.append(dswr('ds_write_b64', V_QW + e, ('v', b), 2, q * 4096, lgtag='qw'))
        return f_
    todo = [(q, e) for q in range(5) for e in range(2)]
    if int(opt.aq):
        m14, m15 = a_mfmas(14), a_mfmas(15)
        m14[0].r |= set(R('v', AF(14)[0], 20) + R('v', AF(14)[1], 8))
        mf = flat([[m14[k], m15[k]] for k in range(10)])
        gaps = [[] for _ in mf]
        gi = 5
        while todo and gi + 3 <= 19:
            f_ = qfin(*todo.pop(0), False)
            gaps[gi] += f_[0:2]; gaps[gi + 1] += f_[2:4]; gaps[gi + 2] += f_[4:6]; gaps[gi + 3] = [f_[6]] + gaps[gi + 3]
            gi += 3
        nkv = sum(1 for it in Q.q if it.ins.vmtag[0] in 'kv')
        place(gaps, Q, [1, 4][:max(0, int(opt.alim) - (128 - nkv))])
        sg.addall(interleave(mf, gaps))
    stamp(sg, 9, 'A')
    for q, e in todo: sg.addall(qfin(q, e, True))
    while any(it.ins.vmtag in (('k', 0, 0), ('k', 0, 1)) for it in Q.q): weave(sg, Q, [], 1, 0)
    b = barrier(lg0=False); b.needlg = ('qw',)
    sg.addall(k_reads(0)); Q.mark(('kr', 0, 0)); Q.mark(('kr', 0, 1))
    sg.add(b); Q.mark('BQ'); Q.mark('B8')
    qr = [dsrd('ds_read_b128', AQ(q, s), 4, V_XB + s, QBUF - 120 * KB + q * 4096) for q in range(5) for s in range(4)]
    return qr

def TQ(tau):
    return divmod(tau, 5) if tau < 30 else (6 + ((tau - 30) & 1), (tau - 30) >> 1)
def qk(tau):
    i, q = TQ(tau)
    o = []
    for s, t in ([(s, t) for t in range(2) for s in range(4)] if int(opt.chain) else [(s, t) for s in range(4) for t in range(2)]):
        if True:
            d = ('v', V_S + (tau & 1) * 8 + t * 4)
            o.append(mfma(d, KF(i, t * 4 + s), AQ(q, s), ('v', V_NEGM + q * 4) if s == 0 else d))
            if s == 0 and int(opt.coal) and tau > 4: o[-1].r |= set(R(*KF(i, t * 4), 16))
    return o
def pv(tau):
    i, q = TQ(tau)
    p = ('v', V_P + (tau & 1) * 4)
    o = [mfma(AO(lam, q), ('v', V_VF + (i & 1) * 32 + lam * 4), p, AO(lam, q) if i else 0) for lam in range(8)]
    if int(opt.coal) and 0 < i < 7: o[0].r |= set(R('v', V_VF + (i & 1) * 32, 24)); o[5].r |= set(R('v', V_VF + (i & 1) * 32 + 24, 8))
    o.insert(0, mfma(LA(q), ('v', V_ONES), p, LA(q) if i else 0))
    return o
def sm(tau):
    b = V_S + (tau & 1) * 8
    p = V_P + (tau & 1) * 4
    e = [T(f"v_exp_f32 v{b+i}, v{b+i}", [b+i], [b+i]) for i in range(8)]
    c = [V(f"v_cvt_pk_bf16_f32 v{p+i}, v{b+2*i}, v{b+2*i+1}", [b+2*i, b+2*i+1], [p+i]) for i in range(4)]
    return e, c
def comb_writes(q):
    o = []
    for jd in range(1, 4):
        for e in range(2):
            u = q * 6 + (jd - 1) * 2 + e
            row = u >> 3
            o.append(dswr('ds_write_b128', V_CW + (row >> 1), AO(2 * jd + e, q), 4, (row & 1) * 32 * KB + (u & 7) * KB, lgtag=('cw', q)))
    o.insert(0, dswr('ds_write_b32', V_LW, LA(q), 1, [0, 4, 16, 20, 24][q], lgtag=('cw', q)))
    return o

def wo_dma(pos, after=None):
    o = []
    for ks in range(4):
        for half in range(2):
            base = (128 * KB if pos < 0 else pos * 32 * KB) + ks * 8 * KB + half * 4 * KB
            if pos < 0:
                pre = [S(f"s_lshl_b32 s{S_SK}, s{S_J}, 17", [S_J], [S_SK])] if ks + half == 0 else []
                h = S_SK
            else: pre, h = [], S_H + pos
            pre += [S(f"s_add_u32 s{S_SO}, s{h}, {ks*32768 + half*16384}", [h], [S_SO]), S(f"s_add_u32 m0, s{S_W1K}, {base}", [S_W1K], [M0])]
            o.append(Item(pre, dma(V_WOD, S_WO, S_SO, 0, ('wo', pos)), after))
    return o
def osib_dma(pos):
    o = []
    for q in range(5):
        pre = [S(f"s_lshr_b32 s{S_SK}, s{S_H+pos}, 5", [S_H+pos], [S_SK])] if q == 0 else []
        pre += [S(f"s_add_u32 s{S_SO}, s{S_SK}, {q*128*KB}", [S_SK], [S_SO]), S(f"s_add_u32 m0, s{S_W5K}, {(140 - 20*pos + q)*KB}", [S_W5K], [M0])]
        o.append(Item(pre, dma(V_OD, S_O, S_SO, 0, ('os', pos), flags=' sc1')))
    return o
def tail_calc():
    o = []; a = o.append
    T0, T1, T2 = 252, 253, 254
    a(V(f"v_lshlrev_b32 v{T0}, 4, v{V_LANE}", [V_LANE], [T0]))
    for jd in range(1, 4):
        a(S(f"s_sub_u32 s{S_T0}, s{S_W}, {jd}", [S_W], [S_T0]))
        a(S(f"s_and_b32 s{S_T0}, s{S_T0}, 3", [S_T0], [S_T0]))
        a(S(f"s_lshl_b32 s{S_T0}, s{S_T0}, 13", [S_T0], [S_T0]))
        a(V(f"v_add_u32 v{V_CR+2*(jd-1)}, s{S_T0}, v{T0}", [T0, ('s', S_T0)], [V_CR+2*(jd-1)]))
        a(V(f"v_add_u32 v{V_CR+2*(jd-1)+1}, {64*KB}, v{V_CR+2*(jd-1)}", [V_CR+2*(jd-1)], [V_CR+2*(jd-1)+1]))
    a(V(f"v_add_u32 v{V_OL}, {96*KB}, v{T0}", [T0], [V_OL]))
    a(V(f"v_add_u32 v{V_OW}, s{S_W5K}, v{V_OL}", [V_OL, ('s', S_W5K)], [V_OW]))
    a(S(f"s_mov_b32 s{S_T0}, {102*KB}", [], [S_T0]))
    a(V(f"v_lshl_add_u32 v{V_LR}, v{V_N}, 5, s{S_T0}", [V_N, ('s', S_T0)], [V_LR]))
    a(S(f"s_add_u32 s{S_T0}, s{S_W8K}, {64*KB}", [S_W8K], [S_T0]))
    for e in range(2):
        a(V(f"v_subrev_u32 v{V_WT+e}, s{S_T0}, v{V_VA+e}", [V_VA+e, ('s', S_T0)], [V_WT+e]))
        a(V(f"v_add_u32 v{V_WT+2+e}, {64*KB}, v{V_WT+e}", [V_WT+e], [V_WT+2+e]))
        a(V(f"v_add_u32 v{V_WT+4+e}, {128*KB}, v{V_WT+e}", [V_WT+e], [V_WT+4+e]))
    for k in range(5): a(S(f"s_mov_b32 s{S_TAB+k}, {k*8192}", [], [S_TAB+k]))
    return o
def handoff_calc():
    o = []; a = o.append
    T0, T1, T2, T3 = 252, 253, 254, 9
    a(S(f"s_lshl_b32 s{S_T0}, s{S_J}, 12", [S_J], [S_T0]))
    a(V(f"v_subrev_u32 v{V_OD}, s{S_T0}, v{V_OST}", [V_OST, ('s', S_T0)], [V_OD]))
    a(S(f"s_lshl_b32 s{S_T0}, s{S_B}, 2", [S_B], [S_T0]))
    a(S(f"s_add_u32 s{S_T0}, s{S_T0}, s{S_J}", [S_T0, S_J], [S_T0]))
    a(S(f"s_mul_i32 s{S_T0}, s{S_T0}, {20*8*KB}", [S_T0], [S_T0]))
    a(S(f"s_mul_i32 s{S_T1}, s{S_W}, {5*8*KB}", [S_W], [S_T1]))
    a(S(f"s_lshl_b32 s{S_T2}, s{S_HKV}, 10", [S_HKV], [S_T2]))
    a(S(f"s_add_u32 s{S_T2}, s{S_T2}, s{S_T1}", [S_T2, S_T1], [S_T2]))
    a(S(f"s_add_u32 s{S_T2}, s{S_T2}, s{S_T0}", [S_T2, S_T0], [S_T2]))
    a(V(f"v_lshl_add_u32 v{V_PS}, v{V_LANE}, 4, s{S_T2}", [V_LANE, ('s', S_T2)], [V_PS]))
    a(S(f"s_lshl_b32 s{S_T1}, s{S_HKV}, 2", [S_HKV], [S_T1]))
    a(S(f"s_add_u32 s{S_T1}, s{S_T1}, s{S_W}", [S_T1, S_W], [S_T1]))
    a(S(f"s_mul_i32 s{S_T1}, s{S_T1}, 40", [S_T1], [S_T1]))
    a(V(f"v_add_u32 v{T0}, s{S_T1}, v{V_LANE}", [V_LANE, ('s', S_T1)], [T0]))
    a(V(f"v_bfe_u32 v{T1}, v{T0}, 5, 1", [T0], [T1]))
    a(V(f"v_and_b32 v{T2}, 7, v{T0}", [T0], [T2]))
    a(V(f"v_lshl_add_u32 v{T1}, v{T1}, 3, v{T2}", [T1, T2], [T1]))
    a(V(f"v_bfe_u32 v{T2}, v{T0}, 3, 2", [T0], [T2]))
    a(V(f"v_lshrrev_b32 v{T0}, 6, v{T0}", [T0], [T0]))
    a(V(f"v_lshl_add_u32 v{T3}, v{T2}, 4, v{T1}", [T1, T2], [T3]))
    a(V(f"v_lshl_add_u32 v{V_PLD}, v{T3}, 4, s{S_T0}", [T3, ('s', S_T0)], [V_PLD]))
    a(V(f"v_lshl_add_u32 v{V_PLD}, v{T0}, 13, v{V_PLD}", [T0, V_PLD], [V_PLD]))
    a(V(f"v_mul_u32_u24 v{T3}, 52, v{T0}", [T0], [T3]))
    a(V(f"v_lshrrev_b32 v{T3}, 8, v{T3}", [T3], [T3]))
    a(V(f"v_lshlrev_b32 v{T2}, 3, v{T2}", [T2], [T2]))
    a(V(f"v_lshl_add_u32 v{T2}, v{T3}, 6, v{T2}", [T3, T2], [T2]))
    a(V(f"v_lshl_add_u32 v{T2}, v{T1}, 10, v{T2}", [T1, T2], [T2]))
    a(V(f"v_mul_u32_u24 v{T3}, 5, v{T3}", [T3], [T3]))
    a(V(f"v_sub_u32 v{T0}, v{T0}, v{T3}", [T0, T3], [T0]))
    a(V(f"v_lshl_add_u32 v{T2}, v{T0}, 14, v{T2}", [T0, T2], [T2]))
    a(S(f"s_mul_i32 s{S_T0}, s{S_B}, 81920", [S_B], [S_T0]))
    a(S(f"s_lshl_b32 s{S_T2}, s{S_J}, 8", [S_J], [S_T2]))
    a(S(f"s_add_u32 s{S_T0}, s{S_T0}, s{S_T2}", [S_T0, S_T2], [S_T0]))
    a(V(f"v_add_u32 v{V_OUT}, s{S_T0}, v{T2}", [T2, ('s', S_T0)], [V_OUT]))
    a(V(f"v_cmp_gt_u32 vcc, 40, v{V_LANE}", [V_LANE], [VCC]))
    a(V(f"v_mov_b32 v{T0}, 0x7ff00000", [], [T0]))
    a(V(f"v_cndmask_b32 v{V_PLD}, v{T0}, v{V_PLD}, vcc", [T0, V_PLD, VCC], [V_PLD]))
    a(V(f"v_cndmask_b32 v{V_OUT}, v{T0}, v{V_OUT}, vcc", [T0, V_OUT, VCC], [V_OUT]))
    for pv_, n_, sh, sg_ in ((V_P1, 4, 9, S_G1), (V_P2, 8, 11, S_G2)):
        a(V(f"v_lshl_add_u32 v{pv_}, v{V_LANE}, {sh}, s{sg_}", [V_LANE, ('s', sg_)], [pv_]))
        a(V(f"v_cmp_gt_u32 vcc, {n_}, v{V_LANE}", [V_LANE], [VCC]))
        a(V(f"v_cndmask_b32 v{pv_}, v{T0}, v{pv_}, vcc", [T0, pv_, VCC], [pv_]))
    return o
def wod_calc():
    o = []; a = o.append
    T0, T1 = 252, 253
    a(S(f"s_lshl_b32 s{S_T0}, s{S_B}, 2", [S_B], [S_T0]))
    a(S(f"s_add_u32 s{S_T0}, s{S_T0}, s{S_W}", [S_T0, S_W], [S_T0]))
    a(S(f"s_lshl_b32 s{S_T0}, s{S_T0}, 14", [S_T0], [S_T0]))
    a(S(f"s_lshl_b32 s{S_T2}, s{S_J}, 8", [S_J], [S_T2]))
    a(S(f"s_add_u32 s{S_T0}, s{S_T0}, s{S_T2}", [S_T0, S_T2], [S_T0]))
    a(V(f"v_bfe_u32 v{T0}, v{V_LANE}, 1, 4", [V_LANE], [T0]))
    a(V(f"v_and_b32 v{T1}, 1, v{V_LANE}", [V_LANE], [T1]))
    a(V(f"v_lshlrev_b32 v{T1}, 7, v{T1}", [T1], [T1]))
    a(V(f"v_lshl_add_u32 v{T0}, v{T0}, 10, v{T1}", [T0, T1], [T0]))
    a(V(f"v_add_u32 v{V_TCH}, s{S_T0}, v{T0}", [T0, ('s', S_T0)], [V_TCH]))
    a(S(f"s_and_b32 s{S_T0}, s{S_W}, 1", [S_W], [S_T0]))
    a(S(f"s_lshl_b32 s{S_T0}, s{S_T0}, 3", [S_T0], [S_T0]))
    a(V(f"v_lshl_add_u32 v{T0}, v{V_G}, 1, s{S_T0}", [V_G, ('s', S_T0)], [T0]))
    a(V(f"v_xor_b32 v{T0}, v{V_N}, v{T0}", [V_N, T0], [T0]))
    a(S(f"s_lshl_b32 s{S_T0}, s{S_J}, 8", [S_J], [S_T0]))
    a(V(f"v_lshl_add_u32 v{T0}, v{T0}, 4, s{S_T0}", [T0, ('s', S_T0)], [T0]))
    a(V(f"v_lshl_add_u32 v{T1}, s{S_W}, 2, v{V_G}", [V_G, ('s', S_W)], [T1]))
    a(V(f"v_lshl_add_u32 v{V_WOD}, v{T1}, 10, v{T0}", [T0, T1], [V_WOD]))
    return o

def phase_b(sg, Q, qr):
    NT = 8
    calc = wod_calc() + tail_calc()
    sg.addall(qr[:4])
    qr = qr[4:]
    for tau in range(-1, 40):
        i, q = divmod(tau, 5) if tau >= 0 else (-1, 4)
        mf = []
        bst = [int(x) for x in opt.bst.split(',')]
        if tau in bst: stamp(sg, 5 + bst.index(tau), 'B')
        if tau + 1 < 40: mf += qk(tau + 1)
        if tau - 1 >= 0: mf += pv(tau - 1)
        ds, marks = [], []
        if tau == -1: ds = qr
        elif tau == 0: ds = v_reads(0); marks = [('vr', 0, 0), ('vr', 0, 1)]
        elif tau < 27:
            if q == 2: ds = k_reads(i + 1)[:4]; marks = [('kr', i + 1, 0)]
            if q == 3: ds = k_reads(i + 1)[4:] + v_reads(i + 1)[:2]; marks = [('kr', i + 1, 1)]
            if q == 4: ds = v_reads(i + 1)[2:8]; marks = [('vr', i + 1, 0)]
            if q == 0: ds = v_reads(i)[8:14]
            if q == 1 and i > 0: ds = v_reads(i)[14:]; Q.mark(('vr', i, 1))
        xp = None
        if tau >= 27:
            k6, k7, v6, v7 = k_reads(6), k_reads(7), v_reads(6), v_reads(7)
            vo = [v7[l + 8 * h] for l in range(8) for h in range(2)]
            G = [1, 3, 5, 7, 9, 11, 13, 15, 16]
            def cwp(q_, second):
                w_ = comb_writes(q_)
                if int(opt.w64) and q_ < 2:
                    h_ = []
                    for x in w_[1:]:
                        m_ = re.match(r"ds_write_b128 v(\d+), a\[(\d+):\d+\] offset:(\d+)", x.t)
                        for z in range(2): h_.append(dswr('ds_write_b64', int(m_.group(1)), ('a', int(m_.group(2)) + 2 * z), 2, int(m_.group(3)) + 8 * z, lgtag=x.lgtag))
                    return list(zip([1, 3, 5, 9, 13, 16], h_[6:])) if second else list(zip([7, 1, 3, 5, 9, 13, 16], [w_[0]] + h_[:6]))
                return list(zip([1, 9, 13], w_[4:])) if second else list(zip([7, 1, 9, 13], w_[:4]))
            xp = {27: list(zip([3, 5, 9, 11, 15, 16], k6[:4] + v6[:2])),
                  28: list(zip([1, 3, 5, 7, 9, 11, 13, 15, 16], k6[4:] + k7[:5])),
                  29: list(zip(G, k7[5:] + v6[2:8])),
                  30: list(zip([1, 3, 5, 7, 9, 11, 13, 15, 16, 16], v6[8:] + vo[:2])),
                  31: list(zip([1, 1, 3, 5, 5, 7, 9, 9, 11, 13, 13, 15, 16, 16], vo[2:])),
                  32: [], 33: cwp(0, 0), 34: cwp(0, 1), 35: cwp(1, 0), 36: cwp(1, 1), 37: cwp(2, 0),
                  38: cwp(2, 1) + list(zip([3, 5, 5, 7, 11, 15, 16, 16], lreads((0, 1)) + preads(0)[:4])),
                  39: list(zip([0, 2, 4, 6], comb_writes(3)[:4])) + list(zip([1, 1, 3, 3, 5, 5, 7, 7], preads(0)[4:] + preads(1)))}[tau]
            ds = [x for _, x in xp]; marks = []
            if tau == 38:
                b = barrier(needvm=[('wo', -1)], lg0=False); b.needlg = (('cw', 0), ('cw', 1)); sg.add(b)
        n = len(mf)
        gaps = [[] for _ in range(n)]
        e, c = sm(tau) if 0 <= tau < 40 else ([], [])
        if n == 17:
            epos = [0, 2, 4, 6, 8, 10, 12, 14]; cpos = [3, 7, 11, 15]
            dpos = [1, 3, 5, 7, 9, 11, 13, 15] if len(ds) > 4 else [1, 3, 5, 7]
            if ds and ds[0].k == 'dswr': dpos = [1, 1, 3, 7, 9, 13, 16]
            vpos = [1, 5, 9, 13] if (tau < int(opt.even_at) or q == 1) else [1, 7, 13]
            if int(opt.bsched) and not (ds and ds[0].k == 'dswr'):
                if q == 1: dpos, vpos = [1, 3], [5, 9, 13, 16]
                elif tau < int(opt.even_at) or tau >= int(opt.even_end): dpos, vpos = ([3, 7, 11, 15, 16, 16] if q != 3 else [1, 3, 7, 11, 15, 16]), ([1, 5, 9, 13] if q != 3 else [5, 9, 13, 16])
                else: dpos, vpos = [3, 5, 9, 11, 15, 16], [1, 7, 13]
        else:
            epos = list(range(8)); cpos = [min(n - 1, x) for x in (2, 4, 6, 8)]
            dpos = [(k * n) // max(1, len(ds)) for k in range(len(ds))]
            vpos = [1, 5]
        if xp is not None:
            dpos = [g_ for g_, _ in xp]; vpos = [7, 11, 15] if tau >= 32 else [13]
            if tau == 27: vpos = [1, 7, 13]
        for x, p_ in zip(ds, dpos): gaps[p_].append(x)
        if tau == int(opt.nl_at):
            sg.add(V("v_mov_b32 v9, 0", [], [9]))
            Q.q.insert(0, Item([], vload(('v', V_GC), 2, 9, S_D, None, 0, flags=' sc1', tag='non')))
        if tau == int(opt.nc_at):
            assert not any(it.ins.vmtag == 'non' for it in Q.q)
            sg.add(V(f"v_readfirstlane_b32 s{S_NON}, v{V_GC}", [V_GC], [('s', S_NON)]))
            sg.add(V(f"v_readfirstlane_b32 s{S_NON+1}, v{V_GC+1}", [V_GC+1], [('s', S_NON+1)]))
            sg.add(S(f"s_cmp_eq_u64 s[{S_NON}:{S_NON+1}], 0", [S_NON, S_NON+1], []))
            sg.text("s_cbranch_scc1 L_spin_n"); sg.text("L_back_n:")
        if tau == int(opt.bar_at): sg.add(barrier(lg0=False))
        for x in ds:
            while any(it.ins.vmtag in x.needvm for it in Q.q): weave(sg, Q, [], 1, 0)
        if tau == int(opt.tch_at): Q.push([Item([], vload(('v', V_TCH + 1), 1, V_TCH, S_WO, None, 0, flags=opt.tch_flags))])
        if tau == int(opt.tlb_at):
            Q.push([Item([], vload(('v', 72), 1, V_ZERO, S_C, S_F1, 0, flags=' sc1')), Item([], vload(('v', 73), 1, V_ZERO, S_C, S_F2, 0, flags=' sc1'))])
        if tau == int(opt.wo_at): assert not calc; Q.push(wo_dma(-1))
        place(gaps, Q, vpos)
        for x, p_ in zip(e, epos): gaps[p_].append(x)
        for x, p_ in zip(c, cpos): gaps[p_].append(x)
        if tau >= int(opt.calc_at) and n == 17:
            for gi in range(17):
                if calc and calc[0].k == 'salu' and not any(y.k == 'salu' for y in gaps[gi]): gaps[gi].insert(0, calc.pop(0))
                cost = sum(8 if y.k == 'trans' else 0 if y.k == 'salu' else 4 for y in gaps[gi])
                while calc and calc[0].k != 'salu' and cost <= 4: gaps[gi].append(calc.pop(0)); cost += 4
        sg.addall(interleave(mf, gaps))
        for m in marks: Q.mark(m)

def poll(sg, lab, vaddr):
    sg.text(f"s_mov_b32 s{S_SPIN}, {opt.spin}")
    sg.text(f"{lab}:")
    sg.text(f"buffer_load_dwordx2 v[250:251], v{vaddr}, s[{S_C}:{S_C+3}], 0 offen sc1")
    sg.text(f"s_sub_u32 s{S_SPIN}, s{S_SPIN}, 1")
    sg.text("s_waitcnt vmcnt(0)")
    sg.text(f"v_cmp_ne_u64 vcc, s[{S_NON}:{S_NON+1}], v[250:251]")
    sg.text(f"s_cmp_eq_u32 s{S_SPIN}, 0")
    sg.text(f"s_cbranch_scc1 {lab}_done")
    sg.text("s_nop 2")
    sg.text(f"s_cbranch_vccnz {lab}")
    sg.text(f"{lab}_done:")
    sg.vm = []
def raise_flag(sg, stage, tag):
    ins = vstore(('v', V_GC), 2, V_P1 if stage == 1 else V_P2, S_C, None, 0, flags=' sc1')
    ins.needvm = (tag,)
    sg.add(ins)
WOF = A_Q
RES = 100
def part(q, k):
    if q == 0: return 36 + 4 * k if k < 4 else 64 + 4 * (k - 4)
    return {1: 100, 2: 164, 3: 188, 4: 100}[q] + 4 * k
def preads(q):
    o = []
    for jd in range(1, 4):
        for e in range(2):
            k = (jd - 1) * 2 + e; u = q * 6 + k; row = u >> 3
            o.append(dsrd('ds_read_b128', ('v', part(q, k)), 4, V_CR + 2 * (jd - 1) + (row >> 1), (row & 1) * 32 * KB + (u & 7) * KB))
    return o
LSA, LSB = 124, 76
def lreads(qs):
    if qs == (0, 1): return [dsrd('ds_read_b64', ('v', LSA + src * 2), 2, V_LR, src * 8 * KB) for src in range(4)]
    return [dsrd('ds_read_b128', ('v', LSB + src * 4), 4, V_LR, src * 8 * KB + 16) for src in range(4)]
def lsum(qs):
    w = []
    def lr(src, q): return LSA + src * 2 + q if q < 2 else LSB + src * 4 + q - 2
    LS = lr(0, qs[0])
    for q in qs:
        d = V_T0 + q
        w.append(V(f"v_add_f32 v{d}, v{lr(0,q)}, v{lr(1,q)}", [lr(0,q), lr(1,q)], [d]))
        w.append(V(f"v_add_f32 v{lr(2,q)}, v{lr(2,q)}, v{lr(3,q)}", [lr(2,q), lr(3,q)], [lr(2,q)]))
        w.append(V(f"v_add_f32 v{d}, v{d}, v{lr(2,q)}", [d, lr(2,q)], [d]))
    a_, b_, c_ = V_T0 + qs[0], V_T0 + qs[1], V_T0 + qs[-1]
    w.append(V(f"v_min3_f32 v{LS}, v{a_}, v{b_}, v{c_}", [a_, b_, c_], [LS]))
    w.append(V(f"v_add_f32 v{LS+1}, v{a_}, v{b_}", [a_, b_], [LS+1]))
    w.append(V(f"v_add_f32 v{LS+1}, v{LS+1}, v{c_}", [LS+1, c_], [LS+1]))
    w.append(V(f"v_cmp_nle_f32 vcc, {f2h(2.0**int(opt.lo_exp))}, v{LS}", [LS], [VCC]))
    w.append(S(f"s_mov_b64 s[{S_EX}:{S_EX+1}], vcc", [VCC], [S_EX, S_EX+1]))
    w.append(V(f"v_cmp_nge_f32 vcc, {f2h(2.0**int(opt.hi_exp))}, v{LS+1}", [LS+1], [VCC]))
    w.append(S(f"s_or_b64 vcc, vcc, s[{S_EX}:{S_EX+1}]", [VCC, S_EX, S_EX+1], [VCC]))
    w.append(S(f"s_and_b64 vcc, vcc, s[{S_GM}:{S_GM+1}]", [VCC], [VCC]))
    w.append(raw("s_cbranch_vccnz L_redo"))
    for q in qs: w.append(T(f"v_rcp_f32 v{V_T0+q}, v{V_T0+q}", [V_T0+q], [V_T0+q]))
    return w
def finish(q):
    w = []
    for e in range(2):
        o_ = V_OWN[q] + e * 4
        for jd in range(1, 4):
            p_ = part(q, (jd - 1) * 2 + e)
            for r in (0, 2):
                w.append(V(f"v_pk_add_f32 v[{o_+r}:{o_+r+1}], v[{o_+r}:{o_+r+1}], v[{p_+r}:{p_+r+1}]", [o_+r, o_+r+1, p_+r, p_+r+1], [o_+r, o_+r+1]))
    o_ = V_OWN[q]
    ri = V_T0 + (q & ~1); sel = "op_sel:[0,1] op_sel_hi:[1,1]" if q & 1 else "op_sel:[0,0] op_sel_hi:[1,0]"
    for r in range(0, 8, 2):
        w.append(V(f"v_pk_mul_f32 v[{o_+r}:{o_+r+1}], v[{o_+r}:{o_+r+1}], v[{ri}:{ri+1}] {sel}", [o_+r, o_+r+1, V_T0+q], [o_+r, o_+r+1]))
    for r in range(4):
        w.append(V(f"v_cvt_pk_bf16_f32 v{o_+r}, v{o_+2*r}, v{o_+2*r+1}", [o_+2*r, o_+2*r+1], [o_+r]))
    w.append(S(f"s_mov_b32 s{S_SV}, {q*128*KB}", [], [S_SV]))
    w.append(vstore(('v', o_), 4, V_OST, S_O, S_SV, 0, flags=opt.o_flags, tag='ost'))
    return w
def wor():
    return [dsrd('ds_read_b64_tr_b16', ('a', WOF + (ks * 2 + e) * 4 + h * 2), 2, V_WT + 4 + e, ks * 8 * KB + h * 4096) for ks in range(4) for e in range(2) for h in range(2)]
def combine(sg, Q):
    assert not Q.q
    mf = pv(39); gaps = [[] for _ in mf]
    wr = comb_writes(3)[4:]; ls = lsum((0, 1))
    for k, x in enumerate(wr): gaps[3 * k].append(x)
    k = 0
    for gi in range(9):
        n_ = 2 - len(gaps[gi])
        while ls and (n_ > 0 or ls[0].k == 'salu') and gi < 9:
            x = ls.pop(0); gaps[gi].append(x)
            n_ -= 0 if x.k == 'salu' else 2 if x.k == 'trans' else 1
    sg.addall(interleave(mf, gaps))
    stamp(sg, 4)
    w4 = comb_writes(4)
    w = ls + finish(0) + finish(1)
    for k, x in enumerate(w4): w.insert(min(len(w), 6 + k * 6), x)
    sg.addall(w)
    sg.add(barrier())
    stamp(sg, 5)
    Q.push(wo_dma(0))
    rd = lreads((2, 3, 4)) + preads(2) + preads(3)
    weave(sg, Q, rd, int(opt.cw), 2)
    sg.addall(rd)
    w = lsum((2, 3, 4)) + preads(4) + finish(2) + finish(3) + finish(4)
    if not int(opt.worlate):
        for k, x in enumerate(wor()): w.insert(30 + 3 * k, x)
    sg.addall(w)
    stamp(sg, 6)

def phase_c(sg, Q):
    a = sg.add
    ACC = 164
    a(barrier())
    stamp(sg, 5, 'D')
    for q in range(5): a(dswr('ds_write_b128', V_OW, ('v', V_OWN[q]), 4, q * KB))
    Q.push(wo_dma(1) + wo_dma(2))
    wr_ = wor() if int(opt.worlate) else []
    weave(sg, Q, wr_, int(opt.shadow), 3)
    sg.addall(wr_)
    stamp(sg, 6, 'D')
    a(barrier())
    def CF(k): return [(100, 120), (64, 84), (204, 36)][k % 3]
    def c_reads(k):
        pos, ks = divmod(k, 4); pos -= 1
        xf, wf = CF(k)
        ob = 0 if pos < 0 else (44 - 20 * pos) * KB
        xr = [dsrd('ds_read_b128', ('v', xf + q * 4), 4, V_OL, ob + (ks * 5 + q) * KB) for q in range(5)]
        if pos < 0: return xr
        wb = (pos * 4 + ks) * 8 * KB
        wr = [dsrd('ds_read_b64_tr_b16', ('v', wf + e * 4 + h * 2), 2, V_WT + (2 if wb >= 64 * KB else 0) + e, (wb % (64 * KB)) + h * 4096) for e in range(2) for h in range(2)]
        return wr[:2] + xr[:1] + wr[2:] + xr[1:]
    def c_mfmas(k):
        xf, wf = CF(k)
        ff = 'v'
        if k < 4: wf, ff = WOF + k * 8, 'a'
        o = []
        for q in range(5):
            for e in range(2):
                d = ('v', ACC + (q * 2 + e) * 4)
                o.append(mfma(d, (ff, wf + e * 4), ('v', xf + q * 4), 0 if k == 0 else d))
        o[0].r |= set(R('v', xf, 20) + R(ff, wf, 8))
        return o
    def step(k, nx, pos=()):
        mf = c_mfmas(k); gaps = [[] for _ in mf]
        if nx is not None:
            for i, r in enumerate(c_reads(nx)): gaps[i].append(r)
        place(gaps, Q, pos)
        sg.addall(interleave(mf, gaps))
    def own_steps():
        for k in range(4): step(k, k + 2 if k < 2 else None, [1, 5, 9] if k % 2 == 0 else [3, 7])
    sg.addall(c_reads(0)); sg.addall(c_reads(1))
    raise_flag(sg, 1, 'ost')
    stamp(sg, 7, 'D'); stamp(sg, 7)
    weave(sg, Q, [], min(len(Q.q), int(opt.pf)), 0)
    held = Q.q; Q.q = []
    stamp(sg, 8, 'D')
    t = [f"s_mov_b32 s{S_SPIN}, {opt.spin}", "L_poll1:", f"s_load_dwordx8 s[4:11], s[{S_C}:{S_C+1}], s{S_F1} glc", f"s_sub_u32 s{S_SPIN}, s{S_SPIN}, 1", "s_waitcnt lgkmcnt(0)",
         f"s_cmp_eq_u32 s{S_SPIN}, 0", "s_cbranch_scc1 L_poll1_done"]
    t += [f"s_lshl_b32 s{S_T0}, 1, s{S_J}"]
    for h in range(4): t += [f"s_cmp_eq_u64 s[{4+2*h}:{5+2*h}], s[{S_NON}:{S_NON+1}]", f"s_cselect_b32 s{S_T1}, {1 << h}, 0", f"s_or_b32 s{S_T0}, s{S_T0}, s{S_T1}"]
    t += [f"s_cmp_lg_u32 s{S_T0}, 15", "s_cbranch_scc1 L_poll1", "L_poll1_done:"]
    for x in t: sg.text(x)
    sg.lg = []
    stamp(sg, 9, 'D')
    stamp(sg, 5, 'E')
    stamp(sg, 8)
    assert all(it.ins.vmtag == ('wo', 2) for it in held)
    Q.push(osib_dma(0) + osib_dma(1) + held)
    weave(sg, Q, [], 5, 0); own_steps()
    weave(sg, Q, [], len(Q.q), 0)
    stamp(sg, 6, 'E')
    a(barrier(needvm=[('os', 0), ('wo', 0), ('wo', 1)]))
    stamp(sg, 7, 'E')
    Q.push(osib_dma(2))
    sg.addall(c_reads(4)); sg.addall(c_reads(5))
    def pfin(q):
        b = ACC + q * 8
        return [V(f"v_cvt_pk_bf16_f32 v{b+r}, v{b+2*r}, v{b+2*r+1}", [b+2*r, b+2*r+1], [b+r]) for r in range(4)] + [vstore(('v', b), 4, V_PS, S_WT, S_TAB + q, 0, flags=' sc1', tag='pst')]
    last = 16 - (2 if int(opt.qmaj) else 0)
    for k in range(4, last):
        nx = k + 2 if k + 2 < 16 else None
        if nx in (8, 12):
            assert not Q.q or nx == 8
            a(barrier(needvm=[('os', nx // 4 - 1), ('wo', nx // 4 - 1)], lg0=False))
            stamp(sg, 8 if nx == 8 else 9, 'E')
        step(k, nx, [1, 5, 9] if k % 2 == 0 else [3, 7])
    if int(opt.qmaj):
        m14, m15 = c_mfmas(14), c_mfmas(15)
        m15[0].r -= set(R('v', CF(15)[0] + 4, 16))
        mf = flat([[m14[2*q], m15[2*q], m14[2*q+1], m15[2*q+1]] for q in range(5)])
        gaps = [[] for _ in mf]
        for q in range(4):
            f_ = pfin(q)
            g0 = 4 * q + 6
            if g0 + 2 < 20:
                gaps[g0] += f_[0:2]; gaps[g0 + 1] += f_[2:4]; gaps[g0 + 2] += f_[4:]
        sg.addall(interleave(mf, gaps))
        stamp(sg, 9)
        sg.addall(pfin(3) + pfin(4))
    else:
        stamp(sg, 9)
        for q in range(5): sg.addall(pfin(q))
    a(S(f"s_mov_b32 s{S_SO}, 4096", [], [S_SO]))
    a(S(f"s_mov_b32 s{S_T1}, 0xffff0000", [], [S_T1]))
    a(S(f"s_mov_b32 s{S_SPIN}, {opt.spin}", [], [S_SPIN]))
    a(S(f"s_mov_b32 s{S_T2}, 0", [], [S_T2]))
    a(S(f"s_mov_b32 s{S_SK}, 0", [], [S_SK]))
    if int(opt.f2wg):
        a(barrier(needvm=['pst'], lg0=False))
        sg.text(f"s_cmp_lg_u32 s{S_W}, 0"); sg.text("s_cbranch_scc1 L_sig2"); raise_flag(sg, 2, 'pst'); sg.text("L_sig2:")
    else: raise_flag(sg, 2, 'pst')
    stamp(sg, 5, '2')
    PB, SM = 100, 132
    def pl(h): return vload(('v', PB + 4 * h), 4, V_PLD, S_WT, S_SO if h >= 4 else None, (h & 3) * 1024, flags=' sc1')
    t = ["L_poll2:", f"s_load_dwordx16 s[4:19], s[{S_C}:{S_C+1}], s{S_F2} glc", f"s_cmp_eq_u32 s{S_SK}, 0", "s_cbranch_scc1 L_nounp", "L_unp:", "s_waitcnt vmcnt(0)"]
    for h in range(8):
        t += [f"s_bitcmp1_b32 s{S_SK}, {h}", f"s_cbranch_scc0 L_u{h}"]
        for r in range(4): t += [f"v_lshlrev_b32 v{SM+8*h+2*r}, 16, v{PB+4*h+r}", f"v_and_b32 v{SM+8*h+2*r+1}, s{S_T1}, v{PB+4*h+r}"]
        t += [f"L_u{h}:"]
    t += [f"s_cmp_eq_u32 s{S_T2}, 0xff", "s_cbranch_scc1 L_poll2_done", "L_nounp:", f"s_mov_b32 s{S_SK}, 0", f"s_sub_u32 s{S_SPIN}, s{S_SPIN}, 1", "s_waitcnt lgkmcnt(0)",
          f"s_cmp_eq_u32 s{S_SPIN}, 0", "s_cbranch_scc1 L_poll2_done"]
    for h in range(8):
        t += [f"s_cmp_lg_u64 s[{4+2*h}:{5+2*h}], s[{S_NON}:{S_NON+1}]", f"s_cbranch_scc1 L_g{h}", f"s_bitcmp1_b32 s{S_T2}, {h}", f"s_cbranch_scc1 L_g{h}",
              f"s_bitset1_b32 s{S_T2}, {h}", f"s_bitset1_b32 s{S_SK}, {h}", pl(h).t, f"L_g{h}:"]
    t += [f"s_cmp_lg_u32 s{S_T2}, 0xff", "s_cbranch_scc1 L_poll2", "s_branch L_unp", "L_poll2_done:"]
    if not int(opt.unp):
        t = ["L_poll2:", f"s_load_dwordx16 s[4:19], s[{S_C}:{S_C+1}], s{S_F2} glc", f"s_sub_u32 s{S_SPIN}, s{S_SPIN}, 1", "s_waitcnt lgkmcnt(0)", f"s_cmp_eq_u32 s{S_SPIN}, 0", "s_cbranch_scc1 L_poll2_done"]
        for h in range(8):
            t += [f"s_cmp_lg_u64 s[{4+2*h}:{5+2*h}], s[{S_NON}:{S_NON+1}]", f"s_cbranch_scc1 L_g{h}", f"s_bitcmp1_b32 s{S_T2}, {h}", f"s_cbranch_scc1 L_g{h}",
                  f"s_bitset1_b32 s{S_T2}, {h}", f"s_bitset1_b32 s{S_SK}, {h}", pl(h).t, f"L_g{h}:"]
        t += [f"s_cmp_eq_u32 s{S_T2}, 0xff", "s_cbranch_scc1 L_poll2_done", f"s_mov_b32 s{S_SK}, 0", "s_branch L_poll2", "L_poll2_done:"]
        t += ["s_waitcnt vmcnt(0)"]
        for h in range(8):
            for r in range(4): t += [f"v_lshlrev_b32 v{SM+8*h+2*r}, 16, v{PB+4*h+r}", f"v_and_b32 v{SM+8*h+2*r+1}, s{S_T1}, v{PB+4*h+r}"]
    for x in t: sg.text(x)
    sg.vm = []
    stamp(sg, 6, '2')
    for h in range(1, 8):
        for r in range(0, 8, 2):
            u = SM + 8 * h + r
            a(V(f"v_pk_add_f32 v[{SM+r}:{SM+r+1}], v[{SM+r}:{SM+r+1}], v[{u}:{u+1}]", [SM+r, SM+r+1, u, u+1], [SM+r, SM+r+1]))
    for r in range(4):
        a(V(f"v_cvt_pk_bf16_f32 v{SM+r}, v{SM+2*r}, v{SM+2*r+1}", [SM+2*r, SM+2*r+1], [SM+r]))
    if not int(opt.noout):
        a(vstore(('v', SM), 2, V_OUT, S_OUT, None, 0, flags=opt.out_flags))
        a(vstore(('v', SM + 2), 2, V_OUT, S_OUT, None, 32, flags=opt.out_flags))

def out_of_line():
    t = []
    t += ["L_spin_n:", f"s_mov_b32 s{S_SPIN}, {opt.spin}", "L_spin_n1:",
          f"buffer_load_dwordx2 v[{V_GC}:{V_GC+1}], v9, s[{S_D}:{S_D+3}], 0 offen sc1", f"s_sub_u32 s{S_SPIN}, s{S_SPIN}, 1", "s_waitcnt vmcnt(0)",
          f"v_readfirstlane_b32 s{S_NON}, v{V_GC}", f"v_readfirstlane_b32 s{S_NON+1}, v{V_GC+1}", f"s_cmp_eq_u32 s{S_SPIN}, 0", "s_cbranch_scc1 L_back_n", "s_nop 2",
          f"s_cmp_eq_u64 s[{S_NON}:{S_NON+1}], 0", "s_cbranch_scc1 L_spin_n1", "s_branch L_back_n"]
    t += ["L_redo:", f"s_mov_b64 s[{S_GM}:{S_GM+1}], 0", f"s_mov_b32 s{S_REDO}, 1",
          "s_waitcnt vmcnt(0) lgkmcnt(0)", "s_barrier"]
    sg = Seg()
    p1 = prologue1()
    a = sg.add
    a(V(f"v_lshl_add_u32 v{V_T0}, s{S_W}, 2, v{V_G}", [V_G], [V_T0]))
    a(V(f"v_xor_b32 v{V_T1}, v{V_N}, v{V_T0}", [V_N, V_T0], [V_T1]))
    a(V(f"v_lshlrev_b32 v{V_T1}, 4, v{V_T1}", [V_T1], [V_T1]))
    a(V(f"v_lshl_add_u32 v{V_XD}, v{V_T0}, 10, v{V_T1}", [V_T0, V_T1], [V_XD]))
    a(S(f"s_and_b32 s{S_T0}, s{S_W}, 2", [S_W], [S_T0]))
    a(S(f"s_lshl_b32 s{S_T0}, s{S_T0}, 2", [S_T0], [S_T0]))
    a(V(f"v_lshl_add_u32 v{V_T1}, v{V_G}, 1, s{S_T0}", [V_G], [V_T1]))
    a(V(f"v_xor_b32 v{V_T1}, v{V_N}, v{V_T1}", [V_N, V_T1], [V_T1]))
    a(V(f"v_lshlrev_b32 v{V_T1}, 4, v{V_T1}", [V_T1], [V_T1]))
    a(V(f"v_lshl_add_u32 v{V_WD}, v{V_T0}, 13, v{V_T1}", [V_T0, V_T1], [V_WD]))
    t += sg.out + ["s_nop 4", "s_branch L_restart"]
    sg = Seg(); a = sg.add
    sg.text("L_max:")
    sg.text(f"s_mov_b32 s{S_SPIN}, m0")
    sg.drain()
    sg.text("s_barrier")
    MX, KF, AD = 76, V_VF, 84
    for q in range(5): a(V(f"v_mov_b32 v{MX+q}, 0xff800000", [], [MX+q]))
    for s in range(4): a(V(f"v_add_u32 v{AD+s}, {96*KB}, v{V_KA+s}", [V_KA+s], [AD+s]))
    a(S(f"s_mov_b32 s{S_T2}, 0", [], [S_T2]))
    sg.text("L_max_loop:"); sg.reset_hist()
    for j in range(8):
        if j % 4 == 0:
            a(S(f"s_add_u32 s{S_T1}, s{S_T2}, {(j>>2)*4096}", [S_T2], [S_T1]))
            a(S(f"s_add_u32 m0, s{S_W8K}, {96*KB + (j>>2)*4096}", [S_W8K], [M0]))
        a(dma(V_KD + (j & 3), S_K, S_T1, 1024 * (j & 3), 'mk'))
    for t_ in range(2):
        for s in range(4):
            a(dsrd('ds_read_b128', ('v', KF + (t_ * 4 + s) * 4), 4, AD + s, t_ * 4096, needvm=['mk']))
    for q in range(5):
        for t_ in range(2):
            d = ('v', 88 + t_ * 4)
            for s in range(4): a(mfma(d, ('v', KF + (t_ * 4 + s) * 4), AQ(q, s), 0 if s == 0 else d))
        for k in range(4):
            a(V(f"v_max3_f32 v{MX+q}, v{MX+q}, v{88+2*k}, v{89+2*k}", [MX+q, 88+2*k, 89+2*k], [MX+q]))
    sg.drain()
    a(S(f"s_add_u32 s{S_T2}, s{S_T2}, 8192", [S_T2], [S_T2]))
    sg.text(f"s_cmp_lt_u32 s{S_T2}, 65536"); sg.text("s_nop 4"); sg.text("s_cbranch_scc1 L_max_loop")
    sg.text("s_barrier")
    a(S(f"s_mul_i32 s{S_T0}, s{S_W}, 1280", [S_W], [S_T0]))
    a(S(f"s_add_u32 s{S_T0}, s{S_T0}, {96*KB}", [S_T0], [S_T0]))
    a(V(f"v_lshl_add_u32 v{AD}, v{V_LANE}, 2, s{S_T0}", [V_LANE], [AD]))
    a(S(f"s_mov_b32 s{S_T0}, {96*KB}", [], [S_T0]))
    a(V(f"v_lshl_add_u32 v{AD+1}, v{V_N}, 2, s{S_T0}", [V_N], [AD+1]))
    for q in range(5): a(dswr('ds_write_b32', AD, ('v', MX + q), 1, q * 256))
    a(barrier())
    for q in range(5):
        for k in range(16):
            a(dsrd('ds_read_b32', ('v', KF + k), 1, AD + 1, (k >> 2) * 1280 + q * 256 + (k & 3) * 64))
        for k in range(8):
            a(V(f"v_max3_f32 v{MX+q}, v{MX+q}, v{KF+2*k}, v{KF+2*k+1}", [MX+q, KF+2*k, KF+2*k+1], [MX+q]))
        for r in range(4):
            a(V(f"v_sub_f32 v{V_NEGM+q*4+r}, 0, v{MX+q}", [MX+q], [V_NEGM+q*4+r]))
    sg.drain()
    sg.text("s_barrier"); sg.text(f"s_mov_b32 m0, s{S_SPIN}"); sg.text("s_nop 4"); sg.text("s_branch L_back_max")
    return t + sg.out

def stamp_out(sg, n):
    if not opt.stamps: return
    stamp(sg, n - 1)
    t = ["s_load_dwordx2 s[4:5], s[0:1], 56", "s_waitcnt lgkmcnt(0)", f"s_add_u32 s4, s4, {16<<20}", "s_addc_u32 s5, s5, 0", "s_and_b32 s5, s5, 0xffff",
         "s_mov_b32 s6, 0x100000", "s_mov_b32 s7, 0x20000", "s_lshl_b32 s8, s2, 2", "s_add_u32 s8, s8, s32", "s_lshl_b32 s8, s8, 6", "v_mov_b32 v2, s8"]
    for i in range(n):
        t += [f"v_mov_b32 v3, s{3 if i == 0 else 76+2*i}", f"buffer_store_dword v3, v2, s[4:7], 0 offen offset:{4*i} sc1"]
    for x in t: sg.text(x)

def kernel():
    sg = Seg()
    sg.text(NAME + "_kernel:")
    sg.text("s_cmp_ge_u32 s2, 256")
    sg.text("s_cbranch_scc1 L_end")
    if opt.stamps:
        stamp(sg, 0)
    p1 = prologue1()
    sg.addall(p1[:2])
    if int(opt.cpf):
        for x in ["s_getpc_b64 s[94:95]", "L_pc:", "s_lshr_b32 s3, s2, 3", "v_lshrrev_b32 v8, 6, v0", "v_and_b32 v9, 1, v0", "v_lshl_add_u32 v8, v8, 1, v9",
                  "v_lshl_add_u32 v8, s3, 3, v8", "v_lshlrev_b32 v8, 7, v8", "v_min_u32 v8, (L_code_end - L_pc - 4) & 0xffffff80, v8"] + (["global_load_dword v255, v8, s[94:95]"] if int(opt.cpf) == 1 else ["s_mov_b64 s[12:13], s[94:95]"]): sg.text(x)
    sg.addall(p1[2:])
    if opt.stamps:
        sg.text("s_mov_b32 s3, s76")
    p2 = prologue2()
    Q = Queue()
    first = x_dma(0) + w_dma(0) if not int(opt.wfirst) else w_dma(0) + x_dma(0)
    stamp(sg, 5, 'P')
    Q.push(first)
    weave(sg, Q, [], 9, 0)
    if int(opt.cpf) == 2: sg.text("global_load_dword v255, v8, s[12:13]")
    stamp(sg, 6, 'P')
    sg.addall(p2)
    stamp(sg, 7, 'P')
    sg.text("s_cmp_lg_u32 s2, 0"); sg.text("s_cbranch_scc1 L_nocz")
    lane0(sg, ["v_mov_b32 v9, 0", f"s_memrealtime s[{S_NON}:{S_NON+1}]", "s_waitcnt lgkmcnt(0)", f"s_or_b32 s{S_NON}, s{S_NON}, 1", f"v_mov_b32 v250, s{S_NON}", f"v_mov_b32 v251, s{S_NON+1}",
               f"buffer_store_dwordx2 v[250:251], v9, s[{S_D}:{S_D+3}], 0 offen sc1"], "L_nocz")
    sg.text("s_branch L_first")
    sg.text("L_restart:")
    s2 = Seg(); s2.addall(restart_setup()); Q2 = Queue(); Q2.push(x_dma(0) + w_dma(0) if not int(opt.wfirst) else w_dma(0) + x_dma(0)); weave(s2, Q2, [], 9, 0)
    for x in s2.out: sg.text(x)
    sg.text("L_first:")
    early, late = prologue3()
    early = early + late + handoff_calc()
    def BB(u): return f"B{u + 1}"
    Q.push(w_dma(1) + x_dma(1) + w_dma(2) + w_dma(3) + x_dma(2) + w_dma(4) + ((w_dma(5, 'B2') + x_dma(3)) if int(opt.la) else (x_dma(3) + w_dma(5, 'B2'))) + w_dma(6, 'B3') + w_dma(7, 'B4')
           + kv_dma('k', 0, 'B5') + kv_dma('v', 0, 'B6') + kv_dma('k', 1, 'B8') + kv_dma('v', 1, 'BQ'))
    for i in range(2, 8):
        if not int(opt.nodma): Q.push(kv_dma('k', i) + kv_dma('v', i))
    n0 = int(opt.n0) - 9
    weave(sg, Q, early, n0, (len(early) + n0 - 1) // n0)
    sg.addall(early)
    qr = phase_a(sg, Q)
    sg.addall(qr[:0])
    stamp(sg, 3)
    sg.text(f"s_cmp_eq_u32 s{S_REDO}, 0"); sg.text("s_cbranch_scc1 L_back_max")
    s2 = Seg(); s2.addall(qr)
    for x in s2.out: sg.text(x)
    sg.text("s_branch L_max")
    sg.text("L_back_max:")
    phase_b(sg, Q, qr)
    combine(sg, Q)
    phase_c(sg, Q)
    sg.text("L_fin:")
    stamp_out(sg, 11)
    sg.text("L_end:")
    sg.text("s_endpgm")
    return sg.out + ['L_code_end:'] + out_of_line()

def report_kernel():
    idx, mode = opt.report.split(',')
    if mode == 'next':
        return ["report_kernel:", "s_cmp_ge_u32 s2, 1", "s_cbranch_scc1 L3_end", "s_memrealtime s[12:13]", "s_load_dwordx2 s[4:5], s[0:1], 56", "s_waitcnt lgkmcnt(0)",
                f"s_add_u32 s4, s4, {17<<20}", "s_addc_u32 s5, s5, 0", "s_and_b32 s5, s5, 0xffff", "s_mov_b32 s6, 64", "s_mov_b32 s7, 0x20000", "v_mov_b32 v1, 0", "v_mov_b32 v2, s12",
                "buffer_store_dword v2, v1, s[4:7], 0 offen", "L3_end:", "s_endpgm"]
    t = ["report_kernel:", "s_cmp_ge_u32 s2, 1", "s_cbranch_scc1 L3_end", "s_load_dwordx2 s[4:5], s[0:1], 56", "s_waitcnt lgkmcnt(0)",
         f"s_add_u32 s4, s4, {16<<20}", "s_addc_u32 s5, s5, 0", "s_and_b32 s5, s5, 0xffff", "s_mov_b32 s6, 0x100000", "s_mov_b32 s7, 0x20000",
         "v_lshlrev_b32 v1, 8, v0", f"buffer_load_dword v2, v1, s[4:7], 0 offen offset:{4*int(idx)}", "buffer_load_dword v3, v1, s[4:7], 0 offen",
         "v_mov_b32 v4, 0", "v_mov_b32 v5, 0", "v_mov_b32 v6, -1", "ds_write_b32 v4, v5", "ds_write_b32 v4, v6 offset:8", "s_waitcnt vmcnt(0) lgkmcnt(0)", "s_barrier",
         "ds_min_u32 v4, v3 offset:8", "s_waitcnt lgkmcnt(0)", "s_barrier", "ds_read_b32 v6, v4 offset:8", "s_waitcnt lgkmcnt(0)", "v_sub_u32 v2, v2, v6",
         "v_lshrrev_b32 v7, 3, v0", "v_mul_u32_u24 v7, 52, v7", "v_lshrrev_b32 v7, 8, v7", "v_and_b32 v8, 1, v0", "v_sub_u32 v8, 6, v8", "v_cmp_lt_u32 vcc, v7, v8",
         "v_min_u32 v2, 10000, v2",
         ("ds_add_u32 v4, v2" if mode == 'mean' else "ds_max_u32 v4, v2"), "s_waitcnt lgkmcnt(0)", "s_barrier", "ds_read_b32 v6, v4", "s_memrealtime s[12:13]", "s_waitcnt lgkmcnt(0)",
         "v_readfirstlane_b32 s10, v6", "s_nop 4"]
    if mode == 'mean': t += ["s_mul_i32 s10, s10, 10", "s_lshr_b32 s10, s10, 8"]
    elif mode == 'max': t += ["s_mul_i32 s10, s10, 10"]
    else: t += ["s_mov_b32 s10, 0"]
    t += ["L3_spin:", "s_memrealtime s[14:15]", "s_waitcnt lgkmcnt(0)", "s_sub_u32 s14, s14, s12",
          "s_cmp_lt_u32 s14, s10", "s_cbranch_scc1 L3_spin", "L3_end:", "s_endpgm"]
    return t

def build():
    def fmt(l): return "\n".join(x if x.endswith(':') else "    " + x for x in l)
    nm = NAME + "_kernel"
    s = "; @launch grid=(256,1,1) block=(256,1,1) lds=163840\n"
    if opt.report:
        s = f"; @launch kernel={nm} grid=(256,1,1) block=(256,1,1) lds=163840\n; @launch kernel=report_kernel grid=(1,1,1) block=(256,1,1) lds=64\n"
    s += '.amdgcn_target "amdgcn-amd-amdhsa--gfx950"\n.text\n'
    s += f".globl {nm}\n.p2align 8\n.type {nm},@function\n" + fmt(kernel()) + "\n"
    if opt.report: s += ".globl report_kernel\n.p2align 8\n.type report_kernel,@function\n" + fmt(report_kernel()) + "\n"
    s += f""".section .rodata,"a"
.p2align 6
.amdhsa_kernel {nm}
  .amdhsa_next_free_vgpr 512
  .amdhsa_next_free_sgpr 102
  .amdhsa_accum_offset 256
  .amdhsa_group_segment_fixed_size 0
  .amdhsa_kernarg_size 64
  .amdhsa_user_sgpr_count 2
  .amdhsa_user_sgpr_kernarg_segment_ptr 1
  .amdhsa_system_sgpr_workgroup_id_x 1
  .amdhsa_float_denorm_mode_32 3
.end_amdhsa_kernel
"""
    if opt.report:
        s += """.p2align 6
.amdhsa_kernel report_kernel
  .amdhsa_next_free_vgpr 32
  .amdhsa_next_free_sgpr 32
  .amdhsa_accum_offset 32
  .amdhsa_group_segment_fixed_size 0
  .amdhsa_kernarg_size 64
  .amdhsa_user_sgpr_count 2
  .amdhsa_user_sgpr_kernarg_segment_ptr 1
  .amdhsa_system_sgpr_workgroup_id_x 1
.end_amdhsa_kernel
"""
    return s

if __name__ == '__main__':
    out = sys.argv[1] if len(sys.argv) > 1 else 'cdna_kernels/' + NAME + '.s'
    for a_ in sys.argv[2:]:
        k, v = a_.split('=', 1)
        setattr(opt, k, (' ' + v) if k.endswith('flags') and v else v)
    HOIST[0] = int(opt.hoist)
    txt = build()
    open(out, 'w').write(txt)
```

```python
import sys, struct, re
from dsl import *

KB = 1024
NAME = 'standalone__gqa_block_cached__near_ridge'
def f2h(x): return hex(struct.unpack('<I', struct.pack('<f', x))[0])
QSCALE = 1.4426950408889634 / (128 ** 0.5)
WS_WO = 8 << 20
WS_CT = 12 << 20

class Opt:
    stamps = ''
    report = ''
    kv_flags = ''
    a_flags = ''
    n0 = 22
    warm = 1
    perstep = 6
    lo_exp = -40
    hi_exp = 40
    spin = 300000
    rt_at = 5
    bar_at = 30
    nodma = 0
    c3 = 0
    otr = 1
    otch_at = 99
    otch_flags = ''
    worlate = 1
    pf = 9
    noout = 0
    even_end = 23
    coal = 1
    hoist = 2
    unp = 0
    f2wg = 1
    wfirst = 0
    kvnt = 'x'
    ant = ''
    tch_flags = ''
    wsb = 0
    drain = '45'
    tlb_at = 27
    aonly = 0
    la = 10
    aq = 1
    ownlate = 1
    o_flags = ' sc1'
    f1_flags = ' sc1'
    w64 = 0
    out_flags = ''
    bsched = 1
    p1w = 1
    p2w = 0
    pollk = '19,29,39'
    dyn2 = 1
    qmaj = 1
    tch_at = 27
    even_at = 99
    pdepth = 1
    kvo = 4
    finw = 0
    alim = 16
    cpf = 1
    chain = 1
    wo_at = 33
    calc_at = 16
    nl_at = 8
    nc_at = 13
    cw = 2
    shadow = 9
    bst = '0,5,10,15,20'
    no_rt = 0
    clk = 'r'
    lg0 = 0
    vpos = '1,5,9,13'
    rot_kv = 1
    rot_a = 8
    rot_c = 1
    gl_at = 29
    gc_at = 33
opt = Opt()

S_X, S_WQ, S_K, S_V, S_O, S_WO, S_WT, S_WL, S_C, S_D, S_OUT = 4, 8, 12, 16, 20, 24, 28, 52, 56, 60, 64
S_W, S_B, S_HKV, S_HQ = 32, 33, 34, 35
S_W1K, S_W8K, S_SO, S_T0, S_T1, S_T2, S_SK, S_SV = 36, 37, 38, 39, 40, 41, 42, 43
S_TAB = 44
S_REDO, S_MT, S_NT, S_VALID, S_RT, S_SPIN = 68, 69, 70, 71, 72, 73
S_EX = 74
S_F1, S_F2, S_G1, S_G2 = 100, 101, 72, 51
S_GM = 70
S_J_UNUSED = 3
S_P = 76
S_ST = 80
V_LANE, V_N, V_G, V_T0, V_T1, V_T2, V_T3, V_T4, V_T5 = 1, 2, 3, 4, 5, 6, 7, 8, 9
V_KA, V_VA, V_KD, V_VD = 10, 14, 22, 26
V_OST, V_CW, V_LW = 28, 29, 31
V_ONES, V_NEGM, V_L, V_S, V_P, V_KF, V_VF = 32, 36, 56, 76, 92, 100, 164
V_XA, V_XB, V_WA, V_WB, V_XD, V_WD, V_QW = 228, 232, 236, 238, 240, 241, 242
V_GC = 250
S_NON = 96
V_CR, V_LR, V_WOD, V_WT, V_OL, V_OW, V_OD, V_PS, V_PLD, V_OUT, V_P1, V_P2 = 228, 234, 235, 236, 242, 243, 244, 245, 246, 247, 248, 249
V_ZERO = 9
V_TCH = 64
S_H = 52
S_W5K = 55
S_J = 69
A_O, A_Q = 0, 160
V_OWN = [132, 140, 148, 156, 56]
A_KF1, A_L = 120, 240
def AO(lam, q):
    if lam < 2: return ('v', V_OWN[q] + 4 * lam)
    return ('a', A_O + 4 * (q * 6 + lam - 2))
def KF(i, k): return ('v', V_KF + 4 * k) if i % 2 == 0 else ('a', A_KF1 + 4 * k)
def LA(q): return ('a', A_L + 4 * q) if q < 4 else ('a', 152)
def AQ(q, s): return ('a', A_Q + 4 * (q * 4 + s))

def XU(c, q):
    if c == 0: return q * 4 * KB
    if c == 1: return 20 * KB + q * 4 * KB
    if c == 2: return 128 * KB + q * 4 * KB
    return [120, 124, 148, 152, 156][q] * KB
def WU(slot, ks):
    return {0: [40, 48], 1: [56, 96], 2: [104, 112], 3: [64, 72], 4: [80, 88]}[slot][ks] * KB
WSLOT = [0, 1, 2, 3, 4, 0, 1, 2]
QBUF = 128 * KB

def V(t, r=(), w=()):
    return valu(t, r=[('v', x) if isinstance(x, int) else x for x in r], w=[('v', x) if isinstance(x, int) else x for x in w])
def T(t, r=(), w=()):
    return valu(t, r=[('v', x) for x in r], w=[('v', x) for x in w], trans=True)
def S(t, r=(), w=()):
    return salu(t, r=[('s', x) if isinstance(x, int) else x for x in r], w=[('s', x) if isinstance(x, int) else x for x in w])
M0 = ('m0', 0)
VCC = ('vcc', 0)
def flat(l): return [x for y in l for x in y]

def srd(dst, plo, add_s=None, add_imm=0, size=0):
    o = []
    if add_s is not None:
        o.append(S(f"s_add_u32 s{dst}, s{plo}, s{add_s}", [plo, add_s], [dst]))
        o.append(S(f"s_addc_u32 s{dst+1}, s{plo+1}, 0", [plo+1], [dst+1]))
        o.append(S(f"s_and_b32 s{dst+1}, s{dst+1}, 0xffff", [dst+1], [dst+1]))
    elif add_imm:
        o.append(S(f"s_add_u32 s{dst}, s{plo}, {add_imm}", [plo], [dst]))
        o.append(S(f"s_addc_u32 s{dst+1}, s{plo+1}, 0", [plo+1], [dst+1]))
        o.append(S(f"s_and_b32 s{dst+1}, s{dst+1}, 0xffff", [dst+1], [dst+1]))
    else:
        o.append(S(f"s_mov_b32 s{dst}, s{plo}", [plo], [dst]))
        o.append(S(f"s_and_b32 s{dst+1}, s{plo+1}, 0xffff", [plo+1], [dst+1]))
    if isinstance(size, str):
        o.append(S(f"s_mov_b32 s{dst+2}, {size}", [int(size[1:])], [dst+2]))
    else:
        o.append(S(f"s_mov_b32 s{dst+2}, {size}", [], [dst+2]))
    o.append(S(f"s_mov_b32 s{dst+3}, 0x20000", [], [dst+3]))
    return o

KV_ORDER = [[0, 2, 1, 3, 4, 6, 5, 7], [0, 1, 3, 2, 4, 5, 7, 6], [1, 0, 2, 4, 3, 5, 6, 7], [1, 0, 2, 3, 5, 4, 6, 7]]
KV_ORDERS = [KV_ORDER,
  [[0, 4, 1, 2, 3, 5, 6, 7], [1, 0, 5, 2, 3, 4, 6, 7], [2, 0, 1, 6, 3, 4, 5, 7], [3, 0, 1, 2, 7, 4, 5, 6]],
  [[0, 1, 2, 3, 4, 5, 6, 7], [0, 1, 2, 3, 4, 5, 6, 7], [4, 5, 6, 7, 0, 1, 2, 3], [4, 5, 6, 7, 0, 1, 2, 3]],
  [[0, 2, 1, 3, 5, 4, 6, 7], [1, 0, 3, 2, 4, 6, 5, 7], [2, 1, 0, 4, 3, 5, 7, 6], [0, 1, 2, 3, 5, 4, 6, 7]],
  [[0, 1, 2, 4, 3, 5, 6, 7], [1, 0, 2, 3, 5, 4, 6, 7], [2, 0, 1, 3, 4, 6, 5, 7], [0, 1, 3, 2, 4, 5, 7, 6]],
  [[0, 1, 4, 2, 3, 5, 6, 7], [1, 0, 2, 5, 3, 4, 6, 7], [2, 0, 1, 3, 6, 4, 5, 7], [0, 3, 1, 2, 4, 7, 5, 6]],
  [[0, 1, 3, 2, 4, 5, 7, 6], [0, 1, 2, 4, 3, 5, 6, 7], [0, 2, 1, 3, 5, 4, 6, 7], [0, 2, 1, 3, 4, 6, 5, 7]],
  [[0, 1, 2, 4, 3, 5, 6, 7], [1, 0, 3, 2, 5, 4, 6, 7], [2, 3, 0, 1, 4, 6, 5, 7], [3, 2, 1, 0, 4, 5, 7, 6]],
  [[0, 1, 2, 4, 3, 5, 6, 7], [1, 2, 0, 3, 5, 4, 6, 7], [2, 0, 1, 3, 4, 6, 5, 7], [0, 3, 1, 2, 4, 5, 7, 6]]]
def kv_pack(j):
    o = KV_ORDERS[int(opt.kvo)][j] if int(opt.rot_kv) else list(range(8))
    return sum(t << (4 * i) for i, t in enumerate(o))
S_KVO = 98
V_XD4 = 204
S_WC = 99

class Item:
    def __init__(s, pre, ins, after=None): s.pre, s.ins, s.after = pre, ins, after
def x_dma(c, after=None):
    return [Item([S(f"s_add_u32 m0, s{S_W1K}, {XU(c,q)}", [S_W1K], [M0])],
                 dma(V_XD4 + c, S_X, S_TAB + q, 0, ('x', c), flags=(' nt' if 'x' in opt.ant and c < 2 else opt.a_flags)), after) for q in range(5)]
def w_dma(u, after=None):
    o = []
    for k in range(4):
        pre = []
        if k == 0:
            pre.append(S(f"s_add_u32 s{S_SK}, s{S_WC}, {(u & 6) << 19}", [S_WC], [S_SK]))
            pre.append(S(f"s_and_b32 s{S_SK}, s{S_SK}, {7 << 19}", [S_SK], [S_SK]))
            if u & 1: pre.append(S(f"s_xor_b32 s{S_SK}, s{S_SK}, {1 << 19}", [S_SK], [S_SK]))
        pre.append(S(f"s_add_u32 s{S_SO}, s{S_SK}, {k*131072}", [S_SK], [S_SO]))
        pre.append(S(f"s_add_u32 m0, s{S_W1K}, {WU(WSLOT[u], k>>1) + (k&1)*4*KB}", [S_W1K], [M0]))
        o.append(Item(pre, dma(V_WD, S_WQ, S_SO, 0, ('w', u), flags=(' nt' if 'w' in opt.ant and u < 4 else opt.a_flags)), after))
    return o
def kv_dma(kind, i, after=None):
    o = []
    base = (i & 1) * 32 * KB + (0 if kind == 'k' else 64 * KB)
    sr, so = (S_K, S_SK) if kind == 'k' else (S_V, S_SV)
    for j in range(8):
        pre = []
        if j % 4 == 0:
            if j == 0:
                pre.append(S(f"s_bfe_u32 s{so}, s{S_KVO}, {hex((3 << 16) | (4 * i))}", [S_KVO], [so]))
                pre.append(S(f"s_lshl_b32 s{so}, s{so}, 13", [so], [so]))
            else:
                pre.append(S(f"s_add_u32 s{so}, s{so}, 4096", [so], [so]))
            pre.append(S(f"s_add_u32 m0, s{S_W8K}, {base + (j>>2)*4096}", [S_W8K], [M0]))
        va = V_KD + (j & 3) if kind == 'k' else V_VD + (j & 1)
        tag = (kind + 'r', i - 2, j >> 2)
        o.append(Item(pre, dma(va, sr, so, 1024 * (j & 3), (kind, i, j >> 2), needlg=[tag], flags=(' nt' if str(i) in str(opt.kvnt) else opt.kv_flags)), after if i < 2 else tag))
    return o
def k_reads(i):
    return [dsrd('ds_read_b128', KF(i, t * 4 + s), 4, V_KA + s, (i & 1) * 32 * KB + t * 4096,
                 needvm=[('k', i, t)], lgtag=('kr', i, t)) for t in range(2) for s in range(4)]
def v_reads(i):
    return [dsrd('ds_read_b64_tr_b16', ('v', V_VF + (i & 1) * 32 + lam * 4 + h * 2), 2, V_VA + lam, (i & 1) * 32 * KB + h * 4096,
                 needvm=[('v', i, h)], lgtag=('vr', i, h)) for h in range(2) for lam in range(8)]

class Queue:
    def __init__(s): s.q = []; s.pts = set()
    def push(s, items): s.q += items
    def mark(s, p): s.pts.add(p)
    def pop(s):
        if s.q and (s.q[0].after is None or s.q[0].after in s.pts): return s.q.pop(0)
        return None

def place(gaps, Q, pos):
    last = -1
    for p in pos:
        if p >= len(gaps): continue
        it = Q.pop()
        if it is None: break
        pre = list(it.pre)
        avail = list(range(last + 1, p))
        front = []
        if not avail: front = pre
        else:
            slots = [[] for _ in avail]
            for k_, x in enumerate(reversed(pre)):
                slots[max(0, len(avail) - 1 - k_)].insert(0, x)
            for g, sl in zip(avail, slots):
                k_ = 0
                while k_ < len(gaps[g]) and gaps[g][k_].k == 'salu': k_ += 1
                gaps[g][k_:k_] = sl
        k = 0
        while k < len(gaps[p]) and gaps[p][k].k == 'salu': k += 1
        gaps[p][k:k] = front + [it.ins]
        last = p
def weave(sg, Q, fill, n, per):
    for _ in range(n):
        it = Q.pop()
        if it is not None: sg.addall(it.pre + [it.ins])
        for _ in range(per):
            if fill: sg.add(fill.pop(0))

NST = 12
def stamp(sg, i, grp='1'):
    if not opt.stamps: return
    if opt.stamps == 'Z' and i: return
    if 5 <= i <= 9 and grp != opt.stamps: return
    sg.text(f"{'s_memtime' if opt.clk == 'c' else 's_memrealtime'} s[{76+2*i}:{77+2*i}]")

def prologue1():
    o = []; a = o.append
    a(raw("s_load_dwordx2 s[92:93], s[0:1], 0"))
    a(raw("s_load_dwordx2 s[26:27], s[0:1], 24"))
    a(V(f"v_lshrrev_b32 v{V_T0}, 6, v0", [0], [V_T0]))
    a(V(f"v_and_b32 v{V_LANE}, 63, v0", [0], [V_LANE]))
    a(V(f"v_readfirstlane_b32 s{S_W}, v{V_T0}", [V_T0], [('s', S_W)]))
    a(S(f"s_and_b32 s{S_HKV}, s2, 7", [2], [S_HKV]))
    a(S(f"s_lshr_b32 s{S_B}, s2, 5", [2], [S_B]))
    a(S(f"s_bfe_u32 s{S_T0}, s2, 0x20003", [2], [S_T0]))
    a(S(f"s_mov_b32 s{S_J}, s{S_T0}", [S_T0], [S_J]))
    a(S(f"s_lshl_b32 s{S_HQ}, s{S_HKV}, 2", [S_HKV], [S_HQ]))
    a(S(f"s_add_u32 s{S_HQ}, s{S_HQ}, s{S_T0}", [S_HQ, S_T0], [S_HQ]))
    if int(opt.rot_a) == 2:
        a(S(f"s_add_u32 s{S_VALID}, s{S_T0}, s{S_B}", [S_T0, S_B], [S_VALID]))
        a(S(f"s_and_b32 s{S_VALID}, s{S_VALID}, 1", [S_VALID], [S_VALID]))
        a(S(f"s_lshl_b32 s{S_VALID}, s{S_VALID}, 2", [S_VALID], [S_VALID]))
    elif int(opt.rot_a) in (5, 6):
        a_, b_ = (S_B, S_T0) if int(opt.rot_a) == 5 else (S_T0, S_B)
        a(S(f"s_lshl_b32 s{S_VALID}, s{b_}, 1", [b_], [S_VALID]))
        a(S(f"s_add_u32 s{S_VALID}, s{S_VALID}, s{a_}", [S_VALID, a_], [S_VALID]))
        a(S(f"s_and_b32 s{S_VALID}, s{S_VALID}, 3", [S_VALID], [S_VALID]))
        a(S(f"s_lshl_b32 s{S_VALID}, s{S_VALID}, 1", [S_VALID], [S_VALID]))
    elif int(opt.rot_a) in (8, 9):
        a(S(f"s_add_u32 s{S_VALID}, s{S_T0}, s{S_B}", [S_T0, S_B], [S_VALID]))
        a(S(f"s_lshl_b32 s{S_VALID}, s{S_VALID}, 1", [S_VALID], [S_VALID]))
        a(S(f"s_and_b32 s{S_T1}, s{S_HKV}, {1 if int(opt.rot_a) == 8 else 3}", [S_HKV], [S_T1]))
        a(S(f"s_add_u32 s{S_VALID}, s{S_VALID}, s{S_T1}", [S_VALID, S_T1], [S_VALID]))
        a(S(f"s_and_b32 s{S_VALID}, s{S_VALID}, 3", [S_VALID], [S_VALID]))
        a(S(f"s_lshl_b32 s{S_VALID}, s{S_VALID}, 1", [S_VALID], [S_VALID]))
    elif int(opt.rot_a) == 7:
        a(S(f"s_add_u32 s{S_VALID}, s{S_T0}, s{S_B}", [S_T0, S_B], [S_VALID]))
        a(S(f"s_and_b32 s{S_VALID}, s{S_VALID}, 1", [S_VALID], [S_VALID]))
        a(S(f"s_lshl_b32 s{S_VALID}, s{S_VALID}, 2", [S_VALID], [S_VALID]))
        a(S(f"s_bfe_u32 s{S_T1}, s{S_B}, 0x10001", [S_B], [S_T1]))
        a(S(f"s_or_b32 s{S_VALID}, s{S_VALID}, s{S_T1}", [S_VALID, S_T1], [S_VALID]))
    elif int(opt.rot_a) == 4:
        a(S(f"s_add_u32 s{S_VALID}, s{S_T0}, s{S_B}", [S_T0, S_B], [S_VALID]))
        a(S(f"s_and_b32 s{S_VALID}, s{S_VALID}, 3", [S_VALID], [S_VALID]))
        a(S(f"s_lshl_b32 s{S_VALID}, s{S_VALID}, 1", [S_VALID], [S_VALID]))
    elif int(opt.rot_a):
        a(S(f"s_lshl_b32 s{S_T0}, s{S_T0}, 1", [S_T0], [S_T0]))
        a(S(f"s_add_u32 s{S_VALID}, s{S_T0}, s{S_B}", [S_T0, S_B], [S_VALID]))
        a(S(f"s_and_b32 s{S_VALID}, s{S_VALID}, 7", [S_VALID], [S_VALID]))
    else:
        a(S(f"s_mov_b32 s{S_VALID}, 0", [], [S_VALID]))
    a(V(f"v_and_b32 v{V_N}, 15, v{V_LANE}", [V_LANE], [V_N]))
    a(V(f"v_lshrrev_b32 v{V_G}, 4, v{V_LANE}", [V_LANE], [V_G]))
    a(S(f"s_lshl_b32 s{S_W1K}, s{S_W}, 10", [S_W], [S_W1K]))
    a(S(f"s_lshl_b32 s{S_W8K}, s{S_W}, 13", [S_W], [S_W8K]))
    a(V(f"v_lshl_add_u32 v{V_T0}, s{S_W}, 2, v{V_G}", [V_G, ('s', S_W)], [V_T0]))
    a(V(f"v_xor_b32 v{V_T1}, v{V_N}, v{V_T0}", [V_N, V_T0], [V_T1]))
    a(V(f"v_lshlrev_b32 v{V_T1}, 4, v{V_T1}", [V_T1], [V_T1]))
    a(V(f"v_lshl_add_u32 v{V_XD}, v{V_T0}, 10, v{V_T1}", [V_T0, V_T1], [V_XD]))
    a(S(f"s_and_b32 s{S_T0}, s{S_W}, 2", [S_W], [S_T0]))
    a(S(f"s_lshl_b32 s{S_T0}, s{S_T0}, 2", [S_T0], [S_T0]))
    a(V(f"v_lshl_add_u32 v{V_T1}, v{V_G}, 1, s{S_T0}", [V_G, ('s', S_T0)], [V_T1]))
    a(V(f"v_xor_b32 v{V_T1}, v{V_N}, v{V_T1}", [V_N, V_T1], [V_T1]))
    a(V(f"v_lshlrev_b32 v{V_T1}, 4, v{V_T1}", [V_T1], [V_T1]))
    a(V(f"v_lshl_add_u32 v{V_WD}, v{V_T0}, 13, v{V_T1}", [V_T0, V_T1], [V_WD]))
    a(S(f"s_mul_i32 s{S_T0}, s{S_B}, 81920", [S_B], [S_T0]))
    a(S(f"s_lshl_b32 s{S_T2}, s{S_HQ}, 8", [S_HQ], [S_T2]))
    a(S(f"s_sub_u32 s{S_T1}, 4194304, s{S_T2}", [S_T2], [S_T1]))
    a(S(f"s_mov_b32 s{S_REDO}, 0", [], [S_REDO]))
    a(S(f"s_lshl_b32 s{S_WC}, s{S_VALID}, 19", [S_VALID], [S_WC]))
    a(S(f"s_mov_b64 s[{S_GM}:{S_GM+1}], -1", [], [S_GM, S_GM+1]))
    o += restart_setup()
    a(S(f"s_mov_b32 s{S_X+2}, 81920", [], [S_X+2])); a(S(f"s_mov_b32 s{S_X+3}, 0x20000", [], [S_X+3]))
    a(S(f"s_mov_b32 s{S_WQ+2}, s{S_T1}", [S_T1], [S_WQ+2])); a(S(f"s_mov_b32 s{S_WQ+3}, 0x20000", [], [S_WQ+3]))
    a(raw("s_waitcnt lgkmcnt(0)", 'wait'))
    o += srd(S_X, 92, add_s=S_T0, size=81920)[:3]
    o += srd(S_WQ, 26, add_s=S_T2, size=0)[:3]
    a(raw("s_load_dwordx4 s[92:95], s[0:1], 8"))
    a(raw(f"s_load_dwordx2 s[{S_WO}:{S_WO+1}], s[0:1], 32"))
    a(raw(f"s_load_dwordx4 s[{S_C}:{S_C+3}], s[0:1], 40"))
    a(raw("s_load_dwordx2 s[100:101], s[0:1], 56"))
    return o

def restart_setup():
    o = [S(f"s_mov_b32 s{S_TAB+q}, {q*16384}", [], [S_TAB+q]) for q in range(5)]
    for c in range(4):
        o.append(S(f"s_lshr_b32 s{S_SO}, s{S_WC}, 12", [S_WC], [S_SO]))
        o.append(S(f"s_add_u32 s{S_SO}, s{S_SO}, {c*256}", [S_SO], [S_SO]))
        o.append(S(f"s_and_b32 s{S_SO}, s{S_SO}, 0x300", [S_SO], [S_SO]))
        o.append(V(f"v_add_u32 v{V_XD4+c}, s{S_SO}, v{V_XD}", [V_XD, ('s', S_SO)], [V_XD4+c]))
    return o

def prologue2():
    o = []; a = o.append
    a(raw("s_waitcnt lgkmcnt(0)", 'wait'))
    a(S(f"s_lshl_b32 s{S_T0}, s{S_B}, 3", [S_B], [S_T0]))
    a(S(f"s_add_u32 s{S_T0}, s{S_T0}, s{S_HKV}", [S_T0, S_HKV], [S_T0]))
    a(S(f"s_lshl_b32 s{S_T0}, s{S_T0}, 2", [S_T0], [S_T0]))
    a(S(f"s_add_u32 s{S_T0}, s{S_T0}, s{S_W}", [S_T0, S_W], [S_T0]))
    a(S(f"s_lshl_b32 s{S_T0}, s{S_T0}, 16", [S_T0], [S_T0]))
    o += srd(S_K, 92, add_s=S_T0, size=65536)
    o += srd(S_V, 94, add_s=S_T0, size=65536)
    a(S(f"s_lshl_b32 s{S_T0}, s{S_HKV}, 19", [S_HKV], [S_T0]))
    o += srd(S_WO, S_WO, add_s=S_T0, size=524288)
    WB = int(opt.wsb) << 20
    o += srd(S_O, 100, add_imm=WB, size=8*5*128*1024)
    o += srd(S_WT, 100, add_imm=WB + WS_WO, size=8*4*20*8*1024)
    o += srd(S_D, S_C + 2, size=256)
    o += srd(S_OUT, S_C, size=655360)
    o += srd(S_C, 100, add_imm=WB + WS_CT, size=262144)
    a(S(f"s_bitcmp1_b32 s{S_HQ}, 0", [S_HQ], []))
    a(S(f"s_mov_b32 s{S_T0}, {hex(kv_pack(0))}", [], [S_T0]))
    a(S(f"s_cselect_b32 s{S_T0}, {hex(kv_pack(1))}, s{S_T0}", [S_T0], [S_T0]))
    a(S(f"s_mov_b32 s{S_T1}, {hex(kv_pack(2))}", [], [S_T1]))
    a(S(f"s_cselect_b32 s{S_T1}, {hex(kv_pack(3))}, s{S_T1}", [S_T1], [S_T1]))
    a(S(f"s_bitcmp1_b32 s{S_HQ}, 1", [S_HQ], []))
    a(S(f"s_cselect_b32 s{S_KVO}, s{S_T1}, s{S_T0}", [S_T0, S_T1], [S_KVO]))
    for p in range(3):
        a(S(f"s_cmp_le_u32 s{S_J}, {p}", [S_J], []))
        a(S(f"s_cselect_b32 s{S_T1}, {p + 1}, {p}", [], [S_T1]))
        a(S(f"s_lshl_b32 s{S_H+p}, s{S_T1}, 17", [S_T1], [S_H+p]))
    a(S(f"s_mul_i32 s{S_W5K}, s{S_W}, 5120", [S_W], [S_W5K]))
    a(S(f"s_lshl_b32 s{S_T0}, s{S_B}, 14", [S_B], [S_T0]))
    a(S(f"s_lshl_b32 s{S_T1}, s{S_W}, 7", [S_W], [S_T1]))
    a(S(f"s_add_u32 s{S_T0}, s{S_T0}, s{S_T1}", [S_T0, S_T1], [S_T0]))
    a(S(f"s_lshl_b32 s{S_F1}, s{S_HQ}, 9", [S_HQ], [S_F1]))
    a(S(f"s_add_u32 s{S_F1}, s{S_F1}, s{S_T0}", [S_F1, S_T0], [S_F1]))
    a(S(f"s_add_u32 s{S_F2}, s{S_F1}, 131072", [S_F1], [S_F2]))
    if int(opt.f2wg): a(S(f"s_andn2_b32 s{S_F2}, s{S_F2}, 0x180", [S_F2], [S_F2]))
    a(S(f"s_lshl_b32 s{S_T1}, s{S_HKV}, 11", [S_HKV], [S_T1]))
    a(S(f"s_lshl_b32 s{S_G1}, s{S_J}, 3", [S_J], [S_G1]))
    a(S(f"s_add_u32 s{S_G1}, s{S_G1}, s{S_T1}", [S_G1, S_T1], [S_G1]))
    a(S(f"s_add_u32 s{S_G1}, s{S_G1}, s{S_T0}", [S_G1, S_T0], [S_G1]))
    a(S(f"s_lshl_b32 s{S_T1}, s{S_J}, 9", [S_J], [S_T1]))
    a(S(f"s_lshl_b32 s{S_G2}, s{S_HKV}, 3", [S_HKV], [S_G2]))
    a(S(f"s_add_u32 s{S_G2}, s{S_G2}, s{S_T1}", [S_G2, S_T1], [S_G2]))
    a(S(f"s_add_u32 s{S_G2}, s{S_G2}, s{S_T0}", [S_G2, S_T0], [S_G2]))
    a(S(f"s_add_u32 s{S_G2}, s{S_G2}, 131072", [S_G2], [S_G2]))
    return o

def prologue3():
    o = []; a = o.append
    a(S(f"s_bfe_u32 s{S_T1}, s{S_WC}, 0x10013", [S_WC], [S_T1]))
    a(S(f"s_lshl_b32 s{S_T1}, s{S_T1}, 3", [S_T1], [S_T1]))
    a(V(f"v_xor_b32 v{V_T1}, s{S_T1}, v{V_N}", [V_N, ('s', S_T1)], [V_T1]))
    for s in range(4):
        a(V(f"v_add_u32 v{V_T0}, {4*s}, v{V_G}", [V_G], [V_T0]))
        a(V(f"v_xor_b32 v{V_T0}, v{V_T0}, v{V_T1}", [V_T0, V_T1], [V_T0]))
        a(V(f"v_lshlrev_b32 v{V_T0}, 4, v{V_T0}", [V_T0], [V_T0]))
        a(V(f"v_lshl_add_u32 v{V_XA+s}, v{V_N}, 8, v{V_T0}", [V_N, V_T0], [V_XA+s]))
        a(V(f"v_add_u32 v{V_XB+s}, {120*KB}, v{V_XA+s}", [V_XA+s], [V_XB+s]))
    a(V(f"v_lshrrev_b32 v{V_T2}, 2, v{V_N}", [V_N], [V_T2]))
    a(V(f"v_bfe_u32 v{V_T3}, v{V_N}, 1, 1", [V_N], [V_T3]))
    a(V(f"v_and_b32 v{V_T4}, 1, v{V_N}", [V_N], [V_T4]))
    a(V(f"v_lshlrev_b32 v{V_T4}, 3, v{V_T4}", [V_T4], [V_T4]))
    a(V(f"v_and_b32 v{V_T5}, 1, v{V_G}", [V_G], [V_T5]))
    a(V(f"v_lshl_add_u32 v{V_T5}, v{V_T5}, 2, v{V_T2}", [V_T5, V_T2], [V_T5]))
    a(V(f"v_lshlrev_b32 v{V_T5}, 1, v{V_T5}", [V_T5], [V_T5]))
    a(S(f"s_lshl_b32 s{S_T1}, s{S_W}, 2", [S_W], [S_T1]))
    a(V(f"v_lshl_add_u32 v{V_T1}, v{V_G}, 3, v{V_T2}", [V_G, V_T2], [V_T1]))
    a(V(f"v_lshl_add_u32 v{V_T1}, v{V_T1}, 8, v{V_T4}", [V_T1, V_T4], [V_T1]))
    for e in range(2):
        a(V(f"v_add3_u32 v{V_T0}, s{S_T1}, v{V_T3}, {2*e}", [V_T3, ('s', S_T1)], [V_T0]))
        a(V(f"v_xor_b32 v{V_T0}, v{V_T0}, v{V_T5}", [V_T0, V_T5], [V_T0]))
        a(V(f"v_lshl_add_u32 v{V_T0}, v{V_T0}, 4, v{V_T1}", [V_T0, V_T1], [V_T0]))
        a(V(f"v_add_u32 v{V_WA+e}, {40*KB}, v{V_T0}", [V_T0], [V_WA+e]))
        a(V(f"v_add_u32 v{V_WB+e}, {96*KB}, v{V_T0}", [V_T0], [V_WB+e]))
    a(V(f"v_lshl_add_u32 v{V_T1}, v{V_G}, 2, v{V_T2}", [V_G, V_T2], [V_T1]))
    n_early = len(o)
    for s in range(4):
        a(V(f"v_add_u32 v{V_KA+s}, s{S_W8K}, v{V_XA+s}", [V_XA+s, ('s', S_W8K)], [V_KA+s]))
    a(V(f"v_lshl_add_u32 v{V_T1}, v{V_T1}, 8, v{V_T4}", [V_T1, V_T4], [V_T1]))
    a(S(f"s_add_u32 s{S_T2}, s{S_W8K}, {64*KB}", [S_W8K], [S_T2]))
    a(V(f"v_add_u32 v{V_T1}, s{S_T2}, v{V_T1}", [V_T1, ('s', S_T2)], [V_T1]))
    a(V(f"v_add_u32 v{V_T3}, s{S_T1}, v{V_T3}", [V_T3, ('s', S_T1)], [V_T3]))
    for lam in range(8):
        a(V(f"v_add_u32 v{V_T0}, {2*lam}, v{V_T3}", [V_T3], [V_T0]))
        a(V(f"v_and_b32 v{V_T0}, 15, v{V_T0}", [V_T0], [V_T0]))
        a(V(f"v_xor_b32 v{V_T0}, v{V_T0}, v{V_T5}", [V_T0, V_T5], [V_T0]))
        a(V(f"v_lshl_add_u32 v{V_VA+lam}, v{V_T0}, 4, v{V_T1}", [V_T0, V_T1], [V_VA+lam]))
    a(V(f"v_xor_b32 v{V_T0}, v{V_N}, v{V_G}", [V_N, V_G], [V_T0]))
    a(V(f"v_lshlrev_b32 v{V_T0}, 4, v{V_T0}", [V_T0], [V_T0]))
    a(V(f"v_lshl_add_u32 v{V_KD}, v{V_G}, 8, v{V_T0}", [V_G, V_T0], [V_KD]))
    for j in range(1, 4):
        a(V(f"v_xor_b32 v{V_KD+j}, {64*j}, v{V_KD}", [V_KD], [V_KD+j]))
    a(V(f"v_lshlrev_b32 v{V_T0}, 1, v{V_G}", [V_G], [V_T0]))
    a(V(f"v_xor_b32 v{V_T0}, v{V_N}, v{V_T0}", [V_N, V_T0], [V_T0]))
    a(V(f"v_lshlrev_b32 v{V_T0}, 4, v{V_T0}", [V_T0], [V_T0]))
    a(V(f"v_lshl_add_u32 v{V_VD}, v{V_G}, 8, v{V_T0}", [V_G, V_T0], [V_VD]))
    a(V(f"v_xor_b32 v{V_VD+1}, 128, v{V_VD}", [V_VD], [V_VD+1]))
    a(V(f"v_lshrrev_b32 v{V_T0}, 1, v{V_G}", [V_G], [V_T0]))
    a(V(f"v_add_u32 v{V_T0}, s{S_T1}, v{V_T0}", [V_T0, ('s', S_T1)], [V_T0]))
    a(V(f"v_xor_b32 v{V_T0}, v{V_T0}, v{V_N}", [V_T0, V_N], [V_T0]))
    a(V(f"v_lshlrev_b32 v{V_T0}, 4, v{V_T0}", [V_T0], [V_T0]))
    a(V(f"v_lshl_add_u32 v{V_T0}, v{V_N}, 8, v{V_T0}", [V_N, V_T0], [V_T0]))
    a(V(f"v_and_b32 v{V_T1}, 1, v{V_G}", [V_G], [V_T1]))
    a(V(f"v_lshl_add_u32 v{V_T0}, v{V_T1}, 3, v{V_T0}", [V_T0, V_T1], [V_T0]))
    a(V(f"v_add_u32 v{V_QW}, {QBUF}, v{V_T0}", [V_T0], [V_QW]))
    a(V(f"v_xor_b32 v{V_QW+1}, 32, v{V_QW}", [V_QW], [V_QW+1]))
    a(V(f"v_lshl_add_u32 v{V_CW}, v{V_LANE}, 4, s{S_W8K}", [V_LANE, ('s', S_W8K)], [V_CW]))
    a(V(f"v_add_u32 v{V_CW+1}, {64*KB}, v{V_CW}", [V_CW], [V_CW+1]))
    a(S(f"s_add_u32 s{S_T0}, s{S_W8K}, {102*KB}", [S_W8K], [S_T0]))
    a(V(f"v_lshl_add_u32 v{V_LW}, v{V_LANE}, 5, s{S_T0}", [V_LANE, ('s', S_T0)], [V_LW]))
    a(S(f"s_mul_i32 s{S_T0}, s{S_B}, 640", [S_B], [S_T0]))
    a(S(f"s_lshl_b32 s{S_T2}, s{S_HQ}, 2", [S_HQ], [S_T2]))
    a(S(f"s_add_u32 s{S_T0}, s{S_T0}, s{S_T2}", [S_T0, S_T2], [S_T0]))
    a(S(f"s_add_u32 s{S_T0}, s{S_T0}, s{S_W}", [S_T0, S_W], [S_T0]))
    a(S(f"s_lshl_b32 s{S_T0}, s{S_T0}, 10", [S_T0], [S_T0]))
    a(V(f"v_lshl_add_u32 v{V_OST}, v{V_LANE}, 4, s{S_T0}", [V_LANE, ('s', S_T0)], [V_OST]))
    a(V(f"v_cmp_eq_u32 vcc, 0, v{V_N}", [V_N], [VCC]))
    a(V(f"v_mov_b32 v{V_T0}, 0x3f803f80", [], [V_T0]))
    for i in range(4):
        a(V(f"v_cndmask_b32 v{V_ONES+i}, 0, v{V_T0}, vcc", [V_T0, VCC], [V_ONES+i]))
    for i in range(20):
        a(V(f"v_mov_b32 v{V_NEGM+i}, 0", [], [V_NEGM+i]))
    return o[:n_early], o[n_early:]

V_QACC = V_VF
def AF(kap):
    return [(100, 120), (128, 148), (208, 156)][kap % 3]
def a_reads(kap):
    u, ks = kap >> 1, kap & 1
    c, s = u >> 1, kap & 3
    xf, wf = AF(kap)
    wb = WU(WSLOT[u], ks)
    xr = []
    for q in range(5):
        xb = XU(c, q)
        reg, base = (V_XA, 0) if xb < 64 * KB else (V_XB, 120 * KB)
        xr.append(dsrd('ds_read_b128', ('v', xf + q * 4), 4, reg + s, xb - base))
    wr = []
    for e in range(2):
        for h in range(2):
            reg, base = (V_WA, 40 * KB) if wb < 96 * KB else (V_WB, 96 * KB)
            wr.append(dsrd('ds_read_b64_tr_b16', ('v', wf + e * 4 + h * 2), 2, reg + e, wb - base + h * 1024))
    return wr[:2] + xr[:1] + wr[2:] + xr[1:]
def a_mfmas(kap):
    o = []
    xf, wf = AF(kap)
    for q in range(5):
        for e in range(2):
            d = ('v', V_QACC + (e * 5 + q) * 4)
            o.append(mfma(d, ('v', wf + e * 4), ('v', xf + q * 4), 0 if kap == 0 else d))
    return o
def lane0(sg, body, lab):
    sg.text(f"s_cmp_lg_u32 s{S_W}, 0"); sg.text(f"s_cbranch_scc1 {lab}")
    sg.text(f"s_mov_b64 s[{S_EX}:{S_EX+1}], exec"); sg.text("s_mov_b64 exec, 1")
    for x in body: sg.text(x)
    sg.text(f"s_mov_b64 exec, s[{S_EX}:{S_EX+1}]")
    sg.text(f"{lab}:")
def phase_a(sg, Q):
    stamp(sg, 1)
    sg.add(barrier(needvm=[('x', 0), ('w', 0)])); Q.mark('B0')
    stamp(sg, 2)
    sg.addall(a_reads(0)); sg.addall(a_reads(1))
    sg.add(S(f"s_mov_b32 s{S_T1}, {f2h(QSCALE)}", [], [S_T1]))
    sg.add(S(f"s_mov_b32 s{S_T2}, {f2h(QSCALE)}", [], [S_T2]))
    for kap in range(14 if int(opt.aq) else 16):
        mf = a_mfmas(kap)
        gaps = [[] for _ in mf]
        nx = kap + 2
        if nx < 16:
            if nx % 2 == 0:
                u = nx >> 1
                need = [('x', u >> 1), ('w', u)]
                while any(it.ins.vmtag in need for it in Q.q):
                    n_ = len(Q.q); weave(sg, Q, [], 1, 0); assert len(Q.q) < n_, (u, Q.q[0].after)
                while True:
                    younger = 0
                    for tg, _w in reversed(sg.vm):
                        if tg in need: break
                        younger += 1
                    n_ = len(Q.q)
                    if younger >= int(opt.la): break
                    weave(sg, Q, [], 1, 0)
                    if len(Q.q) == n_: break
                dr = str(u) in str(opt.drain)
                sg.add(barrier(needvm=need, lg0=dr)); Q.mark(f'B{u}')
                if dr: Q.mark(f'B{u+1}')
                if u in (1, 3, 5, 7): stamp(sg, 5 + u // 2, 'A')
            for i, r in enumerate(a_reads(nx)): gaps[i].append(r)
        mf[0].r |= set(R('v', AF(kap)[0], 20) + R('v', AF(kap)[1], 8))
        pos = [1, 5, 9] if kap % 2 == 0 else [3, 7]
        if int(opt.perstep) == 6: pos = [1, 4, 7] if kap % 2 == 0 else [1, 4, 8]
        if int(opt.perstep) == 7: pos = [1, 4, 6, 9] if kap % 2 == 0 else [2, 5, 8]
        if int(opt.perstep) == 8: pos = [1, 4, 6, 9]
        nkv = sum(1 for it in Q.q if it.ins.vmtag[0] in 'kv')
        room = int(opt.alim) - (128 - nkv) + (len(Q.q) - nkv)
        place(gaps, Q, pos[:max(0, room)])
        if int(opt.aonly): sg.addall([x for x in interleave(mf, gaps) if x.k not in ('mfma', 'dsrd')])
        else: sg.addall(interleave(mf, gaps))
    def qfin(q, e, packed):
        b = V_QACC + (e * 5 + q) * 4
        if packed: f_ = [V(f"v_pk_mul_f32 v[{b+r}:{b+r+1}], v[{b+r}:{b+r+1}], s[{S_T1}:{S_T1+1}]", [b+r, b+r+1], [b+r, b+r+1]) for r in (0, 2)]
        else: f_ = [V(f"v_mul_f32 v{b+r}, s{S_T1}, v{b+r}", [b+r], [b+r]) for r in range(4)]
        f_.append(V(f"v_cvt_pk_bf16_f32 v{b}, v{b}, v{b+1}", [b, b+1], [b]))
        f_.append(V(f"v_cvt_pk_bf16_f32 v{b+1}, v{b+2}, v{b+3}", [b+2, b+3], [b+1]))
        f_.append(dswr('ds_write_b64', V_QW + e, ('v', b), 2, q * 4096, lgtag='qw'))
        return f_
    todo = [(q, e) for q in range(5) for e in range(2)]
    if int(opt.aq):
        m14, m15 = a_mfmas(14), a_mfmas(15)
        m14[0].r |= set(R('v', AF(14)[0], 20) + R('v', AF(14)[1], 8))
        mf = flat([[m14[k], m15[k]] for k in range(10)])
        gaps = [[] for _ in mf]
        gi = 5
        while todo and gi + 3 <= 19:
            f_ = qfin(*todo.pop(0), False)
            gaps[gi] += f_[0:2]; gaps[gi + 1] += f_[2:4]; gaps[gi + 2] += f_[4:6]; gaps[gi + 3] = [f_[6]] + gaps[gi + 3]
            gi += 3
        nkv = sum(1 for it in Q.q if it.ins.vmtag[0] in 'kv')
        place(gaps, Q, [1, 4][:max(0, int(opt.alim) - (128 - nkv))])
        sg.addall(interleave(mf, gaps))
    stamp(sg, 9, 'A')
    for q, e in todo: sg.addall(qfin(q, e, True))
    while any(it.ins.vmtag in (('k', 0, 0), ('k', 0, 1)) for it in Q.q): weave(sg, Q, [], 1, 0)
    b = barrier(lg0=False); b.needlg = ('qw',)
    sg.addall(k_reads(0)); Q.mark(('kr', 0, 0)); Q.mark(('kr', 0, 1))
    sg.add(b); Q.mark('BQ'); Q.mark('B8')
    qr = [dsrd('ds_read_b128', AQ(q, s), 4, V_XB + s, QBUF - 120 * KB + q * 4096) for q in range(5) for s in range(4)]
    return qr

def TQ(tau):
    return divmod(tau, 5) if tau < 30 else (6 + ((tau - 30) & 1), (tau - 30) >> 1)
def qk(tau):
    i, q = TQ(tau)
    o = []
    for s, t in ([(s, t) for t in range(2) for s in range(4)] if int(opt.chain) else [(s, t) for s in range(4) for t in range(2)]):
        if True:
            d = ('v', V_S + (tau & 1) * 8 + t * 4)
            o.append(mfma(d, KF(i, t * 4 + s), AQ(q, s), ('v', V_NEGM + q * 4) if s == 0 else d))
            if s == 0 and int(opt.coal) and tau > 4: o[-1].r |= set(R(*KF(i, t * 4), 16))
    return o
def pv(tau):
    i, q = TQ(tau)
    p = ('v', V_P + (tau & 1) * 4)
    o = [mfma(AO(lam, q), ('v', V_VF + (i & 1) * 32 + lam * 4), p, AO(lam, q) if i else 0) for lam in range(8)]
    if int(opt.coal) and 0 < i < 7: o[0].r |= set(R('v', V_VF + (i & 1) * 32, 24)); o[5].r |= set(R('v', V_VF + (i & 1) * 32 + 24, 8))
    o.insert(0, mfma(LA(q), ('v', V_ONES), p, LA(q) if i else 0))
    return o
def sm(tau):
    b = V_S + (tau & 1) * 8
    p = V_P + (tau & 1) * 4
    e = [T(f"v_exp_f32 v{b+i}, v{b+i}", [b+i], [b+i]) for i in range(8)]
    c = [V(f"v_cvt_pk_bf16_f32 v{p+i}, v{b+2*i}, v{b+2*i+1}", [b+2*i, b+2*i+1], [p+i]) for i in range(4)]
    return e, c
def comb_writes(q):
    o = []
    for jd in range(1, 4):
        for e in range(2):
            u = q * 6 + (jd - 1) * 2 + e
            row = u >> 3
            o.append(dswr('ds_write_b128', V_CW + (row >> 1), AO(2 * jd + e, q), 4, (row & 1) * 32 * KB + (u & 7) * KB, lgtag=('cw', q)))
    o.insert(0, dswr('ds_write_b32', V_LW, LA(q), 1, [0, 4, 16, 20, 24][q], lgtag=('cw', q)))
    return o

def wo_dma(pos, after=None):
    o = []
    for ks in range(4):
        for half in range(2):
            base = (128 * KB if pos < 0 else pos * 32 * KB) + ks * 8 * KB + half * 4 * KB
            if pos < 0:
                pre = [S(f"s_lshl_b32 s{S_SK}, s{S_J}, 17", [S_J], [S_SK])] if ks + half == 0 else []
                h = S_SK
            else: pre, h = [], S_H + pos
            pre += [S(f"s_add_u32 s{S_SO}, s{h}, {ks*32768 + half*16384}", [h], [S_SO]), S(f"s_add_u32 m0, s{S_W1K}, {base}", [S_W1K], [M0])]
            o.append(Item(pre, dma(V_WOD, S_WO, S_SO, 0, ('wo', pos)), after))
    return o
def osib_dma(pos):
    o = []
    for q in range(5):
        pre = [S(f"s_lshr_b32 s{S_SK}, s{S_H+pos}, 5", [S_H+pos], [S_SK])] if q == 0 else []
        pre += [S(f"s_add_u32 s{S_SO}, s{S_SK}, {q*128*KB}", [S_SK], [S_SO]), S(f"s_add_u32 m0, s{S_W5K}, {(140 - 20*pos + q)*KB}", [S_W5K], [M0])]
        o.append(Item(pre, dma(V_OD, S_O, S_SO, 0, ('os', pos), flags=' sc1')))
    return o
def tail_calc():
    o = []; a = o.append
    T0, T1, T2 = 252, 253, 254
    a(V(f"v_lshlrev_b32 v{T0}, 4, v{V_LANE}", [V_LANE], [T0]))
    for jd in range(1, 4):
        a(S(f"s_sub_u32 s{S_T0}, s{S_W}, {jd}", [S_W], [S_T0]))
        a(S(f"s_and_b32 s{S_T0}, s{S_T0}, 3", [S_T0], [S_T0]))
        a(S(f"s_lshl_b32 s{S_T0}, s{S_T0}, 13", [S_T0], [S_T0]))
        a(V(f"v_add_u32 v{V_CR+2*(jd-1)}, s{S_T0}, v{T0}", [T0, ('s', S_T0)], [V_CR+2*(jd-1)]))
        a(V(f"v_add_u32 v{V_CR+2*(jd-1)+1}, {64*KB}, v{V_CR+2*(jd-1)}", [V_CR+2*(jd-1)], [V_CR+2*(jd-1)+1]))
    a(V(f"v_add_u32 v{V_OL}, {96*KB}, v{T0}", [T0], [V_OL]))
    a(V(f"v_add_u32 v{V_OW}, s{S_W5K}, v{V_OL}", [V_OL, ('s', S_W5K)], [V_OW]))
    a(S(f"s_mov_b32 s{S_T0}, {102*KB}", [], [S_T0]))
    a(V(f"v_lshl_add_u32 v{V_LR}, v{V_N}, 5, s{S_T0}", [V_N, ('s', S_T0)], [V_LR]))
    a(S(f"s_add_u32 s{S_T0}, s{S_W8K}, {64*KB}", [S_W8K], [S_T0]))
    for e in range(2):
        a(V(f"v_subrev_u32 v{V_WT+e}, s{S_T0}, v{V_VA+e}", [V_VA+e, ('s', S_T0)], [V_WT+e]))
        a(V(f"v_add_u32 v{V_WT+2+e}, {64*KB}, v{V_WT+e}", [V_WT+e], [V_WT+2+e]))
        a(V(f"v_add_u32 v{V_WT+4+e}, {128*KB}, v{V_WT+e}", [V_WT+e], [V_WT+4+e]))
    for k in range(5): a(S(f"s_mov_b32 s{S_TAB+k}, {k*8192}", [], [S_TAB+k]))
    return o
def handoff_calc():
    o = []; a = o.append
    T0, T1, T2, T3 = 252, 253, 254, 9
    a(S(f"s_lshl_b32 s{S_T0}, s{S_J}, 12", [S_J], [S_T0]))
    a(V(f"v_subrev_u32 v{V_OD}, s{S_T0}, v{V_OST}", [V_OST, ('s', S_T0)], [V_OD]))
    a(S(f"s_lshl_b32 s{S_T0}, s{S_B}, 2", [S_B], [S_T0]))
    a(S(f"s_add_u32 s{S_T0}, s{S_T0}, s{S_J}", [S_T0, S_J], [S_T0]))
    a(S(f"s_mul_i32 s{S_T0}, s{S_T0}, {20*8*KB}", [S_T0], [S_T0]))
    a(S(f"s_mul_i32 s{S_T1}, s{S_W}, {5*8*KB}", [S_W], [S_T1]))
    a(S(f"s_lshl_b32 s{S_T2}, s{S_HKV}, 10", [S_HKV], [S_T2]))
    a(S(f"s_add_u32 s{S_T2}, s{S_T2}, s{S_T1}", [S_T2, S_T1], [S_T2]))
    a(S(f"s_add_u32 s{S_T2}, s{S_T2}, s{S_T0}", [S_T2, S_T0], [S_T2]))
    a(V(f"v_lshl_add_u32 v{V_PS}, v{V_LANE}, 4, s{S_T2}", [V_LANE, ('s', S_T2)], [V_PS]))
    tr = int(opt.otr)
    if tr:
        a(S(f"s_mul_i32 s{S_T1}, s{S_HKV}, 160", [S_HKV], [S_T1]))
        a(V(f"v_add_u32 v{T0}, s{S_T1}, v0", [0, ('s', S_T1)], [T0]))
    else:
        a(S(f"s_lshl_b32 s{S_T1}, s{S_HKV}, 2", [S_HKV], [S_T1]))
        a(S(f"s_add_u32 s{S_T1}, s{S_T1}, s{S_W}", [S_T1, S_W], [S_T1]))
        a(S(f"s_mul_i32 s{S_T1}, s{S_T1}, 40", [S_T1], [S_T1]))
        a(V(f"v_add_u32 v{T0}, s{S_T1}, v{V_LANE}", [V_LANE, ('s', S_T1)], [T0]))
    a(V(f"v_bfe_u32 v{T1}, v{T0}, 5, 1", [T0], [T1]))
    a(V(f"v_and_b32 v{T2}, 7, v{T0}", [T0], [T2]))
    a(V(f"v_lshl_add_u32 v{T1}, v{T1}, 3, v{T2}", [T1, T2], [T1]))
    a(V(f"v_bfe_u32 v{T2}, v{T0}, 3, 2", [T0], [T2]))
    a(V(f"v_lshrrev_b32 v{T0}, 6, v{T0}", [T0], [T0]))
    a(V(f"v_lshl_add_u32 v{T3}, v{T2}, 4, v{T1}", [T1, T2], [T3]))
    a(V(f"v_lshl_add_u32 v{V_PLD}, v{T3}, 4, s{S_T0}", [T3, ('s', S_T0)], [V_PLD]))
    a(V(f"v_lshl_add_u32 v{V_PLD}, v{T0}, 13, v{V_PLD}", [T0, V_PLD], [V_PLD]))
    a(V(f"v_mul_u32_u24 v{T3}, 52, v{T0}", [T0], [T3]))
    a(V(f"v_lshrrev_b32 v{T3}, 8, v{T3}", [T3], [T3]))
    if tr:
        a(V(f"v_and_b32 v{T1}, 8, v{T1}", [T1], [T1]))
        a(V(f"v_bfe_u32 v{T2}, v0, 2, 3", [0], [T2]))
        a(V(f"v_add_u32 v{T1}, v{T1}, v{T2}", [T1, T2], [T1]))
        a(V(f"v_and_b32 v{T2}, 3, v0", [0], [T2]))
    a(V(f"v_lshlrev_b32 v{T2}, {4 if tr else 3}, v{T2}", [T2], [T2]))
    a(V(f"v_lshl_add_u32 v{T2}, v{T3}, 6, v{T2}", [T3, T2], [T2]))
    a(V(f"v_lshl_add_u32 v{T2}, v{T1}, 10, v{T2}", [T1, T2], [T2]))
    a(V(f"v_mul_u32_u24 v{T3}, 5, v{T3}", [T3], [T3]))
    a(V(f"v_sub_u32 v{T0}, v{T0}, v{T3}", [T0, T3], [T0]))
    a(V(f"v_lshl_add_u32 v{T2}, v{T0}, 14, v{T2}", [T0, T2], [T2]))
    a(S(f"s_mul_i32 s{S_T0}, s{S_B}, 81920", [S_B], [S_T0]))
    a(S(f"s_lshl_b32 s{S_T2}, s{S_J}, 8", [S_J], [S_T2]))
    a(S(f"s_add_u32 s{S_T0}, s{S_T0}, s{S_T2}", [S_T0, S_T2], [S_T0]))
    a(V(f"v_add_u32 v{V_OUT}, s{S_T0}, v{T2}", [T2, ('s', S_T0)], [V_OUT]))
    a(V(f"v_cmp_gt_u32 vcc, 160, v0", [0], [VCC]) if tr else V(f"v_cmp_gt_u32 vcc, 40, v{V_LANE}", [V_LANE], [VCC]))
    a(V(f"v_mov_b32 v{T0}, 0x7ff00000", [], [T0]))
    a(V(f"v_cndmask_b32 v{V_PLD}, v{T0}, v{V_PLD}, vcc", [T0, V_PLD, VCC], [V_PLD]))
    a(V(f"v_cndmask_b32 v{V_OUT}, v{T0}, v{V_OUT}, vcc", [T0, V_OUT, VCC], [V_OUT]))
    for pv_, n_, sh, sg_ in ((V_P1, 4, 9, S_G1), (V_P2, 8, 11, S_G2)):
        a(V(f"v_lshl_add_u32 v{pv_}, v{V_LANE}, {sh}, s{sg_}", [V_LANE, ('s', sg_)], [pv_]))
        a(V(f"v_cmp_gt_u32 vcc, {n_}, v{V_LANE}", [V_LANE], [VCC]))
        a(V(f"v_cndmask_b32 v{pv_}, v{T0}, v{pv_}, vcc", [T0, pv_, VCC], [pv_]))
    return o
def wod_calc():
    o = []; a = o.append
    T0, T1 = 252, 253
    a(S(f"s_lshl_b32 s{S_T0}, s{S_B}, 2", [S_B], [S_T0]))
    a(S(f"s_add_u32 s{S_T0}, s{S_T0}, s{S_W}", [S_T0, S_W], [S_T0]))
    a(S(f"s_lshl_b32 s{S_T0}, s{S_T0}, 14", [S_T0], [S_T0]))
    a(S(f"s_lshl_b32 s{S_T2}, s{S_J}, 8", [S_J], [S_T2]))
    a(S(f"s_add_u32 s{S_T0}, s{S_T0}, s{S_T2}", [S_T0, S_T2], [S_T0]))
    a(V(f"v_bfe_u32 v{T0}, v{V_LANE}, 1, 4", [V_LANE], [T0]))
    a(V(f"v_and_b32 v{T1}, 1, v{V_LANE}", [V_LANE], [T1]))
    a(V(f"v_lshlrev_b32 v{T1}, 7, v{T1}", [T1], [T1]))
    a(V(f"v_lshl_add_u32 v{T0}, v{T0}, 10, v{T1}", [T0, T1], [T0]))
    a(V(f"v_add_u32 v{V_TCH}, s{S_T0}, v{T0}", [T0, ('s', S_T0)], [V_TCH]))
    a(S(f"s_and_b32 s{S_T0}, s{S_W}, 1", [S_W], [S_T0]))
    a(S(f"s_lshl_b32 s{S_T0}, s{S_T0}, 3", [S_T0], [S_T0]))
    a(V(f"v_lshl_add_u32 v{T0}, v{V_G}, 1, s{S_T0}", [V_G, ('s', S_T0)], [T0]))
    a(V(f"v_xor_b32 v{T0}, v{V_N}, v{T0}", [V_N, T0], [T0]))
    a(S(f"s_lshl_b32 s{S_T0}, s{S_J}, 8", [S_J], [S_T0]))
    a(V(f"v_lshl_add_u32 v{T0}, v{T0}, 4, s{S_T0}", [T0, ('s', S_T0)], [T0]))
    a(V(f"v_lshl_add_u32 v{T1}, s{S_W}, 2, v{V_G}", [V_G, ('s', S_W)], [T1]))
    a(V(f"v_lshl_add_u32 v{V_WOD}, v{T1}, 10, v{T0}", [T0, T1], [V_WOD]))
    return o

def phase_b(sg, Q, qr):
    NT = 8
    calc = wod_calc() + tail_calc()
    sg.addall(qr[:4])
    qr = qr[4:]
    for tau in range(-1, 40):
        i, q = divmod(tau, 5) if tau >= 0 else (-1, 4)
        mf = []
        bst = [int(x) for x in opt.bst.split(',')]
        if tau in bst: stamp(sg, 5 + bst.index(tau), 'B')
        if tau + 1 < 40: mf += qk(tau + 1)
        if tau - 1 >= 0: mf += pv(tau - 1)
        ds, marks = [], []
        if tau == -1: ds = qr
        elif tau == 0: ds = v_reads(0); marks = [('vr', 0, 0), ('vr', 0, 1)]
        elif tau < 27:
            if q == 2: ds = k_reads(i + 1)[:4]; marks = [('kr', i + 1, 0)]
            if q == 3: ds = k_reads(i + 1)[4:] + v_reads(i + 1)[:2]; marks = [('kr', i + 1, 1)]
            if q == 4: ds = v_reads(i + 1)[2:8]; marks = [('vr', i + 1, 0)]
            if q == 0: ds = v_reads(i)[8:14]
            if q == 1 and i > 0: ds = v_reads(i)[14:]; Q.mark(('vr', i, 1))
        xp = None
        if tau >= 27:
            k6, k7, v6, v7 = k_reads(6), k_reads(7), v_reads(6), v_reads(7)
            vo = [v7[l + 8 * h] for l in range(8) for h in range(2)]
            G = [1, 3, 5, 7, 9, 11, 13, 15, 16]
            def cwp(q_, second):
                w_ = comb_writes(q_)
                if int(opt.w64) and q_ < 2:
                    h_ = []
                    for x in w_[1:]:
                        m_ = re.match(r"ds_write_b128 v(\d+), a\[(\d+):\d+\] offset:(\d+)", x.t)
                        for z in range(2): h_.append(dswr('ds_write_b64', int(m_.group(1)), ('a', int(m_.group(2)) + 2 * z), 2, int(m_.group(3)) + 8 * z, lgtag=x.lgtag))
                    return list(zip([1, 3, 5, 9, 13, 16], h_[6:])) if second else list(zip([7, 1, 3, 5, 9, 13, 16], [w_[0]] + h_[:6]))
                return list(zip([1, 9, 13], w_[4:])) if second else list(zip([7, 1, 9, 13], w_[:4]))
            xp = {27: list(zip([3, 5, 9, 11, 15, 16], k6[:4] + v6[:2])),
                  28: list(zip([1, 3, 5, 7, 9, 11, 13, 15, 16], k6[4:] + k7[:5])),
                  29: list(zip(G, k7[5:] + v6[2:8])),
                  30: list(zip([1, 3, 5, 7, 9, 11, 13, 15, 16, 16], v6[8:] + vo[:2])),
                  31: list(zip([1, 1, 3, 5, 5, 7, 9, 9, 11, 13, 13, 15, 16, 16], vo[2:])),
                  32: [], 33: cwp(0, 0), 34: cwp(0, 1), 35: cwp(1, 0), 36: cwp(1, 1), 37: cwp(2, 0),
                  38: cwp(2, 1) + list(zip([3, 5, 5, 7, 11, 15, 16, 16], lreads((0, 1)) + preads(0)[:4])),
                  39: list(zip([0, 2, 4, 6], comb_writes(3)[:4])) + list(zip([1, 1, 3, 3, 5, 5, 7, 7], preads(0)[4:] + preads(1)))}[tau]
            ds = [x for _, x in xp]; marks = []
            if tau == 38:
                b = barrier(needvm=[('wo', -1)], lg0=False); b.needlg = (('cw', 0), ('cw', 1)); sg.add(b)
        n = len(mf)
        gaps = [[] for _ in range(n)]
        e, c = sm(tau) if 0 <= tau < 40 else ([], [])
        if n == 17:
            epos = [0, 2, 4, 6, 8, 10, 12, 14]; cpos = [3, 7, 11, 15]
            dpos = [1, 3, 5, 7, 9, 11, 13, 15] if len(ds) > 4 else [1, 3, 5, 7]
            if ds and ds[0].k == 'dswr': dpos = [1, 1, 3, 7, 9, 13, 16]
            vpos = [1, 5, 9, 13] if (tau < int(opt.even_at) or q == 1) else [1, 7, 13]
            if int(opt.bsched) and not (ds and ds[0].k == 'dswr'):
                if q == 1: dpos, vpos = [1, 3], [5, 9, 13, 16]
                elif tau < int(opt.even_at) or tau >= int(opt.even_end): dpos, vpos = ([3, 7, 11, 15, 16, 16] if q != 3 else [1, 3, 7, 11, 15, 16]), ([1, 5, 9, 13] if q != 3 else [5, 9, 13, 16])
                else: dpos, vpos = [3, 5, 9, 11, 15, 16], [1, 7, 13]
        else:
            epos = list(range(8)); cpos = [min(n - 1, x) for x in (2, 4, 6, 8)]
            dpos = [(k * n) // max(1, len(ds)) for k in range(len(ds))]
            vpos = [1, 5]
        if xp is not None:
            dpos = [g_ for g_, _ in xp]; vpos = [7, 11, 15] if tau >= 32 else [13]
            if tau == 27: vpos = [1, 7, 13]
        for x, p_ in zip(ds, dpos): gaps[p_].append(x)
        if tau == int(opt.nl_at):
            sg.add(V("v_mov_b32 v9, 0", [], [9]))
            Q.q.insert(0, Item([], vload(('v', V_GC), 2, 9, S_D, None, 0, flags=' sc1', tag='non')))
        if tau == int(opt.nc_at):
            assert not any(it.ins.vmtag == 'non' for it in Q.q)
            sg.add(V(f"v_readfirstlane_b32 s{S_NON}, v{V_GC}", [V_GC], [('s', S_NON)]))
            sg.add(V(f"v_readfirstlane_b32 s{S_NON+1}, v{V_GC+1}", [V_GC+1], [('s', S_NON+1)]))
            sg.add(S(f"s_cmp_eq_u64 s[{S_NON}:{S_NON+1}], 0", [S_NON, S_NON+1], []))
            sg.text("s_cbranch_scc1 L_spin_n"); sg.text("L_back_n:")
        if tau == 32: stamp_out(sg, 1) if opt.stamps == 'Z' else None
        if tau == int(opt.bar_at): sg.add(barrier(lg0=False))
        for x in ds:
            while any(it.ins.vmtag in x.needvm for it in Q.q): weave(sg, Q, [], 1, 0)
        if tau == int(opt.tch_at): Q.push([Item([], vload(('v', V_TCH + 1), 1, V_TCH, S_WO, None, 0, flags=opt.tch_flags))])
        if tau == int(opt.tlb_at):
            Q.push([Item([], vload(('v', 72), 1, V_ZERO, S_C, S_F1, 0, flags=' sc1')), Item([], vload(('v', 73), 1, V_ZERO, S_C, S_F2, 0, flags=' sc1'))])
        if tau == int(opt.otch_at): Q.push([Item([], vload(('v', 66), 1, V_OUT, S_OUT, None, 0, flags=opt.otch_flags))])
        if tau == int(opt.wo_at): assert not calc; Q.push(wo_dma(-1))
        place(gaps, Q, vpos)
        for x, p_ in zip(e, epos): gaps[p_].append(x)
        for x, p_ in zip(c, cpos): gaps[p_].append(x)
        if tau >= int(opt.calc_at) and n == 17:
            for gi in range(17):
                if calc and calc[0].k == 'salu' and not any(y.k == 'salu' for y in gaps[gi]): gaps[gi].insert(0, calc.pop(0))
                cost = sum(8 if y.k == 'trans' else 0 if y.k == 'salu' else 4 for y in gaps[gi])
                while calc and calc[0].k != 'salu' and cost <= 4: gaps[gi].append(calc.pop(0)); cost += 4
        sg.addall(interleave(mf, gaps))
        for m in marks: Q.mark(m)

def poll(sg, lab, vaddr):
    sg.text(f"s_mov_b32 s{S_SPIN}, {opt.spin}")
    sg.text(f"{lab}:")
    sg.text(f"buffer_load_dwordx2 v[250:251], v{vaddr}, s[{S_C}:{S_C+3}], 0 offen sc1")
    sg.text(f"s_sub_u32 s{S_SPIN}, s{S_SPIN}, 1")
    sg.text("s_waitcnt vmcnt(0)")
    sg.text(f"v_cmp_ne_u64 vcc, s[{S_NON}:{S_NON+1}], v[250:251]")
    sg.text(f"s_cmp_eq_u32 s{S_SPIN}, 0")
    sg.text(f"s_cbranch_scc1 {lab}_done")
    sg.text("s_nop 2")
    sg.text(f"s_cbranch_vccnz {lab}")
    sg.text(f"{lab}_done:")
    sg.vm = []
def raise_flag(sg, stage, tag):
    ins = vstore(('v', V_GC), 2, V_P1 if stage == 1 else V_P2, S_C, None, 0, flags=' sc1')
    ins.needvm = (tag,)
    sg.add(ins)
WOF = A_Q
RES = 100
def part(q, k):
    if q == 0: return 36 + 4 * k if k < 4 else 64 + 4 * (k - 4)
    return {1: 100, 2: 164, 3: 188, 4: 100}[q] + 4 * k
def preads(q):
    o = []
    for jd in range(1, 4):
        for e in range(2):
            k = (jd - 1) * 2 + e; u = q * 6 + k; row = u >> 3
            o.append(dsrd('ds_read_b128', ('v', part(q, k)), 4, V_CR + 2 * (jd - 1) + (row >> 1), (row & 1) * 32 * KB + (u & 7) * KB))
    return o
LSA, LSB = 124, 76
def lreads(qs):
    if qs == (0, 1): return [dsrd('ds_read_b64', ('v', LSA + src * 2), 2, V_LR, src * 8 * KB) for src in range(4)]
    if qs == (2, 3): return [dsrd('ds_read_b64', ('v', LSB + src * 4), 2, V_LR, src * 8 * KB + 16) for src in range(4)]
    if qs == (4,): return [dsrd('ds_read_b32', ('v', LSB + src * 4 + 2), 1, V_LR, src * 8 * KB + 24) for src in range(4)]
    return [dsrd('ds_read_b128', ('v', LSB + src * 4), 4, V_LR, src * 8 * KB + 16) for src in range(4)]
def lsum(qs):
    w = []
    def lr(src, q): return LSA + src * 2 + q if q < 2 else LSB + src * 4 + q - 2
    LS = lr(0, qs[0])
    for q in qs:
        d = V_T0 + q
        w.append(V(f"v_add_f32 v{d}, v{lr(0,q)}, v{lr(1,q)}", [lr(0,q), lr(1,q)], [d]))
        w.append(V(f"v_add_f32 v{lr(2,q)}, v{lr(2,q)}, v{lr(3,q)}", [lr(2,q), lr(3,q)], [lr(2,q)]))
        w.append(V(f"v_add_f32 v{d}, v{d}, v{lr(2,q)}", [d, lr(2,q)], [d]))
    lo_, hi_ = LS, LS + 1
    if len(qs) == 1: lo_ = hi_ = V_T0 + qs[0]
    else:
        a_, b_, c_ = V_T0 + qs[0], V_T0 + qs[1], V_T0 + qs[-1]
        w.append(V(f"v_min3_f32 v{LS}, v{a_}, v{b_}, v{c_}", [a_, b_, c_], [LS]))
        w.append(V(f"v_add_f32 v{LS+1}, v{a_}, v{b_}", [a_, b_], [LS+1]))
        if len(qs) == 3: w.append(V(f"v_add_f32 v{LS+1}, v{LS+1}, v{c_}", [LS+1, c_], [LS+1]))
    w.append(V(f"v_cmp_nle_f32 vcc, {f2h(2.0**int(opt.lo_exp))}, v{lo_}", [lo_], [VCC]))
    w.append(S(f"s_mov_b64 s[{S_EX}:{S_EX+1}], vcc", [VCC], [S_EX, S_EX+1]))
    w.append(V(f"v_cmp_nge_f32 vcc, {f2h(2.0**int(opt.hi_exp))}, v{hi_}", [hi_], [VCC]))
    w.append(S(f"s_or_b64 vcc, vcc, s[{S_EX}:{S_EX+1}]", [VCC, S_EX, S_EX+1], [VCC]))
    w.append(S(f"s_and_b64 vcc, vcc, s[{S_GM}:{S_GM+1}]", [VCC], [VCC]))
    w.append(raw("s_cbranch_vccnz L_redo"))
    for q in qs: w.append(T(f"v_rcp_f32 v{V_T0+q}, v{V_T0+q}", [V_T0+q], [V_T0+q]))
    return w
def finish(q):
    w = []
    for e in range(2):
        o_ = V_OWN[q] + e * 4
        for jd in range(1, 4):
            p_ = part(q, (jd - 1) * 2 + e)
            for r in (0, 2):
                w.append(V(f"v_pk_add_f32 v[{o_+r}:{o_+r+1}], v[{o_+r}:{o_+r+1}], v[{p_+r}:{p_+r+1}]", [o_+r, o_+r+1, p_+r, p_+r+1], [o_+r, o_+r+1]))
    o_ = V_OWN[q]
    ri = V_T0 + (q & ~1); sel = "op_sel:[0,1] op_sel_hi:[1,1]" if q & 1 else "op_sel:[0,0] op_sel_hi:[1,0]"
    for r in range(0, 8, 2):
        w.append(V(f"v_pk_mul_f32 v[{o_+r}:{o_+r+1}], v[{o_+r}:{o_+r+1}], v[{ri}:{ri+1}] {sel}", [o_+r, o_+r+1, V_T0+q], [o_+r, o_+r+1]))
    for r in range(4):
        w.append(V(f"v_cvt_pk_bf16_f32 v{o_+r}, v{o_+2*r}, v{o_+2*r+1}", [o_+2*r, o_+2*r+1], [o_+r]))
    w.append(S(f"s_mov_b32 s{S_SV}, {q*128*KB}", [], [S_SV]))
    w.append(vstore(('v', o_), 4, V_OST, S_O, S_SV, 0, flags=opt.o_flags, tag='ost'))
    return w
def wor():
    return [dsrd('ds_read_b64_tr_b16', ('a', WOF + (ks * 2 + e) * 4 + h * 2), 2, V_WT + 4 + e, ks * 8 * KB + h * 4096) for ks in range(4) for e in range(2) for h in range(2)]
def combine(sg, Q):
    assert not Q.q
    mf = pv(39); gaps = [[] for _ in mf]
    wr = comb_writes(3)[4:]; ls = lsum((0, 1))
    for k, x in enumerate(wr): gaps[3 * k].append(x)
    k = 0
    for gi in range(9):
        n_ = 2 - len(gaps[gi])
        while ls and (n_ > 0 or ls[0].k == 'salu') and gi < 9:
            x = ls.pop(0); gaps[gi].append(x)
            n_ -= 0 if x.k == 'salu' else 2 if x.k == 'trans' else 1
    sg.addall(interleave(mf, gaps))
    stamp(sg, 4)
    if int(opt.c3):
        sg.addall(ls + finish(0))
        b = barrier(lg0=False); b.needlg = (('cw', 2), ('cw', 3)); sg.add(b)
        w4 = comb_writes(4)
        rd = lreads((2, 3)) + preads(2) + preads(3)
        for k in range(len(rd)):
            sg.add(rd[k])
            if k % 3 == 1 and w4: sg.add(w4.pop(0))
        w = finish(1) + lsum((2, 3)) + finish(2)
        for k, x in enumerate(w4): w.insert(4 + 8 * k, x)
        sg.addall(w)
        sg.add(barrier())
        stamp(sg, 5)
        Q.push(wo_dma(0))
        rd = lreads((4,)) + preads(4)
        weave(sg, Q, rd, int(opt.cw), 5)
        sg.addall(rd + finish(3) + lsum((4,)) + finish(4))
        stamp(sg, 6)
        return
    w4 = comb_writes(4)
    w = ls + finish(0) + finish(1)
    for k, x in enumerate(w4): w.insert(min(len(w), 6 + k * 6), x)
    sg.addall(w)
    sg.add(barrier())
    stamp(sg, 5)
    Q.push(wo_dma(0))
    rd = lreads((2, 3, 4)) + preads(2) + preads(3)
    weave(sg, Q, rd, int(opt.cw), 2)
    sg.addall(rd)
    w = lsum((2, 3, 4)) + preads(4) + finish(2) + finish(3) + finish(4)
    if not int(opt.worlate):
        for k, x in enumerate(wor()): w.insert(30 + 3 * k, x)
    sg.addall(w)
    stamp(sg, 6)

def phase_c(sg, Q):
    a = sg.add
    ACC = 164
    a(barrier())
    stamp(sg, 5, 'D')
    for q in range(5): a(dswr('ds_write_b128', V_OW, ('v', V_OWN[q]), 4, q * KB))
    Q.push(wo_dma(1) + wo_dma(2))
    wr_ = wor() if int(opt.worlate) else []
    weave(sg, Q, wr_, int(opt.shadow), 3)
    sg.addall(wr_)
    stamp(sg, 6, 'D')
    a(barrier())
    def CF(k): return [(100, 120), (64, 84), (204, 36)][k % 3]
    def c_reads(k):
        pos, ks = divmod(k, 4); pos -= 1
        xf, wf = CF(k)
        ob = 0 if pos < 0 else (44 - 20 * pos) * KB
        xr = [dsrd('ds_read_b128', ('v', xf + q * 4), 4, V_OL, ob + (ks * 5 + q) * KB) for q in range(5)]
        if pos < 0: return xr
        wb = (pos * 4 + ks) * 8 * KB
        wr = [dsrd('ds_read_b64_tr_b16', ('v', wf + e * 4 + h * 2), 2, V_WT + (2 if wb >= 64 * KB else 0) + e, (wb % (64 * KB)) + h * 4096) for e in range(2) for h in range(2)]
        return wr[:2] + xr[:1] + wr[2:] + xr[1:]
    def c_mfmas(k):
        xf, wf = CF(k)
        ff = 'v'
        if k < 4: wf, ff = WOF + k * 8, 'a'
        o = []
        for q in range(5):
            for e in range(2):
                d = ('v', ACC + (q * 2 + e) * 4)
                o.append(mfma(d, (ff, wf + e * 4), ('v', xf + q * 4), 0 if k == 0 else d))
        o[0].r |= set(R('v', xf, 20) + R(ff, wf, 8))
        return o
    def step(k, nx, pos=()):
        mf = c_mfmas(k); gaps = [[] for _ in mf]
        if nx is not None:
            for i, r in enumerate(c_reads(nx)): gaps[i].append(r)
        place(gaps, Q, pos)
        sg.addall(interleave(mf, gaps))
    def own_steps():
        for k in range(4): step(k, k + 2 if k < 2 else None, [1, 5, 9] if k % 2 == 0 else [3, 7])
    sg.addall(c_reads(0)); sg.addall(c_reads(1))
    raise_flag(sg, 1, 'ost')
    stamp(sg, 7, 'D'); stamp(sg, 7)
    weave(sg, Q, [], min(len(Q.q), int(opt.pf)), 0)
    held = Q.q; Q.q = []
    stamp(sg, 8, 'D')
    t = [f"s_mov_b32 s{S_SPIN}, {opt.spin}", "L_poll1:", f"s_load_dwordx8 s[4:11], s[{S_C}:{S_C+1}], s{S_F1} glc", f"s_sub_u32 s{S_SPIN}, s{S_SPIN}, 1", "s_waitcnt lgkmcnt(0)",
         f"s_cmp_eq_u32 s{S_SPIN}, 0", "s_cbranch_scc1 L_poll1_done"]
    t += [f"s_lshl_b32 s{S_T0}, 1, s{S_J}"]
    for h in range(4): t += [f"s_cmp_eq_u64 s[{4+2*h}:{5+2*h}], s[{S_NON}:{S_NON+1}]", f"s_cselect_b32 s{S_T1}, {1 << h}, 0", f"s_or_b32 s{S_T0}, s{S_T0}, s{S_T1}"]
    t += [f"s_cmp_lg_u32 s{S_T0}, 15", "s_cbranch_scc1 L_poll1", "L_poll1_done:"]
    for x in t: sg.text(x)
    sg.lg = []
    stamp(sg, 9, 'D')
    stamp(sg, 5, 'E')
    stamp(sg, 8)
    assert all(it.ins.vmtag == ('wo', 2) for it in held)
    Q.push(osib_dma(0) + osib_dma(1) + held)
    weave(sg, Q, [], 5, 0); own_steps()
    weave(sg, Q, [], len(Q.q), 0)
    stamp(sg, 6, 'E')
    a(barrier(needvm=[('os', 0), ('wo', 0), ('wo', 1)]))
    stamp(sg, 7, 'E')
    Q.push(osib_dma(2))
    sg.addall(c_reads(4)); sg.addall(c_reads(5))
    def pfin(q):
        b = ACC + q * 8
        return [V(f"v_cvt_pk_bf16_f32 v{b+r}, v{b+2*r}, v{b+2*r+1}", [b+2*r, b+2*r+1], [b+r]) for r in range(4)] + [vstore(('v', b), 4, V_PS, S_WT, S_TAB + q, 0, flags=' sc1', tag='pst')]
    last = 16 - (2 if int(opt.qmaj) else 0)
    for k in range(4, last):
        nx = k + 2 if k + 2 < 16 else None
        if nx in (8, 12):
            assert not Q.q or nx == 8
            a(barrier(needvm=[('os', nx // 4 - 1), ('wo', nx // 4 - 1)], lg0=False))
            stamp(sg, 8 if nx == 8 else 9, 'E')
        step(k, nx, [1, 5, 9] if k % 2 == 0 else [3, 7])
    if int(opt.qmaj):
        m14, m15 = c_mfmas(14), c_mfmas(15)
        m15[0].r -= set(R('v', CF(15)[0] + 4, 16))
        mf = flat([[m14[2*q], m15[2*q], m14[2*q+1], m15[2*q+1]] for q in range(5)])
        gaps = [[] for _ in mf]
        for q in range(4):
            f_ = pfin(q)
            g0 = 4 * q + 6
            if g0 + 2 < 20:
                gaps[g0] += f_[0:2]; gaps[g0 + 1] += f_[2:4]; gaps[g0 + 2] += f_[4:]
        sg.addall(interleave(mf, gaps))
        stamp(sg, 9)
        sg.addall(pfin(3) + pfin(4))
    else:
        stamp(sg, 9)
        for q in range(5): sg.addall(pfin(q))
    a(S(f"s_mov_b32 s{S_SO}, 4096", [], [S_SO]))
    a(S(f"s_mov_b32 s{S_T1}, 0xffff0000", [], [S_T1]))
    a(S(f"s_mov_b32 s{S_SPIN}, {opt.spin}", [], [S_SPIN]))
    a(S(f"s_mov_b32 s{S_T2}, 0", [], [S_T2]))
    a(S(f"s_mov_b32 s{S_SK}, 0", [], [S_SK]))
    if int(opt.f2wg):
        a(barrier(needvm=['pst'], lg0=False))
        sg.text(f"s_cmp_lg_u32 s{S_W}, 0"); sg.text("s_cbranch_scc1 L_sig2"); raise_flag(sg, 2, 'pst'); sg.text("L_sig2:")
    else: raise_flag(sg, 2, 'pst')
    stamp(sg, 5, '2')
    if int(opt.otr):
        a(V("v_lshlrev_b32 v11, 4, v0", [0], [11]))
        a(V("v_and_b32 v10, 0xe0, v0", [0], [10])); a(V("v_lshlrev_b32 v10, 4, v10", [10], [10]))
        a(V("v_and_b32 v12, 7, v0", [0], [12])); a(V("v_lshl_add_u32 v10, v12, 6, v10", [12, 10], [10]))
        a(V("v_bfe_u32 v12, v0, 3, 2", [0], [12])); a(V("v_lshl_add_u32 v10, v12, 3, v10", [12, 10], [10]))
        sg.text(f"s_cmp_eq_u32 s{S_W}, 3"); sg.text("s_cbranch_scc1 L_fin")
    PB, SM = 100, 132
    def pl(h): return vload(('v', PB + 4 * h), 4, V_PLD, S_WT, S_SO if h >= 4 else None, (h & 3) * 1024, flags=' sc1')
    t = ["L_poll2:", f"s_load_dwordx16 s[4:19], s[{S_C}:{S_C+1}], s{S_F2} glc", f"s_cmp_eq_u32 s{S_SK}, 0", "s_cbranch_scc1 L_nounp", "L_unp:", "s_waitcnt vmcnt(0)"]
    for h in range(8):
        t += [f"s_bitcmp1_b32 s{S_SK}, {h}", f"s_cbranch_scc0 L_u{h}"]
        for r in range(4): t += [f"v_lshlrev_b32 v{SM+8*h+2*r}, 16, v{PB+4*h+r}", f"v_and_b32 v{SM+8*h+2*r+1}, s{S_T1}, v{PB+4*h+r}"]
        t += [f"L_u{h}:"]
    t += [f"s_cmp_eq_u32 s{S_T2}, 0xff", "s_cbranch_scc1 L_poll2_done", "L_nounp:", f"s_mov_b32 s{S_SK}, 0", f"s_sub_u32 s{S_SPIN}, s{S_SPIN}, 1", "s_waitcnt lgkmcnt(0)",
          f"s_cmp_eq_u32 s{S_SPIN}, 0", "s_cbranch_scc1 L_poll2_done"]
    for h in range(8):
        t += [f"s_cmp_lg_u64 s[{4+2*h}:{5+2*h}], s[{S_NON}:{S_NON+1}]", f"s_cbranch_scc1 L_g{h}", f"s_bitcmp1_b32 s{S_T2}, {h}", f"s_cbranch_scc1 L_g{h}",
              f"s_bitset1_b32 s{S_T2}, {h}", f"s_bitset1_b32 s{S_SK}, {h}", pl(h).t, f"L_g{h}:"]
    t += [f"s_cmp_lg_u32 s{S_T2}, 0xff", "s_cbranch_scc1 L_poll2", "s_branch L_unp", "L_poll2_done:"]
    if not int(opt.unp):
        t = ["L_poll2:", f"s_load_dwordx16 s[4:19], s[{S_C}:{S_C+1}], s{S_F2} glc", f"s_sub_u32 s{S_SPIN}, s{S_SPIN}, 1", "s_waitcnt lgkmcnt(0)", f"s_cmp_eq_u32 s{S_SPIN}, 0", "s_cbranch_scc1 L_poll2_done"]
        for h in range(8):
            t += [f"s_cmp_lg_u64 s[{4+2*h}:{5+2*h}], s[{S_NON}:{S_NON+1}]", f"s_cbranch_scc1 L_g{h}", f"s_bitcmp1_b32 s{S_T2}, {h}", f"s_cbranch_scc1 L_g{h}",
                  f"s_bitset1_b32 s{S_T2}, {h}", f"s_bitset1_b32 s{S_SK}, {h}", pl(h).t, f"L_g{h}:"]
        t += [f"s_cmp_eq_u32 s{S_T2}, 0xff", "s_cbranch_scc1 L_poll2_done", f"s_mov_b32 s{S_SK}, 0", "s_branch L_poll2", "L_poll2_done:"]
        t += ["s_waitcnt vmcnt(0)"]
        for h in range(8):
            for r in range(4): t += [f"v_lshlrev_b32 v{SM+8*h+2*r}, 16, v{PB+4*h+r}", f"v_and_b32 v{SM+8*h+2*r+1}, s{S_T1}, v{PB+4*h+r}"]
    for x in t: sg.text(x)
    sg.vm = []
    stamp(sg, 6, '2')
    for h in range(1, 8):
        for r in range(0, 8, 2):
            u = SM + 8 * h + r
            a(V(f"v_pk_add_f32 v[{SM+r}:{SM+r+1}], v[{SM+r}:{SM+r+1}], v[{u}:{u+1}]", [SM+r, SM+r+1, u, u+1], [SM+r, SM+r+1]))
    for r in range(4):
        a(V(f"v_cvt_pk_bf16_f32 v{SM+r}, v{SM+2*r}, v{SM+2*r+1}", [SM+2*r, SM+2*r+1], [SM+r]))
    if int(opt.otr):
        a(dswr('ds_write_b64', 10, ('v', SM), 2, 0)); a(dswr('ds_write_b64', 10, ('v', SM + 2), 2, 32))
        r_ = dsrd('ds_read_b128', ('v', SM + 4), 4, 11, 0); r_.needlg = ('*',); a(r_)
        a(vstore(('v', SM + 4), 4, V_OUT, S_OUT, None, 0, flags=opt.out_flags))
    elif not int(opt.noout):
        a(vstore(('v', SM), 2, V_OUT, S_OUT, None, 0, flags=opt.out_flags))
        a(vstore(('v', SM + 2), 2, V_OUT, S_OUT, None, 32, flags=opt.out_flags))

def out_of_line():
    t = []
    t += ["L_spin_n:", f"s_mov_b32 s{S_SPIN}, {opt.spin}", "L_spin_n1:",
          f"buffer_load_dwordx2 v[{V_GC}:{V_GC+1}], v9, s[{S_D}:{S_D+3}], 0 offen sc1", f"s_sub_u32 s{S_SPIN}, s{S_SPIN}, 1", "s_waitcnt vmcnt(0)",
          f"v_readfirstlane_b32 s{S_NON}, v{V_GC}", f"v_readfirstlane_b32 s{S_NON+1}, v{V_GC+1}", f"s_cmp_eq_u32 s{S_SPIN}, 0", "s_cbranch_scc1 L_back_n", "s_nop 2",
          f"s_cmp_eq_u64 s[{S_NON}:{S_NON+1}], 0", "s_cbranch_scc1 L_spin_n1", "s_branch L_back_n"]
    t += ["; a row sum left the safe range - start over with the true row maxima", "L_redo:", f"s_mov_b64 s[{S_GM}:{S_GM+1}], 0", f"s_mov_b32 s{S_REDO}, 1",
          "s_waitcnt vmcnt(0) lgkmcnt(0)", "s_barrier"]
    sg = Seg()
    p1 = prologue1()
    a = sg.add
    a(V(f"v_lshl_add_u32 v{V_T0}, s{S_W}, 2, v{V_G}", [V_G], [V_T0]))
    a(V(f"v_xor_b32 v{V_T1}, v{V_N}, v{V_T0}", [V_N, V_T0], [V_T1]))
    a(V(f"v_lshlrev_b32 v{V_T1}, 4, v{V_T1}", [V_T1], [V_T1]))
    a(V(f"v_lshl_add_u32 v{V_XD}, v{V_T0}, 10, v{V_T1}", [V_T0, V_T1], [V_XD]))
    a(S(f"s_and_b32 s{S_T0}, s{S_W}, 2", [S_W], [S_T0]))
    a(S(f"s_lshl_b32 s{S_T0}, s{S_T0}, 2", [S_T0], [S_T0]))
    a(V(f"v_lshl_add_u32 v{V_T1}, v{V_G}, 1, s{S_T0}", [V_G], [V_T1]))
    a(V(f"v_xor_b32 v{V_T1}, v{V_N}, v{V_T1}", [V_N, V_T1], [V_T1]))
    a(V(f"v_lshlrev_b32 v{V_T1}, 4, v{V_T1}", [V_T1], [V_T1]))
    a(V(f"v_lshl_add_u32 v{V_WD}, v{V_T0}, 13, v{V_T1}", [V_T0, V_T1], [V_WD]))
    t += sg.out + ["s_nop 4", "s_branch L_restart"]
    sg = Seg(); a = sg.add
    sg.text("; true row maxima over all keys -> negated into the accumulator seed of S")
    sg.text("L_max:")
    sg.text(f"s_mov_b32 s{S_SPIN}, m0")
    sg.drain()
    sg.text("s_barrier")
    MX, KF, AD = 76, V_VF, 84
    for q in range(5): a(V(f"v_mov_b32 v{MX+q}, 0xff800000", [], [MX+q]))
    for s in range(4): a(V(f"v_add_u32 v{AD+s}, {96*KB}, v{V_KA+s}", [V_KA+s], [AD+s]))
    a(S(f"s_mov_b32 s{S_T2}, 0", [], [S_T2]))
    sg.text("L_max_loop:"); sg.reset_hist()
    for j in range(8):
        if j % 4 == 0:
            a(S(f"s_add_u32 s{S_T1}, s{S_T2}, {(j>>2)*4096}", [S_T2], [S_T1]))
            a(S(f"s_add_u32 m0, s{S_W8K}, {96*KB + (j>>2)*4096}", [S_W8K], [M0]))
        a(dma(V_KD + (j & 3), S_K, S_T1, 1024 * (j & 3), 'mk'))
    for t_ in range(2):
        for s in range(4):
            a(dsrd('ds_read_b128', ('v', KF + (t_ * 4 + s) * 4), 4, AD + s, t_ * 4096, needvm=['mk']))
    for q in range(5):
        for t_ in range(2):
            d = ('v', 88 + t_ * 4)
            for s in range(4): a(mfma(d, ('v', KF + (t_ * 4 + s) * 4), AQ(q, s), 0 if s == 0 else d))
        for k in range(4):
            a(V(f"v_max3_f32 v{MX+q}, v{MX+q}, v{88+2*k}, v{89+2*k}", [MX+q, 88+2*k, 89+2*k], [MX+q]))
    sg.drain()
    a(S(f"s_add_u32 s{S_T2}, s{S_T2}, 8192", [S_T2], [S_T2]))
    sg.text(f"s_cmp_lt_u32 s{S_T2}, 65536"); sg.text("s_nop 4"); sg.text("s_cbranch_scc1 L_max_loop")
    sg.text("s_barrier")
    a(S(f"s_mul_i32 s{S_T0}, s{S_W}, 1280", [S_W], [S_T0]))
    a(S(f"s_add_u32 s{S_T0}, s{S_T0}, {96*KB}", [S_T0], [S_T0]))
    a(V(f"v_lshl_add_u32 v{AD}, v{V_LANE}, 2, s{S_T0}", [V_LANE], [AD]))
    a(S(f"s_mov_b32 s{S_T0}, {96*KB}", [], [S_T0]))
    a(V(f"v_lshl_add_u32 v{AD+1}, v{V_N}, 2, s{S_T0}", [V_N], [AD+1]))
    for q in range(5): a(dswr('ds_write_b32', AD, ('v', MX + q), 1, q * 256))
    a(barrier())
    for q in range(5):
        for k in range(16):
            a(dsrd('ds_read_b32', ('v', KF + k), 1, AD + 1, (k >> 2) * 1280 + q * 256 + (k & 3) * 64))
        for k in range(8):
            a(V(f"v_max3_f32 v{MX+q}, v{MX+q}, v{KF+2*k}, v{KF+2*k+1}", [MX+q, KF+2*k, KF+2*k+1], [MX+q]))
        for r in range(4):
            a(V(f"v_sub_f32 v{V_NEGM+q*4+r}, 0, v{MX+q}", [MX+q], [V_NEGM+q*4+r]))
    sg.drain()
    sg.text("s_barrier"); sg.text(f"s_mov_b32 m0, s{S_SPIN}"); sg.text("s_nop 4"); sg.text("s_branch L_back_max")
    return t + sg.out

def stamp_out(sg, n):
    if not opt.stamps or (opt.stamps == 'Z' and n > 1): return
    if opt.stamps == 'Z':
        for x in ["s_load_dwordx2 s[76:77], s[0:1], 56", "s_waitcnt lgkmcnt(0)", f"s_add_u32 s76, s76, {16<<20}", "s_addc_u32 s77, s77, 0", "s_and_b32 s77, s77, 0xffff",
                  "s_mov_b32 s78, 0x100000", "s_mov_b32 s79, 0x20000", "s_lshl_b32 s80, s2, 2", "s_add_u32 s80, s80, s32", "s_lshl_b32 s80, s80, 6", "v_mov_b32 v74, s80",
                  "v_mov_b32 v75, s3", "buffer_store_dword v75, v74, s[76:79], 0 offen sc1"]: sg.text(x)
        return
    stamp(sg, n - 1)
    t = ["s_load_dwordx2 s[4:5], s[0:1], 56", "s_waitcnt lgkmcnt(0)", f"s_add_u32 s4, s4, {16<<20}", "s_addc_u32 s5, s5, 0", "s_and_b32 s5, s5, 0xffff",
         "s_mov_b32 s6, 0x100000", "s_mov_b32 s7, 0x20000", "s_lshl_b32 s8, s2, 2", "s_add_u32 s8, s8, s32", "s_lshl_b32 s8, s8, 6", "v_mov_b32 v2, s8"]
    for i in range(n):
        t += [f"v_mov_b32 v3, s{3 if i == 0 else 76+2*i}", f"buffer_store_dword v3, v2, s[4:7], 0 offen offset:{4*i} sc1"]
    for x in t: sg.text(x)

def kernel():
    sg = Seg()
    sg.text(NAME + "_kernel:")
    sg.text("s_cmp_ge_u32 s2, 256")
    sg.text("s_cbranch_scc1 L_end")
    if opt.stamps:
        stamp(sg, 0)
    p1 = prologue1()
    sg.addall(p1[:2])
    if int(opt.cpf):
        for x in ["s_getpc_b64 s[94:95]", "L_pc:", "s_lshr_b32 s3, s2, 3", "v_lshrrev_b32 v8, 6, v0", "v_and_b32 v9, 1, v0", "v_lshl_add_u32 v8, v8, 1, v9",
                  "v_lshl_add_u32 v8, s3, 3, v8", "v_lshlrev_b32 v8, 7, v8", "v_min_u32 v8, (L_code_end - L_pc - 4) & 0xffffff80, v8"] + (["global_load_dword v255, v8, s[94:95]"] if int(opt.cpf) == 1 else ["s_mov_b64 s[12:13], s[94:95]"]): sg.text(x)
    sg.addall(p1[2:])
    if opt.stamps:
        sg.text("s_mov_b32 s3, s76")
    p2 = prologue2()
    Q = Queue()
    first = x_dma(0) + w_dma(0) if not int(opt.wfirst) else w_dma(0) + x_dma(0)
    stamp(sg, 5, 'P')
    Q.push(first)
    weave(sg, Q, [], 9, 0)
    if int(opt.cpf) == 2: sg.text("global_load_dword v255, v8, s[12:13]")
    stamp(sg, 6, 'P')
    sg.addall(p2)
    stamp(sg, 7, 'P')
    sg.text("s_cmp_lg_u32 s2, 0"); sg.text("s_cbranch_scc1 L_nocz")
    lane0(sg, ["v_mov_b32 v9, 0", f"s_memrealtime s[{S_NON}:{S_NON+1}]", "s_waitcnt lgkmcnt(0)", f"s_or_b32 s{S_NON}, s{S_NON}, 1", f"v_mov_b32 v250, s{S_NON}", f"v_mov_b32 v251, s{S_NON+1}",
               f"buffer_store_dwordx2 v[250:251], v9, s[{S_D}:{S_D+3}], 0 offen sc1"], "L_nocz")
    sg.text("s_branch L_first")
    sg.text("L_restart:")
    s2 = Seg(); s2.addall(restart_setup()); Q2 = Queue(); Q2.push(x_dma(0) + w_dma(0) if not int(opt.wfirst) else w_dma(0) + x_dma(0)); weave(s2, Q2, [], 9, 0)
    for x in s2.out: sg.text(x)
    sg.text("L_first:")
    early, late = prologue3()
    early = early + late + handoff_calc()
    def BB(u): return f"B{u + 1}"
    Q.push(w_dma(1) + x_dma(1) + w_dma(2) + w_dma(3) + x_dma(2) + w_dma(4) + ((w_dma(5, 'B2') + x_dma(3)) if int(opt.la) else (x_dma(3) + w_dma(5, 'B2'))) + w_dma(6, 'B3') + w_dma(7, 'B4')
           + kv_dma('k', 0, 'B5') + kv_dma('v', 0, 'B6') + kv_dma('k', 1, 'B8') + kv_dma('v', 1, 'BQ'))
    for i in range(2, 8):
        if not int(opt.nodma): Q.push(kv_dma('k', i) + kv_dma('v', i))
    n0 = int(opt.n0) - 9
    weave(sg, Q, early, n0, (len(early) + n0 - 1) // n0)
    sg.addall(early)
    qr = phase_a(sg, Q)
    sg.addall(qr[:0])
    stamp(sg, 3)
    sg.text(f"s_cmp_eq_u32 s{S_REDO}, 0"); sg.text("s_cbranch_scc1 L_back_max")
    s2 = Seg(); s2.addall(qr)
    for x in s2.out: sg.text(x)
    sg.text("s_branch L_max")
    sg.text("L_back_max:")
    phase_b(sg, Q, qr)
    combine(sg, Q)
    phase_c(sg, Q)
    sg.text("L_fin:")
    stamp_out(sg, 11)
    sg.text("L_end:")
    sg.text("s_endpgm")
    return sg.out + ['L_code_end:'] + out_of_line()

def report_kernel():
    idx, mode = opt.report.split(',')
    if mode == 'next':
        return ["report_kernel:", "s_cmp_ge_u32 s2, 1", "s_cbranch_scc1 L3_end", "s_memrealtime s[12:13]", "s_load_dwordx2 s[4:5], s[0:1], 56", "s_waitcnt lgkmcnt(0)",
                f"s_add_u32 s4, s4, {17<<20}", "s_addc_u32 s5, s5, 0", "s_and_b32 s5, s5, 0xffff", "s_mov_b32 s6, 64", "s_mov_b32 s7, 0x20000", "v_mov_b32 v1, 0", "v_mov_b32 v2, s12",
                "buffer_store_dword v2, v1, s[4:7], 0 offen", "L3_end:", "s_endpgm"]
    t = ["report_kernel:", "s_cmp_ge_u32 s2, 1", "s_cbranch_scc1 L3_end", "s_load_dwordx2 s[4:5], s[0:1], 56", "s_waitcnt lgkmcnt(0)",
         f"s_add_u32 s4, s4, {16<<20}", "s_addc_u32 s5, s5, 0", "s_and_b32 s5, s5, 0xffff", "s_mov_b32 s6, 0x100000", "s_mov_b32 s7, 0x20000",
         "v_lshlrev_b32 v1, 8, v0", f"buffer_load_dword v2, v1, s[4:7], 0 offen offset:{4*int(idx)}", "buffer_load_dword v3, v1, s[4:7], 0 offen",
         "v_mov_b32 v4, 0", "v_mov_b32 v5, 0", "v_mov_b32 v6, -1", "ds_write_b32 v4, v5", "ds_write_b32 v4, v6 offset:8", "s_waitcnt vmcnt(0) lgkmcnt(0)", "s_barrier",
         "ds_min_u32 v4, v3 offset:8", "s_waitcnt lgkmcnt(0)", "s_barrier", "ds_read_b32 v6, v4 offset:8", "s_waitcnt lgkmcnt(0)", "v_sub_u32 v2, v2, v6",
         "v_lshrrev_b32 v7, 3, v0", "v_mul_u32_u24 v7, 52, v7", "v_lshrrev_b32 v7, 8, v7", "v_and_b32 v8, 1, v0", "v_sub_u32 v8, 6, v8", "v_cmp_lt_u32 vcc, v7, v8",
         "v_min_u32 v2, 10000, v2",
         ("ds_add_u32 v4, v2" if mode == 'mean' else "ds_max_u32 v4, v2"), "s_waitcnt lgkmcnt(0)", "s_barrier", "ds_read_b32 v6, v4", "s_memrealtime s[12:13]", "s_waitcnt lgkmcnt(0)",
         "v_readfirstlane_b32 s10, v6", "s_nop 4"]
    if mode == 'mean': t += ["s_mul_i32 s10, s10, 10", "s_lshr_b32 s10, s10, 8"]
    elif mode == 'max': t += ["s_mul_i32 s10, s10, 10"]
    else: t += ["s_mov_b32 s10, 0"]
    t += ["L3_spin:", "s_memrealtime s[14:15]", "s_waitcnt lgkmcnt(0)", "s_sub_u32 s14, s14, s12",
          "s_cmp_lt_u32 s14, s10", "s_cbranch_scc1 L3_spin", "L3_end:", "s_endpgm"]
    return t

HEADER = """; Kernarg layout (64 bytes, pointers only, base s[0:1]):
;  24: wq (512,4096) bf16  32: wo (4096,512) bf16   40: d_out (8,80,512) bf16   48: d_debug   56: d_ws
;
; One launch, one workgroup (4 waves) per (batch b, query head hq); hkv = id & 7, j = (id >> 3) & 3, b = id >> 5, hq = 4*hkv + j.
;     Softmax shift m: the first pass uses m = 0, which is exact as long as nothing leaves the fp32 range.  Every row sum is
;     checked against [2^-40, 2^40] (NaN fails too); if any row is outside, the workgroup starts over, computes the true row
;     maxima over all 1024 keys (L_max) and repeats phase B with m = row maximum.
;  C  hand-off 1: O (bf16) goes to the three other heads of the kv group; workgroup (b, hkv, j) multiplies the four heads
;     with wo[hkv*512.., j*128..] -> partial result for 128 output columns.
;     hand-off 2: the eight partial results (one per hkv) are summed in fp32, each workgroup finishing one eighth.
;  and read with sc1.  The tag is a clock value that workgroup 0 publishes in d_debug (zero at launch), so flags left in d_ws
;  by earlier launches never match.  Polls are bounded.  Nothing depends on the XCD a workgroup runs on; the id mapping, the
"""
def build():
    def fmt(l): return "\n".join(x if x.endswith(':') else "    " + x for x in l)
    nm = NAME + "_kernel"
    s = HEADER + "; @launch grid=(256,1,1) block=(256,1,1) lds=163840\n"
    if opt.report:
        s = f"; @launch kernel={nm} grid=(256,1,1) block=(256,1,1) lds=163840\n; @launch kernel=report_kernel grid=(1,1,1) block=(256,1,1) lds=64\n"
    s += '.amdgcn_target "amdgcn-amd-amdhsa--gfx950"\n.text\n'
    s += f".globl {nm}\n.p2align 8\n.type {nm},@function\n" + fmt(kernel()) + "\n"
    if opt.report: s += ".globl report_kernel\n.p2align 8\n.type report_kernel,@function\n" + fmt(report_kernel()) + "\n"
    s += f""".section .rodata,"a"
.p2align 6
.amdhsa_kernel {nm}
  .amdhsa_next_free_vgpr 512
  .amdhsa_next_free_sgpr 102
  .amdhsa_accum_offset 256
  .amdhsa_group_segment_fixed_size 0
  .amdhsa_kernarg_size 64
  .amdhsa_user_sgpr_count 2
  .amdhsa_user_sgpr_kernarg_segment_ptr 1
  .amdhsa_system_sgpr_workgroup_id_x 1
  .amdhsa_float_denorm_mode_32 3
.end_amdhsa_kernel
"""
    if opt.report:
        s += """.p2align 6
.amdhsa_kernel report_kernel
  .amdhsa_next_free_vgpr 32
  .amdhsa_next_free_sgpr 32
  .amdhsa_accum_offset 32
  .amdhsa_group_segment_fixed_size 0
  .amdhsa_kernarg_size 64
  .amdhsa_user_sgpr_count 2
  .amdhsa_user_sgpr_kernarg_segment_ptr 1
  .amdhsa_system_sgpr_workgroup_id_x 1
.end_amdhsa_kernel
"""
    return s

if __name__ == '__main__':
    out = sys.argv[1] if len(sys.argv) > 1 else 'cdna_kernels/' + NAME + '.s'
    for a_ in sys.argv[2:]:
        k, v = a_.split('=', 1)
        setattr(opt, k, (' ' + v) if k.endswith('flags') and v else v)
    HOIST[0] = int(opt.hoist)
    txt = build()
    open(out, 'w').write(txt)
```

```python
import sys, struct, re
from dsl import *

KB = 1024
NAME = 'standalone__gqa_block_cached__near_ridge'
def f2h(x): return hex(struct.unpack('<I', struct.pack('<f', x))[0])
QSCALE = 1.4426950408889634 / (128 ** 0.5)
WS_WO = 8 << 20
WS_CT = 12 << 20

class Opt:
    stamps = ''
    report = ''
    kv_flags = ''
    a_flags = ''
    n0 = 22
    warm = 1
    perstep = 6
    lo_exp = -40
    hi_exp = 40
    spin = 300000
    rt_at = 5
    bar_at = 32
    nodma = 0
    wpos = '5,16'
    x1e = 0
    c3 = 0
    otr = 1
    otch_at = 99
    otch_flags = ''
    worlate = 1
    pf = 9
    noout = 0
    even_end = 23
    coal = 1
    hoist = 2
    unp = 0
    f2wg = 1
    wfirst = 0
    kvnt = 'x'
    ant = ''
    tch_flags = ''
    wsb = 0
    drain = '45'
    tlb_at = 27
    aonly = 0
    la = 10
    aq = 1
    ownlate = 1
    o_flags = ' sc1'
    f1_flags = ' sc1'
    w64 = 0
    out_flags = ''
    bsched = 1
    p1w = 1
    p2w = 0
    pollk = '19,29,39'
    dyn2 = 1
    qmaj = 1
    tch_at = 27
    even_at = 99
    pdepth = 1
    kvo = 4
    finw = 0
    alim = 16
    cpf = 1
    chain = 1
    wo_at = 33
    calc_at = 16
    nl_at = 8
    nc_at = 13
    cw = 2
    shadow = 9
    bst = '0,5,10,15,20'
    no_rt = 0
    clk = 'r'
    lg0 = 0
    vpos = '1,5,9,13'
    rot_kv = 1
    rot_a = 8
    rot_c = 1
    gl_at = 29
    gc_at = 33
opt = Opt()

S_X, S_WQ, S_K, S_V, S_O, S_WO, S_WT, S_WL, S_C, S_D, S_OUT = 4, 8, 12, 16, 20, 24, 28, 52, 56, 60, 64
S_W, S_B, S_HKV, S_HQ = 32, 33, 34, 35
S_W1K, S_W8K, S_SO, S_T0, S_T1, S_T2, S_SK, S_SV = 36, 37, 38, 39, 40, 41, 42, 43
S_TAB = 44
S_REDO, S_MT, S_NT, S_VALID, S_RT, S_SPIN = 68, 69, 70, 71, 72, 73
S_EX = 74
S_F1, S_F2, S_G1, S_G2 = 100, 101, 72, 51
S_GM = 70
S_J_UNUSED = 3
S_P = 76
S_ST = 80
V_LANE, V_N, V_G, V_T0, V_T1, V_T2, V_T3, V_T4, V_T5 = 1, 2, 3, 4, 5, 6, 7, 8, 9
V_KA, V_VA, V_KD, V_VD = 10, 14, 22, 26
V_OST, V_CW, V_LW = 28, 29, 31
V_ONES, V_NEGM, V_L, V_S, V_P, V_KF, V_VF = 32, 36, 56, 76, 92, 100, 164
V_XA, V_XB, V_WA, V_WB, V_XD, V_WD, V_QW = 228, 232, 236, 238, 240, 241, 242
V_GC = 250
S_NON = 96
V_CR, V_LR, V_WOD, V_WT, V_OL, V_OW, V_OD, V_PS, V_PLD, V_OUT, V_P1, V_P2 = 228, 234, 235, 236, 242, 243, 244, 245, 246, 247, 248, 249
V_ZERO = 9
V_TCH = 64
S_H = 52
S_W5K = 55
S_J = 69
A_O, A_Q = 0, 160
V_OWN = [132, 140, 148, 156, 56]
A_KF1, A_L = 120, 240
def AO(lam, q):
    if lam < 2: return ('v', V_OWN[q] + 4 * lam)
    return ('a', A_O + 4 * (q * 6 + lam - 2))
def KF(i, k): return ('v', V_KF + 4 * k) if i % 2 == 0 else ('a', A_KF1 + 4 * k)
def LA(q): return ('a', A_L + 4 * q) if q < 4 else ('a', 152)
def AQ(q, s): return ('a', A_Q + 4 * (q * 4 + s))

def XU(c, q):
    if c == 0: return q * 4 * KB
    if c == 1: return 20 * KB + q * 4 * KB
    if c == 2: return 128 * KB + q * 4 * KB
    return [120, 124, 148, 152, 156][q] * KB
def WU(slot, ks):
    return {0: [40, 48], 1: [56, 96], 2: [104, 112], 3: [64, 72], 4: [80, 88]}[slot][ks] * KB
WSLOT = [0, 1, 2, 3, 4, 0, 1, 2]
QBUF = 128 * KB

def V(t, r=(), w=()):
    return valu(t, r=[('v', x) if isinstance(x, int) else x for x in r], w=[('v', x) if isinstance(x, int) else x for x in w])
def T(t, r=(), w=()):
    return valu(t, r=[('v', x) for x in r], w=[('v', x) for x in w], trans=True)
def S(t, r=(), w=()):
    return salu(t, r=[('s', x) if isinstance(x, int) else x for x in r], w=[('s', x) if isinstance(x, int) else x for x in w])
M0 = ('m0', 0)
VCC = ('vcc', 0)
def flat(l): return [x for y in l for x in y]

def srd(dst, plo, add_s=None, add_imm=0, size=0):
    o = []
    if add_s is not None:
        o.append(S(f"s_add_u32 s{dst}, s{plo}, s{add_s}", [plo, add_s], [dst]))
        o.append(S(f"s_addc_u32 s{dst+1}, s{plo+1}, 0", [plo+1], [dst+1]))
        o.append(S(f"s_and_b32 s{dst+1}, s{dst+1}, 0xffff", [dst+1], [dst+1]))
    elif add_imm:
        o.append(S(f"s_add_u32 s{dst}, s{plo}, {add_imm}", [plo], [dst]))
        o.append(S(f"s_addc_u32 s{dst+1}, s{plo+1}, 0", [plo+1], [dst+1]))
        o.append(S(f"s_and_b32 s{dst+1}, s{dst+1}, 0xffff", [dst+1], [dst+1]))
    else:
        o.append(S(f"s_mov_b32 s{dst}, s{plo}", [plo], [dst]))
        o.append(S(f"s_and_b32 s{dst+1}, s{plo+1}, 0xffff", [plo+1], [dst+1]))
    if isinstance(size, str):
        o.append(S(f"s_mov_b32 s{dst+2}, {size}", [int(size[1:])], [dst+2]))
    else:
        o.append(S(f"s_mov_b32 s{dst+2}, {size}", [], [dst+2]))
    o.append(S(f"s_mov_b32 s{dst+3}, 0x20000", [], [dst+3]))
    return o

KV_ORDER = [[0, 2, 1, 3, 4, 6, 5, 7], [0, 1, 3, 2, 4, 5, 7, 6], [1, 0, 2, 4, 3, 5, 6, 7], [1, 0, 2, 3, 5, 4, 6, 7]]
KV_ORDERS = [KV_ORDER,
  [[0, 4, 1, 2, 3, 5, 6, 7], [1, 0, 5, 2, 3, 4, 6, 7], [2, 0, 1, 6, 3, 4, 5, 7], [3, 0, 1, 2, 7, 4, 5, 6]],
  [[0, 1, 2, 3, 4, 5, 6, 7], [0, 1, 2, 3, 4, 5, 6, 7], [4, 5, 6, 7, 0, 1, 2, 3], [4, 5, 6, 7, 0, 1, 2, 3]],
  [[0, 2, 1, 3, 5, 4, 6, 7], [1, 0, 3, 2, 4, 6, 5, 7], [2, 1, 0, 4, 3, 5, 7, 6], [0, 1, 2, 3, 5, 4, 6, 7]],
  [[0, 1, 2, 4, 3, 5, 6, 7], [1, 0, 2, 3, 5, 4, 6, 7], [2, 0, 1, 3, 4, 6, 5, 7], [0, 1, 3, 2, 4, 5, 7, 6]],
  [[0, 1, 4, 2, 3, 5, 6, 7], [1, 0, 2, 5, 3, 4, 6, 7], [2, 0, 1, 3, 6, 4, 5, 7], [0, 3, 1, 2, 4, 7, 5, 6]],
  [[0, 1, 3, 2, 4, 5, 7, 6], [0, 1, 2, 4, 3, 5, 6, 7], [0, 2, 1, 3, 5, 4, 6, 7], [0, 2, 1, 3, 4, 6, 5, 7]],
  [[0, 1, 2, 4, 3, 5, 6, 7], [1, 0, 3, 2, 5, 4, 6, 7], [2, 3, 0, 1, 4, 6, 5, 7], [3, 2, 1, 0, 4, 5, 7, 6]],
  [[0, 1, 2, 4, 3, 5, 6, 7], [1, 2, 0, 3, 5, 4, 6, 7], [2, 0, 1, 3, 4, 6, 5, 7], [0, 3, 1, 2, 4, 5, 7, 6]]]
def kv_pack(j):
    o = KV_ORDERS[int(opt.kvo)][j] if int(opt.rot_kv) else list(range(8))
    return sum(t << (4 * i) for i, t in enumerate(o))
S_KVO = 98
V_XD4 = 204
S_WC = 99

class Item:
    def __init__(s, pre, ins, after=None): s.pre, s.ins, s.after = pre, ins, after
def x_dma(c, after=None):
    return [Item([S(f"s_add_u32 m0, s{S_W1K}, {XU(c,q)}", [S_W1K], [M0])],
                 dma(V_XD4 + c, S_X, S_TAB + q, 0, ('x', c), flags=(' nt' if 'x' in opt.ant and c < 2 else opt.a_flags)), after) for q in range(5)]
def w_dma(u, after=None):
    o = []
    for k in range(4):
        pre = []
        if k == 0:
            pre.append(S(f"s_add_u32 s{S_SK}, s{S_WC}, {(u & 6) << 19}", [S_WC], [S_SK]))
            pre.append(S(f"s_and_b32 s{S_SK}, s{S_SK}, {7 << 19}", [S_SK], [S_SK]))
            if u & 1: pre.append(S(f"s_xor_b32 s{S_SK}, s{S_SK}, {1 << 19}", [S_SK], [S_SK]))
        pre.append(S(f"s_add_u32 s{S_SO}, s{S_SK}, {k*131072}", [S_SK], [S_SO]))
        pre.append(S(f"s_add_u32 m0, s{S_W1K}, {WU(WSLOT[u], k>>1) + (k&1)*4*KB}", [S_W1K], [M0]))
        o.append(Item(pre, dma(V_WD, S_WQ, S_SO, 0, ('w', u), flags=(' nt' if 'w' in opt.ant and u < 4 else opt.a_flags)), after))
    return o
def kv_dma(kind, i, after=None):
    o = []
    base = (i & 1) * 32 * KB + (0 if kind == 'k' else 64 * KB)
    sr, so = (S_K, S_SK) if kind == 'k' else (S_V, S_SV)
    for j in range(8):
        pre = []
        if j % 4 == 0:
            if j == 0:
                pre.append(S(f"s_bfe_u32 s{so}, s{S_KVO}, {hex((3 << 16) | (4 * i))}", [S_KVO], [so]))
                pre.append(S(f"s_lshl_b32 s{so}, s{so}, 13", [so], [so]))
            else:
                pre.append(S(f"s_add_u32 s{so}, s{so}, 4096", [so], [so]))
            pre.append(S(f"s_add_u32 m0, s{S_W8K}, {base + (j>>2)*4096}", [S_W8K], [M0]))
        va = V_KD + (j & 3) if kind == 'k' else V_VD + (j & 1)
        tag = (kind + 'r', i - 2, j >> 2)
        o.append(Item(pre, dma(va, sr, so, 1024 * (j & 3), (kind, i, j >> 2), needlg=[tag], flags=(' nt' if str(i) in str(opt.kvnt) else opt.kv_flags)), after if i < 2 else tag))
    return o
def k_reads(i):
    return [dsrd('ds_read_b128', KF(i, t * 4 + s), 4, V_KA + s, (i & 1) * 32 * KB + t * 4096,
                 needvm=[('k', i, t)], lgtag=('kr', i, t)) for t in range(2) for s in range(4)]
def v_reads(i):
    return [dsrd('ds_read_b64_tr_b16', ('v', V_VF + (i & 1) * 32 + lam * 4 + h * 2), 2, V_VA + lam, (i & 1) * 32 * KB + h * 4096,
                 needvm=[('v', i, h)], lgtag=('vr', i, h)) for h in range(2) for lam in range(8)]

class Queue:
    def __init__(s): s.q = []; s.pts = set()
    def push(s, items): s.q += items
    def mark(s, p): s.pts.add(p)
    def pop(s):
        if s.q and (s.q[0].after is None or s.q[0].after in s.pts): return s.q.pop(0)
        return None

def place(gaps, Q, pos):
    last = -1
    for p in pos:
        if p >= len(gaps): continue
        it = Q.pop()
        if it is None: break
        pre = list(it.pre)
        avail = list(range(last + 1, p))
        front = []
        if not avail: front = pre
        else:
            slots = [[] for _ in avail]
            for k_, x in enumerate(reversed(pre)):
                slots[max(0, len(avail) - 1 - k_)].insert(0, x)
            for g, sl in zip(avail, slots):
                k_ = 0
                while k_ < len(gaps[g]) and gaps[g][k_].k == 'salu': k_ += 1
                gaps[g][k_:k_] = sl
        k = 0
        while k < len(gaps[p]) and gaps[p][k].k == 'salu': k += 1
        gaps[p][k:k] = front + [it.ins]
        last = p
def weave(sg, Q, fill, n, per):
    for _ in range(n):
        it = Q.pop()
        if it is not None: sg.addall(it.pre + [it.ins])
        for _ in range(per):
            if fill: sg.add(fill.pop(0))

NST = 12
def stamp(sg, i, grp='1'):
    if not opt.stamps: return
    if opt.stamps == 'Z' and i: return
    if 5 <= i <= 9 and grp != opt.stamps: return
    sg.text(f"{'s_memtime' if opt.clk == 'c' else 's_memrealtime'} s[{76+2*i}:{77+2*i}]")

def prologue1():
    o = []; a = o.append
    a(raw("s_load_dwordx2 s[92:93], s[0:1], 0"))
    a(raw("s_load_dwordx2 s[26:27], s[0:1], 24"))
    a(V(f"v_lshrrev_b32 v{V_T0}, 6, v0", [0], [V_T0]))
    a(V(f"v_and_b32 v{V_LANE}, 63, v0", [0], [V_LANE]))
    a(V(f"v_readfirstlane_b32 s{S_W}, v{V_T0}", [V_T0], [('s', S_W)]))
    a(S(f"s_and_b32 s{S_HKV}, s2, 7", [2], [S_HKV]))
    a(S(f"s_lshr_b32 s{S_B}, s2, 5", [2], [S_B]))
    a(S(f"s_bfe_u32 s{S_T0}, s2, 0x20003", [2], [S_T0]))
    a(S(f"s_mov_b32 s{S_J}, s{S_T0}", [S_T0], [S_J]))
    a(S(f"s_lshl_b32 s{S_HQ}, s{S_HKV}, 2", [S_HKV], [S_HQ]))
    a(S(f"s_add_u32 s{S_HQ}, s{S_HQ}, s{S_T0}", [S_HQ, S_T0], [S_HQ]))
    if int(opt.rot_a) == 2:
        a(S(f"s_add_u32 s{S_VALID}, s{S_T0}, s{S_B}", [S_T0, S_B], [S_VALID]))
        a(S(f"s_and_b32 s{S_VALID}, s{S_VALID}, 1", [S_VALID], [S_VALID]))
        a(S(f"s_lshl_b32 s{S_VALID}, s{S_VALID}, 2", [S_VALID], [S_VALID]))
    elif int(opt.rot_a) in (5, 6):
        a_, b_ = (S_B, S_T0) if int(opt.rot_a) == 5 else (S_T0, S_B)
        a(S(f"s_lshl_b32 s{S_VALID}, s{b_}, 1", [b_], [S_VALID]))
        a(S(f"s_add_u32 s{S_VALID}, s{S_VALID}, s{a_}", [S_VALID, a_], [S_VALID]))
        a(S(f"s_and_b32 s{S_VALID}, s{S_VALID}, 3", [S_VALID], [S_VALID]))
        a(S(f"s_lshl_b32 s{S_VALID}, s{S_VALID}, 1", [S_VALID], [S_VALID]))
    elif int(opt.rot_a) in (8, 9):
        a(S(f"s_add_u32 s{S_VALID}, s{S_T0}, s{S_B}", [S_T0, S_B], [S_VALID]))
        a(S(f"s_lshl_b32 s{S_VALID}, s{S_VALID}, 1", [S_VALID], [S_VALID]))
        a(S(f"s_and_b32 s{S_T1}, s{S_HKV}, {1 if int(opt.rot_a) == 8 else 3}", [S_HKV], [S_T1]))
        a(S(f"s_add_u32 s{S_VALID}, s{S_VALID}, s{S_T1}", [S_VALID, S_T1], [S_VALID]))
        a(S(f"s_and_b32 s{S_VALID}, s{S_VALID}, 3", [S_VALID], [S_VALID]))
        a(S(f"s_lshl_b32 s{S_VALID}, s{S_VALID}, 1", [S_VALID], [S_VALID]))
    elif int(opt.rot_a) == 7:
        a(S(f"s_add_u32 s{S_VALID}, s{S_T0}, s{S_B}", [S_T0, S_B], [S_VALID]))
        a(S(f"s_and_b32 s{S_VALID}, s{S_VALID}, 1", [S_VALID], [S_VALID]))
        a(S(f"s_lshl_b32 s{S_VALID}, s{S_VALID}, 2", [S_VALID], [S_VALID]))
        a(S(f"s_bfe_u32 s{S_T1}, s{S_B}, 0x10001", [S_B], [S_T1]))
        a(S(f"s_or_b32 s{S_VALID}, s{S_VALID}, s{S_T1}", [S_VALID, S_T1], [S_VALID]))
    elif int(opt.rot_a) == 4:
        a(S(f"s_add_u32 s{S_VALID}, s{S_T0}, s{S_B}", [S_T0, S_B], [S_VALID]))
        a(S(f"s_and_b32 s{S_VALID}, s{S_VALID}, 3", [S_VALID], [S_VALID]))
        a(S(f"s_lshl_b32 s{S_VALID}, s{S_VALID}, 1", [S_VALID], [S_VALID]))
    elif int(opt.rot_a):
        a(S(f"s_lshl_b32 s{S_T0}, s{S_T0}, 1", [S_T0], [S_T0]))
        a(S(f"s_add_u32 s{S_VALID}, s{S_T0}, s{S_B}", [S_T0, S_B], [S_VALID]))
        a(S(f"s_and_b32 s{S_VALID}, s{S_VALID}, 7", [S_VALID], [S_VALID]))
    else:
        a(S(f"s_mov_b32 s{S_VALID}, 0", [], [S_VALID]))
    a(V(f"v_and_b32 v{V_N}, 15, v{V_LANE}", [V_LANE], [V_N]))
    a(V(f"v_lshrrev_b32 v{V_G}, 4, v{V_LANE}", [V_LANE], [V_G]))
    a(S(f"s_lshl_b32 s{S_W1K}, s{S_W}, 10", [S_W], [S_W1K]))
    a(S(f"s_lshl_b32 s{S_W8K}, s{S_W}, 13", [S_W], [S_W8K]))
    a(V(f"v_lshl_add_u32 v{V_T0}, s{S_W}, 2, v{V_G}", [V_G, ('s', S_W)], [V_T0]))
    a(V(f"v_xor_b32 v{V_T1}, v{V_N}, v{V_T0}", [V_N, V_T0], [V_T1]))
    a(V(f"v_lshlrev_b32 v{V_T1}, 4, v{V_T1}", [V_T1], [V_T1]))
    a(V(f"v_lshl_add_u32 v{V_XD}, v{V_T0}, 10, v{V_T1}", [V_T0, V_T1], [V_XD]))
    a(S(f"s_and_b32 s{S_T0}, s{S_W}, 2", [S_W], [S_T0]))
    a(S(f"s_lshl_b32 s{S_T0}, s{S_T0}, 2", [S_T0], [S_T0]))
    a(V(f"v_lshl_add_u32 v{V_T1}, v{V_G}, 1, s{S_T0}", [V_G, ('s', S_T0)], [V_T1]))
    a(V(f"v_xor_b32 v{V_T1}, v{V_N}, v{V_T1}", [V_N, V_T1], [V_T1]))
    a(V(f"v_lshlrev_b32 v{V_T1}, 4, v{V_T1}", [V_T1], [V_T1]))
    a(V(f"v_lshl_add_u32 v{V_WD}, v{V_T0}, 13, v{V_T1}", [V_T0, V_T1], [V_WD]))
    a(S(f"s_mul_i32 s{S_T0}, s{S_B}, 81920", [S_B], [S_T0]))
    a(S(f"s_lshl_b32 s{S_T2}, s{S_HQ}, 8", [S_HQ], [S_T2]))
    a(S(f"s_sub_u32 s{S_T1}, 4194304, s{S_T2}", [S_T2], [S_T1]))
    a(S(f"s_mov_b32 s{S_REDO}, 0", [], [S_REDO]))
    a(S(f"s_lshl_b32 s{S_WC}, s{S_VALID}, 19", [S_VALID], [S_WC]))
    a(S(f"s_mov_b64 s[{S_GM}:{S_GM+1}], -1", [], [S_GM, S_GM+1]))
    o += restart_setup()
    a(S(f"s_mov_b32 s{S_X+2}, 81920", [], [S_X+2])); a(S(f"s_mov_b32 s{S_X+3}, 0x20000", [], [S_X+3]))
    a(S(f"s_mov_b32 s{S_WQ+2}, s{S_T1}", [S_T1], [S_WQ+2])); a(S(f"s_mov_b32 s{S_WQ+3}, 0x20000", [], [S_WQ+3]))
    a(raw("s_waitcnt lgkmcnt(0)", 'wait'))
    o += srd(S_X, 92, add_s=S_T0, size=81920)[:3]
    o += srd(S_WQ, 26, add_s=S_T2, size=0)[:3]
    a(raw("s_load_dwordx4 s[92:95], s[0:1], 8"))
    a(raw(f"s_load_dwordx2 s[{S_WO}:{S_WO+1}], s[0:1], 32"))
    a(raw(f"s_load_dwordx4 s[{S_C}:{S_C+3}], s[0:1], 40"))
    a(raw("s_load_dwordx2 s[100:101], s[0:1], 56"))
    return o

def restart_setup():
    o = [S(f"s_mov_b32 s{S_TAB+q}, {q*16384}", [], [S_TAB+q]) for q in range(5)]
    for c in range(4):
        o.append(S(f"s_lshr_b32 s{S_SO}, s{S_WC}, 12", [S_WC], [S_SO]))
        o.append(S(f"s_add_u32 s{S_SO}, s{S_SO}, {c*256}", [S_SO], [S_SO]))
        o.append(S(f"s_and_b32 s{S_SO}, s{S_SO}, 0x300", [S_SO], [S_SO]))
        o.append(V(f"v_add_u32 v{V_XD4+c}, s{S_SO}, v{V_XD}", [V_XD, ('s', S_SO)], [V_XD4+c]))
    return o

def prologue2():
    o = []; a = o.append
    a(raw("s_waitcnt lgkmcnt(0)", 'wait'))
    a(S(f"s_lshl_b32 s{S_T0}, s{S_B}, 3", [S_B], [S_T0]))
    a(S(f"s_add_u32 s{S_T0}, s{S_T0}, s{S_HKV}", [S_T0, S_HKV], [S_T0]))
    a(S(f"s_lshl_b32 s{S_T0}, s{S_T0}, 2", [S_T0], [S_T0]))
    a(S(f"s_add_u32 s{S_T0}, s{S_T0}, s{S_W}", [S_T0, S_W], [S_T0]))
    a(S(f"s_lshl_b32 s{S_T0}, s{S_T0}, 16", [S_T0], [S_T0]))
    o += srd(S_K, 92, add_s=S_T0, size=65536)
    o += srd(S_V, 94, add_s=S_T0, size=65536)
    a(S(f"s_lshl_b32 s{S_T0}, s{S_HKV}, 19", [S_HKV], [S_T0]))
    o += srd(S_WO, S_WO, add_s=S_T0, size=524288)
    WB = int(opt.wsb) << 20
    o += srd(S_O, 100, add_imm=WB, size=8*5*128*1024)
    o += srd(S_WT, 100, add_imm=WB + WS_WO, size=8*4*20*8*1024)
    o += srd(S_D, S_C + 2, size=256)
    o += srd(S_OUT, S_C, size=655360)
    o += srd(S_C, 100, add_imm=WB + WS_CT, size=262144)
    a(S(f"s_bitcmp1_b32 s{S_HQ}, 0", [S_HQ], []))
    a(S(f"s_mov_b32 s{S_T0}, {hex(kv_pack(0))}", [], [S_T0]))
    a(S(f"s_cselect_b32 s{S_T0}, {hex(kv_pack(1))}, s{S_T0}", [S_T0], [S_T0]))
    a(S(f"s_mov_b32 s{S_T1}, {hex(kv_pack(2))}", [], [S_T1]))
    a(S(f"s_cselect_b32 s{S_T1}, {hex(kv_pack(3))}, s{S_T1}", [S_T1], [S_T1]))
    a(S(f"s_bitcmp1_b32 s{S_HQ}, 1", [S_HQ], []))
    a(S(f"s_cselect_b32 s{S_KVO}, s{S_T1}, s{S_T0}", [S_T0, S_T1], [S_KVO]))
    for p in range(3):
        a(S(f"s_cmp_le_u32 s{S_J}, {p}", [S_J], []))
        a(S(f"s_cselect_b32 s{S_T1}, {p + 1}, {p}", [], [S_T1]))
        a(S(f"s_lshl_b32 s{S_H+p}, s{S_T1}, 17", [S_T1], [S_H+p]))
    a(S(f"s_mul_i32 s{S_W5K}, s{S_W}, 5120", [S_W], [S_W5K]))
    a(S(f"s_lshl_b32 s{S_T0}, s{S_B}, 14", [S_B], [S_T0]))
    a(S(f"s_lshl_b32 s{S_T1}, s{S_W}, 7", [S_W], [S_T1]))
    a(S(f"s_add_u32 s{S_T0}, s{S_T0}, s{S_T1}", [S_T0, S_T1], [S_T0]))
    a(S(f"s_lshl_b32 s{S_F1}, s{S_HQ}, 9", [S_HQ], [S_F1]))
    a(S(f"s_add_u32 s{S_F1}, s{S_F1}, s{S_T0}", [S_F1, S_T0], [S_F1]))
    a(S(f"s_add_u32 s{S_F2}, s{S_F1}, 131072", [S_F1], [S_F2]))
    if int(opt.f2wg): a(S(f"s_andn2_b32 s{S_F2}, s{S_F2}, 0x180", [S_F2], [S_F2]))
    a(S(f"s_lshl_b32 s{S_T1}, s{S_HKV}, 11", [S_HKV], [S_T1]))
    a(S(f"s_lshl_b32 s{S_G1}, s{S_J}, 3", [S_J], [S_G1]))
    a(S(f"s_add_u32 s{S_G1}, s{S_G1}, s{S_T1}", [S_G1, S_T1], [S_G1]))
    a(S(f"s_add_u32 s{S_G1}, s{S_G1}, s{S_T0}", [S_G1, S_T0], [S_G1]))
    a(S(f"s_lshl_b32 s{S_T1}, s{S_J}, 9", [S_J], [S_T1]))
    a(S(f"s_lshl_b32 s{S_G2}, s{S_HKV}, 3", [S_HKV], [S_G2]))
    a(S(f"s_add_u32 s{S_G2}, s{S_G2}, s{S_T1}", [S_G2, S_T1], [S_G2]))
    a(S(f"s_add_u32 s{S_G2}, s{S_G2}, s{S_T0}", [S_G2, S_T0], [S_G2]))
    a(S(f"s_add_u32 s{S_G2}, s{S_G2}, 131072", [S_G2], [S_G2]))
    return o

def prologue3():
    o = []; a = o.append
    a(S(f"s_bfe_u32 s{S_T1}, s{S_WC}, 0x10013", [S_WC], [S_T1]))
    a(S(f"s_lshl_b32 s{S_T1}, s{S_T1}, 3", [S_T1], [S_T1]))
    a(V(f"v_xor_b32 v{V_T1}, s{S_T1}, v{V_N}", [V_N, ('s', S_T1)], [V_T1]))
    for s in range(4):
        a(V(f"v_add_u32 v{V_T0}, {4*s}, v{V_G}", [V_G], [V_T0]))
        a(V(f"v_xor_b32 v{V_T0}, v{V_T0}, v{V_T1}", [V_T0, V_T1], [V_T0]))
        a(V(f"v_lshlrev_b32 v{V_T0}, 4, v{V_T0}", [V_T0], [V_T0]))
        a(V(f"v_lshl_add_u32 v{V_XA+s}, v{V_N}, 8, v{V_T0}", [V_N, V_T0], [V_XA+s]))
        a(V(f"v_add_u32 v{V_XB+s}, {120*KB}, v{V_XA+s}", [V_XA+s], [V_XB+s]))
    a(V(f"v_lshrrev_b32 v{V_T2}, 2, v{V_N}", [V_N], [V_T2]))
    a(V(f"v_bfe_u32 v{V_T3}, v{V_N}, 1, 1", [V_N], [V_T3]))
    a(V(f"v_and_b32 v{V_T4}, 1, v{V_N}", [V_N], [V_T4]))
    a(V(f"v_lshlrev_b32 v{V_T4}, 3, v{V_T4}", [V_T4], [V_T4]))
    a(V(f"v_and_b32 v{V_T5}, 1, v{V_G}", [V_G], [V_T5]))
    a(V(f"v_lshl_add_u32 v{V_T5}, v{V_T5}, 2, v{V_T2}", [V_T5, V_T2], [V_T5]))
    a(V(f"v_lshlrev_b32 v{V_T5}, 1, v{V_T5}", [V_T5], [V_T5]))
    a(S(f"s_lshl_b32 s{S_T1}, s{S_W}, 2", [S_W], [S_T1]))
    a(V(f"v_lshl_add_u32 v{V_T1}, v{V_G}, 3, v{V_T2}", [V_G, V_T2], [V_T1]))
    a(V(f"v_lshl_add_u32 v{V_T1}, v{V_T1}, 8, v{V_T4}", [V_T1, V_T4], [V_T1]))
    for e in range(2):
        a(V(f"v_add3_u32 v{V_T0}, s{S_T1}, v{V_T3}, {2*e}", [V_T3, ('s', S_T1)], [V_T0]))
        a(V(f"v_xor_b32 v{V_T0}, v{V_T0}, v{V_T5}", [V_T0, V_T5], [V_T0]))
        a(V(f"v_lshl_add_u32 v{V_T0}, v{V_T0}, 4, v{V_T1}", [V_T0, V_T1], [V_T0]))
        a(V(f"v_add_u32 v{V_WA+e}, {40*KB}, v{V_T0}", [V_T0], [V_WA+e]))
        a(V(f"v_add_u32 v{V_WB+e}, {96*KB}, v{V_T0}", [V_T0], [V_WB+e]))
    a(V(f"v_lshl_add_u32 v{V_T1}, v{V_G}, 2, v{V_T2}", [V_G, V_T2], [V_T1]))
    n_early = len(o)
    for s in range(4):
        a(V(f"v_add_u32 v{V_KA+s}, s{S_W8K}, v{V_XA+s}", [V_XA+s, ('s', S_W8K)], [V_KA+s]))
    a(V(f"v_lshl_add_u32 v{V_T1}, v{V_T1}, 8, v{V_T4}", [V_T1, V_T4], [V_T1]))
    a(S(f"s_add_u32 s{S_T2}, s{S_W8K}, {64*KB}", [S_W8K], [S_T2]))
    a(V(f"v_add_u32 v{V_T1}, s{S_T2}, v{V_T1}", [V_T1, ('s', S_T2)], [V_T1]))
    a(V(f"v_add_u32 v{V_T3}, s{S_T1}, v{V_T3}", [V_T3, ('s', S_T1)], [V_T3]))
    for lam in range(8):
        a(V(f"v_add_u32 v{V_T0}, {2*lam}, v{V_T3}", [V_T3], [V_T0]))
        a(V(f"v_and_b32 v{V_T0}, 15, v{V_T0}", [V_T0], [V_T0]))
        a(V(f"v_xor_b32 v{V_T0}, v{V_T0}, v{V_T5}", [V_T0, V_T5], [V_T0]))
        a(V(f"v_lshl_add_u32 v{V_VA+lam}, v{V_T0}, 4, v{V_T1}", [V_T0, V_T1], [V_VA+lam]))
    a(V(f"v_xor_b32 v{V_T0}, v{V_N}, v{V_G}", [V_N, V_G], [V_T0]))
    a(V(f"v_lshlrev_b32 v{V_T0}, 4, v{V_T0}", [V_T0], [V_T0]))
    a(V(f"v_lshl_add_u32 v{V_KD}, v{V_G}, 8, v{V_T0}", [V_G, V_T0], [V_KD]))
    for j in range(1, 4):
        a(V(f"v_xor_b32 v{V_KD+j}, {64*j}, v{V_KD}", [V_KD], [V_KD+j]))
    a(V(f"v_lshlrev_b32 v{V_T0}, 1, v{V_G}", [V_G], [V_T0]))
    a(V(f"v_xor_b32 v{V_T0}, v{V_N}, v{V_T0}", [V_N, V_T0], [V_T0]))
    a(V(f"v_lshlrev_b32 v{V_T0}, 4, v{V_T0}", [V_T0], [V_T0]))
    a(V(f"v_lshl_add_u32 v{V_VD}, v{V_G}, 8, v{V_T0}", [V_G, V_T0], [V_VD]))
    a(V(f"v_xor_b32 v{V_VD+1}, 128, v{V_VD}", [V_VD], [V_VD+1]))
    a(V(f"v_lshrrev_b32 v{V_T0}, 1, v{V_G}", [V_G], [V_T0]))
    a(V(f"v_add_u32 v{V_T0}, s{S_T1}, v{V_T0}", [V_T0, ('s', S_T1)], [V_T0]))
    a(V(f"v_xor_b32 v{V_T0}, v{V_T0}, v{V_N}", [V_T0, V_N], [V_T0]))
    a(V(f"v_lshlrev_b32 v{V_T0}, 4, v{V_T0}", [V_T0], [V_T0]))
    a(V(f"v_lshl_add_u32 v{V_T0}, v{V_N}, 8, v{V_T0}", [V_N, V_T0], [V_T0]))
    a(V(f"v_and_b32 v{V_T1}, 1, v{V_G}", [V_G], [V_T1]))
    a(V(f"v_lshl_add_u32 v{V_T0}, v{V_T1}, 3, v{V_T0}", [V_T0, V_T1], [V_T0]))
    a(V(f"v_add_u32 v{V_QW}, {QBUF}, v{V_T0}", [V_T0], [V_QW]))
    a(V(f"v_xor_b32 v{V_QW+1}, 32, v{V_QW}", [V_QW], [V_QW+1]))
    a(V(f"v_lshl_add_u32 v{V_CW}, v{V_LANE}, 4, s{S_W8K}", [V_LANE, ('s', S_W8K)], [V_CW]))
    a(V(f"v_add_u32 v{V_CW+1}, {64*KB}, v{V_CW}", [V_CW], [V_CW+1]))
    a(S(f"s_add_u32 s{S_T0}, s{S_W8K}, {102*KB}", [S_W8K], [S_T0]))
    a(V(f"v_lshl_add_u32 v{V_LW}, v{V_LANE}, 5, s{S_T0}", [V_LANE, ('s', S_T0)], [V_LW]))
    a(S(f"s_mul_i32 s{S_T0}, s{S_B}, 640", [S_B], [S_T0]))
    a(S(f"s_lshl_b32 s{S_T2}, s{S_HQ}, 2", [S_HQ], [S_T2]))
    a(S(f"s_add_u32 s{S_T0}, s{S_T0}, s{S_T2}", [S_T0, S_T2], [S_T0]))
    a(S(f"s_add_u32 s{S_T0}, s{S_T0}, s{S_W}", [S_T0, S_W], [S_T0]))
    a(S(f"s_lshl_b32 s{S_T0}, s{S_T0}, 10", [S_T0], [S_T0]))
    a(V(f"v_lshl_add_u32 v{V_OST}, v{V_LANE}, 4, s{S_T0}", [V_LANE, ('s', S_T0)], [V_OST]))
    a(V(f"v_cmp_eq_u32 vcc, 0, v{V_N}", [V_N], [VCC]))
    a(V(f"v_mov_b32 v{V_T0}, 0x3f803f80", [], [V_T0]))
    for i in range(4):
        a(V(f"v_cndmask_b32 v{V_ONES+i}, 0, v{V_T0}, vcc", [V_T0, VCC], [V_ONES+i]))
    for i in range(20):
        a(V(f"v_mov_b32 v{V_NEGM+i}, 0", [], [V_NEGM+i]))
    return o[:n_early], o[n_early:]

V_QACC = V_VF
def AF(kap):
    return [(100, 120), (128, 148), (208, 156)][kap % 3]
def a_reads(kap):
    u, ks = kap >> 1, kap & 1
    c, s = u >> 1, kap & 3
    xf, wf = AF(kap)
    wb = WU(WSLOT[u], ks)
    xr = []
    for q in range(5):
        xb = XU(c, q)
        reg, base = (V_XA, 0) if xb < 64 * KB else (V_XB, 120 * KB)
        xr.append(dsrd('ds_read_b128', ('v', xf + q * 4), 4, reg + s, xb - base))
    wr = []
    for e in range(2):
        for h in range(2):
            reg, base = (V_WA, 40 * KB) if wb < 96 * KB else (V_WB, 96 * KB)
            wr.append(dsrd('ds_read_b64_tr_b16', ('v', wf + e * 4 + h * 2), 2, reg + e, wb - base + h * 1024))
    return wr[:2] + xr[:1] + wr[2:] + xr[1:]
def a_mfmas(kap):
    o = []
    xf, wf = AF(kap)
    for q in range(5):
        for e in range(2):
            d = ('v', V_QACC + (e * 5 + q) * 4)
            o.append(mfma(d, ('v', wf + e * 4), ('v', xf + q * 4), 0 if kap == 0 else d))
    return o
def lane0(sg, body, lab):
    sg.text(f"s_cmp_lg_u32 s{S_W}, 0"); sg.text(f"s_cbranch_scc1 {lab}")
    sg.text(f"s_mov_b64 s[{S_EX}:{S_EX+1}], exec"); sg.text("s_mov_b64 exec, 1")
    for x in body: sg.text(x)
    sg.text(f"s_mov_b64 exec, s[{S_EX}:{S_EX+1}]")
    sg.text(f"{lab}:")
def phase_a(sg, Q):
    stamp(sg, 1)
    sg.add(barrier(needvm=[('x', 0), ('w', 0)])); Q.mark('B0')
    stamp(sg, 2)
    sg.addall(a_reads(0)); sg.addall(a_reads(1))
    sg.add(S(f"s_mov_b32 s{S_T1}, {f2h(QSCALE)}", [], [S_T1]))
    sg.add(S(f"s_mov_b32 s{S_T2}, {f2h(QSCALE)}", [], [S_T2]))
    for kap in range(14 if int(opt.aq) else 16):
        mf = a_mfmas(kap)
        gaps = [[] for _ in mf]
        nx = kap + 2
        if nx < 16:
            if nx % 2 == 0:
                u = nx >> 1
                need = [('x', u >> 1), ('w', u)]
                while any(it.ins.vmtag in need for it in Q.q):
                    n_ = len(Q.q); weave(sg, Q, [], 1, 0); assert len(Q.q) < n_, (u, Q.q[0].after)
                while True:
                    younger = 0
                    for tg, _w in reversed(sg.vm):
                        if tg in need: break
                        younger += 1
                    n_ = len(Q.q)
                    if younger >= int(opt.la): break
                    weave(sg, Q, [], 1, 0)
                    if len(Q.q) == n_: break
                dr = str(u) in str(opt.drain)
                sg.add(barrier(needvm=need, lg0=dr)); Q.mark(f'B{u}')
                if dr: Q.mark(f'B{u+1}')
                if u in (1, 3, 5, 7): stamp(sg, 5 + u // 2, 'A')
            for i, r in enumerate(a_reads(nx)): gaps[i].append(r)
        mf[0].r |= set(R('v', AF(kap)[0], 20) + R('v', AF(kap)[1], 8))
        pos = [1, 5, 9] if kap % 2 == 0 else [3, 7]
        if int(opt.perstep) == 6: pos = [1, 4, 7] if kap % 2 == 0 else [1, 4, 8]
        if int(opt.perstep) == 7: pos = [1, 4, 6, 9] if kap % 2 == 0 else [2, 5, 8]
        if int(opt.perstep) == 8: pos = [1, 4, 6, 9]
        nkv = sum(1 for it in Q.q if it.ins.vmtag[0] in 'kv')
        room = int(opt.alim) - (128 - nkv) + (len(Q.q) - nkv)
        place(gaps, Q, pos[:max(0, room)])
        if int(opt.aonly): sg.addall([x for x in interleave(mf, gaps) if x.k not in ('mfma', 'dsrd')])
        else: sg.addall(interleave(mf, gaps))
    def qfin(q, e, packed):
        b = V_QACC + (e * 5 + q) * 4
        if packed: f_ = [V(f"v_pk_mul_f32 v[{b+r}:{b+r+1}], v[{b+r}:{b+r+1}], s[{S_T1}:{S_T1+1}]", [b+r, b+r+1], [b+r, b+r+1]) for r in (0, 2)]
        else: f_ = [V(f"v_mul_f32 v{b+r}, s{S_T1}, v{b+r}", [b+r], [b+r]) for r in range(4)]
        f_.append(V(f"v_cvt_pk_bf16_f32 v{b}, v{b}, v{b+1}", [b, b+1], [b]))
        f_.append(V(f"v_cvt_pk_bf16_f32 v{b+1}, v{b+2}, v{b+3}", [b+2, b+3], [b+1]))
        f_.append(dswr('ds_write_b64', V_QW + e, ('v', b), 2, q * 4096, lgtag='qw'))
        return f_
    todo = [(q, e) for q in range(5) for e in range(2)]
    if int(opt.aq):
        m14, m15 = a_mfmas(14), a_mfmas(15)
        m14[0].r |= set(R('v', AF(14)[0], 20) + R('v', AF(14)[1], 8))
        mf = flat([[m14[k], m15[k]] for k in range(10)])
        gaps = [[] for _ in mf]
        gi = 5
        while todo and gi + 3 <= 19:
            f_ = qfin(*todo.pop(0), False)
            gaps[gi] += f_[0:2]; gaps[gi + 1] += f_[2:4]; gaps[gi + 2] += f_[4:6]; gaps[gi + 3] = [f_[6]] + gaps[gi + 3]
            gi += 3
        nkv = sum(1 for it in Q.q if it.ins.vmtag[0] in 'kv')
        place(gaps, Q, [1, 4][:max(0, int(opt.alim) - (128 - nkv))])
        sg.addall(interleave(mf, gaps))
    stamp(sg, 9, 'A')
    for q, e in todo: sg.addall(qfin(q, e, True))
    while any(it.ins.vmtag in (('k', 0, 0), ('k', 0, 1)) for it in Q.q): weave(sg, Q, [], 1, 0)
    b = barrier(lg0=False); b.needlg = ('qw',)
    sg.addall(k_reads(0)); Q.mark(('kr', 0, 0)); Q.mark(('kr', 0, 1))
    sg.add(b); Q.mark('BQ'); Q.mark('B8')
    qr = [dsrd('ds_read_b128', AQ(q, s), 4, V_XB + s, QBUF - 120 * KB + q * 4096) for q in range(5) for s in range(4)]
    return qr

def TQ(tau):
    return divmod(tau, 5) if tau < 30 else (6 + ((tau - 30) & 1), (tau - 30) >> 1)
def qk(tau):
    i, q = TQ(tau)
    o = []
    for s, t in ([(s, t) for t in range(2) for s in range(4)] if int(opt.chain) else [(s, t) for s in range(4) for t in range(2)]):
        if True:
            d = ('v', V_S + (tau & 1) * 8 + t * 4)
            o.append(mfma(d, KF(i, t * 4 + s), AQ(q, s), ('v', V_NEGM + q * 4) if s == 0 else d))
            if s == 0 and int(opt.coal) and tau > 4: o[-1].r |= set(R(*KF(i, t * 4), 16))
    return o
def pv(tau):
    i, q = TQ(tau)
    p = ('v', V_P + (tau & 1) * 4)
    o = [mfma(AO(lam, q), ('v', V_VF + (i & 1) * 32 + lam * 4), p, AO(lam, q) if i else 0) for lam in range(8)]
    if int(opt.coal) and 0 < i < 7: o[0].r |= set(R('v', V_VF + (i & 1) * 32, 24)); o[5].r |= set(R('v', V_VF + (i & 1) * 32 + 24, 8))
    o.insert(0, mfma(LA(q), ('v', V_ONES), p, LA(q) if i else 0))
    return o
def sm(tau):
    b = V_S + (tau & 1) * 8
    p = V_P + (tau & 1) * 4
    e = [T(f"v_exp_f32 v{b+i}, v{b+i}", [b+i], [b+i]) for i in range(8)]
    c = [V(f"v_cvt_pk_bf16_f32 v{p+i}, v{b+2*i}, v{b+2*i+1}", [b+2*i, b+2*i+1], [p+i]) for i in range(4)]
    return e, c
def comb_writes(q):
    o = []
    for jd in range(1, 4):
        for e in range(2):
            u = q * 6 + (jd - 1) * 2 + e
            row = u >> 3
            o.append(dswr('ds_write_b128', V_CW + (row >> 1), AO(2 * jd + e, q), 4, (row & 1) * 32 * KB + (u & 7) * KB, lgtag=('cw', q)))
    o.insert(0, dswr('ds_write_b32', V_LW, LA(q), 1, [0, 4, 16, 20, 24][q], lgtag=('cw', q)))
    return o

def wo_dma(pos, after=None):
    o = []
    for ks in range(4):
        for half in range(2):
            base = (128 * KB if pos < 0 else pos * 32 * KB) + ks * 8 * KB + half * 4 * KB
            if pos < 0:
                pre = [S(f"s_lshl_b32 s{S_SK}, s{S_J}, 17", [S_J], [S_SK])] if ks + half == 0 else []
                h = S_SK
            else: pre, h = [], S_H + pos
            pre += [S(f"s_add_u32 s{S_SO}, s{h}, {ks*32768 + half*16384}", [h], [S_SO]), S(f"s_add_u32 m0, s{S_W1K}, {base}", [S_W1K], [M0])]
            o.append(Item(pre, dma(V_WOD, S_WO, S_SO, 0, ('wo', pos)), after))
    return o
def osib_dma(pos):
    o = []
    for q in range(5):
        pre = [S(f"s_lshr_b32 s{S_SK}, s{S_H+pos}, 5", [S_H+pos], [S_SK])] if q == 0 else []
        pre += [S(f"s_add_u32 s{S_SO}, s{S_SK}, {q*128*KB}", [S_SK], [S_SO]), S(f"s_add_u32 m0, s{S_W5K}, {(140 - 20*pos + q)*KB}", [S_W5K], [M0])]
        o.append(Item(pre, dma(V_OD, S_O, S_SO, 0, ('os', pos), flags=' sc1')))
    return o
def tail_calc():
    o = []; a = o.append
    T0, T1, T2 = 252, 253, 254
    a(V(f"v_lshlrev_b32 v{T0}, 4, v{V_LANE}", [V_LANE], [T0]))
    for jd in range(1, 4):
        a(S(f"s_sub_u32 s{S_T0}, s{S_W}, {jd}", [S_W], [S_T0]))
        a(S(f"s_and_b32 s{S_T0}, s{S_T0}, 3", [S_T0], [S_T0]))
        a(S(f"s_lshl_b32 s{S_T0}, s{S_T0}, 13", [S_T0], [S_T0]))
        a(V(f"v_add_u32 v{V_CR+2*(jd-1)}, s{S_T0}, v{T0}", [T0, ('s', S_T0)], [V_CR+2*(jd-1)]))
        a(V(f"v_add_u32 v{V_CR+2*(jd-1)+1}, {64*KB}, v{V_CR+2*(jd-1)}", [V_CR+2*(jd-1)], [V_CR+2*(jd-1)+1]))
    a(V(f"v_add_u32 v{V_OL}, {96*KB}, v{T0}", [T0], [V_OL]))
    a(V(f"v_add_u32 v{V_OW}, s{S_W5K}, v{V_OL}", [V_OL, ('s', S_W5K)], [V_OW]))
    a(S(f"s_mov_b32 s{S_T0}, {102*KB}", [], [S_T0]))
    a(V(f"v_lshl_add_u32 v{V_LR}, v{V_N}, 5, s{S_T0}", [V_N, ('s', S_T0)], [V_LR]))
    a(S(f"s_add_u32 s{S_T0}, s{S_W8K}, {64*KB}", [S_W8K], [S_T0]))
    for e in range(2):
        a(V(f"v_subrev_u32 v{V_WT+e}, s{S_T0}, v{V_VA+e}", [V_VA+e, ('s', S_T0)], [V_WT+e]))
        a(V(f"v_add_u32 v{V_WT+2+e}, {64*KB}, v{V_WT+e}", [V_WT+e], [V_WT+2+e]))
        a(V(f"v_add_u32 v{V_WT+4+e}, {128*KB}, v{V_WT+e}", [V_WT+e], [V_WT+4+e]))
    for k in range(5): a(S(f"s_mov_b32 s{S_TAB+k}, {k*8192}", [], [S_TAB+k]))
    return o
def handoff_calc():
    o = []; a = o.append
    T0, T1, T2, T3 = 252, 253, 254, 9
    a(S(f"s_lshl_b32 s{S_T0}, s{S_J}, 12", [S_J], [S_T0]))
    a(V(f"v_subrev_u32 v{V_OD}, s{S_T0}, v{V_OST}", [V_OST, ('s', S_T0)], [V_OD]))
    a(S(f"s_lshl_b32 s{S_T0}, s{S_B}, 2", [S_B], [S_T0]))
    a(S(f"s_add_u32 s{S_T0}, s{S_T0}, s{S_J}", [S_T0, S_J], [S_T0]))
    a(S(f"s_mul_i32 s{S_T0}, s{S_T0}, {20*8*KB}", [S_T0], [S_T0]))
    a(S(f"s_mul_i32 s{S_T1}, s{S_W}, {5*8*KB}", [S_W], [S_T1]))
    a(S(f"s_lshl_b32 s{S_T2}, s{S_HKV}, 10", [S_HKV], [S_T2]))
    a(S(f"s_add_u32 s{S_T2}, s{S_T2}, s{S_T1}", [S_T2, S_T1], [S_T2]))
    a(S(f"s_add_u32 s{S_T2}, s{S_T2}, s{S_T0}", [S_T2, S_T0], [S_T2]))
    a(V(f"v_lshl_add_u32 v{V_PS}, v{V_LANE}, 4, s{S_T2}", [V_LANE, ('s', S_T2)], [V_PS]))
    tr = int(opt.otr)
    if tr:
        a(S(f"s_mul_i32 s{S_T1}, s{S_HKV}, 160", [S_HKV], [S_T1]))
        a(V(f"v_add_u32 v{T0}, s{S_T1}, v0", [0, ('s', S_T1)], [T0]))
    else:
        a(S(f"s_lshl_b32 s{S_T1}, s{S_HKV}, 2", [S_HKV], [S_T1]))
        a(S(f"s_add_u32 s{S_T1}, s{S_T1}, s{S_W}", [S_T1, S_W], [S_T1]))
        a(S(f"s_mul_i32 s{S_T1}, s{S_T1}, 40", [S_T1], [S_T1]))
        a(V(f"v_add_u32 v{T0}, s{S_T1}, v{V_LANE}", [V_LANE, ('s', S_T1)], [T0]))
    a(V(f"v_bfe_u32 v{T1}, v{T0}, 5, 1", [T0], [T1]))
    a(V(f"v_and_b32 v{T2}, 7, v{T0}", [T0], [T2]))
    a(V(f"v_lshl_add_u32 v{T1}, v{T1}, 3, v{T2}", [T1, T2], [T1]))
    a(V(f"v_bfe_u32 v{T2}, v{T0}, 3, 2", [T0], [T2]))
    a(V(f"v_lshrrev_b32 v{T0}, 6, v{T0}", [T0], [T0]))
    a(V(f"v_lshl_add_u32 v{T3}, v{T2}, 4, v{T1}", [T1, T2], [T3]))
    a(V(f"v_lshl_add_u32 v{V_PLD}, v{T3}, 4, s{S_T0}", [T3, ('s', S_T0)], [V_PLD]))
    a(V(f"v_lshl_add_u32 v{V_PLD}, v{T0}, 13, v{V_PLD}", [T0, V_PLD], [V_PLD]))
    a(V(f"v_mul_u32_u24 v{T3}, 52, v{T0}", [T0], [T3]))
    a(V(f"v_lshrrev_b32 v{T3}, 8, v{T3}", [T3], [T3]))
    if tr:
        a(V(f"v_and_b32 v{T1}, 8, v{T1}", [T1], [T1]))
        a(V(f"v_bfe_u32 v{T2}, v0, 2, 3", [0], [T2]))
        a(V(f"v_add_u32 v{T1}, v{T1}, v{T2}", [T1, T2], [T1]))
        a(V(f"v_and_b32 v{T2}, 3, v0", [0], [T2]))
    a(V(f"v_lshlrev_b32 v{T2}, {4 if tr else 3}, v{T2}", [T2], [T2]))
    a(V(f"v_lshl_add_u32 v{T2}, v{T3}, 6, v{T2}", [T3, T2], [T2]))
    a(V(f"v_lshl_add_u32 v{T2}, v{T1}, 10, v{T2}", [T1, T2], [T2]))
    a(V(f"v_mul_u32_u24 v{T3}, 5, v{T3}", [T3], [T3]))
    a(V(f"v_sub_u32 v{T0}, v{T0}, v{T3}", [T0, T3], [T0]))
    a(V(f"v_lshl_add_u32 v{T2}, v{T0}, 14, v{T2}", [T0, T2], [T2]))
    a(S(f"s_mul_i32 s{S_T0}, s{S_B}, 81920", [S_B], [S_T0]))
    a(S(f"s_lshl_b32 s{S_T2}, s{S_J}, 8", [S_J], [S_T2]))
    a(S(f"s_add_u32 s{S_T0}, s{S_T0}, s{S_T2}", [S_T0, S_T2], [S_T0]))
    a(V(f"v_add_u32 v{V_OUT}, s{S_T0}, v{T2}", [T2, ('s', S_T0)], [V_OUT]))
    a(V(f"v_cmp_gt_u32 vcc, 160, v0", [0], [VCC]) if tr else V(f"v_cmp_gt_u32 vcc, 40, v{V_LANE}", [V_LANE], [VCC]))
    a(V(f"v_mov_b32 v{T0}, 0x7ff00000", [], [T0]))
    a(V(f"v_cndmask_b32 v{V_PLD}, v{T0}, v{V_PLD}, vcc", [T0, V_PLD, VCC], [V_PLD]))
    a(V(f"v_cndmask_b32 v{V_OUT}, v{T0}, v{V_OUT}, vcc", [T0, V_OUT, VCC], [V_OUT]))
    for pv_, n_, sh, sg_ in ((V_P1, 4, 9, S_G1), (V_P2, 8, 11, S_G2)):
        a(V(f"v_lshl_add_u32 v{pv_}, v{V_LANE}, {sh}, s{sg_}", [V_LANE, ('s', sg_)], [pv_]))
        a(V(f"v_cmp_gt_u32 vcc, {n_}, v{V_LANE}", [V_LANE], [VCC]))
        a(V(f"v_cndmask_b32 v{pv_}, v{T0}, v{pv_}, vcc", [T0, pv_, VCC], [pv_]))
    return o
def wod_calc():
    o = []; a = o.append
    T0, T1 = 252, 253
    a(S(f"s_lshl_b32 s{S_T0}, s{S_B}, 2", [S_B], [S_T0]))
    a(S(f"s_add_u32 s{S_T0}, s{S_T0}, s{S_W}", [S_T0, S_W], [S_T0]))
    a(S(f"s_lshl_b32 s{S_T0}, s{S_T0}, 14", [S_T0], [S_T0]))
    a(S(f"s_lshl_b32 s{S_T2}, s{S_J}, 8", [S_J], [S_T2]))
    a(S(f"s_add_u32 s{S_T0}, s{S_T0}, s{S_T2}", [S_T0, S_T2], [S_T0]))
    a(V(f"v_bfe_u32 v{T0}, v{V_LANE}, 1, 4", [V_LANE], [T0]))
    a(V(f"v_and_b32 v{T1}, 1, v{V_LANE}", [V_LANE], [T1]))
    a(V(f"v_lshlrev_b32 v{T1}, 7, v{T1}", [T1], [T1]))
    a(V(f"v_lshl_add_u32 v{T0}, v{T0}, 10, v{T1}", [T0, T1], [T0]))
    a(V(f"v_add_u32 v{V_TCH}, s{S_T0}, v{T0}", [T0, ('s', S_T0)], [V_TCH]))
    a(S(f"s_and_b32 s{S_T0}, s{S_W}, 1", [S_W], [S_T0]))
    a(S(f"s_lshl_b32 s{S_T0}, s{S_T0}, 3", [S_T0], [S_T0]))
    a(V(f"v_lshl_add_u32 v{T0}, v{V_G}, 1, s{S_T0}", [V_G, ('s', S_T0)], [T0]))
    a(V(f"v_xor_b32 v{T0}, v{V_N}, v{T0}", [V_N, T0], [T0]))
    a(S(f"s_lshl_b32 s{S_T0}, s{S_J}, 8", [S_J], [S_T0]))
    a(V(f"v_lshl_add_u32 v{T0}, v{T0}, 4, s{S_T0}", [T0, ('s', S_T0)], [T0]))
    a(V(f"v_lshl_add_u32 v{T1}, s{S_W}, 2, v{V_G}", [V_G, ('s', S_W)], [T1]))
    a(V(f"v_lshl_add_u32 v{V_WOD}, v{T1}, 10, v{T0}", [T0, T1], [V_WOD]))
    return o

def phase_b(sg, Q, qr):
    NT = 8
    calc = wod_calc() + tail_calc()
    sg.addall(qr[:4])
    qr = qr[4:]
    for tau in range(-1, 40):
        i, q = divmod(tau, 5) if tau >= 0 else (-1, 4)
        mf = []
        bst = [int(x) for x in opt.bst.split(',')]
        if tau in bst: stamp(sg, 5 + bst.index(tau), 'B')
        if tau + 1 < 40: mf += qk(tau + 1)
        if tau - 1 >= 0: mf += pv(tau - 1)
        ds, marks = [], []
        if tau == -1: ds = qr
        elif tau == 0: ds = v_reads(0); marks = [('vr', 0, 0), ('vr', 0, 1)]
        elif tau < 27:
            if q == 2: ds = k_reads(i + 1)[:4]; marks = [('kr', i + 1, 0)]
            if q == 3: ds = k_reads(i + 1)[4:] + v_reads(i + 1)[:2]; marks = [('kr', i + 1, 1)]
            if q == 4: ds = v_reads(i + 1)[2:8]; marks = [('vr', i + 1, 0)]
            if q == 0: ds = v_reads(i)[8:14]
            if q == 1 and i > 0: ds = v_reads(i)[14:]; Q.mark(('vr', i, 1))
        xp = None
        if tau >= 27:
            k6, k7, v6, v7 = k_reads(6), k_reads(7), v_reads(6), v_reads(7)
            vo = [v7[l + 8 * h] for l in range(8) for h in range(2)]
            G = [1, 3, 5, 7, 9, 11, 13, 15, 16]
            def cwp(q_, second):
                w_ = comb_writes(q_)
                if int(opt.w64) and q_ < 2:
                    h_ = []
                    for x in w_[1:]:
                        m_ = re.match(r"ds_write_b128 v(\d+), a\[(\d+):\d+\] offset:(\d+)", x.t)
                        for z in range(2): h_.append(dswr('ds_write_b64', int(m_.group(1)), ('a', int(m_.group(2)) + 2 * z), 2, int(m_.group(3)) + 8 * z, lgtag=x.lgtag))
                    return list(zip([1, 3, 5, 9, 13, 16], h_[6:])) if second else list(zip([7, 1, 3, 5, 9, 13, 16], [w_[0]] + h_[:6]))
                return list(zip([1, 9, 13], w_[4:])) if second else list(zip([7, 1, 9, 13], w_[:4]))
            xp = {27: list(zip([3, 5, 9, 11, 15, 16], k6[:4] + v6[:2])),
                  28: list(zip([1, 3, 5, 7, 9, 11, 13, 15, 16], k6[4:] + k7[:5])),
                  29: list(zip(G, k7[5:] + v6[2:8])),
                  30: list(zip([1, 3, 5, 7, 9, 11, 13, 15, 16, 16], v6[8:] + vo[:2])),
                  31: list(zip([1, 1, 3, 5, 5, 7, 9, 9, 11, 13, 13, 15, 16, 16], vo[2:])),
                  32: [], 33: cwp(0, 0), 34: cwp(0, 1), 35: cwp(1, 0), 36: cwp(1, 1), 37: cwp(2, 0),
                  38: cwp(2, 1) + list(zip([3, 5, 5, 7, 11, 15, 16, 16], lreads((0, 1)) + preads(0)[:4])),
                  39: list(zip([0, 2, 4, 6], comb_writes(3)[:4])) + list(zip([1, 1, 3, 3, 5, 5, 7, 7], preads(0)[4:] + preads(1)))}[tau]
            if int(opt.x1e) and tau >= 36:
                xp = {36: list(zip([1, 5, 9], comb_writes(1)[4:])),
                      37: cwp(2, 0) + list(zip([3, 5, 11, 15, 16, 16], preads(0))),
                      38: cwp(2, 1) + list(zip([3, 5, 5, 7, 11, 15, 16, 16], lreads((0, 1)) + preads(1)[:4])),
                      39: list(zip([1, 3, 5, 7], comb_writes(3)[:4])) + list(zip([0, 8], preads(1)[4:]))}[tau]
            ds = [x for _, x in xp]; marks = []
            if tau == (37 if int(opt.x1e) else 38):
                b = barrier(needvm=[('wo', -1)], lg0=False); b.needlg = (('cw', 0), ('cw', 1)); sg.add(b)
        n = len(mf)
        gaps = [[] for _ in range(n)]
        e, c = sm(tau) if 0 <= tau < 40 else ([], [])
        if n == 17:
            epos = [0, 2, 4, 6, 8, 10, 12, 14]; cpos = [3, 7, 11, 15]
            dpos = [1, 3, 5, 7, 9, 11, 13, 15] if len(ds) > 4 else [1, 3, 5, 7]
            if ds and ds[0].k == 'dswr': dpos = [1, 1, 3, 7, 9, 13, 16]
            vpos = [1, 5, 9, 13] if (tau < int(opt.even_at) or q == 1) else [1, 7, 13]
            if int(opt.bsched) and not (ds and ds[0].k == 'dswr'):
                if q == 1: dpos, vpos = [1, 3], [5, 9, 13, 16]
                elif tau < int(opt.even_at) or tau >= int(opt.even_end): dpos, vpos = ([3, 7, 11, 15, 16, 16] if q != 3 else [1, 3, 7, 11, 15, 16]), ([1, 5, 9, 13] if q != 3 else [5, 9, 13, 16])
                else: dpos, vpos = [3, 5, 9, 11, 15, 16], [1, 7, 13]
        else:
            epos = list(range(8)); cpos = [min(n - 1, x) for x in (2, 4, 6, 8)]
            dpos = [(k * n) // max(1, len(ds)) for k in range(len(ds))]
            vpos = [1, 5]
        if xp is not None:
            dpos = [g_ for g_, _ in xp]; vpos = [int(x) for x in opt.wpos.split(',')] if tau >= 32 else [13]
            if tau == 27: vpos = [1, 7, 13]
        for x, p_ in zip(ds, dpos): gaps[p_].append(x)
        if tau == int(opt.nl_at):
            sg.add(V("v_mov_b32 v9, 0", [], [9]))
            Q.q.insert(0, Item([], vload(('v', V_GC), 2, 9, S_D, None, 0, flags=' sc1', tag='non')))
        if tau == int(opt.nc_at):
            assert not any(it.ins.vmtag == 'non' for it in Q.q)
            sg.add(V(f"v_readfirstlane_b32 s{S_NON}, v{V_GC}", [V_GC], [('s', S_NON)]))
            sg.add(V(f"v_readfirstlane_b32 s{S_NON+1}, v{V_GC+1}", [V_GC+1], [('s', S_NON+1)]))
            sg.add(S(f"s_cmp_eq_u64 s[{S_NON}:{S_NON+1}], 0", [S_NON, S_NON+1], []))
            sg.text("s_cbranch_scc1 L_spin_n"); sg.text("L_back_n:")
        if tau == 32: stamp_out(sg, 1) if opt.stamps == 'Z' else None
        if tau == int(opt.bar_at): sg.add(barrier(lg0=False))
        for x in ds:
            while any(it.ins.vmtag in x.needvm for it in Q.q): weave(sg, Q, [], 1, 0)
        if tau == int(opt.tch_at): Q.push([Item([], vload(('v', V_TCH + 1), 1, V_TCH, S_WO, None, 0, flags=opt.tch_flags))])
        if tau == int(opt.tlb_at):
            Q.push([Item([], vload(('v', 72), 1, V_ZERO, S_C, S_F1, 0, flags=' sc1')), Item([], vload(('v', 73), 1, V_ZERO, S_C, S_F2, 0, flags=' sc1'))])
        if tau == int(opt.otch_at): Q.push([Item([], vload(('v', 66), 1, V_OUT, S_OUT, None, 0, flags=opt.otch_flags))])
        if tau == int(opt.wo_at): assert not calc; Q.push(wo_dma(-1))
        place(gaps, Q, vpos)
        for x, p_ in zip(e, epos): gaps[p_].append(x)
        for x, p_ in zip(c, cpos): gaps[p_].append(x)
        if tau >= int(opt.calc_at) and n == 17:
            for gi in range(17):
                if calc and calc[0].k == 'salu' and not any(y.k == 'salu' for y in gaps[gi]): gaps[gi].insert(0, calc.pop(0))
                cost = sum(8 if y.k == 'trans' else 0 if y.k == 'salu' else 4 for y in gaps[gi])
                while calc and calc[0].k != 'salu' and cost <= 4: gaps[gi].append(calc.pop(0)); cost += 4
        sg.addall(interleave(mf, gaps))
        for m in marks: Q.mark(m)

def poll(sg, lab, vaddr):
    sg.text(f"s_mov_b32 s{S_SPIN}, {opt.spin}")
    sg.text(f"{lab}:")
    sg.text(f"buffer_load_dwordx2 v[250:251], v{vaddr}, s[{S_C}:{S_C+3}], 0 offen sc1")
    sg.text(f"s_sub_u32 s{S_SPIN}, s{S_SPIN}, 1")
    sg.text("s_waitcnt vmcnt(0)")
    sg.text(f"v_cmp_ne_u64 vcc, s[{S_NON}:{S_NON+1}], v[250:251]")
    sg.text(f"s_cmp_eq_u32 s{S_SPIN}, 0")
    sg.text(f"s_cbranch_scc1 {lab}_done")
    sg.text("s_nop 2")
    sg.text(f"s_cbranch_vccnz {lab}")
    sg.text(f"{lab}_done:")
    sg.vm = []
def raise_flag(sg, stage, tag):
    ins = vstore(('v', V_GC), 2, V_P1 if stage == 1 else V_P2, S_C, None, 0, flags=' sc1')
    ins.needvm = (tag,)
    sg.add(ins)
WOF = A_Q
RES = 100
def part(q, k):
    if q == 0: return 36 + 4 * k if k < 4 else 64 + 4 * (k - 4)
    return {1: 100, 2: 164, 3: 188, 4: 100}[q] + 4 * k
def preads(q):
    o = []
    for jd in range(1, 4):
        for e in range(2):
            k = (jd - 1) * 2 + e; u = q * 6 + k; row = u >> 3
            o.append(dsrd('ds_read_b128', ('v', part(q, k)), 4, V_CR + 2 * (jd - 1) + (row >> 1), (row & 1) * 32 * KB + (u & 7) * KB))
    return o
LSA, LSB = 124, 76
def lreads(qs):
    if qs == (0, 1): return [dsrd('ds_read_b64', ('v', LSA + src * 2), 2, V_LR, src * 8 * KB) for src in range(4)]
    if qs == (2, 3): return [dsrd('ds_read_b64', ('v', LSB + src * 4), 2, V_LR, src * 8 * KB + 16) for src in range(4)]
    if qs == (4,): return [dsrd('ds_read_b32', ('v', LSB + src * 4 + 2), 1, V_LR, src * 8 * KB + 24) for src in range(4)]
    return [dsrd('ds_read_b128', ('v', LSB + src * 4), 4, V_LR, src * 8 * KB + 16) for src in range(4)]
def lsum(qs):
    w = []
    def lr(src, q): return LSA + src * 2 + q if q < 2 else LSB + src * 4 + q - 2
    LS = lr(0, qs[0])
    for q in qs:
        d = V_T0 + q
        w.append(V(f"v_add_f32 v{d}, v{lr(0,q)}, v{lr(1,q)}", [lr(0,q), lr(1,q)], [d]))
        w.append(V(f"v_add_f32 v{lr(2,q)}, v{lr(2,q)}, v{lr(3,q)}", [lr(2,q), lr(3,q)], [lr(2,q)]))
        w.append(V(f"v_add_f32 v{d}, v{d}, v{lr(2,q)}", [d, lr(2,q)], [d]))
    lo_, hi_ = LS, LS + 1
    if len(qs) == 1: lo_ = hi_ = V_T0 + qs[0]
    else:
        a_, b_, c_ = V_T0 + qs[0], V_T0 + qs[1], V_T0 + qs[-1]
        w.append(V(f"v_min3_f32 v{LS}, v{a_}, v{b_}, v{c_}", [a_, b_, c_], [LS]))
        w.append(V(f"v_add_f32 v{LS+1}, v{a_}, v{b_}", [a_, b_], [LS+1]))
        if len(qs) == 3: w.append(V(f"v_add_f32 v{LS+1}, v{LS+1}, v{c_}", [LS+1, c_], [LS+1]))
    w.append(V(f"v_cmp_nle_f32 vcc, {f2h(2.0**int(opt.lo_exp))}, v{lo_}", [lo_], [VCC]))
    w.append(S(f"s_mov_b64 s[{S_EX}:{S_EX+1}], vcc", [VCC], [S_EX, S_EX+1]))
    w.append(V(f"v_cmp_nge_f32 vcc, {f2h(2.0**int(opt.hi_exp))}, v{hi_}", [hi_], [VCC]))
    w.append(S(f"s_or_b64 vcc, vcc, s[{S_EX}:{S_EX+1}]", [VCC, S_EX, S_EX+1], [VCC]))
    w.append(S(f"s_and_b64 vcc, vcc, s[{S_GM}:{S_GM+1}]", [VCC], [VCC]))
    w.append(raw("s_cbranch_vccnz L_redo"))
    for q in qs: w.append(T(f"v_rcp_f32 v{V_T0+q}, v{V_T0+q}", [V_T0+q], [V_T0+q]))
    return w
def finish(q):
    w = []
    for e in range(2):
        o_ = V_OWN[q] + e * 4
        for jd in range(1, 4):
            p_ = part(q, (jd - 1) * 2 + e)
            for r in (0, 2):
                w.append(V(f"v_pk_add_f32 v[{o_+r}:{o_+r+1}], v[{o_+r}:{o_+r+1}], v[{p_+r}:{p_+r+1}]", [o_+r, o_+r+1, p_+r, p_+r+1], [o_+r, o_+r+1]))
    o_ = V_OWN[q]
    ri = V_T0 + (q & ~1); sel = "op_sel:[0,1] op_sel_hi:[1,1]" if q & 1 else "op_sel:[0,0] op_sel_hi:[1,0]"
    for r in range(0, 8, 2):
        w.append(V(f"v_pk_mul_f32 v[{o_+r}:{o_+r+1}], v[{o_+r}:{o_+r+1}], v[{ri}:{ri+1}] {sel}", [o_+r, o_+r+1, V_T0+q], [o_+r, o_+r+1]))
    for r in range(4):
        w.append(V(f"v_cvt_pk_bf16_f32 v{o_+r}, v{o_+2*r}, v{o_+2*r+1}", [o_+2*r, o_+2*r+1], [o_+r]))
    w.append(S(f"s_mov_b32 s{S_SV}, {q*128*KB}", [], [S_SV]))
    w.append(vstore(('v', o_), 4, V_OST, S_O, S_SV, 0, flags=opt.o_flags, tag='ost'))
    return w
def wor():
    return [dsrd('ds_read_b64_tr_b16', ('a', WOF + (ks * 2 + e) * 4 + h * 2), 2, V_WT + 4 + e, ks * 8 * KB + h * 4096) for ks in range(4) for e in range(2) for h in range(2)]
def combine(sg, Q):
    assert not Q.q
    mf = pv(39); gaps = [[] for _ in mf]
    wr = comb_writes(3)[4:]; ls = lsum((0, 1))
    for k, x in enumerate(wr): gaps[3 * k].append(x)
    k = 0
    for gi in range(9):
        n_ = 2 - len(gaps[gi])
        while ls and (n_ > 0 or ls[0].k == 'salu') and gi < 9:
            x = ls.pop(0); gaps[gi].append(x)
            n_ -= 0 if x.k == 'salu' else 2 if x.k == 'trans' else 1
    sg.addall(interleave(mf, gaps))
    stamp(sg, 4)
    if int(opt.c3):
        sg.addall(ls + finish(0))
        b = barrier(lg0=False); b.needlg = (('cw', 2), ('cw', 3)); sg.add(b)
        w4 = comb_writes(4)
        rd = lreads((2, 3)) + preads(2) + preads(3)
        for k in range(len(rd)):
            sg.add(rd[k])
            if k % 3 == 1 and w4: sg.add(w4.pop(0))
        w = finish(1) + lsum((2, 3)) + finish(2)
        for k, x in enumerate(w4): w.insert(4 + 8 * k, x)
        sg.addall(w)
        sg.add(barrier())
        stamp(sg, 5)
        Q.push(wo_dma(0))
        rd = lreads((4,)) + preads(4)
        weave(sg, Q, rd, int(opt.cw), 5)
        sg.addall(rd + finish(3) + lsum((4,)) + finish(4))
        stamp(sg, 6)
        return
    w4 = comb_writes(4)
    w = ls + finish(0) + finish(1)
    for k, x in enumerate(w4): w.insert(min(len(w), 6 + k * 6), x)
    sg.addall(w)
    sg.add(barrier())
    stamp(sg, 5)
    Q.push(wo_dma(0))
    rd = lreads((2, 3, 4)) + preads(2) + preads(3)
    weave(sg, Q, rd, int(opt.cw), 2)
    sg.addall(rd)
    w = lsum((2, 3, 4)) + preads(4) + finish(2) + finish(3) + finish(4)
    if not int(opt.worlate):
        for k, x in enumerate(wor()): w.insert(30 + 3 * k, x)
    sg.addall(w)
    stamp(sg, 6)

def phase_c(sg, Q):
    a = sg.add
    ACC = 164
    a(barrier())
    stamp(sg, 5, 'D')
    for q in range(5): a(dswr('ds_write_b128', V_OW, ('v', V_OWN[q]), 4, q * KB))
    Q.push(wo_dma(1) + wo_dma(2))
    wr_ = wor() if int(opt.worlate) else []
    weave(sg, Q, wr_, int(opt.shadow), 3)
    sg.addall(wr_)
    stamp(sg, 6, 'D')
    a(barrier())
    def CF(k): return [(100, 120), (64, 84), (204, 36)][k % 3]
    def c_reads(k):
        pos, ks = divmod(k, 4); pos -= 1
        xf, wf = CF(k)
        ob = 0 if pos < 0 else (44 - 20 * pos) * KB
        xr = [dsrd('ds_read_b128', ('v', xf + q * 4), 4, V_OL, ob + (ks * 5 + q) * KB) for q in range(5)]
        if pos < 0: return xr
        wb = (pos * 4 + ks) * 8 * KB
        wr = [dsrd('ds_read_b64_tr_b16', ('v', wf + e * 4 + h * 2), 2, V_WT + (2 if wb >= 64 * KB else 0) + e, (wb % (64 * KB)) + h * 4096) for e in range(2) for h in range(2)]
        return wr[:2] + xr[:1] + wr[2:] + xr[1:]
    def c_mfmas(k):
        xf, wf = CF(k)
        ff = 'v'
        if k < 4: wf, ff = WOF + k * 8, 'a'
        o = []
        for q in range(5):
            for e in range(2):
                d = ('v', ACC + (q * 2 + e) * 4)
                o.append(mfma(d, (ff, wf + e * 4), ('v', xf + q * 4), 0 if k == 0 else d))
        o[0].r |= set(R('v', xf, 20) + R(ff, wf, 8))
        return o
    def step(k, nx, pos=()):
        mf = c_mfmas(k); gaps = [[] for _ in mf]
        if nx is not None:
            for i, r in enumerate(c_reads(nx)): gaps[i].append(r)
        place(gaps, Q, pos)
        sg.addall(interleave(mf, gaps))
    def own_steps():
        for k in range(4): step(k, k + 2 if k < 2 else None, [1, 5, 9] if k % 2 == 0 else [3, 7])
    sg.addall(c_reads(0)); sg.addall(c_reads(1))
    raise_flag(sg, 1, 'ost')
    stamp(sg, 7, 'D'); stamp(sg, 7)
    weave(sg, Q, [], min(len(Q.q), int(opt.pf)), 0)
    held = Q.q; Q.q = []
    stamp(sg, 8, 'D')
    t = [f"s_mov_b32 s{S_SPIN}, {opt.spin}", "L_poll1:", f"s_load_dwordx8 s[4:11], s[{S_C}:{S_C+1}], s{S_F1} glc", f"s_sub_u32 s{S_SPIN}, s{S_SPIN}, 1", "s_waitcnt lgkmcnt(0)",
         f"s_cmp_eq_u32 s{S_SPIN}, 0", "s_cbranch_scc1 L_poll1_done"]
    t += [f"s_lshl_b32 s{S_T0}, 1, s{S_J}"]
    for h in range(4): t += [f"s_cmp_eq_u64 s[{4+2*h}:{5+2*h}], s[{S_NON}:{S_NON+1}]", f"s_cselect_b32 s{S_T1}, {1 << h}, 0", f"s_or_b32 s{S_T0}, s{S_T0}, s{S_T1}"]
    t += [f"s_cmp_lg_u32 s{S_T0}, 15", "s_cbranch_scc1 L_poll1", "L_poll1_done:"]
    for x in t: sg.text(x)
    sg.lg = []
    stamp(sg, 9, 'D')
    stamp(sg, 5, 'E')
    stamp(sg, 8)
    assert all(it.ins.vmtag == ('wo', 2) for it in held)
    Q.push(osib_dma(0) + osib_dma(1) + held)
    weave(sg, Q, [], 5, 0); own_steps()
    weave(sg, Q, [], len(Q.q), 0)
    stamp(sg, 6, 'E')
    a(barrier(needvm=[('os', 0), ('wo', 0), ('wo', 1)]))
    stamp(sg, 7, 'E')
    Q.push(osib_dma(2))
    sg.addall(c_reads(4)); sg.addall(c_reads(5))
    def pfin(q):
        b = ACC + q * 8
        return [V(f"v_cvt_pk_bf16_f32 v{b+r}, v{b+2*r}, v{b+2*r+1}", [b+2*r, b+2*r+1], [b+r]) for r in range(4)] + [vstore(('v', b), 4, V_PS, S_WT, S_TAB + q, 0, flags=' sc1', tag='pst')]
    last = 16 - (2 if int(opt.qmaj) else 0)
    for k in range(4, last):
        nx = k + 2 if k + 2 < 16 else None
        if nx in (8, 12):
            assert not Q.q or nx == 8
            a(barrier(needvm=[('os', nx // 4 - 1), ('wo', nx // 4 - 1)], lg0=False))
            stamp(sg, 8 if nx == 8 else 9, 'E')
        step(k, nx, [1, 5, 9] if k % 2 == 0 else [3, 7])
    if int(opt.qmaj):
        m14, m15 = c_mfmas(14), c_mfmas(15)
        m15[0].r -= set(R('v', CF(15)[0] + 4, 16))
        mf = flat([[m14[2*q], m15[2*q], m14[2*q+1], m15[2*q+1]] for q in range(5)])
        gaps = [[] for _ in mf]
        for q in range(4):
            f_ = pfin(q)
            g0 = 4 * q + 6
            if g0 + 2 < 20:
                gaps[g0] += f_[0:2]; gaps[g0 + 1] += f_[2:4]; gaps[g0 + 2] += f_[4:]
        sg.addall(interleave(mf, gaps))
        stamp(sg, 9)
        sg.addall(pfin(3) + pfin(4))
    else:
        stamp(sg, 9)
        for q in range(5): sg.addall(pfin(q))
    a(S(f"s_mov_b32 s{S_SO}, 4096", [], [S_SO]))
    a(S(f"s_mov_b32 s{S_T1}, 0xffff0000", [], [S_T1]))
    a(S(f"s_mov_b32 s{S_SPIN}, {opt.spin}", [], [S_SPIN]))
    a(S(f"s_mov_b32 s{S_T2}, 0", [], [S_T2]))
    a(S(f"s_mov_b32 s{S_SK}, 0", [], [S_SK]))
    if int(opt.f2wg):
        a(barrier(needvm=['pst'], lg0=False))
        sg.text(f"s_cmp_lg_u32 s{S_W}, 0"); sg.text("s_cbranch_scc1 L_sig2"); raise_flag(sg, 2, 'pst'); sg.text("L_sig2:")
    else: raise_flag(sg, 2, 'pst')
    stamp(sg, 5, '2')
    if int(opt.otr):
        a(V("v_lshlrev_b32 v11, 4, v0", [0], [11]))
        a(V("v_and_b32 v10, 0xe0, v0", [0], [10])); a(V("v_lshlrev_b32 v10, 4, v10", [10], [10]))
        a(V("v_and_b32 v12, 7, v0", [0], [12])); a(V("v_lshl_add_u32 v10, v12, 6, v10", [12, 10], [10]))
        a(V("v_bfe_u32 v12, v0, 3, 2", [0], [12])); a(V("v_lshl_add_u32 v10, v12, 3, v10", [12, 10], [10]))
        sg.text(f"s_cmp_eq_u32 s{S_W}, 3"); sg.text("s_cbranch_scc1 L_fin")
    PB, SM = 100, 132
    def pl(h): return vload(('v', PB + 4 * h), 4, V_PLD, S_WT, S_SO if h >= 4 else None, (h & 3) * 1024, flags=' sc1')
    t = ["L_poll2:", f"s_load_dwordx16 s[4:19], s[{S_C}:{S_C+1}], s{S_F2} glc", f"s_cmp_eq_u32 s{S_SK}, 0", "s_cbranch_scc1 L_nounp", "L_unp:", "s_waitcnt vmcnt(0)"]
    for h in range(8):
        t += [f"s_bitcmp1_b32 s{S_SK}, {h}", f"s_cbranch_scc0 L_u{h}"]
        for r in range(4): t += [f"v_lshlrev_b32 v{SM+8*h+2*r}, 16, v{PB+4*h+r}", f"v_and_b32 v{SM+8*h+2*r+1}, s{S_T1}, v{PB+4*h+r}"]
        t += [f"L_u{h}:"]
    t += [f"s_cmp_eq_u32 s{S_T2}, 0xff", "s_cbranch_scc1 L_poll2_done", "L_nounp:", f"s_mov_b32 s{S_SK}, 0", f"s_sub_u32 s{S_SPIN}, s{S_SPIN}, 1", "s_waitcnt lgkmcnt(0)",
          f"s_cmp_eq_u32 s{S_SPIN}, 0", "s_cbranch_scc1 L_poll2_done"]
    for h in range(8):
        t += [f"s_cmp_lg_u64 s[{4+2*h}:{5+2*h}], s[{S_NON}:{S_NON+1}]", f"s_cbranch_scc1 L_g{h}", f"s_bitcmp1_b32 s{S_T2}, {h}", f"s_cbranch_scc1 L_g{h}",
              f"s_bitset1_b32 s{S_T2}, {h}", f"s_bitset1_b32 s{S_SK}, {h}", pl(h).t, f"L_g{h}:"]
    t += [f"s_cmp_lg_u32 s{S_T2}, 0xff", "s_cbranch_scc1 L_poll2", "s_branch L_unp", "L_poll2_done:"]
    if not int(opt.unp):
        t = ["L_poll2:", f"s_load_dwordx16 s[4:19], s[{S_C}:{S_C+1}], s{S_F2} glc", f"s_sub_u32 s{S_SPIN}, s{S_SPIN}, 1", "s_waitcnt lgkmcnt(0)", f"s_cmp_eq_u32 s{S_SPIN}, 0", "s_cbranch_scc1 L_poll2_done"]
        for h in range(8):
            t += [f"s_cmp_lg_u64 s[{4+2*h}:{5+2*h}], s[{S_NON}:{S_NON+1}]", f"s_cbranch_scc1 L_g{h}", f"s_bitcmp1_b32 s{S_T2}, {h}", f"s_cbranch_scc1 L_g{h}",
                  f"s_bitset1_b32 s{S_T2}, {h}", f"s_bitset1_b32 s{S_SK}, {h}", pl(h).t, f"L_g{h}:"]
        t += [f"s_cmp_eq_u32 s{S_T2}, 0xff", "s_cbranch_scc1 L_poll2_done", f"s_mov_b32 s{S_SK}, 0", "s_branch L_poll2", "L_poll2_done:"]
        t += ["s_waitcnt vmcnt(0)"]
        for h in range(8):
            for r in range(4): t += [f"v_lshlrev_b32 v{SM+8*h+2*r}, 16, v{PB+4*h+r}", f"v_and_b32 v{SM+8*h+2*r+1}, s{S_T1}, v{PB+4*h+r}"]
    for x in t: sg.text(x)
    sg.vm = []
    stamp(sg, 6, '2')
    for h in range(1, 8):
        for r in range(0, 8, 2):
            u = SM + 8 * h + r
            a(V(f"v_pk_add_f32 v[{SM+r}:{SM+r+1}], v[{SM+r}:{SM+r+1}], v[{u}:{u+1}]", [SM+r, SM+r+1, u, u+1], [SM+r, SM+r+1]))
    for r in range(4):
        a(V(f"v_cvt_pk_bf16_f32 v{SM+r}, v{SM+2*r}, v{SM+2*r+1}", [SM+2*r, SM+2*r+1], [SM+r]))
    if int(opt.otr):
        a(dswr('ds_write_b64', 10, ('v', SM), 2, 0)); a(dswr('ds_write_b64', 10, ('v', SM + 2), 2, 32))
        r_ = dsrd('ds_read_b128', ('v', SM + 4), 4, 11, 0); r_.needlg = ('*',); a(r_)
        a(vstore(('v', SM + 4), 4, V_OUT, S_OUT, None, 0, flags=opt.out_flags))
    elif not int(opt.noout):
        a(vstore(('v', SM), 2, V_OUT, S_OUT, None, 0, flags=opt.out_flags))
        a(vstore(('v', SM + 2), 2, V_OUT, S_OUT, None, 32, flags=opt.out_flags))

def out_of_line():
    t = []
    t += ["L_spin_n:", f"s_mov_b32 s{S_SPIN}, {opt.spin}", "L_spin_n1:",
          f"buffer_load_dwordx2 v[{V_GC}:{V_GC+1}], v9, s[{S_D}:{S_D+3}], 0 offen sc1", f"s_sub_u32 s{S_SPIN}, s{S_SPIN}, 1", "s_waitcnt vmcnt(0)",
          f"v_readfirstlane_b32 s{S_NON}, v{V_GC}", f"v_readfirstlane_b32 s{S_NON+1}, v{V_GC+1}", f"s_cmp_eq_u32 s{S_SPIN}, 0", "s_cbranch_scc1 L_back_n", "s_nop 2",
          f"s_cmp_eq_u64 s[{S_NON}:{S_NON+1}], 0", "s_cbranch_scc1 L_spin_n1", "s_branch L_back_n"]
    t += ["; a row sum left the safe range - start over with the true row maxima", "L_redo:", f"s_mov_b64 s[{S_GM}:{S_GM+1}], 0", f"s_mov_b32 s{S_REDO}, 1",
          "s_waitcnt vmcnt(0) lgkmcnt(0)", "s_barrier"]
    sg = Seg()
    p1 = prologue1()
    a = sg.add
    a(V(f"v_lshl_add_u32 v{V_T0}, s{S_W}, 2, v{V_G}", [V_G], [V_T0]))
    a(V(f"v_xor_b32 v{V_T1}, v{V_N}, v{V_T0}", [V_N, V_T0], [V_T1]))
    a(V(f"v_lshlrev_b32 v{V_T1}, 4, v{V_T1}", [V_T1], [V_T1]))
    a(V(f"v_lshl_add_u32 v{V_XD}, v{V_T0}, 10, v{V_T1}", [V_T0, V_T1], [V_XD]))
    a(S(f"s_and_b32 s{S_T0}, s{S_W}, 2", [S_W], [S_T0]))
    a(S(f"s_lshl_b32 s{S_T0}, s{S_T0}, 2", [S_T0], [S_T0]))
    a(V(f"v_lshl_add_u32 v{V_T1}, v{V_G}, 1, s{S_T0}", [V_G], [V_T1]))
    a(V(f"v_xor_b32 v{V_T1}, v{V_N}, v{V_T1}", [V_N, V_T1], [V_T1]))
    a(V(f"v_lshlrev_b32 v{V_T1}, 4, v{V_T1}", [V_T1], [V_T1]))
    a(V(f"v_lshl_add_u32 v{V_WD}, v{V_T0}, 13, v{V_T1}", [V_T0, V_T1], [V_WD]))
    t += sg.out + ["s_nop 4", "s_branch L_restart"]
    sg = Seg(); a = sg.add
    sg.text("; true row maxima over all keys -> negated into the accumulator seed of S")
    sg.text("L_max:")
    sg.text(f"s_mov_b32 s{S_SPIN}, m0")
    sg.drain()
    sg.text("s_barrier")
    MX, KF, AD = 76, V_VF, 84
    for q in range(5): a(V(f"v_mov_b32 v{MX+q}, 0xff800000", [], [MX+q]))
    for s in range(4): a(V(f"v_add_u32 v{AD+s}, {96*KB}, v{V_KA+s}", [V_KA+s], [AD+s]))
    a(S(f"s_mov_b32 s{S_T2}, 0", [], [S_T2]))
    sg.text("L_max_loop:"); sg.reset_hist()
    for j in range(8):
        if j % 4 == 0:
            a(S(f"s_add_u32 s{S_T1}, s{S_T2}, {(j>>2)*4096}", [S_T2], [S_T1]))
            a(S(f"s_add_u32 m0, s{S_W8K}, {96*KB + (j>>2)*4096}", [S_W8K], [M0]))
        a(dma(V_KD + (j & 3), S_K, S_T1, 1024 * (j & 3), 'mk'))
    for t_ in range(2):
        for s in range(4):
            a(dsrd('ds_read_b128', ('v', KF + (t_ * 4 + s) * 4), 4, AD + s, t_ * 4096, needvm=['mk']))
    for q in range(5):
        for t_ in range(2):
            d = ('v', 88 + t_ * 4)
            for s in range(4): a(mfma(d, ('v', KF + (t_ * 4 + s) * 4), AQ(q, s), 0 if s == 0 else d))
        for k in range(4):
            a(V(f"v_max3_f32 v{MX+q}, v{MX+q}, v{88+2*k}, v{89+2*k}", [MX+q, 88+2*k, 89+2*k], [MX+q]))
    sg.drain()
    a(S(f"s_add_u32 s{S_T2}, s{S_T2}, 8192", [S_T2], [S_T2]))
    sg.text(f"s_cmp_lt_u32 s{S_T2}, 65536"); sg.text("s_nop 4"); sg.text("s_cbranch_scc1 L_max_loop")
    sg.text("s_barrier")
    a(S(f"s_mul_i32 s{S_T0}, s{S_W}, 1280", [S_W], [S_T0]))
    a(S(f"s_add_u32 s{S_T0}, s{S_T0}, {96*KB}", [S_T0], [S_T0]))
    a(V(f"v_lshl_add_u32 v{AD}, v{V_LANE}, 2, s{S_T0}", [V_LANE], [AD]))
    a(S(f"s_mov_b32 s{S_T0}, {96*KB}", [], [S_T0]))
    a(V(f"v_lshl_add_u32 v{AD+1}, v{V_N}, 2, s{S_T0}", [V_N], [AD+1]))
    for q in range(5): a(dswr('ds_write_b32', AD, ('v', MX + q), 1, q * 256))
    a(barrier())
    for q in range(5):
        for k in range(16):
            a(dsrd('ds_read_b32', ('v', KF + k), 1, AD + 1, (k >> 2) * 1280 + q * 256 + (k & 3) * 64))
        for k in range(8):
            a(V(f"v_max3_f32 v{MX+q}, v{MX+q}, v{KF+2*k}, v{KF+2*k+1}", [MX+q, KF+2*k, KF+2*k+1], [MX+q]))
        for r in range(4):
            a(V(f"v_sub_f32 v{V_NEGM+q*4+r}, 0, v{MX+q}", [MX+q], [V_NEGM+q*4+r]))
    sg.drain()
    sg.text("s_barrier"); sg.text(f"s_mov_b32 m0, s{S_SPIN}"); sg.text("s_nop 4"); sg.text("s_branch L_back_max")
    return t + sg.out

def stamp_out(sg, n):
    if not opt.stamps or (opt.stamps == 'Z' and n > 1): return
    if opt.stamps == 'Z':
        for x in ["s_load_dwordx2 s[76:77], s[0:1], 56", "s_waitcnt lgkmcnt(0)", f"s_add_u32 s76, s76, {16<<20}", "s_addc_u32 s77, s77, 0", "s_and_b32 s77, s77, 0xffff",
                  "s_mov_b32 s78, 0x100000", "s_mov_b32 s79, 0x20000", "s_lshl_b32 s80, s2, 2", "s_add_u32 s80, s80, s32", "s_lshl_b32 s80, s80, 6", "v_mov_b32 v74, s80",
                  "v_mov_b32 v75, s3", "buffer_store_dword v75, v74, s[76:79], 0 offen sc1"]: sg.text(x)
        return
    stamp(sg, n - 1)
    t = ["s_load_dwordx2 s[4:5], s[0:1], 56", "s_waitcnt lgkmcnt(0)", f"s_add_u32 s4, s4, {16<<20}", "s_addc_u32 s5, s5, 0", "s_and_b32 s5, s5, 0xffff",
         "s_mov_b32 s6, 0x100000", "s_mov_b32 s7, 0x20000", "s_lshl_b32 s8, s2, 2", "s_add_u32 s8, s8, s32", "s_lshl_b32 s8, s8, 6", "v_mov_b32 v2, s8"]
    for i in range(n):
        t += [f"v_mov_b32 v3, s{3 if i == 0 else 76+2*i}", f"buffer_store_dword v3, v2, s[4:7], 0 offen offset:{4*i} sc1"]
    for x in t: sg.text(x)

def kernel():
    sg = Seg()
    sg.text(NAME + "_kernel:")
    sg.text("s_cmp_ge_u32 s2, 256")
    sg.text("s_cbranch_scc1 L_end")
    if opt.stamps:
        stamp(sg, 0)
    p1 = prologue1()
    sg.addall(p1[:2])
    if int(opt.cpf):
        for x in ["s_getpc_b64 s[94:95]", "L_pc:", "s_lshr_b32 s3, s2, 3", "v_lshrrev_b32 v8, 6, v0", "v_and_b32 v9, 1, v0", "v_lshl_add_u32 v8, v8, 1, v9",
                  "v_lshl_add_u32 v8, s3, 3, v8", "v_lshlrev_b32 v8, 7, v8", "v_min_u32 v8, (L_code_end - L_pc - 4) & 0xffffff80, v8"] + (["global_load_dword v255, v8, s[94:95]"] if int(opt.cpf) == 1 else ["s_mov_b64 s[12:13], s[94:95]"]): sg.text(x)
    sg.addall(p1[2:])
    if opt.stamps:
        sg.text("s_mov_b32 s3, s76")
    p2 = prologue2()
    Q = Queue()
    first = x_dma(0) + w_dma(0) if not int(opt.wfirst) else w_dma(0) + x_dma(0)
    stamp(sg, 5, 'P')
    Q.push(first)
    weave(sg, Q, [], 9, 0)
    if int(opt.cpf) == 2: sg.text("global_load_dword v255, v8, s[12:13]")
    stamp(sg, 6, 'P')
    sg.addall(p2)
    stamp(sg, 7, 'P')
    sg.text("s_cmp_lg_u32 s2, 0"); sg.text("s_cbranch_scc1 L_nocz")
    lane0(sg, ["v_mov_b32 v9, 0", f"s_memrealtime s[{S_NON}:{S_NON+1}]", "s_waitcnt lgkmcnt(0)", f"s_or_b32 s{S_NON}, s{S_NON}, 1", f"v_mov_b32 v250, s{S_NON}", f"v_mov_b32 v251, s{S_NON+1}",
               f"buffer_store_dwordx2 v[250:251], v9, s[{S_D}:{S_D+3}], 0 offen sc1"], "L_nocz")
    sg.text("s_branch L_first")
    sg.text("L_restart:")
    s2 = Seg(); s2.addall(restart_setup()); Q2 = Queue(); Q2.push(x_dma(0) + w_dma(0) if not int(opt.wfirst) else w_dma(0) + x_dma(0)); weave(s2, Q2, [], 9, 0)
    for x in s2.out: sg.text(x)
    sg.text("L_first:")
    early, late = prologue3()
    early = early + late + handoff_calc()
    def BB(u): return f"B{u + 1}"
    Q.push(w_dma(1) + x_dma(1) + w_dma(2) + w_dma(3) + x_dma(2) + w_dma(4) + ((w_dma(5, 'B2') + x_dma(3)) if int(opt.la) else (x_dma(3) + w_dma(5, 'B2'))) + w_dma(6, 'B3') + w_dma(7, 'B4')
           + kv_dma('k', 0, 'B5') + kv_dma('v', 0, 'B6') + kv_dma('k', 1, 'B8') + kv_dma('v', 1, 'BQ'))
    for i in range(2, 8):
        if not int(opt.nodma): Q.push(kv_dma('k', i) + kv_dma('v', i))
    n0 = int(opt.n0) - 9
    weave(sg, Q, early, n0, (len(early) + n0 - 1) // n0)
    sg.addall(early)
    qr = phase_a(sg, Q)
    sg.addall(qr[:0])
    stamp(sg, 3)
    sg.text(f"s_cmp_eq_u32 s{S_REDO}, 0"); sg.text("s_cbranch_scc1 L_back_max")
    s2 = Seg(); s2.addall(qr)
    for x in s2.out: sg.text(x)
    sg.text("s_branch L_max")
    sg.text("L_back_max:")
    phase_b(sg, Q, qr)
    combine(sg, Q)
    phase_c(sg, Q)
    sg.text("L_fin:")
    stamp_out(sg, 11)
    sg.text("L_end:")
    sg.text("s_endpgm")
    return sg.out + ['L_code_end:'] + out_of_line()

def report_kernel():
    idx, mode = opt.report.split(',')
    if mode == 'next':
        return ["report_kernel:", "s_cmp_ge_u32 s2, 1", "s_cbranch_scc1 L3_end", "s_memrealtime s[12:13]", "s_load_dwordx2 s[4:5], s[0:1], 56", "s_waitcnt lgkmcnt(0)",
                f"s_add_u32 s4, s4, {17<<20}", "s_addc_u32 s5, s5, 0", "s_and_b32 s5, s5, 0xffff", "s_mov_b32 s6, 64", "s_mov_b32 s7, 0x20000", "v_mov_b32 v1, 0", "v_mov_b32 v2, s12",
                "buffer_store_dword v2, v1, s[4:7], 0 offen", "L3_end:", "s_endpgm"]
    t = ["report_kernel:", "s_cmp_ge_u32 s2, 1", "s_cbranch_scc1 L3_end", "s_load_dwordx2 s[4:5], s[0:1], 56", "s_waitcnt lgkmcnt(0)",
         f"s_add_u32 s4, s4, {16<<20}", "s_addc_u32 s5, s5, 0", "s_and_b32 s5, s5, 0xffff", "s_mov_b32 s6, 0x100000", "s_mov_b32 s7, 0x20000",
         "v_lshlrev_b32 v1, 8, v0", f"buffer_load_dword v2, v1, s[4:7], 0 offen offset:{4*int(idx)}", "buffer_load_dword v3, v1, s[4:7], 0 offen",
         "v_mov_b32 v4, 0", "v_mov_b32 v5, 0", "v_mov_b32 v6, -1", "ds_write_b32 v4, v5", "ds_write_b32 v4, v6 offset:8", "s_waitcnt vmcnt(0) lgkmcnt(0)", "s_barrier",
         "ds_min_u32 v4, v3 offset:8", "s_waitcnt lgkmcnt(0)", "s_barrier", "ds_read_b32 v6, v4 offset:8", "s_waitcnt lgkmcnt(0)", "v_sub_u32 v2, v2, v6",
         "v_lshrrev_b32 v7, 3, v0", "v_mul_u32_u24 v7, 52, v7", "v_lshrrev_b32 v7, 8, v7", "v_and_b32 v8, 1, v0", "v_sub_u32 v8, 6, v8", "v_cmp_lt_u32 vcc, v7, v8",
         "v_min_u32 v2, 10000, v2",
         ("ds_add_u32 v4, v2" if mode == 'mean' else "ds_max_u32 v4, v2"), "s_waitcnt lgkmcnt(0)", "s_barrier", "ds_read_b32 v6, v4", "s_memrealtime s[12:13]", "s_waitcnt lgkmcnt(0)",
         "v_readfirstlane_b32 s10, v6", "s_nop 4"]
    if mode == 'mean': t += ["s_mul_i32 s10, s10, 10", "s_lshr_b32 s10, s10, 8"]
    elif mode == 'max': t += ["s_mul_i32 s10, s10, 10"]
    else: t += ["s_mov_b32 s10, 0"]
    t += ["L3_spin:", "s_memrealtime s[14:15]", "s_waitcnt lgkmcnt(0)", "s_sub_u32 s14, s14, s12",
          "s_cmp_lt_u32 s14, s10", "s_cbranch_scc1 L3_spin", "L3_end:", "s_endpgm"]
    return t

HEADER = """; Kernarg layout (64 bytes, pointers only, base s[0:1]):
;  24: wq (512,4096) bf16  32: wo (4096,512) bf16   40: d_out (8,80,512) bf16   48: d_debug   56: d_ws
;
; One launch, one workgroup (4 waves) per (batch b, query head hq); hkv = id & 7, j = (id >> 3) & 3, b = id >> 5, hq = 4*hkv + j.
;     Softmax shift m: the first pass uses m = 0, which is exact as long as nothing leaves the fp32 range.  Every row sum is
;     checked against [2^-40, 2^40] (NaN fails too); if any row is outside, the workgroup starts over, computes the true row
;     maxima over all 1024 keys (L_max) and repeats phase B with m = row maximum.
;  C  hand-off 1: O (bf16) goes to the three other heads of the kv group; workgroup (b, hkv, j) multiplies the four heads
;     with wo[hkv*512.., j*128..] -> partial result for 128 output columns.
;     hand-off 2: the eight partial results (one per hkv) are summed in fp32, each workgroup finishing one eighth.
;  and read with sc1.  The tag is a clock value that workgroup 0 publishes in d_debug (zero at launch), so flags left in d_ws
;  by earlier launches never match.  Polls are bounded.  Nothing depends on the XCD a workgroup runs on; the id mapping, the
"""
def build():
    def fmt(l): return "\n".join(x if x.endswith(':') else "    " + x for x in l)
    nm = NAME + "_kernel"
    s = HEADER + "; @launch grid=(256,1,1) block=(256,1,1) lds=163840\n"
    if opt.report:
        s = f"; @launch kernel={nm} grid=(256,1,1) block=(256,1,1) lds=163840\n; @launch kernel=report_kernel grid=(1,1,1) block=(256,1,1) lds=64\n"
    s += '.amdgcn_target "amdgcn-amd-amdhsa--gfx950"\n.text\n'
    s += f".globl {nm}\n.p2align 8\n.type {nm},@function\n" + fmt(kernel()) + "\n"
    if opt.report: s += ".globl report_kernel\n.p2align 8\n.type report_kernel,@function\n" + fmt(report_kernel()) + "\n"
    s += f""".section .rodata,"a"
.p2align 6
.amdhsa_kernel {nm}
  .amdhsa_next_free_vgpr 512
  .amdhsa_next_free_sgpr 102
  .amdhsa_accum_offset 256
  .amdhsa_group_segment_fixed_size 0
  .amdhsa_kernarg_size 64
  .amdhsa_user_sgpr_count 2
  .amdhsa_user_sgpr_kernarg_segment_ptr 1
  .amdhsa_system_sgpr_workgroup_id_x 1
  .amdhsa_float_denorm_mode_32 3
.end_amdhsa_kernel
"""
    if opt.report:
        s += """.p2align 6
.amdhsa_kernel report_kernel
  .amdhsa_next_free_vgpr 32
  .amdhsa_next_free_sgpr 32
  .amdhsa_accum_offset 32
  .amdhsa_group_segment_fixed_size 0
  .amdhsa_kernarg_size 64
  .amdhsa_user_sgpr_count 2
  .amdhsa_user_sgpr_kernarg_segment_ptr 1
  .amdhsa_system_sgpr_workgroup_id_x 1
.end_amdhsa_kernel
"""
    return s

if __name__ == '__main__':
    out = sys.argv[1] if len(sys.argv) > 1 else 'cdna_kernels/' + NAME + '.s'
    for a_ in sys.argv[2:]:
        k, v = a_.split('=', 1)
        setattr(opt, k, (' ' + v) if k.endswith('flags') and v else v)
    HOIST[0] = int(opt.hoist)
    txt = build()
    open(out, 'w').write(txt)
```

```python
import sys, struct, re
from dsl import *

KB = 1024
NAME = 'standalone__gqa_block_cached__near_ridge'
def f2h(x): return hex(struct.unpack('<I', struct.pack('<f', x))[0])
QSCALE = 1.4426950408889634 / (128 ** 0.5)
WS_WO = 8 << 20
WS_CT = 12 << 20

class Opt:
    stamps = ''
    report = ''
    kv_flags = ''
    a_flags = ''
    n0 = 22
    warm = 1
    perstep = 6
    lo_exp = -40
    hi_exp = 40
    spin = 300000
    rt_at = 5
    bar_at = 32
    nodma = 0
    dtch_at = 99
    dtch = 'op'
    dtch_flags = ''
    wpos = '5,16'
    x1e = 0
    c3 = 0
    otr = 1
    otch_at = 99
    otch_flags = ''
    worlate = 1
    pf = 9
    noout = 0
    even_end = 23
    coal = 1
    hoist = 2
    unp = 0
    f2wg = 1
    wfirst = 0
    kvnt = 'x'
    ant = ''
    tch_flags = ''
    wsb = 0
    drain = '45'
    tlb_at = 27
    aonly = 0
    la = 10
    aq = 1
    ownlate = 1
    o_flags = ' sc1'
    f1_flags = ' sc1'
    w64 = 0
    out_flags = ' sc1'
    bsched = 1
    p1w = 1
    p2w = 0
    pollk = '19,29,39'
    dyn2 = 1
    qmaj = 1
    tch_at = 27
    even_at = 99
    pdepth = 1
    kvo = 4
    finw = 0
    alim = 16
    cpf = 1
    chain = 1
    wo_at = 33
    calc_at = 16
    nl_at = 8
    nc_at = 13
    cw = 2
    shadow = 9
    bst = '0,5,10,15,20'
    no_rt = 0
    clk = 'r'
    lg0 = 0
    vpos = '1,5,9,13'
    rot_kv = 1
    rot_a = 8
    rot_c = 1
    gl_at = 29
    gc_at = 33
opt = Opt()

S_X, S_WQ, S_K, S_V, S_O, S_WO, S_WT, S_WL, S_C, S_D, S_OUT = 4, 8, 12, 16, 20, 24, 28, 52, 56, 60, 64
S_W, S_B, S_HKV, S_HQ = 32, 33, 34, 35
S_W1K, S_W8K, S_SO, S_T0, S_T1, S_T2, S_SK, S_SV = 36, 37, 38, 39, 40, 41, 42, 43
S_TAB = 44
S_REDO, S_MT, S_NT, S_VALID, S_RT, S_SPIN = 68, 69, 70, 71, 72, 73
S_EX = 74
S_F1, S_F2, S_G1, S_G2 = 100, 101, 72, 51
S_GM = 70
S_J_UNUSED = 3
S_P = 76
S_ST = 80
V_LANE, V_N, V_G, V_T0, V_T1, V_T2, V_T3, V_T4, V_T5 = 1, 2, 3, 4, 5, 6, 7, 8, 9
V_KA, V_VA, V_KD, V_VD = 10, 14, 22, 26
V_OST, V_CW, V_LW = 28, 29, 31
V_ONES, V_NEGM, V_L, V_S, V_P, V_KF, V_VF = 32, 36, 56, 76, 92, 100, 164
V_XA, V_XB, V_WA, V_WB, V_XD, V_WD, V_QW = 228, 232, 236, 238, 240, 241, 242
V_GC = 250
S_NON = 96
V_CR, V_LR, V_WOD, V_WT, V_OL, V_OW, V_OD, V_PS, V_PLD, V_OUT, V_P1, V_P2 = 228, 234, 235, 236, 242, 243, 244, 245, 246, 247, 248, 249
V_ZERO = 9
V_TCH = 64
S_H = 52
S_W5K = 55
S_J = 69
A_O, A_Q = 0, 160
V_OWN = [132, 140, 148, 156, 56]
A_KF1, A_L = 120, 240
def AO(lam, q):
    if lam < 2: return ('v', V_OWN[q] + 4 * lam)
    return ('a', A_O + 4 * (q * 6 + lam - 2))
def KF(i, k): return ('v', V_KF + 4 * k) if i % 2 == 0 else ('a', A_KF1 + 4 * k)
def LA(q): return ('a', A_L + 4 * q) if q < 4 else ('a', 152)
def AQ(q, s): return ('a', A_Q + 4 * (q * 4 + s))

def XU(c, q):
    if c == 0: return q * 4 * KB
    if c == 1: return 20 * KB + q * 4 * KB
    if c == 2: return 128 * KB + q * 4 * KB
    return [120, 124, 148, 152, 156][q] * KB
def WU(slot, ks):
    return {0: [40, 48], 1: [56, 96], 2: [104, 112], 3: [64, 72], 4: [80, 88]}[slot][ks] * KB
WSLOT = [0, 1, 2, 3, 4, 0, 1, 2]
QBUF = 128 * KB

def V(t, r=(), w=()):
    return valu(t, r=[('v', x) if isinstance(x, int) else x for x in r], w=[('v', x) if isinstance(x, int) else x for x in w])
def T(t, r=(), w=()):
    return valu(t, r=[('v', x) for x in r], w=[('v', x) for x in w], trans=True)
def S(t, r=(), w=()):
    return salu(t, r=[('s', x) if isinstance(x, int) else x for x in r], w=[('s', x) if isinstance(x, int) else x for x in w])
M0 = ('m0', 0)
VCC = ('vcc', 0)
def flat(l): return [x for y in l for x in y]

def srd(dst, plo, add_s=None, add_imm=0, size=0):
    o = []
    if add_s is not None:
        o.append(S(f"s_add_u32 s{dst}, s{plo}, s{add_s}", [plo, add_s], [dst]))
        o.append(S(f"s_addc_u32 s{dst+1}, s{plo+1}, 0", [plo+1], [dst+1]))
        o.append(S(f"s_and_b32 s{dst+1}, s{dst+1}, 0xffff", [dst+1], [dst+1]))
    elif add_imm:
        o.append(S(f"s_add_u32 s{dst}, s{plo}, {add_imm}", [plo], [dst]))
        o.append(S(f"s_addc_u32 s{dst+1}, s{plo+1}, 0", [plo+1], [dst+1]))
        o.append(S(f"s_and_b32 s{dst+1}, s{dst+1}, 0xffff", [dst+1], [dst+1]))
    else:
        o.append(S(f"s_mov_b32 s{dst}, s{plo}", [plo], [dst]))
        o.append(S(f"s_and_b32 s{dst+1}, s{plo+1}, 0xffff", [plo+1], [dst+1]))
    if isinstance(size, str):
        o.append(S(f"s_mov_b32 s{dst+2}, {size}", [int(size[1:])], [dst+2]))
    else:
        o.append(S(f"s_mov_b32 s{dst+2}, {size}", [], [dst+2]))
    o.append(S(f"s_mov_b32 s{dst+3}, 0x20000", [], [dst+3]))
    return o

KV_ORDER = [[0, 2, 1, 3, 4, 6, 5, 7], [0, 1, 3, 2, 4, 5, 7, 6], [1, 0, 2, 4, 3, 5, 6, 7], [1, 0, 2, 3, 5, 4, 6, 7]]
KV_ORDERS = [KV_ORDER,
  [[0, 4, 1, 2, 3, 5, 6, 7], [1, 0, 5, 2, 3, 4, 6, 7], [2, 0, 1, 6, 3, 4, 5, 7], [3, 0, 1, 2, 7, 4, 5, 6]],
  [[0, 1, 2, 3, 4, 5, 6, 7], [0, 1, 2, 3, 4, 5, 6, 7], [4, 5, 6, 7, 0, 1, 2, 3], [4, 5, 6, 7, 0, 1, 2, 3]],
  [[0, 2, 1, 3, 5, 4, 6, 7], [1, 0, 3, 2, 4, 6, 5, 7], [2, 1, 0, 4, 3, 5, 7, 6], [0, 1, 2, 3, 5, 4, 6, 7]],
  [[0, 1, 2, 4, 3, 5, 6, 7], [1, 0, 2, 3, 5, 4, 6, 7], [2, 0, 1, 3, 4, 6, 5, 7], [0, 1, 3, 2, 4, 5, 7, 6]],
  [[0, 1, 4, 2, 3, 5, 6, 7], [1, 0, 2, 5, 3, 4, 6, 7], [2, 0, 1, 3, 6, 4, 5, 7], [0, 3, 1, 2, 4, 7, 5, 6]],
  [[0, 1, 3, 2, 4, 5, 7, 6], [0, 1, 2, 4, 3, 5, 6, 7], [0, 2, 1, 3, 5, 4, 6, 7], [0, 2, 1, 3, 4, 6, 5, 7]],
  [[0, 1, 2, 4, 3, 5, 6, 7], [1, 0, 3, 2, 5, 4, 6, 7], [2, 3, 0, 1, 4, 6, 5, 7], [3, 2, 1, 0, 4, 5, 7, 6]],
  [[0, 1, 2, 4, 3, 5, 6, 7], [1, 2, 0, 3, 5, 4, 6, 7], [2, 0, 1, 3, 4, 6, 5, 7], [0, 3, 1, 2, 4, 5, 7, 6]]]
def kv_pack(j):
    o = KV_ORDERS[int(opt.kvo)][j] if int(opt.rot_kv) else list(range(8))
    return sum(t << (4 * i) for i, t in enumerate(o))
S_KVO = 98
V_XD4 = 204
S_WC = 99

class Item:
    def __init__(s, pre, ins, after=None): s.pre, s.ins, s.after = pre, ins, after
def x_dma(c, after=None):
    return [Item([S(f"s_add_u32 m0, s{S_W1K}, {XU(c,q)}", [S_W1K], [M0])],
                 dma(V_XD4 + c, S_X, S_TAB + q, 0, ('x', c), flags=(' nt' if 'x' in opt.ant and c < 2 else opt.a_flags)), after) for q in range(5)]
def w_dma(u, after=None):
    o = []
    for k in range(4):
        pre = []
        if k == 0:
            pre.append(S(f"s_add_u32 s{S_SK}, s{S_WC}, {(u & 6) << 19}", [S_WC], [S_SK]))
            pre.append(S(f"s_and_b32 s{S_SK}, s{S_SK}, {7 << 19}", [S_SK], [S_SK]))
            if u & 1: pre.append(S(f"s_xor_b32 s{S_SK}, s{S_SK}, {1 << 19}", [S_SK], [S_SK]))
        pre.append(S(f"s_add_u32 s{S_SO}, s{S_SK}, {k*131072}", [S_SK], [S_SO]))
        pre.append(S(f"s_add_u32 m0, s{S_W1K}, {WU(WSLOT[u], k>>1) + (k&1)*4*KB}", [S_W1K], [M0]))
        o.append(Item(pre, dma(V_WD, S_WQ, S_SO, 0, ('w', u), flags=(' nt' if 'w' in opt.ant and u < 4 else opt.a_flags)), after))
    return o
def kv_dma(kind, i, after=None):
    o = []
    base = (i & 1) * 32 * KB + (0 if kind == 'k' else 64 * KB)
    sr, so = (S_K, S_SK) if kind == 'k' else (S_V, S_SV)
    for j in range(8):
        pre = []
        if j % 4 == 0:
            if j == 0:
                pre.append(S(f"s_bfe_u32 s{so}, s{S_KVO}, {hex((3 << 16) | (4 * i))}", [S_KVO], [so]))
                pre.append(S(f"s_lshl_b32 s{so}, s{so}, 13", [so], [so]))
            else:
                pre.append(S(f"s_add_u32 s{so}, s{so}, 4096", [so], [so]))
            pre.append(S(f"s_add_u32 m0, s{S_W8K}, {base + (j>>2)*4096}", [S_W8K], [M0]))
        va = V_KD + (j & 3) if kind == 'k' else V_VD + (j & 1)
        tag = (kind + 'r', i - 2, j >> 2)
        o.append(Item(pre, dma(va, sr, so, 1024 * (j & 3), (kind, i, j >> 2), needlg=[tag], flags=(' nt' if str(i) in str(opt.kvnt) else opt.kv_flags)), after if i < 2 else tag))
    return o
def k_reads(i):
    return [dsrd('ds_read_b128', KF(i, t * 4 + s), 4, V_KA + s, (i & 1) * 32 * KB + t * 4096,
                 needvm=[('k', i, t)], lgtag=('kr', i, t)) for t in range(2) for s in range(4)]
def v_reads(i):
    return [dsrd('ds_read_b64_tr_b16', ('v', V_VF + (i & 1) * 32 + lam * 4 + h * 2), 2, V_VA + lam, (i & 1) * 32 * KB + h * 4096,
                 needvm=[('v', i, h)], lgtag=('vr', i, h)) for h in range(2) for lam in range(8)]

class Queue:
    def __init__(s): s.q = []; s.pts = set()
    def push(s, items): s.q += items
    def mark(s, p): s.pts.add(p)
    def pop(s):
        if s.q and (s.q[0].after is None or s.q[0].after in s.pts): return s.q.pop(0)
        return None

def place(gaps, Q, pos):
    last = -1
    for p in pos:
        if p >= len(gaps): continue
        it = Q.pop()
        if it is None: break
        pre = list(it.pre)
        avail = list(range(last + 1, p))
        front = []
        if not avail: front = pre
        else:
            slots = [[] for _ in avail]
            for k_, x in enumerate(reversed(pre)):
                slots[max(0, len(avail) - 1 - k_)].insert(0, x)
            for g, sl in zip(avail, slots):
                k_ = 0
                while k_ < len(gaps[g]) and gaps[g][k_].k == 'salu': k_ += 1
                gaps[g][k_:k_] = sl
        k = 0
        while k < len(gaps[p]) and gaps[p][k].k == 'salu': k += 1
        gaps[p][k:k] = front + [it.ins]
        last = p
def weave(sg, Q, fill, n, per):
    for _ in range(n):
        it = Q.pop()
        if it is not None: sg.addall(it.pre + [it.ins])
        for _ in range(per):
            if fill: sg.add(fill.pop(0))

NST = 12
def stamp(sg, i, grp='1'):
    if not opt.stamps: return
    if opt.stamps == 'Z' and i: return
    if 5 <= i <= 9 and grp != opt.stamps: return
    sg.text(f"{'s_memtime' if opt.clk == 'c' else 's_memrealtime'} s[{76+2*i}:{77+2*i}]")

def prologue1():
    o = []; a = o.append
    a(raw("s_load_dwordx2 s[92:93], s[0:1], 0"))
    a(raw("s_load_dwordx2 s[26:27], s[0:1], 24"))
    a(V(f"v_lshrrev_b32 v{V_T0}, 6, v0", [0], [V_T0]))
    a(V(f"v_and_b32 v{V_LANE}, 63, v0", [0], [V_LANE]))
    a(V(f"v_readfirstlane_b32 s{S_W}, v{V_T0}", [V_T0], [('s', S_W)]))
    a(S(f"s_and_b32 s{S_HKV}, s2, 7", [2], [S_HKV]))
    a(S(f"s_lshr_b32 s{S_B}, s2, 5", [2], [S_B]))
    a(S(f"s_bfe_u32 s{S_T0}, s2, 0x20003", [2], [S_T0]))
    a(S(f"s_mov_b32 s{S_J}, s{S_T0}", [S_T0], [S_J]))
    a(S(f"s_lshl_b32 s{S_HQ}, s{S_HKV}, 2", [S_HKV], [S_HQ]))
    a(S(f"s_add_u32 s{S_HQ}, s{S_HQ}, s{S_T0}", [S_HQ, S_T0], [S_HQ]))
    if int(opt.rot_a) == 2:
        a(S(f"s_add_u32 s{S_VALID}, s{S_T0}, s{S_B}", [S_T0, S_B], [S_VALID]))
        a(S(f"s_and_b32 s{S_VALID}, s{S_VALID}, 1", [S_VALID], [S_VALID]))
        a(S(f"s_lshl_b32 s{S_VALID}, s{S_VALID}, 2", [S_VALID], [S_VALID]))
    elif int(opt.rot_a) in (5, 6):
        a_, b_ = (S_B, S_T0) if int(opt.rot_a) == 5 else (S_T0, S_B)
        a(S(f"s_lshl_b32 s{S_VALID}, s{b_}, 1", [b_], [S_VALID]))
        a(S(f"s_add_u32 s{S_VALID}, s{S_VALID}, s{a_}", [S_VALID, a_], [S_VALID]))
        a(S(f"s_and_b32 s{S_VALID}, s{S_VALID}, 3", [S_VALID], [S_VALID]))
        a(S(f"s_lshl_b32 s{S_VALID}, s{S_VALID}, 1", [S_VALID], [S_VALID]))
    elif int(opt.rot_a) in (8, 9):
        a(S(f"s_add_u32 s{S_VALID}, s{S_T0}, s{S_B}", [S_T0, S_B], [S_VALID]))
        a(S(f"s_lshl_b32 s{S_VALID}, s{S_VALID}, 1", [S_VALID], [S_VALID]))
        a(S(f"s_and_b32 s{S_T1}, s{S_HKV}, {1 if int(opt.rot_a) == 8 else 3}", [S_HKV], [S_T1]))
        a(S(f"s_add_u32 s{S_VALID}, s{S_VALID}, s{S_T1}", [S_VALID, S_T1], [S_VALID]))
        a(S(f"s_and_b32 s{S_VALID}, s{S_VALID}, 3", [S_VALID], [S_VALID]))
        a(S(f"s_lshl_b32 s{S_VALID}, s{S_VALID}, 1", [S_VALID], [S_VALID]))
    elif int(opt.rot_a) == 7:
        a(S(f"s_add_u32 s{S_VALID}, s{S_T0}, s{S_B}", [S_T0, S_B], [S_VALID]))
        a(S(f"s_and_b32 s{S_VALID}, s{S_VALID}, 1", [S_VALID], [S_VALID]))
        a(S(f"s_lshl_b32 s{S_VALID}, s{S_VALID}, 2", [S_VALID], [S_VALID]))
        a(S(f"s_bfe_u32 s{S_T1}, s{S_B}, 0x10001", [S_B], [S_T1]))
        a(S(f"s_or_b32 s{S_VALID}, s{S_VALID}, s{S_T1}", [S_VALID, S_T1], [S_VALID]))
    elif int(opt.rot_a) == 4:
        a(S(f"s_add_u32 s{S_VALID}, s{S_T0}, s{S_B}", [S_T0, S_B], [S_VALID]))
        a(S(f"s_and_b32 s{S_VALID}, s{S_VALID}, 3", [S_VALID], [S_VALID]))
        a(S(f"s_lshl_b32 s{S_VALID}, s{S_VALID}, 1", [S_VALID], [S_VALID]))
    elif int(opt.rot_a):
        a(S(f"s_lshl_b32 s{S_T0}, s{S_T0}, 1", [S_T0], [S_T0]))
        a(S(f"s_add_u32 s{S_VALID}, s{S_T0}, s{S_B}", [S_T0, S_B], [S_VALID]))
        a(S(f"s_and_b32 s{S_VALID}, s{S_VALID}, 7", [S_VALID], [S_VALID]))
    else:
        a(S(f"s_mov_b32 s{S_VALID}, 0", [], [S_VALID]))
    a(V(f"v_and_b32 v{V_N}, 15, v{V_LANE}", [V_LANE], [V_N]))
    a(V(f"v_lshrrev_b32 v{V_G}, 4, v{V_LANE}", [V_LANE], [V_G]))
    a(S(f"s_lshl_b32 s{S_W1K}, s{S_W}, 10", [S_W], [S_W1K]))
    a(S(f"s_lshl_b32 s{S_W8K}, s{S_W}, 13", [S_W], [S_W8K]))
    a(V(f"v_lshl_add_u32 v{V_T0}, s{S_W}, 2, v{V_G}", [V_G, ('s', S_W)], [V_T0]))
    a(V(f"v_xor_b32 v{V_T1}, v{V_N}, v{V_T0}", [V_N, V_T0], [V_T1]))
    a(V(f"v_lshlrev_b32 v{V_T1}, 4, v{V_T1}", [V_T1], [V_T1]))
    a(V(f"v_lshl_add_u32 v{V_XD}, v{V_T0}, 10, v{V_T1}", [V_T0, V_T1], [V_XD]))
    a(S(f"s_and_b32 s{S_T0}, s{S_W}, 2", [S_W], [S_T0]))
    a(S(f"s_lshl_b32 s{S_T0}, s{S_T0}, 2", [S_T0], [S_T0]))
    a(V(f"v_lshl_add_u32 v{V_T1}, v{V_G}, 1, s{S_T0}", [V_G, ('s', S_T0)], [V_T1]))
    a(V(f"v_xor_b32 v{V_T1}, v{V_N}, v{V_T1}", [V_N, V_T1], [V_T1]))
    a(V(f"v_lshlrev_b32 v{V_T1}, 4, v{V_T1}", [V_T1], [V_T1]))
    a(V(f"v_lshl_add_u32 v{V_WD}, v{V_T0}, 13, v{V_T1}", [V_T0, V_T1], [V_WD]))
    a(S(f"s_mul_i32 s{S_T0}, s{S_B}, 81920", [S_B], [S_T0]))
    a(S(f"s_lshl_b32 s{S_T2}, s{S_HQ}, 8", [S_HQ], [S_T2]))
    a(S(f"s_sub_u32 s{S_T1}, 4194304, s{S_T2}", [S_T2], [S_T1]))
    a(S(f"s_mov_b32 s{S_REDO}, 0", [], [S_REDO]))
    a(S(f"s_lshl_b32 s{S_WC}, s{S_VALID}, 19", [S_VALID], [S_WC]))
    a(S(f"s_mov_b64 s[{S_GM}:{S_GM+1}], -1", [], [S_GM, S_GM+1]))
    o += restart_setup()
    a(S(f"s_mov_b32 s{S_X+2}, 81920", [], [S_X+2])); a(S(f"s_mov_b32 s{S_X+3}, 0x20000", [], [S_X+3]))
    a(S(f"s_mov_b32 s{S_WQ+2}, s{S_T1}", [S_T1], [S_WQ+2])); a(S(f"s_mov_b32 s{S_WQ+3}, 0x20000", [], [S_WQ+3]))
    a(raw("s_waitcnt lgkmcnt(0)", 'wait'))
    o += srd(S_X, 92, add_s=S_T0, size=81920)[:3]
    o += srd(S_WQ, 26, add_s=S_T2, size=0)[:3]
    a(raw("s_load_dwordx4 s[92:95], s[0:1], 8"))
    a(raw(f"s_load_dwordx2 s[{S_WO}:{S_WO+1}], s[0:1], 32"))
    a(raw(f"s_load_dwordx4 s[{S_C}:{S_C+3}], s[0:1], 40"))
    a(raw("s_load_dwordx2 s[100:101], s[0:1], 56"))
    return o

def restart_setup():
    o = [S(f"s_mov_b32 s{S_TAB+q}, {q*16384}", [], [S_TAB+q]) for q in range(5)]
    for c in range(4):
        o.append(S(f"s_lshr_b32 s{S_SO}, s{S_WC}, 12", [S_WC], [S_SO]))
        o.append(S(f"s_add_u32 s{S_SO}, s{S_SO}, {c*256}", [S_SO], [S_SO]))
        o.append(S(f"s_and_b32 s{S_SO}, s{S_SO}, 0x300", [S_SO], [S_SO]))
        o.append(V(f"v_add_u32 v{V_XD4+c}, s{S_SO}, v{V_XD}", [V_XD, ('s', S_SO)], [V_XD4+c]))
    return o

def prologue2():
    o = []; a = o.append
    a(raw("s_waitcnt lgkmcnt(0)", 'wait'))
    a(S(f"s_lshl_b32 s{S_T0}, s{S_B}, 3", [S_B], [S_T0]))
    a(S(f"s_add_u32 s{S_T0}, s{S_T0}, s{S_HKV}", [S_T0, S_HKV], [S_T0]))
    a(S(f"s_lshl_b32 s{S_T0}, s{S_T0}, 2", [S_T0], [S_T0]))
    a(S(f"s_add_u32 s{S_T0}, s{S_T0}, s{S_W}", [S_T0, S_W], [S_T0]))
    a(S(f"s_lshl_b32 s{S_T0}, s{S_T0}, 16", [S_T0], [S_T0]))
    o += srd(S_K, 92, add_s=S_T0, size=65536)
    o += srd(S_V, 94, add_s=S_T0, size=65536)
    a(S(f"s_lshl_b32 s{S_T0}, s{S_HKV}, 19", [S_HKV], [S_T0]))
    o += srd(S_WO, S_WO, add_s=S_T0, size=524288)
    WB = int(opt.wsb) << 20
    o += srd(S_O, 100, add_imm=WB, size=8*5*128*1024)
    o += srd(S_WT, 100, add_imm=WB + WS_WO, size=8*4*20*8*1024)
    o += srd(S_D, S_C + 2, size=256)
    o += srd(S_OUT, S_C, size=655360)
    o += srd(S_C, 100, add_imm=WB + WS_CT, size=262144)
    a(S(f"s_bitcmp1_b32 s{S_HQ}, 0", [S_HQ], []))
    a(S(f"s_mov_b32 s{S_T0}, {hex(kv_pack(0))}", [], [S_T0]))
    a(S(f"s_cselect_b32 s{S_T0}, {hex(kv_pack(1))}, s{S_T0}", [S_T0], [S_T0]))
    a(S(f"s_mov_b32 s{S_T1}, {hex(kv_pack(2))}", [], [S_T1]))
    a(S(f"s_cselect_b32 s{S_T1}, {hex(kv_pack(3))}, s{S_T1}", [S_T1], [S_T1]))
    a(S(f"s_bitcmp1_b32 s{S_HQ}, 1", [S_HQ], []))
    a(S(f"s_cselect_b32 s{S_KVO}, s{S_T1}, s{S_T0}", [S_T0, S_T1], [S_KVO]))
    for p in range(3):
        a(S(f"s_cmp_le_u32 s{S_J}, {p}", [S_J], []))
        a(S(f"s_cselect_b32 s{S_T1}, {p + 1}, {p}", [], [S_T1]))
        a(S(f"s_lshl_b32 s{S_H+p}, s{S_T1}, 17", [S_T1], [S_H+p]))
    a(S(f"s_mul_i32 s{S_W5K}, s{S_W}, 5120", [S_W], [S_W5K]))
    a(S(f"s_lshl_b32 s{S_T0}, s{S_B}, 14", [S_B], [S_T0]))
    a(S(f"s_lshl_b32 s{S_T1}, s{S_W}, 7", [S_W], [S_T1]))
    a(S(f"s_add_u32 s{S_T0}, s{S_T0}, s{S_T1}", [S_T0, S_T1], [S_T0]))
    a(S(f"s_lshl_b32 s{S_F1}, s{S_HQ}, 9", [S_HQ], [S_F1]))
    a(S(f"s_add_u32 s{S_F1}, s{S_F1}, s{S_T0}", [S_F1, S_T0], [S_F1]))
    a(S(f"s_add_u32 s{S_F2}, s{S_F1}, 131072", [S_F1], [S_F2]))
    if int(opt.f2wg): a(S(f"s_andn2_b32 s{S_F2}, s{S_F2}, 0x180", [S_F2], [S_F2]))
    a(S(f"s_lshl_b32 s{S_T1}, s{S_HKV}, 11", [S_HKV], [S_T1]))
    a(S(f"s_lshl_b32 s{S_G1}, s{S_J}, 3", [S_J], [S_G1]))
    a(S(f"s_add_u32 s{S_G1}, s{S_G1}, s{S_T1}", [S_G1, S_T1], [S_G1]))
    a(S(f"s_add_u32 s{S_G1}, s{S_G1}, s{S_T0}", [S_G1, S_T0], [S_G1]))
    a(S(f"s_lshl_b32 s{S_T1}, s{S_J}, 9", [S_J], [S_T1]))
    a(S(f"s_lshl_b32 s{S_G2}, s{S_HKV}, 3", [S_HKV], [S_G2]))
    a(S(f"s_add_u32 s{S_G2}, s{S_G2}, s{S_T1}", [S_G2, S_T1], [S_G2]))
    a(S(f"s_add_u32 s{S_G2}, s{S_G2}, s{S_T0}", [S_G2, S_T0], [S_G2]))
    a(S(f"s_add_u32 s{S_G2}, s{S_G2}, 131072", [S_G2], [S_G2]))
    return o

def prologue3():
    o = []; a = o.append
    a(S(f"s_bfe_u32 s{S_T1}, s{S_WC}, 0x10013", [S_WC], [S_T1]))
    a(S(f"s_lshl_b32 s{S_T1}, s{S_T1}, 3", [S_T1], [S_T1]))
    a(V(f"v_xor_b32 v{V_T1}, s{S_T1}, v{V_N}", [V_N, ('s', S_T1)], [V_T1]))
    for s in range(4):
        a(V(f"v_add_u32 v{V_T0}, {4*s}, v{V_G}", [V_G], [V_T0]))
        a(V(f"v_xor_b32 v{V_T0}, v{V_T0}, v{V_T1}", [V_T0, V_T1], [V_T0]))
        a(V(f"v_lshlrev_b32 v{V_T0}, 4, v{V_T0}", [V_T0], [V_T0]))
        a(V(f"v_lshl_add_u32 v{V_XA+s}, v{V_N}, 8, v{V_T0}", [V_N, V_T0], [V_XA+s]))
        a(V(f"v_add_u32 v{V_XB+s}, {120*KB}, v{V_XA+s}", [V_XA+s], [V_XB+s]))
    a(V(f"v_lshrrev_b32 v{V_T2}, 2, v{V_N}", [V_N], [V_T2]))
    a(V(f"v_bfe_u32 v{V_T3}, v{V_N}, 1, 1", [V_N], [V_T3]))
    a(V(f"v_and_b32 v{V_T4}, 1, v{V_N}", [V_N], [V_T4]))
    a(V(f"v_lshlrev_b32 v{V_T4}, 3, v{V_T4}", [V_T4], [V_T4]))
    a(V(f"v_and_b32 v{V_T5}, 1, v{V_G}", [V_G], [V_T5]))
    a(V(f"v_lshl_add_u32 v{V_T5}, v{V_T5}, 2, v{V_T2}", [V_T5, V_T2], [V_T5]))
    a(V(f"v_lshlrev_b32 v{V_T5}, 1, v{V_T5}", [V_T5], [V_T5]))
    a(S(f"s_lshl_b32 s{S_T1}, s{S_W}, 2", [S_W], [S_T1]))
    a(V(f"v_lshl_add_u32 v{V_T1}, v{V_G}, 3, v{V_T2}", [V_G, V_T2], [V_T1]))
    a(V(f"v_lshl_add_u32 v{V_T1}, v{V_T1}, 8, v{V_T4}", [V_T1, V_T4], [V_T1]))
    for e in range(2):
        a(V(f"v_add3_u32 v{V_T0}, s{S_T1}, v{V_T3}, {2*e}", [V_T3, ('s', S_T1)], [V_T0]))
        a(V(f"v_xor_b32 v{V_T0}, v{V_T0}, v{V_T5}", [V_T0, V_T5], [V_T0]))
        a(V(f"v_lshl_add_u32 v{V_T0}, v{V_T0}, 4, v{V_T1}", [V_T0, V_T1], [V_T0]))
        a(V(f"v_add_u32 v{V_WA+e}, {40*KB}, v{V_T0}", [V_T0], [V_WA+e]))
        a(V(f"v_add_u32 v{V_WB+e}, {96*KB}, v{V_T0}", [V_T0], [V_WB+e]))
    a(V(f"v_lshl_add_u32 v{V_T1}, v{V_G}, 2, v{V_T2}", [V_G, V_T2], [V_T1]))
    n_early = len(o)
    for s in range(4):
        a(V(f"v_add_u32 v{V_KA+s}, s{S_W8K}, v{V_XA+s}", [V_XA+s, ('s', S_W8K)], [V_KA+s]))
    a(V(f"v_lshl_add_u32 v{V_T1}, v{V_T1}, 8, v{V_T4}", [V_T1, V_T4], [V_T1]))
    a(S(f"s_add_u32 s{S_T2}, s{S_W8K}, {64*KB}", [S_W8K], [S_T2]))
    a(V(f"v_add_u32 v{V_T1}, s{S_T2}, v{V_T1}", [V_T1, ('s', S_T2)], [V_T1]))
    a(V(f"v_add_u32 v{V_T3}, s{S_T1}, v{V_T3}", [V_T3, ('s', S_T1)], [V_T3]))
    for lam in range(8):
        a(V(f"v_add_u32 v{V_T0}, {2*lam}, v{V_T3}", [V_T3], [V_T0]))
        a(V(f"v_and_b32 v{V_T0}, 15, v{V_T0}", [V_T0], [V_T0]))
        a(V(f"v_xor_b32 v{V_T0}, v{V_T0}, v{V_T5}", [V_T0, V_T5], [V_T0]))
        a(V(f"v_lshl_add_u32 v{V_VA+lam}, v{V_T0}, 4, v{V_T1}", [V_T0, V_T1], [V_VA+lam]))
    a(V(f"v_xor_b32 v{V_T0}, v{V_N}, v{V_G}", [V_N, V_G], [V_T0]))
    a(V(f"v_lshlrev_b32 v{V_T0}, 4, v{V_T0}", [V_T0], [V_T0]))
    a(V(f"v_lshl_add_u32 v{V_KD}, v{V_G}, 8, v{V_T0}", [V_G, V_T0], [V_KD]))
    for j in range(1, 4):
        a(V(f"v_xor_b32 v{V_KD+j}, {64*j}, v{V_KD}", [V_KD], [V_KD+j]))
    a(V(f"v_lshlrev_b32 v{V_T0}, 1, v{V_G}", [V_G], [V_T0]))
    a(V(f"v_xor_b32 v{V_T0}, v{V_N}, v{V_T0}", [V_N, V_T0], [V_T0]))
    a(V(f"v_lshlrev_b32 v{V_T0}, 4, v{V_T0}", [V_T0], [V_T0]))
    a(V(f"v_lshl_add_u32 v{V_VD}, v{V_G}, 8, v{V_T0}", [V_G, V_T0], [V_VD]))
    a(V(f"v_xor_b32 v{V_VD+1}, 128, v{V_VD}", [V_VD], [V_VD+1]))
    a(V(f"v_lshrrev_b32 v{V_T0}, 1, v{V_G}", [V_G], [V_T0]))
    a(V(f"v_add_u32 v{V_T0}, s{S_T1}, v{V_T0}", [V_T0, ('s', S_T1)], [V_T0]))
    a(V(f"v_xor_b32 v{V_T0}, v{V_T0}, v{V_N}", [V_T0, V_N], [V_T0]))
    a(V(f"v_lshlrev_b32 v{V_T0}, 4, v{V_T0}", [V_T0], [V_T0]))
    a(V(f"v_lshl_add_u32 v{V_T0}, v{V_N}, 8, v{V_T0}", [V_N, V_T0], [V_T0]))
    a(V(f"v_and_b32 v{V_T1}, 1, v{V_G}", [V_G], [V_T1]))
    a(V(f"v_lshl_add_u32 v{V_T0}, v{V_T1}, 3, v{V_T0}", [V_T0, V_T1], [V_T0]))
    a(V(f"v_add_u32 v{V_QW}, {QBUF}, v{V_T0}", [V_T0], [V_QW]))
    a(V(f"v_xor_b32 v{V_QW+1}, 32, v{V_QW}", [V_QW], [V_QW+1]))
    a(V(f"v_lshl_add_u32 v{V_CW}, v{V_LANE}, 4, s{S_W8K}", [V_LANE, ('s', S_W8K)], [V_CW]))
    a(V(f"v_add_u32 v{V_CW+1}, {64*KB}, v{V_CW}", [V_CW], [V_CW+1]))
    a(S(f"s_add_u32 s{S_T0}, s{S_W8K}, {102*KB}", [S_W8K], [S_T0]))
    a(V(f"v_lshl_add_u32 v{V_LW}, v{V_LANE}, 5, s{S_T0}", [V_LANE, ('s', S_T0)], [V_LW]))
    a(S(f"s_mul_i32 s{S_T0}, s{S_B}, 640", [S_B], [S_T0]))
    a(S(f"s_lshl_b32 s{S_T2}, s{S_HQ}, 2", [S_HQ], [S_T2]))
    a(S(f"s_add_u32 s{S_T0}, s{S_T0}, s{S_T2}", [S_T0, S_T2], [S_T0]))
    a(S(f"s_add_u32 s{S_T0}, s{S_T0}, s{S_W}", [S_T0, S_W], [S_T0]))
    a(S(f"s_lshl_b32 s{S_T0}, s{S_T0}, 10", [S_T0], [S_T0]))
    a(V(f"v_lshl_add_u32 v{V_OST}, v{V_LANE}, 4, s{S_T0}", [V_LANE, ('s', S_T0)], [V_OST]))
    a(V(f"v_cmp_eq_u32 vcc, 0, v{V_N}", [V_N], [VCC]))
    a(V(f"v_mov_b32 v{V_T0}, 0x3f803f80", [], [V_T0]))
    for i in range(4):
        a(V(f"v_cndmask_b32 v{V_ONES+i}, 0, v{V_T0}, vcc", [V_T0, VCC], [V_ONES+i]))
    for i in range(20):
        a(V(f"v_mov_b32 v{V_NEGM+i}, 0", [], [V_NEGM+i]))
    return o[:n_early], o[n_early:]

V_QACC = V_VF
def AF(kap):
    return [(100, 120), (128, 148), (208, 156)][kap % 3]
def a_reads(kap):
    u, ks = kap >> 1, kap & 1
    c, s = u >> 1, kap & 3
    xf, wf = AF(kap)
    wb = WU(WSLOT[u], ks)
    xr = []
    for q in range(5):
        xb = XU(c, q)
        reg, base = (V_XA, 0) if xb < 64 * KB else (V_XB, 120 * KB)
        xr.append(dsrd('ds_read_b128', ('v', xf + q * 4), 4, reg + s, xb - base))
    wr = []
    for e in range(2):
        for h in range(2):
            reg, base = (V_WA, 40 * KB) if wb < 96 * KB else (V_WB, 96 * KB)
            wr.append(dsrd('ds_read_b64_tr_b16', ('v', wf + e * 4 + h * 2), 2, reg + e, wb - base + h * 1024))
    return wr[:2] + xr[:1] + wr[2:] + xr[1:]
def a_mfmas(kap):
    o = []
    xf, wf = AF(kap)
    for q in range(5):
        for e in range(2):
            d = ('v', V_QACC + (e * 5 + q) * 4)
            o.append(mfma(d, ('v', wf + e * 4), ('v', xf + q * 4), 0 if kap == 0 else d))
    return o
def lane0(sg, body, lab):
    sg.text(f"s_cmp_lg_u32 s{S_W}, 0"); sg.text(f"s_cbranch_scc1 {lab}")
    sg.text(f"s_mov_b64 s[{S_EX}:{S_EX+1}], exec"); sg.text("s_mov_b64 exec, 1")
    for x in body: sg.text(x)
    sg.text(f"s_mov_b64 exec, s[{S_EX}:{S_EX+1}]")
    sg.text(f"{lab}:")
def phase_a(sg, Q):
    stamp(sg, 1)
    sg.add(barrier(needvm=[('x', 0), ('w', 0)])); Q.mark('B0')
    stamp(sg, 2)
    sg.addall(a_reads(0)); sg.addall(a_reads(1))
    sg.add(S(f"s_mov_b32 s{S_T1}, {f2h(QSCALE)}", [], [S_T1]))
    sg.add(S(f"s_mov_b32 s{S_T2}, {f2h(QSCALE)}", [], [S_T2]))
    for kap in range(14 if int(opt.aq) else 16):
        mf = a_mfmas(kap)
        gaps = [[] for _ in mf]
        nx = kap + 2
        if nx < 16:
            if nx % 2 == 0:
                u = nx >> 1
                need = [('x', u >> 1), ('w', u)]
                while any(it.ins.vmtag in need for it in Q.q):
                    n_ = len(Q.q); weave(sg, Q, [], 1, 0); assert len(Q.q) < n_, (u, Q.q[0].after)
                while True:
                    younger = 0
                    for tg, _w in reversed(sg.vm):
                        if tg in need: break
                        younger += 1
                    n_ = len(Q.q)
                    if younger >= int(opt.la): break
                    weave(sg, Q, [], 1, 0)
                    if len(Q.q) == n_: break
                dr = str(u) in str(opt.drain)
                sg.add(barrier(needvm=need, lg0=dr)); Q.mark(f'B{u}')
                if dr: Q.mark(f'B{u+1}')
                if u in (1, 3, 5, 7): stamp(sg, 5 + u // 2, 'A')
            for i, r in enumerate(a_reads(nx)): gaps[i].append(r)
        mf[0].r |= set(R('v', AF(kap)[0], 20) + R('v', AF(kap)[1], 8))
        pos = [1, 5, 9] if kap % 2 == 0 else [3, 7]
        if int(opt.perstep) == 6: pos = [1, 4, 7] if kap % 2 == 0 else [1, 4, 8]
        if int(opt.perstep) == 7: pos = [1, 4, 6, 9] if kap % 2 == 0 else [2, 5, 8]
        if int(opt.perstep) == 8: pos = [1, 4, 6, 9]
        nkv = sum(1 for it in Q.q if it.ins.vmtag[0] in 'kv')
        room = int(opt.alim) - (128 - nkv) + (len(Q.q) - nkv)
        place(gaps, Q, pos[:max(0, room)])
        if int(opt.aonly): sg.addall([x for x in interleave(mf, gaps) if x.k not in ('mfma', 'dsrd')])
        else: sg.addall(interleave(mf, gaps))
    def qfin(q, e, packed):
        b = V_QACC + (e * 5 + q) * 4
        if packed: f_ = [V(f"v_pk_mul_f32 v[{b+r}:{b+r+1}], v[{b+r}:{b+r+1}], s[{S_T1}:{S_T1+1}]", [b+r, b+r+1], [b+r, b+r+1]) for r in (0, 2)]
        else: f_ = [V(f"v_mul_f32 v{b+r}, s{S_T1}, v{b+r}", [b+r], [b+r]) for r in range(4)]
        f_.append(V(f"v_cvt_pk_bf16_f32 v{b}, v{b}, v{b+1}", [b, b+1], [b]))
        f_.append(V(f"v_cvt_pk_bf16_f32 v{b+1}, v{b+2}, v{b+3}", [b+2, b+3], [b+1]))
        f_.append(dswr('ds_write_b64', V_QW + e, ('v', b), 2, q * 4096, lgtag='qw'))
        return f_
    todo = [(q, e) for q in range(5) for e in range(2)]
    if int(opt.aq):
        m14, m15 = a_mfmas(14), a_mfmas(15)
        m14[0].r |= set(R('v', AF(14)[0], 20) + R('v', AF(14)[1], 8))
        mf = flat([[m14[k], m15[k]] for k in range(10)])
        gaps = [[] for _ in mf]
        gi = 5
        while todo and gi + 3 <= 19:
            f_ = qfin(*todo.pop(0), False)
            gaps[gi] += f_[0:2]; gaps[gi + 1] += f_[2:4]; gaps[gi + 2] += f_[4:6]; gaps[gi + 3] = [f_[6]] + gaps[gi + 3]
            gi += 3
        nkv = sum(1 for it in Q.q if it.ins.vmtag[0] in 'kv')
        place(gaps, Q, [1, 4][:max(0, int(opt.alim) - (128 - nkv))])
        sg.addall(interleave(mf, gaps))
    stamp(sg, 9, 'A')
    for q, e in todo: sg.addall(qfin(q, e, True))
    while any(it.ins.vmtag in (('k', 0, 0), ('k', 0, 1)) for it in Q.q): weave(sg, Q, [], 1, 0)
    b = barrier(lg0=False); b.needlg = ('qw',)
    sg.addall(k_reads(0)); Q.mark(('kr', 0, 0)); Q.mark(('kr', 0, 1))
    sg.add(b); Q.mark('BQ'); Q.mark('B8')
    qr = [dsrd('ds_read_b128', AQ(q, s), 4, V_XB + s, QBUF - 120 * KB + q * 4096) for q in range(5) for s in range(4)]
    return qr

def TQ(tau):
    return divmod(tau, 5) if tau < 30 else (6 + ((tau - 30) & 1), (tau - 30) >> 1)
def qk(tau):
    i, q = TQ(tau)
    o = []
    for s, t in ([(s, t) for t in range(2) for s in range(4)] if int(opt.chain) else [(s, t) for s in range(4) for t in range(2)]):
        if True:
            d = ('v', V_S + (tau & 1) * 8 + t * 4)
            o.append(mfma(d, KF(i, t * 4 + s), AQ(q, s), ('v', V_NEGM + q * 4) if s == 0 else d))
            if s == 0 and int(opt.coal) and tau > 4: o[-1].r |= set(R(*KF(i, t * 4), 16))
    return o
def pv(tau):
    i, q = TQ(tau)
    p = ('v', V_P + (tau & 1) * 4)
    o = [mfma(AO(lam, q), ('v', V_VF + (i & 1) * 32 + lam * 4), p, AO(lam, q) if i else 0) for lam in range(8)]
    if int(opt.coal) and 0 < i < 7: o[0].r |= set(R('v', V_VF + (i & 1) * 32, 24)); o[5].r |= set(R('v', V_VF + (i & 1) * 32 + 24, 8))
    o.insert(0, mfma(LA(q), ('v', V_ONES), p, LA(q) if i else 0))
    return o
def sm(tau):
    b = V_S + (tau & 1) * 8
    p = V_P + (tau & 1) * 4
    e = [T(f"v_exp_f32 v{b+i}, v{b+i}", [b+i], [b+i]) for i in range(8)]
    c = [V(f"v_cvt_pk_bf16_f32 v{p+i}, v{b+2*i}, v{b+2*i+1}", [b+2*i, b+2*i+1], [p+i]) for i in range(4)]
    return e, c
def comb_writes(q):
    o = []
    for jd in range(1, 4):
        for e in range(2):
            u = q * 6 + (jd - 1) * 2 + e
            row = u >> 3
            o.append(dswr('ds_write_b128', V_CW + (row >> 1), AO(2 * jd + e, q), 4, (row & 1) * 32 * KB + (u & 7) * KB, lgtag=('cw', q)))
    o.insert(0, dswr('ds_write_b32', V_LW, LA(q), 1, [0, 4, 16, 20, 24][q], lgtag=('cw', q)))
    return o

def wo_dma(pos, after=None):
    o = []
    for ks in range(4):
        for half in range(2):
            base = (128 * KB if pos < 0 else pos * 32 * KB) + ks * 8 * KB + half * 4 * KB
            if pos < 0:
                pre = [S(f"s_lshl_b32 s{S_SK}, s{S_J}, 17", [S_J], [S_SK])] if ks + half == 0 else []
                h = S_SK
            else: pre, h = [], S_H + pos
            pre += [S(f"s_add_u32 s{S_SO}, s{h}, {ks*32768 + half*16384}", [h], [S_SO]), S(f"s_add_u32 m0, s{S_W1K}, {base}", [S_W1K], [M0])]
            o.append(Item(pre, dma(V_WOD, S_WO, S_SO, 0, ('wo', pos)), after))
    return o
def osib_dma(pos):
    o = []
    for q in range(5):
        pre = [S(f"s_lshr_b32 s{S_SK}, s{S_H+pos}, 5", [S_H+pos], [S_SK])] if q == 0 else []
        pre += [S(f"s_add_u32 s{S_SO}, s{S_SK}, {q*128*KB}", [S_SK], [S_SO]), S(f"s_add_u32 m0, s{S_W5K}, {(140 - 20*pos + q)*KB}", [S_W5K], [M0])]
        o.append(Item(pre, dma(V_OD, S_O, S_SO, 0, ('os', pos), flags=' sc1')))
    return o
def tail_calc():
    o = []; a = o.append
    T0, T1, T2 = 252, 253, 254
    a(V(f"v_lshlrev_b32 v{T0}, 4, v{V_LANE}", [V_LANE], [T0]))
    for jd in range(1, 4):
        a(S(f"s_sub_u32 s{S_T0}, s{S_W}, {jd}", [S_W], [S_T0]))
        a(S(f"s_and_b32 s{S_T0}, s{S_T0}, 3", [S_T0], [S_T0]))
        a(S(f"s_lshl_b32 s{S_T0}, s{S_T0}, 13", [S_T0], [S_T0]))
        a(V(f"v_add_u32 v{V_CR+2*(jd-1)}, s{S_T0}, v{T0}", [T0, ('s', S_T0)], [V_CR+2*(jd-1)]))
        a(V(f"v_add_u32 v{V_CR+2*(jd-1)+1}, {64*KB}, v{V_CR+2*(jd-1)}", [V_CR+2*(jd-1)], [V_CR+2*(jd-1)+1]))
    a(V(f"v_add_u32 v{V_OL}, {96*KB}, v{T0}", [T0], [V_OL]))
    a(V(f"v_add_u32 v{V_OW}, s{S_W5K}, v{V_OL}", [V_OL, ('s', S_W5K)], [V_OW]))
    a(S(f"s_mov_b32 s{S_T0}, {102*KB}", [], [S_T0]))
    a(V(f"v_lshl_add_u32 v{V_LR}, v{V_N}, 5, s{S_T0}", [V_N, ('s', S_T0)], [V_LR]))
    a(S(f"s_add_u32 s{S_T0}, s{S_W8K}, {64*KB}", [S_W8K], [S_T0]))
    for e in range(2):
        a(V(f"v_subrev_u32 v{V_WT+e}, s{S_T0}, v{V_VA+e}", [V_VA+e, ('s', S_T0)], [V_WT+e]))
        a(V(f"v_add_u32 v{V_WT+2+e}, {64*KB}, v{V_WT+e}", [V_WT+e], [V_WT+2+e]))
        a(V(f"v_add_u32 v{V_WT+4+e}, {128*KB}, v{V_WT+e}", [V_WT+e], [V_WT+4+e]))
    if int(opt.dtch_at) < 99:
        a(V(f"v_lshrrev_b32 v{T1}, 3, v{V_LANE}", [V_LANE], [T1]))
        a(V(f"v_min_u32 v{T1}, 4, v{T1}", [T1], [T1]))
        a(V(f"v_and_b32 v{T2}, 7, v{V_LANE}", [V_LANE], [T2]))
        a(V(f"v_lshlrev_b32 v{T2}, 7, v{T2}", [T2], [T2]))
        a(V(f"v_sub_u32 v{T2}, v{T2}, v{T0}", [T2, T0], [T2]))
        a(V(f"v_lshl_add_u32 v66, v{T1}, 17, v{T2}", [T1, T2], [66]))
        a(V(f"v_add_u32 v66, v66, v{V_OST}", [66, V_OST], [66]))
        a(V(f"v_lshl_add_u32 v67, v{T1}, 13, v{T2}", [T1, T2], [67]))
        a(V(f"v_add_u32 v67, v67, v{V_PS}", [67, V_PS], [67]))
    for k in range(5): a(S(f"s_mov_b32 s{S_TAB+k}, {k*8192}", [], [S_TAB+k]))
    return o
def handoff_calc():
    o = []; a = o.append
    T0, T1, T2, T3 = 252, 253, 254, 9
    a(S(f"s_lshl_b32 s{S_T0}, s{S_J}, 12", [S_J], [S_T0]))
    a(V(f"v_subrev_u32 v{V_OD}, s{S_T0}, v{V_OST}", [V_OST, ('s', S_T0)], [V_OD]))
    a(S(f"s_lshl_b32 s{S_T0}, s{S_B}, 2", [S_B], [S_T0]))
    a(S(f"s_add_u32 s{S_T0}, s{S_T0}, s{S_J}", [S_T0, S_J], [S_T0]))
    a(S(f"s_mul_i32 s{S_T0}, s{S_T0}, {20*8*KB}", [S_T0], [S_T0]))
    a(S(f"s_mul_i32 s{S_T1}, s{S_W}, {5*8*KB}", [S_W], [S_T1]))
    a(S(f"s_lshl_b32 s{S_T2}, s{S_HKV}, 10", [S_HKV], [S_T2]))
    a(S(f"s_add_u32 s{S_T2}, s{S_T2}, s{S_T1}", [S_T2, S_T1], [S_T2]))
    a(S(f"s_add_u32 s{S_T2}, s{S_T2}, s{S_T0}", [S_T2, S_T0], [S_T2]))
    a(V(f"v_lshl_add_u32 v{V_PS}, v{V_LANE}, 4, s{S_T2}", [V_LANE, ('s', S_T2)], [V_PS]))
    tr = int(opt.otr)
    if tr:
        a(S(f"s_mul_i32 s{S_T1}, s{S_HKV}, 160", [S_HKV], [S_T1]))
        a(V(f"v_add_u32 v{T0}, s{S_T1}, v0", [0, ('s', S_T1)], [T0]))
    else:
        a(S(f"s_lshl_b32 s{S_T1}, s{S_HKV}, 2", [S_HKV], [S_T1]))
        a(S(f"s_add_u32 s{S_T1}, s{S_T1}, s{S_W}", [S_T1, S_W], [S_T1]))
        a(S(f"s_mul_i32 s{S_T1}, s{S_T1}, 40", [S_T1], [S_T1]))
        a(V(f"v_add_u32 v{T0}, s{S_T1}, v{V_LANE}", [V_LANE, ('s', S_T1)], [T0]))
    a(V(f"v_bfe_u32 v{T1}, v{T0}, 5, 1", [T0], [T1]))
    a(V(f"v_and_b32 v{T2}, 7, v{T0}", [T0], [T2]))
    a(V(f"v_lshl_add_u32 v{T1}, v{T1}, 3, v{T2}", [T1, T2], [T1]))
    a(V(f"v_bfe_u32 v{T2}, v{T0}, 3, 2", [T0], [T2]))
    a(V(f"v_lshrrev_b32 v{T0}, 6, v{T0}", [T0], [T0]))
    a(V(f"v_lshl_add_u32 v{T3}, v{T2}, 4, v{T1}", [T1, T2], [T3]))
    a(V(f"v_lshl_add_u32 v{V_PLD}, v{T3}, 4, s{S_T0}", [T3, ('s', S_T0)], [V_PLD]))
    a(V(f"v_lshl_add_u32 v{V_PLD}, v{T0}, 13, v{V_PLD}", [T0, V_PLD], [V_PLD]))
    a(V(f"v_mul_u32_u24 v{T3}, 52, v{T0}", [T0], [T3]))
    a(V(f"v_lshrrev_b32 v{T3}, 8, v{T3}", [T3], [T3]))
    if tr:
        a(V(f"v_and_b32 v{T1}, 8, v{T1}", [T1], [T1]))
        a(V(f"v_bfe_u32 v{T2}, v0, 2, 3", [0], [T2]))
        a(V(f"v_add_u32 v{T1}, v{T1}, v{T2}", [T1, T2], [T1]))
        a(V(f"v_and_b32 v{T2}, 3, v0", [0], [T2]))
    a(V(f"v_lshlrev_b32 v{T2}, {4 if tr else 3}, v{T2}", [T2], [T2]))
    a(V(f"v_lshl_add_u32 v{T2}, v{T3}, 6, v{T2}", [T3, T2], [T2]))
    a(V(f"v_lshl_add_u32 v{T2}, v{T1}, 10, v{T2}", [T1, T2], [T2]))
    a(V(f"v_mul_u32_u24 v{T3}, 5, v{T3}", [T3], [T3]))
    a(V(f"v_sub_u32 v{T0}, v{T0}, v{T3}", [T0, T3], [T0]))
    a(V(f"v_lshl_add_u32 v{T2}, v{T0}, 14, v{T2}", [T0, T2], [T2]))
    a(S(f"s_mul_i32 s{S_T0}, s{S_B}, 81920", [S_B], [S_T0]))
    a(S(f"s_lshl_b32 s{S_T2}, s{S_J}, 8", [S_J], [S_T2]))
    a(S(f"s_add_u32 s{S_T0}, s{S_T0}, s{S_T2}", [S_T0, S_T2], [S_T0]))
    a(V(f"v_add_u32 v{V_OUT}, s{S_T0}, v{T2}", [T2, ('s', S_T0)], [V_OUT]))
    a(V(f"v_cmp_gt_u32 vcc, 160, v0", [0], [VCC]) if tr else V(f"v_cmp_gt_u32 vcc, 40, v{V_LANE}", [V_LANE], [VCC]))
    a(V(f"v_mov_b32 v{T0}, 0x7ff00000", [], [T0]))
    a(V(f"v_cndmask_b32 v{V_PLD}, v{T0}, v{V_PLD}, vcc", [T0, V_PLD, VCC], [V_PLD]))
    a(V(f"v_cndmask_b32 v{V_OUT}, v{T0}, v{V_OUT}, vcc", [T0, V_OUT, VCC], [V_OUT]))
    for pv_, n_, sh, sg_ in ((V_P1, 4, 9, S_G1), (V_P2, 8, 11, S_G2)):
        a(V(f"v_lshl_add_u32 v{pv_}, v{V_LANE}, {sh}, s{sg_}", [V_LANE, ('s', sg_)], [pv_]))
        a(V(f"v_cmp_gt_u32 vcc, {n_}, v{V_LANE}", [V_LANE], [VCC]))
        a(V(f"v_cndmask_b32 v{pv_}, v{T0}, v{pv_}, vcc", [T0, pv_, VCC], [pv_]))
    return o
def wod_calc():
    o = []; a = o.append
    T0, T1 = 252, 253
    a(S(f"s_lshl_b32 s{S_T0}, s{S_B}, 2", [S_B], [S_T0]))
    a(S(f"s_add_u32 s{S_T0}, s{S_T0}, s{S_W}", [S_T0, S_W], [S_T0]))
    a(S(f"s_lshl_b32 s{S_T0}, s{S_T0}, 14", [S_T0], [S_T0]))
    a(S(f"s_lshl_b32 s{S_T2}, s{S_J}, 8", [S_J], [S_T2]))
    a(S(f"s_add_u32 s{S_T0}, s{S_T0}, s{S_T2}", [S_T0, S_T2], [S_T0]))
    a(V(f"v_bfe_u32 v{T0}, v{V_LANE}, 1, 4", [V_LANE], [T0]))
    a(V(f"v_and_b32 v{T1}, 1, v{V_LANE}", [V_LANE], [T1]))
    a(V(f"v_lshlrev_b32 v{T1}, 7, v{T1}", [T1], [T1]))
    a(V(f"v_lshl_add_u32 v{T0}, v{T0}, 10, v{T1}", [T0, T1], [T0]))
    a(V(f"v_add_u32 v{V_TCH}, s{S_T0}, v{T0}", [T0, ('s', S_T0)], [V_TCH]))
    a(S(f"s_and_b32 s{S_T0}, s{S_W}, 1", [S_W], [S_T0]))
    a(S(f"s_lshl_b32 s{S_T0}, s{S_T0}, 3", [S_T0], [S_T0]))
    a(V(f"v_lshl_add_u32 v{T0}, v{V_G}, 1, s{S_T0}", [V_G, ('s', S_T0)], [T0]))
    a(V(f"v_xor_b32 v{T0}, v{V_N}, v{T0}", [V_N, T0], [T0]))
    a(S(f"s_lshl_b32 s{S_T0}, s{S_J}, 8", [S_J], [S_T0]))
    a(V(f"v_lshl_add_u32 v{T0}, v{T0}, 4, s{S_T0}", [T0, ('s', S_T0)], [T0]))
    a(V(f"v_lshl_add_u32 v{T1}, s{S_W}, 2, v{V_G}", [V_G, ('s', S_W)], [T1]))
    a(V(f"v_lshl_add_u32 v{V_WOD}, v{T1}, 10, v{T0}", [T0, T1], [V_WOD]))
    return o

def phase_b(sg, Q, qr):
    NT = 8
    calc = wod_calc() + tail_calc()
    sg.addall(qr[:4])
    qr = qr[4:]
    for tau in range(-1, 40):
        i, q = divmod(tau, 5) if tau >= 0 else (-1, 4)
        mf = []
        bst = [int(x) for x in opt.bst.split(',')]
        if tau in bst: stamp(sg, 5 + bst.index(tau), 'B')
        if tau + 1 < 40: mf += qk(tau + 1)
        if tau - 1 >= 0: mf += pv(tau - 1)
        ds, marks = [], []
        if tau == -1: ds = qr
        elif tau == 0: ds = v_reads(0); marks = [('vr', 0, 0), ('vr', 0, 1)]
        elif tau < 27:
            if q == 2: ds = k_reads(i + 1)[:4]; marks = [('kr', i + 1, 0)]
            if q == 3: ds = k_reads(i + 1)[4:] + v_reads(i + 1)[:2]; marks = [('kr', i + 1, 1)]
            if q == 4: ds = v_reads(i + 1)[2:8]; marks = [('vr', i + 1, 0)]
            if q == 0: ds = v_reads(i)[8:14]
            if q == 1 and i > 0: ds = v_reads(i)[14:]; Q.mark(('vr', i, 1))
        xp = None
        if tau >= 27:
            k6, k7, v6, v7 = k_reads(6), k_reads(7), v_reads(6), v_reads(7)
            vo = [v7[l + 8 * h] for l in range(8) for h in range(2)]
            G = [1, 3, 5, 7, 9, 11, 13, 15, 16]
            def cwp(q_, second):
                w_ = comb_writes(q_)
                if int(opt.w64) and q_ < 2:
                    h_ = []
                    for x in w_[1:]:
                        m_ = re.match(r"ds_write_b128 v(\d+), a\[(\d+):\d+\] offset:(\d+)", x.t)
                        for z in range(2): h_.append(dswr('ds_write_b64', int(m_.group(1)), ('a', int(m_.group(2)) + 2 * z), 2, int(m_.group(3)) + 8 * z, lgtag=x.lgtag))
                    return list(zip([1, 3, 5, 9, 13, 16], h_[6:])) if second else list(zip([7, 1, 3, 5, 9, 13, 16], [w_[0]] + h_[:6]))
                return list(zip([1, 9, 13], w_[4:])) if second else list(zip([7, 1, 9, 13], w_[:4]))
            xp = {27: list(zip([3, 5, 9, 11, 15, 16], k6[:4] + v6[:2])),
                  28: list(zip([1, 3, 5, 7, 9, 11, 13, 15, 16], k6[4:] + k7[:5])),
                  29: list(zip(G, k7[5:] + v6[2:8])),
                  30: list(zip([1, 3, 5, 7, 9, 11, 13, 15, 16, 16], v6[8:] + vo[:2])),
                  31: list(zip([1, 1, 3, 5, 5, 7, 9, 9, 11, 13, 13, 15, 16, 16], vo[2:])),
                  32: [], 33: cwp(0, 0), 34: cwp(0, 1), 35: cwp(1, 0), 36: cwp(1, 1), 37: cwp(2, 0),
                  38: cwp(2, 1) + list(zip([3, 5, 5, 7, 11, 15, 16, 16], lreads((0, 1)) + preads(0)[:4])),
                  39: list(zip([0, 2, 4, 6], comb_writes(3)[:4])) + list(zip([1, 1, 3, 3, 5, 5, 7, 7], preads(0)[4:] + preads(1)))}[tau]
            if int(opt.x1e) and tau >= 36:
                xp = {36: list(zip([1, 5, 9], comb_writes(1)[4:])),
                      37: cwp(2, 0) + list(zip([3, 5, 11, 15, 16, 16], preads(0))),
                      38: cwp(2, 1) + list(zip([3, 5, 5, 7, 11, 15, 16, 16], lreads((0, 1)) + preads(1)[:4])),
                      39: list(zip([1, 3, 5, 7], comb_writes(3)[:4])) + list(zip([0, 8], preads(1)[4:]))}[tau]
            ds = [x for _, x in xp]; marks = []
            if tau == (37 if int(opt.x1e) else 38):
                b = barrier(needvm=[('wo', -1)], lg0=False); b.needlg = (('cw', 0), ('cw', 1)); sg.add(b)
        n = len(mf)
        gaps = [[] for _ in range(n)]
        e, c = sm(tau) if 0 <= tau < 40 else ([], [])
        if n == 17:
            epos = [0, 2, 4, 6, 8, 10, 12, 14]; cpos = [3, 7, 11, 15]
            dpos = [1, 3, 5, 7, 9, 11, 13, 15] if len(ds) > 4 else [1, 3, 5, 7]
            if ds and ds[0].k == 'dswr': dpos = [1, 1, 3, 7, 9, 13, 16]
            vpos = [1, 5, 9, 13] if (tau < int(opt.even_at) or q == 1) else [1, 7, 13]
            if int(opt.bsched) and not (ds and ds[0].k == 'dswr'):
                if q == 1: dpos, vpos = [1, 3], [5, 9, 13, 16]
                elif tau < int(opt.even_at) or tau >= int(opt.even_end): dpos, vpos = ([3, 7, 11, 15, 16, 16] if q != 3 else [1, 3, 7, 11, 15, 16]), ([1, 5, 9, 13] if q != 3 else [5, 9, 13, 16])
                else: dpos, vpos = [3, 5, 9, 11, 15, 16], [1, 7, 13]
        else:
            epos = list(range(8)); cpos = [min(n - 1, x) for x in (2, 4, 6, 8)]
            dpos = [(k * n) // max(1, len(ds)) for k in range(len(ds))]
            vpos = [1, 5]
        if xp is not None:
            dpos = [g_ for g_, _ in xp]; vpos = [int(x) for x in opt.wpos.split(',')] if tau >= 32 else [13]
            if tau == 27: vpos = [1, 7, 13]
        for x, p_ in zip(ds, dpos): gaps[p_].append(x)
        if tau == int(opt.nl_at):
            sg.add(V("v_mov_b32 v9, 0", [], [9]))
            Q.q.insert(0, Item([], vload(('v', V_GC), 2, 9, S_D, None, 0, flags=' sc1', tag='non')))
        if tau == int(opt.nc_at):
            assert not any(it.ins.vmtag == 'non' for it in Q.q)
            sg.add(V(f"v_readfirstlane_b32 s{S_NON}, v{V_GC}", [V_GC], [('s', S_NON)]))
            sg.add(V(f"v_readfirstlane_b32 s{S_NON+1}, v{V_GC+1}", [V_GC+1], [('s', S_NON+1)]))
            sg.add(S(f"s_cmp_eq_u64 s[{S_NON}:{S_NON+1}], 0", [S_NON, S_NON+1], []))
            sg.text("s_cbranch_scc1 L_spin_n"); sg.text("L_back_n:")
        if tau == 32: stamp_out(sg, 1) if opt.stamps == 'Z' else None
        if tau == int(opt.bar_at): sg.add(barrier(lg0=False))
        for x in ds:
            while any(it.ins.vmtag in x.needvm for it in Q.q): weave(sg, Q, [], 1, 0)
        if tau == int(opt.tch_at): Q.push([Item([], vload(('v', V_TCH + 1), 1, V_TCH, S_WO, None, 0, flags=opt.tch_flags))])
        if tau == int(opt.tlb_at):
            Q.push([Item([], vload(('v', 72), 1, V_ZERO, S_C, S_F1, 0, flags=' sc1')), Item([], vload(('v', 73), 1, V_ZERO, S_C, S_F2, 0, flags=' sc1'))])
        if tau == int(opt.dtch_at):
            assert not calc
            Q.push(([Item([], vload(('v', 74), 1, 66, S_O, None, 0, flags=opt.dtch_flags))] if 'o' in opt.dtch else []) + ([Item([], vload(('v', 75), 1, 67, S_WT, None, 0, flags=opt.dtch_flags))] if 'p' in opt.dtch else []))
        if tau == int(opt.otch_at): Q.push([Item([], vload(('v', 66), 1, V_OUT, S_OUT, None, 0, flags=opt.otch_flags))])
        if tau == int(opt.wo_at): assert not calc; Q.push(wo_dma(-1))
        place(gaps, Q, vpos)
        for x, p_ in zip(e, epos): gaps[p_].append(x)
        for x, p_ in zip(c, cpos): gaps[p_].append(x)
        if tau >= int(opt.calc_at) and n == 17:
            for gi in range(17):
                if calc and calc[0].k == 'salu' and not any(y.k == 'salu' for y in gaps[gi]): gaps[gi].insert(0, calc.pop(0))
                cost = sum(8 if y.k == 'trans' else 0 if y.k == 'salu' else 4 for y in gaps[gi])
                while calc and calc[0].k != 'salu' and cost <= 4: gaps[gi].append(calc.pop(0)); cost += 4
        sg.addall(interleave(mf, gaps))
        for m in marks: Q.mark(m)

def poll(sg, lab, vaddr):
    sg.text(f"s_mov_b32 s{S_SPIN}, {opt.spin}")
    sg.text(f"{lab}:")
    sg.text(f"buffer_load_dwordx2 v[250:251], v{vaddr}, s[{S_C}:{S_C+3}], 0 offen sc1")
    sg.text(f"s_sub_u32 s{S_SPIN}, s{S_SPIN}, 1")
    sg.text("s_waitcnt vmcnt(0)")
    sg.text(f"v_cmp_ne_u64 vcc, s[{S_NON}:{S_NON+1}], v[250:251]")
    sg.text(f"s_cmp_eq_u32 s{S_SPIN}, 0")
    sg.text(f"s_cbranch_scc1 {lab}_done")
    sg.text("s_nop 2")
    sg.text(f"s_cbranch_vccnz {lab}")
    sg.text(f"{lab}_done:")
    sg.vm = []
def raise_flag(sg, stage, tag):
    ins = vstore(('v', V_GC), 2, V_P1 if stage == 1 else V_P2, S_C, None, 0, flags=' sc1')
    ins.needvm = (tag,)
    sg.add(ins)
WOF = A_Q
RES = 100
def part(q, k):
    if q == 0: return 36 + 4 * k if k < 4 else 64 + 4 * (k - 4)
    return {1: 100, 2: 164, 3: 188, 4: 100}[q] + 4 * k
def preads(q):
    o = []
    for jd in range(1, 4):
        for e in range(2):
            k = (jd - 1) * 2 + e; u = q * 6 + k; row = u >> 3
            o.append(dsrd('ds_read_b128', ('v', part(q, k)), 4, V_CR + 2 * (jd - 1) + (row >> 1), (row & 1) * 32 * KB + (u & 7) * KB))
    return o
LSA, LSB = 124, 76
def lreads(qs):
    if qs == (0, 1): return [dsrd('ds_read_b64', ('v', LSA + src * 2), 2, V_LR, src * 8 * KB) for src in range(4)]
    if qs == (2, 3): return [dsrd('ds_read_b64', ('v', LSB + src * 4), 2, V_LR, src * 8 * KB + 16) for src in range(4)]
    if qs == (4,): return [dsrd('ds_read_b32', ('v', LSB + src * 4 + 2), 1, V_LR, src * 8 * KB + 24) for src in range(4)]
    return [dsrd('ds_read_b128', ('v', LSB + src * 4), 4, V_LR, src * 8 * KB + 16) for src in range(4)]
def lsum(qs):
    w = []
    def lr(src, q): return LSA + src * 2 + q if q < 2 else LSB + src * 4 + q - 2
    LS = lr(0, qs[0])
    for q in qs:
        d = V_T0 + q
        w.append(V(f"v_add_f32 v{d}, v{lr(0,q)}, v{lr(1,q)}", [lr(0,q), lr(1,q)], [d]))
        w.append(V(f"v_add_f32 v{lr(2,q)}, v{lr(2,q)}, v{lr(3,q)}", [lr(2,q), lr(3,q)], [lr(2,q)]))
        w.append(V(f"v_add_f32 v{d}, v{d}, v{lr(2,q)}", [d, lr(2,q)], [d]))
    lo_, hi_ = LS, LS + 1
    if len(qs) == 1: lo_ = hi_ = V_T0 + qs[0]
    else:
        a_, b_, c_ = V_T0 + qs[0], V_T0 + qs[1], V_T0 + qs[-1]
        w.append(V(f"v_min3_f32 v{LS}, v{a_}, v{b_}, v{c_}", [a_, b_, c_], [LS]))
        w.append(V(f"v_add_f32 v{LS+1}, v{a_}, v{b_}", [a_, b_], [LS+1]))
        if len(qs) == 3: w.append(V(f"v_add_f32 v{LS+1}, v{LS+1}, v{c_}", [LS+1, c_], [LS+1]))
    w.append(V(f"v_cmp_nle_f32 vcc, {f2h(2.0**int(opt.lo_exp))}, v{lo_}", [lo_], [VCC]))
    w.append(S(f"s_mov_b64 s[{S_EX}:{S_EX+1}], vcc", [VCC], [S_EX, S_EX+1]))
    w.append(V(f"v_cmp_nge_f32 vcc, {f2h(2.0**int(opt.hi_exp))}, v{hi_}", [hi_], [VCC]))
    w.append(S(f"s_or_b64 vcc, vcc, s[{S_EX}:{S_EX+1}]", [VCC, S_EX, S_EX+1], [VCC]))
    w.append(S(f"s_and_b64 vcc, vcc, s[{S_GM}:{S_GM+1}]", [VCC], [VCC]))
    w.append(raw("s_cbranch_vccnz L_redo"))
    for q in qs: w.append(T(f"v_rcp_f32 v{V_T0+q}, v{V_T0+q}", [V_T0+q], [V_T0+q]))
    return w
def finish(q):
    w = []
    for e in range(2):
        o_ = V_OWN[q] + e * 4
        for jd in range(1, 4):
            p_ = part(q, (jd - 1) * 2 + e)
            for r in (0, 2):
                w.append(V(f"v_pk_add_f32 v[{o_+r}:{o_+r+1}], v[{o_+r}:{o_+r+1}], v[{p_+r}:{p_+r+1}]", [o_+r, o_+r+1, p_+r, p_+r+1], [o_+r, o_+r+1]))
    o_ = V_OWN[q]
    ri = V_T0 + (q & ~1); sel = "op_sel:[0,1] op_sel_hi:[1,1]" if q & 1 else "op_sel:[0,0] op_sel_hi:[1,0]"
    for r in range(0, 8, 2):
        w.append(V(f"v_pk_mul_f32 v[{o_+r}:{o_+r+1}], v[{o_+r}:{o_+r+1}], v[{ri}:{ri+1}] {sel}", [o_+r, o_+r+1, V_T0+q], [o_+r, o_+r+1]))
    for r in range(4):
        w.append(V(f"v_cvt_pk_bf16_f32 v{o_+r}, v{o_+2*r}, v{o_+2*r+1}", [o_+2*r, o_+2*r+1], [o_+r]))
    w.append(S(f"s_mov_b32 s{S_SV}, {q*128*KB}", [], [S_SV]))
    w.append(vstore(('v', o_), 4, V_OST, S_O, S_SV, 0, flags=opt.o_flags, tag='ost'))
    return w
def wor():
    return [dsrd('ds_read_b64_tr_b16', ('a', WOF + (ks * 2 + e) * 4 + h * 2), 2, V_WT + 4 + e, ks * 8 * KB + h * 4096) for ks in range(4) for e in range(2) for h in range(2)]
def combine(sg, Q):
    assert not Q.q
    mf = pv(39); gaps = [[] for _ in mf]
    wr = comb_writes(3)[4:]; ls = lsum((0, 1))
    for k, x in enumerate(wr): gaps[3 * k].append(x)
    k = 0
    for gi in range(9):
        n_ = 2 - len(gaps[gi])
        while ls and (n_ > 0 or ls[0].k == 'salu') and gi < 9:
            x = ls.pop(0); gaps[gi].append(x)
            n_ -= 0 if x.k == 'salu' else 2 if x.k == 'trans' else 1
    sg.addall(interleave(mf, gaps))
    stamp(sg, 4)
    if int(opt.c3):
        sg.addall(ls + finish(0))
        b = barrier(lg0=False); b.needlg = (('cw', 2), ('cw', 3)); sg.add(b)
        w4 = comb_writes(4)
        rd = lreads((2, 3)) + preads(2) + preads(3)
        for k in range(len(rd)):
            sg.add(rd[k])
            if k % 3 == 1 and w4: sg.add(w4.pop(0))
        w = finish(1) + lsum((2, 3)) + finish(2)
        for k, x in enumerate(w4): w.insert(4 + 8 * k, x)
        sg.addall(w)
        sg.add(barrier())
        stamp(sg, 5)
        Q.push(wo_dma(0))
        rd = lreads((4,)) + preads(4)
        weave(sg, Q, rd, int(opt.cw), 5)
        sg.addall(rd + finish(3) + lsum((4,)) + finish(4))
        stamp(sg, 6)
        return
    w4 = comb_writes(4)
    w = ls + finish(0) + finish(1)
    for k, x in enumerate(w4): w.insert(min(len(w), 6 + k * 6), x)
    sg.addall(w)
    sg.add(barrier())
    stamp(sg, 5)
    Q.push(wo_dma(0))
    rd = lreads((2, 3, 4)) + preads(2) + preads(3)
    weave(sg, Q, rd, int(opt.cw), 2)
    sg.addall(rd)
    w = lsum((2, 3, 4)) + preads(4) + finish(2) + finish(3) + finish(4)
    if not int(opt.worlate):
        for k, x in enumerate(wor()): w.insert(30 + 3 * k, x)
    sg.addall(w)
    stamp(sg, 6)

def phase_c(sg, Q):
    a = sg.add
    ACC = 164
    a(barrier())
    stamp(sg, 5, 'D')
    for q in range(5): a(dswr('ds_write_b128', V_OW, ('v', V_OWN[q]), 4, q * KB))
    Q.push(wo_dma(1) + wo_dma(2))
    wr_ = wor() if int(opt.worlate) else []
    weave(sg, Q, wr_, int(opt.shadow), 3)
    sg.addall(wr_)
    stamp(sg, 6, 'D')
    a(barrier())
    def CF(k): return [(100, 120), (64, 84), (204, 36)][k % 3]
    def c_reads(k):
        pos, ks = divmod(k, 4); pos -= 1
        xf, wf = CF(k)
        ob = 0 if pos < 0 else (44 - 20 * pos) * KB
        xr = [dsrd('ds_read_b128', ('v', xf + q * 4), 4, V_OL, ob + (ks * 5 + q) * KB) for q in range(5)]
        if pos < 0: return xr
        wb = (pos * 4 + ks) * 8 * KB
        wr = [dsrd('ds_read_b64_tr_b16', ('v', wf + e * 4 + h * 2), 2, V_WT + (2 if wb >= 64 * KB else 0) + e, (wb % (64 * KB)) + h * 4096) for e in range(2) for h in range(2)]
        return wr[:2] + xr[:1] + wr[2:] + xr[1:]
    def c_mfmas(k):
        xf, wf = CF(k)
        ff = 'v'
        if k < 4: wf, ff = WOF + k * 8, 'a'
        o = []
        for q in range(5):
            for e in range(2):
                d = ('v', ACC + (q * 2 + e) * 4)
                o.append(mfma(d, (ff, wf + e * 4), ('v', xf + q * 4), 0 if k == 0 else d))
        o[0].r |= set(R('v', xf, 20) + R(ff, wf, 8))
        return o
    def step(k, nx, pos=()):
        mf = c_mfmas(k); gaps = [[] for _ in mf]
        if nx is not None:
            for i, r in enumerate(c_reads(nx)): gaps[i].append(r)
        place(gaps, Q, pos)
        sg.addall(interleave(mf, gaps))
    def own_steps():
        for k in range(4): step(k, k + 2 if k < 2 else None, [1, 5, 9] if k % 2 == 0 else [3, 7])
    sg.addall(c_reads(0)); sg.addall(c_reads(1))
    raise_flag(sg, 1, 'ost')
    stamp(sg, 7, 'D'); stamp(sg, 7)
    weave(sg, Q, [], min(len(Q.q), int(opt.pf)), 0)
    held = Q.q; Q.q = []
    stamp(sg, 8, 'D')
    t = [f"s_mov_b32 s{S_SPIN}, {opt.spin}", "L_poll1:", f"s_load_dwordx8 s[4:11], s[{S_C}:{S_C+1}], s{S_F1} glc", f"s_sub_u32 s{S_SPIN}, s{S_SPIN}, 1", "s_waitcnt lgkmcnt(0)",
         f"s_cmp_eq_u32 s{S_SPIN}, 0", "s_cbranch_scc1 L_poll1_done"]
    t += [f"s_lshl_b32 s{S_T0}, 1, s{S_J}"]
    for h in range(4): t += [f"s_cmp_eq_u64 s[{4+2*h}:{5+2*h}], s[{S_NON}:{S_NON+1}]", f"s_cselect_b32 s{S_T1}, {1 << h}, 0", f"s_or_b32 s{S_T0}, s{S_T0}, s{S_T1}"]
    t += [f"s_cmp_lg_u32 s{S_T0}, 15", "s_cbranch_scc1 L_poll1", "L_poll1_done:"]
    for x in t: sg.text(x)
    sg.lg = []
    stamp(sg, 9, 'D')
    stamp(sg, 5, 'E')
    stamp(sg, 8)
    assert all(it.ins.vmtag == ('wo', 2) for it in held)
    Q.push(osib_dma(0) + osib_dma(1) + held)
    weave(sg, Q, [], 5, 0); own_steps()
    weave(sg, Q, [], len(Q.q), 0)
    stamp(sg, 6, 'E')
    a(barrier(needvm=[('os', 0), ('wo', 0), ('wo', 1)]))
    stamp(sg, 7, 'E')
    Q.push(osib_dma(2))
    sg.addall(c_reads(4)); sg.addall(c_reads(5))
    def pfin(q):
        b = ACC + q * 8
        return [V(f"v_cvt_pk_bf16_f32 v{b+r}, v{b+2*r}, v{b+2*r+1}", [b+2*r, b+2*r+1], [b+r]) for r in range(4)] + [vstore(('v', b), 4, V_PS, S_WT, S_TAB + q, 0, flags=' sc1', tag='pst')]
    last = 16 - (2 if int(opt.qmaj) else 0)
    for k in range(4, last):
        nx = k + 2 if k + 2 < 16 else None
        if nx in (8, 12):
            assert not Q.q or nx == 8
            a(barrier(needvm=[('os', nx // 4 - 1), ('wo', nx // 4 - 1)], lg0=False))
            stamp(sg, 8 if nx == 8 else 9, 'E')
        step(k, nx, [1, 5, 9] if k % 2 == 0 else [3, 7])
    if int(opt.qmaj):
        m14, m15 = c_mfmas(14), c_mfmas(15)
        m15[0].r -= set(R('v', CF(15)[0] + 4, 16))
        mf = flat([[m14[2*q], m15[2*q], m14[2*q+1], m15[2*q+1]] for q in range(5)])
        gaps = [[] for _ in mf]
        for q in range(4):
            f_ = pfin(q)
            g0 = 4 * q + 6
            if g0 + 2 < 20:
                gaps[g0] += f_[0:2]; gaps[g0 + 1] += f_[2:4]; gaps[g0 + 2] += f_[4:]
        sg.addall(interleave(mf, gaps))
        stamp(sg, 9)
        sg.addall(pfin(3) + pfin(4))
    else:
        stamp(sg, 9)
        for q in range(5): sg.addall(pfin(q))
    a(S(f"s_mov_b32 s{S_SO}, 4096", [], [S_SO]))
    a(S(f"s_mov_b32 s{S_T1}, 0xffff0000", [], [S_T1]))
    a(S(f"s_mov_b32 s{S_SPIN}, {opt.spin}", [], [S_SPIN]))
    a(S(f"s_mov_b32 s{S_T2}, 0", [], [S_T2]))
    a(S(f"s_mov_b32 s{S_SK}, 0", [], [S_SK]))
    if int(opt.f2wg):
        a(barrier(needvm=['pst'], lg0=False))
        sg.text(f"s_cmp_lg_u32 s{S_W}, 0"); sg.text("s_cbranch_scc1 L_sig2"); raise_flag(sg, 2, 'pst'); sg.text("L_sig2:")
    else: raise_flag(sg, 2, 'pst')
    stamp(sg, 5, '2')
    if int(opt.otr):
        a(V("v_lshlrev_b32 v11, 4, v0", [0], [11]))
        a(V("v_and_b32 v10, 0xe0, v0", [0], [10])); a(V("v_lshlrev_b32 v10, 4, v10", [10], [10]))
        a(V("v_and_b32 v12, 7, v0", [0], [12])); a(V("v_lshl_add_u32 v10, v12, 6, v10", [12, 10], [10]))
        a(V("v_bfe_u32 v12, v0, 3, 2", [0], [12])); a(V("v_lshl_add_u32 v10, v12, 3, v10", [12, 10], [10]))
        sg.text(f"s_cmp_eq_u32 s{S_W}, 3"); sg.text("s_cbranch_scc1 L_fin")
    PB, SM = 100, 132
    def pl(h): return vload(('v', PB + 4 * h), 4, V_PLD, S_WT, S_SO if h >= 4 else None, (h & 3) * 1024, flags=' sc1')
    t = ["L_poll2:", f"s_load_dwordx16 s[4:19], s[{S_C}:{S_C+1}], s{S_F2} glc", f"s_cmp_eq_u32 s{S_SK}, 0", "s_cbranch_scc1 L_nounp", "L_unp:", "s_waitcnt vmcnt(0)"]
    for h in range(8):
        t += [f"s_bitcmp1_b32 s{S_SK}, {h}", f"s_cbranch_scc0 L_u{h}"]
        for r in range(4): t += [f"v_lshlrev_b32 v{SM+8*h+2*r}, 16, v{PB+4*h+r}", f"v_and_b32 v{SM+8*h+2*r+1}, s{S_T1}, v{PB+4*h+r}"]
        t += [f"L_u{h}:"]
    t += [f"s_cmp_eq_u32 s{S_T2}, 0xff", "s_cbranch_scc1 L_poll2_done", "L_nounp:", f"s_mov_b32 s{S_SK}, 0", f"s_sub_u32 s{S_SPIN}, s{S_SPIN}, 1", "s_waitcnt lgkmcnt(0)",
          f"s_cmp_eq_u32 s{S_SPIN}, 0", "s_cbranch_scc1 L_poll2_done"]
    for h in range(8):
        t += [f"s_cmp_lg_u64 s[{4+2*h}:{5+2*h}], s[{S_NON}:{S_NON+1}]", f"s_cbranch_scc1 L_g{h}", f"s_bitcmp1_b32 s{S_T2}, {h}", f"s_cbranch_scc1 L_g{h}",
              f"s_bitset1_b32 s{S_T2}, {h}", f"s_bitset1_b32 s{S_SK}, {h}", pl(h).t, f"L_g{h}:"]
    t += [f"s_cmp_lg_u32 s{S_T2}, 0xff", "s_cbranch_scc1 L_poll2", "s_branch L_unp", "L_poll2_done:"]
    if not int(opt.unp):
        t = ["L_poll2:", f"s_load_dwordx16 s[4:19], s[{S_C}:{S_C+1}], s{S_F2} glc", f"s_sub_u32 s{S_SPIN}, s{S_SPIN}, 1", "s_waitcnt lgkmcnt(0)", f"s_cmp_eq_u32 s{S_SPIN}, 0", "s_cbranch_scc1 L_poll2_done"]
        for h in range(8):
            t += [f"s_cmp_lg_u64 s[{4+2*h}:{5+2*h}], s[{S_NON}:{S_NON+1}]", f"s_cbranch_scc1 L_g{h}", f"s_bitcmp1_b32 s{S_T2}, {h}", f"s_cbranch_scc1 L_g{h}",
                  f"s_bitset1_b32 s{S_T2}, {h}", f"s_bitset1_b32 s{S_SK}, {h}", pl(h).t, f"L_g{h}:"]
        t += [f"s_cmp_eq_u32 s{S_T2}, 0xff", "s_cbranch_scc1 L_poll2_done", f"s_mov_b32 s{S_SK}, 0", "s_branch L_poll2", "L_poll2_done:"]
        t += ["s_waitcnt vmcnt(0)"]
        for h in range(8):
            for r in range(4): t += [f"v_lshlrev_b32 v{SM+8*h+2*r}, 16, v{PB+4*h+r}", f"v_and_b32 v{SM+8*h+2*r+1}, s{S_T1}, v{PB+4*h+r}"]
    for x in t: sg.text(x)
    sg.vm = []
    stamp(sg, 6, '2')
    for h in range(1, 8):
        for r in range(0, 8, 2):
            u = SM + 8 * h + r
            a(V(f"v_pk_add_f32 v[{SM+r}:{SM+r+1}], v[{SM+r}:{SM+r+1}], v[{u}:{u+1}]", [SM+r, SM+r+1, u, u+1], [SM+r, SM+r+1]))
    for r in range(4):
        a(V(f"v_cvt_pk_bf16_f32 v{SM+r}, v{SM+2*r}, v{SM+2*r+1}", [SM+2*r, SM+2*r+1], [SM+r]))
    if int(opt.otr):
        a(dswr('ds_write_b64', 10, ('v', SM), 2, 0)); a(dswr('ds_write_b64', 10, ('v', SM + 2), 2, 32))
        r_ = dsrd('ds_read_b128', ('v', SM + 4), 4, 11, 0); r_.needlg = ('*',); a(r_)
        a(vstore(('v', SM + 4), 4, V_OUT, S_OUT, None, 0, flags=opt.out_flags))
    elif not int(opt.noout):
        a(vstore(('v', SM), 2, V_OUT, S_OUT, None, 0, flags=opt.out_flags))
        a(vstore(('v', SM + 2), 2, V_OUT, S_OUT, None, 32, flags=opt.out_flags))

def out_of_line():
    t = []
    t += ["L_spin_n:", f"s_mov_b32 s{S_SPIN}, {opt.spin}", "L_spin_n1:",
          f"buffer_load_dwordx2 v[{V_GC}:{V_GC+1}], v9, s[{S_D}:{S_D+3}], 0 offen sc1", f"s_sub_u32 s{S_SPIN}, s{S_SPIN}, 1", "s_waitcnt vmcnt(0)",
          f"v_readfirstlane_b32 s{S_NON}, v{V_GC}", f"v_readfirstlane_b32 s{S_NON+1}, v{V_GC+1}", f"s_cmp_eq_u32 s{S_SPIN}, 0", "s_cbranch_scc1 L_back_n", "s_nop 2",
          f"s_cmp_eq_u64 s[{S_NON}:{S_NON+1}], 0", "s_cbranch_scc1 L_spin_n1", "s_branch L_back_n"]
    t += ["; a row sum left the safe range - start over with the true row maxima", "L_redo:", f"s_mov_b64 s[{S_GM}:{S_GM+1}], 0", f"s_mov_b32 s{S_REDO}, 1",
          "s_waitcnt vmcnt(0) lgkmcnt(0)", "s_barrier"]
    sg = Seg()
    p1 = prologue1()
    a = sg.add
    a(V(f"v_lshl_add_u32 v{V_T0}, s{S_W}, 2, v{V_G}", [V_G], [V_T0]))
    a(V(f"v_xor_b32 v{V_T1}, v{V_N}, v{V_T0}", [V_N, V_T0], [V_T1]))
    a(V(f"v_lshlrev_b32 v{V_T1}, 4, v{V_T1}", [V_T1], [V_T1]))
    a(V(f"v_lshl_add_u32 v{V_XD}, v{V_T0}, 10, v{V_T1}", [V_T0, V_T1], [V_XD]))
    a(S(f"s_and_b32 s{S_T0}, s{S_W}, 2", [S_W], [S_T0]))
    a(S(f"s_lshl_b32 s{S_T0}, s{S_T0}, 2", [S_T0], [S_T0]))
    a(V(f"v_lshl_add_u32 v{V_T1}, v{V_G}, 1, s{S_T0}", [V_G], [V_T1]))
    a(V(f"v_xor_b32 v{V_T1}, v{V_N}, v{V_T1}", [V_N, V_T1], [V_T1]))
    a(V(f"v_lshlrev_b32 v{V_T1}, 4, v{V_T1}", [V_T1], [V_T1]))
    a(V(f"v_lshl_add_u32 v{V_WD}, v{V_T0}, 13, v{V_T1}", [V_T0, V_T1], [V_WD]))
    t += sg.out + ["s_nop 4", "s_branch L_restart"]
    sg = Seg(); a = sg.add
    sg.text("; true row maxima over all keys -> negated into the accumulator seed of S")
    sg.text("L_max:")
    sg.text(f"s_mov_b32 s{S_SPIN}, m0")
    sg.drain()
    sg.text("s_barrier")
    MX, KF, AD = 76, V_VF, 84
    for q in range(5): a(V(f"v_mov_b32 v{MX+q}, 0xff800000", [], [MX+q]))
    for s in range(4): a(V(f"v_add_u32 v{AD+s}, {96*KB}, v{V_KA+s}", [V_KA+s], [AD+s]))
    a(S(f"s_mov_b32 s{S_T2}, 0", [], [S_T2]))
    sg.text("L_max_loop:"); sg.reset_hist()
    for j in range(8):
        if j % 4 == 0:
            a(S(f"s_add_u32 s{S_T1}, s{S_T2}, {(j>>2)*4096}", [S_T2], [S_T1]))
            a(S(f"s_add_u32 m0, s{S_W8K}, {96*KB + (j>>2)*4096}", [S_W8K], [M0]))
        a(dma(V_KD + (j & 3), S_K, S_T1, 1024 * (j & 3), 'mk'))
    for t_ in range(2):
        for s in range(4):
            a(dsrd('ds_read_b128', ('v', KF + (t_ * 4 + s) * 4), 4, AD + s, t_ * 4096, needvm=['mk']))
    for q in range(5):
        for t_ in range(2):
            d = ('v', 88 + t_ * 4)
            for s in range(4): a(mfma(d, ('v', KF + (t_ * 4 + s) * 4), AQ(q, s), 0 if s == 0 else d))
        for k in range(4):
            a(V(f"v_max3_f32 v{MX+q}, v{MX+q}, v{88+2*k}, v{89+2*k}", [MX+q, 88+2*k, 89+2*k], [MX+q]))
    sg.drain()
    a(S(f"s_add_u32 s{S_T2}, s{S_T2}, 8192", [S_T2], [S_T2]))
    sg.text(f"s_cmp_lt_u32 s{S_T2}, 65536"); sg.text("s_nop 4"); sg.text("s_cbranch_scc1 L_max_loop")
    sg.text("s_barrier")
    a(S(f"s_mul_i32 s{S_T0}, s{S_W}, 1280", [S_W], [S_T0]))
    a(S(f"s_add_u32 s{S_T0}, s{S_T0}, {96*KB}", [S_T0], [S_T0]))
    a(V(f"v_lshl_add_u32 v{AD}, v{V_LANE}, 2, s{S_T0}", [V_LANE], [AD]))
    a(S(f"s_mov_b32 s{S_T0}, {96*KB}", [], [S_T0]))
    a(V(f"v_lshl_add_u32 v{AD+1}, v{V_N}, 2, s{S_T0}", [V_N], [AD+1]))
    for q in range(5): a(dswr('ds_write_b32', AD, ('v', MX + q), 1, q * 256))
    a(barrier())
    for q in range(5):
        for k in range(16):
            a(dsrd('ds_read_b32', ('v', KF + k), 1, AD + 1, (k >> 2) * 1280 + q * 256 + (k & 3) * 64))
        for k in range(8):
            a(V(f"v_max3_f32 v{MX+q}, v{MX+q}, v{KF+2*k}, v{KF+2*k+1}", [MX+q, KF+2*k, KF+2*k+1], [MX+q]))
        for r in range(4):
            a(V(f"v_sub_f32 v{V_NEGM+q*4+r}, 0, v{MX+q}", [MX+q], [V_NEGM+q*4+r]))
    sg.drain()
    sg.text("s_barrier"); sg.text(f"s_mov_b32 m0, s{S_SPIN}"); sg.text("s_nop 4"); sg.text("s_branch L_back_max")
    return t + sg.out

def stamp_out(sg, n):
    if not opt.stamps or (opt.stamps == 'Z' and n > 1): return
    if opt.stamps == 'Z':
        for x in ["s_load_dwordx2 s[76:77], s[0:1], 56", "s_waitcnt lgkmcnt(0)", f"s_add_u32 s76, s76, {16<<20}", "s_addc_u32 s77, s77, 0", "s_and_b32 s77, s77, 0xffff",
                  "s_mov_b32 s78, 0x100000", "s_mov_b32 s79, 0x20000", "s_lshl_b32 s80, s2, 2", "s_add_u32 s80, s80, s32", "s_lshl_b32 s80, s80, 6", "v_mov_b32 v74, s80",
                  "v_mov_b32 v75, s3", "buffer_store_dword v75, v74, s[76:79], 0 offen sc1"]: sg.text(x)
        return
    stamp(sg, n - 1)
    t = ["s_load_dwordx2 s[4:5], s[0:1], 56", "s_waitcnt lgkmcnt(0)", f"s_add_u32 s4, s4, {16<<20}", "s_addc_u32 s5, s5, 0", "s_and_b32 s5, s5, 0xffff",
         "s_mov_b32 s6, 0x100000", "s_mov_b32 s7, 0x20000", "s_lshl_b32 s8, s2, 2", "s_add_u32 s8, s8, s32", "s_lshl_b32 s8, s8, 6", "v_mov_b32 v2, s8"]
    for i in range(n):
        t += [f"v_mov_b32 v3, s{3 if i == 0 else 76+2*i}", f"buffer_store_dword v3, v2, s[4:7], 0 offen offset:{4*i} sc1"]
    for x in t: sg.text(x)

def kernel():
    sg = Seg()
    sg.text(NAME + "_kernel:")
    sg.text("s_cmp_ge_u32 s2, 256")
    sg.text("s_cbranch_scc1 L_end")
    if opt.stamps:
        stamp(sg, 0)
    p1 = prologue1()
    sg.addall(p1[:2])
    if int(opt.cpf):
        for x in ["s_getpc_b64 s[94:95]", "L_pc:", "s_lshr_b32 s3, s2, 3", "v_lshrrev_b32 v8, 6, v0", "v_and_b32 v9, 1, v0", "v_lshl_add_u32 v8, v8, 1, v9",
                  "v_lshl_add_u32 v8, s3, 3, v8", "v_lshlrev_b32 v8, 7, v8", "v_min_u32 v8, (L_code_end - L_pc - 4) & 0xffffff80, v8"] + (["global_load_dword v255, v8, s[94:95]"] if int(opt.cpf) == 1 else ["s_mov_b64 s[12:13], s[94:95]"]): sg.text(x)
    sg.addall(p1[2:])
    if opt.stamps:
        sg.text("s_mov_b32 s3, s76")
    p2 = prologue2()
    Q = Queue()
    first = x_dma(0) + w_dma(0) if not int(opt.wfirst) else w_dma(0) + x_dma(0)
    stamp(sg, 5, 'P')
    Q.push(first)
    weave(sg, Q, [], 9, 0)
    if int(opt.cpf) == 2: sg.text("global_load_dword v255, v8, s[12:13]")
    stamp(sg, 6, 'P')
    sg.addall(p2)
    stamp(sg, 7, 'P')
    sg.text("s_cmp_lg_u32 s2, 0"); sg.text("s_cbranch_scc1 L_nocz")
    lane0(sg, ["v_mov_b32 v9, 0", f"s_memrealtime s[{S_NON}:{S_NON+1}]", "s_waitcnt lgkmcnt(0)", f"s_or_b32 s{S_NON}, s{S_NON}, 1", f"v_mov_b32 v250, s{S_NON}", f"v_mov_b32 v251, s{S_NON+1}",
               f"buffer_store_dwordx2 v[250:251], v9, s[{S_D}:{S_D+3}], 0 offen sc1"], "L_nocz")
    sg.text("s_branch L_first")
    sg.text("L_restart:")
    s2 = Seg(); s2.addall(restart_setup()); Q2 = Queue(); Q2.push(x_dma(0) + w_dma(0) if not int(opt.wfirst) else w_dma(0) + x_dma(0)); weave(s2, Q2, [], 9, 0)
    for x in s2.out: sg.text(x)
    sg.text("L_first:")
    early, late = prologue3()
    early = early + late + handoff_calc()
    def BB(u): return f"B{u + 1}"
    Q.push(w_dma(1) + x_dma(1) + w_dma(2) + w_dma(3) + x_dma(2) + w_dma(4) + ((w_dma(5, 'B2') + x_dma(3)) if int(opt.la) else (x_dma(3) + w_dma(5, 'B2'))) + w_dma(6, 'B3') + w_dma(7, 'B4')
           + kv_dma('k', 0, 'B5') + kv_dma('v', 0, 'B6') + kv_dma('k', 1, 'B8') + kv_dma('v', 1, 'BQ'))
    for i in range(2, 8):
        if not int(opt.nodma): Q.push(kv_dma('k', i) + kv_dma('v', i))
    n0 = int(opt.n0) - 9
    weave(sg, Q, early, n0, (len(early) + n0 - 1) // n0)
    sg.addall(early)
    qr = phase_a(sg, Q)
    sg.addall(qr[:0])
    stamp(sg, 3)
    sg.text(f"s_cmp_eq_u32 s{S_REDO}, 0"); sg.text("s_cbranch_scc1 L_back_max")
    s2 = Seg(); s2.addall(qr)
    for x in s2.out: sg.text(x)
    sg.text("s_branch L_max")
    sg.text("L_back_max:")
    phase_b(sg, Q, qr)
    combine(sg, Q)
    phase_c(sg, Q)
    sg.text("L_fin:")
    stamp_out(sg, 11)
    sg.text("L_end:")
    sg.text("s_endpgm")
    return sg.out + ['L_code_end:'] + out_of_line()

def report_kernel():
    idx, mode = opt.report.split(',')
    if mode == 'next':
        return ["report_kernel:", "s_cmp_ge_u32 s2, 1", "s_cbranch_scc1 L3_end", "s_memrealtime s[12:13]", "s_load_dwordx2 s[4:5], s[0:1], 56", "s_waitcnt lgkmcnt(0)",
                f"s_add_u32 s4, s4, {17<<20}", "s_addc_u32 s5, s5, 0", "s_and_b32 s5, s5, 0xffff", "s_mov_b32 s6, 64", "s_mov_b32 s7, 0x20000", "v_mov_b32 v1, 0", "v_mov_b32 v2, s12",
                "buffer_store_dword v2, v1, s[4:7], 0 offen", "L3_end:", "s_endpgm"]
    t = ["report_kernel:", "s_cmp_ge_u32 s2, 1", "s_cbranch_scc1 L3_end", "s_load_dwordx2 s[4:5], s[0:1], 56", "s_waitcnt lgkmcnt(0)",
         f"s_add_u32 s4, s4, {16<<20}", "s_addc_u32 s5, s5, 0", "s_and_b32 s5, s5, 0xffff", "s_mov_b32 s6, 0x100000", "s_mov_b32 s7, 0x20000",
         "v_lshlrev_b32 v1, 8, v0", f"buffer_load_dword v2, v1, s[4:7], 0 offen offset:{4*int(idx)}", "buffer_load_dword v3, v1, s[4:7], 0 offen",
         "v_mov_b32 v4, 0", "v_mov_b32 v5, 0", "v_mov_b32 v6, -1", "ds_write_b32 v4, v5", "ds_write_b32 v4, v6 offset:8", "s_waitcnt vmcnt(0) lgkmcnt(0)", "s_barrier",
         "ds_min_u32 v4, v3 offset:8", "s_waitcnt lgkmcnt(0)", "s_barrier", "ds_read_b32 v6, v4 offset:8", "s_waitcnt lgkmcnt(0)", "v_sub_u32 v2, v2, v6",
         "v_lshrrev_b32 v7, 3, v0", "v_mul_u32_u24 v7, 52, v7", "v_lshrrev_b32 v7, 8, v7", "v_and_b32 v8, 1, v0", "v_sub_u32 v8, 6, v8", "v_cmp_lt_u32 vcc, v7, v8",
         "v_min_u32 v2, 10000, v2",
         ("ds_add_u32 v4, v2" if mode == 'mean' else "ds_max_u32 v4, v2"), "s_waitcnt lgkmcnt(0)", "s_barrier", "ds_read_b32 v6, v4", "s_memrealtime s[12:13]", "s_waitcnt lgkmcnt(0)",
         "v_readfirstlane_b32 s10, v6", "s_nop 4"]
    if mode == 'mean': t += ["s_mul_i32 s10, s10, 10", "s_lshr_b32 s10, s10, 8"]
    elif mode == 'max': t += ["s_mul_i32 s10, s10, 10"]
    else: t += ["s_mov_b32 s10, 0"]
    t += ["L3_spin:", "s_memrealtime s[14:15]", "s_waitcnt lgkmcnt(0)", "s_sub_u32 s14, s14, s12",
          "s_cmp_lt_u32 s14, s10", "s_cbranch_scc1 L3_spin", "L3_end:", "s_endpgm"]
    return t

HEADER = """; Kernarg layout (64 bytes, pointers only, base s[0:1]):
;  24: wq (512,4096) bf16  32: wo (4096,512) bf16   40: d_out (8,80,512) bf16   48: d_debug   56: d_ws
;
; One launch, one workgroup (4 waves) per (batch b, query head hq); hkv = id & 7, j = (id >> 3) & 3, b = id >> 5, hq = 4*hkv + j.
;     Softmax shift m: the first pass uses m = 0, which is exact as long as nothing leaves the fp32 range.  Every row sum is
;     checked against [2^-40, 2^40] (NaN fails too); if any row is outside, the workgroup starts over, computes the true row
;     maxima over all 1024 keys (L_max) and repeats phase B with m = row maximum.
;  C  hand-off 1: O (bf16) goes to the three other heads of the kv group; workgroup (b, hkv, j) multiplies the four heads
;     with wo[hkv*512.., j*128..] -> partial result for 128 output columns.
;     hand-off 2: the eight partial results (one per hkv) are summed in fp32, each workgroup finishing one eighth.
;  and read with sc1.  The tag is a clock value that workgroup 0 publishes in d_debug (zero at launch), so flags left in d_ws
;  by earlier launches never match.  Polls are bounded.  Nothing depends on the XCD a workgroup runs on; the id mapping, the
"""
def build():
    def fmt(l): return "\n".join(x if x.endswith(':') else "    " + x for x in l)
    nm = NAME + "_kernel"
    s = HEADER + "; @launch grid=(256,1,1) block=(256,1,1) lds=163840\n"
    if opt.report:
        s = f"; @launch kernel={nm} grid=(256,1,1) block=(256,1,1) lds=163840\n; @launch kernel=report_kernel grid=(1,1,1) block=(256,1,1) lds=64\n"
    s += '.amdgcn_target "amdgcn-amd-amdhsa--gfx950"\n.text\n'
    s += f".globl {nm}\n.p2align 8\n.type {nm},@function\n" + fmt(kernel()) + "\n"
    if opt.report: s += ".globl report_kernel\n.p2align 8\n.type report_kernel,@function\n" + fmt(report_kernel()) + "\n"
    s += f""".section .rodata,"a"
.p2align 6
.amdhsa_kernel {nm}
  .amdhsa_next_free_vgpr 512
  .amdhsa_next_free_sgpr 102
  .amdhsa_accum_offset 256
  .amdhsa_group_segment_fixed_size 0
  .amdhsa_kernarg_size 64
  .amdhsa_user_sgpr_count 2
  .amdhsa_user_sgpr_kernarg_segment_ptr 1
  .amdhsa_system_sgpr_workgroup_id_x 1
  .amdhsa_float_denorm_mode_32 3
.end_amdhsa_kernel
"""
    if opt.report:
        s += """.p2align 6
.amdhsa_kernel report_kernel
  .amdhsa_next_free_vgpr 32
  .amdhsa_next_free_sgpr 32
  .amdhsa_accum_offset 32
  .amdhsa_group_segment_fixed_size 0
  .amdhsa_kernarg_size 64
  .amdhsa_user_sgpr_count 2
  .amdhsa_user_sgpr_kernarg_segment_ptr 1
  .amdhsa_system_sgpr_workgroup_id_x 1
.end_amdhsa_kernel
"""
    return s

if __name__ == '__main__':
    out = sys.argv[1] if len(sys.argv) > 1 else 'cdna_kernels/' + NAME + '.s'
    for a_ in sys.argv[2:]:
        k, v = a_.split('=', 1)
        setattr(opt, k, (' ' + v) if k.endswith('flags') and v else v)
    HOIST[0] = int(opt.hoist)
    txt = build()
    open(out, 'w').write(txt)
```

```python
import sys, struct, re
from dsl import *

KB = 1024
NAME = 'standalone__gqa_block_cached__near_ridge'
def f2h(x): return hex(struct.unpack('<I', struct.pack('<f', x))[0])
QSCALE = 1.4426950408889634 / (128 ** 0.5)
WS_WO = 8 << 20
WS_CT = 12 << 20

class Opt:
    stamps = ''
    report = ''
    kv_flags = ''
    a_flags = ''
    n0 = 22
    warm = 1
    perstep = 6
    lo_exp = -40
    hi_exp = 40
    spin = 300000
    rt_at = 5
    bar_at = 32
    nodma = 0
    pairw = 0
    dtch_at = 99
    dtch = 'op'
    dtch_flags = ''
    wpos = '5,16'
    x1e = 0
    c3 = 0
    otr = 1
    otch_at = 99
    otch_flags = ''
    worlate = 1
    pf = 9
    noout = 0
    even_end = 23
    coal = 1
    hoist = 2
    unp = 0
    f2wg = 1
    wfirst = 0
    kvnt = 'x'
    ant = ''
    tch_flags = ''
    wsb = 0
    drain = '45'
    tlb_at = 27
    aonly = 0
    la = 10
    aq = 1
    ownlate = 1
    o_flags = ' sc1'
    f1_flags = ' sc1'
    w64 = 0
    out_flags = ''
    bsched = 1
    p1w = 1
    p2w = 0
    pollk = '19,29,39'
    dyn2 = 1
    qmaj = 1
    tch_at = 27
    even_at = 99
    pdepth = 1
    kvo = 4
    finw = 0
    alim = 16
    cpf = 1
    chain = 1
    wo_at = 33
    calc_at = 16
    nl_at = 8
    nc_at = 13
    cw = 2
    shadow = 9
    bst = '0,5,10,15,20'
    no_rt = 0
    clk = 'r'
    lg0 = 0
    vpos = '1,5,9,13'
    rot_kv = 1
    rot_a = 8
    rot_c = 1
    gl_at = 29
    gc_at = 33
opt = Opt()

S_X, S_WQ, S_K, S_V, S_O, S_WO, S_WT, S_WL, S_C, S_D, S_OUT = 4, 8, 12, 16, 20, 24, 28, 52, 56, 60, 64
S_W, S_B, S_HKV, S_HQ = 32, 33, 34, 35
S_W1K, S_W8K, S_SO, S_T0, S_T1, S_T2, S_SK, S_SV = 36, 37, 38, 39, 40, 41, 42, 43
S_TAB = 44
S_REDO, S_MT, S_NT, S_VALID, S_RT, S_SPIN = 68, 69, 70, 71, 72, 73
S_EX = 74
S_F1, S_F2, S_G1, S_G2 = 100, 101, 72, 51
S_GM = 70
S_J_UNUSED = 3
S_P = 76
S_ST = 80
V_LANE, V_N, V_G, V_T0, V_T1, V_T2, V_T3, V_T4, V_T5 = 1, 2, 3, 4, 5, 6, 7, 8, 9
V_KA, V_VA, V_KD, V_VD = 10, 14, 22, 26
V_OST, V_CW, V_LW = 28, 29, 31
V_ONES, V_NEGM, V_L, V_S, V_P, V_KF, V_VF = 32, 36, 56, 76, 92, 100, 164
V_XA, V_XB, V_WA, V_WB, V_XD, V_WD, V_QW = 228, 232, 236, 238, 240, 241, 242
V_GC = 250
S_NON = 96
V_CR, V_LR, V_WOD, V_WT, V_OL, V_OW, V_OD, V_PS, V_PLD, V_OUT, V_P1, V_P2 = 228, 234, 235, 236, 242, 243, 244, 245, 246, 247, 248, 249
V_ZERO = 9
V_TCH = 64
S_H = 52
S_W5K = 55
S_J = 69
A_O, A_Q = 0, 160
V_OWN = [132, 140, 148, 156, 56]
A_KF1, A_L = 120, 240
def AO(lam, q):
    if lam < 2: return ('v', V_OWN[q] + 4 * lam)
    return ('a', A_O + 4 * (q * 6 + lam - 2))
def KF(i, k): return ('v', V_KF + 4 * k) if i % 2 == 0 else ('a', A_KF1 + 4 * k)
def LA(q): return ('a', A_L + 4 * q) if q < 4 else ('a', 152)
def AQ(q, s): return ('a', A_Q + 4 * (q * 4 + s))

def XU(c, q):
    if c == 0: return q * 4 * KB
    if c == 1: return 20 * KB + q * 4 * KB
    if c == 2: return 128 * KB + q * 4 * KB
    return [120, 124, 148, 152, 156][q] * KB
def WU(slot, ks):
    return {0: [40, 48], 1: [56, 96], 2: [104, 112], 3: [64, 72], 4: [80, 88]}[slot][ks] * KB
WSLOT = [0, 1, 2, 3, 4, 0, 1, 2]
QBUF = 128 * KB

def V(t, r=(), w=()):
    return valu(t, r=[('v', x) if isinstance(x, int) else x for x in r], w=[('v', x) if isinstance(x, int) else x for x in w])
def T(t, r=(), w=()):
    return valu(t, r=[('v', x) for x in r], w=[('v', x) for x in w], trans=True)
def S(t, r=(), w=()):
    return salu(t, r=[('s', x) if isinstance(x, int) else x for x in r], w=[('s', x) if isinstance(x, int) else x for x in w])
M0 = ('m0', 0)
VCC = ('vcc', 0)
def flat(l): return [x for y in l for x in y]

def srd(dst, plo, add_s=None, add_imm=0, size=0):
    o = []
    if add_s is not None:
        o.append(S(f"s_add_u32 s{dst}, s{plo}, s{add_s}", [plo, add_s], [dst]))
        o.append(S(f"s_addc_u32 s{dst+1}, s{plo+1}, 0", [plo+1], [dst+1]))
        o.append(S(f"s_and_b32 s{dst+1}, s{dst+1}, 0xffff", [dst+1], [dst+1]))
    elif add_imm:
        o.append(S(f"s_add_u32 s{dst}, s{plo}, {add_imm}", [plo], [dst]))
        o.append(S(f"s_addc_u32 s{dst+1}, s{plo+1}, 0", [plo+1], [dst+1]))
        o.append(S(f"s_and_b32 s{dst+1}, s{dst+1}, 0xffff", [dst+1], [dst+1]))
    else:
        o.append(S(f"s_mov_b32 s{dst}, s{plo}", [plo], [dst]))
        o.append(S(f"s_and_b32 s{dst+1}, s{plo+1}, 0xffff", [plo+1], [dst+1]))
    if isinstance(size, str):
        o.append(S(f"s_mov_b32 s{dst+2}, {size}", [int(size[1:])], [dst+2]))
    else:
        o.append(S(f"s_mov_b32 s{dst+2}, {size}", [], [dst+2]))
    o.append(S(f"s_mov_b32 s{dst+3}, 0x20000", [], [dst+3]))
    return o

KV_ORDER = [[0, 2, 1, 3, 4, 6, 5, 7], [0, 1, 3, 2, 4, 5, 7, 6], [1, 0, 2, 4, 3, 5, 6, 7], [1, 0, 2, 3, 5, 4, 6, 7]]
KV_ORDERS = [KV_ORDER,
  [[0, 4, 1, 2, 3, 5, 6, 7], [1, 0, 5, 2, 3, 4, 6, 7], [2, 0, 1, 6, 3, 4, 5, 7], [3, 0, 1, 2, 7, 4, 5, 6]],
  [[0, 1, 2, 3, 4, 5, 6, 7], [0, 1, 2, 3, 4, 5, 6, 7], [4, 5, 6, 7, 0, 1, 2, 3], [4, 5, 6, 7, 0, 1, 2, 3]],
  [[0, 2, 1, 3, 5, 4, 6, 7], [1, 0, 3, 2, 4, 6, 5, 7], [2, 1, 0, 4, 3, 5, 7, 6], [0, 1, 2, 3, 5, 4, 6, 7]],
  [[0, 1, 2, 4, 3, 5, 6, 7], [1, 0, 2, 3, 5, 4, 6, 7], [2, 0, 1, 3, 4, 6, 5, 7], [0, 1, 3, 2, 4, 5, 7, 6]],
  [[0, 1, 4, 2, 3, 5, 6, 7], [1, 0, 2, 5, 3, 4, 6, 7], [2, 0, 1, 3, 6, 4, 5, 7], [0, 3, 1, 2, 4, 7, 5, 6]],
  [[0, 1, 3, 2, 4, 5, 7, 6], [0, 1, 2, 4, 3, 5, 6, 7], [0, 2, 1, 3, 5, 4, 6, 7], [0, 2, 1, 3, 4, 6, 5, 7]],
  [[0, 1, 2, 4, 3, 5, 6, 7], [1, 0, 3, 2, 5, 4, 6, 7], [2, 3, 0, 1, 4, 6, 5, 7], [3, 2, 1, 0, 4, 5, 7, 6]],
  [[0, 1, 2, 4, 3, 5, 6, 7], [1, 2, 0, 3, 5, 4, 6, 7], [2, 0, 1, 3, 4, 6, 5, 7], [0, 3, 1, 2, 4, 5, 7, 6]]]
def kv_pack(j):
    o = KV_ORDERS[int(opt.kvo)][j] if int(opt.rot_kv) else list(range(8))
    return sum(t << (4 * i) for i, t in enumerate(o))
S_KVO = 98
V_XD4 = 204
S_WC = 99

class Item:
    def __init__(s, pre, ins, after=None): s.pre, s.ins, s.after = pre, ins, after
def x_dma(c, after=None):
    return [Item([S(f"s_add_u32 m0, s{S_W1K}, {XU(c,q)}", [S_W1K], [M0])],
                 dma(V_XD4 + c, S_X, S_TAB + q, 0, ('x', c), flags=(' nt' if 'x' in opt.ant and c < 2 else opt.a_flags)), after) for q in range(5)]
def w_dma(u, after=None):
    o = []
    for k in range(4):
        pre = []
        if k == 0:
            pre.append(S(f"s_add_u32 s{S_SK}, s{S_WC}, {(u & 6) << 19}", [S_WC], [S_SK]))
            pre.append(S(f"s_and_b32 s{S_SK}, s{S_SK}, {7 << 19}", [S_SK], [S_SK]))
            if u & 1: pre.append(S(f"s_xor_b32 s{S_SK}, s{S_SK}, {1 << 19}", [S_SK], [S_SK]))
        pre.append(S(f"s_add_u32 s{S_SO}, s{S_SK}, {k*131072}", [S_SK], [S_SO]))
        pre.append(S(f"s_add_u32 m0, s{S_W1K}, {WU(WSLOT[u], k>>1) + (k&1)*4*KB}", [S_W1K], [M0]))
        o.append(Item(pre, dma(V_WD, S_WQ, S_SO, 0, ('w', u), flags=(' nt' if 'w' in opt.ant and u < 4 else opt.a_flags)), after))
    return o
def kv_dma(kind, i, after=None):
    o = []
    base = (i & 1) * 32 * KB + (0 if kind == 'k' else 64 * KB)
    sr, so = (S_K, S_SK) if kind == 'k' else (S_V, S_SV)
    for j in range(8):
        pre = []
        if j % 4 == 0:
            if j == 0:
                pre.append(S(f"s_bfe_u32 s{so}, s{S_KVO}, {hex((3 << 16) | (4 * i))}", [S_KVO], [so]))
                pre.append(S(f"s_lshl_b32 s{so}, s{so}, 13", [so], [so]))
            else:
                pre.append(S(f"s_add_u32 s{so}, s{so}, 4096", [so], [so]))
            pre.append(S(f"s_add_u32 m0, s{S_W8K}, {base + (j>>2)*4096}", [S_W8K], [M0]))
        va = V_KD + (j & 3) if kind == 'k' else V_VD + (j & 1)
        tag = (kind + 'r', i - 2, j >> 2)
        o.append(Item(pre, dma(va, sr, so, 1024 * (j & 3), (kind, i, j >> 2), needlg=[tag], flags=(' nt' if str(i) in str(opt.kvnt) else opt.kv_flags)), after if i < 2 else tag))
    return o
def k_reads(i):
    return [dsrd('ds_read_b128', KF(i, t * 4 + s), 4, V_KA + s, (i & 1) * 32 * KB + t * 4096,
                 needvm=[('k', i, t)], lgtag=('kr', i, t)) for t in range(2) for s in range(4)]
def v_reads(i):
    return [dsrd('ds_read_b64_tr_b16', ('v', V_VF + (i & 1) * 32 + lam * 4 + h * 2), 2, V_VA + lam, (i & 1) * 32 * KB + h * 4096,
                 needvm=[('v', i, h)], lgtag=('vr', i, h)) for h in range(2) for lam in range(8)]

class Queue:
    def __init__(s): s.q = []; s.pts = set()
    def push(s, items): s.q += items
    def mark(s, p): s.pts.add(p)
    def pop(s):
        if s.q and (s.q[0].after is None or s.q[0].after in s.pts): return s.q.pop(0)
        return None

def place(gaps, Q, pos):
    last = -1
    for p in pos:
        if p >= len(gaps): continue
        it = Q.pop()
        if it is None: break
        pre = list(it.pre)
        avail = list(range(last + 1, p))
        front = []
        if not avail: front = pre
        else:
            slots = [[] for _ in avail]
            for k_, x in enumerate(reversed(pre)):
                slots[max(0, len(avail) - 1 - k_)].insert(0, x)
            for g, sl in zip(avail, slots):
                k_ = 0
                while k_ < len(gaps[g]) and gaps[g][k_].k == 'salu': k_ += 1
                gaps[g][k_:k_] = sl
        k = 0
        while k < len(gaps[p]) and gaps[p][k].k == 'salu': k += 1
        gaps[p][k:k] = front + [it.ins]
        last = p
def weave(sg, Q, fill, n, per):
    for _ in range(n):
        it = Q.pop()
        if it is not None: sg.addall(it.pre + [it.ins])
        for _ in range(per):
            if fill: sg.add(fill.pop(0))

NST = 12
def stamp(sg, i, grp='1'):
    if not opt.stamps: return
    if opt.stamps == 'Z' and i: return
    if 5 <= i <= 9 and grp != opt.stamps: return
    sg.text(f"{'s_memtime' if opt.clk == 'c' else 's_memrealtime'} s[{76+2*i}:{77+2*i}]")

def prologue1():
    o = []; a = o.append
    a(raw("s_load_dwordx2 s[92:93], s[0:1], 0"))
    a(raw("s_load_dwordx2 s[26:27], s[0:1], 24"))
    a(V(f"v_lshrrev_b32 v{V_T0}, 6, v0", [0], [V_T0]))
    a(V(f"v_and_b32 v{V_LANE}, 63, v0", [0], [V_LANE]))
    a(V(f"v_readfirstlane_b32 s{S_W}, v{V_T0}", [V_T0], [('s', S_W)]))
    a(S(f"s_and_b32 s{S_HKV}, s2, 7", [2], [S_HKV]))
    a(S(f"s_lshr_b32 s{S_B}, s2, 5", [2], [S_B]))
    a(S(f"s_bfe_u32 s{S_T0}, s2, 0x20003", [2], [S_T0]))
    a(S(f"s_mov_b32 s{S_J}, s{S_T0}", [S_T0], [S_J]))
    a(S(f"s_lshl_b32 s{S_HQ}, s{S_HKV}, 2", [S_HKV], [S_HQ]))
    a(S(f"s_add_u32 s{S_HQ}, s{S_HQ}, s{S_T0}", [S_HQ, S_T0], [S_HQ]))
    if int(opt.rot_a) == 2:
        a(S(f"s_add_u32 s{S_VALID}, s{S_T0}, s{S_B}", [S_T0, S_B], [S_VALID]))
        a(S(f"s_and_b32 s{S_VALID}, s{S_VALID}, 1", [S_VALID], [S_VALID]))
        a(S(f"s_lshl_b32 s{S_VALID}, s{S_VALID}, 2", [S_VALID], [S_VALID]))
    elif int(opt.rot_a) in (5, 6):
        a_, b_ = (S_B, S_T0) if int(opt.rot_a) == 5 else (S_T0, S_B)
        a(S(f"s_lshl_b32 s{S_VALID}, s{b_}, 1", [b_], [S_VALID]))
        a(S(f"s_add_u32 s{S_VALID}, s{S_VALID}, s{a_}", [S_VALID, a_], [S_VALID]))
        a(S(f"s_and_b32 s{S_VALID}, s{S_VALID}, 3", [S_VALID], [S_VALID]))
        a(S(f"s_lshl_b32 s{S_VALID}, s{S_VALID}, 1", [S_VALID], [S_VALID]))
    elif int(opt.rot_a) in (8, 9):
        a(S(f"s_add_u32 s{S_VALID}, s{S_T0}, s{S_B}", [S_T0, S_B], [S_VALID]))
        a(S(f"s_lshl_b32 s{S_VALID}, s{S_VALID}, 1", [S_VALID], [S_VALID]))
        a(S(f"s_and_b32 s{S_T1}, s{S_HKV}, {1 if int(opt.rot_a) == 8 else 3}", [S_HKV], [S_T1]))
        a(S(f"s_add_u32 s{S_VALID}, s{S_VALID}, s{S_T1}", [S_VALID, S_T1], [S_VALID]))
        a(S(f"s_and_b32 s{S_VALID}, s{S_VALID}, 3", [S_VALID], [S_VALID]))
        a(S(f"s_lshl_b32 s{S_VALID}, s{S_VALID}, 1", [S_VALID], [S_VALID]))
    elif int(opt.rot_a) == 7:
        a(S(f"s_add_u32 s{S_VALID}, s{S_T0}, s{S_B}", [S_T0, S_B], [S_VALID]))
        a(S(f"s_and_b32 s{S_VALID}, s{S_VALID}, 1", [S_VALID], [S_VALID]))
        a(S(f"s_lshl_b32 s{S_VALID}, s{S_VALID}, 2", [S_VALID], [S_VALID]))
        a(S(f"s_bfe_u32 s{S_T1}, s{S_B}, 0x10001", [S_B], [S_T1]))
        a(S(f"s_or_b32 s{S_VALID}, s{S_VALID}, s{S_T1}", [S_VALID, S_T1], [S_VALID]))
    elif int(opt.rot_a) == 4:
        a(S(f"s_add_u32 s{S_VALID}, s{S_T0}, s{S_B}", [S_T0, S_B], [S_VALID]))
        a(S(f"s_and_b32 s{S_VALID}, s{S_VALID}, 3", [S_VALID], [S_VALID]))
        a(S(f"s_lshl_b32 s{S_VALID}, s{S_VALID}, 1", [S_VALID], [S_VALID]))
    elif int(opt.rot_a):
        a(S(f"s_lshl_b32 s{S_T0}, s{S_T0}, 1", [S_T0], [S_T0]))
        a(S(f"s_add_u32 s{S_VALID}, s{S_T0}, s{S_B}", [S_T0, S_B], [S_VALID]))
        a(S(f"s_and_b32 s{S_VALID}, s{S_VALID}, 7", [S_VALID], [S_VALID]))
    else:
        a(S(f"s_mov_b32 s{S_VALID}, 0", [], [S_VALID]))
    a(V(f"v_and_b32 v{V_N}, 15, v{V_LANE}", [V_LANE], [V_N]))
    a(V(f"v_lshrrev_b32 v{V_G}, 4, v{V_LANE}", [V_LANE], [V_G]))
    a(S(f"s_lshl_b32 s{S_W1K}, s{S_W}, 10", [S_W], [S_W1K]))
    a(S(f"s_lshl_b32 s{S_W8K}, s{S_W}, 13", [S_W], [S_W8K]))
    a(V(f"v_lshl_add_u32 v{V_T0}, s{S_W}, 2, v{V_G}", [V_G, ('s', S_W)], [V_T0]))
    a(V(f"v_xor_b32 v{V_T1}, v{V_N}, v{V_T0}", [V_N, V_T0], [V_T1]))
    a(V(f"v_lshlrev_b32 v{V_T1}, 4, v{V_T1}", [V_T1], [V_T1]))
    a(V(f"v_lshl_add_u32 v{V_XD}, v{V_T0}, 10, v{V_T1}", [V_T0, V_T1], [V_XD]))
    a(S(f"s_and_b32 s{S_T0}, s{S_W}, 2", [S_W], [S_T0]))
    a(S(f"s_lshl_b32 s{S_T0}, s{S_T0}, 2", [S_T0], [S_T0]))
    a(V(f"v_lshl_add_u32 v{V_T1}, v{V_G}, 1, s{S_T0}", [V_G, ('s', S_T0)], [V_T1]))
    a(V(f"v_xor_b32 v{V_T1}, v{V_N}, v{V_T1}", [V_N, V_T1], [V_T1]))
    a(V(f"v_lshlrev_b32 v{V_T1}, 4, v{V_T1}", [V_T1], [V_T1]))
    a(V(f"v_lshl_add_u32 v{V_WD}, v{V_T0}, 13, v{V_T1}", [V_T0, V_T1], [V_WD]))
    a(S(f"s_mul_i32 s{S_T0}, s{S_B}, 81920", [S_B], [S_T0]))
    a(S(f"s_lshl_b32 s{S_T2}, s{S_HQ}, 8", [S_HQ], [S_T2]))
    a(S(f"s_sub_u32 s{S_T1}, 4194304, s{S_T2}", [S_T2], [S_T1]))
    a(S(f"s_mov_b32 s{S_REDO}, 0", [], [S_REDO]))
    a(S(f"s_lshl_b32 s{S_WC}, s{S_VALID}, 19", [S_VALID], [S_WC]))
    a(S(f"s_mov_b64 s[{S_GM}:{S_GM+1}], -1", [], [S_GM, S_GM+1]))
    o += restart_setup()
    a(S(f"s_mov_b32 s{S_X+2}, 81920", [], [S_X+2])); a(S(f"s_mov_b32 s{S_X+3}, 0x20000", [], [S_X+3]))
    a(S(f"s_mov_b32 s{S_WQ+2}, s{S_T1}", [S_T1], [S_WQ+2])); a(S(f"s_mov_b32 s{S_WQ+3}, 0x20000", [], [S_WQ+3]))
    a(raw("s_waitcnt lgkmcnt(0)", 'wait'))
    o += srd(S_X, 92, add_s=S_T0, size=81920)[:3]
    o += srd(S_WQ, 26, add_s=S_T2, size=0)[:3]
    a(raw("s_load_dwordx4 s[92:95], s[0:1], 8"))
    a(raw(f"s_load_dwordx2 s[{S_WO}:{S_WO+1}], s[0:1], 32"))
    a(raw(f"s_load_dwordx4 s[{S_C}:{S_C+3}], s[0:1], 40"))
    a(raw("s_load_dwordx2 s[100:101], s[0:1], 56"))
    return o

def restart_setup():
    o = [S(f"s_mov_b32 s{S_TAB+q}, {q*16384}", [], [S_TAB+q]) for q in range(5)]
    for c in range(4):
        o.append(S(f"s_lshr_b32 s{S_SO}, s{S_WC}, 12", [S_WC], [S_SO]))
        o.append(S(f"s_add_u32 s{S_SO}, s{S_SO}, {c*256}", [S_SO], [S_SO]))
        o.append(S(f"s_and_b32 s{S_SO}, s{S_SO}, 0x300", [S_SO], [S_SO]))
        o.append(V(f"v_add_u32 v{V_XD4+c}, s{S_SO}, v{V_XD}", [V_XD, ('s', S_SO)], [V_XD4+c]))
    return o

def prologue2():
    o = []; a = o.append
    a(raw("s_waitcnt lgkmcnt(0)", 'wait'))
    a(S(f"s_lshl_b32 s{S_T0}, s{S_B}, 3", [S_B], [S_T0]))
    a(S(f"s_add_u32 s{S_T0}, s{S_T0}, s{S_HKV}", [S_T0, S_HKV], [S_T0]))
    a(S(f"s_lshl_b32 s{S_T0}, s{S_T0}, 2", [S_T0], [S_T0]))
    a(S(f"s_add_u32 s{S_T0}, s{S_T0}, s{S_W}", [S_T0, S_W], [S_T0]))
    a(S(f"s_lshl_b32 s{S_T0}, s{S_T0}, 16", [S_T0], [S_T0]))
    o += srd(S_K, 92, add_s=S_T0, size=65536)
    o += srd(S_V, 94, add_s=S_T0, size=65536)
    a(S(f"s_lshl_b32 s{S_T0}, s{S_HKV}, 19", [S_HKV], [S_T0]))
    o += srd(S_WO, S_WO, add_s=S_T0, size=524288)
    WB = int(opt.wsb) << 20
    o += srd(S_O, 100, add_imm=WB, size=8*5*128*1024)
    o += srd(S_WT, 100, add_imm=WB + WS_WO, size=8*4*20*8*1024)
    o += srd(S_D, S_C + 2, size=256)
    o += srd(S_OUT, S_C, size=655360)
    o += srd(S_C, 100, add_imm=WB + WS_CT, size=262144)
    a(S(f"s_bitcmp1_b32 s{S_HQ}, 0", [S_HQ], []))
    a(S(f"s_mov_b32 s{S_T0}, {hex(kv_pack(0))}", [], [S_T0]))
    a(S(f"s_cselect_b32 s{S_T0}, {hex(kv_pack(1))}, s{S_T0}", [S_T0], [S_T0]))
    a(S(f"s_mov_b32 s{S_T1}, {hex(kv_pack(2))}", [], [S_T1]))
    a(S(f"s_cselect_b32 s{S_T1}, {hex(kv_pack(3))}, s{S_T1}", [S_T1], [S_T1]))
    a(S(f"s_bitcmp1_b32 s{S_HQ}, 1", [S_HQ], []))
    a(S(f"s_cselect_b32 s{S_KVO}, s{S_T1}, s{S_T0}", [S_T0, S_T1], [S_KVO]))
    for p in range(3):
        a(S(f"s_cmp_le_u32 s{S_J}, {p}", [S_J], []))
        a(S(f"s_cselect_b32 s{S_T1}, {p + 1}, {p}", [], [S_T1]))
        a(S(f"s_lshl_b32 s{S_H+p}, s{S_T1}, 17", [S_T1], [S_H+p]))
    a(S(f"s_mul_i32 s{S_W5K}, s{S_W}, 5120", [S_W], [S_W5K]))
    a(S(f"s_lshl_b32 s{S_T0}, s{S_B}, 14", [S_B], [S_T0]))
    a(S(f"s_lshl_b32 s{S_T1}, s{S_W}, 7", [S_W], [S_T1]))
    a(S(f"s_add_u32 s{S_T0}, s{S_T0}, s{S_T1}", [S_T0, S_T1], [S_T0]))
    a(S(f"s_lshl_b32 s{S_F1}, s{S_HQ}, 9", [S_HQ], [S_F1]))
    a(S(f"s_add_u32 s{S_F1}, s{S_F1}, s{S_T0}", [S_F1, S_T0], [S_F1]))
    a(S(f"s_add_u32 s{S_F2}, s{S_F1}, 131072", [S_F1], [S_F2]))
    if int(opt.f2wg): a(S(f"s_andn2_b32 s{S_F2}, s{S_F2}, 0x180", [S_F2], [S_F2]))
    a(S(f"s_lshl_b32 s{S_T1}, s{S_HKV}, 11", [S_HKV], [S_T1]))
    a(S(f"s_lshl_b32 s{S_G1}, s{S_J}, 3", [S_J], [S_G1]))
    a(S(f"s_add_u32 s{S_G1}, s{S_G1}, s{S_T1}", [S_G1, S_T1], [S_G1]))
    a(S(f"s_add_u32 s{S_G1}, s{S_G1}, s{S_T0}", [S_G1, S_T0], [S_G1]))
    a(S(f"s_lshl_b32 s{S_T1}, s{S_J}, 9", [S_J], [S_T1]))
    a(S(f"s_lshl_b32 s{S_G2}, s{S_HKV}, 3", [S_HKV], [S_G2]))
    a(S(f"s_add_u32 s{S_G2}, s{S_G2}, s{S_T1}", [S_G2, S_T1], [S_G2]))
    a(S(f"s_add_u32 s{S_G2}, s{S_G2}, s{S_T0}", [S_G2, S_T0], [S_G2]))
    a(S(f"s_add_u32 s{S_G2}, s{S_G2}, 131072", [S_G2], [S_G2]))
    return o

def prologue3():
    o = []; a = o.append
    a(S(f"s_bfe_u32 s{S_T1}, s{S_WC}, 0x10013", [S_WC], [S_T1]))
    a(S(f"s_lshl_b32 s{S_T1}, s{S_T1}, 3", [S_T1], [S_T1]))
    a(V(f"v_xor_b32 v{V_T1}, s{S_T1}, v{V_N}", [V_N, ('s', S_T1)], [V_T1]))
    for s in range(4):
        a(V(f"v_add_u32 v{V_T0}, {4*s}, v{V_G}", [V_G], [V_T0]))
        a(V(f"v_xor_b32 v{V_T0}, v{V_T0}, v{V_T1}", [V_T0, V_T1], [V_T0]))
        a(V(f"v_lshlrev_b32 v{V_T0}, 4, v{V_T0}", [V_T0], [V_T0]))
        a(V(f"v_lshl_add_u32 v{V_XA+s}, v{V_N}, 8, v{V_T0}", [V_N, V_T0], [V_XA+s]))
        a(V(f"v_add_u32 v{V_XB+s}, {120*KB}, v{V_XA+s}", [V_XA+s], [V_XB+s]))
    a(V(f"v_lshrrev_b32 v{V_T2}, 2, v{V_N}", [V_N], [V_T2]))
    a(V(f"v_bfe_u32 v{V_T3}, v{V_N}, 1, 1", [V_N], [V_T3]))
    a(V(f"v_and_b32 v{V_T4}, 1, v{V_N}", [V_N], [V_T4]))
    a(V(f"v_lshlrev_b32 v{V_T4}, 3, v{V_T4}", [V_T4], [V_T4]))
    a(V(f"v_and_b32 v{V_T5}, 1, v{V_G}", [V_G], [V_T5]))
    a(V(f"v_lshl_add_u32 v{V_T5}, v{V_T5}, 2, v{V_T2}", [V_T5, V_T2], [V_T5]))
    a(V(f"v_lshlrev_b32 v{V_T5}, 1, v{V_T5}", [V_T5], [V_T5]))
    a(S(f"s_lshl_b32 s{S_T1}, s{S_W}, 2", [S_W], [S_T1]))
    a(V(f"v_lshl_add_u32 v{V_T1}, v{V_G}, 3, v{V_T2}", [V_G, V_T2], [V_T1]))
    a(V(f"v_lshl_add_u32 v{V_T1}, v{V_T1}, 8, v{V_T4}", [V_T1, V_T4], [V_T1]))
    for e in range(2):
        a(V(f"v_add3_u32 v{V_T0}, s{S_T1}, v{V_T3}, {2*e}", [V_T3, ('s', S_T1)], [V_T0]))
        a(V(f"v_xor_b32 v{V_T0}, v{V_T0}, v{V_T5}", [V_T0, V_T5], [V_T0]))
        a(V(f"v_lshl_add_u32 v{V_T0}, v{V_T0}, 4, v{V_T1}", [V_T0, V_T1], [V_T0]))
        a(V(f"v_add_u32 v{V_WA+e}, {40*KB}, v{V_T0}", [V_T0], [V_WA+e]))
        a(V(f"v_add_u32 v{V_WB+e}, {96*KB}, v{V_T0}", [V_T0], [V_WB+e]))
    a(V(f"v_lshl_add_u32 v{V_T1}, v{V_G}, 2, v{V_T2}", [V_G, V_T2], [V_T1]))
    n_early = len(o)
    for s in range(4):
        a(V(f"v_add_u32 v{V_KA+s}, s{S_W8K}, v{V_XA+s}", [V_XA+s, ('s', S_W8K)], [V_KA+s]))
    a(V(f"v_lshl_add_u32 v{V_T1}, v{V_T1}, 8, v{V_T4}", [V_T1, V_T4], [V_T1]))
    a(S(f"s_add_u32 s{S_T2}, s{S_W8K}, {64*KB}", [S_W8K], [S_T2]))
    a(V(f"v_add_u32 v{V_T1}, s{S_T2}, v{V_T1}", [V_T1, ('s', S_T2)], [V_T1]))
    a(V(f"v_add_u32 v{V_T3}, s{S_T1}, v{V_T3}", [V_T3, ('s', S_T1)], [V_T3]))
    for lam in range(8):
        a(V(f"v_add_u32 v{V_T0}, {2*lam}, v{V_T3}", [V_T3], [V_T0]))
        a(V(f"v_and_b32 v{V_T0}, 15, v{V_T0}", [V_T0], [V_T0]))
        a(V(f"v_xor_b32 v{V_T0}, v{V_T0}, v{V_T5}", [V_T0, V_T5], [V_T0]))
        a(V(f"v_lshl_add_u32 v{V_VA+lam}, v{V_T0}, 4, v{V_T1}", [V_T0, V_T1], [V_VA+lam]))
    a(V(f"v_xor_b32 v{V_T0}, v{V_N}, v{V_G}", [V_N, V_G], [V_T0]))
    a(V(f"v_lshlrev_b32 v{V_T0}, 4, v{V_T0}", [V_T0], [V_T0]))
    a(V(f"v_lshl_add_u32 v{V_KD}, v{V_G}, 8, v{V_T0}", [V_G, V_T0], [V_KD]))
    for j in range(1, 4):
        a(V(f"v_xor_b32 v{V_KD+j}, {64*j}, v{V_KD}", [V_KD], [V_KD+j]))
    a(V(f"v_lshlrev_b32 v{V_T0}, 1, v{V_G}", [V_G], [V_T0]))
    a(V(f"v_xor_b32 v{V_T0}, v{V_N}, v{V_T0}", [V_N, V_T0], [V_T0]))
    a(V(f"v_lshlrev_b32 v{V_T0}, 4, v{V_T0}", [V_T0], [V_T0]))
    a(V(f"v_lshl_add_u32 v{V_VD}, v{V_G}, 8, v{V_T0}", [V_G, V_T0], [V_VD]))
    a(V(f"v_xor_b32 v{V_VD+1}, 128, v{V_VD}", [V_VD], [V_VD+1]))
    a(V(f"v_lshrrev_b32 v{V_T0}, 1, v{V_G}", [V_G], [V_T0]))
    a(V(f"v_add_u32 v{V_T0}, s{S_T1}, v{V_T0}", [V_T0, ('s', S_T1)], [V_T0]))
    a(V(f"v_xor_b32 v{V_T0}, v{V_T0}, v{V_N}", [V_T0, V_N], [V_T0]))
    a(V(f"v_lshlrev_b32 v{V_T0}, 4, v{V_T0}", [V_T0], [V_T0]))
    a(V(f"v_lshl_add_u32 v{V_T0}, v{V_N}, 8, v{V_T0}", [V_N, V_T0], [V_T0]))
    a(V(f"v_and_b32 v{V_T1}, 1, v{V_G}", [V_G], [V_T1]))
    a(V(f"v_lshl_add_u32 v{V_T0}, v{V_T1}, 3, v{V_T0}", [V_T0, V_T1], [V_T0]))
    a(V(f"v_add_u32 v{V_QW}, {QBUF}, v{V_T0}", [V_T0], [V_QW]))
    a(V(f"v_xor_b32 v{V_QW+1}, 32, v{V_QW}", [V_QW], [V_QW+1]))
    a(V(f"v_lshl_add_u32 v{V_CW}, v{V_LANE}, 4, s{S_W8K}", [V_LANE, ('s', S_W8K)], [V_CW]))
    a(V(f"v_add_u32 v{V_CW+1}, {64*KB}, v{V_CW}", [V_CW], [V_CW+1]))
    a(S(f"s_add_u32 s{S_T0}, s{S_W8K}, {102*KB}", [S_W8K], [S_T0]))
    a(V(f"v_lshl_add_u32 v{V_LW}, v{V_LANE}, 5, s{S_T0}", [V_LANE, ('s', S_T0)], [V_LW]))
    a(S(f"s_mul_i32 s{S_T0}, s{S_B}, 640", [S_B], [S_T0]))
    a(S(f"s_lshl_b32 s{S_T2}, s{S_HQ}, 2", [S_HQ], [S_T2]))
    a(S(f"s_add_u32 s{S_T0}, s{S_T0}, s{S_T2}", [S_T0, S_T2], [S_T0]))
    a(S(f"s_add_u32 s{S_T0}, s{S_T0}, s{S_W}", [S_T0, S_W], [S_T0]))
    a(S(f"s_lshl_b32 s{S_T0}, s{S_T0}, 10", [S_T0], [S_T0]))
    a(V(f"v_lshl_add_u32 v{V_OST}, v{V_LANE}, 4, s{S_T0}", [V_LANE, ('s', S_T0)], [V_OST]))
    a(V(f"v_cmp_eq_u32 vcc, 0, v{V_N}", [V_N], [VCC]))
    a(V(f"v_mov_b32 v{V_T0}, 0x3f803f80", [], [V_T0]))
    for i in range(4):
        a(V(f"v_cndmask_b32 v{V_ONES+i}, 0, v{V_T0}, vcc", [V_T0, VCC], [V_ONES+i]))
    for i in range(20):
        a(V(f"v_mov_b32 v{V_NEGM+i}, 0", [], [V_NEGM+i]))
    return o[:n_early], o[n_early:]

V_QACC = V_VF
def AF(kap):
    return [(100, 120), (128, 148), (208, 156)][kap % 3]
def a_reads(kap):
    u, ks = kap >> 1, kap & 1
    c, s = u >> 1, kap & 3
    xf, wf = AF(kap)
    wb = WU(WSLOT[u], ks)
    xr = []
    for q in range(5):
        xb = XU(c, q)
        reg, base = (V_XA, 0) if xb < 64 * KB else (V_XB, 120 * KB)
        xr.append(dsrd('ds_read_b128', ('v', xf + q * 4), 4, reg + s, xb - base))
    wr = []
    for e in range(2):
        for h in range(2):
            reg, base = (V_WA, 40 * KB) if wb < 96 * KB else (V_WB, 96 * KB)
            wr.append(dsrd('ds_read_b64_tr_b16', ('v', wf + e * 4 + h * 2), 2, reg + e, wb - base + h * 1024))
    return wr[:2] + xr[:1] + wr[2:] + xr[1:]
def a_mfmas(kap):
    o = []
    xf, wf = AF(kap)
    for q in range(5):
        for e in range(2):
            d = ('v', V_QACC + (e * 5 + q) * 4)
            o.append(mfma(d, ('v', wf + e * 4), ('v', xf + q * 4), 0 if kap == 0 else d))
    return o
def lane0(sg, body, lab):
    sg.text(f"s_cmp_lg_u32 s{S_W}, 0"); sg.text(f"s_cbranch_scc1 {lab}")
    sg.text(f"s_mov_b64 s[{S_EX}:{S_EX+1}], exec"); sg.text("s_mov_b64 exec, 1")
    for x in body: sg.text(x)
    sg.text(f"s_mov_b64 exec, s[{S_EX}:{S_EX+1}]")
    sg.text(f"{lab}:")
def phase_a(sg, Q):
    stamp(sg, 1)
    sg.add(barrier(needvm=[('x', 0), ('w', 0)])); Q.mark('B0')
    stamp(sg, 2)
    sg.addall(a_reads(0)); sg.addall(a_reads(1))
    sg.add(S(f"s_mov_b32 s{S_T1}, {f2h(QSCALE)}", [], [S_T1]))
    sg.add(S(f"s_mov_b32 s{S_T2}, {f2h(QSCALE)}", [], [S_T2]))
    for kap in range(14 if int(opt.aq) else 16):
        mf = a_mfmas(kap)
        gaps = [[] for _ in mf]
        nx = kap + 2
        if nx < 16:
            if nx % 2 == 0:
                u = nx >> 1
                need = [('x', u >> 1), ('w', u)]
                while any(it.ins.vmtag in need for it in Q.q):
                    n_ = len(Q.q); weave(sg, Q, [], 1, 0); assert len(Q.q) < n_, (u, Q.q[0].after)
                while True:
                    younger = 0
                    for tg, _w in reversed(sg.vm):
                        if tg in need: break
                        younger += 1
                    n_ = len(Q.q)
                    if younger >= int(opt.la): break
                    weave(sg, Q, [], 1, 0)
                    if len(Q.q) == n_: break
                dr = str(u) in str(opt.drain)
                sg.add(barrier(needvm=need, lg0=dr)); Q.mark(f'B{u}')
                if dr: Q.mark(f'B{u+1}')
                if u in (1, 3, 5, 7): stamp(sg, 5 + u // 2, 'A')
            for i, r in enumerate(a_reads(nx)): gaps[i].append(r)
        mf[0].r |= set(R('v', AF(kap)[0], 20) + R('v', AF(kap)[1], 8))
        pos = [1, 5, 9] if kap % 2 == 0 else [3, 7]
        if int(opt.perstep) == 6: pos = [1, 4, 7] if kap % 2 == 0 else [1, 4, 8]
        if int(opt.perstep) == 7: pos = [1, 4, 6, 9] if kap % 2 == 0 else [2, 5, 8]
        if int(opt.perstep) == 8: pos = [1, 4, 6, 9]
        nkv = sum(1 for it in Q.q if it.ins.vmtag[0] in 'kv')
        room = int(opt.alim) - (128 - nkv) + (len(Q.q) - nkv)
        place(gaps, Q, pos[:max(0, room)])
        if int(opt.aonly): sg.addall([x for x in interleave(mf, gaps) if x.k not in ('mfma', 'dsrd')])
        else: sg.addall(interleave(mf, gaps))
    def qfin(q, e, packed):
        b = V_QACC + (e * 5 + q) * 4
        if packed: f_ = [V(f"v_pk_mul_f32 v[{b+r}:{b+r+1}], v[{b+r}:{b+r+1}], s[{S_T1}:{S_T1+1}]", [b+r, b+r+1], [b+r, b+r+1]) for r in (0, 2)]
        else: f_ = [V(f"v_mul_f32 v{b+r}, s{S_T1}, v{b+r}", [b+r], [b+r]) for r in range(4)]
        f_.append(V(f"v_cvt_pk_bf16_f32 v{b}, v{b}, v{b+1}", [b, b+1], [b]))
        f_.append(V(f"v_cvt_pk_bf16_f32 v{b+1}, v{b+2}, v{b+3}", [b+2, b+3], [b+1]))
        f_.append(dswr('ds_write_b64', V_QW + e, ('v', b), 2, q * 4096, lgtag='qw'))
        return f_
    todo = [(q, e) for q in range(5) for e in range(2)]
    if int(opt.aq):
        m14, m15 = a_mfmas(14), a_mfmas(15)
        m14[0].r |= set(R('v', AF(14)[0], 20) + R('v', AF(14)[1], 8))
        mf = flat([[m14[k], m15[k]] for k in range(10)])
        gaps = [[] for _ in mf]
        gi = 5
        while todo and gi + 3 <= 19:
            f_ = qfin(*todo.pop(0), False)
            gaps[gi] += f_[0:2]; gaps[gi + 1] += f_[2:4]; gaps[gi + 2] += f_[4:6]; gaps[gi + 3] = [f_[6]] + gaps[gi + 3]
            gi += 3
        nkv = sum(1 for it in Q.q if it.ins.vmtag[0] in 'kv')
        place(gaps, Q, [1, 4][:max(0, int(opt.alim) - (128 - nkv))])
        sg.addall(interleave(mf, gaps))
    stamp(sg, 9, 'A')
    for q, e in todo: sg.addall(qfin(q, e, True))
    while any(it.ins.vmtag in (('k', 0, 0), ('k', 0, 1)) for it in Q.q): weave(sg, Q, [], 1, 0)
    b = barrier(lg0=False); b.needlg = ('qw',)
    sg.addall(k_reads(0)); Q.mark(('kr', 0, 0)); Q.mark(('kr', 0, 1))
    sg.add(b); Q.mark('BQ'); Q.mark('B8')
    qr = [dsrd('ds_read_b128', AQ(q, s), 4, V_XB + s, QBUF - 120 * KB + q * 4096) for q in range(5) for s in range(4)]
    return qr

def TQ(tau):
    return divmod(tau, 5) if tau < 30 else (6 + ((tau - 30) & 1), (tau - 30) >> 1)
def qk(tau):
    i, q = TQ(tau)
    o = []
    for s, t in ([(s, t) for t in range(2) for s in range(4)] if int(opt.chain) else [(s, t) for s in range(4) for t in range(2)]):
        if True:
            d = ('v', V_S + (tau & 1) * 8 + t * 4)
            o.append(mfma(d, KF(i, t * 4 + s), AQ(q, s), ('v', V_NEGM + q * 4) if s == 0 else d))
            if s == 0 and int(opt.coal) and tau > 4: o[-1].r |= set(R(*KF(i, t * 4), 16))
    return o
def pv(tau):
    i, q = TQ(tau)
    p = ('v', V_P + (tau & 1) * 4)
    o = [mfma(AO(lam, q), ('v', V_VF + (i & 1) * 32 + lam * 4), p, AO(lam, q) if i else 0) for lam in range(8)]
    if int(opt.coal) and 0 < i < 7: o[0].r |= set(R('v', V_VF + (i & 1) * 32, 24)); o[5].r |= set(R('v', V_VF + (i & 1) * 32 + 24, 8))
    o.insert(0, mfma(LA(q), ('v', V_ONES), p, LA(q) if i else 0))
    return o
def sm(tau):
    b = V_S + (tau & 1) * 8
    p = V_P + (tau & 1) * 4
    e = [T(f"v_exp_f32 v{b+i}, v{b+i}", [b+i], [b+i]) for i in range(8)]
    c = [V(f"v_cvt_pk_bf16_f32 v{p+i}, v{b+2*i}, v{b+2*i+1}", [b+2*i, b+2*i+1], [p+i]) for i in range(4)]
    return e, c
def comb_writes(q):
    o = []
    for jd in range(1, 4):
        for e in range(2):
            u = q * 6 + (jd - 1) * 2 + e
            row = u >> 3
            o.append(dswr('ds_write_b128', V_CW + (row >> 1), AO(2 * jd + e, q), 4, (row & 1) * 32 * KB + (u & 7) * KB, lgtag=('cw', q)))
    o.insert(0, dswr('ds_write_b32', V_LW, LA(q), 1, [0, 4, 16, 20, 24][q], lgtag=('cw', q)))
    return o

def wo_dma(pos, after=None):
    o = []
    for ks in range(4):
        for half in range(2):
            base = (128 * KB if pos < 0 else pos * 32 * KB) + ks * 8 * KB + half * 4 * KB
            if pos < 0:
                pre = [S(f"s_lshl_b32 s{S_SK}, s{S_J}, 17", [S_J], [S_SK])] if ks + half == 0 else []
                h = S_SK
            else: pre, h = [], S_H + pos
            pre += [S(f"s_add_u32 s{S_SO}, s{h}, {ks*32768 + half*16384}", [h], [S_SO]), S(f"s_add_u32 m0, s{S_W1K}, {base}", [S_W1K], [M0])]
            o.append(Item(pre, dma(V_WOD, S_WO, S_SO, 0, ('wo', pos)), after))
    return o
def osib_dma(pos):
    o = []
    for q in range(5):
        pre = [S(f"s_lshr_b32 s{S_SK}, s{S_H+pos}, 5", [S_H+pos], [S_SK])] if q == 0 else []
        pre += [S(f"s_add_u32 s{S_SO}, s{S_SK}, {q*128*KB}", [S_SK], [S_SO]), S(f"s_add_u32 m0, s{S_W5K}, {(140 - 20*pos + q)*KB}", [S_W5K], [M0])]
        o.append(Item(pre, dma(V_OD, S_O, S_SO, 0, ('os', pos), flags=' sc1')))
    return o
def tail_calc():
    o = []; a = o.append
    T0, T1, T2 = 252, 253, 254
    a(V(f"v_lshlrev_b32 v{T0}, 4, v{V_LANE}", [V_LANE], [T0]))
    for jd in range(1, 4):
        a(S(f"s_sub_u32 s{S_T0}, s{S_W}, {jd}", [S_W], [S_T0]))
        a(S(f"s_and_b32 s{S_T0}, s{S_T0}, 3", [S_T0], [S_T0]))
        a(S(f"s_lshl_b32 s{S_T0}, s{S_T0}, 13", [S_T0], [S_T0]))
        a(V(f"v_add_u32 v{V_CR+2*(jd-1)}, s{S_T0}, v{T0}", [T0, ('s', S_T0)], [V_CR+2*(jd-1)]))
        a(V(f"v_add_u32 v{V_CR+2*(jd-1)+1}, {64*KB}, v{V_CR+2*(jd-1)}", [V_CR+2*(jd-1)], [V_CR+2*(jd-1)+1]))
    a(V(f"v_add_u32 v{V_OL}, {96*KB}, v{T0}", [T0], [V_OL]))
    a(V(f"v_add_u32 v{V_OW}, s{S_W5K}, v{V_OL}", [V_OL, ('s', S_W5K)], [V_OW]))
    a(S(f"s_mov_b32 s{S_T0}, {102*KB}", [], [S_T0]))
    a(V(f"v_lshl_add_u32 v{V_LR}, v{V_N}, 5, s{S_T0}", [V_N, ('s', S_T0)], [V_LR]))
    a(S(f"s_add_u32 s{S_T0}, s{S_W8K}, {64*KB}", [S_W8K], [S_T0]))
    for e in range(2):
        a(V(f"v_subrev_u32 v{V_WT+e}, s{S_T0}, v{V_VA+e}", [V_VA+e, ('s', S_T0)], [V_WT+e]))
        a(V(f"v_add_u32 v{V_WT+2+e}, {64*KB}, v{V_WT+e}", [V_WT+e], [V_WT+2+e]))
        a(V(f"v_add_u32 v{V_WT+4+e}, {128*KB}, v{V_WT+e}", [V_WT+e], [V_WT+4+e]))
    if int(opt.dtch_at) < 99:
        a(V(f"v_lshrrev_b32 v{T1}, 3, v{V_LANE}", [V_LANE], [T1]))
        a(V(f"v_min_u32 v{T1}, 4, v{T1}", [T1], [T1]))
        a(V(f"v_and_b32 v{T2}, 7, v{V_LANE}", [V_LANE], [T2]))
        a(V(f"v_lshlrev_b32 v{T2}, 7, v{T2}", [T2], [T2]))
        a(V(f"v_sub_u32 v{T2}, v{T2}, v{T0}", [T2, T0], [T2]))
        a(V(f"v_lshl_add_u32 v66, v{T1}, 17, v{T2}", [T1, T2], [66]))
        a(V(f"v_add_u32 v66, v66, v{V_OST}", [66, V_OST], [66]))
        a(V(f"v_lshl_add_u32 v67, v{T1}, 13, v{T2}", [T1, T2], [67]))
        a(V(f"v_add_u32 v67, v67, v{V_PS}", [67, V_PS], [67]))
    for k in range(5): a(S(f"s_mov_b32 s{S_TAB+k}, {k*8192}", [], [S_TAB+k]))
    return o
def handoff_calc():
    o = []; a = o.append
    T0, T1, T2, T3 = 252, 253, 254, 9
    a(S(f"s_lshl_b32 s{S_T0}, s{S_J}, 12", [S_J], [S_T0]))
    a(V(f"v_subrev_u32 v{V_OD}, s{S_T0}, v{V_OST}", [V_OST, ('s', S_T0)], [V_OD]))
    a(S(f"s_lshl_b32 s{S_T0}, s{S_B}, 2", [S_B], [S_T0]))
    a(S(f"s_add_u32 s{S_T0}, s{S_T0}, s{S_J}", [S_T0, S_J], [S_T0]))
    a(S(f"s_mul_i32 s{S_T0}, s{S_T0}, {20*8*KB}", [S_T0], [S_T0]))
    a(S(f"s_mul_i32 s{S_T1}, s{S_W}, {5*8*KB}", [S_W], [S_T1]))
    a(S(f"s_lshl_b32 s{S_T2}, s{S_HKV}, 10", [S_HKV], [S_T2]))
    a(S(f"s_add_u32 s{S_T2}, s{S_T2}, s{S_T1}", [S_T2, S_T1], [S_T2]))
    a(S(f"s_add_u32 s{S_T2}, s{S_T2}, s{S_T0}", [S_T2, S_T0], [S_T2]))
    a(V(f"v_lshl_add_u32 v{V_PS}, v{V_LANE}, 4, s{S_T2}", [V_LANE, ('s', S_T2)], [V_PS]))
    tr = int(opt.otr)
    if tr:
        a(S(f"s_mul_i32 s{S_T1}, s{S_HKV}, 160", [S_HKV], [S_T1]))
        a(V(f"v_add_u32 v{T0}, s{S_T1}, v0", [0, ('s', S_T1)], [T0]))
    else:
        a(S(f"s_lshl_b32 s{S_T1}, s{S_HKV}, 2", [S_HKV], [S_T1]))
        a(S(f"s_add_u32 s{S_T1}, s{S_T1}, s{S_W}", [S_T1, S_W], [S_T1]))
        a(S(f"s_mul_i32 s{S_T1}, s{S_T1}, 40", [S_T1], [S_T1]))
        a(V(f"v_add_u32 v{T0}, s{S_T1}, v{V_LANE}", [V_LANE, ('s', S_T1)], [T0]))
    if int(opt.pairw):
        a(V(f"v_lshrrev_b32 v{T1}, 6, v{T0}", [T0], [T1]))
        a(V(f"v_cmp_lt_u32 vcc, 9, v{T1}", [T1], [VCC]))
        a(V(f"v_bfe_u32 v{T2}, v{T0}, 5, 1", [T0], [T2]))
        a(V(f"v_mul_u32_u24 v{T2}, 10, v{T2}", [T2], [T2]))
        a(V(f"v_add_u32 v{T1}, v{T1}, v{T2}", [T1, T2], [T1]))
        a(V(f"v_cndmask_b32 v{T2}, 0, 10, vcc", [VCC], [T2]))
        a(V(f"v_add_u32 v{T1}, v{T1}, v{T2}", [T1, T2], [T1]))
        a(V(f"v_and_b32 v{T0}, 31, v{T0}", [T0], [T0]))
        a(V(f"v_lshl_add_u32 v{T0}, v{T1}, 5, v{T0}", [T1, T0], [T0]))
    a(V(f"v_bfe_u32 v{T1}, v{T0}, 5, 1", [T0], [T1]))
    a(V(f"v_and_b32 v{T2}, 7, v{T0}", [T0], [T2]))
    a(V(f"v_lshl_add_u32 v{T1}, v{T1}, 3, v{T2}", [T1, T2], [T1]))
    a(V(f"v_bfe_u32 v{T2}, v{T0}, 3, 2", [T0], [T2]))
    a(V(f"v_lshrrev_b32 v{T0}, 6, v{T0}", [T0], [T0]))
    a(V(f"v_lshl_add_u32 v{T3}, v{T2}, 4, v{T1}", [T1, T2], [T3]))
    a(V(f"v_lshl_add_u32 v{V_PLD}, v{T3}, 4, s{S_T0}", [T3, ('s', S_T0)], [V_PLD]))
    a(V(f"v_lshl_add_u32 v{V_PLD}, v{T0}, 13, v{V_PLD}", [T0, V_PLD], [V_PLD]))
    a(V(f"v_mul_u32_u24 v{T3}, 52, v{T0}", [T0], [T3]))
    a(V(f"v_lshrrev_b32 v{T3}, 8, v{T3}", [T3], [T3]))
    if tr:
        a(V(f"v_and_b32 v{T1}, 8, v{T1}", [T1], [T1]))
        a(V(f"v_bfe_u32 v{T2}, v0, 2, 3", [0], [T2]))
        a(V(f"v_add_u32 v{T1}, v{T1}, v{T2}", [T1, T2], [T1]))
        a(V(f"v_and_b32 v{T2}, 3, v0", [0], [T2]))
    a(V(f"v_lshlrev_b32 v{T2}, {4 if tr else 3}, v{T2}", [T2], [T2]))
    a(V(f"v_lshl_add_u32 v{T2}, v{T3}, 6, v{T2}", [T3, T2], [T2]))
    a(V(f"v_lshl_add_u32 v{T2}, v{T1}, 10, v{T2}", [T1, T2], [T2]))
    a(V(f"v_mul_u32_u24 v{T3}, 5, v{T3}", [T3], [T3]))
    a(V(f"v_sub_u32 v{T0}, v{T0}, v{T3}", [T0, T3], [T0]))
    a(V(f"v_lshl_add_u32 v{T2}, v{T0}, 14, v{T2}", [T0, T2], [T2]))
    a(S(f"s_mul_i32 s{S_T0}, s{S_B}, 81920", [S_B], [S_T0]))
    a(S(f"s_lshl_b32 s{S_T2}, s{S_J}, 8", [S_J], [S_T2]))
    a(S(f"s_add_u32 s{S_T0}, s{S_T0}, s{S_T2}", [S_T0, S_T2], [S_T0]))
    a(V(f"v_add_u32 v{V_OUT}, s{S_T0}, v{T2}", [T2, ('s', S_T0)], [V_OUT]))
    a(V(f"v_cmp_gt_u32 vcc, 160, v0", [0], [VCC]) if tr else V(f"v_cmp_gt_u32 vcc, 40, v{V_LANE}", [V_LANE], [VCC]))
    a(V(f"v_mov_b32 v{T0}, 0x7ff00000", [], [T0]))
    a(V(f"v_cndmask_b32 v{V_PLD}, v{T0}, v{V_PLD}, vcc", [T0, V_PLD, VCC], [V_PLD]))
    a(V(f"v_cndmask_b32 v{V_OUT}, v{T0}, v{V_OUT}, vcc", [T0, V_OUT, VCC], [V_OUT]))
    for pv_, n_, sh, sg_ in ((V_P1, 4, 9, S_G1), (V_P2, 8, 11, S_G2)):
        a(V(f"v_lshl_add_u32 v{pv_}, v{V_LANE}, {sh}, s{sg_}", [V_LANE, ('s', sg_)], [pv_]))
        a(V(f"v_cmp_gt_u32 vcc, {n_}, v{V_LANE}", [V_LANE], [VCC]))
        a(V(f"v_cndmask_b32 v{pv_}, v{T0}, v{pv_}, vcc", [T0, pv_, VCC], [pv_]))
    return o
def wod_calc():
    o = []; a = o.append
    T0, T1 = 252, 253
    a(S(f"s_lshl_b32 s{S_T0}, s{S_B}, 2", [S_B], [S_T0]))
    a(S(f"s_add_u32 s{S_T0}, s{S_T0}, s{S_W}", [S_T0, S_W], [S_T0]))
    a(S(f"s_lshl_b32 s{S_T0}, s{S_T0}, 14", [S_T0], [S_T0]))
    a(S(f"s_lshl_b32 s{S_T2}, s{S_J}, 8", [S_J], [S_T2]))
    a(S(f"s_add_u32 s{S_T0}, s{S_T0}, s{S_T2}", [S_T0, S_T2], [S_T0]))
    a(V(f"v_bfe_u32 v{T0}, v{V_LANE}, 1, 4", [V_LANE], [T0]))
    a(V(f"v_and_b32 v{T1}, 1, v{V_LANE}", [V_LANE], [T1]))
    a(V(f"v_lshlrev_b32 v{T1}, 7, v{T1}", [T1], [T1]))
    a(V(f"v_lshl_add_u32 v{T0}, v{T0}, 10, v{T1}", [T0, T1], [T0]))
    a(V(f"v_add_u32 v{V_TCH}, s{S_T0}, v{T0}", [T0, ('s', S_T0)], [V_TCH]))
    a(S(f"s_and_b32 s{S_T0}, s{S_W}, 1", [S_W], [S_T0]))
    a(S(f"s_lshl_b32 s{S_T0}, s{S_T0}, 3", [S_T0], [S_T0]))
    a(V(f"v_lshl_add_u32 v{T0}, v{V_G}, 1, s{S_T0}", [V_G, ('s', S_T0)], [T0]))
    a(V(f"v_xor_b32 v{T0}, v{V_N}, v{T0}", [V_N, T0], [T0]))
    a(S(f"s_lshl_b32 s{S_T0}, s{S_J}, 8", [S_J], [S_T0]))
    a(V(f"v_lshl_add_u32 v{T0}, v{T0}, 4, s{S_T0}", [T0, ('s', S_T0)], [T0]))
    a(V(f"v_lshl_add_u32 v{T1}, s{S_W}, 2, v{V_G}", [V_G, ('s', S_W)], [T1]))
    a(V(f"v_lshl_add_u32 v{V_WOD}, v{T1}, 10, v{T0}", [T0, T1], [V_WOD]))
    return o

def phase_b(sg, Q, qr):
    NT = 8
    calc = wod_calc() + tail_calc()
    sg.addall(qr[:4])
    qr = qr[4:]
    for tau in range(-1, 40):
        i, q = divmod(tau, 5) if tau >= 0 else (-1, 4)
        mf = []
        bst = [int(x) for x in opt.bst.split(',')]
        if tau in bst: stamp(sg, 5 + bst.index(tau), 'B')
        if tau + 1 < 40: mf += qk(tau + 1)
        if tau - 1 >= 0: mf += pv(tau - 1)
        ds, marks = [], []
        if tau == -1: ds = qr
        elif tau == 0: ds = v_reads(0); marks = [('vr', 0, 0), ('vr', 0, 1)]
        elif tau < 27:
            if q == 2: ds = k_reads(i + 1)[:4]; marks = [('kr', i + 1, 0)]
            if q == 3: ds = k_reads(i + 1)[4:] + v_reads(i + 1)[:2]; marks = [('kr', i + 1, 1)]
            if q == 4: ds = v_reads(i + 1)[2:8]; marks = [('vr', i + 1, 0)]
            if q == 0: ds = v_reads(i)[8:14]
            if q == 1 and i > 0: ds = v_reads(i)[14:]; Q.mark(('vr', i, 1))
        xp = None
        if tau >= 27:
            k6, k7, v6, v7 = k_reads(6), k_reads(7), v_reads(6), v_reads(7)
            vo = [v7[l + 8 * h] for l in range(8) for h in range(2)]
            G = [1, 3, 5, 7, 9, 11, 13, 15, 16]
            def cwp(q_, second):
                w_ = comb_writes(q_)
                if int(opt.w64) and q_ < 2:
                    h_ = []
                    for x in w_[1:]:
                        m_ = re.match(r"ds_write_b128 v(\d+), a\[(\d+):\d+\] offset:(\d+)", x.t)
                        for z in range(2): h_.append(dswr('ds_write_b64', int(m_.group(1)), ('a', int(m_.group(2)) + 2 * z), 2, int(m_.group(3)) + 8 * z, lgtag=x.lgtag))
                    return list(zip([1, 3, 5, 9, 13, 16], h_[6:])) if second else list(zip([7, 1, 3, 5, 9, 13, 16], [w_[0]] + h_[:6]))
                return list(zip([1, 9, 13], w_[4:])) if second else list(zip([7, 1, 9, 13], w_[:4]))
            xp = {27: list(zip([3, 5, 9, 11, 15, 16], k6[:4] + v6[:2])),
                  28: list(zip([1, 3, 5, 7, 9, 11, 13, 15, 16], k6[4:] + k7[:5])),
                  29: list(zip(G, k7[5:] + v6[2:8])),
                  30: list(zip([1, 3, 5, 7, 9, 11, 13, 15, 16, 16], v6[8:] + vo[:2])),
                  31: list(zip([1, 1, 3, 5, 5, 7, 9, 9, 11, 13, 13, 15, 16, 16], vo[2:])),
                  32: [], 33: cwp(0, 0), 34: cwp(0, 1), 35: cwp(1, 0), 36: cwp(1, 1), 37: cwp(2, 0),
                  38: cwp(2, 1) + list(zip([3, 5, 5, 7, 11, 15, 16, 16], lreads((0, 1)) + preads(0)[:4])),
                  39: list(zip([0, 2, 4, 6], comb_writes(3)[:4])) + list(zip([1, 1, 3, 3, 5, 5, 7, 7], preads(0)[4:] + preads(1)))}[tau]
            if int(opt.x1e) and tau >= 36:
                xp = {36: list(zip([1, 5, 9], comb_writes(1)[4:])),
                      37: cwp(2, 0) + list(zip([3, 5, 11, 15, 16, 16], preads(0))),
                      38: cwp(2, 1) + list(zip([3, 5, 5, 7, 11, 15, 16, 16], lreads((0, 1)) + preads(1)[:4])),
                      39: list(zip([1, 3, 5, 7], comb_writes(3)[:4])) + list(zip([0, 8], preads(1)[4:]))}[tau]
            ds = [x for _, x in xp]; marks = []
            if tau == (37 if int(opt.x1e) else 38):
                b = barrier(needvm=[('wo', -1)], lg0=False); b.needlg = (('cw', 0), ('cw', 1)); sg.add(b)
        n = len(mf)
        gaps = [[] for _ in range(n)]
        e, c = sm(tau) if 0 <= tau < 40 else ([], [])
        if n == 17:
            epos = [0, 2, 4, 6, 8, 10, 12, 14]; cpos = [3, 7, 11, 15]
            dpos = [1, 3, 5, 7, 9, 11, 13, 15] if len(ds) > 4 else [1, 3, 5, 7]
            if ds and ds[0].k == 'dswr': dpos = [1, 1, 3, 7, 9, 13, 16]
            vpos = [1, 5, 9, 13] if (tau < int(opt.even_at) or q == 1) else [1, 7, 13]
            if int(opt.bsched) and not (ds and ds[0].k == 'dswr'):
                if q == 1: dpos, vpos = [1, 3], [5, 9, 13, 16]
                elif tau < int(opt.even_at) or tau >= int(opt.even_end): dpos, vpos = ([3, 7, 11, 15, 16, 16] if q != 3 else [1, 3, 7, 11, 15, 16]), ([1, 5, 9, 13] if q != 3 else [5, 9, 13, 16])
                else: dpos, vpos = [3, 5, 9, 11, 15, 16], [1, 7, 13]
        else:
            epos = list(range(8)); cpos = [min(n - 1, x) for x in (2, 4, 6, 8)]
            dpos = [(k * n) // max(1, len(ds)) for k in range(len(ds))]
            vpos = [1, 5]
        if xp is not None:
            dpos = [g_ for g_, _ in xp]; vpos = [int(x) for x in opt.wpos.split(',')] if tau >= 32 else [13]
            if tau == 27: vpos = [1, 7, 13]
        for x, p_ in zip(ds, dpos): gaps[p_].append(x)
        if tau == int(opt.nl_at):
            sg.add(V("v_mov_b32 v9, 0", [], [9]))
            Q.q.insert(0, Item([], vload(('v', V_GC), 2, 9, S_D, None, 0, flags=' sc1', tag='non')))
        if tau == int(opt.nc_at):
            assert not any(it.ins.vmtag == 'non' for it in Q.q)
            sg.add(V(f"v_readfirstlane_b32 s{S_NON}, v{V_GC}", [V_GC], [('s', S_NON)]))
            sg.add(V(f"v_readfirstlane_b32 s{S_NON+1}, v{V_GC+1}", [V_GC+1], [('s', S_NON+1)]))
            sg.add(S(f"s_cmp_eq_u64 s[{S_NON}:{S_NON+1}], 0", [S_NON, S_NON+1], []))
            sg.text("s_cbranch_scc1 L_spin_n"); sg.text("L_back_n:")
        if tau == 32: stamp_out(sg, 1) if opt.stamps == 'Z' else None
        if tau == int(opt.bar_at): sg.add(barrier(lg0=False))
        for x in ds:
            while any(it.ins.vmtag in x.needvm for it in Q.q): weave(sg, Q, [], 1, 0)
        if tau == int(opt.tch_at): Q.push([Item([], vload(('v', V_TCH + 1), 1, V_TCH, S_WO, None, 0, flags=opt.tch_flags))])
        if tau == int(opt.tlb_at):
            Q.push([Item([], vload(('v', 72), 1, V_ZERO, S_C, S_F1, 0, flags=' sc1')), Item([], vload(('v', 73), 1, V_ZERO, S_C, S_F2, 0, flags=' sc1'))])
        if tau == int(opt.dtch_at):
            assert not calc
            Q.push(([Item([], vload(('v', 74), 1, 66, S_O, None, 0, flags=opt.dtch_flags))] if 'o' in opt.dtch else []) + ([Item([], vload(('v', 75), 1, 67, S_WT, None, 0, flags=opt.dtch_flags))] if 'p' in opt.dtch else []))
        if tau == int(opt.otch_at): Q.push([Item([], vload(('v', 66), 1, V_OUT, S_OUT, None, 0, flags=opt.otch_flags))])
        if tau == int(opt.wo_at): assert not calc; Q.push(wo_dma(-1))
        place(gaps, Q, vpos)
        for x, p_ in zip(e, epos): gaps[p_].append(x)
        for x, p_ in zip(c, cpos): gaps[p_].append(x)
        if tau >= int(opt.calc_at) and n == 17:
            for gi in range(17):
                if calc and calc[0].k == 'salu' and not any(y.k == 'salu' for y in gaps[gi]): gaps[gi].insert(0, calc.pop(0))
                cost = sum(8 if y.k == 'trans' else 0 if y.k == 'salu' else 4 for y in gaps[gi])
                while calc and calc[0].k != 'salu' and cost <= 4: gaps[gi].append(calc.pop(0)); cost += 4
        sg.addall(interleave(mf, gaps))
        for m in marks: Q.mark(m)

def poll(sg, lab, vaddr):
    sg.text(f"s_mov_b32 s{S_SPIN}, {opt.spin}")
    sg.text(f"{lab}:")
    sg.text(f"buffer_load_dwordx2 v[250:251], v{vaddr}, s[{S_C}:{S_C+3}], 0 offen sc1")
    sg.text(f"s_sub_u32 s{S_SPIN}, s{S_SPIN}, 1")
    sg.text("s_waitcnt vmcnt(0)")
    sg.text(f"v_cmp_ne_u64 vcc, s[{S_NON}:{S_NON+1}], v[250:251]")
    sg.text(f"s_cmp_eq_u32 s{S_SPIN}, 0")
    sg.text(f"s_cbranch_scc1 {lab}_done")
    sg.text("s_nop 2")
    sg.text(f"s_cbranch_vccnz {lab}")
    sg.text(f"{lab}_done:")
    sg.vm = []
def raise_flag(sg, stage, tag):
    ins = vstore(('v', V_GC), 2, V_P1 if stage == 1 else V_P2, S_C, None, 0, flags=' sc1')
    ins.needvm = (tag,)
    sg.add(ins)
WOF = A_Q
RES = 100
def part(q, k):
    if q == 0: return 36 + 4 * k if k < 4 else 64 + 4 * (k - 4)
    return {1: 100, 2: 164, 3: 188, 4: 100}[q] + 4 * k
def preads(q):
    o = []
    for jd in range(1, 4):
        for e in range(2):
            k = (jd - 1) * 2 + e; u = q * 6 + k; row = u >> 3
            o.append(dsrd('ds_read_b128', ('v', part(q, k)), 4, V_CR + 2 * (jd - 1) + (row >> 1), (row & 1) * 32 * KB + (u & 7) * KB))
    return o
LSA, LSB = 124, 76
def lreads(qs):
    if qs == (0, 1): return [dsrd('ds_read_b64', ('v', LSA + src * 2), 2, V_LR, src * 8 * KB) for src in range(4)]
    if qs == (2, 3): return [dsrd('ds_read_b64', ('v', LSB + src * 4), 2, V_LR, src * 8 * KB + 16) for src in range(4)]
    if qs == (4,): return [dsrd('ds_read_b32', ('v', LSB + src * 4 + 2), 1, V_LR, src * 8 * KB + 24) for src in range(4)]
    return [dsrd('ds_read_b128', ('v', LSB + src * 4), 4, V_LR, src * 8 * KB + 16) for src in range(4)]
def lsum(qs):
    w = []
    def lr(src, q): return LSA + src * 2 + q if q < 2 else LSB + src * 4 + q - 2
    LS = lr(0, qs[0])
    for q in qs:
        d = V_T0 + q
        w.append(V(f"v_add_f32 v{d}, v{lr(0,q)}, v{lr(1,q)}", [lr(0,q), lr(1,q)], [d]))
        w.append(V(f"v_add_f32 v{lr(2,q)}, v{lr(2,q)}, v{lr(3,q)}", [lr(2,q), lr(3,q)], [lr(2,q)]))
        w.append(V(f"v_add_f32 v{d}, v{d}, v{lr(2,q)}", [d, lr(2,q)], [d]))
    lo_, hi_ = LS, LS + 1
    if len(qs) == 1: lo_ = hi_ = V_T0 + qs[0]
    else:
        a_, b_, c_ = V_T0 + qs[0], V_T0 + qs[1], V_T0 + qs[-1]
        w.append(V(f"v_min3_f32 v{LS}, v{a_}, v{b_}, v{c_}", [a_, b_, c_], [LS]))
        w.append(V(f"v_add_f32 v{LS+1}, v{a_}, v{b_}", [a_, b_], [LS+1]))
        if len(qs) == 3: w.append(V(f"v_add_f32 v{LS+1}, v{LS+1}, v{c_}", [LS+1, c_], [LS+1]))
    w.append(V(f"v_cmp_nle_f32 vcc, {f2h(2.0**int(opt.lo_exp))}, v{lo_}", [lo_], [VCC]))
    w.append(S(f"s_mov_b64 s[{S_EX}:{S_EX+1}], vcc", [VCC], [S_EX, S_EX+1]))
    w.append(V(f"v_cmp_nge_f32 vcc, {f2h(2.0**int(opt.hi_exp))}, v{hi_}", [hi_], [VCC]))
    w.append(S(f"s_or_b64 vcc, vcc, s[{S_EX}:{S_EX+1}]", [VCC, S_EX, S_EX+1], [VCC]))
    w.append(S(f"s_and_b64 vcc, vcc, s[{S_GM}:{S_GM+1}]", [VCC], [VCC]))
    w.append(raw("s_cbranch_vccnz L_redo"))
    for q in qs: w.append(T(f"v_rcp_f32 v{V_T0+q}, v{V_T0+q}", [V_T0+q], [V_T0+q]))
    return w
def finish(q):
    w = []
    for e in range(2):
        o_ = V_OWN[q] + e * 4
        for jd in range(1, 4):
            p_ = part(q, (jd - 1) * 2 + e)
            for r in (0, 2):
                w.append(V(f"v_pk_add_f32 v[{o_+r}:{o_+r+1}], v[{o_+r}:{o_+r+1}], v[{p_+r}:{p_+r+1}]", [o_+r, o_+r+1, p_+r, p_+r+1], [o_+r, o_+r+1]))
    o_ = V_OWN[q]
    ri = V_T0 + (q & ~1); sel = "op_sel:[0,1] op_sel_hi:[1,1]" if q & 1 else "op_sel:[0,0] op_sel_hi:[1,0]"
    for r in range(0, 8, 2):
        w.append(V(f"v_pk_mul_f32 v[{o_+r}:{o_+r+1}], v[{o_+r}:{o_+r+1}], v[{ri}:{ri+1}] {sel}", [o_+r, o_+r+1, V_T0+q], [o_+r, o_+r+1]))
    for r in range(4):
        w.append(V(f"v_cvt_pk_bf16_f32 v{o_+r}, v{o_+2*r}, v{o_+2*r+1}", [o_+2*r, o_+2*r+1], [o_+r]))
    w.append(S(f"s_mov_b32 s{S_SV}, {q*128*KB}", [], [S_SV]))
    w.append(vstore(('v', o_), 4, V_OST, S_O, S_SV, 0, flags=opt.o_flags, tag='ost'))
    return w
def wor():
    return [dsrd('ds_read_b64_tr_b16', ('a', WOF + (ks * 2 + e) * 4 + h * 2), 2, V_WT + 4 + e, ks * 8 * KB + h * 4096) for ks in range(4) for e in range(2) for h in range(2)]
def combine(sg, Q):
    assert not Q.q
    mf = pv(39); gaps = [[] for _ in mf]
    wr = comb_writes(3)[4:]; ls = lsum((0, 1))
    for k, x in enumerate(wr): gaps[3 * k].append(x)
    k = 0
    for gi in range(9):
        n_ = 2 - len(gaps[gi])
        while ls and (n_ > 0 or ls[0].k == 'salu') and gi < 9:
            x = ls.pop(0); gaps[gi].append(x)
            n_ -= 0 if x.k == 'salu' else 2 if x.k == 'trans' else 1
    sg.addall(interleave(mf, gaps))
    stamp(sg, 4)
    if int(opt.c3):
        sg.addall(ls + finish(0))
        b = barrier(lg0=False); b.needlg = (('cw', 2), ('cw', 3)); sg.add(b)
        w4 = comb_writes(4)
        rd = lreads((2, 3)) + preads(2) + preads(3)
        for k in range(len(rd)):
            sg.add(rd[k])
            if k % 3 == 1 and w4: sg.add(w4.pop(0))
        w = finish(1) + lsum((2, 3)) + finish(2)
        for k, x in enumerate(w4): w.insert(4 + 8 * k, x)
        sg.addall(w)
        sg.add(barrier())
        stamp(sg, 5)
        Q.push(wo_dma(0))
        rd = lreads((4,)) + preads(4)
        weave(sg, Q, rd, int(opt.cw), 5)
        sg.addall(rd + finish(3) + lsum((4,)) + finish(4))
        stamp(sg, 6)
        return
    w4 = comb_writes(4)
    w = ls + finish(0) + finish(1)
    for k, x in enumerate(w4): w.insert(min(len(w), 6 + k * 6), x)
    sg.addall(w)
    sg.add(barrier())
    stamp(sg, 5)
    Q.push(wo_dma(0))
    rd = lreads((2, 3, 4)) + preads(2) + preads(3)
    weave(sg, Q, rd, int(opt.cw), 2)
    sg.addall(rd)
    w = lsum((2, 3, 4)) + preads(4) + finish(2) + finish(3) + finish(4)
    if not int(opt.worlate):
        for k, x in enumerate(wor()): w.insert(30 + 3 * k, x)
    sg.addall(w)
    stamp(sg, 6)

def phase_c(sg, Q):
    a = sg.add
    ACC = 164
    a(barrier())
    stamp(sg, 5, 'D')
    for q in range(5): a(dswr('ds_write_b128', V_OW, ('v', V_OWN[q]), 4, q * KB))
    Q.push(wo_dma(1) + wo_dma(2))
    wr_ = wor() if int(opt.worlate) else []
    weave(sg, Q, wr_, int(opt.shadow), 3)
    sg.addall(wr_)
    stamp(sg, 6, 'D')
    a(barrier())
    def CF(k): return [(100, 120), (64, 84), (204, 36)][k % 3]
    def c_reads(k):
        pos, ks = divmod(k, 4); pos -= 1
        xf, wf = CF(k)
        ob = 0 if pos < 0 else (44 - 20 * pos) * KB
        xr = [dsrd('ds_read_b128', ('v', xf + q * 4), 4, V_OL, ob + (ks * 5 + q) * KB) for q in range(5)]
        if pos < 0: return xr
        wb = (pos * 4 + ks) * 8 * KB
        wr = [dsrd('ds_read_b64_tr_b16', ('v', wf + e * 4 + h * 2), 2, V_WT + (2 if wb >= 64 * KB else 0) + e, (wb % (64 * KB)) + h * 4096) for e in range(2) for h in range(2)]
        return wr[:2] + xr[:1] + wr[2:] + xr[1:]
    def c_mfmas(k):
        xf, wf = CF(k)
        ff = 'v'
        if k < 4: wf, ff = WOF + k * 8, 'a'
        o = []
        for q in range(5):
            for e in range(2):
                d = ('v', ACC + (q * 2 + e) * 4)
                o.append(mfma(d, (ff, wf + e * 4), ('v', xf + q * 4), 0 if k == 0 else d))
        o[0].r |= set(R('v', xf, 20) + R(ff, wf, 8))
        return o
    def step(k, nx, pos=()):
        mf = c_mfmas(k); gaps = [[] for _ in mf]
        if nx is not None:
            for i, r in enumerate(c_reads(nx)): gaps[i].append(r)
        place(gaps, Q, pos)
        sg.addall(interleave(mf, gaps))
    def own_steps():
        for k in range(4): step(k, k + 2 if k < 2 else None, [1, 5, 9] if k % 2 == 0 else [3, 7])
    sg.addall(c_reads(0)); sg.addall(c_reads(1))
    raise_flag(sg, 1, 'ost')
    stamp(sg, 7, 'D'); stamp(sg, 7)
    weave(sg, Q, [], min(len(Q.q), int(opt.pf)), 0)
    held = Q.q; Q.q = []
    stamp(sg, 8, 'D')
    t = [f"s_mov_b32 s{S_SPIN}, {opt.spin}", "L_poll1:", f"s_load_dwordx8 s[4:11], s[{S_C}:{S_C+1}], s{S_F1} glc", f"s_sub_u32 s{S_SPIN}, s{S_SPIN}, 1", "s_waitcnt lgkmcnt(0)",
         f"s_cmp_eq_u32 s{S_SPIN}, 0", "s_cbranch_scc1 L_poll1_done"]
    t += [f"s_lshl_b32 s{S_T0}, 1, s{S_J}"]
    for h in range(4): t += [f"s_cmp_eq_u64 s[{4+2*h}:{5+2*h}], s[{S_NON}:{S_NON+1}]", f"s_cselect_b32 s{S_T1}, {1 << h}, 0", f"s_or_b32 s{S_T0}, s{S_T0}, s{S_T1}"]
    t += [f"s_cmp_lg_u32 s{S_T0}, 15", "s_cbranch_scc1 L_poll1", "L_poll1_done:"]
    for x in t: sg.text(x)
    sg.lg = []
    stamp(sg, 9, 'D')
    stamp(sg, 5, 'E')
    stamp(sg, 8)
    assert all(it.ins.vmtag == ('wo', 2) for it in held)
    Q.push(osib_dma(0) + osib_dma(1) + held)
    weave(sg, Q, [], 5, 0); own_steps()
    weave(sg, Q, [], len(Q.q), 0)
    stamp(sg, 6, 'E')
    a(barrier(needvm=[('os', 0), ('wo', 0), ('wo', 1)]))
    stamp(sg, 7, 'E')
    Q.push(osib_dma(2))
    sg.addall(c_reads(4)); sg.addall(c_reads(5))
    def pfin(q):
        b = ACC + q * 8
        return [V(f"v_cvt_pk_bf16_f32 v{b+r}, v{b+2*r}, v{b+2*r+1}", [b+2*r, b+2*r+1], [b+r]) for r in range(4)] + [vstore(('v', b), 4, V_PS, S_WT, S_TAB + q, 0, flags=' sc1', tag='pst')]
    last = 16 - (2 if int(opt.qmaj) else 0)
    for k in range(4, last):
        nx = k + 2 if k + 2 < 16 else None
        if nx in (8, 12):
            assert not Q.q or nx == 8
            a(barrier(needvm=[('os', nx // 4 - 1), ('wo', nx // 4 - 1)], lg0=False))
            stamp(sg, 8 if nx == 8 else 9, 'E')
        step(k, nx, [1, 5, 9] if k % 2 == 0 else [3, 7])
    if int(opt.qmaj):
        m14, m15 = c_mfmas(14), c_mfmas(15)
        m15[0].r -= set(R('v', CF(15)[0] + 4, 16))
        mf = flat([[m14[2*q], m15[2*q], m14[2*q+1], m15[2*q+1]] for q in range(5)])
        gaps = [[] for _ in mf]
        for q in range(4):
            f_ = pfin(q)
            g0 = 4 * q + 6
            if g0 + 2 < 20:
                gaps[g0] += f_[0:2]; gaps[g0 + 1] += f_[2:4]; gaps[g0 + 2] += f_[4:]
        sg.addall(interleave(mf, gaps))
        stamp(sg, 9)
        sg.addall(pfin(3) + pfin(4))
    else:
        stamp(sg, 9)
        for q in range(5): sg.addall(pfin(q))
    a(S(f"s_mov_b32 s{S_SO}, 4096", [], [S_SO]))
    a(S(f"s_mov_b32 s{S_T1}, 0xffff0000", [], [S_T1]))
    a(S(f"s_mov_b32 s{S_SPIN}, {opt.spin}", [], [S_SPIN]))
    a(S(f"s_mov_b32 s{S_T2}, 0", [], [S_T2]))
    a(S(f"s_mov_b32 s{S_SK}, 0", [], [S_SK]))
    if int(opt.f2wg):
        a(barrier(needvm=['pst'], lg0=False))
        sg.text(f"s_cmp_lg_u32 s{S_W}, 0"); sg.text("s_cbranch_scc1 L_sig2"); raise_flag(sg, 2, 'pst'); sg.text("L_sig2:")
    else: raise_flag(sg, 2, 'pst')
    stamp(sg, 5, '2')
    if int(opt.otr):
        a(V("v_lshlrev_b32 v11, 4, v0", [0], [11]))
        a(V("v_and_b32 v10, 0xe0, v0", [0], [10])); a(V("v_lshlrev_b32 v10, 4, v10", [10], [10]))
        a(V("v_and_b32 v12, 7, v0", [0], [12])); a(V("v_lshl_add_u32 v10, v12, 6, v10", [12, 10], [10]))
        a(V("v_bfe_u32 v12, v0, 3, 2", [0], [12])); a(V("v_lshl_add_u32 v10, v12, 3, v10", [12, 10], [10]))
        sg.text(f"s_cmp_eq_u32 s{S_W}, 3"); sg.text("s_cbranch_scc1 L_fin")
    PB, SM = 100, 132
    def pl(h): return vload(('v', PB + 4 * h), 4, V_PLD, S_WT, S_SO if h >= 4 else None, (h & 3) * 1024, flags=' sc1')
    t = ["L_poll2:", f"s_load_dwordx16 s[4:19], s[{S_C}:{S_C+1}], s{S_F2} glc", f"s_cmp_eq_u32 s{S_SK}, 0", "s_cbranch_scc1 L_nounp", "L_unp:", "s_waitcnt vmcnt(0)"]
    for h in range(8):
        t += [f"s_bitcmp1_b32 s{S_SK}, {h}", f"s_cbranch_scc0 L_u{h}"]
        for r in range(4): t += [f"v_lshlrev_b32 v{SM+8*h+2*r}, 16, v{PB+4*h+r}", f"v_and_b32 v{SM+8*h+2*r+1}, s{S_T1}, v{PB+4*h+r}"]
        t += [f"L_u{h}:"]
    t += [f"s_cmp_eq_u32 s{S_T2}, 0xff", "s_cbranch_scc1 L_poll2_done", "L_nounp:", f"s_mov_b32 s{S_SK}, 0", f"s_sub_u32 s{S_SPIN}, s{S_SPIN}, 1", "s_waitcnt lgkmcnt(0)",
          f"s_cmp_eq_u32 s{S_SPIN}, 0", "s_cbranch_scc1 L_poll2_done"]
    for h in range(8):
        t += [f"s_cmp_lg_u64 s[{4+2*h}:{5+2*h}], s[{S_NON}:{S_NON+1}]", f"s_cbranch_scc1 L_g{h}", f"s_bitcmp1_b32 s{S_T2}, {h}", f"s_cbranch_scc1 L_g{h}",
              f"s_bitset1_b32 s{S_T2}, {h}", f"s_bitset1_b32 s{S_SK}, {h}", pl(h).t, f"L_g{h}:"]
    t += [f"s_cmp_lg_u32 s{S_T2}, 0xff", "s_cbranch_scc1 L_poll2", "s_branch L_unp", "L_poll2_done:"]
    if not int(opt.unp):
        t = ["L_poll2:", f"s_load_dwordx16 s[4:19], s[{S_C}:{S_C+1}], s{S_F2} glc", f"s_sub_u32 s{S_SPIN}, s{S_SPIN}, 1", "s_waitcnt lgkmcnt(0)", f"s_cmp_eq_u32 s{S_SPIN}, 0", "s_cbranch_scc1 L_poll2_done"]
        for h in range(8):
            t += [f"s_cmp_lg_u64 s[{4+2*h}:{5+2*h}], s[{S_NON}:{S_NON+1}]", f"s_cbranch_scc1 L_g{h}", f"s_bitcmp1_b32 s{S_T2}, {h}", f"s_cbranch_scc1 L_g{h}",
                  f"s_bitset1_b32 s{S_T2}, {h}", f"s_bitset1_b32 s{S_SK}, {h}", pl(h).t, f"L_g{h}:"]
        t += [f"s_cmp_eq_u32 s{S_T2}, 0xff", "s_cbranch_scc1 L_poll2_done", f"s_mov_b32 s{S_SK}, 0", "s_branch L_poll2", "L_poll2_done:"]
        t += ["s_waitcnt vmcnt(0)"]
        for h in range(8):
            for r in range(4): t += [f"v_lshlrev_b32 v{SM+8*h+2*r}, 16, v{PB+4*h+r}", f"v_and_b32 v{SM+8*h+2*r+1}, s{S_T1}, v{PB+4*h+r}"]
    for x in t: sg.text(x)
    sg.vm = []
    stamp(sg, 6, '2')
    for h in range(1, 8):
        for r in range(0, 8, 2):
            u = SM + 8 * h + r
            a(V(f"v_pk_add_f32 v[{SM+r}:{SM+r+1}], v[{SM+r}:{SM+r+1}], v[{u}:{u+1}]", [SM+r, SM+r+1, u, u+1], [SM+r, SM+r+1]))
    for r in range(4):
        a(V(f"v_cvt_pk_bf16_f32 v{SM+r}, v{SM+2*r}, v{SM+2*r+1}", [SM+2*r, SM+2*r+1], [SM+r]))
    if int(opt.otr):
        a(dswr('ds_write_b64', 10, ('v', SM), 2, 0)); a(dswr('ds_write_b64', 10, ('v', SM + 2), 2, 32))
        r_ = dsrd('ds_read_b128', ('v', SM + 4), 4, 11, 0); r_.needlg = ('*',); a(r_)
        a(vstore(('v', SM + 4), 4, V_OUT, S_OUT, None, 0, flags=opt.out_flags))
    elif not int(opt.noout):
        a(vstore(('v', SM), 2, V_OUT, S_OUT, None, 0, flags=opt.out_flags))
        a(vstore(('v', SM + 2), 2, V_OUT, S_OUT, None, 32, flags=opt.out_flags))

def out_of_line():
    t = []
    t += ["L_spin_n:", f"s_mov_b32 s{S_SPIN}, {opt.spin}", "L_spin_n1:",
          f"buffer_load_dwordx2 v[{V_GC}:{V_GC+1}], v9, s[{S_D}:{S_D+3}], 0 offen sc1", f"s_sub_u32 s{S_SPIN}, s{S_SPIN}, 1", "s_waitcnt vmcnt(0)",
          f"v_readfirstlane_b32 s{S_NON}, v{V_GC}", f"v_readfirstlane_b32 s{S_NON+1}, v{V_GC+1}", f"s_cmp_eq_u32 s{S_SPIN}, 0", "s_cbranch_scc1 L_back_n", "s_nop 2",
          f"s_cmp_eq_u64 s[{S_NON}:{S_NON+1}], 0", "s_cbranch_scc1 L_spin_n1", "s_branch L_back_n"]
    t += ["; a row sum left the safe range - start over with the true row maxima", "L_redo:", f"s_mov_b64 s[{S_GM}:{S_GM+1}], 0", f"s_mov_b32 s{S_REDO}, 1",
          "s_waitcnt vmcnt(0) lgkmcnt(0)", "s_barrier"]
    sg = Seg()
    p1 = prologue1()
    a = sg.add
    a(V(f"v_lshl_add_u32 v{V_T0}, s{S_W}, 2, v{V_G}", [V_G], [V_T0]))
    a(V(f"v_xor_b32 v{V_T1}, v{V_N}, v{V_T0}", [V_N, V_T0], [V_T1]))
    a(V(f"v_lshlrev_b32 v{V_T1}, 4, v{V_T1}", [V_T1], [V_T1]))
    a(V(f"v_lshl_add_u32 v{V_XD}, v{V_T0}, 10, v{V_T1}", [V_T0, V_T1], [V_XD]))
    a(S(f"s_and_b32 s{S_T0}, s{S_W}, 2", [S_W], [S_T0]))
    a(S(f"s_lshl_b32 s{S_T0}, s{S_T0}, 2", [S_T0], [S_T0]))
    a(V(f"v_lshl_add_u32 v{V_T1}, v{V_G}, 1, s{S_T0}", [V_G], [V_T1]))
    a(V(f"v_xor_b32 v{V_T1}, v{V_N}, v{V_T1}", [V_N, V_T1], [V_T1]))
    a(V(f"v_lshlrev_b32 v{V_T1}, 4, v{V_T1}", [V_T1], [V_T1]))
    a(V(f"v_lshl_add_u32 v{V_WD}, v{V_T0}, 13, v{V_T1}", [V_T0, V_T1], [V_WD]))
    t += sg.out + ["s_nop 4", "s_branch L_restart"]
    sg = Seg(); a = sg.add
    sg.text("; true row maxima over all keys -> negated into the accumulator seed of S")
    sg.text("L_max:")
    sg.text(f"s_mov_b32 s{S_SPIN}, m0")
    sg.drain()
    sg.text("s_barrier")
    MX, KF, AD = 76, V_VF, 84
    for q in range(5): a(V(f"v_mov_b32 v{MX+q}, 0xff800000", [], [MX+q]))
    for s in range(4): a(V(f"v_add_u32 v{AD+s}, {96*KB}, v{V_KA+s}", [V_KA+s], [AD+s]))
    a(S(f"s_mov_b32 s{S_T2}, 0", [], [S_T2]))
    sg.text("L_max_loop:"); sg.reset_hist()
    for j in range(8):
        if j % 4 == 0:
            a(S(f"s_add_u32 s{S_T1}, s{S_T2}, {(j>>2)*4096}", [S_T2], [S_T1]))
            a(S(f"s_add_u32 m0, s{S_W8K}, {96*KB + (j>>2)*4096}", [S_W8K], [M0]))
        a(dma(V_KD + (j & 3), S_K, S_T1, 1024 * (j & 3), 'mk'))
    for t_ in range(2):
        for s in range(4):
            a(dsrd('ds_read_b128', ('v', KF + (t_ * 4 + s) * 4), 4, AD + s, t_ * 4096, needvm=['mk']))
    for q in range(5):
        for t_ in range(2):
            d = ('v', 88 + t_ * 4)
            for s in range(4): a(mfma(d, ('v', KF + (t_ * 4 + s) * 4), AQ(q, s), 0 if s == 0 else d))
        for k in range(4):
            a(V(f"v_max3_f32 v{MX+q}, v{MX+q}, v{88+2*k}, v{89+2*k}", [MX+q, 88+2*k, 89+2*k], [MX+q]))
    sg.drain()
    a(S(f"s_add_u32 s{S_T2}, s{S_T2}, 8192", [S_T2], [S_T2]))
    sg.text(f"s_cmp_lt_u32 s{S_T2}, 65536"); sg.text("s_nop 4"); sg.text("s_cbranch_scc1 L_max_loop")
    sg.text("s_barrier")
    a(S(f"s_mul_i32 s{S_T0}, s{S_W}, 1280", [S_W], [S_T0]))
    a(S(f"s_add_u32 s{S_T0}, s{S_T0}, {96*KB}", [S_T0], [S_T0]))
    a(V(f"v_lshl_add_u32 v{AD}, v{V_LANE}, 2, s{S_T0}", [V_LANE], [AD]))
    a(S(f"s_mov_b32 s{S_T0}, {96*KB}", [], [S_T0]))
    a(V(f"v_lshl_add_u32 v{AD+1}, v{V_N}, 2, s{S_T0}", [V_N], [AD+1]))
    for q in range(5): a(dswr('ds_write_b32', AD, ('v', MX + q), 1, q * 256))
    a(barrier())
    for q in range(5):
        for k in range(16):
            a(dsrd('ds_read_b32', ('v', KF + k), 1, AD + 1, (k >> 2) * 1280 + q * 256 + (k & 3) * 64))
        for k in range(8):
            a(V(f"v_max3_f32 v{MX+q}, v{MX+q}, v{KF+2*k}, v{KF+2*k+1}", [MX+q, KF+2*k, KF+2*k+1], [MX+q]))
        for r in range(4):
            a(V(f"v_sub_f32 v{V_NEGM+q*4+r}, 0, v{MX+q}", [MX+q], [V_NEGM+q*4+r]))
    sg.drain()
    sg.text("s_barrier"); sg.text(f"s_mov_b32 m0, s{S_SPIN}"); sg.text("s_nop 4"); sg.text("s_branch L_back_max")
    return t + sg.out

def stamp_out(sg, n):
    if not opt.stamps or (opt.stamps == 'Z' and n > 1): return
    if opt.stamps == 'Z':
        for x in ["s_load_dwordx2 s[76:77], s[0:1], 56", "s_waitcnt lgkmcnt(0)", f"s_add_u32 s76, s76, {16<<20}", "s_addc_u32 s77, s77, 0", "s_and_b32 s77, s77, 0xffff",
                  "s_mov_b32 s78, 0x100000", "s_mov_b32 s79, 0x20000", "s_lshl_b32 s80, s2, 2", "s_add_u32 s80, s80, s32", "s_lshl_b32 s80, s80, 6", "v_mov_b32 v74, s80",
                  "v_mov_b32 v75, s3", "buffer_store_dword v75, v74, s[76:79], 0 offen sc1"]: sg.text(x)
        return
    stamp(sg, n - 1)
    t = ["s_load_dwordx2 s[4:5], s[0:1], 56", "s_waitcnt lgkmcnt(0)", f"s_add_u32 s4, s4, {16<<20}", "s_addc_u32 s5, s5, 0", "s_and_b32 s5, s5, 0xffff",
         "s_mov_b32 s6, 0x100000", "s_mov_b32 s7, 0x20000", "s_lshl_b32 s8, s2, 2", "s_add_u32 s8, s8, s32", "s_lshl_b32 s8, s8, 6", "v_mov_b32 v2, s8"]
    for i in range(n):
        t += [f"v_mov_b32 v3, s{3 if i == 0 else 76+2*i}", f"buffer_store_dword v3, v2, s[4:7], 0 offen offset:{4*i} sc1"]
    for x in t: sg.text(x)

def kernel():
    sg = Seg()
    sg.text(NAME + "_kernel:")
    sg.text("s_cmp_ge_u32 s2, 256")
    sg.text("s_cbranch_scc1 L_end")
    if opt.stamps:
        stamp(sg, 0)
    p1 = prologue1()
    sg.addall(p1[:2])
    if int(opt.cpf):
        for x in ["s_getpc_b64 s[94:95]", "L_pc:", "s_lshr_b32 s3, s2, 3", "v_lshrrev_b32 v8, 6, v0", "v_and_b32 v9, 1, v0", "v_lshl_add_u32 v8, v8, 1, v9",
                  "v_lshl_add_u32 v8, s3, 3, v8", "v_lshlrev_b32 v8, 7, v8", "v_min_u32 v8, (L_code_end - L_pc - 4) & 0xffffff80, v8"] + (["global_load_dword v255, v8, s[94:95]"] if int(opt.cpf) == 1 else ["s_mov_b64 s[12:13], s[94:95]"]): sg.text(x)
    sg.addall(p1[2:])
    if opt.stamps:
        sg.text("s_mov_b32 s3, s76")
    p2 = prologue2()
    Q = Queue()
    first = x_dma(0) + w_dma(0) if not int(opt.wfirst) else w_dma(0) + x_dma(0)
    stamp(sg, 5, 'P')
    Q.push(first)
    weave(sg, Q, [], 9, 0)
    if int(opt.cpf) == 2: sg.text("global_load_dword v255, v8, s[12:13]")
    stamp(sg, 6, 'P')
    sg.addall(p2)
    stamp(sg, 7, 'P')
    sg.text("s_cmp_lg_u32 s2, 0"); sg.text("s_cbranch_scc1 L_nocz")
    lane0(sg, ["v_mov_b32 v9, 0", f"s_memrealtime s[{S_NON}:{S_NON+1}]", "s_waitcnt lgkmcnt(0)", f"s_or_b32 s{S_NON}, s{S_NON}, 1", f"v_mov_b32 v250, s{S_NON}", f"v_mov_b32 v251, s{S_NON+1}",
               f"buffer_store_dwordx2 v[250:251], v9, s[{S_D}:{S_D+3}], 0 offen sc1"], "L_nocz")
    sg.text("s_branch L_first")
    sg.text("L_restart:")
    s2 = Seg(); s2.addall(restart_setup()); Q2 = Queue(); Q2.push(x_dma(0) + w_dma(0) if not int(opt.wfirst) else w_dma(0) + x_dma(0)); weave(s2, Q2, [], 9, 0)
    for x in s2.out: sg.text(x)
    sg.text("L_first:")
    early, late = prologue3()
    early = early + late + handoff_calc()
    def BB(u): return f"B{u + 1}"
    Q.push(w_dma(1) + x_dma(1) + w_dma(2) + w_dma(3) + x_dma(2) + w_dma(4) + ((w_dma(5, 'B2') + x_dma(3)) if int(opt.la) else (x_dma(3) + w_dma(5, 'B2'))) + w_dma(6, 'B3') + w_dma(7, 'B4')
           + kv_dma('k', 0, 'B5') + kv_dma('v', 0, 'B6') + kv_dma('k', 1, 'B8') + kv_dma('v', 1, 'BQ'))
    for i in range(2, 8):
        if not int(opt.nodma): Q.push(kv_dma('k', i) + kv_dma('v', i))
    n0 = int(opt.n0) - 9
    weave(sg, Q, early, n0, (len(early) + n0 - 1) // n0)
    sg.addall(early)
    qr = phase_a(sg, Q)
    sg.addall(qr[:0])
    stamp(sg, 3)
    sg.text(f"s_cmp_eq_u32 s{S_REDO}, 0"); sg.text("s_cbranch_scc1 L_back_max")
    s2 = Seg(); s2.addall(qr)
    for x in s2.out: sg.text(x)
    sg.text("s_branch L_max")
    sg.text("L_back_max:")
    phase_b(sg, Q, qr)
    combine(sg, Q)
    phase_c(sg, Q)
    sg.text("L_fin:")
    stamp_out(sg, 11)
    sg.text("L_end:")
    sg.text("s_endpgm")
    return sg.out + ['L_code_end:'] + out_of_line()

def report_kernel():
    idx, mode = opt.report.split(',')
    if mode == 'next':
        return ["report_kernel:", "s_cmp_ge_u32 s2, 1", "s_cbranch_scc1 L3_end", "s_memrealtime s[12:13]", "s_load_dwordx2 s[4:5], s[0:1], 56", "s_waitcnt lgkmcnt(0)",
                f"s_add_u32 s4, s4, {17<<20}", "s_addc_u32 s5, s5, 0", "s_and_b32 s5, s5, 0xffff", "s_mov_b32 s6, 64", "s_mov_b32 s7, 0x20000", "v_mov_b32 v1, 0", "v_mov_b32 v2, s12",
                "buffer_store_dword v2, v1, s[4:7], 0 offen", "L3_end:", "s_endpgm"]
    t = ["report_kernel:", "s_cmp_ge_u32 s2, 1", "s_cbranch_scc1 L3_end", "s_memrealtime s[16:17]", "s_load_dwordx2 s[4:5], s[0:1], 56", "s_waitcnt lgkmcnt(0)",
         f"s_add_u32 s4, s4, {16<<20}", "s_addc_u32 s5, s5, 0", "s_and_b32 s5, s5, 0xffff", "s_mov_b32 s6, 0x100000", "s_mov_b32 s7, 0x20000",
         "v_lshlrev_b32 v1, 8, v0", f"buffer_load_dword v2, v1, s[4:7], 0 offen offset:{4*int(idx)}", "buffer_load_dword v3, v1, s[4:7], 0 offen",
         "v_mov_b32 v4, 0", "v_mov_b32 v5, 0", "v_mov_b32 v6, -1", "ds_write_b32 v4, v5", "ds_write_b32 v4, v6 offset:8", "s_waitcnt vmcnt(0) lgkmcnt(0)", "s_barrier",
         "ds_min_u32 v4, v3 offset:8", "s_waitcnt lgkmcnt(0)", "s_barrier", "ds_read_b32 v6, v4 offset:8", "s_waitcnt lgkmcnt(0)", "v_sub_u32 v2, v2, v6",
         "v_lshrrev_b32 v7, 3, v0", "v_mul_u32_u24 v7, 52, v7", "v_lshrrev_b32 v7, 8, v7", "v_and_b32 v8, 1, v0", "v_sub_u32 v8, 6, v8", "v_cmp_lt_u32 vcc, v7, v8",
         "v_min_u32 v2, 10000, v2",
         ("ds_add_u32 v4, v2" if mode == 'mean' else "ds_max_u32 v4, v2"), "s_waitcnt lgkmcnt(0)", "s_barrier", "ds_read_b32 v6, v4", "s_memrealtime s[12:13]", "s_waitcnt lgkmcnt(0)",
         "v_readfirstlane_b32 s10, v6", "s_nop 4"]
    if mode == 'mean': t += ["s_mul_i32 s10, s10, 10", "s_lshr_b32 s10, s10, 8"]
    elif mode == 'max': t += ["s_mul_i32 s10, s10, 10"]
    elif mode == 'gap': t += ["ds_read_b32 v6, v4 offset:8", "s_waitcnt lgkmcnt(0)", "v_readfirstlane_b32 s11, v6", "s_nop 4", "s_sub_u32 s16, s16, s11", "s_sub_u32 s10, s16, s10",
                              "s_min_u32 s10, s10, 2000", "s_mul_i32 s10, s10, 20"]
    else: t += ["s_mov_b32 s10, 0"]
    t += ["L3_spin:", "s_memrealtime s[14:15]", "s_waitcnt lgkmcnt(0)", "s_sub_u32 s14, s14, s12",
          "s_cmp_lt_u32 s14, s10", "s_cbranch_scc1 L3_spin", "L3_end:", "s_endpgm"]
    return t

HEADER = """; Kernarg layout (64 bytes, pointers only, base s[0:1]):
;  24: wq (512,4096) bf16  32: wo (4096,512) bf16   40: d_out (8,80,512) bf16   48: d_debug   56: d_ws
;
; One launch, one workgroup (4 waves) per (batch b, query head hq); hkv = id & 7, j = (id >> 3) & 3, b = id >> 5, hq = 4*hkv + j.
;     Softmax shift m: the first pass uses m = 0, which is exact as long as nothing leaves the fp32 range.  Every row sum is
;     checked against [2^-40, 2^40] (NaN fails too); if any row is outside, the workgroup starts over, computes the true row
;     maxima over all 1024 keys (L_max) and repeats phase B with m = row maximum.
;  C  hand-off 1: O (bf16) goes to the three other heads of the kv group; workgroup (b, hkv, j) multiplies the four heads
;     with wo[hkv*512.., j*128..] -> partial result for 128 output columns.
;     hand-off 2: the eight partial results (one per hkv) are summed in fp32, each workgroup finishing one eighth.
;  and read with sc1.  The tag is a clock value that workgroup 0 publishes in d_debug (zero at launch), so flags left in d_ws
;  by earlier launches never match.  Polls are bounded.  Nothing depends on the XCD a workgroup runs on; the id mapping, the
"""
def build():
    def fmt(l): return "\n".join(x if x.endswith(':') else "    " + x for x in l)
    nm = NAME + "_kernel"
    s = HEADER + "; @launch grid=(256,1,1) block=(256,1,1) lds=163840\n"
    if opt.report:
        s = f"; @launch kernel={nm} grid=(256,1,1) block=(256,1,1) lds=163840\n; @launch kernel=report_kernel grid=(1,1,1) block=(256,1,1) lds=64\n"
    s += '.amdgcn_target "amdgcn-amd-amdhsa--gfx950"\n.text\n'
    s += f".globl {nm}\n.p2align 8\n.type {nm},@function\n" + fmt(kernel()) + "\n"
    if opt.report: s += ".globl report_kernel\n.p2align 8\n.type report_kernel,@function\n" + fmt(report_kernel()) + "\n"
    s += f""".section .rodata,"a"
.p2align 6
.amdhsa_kernel {nm}
  .amdhsa_next_free_vgpr 512
  .amdhsa_next_free_sgpr 102
  .amdhsa_accum_offset 256
  .amdhsa_group_segment_fixed_size 0
  .amdhsa_kernarg_size 64
  .amdhsa_user_sgpr_count 2
  .amdhsa_user_sgpr_kernarg_segment_ptr 1
  .amdhsa_system_sgpr_workgroup_id_x 1
  .amdhsa_float_denorm_mode_32 3
.end_amdhsa_kernel
"""
    if opt.report:
        s += """.p2align 6
.amdhsa_kernel report_kernel
  .amdhsa_next_free_vgpr 32
  .amdhsa_next_free_sgpr 32
  .amdhsa_accum_offset 32
  .amdhsa_group_segment_fixed_size 0
  .amdhsa_kernarg_size 64
  .amdhsa_user_sgpr_count 2
  .amdhsa_user_sgpr_kernarg_segment_ptr 1
  .amdhsa_system_sgpr_workgroup_id_x 1
.end_amdhsa_kernel
"""
    return s

if __name__ == '__main__':
    out = sys.argv[1] if len(sys.argv) > 1 else 'cdna_kernels/' + NAME + '.s'
    for a_ in sys.argv[2:]:
        k, v = a_.split('=', 1)
        setattr(opt, k, (' ' + v) if k.endswith('flags') and v else v)
    HOIST[0] = int(opt.hoist)
    txt = build()
    open(out, 'w').write(txt)
```

```python
import sys, struct, re
from dsl import *

KB = 1024
NAME = 'standalone__gqa_block_cached__near_ridge'
def f2h(x): return hex(struct.unpack('<I', struct.pack('<f', x))[0])
QSCALE = 1.4426950408889634 / (128 ** 0.5)
WS_WO = 8 << 20
WS_CT = 12 << 20

class Opt:
    stamps = ''
    report = ''
    kv_flags = ''
    a_flags = ''
    n0 = 22
    warm = 1
    perstep = 6
    lo_exp = -40
    hi_exp = 40
    spin = 300000
    rt_at = 5
    bar_at = 32
    nodma = 0
    cpf2_at = 99
    cpf2_skip = 1024
    pairw = 0
    dtch_at = 99
    dtch = 'op'
    dtch_flags = ''
    wpos = '5,16'
    x1e = 0
    c3 = 0
    otr = 1
    otch_at = 99
    otch_flags = ''
    worlate = 1
    pf = 9
    noout = 0
    even_end = 23
    coal = 1
    hoist = 2
    unp = 0
    f2wg = 1
    wfirst = 0
    kvnt = 'x'
    ant = ''
    tch_flags = ''
    wsb = 0
    drain = '45'
    tlb_at = 27
    aonly = 0
    la = 10
    aq = 1
    ownlate = 1
    o_flags = ' sc1'
    f1_flags = ' sc1'
    w64 = 0
    out_flags = ''
    bsched = 1
    p1w = 1
    p2w = 0
    pollk = '19,29,39'
    dyn2 = 1
    qmaj = 1
    tch_at = 27
    even_at = 99
    pdepth = 1
    kvo = 4
    finw = 0
    alim = 16
    cpf = 1
    chain = 1
    wo_at = 33
    calc_at = 16
    nl_at = 8
    nc_at = 13
    cw = 2
    shadow = 9
    bst = '0,5,10,15,20'
    no_rt = 0
    clk = 'r'
    lg0 = 0
    vpos = '1,5,9,13'
    rot_kv = 1
    rot_a = 8
    rot_c = 1
    gl_at = 29
    gc_at = 33
opt = Opt()

S_X, S_WQ, S_K, S_V, S_O, S_WO, S_WT, S_WL, S_C, S_D, S_OUT = 4, 8, 12, 16, 20, 24, 28, 52, 56, 60, 64
S_W, S_B, S_HKV, S_HQ = 32, 33, 34, 35
S_W1K, S_W8K, S_SO, S_T0, S_T1, S_T2, S_SK, S_SV = 36, 37, 38, 39, 40, 41, 42, 43
S_TAB = 44
S_REDO, S_MT, S_NT, S_VALID, S_RT, S_SPIN = 68, 69, 70, 71, 72, 73
S_EX = 74
S_F1, S_F2, S_G1, S_G2 = 100, 101, 72, 51
S_GM = 70
S_J_UNUSED = 3
S_P = 76
S_ST = 80
V_LANE, V_N, V_G, V_T0, V_T1, V_T2, V_T3, V_T4, V_T5 = 1, 2, 3, 4, 5, 6, 7, 8, 9
V_KA, V_VA, V_KD, V_VD = 10, 14, 22, 26
V_OST, V_CW, V_LW = 28, 29, 31
V_ONES, V_NEGM, V_L, V_S, V_P, V_KF, V_VF = 32, 36, 56, 76, 92, 100, 164
V_XA, V_XB, V_WA, V_WB, V_XD, V_WD, V_QW = 228, 232, 236, 238, 240, 241, 242
V_GC = 250
S_NON = 96
V_CR, V_LR, V_WOD, V_WT, V_OL, V_OW, V_OD, V_PS, V_PLD, V_OUT, V_P1, V_P2 = 228, 234, 235, 236, 242, 243, 244, 245, 246, 247, 248, 249
V_ZERO = 9
V_TCH = 64
S_H = 52
S_W5K = 55
S_J = 69
A_O, A_Q = 0, 160
V_OWN = [132, 140, 148, 156, 56]
A_KF1, A_L = 120, 240
def AO(lam, q):
    if lam < 2: return ('v', V_OWN[q] + 4 * lam)
    return ('a', A_O + 4 * (q * 6 + lam - 2))
def KF(i, k): return ('v', V_KF + 4 * k) if i % 2 == 0 else ('a', A_KF1 + 4 * k)
def LA(q): return ('a', A_L + 4 * q) if q < 4 else ('a', 152)
def AQ(q, s): return ('a', A_Q + 4 * (q * 4 + s))

def XU(c, q):
    if c == 0: return q * 4 * KB
    if c == 1: return 20 * KB + q * 4 * KB
    if c == 2: return 128 * KB + q * 4 * KB
    return [120, 124, 148, 152, 156][q] * KB
def WU(slot, ks):
    return {0: [40, 48], 1: [56, 96], 2: [104, 112], 3: [64, 72], 4: [80, 88]}[slot][ks] * KB
WSLOT = [0, 1, 2, 3, 4, 0, 1, 2]
QBUF = 128 * KB

def V(t, r=(), w=()):
    return valu(t, r=[('v', x) if isinstance(x, int) else x for x in r], w=[('v', x) if isinstance(x, int) else x for x in w])
def T(t, r=(), w=()):
    return valu(t, r=[('v', x) for x in r], w=[('v', x) for x in w], trans=True)
def S(t, r=(), w=()):
    return salu(t, r=[('s', x) if isinstance(x, int) else x for x in r], w=[('s', x) if isinstance(x, int) else x for x in w])
M0 = ('m0', 0)
VCC = ('vcc', 0)
def flat(l): return [x for y in l for x in y]

def srd(dst, plo, add_s=None, add_imm=0, size=0):
    o = []
    if add_s is not None:
        o.append(S(f"s_add_u32 s{dst}, s{plo}, s{add_s}", [plo, add_s], [dst]))
        o.append(S(f"s_addc_u32 s{dst+1}, s{plo+1}, 0", [plo+1], [dst+1]))
        o.append(S(f"s_and_b32 s{dst+1}, s{dst+1}, 0xffff", [dst+1], [dst+1]))
    elif add_imm:
        o.append(S(f"s_add_u32 s{dst}, s{plo}, {add_imm}", [plo], [dst]))
        o.append(S(f"s_addc_u32 s{dst+1}, s{plo+1}, 0", [plo+1], [dst+1]))
        o.append(S(f"s_and_b32 s{dst+1}, s{dst+1}, 0xffff", [dst+1], [dst+1]))
    else:
        o.append(S(f"s_mov_b32 s{dst}, s{plo}", [plo], [dst]))
        o.append(S(f"s_and_b32 s{dst+1}, s{plo+1}, 0xffff", [plo+1], [dst+1]))
    if isinstance(size, str):
        o.append(S(f"s_mov_b32 s{dst+2}, {size}", [int(size[1:])], [dst+2]))
    else:
        o.append(S(f"s_mov_b32 s{dst+2}, {size}", [], [dst+2]))
    o.append(S(f"s_mov_b32 s{dst+3}, 0x20000", [], [dst+3]))
    return o

KV_ORDER = [[0, 2, 1, 3, 4, 6, 5, 7], [0, 1, 3, 2, 4, 5, 7, 6], [1, 0, 2, 4, 3, 5, 6, 7], [1, 0, 2, 3, 5, 4, 6, 7]]
KV_ORDERS = [KV_ORDER,
  [[0, 4, 1, 2, 3, 5, 6, 7], [1, 0, 5, 2, 3, 4, 6, 7], [2, 0, 1, 6, 3, 4, 5, 7], [3, 0, 1, 2, 7, 4, 5, 6]],
  [[0, 1, 2, 3, 4, 5, 6, 7], [0, 1, 2, 3, 4, 5, 6, 7], [4, 5, 6, 7, 0, 1, 2, 3], [4, 5, 6, 7, 0, 1, 2, 3]],
  [[0, 2, 1, 3, 5, 4, 6, 7], [1, 0, 3, 2, 4, 6, 5, 7], [2, 1, 0, 4, 3, 5, 7, 6], [0, 1, 2, 3, 5, 4, 6, 7]],
  [[0, 1, 2, 4, 3, 5, 6, 7], [1, 0, 2, 3, 5, 4, 6, 7], [2, 0, 1, 3, 4, 6, 5, 7], [0, 1, 3, 2, 4, 5, 7, 6]],
  [[0, 1, 4, 2, 3, 5, 6, 7], [1, 0, 2, 5, 3, 4, 6, 7], [2, 0, 1, 3, 6, 4, 5, 7], [0, 3, 1, 2, 4, 7, 5, 6]],
  [[0, 1, 3, 2, 4, 5, 7, 6], [0, 1, 2, 4, 3, 5, 6, 7], [0, 2, 1, 3, 5, 4, 6, 7], [0, 2, 1, 3, 4, 6, 5, 7]],
  [[0, 1, 2, 4, 3, 5, 6, 7], [1, 0, 3, 2, 5, 4, 6, 7], [2, 3, 0, 1, 4, 6, 5, 7], [3, 2, 1, 0, 4, 5, 7, 6]],
  [[0, 1, 2, 4, 3, 5, 6, 7], [1, 2, 0, 3, 5, 4, 6, 7], [2, 0, 1, 3, 4, 6, 5, 7], [0, 3, 1, 2, 4, 5, 7, 6]]]
def kv_pack(j):
    o = KV_ORDERS[int(opt.kvo)][j] if int(opt.rot_kv) else list(range(8))
    return sum(t << (4 * i) for i, t in enumerate(o))
S_KVO = 98
V_XD4 = 204
S_WC = 99

class Item:
    def __init__(s, pre, ins, after=None): s.pre, s.ins, s.after = pre, ins, after
def x_dma(c, after=None):
    return [Item([S(f"s_add_u32 m0, s{S_W1K}, {XU(c,q)}", [S_W1K], [M0])],
                 dma(V_XD4 + c, S_X, S_TAB + q, 0, ('x', c), flags=(' nt' if 'x' in opt.ant and c < 2 else opt.a_flags)), after) for q in range(5)]
def w_dma(u, after=None):
    o = []
    for k in range(4):
        pre = []
        if k == 0:
            pre.append(S(f"s_add_u32 s{S_SK}, s{S_WC}, {(u & 6) << 19}", [S_WC], [S_SK]))
            pre.append(S(f"s_and_b32 s{S_SK}, s{S_SK}, {7 << 19}", [S_SK], [S_SK]))
            if u & 1: pre.append(S(f"s_xor_b32 s{S_SK}, s{S_SK}, {1 << 19}", [S_SK], [S_SK]))
        pre.append(S(f"s_add_u32 s{S_SO}, s{S_SK}, {k*131072}", [S_SK], [S_SO]))
        pre.append(S(f"s_add_u32 m0, s{S_W1K}, {WU(WSLOT[u], k>>1) + (k&1)*4*KB}", [S_W1K], [M0]))
        o.append(Item(pre, dma(V_WD, S_WQ, S_SO, 0, ('w', u), flags=(' nt' if 'w' in opt.ant and u < 4 else opt.a_flags)), after))
    return o
def kv_dma(kind, i, after=None):
    o = []
    base = (i & 1) * 32 * KB + (0 if kind == 'k' else 64 * KB)
    sr, so = (S_K, S_SK) if kind == 'k' else (S_V, S_SV)
    for j in range(8):
        pre = []
        if j % 4 == 0:
            if j == 0:
                pre.append(S(f"s_bfe_u32 s{so}, s{S_KVO}, {hex((3 << 16) | (4 * i))}", [S_KVO], [so]))
                pre.append(S(f"s_lshl_b32 s{so}, s{so}, 13", [so], [so]))
            else:
                pre.append(S(f"s_add_u32 s{so}, s{so}, 4096", [so], [so]))
            pre.append(S(f"s_add_u32 m0, s{S_W8K}, {base + (j>>2)*4096}", [S_W8K], [M0]))
        va = V_KD + (j & 3) if kind == 'k' else V_VD + (j & 1)
        tag = (kind + 'r', i - 2, j >> 2)
        o.append(Item(pre, dma(va, sr, so, 1024 * (j & 3), (kind, i, j >> 2), needlg=[tag], flags=(' nt' if str(i) in str(opt.kvnt) else opt.kv_flags)), after if i < 2 else tag))
    return o
def k_reads(i):
    return [dsrd('ds_read_b128', KF(i, t * 4 + s), 4, V_KA + s, (i & 1) * 32 * KB + t * 4096,
                 needvm=[('k', i, t)], lgtag=('kr', i, t)) for t in range(2) for s in range(4)]
def v_reads(i):
    return [dsrd('ds_read_b64_tr_b16', ('v', V_VF + (i & 1) * 32 + lam * 4 + h * 2), 2, V_VA + lam, (i & 1) * 32 * KB + h * 4096,
                 needvm=[('v', i, h)], lgtag=('vr', i, h)) for h in range(2) for lam in range(8)]

class Queue:
    def __init__(s): s.q = []; s.pts = set()
    def push(s, items): s.q += items
    def mark(s, p): s.pts.add(p)
    def pop(s):
        if s.q and (s.q[0].after is None or s.q[0].after in s.pts): return s.q.pop(0)
        return None

def place(gaps, Q, pos):
    last = -1
    for p in pos:
        if p >= len(gaps): continue
        it = Q.pop()
        if it is None: break
        pre = list(it.pre)
        avail = list(range(last + 1, p))
        front = []
        if not avail: front = pre
        else:
            slots = [[] for _ in avail]
            for k_, x in enumerate(reversed(pre)):
                slots[max(0, len(avail) - 1 - k_)].insert(0, x)
            for g, sl in zip(avail, slots):
                k_ = 0
                while k_ < len(gaps[g]) and gaps[g][k_].k == 'salu': k_ += 1
                gaps[g][k_:k_] = sl
        k = 0
        while k < len(gaps[p]) and gaps[p][k].k == 'salu': k += 1
        gaps[p][k:k] = front + [it.ins]
        last = p
def weave(sg, Q, fill, n, per):
    for _ in range(n):
        it = Q.pop()
        if it is not None: sg.addall(it.pre + [it.ins])
        for _ in range(per):
            if fill: sg.add(fill.pop(0))

NST = 12
def stamp(sg, i, grp='1'):
    if not opt.stamps: return
    if opt.stamps == 'Z' and i: return
    if 5 <= i <= 9 and grp != opt.stamps: return
    sg.text(f"{'s_memtime' if opt.clk == 'c' else 's_memrealtime'} s[{76+2*i}:{77+2*i}]")

def prologue1():
    o = []; a = o.append
    a(raw("s_load_dwordx2 s[92:93], s[0:1], 0"))
    a(raw("s_load_dwordx2 s[26:27], s[0:1], 24"))
    a(V(f"v_lshrrev_b32 v{V_T0}, 6, v0", [0], [V_T0]))
    a(V(f"v_and_b32 v{V_LANE}, 63, v0", [0], [V_LANE]))
    a(V(f"v_readfirstlane_b32 s{S_W}, v{V_T0}", [V_T0], [('s', S_W)]))
    a(S(f"s_and_b32 s{S_HKV}, s2, 7", [2], [S_HKV]))
    a(S(f"s_lshr_b32 s{S_B}, s2, 5", [2], [S_B]))
    a(S(f"s_bfe_u32 s{S_T0}, s2, 0x20003", [2], [S_T0]))
    a(S(f"s_mov_b32 s{S_J}, s{S_T0}", [S_T0], [S_J]))
    a(S(f"s_lshl_b32 s{S_HQ}, s{S_HKV}, 2", [S_HKV], [S_HQ]))
    a(S(f"s_add_u32 s{S_HQ}, s{S_HQ}, s{S_T0}", [S_HQ, S_T0], [S_HQ]))
    if int(opt.rot_a) == 2:
        a(S(f"s_add_u32 s{S_VALID}, s{S_T0}, s{S_B}", [S_T0, S_B], [S_VALID]))
        a(S(f"s_and_b32 s{S_VALID}, s{S_VALID}, 1", [S_VALID], [S_VALID]))
        a(S(f"s_lshl_b32 s{S_VALID}, s{S_VALID}, 2", [S_VALID], [S_VALID]))
    elif int(opt.rot_a) in (5, 6):
        a_, b_ = (S_B, S_T0) if int(opt.rot_a) == 5 else (S_T0, S_B)
        a(S(f"s_lshl_b32 s{S_VALID}, s{b_}, 1", [b_], [S_VALID]))
        a(S(f"s_add_u32 s{S_VALID}, s{S_VALID}, s{a_}", [S_VALID, a_], [S_VALID]))
        a(S(f"s_and_b32 s{S_VALID}, s{S_VALID}, 3", [S_VALID], [S_VALID]))
        a(S(f"s_lshl_b32 s{S_VALID}, s{S_VALID}, 1", [S_VALID], [S_VALID]))
    elif int(opt.rot_a) in (8, 9):
        a(S(f"s_add_u32 s{S_VALID}, s{S_T0}, s{S_B}", [S_T0, S_B], [S_VALID]))
        a(S(f"s_lshl_b32 s{S_VALID}, s{S_VALID}, 1", [S_VALID], [S_VALID]))
        a(S(f"s_and_b32 s{S_T1}, s{S_HKV}, {1 if int(opt.rot_a) == 8 else 3}", [S_HKV], [S_T1]))
        a(S(f"s_add_u32 s{S_VALID}, s{S_VALID}, s{S_T1}", [S_VALID, S_T1], [S_VALID]))
        a(S(f"s_and_b32 s{S_VALID}, s{S_VALID}, 3", [S_VALID], [S_VALID]))
        a(S(f"s_lshl_b32 s{S_VALID}, s{S_VALID}, 1", [S_VALID], [S_VALID]))
    elif int(opt.rot_a) == 7:
        a(S(f"s_add_u32 s{S_VALID}, s{S_T0}, s{S_B}", [S_T0, S_B], [S_VALID]))
        a(S(f"s_and_b32 s{S_VALID}, s{S_VALID}, 1", [S_VALID], [S_VALID]))
        a(S(f"s_lshl_b32 s{S_VALID}, s{S_VALID}, 2", [S_VALID], [S_VALID]))
        a(S(f"s_bfe_u32 s{S_T1}, s{S_B}, 0x10001", [S_B], [S_T1]))
        a(S(f"s_or_b32 s{S_VALID}, s{S_VALID}, s{S_T1}", [S_VALID, S_T1], [S_VALID]))
    elif int(opt.rot_a) == 4:
        a(S(f"s_add_u32 s{S_VALID}, s{S_T0}, s{S_B}", [S_T0, S_B], [S_VALID]))
        a(S(f"s_and_b32 s{S_VALID}, s{S_VALID}, 3", [S_VALID], [S_VALID]))
        a(S(f"s_lshl_b32 s{S_VALID}, s{S_VALID}, 1", [S_VALID], [S_VALID]))
    elif int(opt.rot_a):
        a(S(f"s_lshl_b32 s{S_T0}, s{S_T0}, 1", [S_T0], [S_T0]))
        a(S(f"s_add_u32 s{S_VALID}, s{S_T0}, s{S_B}", [S_T0, S_B], [S_VALID]))
        a(S(f"s_and_b32 s{S_VALID}, s{S_VALID}, 7", [S_VALID], [S_VALID]))
    else:
        a(S(f"s_mov_b32 s{S_VALID}, 0", [], [S_VALID]))
    a(V(f"v_and_b32 v{V_N}, 15, v{V_LANE}", [V_LANE], [V_N]))
    a(V(f"v_lshrrev_b32 v{V_G}, 4, v{V_LANE}", [V_LANE], [V_G]))
    a(S(f"s_lshl_b32 s{S_W1K}, s{S_W}, 10", [S_W], [S_W1K]))
    a(S(f"s_lshl_b32 s{S_W8K}, s{S_W}, 13", [S_W], [S_W8K]))
    a(V(f"v_lshl_add_u32 v{V_T0}, s{S_W}, 2, v{V_G}", [V_G, ('s', S_W)], [V_T0]))
    a(V(f"v_xor_b32 v{V_T1}, v{V_N}, v{V_T0}", [V_N, V_T0], [V_T1]))
    a(V(f"v_lshlrev_b32 v{V_T1}, 4, v{V_T1}", [V_T1], [V_T1]))
    a(V(f"v_lshl_add_u32 v{V_XD}, v{V_T0}, 10, v{V_T1}", [V_T0, V_T1], [V_XD]))
    a(S(f"s_and_b32 s{S_T0}, s{S_W}, 2", [S_W], [S_T0]))
    a(S(f"s_lshl_b32 s{S_T0}, s{S_T0}, 2", [S_T0], [S_T0]))
    a(V(f"v_lshl_add_u32 v{V_T1}, v{V_G}, 1, s{S_T0}", [V_G, ('s', S_T0)], [V_T1]))
    a(V(f"v_xor_b32 v{V_T1}, v{V_N}, v{V_T1}", [V_N, V_T1], [V_T1]))
    a(V(f"v_lshlrev_b32 v{V_T1}, 4, v{V_T1}", [V_T1], [V_T1]))
    a(V(f"v_lshl_add_u32 v{V_WD}, v{V_T0}, 13, v{V_T1}", [V_T0, V_T1], [V_WD]))
    a(S(f"s_mul_i32 s{S_T0}, s{S_B}, 81920", [S_B], [S_T0]))
    a(S(f"s_lshl_b32 s{S_T2}, s{S_HQ}, 8", [S_HQ], [S_T2]))
    a(S(f"s_sub_u32 s{S_T1}, 4194304, s{S_T2}", [S_T2], [S_T1]))
    a(S(f"s_mov_b32 s{S_REDO}, 0", [], [S_REDO]))
    a(S(f"s_lshl_b32 s{S_WC}, s{S_VALID}, 19", [S_VALID], [S_WC]))
    a(S(f"s_mov_b64 s[{S_GM}:{S_GM+1}], -1", [], [S_GM, S_GM+1]))
    o += restart_setup()
    a(S(f"s_mov_b32 s{S_X+2}, 81920", [], [S_X+2])); a(S(f"s_mov_b32 s{S_X+3}, 0x20000", [], [S_X+3]))
    a(S(f"s_mov_b32 s{S_WQ+2}, s{S_T1}", [S_T1], [S_WQ+2])); a(S(f"s_mov_b32 s{S_WQ+3}, 0x20000", [], [S_WQ+3]))
    a(raw("s_waitcnt lgkmcnt(0)", 'wait'))
    o += srd(S_X, 92, add_s=S_T0, size=81920)[:3]
    o += srd(S_WQ, 26, add_s=S_T2, size=0)[:3]
    a(raw("s_load_dwordx4 s[92:95], s[0:1], 8"))
    a(raw(f"s_load_dwordx2 s[{S_WO}:{S_WO+1}], s[0:1], 32"))
    a(raw(f"s_load_dwordx4 s[{S_C}:{S_C+3}], s[0:1], 40"))
    a(raw("s_load_dwordx2 s[100:101], s[0:1], 56"))
    return o

def restart_setup():
    o = [S(f"s_mov_b32 s{S_TAB+q}, {q*16384}", [], [S_TAB+q]) for q in range(5)]
    for c in range(4):
        o.append(S(f"s_lshr_b32 s{S_SO}, s{S_WC}, 12", [S_WC], [S_SO]))
        o.append(S(f"s_add_u32 s{S_SO}, s{S_SO}, {c*256}", [S_SO], [S_SO]))
        o.append(S(f"s_and_b32 s{S_SO}, s{S_SO}, 0x300", [S_SO], [S_SO]))
        o.append(V(f"v_add_u32 v{V_XD4+c}, s{S_SO}, v{V_XD}", [V_XD, ('s', S_SO)], [V_XD4+c]))
    return o

def prologue2():
    o = []; a = o.append
    a(raw("s_waitcnt lgkmcnt(0)", 'wait'))
    a(S(f"s_lshl_b32 s{S_T0}, s{S_B}, 3", [S_B], [S_T0]))
    a(S(f"s_add_u32 s{S_T0}, s{S_T0}, s{S_HKV}", [S_T0, S_HKV], [S_T0]))
    a(S(f"s_lshl_b32 s{S_T0}, s{S_T0}, 2", [S_T0], [S_T0]))
    a(S(f"s_add_u32 s{S_T0}, s{S_T0}, s{S_W}", [S_T0, S_W], [S_T0]))
    a(S(f"s_lshl_b32 s{S_T0}, s{S_T0}, 16", [S_T0], [S_T0]))
    o += srd(S_K, 92, add_s=S_T0, size=65536)
    o += srd(S_V, 94, add_s=S_T0, size=65536)
    a(S(f"s_lshl_b32 s{S_T0}, s{S_HKV}, 19", [S_HKV], [S_T0]))
    o += srd(S_WO, S_WO, add_s=S_T0, size=524288)
    WB = int(opt.wsb) << 20
    o += srd(S_O, 100, add_imm=WB, size=8*5*128*1024)
    o += srd(S_WT, 100, add_imm=WB + WS_WO, size=8*4*20*8*1024)
    o += srd(S_D, S_C + 2, size=256)
    o += srd(S_OUT, S_C, size=655360)
    o += srd(S_C, 100, add_imm=WB + WS_CT, size=262144)
    a(S(f"s_bitcmp1_b32 s{S_HQ}, 0", [S_HQ], []))
    a(S(f"s_mov_b32 s{S_T0}, {hex(kv_pack(0))}", [], [S_T0]))
    a(S(f"s_cselect_b32 s{S_T0}, {hex(kv_pack(1))}, s{S_T0}", [S_T0], [S_T0]))
    a(S(f"s_mov_b32 s{S_T1}, {hex(kv_pack(2))}", [], [S_T1]))
    a(S(f"s_cselect_b32 s{S_T1}, {hex(kv_pack(3))}, s{S_T1}", [S_T1], [S_T1]))
    a(S(f"s_bitcmp1_b32 s{S_HQ}, 1", [S_HQ], []))
    a(S(f"s_cselect_b32 s{S_KVO}, s{S_T1}, s{S_T0}", [S_T0, S_T1], [S_KVO]))
    for p in range(3):
        a(S(f"s_cmp_le_u32 s{S_J}, {p}", [S_J], []))
        a(S(f"s_cselect_b32 s{S_T1}, {p + 1}, {p}", [], [S_T1]))
        a(S(f"s_lshl_b32 s{S_H+p}, s{S_T1}, 17", [S_T1], [S_H+p]))
    a(S(f"s_mul_i32 s{S_W5K}, s{S_W}, 5120", [S_W], [S_W5K]))
    a(S(f"s_lshl_b32 s{S_T0}, s{S_B}, 14", [S_B], [S_T0]))
    a(S(f"s_lshl_b32 s{S_T1}, s{S_W}, 7", [S_W], [S_T1]))
    a(S(f"s_add_u32 s{S_T0}, s{S_T0}, s{S_T1}", [S_T0, S_T1], [S_T0]))
    a(S(f"s_lshl_b32 s{S_F1}, s{S_HQ}, 9", [S_HQ], [S_F1]))
    a(S(f"s_add_u32 s{S_F1}, s{S_F1}, s{S_T0}", [S_F1, S_T0], [S_F1]))
    a(S(f"s_add_u32 s{S_F2}, s{S_F1}, 131072", [S_F1], [S_F2]))
    if int(opt.f2wg): a(S(f"s_andn2_b32 s{S_F2}, s{S_F2}, 0x180", [S_F2], [S_F2]))
    a(S(f"s_lshl_b32 s{S_T1}, s{S_HKV}, 11", [S_HKV], [S_T1]))
    a(S(f"s_lshl_b32 s{S_G1}, s{S_J}, 3", [S_J], [S_G1]))
    a(S(f"s_add_u32 s{S_G1}, s{S_G1}, s{S_T1}", [S_G1, S_T1], [S_G1]))
    a(S(f"s_add_u32 s{S_G1}, s{S_G1}, s{S_T0}", [S_G1, S_T0], [S_G1]))
    a(S(f"s_lshl_b32 s{S_T1}, s{S_J}, 9", [S_J], [S_T1]))
    a(S(f"s_lshl_b32 s{S_G2}, s{S_HKV}, 3", [S_HKV], [S_G2]))
    a(S(f"s_add_u32 s{S_G2}, s{S_G2}, s{S_T1}", [S_G2, S_T1], [S_G2]))
    a(S(f"s_add_u32 s{S_G2}, s{S_G2}, s{S_T0}", [S_G2, S_T0], [S_G2]))
    a(S(f"s_add_u32 s{S_G2}, s{S_G2}, 131072", [S_G2], [S_G2]))
    return o

def prologue3():
    o = []; a = o.append
    a(S(f"s_bfe_u32 s{S_T1}, s{S_WC}, 0x10013", [S_WC], [S_T1]))
    a(S(f"s_lshl_b32 s{S_T1}, s{S_T1}, 3", [S_T1], [S_T1]))
    a(V(f"v_xor_b32 v{V_T1}, s{S_T1}, v{V_N}", [V_N, ('s', S_T1)], [V_T1]))
    for s in range(4):
        a(V(f"v_add_u32 v{V_T0}, {4*s}, v{V_G}", [V_G], [V_T0]))
        a(V(f"v_xor_b32 v{V_T0}, v{V_T0}, v{V_T1}", [V_T0, V_T1], [V_T0]))
        a(V(f"v_lshlrev_b32 v{V_T0}, 4, v{V_T0}", [V_T0], [V_T0]))
        a(V(f"v_lshl_add_u32 v{V_XA+s}, v{V_N}, 8, v{V_T0}", [V_N, V_T0], [V_XA+s]))
        a(V(f"v_add_u32 v{V_XB+s}, {120*KB}, v{V_XA+s}", [V_XA+s], [V_XB+s]))
    a(V(f"v_lshrrev_b32 v{V_T2}, 2, v{V_N}", [V_N], [V_T2]))
    a(V(f"v_bfe_u32 v{V_T3}, v{V_N}, 1, 1", [V_N], [V_T3]))
    a(V(f"v_and_b32 v{V_T4}, 1, v{V_N}", [V_N], [V_T4]))
    a(V(f"v_lshlrev_b32 v{V_T4}, 3, v{V_T4}", [V_T4], [V_T4]))
    a(V(f"v_and_b32 v{V_T5}, 1, v{V_G}", [V_G], [V_T5]))
    a(V(f"v_lshl_add_u32 v{V_T5}, v{V_T5}, 2, v{V_T2}", [V_T5, V_T2], [V_T5]))
    a(V(f"v_lshlrev_b32 v{V_T5}, 1, v{V_T5}", [V_T5], [V_T5]))
    a(S(f"s_lshl_b32 s{S_T1}, s{S_W}, 2", [S_W], [S_T1]))
    a(V(f"v_lshl_add_u32 v{V_T1}, v{V_G}, 3, v{V_T2}", [V_G, V_T2], [V_T1]))
    a(V(f"v_lshl_add_u32 v{V_T1}, v{V_T1}, 8, v{V_T4}", [V_T1, V_T4], [V_T1]))
    for e in range(2):
        a(V(f"v_add3_u32 v{V_T0}, s{S_T1}, v{V_T3}, {2*e}", [V_T3, ('s', S_T1)], [V_T0]))
        a(V(f"v_xor_b32 v{V_T0}, v{V_T0}, v{V_T5}", [V_T0, V_T5], [V_T0]))
        a(V(f"v_lshl_add_u32 v{V_T0}, v{V_T0}, 4, v{V_T1}", [V_T0, V_T1], [V_T0]))
        a(V(f"v_add_u32 v{V_WA+e}, {40*KB}, v{V_T0}", [V_T0], [V_WA+e]))
        a(V(f"v_add_u32 v{V_WB+e}, {96*KB}, v{V_T0}", [V_T0], [V_WB+e]))
    a(V(f"v_lshl_add_u32 v{V_T1}, v{V_G}, 2, v{V_T2}", [V_G, V_T2], [V_T1]))
    n_early = len(o)
    for s in range(4):
        a(V(f"v_add_u32 v{V_KA+s}, s{S_W8K}, v{V_XA+s}", [V_XA+s, ('s', S_W8K)], [V_KA+s]))
    a(V(f"v_lshl_add_u32 v{V_T1}, v{V_T1}, 8, v{V_T4}", [V_T1, V_T4], [V_T1]))
    a(S(f"s_add_u32 s{S_T2}, s{S_W8K}, {64*KB}", [S_W8K], [S_T2]))
    a(V(f"v_add_u32 v{V_T1}, s{S_T2}, v{V_T1}", [V_T1, ('s', S_T2)], [V_T1]))
    a(V(f"v_add_u32 v{V_T3}, s{S_T1}, v{V_T3}", [V_T3, ('s', S_T1)], [V_T3]))
    for lam in range(8):
        a(V(f"v_add_u32 v{V_T0}, {2*lam}, v{V_T3}", [V_T3], [V_T0]))
        a(V(f"v_and_b32 v{V_T0}, 15, v{V_T0}", [V_T0], [V_T0]))
        a(V(f"v_xor_b32 v{V_T0}, v{V_T0}, v{V_T5}", [V_T0, V_T5], [V_T0]))
        a(V(f"v_lshl_add_u32 v{V_VA+lam}, v{V_T0}, 4, v{V_T1}", [V_T0, V_T1], [V_VA+lam]))
    a(V(f"v_xor_b32 v{V_T0}, v{V_N}, v{V_G}", [V_N, V_G], [V_T0]))
    a(V(f"v_lshlrev_b32 v{V_T0}, 4, v{V_T0}", [V_T0], [V_T0]))
    a(V(f"v_lshl_add_u32 v{V_KD}, v{V_G}, 8, v{V_T0}", [V_G, V_T0], [V_KD]))
    for j in range(1, 4):
        a(V(f"v_xor_b32 v{V_KD+j}, {64*j}, v{V_KD}", [V_KD], [V_KD+j]))
    a(V(f"v_lshlrev_b32 v{V_T0}, 1, v{V_G}", [V_G], [V_T0]))
    a(V(f"v_xor_b32 v{V_T0}, v{V_N}, v{V_T0}", [V_N, V_T0], [V_T0]))
    a(V(f"v_lshlrev_b32 v{V_T0}, 4, v{V_T0}", [V_T0], [V_T0]))
    a(V(f"v_lshl_add_u32 v{V_VD}, v{V_G}, 8, v{V_T0}", [V_G, V_T0], [V_VD]))
    a(V(f"v_xor_b32 v{V_VD+1}, 128, v{V_VD}", [V_VD], [V_VD+1]))
    a(V(f"v_lshrrev_b32 v{V_T0}, 1, v{V_G}", [V_G], [V_T0]))
    a(V(f"v_add_u32 v{V_T0}, s{S_T1}, v{V_T0}", [V_T0, ('s', S_T1)], [V_T0]))
    a(V(f"v_xor_b32 v{V_T0}, v{V_T0}, v{V_N}", [V_T0, V_N], [V_T0]))
    a(V(f"v_lshlrev_b32 v{V_T0}, 4, v{V_T0}", [V_T0], [V_T0]))
    a(V(f"v_lshl_add_u32 v{V_T0}, v{V_N}, 8, v{V_T0}", [V_N, V_T0], [V_T0]))
    a(V(f"v_and_b32 v{V_T1}, 1, v{V_G}", [V_G], [V_T1]))
    a(V(f"v_lshl_add_u32 v{V_T0}, v{V_T1}, 3, v{V_T0}", [V_T0, V_T1], [V_T0]))
    a(V(f"v_add_u32 v{V_QW}, {QBUF}, v{V_T0}", [V_T0], [V_QW]))
    a(V(f"v_xor_b32 v{V_QW+1}, 32, v{V_QW}", [V_QW], [V_QW+1]))
    a(V(f"v_lshl_add_u32 v{V_CW}, v{V_LANE}, 4, s{S_W8K}", [V_LANE, ('s', S_W8K)], [V_CW]))
    a(V(f"v_add_u32 v{V_CW+1}, {64*KB}, v{V_CW}", [V_CW], [V_CW+1]))
    a(S(f"s_add_u32 s{S_T0}, s{S_W8K}, {102*KB}", [S_W8K], [S_T0]))
    a(V(f"v_lshl_add_u32 v{V_LW}, v{V_LANE}, 5, s{S_T0}", [V_LANE, ('s', S_T0)], [V_LW]))
    a(S(f"s_mul_i32 s{S_T0}, s{S_B}, 640", [S_B], [S_T0]))
    a(S(f"s_lshl_b32 s{S_T2}, s{S_HQ}, 2", [S_HQ], [S_T2]))
    a(S(f"s_add_u32 s{S_T0}, s{S_T0}, s{S_T2}", [S_T0, S_T2], [S_T0]))
    a(S(f"s_add_u32 s{S_T0}, s{S_T0}, s{S_W}", [S_T0, S_W], [S_T0]))
    a(S(f"s_lshl_b32 s{S_T0}, s{S_T0}, 10", [S_T0], [S_T0]))
    a(V(f"v_lshl_add_u32 v{V_OST}, v{V_LANE}, 4, s{S_T0}", [V_LANE, ('s', S_T0)], [V_OST]))
    a(V(f"v_cmp_eq_u32 vcc, 0, v{V_N}", [V_N], [VCC]))
    a(V(f"v_mov_b32 v{V_T0}, 0x3f803f80", [], [V_T0]))
    for i in range(4):
        a(V(f"v_cndmask_b32 v{V_ONES+i}, 0, v{V_T0}, vcc", [V_T0, VCC], [V_ONES+i]))
    for i in range(20):
        a(V(f"v_mov_b32 v{V_NEGM+i}, 0", [], [V_NEGM+i]))
    return o[:n_early], o[n_early:]

V_QACC = V_VF
def AF(kap):
    return [(100, 120), (128, 148), (208, 156)][kap % 3]
def a_reads(kap):
    u, ks = kap >> 1, kap & 1
    c, s = u >> 1, kap & 3
    xf, wf = AF(kap)
    wb = WU(WSLOT[u], ks)
    xr = []
    for q in range(5):
        xb = XU(c, q)
        reg, base = (V_XA, 0) if xb < 64 * KB else (V_XB, 120 * KB)
        xr.append(dsrd('ds_read_b128', ('v', xf + q * 4), 4, reg + s, xb - base))
    wr = []
    for e in range(2):
        for h in range(2):
            reg, base = (V_WA, 40 * KB) if wb < 96 * KB else (V_WB, 96 * KB)
            wr.append(dsrd('ds_read_b64_tr_b16', ('v', wf + e * 4 + h * 2), 2, reg + e, wb - base + h * 1024))
    return wr[:2] + xr[:1] + wr[2:] + xr[1:]
def a_mfmas(kap):
    o = []
    xf, wf = AF(kap)
    for q in range(5):
        for e in range(2):
            d = ('v', V_QACC + (e * 5 + q) * 4)
            o.append(mfma(d, ('v', wf + e * 4), ('v', xf + q * 4), 0 if kap == 0 else d))
    return o
def lane0(sg, body, lab):
    sg.text(f"s_cmp_lg_u32 s{S_W}, 0"); sg.text(f"s_cbranch_scc1 {lab}")
    sg.text(f"s_mov_b64 s[{S_EX}:{S_EX+1}], exec"); sg.text("s_mov_b64 exec, 1")
    for x in body: sg.text(x)
    sg.text(f"s_mov_b64 exec, s[{S_EX}:{S_EX+1}]")
    sg.text(f"{lab}:")
def phase_a(sg, Q):
    stamp(sg, 1)
    sg.add(barrier(needvm=[('x', 0), ('w', 0)])); Q.mark('B0')
    stamp(sg, 2)
    sg.addall(a_reads(0)); sg.addall(a_reads(1))
    sg.add(S(f"s_mov_b32 s{S_T1}, {f2h(QSCALE)}", [], [S_T1]))
    sg.add(S(f"s_mov_b32 s{S_T2}, {f2h(QSCALE)}", [], [S_T2]))
    for kap in range(14 if int(opt.aq) else 16):
        mf = a_mfmas(kap)
        gaps = [[] for _ in mf]
        nx = kap + 2
        if nx < 16:
            if nx % 2 == 0:
                u = nx >> 1
                need = [('x', u >> 1), ('w', u)]
                while any(it.ins.vmtag in need for it in Q.q):
                    n_ = len(Q.q); weave(sg, Q, [], 1, 0); assert len(Q.q) < n_, (u, Q.q[0].after)
                while True:
                    younger = 0
                    for tg, _w in reversed(sg.vm):
                        if tg in need: break
                        younger += 1
                    n_ = len(Q.q)
                    if younger >= int(opt.la): break
                    weave(sg, Q, [], 1, 0)
                    if len(Q.q) == n_: break
                dr = str(u) in str(opt.drain)
                sg.add(barrier(needvm=need, lg0=dr)); Q.mark(f'B{u}')
                if dr: Q.mark(f'B{u+1}')
                if u in (1, 3, 5, 7): stamp(sg, 5 + u // 2, 'A')
            for i, r in enumerate(a_reads(nx)): gaps[i].append(r)
        mf[0].r |= set(R('v', AF(kap)[0], 20) + R('v', AF(kap)[1], 8))
        pos = [1, 5, 9] if kap % 2 == 0 else [3, 7]
        if int(opt.perstep) == 6: pos = [1, 4, 7] if kap % 2 == 0 else [1, 4, 8]
        if int(opt.perstep) == 7: pos = [1, 4, 6, 9] if kap % 2 == 0 else [2, 5, 8]
        if int(opt.perstep) == 8: pos = [1, 4, 6, 9]
        nkv = sum(1 for it in Q.q if it.ins.vmtag[0] in 'kv')
        room = int(opt.alim) - (128 - nkv) + (len(Q.q) - nkv)
        place(gaps, Q, pos[:max(0, room)])
        if int(opt.aonly): sg.addall([x for x in interleave(mf, gaps) if x.k not in ('mfma', 'dsrd')])
        else: sg.addall(interleave(mf, gaps))
    def qfin(q, e, packed):
        b = V_QACC + (e * 5 + q) * 4
        if packed: f_ = [V(f"v_pk_mul_f32 v[{b+r}:{b+r+1}], v[{b+r}:{b+r+1}], s[{S_T1}:{S_T1+1}]", [b+r, b+r+1], [b+r, b+r+1]) for r in (0, 2)]
        else: f_ = [V(f"v_mul_f32 v{b+r}, s{S_T1}, v{b+r}", [b+r], [b+r]) for r in range(4)]
        f_.append(V(f"v_cvt_pk_bf16_f32 v{b}, v{b}, v{b+1}", [b, b+1], [b]))
        f_.append(V(f"v_cvt_pk_bf16_f32 v{b+1}, v{b+2}, v{b+3}", [b+2, b+3], [b+1]))
        f_.append(dswr('ds_write_b64', V_QW + e, ('v', b), 2, q * 4096, lgtag='qw'))
        return f_
    todo = [(q, e) for q in range(5) for e in range(2)]
    if int(opt.aq):
        m14, m15 = a_mfmas(14), a_mfmas(15)
        m14[0].r |= set(R('v', AF(14)[0], 20) + R('v', AF(14)[1], 8))
        mf = flat([[m14[k], m15[k]] for k in range(10)])
        gaps = [[] for _ in mf]
        gi = 5
        while todo and gi + 3 <= 19:
            f_ = qfin(*todo.pop(0), False)
            gaps[gi] += f_[0:2]; gaps[gi + 1] += f_[2:4]; gaps[gi + 2] += f_[4:6]; gaps[gi + 3] = [f_[6]] + gaps[gi + 3]
            gi += 3
        nkv = sum(1 for it in Q.q if it.ins.vmtag[0] in 'kv')
        place(gaps, Q, [1, 4][:max(0, int(opt.alim) - (128 - nkv))])
        sg.addall(interleave(mf, gaps))
    stamp(sg, 9, 'A')
    for q, e in todo: sg.addall(qfin(q, e, True))
    while any(it.ins.vmtag in (('k', 0, 0), ('k', 0, 1)) for it in Q.q): weave(sg, Q, [], 1, 0)
    b = barrier(lg0=False); b.needlg = ('qw',)
    sg.addall(k_reads(0)); Q.mark(('kr', 0, 0)); Q.mark(('kr', 0, 1))
    sg.add(b); Q.mark('BQ'); Q.mark('B8')
    qr = [dsrd('ds_read_b128', AQ(q, s), 4, V_XB + s, QBUF - 120 * KB + q * 4096) for q in range(5) for s in range(4)]
    return qr

def TQ(tau):
    return divmod(tau, 5) if tau < 30 else (6 + ((tau - 30) & 1), (tau - 30) >> 1)
def qk(tau):
    i, q = TQ(tau)
    o = []
    for s, t in ([(s, t) for t in range(2) for s in range(4)] if int(opt.chain) else [(s, t) for s in range(4) for t in range(2)]):
        if True:
            d = ('v', V_S + (tau & 1) * 8 + t * 4)
            o.append(mfma(d, KF(i, t * 4 + s), AQ(q, s), ('v', V_NEGM + q * 4) if s == 0 else d))
            if s == 0 and int(opt.coal) and tau > 4: o[-1].r |= set(R(*KF(i, t * 4), 16))
    return o
def pv(tau):
    i, q = TQ(tau)
    p = ('v', V_P + (tau & 1) * 4)
    o = [mfma(AO(lam, q), ('v', V_VF + (i & 1) * 32 + lam * 4), p, AO(lam, q) if i else 0) for lam in range(8)]
    if int(opt.coal) and 0 < i < 7: o[0].r |= set(R('v', V_VF + (i & 1) * 32, 24)); o[5].r |= set(R('v', V_VF + (i & 1) * 32 + 24, 8))
    o.insert(0, mfma(LA(q), ('v', V_ONES), p, LA(q) if i else 0))
    return o
def sm(tau):
    b = V_S + (tau & 1) * 8
    p = V_P + (tau & 1) * 4
    e = [T(f"v_exp_f32 v{b+i}, v{b+i}", [b+i], [b+i]) for i in range(8)]
    c = [V(f"v_cvt_pk_bf16_f32 v{p+i}, v{b+2*i}, v{b+2*i+1}", [b+2*i, b+2*i+1], [p+i]) for i in range(4)]
    return e, c
def comb_writes(q):
    o = []
    for jd in range(1, 4):
        for e in range(2):
            u = q * 6 + (jd - 1) * 2 + e
            row = u >> 3
            o.append(dswr('ds_write_b128', V_CW + (row >> 1), AO(2 * jd + e, q), 4, (row & 1) * 32 * KB + (u & 7) * KB, lgtag=('cw', q)))
    o.insert(0, dswr('ds_write_b32', V_LW, LA(q), 1, [0, 4, 16, 20, 24][q], lgtag=('cw', q)))
    return o

def wo_dma(pos, after=None):
    o = []
    for ks in range(4):
        for half in range(2):
            base = (128 * KB if pos < 0 else pos * 32 * KB) + ks * 8 * KB + half * 4 * KB
            if pos < 0:
                pre = [S(f"s_lshl_b32 s{S_SK}, s{S_J}, 17", [S_J], [S_SK])] if ks + half == 0 else []
                h = S_SK
            else: pre, h = [], S_H + pos
            pre += [S(f"s_add_u32 s{S_SO}, s{h}, {ks*32768 + half*16384}", [h], [S_SO]), S(f"s_add_u32 m0, s{S_W1K}, {base}", [S_W1K], [M0])]
            o.append(Item(pre, dma(V_WOD, S_WO, S_SO, 0, ('wo', pos)), after))
    return o
def osib_dma(pos):
    o = []
    for q in range(5):
        pre = [S(f"s_lshr_b32 s{S_SK}, s{S_H+pos}, 5", [S_H+pos], [S_SK])] if q == 0 else []
        pre += [S(f"s_add_u32 s{S_SO}, s{S_SK}, {q*128*KB}", [S_SK], [S_SO]), S(f"s_add_u32 m0, s{S_W5K}, {(140 - 20*pos + q)*KB}", [S_W5K], [M0])]
        o.append(Item(pre, dma(V_OD, S_O, S_SO, 0, ('os', pos), flags=' sc1')))
    return o
def tail_calc():
    o = []; a = o.append
    T0, T1, T2 = 252, 253, 254
    a(V(f"v_lshlrev_b32 v{T0}, 4, v{V_LANE}", [V_LANE], [T0]))
    for jd in range(1, 4):
        a(S(f"s_sub_u32 s{S_T0}, s{S_W}, {jd}", [S_W], [S_T0]))
        a(S(f"s_and_b32 s{S_T0}, s{S_T0}, 3", [S_T0], [S_T0]))
        a(S(f"s_lshl_b32 s{S_T0}, s{S_T0}, 13", [S_T0], [S_T0]))
        a(V(f"v_add_u32 v{V_CR+2*(jd-1)}, s{S_T0}, v{T0}", [T0, ('s', S_T0)], [V_CR+2*(jd-1)]))
        a(V(f"v_add_u32 v{V_CR+2*(jd-1)+1}, {64*KB}, v{V_CR+2*(jd-1)}", [V_CR+2*(jd-1)], [V_CR+2*(jd-1)+1]))
    a(V(f"v_add_u32 v{V_OL}, {96*KB}, v{T0}", [T0], [V_OL]))
    a(V(f"v_add_u32 v{V_OW}, s{S_W5K}, v{V_OL}", [V_OL, ('s', S_W5K)], [V_OW]))
    a(S(f"s_mov_b32 s{S_T0}, {102*KB}", [], [S_T0]))
    a(V(f"v_lshl_add_u32 v{V_LR}, v{V_N}, 5, s{S_T0}", [V_N, ('s', S_T0)], [V_LR]))
    a(S(f"s_add_u32 s{S_T0}, s{S_W8K}, {64*KB}", [S_W8K], [S_T0]))
    for e in range(2):
        a(V(f"v_subrev_u32 v{V_WT+e}, s{S_T0}, v{V_VA+e}", [V_VA+e, ('s', S_T0)], [V_WT+e]))
        a(V(f"v_add_u32 v{V_WT+2+e}, {64*KB}, v{V_WT+e}", [V_WT+e], [V_WT+2+e]))
        a(V(f"v_add_u32 v{V_WT+4+e}, {128*KB}, v{V_WT+e}", [V_WT+e], [V_WT+4+e]))
    if int(opt.dtch_at) < 99:
        a(V(f"v_lshrrev_b32 v{T1}, 3, v{V_LANE}", [V_LANE], [T1]))
        a(V(f"v_min_u32 v{T1}, 4, v{T1}", [T1], [T1]))
        a(V(f"v_and_b32 v{T2}, 7, v{V_LANE}", [V_LANE], [T2]))
        a(V(f"v_lshlrev_b32 v{T2}, 7, v{T2}", [T2], [T2]))
        a(V(f"v_sub_u32 v{T2}, v{T2}, v{T0}", [T2, T0], [T2]))
        a(V(f"v_lshl_add_u32 v66, v{T1}, 17, v{T2}", [T1, T2], [66]))
        a(V(f"v_add_u32 v66, v66, v{V_OST}", [66, V_OST], [66]))
        a(V(f"v_lshl_add_u32 v67, v{T1}, 13, v{T2}", [T1, T2], [67]))
        a(V(f"v_add_u32 v67, v67, v{V_PS}", [67, V_PS], [67]))
    for k in range(5): a(S(f"s_mov_b32 s{S_TAB+k}, {k*8192}", [], [S_TAB+k]))
    return o
def handoff_calc():
    o = []; a = o.append
    T0, T1, T2, T3 = 252, 253, 254, 9
    a(S(f"s_lshl_b32 s{S_T0}, s{S_J}, 12", [S_J], [S_T0]))
    a(V(f"v_subrev_u32 v{V_OD}, s{S_T0}, v{V_OST}", [V_OST, ('s', S_T0)], [V_OD]))
    a(S(f"s_lshl_b32 s{S_T0}, s{S_B}, 2", [S_B], [S_T0]))
    a(S(f"s_add_u32 s{S_T0}, s{S_T0}, s{S_J}", [S_T0, S_J], [S_T0]))
    a(S(f"s_mul_i32 s{S_T0}, s{S_T0}, {20*8*KB}", [S_T0], [S_T0]))
    a(S(f"s_mul_i32 s{S_T1}, s{S_W}, {5*8*KB}", [S_W], [S_T1]))
    a(S(f"s_lshl_b32 s{S_T2}, s{S_HKV}, 10", [S_HKV], [S_T2]))
    a(S(f"s_add_u32 s{S_T2}, s{S_T2}, s{S_T1}", [S_T2, S_T1], [S_T2]))
    a(S(f"s_add_u32 s{S_T2}, s{S_T2}, s{S_T0}", [S_T2, S_T0], [S_T2]))
    a(V(f"v_lshl_add_u32 v{V_PS}, v{V_LANE}, 4, s{S_T2}", [V_LANE, ('s', S_T2)], [V_PS]))
    tr = int(opt.otr)
    if tr:
        a(S(f"s_mul_i32 s{S_T1}, s{S_HKV}, 160", [S_HKV], [S_T1]))
        a(V(f"v_add_u32 v{T0}, s{S_T1}, v0", [0, ('s', S_T1)], [T0]))
    else:
        a(S(f"s_lshl_b32 s{S_T1}, s{S_HKV}, 2", [S_HKV], [S_T1]))
        a(S(f"s_add_u32 s{S_T1}, s{S_T1}, s{S_W}", [S_T1, S_W], [S_T1]))
        a(S(f"s_mul_i32 s{S_T1}, s{S_T1}, 40", [S_T1], [S_T1]))
        a(V(f"v_add_u32 v{T0}, s{S_T1}, v{V_LANE}", [V_LANE, ('s', S_T1)], [T0]))
    if int(opt.pairw):
        a(V(f"v_lshrrev_b32 v{T1}, 6, v{T0}", [T0], [T1]))
        a(V(f"v_cmp_lt_u32 vcc, 9, v{T1}", [T1], [VCC]))
        a(V(f"v_bfe_u32 v{T2}, v{T0}, 5, 1", [T0], [T2]))
        a(V(f"v_mul_u32_u24 v{T2}, 10, v{T2}", [T2], [T2]))
        a(V(f"v_add_u32 v{T1}, v{T1}, v{T2}", [T1, T2], [T1]))
        a(V(f"v_cndmask_b32 v{T2}, 0, 10, vcc", [VCC], [T2]))
        a(V(f"v_add_u32 v{T1}, v{T1}, v{T2}", [T1, T2], [T1]))
        a(V(f"v_and_b32 v{T0}, 31, v{T0}", [T0], [T0]))
        a(V(f"v_lshl_add_u32 v{T0}, v{T1}, 5, v{T0}", [T1, T0], [T0]))
    a(V(f"v_bfe_u32 v{T1}, v{T0}, 5, 1", [T0], [T1]))
    a(V(f"v_and_b32 v{T2}, 7, v{T0}", [T0], [T2]))
    a(V(f"v_lshl_add_u32 v{T1}, v{T1}, 3, v{T2}", [T1, T2], [T1]))
    a(V(f"v_bfe_u32 v{T2}, v{T0}, 3, 2", [T0], [T2]))
    a(V(f"v_lshrrev_b32 v{T0}, 6, v{T0}", [T0], [T0]))
    a(V(f"v_lshl_add_u32 v{T3}, v{T2}, 4, v{T1}", [T1, T2], [T3]))
    a(V(f"v_lshl_add_u32 v{V_PLD}, v{T3}, 4, s{S_T0}", [T3, ('s', S_T0)], [V_PLD]))
    a(V(f"v_lshl_add_u32 v{V_PLD}, v{T0}, 13, v{V_PLD}", [T0, V_PLD], [V_PLD]))
    a(V(f"v_mul_u32_u24 v{T3}, 52, v{T0}", [T0], [T3]))
    a(V(f"v_lshrrev_b32 v{T3}, 8, v{T3}", [T3], [T3]))
    if tr:
        a(V(f"v_and_b32 v{T1}, 8, v{T1}", [T1], [T1]))
        a(V(f"v_bfe_u32 v{T2}, v0, 2, 3", [0], [T2]))
        a(V(f"v_add_u32 v{T1}, v{T1}, v{T2}", [T1, T2], [T1]))
        a(V(f"v_and_b32 v{T2}, 3, v0", [0], [T2]))
    a(V(f"v_lshlrev_b32 v{T2}, {4 if tr else 3}, v{T2}", [T2], [T2]))
    a(V(f"v_lshl_add_u32 v{T2}, v{T3}, 6, v{T2}", [T3, T2], [T2]))
    a(V(f"v_lshl_add_u32 v{T2}, v{T1}, 10, v{T2}", [T1, T2], [T2]))
    a(V(f"v_mul_u32_u24 v{T3}, 5, v{T3}", [T3], [T3]))
    a(V(f"v_sub_u32 v{T0}, v{T0}, v{T3}", [T0, T3], [T0]))
    a(V(f"v_lshl_add_u32 v{T2}, v{T0}, 14, v{T2}", [T0, T2], [T2]))
    a(S(f"s_mul_i32 s{S_T0}, s{S_B}, 81920", [S_B], [S_T0]))
    a(S(f"s_lshl_b32 s{S_T2}, s{S_J}, 8", [S_J], [S_T2]))
    a(S(f"s_add_u32 s{S_T0}, s{S_T0}, s{S_T2}", [S_T0, S_T2], [S_T0]))
    a(V(f"v_add_u32 v{V_OUT}, s{S_T0}, v{T2}", [T2, ('s', S_T0)], [V_OUT]))
    a(V(f"v_cmp_gt_u32 vcc, 160, v0", [0], [VCC]) if tr else V(f"v_cmp_gt_u32 vcc, 40, v{V_LANE}", [V_LANE], [VCC]))
    a(V(f"v_mov_b32 v{T0}, 0x7ff00000", [], [T0]))
    a(V(f"v_cndmask_b32 v{V_PLD}, v{T0}, v{V_PLD}, vcc", [T0, V_PLD, VCC], [V_PLD]))
    a(V(f"v_cndmask_b32 v{V_OUT}, v{T0}, v{V_OUT}, vcc", [T0, V_OUT, VCC], [V_OUT]))
    for pv_, n_, sh, sg_ in ((V_P1, 4, 9, S_G1), (V_P2, 8, 11, S_G2)):
        a(V(f"v_lshl_add_u32 v{pv_}, v{V_LANE}, {sh}, s{sg_}", [V_LANE, ('s', sg_)], [pv_]))
        a(V(f"v_cmp_gt_u32 vcc, {n_}, v{V_LANE}", [V_LANE], [VCC]))
        a(V(f"v_cndmask_b32 v{pv_}, v{T0}, v{pv_}, vcc", [T0, pv_, VCC], [pv_]))
    return o
def wod_calc():
    o = []; a = o.append
    T0, T1 = 252, 253
    a(S(f"s_lshl_b32 s{S_T0}, s{S_B}, 2", [S_B], [S_T0]))
    a(S(f"s_add_u32 s{S_T0}, s{S_T0}, s{S_W}", [S_T0, S_W], [S_T0]))
    a(S(f"s_lshl_b32 s{S_T0}, s{S_T0}, 14", [S_T0], [S_T0]))
    a(S(f"s_lshl_b32 s{S_T2}, s{S_J}, 8", [S_J], [S_T2]))
    a(S(f"s_add_u32 s{S_T0}, s{S_T0}, s{S_T2}", [S_T0, S_T2], [S_T0]))
    a(V(f"v_bfe_u32 v{T0}, v{V_LANE}, 1, 4", [V_LANE], [T0]))
    a(V(f"v_and_b32 v{T1}, 1, v{V_LANE}", [V_LANE], [T1]))
    a(V(f"v_lshlrev_b32 v{T1}, 7, v{T1}", [T1], [T1]))
    a(V(f"v_lshl_add_u32 v{T0}, v{T0}, 10, v{T1}", [T0, T1], [T0]))
    a(V(f"v_add_u32 v{V_TCH}, s{S_T0}, v{T0}", [T0, ('s', S_T0)], [V_TCH]))
    a(S(f"s_and_b32 s{S_T0}, s{S_W}, 1", [S_W], [S_T0]))
    a(S(f"s_lshl_b32 s{S_T0}, s{S_T0}, 3", [S_T0], [S_T0]))
    a(V(f"v_lshl_add_u32 v{T0}, v{V_G}, 1, s{S_T0}", [V_G, ('s', S_T0)], [T0]))
    a(V(f"v_xor_b32 v{T0}, v{V_N}, v{T0}", [V_N, T0], [T0]))
    a(S(f"s_lshl_b32 s{S_T0}, s{S_J}, 8", [S_J], [S_T0]))
    a(V(f"v_lshl_add_u32 v{T0}, v{T0}, 4, s{S_T0}", [T0, ('s', S_T0)], [T0]))
    a(V(f"v_lshl_add_u32 v{T1}, s{S_W}, 2, v{V_G}", [V_G, ('s', S_W)], [T1]))
    a(V(f"v_lshl_add_u32 v{V_WOD}, v{T1}, 10, v{T0}", [T0, T1], [V_WOD]))
    return o

def phase_b(sg, Q, qr):
    NT = 8
    calc = wod_calc() + tail_calc()
    sg.addall(qr[:4])
    qr = qr[4:]
    for tau in range(-1, 40):
        i, q = divmod(tau, 5) if tau >= 0 else (-1, 4)
        mf = []
        bst = [int(x) for x in opt.bst.split(',')]
        if tau in bst: stamp(sg, 5 + bst.index(tau), 'B')
        if tau + 1 < 40: mf += qk(tau + 1)
        if tau - 1 >= 0: mf += pv(tau - 1)
        ds, marks = [], []
        if tau == -1: ds = qr
        elif tau == 0: ds = v_reads(0); marks = [('vr', 0, 0), ('vr', 0, 1)]
        elif tau < 27:
            if q == 2: ds = k_reads(i + 1)[:4]; marks = [('kr', i + 1, 0)]
            if q == 3: ds = k_reads(i + 1)[4:] + v_reads(i + 1)[:2]; marks = [('kr', i + 1, 1)]
            if q == 4: ds = v_reads(i + 1)[2:8]; marks = [('vr', i + 1, 0)]
            if q == 0: ds = v_reads(i)[8:14]
            if q == 1 and i > 0: ds = v_reads(i)[14:]; Q.mark(('vr', i, 1))
        xp = None
        if tau >= 27:
            k6, k7, v6, v7 = k_reads(6), k_reads(7), v_reads(6), v_reads(7)
            vo = [v7[l + 8 * h] for l in range(8) for h in range(2)]
            G = [1, 3, 5, 7, 9, 11, 13, 15, 16]
            def cwp(q_, second):
                w_ = comb_writes(q_)
                if int(opt.w64) and q_ < 2:
                    h_ = []
                    for x in w_[1:]:
                        m_ = re.match(r"ds_write_b128 v(\d+), a\[(\d+):\d+\] offset:(\d+)", x.t)
                        for z in range(2): h_.append(dswr('ds_write_b64', int(m_.group(1)), ('a', int(m_.group(2)) + 2 * z), 2, int(m_.group(3)) + 8 * z, lgtag=x.lgtag))
                    return list(zip([1, 3, 5, 9, 13, 16], h_[6:])) if second else list(zip([7, 1, 3, 5, 9, 13, 16], [w_[0]] + h_[:6]))
                return list(zip([1, 9, 13], w_[4:])) if second else list(zip([7, 1, 9, 13], w_[:4]))
            xp = {27: list(zip([3, 5, 9, 11, 15, 16], k6[:4] + v6[:2])),
                  28: list(zip([1, 3, 5, 7, 9, 11, 13, 15, 16], k6[4:] + k7[:5])),
                  29: list(zip(G, k7[5:] + v6[2:8])),
                  30: list(zip([1, 3, 5, 7, 9, 11, 13, 15, 16, 16], v6[8:] + vo[:2])),
                  31: list(zip([1, 1, 3, 5, 5, 7, 9, 9, 11, 13, 13, 15, 16, 16], vo[2:])),
                  32: [], 33: cwp(0, 0), 34: cwp(0, 1), 35: cwp(1, 0), 36: cwp(1, 1), 37: cwp(2, 0),
                  38: cwp(2, 1) + list(zip([3, 5, 5, 7, 11, 15, 16, 16], lreads((0, 1)) + preads(0)[:4])),
                  39: list(zip([0, 2, 4, 6], comb_writes(3)[:4])) + list(zip([1, 1, 3, 3, 5, 5, 7, 7], preads(0)[4:] + preads(1)))}[tau]
            if int(opt.x1e) and tau >= 36:
                xp = {36: list(zip([1, 5, 9], comb_writes(1)[4:])),
                      37: cwp(2, 0) + list(zip([3, 5, 11, 15, 16, 16], preads(0))),
                      38: cwp(2, 1) + list(zip([3, 5, 5, 7, 11, 15, 16, 16], lreads((0, 1)) + preads(1)[:4])),
                      39: list(zip([1, 3, 5, 7], comb_writes(3)[:4])) + list(zip([0, 8], preads(1)[4:]))}[tau]
            ds = [x for _, x in xp]; marks = []
            if tau == (37 if int(opt.x1e) else 38):
                b = barrier(needvm=[('wo', -1)], lg0=False); b.needlg = (('cw', 0), ('cw', 1)); sg.add(b)
        n = len(mf)
        gaps = [[] for _ in range(n)]
        e, c = sm(tau) if 0 <= tau < 40 else ([], [])
        if n == 17:
            epos = [0, 2, 4, 6, 8, 10, 12, 14]; cpos = [3, 7, 11, 15]
            dpos = [1, 3, 5, 7, 9, 11, 13, 15] if len(ds) > 4 else [1, 3, 5, 7]
            if ds and ds[0].k == 'dswr': dpos = [1, 1, 3, 7, 9, 13, 16]
            vpos = [1, 5, 9, 13] if (tau < int(opt.even_at) or q == 1) else [1, 7, 13]
            if int(opt.bsched) and not (ds and ds[0].k == 'dswr'):
                if q == 1: dpos, vpos = [1, 3], [5, 9, 13, 16]
                elif tau < int(opt.even_at) or tau >= int(opt.even_end): dpos, vpos = ([3, 7, 11, 15, 16, 16] if q != 3 else [1, 3, 7, 11, 15, 16]), ([1, 5, 9, 13] if q != 3 else [5, 9, 13, 16])
                else: dpos, vpos = [3, 5, 9, 11, 15, 16], [1, 7, 13]
        else:
            epos = list(range(8)); cpos = [min(n - 1, x) for x in (2, 4, 6, 8)]
            dpos = [(k * n) // max(1, len(ds)) for k in range(len(ds))]
            vpos = [1, 5]
        if xp is not None:
            dpos = [g_ for g_, _ in xp]; vpos = [int(x) for x in opt.wpos.split(',')] if tau >= 32 else [13]
            if tau == 27: vpos = [1, 7, 13]
        for x, p_ in zip(ds, dpos): gaps[p_].append(x)
        if tau == int(opt.nl_at):
            sg.add(V("v_mov_b32 v9, 0", [], [9]))
            Q.q.insert(0, Item([], vload(('v', V_GC), 2, 9, S_D, None, 0, flags=' sc1', tag='non')))
        if tau == int(opt.nc_at):
            assert not any(it.ins.vmtag == 'non' for it in Q.q)
            sg.add(V(f"v_readfirstlane_b32 s{S_NON}, v{V_GC}", [V_GC], [('s', S_NON)]))
            sg.add(V(f"v_readfirstlane_b32 s{S_NON+1}, v{V_GC+1}", [V_GC+1], [('s', S_NON+1)]))
            sg.add(S(f"s_cmp_eq_u64 s[{S_NON}:{S_NON+1}], 0", [S_NON, S_NON+1], []))
            sg.text("s_cbranch_scc1 L_spin_n"); sg.text("L_back_n:")
        if tau == 32: stamp_out(sg, 1) if opt.stamps == 'Z' else None
        if tau == int(opt.bar_at): sg.add(barrier(lg0=False))
        for x in ds:
            while any(it.ins.vmtag in x.needvm for it in Q.q): weave(sg, Q, [], 1, 0)
        if tau == int(opt.tch_at): Q.push([Item([], vload(('v', V_TCH + 1), 1, V_TCH, S_WO, None, 0, flags=opt.tch_flags))])
        if tau == int(opt.tlb_at):
            Q.push([Item([], vload(('v', 72), 1, V_ZERO, S_C, S_F1, 0, flags=' sc1')), Item([], vload(('v', 73), 1, V_ZERO, S_C, S_F2, 0, flags=' sc1'))])
        if tau == int(opt.cpf2_at):
            for x in ["s_getpc_b64 s[94:95]", "L_pc2:", "s_lshr_b32 s92, s2, 3", f"s_lshl_b32 s92, s92, 2", f"s_add_u32 s92, s92, s{S_W}", "s_lshl_b32 s92, s92, 7",
                      f"s_add_u32 s92, s92, {int(opt.cpf2_skip)}", "s_min_u32 s92, s92, (L_code_end - L_pc2 - 4) & 0xffffff80", "v_mov_b32 v74, s92", "global_load_dword v255, v74, s[94:95]"]: sg.text(x)
        if tau == int(opt.dtch_at):
            assert not calc
            Q.push(([Item([], vload(('v', 74), 1, 66, S_O, None, 0, flags=opt.dtch_flags))] if 'o' in opt.dtch else []) + ([Item([], vload(('v', 75), 1, 67, S_WT, None, 0, flags=opt.dtch_flags))] if 'p' in opt.dtch else []))
        if tau == int(opt.otch_at): Q.push([Item([], vload(('v', 66), 1, V_OUT, S_OUT, None, 0, flags=opt.otch_flags))])
        if tau == int(opt.wo_at): assert not calc; Q.push(wo_dma(-1))
        place(gaps, Q, vpos)
        for x, p_ in zip(e, epos): gaps[p_].append(x)
        for x, p_ in zip(c, cpos): gaps[p_].append(x)
        if tau >= int(opt.calc_at) and n == 17:
            for gi in range(17):
                if calc and calc[0].k == 'salu' and not any(y.k == 'salu' for y in gaps[gi]): gaps[gi].insert(0, calc.pop(0))
                cost = sum(8 if y.k == 'trans' else 0 if y.k == 'salu' else 4 for y in gaps[gi])
                while calc and calc[0].k != 'salu' and cost <= 4: gaps[gi].append(calc.pop(0)); cost += 4
        sg.addall(interleave(mf, gaps))
        for m in marks: Q.mark(m)

def poll(sg, lab, vaddr):
    sg.text(f"s_mov_b32 s{S_SPIN}, {opt.spin}")
    sg.text(f"{lab}:")
    sg.text(f"buffer_load_dwordx2 v[250:251], v{vaddr}, s[{S_C}:{S_C+3}], 0 offen sc1")
    sg.text(f"s_sub_u32 s{S_SPIN}, s{S_SPIN}, 1")
    sg.text("s_waitcnt vmcnt(0)")
    sg.text(f"v_cmp_ne_u64 vcc, s[{S_NON}:{S_NON+1}], v[250:251]")
    sg.text(f"s_cmp_eq_u32 s{S_SPIN}, 0")
    sg.text(f"s_cbranch_scc1 {lab}_done")
    sg.text("s_nop 2")
    sg.text(f"s_cbranch_vccnz {lab}")
    sg.text(f"{lab}_done:")
    sg.vm = []
def raise_flag(sg, stage, tag):
    ins = vstore(('v', V_GC), 2, V_P1 if stage == 1 else V_P2, S_C, None, 0, flags=' sc1')
    ins.needvm = (tag,)
    sg.add(ins)
WOF = A_Q
RES = 100
def part(q, k):
    if q == 0: return 36 + 4 * k if k < 4 else 64 + 4 * (k - 4)
    return {1: 100, 2: 164, 3: 188, 4: 100}[q] + 4 * k
def preads(q):
    o = []
    for jd in range(1, 4):
        for e in range(2):
            k = (jd - 1) * 2 + e; u = q * 6 + k; row = u >> 3
            o.append(dsrd('ds_read_b128', ('v', part(q, k)), 4, V_CR + 2 * (jd - 1) + (row >> 1), (row & 1) * 32 * KB + (u & 7) * KB))
    return o
LSA, LSB = 124, 76
def lreads(qs):
    if qs == (0, 1): return [dsrd('ds_read_b64', ('v', LSA + src * 2), 2, V_LR, src * 8 * KB) for src in range(4)]
    if qs == (2, 3): return [dsrd('ds_read_b64', ('v', LSB + src * 4), 2, V_LR, src * 8 * KB + 16) for src in range(4)]
    if qs == (4,): return [dsrd('ds_read_b32', ('v', LSB + src * 4 + 2), 1, V_LR, src * 8 * KB + 24) for src in range(4)]
    return [dsrd('ds_read_b128', ('v', LSB + src * 4), 4, V_LR, src * 8 * KB + 16) for src in range(4)]
def lsum(qs):
    w = []
    def lr(src, q): return LSA + src * 2 + q if q < 2 else LSB + src * 4 + q - 2
    LS = lr(0, qs[0])
    for q in qs:
        d = V_T0 + q
        w.append(V(f"v_add_f32 v{d}, v{lr(0,q)}, v{lr(1,q)}", [lr(0,q), lr(1,q)], [d]))
        w.append(V(f"v_add_f32 v{lr(2,q)}, v{lr(2,q)}, v{lr(3,q)}", [lr(2,q), lr(3,q)], [lr(2,q)]))
        w.append(V(f"v_add_f32 v{d}, v{d}, v{lr(2,q)}", [d, lr(2,q)], [d]))
    lo_, hi_ = LS, LS + 1
    if len(qs) == 1: lo_ = hi_ = V_T0 + qs[0]
    else:
        a_, b_, c_ = V_T0 + qs[0], V_T0 + qs[1], V_T0 + qs[-1]
        w.append(V(f"v_min3_f32 v{LS}, v{a_}, v{b_}, v{c_}", [a_, b_, c_], [LS]))
        w.append(V(f"v_add_f32 v{LS+1}, v{a_}, v{b_}", [a_, b_], [LS+1]))
        if len(qs) == 3: w.append(V(f"v_add_f32 v{LS+1}, v{LS+1}, v{c_}", [LS+1, c_], [LS+1]))
    w.append(V(f"v_cmp_nle_f32 vcc, {f2h(2.0**int(opt.lo_exp))}, v{lo_}", [lo_], [VCC]))
    w.append(S(f"s_mov_b64 s[{S_EX}:{S_EX+1}], vcc", [VCC], [S_EX, S_EX+1]))
    w.append(V(f"v_cmp_nge_f32 vcc, {f2h(2.0**int(opt.hi_exp))}, v{hi_}", [hi_], [VCC]))
    w.append(S(f"s_or_b64 vcc, vcc, s[{S_EX}:{S_EX+1}]", [VCC, S_EX, S_EX+1], [VCC]))
    w.append(S(f"s_and_b64 vcc, vcc, s[{S_GM}:{S_GM+1}]", [VCC], [VCC]))
    w.append(raw("s_cbranch_vccnz L_redo"))
    for q in qs: w.append(T(f"v_rcp_f32 v{V_T0+q}, v{V_T0+q}", [V_T0+q], [V_T0+q]))
    return w
def finish(q):
    w = []
    for e in range(2):
        o_ = V_OWN[q] + e * 4
        for jd in range(1, 4):
            p_ = part(q, (jd - 1) * 2 + e)
            for r in (0, 2):
                w.append(V(f"v_pk_add_f32 v[{o_+r}:{o_+r+1}], v[{o_+r}:{o_+r+1}], v[{p_+r}:{p_+r+1}]", [o_+r, o_+r+1, p_+r, p_+r+1], [o_+r, o_+r+1]))
    o_ = V_OWN[q]
    ri = V_T0 + (q & ~1); sel = "op_sel:[0,1] op_sel_hi:[1,1]" if q & 1 else "op_sel:[0,0] op_sel_hi:[1,0]"
    for r in range(0, 8, 2):
        w.append(V(f"v_pk_mul_f32 v[{o_+r}:{o_+r+1}], v[{o_+r}:{o_+r+1}], v[{ri}:{ri+1}] {sel}", [o_+r, o_+r+1, V_T0+q], [o_+r, o_+r+1]))
    for r in range(4):
        w.append(V(f"v_cvt_pk_bf16_f32 v{o_+r}, v{o_+2*r}, v{o_+2*r+1}", [o_+2*r, o_+2*r+1], [o_+r]))
    w.append(S(f"s_mov_b32 s{S_SV}, {q*128*KB}", [], [S_SV]))
    w.append(vstore(('v', o_), 4, V_OST, S_O, S_SV, 0, flags=opt.o_flags, tag='ost'))
    return w
def wor():
    return [dsrd('ds_read_b64_tr_b16', ('a', WOF + (ks * 2 + e) * 4 + h * 2), 2, V_WT + 4 + e, ks * 8 * KB + h * 4096) for ks in range(4) for e in range(2) for h in range(2)]
def combine(sg, Q):
    assert not Q.q
    mf = pv(39); gaps = [[] for _ in mf]
    wr = comb_writes(3)[4:]; ls = lsum((0, 1))
    for k, x in enumerate(wr): gaps[3 * k].append(x)
    k = 0
    for gi in range(9):
        n_ = 2 - len(gaps[gi])
        while ls and (n_ > 0 or ls[0].k == 'salu') and gi < 9:
            x = ls.pop(0); gaps[gi].append(x)
            n_ -= 0 if x.k == 'salu' else 2 if x.k == 'trans' else 1
    sg.addall(interleave(mf, gaps))
    stamp(sg, 4)
    if int(opt.c3):
        sg.addall(ls + finish(0))
        b = barrier(lg0=False); b.needlg = (('cw', 2), ('cw', 3)); sg.add(b)
        w4 = comb_writes(4)
        rd = lreads((2, 3)) + preads(2) + preads(3)
        for k in range(len(rd)):
            sg.add(rd[k])
            if k % 3 == 1 and w4: sg.add(w4.pop(0))
        w = finish(1) + lsum((2, 3)) + finish(2)
        for k, x in enumerate(w4): w.insert(4 + 8 * k, x)
        sg.addall(w)
        sg.add(barrier())
        stamp(sg, 5)
        Q.push(wo_dma(0))
        rd = lreads((4,)) + preads(4)
        weave(sg, Q, rd, int(opt.cw), 5)
        sg.addall(rd + finish(3) + lsum((4,)) + finish(4))
        stamp(sg, 6)
        return
    w4 = comb_writes(4)
    w = ls + finish(0) + finish(1)
    for k, x in enumerate(w4): w.insert(min(len(w), 6 + k * 6), x)
    sg.addall(w)
    sg.add(barrier())
    stamp(sg, 5)
    Q.push(wo_dma(0))
    rd = lreads((2, 3, 4)) + preads(2) + preads(3)
    weave(sg, Q, rd, int(opt.cw), 2)
    sg.addall(rd)
    w = lsum((2, 3, 4)) + preads(4) + finish(2) + finish(3) + finish(4)
    if not int(opt.worlate):
        for k, x in enumerate(wor()): w.insert(30 + 3 * k, x)
    sg.addall(w)
    stamp(sg, 6)

def phase_c(sg, Q):
    a = sg.add
    ACC = 164
    a(barrier())
    stamp(sg, 5, 'D')
    for q in range(5): a(dswr('ds_write_b128', V_OW, ('v', V_OWN[q]), 4, q * KB))
    Q.push(wo_dma(1) + wo_dma(2))
    wr_ = wor() if int(opt.worlate) else []
    weave(sg, Q, wr_, int(opt.shadow), 3)
    sg.addall(wr_)
    stamp(sg, 6, 'D')
    a(barrier())
    def CF(k): return [(100, 120), (64, 84), (204, 36)][k % 3]
    def c_reads(k):
        pos, ks = divmod(k, 4); pos -= 1
        xf, wf = CF(k)
        ob = 0 if pos < 0 else (44 - 20 * pos) * KB
        xr = [dsrd('ds_read_b128', ('v', xf + q * 4), 4, V_OL, ob + (ks * 5 + q) * KB) for q in range(5)]
        if pos < 0: return xr
        wb = (pos * 4 + ks) * 8 * KB
        wr = [dsrd('ds_read_b64_tr_b16', ('v', wf + e * 4 + h * 2), 2, V_WT + (2 if wb >= 64 * KB else 0) + e, (wb % (64 * KB)) + h * 4096) for e in range(2) for h in range(2)]
        return wr[:2] + xr[:1] + wr[2:] + xr[1:]
    def c_mfmas(k):
        xf, wf = CF(k)
        ff = 'v'
        if k < 4: wf, ff = WOF + k * 8, 'a'
        o = []
        for q in range(5):
            for e in range(2):
                d = ('v', ACC + (q * 2 + e) * 4)
                o.append(mfma(d, (ff, wf + e * 4), ('v', xf + q * 4), 0 if k == 0 else d))
        o[0].r |= set(R('v', xf, 20) + R(ff, wf, 8))
        return o
    def step(k, nx, pos=()):
        mf = c_mfmas(k); gaps = [[] for _ in mf]
        if nx is not None:
            for i, r in enumerate(c_reads(nx)): gaps[i].append(r)
        place(gaps, Q, pos)
        sg.addall(interleave(mf, gaps))
    def own_steps():
        for k in range(4): step(k, k + 2 if k < 2 else None, [1, 5, 9] if k % 2 == 0 else [3, 7])
    sg.addall(c_reads(0)); sg.addall(c_reads(1))
    raise_flag(sg, 1, 'ost')
    stamp(sg, 7, 'D'); stamp(sg, 7)
    weave(sg, Q, [], min(len(Q.q), int(opt.pf)), 0)
    held = Q.q; Q.q = []
    stamp(sg, 8, 'D')
    t = [f"s_mov_b32 s{S_SPIN}, {opt.spin}", "L_poll1:", f"s_load_dwordx8 s[4:11], s[{S_C}:{S_C+1}], s{S_F1} glc", f"s_sub_u32 s{S_SPIN}, s{S_SPIN}, 1", "s_waitcnt lgkmcnt(0)",
         f"s_cmp_eq_u32 s{S_SPIN}, 0", "s_cbranch_scc1 L_poll1_done"]
    t += [f"s_lshl_b32 s{S_T0}, 1, s{S_J}"]
    for h in range(4): t += [f"s_cmp_eq_u64 s[{4+2*h}:{5+2*h}], s[{S_NON}:{S_NON+1}]", f"s_cselect_b32 s{S_T1}, {1 << h}, 0", f"s_or_b32 s{S_T0}, s{S_T0}, s{S_T1}"]
    t += [f"s_cmp_lg_u32 s{S_T0}, 15", "s_cbranch_scc1 L_poll1", "L_poll1_done:"]
    for x in t: sg.text(x)
    sg.lg = []
    stamp(sg, 9, 'D')
    stamp(sg, 5, 'E')
    stamp(sg, 8)
    assert all(it.ins.vmtag == ('wo', 2) for it in held)
    Q.push(osib_dma(0) + osib_dma(1) + held)
    weave(sg, Q, [], 5, 0); own_steps()
    weave(sg, Q, [], len(Q.q), 0)
    stamp(sg, 6, 'E')
    a(barrier(needvm=[('os', 0), ('wo', 0), ('wo', 1)]))
    stamp(sg, 7, 'E')
    Q.push(osib_dma(2))
    sg.addall(c_reads(4)); sg.addall(c_reads(5))
    def pfin(q):
        b = ACC + q * 8
        return [V(f"v_cvt_pk_bf16_f32 v{b+r}, v{b+2*r}, v{b+2*r+1}", [b+2*r, b+2*r+1], [b+r]) for r in range(4)] + [vstore(('v', b), 4, V_PS, S_WT, S_TAB + q, 0, flags=' sc1', tag='pst')]
    last = 16 - (2 if int(opt.qmaj) else 0)
    for k in range(4, last):
        nx = k + 2 if k + 2 < 16 else None
        if nx in (8, 12):
            assert not Q.q or nx == 8
            a(barrier(needvm=[('os', nx // 4 - 1), ('wo', nx // 4 - 1)], lg0=False))
            stamp(sg, 8 if nx == 8 else 9, 'E')
        step(k, nx, [1, 5, 9] if k % 2 == 0 else [3, 7])
    if int(opt.qmaj):
        m14, m15 = c_mfmas(14), c_mfmas(15)
        m15[0].r -= set(R('v', CF(15)[0] + 4, 16))
        mf = flat([[m14[2*q], m15[2*q], m14[2*q+1], m15[2*q+1]] for q in range(5)])
        gaps = [[] for _ in mf]
        for q in range(4):
            f_ = pfin(q)
            g0 = 4 * q + 6
            if g0 + 2 < 20:
                gaps[g0] += f_[0:2]; gaps[g0 + 1] += f_[2:4]; gaps[g0 + 2] += f_[4:]
        sg.addall(interleave(mf, gaps))
        stamp(sg, 9)
        sg.addall(pfin(3) + pfin(4))
    else:
        stamp(sg, 9)
        for q in range(5): sg.addall(pfin(q))
    a(S(f"s_mov_b32 s{S_SO}, 4096", [], [S_SO]))
    a(S(f"s_mov_b32 s{S_T1}, 0xffff0000", [], [S_T1]))
    a(S(f"s_mov_b32 s{S_SPIN}, {opt.spin}", [], [S_SPIN]))
    a(S(f"s_mov_b32 s{S_T2}, 0", [], [S_T2]))
    a(S(f"s_mov_b32 s{S_SK}, 0", [], [S_SK]))
    if int(opt.f2wg):
        a(barrier(needvm=['pst'], lg0=False))
        sg.text(f"s_cmp_lg_u32 s{S_W}, 0"); sg.text("s_cbranch_scc1 L_sig2"); raise_flag(sg, 2, 'pst'); sg.text("L_sig2:")
    else: raise_flag(sg, 2, 'pst')
    stamp(sg, 5, '2')
    if int(opt.otr):
        a(V("v_lshlrev_b32 v11, 4, v0", [0], [11]))
        a(V("v_and_b32 v10, 0xe0, v0", [0], [10])); a(V("v_lshlrev_b32 v10, 4, v10", [10], [10]))
        a(V("v_and_b32 v12, 7, v0", [0], [12])); a(V("v_lshl_add_u32 v10, v12, 6, v10", [12, 10], [10]))
        a(V("v_bfe_u32 v12, v0, 3, 2", [0], [12])); a(V("v_lshl_add_u32 v10, v12, 3, v10", [12, 10], [10]))
        sg.text(f"s_cmp_eq_u32 s{S_W}, 3"); sg.text("s_cbranch_scc1 L_fin")
    PB, SM = 100, 132
    def pl(h): return vload(('v', PB + 4 * h), 4, V_PLD, S_WT, S_SO if h >= 4 else None, (h & 3) * 1024, flags=' sc1')
    t = ["L_poll2:", f"s_load_dwordx16 s[4:19], s[{S_C}:{S_C+1}], s{S_F2} glc", f"s_cmp_eq_u32 s{S_SK}, 0", "s_cbranch_scc1 L_nounp", "L_unp:", "s_waitcnt vmcnt(0)"]
    for h in range(8):
        t += [f"s_bitcmp1_b32 s{S_SK}, {h}", f"s_cbranch_scc0 L_u{h}"]
        for r in range(4): t += [f"v_lshlrev_b32 v{SM+8*h+2*r}, 16, v{PB+4*h+r}", f"v_and_b32 v{SM+8*h+2*r+1}, s{S_T1}, v{PB+4*h+r}"]
        t += [f"L_u{h}:"]
    t += [f"s_cmp_eq_u32 s{S_T2}, 0xff", "s_cbranch_scc1 L_poll2_done", "L_nounp:", f"s_mov_b32 s{S_SK}, 0", f"s_sub_u32 s{S_SPIN}, s{S_SPIN}, 1", "s_waitcnt lgkmcnt(0)",
          f"s_cmp_eq_u32 s{S_SPIN}, 0", "s_cbranch_scc1 L_poll2_done"]
    for h in range(8):
        t += [f"s_cmp_lg_u64 s[{4+2*h}:{5+2*h}], s[{S_NON}:{S_NON+1}]", f"s_cbranch_scc1 L_g{h}", f"s_bitcmp1_b32 s{S_T2}, {h}", f"s_cbranch_scc1 L_g{h}",
              f"s_bitset1_b32 s{S_T2}, {h}", f"s_bitset1_b32 s{S_SK}, {h}", pl(h).t, f"L_g{h}:"]
    t += [f"s_cmp_lg_u32 s{S_T2}, 0xff", "s_cbranch_scc1 L_poll2", "s_branch L_unp", "L_poll2_done:"]
    if not int(opt.unp):
        t = ["L_poll2:", f"s_load_dwordx16 s[4:19], s[{S_C}:{S_C+1}], s{S_F2} glc", f"s_sub_u32 s{S_SPIN}, s{S_SPIN}, 1", "s_waitcnt lgkmcnt(0)", f"s_cmp_eq_u32 s{S_SPIN}, 0", "s_cbranch_scc1 L_poll2_done"]
        for h in range(8):
            t += [f"s_cmp_lg_u64 s[{4+2*h}:{5+2*h}], s[{S_NON}:{S_NON+1}]", f"s_cbranch_scc1 L_g{h}", f"s_bitcmp1_b32 s{S_T2}, {h}", f"s_cbranch_scc1 L_g{h}",
                  f"s_bitset1_b32 s{S_T2}, {h}", f"s_bitset1_b32 s{S_SK}, {h}", pl(h).t, f"L_g{h}:"]
        t += [f"s_cmp_eq_u32 s{S_T2}, 0xff", "s_cbranch_scc1 L_poll2_done", f"s_mov_b32 s{S_SK}, 0", "s_branch L_poll2", "L_poll2_done:"]
        t += ["s_waitcnt vmcnt(0)"]
        for h in range(8):
            for r in range(4): t += [f"v_lshlrev_b32 v{SM+8*h+2*r}, 16, v{PB+4*h+r}", f"v_and_b32 v{SM+8*h+2*r+1}, s{S_T1}, v{PB+4*h+r}"]
    for x in t: sg.text(x)
    sg.vm = []
    stamp(sg, 6, '2')
    for h in range(1, 8):
        for r in range(0, 8, 2):
            u = SM + 8 * h + r
            a(V(f"v_pk_add_f32 v[{SM+r}:{SM+r+1}], v[{SM+r}:{SM+r+1}], v[{u}:{u+1}]", [SM+r, SM+r+1, u, u+1], [SM+r, SM+r+1]))
    for r in range(4):
        a(V(f"v_cvt_pk_bf16_f32 v{SM+r}, v{SM+2*r}, v{SM+2*r+1}", [SM+2*r, SM+2*r+1], [SM+r]))
    if int(opt.otr):
        a(dswr('ds_write_b64', 10, ('v', SM), 2, 0)); a(dswr('ds_write_b64', 10, ('v', SM + 2), 2, 32))
        r_ = dsrd('ds_read_b128', ('v', SM + 4), 4, 11, 0); r_.needlg = ('*',); a(r_)
        a(vstore(('v', SM + 4), 4, V_OUT, S_OUT, None, 0, flags=opt.out_flags))
    elif not int(opt.noout):
        a(vstore(('v', SM), 2, V_OUT, S_OUT, None, 0, flags=opt.out_flags))
        a(vstore(('v', SM + 2), 2, V_OUT, S_OUT, None, 32, flags=opt.out_flags))

def out_of_line():
    t = []
    t += ["L_spin_n:", f"s_mov_b32 s{S_SPIN}, {opt.spin}", "L_spin_n1:",
          f"buffer_load_dwordx2 v[{V_GC}:{V_GC+1}], v9, s[{S_D}:{S_D+3}], 0 offen sc1", f"s_sub_u32 s{S_SPIN}, s{S_SPIN}, 1", "s_waitcnt vmcnt(0)",
          f"v_readfirstlane_b32 s{S_NON}, v{V_GC}", f"v_readfirstlane_b32 s{S_NON+1}, v{V_GC+1}", f"s_cmp_eq_u32 s{S_SPIN}, 0", "s_cbranch_scc1 L_back_n", "s_nop 2",
          f"s_cmp_eq_u64 s[{S_NON}:{S_NON+1}], 0", "s_cbranch_scc1 L_spin_n1", "s_branch L_back_n"]
    t += ["; a row sum left the safe range - start over with the true row maxima", "L_redo:", f"s_mov_b64 s[{S_GM}:{S_GM+1}], 0", f"s_mov_b32 s{S_REDO}, 1",
          "s_waitcnt vmcnt(0) lgkmcnt(0)", "s_barrier"]
    sg = Seg()
    p1 = prologue1()
    a = sg.add
    a(V(f"v_lshl_add_u32 v{V_T0}, s{S_W}, 2, v{V_G}", [V_G], [V_T0]))
    a(V(f"v_xor_b32 v{V_T1}, v{V_N}, v{V_T0}", [V_N, V_T0], [V_T1]))
    a(V(f"v_lshlrev_b32 v{V_T1}, 4, v{V_T1}", [V_T1], [V_T1]))
    a(V(f"v_lshl_add_u32 v{V_XD}, v{V_T0}, 10, v{V_T1}", [V_T0, V_T1], [V_XD]))
    a(S(f"s_and_b32 s{S_T0}, s{S_W}, 2", [S_W], [S_T0]))
    a(S(f"s_lshl_b32 s{S_T0}, s{S_T0}, 2", [S_T0], [S_T0]))
    a(V(f"v_lshl_add_u32 v{V_T1}, v{V_G}, 1, s{S_T0}", [V_G], [V_T1]))
    a(V(f"v_xor_b32 v{V_T1}, v{V_N}, v{V_T1}", [V_N, V_T1], [V_T1]))
    a(V(f"v_lshlrev_b32 v{V_T1}, 4, v{V_T1}", [V_T1], [V_T1]))
    a(V(f"v_lshl_add_u32 v{V_WD}, v{V_T0}, 13, v{V_T1}", [V_T0, V_T1], [V_WD]))
    t += sg.out + ["s_nop 4", "s_branch L_restart"]
    sg = Seg(); a = sg.add
    sg.text("; true row maxima over all keys -> negated into the accumulator seed of S")
    sg.text("L_max:")
    sg.text(f"s_mov_b32 s{S_SPIN}, m0")
    sg.drain()
    sg.text("s_barrier")
    MX, KF, AD = 76, V_VF, 84
    for q in range(5): a(V(f"v_mov_b32 v{MX+q}, 0xff800000", [], [MX+q]))
    for s in range(4): a(V(f"v_add_u32 v{AD+s}, {96*KB}, v{V_KA+s}", [V_KA+s], [AD+s]))
    a(S(f"s_mov_b32 s{S_T2}, 0", [], [S_T2]))
    sg.text("L_max_loop:"); sg.reset_hist()
    for j in range(8):
        if j % 4 == 0:
            a(S(f"s_add_u32 s{S_T1}, s{S_T2}, {(j>>2)*4096}", [S_T2], [S_T1]))
            a(S(f"s_add_u32 m0, s{S_W8K}, {96*KB + (j>>2)*4096}", [S_W8K], [M0]))
        a(dma(V_KD + (j & 3), S_K, S_T1, 1024 * (j & 3), 'mk'))
    for t_ in range(2):
        for s in range(4):
            a(dsrd('ds_read_b128', ('v', KF + (t_ * 4 + s) * 4), 4, AD + s, t_ * 4096, needvm=['mk']))
    for q in range(5):
        for t_ in range(2):
            d = ('v', 88 + t_ * 4)
            for s in range(4): a(mfma(d, ('v', KF + (t_ * 4 + s) * 4), AQ(q, s), 0 if s == 0 else d))
        for k in range(4):
            a(V(f"v_max3_f32 v{MX+q}, v{MX+q}, v{88+2*k}, v{89+2*k}", [MX+q, 88+2*k, 89+2*k], [MX+q]))
    sg.drain()
    a(S(f"s_add_u32 s{S_T2}, s{S_T2}, 8192", [S_T2], [S_T2]))
    sg.text(f"s_cmp_lt_u32 s{S_T2}, 65536"); sg.text("s_nop 4"); sg.text("s_cbranch_scc1 L_max_loop")
    sg.text("s_barrier")
    a(S(f"s_mul_i32 s{S_T0}, s{S_W}, 1280", [S_W], [S_T0]))
    a(S(f"s_add_u32 s{S_T0}, s{S_T0}, {96*KB}", [S_T0], [S_T0]))
    a(V(f"v_lshl_add_u32 v{AD}, v{V_LANE}, 2, s{S_T0}", [V_LANE], [AD]))
    a(S(f"s_mov_b32 s{S_T0}, {96*KB}", [], [S_T0]))
    a(V(f"v_lshl_add_u32 v{AD+1}, v{V_N}, 2, s{S_T0}", [V_N], [AD+1]))
    for q in range(5): a(dswr('ds_write_b32', AD, ('v', MX + q), 1, q * 256))
    a(barrier())
    for q in range(5):
        for k in range(16):
            a(dsrd('ds_read_b32', ('v', KF + k), 1, AD + 1, (k >> 2) * 1280 + q * 256 + (k & 3) * 64))
        for k in range(8):
            a(V(f"v_max3_f32 v{MX+q}, v{MX+q}, v{KF+2*k}, v{KF+2*k+1}", [MX+q, KF+2*k, KF+2*k+1], [MX+q]))
        for r in range(4):
            a(V(f"v_sub_f32 v{V_NEGM+q*4+r}, 0, v{MX+q}", [MX+q], [V_NEGM+q*4+r]))
    sg.drain()
    sg.text("s_barrier"); sg.text(f"s_mov_b32 m0, s{S_SPIN}"); sg.text("s_nop 4"); sg.text("s_branch L_back_max")
    return t + sg.out

def stamp_out(sg, n):
    if not opt.stamps or (opt.stamps == 'Z' and n > 1): return
    if opt.stamps == 'Z':
        for x in ["s_load_dwordx2 s[76:77], s[0:1], 56", "s_waitcnt lgkmcnt(0)", f"s_add_u32 s76, s76, {16<<20}", "s_addc_u32 s77, s77, 0", "s_and_b32 s77, s77, 0xffff",
                  "s_mov_b32 s78, 0x100000", "s_mov_b32 s79, 0x20000", "s_lshl_b32 s80, s2, 2", "s_add_u32 s80, s80, s32", "s_lshl_b32 s80, s80, 6", "v_mov_b32 v74, s80",
                  "v_mov_b32 v75, s3", "buffer_store_dword v75, v74, s[76:79], 0 offen sc1"]: sg.text(x)
        return
    stamp(sg, n - 1)
    t = ["s_load_dwordx2 s[4:5], s[0:1], 56", "s_waitcnt lgkmcnt(0)", f"s_add_u32 s4, s4, {16<<20}", "s_addc_u32 s5, s5, 0", "s_and_b32 s5, s5, 0xffff",
         "s_mov_b32 s6, 0x100000", "s_mov_b32 s7, 0x20000", "s_lshl_b32 s8, s2, 2", "s_add_u32 s8, s8, s32", "s_lshl_b32 s8, s8, 6", "v_mov_b32 v2, s8"]
    for i in range(n):
        t += [f"v_mov_b32 v3, s{3 if i == 0 else 76+2*i}", f"buffer_store_dword v3, v2, s[4:7], 0 offen offset:{4*i} sc1"]
    for x in t: sg.text(x)

def kernel():
    sg = Seg()
    sg.text(NAME + "_kernel:")
    sg.text("s_cmp_ge_u32 s2, 256")
    sg.text("s_cbranch_scc1 L_end")
    if opt.stamps:
        stamp(sg, 0)
    p1 = prologue1()
    sg.addall(p1[:2])
    if int(opt.cpf):
        for x in ["s_getpc_b64 s[94:95]", "L_pc:", "s_lshr_b32 s3, s2, 3", "v_lshrrev_b32 v8, 6, v0", "v_and_b32 v9, 1, v0", "v_lshl_add_u32 v8, v8, 1, v9",
                  "v_lshl_add_u32 v8, s3, 3, v8", "v_lshlrev_b32 v8, 7, v8", "v_min_u32 v8, (L_code_end - L_pc - 4) & 0xffffff80, v8"] + (["global_load_dword v255, v8, s[94:95]"] if int(opt.cpf) == 1 else ["s_mov_b64 s[12:13], s[94:95]"]): sg.text(x)
    sg.addall(p1[2:])
    if opt.stamps:
        sg.text("s_mov_b32 s3, s76")
    p2 = prologue2()
    Q = Queue()
    first = x_dma(0) + w_dma(0) if not int(opt.wfirst) else w_dma(0) + x_dma(0)
    stamp(sg, 5, 'P')
    Q.push(first)
    weave(sg, Q, [], 9, 0)
    if int(opt.cpf) == 2: sg.text("global_load_dword v255, v8, s[12:13]")
    stamp(sg, 6, 'P')
    sg.addall(p2)
    stamp(sg, 7, 'P')
    sg.text("s_cmp_lg_u32 s2, 0"); sg.text("s_cbranch_scc1 L_nocz")
    lane0(sg, ["v_mov_b32 v9, 0", f"s_memrealtime s[{S_NON}:{S_NON+1}]", "s_waitcnt lgkmcnt(0)", f"s_or_b32 s{S_NON}, s{S_NON}, 1", f"v_mov_b32 v250, s{S_NON}", f"v_mov_b32 v251, s{S_NON+1}",
               f"buffer_store_dwordx2 v[250:251], v9, s[{S_D}:{S_D+3}], 0 offen sc1"], "L_nocz")
    sg.text("s_branch L_first")
    sg.text("L_restart:")
    s2 = Seg(); s2.addall(restart_setup()); Q2 = Queue(); Q2.push(x_dma(0) + w_dma(0) if not int(opt.wfirst) else w_dma(0) + x_dma(0)); weave(s2, Q2, [], 9, 0)
    for x in s2.out: sg.text(x)
    sg.text("L_first:")
    early, late = prologue3()
    early = early + late + handoff_calc()
    def BB(u): return f"B{u + 1}"
    Q.push(w_dma(1) + x_dma(1) + w_dma(2) + w_dma(3) + x_dma(2) + w_dma(4) + ((w_dma(5, 'B2') + x_dma(3)) if int(opt.la) else (x_dma(3) + w_dma(5, 'B2'))) + w_dma(6, 'B3') + w_dma(7, 'B4')
           + kv_dma('k', 0, 'B5') + kv_dma('v', 0, 'B6') + kv_dma('k', 1, 'B8') + kv_dma('v', 1, 'BQ'))
    for i in range(2, 8):
        if not int(opt.nodma): Q.push(kv_dma('k', i) + kv_dma('v', i))
    n0 = int(opt.n0) - 9
    weave(sg, Q, early, n0, (len(early) + n0 - 1) // n0)
    sg.addall(early)
    qr = phase_a(sg, Q)
    sg.addall(qr[:0])
    stamp(sg, 3)
    sg.text(f"s_cmp_eq_u32 s{S_REDO}, 0"); sg.text("s_cbranch_scc1 L_back_max")
    s2 = Seg(); s2.addall(qr)
    for x in s2.out: sg.text(x)
    sg.text("s_branch L_max")
    sg.text("L_back_max:")
    phase_b(sg, Q, qr)
    combine(sg, Q)
    phase_c(sg, Q)
    sg.text("L_fin:")
    stamp_out(sg, 11)
    sg.text("L_end:")
    sg.text("s_endpgm")
    return sg.out + ['L_code_end:'] + out_of_line()

def report_kernel():
    idx, mode = opt.report.split(',')
    if mode == 'next':
        return ["report_kernel:", "s_cmp_ge_u32 s2, 1", "s_cbranch_scc1 L3_end", "s_memrealtime s[12:13]", "s_load_dwordx2 s[4:5], s[0:1], 56", "s_waitcnt lgkmcnt(0)",
                f"s_add_u32 s4, s4, {17<<20}", "s_addc_u32 s5, s5, 0", "s_and_b32 s5, s5, 0xffff", "s_mov_b32 s6, 64", "s_mov_b32 s7, 0x20000", "v_mov_b32 v1, 0", "v_mov_b32 v2, s12",
                "buffer_store_dword v2, v1, s[4:7], 0 offen", "L3_end:", "s_endpgm"]
    t = ["report_kernel:", "s_cmp_ge_u32 s2, 1", "s_cbranch_scc1 L3_end", "s_memrealtime s[16:17]", "s_load_dwordx2 s[4:5], s[0:1], 56", "s_waitcnt lgkmcnt(0)",
         f"s_add_u32 s4, s4, {16<<20}", "s_addc_u32 s5, s5, 0", "s_and_b32 s5, s5, 0xffff", "s_mov_b32 s6, 0x100000", "s_mov_b32 s7, 0x20000",
         "v_lshlrev_b32 v1, 8, v0", f"buffer_load_dword v2, v1, s[4:7], 0 offen offset:{4*int(idx)}", "buffer_load_dword v3, v1, s[4:7], 0 offen",
         "v_mov_b32 v4, 0", "v_mov_b32 v5, 0", "v_mov_b32 v6, -1", "ds_write_b32 v4, v5", "ds_write_b32 v4, v6 offset:8", "s_waitcnt vmcnt(0) lgkmcnt(0)", "s_barrier",
         "ds_min_u32 v4, v3 offset:8", "s_waitcnt lgkmcnt(0)", "s_barrier", "ds_read_b32 v6, v4 offset:8", "s_waitcnt lgkmcnt(0)", "v_sub_u32 v2, v2, v6",
         "v_lshrrev_b32 v7, 3, v0", "v_mul_u32_u24 v7, 52, v7", "v_lshrrev_b32 v7, 8, v7", "v_and_b32 v8, 1, v0", "v_sub_u32 v8, 6, v8", "v_cmp_lt_u32 vcc, v7, v8",
         "v_min_u32 v2, 10000, v2",
         ("ds_add_u32 v4, v2" if mode == 'mean' else "ds_max_u32 v4, v2"), "s_waitcnt lgkmcnt(0)", "s_barrier", "ds_read_b32 v6, v4", "s_memrealtime s[12:13]", "s_waitcnt lgkmcnt(0)",
         "v_readfirstlane_b32 s10, v6", "s_nop 4"]
    if mode == 'mean': t += ["s_mul_i32 s10, s10, 10", "s_lshr_b32 s10, s10, 8"]
    elif mode == 'max': t += ["s_mul_i32 s10, s10, 10"]
    elif mode == 'gap': t += ["ds_read_b32 v6, v4 offset:8", "s_waitcnt lgkmcnt(0)", "v_readfirstlane_b32 s11, v6", "s_nop 4", "s_sub_u32 s16, s16, s11", "s_sub_u32 s10, s16, s10",
                              "s_min_u32 s10, s10, 2000", "s_mul_i32 s10, s10, 20"]
    else: t += ["s_mov_b32 s10, 0"]
    t += ["L3_spin:", "s_memrealtime s[14:15]", "s_waitcnt lgkmcnt(0)", "s_sub_u32 s14, s14, s12",
          "s_cmp_lt_u32 s14, s10", "s_cbranch_scc1 L3_spin", "L3_end:", "s_endpgm"]
    return t

HEADER = """; Kernarg layout (64 bytes, pointers only, base s[0:1]):
;  24: wq (512,4096) bf16  32: wo (4096,512) bf16   40: d_out (8,80,512) bf16   48: d_debug   56: d_ws
;
; One launch, one workgroup (4 waves) per (batch b, query head hq); hkv = id & 7, j = (id >> 3) & 3, b = id >> 5, hq = 4*hkv + j.
;     Softmax shift m: the first pass uses m = 0, which is exact as long as nothing leaves the fp32 range.  Every row sum is
;     checked against [2^-40, 2^40] (NaN fails too); if any row is outside, the workgroup starts over, computes the true row
;     maxima over all 1024 keys (L_max) and repeats phase B with m = row maximum.
;  C  hand-off 1: O (bf16) goes to the three other heads of the kv group; workgroup (b, hkv, j) multiplies the four heads
;     with wo[hkv*512.., j*128..] -> partial result for 128 output columns.
;     hand-off 2: the eight partial results (one per hkv) are summed in fp32, each workgroup finishing one eighth.
;  and read with sc1.  The tag is a clock value that workgroup 0 publishes in d_debug (zero at launch), so flags left in d_ws
;  by earlier launches never match.  Polls are bounded.  Nothing depends on the XCD a workgroup runs on; the id mapping, the
"""
def build():
    def fmt(l): return "\n".join(x if x.endswith(':') else "    " + x for x in l)
    nm = NAME + "_kernel"
    s = HEADER + "; @launch grid=(256,1,1) block=(256,1,1) lds=163840\n"
    if opt.report:
        s = f"; @launch kernel={nm} grid=(256,1,1) block=(256,1,1) lds=163840\n; @launch kernel=report_kernel grid=(1,1,1) block=(256,1,1) lds=64\n"
    s += '.amdgcn_target "amdgcn-amd-amdhsa--gfx950"\n.text\n'
    s += f".globl {nm}\n.p2align 8\n.type {nm},@function\n" + fmt(kernel()) + "\n"
    if opt.report: s += ".globl report_kernel\n.p2align 8\n.type report_kernel,@function\n" + fmt(report_kernel()) + "\n"
    s += f""".section .rodata,"a"
.p2align 6
.amdhsa_kernel {nm}
  .amdhsa_next_free_vgpr 512
  .amdhsa_next_free_sgpr 102
  .amdhsa_accum_offset 256
  .amdhsa_group_segment_fixed_size 0
  .amdhsa_kernarg_size 64
  .amdhsa_user_sgpr_count 2
  .amdhsa_user_sgpr_kernarg_segment_ptr 1
  .amdhsa_system_sgpr_workgroup_id_x 1
  .amdhsa_float_denorm_mode_32 3
.end_amdhsa_kernel
"""
    if opt.report:
        s += """.p2align 6
.amdhsa_kernel report_kernel
  .amdhsa_next_free_vgpr 32
  .amdhsa_next_free_sgpr 32
  .amdhsa_accum_offset 32
  .amdhsa_group_segment_fixed_size 0
  .amdhsa_kernarg_size 64
  .amdhsa_user_sgpr_count 2
  .amdhsa_user_sgpr_kernarg_segment_ptr 1
  .amdhsa_system_sgpr_workgroup_id_x 1
.end_amdhsa_kernel
"""
    return s

if __name__ == '__main__':
    out = sys.argv[1] if len(sys.argv) > 1 else 'cdna_kernels/' + NAME + '.s'
    for a_ in sys.argv[2:]:
        k, v = a_.split('=', 1)
        setattr(opt, k, (' ' + v) if k.endswith('flags') and v else v)
    HOIST[0] = int(opt.hoist)
    txt = build()
    open(out, 'w').write(txt)
```

```python
import sys, struct, re
from dsl import *

KB = 1024
NAME = 'standalone__gqa_block_cached__near_ridge'
def f2h(x): return hex(struct.unpack('<I', struct.pack('<f', x))[0])
QSCALE = 1.4426950408889634 / (128 ** 0.5)
WS_WO = 8 << 20
WS_CT = 12 << 20

class Opt:
    stamps = ''
    report = ''
    kv_flags = ''
    a_flags = ''
    n0 = 22
    warm = 1
    perstep = 6
    lo_exp = -40
    hi_exp = 40
    spin = 300000
    rt_at = 5
    bar_at = 32
    nodma = 0
    spos = '1,5'
    bq = 0
    v7s = 1
    b0s = 0
    peek = 0
    pgap = 0
    cpf2_at = 99
    cpf2_skip = 1024
    pairw = 0
    dtch_at = 99
    dtch = 'op'
    dtch_flags = ''
    wpos = '5,16'
    x1e = 0
    c3 = 0
    otr = 1
    otch_at = 99
    otch_flags = ''
    worlate = 1
    pf = 9
    noout = 0
    even_end = 23
    coal = 1
    hoist = 2
    unp = 0
    f2wg = 1
    wfirst = 0
    kvnt = 'x'
    ant = ''
    tch_flags = ''
    wsb = 0
    drain = '45'
    tlb_at = 27
    aonly = 0
    la = 10
    aq = 1
    ownlate = 1
    o_flags = ' sc1'
    f1_flags = ' sc1'
    w64 = 0
    out_flags = ''
    bsched = 1
    p1w = 1
    p2w = 0
    pollk = '19,29,39'
    dyn2 = 1
    qmaj = 1
    tch_at = 27
    even_at = 99
    pdepth = 1
    kvo = 4
    finw = 0
    alim = 16
    cpf = 1
    chain = 1
    wo_at = 33
    calc_at = 16
    nl_at = 8
    nc_at = 13
    cw = 2
    shadow = 9
    bst = '0,5,10,15,20'
    no_rt = 0
    clk = 'r'
    lg0 = 0
    vpos = '1,5,9,13'
    rot_kv = 1
    rot_a = 8
    rot_c = 1
    gl_at = 29
    gc_at = 33
opt = Opt()

S_X, S_WQ, S_K, S_V, S_O, S_WO, S_WT, S_WL, S_C, S_D, S_OUT = 4, 8, 12, 16, 20, 24, 28, 52, 56, 60, 64
S_W, S_B, S_HKV, S_HQ = 32, 33, 34, 35
S_W1K, S_W8K, S_SO, S_T0, S_T1, S_T2, S_SK, S_SV = 36, 37, 38, 39, 40, 41, 42, 43
S_TAB = 44
S_REDO, S_MT, S_NT, S_VALID, S_RT, S_SPIN = 68, 69, 70, 71, 72, 73
S_EX = 74
S_F1, S_F2, S_G1, S_G2 = 100, 101, 72, 51
S_GM = 70
S_J_UNUSED = 3
S_P = 76
S_ST = 80
V_LANE, V_N, V_G, V_T0, V_T1, V_T2, V_T3, V_T4, V_T5 = 1, 2, 3, 4, 5, 6, 7, 8, 9
V_KA, V_VA, V_KD, V_VD = 10, 14, 22, 26
V_OST, V_CW, V_LW = 28, 29, 31
V_ONES, V_NEGM, V_L, V_S, V_P, V_KF, V_VF = 32, 36, 56, 76, 92, 100, 164
V_XA, V_XB, V_WA, V_WB, V_XD, V_WD, V_QW = 228, 232, 236, 238, 240, 241, 242
V_GC = 250
S_NON = 96
V_CR, V_LR, V_WOD, V_WT, V_OL, V_OW, V_OD, V_PS, V_PLD, V_OUT, V_P1, V_P2 = 228, 234, 235, 236, 242, 243, 244, 245, 246, 247, 248, 249
V_ZERO = 9
V_TCH = 64
S_H = 52
S_W5K = 55
S_J = 69
A_O, A_Q = 0, 160
V_OWN = [132, 140, 148, 156, 56]
A_KF1, A_L = 120, 240
def AO(lam, q):
    if lam < 2: return ('v', V_OWN[q] + 4 * lam)
    return ('a', A_O + 4 * (q * 6 + lam - 2))
def KF(i, k): return ('v', V_KF + 4 * k) if i % 2 == 0 else ('a', A_KF1 + 4 * k)
def LA(q): return ('a', A_L + 4 * q) if q < 4 else ('a', 152)
def AQ(q, s): return ('a', A_Q + 4 * (q * 4 + s))

def XU(c, q):
    if c == 0: return q * 4 * KB
    if c == 1: return 20 * KB + q * 4 * KB
    if c == 2: return 128 * KB + q * 4 * KB
    return [120, 124, 148, 152, 156][q] * KB
def WU(slot, ks):
    return {0: [40, 48], 1: [56, 96], 2: [104, 112], 3: [64, 72], 4: [80, 88]}[slot][ks] * KB
WSLOT = [0, 1, 2, 3, 4, 0, 1, 2]
QBUF = 128 * KB

def V(t, r=(), w=()):
    return valu(t, r=[('v', x) if isinstance(x, int) else x for x in r], w=[('v', x) if isinstance(x, int) else x for x in w])
def T(t, r=(), w=()):
    return valu(t, r=[('v', x) for x in r], w=[('v', x) for x in w], trans=True)
def S(t, r=(), w=()):
    return salu(t, r=[('s', x) if isinstance(x, int) else x for x in r], w=[('s', x) if isinstance(x, int) else x for x in w])
M0 = ('m0', 0)
VCC = ('vcc', 0)
def flat(l): return [x for y in l for x in y]

def srd(dst, plo, add_s=None, add_imm=0, size=0):
    o = []
    if add_s is not None:
        o.append(S(f"s_add_u32 s{dst}, s{plo}, s{add_s}", [plo, add_s], [dst]))
        o.append(S(f"s_addc_u32 s{dst+1}, s{plo+1}, 0", [plo+1], [dst+1]))
        o.append(S(f"s_and_b32 s{dst+1}, s{dst+1}, 0xffff", [dst+1], [dst+1]))
    elif add_imm:
        o.append(S(f"s_add_u32 s{dst}, s{plo}, {add_imm}", [plo], [dst]))
        o.append(S(f"s_addc_u32 s{dst+1}, s{plo+1}, 0", [plo+1], [dst+1]))
        o.append(S(f"s_and_b32 s{dst+1}, s{dst+1}, 0xffff", [dst+1], [dst+1]))
    else:
        o.append(S(f"s_mov_b32 s{dst}, s{plo}", [plo], [dst]))
        o.append(S(f"s_and_b32 s{dst+1}, s{plo+1}, 0xffff", [plo+1], [dst+1]))
    if isinstance(size, str):
        o.append(S(f"s_mov_b32 s{dst+2}, {size}", [int(size[1:])], [dst+2]))
    else:
        o.append(S(f"s_mov_b32 s{dst+2}, {size}", [], [dst+2]))
    o.append(S(f"s_mov_b32 s{dst+3}, 0x20000", [], [dst+3]))
    return o

KV_ORDER = [[0, 2, 1, 3, 4, 6, 5, 7], [0, 1, 3, 2, 4, 5, 7, 6], [1, 0, 2, 4, 3, 5, 6, 7], [1, 0, 2, 3, 5, 4, 6, 7]]
KV_ORDERS = [KV_ORDER,
  [[0, 4, 1, 2, 3, 5, 6, 7], [1, 0, 5, 2, 3, 4, 6, 7], [2, 0, 1, 6, 3, 4, 5, 7], [3, 0, 1, 2, 7, 4, 5, 6]],
  [[0, 1, 2, 3, 4, 5, 6, 7], [0, 1, 2, 3, 4, 5, 6, 7], [4, 5, 6, 7, 0, 1, 2, 3], [4, 5, 6, 7, 0, 1, 2, 3]],
  [[0, 2, 1, 3, 5, 4, 6, 7], [1, 0, 3, 2, 4, 6, 5, 7], [2, 1, 0, 4, 3, 5, 7, 6], [0, 1, 2, 3, 5, 4, 6, 7]],
  [[0, 1, 2, 4, 3, 5, 6, 7], [1, 0, 2, 3, 5, 4, 6, 7], [2, 0, 1, 3, 4, 6, 5, 7], [0, 1, 3, 2, 4, 5, 7, 6]],
  [[0, 1, 4, 2, 3, 5, 6, 7], [1, 0, 2, 5, 3, 4, 6, 7], [2, 0, 1, 3, 6, 4, 5, 7], [0, 3, 1, 2, 4, 7, 5, 6]],
  [[0, 1, 3, 2, 4, 5, 7, 6], [0, 1, 2, 4, 3, 5, 6, 7], [0, 2, 1, 3, 5, 4, 6, 7], [0, 2, 1, 3, 4, 6, 5, 7]],
  [[0, 1, 2, 4, 3, 5, 6, 7], [1, 0, 3, 2, 5, 4, 6, 7], [2, 3, 0, 1, 4, 6, 5, 7], [3, 2, 1, 0, 4, 5, 7, 6]],
  [[0, 1, 2, 4, 3, 5, 6, 7], [1, 2, 0, 3, 5, 4, 6, 7], [2, 0, 1, 3, 4, 6, 5, 7], [0, 3, 1, 2, 4, 5, 7, 6]]]
def kv_pack(j):
    o = KV_ORDERS[int(opt.kvo)][j] if int(opt.rot_kv) else list(range(8))
    return sum(t << (4 * i) for i, t in enumerate(o))
S_KVO = 98
V_XD4 = 204
S_WC = 99

class Item:
    def __init__(s, pre, ins, after=None): s.pre, s.ins, s.after = pre, ins, after
def x_dma(c, after=None):
    return [Item([S(f"s_add_u32 m0, s{S_W1K}, {XU(c,q)}", [S_W1K], [M0])],
                 dma(V_XD4 + c, S_X, S_TAB + q, 0, ('x', c), flags=(' nt' if 'x' in opt.ant and c < 2 else opt.a_flags)), after) for q in range(5)]
def w_dma(u, after=None):
    o = []
    for k in range(4):
        pre = []
        if k == 0:
            pre.append(S(f"s_add_u32 s{S_SK}, s{S_WC}, {(u & 6) << 19}", [S_WC], [S_SK]))
            pre.append(S(f"s_and_b32 s{S_SK}, s{S_SK}, {7 << 19}", [S_SK], [S_SK]))
            if u & 1: pre.append(S(f"s_xor_b32 s{S_SK}, s{S_SK}, {1 << 19}", [S_SK], [S_SK]))
        pre.append(S(f"s_add_u32 s{S_SO}, s{S_SK}, {k*131072}", [S_SK], [S_SO]))
        pre.append(S(f"s_add_u32 m0, s{S_W1K}, {WU(WSLOT[u], k>>1) + (k&1)*4*KB}", [S_W1K], [M0]))
        o.append(Item(pre, dma(V_WD, S_WQ, S_SO, 0, ('w', u), flags=(' nt' if 'w' in opt.ant and u < 4 else opt.a_flags)), after))
    return o
def kv_dma(kind, i, after=None):
    o = []
    base = (i & 1) * 32 * KB + (0 if kind == 'k' else 64 * KB)
    sr, so = (S_K, S_SK) if kind == 'k' else (S_V, S_SV)
    for j in range(8):
        pre = []
        if j % 4 == 0:
            if j == 0:
                pre.append(S(f"s_bfe_u32 s{so}, s{S_KVO}, {hex((3 << 16) | (4 * i))}", [S_KVO], [so]))
                pre.append(S(f"s_lshl_b32 s{so}, s{so}, 13", [so], [so]))
            else:
                pre.append(S(f"s_add_u32 s{so}, s{so}, 4096", [so], [so]))
            pre.append(S(f"s_add_u32 m0, s{S_W8K}, {base + (j>>2)*4096}", [S_W8K], [M0]))
        va = V_KD + (j & 3) if kind == 'k' else V_VD + (j & 1)
        tag = (kind + 'r', i - 2, j >> 2)
        o.append(Item(pre, dma(va, sr, so, 1024 * (j & 3), (kind, i, j >> 2), needlg=[tag], flags=(' nt' if str(i) in str(opt.kvnt) else opt.kv_flags)), after if i < 2 else tag))
    return o
def k_reads(i):
    return [dsrd('ds_read_b128', KF(i, t * 4 + s), 4, V_KA + s, (i & 1) * 32 * KB + t * 4096,
                 needvm=[('k', i, t)], lgtag=('kr', i, t)) for t in range(2) for s in range(4)]
def v_reads(i):
    return [dsrd('ds_read_b64_tr_b16', ('v', V_VF + (i & 1) * 32 + lam * 4 + h * 2), 2, V_VA + lam, (i & 1) * 32 * KB + h * 4096,
                 needvm=[('v', i, h)], lgtag=('vr', i, h)) for h in range(2) for lam in range(8)]

class Queue:
    def __init__(s): s.q = []; s.pts = set()
    def push(s, items): s.q += items
    def mark(s, p): s.pts.add(p)
    def pop(s):
        if s.q and (s.q[0].after is None or s.q[0].after in s.pts): return s.q.pop(0)
        return None

def place(gaps, Q, pos):
    last = -1
    for p in pos:
        if p >= len(gaps): continue
        it = Q.pop()
        if it is None: break
        pre = list(it.pre)
        avail = list(range(last + 1, p))
        front = []
        if not avail: front = pre
        else:
            slots = [[] for _ in avail]
            for k_, x in enumerate(reversed(pre)):
                slots[max(0, len(avail) - 1 - k_)].insert(0, x)
            for g, sl in zip(avail, slots):
                k_ = 0
                while k_ < len(gaps[g]) and gaps[g][k_].k == 'salu': k_ += 1
                gaps[g][k_:k_] = sl
        k = 0
        while k < len(gaps[p]) and gaps[p][k].k == 'salu': k += 1
        gaps[p][k:k] = front + [it.ins]
        last = p
def weave(sg, Q, fill, n, per):
    for _ in range(n):
        it = Q.pop()
        if it is not None: sg.addall(it.pre + [it.ins])
        for _ in range(per):
            if fill: sg.add(fill.pop(0))

NST = 12
def stamp(sg, i, grp='1'):
    if not opt.stamps: return
    if opt.stamps == 'Z' and i: return
    if 5 <= i <= 9 and grp != opt.stamps: return
    sg.text(f"{'s_memtime' if opt.clk == 'c' else 's_memrealtime'} s[{76+2*i}:{77+2*i}]")

def prologue1():
    o = []; a = o.append
    a(raw("s_load_dwordx2 s[92:93], s[0:1], 0"))
    a(raw("s_load_dwordx2 s[26:27], s[0:1], 24"))
    a(V(f"v_lshrrev_b32 v{V_T0}, 6, v0", [0], [V_T0]))
    a(V(f"v_and_b32 v{V_LANE}, 63, v0", [0], [V_LANE]))
    a(V(f"v_readfirstlane_b32 s{S_W}, v{V_T0}", [V_T0], [('s', S_W)]))
    a(S(f"s_and_b32 s{S_HKV}, s2, 7", [2], [S_HKV]))
    a(S(f"s_lshr_b32 s{S_B}, s2, 5", [2], [S_B]))
    a(S(f"s_bfe_u32 s{S_T0}, s2, 0x20003", [2], [S_T0]))
    a(S(f"s_mov_b32 s{S_J}, s{S_T0}", [S_T0], [S_J]))
    a(S(f"s_lshl_b32 s{S_HQ}, s{S_HKV}, 2", [S_HKV], [S_HQ]))
    a(S(f"s_add_u32 s{S_HQ}, s{S_HQ}, s{S_T0}", [S_HQ, S_T0], [S_HQ]))
    if int(opt.rot_a) == 2:
        a(S(f"s_add_u32 s{S_VALID}, s{S_T0}, s{S_B}", [S_T0, S_B], [S_VALID]))
        a(S(f"s_and_b32 s{S_VALID}, s{S_VALID}, 1", [S_VALID], [S_VALID]))
        a(S(f"s_lshl_b32 s{S_VALID}, s{S_VALID}, 2", [S_VALID], [S_VALID]))
    elif int(opt.rot_a) in (5, 6):
        a_, b_ = (S_B, S_T0) if int(opt.rot_a) == 5 else (S_T0, S_B)
        a(S(f"s_lshl_b32 s{S_VALID}, s{b_}, 1", [b_], [S_VALID]))
        a(S(f"s_add_u32 s{S_VALID}, s{S_VALID}, s{a_}", [S_VALID, a_], [S_VALID]))
        a(S(f"s_and_b32 s{S_VALID}, s{S_VALID}, 3", [S_VALID], [S_VALID]))
        a(S(f"s_lshl_b32 s{S_VALID}, s{S_VALID}, 1", [S_VALID], [S_VALID]))
    elif int(opt.rot_a) in (8, 9):
        a(S(f"s_add_u32 s{S_VALID}, s{S_T0}, s{S_B}", [S_T0, S_B], [S_VALID]))
        a(S(f"s_lshl_b32 s{S_VALID}, s{S_VALID}, 1", [S_VALID], [S_VALID]))
        a(S(f"s_and_b32 s{S_T1}, s{S_HKV}, {1 if int(opt.rot_a) == 8 else 3}", [S_HKV], [S_T1]))
        a(S(f"s_add_u32 s{S_VALID}, s{S_VALID}, s{S_T1}", [S_VALID, S_T1], [S_VALID]))
        a(S(f"s_and_b32 s{S_VALID}, s{S_VALID}, 3", [S_VALID], [S_VALID]))
        a(S(f"s_lshl_b32 s{S_VALID}, s{S_VALID}, 1", [S_VALID], [S_VALID]))
    elif int(opt.rot_a) == 7:
        a(S(f"s_add_u32 s{S_VALID}, s{S_T0}, s{S_B}", [S_T0, S_B], [S_VALID]))
        a(S(f"s_and_b32 s{S_VALID}, s{S_VALID}, 1", [S_VALID], [S_VALID]))
        a(S(f"s_lshl_b32 s{S_VALID}, s{S_VALID}, 2", [S_VALID], [S_VALID]))
        a(S(f"s_bfe_u32 s{S_T1}, s{S_B}, 0x10001", [S_B], [S_T1]))
        a(S(f"s_or_b32 s{S_VALID}, s{S_VALID}, s{S_T1}", [S_VALID, S_T1], [S_VALID]))
    elif int(opt.rot_a) == 4:
        a(S(f"s_add_u32 s{S_VALID}, s{S_T0}, s{S_B}", [S_T0, S_B], [S_VALID]))
        a(S(f"s_and_b32 s{S_VALID}, s{S_VALID}, 3", [S_VALID], [S_VALID]))
        a(S(f"s_lshl_b32 s{S_VALID}, s{S_VALID}, 1", [S_VALID], [S_VALID]))
    elif int(opt.rot_a):
        a(S(f"s_lshl_b32 s{S_T0}, s{S_T0}, 1", [S_T0], [S_T0]))
        a(S(f"s_add_u32 s{S_VALID}, s{S_T0}, s{S_B}", [S_T0, S_B], [S_VALID]))
        a(S(f"s_and_b32 s{S_VALID}, s{S_VALID}, 7", [S_VALID], [S_VALID]))
    else:
        a(S(f"s_mov_b32 s{S_VALID}, 0", [], [S_VALID]))
    a(V(f"v_and_b32 v{V_N}, 15, v{V_LANE}", [V_LANE], [V_N]))
    a(V(f"v_lshrrev_b32 v{V_G}, 4, v{V_LANE}", [V_LANE], [V_G]))
    a(S(f"s_lshl_b32 s{S_W1K}, s{S_W}, 10", [S_W], [S_W1K]))
    a(S(f"s_lshl_b32 s{S_W8K}, s{S_W}, 13", [S_W], [S_W8K]))
    a(V(f"v_lshl_add_u32 v{V_T0}, s{S_W}, 2, v{V_G}", [V_G, ('s', S_W)], [V_T0]))
    a(V(f"v_xor_b32 v{V_T1}, v{V_N}, v{V_T0}", [V_N, V_T0], [V_T1]))
    a(V(f"v_lshlrev_b32 v{V_T1}, 4, v{V_T1}", [V_T1], [V_T1]))
    a(V(f"v_lshl_add_u32 v{V_XD}, v{V_T0}, 10, v{V_T1}", [V_T0, V_T1], [V_XD]))
    a(S(f"s_and_b32 s{S_T0}, s{S_W}, 2", [S_W], [S_T0]))
    a(S(f"s_lshl_b32 s{S_T0}, s{S_T0}, 2", [S_T0], [S_T0]))
    a(V(f"v_lshl_add_u32 v{V_T1}, v{V_G}, 1, s{S_T0}", [V_G, ('s', S_T0)], [V_T1]))
    a(V(f"v_xor_b32 v{V_T1}, v{V_N}, v{V_T1}", [V_N, V_T1], [V_T1]))
    a(V(f"v_lshlrev_b32 v{V_T1}, 4, v{V_T1}", [V_T1], [V_T1]))
    a(V(f"v_lshl_add_u32 v{V_WD}, v{V_T0}, 13, v{V_T1}", [V_T0, V_T1], [V_WD]))
    a(S(f"s_mul_i32 s{S_T0}, s{S_B}, 81920", [S_B], [S_T0]))
    a(S(f"s_lshl_b32 s{S_T2}, s{S_HQ}, 8", [S_HQ], [S_T2]))
    a(S(f"s_sub_u32 s{S_T1}, 4194304, s{S_T2}", [S_T2], [S_T1]))
    a(S(f"s_mov_b32 s{S_REDO}, 0", [], [S_REDO]))
    a(S(f"s_lshl_b32 s{S_WC}, s{S_VALID}, 19", [S_VALID], [S_WC]))
    a(S(f"s_mov_b64 s[{S_GM}:{S_GM+1}], -1", [], [S_GM, S_GM+1]))
    o += restart_setup()
    a(S(f"s_mov_b32 s{S_X+2}, 81920", [], [S_X+2])); a(S(f"s_mov_b32 s{S_X+3}, 0x20000", [], [S_X+3]))
    a(S(f"s_mov_b32 s{S_WQ+2}, s{S_T1}", [S_T1], [S_WQ+2])); a(S(f"s_mov_b32 s{S_WQ+3}, 0x20000", [], [S_WQ+3]))
    a(raw("s_waitcnt lgkmcnt(0)", 'wait'))
    o += srd(S_X, 92, add_s=S_T0, size=81920)[:3]
    o += srd(S_WQ, 26, add_s=S_T2, size=0)[:3]
    a(raw("s_load_dwordx4 s[92:95], s[0:1], 8"))
    a(raw(f"s_load_dwordx2 s[{S_WO}:{S_WO+1}], s[0:1], 32"))
    a(raw(f"s_load_dwordx4 s[{S_C}:{S_C+3}], s[0:1], 40"))
    a(raw("s_load_dwordx2 s[100:101], s[0:1], 56"))
    return o

def restart_setup():
    o = [S(f"s_mov_b32 s{S_TAB+q}, {q*16384}", [], [S_TAB+q]) for q in range(5)]
    for c in range(4):
        o.append(S(f"s_lshr_b32 s{S_SO}, s{S_WC}, 12", [S_WC], [S_SO]))
        o.append(S(f"s_add_u32 s{S_SO}, s{S_SO}, {c*256}", [S_SO], [S_SO]))
        o.append(S(f"s_and_b32 s{S_SO}, s{S_SO}, 0x300", [S_SO], [S_SO]))
        o.append(V(f"v_add_u32 v{V_XD4+c}, s{S_SO}, v{V_XD}", [V_XD, ('s', S_SO)], [V_XD4+c]))
    return o

def prologue2():
    o = []; a = o.append
    a(raw("s_waitcnt lgkmcnt(0)", 'wait'))
    a(S(f"s_lshl_b32 s{S_T0}, s{S_B}, 3", [S_B], [S_T0]))
    a(S(f"s_add_u32 s{S_T0}, s{S_T0}, s{S_HKV}", [S_T0, S_HKV], [S_T0]))
    a(S(f"s_lshl_b32 s{S_T0}, s{S_T0}, 2", [S_T0], [S_T0]))
    a(S(f"s_add_u32 s{S_T0}, s{S_T0}, s{S_W}", [S_T0, S_W], [S_T0]))
    a(S(f"s_lshl_b32 s{S_T0}, s{S_T0}, 16", [S_T0], [S_T0]))
    o += srd(S_K, 92, add_s=S_T0, size=65536)
    o += srd(S_V, 94, add_s=S_T0, size=65536)
    a(S(f"s_lshl_b32 s{S_T0}, s{S_HKV}, 19", [S_HKV], [S_T0]))
    o += srd(S_WO, S_WO, add_s=S_T0, size=524288)
    WB = int(opt.wsb) << 20
    o += srd(S_O, 100, add_imm=WB, size=8*5*128*1024)
    o += srd(S_WT, 100, add_imm=WB + WS_WO, size=8*4*20*8*1024)
    o += srd(S_D, S_C + 2, size=256)
    o += srd(S_OUT, S_C, size=655360)
    o += srd(S_C, 100, add_imm=WB + WS_CT, size=262144)
    a(S(f"s_bitcmp1_b32 s{S_HQ}, 0", [S_HQ], []))
    a(S(f"s_mov_b32 s{S_T0}, {hex(kv_pack(0))}", [], [S_T0]))
    a(S(f"s_cselect_b32 s{S_T0}, {hex(kv_pack(1))}, s{S_T0}", [S_T0], [S_T0]))
    a(S(f"s_mov_b32 s{S_T1}, {hex(kv_pack(2))}", [], [S_T1]))
    a(S(f"s_cselect_b32 s{S_T1}, {hex(kv_pack(3))}, s{S_T1}", [S_T1], [S_T1]))
    a(S(f"s_bitcmp1_b32 s{S_HQ}, 1", [S_HQ], []))
    a(S(f"s_cselect_b32 s{S_KVO}, s{S_T1}, s{S_T0}", [S_T0, S_T1], [S_KVO]))
    for p in range(3):
        a(S(f"s_cmp_le_u32 s{S_J}, {p}", [S_J], []))
        a(S(f"s_cselect_b32 s{S_T1}, {p + 1}, {p}", [], [S_T1]))
        a(S(f"s_lshl_b32 s{S_H+p}, s{S_T1}, 17", [S_T1], [S_H+p]))
    a(S(f"s_mul_i32 s{S_W5K}, s{S_W}, 5120", [S_W], [S_W5K]))
    a(S(f"s_lshl_b32 s{S_T0}, s{S_B}, 14", [S_B], [S_T0]))
    a(S(f"s_lshl_b32 s{S_T1}, s{S_W}, 7", [S_W], [S_T1]))
    a(S(f"s_add_u32 s{S_T0}, s{S_T0}, s{S_T1}", [S_T0, S_T1], [S_T0]))
    a(S(f"s_lshl_b32 s{S_F1}, s{S_HQ}, 9", [S_HQ], [S_F1]))
    a(S(f"s_add_u32 s{S_F1}, s{S_F1}, s{S_T0}", [S_F1, S_T0], [S_F1]))
    a(S(f"s_add_u32 s{S_F2}, s{S_F1}, 131072", [S_F1], [S_F2]))
    if int(opt.f2wg): a(S(f"s_andn2_b32 s{S_F2}, s{S_F2}, 0x180", [S_F2], [S_F2]))
    a(S(f"s_lshl_b32 s{S_T1}, s{S_HKV}, 11", [S_HKV], [S_T1]))
    a(S(f"s_lshl_b32 s{S_G1}, s{S_J}, 3", [S_J], [S_G1]))
    a(S(f"s_add_u32 s{S_G1}, s{S_G1}, s{S_T1}", [S_G1, S_T1], [S_G1]))
    a(S(f"s_add_u32 s{S_G1}, s{S_G1}, s{S_T0}", [S_G1, S_T0], [S_G1]))
    a(S(f"s_lshl_b32 s{S_T1}, s{S_J}, 9", [S_J], [S_T1]))
    a(S(f"s_lshl_b32 s{S_G2}, s{S_HKV}, 3", [S_HKV], [S_G2]))
    a(S(f"s_add_u32 s{S_G2}, s{S_G2}, s{S_T1}", [S_G2, S_T1], [S_G2]))
    a(S(f"s_add_u32 s{S_G2}, s{S_G2}, s{S_T0}", [S_G2, S_T0], [S_G2]))
    a(S(f"s_add_u32 s{S_G2}, s{S_G2}, 131072", [S_G2], [S_G2]))
    return o

def prologue3():
    o = []; a = o.append
    a(S(f"s_bfe_u32 s{S_T1}, s{S_WC}, 0x10013", [S_WC], [S_T1]))
    a(S(f"s_lshl_b32 s{S_T1}, s{S_T1}, 3", [S_T1], [S_T1]))
    a(V(f"v_xor_b32 v{V_T1}, s{S_T1}, v{V_N}", [V_N, ('s', S_T1)], [V_T1]))
    for s in range(4):
        a(V(f"v_add_u32 v{V_T0}, {4*s}, v{V_G}", [V_G], [V_T0]))
        a(V(f"v_xor_b32 v{V_T0}, v{V_T0}, v{V_T1}", [V_T0, V_T1], [V_T0]))
        a(V(f"v_lshlrev_b32 v{V_T0}, 4, v{V_T0}", [V_T0], [V_T0]))
        a(V(f"v_lshl_add_u32 v{V_XA+s}, v{V_N}, 8, v{V_T0}", [V_N, V_T0], [V_XA+s]))
        a(V(f"v_add_u32 v{V_XB+s}, {120*KB}, v{V_XA+s}", [V_XA+s], [V_XB+s]))
    a(V(f"v_lshrrev_b32 v{V_T2}, 2, v{V_N}", [V_N], [V_T2]))
    a(V(f"v_bfe_u32 v{V_T3}, v{V_N}, 1, 1", [V_N], [V_T3]))
    a(V(f"v_and_b32 v{V_T4}, 1, v{V_N}", [V_N], [V_T4]))
    a(V(f"v_lshlrev_b32 v{V_T4}, 3, v{V_T4}", [V_T4], [V_T4]))
    a(V(f"v_and_b32 v{V_T5}, 1, v{V_G}", [V_G], [V_T5]))
    a(V(f"v_lshl_add_u32 v{V_T5}, v{V_T5}, 2, v{V_T2}", [V_T5, V_T2], [V_T5]))
    a(V(f"v_lshlrev_b32 v{V_T5}, 1, v{V_T5}", [V_T5], [V_T5]))
    a(S(f"s_lshl_b32 s{S_T1}, s{S_W}, 2", [S_W], [S_T1]))
    a(V(f"v_lshl_add_u32 v{V_T1}, v{V_G}, 3, v{V_T2}", [V_G, V_T2], [V_T1]))
    a(V(f"v_lshl_add_u32 v{V_T1}, v{V_T1}, 8, v{V_T4}", [V_T1, V_T4], [V_T1]))
    for e in range(2):
        a(V(f"v_add3_u32 v{V_T0}, s{S_T1}, v{V_T3}, {2*e}", [V_T3, ('s', S_T1)], [V_T0]))
        a(V(f"v_xor_b32 v{V_T0}, v{V_T0}, v{V_T5}", [V_T0, V_T5], [V_T0]))
        a(V(f"v_lshl_add_u32 v{V_T0}, v{V_T0}, 4, v{V_T1}", [V_T0, V_T1], [V_T0]))
        a(V(f"v_add_u32 v{V_WA+e}, {40*KB}, v{V_T0}", [V_T0], [V_WA+e]))
        a(V(f"v_add_u32 v{V_WB+e}, {96*KB}, v{V_T0}", [V_T0], [V_WB+e]))
    a(V(f"v_lshl_add_u32 v{V_T1}, v{V_G}, 2, v{V_T2}", [V_G, V_T2], [V_T1]))
    n_early = len(o)
    for s in range(4):
        a(V(f"v_add_u32 v{V_KA+s}, s{S_W8K}, v{V_XA+s}", [V_XA+s, ('s', S_W8K)], [V_KA+s]))
    a(V(f"v_lshl_add_u32 v{V_T1}, v{V_T1}, 8, v{V_T4}", [V_T1, V_T4], [V_T1]))
    a(S(f"s_add_u32 s{S_T2}, s{S_W8K}, {64*KB}", [S_W8K], [S_T2]))
    a(V(f"v_add_u32 v{V_T1}, s{S_T2}, v{V_T1}", [V_T1, ('s', S_T2)], [V_T1]))
    a(V(f"v_add_u32 v{V_T3}, s{S_T1}, v{V_T3}", [V_T3, ('s', S_T1)], [V_T3]))
    for lam in range(8):
        a(V(f"v_add_u32 v{V_T0}, {2*lam}, v{V_T3}", [V_T3], [V_T0]))
        a(V(f"v_and_b32 v{V_T0}, 15, v{V_T0}", [V_T0], [V_T0]))
        a(V(f"v_xor_b32 v{V_T0}, v{V_T0}, v{V_T5}", [V_T0, V_T5], [V_T0]))
        a(V(f"v_lshl_add_u32 v{V_VA+lam}, v{V_T0}, 4, v{V_T1}", [V_T0, V_T1], [V_VA+lam]))
    a(V(f"v_xor_b32 v{V_T0}, v{V_N}, v{V_G}", [V_N, V_G], [V_T0]))
    a(V(f"v_lshlrev_b32 v{V_T0}, 4, v{V_T0}", [V_T0], [V_T0]))
    a(V(f"v_lshl_add_u32 v{V_KD}, v{V_G}, 8, v{V_T0}", [V_G, V_T0], [V_KD]))
    for j in range(1, 4):
        a(V(f"v_xor_b32 v{V_KD+j}, {64*j}, v{V_KD}", [V_KD], [V_KD+j]))
    a(V(f"v_lshlrev_b32 v{V_T0}, 1, v{V_G}", [V_G], [V_T0]))
    a(V(f"v_xor_b32 v{V_T0}, v{V_N}, v{V_T0}", [V_N, V_T0], [V_T0]))
    a(V(f"v_lshlrev_b32 v{V_T0}, 4, v{V_T0}", [V_T0], [V_T0]))
    a(V(f"v_lshl_add_u32 v{V_VD}, v{V_G}, 8, v{V_T0}", [V_G, V_T0], [V_VD]))
    a(V(f"v_xor_b32 v{V_VD+1}, 128, v{V_VD}", [V_VD], [V_VD+1]))
    a(V(f"v_lshrrev_b32 v{V_T0}, 1, v{V_G}", [V_G], [V_T0]))
    a(V(f"v_add_u32 v{V_T0}, s{S_T1}, v{V_T0}", [V_T0, ('s', S_T1)], [V_T0]))
    a(V(f"v_xor_b32 v{V_T0}, v{V_T0}, v{V_N}", [V_T0, V_N], [V_T0]))
    a(V(f"v_lshlrev_b32 v{V_T0}, 4, v{V_T0}", [V_T0], [V_T0]))
    a(V(f"v_lshl_add_u32 v{V_T0}, v{V_N}, 8, v{V_T0}", [V_N, V_T0], [V_T0]))
    a(V(f"v_and_b32 v{V_T1}, 1, v{V_G}", [V_G], [V_T1]))
    a(V(f"v_lshl_add_u32 v{V_T0}, v{V_T1}, 3, v{V_T0}", [V_T0, V_T1], [V_T0]))
    a(V(f"v_add_u32 v{V_QW}, {QBUF}, v{V_T0}", [V_T0], [V_QW]))
    a(V(f"v_xor_b32 v{V_QW+1}, 32, v{V_QW}", [V_QW], [V_QW+1]))
    a(V(f"v_lshl_add_u32 v{V_CW}, v{V_LANE}, 4, s{S_W8K}", [V_LANE, ('s', S_W8K)], [V_CW]))
    a(V(f"v_add_u32 v{V_CW+1}, {64*KB}, v{V_CW}", [V_CW], [V_CW+1]))
    a(S(f"s_add_u32 s{S_T0}, s{S_W8K}, {102*KB}", [S_W8K], [S_T0]))
    a(V(f"v_lshl_add_u32 v{V_LW}, v{V_LANE}, 5, s{S_T0}", [V_LANE, ('s', S_T0)], [V_LW]))
    a(S(f"s_mul_i32 s{S_T0}, s{S_B}, 640", [S_B], [S_T0]))
    a(S(f"s_lshl_b32 s{S_T2}, s{S_HQ}, 2", [S_HQ], [S_T2]))
    a(S(f"s_add_u32 s{S_T0}, s{S_T0}, s{S_T2}", [S_T0, S_T2], [S_T0]))
    a(S(f"s_add_u32 s{S_T0}, s{S_T0}, s{S_W}", [S_T0, S_W], [S_T0]))
    a(S(f"s_lshl_b32 s{S_T0}, s{S_T0}, 10", [S_T0], [S_T0]))
    a(V(f"v_lshl_add_u32 v{V_OST}, v{V_LANE}, 4, s{S_T0}", [V_LANE, ('s', S_T0)], [V_OST]))
    a(V(f"v_cmp_eq_u32 vcc, 0, v{V_N}", [V_N], [VCC]))
    a(V(f"v_mov_b32 v{V_T0}, 0x3f803f80", [], [V_T0]))
    for i in range(4):
        a(V(f"v_cndmask_b32 v{V_ONES+i}, 0, v{V_T0}, vcc", [V_T0, VCC], [V_ONES+i]))
    for i in range(20):
        a(V(f"v_mov_b32 v{V_NEGM+i}, 0", [], [V_NEGM+i]))
    return o[:n_early], o[n_early:]

V_QACC = V_VF
def AF(kap):
    return [(100, 120), (128, 148), (208, 156)][kap % 3]
def a_reads(kap):
    u, ks = kap >> 1, kap & 1
    c, s = u >> 1, kap & 3
    xf, wf = AF(kap)
    wb = WU(WSLOT[u], ks)
    xr = []
    for q in range(5):
        xb = XU(c, q)
        reg, base = (V_XA, 0) if xb < 64 * KB else (V_XB, 120 * KB)
        xr.append(dsrd('ds_read_b128', ('v', xf + q * 4), 4, reg + s, xb - base))
    wr = []
    for e in range(2):
        for h in range(2):
            reg, base = (V_WA, 40 * KB) if wb < 96 * KB else (V_WB, 96 * KB)
            wr.append(dsrd('ds_read_b64_tr_b16', ('v', wf + e * 4 + h * 2), 2, reg + e, wb - base + h * 1024))
    return wr[:2] + xr[:1] + wr[2:] + xr[1:]
def a_mfmas(kap):
    o = []
    xf, wf = AF(kap)
    for q in range(5):
        for e in range(2):
            d = ('v', V_QACC + (e * 5 + q) * 4)
            o.append(mfma(d, ('v', wf + e * 4), ('v', xf + q * 4), 0 if kap == 0 else d))
    return o
def lane0(sg, body, lab):
    sg.text(f"s_cmp_lg_u32 s{S_W}, 0"); sg.text(f"s_cbranch_scc1 {lab}")
    sg.text(f"s_mov_b64 s[{S_EX}:{S_EX+1}], exec"); sg.text("s_mov_b64 exec, 1")
    for x in body: sg.text(x)
    sg.text(f"s_mov_b64 exec, s[{S_EX}:{S_EX+1}]")
    sg.text(f"{lab}:")
def phase_a(sg, Q):
    stamp(sg, 1)
    sg.add(barrier(needvm=[('x', 0), ('w', 0)])); Q.mark('B0')
    stamp(sg, 2)
    sg.addall(a_reads(0)); sg.addall(a_reads(1))
    sg.add(S(f"s_mov_b32 s{S_T1}, {f2h(QSCALE)}", [], [S_T1]))
    sg.add(S(f"s_mov_b32 s{S_T2}, {f2h(QSCALE)}", [], [S_T2]))
    for kap in range(14 if int(opt.aq) else 16):
        mf = a_mfmas(kap)
        gaps = [[] for _ in mf]
        nx = kap + 2
        if nx < 16:
            if nx % 2 == 0:
                u = nx >> 1
                need = [('x', u >> 1), ('w', u)]
                while any(it.ins.vmtag in need for it in Q.q):
                    n_ = len(Q.q); weave(sg, Q, [], 1, 0); assert len(Q.q) < n_, (u, Q.q[0].after)
                while True:
                    younger = 0
                    for tg, _w in reversed(sg.vm):
                        if tg in need: break
                        younger += 1
                    n_ = len(Q.q)
                    if younger >= int(opt.la): break
                    weave(sg, Q, [], 1, 0)
                    if len(Q.q) == n_: break
                dr = str(u) in str(opt.drain)
                sg.add(barrier(needvm=need, lg0=dr)); Q.mark(f'B{u}')
                if dr: Q.mark(f'B{u+1}')
                if u in (1, 3, 5, 7): stamp(sg, 5 + u // 2, 'A')
            for i, r in enumerate(a_reads(nx)): gaps[i].append(r)
        mf[0].r |= set(R('v', AF(kap)[0], 20) + R('v', AF(kap)[1], 8))
        pos = [1, 5, 9] if kap % 2 == 0 else [3, 7]
        if int(opt.perstep) == 6: pos = [1, 4, 7] if kap % 2 == 0 else [1, 4, 8]
        if int(opt.perstep) == 7: pos = [1, 4, 6, 9] if kap % 2 == 0 else [2, 5, 8]
        if int(opt.perstep) == 8: pos = [1, 4, 6, 9]
        nkv = sum(1 for it in Q.q if it.ins.vmtag[0] in 'kv')
        room = int(opt.alim) - (128 - nkv) + (len(Q.q) - nkv)
        place(gaps, Q, pos[:max(0, room)])
        if int(opt.aonly): sg.addall([x for x in interleave(mf, gaps) if x.k not in ('mfma', 'dsrd')])
        else: sg.addall(interleave(mf, gaps))
    def qfin(q, e, packed):
        b = V_QACC + (e * 5 + q) * 4
        if packed: f_ = [V(f"v_pk_mul_f32 v[{b+r}:{b+r+1}], v[{b+r}:{b+r+1}], s[{S_T1}:{S_T1+1}]", [b+r, b+r+1], [b+r, b+r+1]) for r in (0, 2)]
        else: f_ = [V(f"v_mul_f32 v{b+r}, s{S_T1}, v{b+r}", [b+r], [b+r]) for r in range(4)]
        f_.append(V(f"v_cvt_pk_bf16_f32 v{b}, v{b}, v{b+1}", [b, b+1], [b]))
        f_.append(V(f"v_cvt_pk_bf16_f32 v{b+1}, v{b+2}, v{b+3}", [b+2, b+3], [b+1]))
        f_.append(dswr('ds_write_b64', V_QW + e, ('v', b), 2, q * 4096, lgtag='qw'))
        return f_
    todo = [(q, e) for q in range(5) for e in range(2)]
    if int(opt.aq):
        m14, m15 = a_mfmas(14), a_mfmas(15)
        m14[0].r |= set(R('v', AF(14)[0], 20) + R('v', AF(14)[1], 8))
        mf = flat([[m14[k], m15[k]] for k in range(10)])
        gaps = [[] for _ in mf]
        gi = 5
        while todo and gi + 3 <= 19:
            f_ = qfin(*todo.pop(0), False)
            gaps[gi] += f_[0:2]; gaps[gi + 1] += f_[2:4]; gaps[gi + 2] += f_[4:6]; gaps[gi + 3] = [f_[6]] + gaps[gi + 3]
            gi += 3
        nkv = sum(1 for it in Q.q if it.ins.vmtag[0] in 'kv')
        place(gaps, Q, [1, 4][:max(0, int(opt.alim) - (128 - nkv))])
        sg.addall(interleave(mf, gaps))
    stamp(sg, 9, 'A')
    for q, e in todo: sg.addall(qfin(q, e, True))
    while any(it.ins.vmtag in (('k', 0, 0), ('k', 0, 1)) for it in Q.q): weave(sg, Q, [], 1, 0)
    b = barrier(lg0=False); b.needlg = ('qw',)
    sg.addall(k_reads(0)); Q.mark(('kr', 0, 0)); Q.mark(('kr', 0, 1))
    sg.add(b); Q.mark('BQ'); Q.mark('B8')
    qr = [dsrd('ds_read_b128', AQ(q, s), 4, V_XB + s, QBUF - 120 * KB + q * 4096) for q in range(5) for s in range(4)]
    return qr

def TQ(tau):
    return divmod(tau, 5) if tau < 30 else (6 + ((tau - 30) & 1), (tau - 30) >> 1)
def qk(tau):
    i, q = TQ(tau)
    o = []
    for s, t in ([(s, t) for t in range(2) for s in range(4)] if int(opt.chain) else [(s, t) for s in range(4) for t in range(2)]):
        if True:
            d = ('v', V_S + (tau & 1) * 8 + t * 4)
            o.append(mfma(d, KF(i, t * 4 + s), AQ(q, s), ('v', V_NEGM + q * 4) if s == 0 else d))
            if s == 0 and int(opt.coal) and tau > 4: o[-1].r |= set(R(*KF(i, t * 4), 16))
    return o
def pv(tau):
    i, q = TQ(tau)
    p = ('v', V_P + (tau & 1) * 4)
    o = [mfma(AO(lam, q), ('v', V_VF + (i & 1) * 32 + lam * 4), p, AO(lam, q) if i else 0) for lam in range(8)]
    if int(opt.coal) and 0 < i < 7 + int(opt.v7s): o[0].r |= set(R('v', V_VF + (i & 1) * 32, 24)); o[5].r |= set(R('v', V_VF + (i & 1) * 32 + 24, 8))
    o.insert(0, mfma(LA(q), ('v', V_ONES), p, LA(q) if i else 0))
    return o
def sm(tau):
    b = V_S + (tau & 1) * 8
    p = V_P + (tau & 1) * 4
    e = [T(f"v_exp_f32 v{b+i}, v{b+i}", [b+i], [b+i]) for i in range(8)]
    c = [V(f"v_cvt_pk_bf16_f32 v{p+i}, v{b+2*i}, v{b+2*i+1}", [b+2*i, b+2*i+1], [p+i]) for i in range(4)]
    return e, c
def comb_writes(q):
    o = []
    for jd in range(1, 4):
        for e in range(2):
            u = q * 6 + (jd - 1) * 2 + e
            row = u >> 3
            o.append(dswr('ds_write_b128', V_CW + (row >> 1), AO(2 * jd + e, q), 4, (row & 1) * 32 * KB + (u & 7) * KB, lgtag=('cw', q)))
    o.insert(0, dswr('ds_write_b32', V_LW, LA(q), 1, [0, 4, 16, 20, 24][q], lgtag=('cw', q)))
    return o

def wo_dma(pos, after=None):
    o = []
    for ks in range(4):
        for half in range(2):
            base = (128 * KB if pos < 0 else pos * 32 * KB) + ks * 8 * KB + half * 4 * KB
            if pos < 0:
                pre = [S(f"s_lshl_b32 s{S_SK}, s{S_J}, 17", [S_J], [S_SK])] if ks + half == 0 else []
                h = S_SK
            else: pre, h = [], S_H + pos
            pre += [S(f"s_add_u32 s{S_SO}, s{h}, {ks*32768 + half*16384}", [h], [S_SO]), S(f"s_add_u32 m0, s{S_W1K}, {base}", [S_W1K], [M0])]
            o.append(Item(pre, dma(V_WOD, S_WO, S_SO, 0, ('wo', pos)), after))
    return o
def osib_dma(pos):
    o = []
    for q in range(5):
        pre = [S(f"s_lshr_b32 s{S_SK}, s{S_H+pos}, 5", [S_H+pos], [S_SK])] if q == 0 else []
        pre += [S(f"s_add_u32 s{S_SO}, s{S_SK}, {q*128*KB}", [S_SK], [S_SO]), S(f"s_add_u32 m0, s{S_W5K}, {(140 - 20*pos + q)*KB}", [S_W5K], [M0])]
        o.append(Item(pre, dma(V_OD, S_O, S_SO, 0, ('os', pos), flags=' sc1')))
    return o
def tail_calc():
    o = []; a = o.append
    T0, T1, T2 = 252, 253, 254
    a(V(f"v_lshlrev_b32 v{T0}, 4, v{V_LANE}", [V_LANE], [T0]))
    for jd in range(1, 4):
        a(S(f"s_sub_u32 s{S_T0}, s{S_W}, {jd}", [S_W], [S_T0]))
        a(S(f"s_and_b32 s{S_T0}, s{S_T0}, 3", [S_T0], [S_T0]))
        a(S(f"s_lshl_b32 s{S_T0}, s{S_T0}, 13", [S_T0], [S_T0]))
        a(V(f"v_add_u32 v{V_CR+2*(jd-1)}, s{S_T0}, v{T0}", [T0, ('s', S_T0)], [V_CR+2*(jd-1)]))
        a(V(f"v_add_u32 v{V_CR+2*(jd-1)+1}, {64*KB}, v{V_CR+2*(jd-1)}", [V_CR+2*(jd-1)], [V_CR+2*(jd-1)+1]))
    a(V(f"v_add_u32 v{V_OL}, {96*KB}, v{T0}", [T0], [V_OL]))
    a(V(f"v_add_u32 v{V_OW}, s{S_W5K}, v{V_OL}", [V_OL, ('s', S_W5K)], [V_OW]))
    a(S(f"s_mov_b32 s{S_T0}, {102*KB}", [], [S_T0]))
    a(V(f"v_lshl_add_u32 v{V_LR}, v{V_N}, 5, s{S_T0}", [V_N, ('s', S_T0)], [V_LR]))
    a(S(f"s_add_u32 s{S_T0}, s{S_W8K}, {64*KB}", [S_W8K], [S_T0]))
    for e in range(2):
        a(V(f"v_subrev_u32 v{V_WT+e}, s{S_T0}, v{V_VA+e}", [V_VA+e, ('s', S_T0)], [V_WT+e]))
        a(V(f"v_add_u32 v{V_WT+2+e}, {64*KB}, v{V_WT+e}", [V_WT+e], [V_WT+2+e]))
        a(V(f"v_add_u32 v{V_WT+4+e}, {128*KB}, v{V_WT+e}", [V_WT+e], [V_WT+4+e]))
    if int(opt.dtch_at) < 99:
        a(V(f"v_lshrrev_b32 v{T1}, 3, v{V_LANE}", [V_LANE], [T1]))
        a(V(f"v_min_u32 v{T1}, 4, v{T1}", [T1], [T1]))
        a(V(f"v_and_b32 v{T2}, 7, v{V_LANE}", [V_LANE], [T2]))
        a(V(f"v_lshlrev_b32 v{T2}, 7, v{T2}", [T2], [T2]))
        a(V(f"v_sub_u32 v{T2}, v{T2}, v{T0}", [T2, T0], [T2]))
        a(V(f"v_lshl_add_u32 v66, v{T1}, 17, v{T2}", [T1, T2], [66]))
        a(V(f"v_add_u32 v66, v66, v{V_OST}", [66, V_OST], [66]))
        a(V(f"v_lshl_add_u32 v67, v{T1}, 13, v{T2}", [T1, T2], [67]))
        a(V(f"v_add_u32 v67, v67, v{V_PS}", [67, V_PS], [67]))
    for k in range(5): a(S(f"s_mov_b32 s{S_TAB+k}, {k*8192}", [], [S_TAB+k]))
    return o
def handoff_calc():
    o = []; a = o.append
    T0, T1, T2, T3 = 252, 253, 254, 9
    a(S(f"s_lshl_b32 s{S_T0}, s{S_J}, 12", [S_J], [S_T0]))
    a(V(f"v_subrev_u32 v{V_OD}, s{S_T0}, v{V_OST}", [V_OST, ('s', S_T0)], [V_OD]))
    a(S(f"s_lshl_b32 s{S_T0}, s{S_B}, 2", [S_B], [S_T0]))
    a(S(f"s_add_u32 s{S_T0}, s{S_T0}, s{S_J}", [S_T0, S_J], [S_T0]))
    a(S(f"s_mul_i32 s{S_T0}, s{S_T0}, {20*8*KB}", [S_T0], [S_T0]))
    a(S(f"s_mul_i32 s{S_T1}, s{S_W}, {5*8*KB}", [S_W], [S_T1]))
    a(S(f"s_lshl_b32 s{S_T2}, s{S_HKV}, 10", [S_HKV], [S_T2]))
    a(S(f"s_add_u32 s{S_T2}, s{S_T2}, s{S_T1}", [S_T2, S_T1], [S_T2]))
    a(S(f"s_add_u32 s{S_T2}, s{S_T2}, s{S_T0}", [S_T2, S_T0], [S_T2]))
    a(V(f"v_lshl_add_u32 v{V_PS}, v{V_LANE}, 4, s{S_T2}", [V_LANE, ('s', S_T2)], [V_PS]))
    tr = int(opt.otr)
    if tr:
        a(S(f"s_mul_i32 s{S_T1}, s{S_HKV}, 160", [S_HKV], [S_T1]))
        a(V(f"v_add_u32 v{T0}, s{S_T1}, v0", [0, ('s', S_T1)], [T0]))
    else:
        a(S(f"s_lshl_b32 s{S_T1}, s{S_HKV}, 2", [S_HKV], [S_T1]))
        a(S(f"s_add_u32 s{S_T1}, s{S_T1}, s{S_W}", [S_T1, S_W], [S_T1]))
        a(S(f"s_mul_i32 s{S_T1}, s{S_T1}, 40", [S_T1], [S_T1]))
        a(V(f"v_add_u32 v{T0}, s{S_T1}, v{V_LANE}", [V_LANE, ('s', S_T1)], [T0]))
    if int(opt.pairw):
        a(V(f"v_lshrrev_b32 v{T1}, 6, v{T0}", [T0], [T1]))
        a(V(f"v_cmp_lt_u32 vcc, 9, v{T1}", [T1], [VCC]))
        a(V(f"v_bfe_u32 v{T2}, v{T0}, 5, 1", [T0], [T2]))
        a(V(f"v_mul_u32_u24 v{T2}, 10, v{T2}", [T2], [T2]))
        a(V(f"v_add_u32 v{T1}, v{T1}, v{T2}", [T1, T2], [T1]))
        a(V(f"v_cndmask_b32 v{T2}, 0, 10, vcc", [VCC], [T2]))
        a(V(f"v_add_u32 v{T1}, v{T1}, v{T2}", [T1, T2], [T1]))
        a(V(f"v_and_b32 v{T0}, 31, v{T0}", [T0], [T0]))
        a(V(f"v_lshl_add_u32 v{T0}, v{T1}, 5, v{T0}", [T1, T0], [T0]))
    a(V(f"v_bfe_u32 v{T1}, v{T0}, 5, 1", [T0], [T1]))
    a(V(f"v_and_b32 v{T2}, 7, v{T0}", [T0], [T2]))
    a(V(f"v_lshl_add_u32 v{T1}, v{T1}, 3, v{T2}", [T1, T2], [T1]))
    a(V(f"v_bfe_u32 v{T2}, v{T0}, 3, 2", [T0], [T2]))
    a(V(f"v_lshrrev_b32 v{T0}, 6, v{T0}", [T0], [T0]))
    a(V(f"v_lshl_add_u32 v{T3}, v{T2}, 4, v{T1}", [T1, T2], [T3]))
    a(V(f"v_lshl_add_u32 v{V_PLD}, v{T3}, 4, s{S_T0}", [T3, ('s', S_T0)], [V_PLD]))
    a(V(f"v_lshl_add_u32 v{V_PLD}, v{T0}, 13, v{V_PLD}", [T0, V_PLD], [V_PLD]))
    a(V(f"v_mul_u32_u24 v{T3}, 52, v{T0}", [T0], [T3]))
    a(V(f"v_lshrrev_b32 v{T3}, 8, v{T3}", [T3], [T3]))
    if tr:
        a(V(f"v_and_b32 v{T1}, 8, v{T1}", [T1], [T1]))
        a(V(f"v_bfe_u32 v{T2}, v0, 2, 3", [0], [T2]))
        a(V(f"v_add_u32 v{T1}, v{T1}, v{T2}", [T1, T2], [T1]))
        a(V(f"v_and_b32 v{T2}, 3, v0", [0], [T2]))
    a(V(f"v_lshlrev_b32 v{T2}, {4 if tr else 3}, v{T2}", [T2], [T2]))
    a(V(f"v_lshl_add_u32 v{T2}, v{T3}, 6, v{T2}", [T3, T2], [T2]))
    a(V(f"v_lshl_add_u32 v{T2}, v{T1}, 10, v{T2}", [T1, T2], [T2]))
    a(V(f"v_mul_u32_u24 v{T3}, 5, v{T3}", [T3], [T3]))
    a(V(f"v_sub_u32 v{T0}, v{T0}, v{T3}", [T0, T3], [T0]))
    a(V(f"v_lshl_add_u32 v{T2}, v{T0}, 14, v{T2}", [T0, T2], [T2]))
    a(S(f"s_mul_i32 s{S_T0}, s{S_B}, 81920", [S_B], [S_T0]))
    a(S(f"s_lshl_b32 s{S_T2}, s{S_J}, 8", [S_J], [S_T2]))
    a(S(f"s_add_u32 s{S_T0}, s{S_T0}, s{S_T2}", [S_T0, S_T2], [S_T0]))
    a(V(f"v_add_u32 v{V_OUT}, s{S_T0}, v{T2}", [T2, ('s', S_T0)], [V_OUT]))
    a(V(f"v_cmp_gt_u32 vcc, 160, v0", [0], [VCC]) if tr else V(f"v_cmp_gt_u32 vcc, 40, v{V_LANE}", [V_LANE], [VCC]))
    a(V(f"v_mov_b32 v{T0}, 0x7ff00000", [], [T0]))
    a(V(f"v_cndmask_b32 v{V_PLD}, v{T0}, v{V_PLD}, vcc", [T0, V_PLD, VCC], [V_PLD]))
    a(V(f"v_cndmask_b32 v{V_OUT}, v{T0}, v{V_OUT}, vcc", [T0, V_OUT, VCC], [V_OUT]))
    for pv_, n_, sh, sg_ in ((V_P1, 4, 9, S_G1), (V_P2, 8, 11, S_G2)):
        a(V(f"v_lshl_add_u32 v{pv_}, v{V_LANE}, {sh}, s{sg_}", [V_LANE, ('s', sg_)], [pv_]))
        a(V(f"v_cmp_gt_u32 vcc, {n_}, v{V_LANE}", [V_LANE], [VCC]))
        a(V(f"v_cndmask_b32 v{pv_}, v{T0}, v{pv_}, vcc", [T0, pv_, VCC], [pv_]))
    return o
def wod_calc():
    o = []; a = o.append
    T0, T1 = 252, 253
    a(S(f"s_lshl_b32 s{S_T0}, s{S_B}, 2", [S_B], [S_T0]))
    a(S(f"s_add_u32 s{S_T0}, s{S_T0}, s{S_W}", [S_T0, S_W], [S_T0]))
    a(S(f"s_lshl_b32 s{S_T0}, s{S_T0}, 14", [S_T0], [S_T0]))
    a(S(f"s_lshl_b32 s{S_T2}, s{S_J}, 8", [S_J], [S_T2]))
    a(S(f"s_add_u32 s{S_T0}, s{S_T0}, s{S_T2}", [S_T0, S_T2], [S_T0]))
    a(V(f"v_bfe_u32 v{T0}, v{V_LANE}, 1, 4", [V_LANE], [T0]))
    a(V(f"v_and_b32 v{T1}, 1, v{V_LANE}", [V_LANE], [T1]))
    a(V(f"v_lshlrev_b32 v{T1}, 7, v{T1}", [T1], [T1]))
    a(V(f"v_lshl_add_u32 v{T0}, v{T0}, 10, v{T1}", [T0, T1], [T0]))
    a(V(f"v_add_u32 v{V_TCH}, s{S_T0}, v{T0}", [T0, ('s', S_T0)], [V_TCH]))
    a(S(f"s_and_b32 s{S_T0}, s{S_W}, 1", [S_W], [S_T0]))
    a(S(f"s_lshl_b32 s{S_T0}, s{S_T0}, 3", [S_T0], [S_T0]))
    a(V(f"v_lshl_add_u32 v{T0}, v{V_G}, 1, s{S_T0}", [V_G, ('s', S_T0)], [T0]))
    a(V(f"v_xor_b32 v{T0}, v{V_N}, v{T0}", [V_N, T0], [T0]))
    a(S(f"s_lshl_b32 s{S_T0}, s{S_J}, 8", [S_J], [S_T0]))
    a(V(f"v_lshl_add_u32 v{T0}, v{T0}, 4, s{S_T0}", [T0, ('s', S_T0)], [T0]))
    a(V(f"v_lshl_add_u32 v{T1}, s{S_W}, 2, v{V_G}", [V_G, ('s', S_W)], [T1]))
    a(V(f"v_lshl_add_u32 v{V_WOD}, v{T1}, 10, v{T0}", [T0, T1], [V_WOD]))
    return o

def phase_b(sg, Q, qr):
    NT = 8
    calc = wod_calc() + tail_calc()
    sg.addall(qr[:4])
    weave(sg, Q, [], int(opt.bq), 0)
    qr = qr[4:]
    for tau in range(-1, 40):
        i, q = divmod(tau, 5) if tau >= 0 else (-1, 4)
        mf = []
        bst = [int(x) for x in opt.bst.split(',')]
        if tau in bst: stamp(sg, 5 + bst.index(tau), 'B')
        if tau + 1 < 40: mf += qk(tau + 1)
        if tau - 1 >= 0: mf += pv(tau - 1)
        ds, marks = [], []
        if tau == -1: ds = qr[:8] if int(opt.b0s) else qr
        elif tau == 0 and int(opt.b0s): v0 = v_reads(0); ds = [v0[l + 8 * h] for l in range(5) for h in range(2)]
        elif tau == 1 and int(opt.b0s): v0 = v_reads(0); ds = [v0[l + 8 * h] for l in range(5, 8) for h in range(2)] + qr[8:11]; marks = [('vr', 0, 0), ('vr', 0, 1)]
        elif tau == 2 and int(opt.b0s): ds = qr[11:16] + k_reads(1)[:4]; marks = [('kr', 1, 0)]
        elif tau == 0: ds = v_reads(0); marks = [('vr', 0, 0), ('vr', 0, 1)]
        elif tau < 27:
            if q == 2: ds = k_reads(i + 1)[:4]; marks = [('kr', i + 1, 0)]
            if q == 3: ds = k_reads(i + 1)[4:] + v_reads(i + 1)[:2]; marks = [('kr', i + 1, 1)]
            if q == 4: ds = v_reads(i + 1)[2:8]; marks = [('vr', i + 1, 0)]
            if q == 0: ds = v_reads(i)[8:14]
            if q == 1 and i > 0: ds = v_reads(i)[14:]; Q.mark(('vr', i, 1))
        xp = None
        if tau >= 27:
            k6, k7, v6, v7 = k_reads(6), k_reads(7), v_reads(6), v_reads(7)
            vo = [v7[l + 8 * h] for l in range(8) for h in range(2)]
            G = [1, 3, 5, 7, 9, 11, 13, 15, 16]
            def cwp(q_, second):
                w_ = comb_writes(q_)
                if int(opt.w64) and q_ < 2:
                    h_ = []
                    for x in w_[1:]:
                        m_ = re.match(r"ds_write_b128 v(\d+), a\[(\d+):\d+\] offset:(\d+)", x.t)
                        for z in range(2): h_.append(dswr('ds_write_b64', int(m_.group(1)), ('a', int(m_.group(2)) + 2 * z), 2, int(m_.group(3)) + 8 * z, lgtag=x.lgtag))
                    return list(zip([1, 3, 5, 9, 13, 16], h_[6:])) if second else list(zip([7, 1, 3, 5, 9, 13, 16], [w_[0]] + h_[:6]))
                return list(zip([1, 9, 13], w_[4:])) if second else list(zip([7, 1, 9, 13], w_[:4]))
            xp = {27: list(zip([3, 5, 9, 11, 15, 16], k6[:4] + v6[:2])),
                  28: list(zip([1, 3, 5, 7, 9, 11, 13, 15, 16], k6[4:] + k7[:5])),
                  29: list(zip(G, k7[5:] + v6[2:8])),
                  30: list(zip([1, 3, 5, 7, 9, 11, 13, 15, 16, 16], v6[8:] + vo[:2])),
                  31: list(zip([1, 3, 5, 7, 9, 11, 13, 15, 16, 16], vo[2:12])) if int(opt.v7s) else list(zip([1, 1, 3, 5, 5, 7, 9, 9, 11, 13, 13, 15, 16, 16], vo[2:])),
                  32: list(zip([1, 3, 5, 7], vo[12:])) if int(opt.v7s) else [], 33: cwp(0, 0), 34: cwp(0, 1), 35: cwp(1, 0), 36: cwp(1, 1), 37: cwp(2, 0),
                  38: cwp(2, 1) + list(zip([3, 5, 5, 7, 11, 15, 16, 16], lreads((0, 1)) + preads(0)[:4])),
                  39: list(zip([0, 2, 4, 6], comb_writes(3)[:4])) + list(zip([1, 1, 3, 3, 5, 5, 7, 7], preads(0)[4:] + preads(1)))}[tau]
            if int(opt.x1e) and tau >= 36:
                xp = {36: list(zip([1, 5, 9], comb_writes(1)[4:])),
                      37: cwp(2, 0) + list(zip([3, 5, 11, 15, 16, 16], preads(0))),
                      38: cwp(2, 1) + list(zip([3, 5, 5, 7, 11, 15, 16, 16], lreads((0, 1)) + preads(1)[:4])),
                      39: list(zip([1, 3, 5, 7], comb_writes(3)[:4])) + list(zip([0, 8], preads(1)[4:]))}[tau]
            ds = [x for _, x in xp]; marks = []
            if tau == (37 if int(opt.x1e) else 38):
                b = barrier(needvm=[('wo', -1)], lg0=False); b.needlg = (('cw', 0), ('cw', 1)); sg.add(b)
        n = len(mf)
        gaps = [[] for _ in range(n)]
        e, c = sm(tau) if 0 <= tau < 40 else ([], [])
        if n == 17:
            epos = [0, 2, 4, 6, 8, 10, 12, 14]; cpos = [3, 7, 11, 15]
            dpos = [1, 3, 5, 7, 9, 11, 13, 15] if len(ds) > 4 else [1, 3, 5, 7]
            if ds and ds[0].k == 'dswr': dpos = [1, 1, 3, 7, 9, 13, 16]
            vpos = [1, 5, 9, 13] if (tau < int(opt.even_at) or q == 1) else [1, 7, 13]
            if int(opt.bsched) and not (ds and ds[0].k == 'dswr'):
                if q == 1: dpos, vpos = [1, 3], [5, 9, 13, 16]
                elif tau < int(opt.even_at) or tau >= int(opt.even_end): dpos, vpos = ([3, 7, 11, 15, 16, 16] if q != 3 else [1, 3, 7, 11, 15, 16]), ([1, 5, 9, 13] if q != 3 else [5, 9, 13, 16])
                else: dpos, vpos = [3, 5, 9, 11, 15, 16], [1, 7, 13]
        else:
            epos = list(range(8)); cpos = [min(n - 1, x) for x in (2, 4, 6, 8)]
            dpos = [(k * n) // max(1, len(ds)) for k in range(len(ds))]
            vpos = [int(x) for x in opt.spos.split(',')] if tau < 5 else [1, 5]
        if int(opt.b0s) and tau in (1, 2): dpos, vpos = [1, 1, 3, 5, 5, 7, 11, 15, 16], [9, 13]
        if xp is not None:
            dpos = [g_ for g_, _ in xp]; vpos = [int(x) for x in opt.wpos.split(',')] if tau >= 32 else [13]
            if tau == 27: vpos = [1, 7, 13]
        for x, p_ in zip(ds, dpos): gaps[p_].append(x)
        if tau == int(opt.nl_at):
            sg.add(V("v_mov_b32 v9, 0", [], [9]))
            Q.q.insert(0, Item([], vload(('v', V_GC), 2, 9, S_D, None, 0, flags=' sc1', tag='non')))
        if tau == int(opt.nc_at):
            assert not any(it.ins.vmtag == 'non' for it in Q.q)
            sg.add(V(f"v_readfirstlane_b32 s{S_NON}, v{V_GC}", [V_GC], [('s', S_NON)]))
            sg.add(V(f"v_readfirstlane_b32 s{S_NON+1}, v{V_GC+1}", [V_GC+1], [('s', S_NON+1)]))
            sg.add(S(f"s_cmp_eq_u64 s[{S_NON}:{S_NON+1}], 0", [S_NON, S_NON+1], []))
            sg.text("s_cbranch_scc1 L_spin_n"); sg.text("L_back_n:")
        if tau == 32: stamp_out(sg, 1) if opt.stamps == 'Z' else None
        if tau == int(opt.bar_at): sg.add(barrier(lg0=False))
        for x in ds:
            while any(it.ins.vmtag in x.needvm for it in Q.q): weave(sg, Q, [], 1, 0)
        if tau == int(opt.tch_at): Q.push([Item([], vload(('v', V_TCH + 1), 1, V_TCH, S_WO, None, 0, flags=opt.tch_flags))])
        if tau == int(opt.tlb_at):
            Q.push([Item([], vload(('v', 72), 1, V_ZERO, S_C, S_F1, 0, flags=' sc1')), Item([], vload(('v', 73), 1, V_ZERO, S_C, S_F2, 0, flags=' sc1'))])
        if tau == int(opt.cpf2_at):
            for x in ["s_getpc_b64 s[94:95]", "L_pc2:", "s_lshr_b32 s92, s2, 3", f"s_lshl_b32 s92, s92, 2", f"s_add_u32 s92, s92, s{S_W}", "s_lshl_b32 s92, s92, 7",
                      f"s_add_u32 s92, s92, {int(opt.cpf2_skip)}", "s_min_u32 s92, s92, (L_code_end - L_pc2 - 4) & 0xffffff80", "v_mov_b32 v74, s92", "global_load_dword v255, v74, s[94:95]"]: sg.text(x)
        if tau == int(opt.dtch_at):
            assert not calc
            Q.push(([Item([], vload(('v', 74), 1, 66, S_O, None, 0, flags=opt.dtch_flags))] if 'o' in opt.dtch else []) + ([Item([], vload(('v', 75), 1, 67, S_WT, None, 0, flags=opt.dtch_flags))] if 'p' in opt.dtch else []))
        if tau == int(opt.otch_at): Q.push([Item([], vload(('v', 66), 1, V_OUT, S_OUT, None, 0, flags=opt.otch_flags))])
        if tau == int(opt.wo_at): assert not calc; Q.push(wo_dma(-1))
        place(gaps, Q, vpos)
        for x, p_ in zip(e, epos): gaps[p_].append(x)
        for x, p_ in zip(c, cpos): gaps[p_].append(x)
        if tau >= int(opt.calc_at) and n == 17:
            for gi in range(17):
                if calc and calc[0].k == 'salu' and not any(y.k == 'salu' for y in gaps[gi]): gaps[gi].insert(0, calc.pop(0))
                cost = sum(8 if y.k == 'trans' else 0 if y.k == 'salu' else 4 for y in gaps[gi])
                while calc and calc[0].k != 'salu' and cost <= 4: gaps[gi].append(calc.pop(0)); cost += 4
        sg.addall(interleave(mf, gaps))
        for m in marks: Q.mark(m)

def poll(sg, lab, vaddr):
    sg.text(f"s_mov_b32 s{S_SPIN}, {opt.spin}")
    sg.text(f"{lab}:")
    sg.text(f"buffer_load_dwordx2 v[250:251], v{vaddr}, s[{S_C}:{S_C+3}], 0 offen sc1")
    sg.text(f"s_sub_u32 s{S_SPIN}, s{S_SPIN}, 1")
    sg.text("s_waitcnt vmcnt(0)")
    sg.text(f"v_cmp_ne_u64 vcc, s[{S_NON}:{S_NON+1}], v[250:251]")
    sg.text(f"s_cmp_eq_u32 s{S_SPIN}, 0")
    sg.text(f"s_cbranch_scc1 {lab}_done")
    sg.text("s_nop 2")
    sg.text(f"s_cbranch_vccnz {lab}")
    sg.text(f"{lab}_done:")
    sg.vm = []
def raise_flag(sg, stage, tag):
    ins = vstore(('v', V_GC), 2, V_P1 if stage == 1 else V_P2, S_C, None, 0, flags=' sc1')
    ins.needvm = (tag,)
    sg.add(ins)
WOF = A_Q
RES = 100
def part(q, k):
    if q == 0: return 36 + 4 * k if k < 4 else 64 + 4 * (k - 4)
    return {1: 100, 2: 164, 3: 188, 4: 100}[q] + 4 * k
def preads(q):
    o = []
    for jd in range(1, 4):
        for e in range(2):
            k = (jd - 1) * 2 + e; u = q * 6 + k; row = u >> 3
            o.append(dsrd('ds_read_b128', ('v', part(q, k)), 4, V_CR + 2 * (jd - 1) + (row >> 1), (row & 1) * 32 * KB + (u & 7) * KB))
    return o
LSA, LSB = 124, 76
def lreads(qs):
    if qs == (0, 1): return [dsrd('ds_read_b64', ('v', LSA + src * 2), 2, V_LR, src * 8 * KB) for src in range(4)]
    if qs == (2, 3): return [dsrd('ds_read_b64', ('v', LSB + src * 4), 2, V_LR, src * 8 * KB + 16) for src in range(4)]
    if qs == (4,): return [dsrd('ds_read_b32', ('v', LSB + src * 4 + 2), 1, V_LR, src * 8 * KB + 24) for src in range(4)]
    return [dsrd('ds_read_b128', ('v', LSB + src * 4), 4, V_LR, src * 8 * KB + 16) for src in range(4)]
def lsum(qs):
    w = []
    def lr(src, q): return LSA + src * 2 + q if q < 2 else LSB + src * 4 + q - 2
    LS = lr(0, qs[0])
    for q in qs:
        d = V_T0 + q
        w.append(V(f"v_add_f32 v{d}, v{lr(0,q)}, v{lr(1,q)}", [lr(0,q), lr(1,q)], [d]))
        w.append(V(f"v_add_f32 v{lr(2,q)}, v{lr(2,q)}, v{lr(3,q)}", [lr(2,q), lr(3,q)], [lr(2,q)]))
        w.append(V(f"v_add_f32 v{d}, v{d}, v{lr(2,q)}", [d, lr(2,q)], [d]))
    lo_, hi_ = LS, LS + 1
    if len(qs) == 1: lo_ = hi_ = V_T0 + qs[0]
    else:
        a_, b_, c_ = V_T0 + qs[0], V_T0 + qs[1], V_T0 + qs[-1]
        w.append(V(f"v_min3_f32 v{LS}, v{a_}, v{b_}, v{c_}", [a_, b_, c_], [LS]))
        w.append(V(f"v_add_f32 v{LS+1}, v{a_}, v{b_}", [a_, b_], [LS+1]))
        if len(qs) == 3: w.append(V(f"v_add_f32 v{LS+1}, v{LS+1}, v{c_}", [LS+1, c_], [LS+1]))
    w.append(V(f"v_cmp_nle_f32 vcc, {f2h(2.0**int(opt.lo_exp))}, v{lo_}", [lo_], [VCC]))
    w.append(S(f"s_mov_b64 s[{S_EX}:{S_EX+1}], vcc", [VCC], [S_EX, S_EX+1]))
    w.append(V(f"v_cmp_nge_f32 vcc, {f2h(2.0**int(opt.hi_exp))}, v{hi_}", [hi_], [VCC]))
    w.append(S(f"s_or_b64 vcc, vcc, s[{S_EX}:{S_EX+1}]", [VCC, S_EX, S_EX+1], [VCC]))
    w.append(S(f"s_and_b64 vcc, vcc, s[{S_GM}:{S_GM+1}]", [VCC], [VCC]))
    w.append(raw("s_cbranch_vccnz L_redo"))
    for q in qs: w.append(T(f"v_rcp_f32 v{V_T0+q}, v{V_T0+q}", [V_T0+q], [V_T0+q]))
    return w
def finish(q):
    w = []
    for e in range(2):
        o_ = V_OWN[q] + e * 4
        for jd in range(1, 4):
            p_ = part(q, (jd - 1) * 2 + e)
            for r in (0, 2):
                w.append(V(f"v_pk_add_f32 v[{o_+r}:{o_+r+1}], v[{o_+r}:{o_+r+1}], v[{p_+r}:{p_+r+1}]", [o_+r, o_+r+1, p_+r, p_+r+1], [o_+r, o_+r+1]))
    o_ = V_OWN[q]
    ri = V_T0 + (q & ~1); sel = "op_sel:[0,1] op_sel_hi:[1,1]" if q & 1 else "op_sel:[0,0] op_sel_hi:[1,0]"
    for r in range(0, 8, 2):
        w.append(V(f"v_pk_mul_f32 v[{o_+r}:{o_+r+1}], v[{o_+r}:{o_+r+1}], v[{ri}:{ri+1}] {sel}", [o_+r, o_+r+1, V_T0+q], [o_+r, o_+r+1]))
    for r in range(4):
        w.append(V(f"v_cvt_pk_bf16_f32 v{o_+r}, v{o_+2*r}, v{o_+2*r+1}", [o_+2*r, o_+2*r+1], [o_+r]))
    w.append(S(f"s_mov_b32 s{S_SV}, {q*128*KB}", [], [S_SV]))
    w.append(vstore(('v', o_), 4, V_OST, S_O, S_SV, 0, flags=opt.o_flags, tag='ost'))
    return w
def wor():
    return [dsrd('ds_read_b64_tr_b16', ('a', WOF + (ks * 2 + e) * 4 + h * 2), 2, V_WT + 4 + e, ks * 8 * KB + h * 4096) for ks in range(4) for e in range(2) for h in range(2)]
def combine(sg, Q):
    assert not Q.q
    mf = pv(39); gaps = [[] for _ in mf]
    wr = comb_writes(3)[4:]; ls = lsum((0, 1))
    for k, x in enumerate(wr): gaps[3 * k].append(x)
    k = 0
    for gi in range(9):
        n_ = 2 - len(gaps[gi])
        while ls and (n_ > 0 or ls[0].k == 'salu') and gi < 9:
            x = ls.pop(0); gaps[gi].append(x)
            n_ -= 0 if x.k == 'salu' else 2 if x.k == 'trans' else 1
    sg.addall(interleave(mf, gaps))
    stamp(sg, 4)
    if int(opt.c3):
        sg.addall(ls + finish(0))
        b = barrier(lg0=False); b.needlg = (('cw', 2), ('cw', 3)); sg.add(b)
        w4 = comb_writes(4)
        rd = lreads((2, 3)) + preads(2) + preads(3)
        for k in range(len(rd)):
            sg.add(rd[k])
            if k % 3 == 1 and w4: sg.add(w4.pop(0))
        w = finish(1) + lsum((2, 3)) + finish(2)
        for k, x in enumerate(w4): w.insert(4 + 8 * k, x)
        sg.addall(w)
        sg.add(barrier())
        stamp(sg, 5)
        Q.push(wo_dma(0))
        rd = lreads((4,)) + preads(4)
        weave(sg, Q, rd, int(opt.cw), 5)
        sg.addall(rd + finish(3) + lsum((4,)) + finish(4))
        stamp(sg, 6)
        return
    w4 = comb_writes(4)
    w = ls + finish(0) + finish(1)
    for k, x in enumerate(w4): w.insert(min(len(w), 6 + k * 6), x)
    sg.addall(w)
    sg.add(barrier())
    stamp(sg, 5)
    Q.push(wo_dma(0))
    rd = lreads((2, 3, 4)) + preads(2) + preads(3)
    weave(sg, Q, rd, int(opt.cw), 2)
    sg.addall(rd)
    w = lsum((2, 3, 4)) + preads(4) + finish(2) + finish(3) + finish(4)
    if not int(opt.worlate):
        for k, x in enumerate(wor()): w.insert(30 + 3 * k, x)
    sg.addall(w)
    stamp(sg, 6)

def phase_c(sg, Q):
    a = sg.add
    ACC = 164
    a(barrier())
    stamp(sg, 5, 'D')
    for q in range(5): a(dswr('ds_write_b128', V_OW, ('v', V_OWN[q]), 4, q * KB))
    Q.push(wo_dma(1) + wo_dma(2))
    wr_ = wor() if int(opt.worlate) else []
    weave(sg, Q, wr_, int(opt.shadow), 3)
    sg.addall(wr_)
    stamp(sg, 6, 'D')
    a(barrier())
    def CF(k): return [(100, 120), (64, 84), (204, 36)][k % 3]
    def c_reads(k):
        pos, ks = divmod(k, 4); pos -= 1
        xf, wf = CF(k)
        ob = 0 if pos < 0 else (44 - 20 * pos) * KB
        xr = [dsrd('ds_read_b128', ('v', xf + q * 4), 4, V_OL, ob + (ks * 5 + q) * KB) for q in range(5)]
        if pos < 0: return xr
        wb = (pos * 4 + ks) * 8 * KB
        wr = [dsrd('ds_read_b64_tr_b16', ('v', wf + e * 4 + h * 2), 2, V_WT + (2 if wb >= 64 * KB else 0) + e, (wb % (64 * KB)) + h * 4096) for e in range(2) for h in range(2)]
        return wr[:2] + xr[:1] + wr[2:] + xr[1:]
    def c_mfmas(k):
        xf, wf = CF(k)
        ff = 'v'
        if k < 4: wf, ff = WOF + k * 8, 'a'
        o = []
        for q in range(5):
            for e in range(2):
                d = ('v', ACC + (q * 2 + e) * 4)
                o.append(mfma(d, (ff, wf + e * 4), ('v', xf + q * 4), 0 if k == 0 else d))
        o[0].r |= set(R('v', xf, 20) + R(ff, wf, 8))
        return o
    def step(k, nx, pos=()):
        mf = c_mfmas(k); gaps = [[] for _ in mf]
        if nx is not None:
            for i, r in enumerate(c_reads(nx)): gaps[i].append(r)
        place(gaps, Q, pos)
        sg.addall(interleave(mf, gaps))
    def own_steps():
        for k in range(4): step(k, k + 2 if k < 2 else None, [1, 5, 9] if k % 2 == 0 else [3, 7])
    sg.addall(c_reads(0)); sg.addall(c_reads(1))
    raise_flag(sg, 1, 'ost')
    stamp(sg, 7, 'D'); stamp(sg, 7)
    weave(sg, Q, [], min(len(Q.q), int(opt.pf)), 0)
    held = Q.q; Q.q = []
    stamp(sg, 8, 'D')
    t = [f"s_mov_b32 s{S_SPIN}, {opt.spin}", "L_poll1:", f"s_load_dwordx8 s[4:11], s[{S_C}:{S_C+1}], s{S_F1} glc", f"s_sub_u32 s{S_SPIN}, s{S_SPIN}, 1", "s_waitcnt lgkmcnt(0)",
         f"s_cmp_eq_u32 s{S_SPIN}, 0", "s_cbranch_scc1 L_poll1_done"]
    t += [f"s_lshl_b32 s{S_T0}, 1, s{S_J}"]
    for h in range(4): t += [f"s_cmp_eq_u64 s[{4+2*h}:{5+2*h}], s[{S_NON}:{S_NON+1}]", f"s_cselect_b32 s{S_T1}, {1 << h}, 0", f"s_or_b32 s{S_T0}, s{S_T0}, s{S_T1}"]
    t += [f"s_cmp_lg_u32 s{S_T0}, 15", "s_cbranch_scc1 L_poll1", "L_poll1_done:"]
    if int(opt.peek) & 1:
        sets = [4, 12, 76, 84]
        t = [f"s_mov_b32 s{S_SPIN}, {opt.spin}", f"s_lshl_b32 s{S_T2}, 1, s{S_J}", "s_waitcnt lgkmcnt(0)"]
        for b_ in sets: t += [f"s_mov_b64 s[{b_+2*h}:{b_+2*h+1}], 0" for h in range(4)]
        t += ["L_poll1:", f"s_sub_u32 s{S_SPIN}, s{S_SPIN}, 1", f"s_cmp_eq_u32 s{S_SPIN}, 0", "s_cbranch_scc1 L_poll1_done"]
        for b_ in sets:
            t += [f"s_mov_b32 s{S_T0}, s{S_T2}"]
            for h in range(4): t += [f"s_cmp_eq_u64 s[{b_+2*h}:{b_+2*h+1}], s[{S_NON}:{S_NON+1}]", f"s_cselect_b32 s{S_T1}, {1 << h}, 0", f"s_or_b32 s{S_T0}, s{S_T0}, s{S_T1}"]
            t += [f"s_cmp_eq_u32 s{S_T0}, 15", "s_cbranch_scc1 L_poll1_done", f"s_load_dwordx8 s[{b_}:{b_+7}], s[{S_C}:{S_C+1}], s{S_F1} glc"] + ["s_nop 7"] * int(opt.pgap)
        t += ["s_branch L_poll1", "L_poll1_done:"]
    for x in t: sg.text(x)
    sg.lg = []
    stamp(sg, 9, 'D')
    stamp(sg, 5, 'E')
    stamp(sg, 8)
    assert all(it.ins.vmtag == ('wo', 2) for it in held)
    Q.push(osib_dma(0) + osib_dma(1) + held)
    weave(sg, Q, [], 5, 0); own_steps()
    weave(sg, Q, [], len(Q.q), 0)
    stamp(sg, 6, 'E')
    a(barrier(needvm=[('os', 0), ('wo', 0), ('wo', 1)]))
    stamp(sg, 7, 'E')
    Q.push(osib_dma(2))
    sg.addall(c_reads(4)); sg.addall(c_reads(5))
    def pfin(q):
        b = ACC + q * 8
        return [V(f"v_cvt_pk_bf16_f32 v{b+r}, v{b+2*r}, v{b+2*r+1}", [b+2*r, b+2*r+1], [b+r]) for r in range(4)] + [vstore(('v', b), 4, V_PS, S_WT, S_TAB + q, 0, flags=' sc1', tag='pst')]
    last = 16 - (2 if int(opt.qmaj) else 0)
    for k in range(4, last):
        nx = k + 2 if k + 2 < 16 else None
        if nx in (8, 12):
            assert not Q.q or nx == 8
            a(barrier(needvm=[('os', nx // 4 - 1), ('wo', nx // 4 - 1)], lg0=False))
            stamp(sg, 8 if nx == 8 else 9, 'E')
        step(k, nx, [1, 5, 9] if k % 2 == 0 else [3, 7])
    if int(opt.qmaj):
        m14, m15 = c_mfmas(14), c_mfmas(15)
        m15[0].r -= set(R('v', CF(15)[0] + 4, 16))
        mf = flat([[m14[2*q], m15[2*q], m14[2*q+1], m15[2*q+1]] for q in range(5)])
        gaps = [[] for _ in mf]
        for q in range(4):
            f_ = pfin(q)
            g0 = 4 * q + 6
            if g0 + 2 < 20:
                gaps[g0] += f_[0:2]; gaps[g0 + 1] += f_[2:4]; gaps[g0 + 2] += f_[4:]
        sg.addall(interleave(mf, gaps))
        stamp(sg, 9)
        sg.addall(pfin(3) + pfin(4))
    else:
        stamp(sg, 9)
        for q in range(5): sg.addall(pfin(q))
    a(S(f"s_mov_b32 s{S_SO}, 4096", [], [S_SO]))
    a(S(f"s_mov_b32 s{S_T1}, 0xffff0000", [], [S_T1]))
    a(S(f"s_mov_b32 s{S_SPIN}, {opt.spin}", [], [S_SPIN]))
    a(S(f"s_mov_b32 s{S_T2}, 0", [], [S_T2]))
    a(S(f"s_mov_b32 s{S_SK}, 0", [], [S_SK]))
    if int(opt.f2wg):
        a(barrier(needvm=['pst'], lg0=False))
        sg.text(f"s_cmp_lg_u32 s{S_W}, 0"); sg.text("s_cbranch_scc1 L_sig2"); raise_flag(sg, 2, 'pst'); sg.text("L_sig2:")
    else: raise_flag(sg, 2, 'pst')
    stamp(sg, 5, '2')
    if int(opt.otr):
        a(V("v_lshlrev_b32 v11, 4, v0", [0], [11]))
        a(V("v_and_b32 v10, 0xe0, v0", [0], [10])); a(V("v_lshlrev_b32 v10, 4, v10", [10], [10]))
        a(V("v_and_b32 v12, 7, v0", [0], [12])); a(V("v_lshl_add_u32 v10, v12, 6, v10", [12, 10], [10]))
        a(V("v_bfe_u32 v12, v0, 3, 2", [0], [12])); a(V("v_lshl_add_u32 v10, v12, 3, v10", [12, 10], [10]))
        sg.text(f"s_cmp_eq_u32 s{S_W}, 3"); sg.text("s_cbranch_scc1 L_fin")
    PB, SM = 100, 132
    def pl(h): return vload(('v', PB + 4 * h), 4, V_PLD, S_WT, S_SO if h >= 4 else None, (h & 3) * 1024, flags=' sc1')
    t = ["L_poll2:", f"s_load_dwordx16 s[4:19], s[{S_C}:{S_C+1}], s{S_F2} glc", f"s_cmp_eq_u32 s{S_SK}, 0", "s_cbranch_scc1 L_nounp", "L_unp:", "s_waitcnt vmcnt(0)"]
    for h in range(8):
        t += [f"s_bitcmp1_b32 s{S_SK}, {h}", f"s_cbranch_scc0 L_u{h}"]
        for r in range(4): t += [f"v_lshlrev_b32 v{SM+8*h+2*r}, 16, v{PB+4*h+r}", f"v_and_b32 v{SM+8*h+2*r+1}, s{S_T1}, v{PB+4*h+r}"]
        t += [f"L_u{h}:"]
    t += [f"s_cmp_eq_u32 s{S_T2}, 0xff", "s_cbranch_scc1 L_poll2_done", "L_nounp:", f"s_mov_b32 s{S_SK}, 0", f"s_sub_u32 s{S_SPIN}, s{S_SPIN}, 1", "s_waitcnt lgkmcnt(0)",
          f"s_cmp_eq_u32 s{S_SPIN}, 0", "s_cbranch_scc1 L_poll2_done"]
    for h in range(8):
        t += [f"s_cmp_lg_u64 s[{4+2*h}:{5+2*h}], s[{S_NON}:{S_NON+1}]", f"s_cbranch_scc1 L_g{h}", f"s_bitcmp1_b32 s{S_T2}, {h}", f"s_cbranch_scc1 L_g{h}",
              f"s_bitset1_b32 s{S_T2}, {h}", f"s_bitset1_b32 s{S_SK}, {h}", pl(h).t, f"L_g{h}:"]
    t += [f"s_cmp_lg_u32 s{S_T2}, 0xff", "s_cbranch_scc1 L_poll2", "s_branch L_unp", "L_poll2_done:"]
    if not int(opt.unp):
        t = ["L_poll2:", f"s_load_dwordx16 s[4:19], s[{S_C}:{S_C+1}], s{S_F2} glc", f"s_sub_u32 s{S_SPIN}, s{S_SPIN}, 1", "s_waitcnt lgkmcnt(0)", f"s_cmp_eq_u32 s{S_SPIN}, 0", "s_cbranch_scc1 L_poll2_done"]
        for h in range(8):
            t += [f"s_cmp_lg_u64 s[{4+2*h}:{5+2*h}], s[{S_NON}:{S_NON+1}]", f"s_cbranch_scc1 L_g{h}", f"s_bitcmp1_b32 s{S_T2}, {h}", f"s_cbranch_scc1 L_g{h}",
                  f"s_bitset1_b32 s{S_T2}, {h}", f"s_bitset1_b32 s{S_SK}, {h}", pl(h).t, f"L_g{h}:"]
        t += [f"s_cmp_eq_u32 s{S_T2}, 0xff", "s_cbranch_scc1 L_poll2_done", f"s_mov_b32 s{S_SK}, 0", "s_branch L_poll2", "L_poll2_done:"]
        if int(opt.peek) & 2:
            t = ["s_waitcnt lgkmcnt(0)"]
            for b_ in (4, 76): t += [f"s_mov_b64 s[{b_+2*h}:{b_+2*h+1}], 0" for h in range(8)]
            t += ["L_poll2:", f"s_sub_u32 s{S_SPIN}, s{S_SPIN}, 1", f"s_cmp_eq_u32 s{S_SPIN}, 0", "s_cbranch_scc1 L_poll2_done"]
            for n_, b_ in enumerate((4, 76)):
                for h in range(8):
                    t += [f"s_cmp_lg_u64 s[{b_+2*h}:{b_+2*h+1}], s[{S_NON}:{S_NON+1}]", f"s_cbranch_scc1 L_g{n_}{h}", f"s_bitcmp1_b32 s{S_T2}, {h}", f"s_cbranch_scc1 L_g{n_}{h}",
                          f"s_bitset1_b32 s{S_T2}, {h}", pl(h).t, f"L_g{n_}{h}:"]
                t += [f"s_cmp_eq_u32 s{S_T2}, 0xff", "s_cbranch_scc1 L_poll2_done", f"s_load_dwordx16 s[{b_}:{b_+15}], s[{S_C}:{S_C+1}], s{S_F2} glc"]
            t += ["s_branch L_poll2", "L_poll2_done:"]
        t += ["s_waitcnt vmcnt(0)"]
        for h in range(8):
            for r in range(4): t += [f"v_lshlrev_b32 v{SM+8*h+2*r}, 16, v{PB+4*h+r}", f"v_and_b32 v{SM+8*h+2*r+1}, s{S_T1}, v{PB+4*h+r}"]
    for x in t: sg.text(x)
    sg.vm = []
    stamp(sg, 6, '2')
    for h in range(1, 8):
        for r in range(0, 8, 2):
            u = SM + 8 * h + r
            a(V(f"v_pk_add_f32 v[{SM+r}:{SM+r+1}], v[{SM+r}:{SM+r+1}], v[{u}:{u+1}]", [SM+r, SM+r+1, u, u+1], [SM+r, SM+r+1]))
    for r in range(4):
        a(V(f"v_cvt_pk_bf16_f32 v{SM+r}, v{SM+2*r}, v{SM+2*r+1}", [SM+2*r, SM+2*r+1], [SM+r]))
    if int(opt.otr):
        a(dswr('ds_write_b64', 10, ('v', SM), 2, 0)); a(dswr('ds_write_b64', 10, ('v', SM + 2), 2, 32))
        r_ = dsrd('ds_read_b128', ('v', SM + 4), 4, 11, 0); r_.needlg = ('*',); a(r_)
        a(vstore(('v', SM + 4), 4, V_OUT, S_OUT, None, 0, flags=opt.out_flags))
    elif not int(opt.noout):
        a(vstore(('v', SM), 2, V_OUT, S_OUT, None, 0, flags=opt.out_flags))
        a(vstore(('v', SM + 2), 2, V_OUT, S_OUT, None, 32, flags=opt.out_flags))

def out_of_line():
    t = []
    t += ["L_spin_n:", f"s_mov_b32 s{S_SPIN}, {opt.spin}", "L_spin_n1:",
          f"buffer_load_dwordx2 v[{V_GC}:{V_GC+1}], v9, s[{S_D}:{S_D+3}], 0 offen sc1", f"s_sub_u32 s{S_SPIN}, s{S_SPIN}, 1", "s_waitcnt vmcnt(0)",
          f"v_readfirstlane_b32 s{S_NON}, v{V_GC}", f"v_readfirstlane_b32 s{S_NON+1}, v{V_GC+1}", f"s_cmp_eq_u32 s{S_SPIN}, 0", "s_cbranch_scc1 L_back_n", "s_nop 2",
          f"s_cmp_eq_u64 s[{S_NON}:{S_NON+1}], 0", "s_cbranch_scc1 L_spin_n1", "s_branch L_back_n"]
    t += ["; a row sum left the safe range - start over with the true row maxima", "L_redo:", f"s_mov_b64 s[{S_GM}:{S_GM+1}], 0", f"s_mov_b32 s{S_REDO}, 1",
          "s_waitcnt vmcnt(0) lgkmcnt(0)", "s_barrier"]
    sg = Seg()
    p1 = prologue1()
    a = sg.add
    a(V(f"v_lshl_add_u32 v{V_T0}, s{S_W}, 2, v{V_G}", [V_G], [V_T0]))
    a(V(f"v_xor_b32 v{V_T1}, v{V_N}, v{V_T0}", [V_N, V_T0], [V_T1]))
    a(V(f"v_lshlrev_b32 v{V_T1}, 4, v{V_T1}", [V_T1], [V_T1]))
    a(V(f"v_lshl_add_u32 v{V_XD}, v{V_T0}, 10, v{V_T1}", [V_T0, V_T1], [V_XD]))
    a(S(f"s_and_b32 s{S_T0}, s{S_W}, 2", [S_W], [S_T0]))
    a(S(f"s_lshl_b32 s{S_T0}, s{S_T0}, 2", [S_T0], [S_T0]))
    a(V(f"v_lshl_add_u32 v{V_T1}, v{V_G}, 1, s{S_T0}", [V_G], [V_T1]))
    a(V(f"v_xor_b32 v{V_T1}, v{V_N}, v{V_T1}", [V_N, V_T1], [V_T1]))
    a(V(f"v_lshlrev_b32 v{V_T1}, 4, v{V_T1}", [V_T1], [V_T1]))
    a(V(f"v_lshl_add_u32 v{V_WD}, v{V_T0}, 13, v{V_T1}", [V_T0, V_T1], [V_WD]))
    t += sg.out + ["s_nop 4", "s_branch L_restart"]
    sg = Seg(); a = sg.add
    sg.text("; true row maxima over all keys -> negated into the accumulator seed of S")
    sg.text("L_max:")
    sg.text(f"s_mov_b32 s{S_SPIN}, m0")
    sg.drain()
    sg.text("s_barrier")
    MX, KF, AD = 76, V_VF, 84
    for q in range(5): a(V(f"v_mov_b32 v{MX+q}, 0xff800000", [], [MX+q]))
    for s in range(4): a(V(f"v_add_u32 v{AD+s}, {96*KB}, v{V_KA+s}", [V_KA+s], [AD+s]))
    a(S(f"s_mov_b32 s{S_T2}, 0", [], [S_T2]))
    sg.text("L_max_loop:"); sg.reset_hist()
    for j in range(8):
        if j % 4 == 0:
            a(S(f"s_add_u32 s{S_T1}, s{S_T2}, {(j>>2)*4096}", [S_T2], [S_T1]))
            a(S(f"s_add_u32 m0, s{S_W8K}, {96*KB + (j>>2)*4096}", [S_W8K], [M0]))
        a(dma(V_KD + (j & 3), S_K, S_T1, 1024 * (j & 3), 'mk'))
    for t_ in range(2):
        for s in range(4):
            a(dsrd('ds_read_b128', ('v', KF + (t_ * 4 + s) * 4), 4, AD + s, t_ * 4096, needvm=['mk']))
    for q in range(5):
        for t_ in range(2):
            d = ('v', 88 + t_ * 4)
            for s in range(4): a(mfma(d, ('v', KF + (t_ * 4 + s) * 4), AQ(q, s), 0 if s == 0 else d))
        for k in range(4):
            a(V(f"v_max3_f32 v{MX+q}, v{MX+q}, v{88+2*k}, v{89+2*k}", [MX+q, 88+2*k, 89+2*k], [MX+q]))
    sg.drain()
    a(S(f"s_add_u32 s{S_T2}, s{S_T2}, 8192", [S_T2], [S_T2]))
    sg.text(f"s_cmp_lt_u32 s{S_T2}, 65536"); sg.text("s_nop 4"); sg.text("s_cbranch_scc1 L_max_loop")
    sg.text("s_barrier")
    a(S(f"s_mul_i32 s{S_T0}, s{S_W}, 1280", [S_W], [S_T0]))
    a(S(f"s_add_u32 s{S_T0}, s{S_T0}, {96*KB}", [S_T0], [S_T0]))
    a(V(f"v_lshl_add_u32 v{AD}, v{V_LANE}, 2, s{S_T0}", [V_LANE], [AD]))
    a(S(f"s_mov_b32 s{S_T0}, {96*KB}", [], [S_T0]))
    a(V(f"v_lshl_add_u32 v{AD+1}, v{V_N}, 2, s{S_T0}", [V_N], [AD+1]))
    for q in range(5): a(dswr('ds_write_b32', AD, ('v', MX + q), 1, q * 256))
    a(barrier())
    for q in range(5):
        for k in range(16):
            a(dsrd('ds_read_b32', ('v', KF + k), 1, AD + 1, (k >> 2) * 1280 + q * 256 + (k & 3) * 64))
        for k in range(8):
            a(V(f"v_max3_f32 v{MX+q}, v{MX+q}, v{KF+2*k}, v{KF+2*k+1}", [MX+q, KF+2*k, KF+2*k+1], [MX+q]))
        for r in range(4):
            a(V(f"v_sub_f32 v{V_NEGM+q*4+r}, 0, v{MX+q}", [MX+q], [V_NEGM+q*4+r]))
    sg.drain()
    sg.text("s_barrier"); sg.text(f"s_mov_b32 m0, s{S_SPIN}"); sg.text("s_nop 4"); sg.text("s_branch L_back_max")
    return t + sg.out

def stamp_out(sg, n):
    if not opt.stamps or (opt.stamps == 'Z' and n > 1): return
    if opt.stamps == 'Z':
        for x in ["s_load_dwordx2 s[76:77], s[0:1], 56", "s_waitcnt lgkmcnt(0)", f"s_add_u32 s76, s76, {16<<20}", "s_addc_u32 s77, s77, 0", "s_and_b32 s77, s77, 0xffff",
                  "s_mov_b32 s78, 0x100000", "s_mov_b32 s79, 0x20000", "s_lshl_b32 s80, s2, 2", "s_add_u32 s80, s80, s32", "s_lshl_b32 s80, s80, 6", "v_mov_b32 v74, s80",
                  "v_mov_b32 v75, s3", "buffer_store_dword v75, v74, s[76:79], 0 offen sc1"]: sg.text(x)
        return
    stamp(sg, n - 1)
    t = ["s_load_dwordx2 s[4:5], s[0:1], 56", "s_waitcnt lgkmcnt(0)", f"s_add_u32 s4, s4, {16<<20}", "s_addc_u32 s5, s5, 0", "s_and_b32 s5, s5, 0xffff",
         "s_mov_b32 s6, 0x100000", "s_mov_b32 s7, 0x20000", "s_lshl_b32 s8, s2, 2", "s_add_u32 s8, s8, s32", "s_lshl_b32 s8, s8, 6", "v_mov_b32 v2, s8"]
    for i in range(n):
        t += [f"v_mov_b32 v3, s{3 if i == 0 else 76+2*i}", f"buffer_store_dword v3, v2, s[4:7], 0 offen offset:{4*i} sc1"]
    for x in t: sg.text(x)

def kernel():
    sg = Seg()
    sg.text(NAME + "_kernel:")
    sg.text("s_cmp_ge_u32 s2, 256")
    sg.text("s_cbranch_scc1 L_end")
    if opt.stamps:
        stamp(sg, 0)
    p1 = prologue1()
    sg.addall(p1[:2])
    if int(opt.cpf):
        for x in ["s_getpc_b64 s[94:95]", "L_pc:", "s_lshr_b32 s3, s2, 3", "v_lshrrev_b32 v8, 6, v0", "v_and_b32 v9, 1, v0", "v_lshl_add_u32 v8, v8, 1, v9",
                  "v_lshl_add_u32 v8, s3, 3, v8", "v_lshlrev_b32 v8, 7, v8", "v_min_u32 v8, (L_code_end - L_pc - 4) & 0xffffff80, v8"] + (["global_load_dword v255, v8, s[94:95]"] if int(opt.cpf) == 1 else ["s_mov_b64 s[12:13], s[94:95]"]): sg.text(x)
    sg.addall(p1[2:])
    if opt.stamps:
        sg.text("s_mov_b32 s3, s76")
    p2 = prologue2()
    Q = Queue()
    first = x_dma(0) + w_dma(0) if not int(opt.wfirst) else w_dma(0) + x_dma(0)
    stamp(sg, 5, 'P')
    Q.push(first)
    weave(sg, Q, [], 9, 0)
    if int(opt.cpf) == 2: sg.text("global_load_dword v255, v8, s[12:13]")
    stamp(sg, 6, 'P')
    sg.addall(p2)
    stamp(sg, 7, 'P')
    sg.text("s_cmp_lg_u32 s2, 0"); sg.text("s_cbranch_scc1 L_nocz")
    lane0(sg, ["v_mov_b32 v9, 0", f"s_memrealtime s[{S_NON}:{S_NON+1}]", "s_waitcnt lgkmcnt(0)", f"s_or_b32 s{S_NON}, s{S_NON}, 1", f"v_mov_b32 v250, s{S_NON}", f"v_mov_b32 v251, s{S_NON+1}",
               f"buffer_store_dwordx2 v[250:251], v9, s[{S_D}:{S_D+3}], 0 offen sc1"], "L_nocz")
    sg.text("s_branch L_first")
    sg.text("L_restart:")
    s2 = Seg(); s2.addall(restart_setup()); Q2 = Queue(); Q2.push(x_dma(0) + w_dma(0) if not int(opt.wfirst) else w_dma(0) + x_dma(0)); weave(s2, Q2, [], 9, 0)
    for x in s2.out: sg.text(x)
    sg.text("L_first:")
    early, late = prologue3()
    early = early + late + handoff_calc()
    def BB(u): return f"B{u + 1}"
    Q.push(w_dma(1) + x_dma(1) + w_dma(2) + w_dma(3) + x_dma(2) + w_dma(4) + ((w_dma(5, 'B2') + x_dma(3)) if int(opt.la) else (x_dma(3) + w_dma(5, 'B2'))) + w_dma(6, 'B3') + w_dma(7, 'B4')
           + kv_dma('k', 0, 'B5') + kv_dma('v', 0, 'B6') + kv_dma('k', 1, 'B8') + kv_dma('v', 1, 'BQ'))
    for i in range(2, 8):
        if not int(opt.nodma): Q.push(kv_dma('k', i) + kv_dma('v', i))
    n0 = int(opt.n0) - 9
    weave(sg, Q, early, n0, (len(early) + n0 - 1) // n0)
    sg.addall(early)
    qr = phase_a(sg, Q)
    sg.addall(qr[:0])
    stamp(sg, 3)
    sg.text(f"s_cmp_eq_u32 s{S_REDO}, 0"); sg.text("s_cbranch_scc1 L_back_max")
    s2 = Seg(); s2.addall(qr)
    for x in s2.out: sg.text(x)
    sg.text("s_branch L_max")
    sg.text("L_back_max:")
    phase_b(sg, Q, qr)
    combine(sg, Q)
    phase_c(sg, Q)
    sg.text("L_fin:")
    stamp_out(sg, 11)
    sg.text("L_end:")
    sg.text("s_endpgm")
    return sg.out + ['L_code_end:'] + out_of_line()

def report_kernel():
    idx, mode = opt.report.split(',')
    if mode == 'next':
        return ["report_kernel:", "s_cmp_ge_u32 s2, 1", "s_cbranch_scc1 L3_end", "s_memrealtime s[12:13]", "s_load_dwordx2 s[4:5], s[0:1], 56", "s_waitcnt lgkmcnt(0)",
                f"s_add_u32 s4, s4, {17<<20}", "s_addc_u32 s5, s5, 0", "s_and_b32 s5, s5, 0xffff", "s_mov_b32 s6, 64", "s_mov_b32 s7, 0x20000", "v_mov_b32 v1, 0", "v_mov_b32 v2, s12",
                "buffer_store_dword v2, v1, s[4:7], 0 offen", "L3_end:", "s_endpgm"]
    t = ["report_kernel:", "s_cmp_ge_u32 s2, 1", "s_cbranch_scc1 L3_end", "s_memrealtime s[16:17]", "s_load_dwordx2 s[4:5], s[0:1], 56", "s_waitcnt lgkmcnt(0)",
         f"s_add_u32 s4, s4, {16<<20}", "s_addc_u32 s5, s5, 0", "s_and_b32 s5, s5, 0xffff", "s_mov_b32 s6, 0x100000", "s_mov_b32 s7, 0x20000",
         "v_lshlrev_b32 v1, 8, v0", f"buffer_load_dword v2, v1, s[4:7], 0 offen offset:{4*int(idx)}", "buffer_load_dword v3, v1, s[4:7], 0 offen",
         "v_mov_b32 v4, 0", "v_mov_b32 v5, 0", "v_mov_b32 v6, -1", "ds_write_b32 v4, v5", "ds_write_b32 v4, v6 offset:8", "s_waitcnt vmcnt(0) lgkmcnt(0)", "s_barrier",
         "ds_min_u32 v4, v3 offset:8", "s_waitcnt lgkmcnt(0)", "s_barrier", "ds_read_b32 v6, v4 offset:8", "s_waitcnt lgkmcnt(0)", "v_sub_u32 v2, v2, v6",
         "v_lshrrev_b32 v7, 3, v0", "v_mul_u32_u24 v7, 52, v7", "v_lshrrev_b32 v7, 8, v7", "v_and_b32 v8, 1, v0", "v_sub_u32 v8, 6, v8", "v_cmp_lt_u32 vcc, v7, v8",
         "v_min_u32 v2, 10000, v2",
         ("ds_add_u32 v4, v2" if mode == 'mean' else "ds_max_u32 v4, v2"), "s_waitcnt lgkmcnt(0)", "s_barrier", "ds_read_b32 v6, v4", "s_memrealtime s[12:13]", "s_waitcnt lgkmcnt(0)",
         "v_readfirstlane_b32 s10, v6", "s_nop 4"]
    if mode == 'mean': t += ["s_mul_i32 s10, s10, 10", "s_lshr_b32 s10, s10, 8"]
    elif mode == 'max': t += ["s_mul_i32 s10, s10, 10"]
    elif mode == 'gap': t += ["ds_read_b32 v6, v4 offset:8", "s_waitcnt lgkmcnt(0)", "v_readfirstlane_b32 s11, v6", "s_nop 4", "s_sub_u32 s16, s16, s11", "s_sub_u32 s10, s16, s10",
                              "s_min_u32 s10, s10, 2000", "s_mul_i32 s10, s10, 20"]
    else: t += ["s_mov_b32 s10, 0"]
    t += ["L3_spin:", "s_memrealtime s[14:15]", "s_waitcnt lgkmcnt(0)", "s_sub_u32 s14, s14, s12",
          "s_cmp_lt_u32 s14, s10", "s_cbranch_scc1 L3_spin", "L3_end:", "s_endpgm"]
    return t

HEADER = """; Kernarg layout (64 bytes, pointers only, base s[0:1]):
;  24: wq (512,4096) bf16  32: wo (4096,512) bf16   40: d_out (8,80,512) bf16   48: d_debug   56: d_ws
;
; One launch, one workgroup (4 waves) per (batch b, query head hq); hkv = id & 7, j = (id >> 3) & 3, b = id >> 5, hq = 4*hkv + j.
;     Softmax shift m: the first pass uses m = 0, which is exact as long as nothing leaves the fp32 range.  Every row sum is
;     checked against [2^-40, 2^40] (NaN fails too); if any row is outside, the workgroup starts over, computes the true row
;     maxima over all 1024 keys (L_max) and repeats phase B with m = row maximum.
;  C  hand-off 1: O (bf16) goes to the three other heads of the kv group; workgroup (b, hkv, j) multiplies the four heads
;     with wo[hkv*512.., j*128..] -> partial result for 128 output columns.
;     hand-off 2: the eight partial results (one per hkv) are summed in fp32, each workgroup finishing one eighth.
;  and read with sc1.  The tag is a clock value that workgroup 0 publishes in d_debug (zero at launch), so flags left in d_ws
;  by earlier launches never match.  Polls are bounded.  Nothing depends on the XCD a workgroup runs on; the id mapping, the
"""
def build():
    def fmt(l): return "\n".join(x if x.endswith(':') else "    " + x for x in l)
    nm = NAME + "_kernel"
    s = HEADER + "; @launch grid=(256,1,1) block=(256,1,1) lds=163840\n"
    if opt.report:
        s = f"; @launch kernel={nm} grid=(256,1,1) block=(256,1,1) lds=163840\n; @launch kernel=report_kernel grid=(1,1,1) block=(256,1,1) lds=64\n"
    s += '.amdgcn_target "amdgcn-amd-amdhsa--gfx950"\n.text\n'
    s += f".globl {nm}\n.p2align 8\n.type {nm},@function\n" + fmt(kernel()) + "\n"
    if opt.report: s += ".globl report_kernel\n.p2align 8\n.type report_kernel,@function\n" + fmt(report_kernel()) + "\n"
    s += f""".section .rodata,"a"
.p2align 6
.amdhsa_kernel {nm}
  .amdhsa_next_free_vgpr 512
  .amdhsa_next_free_sgpr 102
  .amdhsa_accum_offset 256
  .amdhsa_group_segment_fixed_size 0
  .amdhsa_kernarg_size 64
  .amdhsa_user_sgpr_count 2
  .amdhsa_user_sgpr_kernarg_segment_ptr 1
  .amdhsa_system_sgpr_workgroup_id_x 1
  .amdhsa_float_denorm_mode_32 3
.end_amdhsa_kernel
"""
    if opt.report:
        s += """.p2align 6
.amdhsa_kernel report_kernel
  .amdhsa_next_free_vgpr 32
  .amdhsa_next_free_sgpr 32
  .amdhsa_accum_offset 32
  .amdhsa_group_segment_fixed_size 0
  .amdhsa_kernarg_size 64
  .amdhsa_user_sgpr_count 2
  .amdhsa_user_sgpr_kernarg_segment_ptr 1
  .amdhsa_system_sgpr_workgroup_id_x 1
.end_amdhsa_kernel
"""
    return s

if __name__ == '__main__':
    out = sys.argv[1] if len(sys.argv) > 1 else 'cdna_kernels/' + NAME + '.s'
    for a_ in sys.argv[2:]:
        k, v = a_.split('=', 1)
        setattr(opt, k, (' ' + v) if k.endswith('flags') and v else v)
    HOIST[0] = int(opt.hoist)
    txt = build()
    open(out, 'w').write(txt)
```

```python
import sys, struct, re
from dsl import *

KB = 1024
NAME = 'standalone__gqa_block_cached__near_ridge'
def f2h(x): return hex(struct.unpack('<I', struct.pack('<f', x))[0])
QSCALE = 1.4426950408889634 / (128 ** 0.5)
WS_WO = 8 << 20
WS_CT = 12 << 20

class Opt:
    stamps = ''
    report = ''
    kv_flags = ''
    a_flags = ''
    n0 = 22
    warm = 1
    perstep = 6
    lo_exp = -40
    hi_exp = 40
    spin = 300000
    rt_at = 5
    bar_at = 32
    nodma = 0
    lastlag = 1
    psched = ''
    spos = '1,3,5,7'
    bq = 0
    v7s = 1
    b0s = 0
    peek = 0
    pgap = 0
    cpf2_at = 99
    cpf2_skip = 1024
    pairw = 0
    dtch_at = 99
    dtch = 'op'
    dtch_flags = ''
    wpos = '5,16'
    x1e = 0
    c3 = 0
    otr = 1
    otch_at = 99
    otch_flags = ''
    worlate = 1
    pf = 9
    noout = 0
    even_end = 23
    coal = 1
    hoist = 2
    unp = 0
    f2wg = 1
    wfirst = 0
    kvnt = 'x'
    ant = ''
    tch_flags = ''
    wsb = 0
    drain = '45'
    tlb_at = 27
    aonly = 0
    la = 10
    aq = 1
    ownlate = 1
    o_flags = ' sc1'
    f1_flags = ' sc1'
    w64 = 0
    out_flags = ''
    bsched = 1
    p1w = 1
    p2w = 0
    pollk = '19,29,39'
    dyn2 = 1
    qmaj = 1
    tch_at = 27
    even_at = 99
    pdepth = 1
    kvo = 4
    finw = 0
    alim = 16
    cpf = 1
    chain = 1
    wo_at = 33
    calc_at = 16
    nl_at = 8
    nc_at = 13
    cw = 2
    shadow = 9
    bst = '0,5,10,15,20'
    no_rt = 0
    clk = 'r'
    lg0 = 0
    vpos = '1,5,9,13'
    rot_kv = 1
    rot_a = 8
    rot_c = 1
    gl_at = 29
    gc_at = 33
opt = Opt()

S_X, S_WQ, S_K, S_V, S_O, S_WO, S_WT, S_WL, S_C, S_D, S_OUT = 4, 8, 12, 16, 20, 24, 28, 52, 56, 60, 64
S_W, S_B, S_HKV, S_HQ = 32, 33, 34, 35
S_W1K, S_W8K, S_SO, S_T0, S_T1, S_T2, S_SK, S_SV = 36, 37, 38, 39, 40, 41, 42, 43
S_TAB = 44
S_REDO, S_MT, S_NT, S_VALID, S_RT, S_SPIN = 68, 69, 70, 71, 72, 73
S_EX = 74
S_F1, S_F2, S_G1, S_G2 = 100, 101, 72, 51
S_GM = 70
S_J_UNUSED = 3
S_P = 76
S_ST = 80
V_LANE, V_N, V_G, V_T0, V_T1, V_T2, V_T3, V_T4, V_T5 = 1, 2, 3, 4, 5, 6, 7, 8, 9
V_KA, V_VA, V_KD, V_VD = 10, 14, 22, 26
V_OST, V_CW, V_LW = 28, 29, 31
V_ONES, V_NEGM, V_L, V_S, V_P, V_KF, V_VF = 32, 36, 56, 76, 92, 100, 164
V_XA, V_XB, V_WA, V_WB, V_XD, V_WD, V_QW = 76, 56, 80, 82, 84, 85, 86
V_GC = 250
S_NON = 96
V_CR, V_LR, V_WOD, V_WT, V_OL, V_OW, V_OD, V_PS, V_PLD, V_OUT, V_P1, V_P2 = 228, 234, 235, 236, 242, 243, 244, 245, 246, 247, 248, 249
V_ZERO = 9
V_TCH = 64
S_H = 52
S_W5K = 55
S_J = 69
A_O, A_Q = 0, 160
V_OWN = [132, 140, 148, 156, 56]
A_KF1, A_L = 120, 240
def AO(lam, q):
    if lam < 2: return ('v', V_OWN[q] + 4 * lam)
    return ('a', A_O + 4 * (q * 6 + lam - 2))
def KF(i, k): return ('v', V_KF + 4 * k) if i % 2 == 0 else ('a', A_KF1 + 4 * k)
def LA(q): return ('a', A_L + 4 * q) if q < 4 else ('a', 152)
def AQ(q, s): return ('a', A_Q + 4 * (q * 4 + s))

def XU(c, q):
    if c == 0: return q * 4 * KB
    if c == 1: return 20 * KB + q * 4 * KB
    if c == 2: return 128 * KB + q * 4 * KB
    return [120, 124, 148, 152, 156][q] * KB
def WU(slot, ks):
    return {0: [40, 48], 1: [56, 96], 2: [104, 112], 3: [64, 72], 4: [80, 88]}[slot][ks] * KB
WSLOT = [0, 1, 2, 3, 4, 0, 1, 2]
QBUF = 128 * KB

def V(t, r=(), w=()):
    return valu(t, r=[('v', x) if isinstance(x, int) else x for x in r], w=[('v', x) if isinstance(x, int) else x for x in w])
def T(t, r=(), w=()):
    return valu(t, r=[('v', x) for x in r], w=[('v', x) for x in w], trans=True)
def S(t, r=(), w=()):
    return salu(t, r=[('s', x) if isinstance(x, int) else x for x in r], w=[('s', x) if isinstance(x, int) else x for x in w])
M0 = ('m0', 0)
VCC = ('vcc', 0)
def flat(l): return [x for y in l for x in y]

def srd(dst, plo, add_s=None, add_imm=0, size=0):
    o = []
    if add_s is not None or add_imm:
        o.append(S(f"s_add_u32 s{dst}, s{plo}, " + (f"s{add_s}" if add_s is not None else f"{add_imm}"), [plo] + ([add_s] if add_s is not None else []), [dst]))
        o.append(S(f"s_addc_u32 s{dst+1}, s{plo+1}, 0", [plo+1], [dst+1]))
    else: assert dst == plo
    o.append(S(f"s_mov_b32 s{dst+2}, {size}", [], [dst+2]))
    o.append(S(f"s_mov_b32 s{dst+3}, 0x20000", [], [dst+3]))
    return o

KV_ORDER = [[0, 2, 1, 3, 4, 6, 5, 7], [0, 1, 3, 2, 4, 5, 7, 6], [1, 0, 2, 4, 3, 5, 6, 7], [1, 0, 2, 3, 5, 4, 6, 7]]
KV_ORDERS = [KV_ORDER,
  [[0, 4, 1, 2, 3, 5, 6, 7], [1, 0, 5, 2, 3, 4, 6, 7], [2, 0, 1, 6, 3, 4, 5, 7], [3, 0, 1, 2, 7, 4, 5, 6]],
  [[0, 1, 2, 3, 4, 5, 6, 7], [0, 1, 2, 3, 4, 5, 6, 7], [4, 5, 6, 7, 0, 1, 2, 3], [4, 5, 6, 7, 0, 1, 2, 3]],
  [[0, 2, 1, 3, 5, 4, 6, 7], [1, 0, 3, 2, 4, 6, 5, 7], [2, 1, 0, 4, 3, 5, 7, 6], [0, 1, 2, 3, 5, 4, 6, 7]],
  [[0, 1, 2, 4, 3, 5, 6, 7], [1, 0, 2, 3, 5, 4, 6, 7], [2, 0, 1, 3, 4, 6, 5, 7], [0, 1, 3, 2, 4, 5, 7, 6]],
  [[0, 1, 4, 2, 3, 5, 6, 7], [1, 0, 2, 5, 3, 4, 6, 7], [2, 0, 1, 3, 6, 4, 5, 7], [0, 3, 1, 2, 4, 7, 5, 6]],
  [[0, 1, 3, 2, 4, 5, 7, 6], [0, 1, 2, 4, 3, 5, 6, 7], [0, 2, 1, 3, 5, 4, 6, 7], [0, 2, 1, 3, 4, 6, 5, 7]],
  [[0, 1, 2, 4, 3, 5, 6, 7], [1, 0, 3, 2, 5, 4, 6, 7], [2, 3, 0, 1, 4, 6, 5, 7], [3, 2, 1, 0, 4, 5, 7, 6]],
  [[0, 1, 2, 4, 3, 5, 6, 7], [1, 2, 0, 3, 5, 4, 6, 7], [2, 0, 1, 3, 4, 6, 5, 7], [0, 3, 1, 2, 4, 5, 7, 6]]]
def kv_pack(j):
    o = KV_ORDERS[int(opt.kvo)][j] if int(opt.rot_kv) else list(range(8))
    return sum(t << (4 * i) for i, t in enumerate(o))
S_KVO = 98
V_XD4 = 204
S_WC = 99

class Item:
    def __init__(s, pre, ins, after=None): s.pre, s.ins, s.after = pre, ins, after
def x_dma(c, after=None):
    return [Item([S(f"s_add_u32 m0, s{S_W1K}, {XU(c,q)}", [S_W1K], [M0])],
                 dma(V_XD4 + c, S_X, S_TAB + q, 0, ('x', c), flags=(' nt' if 'x' in opt.ant and c < 2 else opt.a_flags)), after) for q in range(5)]
def w_dma(u, after=None):
    o = []
    for k in range(4):
        pre = []
        if k == 0:
            pre.append(S(f"s_add_u32 s{S_SK}, s{S_WC}, {(u & 6) << 19}", [S_WC], [S_SK]))
            pre.append(S(f"s_and_b32 s{S_SK}, s{S_SK}, {7 << 19}", [S_SK], [S_SK]))
            if u & 1: pre.append(S(f"s_xor_b32 s{S_SK}, s{S_SK}, {1 << 19}", [S_SK], [S_SK]))
        pre.append(S(f"s_add_u32 s{S_SO}, s{S_SK}, {k*131072}", [S_SK], [S_SO]))
        pre.append(S(f"s_add_u32 m0, s{S_W1K}, {WU(WSLOT[u], k>>1) + (k&1)*4*KB}", [S_W1K], [M0]))
        o.append(Item(pre, dma(V_WD, S_WQ, S_SO, 0, ('w', u), flags=(' nt' if 'w' in opt.ant and u < 4 else opt.a_flags)), after))
    return o
def kv_dma(kind, i, after=None):
    o = []
    base = (i & 1) * 32 * KB + (0 if kind == 'k' else 64 * KB)
    sr, so = (S_K, S_SK) if kind == 'k' else (S_V, S_SV)
    for j in range(8):
        pre = []
        if j % 4 == 0:
            if j == 0:
                pre.append(S(f"s_bfe_u32 s{so}, s{S_KVO}, {hex((3 << 16) | (4 * i))}", [S_KVO], [so]))
                pre.append(S(f"s_lshl_b32 s{so}, s{so}, 13", [so], [so]))
            else:
                pre.append(S(f"s_add_u32 s{so}, s{so}, 4096", [so], [so]))
            pre.append(S(f"s_add_u32 m0, s{S_W8K}, {base + (j>>2)*4096}", [S_W8K], [M0]))
        va = V_KD + (j & 3) if kind == 'k' else V_VD + (j & 1)
        tag = (kind + 'r', i - 2, j >> 2)
        o.append(Item(pre, dma(va, sr, so, 1024 * (j & 3), (kind, i, j >> 2), needlg=[tag], flags=(' nt' if str(i) in str(opt.kvnt) else opt.kv_flags)), after if i < 2 else tag))
    return o
def k_reads(i):
    return [dsrd('ds_read_b128', KF(i, t * 4 + s), 4, V_KA + s, (i & 1) * 32 * KB + t * 4096,
                 needvm=[('k', i, t)], lgtag=('kr', i, t)) for t in range(2) for s in range(4)]
def v_reads(i):
    return [dsrd('ds_read_b64_tr_b16', ('v', V_VF + (i & 1) * 32 + lam * 4 + h * 2), 2, V_VA + lam, (i & 1) * 32 * KB + h * 4096,
                 needvm=[('v', i, h)], lgtag=('vr', i, h)) for h in range(2) for lam in range(8)]

class Queue:
    def __init__(s): s.q = []; s.pts = set()
    def push(s, items): s.q += items
    def mark(s, p): s.pts.add(p)
    def pop(s):
        if s.q and (s.q[0].after is None or s.q[0].after in s.pts): return s.q.pop(0)
        return None

def place(gaps, Q, pos):
    last = -1
    for p in pos:
        if p >= len(gaps): continue
        it = Q.pop()
        if it is None: break
        pre = list(it.pre)
        avail = list(range(last + 1, p))
        front = []
        if not avail: front = pre
        else:
            slots = [[] for _ in avail]
            for k_, x in enumerate(reversed(pre)):
                slots[max(0, len(avail) - 1 - k_)].insert(0, x)
            for g, sl in zip(avail, slots):
                k_ = 0
                while k_ < len(gaps[g]) and gaps[g][k_].k == 'salu': k_ += 1
                gaps[g][k_:k_] = sl
        k = 0
        while k < len(gaps[p]) and gaps[p][k].k == 'salu': k += 1
        gaps[p][k:k] = front + [it.ins]
        last = p
def weave(sg, Q, fill, n, per):
    for _ in range(n):
        it = Q.pop()
        if it is not None: sg.addall(it.pre + [it.ins])
        for _ in range(per):
            if fill: sg.add(fill.pop(0))

NST = 12
def stamp(sg, i, grp='1'):
    if not opt.stamps: return
    if opt.stamps == 'Z' and i: return
    if 5 <= i <= 9 and grp != opt.stamps: return
    sg.text(f"{'s_memtime' if opt.clk == 'c' else 's_memrealtime'} s[{76+2*i}:{77+2*i}]")

def prologue1():
    o = []; a = o.append
    a(raw("s_load_dwordx2 s[92:93], s[0:1], 0"))
    a(raw("s_load_dwordx2 s[26:27], s[0:1], 24"))
    a(V(f"v_lshrrev_b32 v{V_T0}, 6, v0", [0], [V_T0]))
    a(V(f"v_and_b32 v{V_LANE}, 63, v0", [0], [V_LANE]))
    a(V(f"v_readfirstlane_b32 s{S_W}, v{V_T0}", [V_T0], [('s', S_W)]))
    a(S(f"s_and_b32 s{S_HKV}, s2, 7", [2], [S_HKV]))
    a(S(f"s_lshr_b32 s{S_B}, s2, 5", [2], [S_B]))
    a(S(f"s_bfe_u32 s{S_T0}, s2, 0x20003", [2], [S_T0]))
    a(S(f"s_mov_b32 s{S_J}, s{S_T0}", [S_T0], [S_J]))
    a(S(f"s_lshl_b32 s{S_HQ}, s{S_HKV}, 2", [S_HKV], [S_HQ]))
    a(S(f"s_add_u32 s{S_HQ}, s{S_HQ}, s{S_T0}", [S_HQ, S_T0], [S_HQ]))
    if int(opt.rot_a) == 2:
        a(S(f"s_add_u32 s{S_VALID}, s{S_T0}, s{S_B}", [S_T0, S_B], [S_VALID]))
        a(S(f"s_and_b32 s{S_VALID}, s{S_VALID}, 1", [S_VALID], [S_VALID]))
        a(S(f"s_lshl_b32 s{S_VALID}, s{S_VALID}, 2", [S_VALID], [S_VALID]))
    elif int(opt.rot_a) in (5, 6):
        a_, b_ = (S_B, S_T0) if int(opt.rot_a) == 5 else (S_T0, S_B)
        a(S(f"s_lshl_b32 s{S_VALID}, s{b_}, 1", [b_], [S_VALID]))
        a(S(f"s_add_u32 s{S_VALID}, s{S_VALID}, s{a_}", [S_VALID, a_], [S_VALID]))
        a(S(f"s_and_b32 s{S_VALID}, s{S_VALID}, 3", [S_VALID], [S_VALID]))
        a(S(f"s_lshl_b32 s{S_VALID}, s{S_VALID}, 1", [S_VALID], [S_VALID]))
    elif int(opt.rot_a) in (8, 9):
        a(S(f"s_add_u32 s{S_VALID}, s{S_T0}, s{S_B}", [S_T0, S_B], [S_VALID]))
        a(S(f"s_lshl_b32 s{S_VALID}, s{S_VALID}, 1", [S_VALID], [S_VALID]))
        a(S(f"s_and_b32 s{S_T1}, s{S_HKV}, {1 if int(opt.rot_a) == 8 else 3}", [S_HKV], [S_T1]))
        a(S(f"s_add_u32 s{S_VALID}, s{S_VALID}, s{S_T1}", [S_VALID, S_T1], [S_VALID]))
        a(S(f"s_and_b32 s{S_VALID}, s{S_VALID}, 3", [S_VALID], [S_VALID]))
        a(S(f"s_lshl_b32 s{S_VALID}, s{S_VALID}, 1", [S_VALID], [S_VALID]))
    elif int(opt.rot_a) == 7:
        a(S(f"s_add_u32 s{S_VALID}, s{S_T0}, s{S_B}", [S_T0, S_B], [S_VALID]))
        a(S(f"s_and_b32 s{S_VALID}, s{S_VALID}, 1", [S_VALID], [S_VALID]))
        a(S(f"s_lshl_b32 s{S_VALID}, s{S_VALID}, 2", [S_VALID], [S_VALID]))
        a(S(f"s_bfe_u32 s{S_T1}, s{S_B}, 0x10001", [S_B], [S_T1]))
        a(S(f"s_or_b32 s{S_VALID}, s{S_VALID}, s{S_T1}", [S_VALID, S_T1], [S_VALID]))
    elif int(opt.rot_a) == 4:
        a(S(f"s_add_u32 s{S_VALID}, s{S_T0}, s{S_B}", [S_T0, S_B], [S_VALID]))
        a(S(f"s_and_b32 s{S_VALID}, s{S_VALID}, 3", [S_VALID], [S_VALID]))
        a(S(f"s_lshl_b32 s{S_VALID}, s{S_VALID}, 1", [S_VALID], [S_VALID]))
    elif int(opt.rot_a):
        a(S(f"s_lshl_b32 s{S_T0}, s{S_T0}, 1", [S_T0], [S_T0]))
        a(S(f"s_add_u32 s{S_VALID}, s{S_T0}, s{S_B}", [S_T0, S_B], [S_VALID]))
        a(S(f"s_and_b32 s{S_VALID}, s{S_VALID}, 7", [S_VALID], [S_VALID]))
    else:
        a(S(f"s_mov_b32 s{S_VALID}, 0", [], [S_VALID]))
    a(V(f"v_and_b32 v{V_N}, 15, v{V_LANE}", [V_LANE], [V_N]))
    a(V(f"v_lshrrev_b32 v{V_G}, 4, v{V_LANE}", [V_LANE], [V_G]))
    a(S(f"s_lshl_b32 s{S_W1K}, s{S_W}, 10", [S_W], [S_W1K]))
    a(S(f"s_lshl_b32 s{S_W8K}, s{S_W}, 13", [S_W], [S_W8K]))
    a(V(f"v_lshl_add_u32 v{V_T0}, s{S_W}, 2, v{V_G}", [V_G, ('s', S_W)], [V_T0]))
    a(V(f"v_xor_b32 v{V_T1}, v{V_N}, v{V_T0}", [V_N, V_T0], [V_T1]))
    a(V(f"v_lshlrev_b32 v{V_T1}, 4, v{V_T1}", [V_T1], [V_T1]))
    a(V(f"v_lshl_add_u32 v{V_XD}, v{V_T0}, 10, v{V_T1}", [V_T0, V_T1], [V_XD]))
    a(S(f"s_and_b32 s{S_T0}, s{S_W}, 2", [S_W], [S_T0]))
    a(S(f"s_lshl_b32 s{S_T0}, s{S_T0}, 2", [S_T0], [S_T0]))
    a(V(f"v_lshl_add_u32 v{V_T1}, v{V_G}, 1, s{S_T0}", [V_G, ('s', S_T0)], [V_T1]))
    a(V(f"v_xor_b32 v{V_T1}, v{V_N}, v{V_T1}", [V_N, V_T1], [V_T1]))
    a(V(f"v_lshlrev_b32 v{V_T1}, 4, v{V_T1}", [V_T1], [V_T1]))
    a(V(f"v_lshl_add_u32 v{V_WD}, v{V_T0}, 13, v{V_T1}", [V_T0, V_T1], [V_WD]))
    a(S(f"s_mul_i32 s{S_T0}, s{S_B}, 81920", [S_B], [S_T0]))
    a(S(f"s_lshl_b32 s{S_T2}, s{S_HQ}, 8", [S_HQ], [S_T2]))
    a(S(f"s_sub_u32 s{S_T1}, 4194304, s{S_T2}", [S_T2], [S_T1]))
    a(S(f"s_mov_b32 s{S_REDO}, 0", [], [S_REDO]))
    a(S(f"s_lshl_b32 s{S_WC}, s{S_VALID}, 19", [S_VALID], [S_WC]))
    a(S(f"s_mov_b64 s[{S_GM}:{S_GM+1}], -1", [], [S_GM, S_GM+1]))
    o += restart_setup()
    a(S(f"s_mov_b32 s{S_X+2}, 81920", [], [S_X+2])); a(S(f"s_mov_b32 s{S_X+3}, 0x20000", [], [S_X+3]))
    a(S(f"s_mov_b32 s{S_WQ+2}, s{S_T1}", [S_T1], [S_WQ+2])); a(S(f"s_mov_b32 s{S_WQ+3}, 0x20000", [], [S_WQ+3]))
    a(raw("s_waitcnt lgkmcnt(0)", 'wait'))
    o += srd(S_X, 92, add_s=S_T0, size=81920)[:2]
    o += srd(S_WQ, 26, add_s=S_T2, size=0)[:2]
    for dst, off in ((S_K, 8), (S_V, 16), (S_WO, 32), (S_OUT, 40), (S_D, 48), (S_O, 56)):
        a(raw(f"s_load_dwordx2 s[{dst}:{dst+1}], s[0:1], {off}"))
    return o

def restart_setup():
    o = [S(f"s_mov_b32 s{S_TAB+q}, {q*16384}", [], [S_TAB+q]) for q in range(5)]
    for c in range(4):
        o.append(S(f"s_lshr_b32 s{S_SO}, s{S_WC}, 12", [S_WC], [S_SO]))
        o.append(S(f"s_add_u32 s{S_SO}, s{S_SO}, {c*256}", [S_SO], [S_SO]))
        o.append(S(f"s_and_b32 s{S_SO}, s{S_SO}, 0x300", [S_SO], [S_SO]))
        o.append(V(f"v_add_u32 v{V_XD4+c}, s{S_SO}, v{V_XD}", [V_XD, ('s', S_SO)], [V_XD4+c]))
    return o

def prologue2():
    o = []; a = o.append
    a(raw("s_waitcnt lgkmcnt(0)", 'wait'))
    a(S(f"s_lshl_b32 s{S_T0}, s{S_B}, 3", [S_B], [S_T0]))
    a(S(f"s_add_u32 s{S_T0}, s{S_T0}, s{S_HKV}", [S_T0, S_HKV], [S_T0]))
    a(S(f"s_lshl_b32 s{S_T0}, s{S_T0}, 2", [S_T0], [S_T0]))
    a(S(f"s_add_u32 s{S_T0}, s{S_T0}, s{S_W}", [S_T0, S_W], [S_T0]))
    a(S(f"s_lshl_b32 s{S_T0}, s{S_T0}, 16", [S_T0], [S_T0]))
    o += srd(S_K, S_K, add_s=S_T0, size=65536)
    o += srd(S_V, S_V, add_s=S_T0, size=65536)
    a(S(f"s_lshl_b32 s{S_T0}, s{S_HKV}, 19", [S_HKV], [S_T0]))
    o += srd(S_WO, S_WO, add_s=S_T0, size=524288)
    o += srd(S_WT, S_O, add_imm=WS_WO, size=8*4*20*8*1024)
    o += srd(S_C, S_O, add_imm=WS_CT, size=262144)
    o += srd(S_O, S_O, size=8*5*128*1024)
    o += srd(S_D, S_D, size=256)
    o += srd(S_OUT, S_OUT, size=655360)
    a(S(f"s_bitcmp1_b32 s{S_HQ}, 0", [S_HQ], []))
    a(S(f"s_mov_b32 s{S_T0}, {hex(kv_pack(0))}", [], [S_T0]))
    a(S(f"s_cselect_b32 s{S_T0}, {hex(kv_pack(1))}, s{S_T0}", [S_T0], [S_T0]))
    a(S(f"s_mov_b32 s{S_T1}, {hex(kv_pack(2))}", [], [S_T1]))
    a(S(f"s_cselect_b32 s{S_T1}, {hex(kv_pack(3))}, s{S_T1}", [S_T1], [S_T1]))
    a(S(f"s_bitcmp1_b32 s{S_HQ}, 1", [S_HQ], []))
    a(S(f"s_cselect_b32 s{S_KVO}, s{S_T1}, s{S_T0}", [S_T0, S_T1], [S_KVO]))
    for p in range(3):
        a(S(f"s_cmp_le_u32 s{S_J}, {p}", [S_J], []))
        a(S(f"s_cselect_b32 s{S_T1}, {p + 1}, {p}", [], [S_T1]))
        a(S(f"s_lshl_b32 s{S_H+p}, s{S_T1}, 17", [S_T1], [S_H+p]))
    a(S(f"s_mul_i32 s{S_W5K}, s{S_W}, 5120", [S_W], [S_W5K]))
    a(S(f"s_lshl_b32 s{S_T0}, s{S_B}, 14", [S_B], [S_T0]))
    a(S(f"s_lshl_b32 s{S_T1}, s{S_W}, 7", [S_W], [S_T1]))
    a(S(f"s_add_u32 s{S_T0}, s{S_T0}, s{S_T1}", [S_T0, S_T1], [S_T0]))
    a(S(f"s_lshl_b32 s{S_F1}, s{S_HQ}, 9", [S_HQ], [S_F1]))
    a(S(f"s_add_u32 s{S_F1}, s{S_F1}, s{S_T0}", [S_F1, S_T0], [S_F1]))
    a(S(f"s_add_u32 s{S_F2}, s{S_F1}, 131072", [S_F1], [S_F2]))
    if int(opt.f2wg): a(S(f"s_andn2_b32 s{S_F2}, s{S_F2}, 0x180", [S_F2], [S_F2]))
    a(S(f"s_lshl_b32 s{S_T1}, s{S_HKV}, 11", [S_HKV], [S_T1]))
    a(S(f"s_lshl_b32 s{S_G1}, s{S_J}, 3", [S_J], [S_G1]))
    a(S(f"s_add_u32 s{S_G1}, s{S_G1}, s{S_T1}", [S_G1, S_T1], [S_G1]))
    a(S(f"s_add_u32 s{S_G1}, s{S_G1}, s{S_T0}", [S_G1, S_T0], [S_G1]))
    a(S(f"s_lshl_b32 s{S_T1}, s{S_J}, 9", [S_J], [S_T1]))
    a(S(f"s_lshl_b32 s{S_G2}, s{S_HKV}, 3", [S_HKV], [S_G2]))
    a(S(f"s_add_u32 s{S_G2}, s{S_G2}, s{S_T1}", [S_G2, S_T1], [S_G2]))
    a(S(f"s_add_u32 s{S_G2}, s{S_G2}, s{S_T0}", [S_G2, S_T0], [S_G2]))
    a(S(f"s_add_u32 s{S_G2}, s{S_G2}, 131072", [S_G2], [S_G2]))
    return o

def prologue3():
    o = []; a = o.append
    a(S(f"s_bfe_u32 s{S_T1}, s{S_WC}, 0x10013", [S_WC], [S_T1]))
    a(S(f"s_lshl_b32 s{S_T1}, s{S_T1}, 3", [S_T1], [S_T1]))
    a(V(f"v_xor_b32 v{V_T1}, s{S_T1}, v{V_N}", [V_N, ('s', S_T1)], [V_T1]))
    a(V(f"v_xor_b32 v{V_T0}, v{V_G}, v{V_T1}", [V_G, V_T1], [V_T0]))
    a(V(f"v_lshlrev_b32 v{V_T0}, 4, v{V_T0}", [V_T0], [V_T0]))
    a(V(f"v_lshl_add_u32 v{V_XA}, v{V_N}, 8, v{V_T0}", [V_N, V_T0], [V_XA]))
    for s in range(1, 4): a(V(f"v_xor_b32 v{V_XA+s}, {64*s}, v{V_XA}", [V_XA], [V_XA+s]))
    for s in range(4): a(V(f"v_add_u32 v{V_XB+s}, {120*KB}, v{V_XA+s}", [V_XA+s], [V_XB+s]))
    a(V(f"v_lshrrev_b32 v{V_T2}, 2, v{V_N}", [V_N], [V_T2]))
    a(V(f"v_bfe_u32 v{V_T3}, v{V_N}, 1, 1", [V_N], [V_T3]))
    a(V(f"v_and_b32 v{V_T4}, 1, v{V_N}", [V_N], [V_T4]))
    a(V(f"v_lshlrev_b32 v{V_T4}, 3, v{V_T4}", [V_T4], [V_T4]))
    a(V(f"v_and_b32 v{V_T5}, 1, v{V_G}", [V_G], [V_T5]))
    a(V(f"v_lshl_add_u32 v{V_T5}, v{V_T5}, 2, v{V_T2}", [V_T5, V_T2], [V_T5]))
    a(V(f"v_lshlrev_b32 v{V_T5}, 1, v{V_T5}", [V_T5], [V_T5]))
    a(S(f"s_lshl_b32 s{S_T1}, s{S_W}, 2", [S_W], [S_T1]))
    a(V(f"v_lshl_add_u32 v{V_T1}, v{V_G}, 3, v{V_T2}", [V_G, V_T2], [V_T1]))
    a(V(f"v_lshl_add_u32 v{V_T1}, v{V_T1}, 8, v{V_T4}", [V_T1, V_T4], [V_T1]))
    a(V(f"v_add_u32 v{V_T3}, s{S_T1}, v{V_T3}", [V_T3, ('s', S_T1)], [V_T3]))
    a(V(f"v_xor_b32 v{V_T3}, v{V_T3}, v{V_T5}", [V_T3, V_T5], [V_T3]))
    a(V(f"v_lshl_add_u32 v{V_T0}, v{V_T3}, 4, v{V_T1}", [V_T3, V_T1], [V_T0]))
    a(V(f"v_add_u32 v{V_WA}, {40*KB}, v{V_T0}", [V_T0], [V_WA]))
    a(V(f"v_add_u32 v{V_WB}, {96*KB}, v{V_T0}", [V_T0], [V_WB]))
    a(V(f"v_xor_b32 v{V_WA+1}, 32, v{V_WA}", [V_WA], [V_WA+1]))
    a(V(f"v_xor_b32 v{V_WB+1}, 32, v{V_WB}", [V_WB], [V_WB+1]))
    a(V(f"v_lshl_add_u32 v{V_T1}, v{V_G}, 2, v{V_T2}", [V_G, V_T2], [V_T1]))
    n_early = len(o)
    for s in range(4):
        a(V(f"v_add_u32 v{V_KA+s}, s{S_W8K}, v{V_XA+s}", [V_XA+s, ('s', S_W8K)], [V_KA+s]))
    a(V(f"v_lshl_add_u32 v{V_T1}, v{V_T1}, 8, v{V_T4}", [V_T1, V_T4], [V_T1]))
    a(V(f"v_lshl_add_u32 v{V_WT}, v{V_T3}, 4, v{V_T1}", [V_T3, V_T1], [V_WT]))
    a(S(f"s_add_u32 s{S_T2}, s{S_W8K}, {64*KB}", [S_W8K], [S_T2]))
    a(V(f"v_add_u32 v{V_VA}, s{S_T2}, v{V_WT}", [V_WT, ('s', S_T2)], [V_VA]))
    for lam in range(1, 8): a(V(f"v_xor_b32 v{V_VA+lam}, {32*lam}, v{V_VA}", [V_VA], [V_VA+lam]))
    a(V(f"v_xor_b32 v{V_WT+1}, 32, v{V_WT}", [V_WT], [V_WT+1]))
    for e in range(2):
        a(V(f"v_add_u32 v{V_WT+2+e}, {64*KB}, v{V_WT+e}", [V_WT+e], [V_WT+2+e]))
        a(V(f"v_add_u32 v{V_WT+4+e}, {128*KB}, v{V_WT+e}", [V_WT+e], [V_WT+4+e]))
    a(V(f"v_xor_b32 v{V_T0}, v{V_N}, v{V_G}", [V_N, V_G], [V_T0]))
    a(V(f"v_lshlrev_b32 v{V_T0}, 4, v{V_T0}", [V_T0], [V_T0]))
    a(V(f"v_lshl_add_u32 v{V_KD}, v{V_G}, 8, v{V_T0}", [V_G, V_T0], [V_KD]))
    for j in range(1, 4):
        a(V(f"v_xor_b32 v{V_KD+j}, {64*j}, v{V_KD}", [V_KD], [V_KD+j]))
    a(V(f"v_lshlrev_b32 v{V_T0}, 1, v{V_G}", [V_G], [V_T0]))
    a(V(f"v_xor_b32 v{V_T0}, v{V_N}, v{V_T0}", [V_N, V_T0], [V_T0]))
    a(V(f"v_lshlrev_b32 v{V_T0}, 4, v{V_T0}", [V_T0], [V_T0]))
    a(V(f"v_lshl_add_u32 v{V_VD}, v{V_G}, 8, v{V_T0}", [V_G, V_T0], [V_VD]))
    a(V(f"v_xor_b32 v{V_VD+1}, 128, v{V_VD}", [V_VD], [V_VD+1]))
    a(V(f"v_lshrrev_b32 v{V_T0}, 1, v{V_G}", [V_G], [V_T0]))
    a(V(f"v_add_u32 v{V_T0}, s{S_T1}, v{V_T0}", [V_T0, ('s', S_T1)], [V_T0]))
    a(V(f"v_xor_b32 v{V_T0}, v{V_T0}, v{V_N}", [V_T0, V_N], [V_T0]))
    a(V(f"v_lshlrev_b32 v{V_T0}, 4, v{V_T0}", [V_T0], [V_T0]))
    a(V(f"v_lshl_add_u32 v{V_T0}, v{V_N}, 8, v{V_T0}", [V_N, V_T0], [V_T0]))
    a(V(f"v_and_b32 v{V_T1}, 1, v{V_G}", [V_G], [V_T1]))
    a(V(f"v_lshl_add_u32 v{V_T0}, v{V_T1}, 3, v{V_T0}", [V_T0, V_T1], [V_T0]))
    a(V(f"v_add_u32 v{V_QW}, {QBUF}, v{V_T0}", [V_T0], [V_QW]))
    a(V(f"v_xor_b32 v{V_QW+1}, 32, v{V_QW}", [V_QW], [V_QW+1]))
    a(V(f"v_lshl_add_u32 v{V_CW}, v{V_LANE}, 4, s{S_W8K}", [V_LANE, ('s', S_W8K)], [V_CW]))
    a(V(f"v_add_u32 v{V_CW+1}, {64*KB}, v{V_CW}", [V_CW], [V_CW+1]))
    a(S(f"s_add_u32 s{S_T0}, s{S_W8K}, {102*KB}", [S_W8K], [S_T0]))
    a(V(f"v_lshl_add_u32 v{V_LW}, v{V_LANE}, 5, s{S_T0}", [V_LANE, ('s', S_T0)], [V_LW]))
    a(S(f"s_mul_i32 s{S_T0}, s{S_B}, 640", [S_B], [S_T0]))
    a(S(f"s_lshl_b32 s{S_T2}, s{S_HQ}, 2", [S_HQ], [S_T2]))
    a(S(f"s_add_u32 s{S_T0}, s{S_T0}, s{S_T2}", [S_T0, S_T2], [S_T0]))
    a(S(f"s_add_u32 s{S_T0}, s{S_T0}, s{S_W}", [S_T0, S_W], [S_T0]))
    a(S(f"s_lshl_b32 s{S_T0}, s{S_T0}, 10", [S_T0], [S_T0]))
    a(V(f"v_lshl_add_u32 v{V_OST}, v{V_LANE}, 4, s{S_T0}", [V_LANE, ('s', S_T0)], [V_OST]))
    a(V(f"v_cmp_eq_u32 vcc, 0, v{V_N}", [V_N], [VCC]))
    a(V(f"v_mov_b32 v{V_T0}, 0x3f803f80", [], [V_T0]))
    for i in range(4):
        a(V(f"v_cndmask_b32 v{V_ONES+i}, 0, v{V_T0}, vcc", [V_T0, VCC], [V_ONES+i]))
    for i in range(0, 20, 2):
        a(V(f"v_mov_b64 v[{V_NEGM+i}:{V_NEGM+i+1}], 0", [], [V_NEGM+i, V_NEGM+i+1]))
    return o[:n_early], o[n_early:]

V_QACC = V_VF
def AF(kap):
    return [(100, 120), (128, 148), (208, 156)][kap % 3]
def a_reads(kap):
    u, ks = kap >> 1, kap & 1
    c, s = u >> 1, kap & 3
    xf, wf = AF(kap)
    wb = WU(WSLOT[u], ks)
    xr = []
    for q in range(5):
        xb = XU(c, q)
        reg, base = (V_XA, 0) if xb < 64 * KB else (V_XB, 120 * KB)
        xr.append(dsrd('ds_read_b128', ('v', xf + q * 4), 4, reg + s, xb - base))
    wr = []
    for e in range(2):
        for h in range(2):
            reg, base = (V_WA, 40 * KB) if wb < 96 * KB else (V_WB, 96 * KB)
            wr.append(dsrd('ds_read_b64_tr_b16', ('v', wf + e * 4 + h * 2), 2, reg + e, wb - base + h * 1024))
    return wr[:2] + xr[:1] + wr[2:] + xr[1:]
def a_mfmas(kap):
    o = []
    xf, wf = AF(kap)
    for q in range(5):
        for e in range(2):
            d = ('v', V_QACC + (e * 5 + q) * 4)
            o.append(mfma(d, ('v', wf + e * 4), ('v', xf + q * 4), 0 if kap == 0 else d))
    return o
def lane0(sg, body, lab):
    sg.text(f"s_cmp_lg_u32 s{S_W}, 0"); sg.text(f"s_cbranch_scc1 {lab}")
    sg.text(f"s_mov_b64 s[{S_EX}:{S_EX+1}], exec"); sg.text("s_mov_b64 exec, 1")
    for x in body: sg.text(x)
    sg.text(f"s_mov_b64 exec, s[{S_EX}:{S_EX+1}]")
    sg.text(f"{lab}:")
def phase_a(sg, Q):
    stamp(sg, 1)
    sg.add(barrier(needvm=[('x', 0), ('w', 0)])); Q.mark('B0')
    stamp(sg, 2)
    sg.addall(a_reads(0)); sg.addall(a_reads(1))
    sg.add(S(f"s_mov_b32 s{S_T1}, {f2h(QSCALE)}", [], [S_T1]))
    sg.add(S(f"s_mov_b32 s{S_T2}, {f2h(QSCALE)}", [], [S_T2]))
    for kap in range(14 if int(opt.aq) else 16):
        mf = a_mfmas(kap)
        gaps = [[] for _ in mf]
        nx = kap + 2
        if nx < (14 if int(opt.lastlag) else 16):
            if nx % 2 == 0:
                u = nx >> 1
                need = [('x', u >> 1), ('w', u)]
                while any(it.ins.vmtag in need for it in Q.q):
                    n_ = len(Q.q); weave(sg, Q, [], 1, 0); assert len(Q.q) < n_, (u, Q.q[0].after)
                while True:
                    younger = 0
                    for tg, _w in reversed(sg.vm):
                        if tg in need: break
                        younger += 1
                    n_ = len(Q.q)
                    if younger >= int(opt.la): break
                    weave(sg, Q, [], 1, 0)
                    if len(Q.q) == n_: break
                dr = str(u) in str(opt.drain)
                sg.add(barrier(needvm=need, lg0=dr)); Q.mark(f'B{u}')
                if dr: Q.mark(f'B{u+1}')
                if u in (1, 3, 5, 7): stamp(sg, 5 + u // 2, 'A')
            for i, r in enumerate(a_reads(nx)): gaps[i].append(r)
        mf[0].r |= set(R('v', AF(kap)[0], 20) + R('v', AF(kap)[1], 8))
        pos = [1, 5, 9] if kap % 2 == 0 else [3, 7]
        if int(opt.perstep) == 6: pos = [1, 4, 7] if kap % 2 == 0 else [1, 4, 8]
        if int(opt.perstep) == 7: pos = [1, 4, 6, 9] if kap % 2 == 0 else [2, 5, 8]
        if int(opt.perstep) == 8: pos = [1, 4, 6, 9]
        nkv = sum(1 for it in Q.q if it.ins.vmtag[0] in 'kv')
        room = int(opt.alim) - (128 - nkv) + (len(Q.q) - nkv)
        place(gaps, Q, pos[:max(0, room)])
        if int(opt.aonly): sg.addall([x for x in interleave(mf, gaps) if x.k not in ('mfma', 'dsrd')])
        else: sg.addall(interleave(mf, gaps))
    if int(opt.lastlag):
        need = [('w', 7)]
        while any(it.ins.vmtag in need for it in Q.q): weave(sg, Q, [], 1, 0)
        sg.add(barrier(needvm=need, lg0=False)); Q.mark('B7')
        stamp(sg, 8, 'A')
        r14, r15 = a_reads(14), a_reads(15)
        sg.addall(r14[:3] + r15[:3] + r14[3:5] + r15[3:5] + flat([[r14[k], r15[k]] for k in range(5, 9)]))
    def qfin(q, e, packed):
        b = V_QACC + (e * 5 + q) * 4
        if packed: f_ = [V(f"v_pk_mul_f32 v[{b+r}:{b+r+1}], v[{b+r}:{b+r+1}], s[{S_T1}:{S_T1+1}]", [b+r, b+r+1], [b+r, b+r+1]) for r in (0, 2)]
        else: f_ = [V(f"v_mul_f32 v{b+r}, s{S_T1}, v{b+r}", [b+r], [b+r]) for r in range(4)]
        f_.append(V(f"v_cvt_pk_bf16_f32 v{b}, v{b}, v{b+1}", [b, b+1], [b]))
        f_.append(V(f"v_cvt_pk_bf16_f32 v{b+1}, v{b+2}, v{b+3}", [b+2, b+3], [b+1]))
        f_.append(dswr('ds_write_b64', V_QW + e, ('v', b), 2, q * 4096, lgtag='qw'))
        return f_
    todo = [(q, e) for q in range(5) for e in range(2)]
    if int(opt.aq):
        m14, m15 = a_mfmas(14), a_mfmas(15)
        if not int(opt.lastlag): m14[0].r |= set(R('v', AF(14)[0], 20) + R('v', AF(14)[1], 8))
        mf = flat([[m14[k], m15[k]] for k in range(10)])
        gaps = [[] for _ in mf]
        gi = 5
        while todo and gi + 3 <= 19:
            f_ = qfin(*todo.pop(0), False)
            gaps[gi] += f_[0:2]; gaps[gi + 1] += f_[2:4]; gaps[gi + 2] += f_[4:6]; gaps[gi + 3] = [f_[6]] + gaps[gi + 3]
            gi += 3
        nkv = sum(1 for it in Q.q if it.ins.vmtag[0] in 'kv')
        place(gaps, Q, [1, 4][:max(0, int(opt.alim) - (128 - nkv))])
        sg.addall(interleave(mf, gaps))
    stamp(sg, 9, 'A')
    for q, e in todo: sg.addall(qfin(q, e, True))
    while any(it.ins.vmtag in (('k', 0, 0), ('k', 0, 1)) for it in Q.q): weave(sg, Q, [], 1, 0)
    b = barrier(lg0=False); b.needlg = ('qw',)
    sg.addall(k_reads(0)); Q.mark(('kr', 0, 0)); Q.mark(('kr', 0, 1))
    sg.add(b); Q.mark('BQ'); Q.mark('B8')
    qr = [dsrd('ds_read_b128', AQ(q, s), 4, V_XB + s, QBUF - 120 * KB + q * 4096) for q in range(5) for s in range(4)]
    return qr

def TQ(tau):
    return divmod(tau, 5) if tau < 30 else (6 + ((tau - 30) & 1), (tau - 30) >> 1)
def qk(tau):
    i, q = TQ(tau)
    o = []
    for s, t in ([(s, t) for t in range(2) for s in range(4)] if int(opt.chain) else [(s, t) for s in range(4) for t in range(2)]):
        if True:
            d = ('v', V_S + (tau & 1) * 8 + t * 4)
            o.append(mfma(d, KF(i, t * 4 + s), AQ(q, s), ('v', V_NEGM + q * 4) if s == 0 else d))
            if s == 0 and int(opt.coal) and tau > 4: o[-1].r |= set(R(*KF(i, t * 4), 16))
    return o
def pv(tau):
    i, q = TQ(tau)
    p = ('v', V_P + (tau & 1) * 4)
    o = [mfma(AO(lam, q), ('v', V_VF + (i & 1) * 32 + lam * 4), p, AO(lam, q) if i else 0) for lam in range(8)]
    if int(opt.coal) and 0 < i < 7 + int(opt.v7s): o[0].r |= set(R('v', V_VF + (i & 1) * 32, 24)); o[5].r |= set(R('v', V_VF + (i & 1) * 32 + 24, 8))
    o.insert(0, mfma(LA(q), ('v', V_ONES), p, LA(q) if i else 0))
    return o
def sm(tau):
    b = V_S + (tau & 1) * 8
    p = V_P + (tau & 1) * 4
    e = [T(f"v_exp_f32 v{b+i}, v{b+i}", [b+i], [b+i]) for i in range(8)]
    c = [V(f"v_cvt_pk_bf16_f32 v{p+i}, v{b+2*i}, v{b+2*i+1}", [b+2*i, b+2*i+1], [p+i]) for i in range(4)]
    return e, c
def comb_writes(q):
    o = []
    for jd in range(1, 4):
        for e in range(2):
            u = q * 6 + (jd - 1) * 2 + e
            row = u >> 3
            o.append(dswr('ds_write_b128', V_CW + (row >> 1), AO(2 * jd + e, q), 4, (row & 1) * 32 * KB + (u & 7) * KB, lgtag=('cw', q)))
    o.insert(0, dswr('ds_write_b32', V_LW, LA(q), 1, [0, 4, 16, 20, 24][q], lgtag=('cw', q)))
    return o

def wo_dma(pos, after=None):
    o = []
    for ks in range(4):
        for half in range(2):
            base = (128 * KB if pos < 0 else pos * 32 * KB) + ks * 8 * KB + half * 4 * KB
            if pos < 0:
                pre = [S(f"s_lshl_b32 s{S_SK}, s{S_J}, 17", [S_J], [S_SK])] if ks + half == 0 else []
                h = S_SK
            else: pre, h = [], S_H + pos
            pre += [S(f"s_add_u32 s{S_SO}, s{h}, {ks*32768 + half*16384}", [h], [S_SO]), S(f"s_add_u32 m0, s{S_W1K}, {base}", [S_W1K], [M0])]
            o.append(Item(pre, dma(V_WOD, S_WO, S_SO, 0, ('wo', pos)), after))
    return o
def osib_dma(pos):
    o = []
    for q in range(5):
        pre = [S(f"s_lshr_b32 s{S_SK}, s{S_H+pos}, 5", [S_H+pos], [S_SK])] if q == 0 else []
        pre += [S(f"s_add_u32 s{S_SO}, s{S_SK}, {q*128*KB}", [S_SK], [S_SO]), S(f"s_add_u32 m0, s{S_W5K}, {(140 - 20*pos + q)*KB}", [S_W5K], [M0])]
        o.append(Item(pre, dma(V_OD, S_O, S_SO, 0, ('os', pos), flags=' sc1')))
    return o
def tail_calc():
    o = []; a = o.append
    T0, T1, T2 = 252, 253, 254
    a(V(f"v_lshlrev_b32 v{T0}, 4, v{V_LANE}", [V_LANE], [T0]))
    for jd in range(1, 4):
        for ab in range(2): a(V(f"v_xor_b32 v{V_CR+2*(jd-1)+ab}, {jd << 13}, v{V_CW+ab}", [V_CW+ab], [V_CR+2*(jd-1)+ab]))
    a(V(f"v_add_u32 v{V_OL}, {96*KB}, v{T0}", [T0], [V_OL]))
    a(V(f"v_add_u32 v{V_OW}, s{S_W5K}, v{V_OL}", [V_OL, ('s', S_W5K)], [V_OW]))
    a(S(f"s_mov_b32 s{S_T0}, {102*KB}", [], [S_T0]))
    a(V(f"v_lshl_add_u32 v{V_LR}, v{V_N}, 5, s{S_T0}", [V_N, ('s', S_T0)], [V_LR]))
    if int(opt.dtch_at) < 99:
        a(V(f"v_lshrrev_b32 v{T1}, 3, v{V_LANE}", [V_LANE], [T1]))
        a(V(f"v_min_u32 v{T1}, 4, v{T1}", [T1], [T1]))
        a(V(f"v_and_b32 v{T2}, 7, v{V_LANE}", [V_LANE], [T2]))
        a(V(f"v_lshlrev_b32 v{T2}, 7, v{T2}", [T2], [T2]))
        a(V(f"v_sub_u32 v{T2}, v{T2}, v{T0}", [T2, T0], [T2]))
        a(V(f"v_lshl_add_u32 v66, v{T1}, 17, v{T2}", [T1, T2], [66]))
        a(V(f"v_add_u32 v66, v66, v{V_OST}", [66, V_OST], [66]))
        a(V(f"v_lshl_add_u32 v67, v{T1}, 13, v{T2}", [T1, T2], [67]))
        a(V(f"v_add_u32 v67, v67, v{V_PS}", [67, V_PS], [67]))
    for k in range(5): a(S(f"s_mov_b32 s{S_TAB+k}, {k*8192}", [], [S_TAB+k]))
    return o
def handoff_calc():
    o = []; a = o.append
    T0, T1, T2, T3 = 252, 253, 254, 9
    a(S(f"s_lshl_b32 s{S_T0}, s{S_J}, 12", [S_J], [S_T0]))
    a(V(f"v_subrev_u32 v{V_OD}, s{S_T0}, v{V_OST}", [V_OST, ('s', S_T0)], [V_OD]))
    a(S(f"s_lshl_b32 s{S_T0}, s{S_B}, 2", [S_B], [S_T0]))
    a(S(f"s_add_u32 s{S_T0}, s{S_T0}, s{S_J}", [S_T0, S_J], [S_T0]))
    a(S(f"s_mul_i32 s{S_T0}, s{S_T0}, {20*8*KB}", [S_T0], [S_T0]))
    a(S(f"s_mul_i32 s{S_T1}, s{S_W}, {5*8*KB}", [S_W], [S_T1]))
    a(S(f"s_lshl_b32 s{S_T2}, s{S_HKV}, 10", [S_HKV], [S_T2]))
    a(S(f"s_add_u32 s{S_T2}, s{S_T2}, s{S_T1}", [S_T2, S_T1], [S_T2]))
    a(S(f"s_add_u32 s{S_T2}, s{S_T2}, s{S_T0}", [S_T2, S_T0], [S_T2]))
    a(V(f"v_lshl_add_u32 v{V_PS}, v{V_LANE}, 4, s{S_T2}", [V_LANE, ('s', S_T2)], [V_PS]))
    tr = int(opt.otr)
    if tr:
        a(S(f"s_mul_i32 s{S_T1}, s{S_HKV}, 160", [S_HKV], [S_T1]))
        a(V(f"v_add_u32 v{T0}, s{S_T1}, v0", [0, ('s', S_T1)], [T0]))
    else:
        a(S(f"s_lshl_b32 s{S_T1}, s{S_HKV}, 2", [S_HKV], [S_T1]))
        a(S(f"s_add_u32 s{S_T1}, s{S_T1}, s{S_W}", [S_T1, S_W], [S_T1]))
        a(S(f"s_mul_i32 s{S_T1}, s{S_T1}, 40", [S_T1], [S_T1]))
        a(V(f"v_add_u32 v{T0}, s{S_T1}, v{V_LANE}", [V_LANE, ('s', S_T1)], [T0]))
    if int(opt.pairw):
        a(V(f"v_lshrrev_b32 v{T1}, 6, v{T0}", [T0], [T1]))
        a(V(f"v_cmp_lt_u32 vcc, 9, v{T1}", [T1], [VCC]))
        a(V(f"v_bfe_u32 v{T2}, v{T0}, 5, 1", [T0], [T2]))
        a(V(f"v_mul_u32_u24 v{T2}, 10, v{T2}", [T2], [T2]))
        a(V(f"v_add_u32 v{T1}, v{T1}, v{T2}", [T1, T2], [T1]))
        a(V(f"v_cndmask_b32 v{T2}, 0, 10, vcc", [VCC], [T2]))
        a(V(f"v_add_u32 v{T1}, v{T1}, v{T2}", [T1, T2], [T1]))
        a(V(f"v_and_b32 v{T0}, 31, v{T0}", [T0], [T0]))
        a(V(f"v_lshl_add_u32 v{T0}, v{T1}, 5, v{T0}", [T1, T0], [T0]))
    a(V(f"v_bfe_u32 v{T1}, v{T0}, 5, 1", [T0], [T1]))
    a(V(f"v_and_b32 v{T2}, 7, v{T0}", [T0], [T2]))
    a(V(f"v_lshl_add_u32 v{T1}, v{T1}, 3, v{T2}", [T1, T2], [T1]))
    a(V(f"v_bfe_u32 v{T2}, v{T0}, 3, 2", [T0], [T2]))
    a(V(f"v_lshrrev_b32 v{T0}, 6, v{T0}", [T0], [T0]))
    a(V(f"v_lshl_add_u32 v{T3}, v{T2}, 4, v{T1}", [T1, T2], [T3]))
    a(V(f"v_lshl_add_u32 v{V_PLD}, v{T3}, 4, s{S_T0}", [T3, ('s', S_T0)], [V_PLD]))
    a(V(f"v_lshl_add_u32 v{V_PLD}, v{T0}, 13, v{V_PLD}", [T0, V_PLD], [V_PLD]))
    a(V(f"v_mul_u32_u24 v{T3}, 52, v{T0}", [T0], [T3]))
    a(V(f"v_lshrrev_b32 v{T3}, 8, v{T3}", [T3], [T3]))
    if tr:
        a(V(f"v_and_b32 v{T1}, 8, v{T1}", [T1], [T1]))
        a(V(f"v_bfe_u32 v{T2}, v0, 2, 3", [0], [T2]))
        a(V(f"v_add_u32 v{T1}, v{T1}, v{T2}", [T1, T2], [T1]))
        a(V(f"v_and_b32 v{T2}, 3, v0", [0], [T2]))
    a(V(f"v_lshlrev_b32 v{T2}, {4 if tr else 3}, v{T2}", [T2], [T2]))
    a(V(f"v_lshl_add_u32 v{T2}, v{T3}, 6, v{T2}", [T3, T2], [T2]))
    a(V(f"v_lshl_add_u32 v{T2}, v{T1}, 10, v{T2}", [T1, T2], [T2]))
    a(V(f"v_mul_u32_u24 v{T3}, 5, v{T3}", [T3], [T3]))
    a(V(f"v_sub_u32 v{T0}, v{T0}, v{T3}", [T0, T3], [T0]))
    a(V(f"v_lshl_add_u32 v{T2}, v{T0}, 14, v{T2}", [T0, T2], [T2]))
    a(S(f"s_mul_i32 s{S_T0}, s{S_B}, 81920", [S_B], [S_T0]))
    a(S(f"s_lshl_b32 s{S_T2}, s{S_J}, 8", [S_J], [S_T2]))
    a(S(f"s_add_u32 s{S_T0}, s{S_T0}, s{S_T2}", [S_T0, S_T2], [S_T0]))
    a(V(f"v_add_u32 v{V_OUT}, s{S_T0}, v{T2}", [T2, ('s', S_T0)], [V_OUT]))
    a(V(f"v_cmp_gt_u32 vcc, 160, v0", [0], [VCC]) if tr else V(f"v_cmp_gt_u32 vcc, 40, v{V_LANE}", [V_LANE], [VCC]))
    a(V(f"v_mov_b32 v{T0}, 0x7ff00000", [], [T0]))
    a(V(f"v_cndmask_b32 v{V_PLD}, v{T0}, v{V_PLD}, vcc", [T0, V_PLD, VCC], [V_PLD]))
    a(V(f"v_cndmask_b32 v{V_OUT}, v{T0}, v{V_OUT}, vcc", [T0, V_OUT, VCC], [V_OUT]))
    for pv_, n_, sh, sg_ in ((V_P1, 4, 9, S_G1), (V_P2, 8, 11, S_G2)):
        a(V(f"v_lshl_add_u32 v{pv_}, v{V_LANE}, {sh}, s{sg_}", [V_LANE, ('s', sg_)], [pv_]))
        a(V(f"v_cmp_gt_u32 vcc, {n_}, v{V_LANE}", [V_LANE], [VCC]))
        a(V(f"v_cndmask_b32 v{pv_}, v{T0}, v{pv_}, vcc", [T0, pv_, VCC], [pv_]))
    return o
def wod_calc():
    o = []; a = o.append
    T0, T1 = 252, 253
    a(S(f"s_lshl_b32 s{S_T0}, s{S_B}, 2", [S_B], [S_T0]))
    a(S(f"s_add_u32 s{S_T0}, s{S_T0}, s{S_W}", [S_T0, S_W], [S_T0]))
    a(S(f"s_lshl_b32 s{S_T0}, s{S_T0}, 14", [S_T0], [S_T0]))
    a(S(f"s_lshl_b32 s{S_T2}, s{S_J}, 8", [S_J], [S_T2]))
    a(S(f"s_add_u32 s{S_T0}, s{S_T0}, s{S_T2}", [S_T0, S_T2], [S_T0]))
    a(V(f"v_bfe_u32 v{T0}, v{V_LANE}, 1, 4", [V_LANE], [T0]))
    a(V(f"v_and_b32 v{T1}, 1, v{V_LANE}", [V_LANE], [T1]))
    a(V(f"v_lshlrev_b32 v{T1}, 7, v{T1}", [T1], [T1]))
    a(V(f"v_lshl_add_u32 v{T0}, v{T0}, 10, v{T1}", [T0, T1], [T0]))
    a(V(f"v_add_u32 v{V_TCH}, s{S_T0}, v{T0}", [T0, ('s', S_T0)], [V_TCH]))
    a(S(f"s_and_b32 s{S_T0}, s{S_W}, 1", [S_W], [S_T0]))
    a(S(f"s_lshl_b32 s{S_T0}, s{S_T0}, 3", [S_T0], [S_T0]))
    a(V(f"v_lshl_add_u32 v{T0}, v{V_G}, 1, s{S_T0}", [V_G, ('s', S_T0)], [T0]))
    a(V(f"v_xor_b32 v{T0}, v{V_N}, v{T0}", [V_N, T0], [T0]))
    a(S(f"s_lshl_b32 s{S_T0}, s{S_J}, 8", [S_J], [S_T0]))
    a(V(f"v_lshl_add_u32 v{T0}, v{T0}, 4, s{S_T0}", [T0, ('s', S_T0)], [T0]))
    a(V(f"v_lshl_add_u32 v{T1}, s{S_W}, 2, v{V_G}", [V_G, ('s', S_W)], [T1]))
    a(V(f"v_lshl_add_u32 v{V_WOD}, v{T1}, 10, v{T0}", [T0, T1], [V_WOD]))
    return o

def phase_b(sg, Q, qr):
    NT = 8
    calc = tail_calc()[-5:]
    sg.addall(qr[:4])
    weave(sg, Q, [], int(opt.bq), 0)
    qr = qr[4:]
    for tau in range(-1, 40):
        i, q = divmod(tau, 5) if tau >= 0 else (-1, 4)
        mf = []
        bst = [int(x) for x in opt.bst.split(',')]
        if tau in bst: stamp(sg, 5 + bst.index(tau), 'B')
        if tau + 1 < 40: mf += qk(tau + 1)
        if tau - 1 >= 0: mf += pv(tau - 1)
        ds, marks = [], []
        if tau == -1: ds = qr[:8] if int(opt.b0s) else qr
        elif tau == 0 and int(opt.b0s): v0 = v_reads(0); ds = [v0[l + 8 * h] for l in range(5) for h in range(2)]
        elif tau == 1 and int(opt.b0s): v0 = v_reads(0); ds = [v0[l + 8 * h] for l in range(5, 8) for h in range(2)] + qr[8:11]; marks = [('vr', 0, 0), ('vr', 0, 1)]
        elif tau == 2 and int(opt.b0s): ds = qr[11:16] + k_reads(1)[:4]; marks = [('kr', 1, 0)]
        elif tau == 0: ds = v_reads(0); marks = [('vr', 0, 0), ('vr', 0, 1)]
        elif tau < 27:
            if q == 2: ds = k_reads(i + 1)[:4]; marks = [('kr', i + 1, 0)]
            if q == 3: ds = k_reads(i + 1)[4:] + v_reads(i + 1)[:2]; marks = [('kr', i + 1, 1)]
            if q == 4: ds = v_reads(i + 1)[2:8]; marks = [('vr', i + 1, 0)]
            if q == 0: ds = v_reads(i)[8:14]
            if q == 1 and i > 0: ds = v_reads(i)[14:]; Q.mark(('vr', i, 1))
        xp = None
        if tau >= 27:
            k6, k7, v6, v7 = k_reads(6), k_reads(7), v_reads(6), v_reads(7)
            vo = [v7[l + 8 * h] for l in range(8) for h in range(2)]
            G = [1, 3, 5, 7, 9, 11, 13, 15, 16]
            def cwp(q_, second):
                w_ = comb_writes(q_)
                if int(opt.w64) and q_ < 2:
                    h_ = []
                    for x in w_[1:]:
                        m_ = re.match(r"ds_write_b128 v(\d+), a\[(\d+):\d+\] offset:(\d+)", x.t)
                        for z in range(2): h_.append(dswr('ds_write_b64', int(m_.group(1)), ('a', int(m_.group(2)) + 2 * z), 2, int(m_.group(3)) + 8 * z, lgtag=x.lgtag))
                    return list(zip([1, 3, 5, 9, 13, 16], h_[6:])) if second else list(zip([7, 1, 3, 5, 9, 13, 16], [w_[0]] + h_[:6]))
                return list(zip([1, 9, 13], w_[4:])) if second else list(zip([7, 1, 9, 13], w_[:4]))
            xp = {27: list(zip([3, 5, 9, 11, 15, 16], k6[:4] + v6[:2])),
                  28: list(zip([1, 3, 5, 7, 9, 11, 13, 15, 16], k6[4:] + k7[:5])),
                  29: list(zip(G, k7[5:] + v6[2:8])),
                  30: list(zip([1, 3, 5, 7, 9, 11, 13, 15, 16, 16], v6[8:] + vo[:2])),
                  31: list(zip([1, 3, 5, 7, 9, 11, 13, 15, 16, 16], vo[2:12])) if int(opt.v7s) else list(zip([1, 1, 3, 5, 5, 7, 9, 9, 11, 13, 13, 15, 16, 16], vo[2:])),
                  32: list(zip([1, 3, 5, 7], vo[12:])) if int(opt.v7s) else [], 33: cwp(0, 0), 34: cwp(0, 1), 35: cwp(1, 0), 36: cwp(1, 1), 37: cwp(2, 0),
                  38: cwp(2, 1) + list(zip([3, 5, 5, 7, 11, 15, 16, 16], lreads((0, 1)) + preads(0)[:4])),
                  39: list(zip([0, 2, 4, 6], comb_writes(3)[:4])) + list(zip([1, 1, 3, 3, 5, 5, 7, 7], preads(0)[4:] + preads(1)))}[tau]
            if int(opt.x1e) and tau >= 36:
                xp = {36: list(zip([1, 5, 9], comb_writes(1)[4:])),
                      37: cwp(2, 0) + list(zip([3, 5, 11, 15, 16, 16], preads(0))),
                      38: cwp(2, 1) + list(zip([3, 5, 5, 7, 11, 15, 16, 16], lreads((0, 1)) + preads(1)[:4])),
                      39: list(zip([1, 3, 5, 7], comb_writes(3)[:4])) + list(zip([0, 8], preads(1)[4:]))}[tau]
            ds = [x for _, x in xp]; marks = []
            if tau == (37 if int(opt.x1e) else 38):
                b = barrier(needvm=[('wo', -1)], lg0=False); b.needlg = (('cw', 0), ('cw', 1)); sg.add(b)
        n = len(mf)
        gaps = [[] for _ in range(n)]
        e, c = sm(tau) if 0 <= tau < 40 else ([], [])
        if n == 17:
            epos = [0, 2, 4, 6, 8, 10, 12, 14]; cpos = [3, 7, 11, 15]
            dpos = [1, 3, 5, 7, 9, 11, 13, 15] if len(ds) > 4 else [1, 3, 5, 7]
            if ds and ds[0].k == 'dswr': dpos = [1, 1, 3, 7, 9, 13, 16]
            vpos = [1, 5, 9, 13] if (tau < int(opt.even_at) or q == 1) else [1, 7, 13]
            if int(opt.bsched) and not (ds and ds[0].k == 'dswr'):
                if q == 1: dpos, vpos = [1, 3], [5, 9, 13, 16]
                elif tau < int(opt.even_at) or tau >= int(opt.even_end): dpos, vpos = ([3, 7, 11, 15, 16, 16] if q != 3 else [1, 3, 7, 11, 15, 16]), ([1, 5, 9, 13] if q != 3 else [5, 9, 13, 16])
                else: dpos, vpos = [3, 5, 9, 11, 15, 16], [1, 7, 13]
        else:
            epos = list(range(8)); cpos = [min(n - 1, x) for x in (2, 4, 6, 8)]
            dpos = [(k * n) // max(1, len(ds)) for k in range(len(ds))]
            vpos = [int(x) for x in opt.spos.split(',')] if tau < 5 else [1, 5]
        if int(opt.b0s) and tau in (1, 2): dpos, vpos = [1, 1, 3, 5, 5, 7, 11, 15, 16], [9, 13]
        if xp is not None:
            dpos = [g_ for g_, _ in xp]; vpos = [int(x) for x in opt.wpos.split(',')] if tau >= 32 else [13]
            if tau == 27: vpos = [1, 7, 13]
        for x, p_ in zip(ds, dpos): gaps[p_].append(x)
        if tau == int(opt.nl_at):
            sg.add(V("v_mov_b32 v9, 0", [], [9]))
            Q.q.insert(0, Item([], vload(('v', V_GC), 2, 9, S_D, None, 0, flags=' sc1', tag='non')))
        if tau == int(opt.nc_at):
            assert not any(it.ins.vmtag == 'non' for it in Q.q)
            sg.add(V(f"v_readfirstlane_b32 s{S_NON}, v{V_GC}", [V_GC], [('s', S_NON)]))
            sg.add(V(f"v_readfirstlane_b32 s{S_NON+1}, v{V_GC+1}", [V_GC+1], [('s', S_NON+1)]))
            sg.add(S(f"s_cmp_eq_u64 s[{S_NON}:{S_NON+1}], 0", [S_NON, S_NON+1], []))
            sg.text("s_cbranch_scc1 L_spin_n"); sg.text("L_back_n:")
        if tau == 32: stamp_out(sg, 1) if opt.stamps == 'Z' else None
        if tau == int(opt.bar_at): sg.add(barrier(lg0=False))
        for x in ds:
            while any(it.ins.vmtag in x.needvm for it in Q.q): weave(sg, Q, [], 1, 0)
        if tau == int(opt.tch_at): Q.push([Item([], vload(('v', V_TCH + 1), 1, V_TCH, S_WO, None, 0, flags=opt.tch_flags))])
        if tau == int(opt.tlb_at):
            Q.push([Item([], vload(('v', 72), 1, V_ZERO, S_C, S_F1, 0, flags=' sc1')), Item([], vload(('v', 73), 1, V_ZERO, S_C, S_F2, 0, flags=' sc1'))])
        if tau == int(opt.cpf2_at):
            for x in ["s_getpc_b64 s[94:95]", "L_pc2:", "s_lshr_b32 s92, s2, 3", f"s_lshl_b32 s92, s92, 2", f"s_add_u32 s92, s92, s{S_W}", "s_lshl_b32 s92, s92, 7",
                      f"s_add_u32 s92, s92, {int(opt.cpf2_skip)}", "s_min_u32 s92, s92, (L_code_end - L_pc2 - 4) & 0xffffff80", "v_mov_b32 v74, s92", "global_load_dword v255, v74, s[94:95]"]: sg.text(x)
        if tau == int(opt.dtch_at):
            assert not calc
            Q.push(([Item([], vload(('v', 74), 1, 66, S_O, None, 0, flags=opt.dtch_flags))] if 'o' in opt.dtch else []) + ([Item([], vload(('v', 75), 1, 67, S_WT, None, 0, flags=opt.dtch_flags))] if 'p' in opt.dtch else []))
        if tau == int(opt.otch_at): Q.push([Item([], vload(('v', 66), 1, V_OUT, S_OUT, None, 0, flags=opt.otch_flags))])
        if tau == int(opt.wo_at): assert not calc; Q.push(wo_dma(-1))
        place(gaps, Q, vpos)
        for x, p_ in zip(e, epos): gaps[p_].append(x)
        for x, p_ in zip(c, cpos): gaps[p_].append(x)
        if tau >= int(opt.calc_at) and n == 17:
            for gi in range(17):
                if calc and calc[0].k == 'salu' and not any(y.k == 'salu' for y in gaps[gi]): gaps[gi].insert(0, calc.pop(0))
                cost = sum(8 if y.k == 'trans' else 0 if y.k == 'salu' else 4 for y in gaps[gi])
                while calc and calc[0].k != 'salu' and cost <= 4: gaps[gi].append(calc.pop(0)); cost += 4
        sg.addall(interleave(mf, gaps))
        for m in marks: Q.mark(m)

def poll(sg, lab, vaddr):
    sg.text(f"s_mov_b32 s{S_SPIN}, {opt.spin}")
    sg.text(f"{lab}:")
    sg.text(f"buffer_load_dwordx2 v[250:251], v{vaddr}, s[{S_C}:{S_C+3}], 0 offen sc1")
    sg.text(f"s_sub_u32 s{S_SPIN}, s{S_SPIN}, 1")
    sg.text("s_waitcnt vmcnt(0)")
    sg.text(f"v_cmp_ne_u64 vcc, s[{S_NON}:{S_NON+1}], v[250:251]")
    sg.text(f"s_cmp_eq_u32 s{S_SPIN}, 0")
    sg.text(f"s_cbranch_scc1 {lab}_done")
    sg.text("s_nop 2")
    sg.text(f"s_cbranch_vccnz {lab}")
    sg.text(f"{lab}_done:")
    sg.vm = []
def raise_flag(sg, stage, tag):
    ins = vstore(('v', V_GC), 2, V_P1 if stage == 1 else V_P2, S_C, None, 0, flags=' sc1')
    ins.needvm = (tag,)
    sg.add(ins)
WOF = A_Q
RES = 100
def part(q, k):
    if q == 0: return 36 + 4 * k if k < 4 else 64 + 4 * (k - 4)
    return {1: 100, 2: 164, 3: 188, 4: 100}[q] + 4 * k
def preads(q):
    o = []
    for jd in range(1, 4):
        for e in range(2):
            k = (jd - 1) * 2 + e; u = q * 6 + k; row = u >> 3
            o.append(dsrd('ds_read_b128', ('v', part(q, k)), 4, V_CR + 2 * (jd - 1) + (row >> 1), (row & 1) * 32 * KB + (u & 7) * KB))
    return o
LSA, LSB = 124, 76
def lreads(qs):
    if qs == (0, 1): return [dsrd('ds_read_b64', ('v', LSA + src * 2), 2, V_LR, src * 8 * KB) for src in range(4)]
    if qs == (2, 3): return [dsrd('ds_read_b64', ('v', LSB + src * 4), 2, V_LR, src * 8 * KB + 16) for src in range(4)]
    if qs == (4,): return [dsrd('ds_read_b32', ('v', LSB + src * 4 + 2), 1, V_LR, src * 8 * KB + 24) for src in range(4)]
    return [dsrd('ds_read_b128', ('v', LSB + src * 4), 4, V_LR, src * 8 * KB + 16) for src in range(4)]
def lsum(qs):
    w = []
    def lr(src, q): return LSA + src * 2 + q if q < 2 else LSB + src * 4 + q - 2
    LS = lr(0, qs[0])
    for q in qs:
        d = V_T0 + q
        w.append(V(f"v_add_f32 v{d}, v{lr(0,q)}, v{lr(1,q)}", [lr(0,q), lr(1,q)], [d]))
        w.append(V(f"v_add_f32 v{lr(2,q)}, v{lr(2,q)}, v{lr(3,q)}", [lr(2,q), lr(3,q)], [lr(2,q)]))
        w.append(V(f"v_add_f32 v{d}, v{d}, v{lr(2,q)}", [d, lr(2,q)], [d]))
    lo_, hi_ = LS, LS + 1
    if len(qs) == 1: lo_ = hi_ = V_T0 + qs[0]
    else:
        a_, b_, c_ = V_T0 + qs[0], V_T0 + qs[1], V_T0 + qs[-1]
        w.append(V(f"v_min3_f32 v{LS}, v{a_}, v{b_}, v{c_}", [a_, b_, c_], [LS]))
        w.append(V(f"v_add_f32 v{LS+1}, v{a_}, v{b_}", [a_, b_], [LS+1]))
        if len(qs) == 3: w.append(V(f"v_add_f32 v{LS+1}, v{LS+1}, v{c_}", [LS+1, c_], [LS+1]))
    w.append(V(f"v_cmp_nle_f32 vcc, {f2h(2.0**int(opt.lo_exp))}, v{lo_}", [lo_], [VCC]))
    w.append(S(f"s_mov_b64 s[{S_EX}:{S_EX+1}], vcc", [VCC], [S_EX, S_EX+1]))
    w.append(V(f"v_cmp_nge_f32 vcc, {f2h(2.0**int(opt.hi_exp))}, v{hi_}", [hi_], [VCC]))
    w.append(S(f"s_or_b64 vcc, vcc, s[{S_EX}:{S_EX+1}]", [VCC, S_EX, S_EX+1], [VCC]))
    w.append(S(f"s_and_b64 vcc, vcc, s[{S_GM}:{S_GM+1}]", [VCC], [VCC]))
    w.append(raw("s_cbranch_vccnz L_redo"))
    for q in qs: w.append(T(f"v_rcp_f32 v{V_T0+q}, v{V_T0+q}", [V_T0+q], [V_T0+q]))
    return w
def finish(q):
    w = []
    for e in range(2):
        o_ = V_OWN[q] + e * 4
        for jd in range(1, 4):
            p_ = part(q, (jd - 1) * 2 + e)
            for r in (0, 2):
                w.append(V(f"v_pk_add_f32 v[{o_+r}:{o_+r+1}], v[{o_+r}:{o_+r+1}], v[{p_+r}:{p_+r+1}]", [o_+r, o_+r+1, p_+r, p_+r+1], [o_+r, o_+r+1]))
    o_ = V_OWN[q]
    ri = V_T0 + (q & ~1); sel = "op_sel:[0,1] op_sel_hi:[1,1]" if q & 1 else "op_sel:[0,0] op_sel_hi:[1,0]"
    for r in range(0, 8, 2):
        w.append(V(f"v_pk_mul_f32 v[{o_+r}:{o_+r+1}], v[{o_+r}:{o_+r+1}], v[{ri}:{ri+1}] {sel}", [o_+r, o_+r+1, V_T0+q], [o_+r, o_+r+1]))
    for r in range(4):
        w.append(V(f"v_cvt_pk_bf16_f32 v{o_+r}, v{o_+2*r}, v{o_+2*r+1}", [o_+2*r, o_+2*r+1], [o_+r]))
    w.append(S(f"s_mov_b32 s{S_SV}, {q*128*KB}", [], [S_SV]))
    w.append(vstore(('v', o_), 4, V_OST, S_O, S_SV, 0, flags=opt.o_flags, tag='ost'))
    return w
def wor():
    return [dsrd('ds_read_b64_tr_b16', ('a', WOF + (ks * 2 + e) * 4 + h * 2), 2, V_WT + 4 + e, ks * 8 * KB + h * 4096) for ks in range(4) for e in range(2) for h in range(2)]
def combine(sg, Q):
    assert not Q.q
    mf = pv(39); gaps = [[] for _ in mf]
    wr = comb_writes(3)[4:]; ls = lsum((0, 1))
    for k, x in enumerate(wr): gaps[3 * k].append(x)
    k = 0
    for gi in range(9):
        n_ = 2 - len(gaps[gi])
        while ls and (n_ > 0 or ls[0].k == 'salu') and gi < 9:
            x = ls.pop(0); gaps[gi].append(x)
            n_ -= 0 if x.k == 'salu' else 2 if x.k == 'trans' else 1
    sg.addall(interleave(mf, gaps))
    stamp(sg, 4)
    if int(opt.c3):
        sg.addall(ls + finish(0))
        b = barrier(lg0=False); b.needlg = (('cw', 2), ('cw', 3)); sg.add(b)
        w4 = comb_writes(4)
        rd = lreads((2, 3)) + preads(2) + preads(3)
        for k in range(len(rd)):
            sg.add(rd[k])
            if k % 3 == 1 and w4: sg.add(w4.pop(0))
        w = finish(1) + lsum((2, 3)) + finish(2)
        for k, x in enumerate(w4): w.insert(4 + 8 * k, x)
        sg.addall(w)
        sg.add(barrier())
        stamp(sg, 5)
        Q.push(wo_dma(0))
        rd = lreads((4,)) + preads(4)
        weave(sg, Q, rd, int(opt.cw), 5)
        sg.addall(rd + finish(3) + lsum((4,)) + finish(4))
        stamp(sg, 6)
        return
    w4 = comb_writes(4)
    w = ls + finish(0) + finish(1)
    for k, x in enumerate(w4): w.insert(min(len(w), 6 + k * 6), x)
    sg.addall(w)
    sg.add(barrier())
    stamp(sg, 5)
    Q.push(wo_dma(0))
    rd = lreads((2, 3, 4)) + preads(2) + preads(3)
    weave(sg, Q, rd, int(opt.cw), 2)
    sg.addall(rd)
    w = lsum((2, 3, 4)) + preads(4) + finish(2) + finish(3) + finish(4)
    if not int(opt.worlate):
        for k, x in enumerate(wor()): w.insert(30 + 3 * k, x)
    sg.addall(w)
    stamp(sg, 6)

def phase_c(sg, Q):
    a = sg.add
    ACC = 164
    a(barrier())
    stamp(sg, 5, 'D')
    for q in range(5): a(dswr('ds_write_b128', V_OW, ('v', V_OWN[q]), 4, q * KB))
    Q.push(wo_dma(1) + wo_dma(2))
    wr_ = wor() if int(opt.worlate) else []
    weave(sg, Q, wr_, int(opt.shadow), 3)
    sg.addall(wr_)
    stamp(sg, 6, 'D')
    a(barrier())
    def CF(k): return [(100, 120), (64, 84), (204, 36)][k % 3]
    def c_reads(k):
        pos, ks = divmod(k, 4); pos -= 1
        xf, wf = CF(k)
        ob = 0 if pos < 0 else (44 - 20 * pos) * KB
        xr = [dsrd('ds_read_b128', ('v', xf + q * 4), 4, V_OL, ob + (ks * 5 + q) * KB) for q in range(5)]
        if pos < 0: return xr
        wb = (pos * 4 + ks) * 8 * KB
        wr = [dsrd('ds_read_b64_tr_b16', ('v', wf + e * 4 + h * 2), 2, V_WT + (2 if wb >= 64 * KB else 0) + e, (wb % (64 * KB)) + h * 4096) for e in range(2) for h in range(2)]
        return wr[:2] + xr[:1] + wr[2:] + xr[1:]
    def c_mfmas(k):
        xf, wf = CF(k)
        ff = 'v'
        if k < 4: wf, ff = WOF + k * 8, 'a'
        o = []
        for q in range(5):
            for e in range(2):
                d = ('v', ACC + (q * 2 + e) * 4)
                o.append(mfma(d, (ff, wf + e * 4), ('v', xf + q * 4), 0 if k == 0 else d))
        o[0].r |= set(R('v', xf, 20) + R(ff, wf, 8))
        return o
    def step(k, nx, pos=()):
        mf = c_mfmas(k); gaps = [[] for _ in mf]
        if nx is not None:
            for i, r in enumerate(c_reads(nx)): gaps[i].append(r)
        place(gaps, Q, pos)
        sg.addall(interleave(mf, gaps))
    def own_steps():
        for k in range(4): step(k, k + 2 if k < 2 else None, [1, 5, 9] if k % 2 == 0 else [3, 7])
    sg.addall(c_reads(0)); sg.addall(c_reads(1))
    raise_flag(sg, 1, 'ost')
    stamp(sg, 7, 'D'); stamp(sg, 7)
    weave(sg, Q, [], min(len(Q.q), int(opt.pf)), 0)
    held = Q.q; Q.q = []
    stamp(sg, 8, 'D')
    t = [f"s_mov_b32 s{S_SPIN}, {opt.spin}", "L_poll1:", f"s_load_dwordx8 s[4:11], s[{S_C}:{S_C+1}], s{S_F1} glc", f"s_sub_u32 s{S_SPIN}, s{S_SPIN}, 1", "s_waitcnt lgkmcnt(0)",
         f"s_cmp_eq_u32 s{S_SPIN}, 0", "s_cbranch_scc1 L_poll1_done"]
    t += [f"s_lshl_b32 s{S_T0}, 1, s{S_J}"]
    for h in range(4): t += [f"s_cmp_eq_u64 s[{4+2*h}:{5+2*h}], s[{S_NON}:{S_NON+1}]", f"s_cselect_b32 s{S_T1}, {1 << h}, 0", f"s_or_b32 s{S_T0}, s{S_T0}, s{S_T1}"]
    t += [f"s_cmp_lg_u32 s{S_T0}, 15", "s_cbranch_scc1 L_poll1", "L_poll1_done:"]
    if int(opt.peek) & 1:
        sets = [4, 12, 76, 84]
        t = [f"s_mov_b32 s{S_SPIN}, {opt.spin}", f"s_lshl_b32 s{S_T2}, 1, s{S_J}", "s_waitcnt lgkmcnt(0)"]
        for b_ in sets: t += [f"s_mov_b64 s[{b_+2*h}:{b_+2*h+1}], 0" for h in range(4)]
        t += ["L_poll1:", f"s_sub_u32 s{S_SPIN}, s{S_SPIN}, 1", f"s_cmp_eq_u32 s{S_SPIN}, 0", "s_cbranch_scc1 L_poll1_done"]
        for b_ in sets:
            t += [f"s_mov_b32 s{S_T0}, s{S_T2}"]
            for h in range(4): t += [f"s_cmp_eq_u64 s[{b_+2*h}:{b_+2*h+1}], s[{S_NON}:{S_NON+1}]", f"s_cselect_b32 s{S_T1}, {1 << h}, 0", f"s_or_b32 s{S_T0}, s{S_T0}, s{S_T1}"]
            t += [f"s_cmp_eq_u32 s{S_T0}, 15", "s_cbranch_scc1 L_poll1_done", f"s_load_dwordx8 s[{b_}:{b_+7}], s[{S_C}:{S_C+1}], s{S_F1} glc"] + ["s_nop 7"] * int(opt.pgap)
        t += ["s_branch L_poll1", "L_poll1_done:"]
    for x in t: sg.text(x)
    sg.lg = []
    stamp(sg, 9, 'D')
    stamp(sg, 5, 'E')
    stamp(sg, 8)
    assert all(it.ins.vmtag == ('wo', 2) for it in held)
    Q.push(osib_dma(0) + osib_dma(1) + held)
    weave(sg, Q, [], 5, 0); own_steps()
    weave(sg, Q, [], len(Q.q), 0)
    stamp(sg, 6, 'E')
    a(barrier(needvm=[('os', 0), ('wo', 0), ('wo', 1)]))
    stamp(sg, 7, 'E')
    Q.push(osib_dma(2))
    sg.addall(c_reads(4)); sg.addall(c_reads(5))
    def pfin(q):
        b = ACC + q * 8
        return [V(f"v_cvt_pk_bf16_f32 v{b+r}, v{b+2*r}, v{b+2*r+1}", [b+2*r, b+2*r+1], [b+r]) for r in range(4)] + [vstore(('v', b), 4, V_PS, S_WT, S_TAB + q, 0, flags=' sc1', tag='pst')]
    last = 16 - (2 if int(opt.qmaj) else 0)
    for k in range(4, last):
        nx = k + 2 if k + 2 < 16 else None
        if nx in (8, 12):
            assert not Q.q or nx == 8
            a(barrier(needvm=[('os', nx // 4 - 1), ('wo', nx // 4 - 1)], lg0=False))
            stamp(sg, 8 if nx == 8 else 9, 'E')
        step(k, nx, [1, 5, 9] if k % 2 == 0 else [3, 7])
    if int(opt.qmaj):
        m14, m15 = c_mfmas(14), c_mfmas(15)
        m15[0].r -= set(R('v', CF(15)[0] + 4, 16))
        mf = flat([[m14[2*q], m15[2*q], m14[2*q+1], m15[2*q+1]] for q in range(5)])
        gaps = [[] for _ in mf]
        for q in range(4):
            f_ = pfin(q)
            g0 = 4 * q + 6
            if g0 + 2 < 20:
                gaps[g0] += f_[0:2]; gaps[g0 + 1] += f_[2:4]; gaps[g0 + 2] += f_[4:]
        sg.addall(interleave(mf, gaps))
        stamp(sg, 9)
        sg.addall(pfin(3) + pfin(4))
    else:
        stamp(sg, 9)
        for q in range(5): sg.addall(pfin(q))
    a(S(f"s_mov_b32 s{S_SO}, 4096", [], [S_SO]))
    a(S(f"s_mov_b32 s{S_T1}, 0xffff0000", [], [S_T1]))
    a(S(f"s_mov_b32 s{S_SPIN}, {opt.spin}", [], [S_SPIN]))
    a(S(f"s_mov_b32 s{S_T2}, 0", [], [S_T2]))
    a(S(f"s_mov_b32 s{S_SK}, 0", [], [S_SK]))
    if int(opt.f2wg):
        a(barrier(needvm=['pst'], lg0=False))
        sg.text(f"s_cmp_lg_u32 s{S_W}, 0"); sg.text("s_cbranch_scc1 L_sig2"); raise_flag(sg, 2, 'pst'); sg.text("L_sig2:")
    else: raise_flag(sg, 2, 'pst')
    stamp(sg, 5, '2')
    if int(opt.otr):
        a(V("v_lshlrev_b32 v11, 4, v0", [0], [11]))
        a(V("v_and_b32 v10, 0xe0, v0", [0], [10])); a(V("v_lshlrev_b32 v10, 4, v10", [10], [10]))
        a(V("v_and_b32 v12, 7, v0", [0], [12])); a(V("v_lshl_add_u32 v10, v12, 6, v10", [12, 10], [10]))
        a(V("v_bfe_u32 v12, v0, 3, 2", [0], [12])); a(V("v_lshl_add_u32 v10, v12, 3, v10", [12, 10], [10]))
        sg.text(f"s_cmp_eq_u32 s{S_W}, 3"); sg.text("s_cbranch_scc1 L_fin")
    PB, SM = 100, 132
    def pl(h): return vload(('v', PB + 4 * h), 4, V_PLD, S_WT, S_SO if h >= 4 else None, (h & 3) * 1024, flags=' sc1')
    t = ["L_poll2:", f"s_load_dwordx16 s[4:19], s[{S_C}:{S_C+1}], s{S_F2} glc", f"s_cmp_eq_u32 s{S_SK}, 0", "s_cbranch_scc1 L_nounp", "L_unp:", "s_waitcnt vmcnt(0)"]
    for h in range(8):
        t += [f"s_bitcmp1_b32 s{S_SK}, {h}", f"s_cbranch_scc0 L_u{h}"]
        for r in range(4): t += [f"v_lshlrev_b32 v{SM+8*h+2*r}, 16, v{PB+4*h+r}", f"v_and_b32 v{SM+8*h+2*r+1}, s{S_T1}, v{PB+4*h+r}"]
        t += [f"L_u{h}:"]
    t += [f"s_cmp_eq_u32 s{S_T2}, 0xff", "s_cbranch_scc1 L_poll2_done", "L_nounp:", f"s_mov_b32 s{S_SK}, 0", f"s_sub_u32 s{S_SPIN}, s{S_SPIN}, 1", "s_waitcnt lgkmcnt(0)",
          f"s_cmp_eq_u32 s{S_SPIN}, 0", "s_cbranch_scc1 L_poll2_done"]
    for h in range(8):
        t += [f"s_cmp_lg_u64 s[{4+2*h}:{5+2*h}], s[{S_NON}:{S_NON+1}]", f"s_cbranch_scc1 L_g{h}", f"s_bitcmp1_b32 s{S_T2}, {h}", f"s_cbranch_scc1 L_g{h}",
              f"s_bitset1_b32 s{S_T2}, {h}", f"s_bitset1_b32 s{S_SK}, {h}", pl(h).t, f"L_g{h}:"]
    t += [f"s_cmp_lg_u32 s{S_T2}, 0xff", "s_cbranch_scc1 L_poll2", "s_branch L_unp", "L_poll2_done:"]
    if not int(opt.unp):
        t = ["L_poll2:", f"s_load_dwordx16 s[4:19], s[{S_C}:{S_C+1}], s{S_F2} glc", f"s_sub_u32 s{S_SPIN}, s{S_SPIN}, 1", "s_waitcnt lgkmcnt(0)", f"s_cmp_eq_u32 s{S_SPIN}, 0", "s_cbranch_scc1 L_poll2_done"]
        for h in range(8):
            t += [f"s_cmp_lg_u64 s[{4+2*h}:{5+2*h}], s[{S_NON}:{S_NON+1}]", f"s_cbranch_scc1 L_g{h}", f"s_bitcmp1_b32 s{S_T2}, {h}", f"s_cbranch_scc1 L_g{h}",
                  f"s_bitset1_b32 s{S_T2}, {h}", f"s_bitset1_b32 s{S_SK}, {h}", pl(h).t, f"L_g{h}:"]
        t += [f"s_cmp_eq_u32 s{S_T2}, 0xff", "s_cbranch_scc1 L_poll2_done", f"s_mov_b32 s{S_SK}, 0", "s_branch L_poll2", "L_poll2_done:"]
        if int(opt.peek) & 2:
            t = ["s_waitcnt lgkmcnt(0)"]
            for b_ in (4, 76): t += [f"s_mov_b64 s[{b_+2*h}:{b_+2*h+1}], 0" for h in range(8)]
            t += ["L_poll2:", f"s_sub_u32 s{S_SPIN}, s{S_SPIN}, 1", f"s_cmp_eq_u32 s{S_SPIN}, 0", "s_cbranch_scc1 L_poll2_done"]
            for n_, b_ in enumerate((4, 76)):
                for h in range(8):
                    t += [f"s_cmp_lg_u64 s[{b_+2*h}:{b_+2*h+1}], s[{S_NON}:{S_NON+1}]", f"s_cbranch_scc1 L_g{n_}{h}", f"s_bitcmp1_b32 s{S_T2}, {h}", f"s_cbranch_scc1 L_g{n_}{h}",
                          f"s_bitset1_b32 s{S_T2}, {h}", pl(h).t, f"L_g{n_}{h}:"]
                t += [f"s_cmp_eq_u32 s{S_T2}, 0xff", "s_cbranch_scc1 L_poll2_done", f"s_load_dwordx16 s[{b_}:{b_+15}], s[{S_C}:{S_C+1}], s{S_F2} glc"]
            t += ["s_branch L_poll2", "L_poll2_done:"]
        t += ["s_waitcnt vmcnt(0)"]
        for h in range(8):
            for r in range(4): t += [f"v_lshlrev_b32 v{SM+8*h+2*r}, 16, v{PB+4*h+r}", f"v_and_b32 v{SM+8*h+2*r+1}, s{S_T1}, v{PB+4*h+r}"]
    for x in t: sg.text(x)
    sg.vm = []
    stamp(sg, 6, '2')
    for h in range(1, 8):
        for r in range(0, 8, 2):
            u = SM + 8 * h + r
            a(V(f"v_pk_add_f32 v[{SM+r}:{SM+r+1}], v[{SM+r}:{SM+r+1}], v[{u}:{u+1}]", [SM+r, SM+r+1, u, u+1], [SM+r, SM+r+1]))
    for r in range(4):
        a(V(f"v_cvt_pk_bf16_f32 v{SM+r}, v{SM+2*r}, v{SM+2*r+1}", [SM+2*r, SM+2*r+1], [SM+r]))
    if int(opt.otr):
        a(dswr('ds_write_b64', 10, ('v', SM), 2, 0)); a(dswr('ds_write_b64', 10, ('v', SM + 2), 2, 32))
        r_ = dsrd('ds_read_b128', ('v', SM + 4), 4, 11, 0); r_.needlg = ('*',); a(r_)
        a(vstore(('v', SM + 4), 4, V_OUT, S_OUT, None, 0, flags=opt.out_flags))
    elif not int(opt.noout):
        a(vstore(('v', SM), 2, V_OUT, S_OUT, None, 0, flags=opt.out_flags))
        a(vstore(('v', SM + 2), 2, V_OUT, S_OUT, None, 32, flags=opt.out_flags))

def out_of_line():
    t = []
    t += ["L_spin_n:", f"s_mov_b32 s{S_SPIN}, {opt.spin}", "L_spin_n1:",
          f"buffer_load_dwordx2 v[{V_GC}:{V_GC+1}], v9, s[{S_D}:{S_D+3}], 0 offen sc1", f"s_sub_u32 s{S_SPIN}, s{S_SPIN}, 1", "s_waitcnt vmcnt(0)",
          f"v_readfirstlane_b32 s{S_NON}, v{V_GC}", f"v_readfirstlane_b32 s{S_NON+1}, v{V_GC+1}", f"s_cmp_eq_u32 s{S_SPIN}, 0", "s_cbranch_scc1 L_back_n", "s_nop 2",
          f"s_cmp_eq_u64 s[{S_NON}:{S_NON+1}], 0", "s_cbranch_scc1 L_spin_n1", "s_branch L_back_n"]
    t += ["; a row sum left the safe range - start over with the true row maxima", "L_redo:", f"s_mov_b64 s[{S_GM}:{S_GM+1}], 0", f"s_mov_b32 s{S_REDO}, 1",
          "s_waitcnt vmcnt(0) lgkmcnt(0)", "s_barrier"]
    sg = Seg()
    p1 = prologue1()
    a = sg.add
    a(V(f"v_lshl_add_u32 v{V_T0}, s{S_W}, 2, v{V_G}", [V_G], [V_T0]))
    a(V(f"v_xor_b32 v{V_T1}, v{V_N}, v{V_T0}", [V_N, V_T0], [V_T1]))
    a(V(f"v_lshlrev_b32 v{V_T1}, 4, v{V_T1}", [V_T1], [V_T1]))
    a(V(f"v_lshl_add_u32 v{V_XD}, v{V_T0}, 10, v{V_T1}", [V_T0, V_T1], [V_XD]))
    a(S(f"s_and_b32 s{S_T0}, s{S_W}, 2", [S_W], [S_T0]))
    a(S(f"s_lshl_b32 s{S_T0}, s{S_T0}, 2", [S_T0], [S_T0]))
    a(V(f"v_lshl_add_u32 v{V_T1}, v{V_G}, 1, s{S_T0}", [V_G], [V_T1]))
    a(V(f"v_xor_b32 v{V_T1}, v{V_N}, v{V_T1}", [V_N, V_T1], [V_T1]))
    a(V(f"v_lshlrev_b32 v{V_T1}, 4, v{V_T1}", [V_T1], [V_T1]))
    a(V(f"v_lshl_add_u32 v{V_WD}, v{V_T0}, 13, v{V_T1}", [V_T0, V_T1], [V_WD]))
    t += sg.out + ["s_nop 4", "s_branch L_restart"]
    sg = Seg(); a = sg.add
    sg.text("; true row maxima over all keys -> negated into the accumulator seed of S")
    sg.text("L_max:")
    sg.text(f"s_mov_b32 s{S_SPIN}, m0")
    sg.drain()
    sg.text("s_barrier")
    MX, KF, AD = 76, V_VF, 84
    for q in range(5): a(V(f"v_mov_b32 v{MX+q}, 0xff800000", [], [MX+q]))
    for s in range(4): a(V(f"v_add_u32 v{AD+s}, {96*KB}, v{V_KA+s}", [V_KA+s], [AD+s]))
    a(S(f"s_mov_b32 s{S_T2}, 0", [], [S_T2]))
    sg.text("L_max_loop:"); sg.reset_hist()
    for j in range(8):
        if j % 4 == 0:
            a(S(f"s_add_u32 s{S_T1}, s{S_T2}, {(j>>2)*4096}", [S_T2], [S_T1]))
            a(S(f"s_add_u32 m0, s{S_W8K}, {96*KB + (j>>2)*4096}", [S_W8K], [M0]))
        a(dma(V_KD + (j & 3), S_K, S_T1, 1024 * (j & 3), 'mk'))
    for t_ in range(2):
        for s in range(4):
            a(dsrd('ds_read_b128', ('v', KF + (t_ * 4 + s) * 4), 4, AD + s, t_ * 4096, needvm=['mk']))
    for q in range(5):
        for t_ in range(2):
            d = ('v', 88 + t_ * 4)
            for s in range(4): a(mfma(d, ('v', KF + (t_ * 4 + s) * 4), AQ(q, s), 0 if s == 0 else d))
        for k in range(4):
            a(V(f"v_max3_f32 v{MX+q}, v{MX+q}, v{88+2*k}, v{89+2*k}", [MX+q, 88+2*k, 89+2*k], [MX+q]))
    sg.drain()
    a(S(f"s_add_u32 s{S_T2}, s{S_T2}, 8192", [S_T2], [S_T2]))
    sg.text(f"s_cmp_lt_u32 s{S_T2}, 65536"); sg.text("s_nop 4"); sg.text("s_cbranch_scc1 L_max_loop")
    sg.text("s_barrier")
    a(S(f"s_mul_i32 s{S_T0}, s{S_W}, 1280", [S_W], [S_T0]))
    a(S(f"s_add_u32 s{S_T0}, s{S_T0}, {96*KB}", [S_T0], [S_T0]))
    a(V(f"v_lshl_add_u32 v{AD}, v{V_LANE}, 2, s{S_T0}", [V_LANE], [AD]))
    a(S(f"s_mov_b32 s{S_T0}, {96*KB}", [], [S_T0]))
    a(V(f"v_lshl_add_u32 v{AD+1}, v{V_N}, 2, s{S_T0}", [V_N], [AD+1]))
    for q in range(5): a(dswr('ds_write_b32', AD, ('v', MX + q), 1, q * 256))
    a(barrier())
    for q in range(5):
        for k in range(16):
            a(dsrd('ds_read_b32', ('v', KF + k), 1, AD + 1, (k >> 2) * 1280 + q * 256 + (k & 3) * 64))
        for k in range(8):
            a(V(f"v_max3_f32 v{MX+q}, v{MX+q}, v{KF+2*k}, v{KF+2*k+1}", [MX+q, KF+2*k, KF+2*k+1], [MX+q]))
        for r in range(4):
            a(V(f"v_sub_f32 v{V_NEGM+q*4+r}, 0, v{MX+q}", [MX+q], [V_NEGM+q*4+r]))
    sg.drain()
    sg.text("s_barrier"); sg.text(f"s_mov_b32 m0, s{S_SPIN}"); sg.text("s_nop 4"); sg.text("s_branch L_back_max")
    return t + sg.out

def stamp_out(sg, n):
    if not opt.stamps or (opt.stamps == 'Z' and n > 1): return
    if opt.stamps == 'Z':
        for x in ["s_load_dwordx2 s[76:77], s[0:1], 56", "s_waitcnt lgkmcnt(0)", f"s_add_u32 s76, s76, {16<<20}", "s_addc_u32 s77, s77, 0", "s_and_b32 s77, s77, 0xffff",
                  "s_mov_b32 s78, 0x100000", "s_mov_b32 s79, 0x20000", "s_lshl_b32 s80, s2, 2", "s_add_u32 s80, s80, s32", "s_lshl_b32 s80, s80, 6", "v_mov_b32 v74, s80",
                  "v_mov_b32 v75, s3", "buffer_store_dword v75, v74, s[76:79], 0 offen sc1"]: sg.text(x)
        return
    stamp(sg, n - 1)
    t = ["s_load_dwordx2 s[4:5], s[0:1], 56", "s_waitcnt lgkmcnt(0)", f"s_add_u32 s4, s4, {16<<20}", "s_addc_u32 s5, s5, 0", "s_and_b32 s5, s5, 0xffff",
         "s_mov_b32 s6, 0x100000", "s_mov_b32 s7, 0x20000", "s_lshl_b32 s8, s2, 2", "s_add_u32 s8, s8, s32", "s_lshl_b32 s8, s8, 6", "v_mov_b32 v2, s8"]
    for i in range(n):
        t += [f"v_mov_b32 v3, s{3 if i == 0 else 76+2*i}", f"buffer_store_dword v3, v2, s[4:7], 0 offen offset:{4*i} sc1"]
    for x in t: sg.text(x)

def kernel():
    sg = Seg()
    sg.text(NAME + "_kernel:")
    sg.text("s_cmp_ge_u32 s2, 256")
    sg.text("s_cbranch_scc1 L_end")
    if opt.stamps:
        stamp(sg, 0)
    p1 = prologue1()
    sg.addall(p1[:2])
    if int(opt.cpf):
        for x in ["s_getpc_b64 s[94:95]", "L_pc:", "s_lshr_b32 s3, s2, 3", "v_lshrrev_b32 v8, 6, v0", "v_and_b32 v9, 1, v0", "v_lshl_add_u32 v8, v8, 1, v9",
                  "v_lshl_add_u32 v8, s3, 3, v8", "v_lshlrev_b32 v8, 7, v8", "v_min_u32 v8, (L_code_end - L_pc - 4) & 0xffffff80, v8"] + (["global_load_dword v255, v8, s[94:95]"] if int(opt.cpf) == 1 else ["s_mov_b64 s[12:13], s[94:95]"]): sg.text(x)
    sg.addall(p1[2:])
    if opt.stamps:
        sg.text("s_mov_b32 s3, s76")
    p2 = prologue2()
    Q = Queue()
    first = x_dma(0) + w_dma(0) if not int(opt.wfirst) else w_dma(0) + x_dma(0)
    stamp(sg, 5, 'P')
    Q.push(first)
    weave(sg, Q, [], 9, 0)
    if int(opt.cpf) == 2: sg.text("global_load_dword v255, v8, s[12:13]")
    stamp(sg, 6, 'P')
    sg.addall(p2)
    stamp(sg, 7, 'P')
    sg.text("s_cmp_lg_u32 s2, 0"); sg.text("s_cbranch_scc1 L_nocz")
    lane0(sg, ["v_mov_b32 v9, 0", f"s_memrealtime s[{S_NON}:{S_NON+1}]", "s_waitcnt lgkmcnt(0)", f"s_or_b32 s{S_NON}, s{S_NON}, 1", f"v_mov_b32 v250, s{S_NON}", f"v_mov_b32 v251, s{S_NON+1}",
               f"buffer_store_dwordx2 v[250:251], v9, s[{S_D}:{S_D+3}], 0 offen sc1"], "L_nocz")
    sg.text("s_branch L_first")
    sg.text("L_restart:")
    s2 = Seg(); s2.addall(restart_setup()); Q2 = Queue(); Q2.push(x_dma(0) + w_dma(0) if not int(opt.wfirst) else w_dma(0) + x_dma(0)); weave(s2, Q2, [], 9, 0)
    for x in s2.out: sg.text(x)
    sg.text("L_first:")
    early, late = prologue3()
    tc = wod_calc() + tail_calc()
    early = early + late + handoff_calc() + tc[:-5]
    def BB(u): return f"B{u + 1}"
    Q.push(w_dma(1) + x_dma(1) + w_dma(2) + w_dma(3) + x_dma(2) + w_dma(4) + ((w_dma(5, 'B2') + x_dma(3)) if int(opt.la) else (x_dma(3) + w_dma(5, 'B2'))) + w_dma(6, 'B3') + w_dma(7, 'B4')
           + kv_dma('k', 0, 'B5') + kv_dma('v', 0, 'B6') + kv_dma('k', 1, 'B8') + kv_dma('v', 1, 'BQ'))
    for i in range(2, 8):
        if not int(opt.nodma): Q.push(kv_dma('k', i) + kv_dma('v', i))
    n0 = int(opt.n0) - 9
    if opt.psched:
        for part_ in opt.psched.split(','):
            ni, nf = [int(x) for x in part_.split(':')]
            weave(sg, Q, [], ni, 0); n0 -= ni
            for _ in range(min(nf, len(early))): sg.add(early.pop(0))
        weave(sg, Q, [], max(0, n0), 0)
    else:
        weave(sg, Q, early, n0, (len(early) + n0 - 1) // n0)
    sg.addall(early)
    qr = phase_a(sg, Q)
    sg.addall(qr[:0])
    stamp(sg, 3)
    sg.text(f"s_cmp_eq_u32 s{S_REDO}, 0"); sg.text("s_cbranch_scc1 L_back_max")
    s2 = Seg(); s2.addall(qr)
    for x in s2.out: sg.text(x)
    sg.text("s_branch L_max")
    sg.text("L_back_max:")
    phase_b(sg, Q, qr)
    combine(sg, Q)
    phase_c(sg, Q)
    sg.text("L_fin:")
    stamp_out(sg, 11)
    sg.text("L_end:")
    sg.text("s_endpgm")
    return sg.out + ['L_code_end:'] + out_of_line()

def report_kernel():
    idx, mode = opt.report.split(',')
    if mode == 'next':
        return ["report_kernel:", "s_cmp_ge_u32 s2, 1", "s_cbranch_scc1 L3_end", "s_memrealtime s[12:13]", "s_load_dwordx2 s[4:5], s[0:1], 56", "s_waitcnt lgkmcnt(0)",
                f"s_add_u32 s4, s4, {17<<20}", "s_addc_u32 s5, s5, 0", "s_and_b32 s5, s5, 0xffff", "s_mov_b32 s6, 64", "s_mov_b32 s7, 0x20000", "v_mov_b32 v1, 0", "v_mov_b32 v2, s12",
                "buffer_store_dword v2, v1, s[4:7], 0 offen", "L3_end:", "s_endpgm"]
    t = ["report_kernel:", "s_cmp_ge_u32 s2, 1", "s_cbranch_scc1 L3_end", "s_memrealtime s[16:17]", "s_load_dwordx2 s[4:5], s[0:1], 56", "s_waitcnt lgkmcnt(0)",
         f"s_add_u32 s4, s4, {16<<20}", "s_addc_u32 s5, s5, 0", "s_and_b32 s5, s5, 0xffff", "s_mov_b32 s6, 0x100000", "s_mov_b32 s7, 0x20000",
         "v_lshlrev_b32 v1, 8, v0", f"buffer_load_dword v2, v1, s[4:7], 0 offen offset:{4*int(idx)}", "buffer_load_dword v3, v1, s[4:7], 0 offen",
         "v_mov_b32 v4, 0", "v_mov_b32 v5, 0", "v_mov_b32 v6, -1", "ds_write_b32 v4, v5", "ds_write_b32 v4, v6 offset:8", "s_waitcnt vmcnt(0) lgkmcnt(0)", "s_barrier",
         "ds_min_u32 v4, v3 offset:8", "s_waitcnt lgkmcnt(0)", "s_barrier", "ds_read_b32 v6, v4 offset:8", "s_waitcnt lgkmcnt(0)", "v_sub_u32 v2, v2, v6",
         "v_lshrrev_b32 v7, 3, v0", "v_mul_u32_u24 v7, 52, v7", "v_lshrrev_b32 v7, 8, v7", "v_and_b32 v8, 1, v0", "v_sub_u32 v8, 6, v8", "v_cmp_lt_u32 vcc, v7, v8",
         "v_min_u32 v2, 10000, v2",
         ("ds_add_u32 v4, v2" if mode == 'mean' else "ds_max_u32 v4, v2"), "s_waitcnt lgkmcnt(0)", "s_barrier", "ds_read_b32 v6, v4", "s_memrealtime s[12:13]", "s_waitcnt lgkmcnt(0)",
         "v_readfirstlane_b32 s10, v6", "s_nop 4"]
    if mode == 'mean': t += ["s_mul_i32 s10, s10, 10", "s_lshr_b32 s10, s10, 8"]
    elif mode == 'max': t += ["s_mul_i32 s10, s10, 10"]
    elif mode == 'gap': t += ["ds_read_b32 v6, v4 offset:8", "s_waitcnt lgkmcnt(0)", "v_readfirstlane_b32 s11, v6", "s_nop 4", "s_sub_u32 s16, s16, s11", "s_sub_u32 s10, s16, s10",
                              "s_min_u32 s10, s10, 2000", "s_mul_i32 s10, s10, 20"]
    else: t += ["s_mov_b32 s10, 0"]
    t += ["L3_spin:", "s_memrealtime s[14:15]", "s_waitcnt lgkmcnt(0)", "s_sub_u32 s14, s14, s12",
          "s_cmp_lt_u32 s14, s10", "s_cbranch_scc1 L3_spin", "L3_end:", "s_endpgm"]
    return t

HEADER = """; Kernarg layout (64 bytes, pointers only, base s[0:1]):
;  24: wq (512,4096) bf16  32: wo (4096,512) bf16   40: d_out (8,80,512) bf16   48: d_debug   56: d_ws
;
; One launch, one workgroup (4 waves) per (batch b, query head hq); hkv = id & 7, j = (id >> 3) & 3, b = id >> 5, hq = 4*hkv + j.
;     Softmax shift m: the first pass uses m = 0, which is exact as long as nothing leaves the fp32 range.  Every row sum is
;     checked against [2^-40, 2^40] (NaN fails too); if any row is outside, the workgroup starts over, computes the true row
;     maxima over all 1024 keys (L_max) and repeats phase B with m = row maximum.
;  C  hand-off 1: O (bf16) goes to the three other heads of the kv group; workgroup (b, hkv, j) multiplies the four heads
;     with wo[hkv*512.., j*128..] -> partial result for 128 output columns.
;     hand-off 2: the eight partial results (one per hkv) are summed in fp32, each workgroup finishing one eighth.
;  and read with sc1.  The tag is a clock value that workgroup 0 publishes in d_debug (zero at launch), so flags left in d_ws
;  by earlier launches never match.  Polls are bounded.  Nothing depends on the XCD a workgroup runs on; the id mapping, the
"""
def build():
    def fmt(l): return "\n".join(x if x.endswith(':') else "    " + x for x in l)
    nm = NAME + "_kernel"
    s = HEADER + "; @launch grid=(256,1,1) block=(256,1,1) lds=163840\n"
    if opt.report:
        s = f"; @launch kernel={nm} grid=(256,1,1) block=(256,1,1) lds=163840\n; @launch kernel=report_kernel grid=(1,1,1) block=(256,1,1) lds=64\n"
    s += '.amdgcn_target "amdgcn-amd-amdhsa--gfx950"\n.text\n'
    s += f".globl {nm}\n.p2align 8\n.type {nm},@function\n" + fmt(kernel()) + "\n"
    if opt.report: s += ".globl report_kernel\n.p2align 8\n.type report_kernel,@function\n" + fmt(report_kernel()) + "\n"
    s += f""".section .rodata,"a"
.p2align 6
.amdhsa_kernel {nm}
  .amdhsa_next_free_vgpr 512
  .amdhsa_next_free_sgpr 102
  .amdhsa_accum_offset 256
  .amdhsa_group_segment_fixed_size 0
  .amdhsa_kernarg_size 64
  .amdhsa_user_sgpr_count 2
  .amdhsa_user_sgpr_kernarg_segment_ptr 1
  .amdhsa_system_sgpr_workgroup_id_x 1
  .amdhsa_float_denorm_mode_32 3
.end_amdhsa_kernel
"""
    if opt.report:
        s += """.p2align 6
.amdhsa_kernel report_kernel
  .amdhsa_next_free_vgpr 32
  .amdhsa_next_free_sgpr 32
  .amdhsa_accum_offset 32
  .amdhsa_group_segment_fixed_size 0
  .amdhsa_kernarg_size 64
  .amdhsa_user_sgpr_count 2
  .amdhsa_user_sgpr_kernarg_segment_ptr 1
  .amdhsa_system_sgpr_workgroup_id_x 1
.end_amdhsa_kernel
"""
    return s

if __name__ == '__main__':
    out = sys.argv[1] if len(sys.argv) > 1 else 'cdna_kernels/' + NAME + '.s'
    for a_ in sys.argv[2:]:
        k, v = a_.split('=', 1)
        setattr(opt, k, (' ' + v) if k.endswith('flags') and v else v)
    HOIST[0] = int(opt.hoist)
    txt = build()
    open(out, 'w').write(txt)
```

```python
import sys, struct, re
from dsl import *

KB = 1024
NAME = 'standalone__gqa_block_cached__near_ridge'
def f2h(x): return hex(struct.unpack('<I', struct.pack('<f', x))[0])
QSCALE = 1.4426950408889634 / (128 ** 0.5)
WS_WO = 8 << 20
WS_CT = 12 << 20

class Opt:
    stamps = ''
    report = ''
    kv_flags = ''
    a_flags = ''
    n0 = 22
    warm = 1
    perstep = 6
    lo_exp = -40
    hi_exp = 40
    spin = 300000
    rt_at = 5
    bar_at = 32
    nodma = 0
    late0 = 0
    lastlag = 0
    psched = ''
    spos = '1,3,5,7'
    bq = 0
    v7s = 1
    b0s = 0
    peek = 0
    pgap = 0
    cpf2_at = 99
    cpf2_skip = 1024
    pairw = 0
    dtch_at = 99
    dtch = 'op'
    dtch_flags = ''
    wpos = '5,16'
    x1e = 0
    c3 = 0
    otr = 1
    otch_at = 99
    otch_flags = ''
    worlate = 1
    pf = 9
    noout = 0
    even_end = 23
    coal = 1
    hoist = 2
    unp = 0
    f2wg = 1
    wfirst = 0
    kvnt = 'x'
    ant = ''
    tch_flags = ''
    wsb = 0
    drain = '45'
    tlb_at = 27
    aonly = 0
    la = 10
    aq = 1
    ownlate = 1
    o_flags = ' sc1'
    f1_flags = ' sc1'
    w64 = 0
    out_flags = ''
    bsched = 1
    p1w = 1
    p2w = 0
    pollk = '19,29,39'
    dyn2 = 1
    qmaj = 1
    tch_at = 27
    even_at = 99
    pdepth = 1
    kvo = 4
    finw = 0
    alim = 16
    cpf = 1
    chain = 1
    wo_at = 33
    calc_at = 16
    nl_at = 8
    nc_at = 13
    cw = 2
    shadow = 9
    bst = '0,5,10,15,20'
    no_rt = 0
    clk = 'r'
    lg0 = 0
    vpos = '1,5,9,13'
    rot_kv = 1
    rot_a = 8
    rot_c = 1
    gl_at = 29
    gc_at = 33
opt = Opt()

S_X, S_WQ, S_K, S_V, S_O, S_WO, S_WT, S_WL, S_C, S_D, S_OUT = 4, 8, 12, 16, 20, 24, 28, 52, 56, 60, 64
S_W, S_B, S_HKV, S_HQ = 32, 33, 34, 35
S_W1K, S_W8K, S_SO, S_T0, S_T1, S_T2, S_SK, S_SV = 36, 37, 38, 39, 40, 41, 42, 43
S_TAB = 44
S_REDO, S_MT, S_NT, S_VALID, S_RT, S_SPIN = 68, 69, 70, 71, 72, 73
S_EX = 74
S_F1, S_F2, S_G1, S_G2 = 100, 101, 72, 51
S_GM = 70
S_J_UNUSED = 3
S_P = 76
S_ST = 80
V_LANE, V_N, V_G, V_T0, V_T1, V_T2, V_T3, V_T4, V_T5 = 1, 2, 3, 4, 5, 6, 7, 8, 9
V_KA, V_VA, V_KD, V_VD = 10, 14, 22, 26
V_OST, V_CW, V_LW = 28, 29, 31
V_ONES, V_NEGM, V_L, V_S, V_P, V_KF, V_VF = 32, 36, 56, 76, 92, 100, 164
V_XA, V_XB, V_WA, V_WB, V_XD, V_WD, V_QW = 76, 56, 80, 82, 84, 85, 86
V_GC = 250
S_NON = 96
V_CR, V_LR, V_WOD, V_WT, V_OL, V_OW, V_OD, V_PS, V_PLD, V_OUT, V_P1, V_P2 = 228, 234, 235, 236, 242, 243, 244, 245, 246, 247, 248, 249
V_ZERO = 9
V_TCH = 64
S_H = 52
S_W5K = 55
S_J = 69
A_O, A_Q = 0, 160
V_OWN = [132, 140, 148, 156, 56]
A_KF1, A_L = 120, 240
def AO(lam, q):
    if lam < 2: return ('v', V_OWN[q] + 4 * lam)
    return ('a', A_O + 4 * (q * 6 + lam - 2))
def KF(i, k): return ('v', V_KF + 4 * k) if i % 2 == 0 else ('a', A_KF1 + 4 * k)
def LA(q): return ('a', A_L + 4 * q) if q < 4 else ('a', 152)
def AQ(q, s): return ('a', A_Q + 4 * (q * 4 + s))

def XU(c, q):
    if c == 0: return q * 4 * KB
    if c == 1: return 20 * KB + q * 4 * KB
    if c == 2: return 128 * KB + q * 4 * KB
    return [120, 124, 148, 152, 156][q] * KB
def WU(slot, ks):
    return {0: [40, 48], 1: [56, 96], 2: [104, 112], 3: [64, 72], 4: [80, 88]}[slot][ks] * KB
WSLOT = [0, 1, 2, 3, 4, 0, 1, 2]
QBUF = 128 * KB

def V(t, r=(), w=()):
    return valu(t, r=[('v', x) if isinstance(x, int) else x for x in r], w=[('v', x) if isinstance(x, int) else x for x in w])
def T(t, r=(), w=()):
    return valu(t, r=[('v', x) for x in r], w=[('v', x) for x in w], trans=True)
def S(t, r=(), w=()):
    return salu(t, r=[('s', x) if isinstance(x, int) else x for x in r], w=[('s', x) if isinstance(x, int) else x for x in w])
M0 = ('m0', 0)
VCC = ('vcc', 0)
def flat(l): return [x for y in l for x in y]

def srd(dst, plo, add_s=None, add_imm=0, size=0):
    o = []
    if add_s is not None or add_imm:
        o.append(S(f"s_add_u32 s{dst}, s{plo}, " + (f"s{add_s}" if add_s is not None else f"{add_imm}"), [plo] + ([add_s] if add_s is not None else []), [dst]))
        o.append(S(f"s_addc_u32 s{dst+1}, s{plo+1}, 0", [plo+1], [dst+1]))
    else: assert dst == plo
    o.append(S(f"s_mov_b32 s{dst+2}, {size}", [], [dst+2]))
    o.append(S(f"s_mov_b32 s{dst+3}, 0x20000", [], [dst+3]))
    return o

KV_ORDER = [[0, 2, 1, 3, 4, 6, 5, 7], [0, 1, 3, 2, 4, 5, 7, 6], [1, 0, 2, 4, 3, 5, 6, 7], [1, 0, 2, 3, 5, 4, 6, 7]]
KV_ORDERS = [KV_ORDER,
  [[0, 4, 1, 2, 3, 5, 6, 7], [1, 0, 5, 2, 3, 4, 6, 7], [2, 0, 1, 6, 3, 4, 5, 7], [3, 0, 1, 2, 7, 4, 5, 6]],
  [[0, 1, 2, 3, 4, 5, 6, 7], [0, 1, 2, 3, 4, 5, 6, 7], [4, 5, 6, 7, 0, 1, 2, 3], [4, 5, 6, 7, 0, 1, 2, 3]],
  [[0, 2, 1, 3, 5, 4, 6, 7], [1, 0, 3, 2, 4, 6, 5, 7], [2, 1, 0, 4, 3, 5, 7, 6], [0, 1, 2, 3, 5, 4, 6, 7]],
  [[0, 1, 2, 4, 3, 5, 6, 7], [1, 0, 2, 3, 5, 4, 6, 7], [2, 0, 1, 3, 4, 6, 5, 7], [0, 1, 3, 2, 4, 5, 7, 6]],
  [[0, 1, 4, 2, 3, 5, 6, 7], [1, 0, 2, 5, 3, 4, 6, 7], [2, 0, 1, 3, 6, 4, 5, 7], [0, 3, 1, 2, 4, 7, 5, 6]],
  [[0, 1, 3, 2, 4, 5, 7, 6], [0, 1, 2, 4, 3, 5, 6, 7], [0, 2, 1, 3, 5, 4, 6, 7], [0, 2, 1, 3, 4, 6, 5, 7]],
  [[0, 1, 2, 4, 3, 5, 6, 7], [1, 0, 3, 2, 5, 4, 6, 7], [2, 3, 0, 1, 4, 6, 5, 7], [3, 2, 1, 0, 4, 5, 7, 6]],
  [[0, 1, 2, 4, 3, 5, 6, 7], [1, 2, 0, 3, 5, 4, 6, 7], [2, 0, 1, 3, 4, 6, 5, 7], [0, 3, 1, 2, 4, 5, 7, 6]]]
def kv_pack(j):
    o = KV_ORDERS[int(opt.kvo)][j] if int(opt.rot_kv) else list(range(8))
    return sum(t << (4 * i) for i, t in enumerate(o))
S_KVO = 98
V_XD4 = 204
S_WC = 99

class Item:
    def __init__(s, pre, ins, after=None): s.pre, s.ins, s.after = pre, ins, after
def x_dma(c, after=None):
    return [Item([S(f"s_add_u32 m0, s{S_W1K}, {XU(c,q)}", [S_W1K], [M0])],
                 dma(V_XD4 + c, S_X, S_TAB + q, 0, ('x', c), flags=(' nt' if 'x' in opt.ant and c < 2 else opt.a_flags)), after) for q in range(5)]
def w_dma(u, after=None):
    o = []
    for k in range(4):
        pre = []
        if k == 0:
            pre.append(S(f"s_add_u32 s{S_SK}, s{S_WC}, {(u & 6) << 19}", [S_WC], [S_SK]))
            pre.append(S(f"s_and_b32 s{S_SK}, s{S_SK}, {7 << 19}", [S_SK], [S_SK]))
            if u & 1: pre.append(S(f"s_xor_b32 s{S_SK}, s{S_SK}, {1 << 19}", [S_SK], [S_SK]))
        pre.append(S(f"s_add_u32 s{S_SO}, s{S_SK}, {k*131072}", [S_SK], [S_SO]))
        pre.append(S(f"s_add_u32 m0, s{S_W1K}, {WU(WSLOT[u], k>>1) + (k&1)*4*KB}", [S_W1K], [M0]))
        o.append(Item(pre, dma(V_WD, S_WQ, S_SO, 0, ('w', u), flags=(' nt' if 'w' in opt.ant and u < 4 else opt.a_flags)), after))
    return o
def kv_dma(kind, i, after=None):
    o = []
    base = (i & 1) * 32 * KB + (0 if kind == 'k' else 64 * KB)
    sr, so = (S_K, S_SK) if kind == 'k' else (S_V, S_SV)
    for j in range(8):
        pre = []
        if j % 4 == 0:
            if j == 0:
                pre.append(S(f"s_bfe_u32 s{so}, s{S_KVO}, {hex((3 << 16) | (4 * i))}", [S_KVO], [so]))
                pre.append(S(f"s_lshl_b32 s{so}, s{so}, 13", [so], [so]))
            else:
                pre.append(S(f"s_add_u32 s{so}, s{so}, 4096", [so], [so]))
            pre.append(S(f"s_add_u32 m0, s{S_W8K}, {base + (j>>2)*4096}", [S_W8K], [M0]))
        va = V_KD + (j & 3) if kind == 'k' else V_VD + (j & 1)
        tag = (kind + 'r', i - 2, j >> 2)
        o.append(Item(pre, dma(va, sr, so, 1024 * (j & 3), (kind, i, j >> 2), needlg=[tag], flags=(' nt' if str(i) in str(opt.kvnt) else opt.kv_flags)), after if i < 2 else tag))
    return o
def k_reads(i):
    return [dsrd('ds_read_b128', KF(i, t * 4 + s), 4, V_KA + s, (i & 1) * 32 * KB + t * 4096,
                 needvm=[('k', i, t)], lgtag=('kr', i, t)) for t in range(2) for s in range(4)]
def v_reads(i):
    return [dsrd('ds_read_b64_tr_b16', ('v', V_VF + (i & 1) * 32 + lam * 4 + h * 2), 2, V_VA + lam, (i & 1) * 32 * KB + h * 4096,
                 needvm=[('v', i, h)], lgtag=('vr', i, h)) for h in range(2) for lam in range(8)]

class Queue:
    def __init__(s): s.q = []; s.pts = set()
    def push(s, items): s.q += items
    def mark(s, p): s.pts.add(p)
    def pop(s):
        if s.q and (s.q[0].after is None or s.q[0].after in s.pts): return s.q.pop(0)
        return None

def place(gaps, Q, pos):
    last = -1
    for p in pos:
        if p >= len(gaps): continue
        it = Q.pop()
        if it is None: break
        pre = list(it.pre)
        avail = list(range(last + 1, p))
        front = []
        if not avail: front = pre
        else:
            slots = [[] for _ in avail]
            for k_, x in enumerate(reversed(pre)):
                slots[max(0, len(avail) - 1 - k_)].insert(0, x)
            for g, sl in zip(avail, slots):
                k_ = 0
                while k_ < len(gaps[g]) and gaps[g][k_].k == 'salu': k_ += 1
                gaps[g][k_:k_] = sl
        k = 0
        while k < len(gaps[p]) and gaps[p][k].k == 'salu': k += 1
        gaps[p][k:k] = front + [it.ins]
        last = p
def weave(sg, Q, fill, n, per):
    for _ in range(n):
        it = Q.pop()
        if it is not None: sg.addall(it.pre + [it.ins])
        for _ in range(per):
            if fill: sg.add(fill.pop(0))

NST = 12
def stamp(sg, i, grp='1'):
    if not opt.stamps: return
    if opt.stamps == 'Z' and i: return
    if 5 <= i <= 9 and grp != opt.stamps: return
    sg.text(f"{'s_memtime' if opt.clk == 'c' else 's_memrealtime'} s[{76+2*i}:{77+2*i}]")

def prologue1():
    o = []; a = o.append
    a(raw("s_load_dwordx2 s[92:93], s[0:1], 0"))
    a(raw("s_load_dwordx2 s[26:27], s[0:1], 24"))
    a(V(f"v_lshrrev_b32 v{V_T0}, 6, v0", [0], [V_T0]))
    a(V(f"v_and_b32 v{V_LANE}, 63, v0", [0], [V_LANE]))
    a(V(f"v_readfirstlane_b32 s{S_W}, v{V_T0}", [V_T0], [('s', S_W)]))
    a(S(f"s_and_b32 s{S_HKV}, s2, 7", [2], [S_HKV]))
    a(S(f"s_lshr_b32 s{S_B}, s2, 5", [2], [S_B]))
    a(S(f"s_bfe_u32 s{S_T0}, s2, 0x20003", [2], [S_T0]))
    a(S(f"s_mov_b32 s{S_J}, s{S_T0}", [S_T0], [S_J]))
    a(S(f"s_lshl_b32 s{S_HQ}, s{S_HKV}, 2", [S_HKV], [S_HQ]))
    a(S(f"s_add_u32 s{S_HQ}, s{S_HQ}, s{S_T0}", [S_HQ, S_T0], [S_HQ]))
    if int(opt.rot_a) == 2:
        a(S(f"s_add_u32 s{S_VALID}, s{S_T0}, s{S_B}", [S_T0, S_B], [S_VALID]))
        a(S(f"s_and_b32 s{S_VALID}, s{S_VALID}, 1", [S_VALID], [S_VALID]))
        a(S(f"s_lshl_b32 s{S_VALID}, s{S_VALID}, 2", [S_VALID], [S_VALID]))
    elif int(opt.rot_a) in (5, 6):
        a_, b_ = (S_B, S_T0) if int(opt.rot_a) == 5 else (S_T0, S_B)
        a(S(f"s_lshl_b32 s{S_VALID}, s{b_}, 1", [b_], [S_VALID]))
        a(S(f"s_add_u32 s{S_VALID}, s{S_VALID}, s{a_}", [S_VALID, a_], [S_VALID]))
        a(S(f"s_and_b32 s{S_VALID}, s{S_VALID}, 3", [S_VALID], [S_VALID]))
        a(S(f"s_lshl_b32 s{S_VALID}, s{S_VALID}, 1", [S_VALID], [S_VALID]))
    elif int(opt.rot_a) in (8, 9):
        a(S(f"s_add_u32 s{S_VALID}, s{S_T0}, s{S_B}", [S_T0, S_B], [S_VALID]))
        a(S(f"s_lshl_b32 s{S_VALID}, s{S_VALID}, 1", [S_VALID], [S_VALID]))
        a(S(f"s_and_b32 s{S_T1}, s{S_HKV}, {1 if int(opt.rot_a) == 8 else 3}", [S_HKV], [S_T1]))
        a(S(f"s_add_u32 s{S_VALID}, s{S_VALID}, s{S_T1}", [S_VALID, S_T1], [S_VALID]))
        a(S(f"s_and_b32 s{S_VALID}, s{S_VALID}, 3", [S_VALID], [S_VALID]))
        a(S(f"s_lshl_b32 s{S_VALID}, s{S_VALID}, 1", [S_VALID], [S_VALID]))
    elif int(opt.rot_a) == 7:
        a(S(f"s_add_u32 s{S_VALID}, s{S_T0}, s{S_B}", [S_T0, S_B], [S_VALID]))
        a(S(f"s_and_b32 s{S_VALID}, s{S_VALID}, 1", [S_VALID], [S_VALID]))
        a(S(f"s_lshl_b32 s{S_VALID}, s{S_VALID}, 2", [S_VALID], [S_VALID]))
        a(S(f"s_bfe_u32 s{S_T1}, s{S_B}, 0x10001", [S_B], [S_T1]))
        a(S(f"s_or_b32 s{S_VALID}, s{S_VALID}, s{S_T1}", [S_VALID, S_T1], [S_VALID]))
    elif int(opt.rot_a) == 4:
        a(S(f"s_add_u32 s{S_VALID}, s{S_T0}, s{S_B}", [S_T0, S_B], [S_VALID]))
        a(S(f"s_and_b32 s{S_VALID}, s{S_VALID}, 3", [S_VALID], [S_VALID]))
        a(S(f"s_lshl_b32 s{S_VALID}, s{S_VALID}, 1", [S_VALID], [S_VALID]))
    elif int(opt.rot_a):
        a(S(f"s_lshl_b32 s{S_T0}, s{S_T0}, 1", [S_T0], [S_T0]))
        a(S(f"s_add_u32 s{S_VALID}, s{S_T0}, s{S_B}", [S_T0, S_B], [S_VALID]))
        a(S(f"s_and_b32 s{S_VALID}, s{S_VALID}, 7", [S_VALID], [S_VALID]))
    else:
        a(S(f"s_mov_b32 s{S_VALID}, 0", [], [S_VALID]))
    a(V(f"v_and_b32 v{V_N}, 15, v{V_LANE}", [V_LANE], [V_N]))
    a(V(f"v_lshrrev_b32 v{V_G}, 4, v{V_LANE}", [V_LANE], [V_G]))
    a(S(f"s_lshl_b32 s{S_W1K}, s{S_W}, 10", [S_W], [S_W1K]))
    a(S(f"s_lshl_b32 s{S_W8K}, s{S_W}, 13", [S_W], [S_W8K]))
    a(V(f"v_lshl_add_u32 v{V_T0}, s{S_W}, 2, v{V_G}", [V_G, ('s', S_W)], [V_T0]))
    a(V(f"v_xor_b32 v{V_T1}, v{V_N}, v{V_T0}", [V_N, V_T0], [V_T1]))
    a(V(f"v_lshlrev_b32 v{V_T1}, 4, v{V_T1}", [V_T1], [V_T1]))
    a(V(f"v_lshl_add_u32 v{V_XD}, v{V_T0}, 10, v{V_T1}", [V_T0, V_T1], [V_XD]))
    a(S(f"s_and_b32 s{S_T0}, s{S_W}, 2", [S_W], [S_T0]))
    a(S(f"s_lshl_b32 s{S_T0}, s{S_T0}, 2", [S_T0], [S_T0]))
    a(V(f"v_lshl_add_u32 v{V_T1}, v{V_G}, 1, s{S_T0}", [V_G, ('s', S_T0)], [V_T1]))
    a(V(f"v_xor_b32 v{V_T1}, v{V_N}, v{V_T1}", [V_N, V_T1], [V_T1]))
    a(V(f"v_lshlrev_b32 v{V_T1}, 4, v{V_T1}", [V_T1], [V_T1]))
    a(V(f"v_lshl_add_u32 v{V_WD}, v{V_T0}, 13, v{V_T1}", [V_T0, V_T1], [V_WD]))
    a(S(f"s_mul_i32 s{S_T0}, s{S_B}, 81920", [S_B], [S_T0]))
    a(S(f"s_lshl_b32 s{S_T2}, s{S_HQ}, 8", [S_HQ], [S_T2]))
    a(S(f"s_sub_u32 s{S_T1}, 4194304, s{S_T2}", [S_T2], [S_T1]))
    a(S(f"s_mov_b32 s{S_REDO}, 0", [], [S_REDO]))
    a(S(f"s_lshl_b32 s{S_WC}, s{S_VALID}, 19", [S_VALID], [S_WC]))
    a(S(f"s_mov_b64 s[{S_GM}:{S_GM+1}], -1", [], [S_GM, S_GM+1]))
    o += restart_setup()
    a(S(f"s_mov_b32 s{S_X+2}, 81920", [], [S_X+2])); a(S(f"s_mov_b32 s{S_X+3}, 0x20000", [], [S_X+3]))
    a(S(f"s_mov_b32 s{S_WQ+2}, s{S_T1}", [S_T1], [S_WQ+2])); a(S(f"s_mov_b32 s{S_WQ+3}, 0x20000", [], [S_WQ+3]))
    a(raw("s_waitcnt lgkmcnt(0)", 'wait'))
    o += srd(S_X, 92, add_s=S_T0, size=81920)[:2]
    o += srd(S_WQ, 26, add_s=S_T2, size=0)[:2]
    for dst, off in ((S_K, 8), (S_V, 16), (S_WO, 32), (S_OUT, 40), (S_D, 48), (S_O, 56)):
        a(raw(f"s_load_dwordx2 s[{dst}:{dst+1}], s[0:1], {off}"))
    return o

def restart_setup():
    o = [S(f"s_mov_b32 s{S_TAB+q}, {q*16384}", [], [S_TAB+q]) for q in range(5)]
    for c in range(4):
        o.append(S(f"s_lshr_b32 s{S_SO}, s{S_WC}, 12", [S_WC], [S_SO]))
        o.append(S(f"s_add_u32 s{S_SO}, s{S_SO}, {c*256}", [S_SO], [S_SO]))
        o.append(S(f"s_and_b32 s{S_SO}, s{S_SO}, 0x300", [S_SO], [S_SO]))
        o.append(V(f"v_add_u32 v{V_XD4+c}, s{S_SO}, v{V_XD}", [V_XD, ('s', S_SO)], [V_XD4+c]))
    return o

def prologue2():
    o = []; a = o.append
    a(raw("s_waitcnt lgkmcnt(0)", 'wait'))
    a(S(f"s_lshl_b32 s{S_T0}, s{S_B}, 3", [S_B], [S_T0]))
    a(S(f"s_add_u32 s{S_T0}, s{S_T0}, s{S_HKV}", [S_T0, S_HKV], [S_T0]))
    a(S(f"s_lshl_b32 s{S_T0}, s{S_T0}, 2", [S_T0], [S_T0]))
    a(S(f"s_add_u32 s{S_T0}, s{S_T0}, s{S_W}", [S_T0, S_W], [S_T0]))
    a(S(f"s_lshl_b32 s{S_T0}, s{S_T0}, 16", [S_T0], [S_T0]))
    o += srd(S_K, S_K, add_s=S_T0, size=65536)
    o += srd(S_V, S_V, add_s=S_T0, size=65536)
    a(S(f"s_lshl_b32 s{S_T0}, s{S_HKV}, 19", [S_HKV], [S_T0]))
    o += srd(S_WO, S_WO, add_s=S_T0, size=524288)
    o += srd(S_WT, S_O, add_imm=WS_WO, size=8*4*20*8*1024)
    o += srd(S_C, S_O, add_imm=WS_CT, size=262144)
    o += srd(S_O, S_O, size=8*5*128*1024)
    o += srd(S_D, S_D, size=256)
    o += srd(S_OUT, S_OUT, size=655360)
    a(S(f"s_bitcmp1_b32 s{S_HQ}, 0", [S_HQ], []))
    a(S(f"s_mov_b32 s{S_T0}, {hex(kv_pack(0))}", [], [S_T0]))
    a(S(f"s_cselect_b32 s{S_T0}, {hex(kv_pack(1))}, s{S_T0}", [S_T0], [S_T0]))
    a(S(f"s_mov_b32 s{S_T1}, {hex(kv_pack(2))}", [], [S_T1]))
    a(S(f"s_cselect_b32 s{S_T1}, {hex(kv_pack(3))}, s{S_T1}", [S_T1], [S_T1]))
    a(S(f"s_bitcmp1_b32 s{S_HQ}, 1", [S_HQ], []))
    a(S(f"s_cselect_b32 s{S_KVO}, s{S_T1}, s{S_T0}", [S_T0, S_T1], [S_KVO]))
    for p in range(3):
        a(S(f"s_cmp_le_u32 s{S_J}, {p}", [S_J], []))
        a(S(f"s_cselect_b32 s{S_T1}, {p + 1}, {p}", [], [S_T1]))
        a(S(f"s_lshl_b32 s{S_H+p}, s{S_T1}, 17", [S_T1], [S_H+p]))
    a(S(f"s_mul_i32 s{S_W5K}, s{S_W}, 5120", [S_W], [S_W5K]))
    a(S(f"s_lshl_b32 s{S_T0}, s{S_B}, 14", [S_B], [S_T0]))
    a(S(f"s_lshl_b32 s{S_T1}, s{S_W}, 7", [S_W], [S_T1]))
    a(S(f"s_add_u32 s{S_T0}, s{S_T0}, s{S_T1}", [S_T0, S_T1], [S_T0]))
    a(S(f"s_lshl_b32 s{S_F1}, s{S_HQ}, 9", [S_HQ], [S_F1]))
    a(S(f"s_add_u32 s{S_F1}, s{S_F1}, s{S_T0}", [S_F1, S_T0], [S_F1]))
    a(S(f"s_add_u32 s{S_F2}, s{S_F1}, 131072", [S_F1], [S_F2]))
    if int(opt.f2wg): a(S(f"s_andn2_b32 s{S_F2}, s{S_F2}, 0x180", [S_F2], [S_F2]))
    a(S(f"s_lshl_b32 s{S_T1}, s{S_HKV}, 11", [S_HKV], [S_T1]))
    a(S(f"s_lshl_b32 s{S_G1}, s{S_J}, 3", [S_J], [S_G1]))
    a(S(f"s_add_u32 s{S_G1}, s{S_G1}, s{S_T1}", [S_G1, S_T1], [S_G1]))
    a(S(f"s_add_u32 s{S_G1}, s{S_G1}, s{S_T0}", [S_G1, S_T0], [S_G1]))
    a(S(f"s_lshl_b32 s{S_T1}, s{S_J}, 9", [S_J], [S_T1]))
    a(S(f"s_lshl_b32 s{S_G2}, s{S_HKV}, 3", [S_HKV], [S_G2]))
    a(S(f"s_add_u32 s{S_G2}, s{S_G2}, s{S_T1}", [S_G2, S_T1], [S_G2]))
    a(S(f"s_add_u32 s{S_G2}, s{S_G2}, s{S_T0}", [S_G2, S_T0], [S_G2]))
    a(S(f"s_add_u32 s{S_G2}, s{S_G2}, 131072", [S_G2], [S_G2]))
    return o

def prologue3():
    o = []; a = o.append
    a(S(f"s_bfe_u32 s{S_T1}, s{S_WC}, 0x10013", [S_WC], [S_T1]))
    a(S(f"s_lshl_b32 s{S_T1}, s{S_T1}, 3", [S_T1], [S_T1]))
    a(V(f"v_xor_b32 v{V_T1}, s{S_T1}, v{V_N}", [V_N, ('s', S_T1)], [V_T1]))
    a(V(f"v_xor_b32 v{V_T0}, v{V_G}, v{V_T1}", [V_G, V_T1], [V_T0]))
    a(V(f"v_lshlrev_b32 v{V_T0}, 4, v{V_T0}", [V_T0], [V_T0]))
    a(V(f"v_lshl_add_u32 v{V_XA}, v{V_N}, 8, v{V_T0}", [V_N, V_T0], [V_XA]))
    for s in range(1, 4): a(V(f"v_xor_b32 v{V_XA+s}, {64*s}, v{V_XA}", [V_XA], [V_XA+s]))
    for s in range(4): a(V(f"v_add_u32 v{V_XB+s}, {120*KB}, v{V_XA+s}", [V_XA+s], [V_XB+s]))
    a(V(f"v_lshrrev_b32 v{V_T2}, 2, v{V_N}", [V_N], [V_T2]))
    a(V(f"v_bfe_u32 v{V_T3}, v{V_N}, 1, 1", [V_N], [V_T3]))
    a(V(f"v_and_b32 v{V_T4}, 1, v{V_N}", [V_N], [V_T4]))
    a(V(f"v_lshlrev_b32 v{V_T4}, 3, v{V_T4}", [V_T4], [V_T4]))
    a(V(f"v_and_b32 v{V_T5}, 1, v{V_G}", [V_G], [V_T5]))
    a(V(f"v_lshl_add_u32 v{V_T5}, v{V_T5}, 2, v{V_T2}", [V_T5, V_T2], [V_T5]))
    a(V(f"v_lshlrev_b32 v{V_T5}, 1, v{V_T5}", [V_T5], [V_T5]))
    a(S(f"s_lshl_b32 s{S_T1}, s{S_W}, 2", [S_W], [S_T1]))
    a(V(f"v_lshl_add_u32 v{V_T1}, v{V_G}, 3, v{V_T2}", [V_G, V_T2], [V_T1]))
    a(V(f"v_lshl_add_u32 v{V_T1}, v{V_T1}, 8, v{V_T4}", [V_T1, V_T4], [V_T1]))
    a(V(f"v_add_u32 v{V_T3}, s{S_T1}, v{V_T3}", [V_T3, ('s', S_T1)], [V_T3]))
    a(V(f"v_xor_b32 v{V_T3}, v{V_T3}, v{V_T5}", [V_T3, V_T5], [V_T3]))
    a(V(f"v_lshl_add_u32 v{V_T0}, v{V_T3}, 4, v{V_T1}", [V_T3, V_T1], [V_T0]))
    a(V(f"v_add_u32 v{V_WA}, {40*KB}, v{V_T0}", [V_T0], [V_WA]))
    a(V(f"v_add_u32 v{V_WB}, {96*KB}, v{V_T0}", [V_T0], [V_WB]))
    a(V(f"v_xor_b32 v{V_WA+1}, 32, v{V_WA}", [V_WA], [V_WA+1]))
    a(V(f"v_xor_b32 v{V_WB+1}, 32, v{V_WB}", [V_WB], [V_WB+1]))
    a(V(f"v_lshl_add_u32 v{V_T1}, v{V_G}, 2, v{V_T2}", [V_G, V_T2], [V_T1]))
    n_early = len(o)
    for s in range(4):
        a(V(f"v_add_u32 v{V_KA+s}, s{S_W8K}, v{V_XA+s}", [V_XA+s, ('s', S_W8K)], [V_KA+s]))
    a(V(f"v_lshl_add_u32 v{V_T1}, v{V_T1}, 8, v{V_T4}", [V_T1, V_T4], [V_T1]))
    a(V(f"v_lshl_add_u32 v{V_WT}, v{V_T3}, 4, v{V_T1}", [V_T3, V_T1], [V_WT]))
    a(S(f"s_add_u32 s{S_T2}, s{S_W8K}, {64*KB}", [S_W8K], [S_T2]))
    a(V(f"v_add_u32 v{V_VA}, s{S_T2}, v{V_WT}", [V_WT, ('s', S_T2)], [V_VA]))
    for lam in range(1, 8): a(V(f"v_xor_b32 v{V_VA+lam}, {32*lam}, v{V_VA}", [V_VA], [V_VA+lam]))
    a(V(f"v_xor_b32 v{V_WT+1}, 32, v{V_WT}", [V_WT], [V_WT+1]))
    for e in range(2):
        a(V(f"v_add_u32 v{V_WT+2+e}, {64*KB}, v{V_WT+e}", [V_WT+e], [V_WT+2+e]))
        a(V(f"v_add_u32 v{V_WT+4+e}, {128*KB}, v{V_WT+e}", [V_WT+e], [V_WT+4+e]))
    a(V(f"v_xor_b32 v{V_T0}, v{V_N}, v{V_G}", [V_N, V_G], [V_T0]))
    a(V(f"v_lshlrev_b32 v{V_T0}, 4, v{V_T0}", [V_T0], [V_T0]))
    a(V(f"v_lshl_add_u32 v{V_KD}, v{V_G}, 8, v{V_T0}", [V_G, V_T0], [V_KD]))
    for j in range(1, 4):
        a(V(f"v_xor_b32 v{V_KD+j}, {64*j}, v{V_KD}", [V_KD], [V_KD+j]))
    a(V(f"v_lshlrev_b32 v{V_T0}, 1, v{V_G}", [V_G], [V_T0]))
    a(V(f"v_xor_b32 v{V_T0}, v{V_N}, v{V_T0}", [V_N, V_T0], [V_T0]))
    a(V(f"v_lshlrev_b32 v{V_T0}, 4, v{V_T0}", [V_T0], [V_T0]))
    a(V(f"v_lshl_add_u32 v{V_VD}, v{V_G}, 8, v{V_T0}", [V_G, V_T0], [V_VD]))
    a(V(f"v_xor_b32 v{V_VD+1}, 128, v{V_VD}", [V_VD], [V_VD+1]))
    a(V(f"v_lshrrev_b32 v{V_T0}, 1, v{V_G}", [V_G], [V_T0]))
    a(V(f"v_add_u32 v{V_T0}, s{S_T1}, v{V_T0}", [V_T0, ('s', S_T1)], [V_T0]))
    a(V(f"v_xor_b32 v{V_T0}, v{V_T0}, v{V_N}", [V_T0, V_N], [V_T0]))
    a(V(f"v_lshlrev_b32 v{V_T0}, 4, v{V_T0}", [V_T0], [V_T0]))
    a(V(f"v_lshl_add_u32 v{V_T0}, v{V_N}, 8, v{V_T0}", [V_N, V_T0], [V_T0]))
    a(V(f"v_and_b32 v{V_T1}, 1, v{V_G}", [V_G], [V_T1]))
    a(V(f"v_lshl_add_u32 v{V_T0}, v{V_T1}, 3, v{V_T0}", [V_T0, V_T1], [V_T0]))
    a(V(f"v_add_u32 v{V_QW}, {QBUF}, v{V_T0}", [V_T0], [V_QW]))
    a(V(f"v_xor_b32 v{V_QW+1}, 32, v{V_QW}", [V_QW], [V_QW+1]))
    a(V(f"v_lshl_add_u32 v{V_CW}, v{V_LANE}, 4, s{S_W8K}", [V_LANE, ('s', S_W8K)], [V_CW]))
    a(V(f"v_add_u32 v{V_CW+1}, {64*KB}, v{V_CW}", [V_CW], [V_CW+1]))
    a(S(f"s_add_u32 s{S_T0}, s{S_W8K}, {102*KB}", [S_W8K], [S_T0]))
    a(V(f"v_lshl_add_u32 v{V_LW}, v{V_LANE}, 5, s{S_T0}", [V_LANE, ('s', S_T0)], [V_LW]))
    a(S(f"s_mul_i32 s{S_T0}, s{S_B}, 640", [S_B], [S_T0]))
    a(S(f"s_lshl_b32 s{S_T2}, s{S_HQ}, 2", [S_HQ], [S_T2]))
    a(S(f"s_add_u32 s{S_T0}, s{S_T0}, s{S_T2}", [S_T0, S_T2], [S_T0]))
    a(S(f"s_add_u32 s{S_T0}, s{S_T0}, s{S_W}", [S_T0, S_W], [S_T0]))
    a(S(f"s_lshl_b32 s{S_T0}, s{S_T0}, 10", [S_T0], [S_T0]))
    a(V(f"v_lshl_add_u32 v{V_OST}, v{V_LANE}, 4, s{S_T0}", [V_LANE, ('s', S_T0)], [V_OST]))
    a(V(f"v_cmp_eq_u32 vcc, 0, v{V_N}", [V_N], [VCC]))
    a(V(f"v_mov_b32 v{V_T0}, 0x3f803f80", [], [V_T0]))
    for i in range(4):
        a(V(f"v_cndmask_b32 v{V_ONES+i}, 0, v{V_T0}, vcc", [V_T0, VCC], [V_ONES+i]))
    for i in range(0, 20, 2):
        a(V(f"v_mov_b64 v[{V_NEGM+i}:{V_NEGM+i+1}], 0", [], [V_NEGM+i, V_NEGM+i+1]))
    return o[:n_early], o[n_early:]

V_QACC = V_VF
def AF(kap):
    return [(100, 120), (128, 148), (208, 156)][kap % 3]
def a_reads(kap):
    u, ks = kap >> 1, kap & 1
    c, s = u >> 1, kap & 3
    xf, wf = AF(kap)
    wb = WU(WSLOT[u], ks)
    xr = []
    for q in range(5):
        xb = XU(c, q)
        reg, base = (V_XA, 0) if xb < 64 * KB else (V_XB, 120 * KB)
        xr.append(dsrd('ds_read_b128', ('v', xf + q * 4), 4, reg + s, xb - base))
    wr = []
    for e in range(2):
        for h in range(2):
            reg, base = (V_WA, 40 * KB) if wb < 96 * KB else (V_WB, 96 * KB)
            wr.append(dsrd('ds_read_b64_tr_b16', ('v', wf + e * 4 + h * 2), 2, reg + e, wb - base + h * 1024))
    return wr[:2] + xr[:1] + wr[2:] + xr[1:]
def a_mfmas(kap):
    o = []
    xf, wf = AF(kap)
    for q in range(5):
        for e in range(2):
            d = ('v', V_QACC + (e * 5 + q) * 4)
            o.append(mfma(d, ('v', wf + e * 4), ('v', xf + q * 4), 0 if kap == 0 else d))
    return o
def lane0(sg, body, lab):
    sg.text(f"s_cmp_lg_u32 s{S_W}, 0"); sg.text(f"s_cbranch_scc1 {lab}")
    sg.text(f"s_mov_b64 s[{S_EX}:{S_EX+1}], exec"); sg.text("s_mov_b64 exec, 1")
    for x in body: sg.text(x)
    sg.text(f"s_mov_b64 exec, s[{S_EX}:{S_EX+1}]")
    sg.text(f"{lab}:")
def phase_a(sg, Q):
    stamp(sg, 1)
    sg.add(barrier(needvm=[('x', 0), ('w', 0)])); Q.mark('B0')
    stamp(sg, 2)
    sg.addall(a_reads(0)); sg.addall(a_reads(1))
    sg.add(S(f"s_mov_b32 s{S_T1}, {f2h(QSCALE)}", [], [S_T1]))
    sg.add(S(f"s_mov_b32 s{S_T2}, {f2h(QSCALE)}", [], [S_T2]))
    for kap in range(14 if int(opt.aq) else 16):
        mf = a_mfmas(kap)
        gaps = [[] for _ in mf]
        nx = kap + 2
        if nx < (14 if int(opt.lastlag) else 16):
            if nx % 2 == 0:
                u = nx >> 1
                need = [('x', u >> 1), ('w', u)]
                while any(it.ins.vmtag in need for it in Q.q):
                    n_ = len(Q.q); weave(sg, Q, [], 1, 0); assert len(Q.q) < n_, (u, Q.q[0].after)
                while True:
                    younger = 0
                    for tg, _w in reversed(sg.vm):
                        if tg in need: break
                        younger += 1
                    n_ = len(Q.q)
                    if younger >= int(opt.la): break
                    weave(sg, Q, [], 1, 0)
                    if len(Q.q) == n_: break
                dr = str(u) in str(opt.drain)
                sg.add(barrier(needvm=need, lg0=dr)); Q.mark(f'B{u}')
                if dr: Q.mark(f'B{u+1}')
                if u in (1, 3, 5, 7): stamp(sg, 5 + u // 2, 'A')
            for i, r in enumerate(a_reads(nx)): gaps[i].append(r)
        mf[0].r |= set(R('v', AF(kap)[0], 20) + R('v', AF(kap)[1], 8))
        pos = [1, 5, 9] if kap % 2 == 0 else [3, 7]
        if int(opt.perstep) == 6: pos = [1, 4, 7] if kap % 2 == 0 else [1, 4, 8]
        if int(opt.perstep) == 7: pos = [1, 4, 6, 9] if kap % 2 == 0 else [2, 5, 8]
        if int(opt.perstep) == 8: pos = [1, 4, 6, 9]
        nkv = sum(1 for it in Q.q if it.ins.vmtag[0] in 'kv')
        room = int(opt.alim) - (128 - nkv) + (len(Q.q) - nkv)
        place(gaps, Q, pos[:max(0, room)])
        if int(opt.aonly): sg.addall([x for x in interleave(mf, gaps) if x.k not in ('mfma', 'dsrd')])
        else: sg.addall(interleave(mf, gaps))
    if int(opt.lastlag):
        need = [('w', 7)]
        while any(it.ins.vmtag in need for it in Q.q): weave(sg, Q, [], 1, 0)
        sg.add(barrier(needvm=need, lg0=False)); Q.mark('B7')
        stamp(sg, 8, 'A')
        r14, r15 = a_reads(14), a_reads(15)
        sg.addall(r14[:3] + r15[:3] + r14[3:5] + r15[3:5] + flat([[r14[k], r15[k]] for k in range(5, 9)]))
    def qfin(q, e, packed):
        b = V_QACC + (e * 5 + q) * 4
        if packed: f_ = [V(f"v_pk_mul_f32 v[{b+r}:{b+r+1}], v[{b+r}:{b+r+1}], s[{S_T1}:{S_T1+1}]", [b+r, b+r+1], [b+r, b+r+1]) for r in (0, 2)]
        else: f_ = [V(f"v_mul_f32 v{b+r}, s{S_T1}, v{b+r}", [b+r], [b+r]) for r in range(4)]
        f_.append(V(f"v_cvt_pk_bf16_f32 v{b}, v{b}, v{b+1}", [b, b+1], [b]))
        f_.append(V(f"v_cvt_pk_bf16_f32 v{b+1}, v{b+2}, v{b+3}", [b+2, b+3], [b+1]))
        f_.append(dswr('ds_write_b64', V_QW + e, ('v', b), 2, q * 4096, lgtag='qw'))
        return f_
    todo = [(q, e) for q in range(5) for e in range(2)]
    if int(opt.aq):
        m14, m15 = a_mfmas(14), a_mfmas(15)
        if not int(opt.lastlag): m14[0].r |= set(R('v', AF(14)[0], 20) + R('v', AF(14)[1], 8))
        mf = flat([[m14[k], m15[k]] for k in range(10)])
        gaps = [[] for _ in mf]
        gi = 5
        while todo and gi + 3 <= 19:
            f_ = qfin(*todo.pop(0), False)
            gaps[gi] += f_[0:2]; gaps[gi + 1] += f_[2:4]; gaps[gi + 2] += f_[4:6]; gaps[gi + 3] = [f_[6]] + gaps[gi + 3]
            gi += 3
        nkv = sum(1 for it in Q.q if it.ins.vmtag[0] in 'kv')
        place(gaps, Q, [1, 4][:max(0, int(opt.alim) - (128 - nkv))])
        sg.addall(interleave(mf, gaps))
    stamp(sg, 9, 'A')
    for q, e in todo: sg.addall(qfin(q, e, True))
    while any(it.ins.vmtag in (('k', 0, 0), ('k', 0, 1)) for it in Q.q): weave(sg, Q, [], 1, 0)
    b = barrier(lg0=False); b.needlg = ('qw',)
    sg.addall(k_reads(0)); Q.mark(('kr', 0, 0)); Q.mark(('kr', 0, 1))
    sg.add(b); Q.mark('BQ'); Q.mark('B8')
    qr = [dsrd('ds_read_b128', AQ(q, s), 4, V_XB + s, QBUF - 120 * KB + q * 4096) for q in range(5) for s in range(4)]
    return qr

def TQ(tau):
    return divmod(tau, 5) if tau < 30 else (6 + ((tau - 30) & 1), (tau - 30) >> 1)
def qk(tau):
    i, q = TQ(tau)
    o = []
    for s, t in ([(s, t) for t in range(2) for s in range(4)] if int(opt.chain) else [(s, t) for s in range(4) for t in range(2)]):
        if True:
            d = ('v', V_S + (tau & 1) * 8 + t * 4)
            o.append(mfma(d, KF(i, t * 4 + s), AQ(q, s), ('v', V_NEGM + q * 4) if s == 0 else d))
            if s == 0 and int(opt.coal) and tau > 4: o[-1].r |= set(R(*KF(i, t * 4), 16))
    return o
def pv(tau):
    i, q = TQ(tau)
    p = ('v', V_P + (tau & 1) * 4)
    o = [mfma(AO(lam, q), ('v', V_VF + (i & 1) * 32 + lam * 4), p, AO(lam, q) if i else 0) for lam in range(8)]
    if int(opt.coal) and int(opt.late0) < i < 7 + int(opt.v7s) and i > 0: o[0].r |= set(R('v', V_VF + (i & 1) * 32, 24)); o[5].r |= set(R('v', V_VF + (i & 1) * 32 + 24, 8))
    o.insert(0, mfma(LA(q), ('v', V_ONES), p, LA(q) if i else 0))
    return o
def sm(tau):
    b = V_S + (tau & 1) * 8
    p = V_P + (tau & 1) * 4
    e = [T(f"v_exp_f32 v{b+i}, v{b+i}", [b+i], [b+i]) for i in range(8)]
    c = [V(f"v_cvt_pk_bf16_f32 v{p+i}, v{b+2*i}, v{b+2*i+1}", [b+2*i, b+2*i+1], [p+i]) for i in range(4)]
    return e, c
def comb_writes(q):
    o = []
    for jd in range(1, 4):
        for e in range(2):
            u = q * 6 + (jd - 1) * 2 + e
            row = u >> 3
            o.append(dswr('ds_write_b128', V_CW + (row >> 1), AO(2 * jd + e, q), 4, (row & 1) * 32 * KB + (u & 7) * KB, lgtag=('cw', q)))
    o.insert(0, dswr('ds_write_b32', V_LW, LA(q), 1, [0, 4, 16, 20, 24][q], lgtag=('cw', q)))
    return o

def wo_dma(pos, after=None):
    o = []
    for ks in range(4):
        for half in range(2):
            base = (128 * KB if pos < 0 else pos * 32 * KB) + ks * 8 * KB + half * 4 * KB
            if pos < 0:
                pre = [S(f"s_lshl_b32 s{S_SK}, s{S_J}, 17", [S_J], [S_SK])] if ks + half == 0 else []
                h = S_SK
            else: pre, h = [], S_H + pos
            pre += [S(f"s_add_u32 s{S_SO}, s{h}, {ks*32768 + half*16384}", [h], [S_SO]), S(f"s_add_u32 m0, s{S_W1K}, {base}", [S_W1K], [M0])]
            o.append(Item(pre, dma(V_WOD, S_WO, S_SO, 0, ('wo', pos)), after))
    return o
def osib_dma(pos):
    o = []
    for q in range(5):
        pre = [S(f"s_lshr_b32 s{S_SK}, s{S_H+pos}, 5", [S_H+pos], [S_SK])] if q == 0 else []
        pre += [S(f"s_add_u32 s{S_SO}, s{S_SK}, {q*128*KB}", [S_SK], [S_SO]), S(f"s_add_u32 m0, s{S_W5K}, {(140 - 20*pos + q)*KB}", [S_W5K], [M0])]
        o.append(Item(pre, dma(V_OD, S_O, S_SO, 0, ('os', pos), flags=' sc1')))
    return o
def tail_calc():
    o = []; a = o.append
    T0, T1, T2 = 252, 253, 254
    a(V(f"v_lshlrev_b32 v{T0}, 4, v{V_LANE}", [V_LANE], [T0]))
    for jd in range(1, 4):
        for ab in range(2): a(V(f"v_xor_b32 v{V_CR+2*(jd-1)+ab}, {jd << 13}, v{V_CW+ab}", [V_CW+ab], [V_CR+2*(jd-1)+ab]))
    a(V(f"v_add_u32 v{V_OL}, {96*KB}, v{T0}", [T0], [V_OL]))
    a(V(f"v_add_u32 v{V_OW}, s{S_W5K}, v{V_OL}", [V_OL, ('s', S_W5K)], [V_OW]))
    a(S(f"s_mov_b32 s{S_T0}, {102*KB}", [], [S_T0]))
    a(V(f"v_lshl_add_u32 v{V_LR}, v{V_N}, 5, s{S_T0}", [V_N, ('s', S_T0)], [V_LR]))
    if int(opt.dtch_at) < 99:
        a(V(f"v_lshrrev_b32 v{T1}, 3, v{V_LANE}", [V_LANE], [T1]))
        a(V(f"v_min_u32 v{T1}, 4, v{T1}", [T1], [T1]))
        a(V(f"v_and_b32 v{T2}, 7, v{V_LANE}", [V_LANE], [T2]))
        a(V(f"v_lshlrev_b32 v{T2}, 7, v{T2}", [T2], [T2]))
        a(V(f"v_sub_u32 v{T2}, v{T2}, v{T0}", [T2, T0], [T2]))
        a(V(f"v_lshl_add_u32 v66, v{T1}, 17, v{T2}", [T1, T2], [66]))
        a(V(f"v_add_u32 v66, v66, v{V_OST}", [66, V_OST], [66]))
        a(V(f"v_lshl_add_u32 v67, v{T1}, 13, v{T2}", [T1, T2], [67]))
        a(V(f"v_add_u32 v67, v67, v{V_PS}", [67, V_PS], [67]))
    for k in range(5): a(S(f"s_mov_b32 s{S_TAB+k}, {k*8192}", [], [S_TAB+k]))
    return o
def handoff_calc():
    o = []; a = o.append
    T0, T1, T2, T3 = 252, 253, 254, 9
    a(S(f"s_lshl_b32 s{S_T0}, s{S_J}, 12", [S_J], [S_T0]))
    a(V(f"v_subrev_u32 v{V_OD}, s{S_T0}, v{V_OST}", [V_OST, ('s', S_T0)], [V_OD]))
    a(S(f"s_lshl_b32 s{S_T0}, s{S_B}, 2", [S_B], [S_T0]))
    a(S(f"s_add_u32 s{S_T0}, s{S_T0}, s{S_J}", [S_T0, S_J], [S_T0]))
    a(S(f"s_mul_i32 s{S_T0}, s{S_T0}, {20*8*KB}", [S_T0], [S_T0]))
    a(S(f"s_mul_i32 s{S_T1}, s{S_W}, {5*8*KB}", [S_W], [S_T1]))
    a(S(f"s_lshl_b32 s{S_T2}, s{S_HKV}, 10", [S_HKV], [S_T2]))
    a(S(f"s_add_u32 s{S_T2}, s{S_T2}, s{S_T1}", [S_T2, S_T1], [S_T2]))
    a(S(f"s_add_u32 s{S_T2}, s{S_T2}, s{S_T0}", [S_T2, S_T0], [S_T2]))
    a(V(f"v_lshl_add_u32 v{V_PS}, v{V_LANE}, 4, s{S_T2}", [V_LANE, ('s', S_T2)], [V_PS]))
    tr = int(opt.otr)
    if tr:
        a(S(f"s_mul_i32 s{S_T1}, s{S_HKV}, 160", [S_HKV], [S_T1]))
        a(V(f"v_add_u32 v{T0}, s{S_T1}, v0", [0, ('s', S_T1)], [T0]))
    else:
        a(S(f"s_lshl_b32 s{S_T1}, s{S_HKV}, 2", [S_HKV], [S_T1]))
        a(S(f"s_add_u32 s{S_T1}, s{S_T1}, s{S_W}", [S_T1, S_W], [S_T1]))
        a(S(f"s_mul_i32 s{S_T1}, s{S_T1}, 40", [S_T1], [S_T1]))
        a(V(f"v_add_u32 v{T0}, s{S_T1}, v{V_LANE}", [V_LANE, ('s', S_T1)], [T0]))
    if int(opt.pairw):
        a(V(f"v_lshrrev_b32 v{T1}, 6, v{T0}", [T0], [T1]))
        a(V(f"v_cmp_lt_u32 vcc, 9, v{T1}", [T1], [VCC]))
        a(V(f"v_bfe_u32 v{T2}, v{T0}, 5, 1", [T0], [T2]))
        a(V(f"v_mul_u32_u24 v{T2}, 10, v{T2}", [T2], [T2]))
        a(V(f"v_add_u32 v{T1}, v{T1}, v{T2}", [T1, T2], [T1]))
        a(V(f"v_cndmask_b32 v{T2}, 0, 10, vcc", [VCC], [T2]))
        a(V(f"v_add_u32 v{T1}, v{T1}, v{T2}", [T1, T2], [T1]))
        a(V(f"v_and_b32 v{T0}, 31, v{T0}", [T0], [T0]))
        a(V(f"v_lshl_add_u32 v{T0}, v{T1}, 5, v{T0}", [T1, T0], [T0]))
    a(V(f"v_bfe_u32 v{T1}, v{T0}, 5, 1", [T0], [T1]))
    a(V(f"v_and_b32 v{T2}, 7, v{T0}", [T0], [T2]))
    a(V(f"v_lshl_add_u32 v{T1}, v{T1}, 3, v{T2}", [T1, T2], [T1]))
    a(V(f"v_bfe_u32 v{T2}, v{T0}, 3, 2", [T0], [T2]))
    a(V(f"v_lshrrev_b32 v{T0}, 6, v{T0}", [T0], [T0]))
    a(V(f"v_lshl_add_u32 v{T3}, v{T2}, 4, v{T1}", [T1, T2], [T3]))
    a(V(f"v_lshl_add_u32 v{V_PLD}, v{T3}, 4, s{S_T0}", [T3, ('s', S_T0)], [V_PLD]))
    a(V(f"v_lshl_add_u32 v{V_PLD}, v{T0}, 13, v{V_PLD}", [T0, V_PLD], [V_PLD]))
    a(V(f"v_mul_u32_u24 v{T3}, 52, v{T0}", [T0], [T3]))
    a(V(f"v_lshrrev_b32 v{T3}, 8, v{T3}", [T3], [T3]))
    if tr:
        a(V(f"v_and_b32 v{T1}, 8, v{T1}", [T1], [T1]))
        a(V(f"v_bfe_u32 v{T2}, v0, 2, 3", [0], [T2]))
        a(V(f"v_add_u32 v{T1}, v{T1}, v{T2}", [T1, T2], [T1]))
        a(V(f"v_and_b32 v{T2}, 3, v0", [0], [T2]))
    a(V(f"v_lshlrev_b32 v{T2}, {4 if tr else 3}, v{T2}", [T2], [T2]))
    a(V(f"v_lshl_add_u32 v{T2}, v{T3}, 6, v{T2}", [T3, T2], [T2]))
    a(V(f"v_lshl_add_u32 v{T2}, v{T1}, 10, v{T2}", [T1, T2], [T2]))
    a(V(f"v_mul_u32_u24 v{T3}, 5, v{T3}", [T3], [T3]))
    a(V(f"v_sub_u32 v{T0}, v{T0}, v{T3}", [T0, T3], [T0]))
    a(V(f"v_lshl_add_u32 v{T2}, v{T0}, 14, v{T2}", [T0, T2], [T2]))
    a(S(f"s_mul_i32 s{S_T0}, s{S_B}, 81920", [S_B], [S_T0]))
    a(S(f"s_lshl_b32 s{S_T2}, s{S_J}, 8", [S_J], [S_T2]))
    a(S(f"s_add_u32 s{S_T0}, s{S_T0}, s{S_T2}", [S_T0, S_T2], [S_T0]))
    a(V(f"v_add_u32 v{V_OUT}, s{S_T0}, v{T2}", [T2, ('s', S_T0)], [V_OUT]))
    a(V(f"v_cmp_gt_u32 vcc, 160, v0", [0], [VCC]) if tr else V(f"v_cmp_gt_u32 vcc, 40, v{V_LANE}", [V_LANE], [VCC]))
    a(V(f"v_mov_b32 v{T0}, 0x7ff00000", [], [T0]))
    a(V(f"v_cndmask_b32 v{V_PLD}, v{T0}, v{V_PLD}, vcc", [T0, V_PLD, VCC], [V_PLD]))
    a(V(f"v_cndmask_b32 v{V_OUT}, v{T0}, v{V_OUT}, vcc", [T0, V_OUT, VCC], [V_OUT]))
    for pv_, n_, sh, sg_ in ((V_P1, 4, 9, S_G1), (V_P2, 8, 11, S_G2)):
        a(V(f"v_lshl_add_u32 v{pv_}, v{V_LANE}, {sh}, s{sg_}", [V_LANE, ('s', sg_)], [pv_]))
        a(V(f"v_cmp_gt_u32 vcc, {n_}, v{V_LANE}", [V_LANE], [VCC]))
        a(V(f"v_cndmask_b32 v{pv_}, v{T0}, v{pv_}, vcc", [T0, pv_, VCC], [pv_]))
    return o
def wod_calc():
    o = []; a = o.append
    T0, T1 = 252, 253
    a(S(f"s_lshl_b32 s{S_T0}, s{S_B}, 2", [S_B], [S_T0]))
    a(S(f"s_add_u32 s{S_T0}, s{S_T0}, s{S_W}", [S_T0, S_W], [S_T0]))
    a(S(f"s_lshl_b32 s{S_T0}, s{S_T0}, 14", [S_T0], [S_T0]))
    a(S(f"s_lshl_b32 s{S_T2}, s{S_J}, 8", [S_J], [S_T2]))
    a(S(f"s_add_u32 s{S_T0}, s{S_T0}, s{S_T2}", [S_T0, S_T2], [S_T0]))
    a(V(f"v_bfe_u32 v{T0}, v{V_LANE}, 1, 4", [V_LANE], [T0]))
    a(V(f"v_and_b32 v{T1}, 1, v{V_LANE}", [V_LANE], [T1]))
    a(V(f"v_lshlrev_b32 v{T1}, 7, v{T1}", [T1], [T1]))
    a(V(f"v_lshl_add_u32 v{T0}, v{T0}, 10, v{T1}", [T0, T1], [T0]))
    a(V(f"v_add_u32 v{V_TCH}, s{S_T0}, v{T0}", [T0, ('s', S_T0)], [V_TCH]))
    a(S(f"s_and_b32 s{S_T0}, s{S_W}, 1", [S_W], [S_T0]))
    a(S(f"s_lshl_b32 s{S_T0}, s{S_T0}, 3", [S_T0], [S_T0]))
    a(V(f"v_lshl_add_u32 v{T0}, v{V_G}, 1, s{S_T0}", [V_G, ('s', S_T0)], [T0]))
    a(V(f"v_xor_b32 v{T0}, v{V_N}, v{T0}", [V_N, T0], [T0]))
    a(S(f"s_lshl_b32 s{S_T0}, s{S_J}, 8", [S_J], [S_T0]))
    a(V(f"v_lshl_add_u32 v{T0}, v{T0}, 4, s{S_T0}", [T0, ('s', S_T0)], [T0]))
    a(V(f"v_lshl_add_u32 v{T1}, s{S_W}, 2, v{V_G}", [V_G, ('s', S_W)], [T1]))
    a(V(f"v_lshl_add_u32 v{V_WOD}, v{T1}, 10, v{T0}", [T0, T1], [V_WOD]))
    return o

def phase_b(sg, Q, qr):
    NT = 8
    calc = tail_calc()[-5:]
    sg.addall(qr[:4])
    weave(sg, Q, [], int(opt.bq), 0)
    qr = qr[4:]
    for tau in range(-1, 40):
        i, q = divmod(tau, 5) if tau >= 0 else (-1, 4)
        mf = []
        bst = [int(x) for x in opt.bst.split(',')]
        if tau in bst: stamp(sg, 5 + bst.index(tau), 'B')
        if tau + 1 < 40: mf += qk(tau + 1)
        if tau - 1 >= 0: mf += pv(tau - 1)
        ds, marks = [], []
        if tau == -1: ds = qr[:8] if int(opt.b0s) else qr
        elif tau == 0 and int(opt.b0s): v0 = v_reads(0); ds = [v0[l + 8 * h] for l in range(5) for h in range(2)]
        elif tau == 1 and int(opt.b0s): v0 = v_reads(0); ds = [v0[l + 8 * h] for l in range(5, 8) for h in range(2)] + qr[8:11]; marks = [('vr', 0, 0), ('vr', 0, 1)]
        elif tau == 2 and int(opt.b0s): ds = qr[11:16] + k_reads(1)[:4]; marks = [('kr', 1, 0)]
        elif tau == 0: ds = v_reads(0); marks = [('vr', 0, 0), ('vr', 0, 1)]
        elif tau < 27:
            if q == 2: ds = k_reads(i + 1)[:4]; marks = [('kr', i + 1, 0)]
            if q == 3: ds = k_reads(i + 1)[4:] + v_reads(i + 1)[:2]; marks = [('kr', i + 1, 1)]
            if q == 4: ds = v_reads(i + 1)[2:8]; marks = [('vr', i + 1, 0)]
            if q == 0: ds = v_reads(i)[8:14]
            if q == 1 and i > 0:
                ds = v_reads(i)[14:]
                if i > int(opt.late0): Q.mark(('vr', i, 1))
        xp = None
        LT = int(opt.late0)
        lp = None
        if LT and 0 <= tau < 5 * LT + 2:
            def vo_(t_): v_ = v_reads(t_); return [v_[l + 8 * h] for l in range(8) for h in range(2)]
            marks = []
            if tau == 0: lp = list(zip([0, 1, 2, 3, 4, 5, 6, 7], vo_(0)[:8]))
            elif tau == 1: lp = list(zip([1, 1, 3, 5, 5, 7, 9, 9], vo_(0)[8:])); marks = [('vr', 0, 0), ('vr', 0, 1)]
            elif q == 3 and i + 1 <= LT: lp = list(zip([3, 5, 7, 9, 11, 13, 15, 16], k_reads(i + 1))); marks = [('kr', i + 1, 0), ('kr', i + 1, 1)]
            elif q == 0 and i <= LT: lp = list(zip([1, 3, 5, 7, 9, 11, 13, 15, 16, 16], vo_(i)[:10]))
            elif q == 1 and i <= LT: lp = list(zip([1, 1, 3, 5, 5, 7], vo_(i)[10:])); marks = [('vr', i, 0), ('vr', i, 1)]
            elif q in (2, 4) and i + 1 <= LT: lp = []
            if lp is not None: ds = [x for _, x in lp]
        if tau >= 27:
            k6, k7, v6, v7 = k_reads(6), k_reads(7), v_reads(6), v_reads(7)
            vo = [v7[l + 8 * h] for l in range(8) for h in range(2)]
            G = [1, 3, 5, 7, 9, 11, 13, 15, 16]
            def cwp(q_, second):
                w_ = comb_writes(q_)
                if int(opt.w64) and q_ < 2:
                    h_ = []
                    for x in w_[1:]:
                        m_ = re.match(r"ds_write_b128 v(\d+), a\[(\d+):\d+\] offset:(\d+)", x.t)
                        for z in range(2): h_.append(dswr('ds_write_b64', int(m_.group(1)), ('a', int(m_.group(2)) + 2 * z), 2, int(m_.group(3)) + 8 * z, lgtag=x.lgtag))
                    return list(zip([1, 3, 5, 9, 13, 16], h_[6:])) if second else list(zip([7, 1, 3, 5, 9, 13, 16], [w_[0]] + h_[:6]))
                return list(zip([1, 9, 13], w_[4:])) if second else list(zip([7, 1, 9, 13], w_[:4]))
            xp = {27: list(zip([3, 5, 9, 11, 15, 16], k6[:4] + v6[:2])),
                  28: list(zip([1, 3, 5, 7, 9, 11, 13, 15, 16], k6[4:] + k7[:5])),
                  29: list(zip(G, k7[5:] + v6[2:8])),
                  30: list(zip([1, 3, 5, 7, 9, 11, 13, 15, 16, 16], v6[8:] + vo[:2])),
                  31: list(zip([1, 3, 5, 7, 9, 11, 13, 15, 16, 16], vo[2:12])) if int(opt.v7s) else list(zip([1, 1, 3, 5, 5, 7, 9, 9, 11, 13, 13, 15, 16, 16], vo[2:])),
                  32: list(zip([1, 3, 5, 7], vo[12:])) if int(opt.v7s) else [], 33: cwp(0, 0), 34: cwp(0, 1), 35: cwp(1, 0), 36: cwp(1, 1), 37: cwp(2, 0),
                  38: cwp(2, 1) + list(zip([3, 5, 5, 7, 11, 15, 16, 16], lreads((0, 1)) + preads(0)[:4])),
                  39: list(zip([0, 2, 4, 6], comb_writes(3)[:4])) + list(zip([1, 1, 3, 3, 5, 5, 7, 7], preads(0)[4:] + preads(1)))}[tau]
            if int(opt.x1e) and tau >= 36:
                xp = {36: list(zip([1, 5, 9], comb_writes(1)[4:])),
                      37: cwp(2, 0) + list(zip([3, 5, 11, 15, 16, 16], preads(0))),
                      38: cwp(2, 1) + list(zip([3, 5, 5, 7, 11, 15, 16, 16], lreads((0, 1)) + preads(1)[:4])),
                      39: list(zip([1, 3, 5, 7], comb_writes(3)[:4])) + list(zip([0, 8], preads(1)[4:]))}[tau]
            ds = [x for _, x in xp]; marks = []
            if tau == (37 if int(opt.x1e) else 38):
                b = barrier(needvm=[('wo', -1)], lg0=False); b.needlg = (('cw', 0), ('cw', 1)); sg.add(b)
        n = len(mf)
        gaps = [[] for _ in range(n)]
        e, c = sm(tau) if 0 <= tau < 40 else ([], [])
        if n == 17:
            epos = [0, 2, 4, 6, 8, 10, 12, 14]; cpos = [3, 7, 11, 15]
            dpos = [1, 3, 5, 7, 9, 11, 13, 15] if len(ds) > 4 else [1, 3, 5, 7]
            if ds and ds[0].k == 'dswr': dpos = [1, 1, 3, 7, 9, 13, 16]
            vpos = [1, 5, 9, 13] if (tau < int(opt.even_at) or q == 1) else [1, 7, 13]
            if int(opt.bsched) and not (ds and ds[0].k == 'dswr'):
                if q == 1: dpos, vpos = [1, 3], [5, 9, 13, 16]
                elif tau < int(opt.even_at) or tau >= int(opt.even_end): dpos, vpos = ([3, 7, 11, 15, 16, 16] if q != 3 else [1, 3, 7, 11, 15, 16]), ([1, 5, 9, 13] if q != 3 else [5, 9, 13, 16])
                else: dpos, vpos = [3, 5, 9, 11, 15, 16], [1, 7, 13]
        else:
            epos = list(range(8)); cpos = [min(n - 1, x) for x in (2, 4, 6, 8)]
            dpos = [(k * n) // max(1, len(ds)) for k in range(len(ds))]
            vpos = [int(x) for x in opt.spos.split(',')] if tau < 5 else [1, 5]
        if int(opt.b0s) and tau in (1, 2): dpos, vpos = [1, 1, 3, 5, 5, 7, 11, 15, 16], [9, 13]
        if lp is not None:
            dpos = [g_ for g_, _ in lp]
            if n == 17: vpos = {0: [5, 13], 1: [9, 11, 13, 16], 2: [1, 5, 9, 13, 16], 3: [1, 9, 13], 4: [1, 5, 9, 13, 16]}[q]
        if xp is not None:
            dpos = [g_ for g_, _ in xp]; vpos = [int(x) for x in opt.wpos.split(',')] if tau >= 32 else [13]
            if tau == 27: vpos = [1, 7, 13]
        for x, p_ in zip(ds, dpos): gaps[p_].append(x)
        if tau == int(opt.nl_at):
            sg.add(V("v_mov_b32 v9, 0", [], [9]))
            Q.q.insert(0, Item([], vload(('v', V_GC), 2, 9, S_D, None, 0, flags=' sc1', tag='non')))
        if tau == int(opt.nc_at):
            assert not any(it.ins.vmtag == 'non' for it in Q.q)
            sg.add(V(f"v_readfirstlane_b32 s{S_NON}, v{V_GC}", [V_GC], [('s', S_NON)]))
            sg.add(V(f"v_readfirstlane_b32 s{S_NON+1}, v{V_GC+1}", [V_GC+1], [('s', S_NON+1)]))
            sg.add(S(f"s_cmp_eq_u64 s[{S_NON}:{S_NON+1}], 0", [S_NON, S_NON+1], []))
            sg.text("s_cbranch_scc1 L_spin_n"); sg.text("L_back_n:")
        if tau == 32: stamp_out(sg, 1) if opt.stamps == 'Z' else None
        if tau == int(opt.bar_at): sg.add(barrier(lg0=False))
        for x in ds:
            while any(it.ins.vmtag in x.needvm for it in Q.q): weave(sg, Q, [], 1, 0)
        if tau == int(opt.tch_at): Q.push([Item([], vload(('v', V_TCH + 1), 1, V_TCH, S_WO, None, 0, flags=opt.tch_flags))])
        if tau == int(opt.tlb_at):
            Q.push([Item([], vload(('v', 72), 1, V_ZERO, S_C, S_F1, 0, flags=' sc1')), Item([], vload(('v', 73), 1, V_ZERO, S_C, S_F2, 0, flags=' sc1'))])
        if tau == int(opt.cpf2_at):
            for x in ["s_getpc_b64 s[94:95]", "L_pc2:", "s_lshr_b32 s92, s2, 3", f"s_lshl_b32 s92, s92, 2", f"s_add_u32 s92, s92, s{S_W}", "s_lshl_b32 s92, s92, 7",
                      f"s_add_u32 s92, s92, {int(opt.cpf2_skip)}", "s_min_u32 s92, s92, (L_code_end - L_pc2 - 4) & 0xffffff80", "v_mov_b32 v74, s92", "global_load_dword v255, v74, s[94:95]"]: sg.text(x)
        if tau == int(opt.dtch_at):
            assert not calc
            Q.push(([Item([], vload(('v', 74), 1, 66, S_O, None, 0, flags=opt.dtch_flags))] if 'o' in opt.dtch else []) + ([Item([], vload(('v', 75), 1, 67, S_WT, None, 0, flags=opt.dtch_flags))] if 'p' in opt.dtch else []))
        if tau == int(opt.otch_at): Q.push([Item([], vload(('v', 66), 1, V_OUT, S_OUT, None, 0, flags=opt.otch_flags))])
        if tau == int(opt.wo_at): assert not calc; Q.push(wo_dma(-1))
        place(gaps, Q, vpos)
        for x, p_ in zip(e, epos): gaps[p_].append(x)
        for x, p_ in zip(c, cpos): gaps[p_].append(x)
        if tau >= int(opt.calc_at) and n == 17:
            for gi in range(17):
                if calc and calc[0].k == 'salu' and not any(y.k == 'salu' for y in gaps[gi]): gaps[gi].insert(0, calc.pop(0))
                cost = sum(8 if y.k == 'trans' else 0 if y.k == 'salu' else 4 for y in gaps[gi])
                while calc and calc[0].k != 'salu' and cost <= 4: gaps[gi].append(calc.pop(0)); cost += 4
        sg.addall(interleave(mf, gaps))
        for m in marks: Q.mark(m)

def poll(sg, lab, vaddr):
    sg.text(f"s_mov_b32 s{S_SPIN}, {opt.spin}")
    sg.text(f"{lab}:")
    sg.text(f"buffer_load_dwordx2 v[250:251], v{vaddr}, s[{S_C}:{S_C+3}], 0 offen sc1")
    sg.text(f"s_sub_u32 s{S_SPIN}, s{S_SPIN}, 1")
    sg.text("s_waitcnt vmcnt(0)")
    sg.text(f"v_cmp_ne_u64 vcc, s[{S_NON}:{S_NON+1}], v[250:251]")
    sg.text(f"s_cmp_eq_u32 s{S_SPIN}, 0")
    sg.text(f"s_cbranch_scc1 {lab}_done")
    sg.text("s_nop 2")
    sg.text(f"s_cbranch_vccnz {lab}")
    sg.text(f"{lab}_done:")
    sg.vm = []
def raise_flag(sg, stage, tag):
    ins = vstore(('v', V_GC), 2, V_P1 if stage == 1 else V_P2, S_C, None, 0, flags=' sc1')
    ins.needvm = (tag,)
    sg.add(ins)
WOF = A_Q
RES = 100
def part(q, k):
    if q == 0: return 36 + 4 * k if k < 4 else 64 + 4 * (k - 4)
    return {1: 100, 2: 164, 3: 188, 4: 100}[q] + 4 * k
def preads(q):
    o = []
    for jd in range(1, 4):
        for e in range(2):
            k = (jd - 1) * 2 + e; u = q * 6 + k; row = u >> 3
            o.append(dsrd('ds_read_b128', ('v', part(q, k)), 4, V_CR + 2 * (jd - 1) + (row >> 1), (row & 1) * 32 * KB + (u & 7) * KB))
    return o
LSA, LSB = 124, 76
def lreads(qs):
    if qs == (0, 1): return [dsrd('ds_read_b64', ('v', LSA + src * 2), 2, V_LR, src * 8 * KB) for src in range(4)]
    if qs == (2, 3): return [dsrd('ds_read_b64', ('v', LSB + src * 4), 2, V_LR, src * 8 * KB + 16) for src in range(4)]
    if qs == (4,): return [dsrd('ds_read_b32', ('v', LSB + src * 4 + 2), 1, V_LR, src * 8 * KB + 24) for src in range(4)]
    return [dsrd('ds_read_b128', ('v', LSB + src * 4), 4, V_LR, src * 8 * KB + 16) for src in range(4)]
def lsum(qs):
    w = []
    def lr(src, q): return LSA + src * 2 + q if q < 2 else LSB + src * 4 + q - 2
    LS = lr(0, qs[0])
    for q in qs:
        d = V_T0 + q
        w.append(V(f"v_add_f32 v{d}, v{lr(0,q)}, v{lr(1,q)}", [lr(0,q), lr(1,q)], [d]))
        w.append(V(f"v_add_f32 v{lr(2,q)}, v{lr(2,q)}, v{lr(3,q)}", [lr(2,q), lr(3,q)], [lr(2,q)]))
        w.append(V(f"v_add_f32 v{d}, v{d}, v{lr(2,q)}", [d, lr(2,q)], [d]))
    lo_, hi_ = LS, LS + 1
    if len(qs) == 1: lo_ = hi_ = V_T0 + qs[0]
    else:
        a_, b_, c_ = V_T0 + qs[0], V_T0 + qs[1], V_T0 + qs[-1]
        w.append(V(f"v_min3_f32 v{LS}, v{a_}, v{b_}, v{c_}", [a_, b_, c_], [LS]))
        w.append(V(f"v_add_f32 v{LS+1}, v{a_}, v{b_}", [a_, b_], [LS+1]))
        if len(qs) == 3: w.append(V(f"v_add_f32 v{LS+1}, v{LS+1}, v{c_}", [LS+1, c_], [LS+1]))
    w.append(V(f"v_cmp_nle_f32 vcc, {f2h(2.0**int(opt.lo_exp))}, v{lo_}", [lo_], [VCC]))
    w.append(S(f"s_mov_b64 s[{S_EX}:{S_EX+1}], vcc", [VCC], [S_EX, S_EX+1]))
    w.append(V(f"v_cmp_nge_f32 vcc, {f2h(2.0**int(opt.hi_exp))}, v{hi_}", [hi_], [VCC]))
    w.append(S(f"s_or_b64 vcc, vcc, s[{S_EX}:{S_EX+1}]", [VCC, S_EX, S_EX+1], [VCC]))
    w.append(S(f"s_and_b64 vcc, vcc, s[{S_GM}:{S_GM+1}]", [VCC], [VCC]))
    w.append(raw("s_cbranch_vccnz L_redo      ; softmax guard, see header"))
    for q in qs: w.append(T(f"v_rcp_f32 v{V_T0+q}, v{V_T0+q}", [V_T0+q], [V_T0+q]))
    return w
def finish(q):
    w = []
    for e in range(2):
        o_ = V_OWN[q] + e * 4
        for jd in range(1, 4):
            p_ = part(q, (jd - 1) * 2 + e)
            for r in (0, 2):
                w.append(V(f"v_pk_add_f32 v[{o_+r}:{o_+r+1}], v[{o_+r}:{o_+r+1}], v[{p_+r}:{p_+r+1}]", [o_+r, o_+r+1, p_+r, p_+r+1], [o_+r, o_+r+1]))
    o_ = V_OWN[q]
    ri = V_T0 + (q & ~1); sel = "op_sel:[0,1] op_sel_hi:[1,1]" if q & 1 else "op_sel:[0,0] op_sel_hi:[1,0]"
    for r in range(0, 8, 2):
        w.append(V(f"v_pk_mul_f32 v[{o_+r}:{o_+r+1}], v[{o_+r}:{o_+r+1}], v[{ri}:{ri+1}] {sel}", [o_+r, o_+r+1, V_T0+q], [o_+r, o_+r+1]))
    for r in range(4):
        w.append(V(f"v_cvt_pk_bf16_f32 v{o_+r}, v{o_+2*r}, v{o_+2*r+1}", [o_+2*r, o_+2*r+1], [o_+r]))
    w.append(S(f"s_mov_b32 s{S_SV}, {q*128*KB}", [], [S_SV]))
    w.append(vstore(('v', o_), 4, V_OST, S_O, S_SV, 0, flags=opt.o_flags, tag='ost'))
    return w
def wor():
    return [dsrd('ds_read_b64_tr_b16', ('a', WOF + (ks * 2 + e) * 4 + h * 2), 2, V_WT + 4 + e, ks * 8 * KB + h * 4096) for ks in range(4) for e in range(2) for h in range(2)]
def combine(sg, Q):
    assert not Q.q
    mf = pv(39); gaps = [[] for _ in mf]
    wr = comb_writes(3)[4:]; ls = lsum((0, 1))
    for k, x in enumerate(wr): gaps[3 * k].append(x)
    k = 0
    for gi in range(9):
        n_ = 2 - len(gaps[gi])
        while ls and (n_ > 0 or ls[0].k == 'salu') and gi < 9:
            x = ls.pop(0); gaps[gi].append(x)
            n_ -= 0 if x.k == 'salu' else 2 if x.k == 'trans' else 1
    sg.addall(interleave(mf, gaps))
    stamp(sg, 4)
    if int(opt.c3):
        sg.addall(ls + finish(0))
        b = barrier(lg0=False); b.needlg = (('cw', 2), ('cw', 3)); sg.add(b)
        w4 = comb_writes(4)
        rd = lreads((2, 3)) + preads(2) + preads(3)
        for k in range(len(rd)):
            sg.add(rd[k])
            if k % 3 == 1 and w4: sg.add(w4.pop(0))
        w = finish(1) + lsum((2, 3)) + finish(2)
        for k, x in enumerate(w4): w.insert(4 + 8 * k, x)
        sg.addall(w)
        sg.add(barrier())
        stamp(sg, 5)
        Q.push(wo_dma(0))
        rd = lreads((4,)) + preads(4)
        weave(sg, Q, rd, int(opt.cw), 5)
        sg.addall(rd + finish(3) + lsum((4,)) + finish(4))
        stamp(sg, 6)
        return
    w4 = comb_writes(4)
    w = ls + finish(0) + finish(1)
    for k, x in enumerate(w4): w.insert(min(len(w), 6 + k * 6), x)
    sg.addall(w)
    sg.add(barrier())
    stamp(sg, 5)
    Q.push(wo_dma(0))
    rd = lreads((2, 3, 4)) + preads(2) + preads(3)
    weave(sg, Q, rd, int(opt.cw), 2)
    sg.addall(rd)
    w = lsum((2, 3, 4)) + preads(4) + finish(2) + finish(3) + finish(4)
    if not int(opt.worlate):
        for k, x in enumerate(wor()): w.insert(30 + 3 * k, x)
    sg.addall(w)
    stamp(sg, 6)

def phase_c(sg, Q):
    a = sg.add
    ACC = 164
    a(barrier())
    stamp(sg, 5, 'D')
    for q in range(5): a(dswr('ds_write_b128', V_OW, ('v', V_OWN[q]), 4, q * KB))
    Q.push(wo_dma(1) + wo_dma(2))
    wr_ = wor() if int(opt.worlate) else []
    weave(sg, Q, wr_, int(opt.shadow), 3)
    sg.addall(wr_)
    stamp(sg, 6, 'D')
    a(barrier())
    def CF(k): return [(100, 120), (64, 84), (204, 36)][k % 3]
    def c_reads(k):
        pos, ks = divmod(k, 4); pos -= 1
        xf, wf = CF(k)
        ob = 0 if pos < 0 else (44 - 20 * pos) * KB
        xr = [dsrd('ds_read_b128', ('v', xf + q * 4), 4, V_OL, ob + (ks * 5 + q) * KB) for q in range(5)]
        if pos < 0: return xr
        wb = (pos * 4 + ks) * 8 * KB
        wr = [dsrd('ds_read_b64_tr_b16', ('v', wf + e * 4 + h * 2), 2, V_WT + (2 if wb >= 64 * KB else 0) + e, (wb % (64 * KB)) + h * 4096) for e in range(2) for h in range(2)]
        return wr[:2] + xr[:1] + wr[2:] + xr[1:]
    def c_mfmas(k):
        xf, wf = CF(k)
        ff = 'v'
        if k < 4: wf, ff = WOF + k * 8, 'a'
        o = []
        for q in range(5):
            for e in range(2):
                d = ('v', ACC + (q * 2 + e) * 4)
                o.append(mfma(d, (ff, wf + e * 4), ('v', xf + q * 4), 0 if k == 0 else d))
        o[0].r |= set(R('v', xf, 20) + R(ff, wf, 8))
        return o
    def step(k, nx, pos=()):
        mf = c_mfmas(k); gaps = [[] for _ in mf]
        if nx is not None:
            for i, r in enumerate(c_reads(nx)): gaps[i].append(r)
        place(gaps, Q, pos)
        sg.addall(interleave(mf, gaps))
    def own_steps():
        for k in range(4): step(k, k + 2 if k < 2 else None, [1, 5, 9] if k % 2 == 0 else [3, 7])
    sg.addall(c_reads(0)); sg.addall(c_reads(1))
    raise_flag(sg, 1, 'ost')
    stamp(sg, 7, 'D'); stamp(sg, 7)
    weave(sg, Q, [], min(len(Q.q), int(opt.pf)), 0)
    held = Q.q; Q.q = []
    stamp(sg, 8, 'D')
    t = ["; hand-off 1 - wait (bounded) until the same wave of the three sibling heads has published its O", f"s_mov_b32 s{S_SPIN}, {opt.spin}", "L_poll1:", f"s_load_dwordx8 s[4:11], s[{S_C}:{S_C+1}], s{S_F1} glc", f"s_sub_u32 s{S_SPIN}, s{S_SPIN}, 1", "s_waitcnt lgkmcnt(0)",
         f"s_cmp_eq_u32 s{S_SPIN}, 0", "s_cbranch_scc1 L_poll1_done"]
    t += [f"s_lshl_b32 s{S_T0}, 1, s{S_J}"]
    for h in range(4): t += [f"s_cmp_eq_u64 s[{4+2*h}:{5+2*h}], s[{S_NON}:{S_NON+1}]", f"s_cselect_b32 s{S_T1}, {1 << h}, 0", f"s_or_b32 s{S_T0}, s{S_T0}, s{S_T1}"]
    t += [f"s_cmp_lg_u32 s{S_T0}, 15", "s_cbranch_scc1 L_poll1", "L_poll1_done:"]
    if int(opt.peek) & 1:
        sets = [4, 12, 76, 84]
        t = [f"s_mov_b32 s{S_SPIN}, {opt.spin}", f"s_lshl_b32 s{S_T2}, 1, s{S_J}", "s_waitcnt lgkmcnt(0)"]
        for b_ in sets: t += [f"s_mov_b64 s[{b_+2*h}:{b_+2*h+1}], 0" for h in range(4)]
        t += ["L_poll1:", f"s_sub_u32 s{S_SPIN}, s{S_SPIN}, 1", f"s_cmp_eq_u32 s{S_SPIN}, 0", "s_cbranch_scc1 L_poll1_done"]
        for b_ in sets:
            t += [f"s_mov_b32 s{S_T0}, s{S_T2}"]
            for h in range(4): t += [f"s_cmp_eq_u64 s[{b_+2*h}:{b_+2*h+1}], s[{S_NON}:{S_NON+1}]", f"s_cselect_b32 s{S_T1}, {1 << h}, 0", f"s_or_b32 s{S_T0}, s{S_T0}, s{S_T1}"]
            t += [f"s_cmp_eq_u32 s{S_T0}, 15", "s_cbranch_scc1 L_poll1_done", f"s_load_dwordx8 s[{b_}:{b_+7}], s[{S_C}:{S_C+1}], s{S_F1} glc"] + ["s_nop 7"] * int(opt.pgap)
        t += ["s_branch L_poll1", "L_poll1_done:"]
    for x in t: sg.text(x)
    sg.lg = []
    stamp(sg, 9, 'D')
    stamp(sg, 5, 'E')
    stamp(sg, 8)
    assert all(it.ins.vmtag == ('wo', 2) for it in held)
    Q.push(osib_dma(0) + osib_dma(1) + held)
    weave(sg, Q, [], 5, 0); own_steps()
    weave(sg, Q, [], len(Q.q), 0)
    stamp(sg, 6, 'E')
    a(barrier(needvm=[('os', 0), ('wo', 0), ('wo', 1)]))
    stamp(sg, 7, 'E')
    Q.push(osib_dma(2))
    sg.addall(c_reads(4)); sg.addall(c_reads(5))
    def pfin(q):
        b = ACC + q * 8
        return [V(f"v_cvt_pk_bf16_f32 v{b+r}, v{b+2*r}, v{b+2*r+1}", [b+2*r, b+2*r+1], [b+r]) for r in range(4)] + [vstore(('v', b), 4, V_PS, S_WT, S_TAB + q, 0, flags=' sc1', tag='pst')]
    last = 16 - (2 if int(opt.qmaj) else 0)
    for k in range(4, last):
        nx = k + 2 if k + 2 < 16 else None
        if nx in (8, 12):
            assert not Q.q or nx == 8
            a(barrier(needvm=[('os', nx // 4 - 1), ('wo', nx // 4 - 1)], lg0=False))
            stamp(sg, 8 if nx == 8 else 9, 'E')
        step(k, nx, [1, 5, 9] if k % 2 == 0 else [3, 7])
    if int(opt.qmaj):
        m14, m15 = c_mfmas(14), c_mfmas(15)
        m15[0].r -= set(R('v', CF(15)[0] + 4, 16))
        mf = flat([[m14[2*q], m15[2*q], m14[2*q+1], m15[2*q+1]] for q in range(5)])
        gaps = [[] for _ in mf]
        for q in range(4):
            f_ = pfin(q)
            g0 = 4 * q + 6
            if g0 + 2 < 20:
                gaps[g0] += f_[0:2]; gaps[g0 + 1] += f_[2:4]; gaps[g0 + 2] += f_[4:]
        sg.addall(interleave(mf, gaps))
        stamp(sg, 9)
        sg.addall(pfin(3) + pfin(4))
    else:
        stamp(sg, 9)
        for q in range(5): sg.addall(pfin(q))
    a(S(f"s_mov_b32 s{S_SO}, 4096", [], [S_SO]))
    a(S(f"s_mov_b32 s{S_T1}, 0xffff0000", [], [S_T1]))
    a(S(f"s_mov_b32 s{S_SPIN}, {opt.spin}", [], [S_SPIN]))
    a(S(f"s_mov_b32 s{S_T2}, 0", [], [S_T2]))
    a(S(f"s_mov_b32 s{S_SK}, 0", [], [S_SK]))
    if int(opt.f2wg):
        a(barrier(needvm=['pst'], lg0=False))
        sg.text(f"s_cmp_lg_u32 s{S_W}, 0"); sg.text("s_cbranch_scc1 L_sig2"); raise_flag(sg, 2, 'pst'); sg.text("L_sig2:")
    else: raise_flag(sg, 2, 'pst')
    stamp(sg, 5, '2')
    if int(opt.otr):
        a(V("v_lshlrev_b32 v11, 4, v0", [0], [11]))
        a(V("v_and_b32 v10, 0xe0, v0", [0], [10])); a(V("v_lshlrev_b32 v10, 4, v10", [10], [10]))
        a(V("v_and_b32 v12, 7, v0", [0], [12])); a(V("v_lshl_add_u32 v10, v12, 6, v10", [12, 10], [10]))
        a(V("v_bfe_u32 v12, v0, 3, 2", [0], [12])); a(V("v_lshl_add_u32 v10, v12, 3, v10", [12, 10], [10]))
        sg.text(f"s_cmp_eq_u32 s{S_W}, 3"); sg.text("s_cbranch_scc1 L_fin")
    PB, SM = 100, 132
    def pl(h): return vload(('v', PB + 4 * h), 4, V_PLD, S_WT, S_SO if h >= 4 else None, (h & 3) * 1024, flags=' sc1')
    t = ["L_poll2:", f"s_load_dwordx16 s[4:19], s[{S_C}:{S_C+1}], s{S_F2} glc", f"s_cmp_eq_u32 s{S_SK}, 0", "s_cbranch_scc1 L_nounp", "L_unp:", "s_waitcnt vmcnt(0)"]
    for h in range(8):
        t += [f"s_bitcmp1_b32 s{S_SK}, {h}", f"s_cbranch_scc0 L_u{h}"]
        for r in range(4): t += [f"v_lshlrev_b32 v{SM+8*h+2*r}, 16, v{PB+4*h+r}", f"v_and_b32 v{SM+8*h+2*r+1}, s{S_T1}, v{PB+4*h+r}"]
        t += [f"L_u{h}:"]
    t += [f"s_cmp_eq_u32 s{S_T2}, 0xff", "s_cbranch_scc1 L_poll2_done", "L_nounp:", f"s_mov_b32 s{S_SK}, 0", f"s_sub_u32 s{S_SPIN}, s{S_SPIN}, 1", "s_waitcnt lgkmcnt(0)",
          f"s_cmp_eq_u32 s{S_SPIN}, 0", "s_cbranch_scc1 L_poll2_done"]
    for h in range(8):
        t += [f"s_cmp_lg_u64 s[{4+2*h}:{5+2*h}], s[{S_NON}:{S_NON+1}]", f"s_cbranch_scc1 L_g{h}", f"s_bitcmp1_b32 s{S_T2}, {h}", f"s_cbranch_scc1 L_g{h}",
              f"s_bitset1_b32 s{S_T2}, {h}", f"s_bitset1_b32 s{S_SK}, {h}", pl(h).t, f"L_g{h}:"]
    t += [f"s_cmp_lg_u32 s{S_T2}, 0xff", "s_cbranch_scc1 L_poll2", "s_branch L_unp", "L_poll2_done:"]
    if not int(opt.unp):
        t = ["; hand-off 2 - fetch each producer's partial result once its flag is up (bounded wait); summed below in a fixed order", "L_poll2:", f"s_load_dwordx16 s[4:19], s[{S_C}:{S_C+1}], s{S_F2} glc", f"s_sub_u32 s{S_SPIN}, s{S_SPIN}, 1", "s_waitcnt lgkmcnt(0)", f"s_cmp_eq_u32 s{S_SPIN}, 0", "s_cbranch_scc1 L_poll2_done"]
        for h in range(8):
            t += [f"s_cmp_lg_u64 s[{4+2*h}:{5+2*h}], s[{S_NON}:{S_NON+1}]", f"s_cbranch_scc1 L_g{h}", f"s_bitcmp1_b32 s{S_T2}, {h}", f"s_cbranch_scc1 L_g{h}",
                  f"s_bitset1_b32 s{S_T2}, {h}", f"s_bitset1_b32 s{S_SK}, {h}", pl(h).t, f"L_g{h}:"]
        t += [f"s_cmp_eq_u32 s{S_T2}, 0xff", "s_cbranch_scc1 L_poll2_done", f"s_mov_b32 s{S_SK}, 0", "s_branch L_poll2", "L_poll2_done:"]
        if int(opt.peek) & 2:
            t = ["s_waitcnt lgkmcnt(0)"]
            for b_ in (4, 76): t += [f"s_mov_b64 s[{b_+2*h}:{b_+2*h+1}], 0" for h in range(8)]
            t += ["L_poll2:", f"s_sub_u32 s{S_SPIN}, s{S_SPIN}, 1", f"s_cmp_eq_u32 s{S_SPIN}, 0", "s_cbranch_scc1 L_poll2_done"]
            for n_, b_ in enumerate((4, 76)):
                for h in range(8):
                    t += [f"s_cmp_lg_u64 s[{b_+2*h}:{b_+2*h+1}], s[{S_NON}:{S_NON+1}]", f"s_cbranch_scc1 L_g{n_}{h}", f"s_bitcmp1_b32 s{S_T2}, {h}", f"s_cbranch_scc1 L_g{n_}{h}",
                          f"s_bitset1_b32 s{S_T2}, {h}", pl(h).t, f"L_g{n_}{h}:"]
                t += [f"s_cmp_eq_u32 s{S_T2}, 0xff", "s_cbranch_scc1 L_poll2_done", f"s_load_dwordx16 s[{b_}:{b_+15}], s[{S_C}:{S_C+1}], s{S_F2} glc"]
            t += ["s_branch L_poll2", "L_poll2_done:"]
        t += ["s_waitcnt vmcnt(0)"]
        for h in range(8):
            for r in range(4): t += [f"v_lshlrev_b32 v{SM+8*h+2*r}, 16, v{PB+4*h+r}", f"v_and_b32 v{SM+8*h+2*r+1}, s{S_T1}, v{PB+4*h+r}"]
    for x in t: sg.text(x)
    sg.vm = []
    stamp(sg, 6, '2')
    for h in range(1, 8):
        for r in range(0, 8, 2):
            u = SM + 8 * h + r
            a(V(f"v_pk_add_f32 v[{SM+r}:{SM+r+1}], v[{SM+r}:{SM+r+1}], v[{u}:{u+1}]", [SM+r, SM+r+1, u, u+1], [SM+r, SM+r+1]))
    for r in range(4):
        a(V(f"v_cvt_pk_bf16_f32 v{SM+r}, v{SM+2*r}, v{SM+2*r+1}", [SM+2*r, SM+2*r+1], [SM+r]))
    if int(opt.otr):
        a(dswr('ds_write_b64', 10, ('v', SM), 2, 0)); a(dswr('ds_write_b64', 10, ('v', SM + 2), 2, 32))
        r_ = dsrd('ds_read_b128', ('v', SM + 4), 4, 11, 0); r_.needlg = ('*',); a(r_)
        a(vstore(('v', SM + 4), 4, V_OUT, S_OUT, None, 0, flags=opt.out_flags))
    elif not int(opt.noout):
        a(vstore(('v', SM), 2, V_OUT, S_OUT, None, 0, flags=opt.out_flags))
        a(vstore(('v', SM + 2), 2, V_OUT, S_OUT, None, 32, flags=opt.out_flags))

def out_of_line():
    t = []
    t += ["L_spin_n:", f"s_mov_b32 s{S_SPIN}, {opt.spin}", "L_spin_n1:",
          f"buffer_load_dwordx2 v[{V_GC}:{V_GC+1}], v9, s[{S_D}:{S_D+3}], 0 offen sc1", f"s_sub_u32 s{S_SPIN}, s{S_SPIN}, 1", "s_waitcnt vmcnt(0)",
          f"v_readfirstlane_b32 s{S_NON}, v{V_GC}", f"v_readfirstlane_b32 s{S_NON+1}, v{V_GC+1}", f"s_cmp_eq_u32 s{S_SPIN}, 0", "s_cbranch_scc1 L_back_n", "s_nop 2",
          f"s_cmp_eq_u64 s[{S_NON}:{S_NON+1}], 0", "s_cbranch_scc1 L_spin_n1", "s_branch L_back_n"]
    t += ["; a row sum left the safe range - start over with the true row maxima", "L_redo:", f"s_mov_b64 s[{S_GM}:{S_GM+1}], 0", f"s_mov_b32 s{S_REDO}, 1",
          "s_waitcnt vmcnt(0) lgkmcnt(0)", "s_barrier"]
    sg = Seg()
    p1 = prologue1()
    a = sg.add
    a(V(f"v_lshl_add_u32 v{V_T0}, s{S_W}, 2, v{V_G}", [V_G], [V_T0]))
    a(V(f"v_xor_b32 v{V_T1}, v{V_N}, v{V_T0}", [V_N, V_T0], [V_T1]))
    a(V(f"v_lshlrev_b32 v{V_T1}, 4, v{V_T1}", [V_T1], [V_T1]))
    a(V(f"v_lshl_add_u32 v{V_XD}, v{V_T0}, 10, v{V_T1}", [V_T0, V_T1], [V_XD]))
    a(S(f"s_and_b32 s{S_T0}, s{S_W}, 2", [S_W], [S_T0]))
    a(S(f"s_lshl_b32 s{S_T0}, s{S_T0}, 2", [S_T0], [S_T0]))
    a(V(f"v_lshl_add_u32 v{V_T1}, v{V_G}, 1, s{S_T0}", [V_G], [V_T1]))
    a(V(f"v_xor_b32 v{V_T1}, v{V_N}, v{V_T1}", [V_N, V_T1], [V_T1]))
    a(V(f"v_lshlrev_b32 v{V_T1}, 4, v{V_T1}", [V_T1], [V_T1]))
    a(V(f"v_lshl_add_u32 v{V_WD}, v{V_T0}, 13, v{V_T1}", [V_T0, V_T1], [V_WD]))
    t += sg.out + ["s_nop 4", "s_branch L_restart"]
    sg = Seg(); a = sg.add
    sg.text("; true row maxima over all keys -> negated into the accumulator seed of S")
    sg.text("L_max:")
    sg.text(f"s_mov_b32 s{S_SPIN}, m0")
    sg.drain()
    sg.text("s_barrier")
    MX, KF, AD = 76, V_VF, 84
    for q in range(5): a(V(f"v_mov_b32 v{MX+q}, 0xff800000", [], [MX+q]))
    for s in range(4): a(V(f"v_add_u32 v{AD+s}, {96*KB}, v{V_KA+s}", [V_KA+s], [AD+s]))
    a(S(f"s_mov_b32 s{S_T2}, 0", [], [S_T2]))
    sg.text("L_max_loop:"); sg.reset_hist()
    for j in range(8):
        if j % 4 == 0:
            a(S(f"s_add_u32 s{S_T1}, s{S_T2}, {(j>>2)*4096}", [S_T2], [S_T1]))
            a(S(f"s_add_u32 m0, s{S_W8K}, {96*KB + (j>>2)*4096}", [S_W8K], [M0]))
        a(dma(V_KD + (j & 3), S_K, S_T1, 1024 * (j & 3), 'mk'))
    for t_ in range(2):
        for s in range(4):
            a(dsrd('ds_read_b128', ('v', KF + (t_ * 4 + s) * 4), 4, AD + s, t_ * 4096, needvm=['mk']))
    for q in range(5):
        for t_ in range(2):
            d = ('v', 88 + t_ * 4)
            for s in range(4): a(mfma(d, ('v', KF + (t_ * 4 + s) * 4), AQ(q, s), 0 if s == 0 else d))
        for k in range(4):
            a(V(f"v_max3_f32 v{MX+q}, v{MX+q}, v{88+2*k}, v{89+2*k}", [MX+q, 88+2*k, 89+2*k], [MX+q]))
    sg.drain()
    a(S(f"s_add_u32 s{S_T2}, s{S_T2}, 8192", [S_T2], [S_T2]))
    sg.text(f"s_cmp_lt_u32 s{S_T2}, 65536"); sg.text("s_nop 4"); sg.text("s_cbranch_scc1 L_max_loop")
    sg.text("s_barrier")
    a(S(f"s_mul_i32 s{S_T0}, s{S_W}, 1280", [S_W], [S_T0]))
    a(S(f"s_add_u32 s{S_T0}, s{S_T0}, {96*KB}", [S_T0], [S_T0]))
    a(V(f"v_lshl_add_u32 v{AD}, v{V_LANE}, 2, s{S_T0}", [V_LANE], [AD]))
    a(S(f"s_mov_b32 s{S_T0}, {96*KB}", [], [S_T0]))
    a(V(f"v_lshl_add_u32 v{AD+1}, v{V_N}, 2, s{S_T0}", [V_N], [AD+1]))
    for q in range(5): a(dswr('ds_write_b32', AD, ('v', MX + q), 1, q * 256))
    a(barrier())
    for q in range(5):
        for k in range(16):
            a(dsrd('ds_read_b32', ('v', KF + k), 1, AD + 1, (k >> 2) * 1280 + q * 256 + (k & 3) * 64))
        for k in range(8):
            a(V(f"v_max3_f32 v{MX+q}, v{MX+q}, v{KF+2*k}, v{KF+2*k+1}", [MX+q, KF+2*k, KF+2*k+1], [MX+q]))
        for r in range(4):
            a(V(f"v_sub_f32 v{V_NEGM+q*4+r}, 0, v{MX+q}", [MX+q], [V_NEGM+q*4+r]))
    sg.drain()
    sg.text("s_barrier"); sg.text(f"s_mov_b32 m0, s{S_SPIN}"); sg.text("s_nop 4"); sg.text("s_branch L_back_max")
    return t + sg.out

def stamp_out(sg, n):
    if not opt.stamps or (opt.stamps == 'Z' and n > 1): return
    if opt.stamps == 'Z':
        for x in ["s_load_dwordx2 s[76:77], s[0:1], 56", "s_waitcnt lgkmcnt(0)", f"s_add_u32 s76, s76, {16<<20}", "s_addc_u32 s77, s77, 0", "s_and_b32 s77, s77, 0xffff",
                  "s_mov_b32 s78, 0x100000", "s_mov_b32 s79, 0x20000", "s_lshl_b32 s80, s2, 2", "s_add_u32 s80, s80, s32", "s_lshl_b32 s80, s80, 6", "v_mov_b32 v74, s80",
                  "v_mov_b32 v75, s3", "buffer_store_dword v75, v74, s[76:79], 0 offen sc1"]: sg.text(x)
        return
    stamp(sg, n - 1)
    t = ["s_load_dwordx2 s[4:5], s[0:1], 56", "s_waitcnt lgkmcnt(0)", f"s_add_u32 s4, s4, {16<<20}", "s_addc_u32 s5, s5, 0", "s_and_b32 s5, s5, 0xffff",
         "s_mov_b32 s6, 0x100000", "s_mov_b32 s7, 0x20000", "s_lshl_b32 s8, s2, 2", "s_add_u32 s8, s8, s32", "s_lshl_b32 s8, s8, 6", "v_mov_b32 v2, s8"]
    for i in range(n):
        t += [f"v_mov_b32 v3, s{3 if i == 0 else 76+2*i}", f"buffer_store_dword v3, v2, s[4:7], 0 offen offset:{4*i} sc1"]
    for x in t: sg.text(x)

def kernel():
    sg = Seg()
    sg.text(NAME + "_kernel:")
    sg.text("s_cmp_ge_u32 s2, 256")
    sg.text("s_cbranch_scc1 L_end")
    if opt.stamps:
        stamp(sg, 0)
    p1 = prologue1()
    sg.addall(p1[:2])
    if int(opt.cpf):
        for x in ["; pull the kernel's code into this XCD's L2 (two lines per wave, value unused)", "s_getpc_b64 s[94:95]", "L_pc:", "s_lshr_b32 s3, s2, 3", "v_lshrrev_b32 v8, 6, v0", "v_and_b32 v9, 1, v0", "v_lshl_add_u32 v8, v8, 1, v9",
                  "v_lshl_add_u32 v8, s3, 3, v8", "v_lshlrev_b32 v8, 7, v8", "v_min_u32 v8, (L_code_end - L_pc - 4) & 0xffffff80, v8"] + (["global_load_dword v255, v8, s[94:95]"] if int(opt.cpf) == 1 else ["s_mov_b64 s[12:13], s[94:95]"]): sg.text(x)
    sg.addall(p1[2:])
    if opt.stamps:
        sg.text("s_mov_b32 s3, s76")
    p2 = prologue2()
    Q = Queue()
    first = x_dma(0) + w_dma(0) if not int(opt.wfirst) else w_dma(0) + x_dma(0)
    stamp(sg, 5, 'P')
    Q.push(first)
    weave(sg, Q, [], 9, 0)
    if int(opt.cpf) == 2: sg.text("global_load_dword v255, v8, s[12:13]")
    stamp(sg, 6, 'P')
    sg.addall(p2)
    stamp(sg, 7, 'P')
    sg.text("; workgroup 0 publishes this launch's hand-off tag (a clock value, used only to tell this launch's flags from stale ones)")
    sg.text("s_cmp_lg_u32 s2, 0"); sg.text("s_cbranch_scc1 L_nocz")
    lane0(sg, ["v_mov_b32 v9, 0", f"s_memrealtime s[{S_NON}:{S_NON+1}]", "s_waitcnt lgkmcnt(0)", f"s_or_b32 s{S_NON}, s{S_NON}, 1", f"v_mov_b32 v250, s{S_NON}", f"v_mov_b32 v251, s{S_NON+1}",
               f"buffer_store_dwordx2 v[250:251], v9, s[{S_D}:{S_D+3}], 0 offen sc1"], "L_nocz")
    sg.text("s_branch L_first")
    sg.text("L_restart:")
    s2 = Seg(); s2.addall(restart_setup()); Q2 = Queue(); Q2.push(x_dma(0) + w_dma(0) if not int(opt.wfirst) else w_dma(0) + x_dma(0)); weave(s2, Q2, [], 9, 0)
    for x in s2.out: sg.text(x)
    sg.text("L_first:")
    early, late = prologue3()
    tc = wod_calc() + tail_calc()
    early = early + late + handoff_calc() + tc[:-5]
    def BB(u): return f"B{u + 1}"
    Q.push(w_dma(1) + x_dma(1) + w_dma(2) + w_dma(3) + x_dma(2) + w_dma(4) + ((w_dma(5, 'B2') + x_dma(3)) if int(opt.la) else (x_dma(3) + w_dma(5, 'B2'))) + w_dma(6, 'B3') + w_dma(7, 'B4')
           + kv_dma('k', 0, 'B5') + kv_dma('v', 0, 'B6') + kv_dma('k', 1, 'B8') + kv_dma('v', 1, 'BQ'))
    for i in range(2, 8):
        if not int(opt.nodma): Q.push(kv_dma('k', i) + kv_dma('v', i))
    n0 = int(opt.n0) - 9
    if opt.psched:
        for part_ in opt.psched.split(','):
            ni, nf = [int(x) for x in part_.split(':')]
            weave(sg, Q, [], ni, 0); n0 -= ni
            for _ in range(min(nf, len(early))): sg.add(early.pop(0))
        weave(sg, Q, [], max(0, n0), 0)
    else:
        weave(sg, Q, early, n0, (len(early) + n0 - 1) // n0)
    sg.addall(early)
    qr = phase_a(sg, Q)
    sg.addall(qr[:0])
    stamp(sg, 3)
    sg.text(f"s_cmp_eq_u32 s{S_REDO}, 0"); sg.text("s_cbranch_scc1 L_back_max")
    s2 = Seg(); s2.addall(qr)
    for x in s2.out: sg.text(x)
    sg.text("s_branch L_max")
    sg.text("L_back_max:")
    phase_b(sg, Q, qr)
    combine(sg, Q)
    phase_c(sg, Q)
    sg.text("L_fin:")
    stamp_out(sg, 11)
    sg.text("L_end:")
    sg.text("s_endpgm")
    return sg.out + ['L_code_end:'] + out_of_line()

def report_kernel():
    idx, mode = opt.report.split(',')
    if mode == 'next':
        return ["report_kernel:", "s_cmp_ge_u32 s2, 1", "s_cbranch_scc1 L3_end", "s_memrealtime s[12:13]", "s_load_dwordx2 s[4:5], s[0:1], 56", "s_waitcnt lgkmcnt(0)",
                f"s_add_u32 s4, s4, {17<<20}", "s_addc_u32 s5, s5, 0", "s_and_b32 s5, s5, 0xffff", "s_mov_b32 s6, 64", "s_mov_b32 s7, 0x20000", "v_mov_b32 v1, 0", "v_mov_b32 v2, s12",
                "buffer_store_dword v2, v1, s[4:7], 0 offen", "L3_end:", "s_endpgm"]
    t = ["report_kernel:", "s_cmp_ge_u32 s2, 1", "s_cbranch_scc1 L3_end", "s_memrealtime s[16:17]", "s_load_dwordx2 s[4:5], s[0:1], 56", "s_waitcnt lgkmcnt(0)",
         f"s_add_u32 s4, s4, {16<<20}", "s_addc_u32 s5, s5, 0", "s_and_b32 s5, s5, 0xffff", "s_mov_b32 s6, 0x100000", "s_mov_b32 s7, 0x20000",
         "v_lshlrev_b32 v1, 8, v0", f"buffer_load_dword v2, v1, s[4:7], 0 offen offset:{4*int(idx)}", "buffer_load_dword v3, v1, s[4:7], 0 offen",
         "v_mov_b32 v4, 0", "v_mov_b32 v5, 0", "v_mov_b32 v6, -1", "ds_write_b32 v4, v5", "ds_write_b32 v4, v6 offset:8", "s_waitcnt vmcnt(0) lgkmcnt(0)", "s_barrier",
         "ds_min_u32 v4, v3 offset:8", "s_waitcnt lgkmcnt(0)", "s_barrier", "ds_read_b32 v6, v4 offset:8", "s_waitcnt lgkmcnt(0)", "v_sub_u32 v2, v2, v6",
         "v_lshrrev_b32 v7, 3, v0", "v_mul_u32_u24 v7, 52, v7", "v_lshrrev_b32 v7, 8, v7", "v_and_b32 v8, 1, v0", "v_sub_u32 v8, 6, v8", "v_cmp_lt_u32 vcc, v7, v8",
         "v_min_u32 v2, 10000, v2",
         ("ds_add_u32 v4, v2" if mode == 'mean' else "ds_max_u32 v4, v2"), "s_waitcnt lgkmcnt(0)", "s_barrier", "ds_read_b32 v6, v4", "s_memrealtime s[12:13]", "s_waitcnt lgkmcnt(0)",
         "v_readfirstlane_b32 s10, v6", "s_nop 4"]
    if mode == 'mean': t += ["s_mul_i32 s10, s10, 10", "s_lshr_b32 s10, s10, 8"]
    elif mode == 'max': t += ["s_mul_i32 s10, s10, 10"]
    elif mode == 'gap': t += ["ds_read_b32 v6, v4 offset:8", "s_waitcnt lgkmcnt(0)", "v_readfirstlane_b32 s11, v6", "s_nop 4", "s_sub_u32 s16, s16, s11", "s_sub_u32 s10, s16, s10",
                              "s_min_u32 s10, s10, 2000", "s_mul_i32 s10, s10, 20"]
    else: t += ["s_mov_b32 s10, 0"]
    t += ["L3_spin:", "s_memrealtime s[14:15]", "s_waitcnt lgkmcnt(0)", "s_sub_u32 s14, s14, s12",
          "s_cmp_lt_u32 s14, s10", "s_cbranch_scc1 L3_spin", "L3_end:", "s_endpgm"]
    return t

HEADER = """; Kernarg layout (64 bytes, pointers only, base s[0:1]):
;  24: wq (512,4096) bf16  32: wo (4096,512) bf16   40: d_out (8,80,512) bf16   48: d_debug   56: d_ws
;
; One launch, one workgroup (4 waves) per (batch b, query head hq); hkv = id & 7, j = (id >> 3) & 3, b = id >> 5, hq = 4*hkv + j.
;     Softmax shift m: the first pass uses m = 0, which is exact as long as nothing leaves the fp32 range.  Every row sum is
;     checked against [2^-40, 2^40] (NaN fails too); if any row is outside, the workgroup starts over, computes the true row
;     maxima over all 1024 keys (L_max) and repeats phase B with m = row maximum.
;  C  hand-off 1: O (bf16) goes to the three other heads of the kv group; workgroup (b, hkv, j) multiplies the four heads
;     with wo[hkv*512.., j*128..] -> partial result for 128 output columns.
;     hand-off 2: the eight partial results (one per hkv) are summed in fp32, each workgroup finishing one eighth.
;  and read with sc1.  The tag is a clock value that workgroup 0 publishes in d_debug (zero at launch), so flags left in d_ws
;  by earlier launches never match.  Polls are bounded.  Nothing depends on the XCD a workgroup runs on; the id mapping, the
"""
def build():
    def fmt(l): return "\n".join(x if x.endswith(':') else "    " + x for x in l)
    nm = NAME + "_kernel"
    s = HEADER + "; @launch grid=(256,1,1) block=(256,1,1) lds=163840\n"
    if opt.report:
        s = f"; @launch kernel={nm} grid=(256,1,1) block=(256,1,1) lds=163840\n; @launch kernel=report_kernel grid=(1,1,1) block=(256,1,1) lds=64\n"
    s += '.amdgcn_target "amdgcn-amd-amdhsa--gfx950"\n.text\n'
    s += f".globl {nm}\n.p2align 8\n.type {nm},@function\n" + fmt(kernel()) + "\n"
    if opt.report: s += ".globl report_kernel\n.p2align 8\n.type report_kernel,@function\n" + fmt(report_kernel()) + "\n"
    s += f""".section .rodata,"a"
.p2align 6
.amdhsa_kernel {nm}
  .amdhsa_next_free_vgpr 512
  .amdhsa_next_free_sgpr 102
  .amdhsa_accum_offset 256
  .amdhsa_group_segment_fixed_size 0
  .amdhsa_kernarg_size 64
  .amdhsa_user_sgpr_count 2
  .amdhsa_user_sgpr_kernarg_segment_ptr 1
  .amdhsa_system_sgpr_workgroup_id_x 1
  .amdhsa_float_denorm_mode_32 3
.end_amdhsa_kernel
"""
    if opt.report:
        s += """.p2align 6
.amdhsa_kernel report_kernel
  .amdhsa_next_free_vgpr 32
  .amdhsa_next_free_sgpr 32
  .amdhsa_accum_offset 32
  .amdhsa_group_segment_fixed_size 0
  .amdhsa_kernarg_size 64
  .amdhsa_user_sgpr_count 2
  .amdhsa_user_sgpr_kernarg_segment_ptr 1
  .amdhsa_system_sgpr_workgroup_id_x 1
.end_amdhsa_kernel
"""
    return s

if __name__ == '__main__':
    out = sys.argv[1] if len(sys.argv) > 1 else 'cdna_kernels/' + NAME + '.s'
    for a_ in sys.argv[2:]:
        k, v = a_.split('=', 1)
        setattr(opt, k, (' ' + v) if k.endswith('flags') and v else v)
    HOIST[0] = int(opt.hoist)
    txt = build()
    open(out, 'w').write(txt)
```

```python
import sys, struct, re
from dsl import *

KB = 1024
NAME = 'standalone__gqa_block_cached__near_ridge'
def f2h(x): return hex(struct.unpack('<I', struct.pack('<f', x))[0])
QSCALE = 1.4426950408889634 / (128 ** 0.5)
WS_WO = 8 << 20
WS_CT = 12 << 20

class Opt:
    stamps = ''
    report = ''
    kv_flags = ''
    a_flags = ''
    n0 = 22
    warm = 1
    perstep = 6
    lo_exp = -40
    hi_exp = 40
    spin = 300000
    rt_at = 5
    bar_at = 32
    nodma = 0
    pa = 10
    pb = 25
    pre2 = 2
    w2a = 0
    pre0 = 4
    pre1 = 2
    late0 = 0
    lastlag = 0
    psched = ''
    spos = '1,3,5,7'
    bq = 0
    v7s = 1
    b0s = 0
    peek = 0
    pgap = 0
    cpf2_at = 99
    cpf2_skip = 1024
    pairw = 0
    dtch_at = 99
    dtch = 'op'
    dtch_flags = ''
    wpos = '5,16'
    x1e = 0
    c3 = 0
    otr = 1
    otch_at = 99
    otch_flags = ''
    worlate = 1
    pf = 9
    noout = 0
    even_end = 23
    coal = 1
    hoist = 2
    unp = 0
    f2wg = 1
    wfirst = 0
    kvnt = 'x'
    ant = ''
    tch_flags = ''
    wsb = 0
    drain = '45'
    tlb_at = 27
    aonly = 0
    la = 10
    aq = 1
    ownlate = 1
    o_flags = ' sc1'
    f1_flags = ' sc1'
    w64 = 0
    out_flags = ''
    bsched = 1
    p1w = 1
    p2w = 0
    pollk = '19,29,39'
    dyn2 = 1
    qmaj = 1
    tch_at = 27
    even_at = 99
    pdepth = 1
    kvo = 4
    finw = 0
    alim = 16
    cpf = 1
    chain = 1
    wo_at = 33
    calc_at = 16
    nl_at = 8
    nc_at = 13
    cw = 2
    shadow = 7
    bst = '0,5,10,15,20'
    no_rt = 0
    clk = 'r'
    lg0 = 0
    vpos = '1,5,9,13'
    rot_kv = 1
    rot_a = 8
    rot_c = 1
    gl_at = 29
    gc_at = 33
opt = Opt()

S_X, S_WQ, S_K, S_V, S_O, S_WO, S_WT, S_WL, S_C, S_D, S_OUT = 4, 8, 12, 16, 20, 24, 28, 52, 56, 60, 64
S_W, S_B, S_HKV, S_HQ = 32, 33, 34, 35
S_W1K, S_W8K, S_SO, S_T0, S_T1, S_T2, S_SK, S_SV = 36, 37, 38, 39, 40, 41, 42, 43
S_TAB = 44
S_REDO, S_MT, S_NT, S_VALID, S_RT, S_SPIN = 68, 69, 70, 71, 72, 73
S_EX = 74
S_F1, S_F2, S_G1, S_G2 = 100, 101, 72, 51
S_GM = 70
S_J_UNUSED = 3
S_P = 76
S_ST = 80
V_LANE, V_N, V_G, V_T0, V_T1, V_T2, V_T3, V_T4, V_T5 = 1, 2, 3, 4, 5, 6, 7, 8, 9
V_KA, V_VA, V_KD, V_VD = 10, 14, 22, 26
V_OST, V_CW, V_LW = 28, 29, 31
V_ONES, V_NEGM, V_L, V_S, V_P, V_KF, V_VF = 32, 36, 56, 76, 92, 100, 164
V_XA, V_XB, V_WA, V_WB, V_XD, V_WD, V_QW = 76, 56, 80, 82, 84, 85, 86
V_GC = 250
S_NON = 96
V_CR, V_LR, V_WOD, V_WT, V_OL, V_OW, V_OD, V_PS, V_PLD, V_OUT, V_P1, V_P2 = 228, 234, 235, 236, 242, 243, 244, 245, 246, 247, 248, 249
V_ZERO = 9
V_TCH = 64
S_H = 52
S_W5K = 55
S_W2K, S_W3K = 49, 50
S_J = 69
A_O, A_Q = 0, 160
V_OWN = [132, 140, 148, 156, 56]
A_KF1, A_L = 120, 240
def AO(lam, q):
    if lam < 2: return ('v', V_OWN[q] + 4 * lam)
    return ('a', A_O + 4 * (q * 6 + lam - 2))
def KF(i, k): return ('v', V_KF + 4 * k) if i % 2 == 0 else ('a', A_KF1 + 4 * k)
def LA(q): return ('a', A_L + 4 * q) if q < 4 else ('a', 152)
def AQ(q, s): return ('a', A_Q + 4 * (q * 4 + s))

def XU(c, q):
    if c == 0: return q * 4 * KB
    if c == 1: return 20 * KB + q * 4 * KB
    if c == 2: return 128 * KB + q * 4 * KB
    return [120, 124, 148, 152, 156][q] * KB
def WU(slot, ks):
    return {0: [40, 48], 1: [56, 96], 2: [104, 112], 3: [64, 72], 4: [80, 88]}[slot][ks] * KB
WSLOT = [0, 1, 2, 3, 4, 0, 1, 2]
QBUF = 128 * KB

def V(t, r=(), w=()):
    return valu(t, r=[('v', x) if isinstance(x, int) else x for x in r], w=[('v', x) if isinstance(x, int) else x for x in w])
def T(t, r=(), w=()):
    return valu(t, r=[('v', x) for x in r], w=[('v', x) for x in w], trans=True)
def S(t, r=(), w=()):
    return salu(t, r=[('s', x) if isinstance(x, int) else x for x in r], w=[('s', x) if isinstance(x, int) else x for x in w])
M0 = ('m0', 0)
VCC = ('vcc', 0)
def flat(l): return [x for y in l for x in y]

def srd(dst, plo, add_s=None, add_imm=0, size=0):
    o = []
    if add_s is not None or add_imm:
        o.append(S(f"s_add_u32 s{dst}, s{plo}, " + (f"s{add_s}" if add_s is not None else f"{add_imm}"), [plo] + ([add_s] if add_s is not None else []), [dst]))
        o.append(S(f"s_addc_u32 s{dst+1}, s{plo+1}, 0", [plo+1], [dst+1]))
    else: assert dst == plo
    o.append(S(f"s_mov_b32 s{dst+2}, {size}", [], [dst+2]))
    o.append(S(f"s_mov_b32 s{dst+3}, 0x20000", [], [dst+3]))
    return o

KV_ORDER = [[0, 2, 1, 3, 4, 6, 5, 7], [0, 1, 3, 2, 4, 5, 7, 6], [1, 0, 2, 4, 3, 5, 6, 7], [1, 0, 2, 3, 5, 4, 6, 7]]
KV_ORDERS = [KV_ORDER,
  [[0, 4, 1, 2, 3, 5, 6, 7], [1, 0, 5, 2, 3, 4, 6, 7], [2, 0, 1, 6, 3, 4, 5, 7], [3, 0, 1, 2, 7, 4, 5, 6]],
  [[0, 1, 2, 3, 4, 5, 6, 7], [0, 1, 2, 3, 4, 5, 6, 7], [4, 5, 6, 7, 0, 1, 2, 3], [4, 5, 6, 7, 0, 1, 2, 3]],
  [[0, 2, 1, 3, 5, 4, 6, 7], [1, 0, 3, 2, 4, 6, 5, 7], [2, 1, 0, 4, 3, 5, 7, 6], [0, 1, 2, 3, 5, 4, 6, 7]],
  [[0, 1, 2, 4, 3, 5, 6, 7], [1, 0, 2, 3, 5, 4, 6, 7], [2, 0, 1, 3, 4, 6, 5, 7], [0, 1, 3, 2, 4, 5, 7, 6]],
  [[0, 1, 4, 2, 3, 5, 6, 7], [1, 0, 2, 5, 3, 4, 6, 7], [2, 0, 1, 3, 6, 4, 5, 7], [0, 3, 1, 2, 4, 7, 5, 6]],
  [[0, 1, 3, 2, 4, 5, 7, 6], [0, 1, 2, 4, 3, 5, 6, 7], [0, 2, 1, 3, 5, 4, 6, 7], [0, 2, 1, 3, 4, 6, 5, 7]],
  [[0, 1, 2, 4, 3, 5, 6, 7], [1, 0, 3, 2, 5, 4, 6, 7], [2, 3, 0, 1, 4, 6, 5, 7], [3, 2, 1, 0, 4, 5, 7, 6]],
  [[0, 1, 2, 4, 3, 5, 6, 7], [1, 2, 0, 3, 5, 4, 6, 7], [2, 0, 1, 3, 4, 6, 5, 7], [0, 3, 1, 2, 4, 5, 7, 6]]]
def kv_pack(j):
    o = KV_ORDERS[int(opt.kvo)][j] if int(opt.rot_kv) else list(range(8))
    return sum(t << (4 * i) for i, t in enumerate(o))
S_KVO = 98
V_XD4 = 204
S_WC = 99

class Item:
    def __init__(s, pre, ins, after=None): s.pre, s.ins, s.after = pre, ins, after
def x_dma(c, after=None):
    return [Item([S(f"s_add_u32 m0, s{S_W1K}, {XU(c,q)}", [S_W1K], [M0])],
                 dma(V_XD4 + c, S_X, S_TAB + q, 0, ('x', c), flags=(' nt' if 'x' in opt.ant and c < 2 else opt.a_flags)), after) for q in range(5)]
def w_dma(u, after=None):
    o = []
    for k in range(4):
        pre = []
        if k == 0:
            pre.append(S(f"s_add_u32 s{S_SK}, s{S_WC}, {(u & 6) << 19}", [S_WC], [S_SK]))
            pre.append(S(f"s_and_b32 s{S_SK}, s{S_SK}, {7 << 19}", [S_SK], [S_SK]))
            if u & 1: pre.append(S(f"s_xor_b32 s{S_SK}, s{S_SK}, {1 << 19}", [S_SK], [S_SK]))
        pre.append(S(f"s_add_u32 s{S_SO}, s{S_SK}, {k*131072}", [S_SK], [S_SO]))
        pre.append(S(f"s_add_u32 m0, s{S_W1K}, {WU(WSLOT[u], k>>1) + (k&1)*4*KB}", [S_W1K], [M0]))
        o.append(Item(pre, dma(V_WD, S_WQ, S_SO, 0, ('w', u), flags=(' nt' if 'w' in opt.ant and u < 4 else opt.a_flags)), after))
    return o
def kv_dma(kind, i, after=None):
    o = []
    base = (i & 1) * 32 * KB + (0 if kind == 'k' else 64 * KB)
    sr, so = (S_K, S_SK) if kind == 'k' else (S_V, S_SV)
    for j in range(8):
        pre = []
        if j % 4 == 0:
            if j == 0:
                pre.append(S(f"s_bfe_u32 s{so}, s{S_KVO}, {hex((3 << 16) | (4 * i))}", [S_KVO], [so]))
                pre.append(S(f"s_lshl_b32 s{so}, s{so}, 13", [so], [so]))
            else:
                pre.append(S(f"s_add_u32 s{so}, s{so}, 4096", [so], [so]))
            pre.append(S(f"s_add_u32 m0, s{S_W8K}, {base + (j>>2)*4096}", [S_W8K], [M0]))
        va = V_KD + (j & 3) if kind == 'k' else V_VD + (j & 1)
        tag = (kind + 'r', i - 2, j >> 2)
        o.append(Item(pre, dma(va, sr, so, 1024 * (j & 3), (kind, i, j >> 2), needlg=[tag], flags=(' nt' if str(i) in str(opt.kvnt) else opt.kv_flags)), after if i < 2 else tag))
    return o
def k_reads(i):
    return [dsrd('ds_read_b128', KF(i, t * 4 + s), 4, V_KA + s, (i & 1) * 32 * KB + t * 4096,
                 needvm=[('k', i, t)], lgtag=('kr', i, t)) for t in range(2) for s in range(4)]
def v_reads(i):
    return [dsrd('ds_read_b64_tr_b16', ('v', V_VF + (i & 1) * 32 + lam * 4 + h * 2), 2, V_VA + lam, (i & 1) * 32 * KB + h * 4096,
                 needvm=[('v', i, h)], lgtag=('vr', i, h)) for h in range(2) for lam in range(8)]

class Queue:
    def __init__(s): s.q = []; s.pts = set()
    def push(s, items): s.q += items
    def mark(s, p): s.pts.add(p)
    def pop(s):
        if s.q and (s.q[0].after is None or s.q[0].after in s.pts): return s.q.pop(0)
        return None

def place(gaps, Q, pos):
    last = -1
    for p in pos:
        if p >= len(gaps): continue
        it = Q.pop()
        if it is None: break
        pre = list(it.pre)
        avail = list(range(last + 1, p))
        front = []
        if not avail: front = pre
        else:
            slots = [[] for _ in avail]
            for k_, x in enumerate(reversed(pre)):
                slots[max(0, len(avail) - 1 - k_)].insert(0, x)
            for g, sl in zip(avail, slots):
                k_ = 0
                while k_ < len(gaps[g]) and gaps[g][k_].k == 'salu': k_ += 1
                gaps[g][k_:k_] = sl
        k = 0
        while k < len(gaps[p]) and gaps[p][k].k == 'salu': k += 1
        gaps[p][k:k] = front + [it.ins]
        last = p
def weave(sg, Q, fill, n, per):
    for _ in range(n):
        it = Q.pop()
        if it is not None: sg.addall(it.pre + [it.ins])
        for _ in range(per):
            if fill: sg.add(fill.pop(0))

NST = 12
def stamp(sg, i, grp='1'):
    if not opt.stamps: return
    if opt.stamps == 'Z' and i: return
    if 5 <= i <= 9 and grp != opt.stamps: return
    sg.text(f"{'s_memtime' if opt.clk == 'c' else 's_memrealtime'} s[{76+2*i}:{77+2*i}]")

def prologue1():
    o = []; a = o.append
    a(raw("s_load_dwordx2 s[92:93], s[0:1], 0"))
    a(raw("s_load_dwordx2 s[26:27], s[0:1], 24"))
    a(V(f"v_lshrrev_b32 v{V_T0}, 6, v0", [0], [V_T0]))
    a(V(f"v_and_b32 v{V_LANE}, 63, v0", [0], [V_LANE]))
    a(V(f"v_readfirstlane_b32 s{S_W}, v{V_T0}", [V_T0], [('s', S_W)]))
    a(S(f"s_and_b32 s{S_HKV}, s2, 7", [2], [S_HKV]))
    a(S(f"s_lshr_b32 s{S_B}, s2, 5", [2], [S_B]))
    a(S(f"s_bfe_u32 s{S_T0}, s2, 0x20003", [2], [S_T0]))
    a(S(f"s_mov_b32 s{S_J}, s{S_T0}", [S_T0], [S_J]))
    a(S(f"s_lshl_b32 s{S_HQ}, s{S_HKV}, 2", [S_HKV], [S_HQ]))
    a(S(f"s_add_u32 s{S_HQ}, s{S_HQ}, s{S_T0}", [S_HQ, S_T0], [S_HQ]))
    if int(opt.rot_a) == 2:
        a(S(f"s_add_u32 s{S_VALID}, s{S_T0}, s{S_B}", [S_T0, S_B], [S_VALID]))
        a(S(f"s_and_b32 s{S_VALID}, s{S_VALID}, 1", [S_VALID], [S_VALID]))
        a(S(f"s_lshl_b32 s{S_VALID}, s{S_VALID}, 2", [S_VALID], [S_VALID]))
    elif int(opt.rot_a) in (5, 6):
        a_, b_ = (S_B, S_T0) if int(opt.rot_a) == 5 else (S_T0, S_B)
        a(S(f"s_lshl_b32 s{S_VALID}, s{b_}, 1", [b_], [S_VALID]))
        a(S(f"s_add_u32 s{S_VALID}, s{S_VALID}, s{a_}", [S_VALID, a_], [S_VALID]))
        a(S(f"s_and_b32 s{S_VALID}, s{S_VALID}, 3", [S_VALID], [S_VALID]))
        a(S(f"s_lshl_b32 s{S_VALID}, s{S_VALID}, 1", [S_VALID], [S_VALID]))
    elif int(opt.rot_a) in (8, 9):
        a(S(f"s_add_u32 s{S_VALID}, s{S_T0}, s{S_B}", [S_T0, S_B], [S_VALID]))
        a(S(f"s_lshl_b32 s{S_VALID}, s{S_VALID}, 1", [S_VALID], [S_VALID]))
        a(S(f"s_and_b32 s{S_T1}, s{S_HKV}, {1 if int(opt.rot_a) == 8 else 3}", [S_HKV], [S_T1]))
        a(S(f"s_add_u32 s{S_VALID}, s{S_VALID}, s{S_T1}", [S_VALID, S_T1], [S_VALID]))
        a(S(f"s_and_b32 s{S_VALID}, s{S_VALID}, 3", [S_VALID], [S_VALID]))
        a(S(f"s_lshl_b32 s{S_VALID}, s{S_VALID}, 1", [S_VALID], [S_VALID]))
    elif int(opt.rot_a) == 7:
        a(S(f"s_add_u32 s{S_VALID}, s{S_T0}, s{S_B}", [S_T0, S_B], [S_VALID]))
        a(S(f"s_and_b32 s{S_VALID}, s{S_VALID}, 1", [S_VALID], [S_VALID]))
        a(S(f"s_lshl_b32 s{S_VALID}, s{S_VALID}, 2", [S_VALID], [S_VALID]))
        a(S(f"s_bfe_u32 s{S_T1}, s{S_B}, 0x10001", [S_B], [S_T1]))
        a(S(f"s_or_b32 s{S_VALID}, s{S_VALID}, s{S_T1}", [S_VALID, S_T1], [S_VALID]))
    elif int(opt.rot_a) == 4:
        a(S(f"s_add_u32 s{S_VALID}, s{S_T0}, s{S_B}", [S_T0, S_B], [S_VALID]))
        a(S(f"s_and_b32 s{S_VALID}, s{S_VALID}, 3", [S_VALID], [S_VALID]))
        a(S(f"s_lshl_b32 s{S_VALID}, s{S_VALID}, 1", [S_VALID], [S_VALID]))
    elif int(opt.rot_a):
        a(S(f"s_lshl_b32 s{S_T0}, s{S_T0}, 1", [S_T0], [S_T0]))
        a(S(f"s_add_u32 s{S_VALID}, s{S_T0}, s{S_B}", [S_T0, S_B], [S_VALID]))
        a(S(f"s_and_b32 s{S_VALID}, s{S_VALID}, 7", [S_VALID], [S_VALID]))
    else:
        a(S(f"s_mov_b32 s{S_VALID}, 0", [], [S_VALID]))
    a(V(f"v_and_b32 v{V_N}, 15, v{V_LANE}", [V_LANE], [V_N]))
    a(V(f"v_lshrrev_b32 v{V_G}, 4, v{V_LANE}", [V_LANE], [V_G]))
    a(S(f"s_lshl_b32 s{S_W1K}, s{S_W}, 10", [S_W], [S_W1K]))
    a(S(f"s_lshl_b32 s{S_W8K}, s{S_W}, 13", [S_W], [S_W8K]))
    a(V(f"v_lshl_add_u32 v{V_T0}, s{S_W}, 2, v{V_G}", [V_G, ('s', S_W)], [V_T0]))
    a(V(f"v_xor_b32 v{V_T1}, v{V_N}, v{V_T0}", [V_N, V_T0], [V_T1]))
    a(V(f"v_lshlrev_b32 v{V_T1}, 4, v{V_T1}", [V_T1], [V_T1]))
    a(V(f"v_lshl_add_u32 v{V_XD}, v{V_T0}, 10, v{V_T1}", [V_T0, V_T1], [V_XD]))
    a(S(f"s_and_b32 s{S_T0}, s{S_W}, 2", [S_W], [S_T0]))
    a(S(f"s_lshl_b32 s{S_T0}, s{S_T0}, 2", [S_T0], [S_T0]))
    a(V(f"v_lshl_add_u32 v{V_T1}, v{V_G}, 1, s{S_T0}", [V_G, ('s', S_T0)], [V_T1]))
    a(V(f"v_xor_b32 v{V_T1}, v{V_N}, v{V_T1}", [V_N, V_T1], [V_T1]))
    a(V(f"v_lshlrev_b32 v{V_T1}, 4, v{V_T1}", [V_T1], [V_T1]))
    a(V(f"v_lshl_add_u32 v{V_WD}, v{V_T0}, 13, v{V_T1}", [V_T0, V_T1], [V_WD]))
    a(S(f"s_mul_i32 s{S_T0}, s{S_B}, 81920", [S_B], [S_T0]))
    a(S(f"s_lshl_b32 s{S_T2}, s{S_HQ}, 8", [S_HQ], [S_T2]))
    a(S(f"s_sub_u32 s{S_T1}, 4194304, s{S_T2}", [S_T2], [S_T1]))
    a(S(f"s_mov_b32 s{S_REDO}, 0", [], [S_REDO]))
    a(S(f"s_lshl_b32 s{S_WC}, s{S_VALID}, 19", [S_VALID], [S_WC]))
    a(S(f"s_mov_b64 s[{S_GM}:{S_GM+1}], -1", [], [S_GM, S_GM+1]))
    o += restart_setup()
    a(S(f"s_mov_b32 s{S_X+2}, 81920", [], [S_X+2])); a(S(f"s_mov_b32 s{S_X+3}, 0x20000", [], [S_X+3]))
    a(S(f"s_mov_b32 s{S_WQ+2}, s{S_T1}", [S_T1], [S_WQ+2])); a(S(f"s_mov_b32 s{S_WQ+3}, 0x20000", [], [S_WQ+3]))
    a(raw("s_waitcnt lgkmcnt(0)", 'wait'))
    o += srd(S_X, 92, add_s=S_T0, size=81920)[:2]
    o += srd(S_WQ, 26, add_s=S_T2, size=0)[:2]
    for dst, off in ((S_K, 8), (S_V, 16), (S_WO, 32), (S_OUT, 40), (S_D, 48), (S_O, 56)):
        a(raw(f"s_load_dwordx2 s[{dst}:{dst+1}], s[0:1], {off}"))
    return o

def restart_setup():
    o = [S(f"s_mov_b32 s{S_TAB+q}, {q*16384}", [], [S_TAB+q]) for q in range(5)]
    for c in range(4):
        o.append(S(f"s_lshr_b32 s{S_SO}, s{S_WC}, 12", [S_WC], [S_SO]))
        o.append(S(f"s_add_u32 s{S_SO}, s{S_SO}, {c*256}", [S_SO], [S_SO]))
        o.append(S(f"s_and_b32 s{S_SO}, s{S_SO}, 0x300", [S_SO], [S_SO]))
        o.append(V(f"v_add_u32 v{V_XD4+c}, s{S_SO}, v{V_XD}", [V_XD, ('s', S_SO)], [V_XD4+c]))
    return o

def prologue2():
    o = []; a = o.append
    a(raw("s_waitcnt lgkmcnt(0)", 'wait'))
    a(S(f"s_lshl_b32 s{S_T0}, s{S_B}, 3", [S_B], [S_T0]))
    a(S(f"s_add_u32 s{S_T0}, s{S_T0}, s{S_HKV}", [S_T0, S_HKV], [S_T0]))
    a(S(f"s_lshl_b32 s{S_T0}, s{S_T0}, 2", [S_T0], [S_T0]))
    a(S(f"s_add_u32 s{S_T0}, s{S_T0}, s{S_W}", [S_T0, S_W], [S_T0]))
    a(S(f"s_lshl_b32 s{S_T0}, s{S_T0}, 16", [S_T0], [S_T0]))
    o += srd(S_K, S_K, add_s=S_T0, size=65536)
    o += srd(S_V, S_V, add_s=S_T0, size=65536)
    a(S(f"s_lshl_b32 s{S_T0}, s{S_HKV}, 19", [S_HKV], [S_T0]))
    o += srd(S_WO, S_WO, add_s=S_T0, size=524288)
    o += srd(S_WT, S_O, add_imm=WS_WO, size=8*4*20*8*1024)
    o += srd(S_C, S_O, add_imm=WS_CT, size=262144)
    o += srd(S_O, S_O, size=8*5*128*1024)
    o += srd(S_D, S_D, size=256)
    o += srd(S_OUT, S_OUT, size=655360)
    a(S(f"s_bitcmp1_b32 s{S_HQ}, 0", [S_HQ], []))
    a(S(f"s_mov_b32 s{S_T0}, {hex(kv_pack(0))}", [], [S_T0]))
    a(S(f"s_cselect_b32 s{S_T0}, {hex(kv_pack(1))}, s{S_T0}", [S_T0], [S_T0]))
    a(S(f"s_mov_b32 s{S_T1}, {hex(kv_pack(2))}", [], [S_T1]))
    a(S(f"s_cselect_b32 s{S_T1}, {hex(kv_pack(3))}, s{S_T1}", [S_T1], [S_T1]))
    a(S(f"s_bitcmp1_b32 s{S_HQ}, 1", [S_HQ], []))
    a(S(f"s_cselect_b32 s{S_KVO}, s{S_T1}, s{S_T0}", [S_T0, S_T1], [S_KVO]))
    for p in range(3):
        a(S(f"s_cmp_le_u32 s{S_J}, {p}", [S_J], []))
        a(S(f"s_cselect_b32 s{S_T1}, {p + 1}, {p}", [], [S_T1]))
        a(S(f"s_lshl_b32 s{S_H+p}, s{S_T1}, 17", [S_T1], [S_H+p]))
    a(S(f"s_mul_i32 s{S_W5K}, s{S_W}, 5120", [S_W], [S_W5K]))
    a(S(f"s_lshl_b32 s{S_W2K}, s{S_W}, 11", [S_W], [S_W2K]))
    a(S(f"s_mul_i32 s{S_W3K}, s{S_W}, 3072", [S_W], [S_W3K]))
    a(S(f"s_lshl_b32 s{S_T0}, s{S_B}, 14", [S_B], [S_T0]))
    a(S(f"s_lshl_b32 s{S_T1}, s{S_W}, 7", [S_W], [S_T1]))
    a(S(f"s_add_u32 s{S_T0}, s{S_T0}, s{S_T1}", [S_T0, S_T1], [S_T0]))
    a(S(f"s_lshl_b32 s{S_F1}, s{S_HQ}, 9", [S_HQ], [S_F1]))
    a(S(f"s_add_u32 s{S_F1}, s{S_F1}, s{S_T0}", [S_F1, S_T0], [S_F1]))
    a(S(f"s_add_u32 s{S_F2}, s{S_F1}, 131072", [S_F1], [S_F2]))
    if int(opt.f2wg): a(S(f"s_andn2_b32 s{S_F2}, s{S_F2}, 0x180", [S_F2], [S_F2]))
    a(S(f"s_lshl_b32 s{S_T1}, s{S_HKV}, 11", [S_HKV], [S_T1]))
    a(S(f"s_lshl_b32 s{S_G1}, s{S_J}, 3", [S_J], [S_G1]))
    a(S(f"s_add_u32 s{S_G1}, s{S_G1}, s{S_T1}", [S_G1, S_T1], [S_G1]))
    a(S(f"s_add_u32 s{S_G1}, s{S_G1}, s{S_T0}", [S_G1, S_T0], [S_G1]))
    a(S(f"s_lshl_b32 s{S_T1}, s{S_J}, 9", [S_J], [S_T1]))
    a(S(f"s_lshl_b32 s{S_G2}, s{S_HKV}, 3", [S_HKV], [S_G2]))
    a(S(f"s_add_u32 s{S_G2}, s{S_G2}, s{S_T1}", [S_G2, S_T1], [S_G2]))
    a(S(f"s_add_u32 s{S_G2}, s{S_G2}, s{S_T0}", [S_G2, S_T0], [S_G2]))
    a(S(f"s_add_u32 s{S_G2}, s{S_G2}, 131072", [S_G2], [S_G2]))
    return o

def prologue3():
    o = []; a = o.append
    a(S(f"s_bfe_u32 s{S_T1}, s{S_WC}, 0x10013", [S_WC], [S_T1]))
    a(S(f"s_lshl_b32 s{S_T1}, s{S_T1}, 3", [S_T1], [S_T1]))
    a(V(f"v_xor_b32 v{V_T1}, s{S_T1}, v{V_N}", [V_N, ('s', S_T1)], [V_T1]))
    a(V(f"v_xor_b32 v{V_T0}, v{V_G}, v{V_T1}", [V_G, V_T1], [V_T0]))
    a(V(f"v_lshlrev_b32 v{V_T0}, 4, v{V_T0}", [V_T0], [V_T0]))
    a(V(f"v_lshl_add_u32 v{V_XA}, v{V_N}, 8, v{V_T0}", [V_N, V_T0], [V_XA]))
    for s in range(1, 4): a(V(f"v_xor_b32 v{V_XA+s}, {64*s}, v{V_XA}", [V_XA], [V_XA+s]))
    for s in range(4): a(V(f"v_add_u32 v{V_XB+s}, {120*KB}, v{V_XA+s}", [V_XA+s], [V_XB+s]))
    a(V(f"v_lshrrev_b32 v{V_T2}, 2, v{V_N}", [V_N], [V_T2]))
    a(V(f"v_bfe_u32 v{V_T3}, v{V_N}, 1, 1", [V_N], [V_T3]))
    a(V(f"v_and_b32 v{V_T4}, 1, v{V_N}", [V_N], [V_T4]))
    a(V(f"v_lshlrev_b32 v{V_T4}, 3, v{V_T4}", [V_T4], [V_T4]))
    a(V(f"v_and_b32 v{V_T5}, 1, v{V_G}", [V_G], [V_T5]))
    a(V(f"v_lshl_add_u32 v{V_T5}, v{V_T5}, 2, v{V_T2}", [V_T5, V_T2], [V_T5]))
    a(V(f"v_lshlrev_b32 v{V_T5}, 1, v{V_T5}", [V_T5], [V_T5]))
    a(S(f"s_lshl_b32 s{S_T1}, s{S_W}, 2", [S_W], [S_T1]))
    a(V(f"v_lshl_add_u32 v{V_T1}, v{V_G}, 3, v{V_T2}", [V_G, V_T2], [V_T1]))
    a(V(f"v_lshl_add_u32 v{V_T1}, v{V_T1}, 8, v{V_T4}", [V_T1, V_T4], [V_T1]))
    a(V(f"v_add_u32 v{V_T3}, s{S_T1}, v{V_T3}", [V_T3, ('s', S_T1)], [V_T3]))
    a(V(f"v_xor_b32 v{V_T3}, v{V_T3}, v{V_T5}", [V_T3, V_T5], [V_T3]))
    a(V(f"v_lshl_add_u32 v{V_T0}, v{V_T3}, 4, v{V_T1}", [V_T3, V_T1], [V_T0]))
    a(V(f"v_add_u32 v{V_WA}, {40*KB}, v{V_T0}", [V_T0], [V_WA]))
    a(V(f"v_add_u32 v{V_WB}, {96*KB}, v{V_T0}", [V_T0], [V_WB]))
    a(V(f"v_xor_b32 v{V_WA+1}, 32, v{V_WA}", [V_WA], [V_WA+1]))
    a(V(f"v_xor_b32 v{V_WB+1}, 32, v{V_WB}", [V_WB], [V_WB+1]))
    a(V(f"v_lshl_add_u32 v{V_T1}, v{V_G}, 2, v{V_T2}", [V_G, V_T2], [V_T1]))
    n_early = len(o)
    for s in range(4):
        a(V(f"v_add_u32 v{V_KA+s}, s{S_W8K}, v{V_XA+s}", [V_XA+s, ('s', S_W8K)], [V_KA+s]))
    a(V(f"v_lshl_add_u32 v{V_T1}, v{V_T1}, 8, v{V_T4}", [V_T1, V_T4], [V_T1]))
    a(V(f"v_lshl_add_u32 v{V_WT}, v{V_T3}, 4, v{V_T1}", [V_T3, V_T1], [V_WT]))
    a(S(f"s_add_u32 s{S_T2}, s{S_W8K}, {64*KB}", [S_W8K], [S_T2]))
    a(V(f"v_add_u32 v{V_VA}, s{S_T2}, v{V_WT}", [V_WT, ('s', S_T2)], [V_VA]))
    for lam in range(1, 8): a(V(f"v_xor_b32 v{V_VA+lam}, {32*lam}, v{V_VA}", [V_VA], [V_VA+lam]))
    a(V(f"v_xor_b32 v{V_WT+1}, 32, v{V_WT}", [V_WT], [V_WT+1]))
    for e in range(2):
        a(V(f"v_add_u32 v{V_WT+2+e}, {64*KB}, v{V_WT+e}", [V_WT+e], [V_WT+2+e]))
        a(V(f"v_add_u32 v{V_WT+4+e}, {128*KB}, v{V_WT+e}", [V_WT+e], [V_WT+4+e]))
    a(V(f"v_xor_b32 v{V_T0}, v{V_N}, v{V_G}", [V_N, V_G], [V_T0]))
    a(V(f"v_lshlrev_b32 v{V_T0}, 4, v{V_T0}", [V_T0], [V_T0]))
    a(V(f"v_lshl_add_u32 v{V_KD}, v{V_G}, 8, v{V_T0}", [V_G, V_T0], [V_KD]))
    for j in range(1, 4):
        a(V(f"v_xor_b32 v{V_KD+j}, {64*j}, v{V_KD}", [V_KD], [V_KD+j]))
    a(V(f"v_lshlrev_b32 v{V_T0}, 1, v{V_G}", [V_G], [V_T0]))
    a(V(f"v_xor_b32 v{V_T0}, v{V_N}, v{V_T0}", [V_N, V_T0], [V_T0]))
    a(V(f"v_lshlrev_b32 v{V_T0}, 4, v{V_T0}", [V_T0], [V_T0]))
    a(V(f"v_lshl_add_u32 v{V_VD}, v{V_G}, 8, v{V_T0}", [V_G, V_T0], [V_VD]))
    a(V(f"v_xor_b32 v{V_VD+1}, 128, v{V_VD}", [V_VD], [V_VD+1]))
    a(V(f"v_lshrrev_b32 v{V_T0}, 1, v{V_G}", [V_G], [V_T0]))
    a(V(f"v_add_u32 v{V_T0}, s{S_T1}, v{V_T0}", [V_T0, ('s', S_T1)], [V_T0]))
    a(V(f"v_xor_b32 v{V_T0}, v{V_T0}, v{V_N}", [V_T0, V_N], [V_T0]))
    a(V(f"v_lshlrev_b32 v{V_T0}, 4, v{V_T0}", [V_T0], [V_T0]))
    a(V(f"v_lshl_add_u32 v{V_T0}, v{V_N}, 8, v{V_T0}", [V_N, V_T0], [V_T0]))
    a(V(f"v_and_b32 v{V_T1}, 1, v{V_G}", [V_G], [V_T1]))
    a(V(f"v_lshl_add_u32 v{V_T0}, v{V_T1}, 3, v{V_T0}", [V_T0, V_T1], [V_T0]))
    a(V(f"v_add_u32 v{V_QW}, {QBUF}, v{V_T0}", [V_T0], [V_QW]))
    a(V(f"v_xor_b32 v{V_QW+1}, 32, v{V_QW}", [V_QW], [V_QW+1]))
    a(V(f"v_lshl_add_u32 v{V_CW}, v{V_LANE}, 4, s{S_W8K}", [V_LANE, ('s', S_W8K)], [V_CW]))
    a(V(f"v_add_u32 v{V_CW+1}, {64*KB}, v{V_CW}", [V_CW], [V_CW+1]))
    a(S(f"s_add_u32 s{S_T0}, s{S_W8K}, {102*KB}", [S_W8K], [S_T0]))
    a(V(f"v_lshl_add_u32 v{V_LW}, v{V_LANE}, 5, s{S_T0}", [V_LANE, ('s', S_T0)], [V_LW]))
    a(S(f"s_mul_i32 s{S_T0}, s{S_B}, 640", [S_B], [S_T0]))
    a(S(f"s_lshl_b32 s{S_T2}, s{S_HQ}, 2", [S_HQ], [S_T2]))
    a(S(f"s_add_u32 s{S_T0}, s{S_T0}, s{S_T2}", [S_T0, S_T2], [S_T0]))
    a(S(f"s_add_u32 s{S_T0}, s{S_T0}, s{S_W}", [S_T0, S_W], [S_T0]))
    a(S(f"s_lshl_b32 s{S_T0}, s{S_T0}, 10", [S_T0], [S_T0]))
    a(V(f"v_lshl_add_u32 v{V_OST}, v{V_LANE}, 4, s{S_T0}", [V_LANE, ('s', S_T0)], [V_OST]))
    a(V(f"v_cmp_eq_u32 vcc, 0, v{V_N}", [V_N], [VCC]))
    a(V(f"v_mov_b32 v{V_T0}, 0x3f803f80", [], [V_T0]))
    for i in range(4):
        a(V(f"v_cndmask_b32 v{V_ONES+i}, 0, v{V_T0}, vcc", [V_T0, VCC], [V_ONES+i]))
    for i in range(0, 20, 2):
        a(V(f"v_mov_b64 v[{V_NEGM+i}:{V_NEGM+i+1}], 0", [], [V_NEGM+i, V_NEGM+i+1]))
    return o[:n_early], o[n_early:]

V_QACC = V_VF
def AF(kap):
    return [(100, 120), (128, 148), (208, 156)][kap % 3]
def a_reads(kap):
    u, ks = kap >> 1, kap & 1
    c, s = u >> 1, kap & 3
    xf, wf = AF(kap)
    wb = WU(WSLOT[u], ks)
    xr = []
    for q in range(5):
        xb = XU(c, q)
        reg, base = (V_XA, 0) if xb < 64 * KB else (V_XB, 120 * KB)
        xr.append(dsrd('ds_read_b128', ('v', xf + q * 4), 4, reg + s, xb - base))
    wr = []
    for e in range(2):
        for h in range(2):
            reg, base = (V_WA, 40 * KB) if wb < 96 * KB else (V_WB, 96 * KB)
            wr.append(dsrd('ds_read_b64_tr_b16', ('v', wf + e * 4 + h * 2), 2, reg + e, wb - base + h * 1024))
    return wr[:2] + xr[:1] + wr[2:] + xr[1:]
def a_mfmas(kap):
    o = []
    xf, wf = AF(kap)
    for q in range(5):
        for e in range(2):
            d = ('v', V_QACC + (e * 5 + q) * 4)
            o.append(mfma(d, ('v', wf + e * 4), ('v', xf + q * 4), 0 if kap == 0 else d))
    return o
def lane0(sg, body, lab):
    sg.text(f"s_cmp_lg_u32 s{S_W}, 0"); sg.text(f"s_cbranch_scc1 {lab}")
    sg.text(f"s_mov_b64 s[{S_EX}:{S_EX+1}], exec"); sg.text("s_mov_b64 exec, 1")
    for x in body: sg.text(x)
    sg.text(f"s_mov_b64 exec, s[{S_EX}:{S_EX+1}]")
    sg.text(f"{lab}:")
def phase_a(sg, Q):
    stamp(sg, 1)
    sg.add(barrier(needvm=[('x', 0), ('w', 0)])); Q.mark('B0')
    stamp(sg, 2)
    sg.addall(a_reads(0)); sg.addall(a_reads(1))
    sg.add(S(f"s_mov_b32 s{S_T1}, {f2h(QSCALE)}", [], [S_T1]))
    sg.add(S(f"s_mov_b32 s{S_T2}, {f2h(QSCALE)}", [], [S_T2]))
    for kap in range(14 if int(opt.aq) else 16):
        mf = a_mfmas(kap)
        gaps = [[] for _ in mf]
        nx = kap + 2
        if nx < (14 if int(opt.lastlag) else 16):
            if nx % 2 == 0:
                u = nx >> 1
                need = [('x', u >> 1), ('w', u)]
                while any(it.ins.vmtag in need for it in Q.q):
                    n_ = len(Q.q); weave(sg, Q, [], 1, 0); assert len(Q.q) < n_, (u, Q.q[0].after)
                while True:
                    younger = 0
                    for tg, _w in reversed(sg.vm):
                        if tg in need: break
                        younger += 1
                    n_ = len(Q.q)
                    if younger >= int(opt.la): break
                    weave(sg, Q, [], 1, 0)
                    if len(Q.q) == n_: break
                dr = str(u) in str(opt.drain)
                sg.add(barrier(needvm=need, lg0=dr)); Q.mark(f'B{u}')
                if dr: Q.mark(f'B{u+1}')
                if u in (1, 3, 5, 7): stamp(sg, 5 + u // 2, 'A')
            for i, r in enumerate(a_reads(nx)): gaps[i].append(r)
        mf[0].r |= set(R('v', AF(kap)[0], 20) + R('v', AF(kap)[1], 8))
        pos = [1, 5, 9] if kap % 2 == 0 else [3, 7]
        if int(opt.perstep) == 6: pos = [1, 4, 7] if kap % 2 == 0 else [1, 4, 8]
        if int(opt.perstep) == 7: pos = [1, 4, 6, 9] if kap % 2 == 0 else [2, 5, 8]
        if int(opt.perstep) == 8: pos = [1, 4, 6, 9]
        nkv = sum(1 for it in Q.q if it.ins.vmtag[0] in 'kv')
        room = int(opt.alim) - (128 - nkv) + (len(Q.q) - nkv)
        place(gaps, Q, pos[:max(0, room)])
        if int(opt.aonly): sg.addall([x for x in interleave(mf, gaps) if x.k not in ('mfma', 'dsrd')])
        else: sg.addall(interleave(mf, gaps))
    if int(opt.lastlag):
        need = [('w', 7)]
        while any(it.ins.vmtag in need for it in Q.q): weave(sg, Q, [], 1, 0)
        sg.add(barrier(needvm=need, lg0=False)); Q.mark('B7')
        stamp(sg, 8, 'A')
        r14, r15 = a_reads(14), a_reads(15)
        sg.addall(r14[:3] + r15[:3] + r14[3:5] + r15[3:5] + flat([[r14[k], r15[k]] for k in range(5, 9)]))
    def qfin(q, e, packed):
        b = V_QACC + (e * 5 + q) * 4
        if packed: f_ = [V(f"v_pk_mul_f32 v[{b+r}:{b+r+1}], v[{b+r}:{b+r+1}], s[{S_T1}:{S_T1+1}]", [b+r, b+r+1], [b+r, b+r+1]) for r in (0, 2)]
        else: f_ = [V(f"v_mul_f32 v{b+r}, s{S_T1}, v{b+r}", [b+r], [b+r]) for r in range(4)]
        f_.append(V(f"v_cvt_pk_bf16_f32 v{b}, v{b}, v{b+1}", [b, b+1], [b]))
        f_.append(V(f"v_cvt_pk_bf16_f32 v{b+1}, v{b+2}, v{b+3}", [b+2, b+3], [b+1]))
        f_.append(dswr('ds_write_b64', V_QW + e, ('v', b), 2, q * 4096, lgtag='qw'))
        return f_
    todo = [(q, e) for q in range(5) for e in range(2)]
    if int(opt.aq):
        m14, m15 = a_mfmas(14), a_mfmas(15)
        if not int(opt.lastlag): m14[0].r |= set(R('v', AF(14)[0], 20) + R('v', AF(14)[1], 8))
        mf = flat([[m14[k], m15[k]] for k in range(10)])
        gaps = [[] for _ in mf]
        gi = 5
        while todo and gi + 3 <= 19:
            f_ = qfin(*todo.pop(0), False)
            gaps[gi] += f_[0:2]; gaps[gi + 1] += f_[2:4]; gaps[gi + 2] += f_[4:6]; gaps[gi + 3] = [f_[6]] + gaps[gi + 3]
            gi += 3
        nkv = sum(1 for it in Q.q if it.ins.vmtag[0] in 'kv')
        place(gaps, Q, [1, 4][:max(0, int(opt.alim) - (128 - nkv))])
        sg.addall(interleave(mf, gaps))
    stamp(sg, 9, 'A')
    for q, e in todo: sg.addall(qfin(q, e, True))
    while any(it.ins.vmtag in (('k', 0, 0), ('k', 0, 1)) for it in Q.q): weave(sg, Q, [], 1, 0)
    b = barrier(lg0=False); b.needlg = ('qw',)
    sg.addall(k_reads(0)); Q.mark(('kr', 0, 0)); Q.mark(('kr', 0, 1))
    sg.add(b); Q.mark('BQ'); Q.mark('B8')
    qr = [dsrd('ds_read_b128', AQ(q, s), 4, V_XB + s, QBUF - 120 * KB + q * 4096) for q in range(5) for s in range(4)]
    return qr

def TQ(tau):
    return divmod(tau, 5) if tau < 30 else (6 + ((tau - 30) & 1), (tau - 30) >> 1)
def qk(tau):
    i, q = TQ(tau)
    o = []
    for s, t in ([(s, t) for t in range(2) for s in range(4)] if int(opt.chain) else [(s, t) for s in range(4) for t in range(2)]):
        if True:
            d = ('v', V_S + (tau & 1) * 8 + t * 4)
            o.append(mfma(d, KF(i, t * 4 + s), AQ(q, s), ('v', V_NEGM + q * 4) if s == 0 else d))
            if s == 0 and int(opt.coal) and tau > 4: o[-1].r |= set(R(*KF(i, t * 4), 16))
    return o
def pv(tau):
    i, q = TQ(tau)
    p = ('v', V_P + (tau & 1) * 4)
    o = [mfma(AO(lam, q), ('v', V_VF + (i & 1) * 32 + lam * 4), p, AO(lam, q) if i else 0) for lam in range(8)]
    if int(opt.coal) and int(opt.late0) < i < 7 + int(opt.v7s) and i > 0: o[0].r |= set(R('v', V_VF + (i & 1) * 32, 24)); o[5].r |= set(R('v', V_VF + (i & 1) * 32 + 24, 8))
    o.insert(0, mfma(LA(q), ('v', V_ONES), p, LA(q) if i else 0))
    return o
def sm(tau):
    b = V_S + (tau & 1) * 8
    p = V_P + (tau & 1) * 4
    e = [T(f"v_exp_f32 v{b+i}, v{b+i}", [b+i], [b+i]) for i in range(8)]
    c = [V(f"v_cvt_pk_bf16_f32 v{p+i}, v{b+2*i}, v{b+2*i+1}", [b+2*i, b+2*i+1], [p+i]) for i in range(4)]
    return e, c
def comb_writes(q):
    o = []
    for jd in range(1, 4):
        for e in range(2):
            u = q * 6 + (jd - 1) * 2 + e
            row = u >> 3
            o.append(dswr('ds_write_b128', V_CW + (row >> 1), AO(2 * jd + e, q), 4, (row & 1) * 32 * KB + (u & 7) * KB, lgtag=('cw', q)))
    o.insert(0, dswr('ds_write_b32', V_LW, LA(q), 1, [0, 4, 16, 20, 24][q], lgtag=('cw', q)))
    return o

def wo_dma(pos, after=None):
    o = []
    for ks in range(4):
        for half in range(2):
            base = (128 * KB if pos < 0 else pos * 32 * KB) + ks * 8 * KB + half * 4 * KB
            if pos < 0:
                pre = [S(f"s_lshl_b32 s{S_SK}, s{S_J}, 17", [S_J], [S_SK])] if ks + half == 0 else []
                h = S_SK
            else: pre, h = [], S_H + pos
            pre += [S(f"s_add_u32 s{S_SO}, s{h}, {ks*32768 + half*16384}", [h], [S_SO]), S(f"s_add_u32 m0, s{S_W1K}, {base}", [S_W1K], [M0])]
            o.append(Item(pre, dma(V_WOD, S_WO, S_SO, 0, ('wo', pos)), after))
    return o
def osib_dma(pos, qs):
    o = []
    for q in qs:
        pre = [S(f"s_lshr_b32 s{S_SK}, s{S_H+pos}, 5", [S_H+pos], [S_SK])] if q == qs[0] else []
        m0 = (f"s_add_u32 m0, s{S_W2K}, {(136 + pos*8 + q)*KB}", S_W2K) if q < 2 else (f"s_add_u32 m0, s{S_W3K}, {(100 + pos*12 + q - 2)*KB}", S_W3K)
        pre += [S(f"s_add_u32 s{S_SO}, s{S_SK}, {q*128*KB}", [S_SK], [S_SO]), S(m0[0], [m0[1]], [M0])]
        o.append(Item(pre, dma(V_OD, S_O, S_SO, 0, ('osA' if q < 2 else 'osB', pos), flags=' sc1')))
    return o
def tail_calc():
    o = []; a = o.append
    T0, T1, T2 = 252, 253, 254
    a(V(f"v_lshlrev_b32 v{T0}, 4, v{V_LANE}", [V_LANE], [T0]))
    for jd in range(1, 4):
        for ab in range(2): a(V(f"v_xor_b32 v{V_CR+2*(jd-1)+ab}, {jd << 13}, v{V_CW+ab}", [V_CW+ab], [V_CR+2*(jd-1)+ab]))
    a(V(f"v_add_u32 v{V_OL}, {96*KB}, v{T0}", [T0], [V_OL]))
    a(V(f"v_add_u32 v{V_OW}, s{S_W5K}, v{V_OL}", [V_OL, ('s', S_W5K)], [V_OW]))
    a(S(f"s_mov_b32 s{S_T0}, {102*KB}", [], [S_T0]))
    a(V(f"v_lshl_add_u32 v{V_LR}, v{V_N}, 5, s{S_T0}", [V_N, ('s', S_T0)], [V_LR]))
    if int(opt.dtch_at) < 99:
        a(V(f"v_lshrrev_b32 v{T1}, 3, v{V_LANE}", [V_LANE], [T1]))
        a(V(f"v_min_u32 v{T1}, 4, v{T1}", [T1], [T1]))
        a(V(f"v_and_b32 v{T2}, 7, v{V_LANE}", [V_LANE], [T2]))
        a(V(f"v_lshlrev_b32 v{T2}, 7, v{T2}", [T2], [T2]))
        a(V(f"v_sub_u32 v{T2}, v{T2}, v{T0}", [T2, T0], [T2]))
        a(V(f"v_lshl_add_u32 v66, v{T1}, 17, v{T2}", [T1, T2], [66]))
        a(V(f"v_add_u32 v66, v66, v{V_OST}", [66, V_OST], [66]))
        a(V(f"v_lshl_add_u32 v67, v{T1}, 13, v{T2}", [T1, T2], [67]))
        a(V(f"v_add_u32 v67, v67, v{V_PS}", [67, V_PS], [67]))
    for k in range(5): a(S(f"s_mov_b32 s{S_TAB+k}, {k*8192}", [], [S_TAB+k]))
    return o
def handoff_calc():
    o = []; a = o.append
    T0, T1, T2, T3 = 252, 253, 254, 9
    a(S(f"s_lshl_b32 s{S_T0}, s{S_J}, 12", [S_J], [S_T0]))
    a(V(f"v_subrev_u32 v{V_OD}, s{S_T0}, v{V_OST}", [V_OST, ('s', S_T0)], [V_OD]))
    a(S(f"s_lshl_b32 s{S_T0}, s{S_B}, 2", [S_B], [S_T0]))
    a(S(f"s_add_u32 s{S_T0}, s{S_T0}, s{S_J}", [S_T0, S_J], [S_T0]))
    a(S(f"s_mul_i32 s{S_T0}, s{S_T0}, {20*8*KB}", [S_T0], [S_T0]))
    a(S(f"s_mul_i32 s{S_T1}, s{S_W}, {5*8*KB}", [S_W], [S_T1]))
    a(S(f"s_lshl_b32 s{S_T2}, s{S_HKV}, 10", [S_HKV], [S_T2]))
    a(S(f"s_add_u32 s{S_T2}, s{S_T2}, s{S_T1}", [S_T2, S_T1], [S_T2]))
    a(S(f"s_add_u32 s{S_T2}, s{S_T2}, s{S_T0}", [S_T2, S_T0], [S_T2]))
    a(V(f"v_lshl_add_u32 v{V_PS}, v{V_LANE}, 4, s{S_T2}", [V_LANE, ('s', S_T2)], [V_PS]))
    tr = int(opt.otr)
    if tr:
        a(S(f"s_mul_i32 s{S_T1}, s{S_HKV}, 160", [S_HKV], [S_T1]))
        a(V(f"v_add_u32 v{T0}, s{S_T1}, v0", [0, ('s', S_T1)], [T0]))
    else:
        a(S(f"s_lshl_b32 s{S_T1}, s{S_HKV}, 2", [S_HKV], [S_T1]))
        a(S(f"s_add_u32 s{S_T1}, s{S_T1}, s{S_W}", [S_T1, S_W], [S_T1]))
        a(S(f"s_mul_i32 s{S_T1}, s{S_T1}, 40", [S_T1], [S_T1]))
        a(V(f"v_add_u32 v{T0}, s{S_T1}, v{V_LANE}", [V_LANE, ('s', S_T1)], [T0]))
    if int(opt.pairw):
        a(V(f"v_lshrrev_b32 v{T1}, 6, v{T0}", [T0], [T1]))
        a(V(f"v_cmp_lt_u32 vcc, 9, v{T1}", [T1], [VCC]))
        a(V(f"v_bfe_u32 v{T2}, v{T0}, 5, 1", [T0], [T2]))
        a(V(f"v_mul_u32_u24 v{T2}, 10, v{T2}", [T2], [T2]))
        a(V(f"v_add_u32 v{T1}, v{T1}, v{T2}", [T1, T2], [T1]))
        a(V(f"v_cndmask_b32 v{T2}, 0, 10, vcc", [VCC], [T2]))
        a(V(f"v_add_u32 v{T1}, v{T1}, v{T2}", [T1, T2], [T1]))
        a(V(f"v_and_b32 v{T0}, 31, v{T0}", [T0], [T0]))
        a(V(f"v_lshl_add_u32 v{T0}, v{T1}, 5, v{T0}", [T1, T0], [T0]))
    a(V(f"v_bfe_u32 v{T1}, v{T0}, 5, 1", [T0], [T1]))
    a(V(f"v_and_b32 v{T2}, 7, v{T0}", [T0], [T2]))
    a(V(f"v_lshl_add_u32 v{T1}, v{T1}, 3, v{T2}", [T1, T2], [T1]))
    a(V(f"v_bfe_u32 v{T2}, v{T0}, 3, 2", [T0], [T2]))
    a(V(f"v_lshrrev_b32 v{T0}, 6, v{T0}", [T0], [T0]))
    a(V(f"v_lshl_add_u32 v{T3}, v{T2}, 4, v{T1}", [T1, T2], [T3]))
    a(V(f"v_lshl_add_u32 v{V_PLD}, v{T3}, 4, s{S_T0}", [T3, ('s', S_T0)], [V_PLD]))
    a(V(f"v_lshl_add_u32 v{V_PLD}, v{T0}, 13, v{V_PLD}", [T0, V_PLD], [V_PLD]))
    a(V(f"v_mul_u32_u24 v{T3}, 52, v{T0}", [T0], [T3]))
    a(V(f"v_lshrrev_b32 v{T3}, 8, v{T3}", [T3], [T3]))
    if tr:
        a(V(f"v_and_b32 v{T1}, 8, v{T1}", [T1], [T1]))
        a(V(f"v_bfe_u32 v{T2}, v0, 2, 3", [0], [T2]))
        a(V(f"v_add_u32 v{T1}, v{T1}, v{T2}", [T1, T2], [T1]))
        a(V(f"v_and_b32 v{T2}, 3, v0", [0], [T2]))
    a(V(f"v_lshlrev_b32 v{T2}, {4 if tr else 3}, v{T2}", [T2], [T2]))
    a(V(f"v_lshl_add_u32 v{T2}, v{T3}, 6, v{T2}", [T3, T2], [T2]))
    a(V(f"v_lshl_add_u32 v{T2}, v{T1}, 10, v{T2}", [T1, T2], [T2]))
    a(V(f"v_mul_u32_u24 v{T3}, 5, v{T3}", [T3], [T3]))
    a(V(f"v_sub_u32 v{T0}, v{T0}, v{T3}", [T0, T3], [T0]))
    a(V(f"v_lshl_add_u32 v{T2}, v{T0}, 14, v{T2}", [T0, T2], [T2]))
    a(S(f"s_mul_i32 s{S_T0}, s{S_B}, 81920", [S_B], [S_T0]))
    a(S(f"s_lshl_b32 s{S_T2}, s{S_J}, 8", [S_J], [S_T2]))
    a(S(f"s_add_u32 s{S_T0}, s{S_T0}, s{S_T2}", [S_T0, S_T2], [S_T0]))
    a(V(f"v_add_u32 v{V_OUT}, s{S_T0}, v{T2}", [T2, ('s', S_T0)], [V_OUT]))
    a(V(f"v_cmp_gt_u32 vcc, 160, v0", [0], [VCC]) if tr else V(f"v_cmp_gt_u32 vcc, 40, v{V_LANE}", [V_LANE], [VCC]))
    a(V(f"v_mov_b32 v{T0}, 0x7ff00000", [], [T0]))
    a(V(f"v_cndmask_b32 v{V_PLD}, v{T0}, v{V_PLD}, vcc", [T0, V_PLD, VCC], [V_PLD]))
    a(V(f"v_cndmask_b32 v{V_OUT}, v{T0}, v{V_OUT}, vcc", [T0, V_OUT, VCC], [V_OUT]))
    for pv_, n_, sh, sg_ in ((V_P1, 4, 9, S_G1), (V_P2, 8, 11, S_G2)):
        a(V(f"v_lshl_add_u32 v{pv_}, v{V_LANE}, {sh}, s{sg_}", [V_LANE, ('s', sg_)], [pv_]))
        a(V(f"v_cmp_gt_u32 vcc, {n_}, v{V_LANE}", [V_LANE], [VCC]))
        a(V(f"v_cndmask_b32 v{pv_}, v{T0}, v{pv_}, vcc", [T0, pv_, VCC], [pv_]))
    return o
def wod_calc():
    o = []; a = o.append
    T0, T1 = 252, 253
    a(S(f"s_lshl_b32 s{S_T0}, s{S_B}, 2", [S_B], [S_T0]))
    a(S(f"s_add_u32 s{S_T0}, s{S_T0}, s{S_W}", [S_T0, S_W], [S_T0]))
    a(S(f"s_lshl_b32 s{S_T0}, s{S_T0}, 14", [S_T0], [S_T0]))
    a(S(f"s_lshl_b32 s{S_T2}, s{S_J}, 8", [S_J], [S_T2]))
    a(S(f"s_add_u32 s{S_T0}, s{S_T0}, s{S_T2}", [S_T0, S_T2], [S_T0]))
    a(V(f"v_bfe_u32 v{T0}, v{V_LANE}, 1, 4", [V_LANE], [T0]))
    a(V(f"v_and_b32 v{T1}, 1, v{V_LANE}", [V_LANE], [T1]))
    a(V(f"v_lshlrev_b32 v{T1}, 7, v{T1}", [T1], [T1]))
    a(V(f"v_lshl_add_u32 v{T0}, v{T0}, 10, v{T1}", [T0, T1], [T0]))
    a(V(f"v_add_u32 v{V_TCH}, s{S_T0}, v{T0}", [T0, ('s', S_T0)], [V_TCH]))
    a(S(f"s_and_b32 s{S_T0}, s{S_W}, 1", [S_W], [S_T0]))
    a(S(f"s_lshl_b32 s{S_T0}, s{S_T0}, 3", [S_T0], [S_T0]))
    a(V(f"v_lshl_add_u32 v{T0}, v{V_G}, 1, s{S_T0}", [V_G, ('s', S_T0)], [T0]))
    a(V(f"v_xor_b32 v{T0}, v{V_N}, v{T0}", [V_N, T0], [T0]))
    a(S(f"s_lshl_b32 s{S_T0}, s{S_J}, 8", [S_J], [S_T0]))
    a(V(f"v_lshl_add_u32 v{T0}, v{T0}, 4, s{S_T0}", [T0, ('s', S_T0)], [T0]))
    a(V(f"v_lshl_add_u32 v{T1}, s{S_W}, 2, v{V_G}", [V_G, ('s', S_W)], [T1]))
    a(V(f"v_lshl_add_u32 v{V_WOD}, v{T1}, 10, v{T0}", [T0, T1], [V_WOD]))
    return o

def phase_b(sg, Q, qr):
    NT = 8
    calc = tail_calc()[-5:]
    sg.addall(qr[:4])
    weave(sg, Q, [], int(opt.bq), 0)
    qr = qr[4:]
    for tau in range(-1, 40):
        i, q = divmod(tau, 5) if tau >= 0 else (-1, 4)
        mf = []
        bst = [int(x) for x in opt.bst.split(',')]
        if tau in bst: stamp(sg, 5 + bst.index(tau), 'B')
        if tau + 1 < 40: mf += qk(tau + 1)
        if tau - 1 >= 0: mf += pv(tau - 1)
        ds, marks = [], []
        if tau == -1: ds = qr[:8] if int(opt.b0s) else qr
        elif tau == 0 and int(opt.b0s): v0 = v_reads(0); ds = [v0[l + 8 * h] for l in range(5) for h in range(2)]
        elif tau == 1 and int(opt.b0s): v0 = v_reads(0); ds = [v0[l + 8 * h] for l in range(5, 8) for h in range(2)] + qr[8:11]; marks = [('vr', 0, 0), ('vr', 0, 1)]
        elif tau == 2 and int(opt.b0s): ds = qr[11:16] + k_reads(1)[:4]; marks = [('kr', 1, 0)]
        elif tau == 0: ds = v_reads(0); marks = [('vr', 0, 0), ('vr', 0, 1)]
        elif tau < 27:
            if q == 2: ds = k_reads(i + 1)[:4]; marks = [('kr', i + 1, 0)]
            if q == 3: ds = k_reads(i + 1)[4:] + v_reads(i + 1)[:2]; marks = [('kr', i + 1, 1)]
            if q == 4: ds = v_reads(i + 1)[2:8]; marks = [('vr', i + 1, 0)]
            if q == 0: ds = v_reads(i)[8:14]
            if q == 1 and i > 0:
                ds = v_reads(i)[14:]
                if i > int(opt.late0): Q.mark(('vr', i, 1))
        xp = None
        LT = int(opt.late0)
        lp = None
        if LT and 0 <= tau < 5 * LT + 2:
            def vo_(t_): v_ = v_reads(t_); return [v_[l + 8 * h] for l in range(8) for h in range(2)]
            marks = []
            if tau == 0: lp = list(zip([0, 1, 2, 3, 4, 5, 6, 7], vo_(0)[:8]))
            elif tau == 1: lp = list(zip([1, 1, 3, 5, 5, 7, 9, 9], vo_(0)[8:])); marks = [('vr', 0, 0), ('vr', 0, 1)]
            elif q == 3 and i + 1 <= LT: lp = list(zip([3, 5, 7, 9, 11, 13, 15, 16], k_reads(i + 1))); marks = [('kr', i + 1, 0), ('kr', i + 1, 1)]
            elif q == 0 and i <= LT: lp = list(zip([1, 3, 5, 7, 9, 11, 13, 15, 16, 16], vo_(i)[:10]))
            elif q == 1 and i <= LT: lp = list(zip([1, 1, 3, 5, 5, 7], vo_(i)[10:])); marks = [('vr', i, 0), ('vr', i, 1)]
            elif q in (2, 4) and i + 1 <= LT: lp = []
            if lp is not None: ds = [x for _, x in lp]
        if tau >= 27:
            k6, k7, v6, v7 = k_reads(6), k_reads(7), v_reads(6), v_reads(7)
            vo = [v7[l + 8 * h] for l in range(8) for h in range(2)]
            G = [1, 3, 5, 7, 9, 11, 13, 15, 16]
            def cwp(q_, second):
                w_ = comb_writes(q_)
                if int(opt.w64) and q_ < 2:
                    h_ = []
                    for x in w_[1:]:
                        m_ = re.match(r"ds_write_b128 v(\d+), a\[(\d+):\d+\] offset:(\d+)", x.t)
                        for z in range(2): h_.append(dswr('ds_write_b64', int(m_.group(1)), ('a', int(m_.group(2)) + 2 * z), 2, int(m_.group(3)) + 8 * z, lgtag=x.lgtag))
                    return list(zip([1, 3, 5, 9, 13, 16], h_[6:])) if second else list(zip([7, 1, 3, 5, 9, 13, 16], [w_[0]] + h_[:6]))
                return list(zip([1, 9, 13], w_[4:])) if second else list(zip([7, 1, 9, 13], w_[:4]))
            xp = {27: list(zip([3, 5, 9, 11, 15, 16], k6[:4] + v6[:2])),
                  28: list(zip([1, 3, 5, 7, 9, 11, 13, 15, 16], k6[4:] + k7[:5])),
                  29: list(zip(G, k7[5:] + v6[2:8])),
                  30: list(zip([1, 3, 5, 7, 9, 11, 13, 15, 16, 16], v6[8:] + vo[:2])),
                  31: list(zip([1, 3, 5, 7, 9, 11, 13, 15, 16, 16], vo[2:12])) if int(opt.v7s) else list(zip([1, 1, 3, 5, 5, 7, 9, 9, 11, 13, 13, 15, 16, 16], vo[2:])),
                  32: list(zip([1, 3, 5, 7], vo[12:])) if int(opt.v7s) else [], 33: cwp(0, 0), 34: cwp(0, 1), 35: cwp(1, 0), 36: cwp(1, 1), 37: cwp(2, 0),
                  38: cwp(2, 1) + list(zip([3, 5, 5, 7, 11, 15, 16, 16], lreads((0, 1)) + preads(0)[:4])),
                  39: list(zip([0, 2, 4, 6], comb_writes(3)[:4])) + list(zip([1, 1, 3, 3, 5, 5, 7, 7], preads(0)[4:] + preads(1)))}[tau]
            if int(opt.x1e) and tau >= 36:
                xp = {36: list(zip([1, 5, 9], comb_writes(1)[4:])),
                      37: cwp(2, 0) + list(zip([3, 5, 11, 15, 16, 16], preads(0))),
                      38: cwp(2, 1) + list(zip([3, 5, 5, 7, 11, 15, 16, 16], lreads((0, 1)) + preads(1)[:4])),
                      39: list(zip([1, 3, 5, 7], comb_writes(3)[:4])) + list(zip([0, 8], preads(1)[4:]))}[tau]
            ds = [x for _, x in xp]; marks = []
            if tau == (37 if int(opt.x1e) else 38):
                b = barrier(needvm=[('wo', -1)], lg0=False); b.needlg = (('cw', 0), ('cw', 1)); sg.add(b)
        n = len(mf)
        gaps = [[] for _ in range(n)]
        e, c = sm(tau) if 0 <= tau < 40 else ([], [])
        if n == 17:
            epos = [0, 2, 4, 6, 8, 10, 12, 14]; cpos = [3, 7, 11, 15]
            dpos = [1, 3, 5, 7, 9, 11, 13, 15] if len(ds) > 4 else [1, 3, 5, 7]
            if ds and ds[0].k == 'dswr': dpos = [1, 1, 3, 7, 9, 13, 16]
            vpos = [1, 5, 9, 13] if (tau < int(opt.even_at) or q == 1) else [1, 7, 13]
            if int(opt.bsched) and not (ds and ds[0].k == 'dswr'):
                if q == 1: dpos, vpos = [1, 3], [5, 9, 13, 16]
                elif tau < int(opt.even_at) or tau >= int(opt.even_end): dpos, vpos = ([3, 7, 11, 15, 16, 16] if q != 3 else [1, 3, 7, 11, 15, 16]), ([1, 5, 9, 13] if q != 3 else [5, 9, 13, 16])
                else: dpos, vpos = [3, 5, 9, 11, 15, 16], [1, 7, 13]
        else:
            epos = list(range(8)); cpos = [min(n - 1, x) for x in (2, 4, 6, 8)]
            dpos = [(k * n) // max(1, len(ds)) for k in range(len(ds))]
            vpos = [int(x) for x in opt.spos.split(',')] if tau < 5 else [1, 5]
        if int(opt.b0s) and tau in (1, 2): dpos, vpos = [1, 1, 3, 5, 5, 7, 11, 15, 16], [9, 13]
        if lp is not None:
            dpos = [g_ for g_, _ in lp]
            if n == 17: vpos = {0: [5, 13], 1: [9, 11, 13, 16], 2: [1, 5, 9, 13, 16], 3: [1, 9, 13], 4: [1, 5, 9, 13, 16]}[q]
        if xp is not None:
            dpos = [g_ for g_, _ in xp]; vpos = [int(x) for x in opt.wpos.split(',')] if tau >= 32 else [13]
            if tau == 27: vpos = [1, 7, 13]
        for x, p_ in zip(ds, dpos): gaps[p_].append(x)
        if tau == int(opt.nl_at):
            sg.add(V("v_mov_b32 v9, 0", [], [9]))
            Q.q.insert(0, Item([], vload(('v', V_GC), 2, 9, S_D, None, 0, flags=' sc1', tag='non')))
        if tau == int(opt.nc_at):
            assert not any(it.ins.vmtag == 'non' for it in Q.q)
            sg.add(V(f"v_readfirstlane_b32 s{S_NON}, v{V_GC}", [V_GC], [('s', S_NON)]))
            sg.add(V(f"v_readfirstlane_b32 s{S_NON+1}, v{V_GC+1}", [V_GC+1], [('s', S_NON+1)]))
            sg.add(S(f"s_cmp_eq_u64 s[{S_NON}:{S_NON+1}], 0", [S_NON, S_NON+1], []))
            sg.text("s_cbranch_scc1 L_spin_n"); sg.text("L_back_n:")
        if tau == 32: stamp_out(sg, 1) if opt.stamps == 'Z' else None
        if tau == int(opt.bar_at): sg.add(barrier(lg0=False))
        for x in ds:
            while any(it.ins.vmtag in x.needvm for it in Q.q): weave(sg, Q, [], 1, 0)
        if tau == int(opt.tch_at): Q.push([Item([], vload(('v', V_TCH + 1), 1, V_TCH, S_WO, None, 0, flags=opt.tch_flags))])
        if tau == int(opt.tlb_at):
            Q.push([Item([], vload(('v', 72), 1, V_ZERO, S_C, S_F1, 0, flags=' sc1')), Item([], vload(('v', 73), 1, V_ZERO, S_C, S_F2, 0, flags=' sc1'))])
        if tau == int(opt.cpf2_at):
            for x in ["s_getpc_b64 s[94:95]", "L_pc2:", "s_lshr_b32 s92, s2, 3", f"s_lshl_b32 s92, s92, 2", f"s_add_u32 s92, s92, s{S_W}", "s_lshl_b32 s92, s92, 7",
                      f"s_add_u32 s92, s92, {int(opt.cpf2_skip)}", "s_min_u32 s92, s92, (L_code_end - L_pc2 - 4) & 0xffffff80", "v_mov_b32 v74, s92", "global_load_dword v255, v74, s[94:95]"]: sg.text(x)
        if tau == int(opt.dtch_at):
            assert not calc
            Q.push(([Item([], vload(('v', 74), 1, 66, S_O, None, 0, flags=opt.dtch_flags))] if 'o' in opt.dtch else []) + ([Item([], vload(('v', 75), 1, 67, S_WT, None, 0, flags=opt.dtch_flags))] if 'p' in opt.dtch else []))
        if tau == int(opt.otch_at): Q.push([Item([], vload(('v', 66), 1, V_OUT, S_OUT, None, 0, flags=opt.otch_flags))])
        if tau == int(opt.wo_at): assert not calc; Q.push(wo_dma(-1))
        place(gaps, Q, vpos)
        for x, p_ in zip(e, epos): gaps[p_].append(x)
        for x, p_ in zip(c, cpos): gaps[p_].append(x)
        if tau >= int(opt.calc_at) and n == 17:
            for gi in range(17):
                if calc and calc[0].k == 'salu' and not any(y.k == 'salu' for y in gaps[gi]): gaps[gi].insert(0, calc.pop(0))
                cost = sum(8 if y.k == 'trans' else 0 if y.k == 'salu' else 4 for y in gaps[gi])
                while calc and calc[0].k != 'salu' and cost <= 4: gaps[gi].append(calc.pop(0)); cost += 4
        sg.addall(interleave(mf, gaps))
        for m in marks: Q.mark(m)

def poll(sg, lab, vaddr):
    sg.text(f"s_mov_b32 s{S_SPIN}, {opt.spin}")
    sg.text(f"{lab}:")
    sg.text(f"buffer_load_dwordx2 v[250:251], v{vaddr}, s[{S_C}:{S_C+3}], 0 offen sc1")
    sg.text(f"s_sub_u32 s{S_SPIN}, s{S_SPIN}, 1")
    sg.text("s_waitcnt vmcnt(0)")
    sg.text(f"v_cmp_ne_u64 vcc, s[{S_NON}:{S_NON+1}], v[250:251]")
    sg.text(f"s_cmp_eq_u32 s{S_SPIN}, 0")
    sg.text(f"s_cbranch_scc1 {lab}_done")
    sg.text("s_nop 2")
    sg.text(f"s_cbranch_vccnz {lab}")
    sg.text(f"{lab}_done:")
    sg.vm = []
def raise_flag(sg, stage, tag):
    ins = vstore(('v', V_GC), 2, V_P1 if stage == 1 else V_P2, S_C, None, 0, flags=' sc1')
    ins.needvm = (tag,)
    sg.add(ins)
WOF = A_Q
RES = 100
def part(q, k):
    if q == 0: return 36 + 4 * k if k < 4 else 64 + 4 * (k - 4)
    return {1: 100, 2: 164, 3: 188, 4: 100}[q] + 4 * k
def preads(q):
    o = []
    for jd in range(1, 4):
        for e in range(2):
            k = (jd - 1) * 2 + e; u = q * 6 + k; row = u >> 3
            o.append(dsrd('ds_read_b128', ('v', part(q, k)), 4, V_CR + 2 * (jd - 1) + (row >> 1), (row & 1) * 32 * KB + (u & 7) * KB))
    return o
LSA, LSB = 124, 76
def lreads(qs):
    if qs == (0, 1): return [dsrd('ds_read_b64', ('v', LSA + src * 2), 2, V_LR, src * 8 * KB) for src in range(4)]
    if qs == (2, 3): return [dsrd('ds_read_b64', ('v', LSB + src * 4), 2, V_LR, src * 8 * KB + 16) for src in range(4)]
    if qs == (4,): return [dsrd('ds_read_b32', ('v', LSB + src * 4 + 2), 1, V_LR, src * 8 * KB + 24) for src in range(4)]
    return [dsrd('ds_read_b128', ('v', LSB + src * 4), 4, V_LR, src * 8 * KB + 16) for src in range(4)]
def lsum(qs):
    w = []
    def lr(src, q): return LSA + src * 2 + q if q < 2 else LSB + src * 4 + q - 2
    LS = lr(0, qs[0])
    for q in qs:
        d = V_T0 + q
        w.append(V(f"v_add_f32 v{d}, v{lr(0,q)}, v{lr(1,q)}", [lr(0,q), lr(1,q)], [d]))
        w.append(V(f"v_add_f32 v{lr(2,q)}, v{lr(2,q)}, v{lr(3,q)}", [lr(2,q), lr(3,q)], [lr(2,q)]))
        w.append(V(f"v_add_f32 v{d}, v{d}, v{lr(2,q)}", [d, lr(2,q)], [d]))
    lo_, hi_ = LS, LS + 1
    if len(qs) == 1: lo_ = hi_ = V_T0 + qs[0]
    else:
        a_, b_, c_ = V_T0 + qs[0], V_T0 + qs[1], V_T0 + qs[-1]
        w.append(V(f"v_min3_f32 v{LS}, v{a_}, v{b_}, v{c_}", [a_, b_, c_], [LS]))
        w.append(V(f"v_add_f32 v{LS+1}, v{a_}, v{b_}", [a_, b_], [LS+1]))
        if len(qs) == 3: w.append(V(f"v_add_f32 v{LS+1}, v{LS+1}, v{c_}", [LS+1, c_], [LS+1]))
    w.append(V(f"v_cmp_nle_f32 vcc, {f2h(2.0**int(opt.lo_exp))}, v{lo_}", [lo_], [VCC]))
    w.append(S(f"s_mov_b64 s[{S_EX}:{S_EX+1}], vcc", [VCC], [S_EX, S_EX+1]))
    w.append(V(f"v_cmp_nge_f32 vcc, {f2h(2.0**int(opt.hi_exp))}, v{hi_}", [hi_], [VCC]))
    w.append(S(f"s_or_b64 vcc, vcc, s[{S_EX}:{S_EX+1}]", [VCC, S_EX, S_EX+1], [VCC]))
    w.append(S(f"s_and_b64 vcc, vcc, s[{S_GM}:{S_GM+1}]", [VCC], [VCC]))
    w.append(raw("s_cbranch_vccnz L_redo      ; softmax guard, see header"))
    for q in qs: w.append(T(f"v_rcp_f32 v{V_T0+q}, v{V_T0+q}", [V_T0+q], [V_T0+q]))
    return w
def finish(q):
    w = []
    for e in range(2):
        o_ = V_OWN[q] + e * 4
        for jd in range(1, 4):
            p_ = part(q, (jd - 1) * 2 + e)
            for r in (0, 2):
                w.append(V(f"v_pk_add_f32 v[{o_+r}:{o_+r+1}], v[{o_+r}:{o_+r+1}], v[{p_+r}:{p_+r+1}]", [o_+r, o_+r+1, p_+r, p_+r+1], [o_+r, o_+r+1]))
    o_ = V_OWN[q]
    ri = V_T0 + (q & ~1); sel = "op_sel:[0,1] op_sel_hi:[1,1]" if q & 1 else "op_sel:[0,0] op_sel_hi:[1,0]"
    for r in range(0, 8, 2):
        w.append(V(f"v_pk_mul_f32 v[{o_+r}:{o_+r+1}], v[{o_+r}:{o_+r+1}], v[{ri}:{ri+1}] {sel}", [o_+r, o_+r+1, V_T0+q], [o_+r, o_+r+1]))
    for r in range(4):
        w.append(V(f"v_cvt_pk_bf16_f32 v{o_+r}, v{o_+2*r}, v{o_+2*r+1}", [o_+2*r, o_+2*r+1], [o_+r]))
    w.append(S(f"s_mov_b32 s{S_SV}, {q*128*KB}", [], [S_SV]))
    w.append(vstore(('v', o_), 4, V_OST, S_O, S_SV, 0, flags=opt.o_flags, tag='ostA' if q < 2 else 'ostB'))
    return w
def wor():
    return [dsrd('ds_read_b64_tr_b16', ('a', WOF + (ks * 2 + e) * 4 + h * 2), 2, V_WT + 4 + e, ks * 8 * KB + h * 4096) for ks in range(4) for e in range(2) for h in range(2)]
def combine(sg, Q):
    assert not Q.q
    mf = pv(39); gaps = [[] for _ in mf]
    wr = comb_writes(3)[4:]; ls = lsum((0, 1))
    for k, x in enumerate(wr): gaps[3 * k].append(x)
    k = 0
    for gi in range(9):
        n_ = 2 - len(gaps[gi])
        while ls and (n_ > 0 or ls[0].k == 'salu') and gi < 9:
            x = ls.pop(0); gaps[gi].append(x)
            n_ -= 0 if x.k == 'salu' else 2 if x.k == 'trans' else 1
    sg.addall(interleave(mf, gaps))
    stamp(sg, 4)
    if int(opt.c3):
        sg.addall(ls + finish(0))
        b = barrier(lg0=False); b.needlg = (('cw', 2), ('cw', 3)); sg.add(b)
        w4 = comb_writes(4)
        rd = lreads((2, 3)) + preads(2) + preads(3)
        for k in range(len(rd)):
            sg.add(rd[k])
            if k % 3 == 1 and w4: sg.add(w4.pop(0))
        w = finish(1) + lsum((2, 3)) + finish(2)
        for k, x in enumerate(w4): w.insert(4 + 8 * k, x)
        sg.addall(w)
        sg.add(barrier())
        stamp(sg, 5)
        Q.push(wo_dma(0))
        rd = lreads((4,)) + preads(4)
        weave(sg, Q, rd, int(opt.cw), 5)
        sg.addall(rd + finish(3) + lsum((4,)) + finish(4))
        stamp(sg, 6)
        return
    w4 = comb_writes(4)
    w = ls + finish(0) + finish(1)
    for k, x in enumerate(w4): w.insert(min(len(w), 6 + k * 6), x)
    sg.addall(w)
    sg.add(barrier())
    stamp(sg, 5)
    Q.push(wo_dma(0))
    rd = lreads((2, 3, 4)) + preads(2) + preads(3)
    weave(sg, Q, rd, int(opt.cw), 2)
    sg.addall(rd)
    w = lsum((2, 3, 4)) + preads(4) + finish(2) + finish(3) + finish(4)
    if not int(opt.worlate):
        for k, x in enumerate(wor()): w.insert(30 + 3 * k, x)
    sg.addall(w)
    stamp(sg, 6)

def phase_c(sg, Q):
    a = sg.add
    ACC = 164
    a(barrier())
    stamp(sg, 5, 'D')
    def sflag(tag, off):
        w_ = I("s_nop 0", 'salu'); w_.needvm = (tag,); a(w_)
        for p in range(3):
            sg.text(f"s_lshr_b32 s{S_T0+p}, s{S_H+p}, 8"); sg.text(f"s_add_u32 s{S_T0+p}, s{S_T0+p}, s{S_G1}")
            if off: sg.text(f"s_add_u32 s{S_T0+p}, s{S_T0+p}, {off}")
            sg.text(f"s_atomic_swap_x2 s[{S_NON}:{S_NON+1}], s[{S_C}:{S_C+1}], s{S_T0+p}")
    raise_flag(sg, 1, 'ostA')
    for q in range(5): a(dswr('ds_write_b128', V_OW, ('v', V_OWN[q]), 4, q * KB))
    Q.push(wo_dma(1) + wo_dma(2))
    wr_ = wor()
    weave(sg, Q, wr_, int(opt.shadow), 3)
    sg.addall(wr_)
    sg.text("s_waitcnt lgkmcnt(0)"); sg.lg = []
    a(barrier())
    stamp(sg, 6, 'D')
    def check(lab, base):
        t = [f"s_lshl_b32 s{S_KVO}, 1, s{S_J}"]
        for h in range(4): t += [f"s_cmp_eq_u64 s[{base+2*h}:{base+2*h+1}], s[{S_NON}:{S_NON+1}]", f"s_cselect_b32 s{S_WC}, {1 << h}, 0", f"s_or_b32 s{S_KVO}, s{S_KVO}, s{S_WC}"]
        return t + [f"s_cmp_lg_u32 s{S_KVO}, 15"]
    PL = f"s_load_dwordx16 s[4:19], s[{S_C}:{S_C+1}], s{S_F1} glc"
    def await_(lab, base):
        t = [f"s_mov_b32 s{S_SPIN}, {opt.spin}", f"{lab}:", "s_waitcnt lgkmcnt(0)"] + check(lab, base) + [f"s_cbranch_scc0 {lab}_done", PL, f"s_sub_u32 s{S_SPIN}, s{S_SPIN}, 1",
             f"s_cmp_lg_u32 s{S_SPIN}, 0", f"s_cbranch_scc1 {lab}", "s_waitcnt lgkmcnt(0)", f"{lab}_done:"]
        for x in t: sg.text(x)
    XS = [100, 64, 204]
    def WF(k, e): return ('a', WOF + k * 8 + e * 4) if k < 4 else ('a', (k - 4) * 8 + e * 4)
    steps = [('o', k) for k in range(4)] + [('A', k) for k in range(4, 16)] + [('B', k) for k in range(4, 16)]
    QS = {'o': (0, 1, 2, 3, 4), 'A': (0, 1), 'B': (2, 3, 4)}
    def reads(n_):
        kind, k = steps[n_]; xf = XS[n_ % 3] if n_ != 3 else 12
        off = {'o': lambda q: k * 5 + q, 'A': lambda q: 40 + (k - 4) * 2 + q, 'B': lambda q: 4 + (k - 4) * 3 + q - 2}[kind]
        xr = [dsrd('ds_read_b128', ('v', xf + q * 4), 4, V_OL, off(q) * KB) for q in QS[kind]]
        if kind != 'A': return xr
        wb = (k - 4) * 8 * KB
        wr = [dsrd('ds_read_b64_tr_b16', (WF(k, e)[0], WF(k, e)[1] + h * 2), 2, V_WT + (2 if wb >= 64 * KB else 0) + e, (wb % (64 * KB)) + h * 4096) for e in range(2) for h in range(2)]
        return wr[:2] + xr[:1] + wr[2:] + xr[1:]
    def mfs(n_):
        kind, k = steps[n_]; xf = XS[n_ % 3] if n_ != 3 else 12
        o = []
        for q in QS[kind]:
            for e in range(2):
                d = ('v', ACC + (q * 2 + e) * 4)
                o.append(mfma(d, WF(k, e), ('v', xf + q * 4), 0 if n_ == 0 else d))
        o[0].r |= set(flat([R('v', xf + q * 4, 4) for q in QS[kind]]) + R(*WF(k, 0), 8))
        return o
    def pfin(q):
        b = ACC + q * 8
        return [V(f"v_cvt_pk_bf16_f32 v{b+r}, v{b+2*r}, v{b+2*r+1}", [b+2*r, b+2*r+1], [b+r]) for r in range(4)] + [vstore(('v', b), 4, V_PS, S_WT, S_TAB + q, 0, flags=' sc1', tag='pst')]
    def step(n_, nx, pos=(), extra=()):
        mf = mfs(n_); gaps = [[] for _ in mf]
        if nx is not None:
            rd = reads(nx)
            for i, r in enumerate(rd): gaps[(i * len(mf)) // len(rd) if len(rd) > len(mf) else i].append(r)
        for g_, x in extra: gaps[g_].append(x)
        place(gaps, Q, pos)
        sg.addall(interleave(mf, gaps))
    def need(tags):
        while any(it.ins.vmtag in tags for it in Q.q): weave(sg, Q, [], 1, 0)
    rd = reads(0) + reads(1) + reads(2) + reads(3)
    pa = int(opt.pa)
    sg.addall(rd[:pa]); sg.text(PL); sg.addall(rd[pa:])
    sg.text("s_waitcnt lgkmcnt(0)"); sg.lg = []
    sflag('ostB', 32)
    stamp(sg, 7, 'D'); stamp(sg, 7)
    for x in check("", 4) + ["s_cbranch_scc1 L_slowA", "L_backA:"]: sg.text(x)
    a(barrier(lg0=False))
    stamp(sg, 8, 'D')
    Q.q = osib_dma(0, (0, 1)) + osib_dma(1, (0, 1)) + osib_dma(2, (0, 1)) + Q.q
    weave(sg, Q, [], int(opt.pre2), 0)
    pb = int(opt.pb)
    for n_ in range(4): step(n_, None, [1, 4, 7] if n_ % 2 == 0 else [1, 4, 8], extra=[(pb % 10, raw(PL))] if n_ == pb // 10 else ())
    weave(sg, Q, [], min(len(Q.q), int(opt.pre1)), 0)
    await_("L_pollB", 12)
    global SLOW_A
    SLOW_A = ["L_slowA:", PL, f"s_mov_b32 s{S_SPIN}, {opt.spin}", "L_pollA:", "s_waitcnt lgkmcnt(0)"] + check("", 4) + ["s_cbranch_scc0 L_backA", PL, f"s_sub_u32 s{S_SPIN}, s{S_SPIN}, 1",
              f"s_cmp_lg_u32 s{S_SPIN}, 0", "s_cbranch_scc1 L_pollA", "s_waitcnt lgkmcnt(0)", "s_branch L_backA"]
    stamp(sg, 9, 'D')
    Q.push(osib_dma(0, (2, 3, 4)) + osib_dma(1, (2, 3, 4)) + osib_dma(2, (2, 3, 4)))
    weave(sg, Q, [], int(opt.pre0), 0)
    need([('osA', 2)])
    need([('wo', 0)])
    a(barrier(needvm=[('osA', 0), ('osA', 1), ('osA', 2), ('wo', 0)]))
    stamp(sg, 8); stamp(sg, 5, 'E')
    sg.addall(reads(4)); sg.addall(reads(5))
    N = len(steps)
    for n_ in range(4, N - 2):
        nx = n_ + 2
        kind, k = steps[nx]
        tg = None
        if kind == 'A' and k in (8, 12): tg = [('wo', k // 4 - 1)]
        if kind == 'B' and k in (4, 8, 12): tg = [('osB', k // 4 - 1)]
        if tg:
            need(tg); a(barrier(needvm=tg, lg0=False))
            if (kind, k) != ('A', 8): stamp(sg, {('A', 12): 6, ('B', 4): 7, ('B', 8): 8, ('B', 12): 9}[(kind, k)], 'E')
        ex = []
        if steps[n_] in (('B', 5), ('B', 7)):
            f_ = pfin(0 if steps[n_][1] == 5 else 1)
            ex = [(3, f_[0]), (3, f_[1]), (4, f_[2]), (4, f_[3]), (5, f_[4])]
        step(n_, nx, [1] if steps[n_][0] == 'A' else [1, 4] if not ex else [1], ex)
    m14, m15 = mfs(N - 2), mfs(N - 1)
    m15[0].r -= set(R('v', XS[(N - 1) % 3] + 12, 8))
    mf = flat([[m14[k], m15[k]] for k in range(6)])
    gaps = [[] for _ in mf]
    f_ = pfin(2); gaps[6] += f_[0:2]; gaps[7] += f_[2:4]; gaps[8] += f_[4:]
    sg.addall(interleave(mf, gaps))
    stamp(sg, 9)
    sg.addall(pfin(3) + pfin(4))
    a(S(f"s_mov_b32 s{S_SO}, 4096", [], [S_SO]))
    a(S(f"s_mov_b32 s{S_T1}, 0xffff0000", [], [S_T1]))
    a(S(f"s_mov_b32 s{S_SPIN}, {opt.spin}", [], [S_SPIN]))
    a(S(f"s_mov_b32 s{S_T2}, 0", [], [S_T2]))
    a(S(f"s_mov_b32 s{S_SK}, 0", [], [S_SK]))
    if int(opt.f2wg):
        a(barrier(needvm=['pst'], lg0=False))
        sg.text(f"s_cmp_lg_u32 s{S_W}, 0"); sg.text("s_cbranch_scc1 L_sig2"); raise_flag(sg, 2, 'pst'); sg.text("L_sig2:")
    else: raise_flag(sg, 2, 'pst')
    stamp(sg, 5, '2')
    if int(opt.otr):
        a(V("v_lshlrev_b32 v11, 4, v0", [0], [11]))
        a(V("v_and_b32 v10, 0xe0, v0", [0], [10])); a(V("v_lshlrev_b32 v10, 4, v10", [10], [10]))
        a(V("v_and_b32 v12, 7, v0", [0], [12])); a(V("v_lshl_add_u32 v10, v12, 6, v10", [12, 10], [10]))
        a(V("v_bfe_u32 v12, v0, 3, 2", [0], [12])); a(V("v_lshl_add_u32 v10, v12, 3, v10", [12, 10], [10]))
        sg.text(f"s_cmp_eq_u32 s{S_W}, 3"); sg.text("s_cbranch_scc1 L_fin")
    PB, SM = 100, 132
    def pl(h): return vload(('v', PB + 4 * h), 4, V_PLD, S_WT, S_SO if h >= 4 else None, (h & 3) * 1024, flags=' sc1')
    t = ["L_poll2:", f"s_load_dwordx16 s[4:19], s[{S_C}:{S_C+1}], s{S_F2} glc", f"s_cmp_eq_u32 s{S_SK}, 0", "s_cbranch_scc1 L_nounp", "L_unp:", "s_waitcnt vmcnt(0)"]
    for h in range(8):
        t += [f"s_bitcmp1_b32 s{S_SK}, {h}", f"s_cbranch_scc0 L_u{h}"]
        for r in range(4): t += [f"v_lshlrev_b32 v{SM+8*h+2*r}, 16, v{PB+4*h+r}", f"v_and_b32 v{SM+8*h+2*r+1}, s{S_T1}, v{PB+4*h+r}"]
        t += [f"L_u{h}:"]
    t += [f"s_cmp_eq_u32 s{S_T2}, 0xff", "s_cbranch_scc1 L_poll2_done", "L_nounp:", f"s_mov_b32 s{S_SK}, 0", f"s_sub_u32 s{S_SPIN}, s{S_SPIN}, 1", "s_waitcnt lgkmcnt(0)",
          f"s_cmp_eq_u32 s{S_SPIN}, 0", "s_cbranch_scc1 L_poll2_done"]
    for h in range(8):
        t += [f"s_cmp_lg_u64 s[{4+2*h}:{5+2*h}], s[{S_NON}:{S_NON+1}]", f"s_cbranch_scc1 L_g{h}", f"s_bitcmp1_b32 s{S_T2}, {h}", f"s_cbranch_scc1 L_g{h}",
              f"s_bitset1_b32 s{S_T2}, {h}", f"s_bitset1_b32 s{S_SK}, {h}", pl(h).t, f"L_g{h}:"]
    t += [f"s_cmp_lg_u32 s{S_T2}, 0xff", "s_cbranch_scc1 L_poll2", "s_branch L_unp", "L_poll2_done:"]
    if not int(opt.unp):
        t = ["; hand-off 2 - fetch each producer's partial result once its flag is up (bounded wait); summed below in a fixed order", "L_poll2:", f"s_load_dwordx16 s[4:19], s[{S_C}:{S_C+1}], s{S_F2} glc", f"s_sub_u32 s{S_SPIN}, s{S_SPIN}, 1", "s_waitcnt lgkmcnt(0)", f"s_cmp_eq_u32 s{S_SPIN}, 0", "s_cbranch_scc1 L_poll2_done"]
        for h in range(8):
            t += [f"s_cmp_lg_u64 s[{4+2*h}:{5+2*h}], s[{S_NON}:{S_NON+1}]", f"s_cbranch_scc1 L_g{h}", f"s_bitcmp1_b32 s{S_T2}, {h}", f"s_cbranch_scc1 L_g{h}",
                  f"s_bitset1_b32 s{S_T2}, {h}", f"s_bitset1_b32 s{S_SK}, {h}", pl(h).t, f"L_g{h}:"]
        t += [f"s_cmp_eq_u32 s{S_T2}, 0xff", "s_cbranch_scc1 L_poll2_done", f"s_mov_b32 s{S_SK}, 0", "s_branch L_poll2", "L_poll2_done:"]
        if int(opt.peek) & 2:
            t = ["s_waitcnt lgkmcnt(0)"]
            for b_ in (4, 76): t += [f"s_mov_b64 s[{b_+2*h}:{b_+2*h+1}], 0" for h in range(8)]
            t += ["L_poll2:", f"s_sub_u32 s{S_SPIN}, s{S_SPIN}, 1", f"s_cmp_eq_u32 s{S_SPIN}, 0", "s_cbranch_scc1 L_poll2_done"]
            for n_, b_ in enumerate((4, 76)):
                for h in range(8):
                    t += [f"s_cmp_lg_u64 s[{b_+2*h}:{b_+2*h+1}], s[{S_NON}:{S_NON+1}]", f"s_cbranch_scc1 L_g{n_}{h}", f"s_bitcmp1_b32 s{S_T2}, {h}", f"s_cbranch_scc1 L_g{n_}{h}",
                          f"s_bitset1_b32 s{S_T2}, {h}", pl(h).t, f"L_g{n_}{h}:"]
                t += [f"s_cmp_eq_u32 s{S_T2}, 0xff", "s_cbranch_scc1 L_poll2_done", f"s_load_dwordx16 s[{b_}:{b_+15}], s[{S_C}:{S_C+1}], s{S_F2} glc"]
            t += ["s_branch L_poll2", "L_poll2_done:"]
        t += ["s_waitcnt vmcnt(0)"]
        for h in range(8):
            for r in range(4): t += [f"v_lshlrev_b32 v{SM+8*h+2*r}, 16, v{PB+4*h+r}", f"v_and_b32 v{SM+8*h+2*r+1}, s{S_T1}, v{PB+4*h+r}"]
    for x in t: sg.text(x)
    sg.vm = []
    stamp(sg, 6, '2')
    for h in range(1, 8):
        for r in range(0, 8, 2):
            u = SM + 8 * h + r
            a(V(f"v_pk_add_f32 v[{SM+r}:{SM+r+1}], v[{SM+r}:{SM+r+1}], v[{u}:{u+1}]", [SM+r, SM+r+1, u, u+1], [SM+r, SM+r+1]))
    for r in range(4):
        a(V(f"v_cvt_pk_bf16_f32 v{SM+r}, v{SM+2*r}, v{SM+2*r+1}", [SM+2*r, SM+2*r+1], [SM+r]))
    if int(opt.otr):
        a(dswr('ds_write_b64', 10, ('v', SM), 2, 0)); a(dswr('ds_write_b64', 10, ('v', SM + 2), 2, 32))
        r_ = dsrd('ds_read_b128', ('v', SM + 4), 4, 11, 0); r_.needlg = ('*',); a(r_)
        a(vstore(('v', SM + 4), 4, V_OUT, S_OUT, None, 0, flags=opt.out_flags))
    elif not int(opt.noout):
        a(vstore(('v', SM), 2, V_OUT, S_OUT, None, 0, flags=opt.out_flags))
        a(vstore(('v', SM + 2), 2, V_OUT, S_OUT, None, 32, flags=opt.out_flags))

def out_of_line():
    t = []
    t += ["L_spin_n:", f"s_mov_b32 s{S_SPIN}, {opt.spin}", "L_spin_n1:",
          f"buffer_load_dwordx2 v[{V_GC}:{V_GC+1}], v9, s[{S_D}:{S_D+3}], 0 offen sc1", f"s_sub_u32 s{S_SPIN}, s{S_SPIN}, 1", "s_waitcnt vmcnt(0)",
          f"v_readfirstlane_b32 s{S_NON}, v{V_GC}", f"v_readfirstlane_b32 s{S_NON+1}, v{V_GC+1}", f"s_cmp_eq_u32 s{S_SPIN}, 0", "s_cbranch_scc1 L_back_n", "s_nop 2",
          f"s_cmp_eq_u64 s[{S_NON}:{S_NON+1}], 0", "s_cbranch_scc1 L_spin_n1", "s_branch L_back_n"]
    t += ["; a row sum left the safe range - start over with the true row maxima", "L_redo:", f"s_mov_b64 s[{S_GM}:{S_GM+1}], 0", f"s_mov_b32 s{S_REDO}, 1",
          "s_waitcnt vmcnt(0) lgkmcnt(0)", "s_barrier"]
    sg = Seg()
    p1 = prologue1()
    a = sg.add
    a(V(f"v_lshl_add_u32 v{V_T0}, s{S_W}, 2, v{V_G}", [V_G], [V_T0]))
    a(V(f"v_xor_b32 v{V_T1}, v{V_N}, v{V_T0}", [V_N, V_T0], [V_T1]))
    a(V(f"v_lshlrev_b32 v{V_T1}, 4, v{V_T1}", [V_T1], [V_T1]))
    a(V(f"v_lshl_add_u32 v{V_XD}, v{V_T0}, 10, v{V_T1}", [V_T0, V_T1], [V_XD]))
    a(S(f"s_and_b32 s{S_T0}, s{S_W}, 2", [S_W], [S_T0]))
    a(S(f"s_lshl_b32 s{S_T0}, s{S_T0}, 2", [S_T0], [S_T0]))
    a(V(f"v_lshl_add_u32 v{V_T1}, v{V_G}, 1, s{S_T0}", [V_G], [V_T1]))
    a(V(f"v_xor_b32 v{V_T1}, v{V_N}, v{V_T1}", [V_N, V_T1], [V_T1]))
    a(V(f"v_lshlrev_b32 v{V_T1}, 4, v{V_T1}", [V_T1], [V_T1]))
    a(V(f"v_lshl_add_u32 v{V_WD}, v{V_T0}, 13, v{V_T1}", [V_T0, V_T1], [V_WD]))
    t += sg.out + ["s_nop 4", "s_branch L_restart"]
    sg = Seg(); a = sg.add
    sg.text("; true row maxima over all keys -> negated into the accumulator seed of S")
    sg.text("L_max:")
    sg.text(f"s_mov_b32 s{S_SPIN}, m0")
    sg.drain()
    sg.text("s_barrier")
    MX, KF, AD = 76, V_VF, 84
    for q in range(5): a(V(f"v_mov_b32 v{MX+q}, 0xff800000", [], [MX+q]))
    for s in range(4): a(V(f"v_add_u32 v{AD+s}, {96*KB}, v{V_KA+s}", [V_KA+s], [AD+s]))
    a(S(f"s_mov_b32 s{S_T2}, 0", [], [S_T2]))
    sg.text("L_max_loop:"); sg.reset_hist()
    for j in range(8):
        if j % 4 == 0:
            a(S(f"s_add_u32 s{S_T1}, s{S_T2}, {(j>>2)*4096}", [S_T2], [S_T1]))
            a(S(f"s_add_u32 m0, s{S_W8K}, {96*KB + (j>>2)*4096}", [S_W8K], [M0]))
        a(dma(V_KD + (j & 3), S_K, S_T1, 1024 * (j & 3), 'mk'))
    for t_ in range(2):
        for s in range(4):
            a(dsrd('ds_read_b128', ('v', KF + (t_ * 4 + s) * 4), 4, AD + s, t_ * 4096, needvm=['mk']))
    for q in range(5):
        for t_ in range(2):
            d = ('v', 88 + t_ * 4)
            for s in range(4): a(mfma(d, ('v', KF + (t_ * 4 + s) * 4), AQ(q, s), 0 if s == 0 else d))
        for k in range(4):
            a(V(f"v_max3_f32 v{MX+q}, v{MX+q}, v{88+2*k}, v{89+2*k}", [MX+q, 88+2*k, 89+2*k], [MX+q]))
    sg.drain()
    a(S(f"s_add_u32 s{S_T2}, s{S_T2}, 8192", [S_T2], [S_T2]))
    sg.text(f"s_cmp_lt_u32 s{S_T2}, 65536"); sg.text("s_nop 4"); sg.text("s_cbranch_scc1 L_max_loop")
    sg.text("s_barrier")
    a(S(f"s_mul_i32 s{S_T0}, s{S_W}, 1280", [S_W], [S_T0]))
    a(S(f"s_add_u32 s{S_T0}, s{S_T0}, {96*KB}", [S_T0], [S_T0]))
    a(V(f"v_lshl_add_u32 v{AD}, v{V_LANE}, 2, s{S_T0}", [V_LANE], [AD]))
    a(S(f"s_mov_b32 s{S_T0}, {96*KB}", [], [S_T0]))
    a(V(f"v_lshl_add_u32 v{AD+1}, v{V_N}, 2, s{S_T0}", [V_N], [AD+1]))
    for q in range(5): a(dswr('ds_write_b32', AD, ('v', MX + q), 1, q * 256))
    a(barrier())
    for q in range(5):
        for k in range(16):
            a(dsrd('ds_read_b32', ('v', KF + k), 1, AD + 1, (k >> 2) * 1280 + q * 256 + (k & 3) * 64))
        for k in range(8):
            a(V(f"v_max3_f32 v{MX+q}, v{MX+q}, v{KF+2*k}, v{KF+2*k+1}", [MX+q, KF+2*k, KF+2*k+1], [MX+q]))
        for r in range(4):
            a(V(f"v_sub_f32 v{V_NEGM+q*4+r}, 0, v{MX+q}", [MX+q], [V_NEGM+q*4+r]))
    sg.drain()
    sg.text("s_barrier"); sg.text(f"s_mov_b32 m0, s{S_SPIN}"); sg.text("s_nop 4"); sg.text("s_branch L_back_max")
    return t + sg.out

def stamp_out(sg, n):
    if not opt.stamps or (opt.stamps == 'Z' and n > 1): return
    if opt.stamps == 'Z':
        for x in ["s_load_dwordx2 s[76:77], s[0:1], 56", "s_waitcnt lgkmcnt(0)", f"s_add_u32 s76, s76, {16<<20}", "s_addc_u32 s77, s77, 0", "s_and_b32 s77, s77, 0xffff",
                  "s_mov_b32 s78, 0x100000", "s_mov_b32 s79, 0x20000", "s_lshl_b32 s80, s2, 2", "s_add_u32 s80, s80, s32", "s_lshl_b32 s80, s80, 6", "v_mov_b32 v74, s80",
                  "v_mov_b32 v75, s3", "buffer_store_dword v75, v74, s[76:79], 0 offen sc1"]: sg.text(x)
        return
    stamp(sg, n - 1)
    t = ["s_load_dwordx2 s[4:5], s[0:1], 56", "s_waitcnt lgkmcnt(0)", f"s_add_u32 s4, s4, {16<<20}", "s_addc_u32 s5, s5, 0", "s_and_b32 s5, s5, 0xffff",
         "s_mov_b32 s6, 0x100000", "s_mov_b32 s7, 0x20000", "s_lshl_b32 s8, s2, 2", "s_add_u32 s8, s8, s32", "s_lshl_b32 s8, s8, 6", "v_mov_b32 v2, s8"]
    for i in range(n):
        t += [f"v_mov_b32 v3, s{3 if i == 0 else 76+2*i}", f"buffer_store_dword v3, v2, s[4:7], 0 offen offset:{4*i} sc1"]
    for x in t: sg.text(x)

def kernel():
    sg = Seg()
    sg.text(NAME + "_kernel:")
    sg.text("s_cmp_ge_u32 s2, 256")
    sg.text("s_cbranch_scc1 L_end")
    if opt.stamps:
        stamp(sg, 0)
    p1 = prologue1()
    sg.addall(p1[:2])
    if int(opt.cpf):
        for x in ["; pull the kernel's code into this XCD's L2 (two lines per wave, value unused)", "s_getpc_b64 s[94:95]", "L_pc:", "s_lshr_b32 s3, s2, 3", "v_lshrrev_b32 v8, 6, v0", "v_and_b32 v9, 1, v0", "v_lshl_add_u32 v8, v8, 1, v9",
                  "v_lshl_add_u32 v8, s3, 3, v8", "v_lshlrev_b32 v8, 7, v8", "v_min_u32 v8, (L_code_end - L_pc - 4) & 0xffffff80, v8"] + (["global_load_dword v255, v8, s[94:95]"] if int(opt.cpf) == 1 else ["s_mov_b64 s[12:13], s[94:95]"]): sg.text(x)
    sg.addall(p1[2:])
    if opt.stamps:
        sg.text("s_mov_b32 s3, s76")
    p2 = prologue2()
    Q = Queue()
    first = x_dma(0) + w_dma(0) if not int(opt.wfirst) else w_dma(0) + x_dma(0)
    stamp(sg, 5, 'P')
    Q.push(first)
    weave(sg, Q, [], 9, 0)
    if int(opt.cpf) == 2: sg.text("global_load_dword v255, v8, s[12:13]")
    stamp(sg, 6, 'P')
    sg.addall(p2)
    stamp(sg, 7, 'P')
    sg.text("; workgroup 0 publishes this launch's hand-off tag (a clock value, used only to tell this launch's flags from stale ones)")
    sg.text("s_cmp_lg_u32 s2, 0"); sg.text("s_cbranch_scc1 L_nocz")
    lane0(sg, ["v_mov_b32 v9, 0", f"s_memrealtime s[{S_NON}:{S_NON+1}]", "s_waitcnt lgkmcnt(0)", f"s_or_b32 s{S_NON}, s{S_NON}, 1", f"v_mov_b32 v250, s{S_NON}", f"v_mov_b32 v251, s{S_NON+1}",
               f"buffer_store_dwordx2 v[250:251], v9, s[{S_D}:{S_D+3}], 0 offen sc1"], "L_nocz")
    sg.text("s_branch L_first")
    sg.text("L_restart:")
    s2 = Seg(); s2.addall(restart_setup()); Q2 = Queue(); Q2.push(x_dma(0) + w_dma(0) if not int(opt.wfirst) else w_dma(0) + x_dma(0)); weave(s2, Q2, [], 9, 0)
    for x in s2.out: sg.text(x)
    sg.text("L_first:")
    early, late = prologue3()
    tc = wod_calc() + tail_calc()
    early = early + late + handoff_calc() + tc[:-5]
    def BB(u): return f"B{u + 1}"
    Q.push(w_dma(1) + x_dma(1) + w_dma(2) + w_dma(3) + x_dma(2) + w_dma(4) + ((w_dma(5, 'B2') + x_dma(3)) if int(opt.la) else (x_dma(3) + w_dma(5, 'B2'))) + w_dma(6, 'B3') + w_dma(7, 'B4')
           + kv_dma('k', 0, 'B5') + kv_dma('v', 0, 'B6') + kv_dma('k', 1, 'B8') + kv_dma('v', 1, 'BQ'))
    for i in range(2, 8):
        if not int(opt.nodma): Q.push(kv_dma('k', i) + kv_dma('v', i))
    n0 = int(opt.n0) - 9
    if opt.psched:
        for part_ in opt.psched.split(','):
            ni, nf = [int(x) for x in part_.split(':')]
            weave(sg, Q, [], ni, 0); n0 -= ni
            for _ in range(min(nf, len(early))): sg.add(early.pop(0))
        weave(sg, Q, [], max(0, n0), 0)
    else:
        weave(sg, Q, early, n0, (len(early) + n0 - 1) // n0)
    sg.addall(early)
    qr = phase_a(sg, Q)
    sg.addall(qr[:0])
    stamp(sg, 3)
    sg.text(f"s_cmp_eq_u32 s{S_REDO}, 0"); sg.text("s_cbranch_scc1 L_back_max")
    s2 = Seg(); s2.addall(qr)
    for x in s2.out: sg.text(x)
    sg.text("s_branch L_max")
    sg.text("L_back_max:")
    phase_b(sg, Q, qr)
    combine(sg, Q)
    phase_c(sg, Q)
    sg.text("L_fin:")
    stamp_out(sg, 11)
    sg.text("L_end:")
    sg.text("s_endpgm")
    return sg.out + ['L_code_end:'] + SLOW_A + out_of_line()

def report_kernel():
    idx, mode = opt.report.split(',')
    if mode == 'next':
        return ["report_kernel:", "s_cmp_ge_u32 s2, 1", "s_cbranch_scc1 L3_end", "s_memrealtime s[12:13]", "s_load_dwordx2 s[4:5], s[0:1], 56", "s_waitcnt lgkmcnt(0)",
                f"s_add_u32 s4, s4, {17<<20}", "s_addc_u32 s5, s5, 0", "s_and_b32 s5, s5, 0xffff", "s_mov_b32 s6, 64", "s_mov_b32 s7, 0x20000", "v_mov_b32 v1, 0", "v_mov_b32 v2, s12",
                "buffer_store_dword v2, v1, s[4:7], 0 offen", "L3_end:", "s_endpgm"]
    t = ["report_kernel:", "s_cmp_ge_u32 s2, 1", "s_cbranch_scc1 L3_end", "s_memrealtime s[16:17]", "s_load_dwordx2 s[4:5], s[0:1], 56", "s_waitcnt lgkmcnt(0)",
         f"s_add_u32 s4, s4, {16<<20}", "s_addc_u32 s5, s5, 0", "s_and_b32 s5, s5, 0xffff", "s_mov_b32 s6, 0x100000", "s_mov_b32 s7, 0x20000",
         "v_lshlrev_b32 v1, 8, v0", f"buffer_load_dword v2, v1, s[4:7], 0 offen offset:{4*int(idx)}", "buffer_load_dword v3, v1, s[4:7], 0 offen",
         "v_mov_b32 v4, 0", "v_mov_b32 v5, 0", "v_mov_b32 v6, -1", "ds_write_b32 v4, v5", "ds_write_b32 v4, v6 offset:8", "s_waitcnt vmcnt(0) lgkmcnt(0)", "s_barrier",
         "ds_min_u32 v4, v3 offset:8", "s_waitcnt lgkmcnt(0)", "s_barrier", "ds_read_b32 v6, v4 offset:8", "s_waitcnt lgkmcnt(0)", "v_sub_u32 v2, v2, v6",
         "v_lshrrev_b32 v7, 3, v0", "v_mul_u32_u24 v7, 52, v7", "v_lshrrev_b32 v7, 8, v7", "v_and_b32 v8, 1, v0", "v_sub_u32 v8, 6, v8", "v_cmp_lt_u32 vcc, v7, v8",
         "v_min_u32 v2, 10000, v2",
         ("ds_add_u32 v4, v2" if mode == 'mean' else "ds_max_u32 v4, v2"), "s_waitcnt lgkmcnt(0)", "s_barrier", "ds_read_b32 v6, v4", "s_memrealtime s[12:13]", "s_waitcnt lgkmcnt(0)",
         "v_readfirstlane_b32 s10, v6", "s_nop 4"]
    if mode == 'mean': t += ["s_mul_i32 s10, s10, 10", "s_lshr_b32 s10, s10, 8"]
    elif mode == 'max': t += ["s_mul_i32 s10, s10, 10"]
    elif mode == 'gap': t += ["ds_read_b32 v6, v4 offset:8", "s_waitcnt lgkmcnt(0)", "v_readfirstlane_b32 s11, v6", "s_nop 4", "s_sub_u32 s16, s16, s11", "s_sub_u32 s10, s16, s10",
                              "s_min_u32 s10, s10, 2000", "s_mul_i32 s10, s10, 20"]
    else: t += ["s_mov_b32 s10, 0"]
    t += ["L3_spin:", "s_memrealtime s[14:15]", "s_waitcnt lgkmcnt(0)", "s_sub_u32 s14, s14, s12",
          "s_cmp_lt_u32 s14, s10", "s_cbranch_scc1 L3_spin", "L3_end:", "s_endpgm"]
    return t

HEADER = """; Kernarg layout (64 bytes, pointers only, base s[0:1]):
;
; One launch, one workgroup (4 waves) per (batch b, query head hq); hkv = id & 7, j = (id >> 3) & 3, b = id >> 5, hq = 4*hkv + j.
;     Softmax shift m: the first pass uses m = 0, which is exact as long as nothing leaves the fp32 range.  Every row sum is
;     maxima over all 1024 keys (L_max) and repeats phase B with m = row maximum.
;  C  hand-off 1: O (bf16) goes to the three other heads of the kv group; workgroup (b, hkv, j) multiplies the four heads
;     with wo[hkv*512.., j*128..] -> partial result for 128 output columns.
;     hand-off 2: the eight partial results (one per hkv) are summed in fp32, each workgroup finishing one eighth.
;  and read with sc1.  The tag is a clock value that workgroup 0 publishes in d_debug (zero at launch), so flags left in d_ws
"""
def build():
    def fmt(l): return "\n".join(x if x.endswith(':') else "    " + x for x in l)
    nm = NAME + "_kernel"
    s = HEADER + "; @launch grid=(256,1,1) block=(256,1,1) lds=163840\n"
    if opt.report:
        s = f"; @launch kernel={nm} grid=(256,1,1) block=(256,1,1) lds=163840\n; @launch kernel=report_kernel grid=(1,1,1) block=(256,1,1) lds=64\n"
    s += '.amdgcn_target "amdgcn-amd-amdhsa--gfx950"\n.text\n'
    s += f".globl {nm}\n.p2align 8\n.type {nm},@function\n" + fmt(kernel()) + "\n"
    if opt.report: s += ".globl report_kernel\n.p2align 8\n.type report_kernel,@function\n" + fmt(report_kernel()) + "\n"
    s += f""".section .rodata,"a"
.p2align 6
.amdhsa_kernel {nm}
  .amdhsa_next_free_vgpr 512
  .amdhsa_next_free_sgpr 102
  .amdhsa_accum_offset 256
  .amdhsa_group_segment_fixed_size 0
  .amdhsa_kernarg_size 64
  .amdhsa_user_sgpr_count 2
  .amdhsa_user_sgpr_kernarg_segment_ptr 1
  .amdhsa_system_sgpr_workgroup_id_x 1
  .amdhsa_float_denorm_mode_32 3
.end_amdhsa_kernel
"""
    if opt.report:
        s += """.p2align 6
.amdhsa_kernel report_kernel
  .amdhsa_next_free_vgpr 32
  .amdhsa_next_free_sgpr 32
  .amdhsa_accum_offset 32
  .amdhsa_group_segment_fixed_size 0
  .amdhsa_kernarg_size 64
  .amdhsa_user_sgpr_count 2
  .amdhsa_user_sgpr_kernarg_segment_ptr 1
  .amdhsa_system_sgpr_workgroup_id_x 1
.end_amdhsa_kernel
"""
    return s

if __name__ == '__main__':
    out = sys.argv[1] if len(sys.argv) > 1 else 'cdna_kernels/' + NAME + '.s'
    for a_ in sys.argv[2:]:
        k, v = a_.split('=', 1)
        setattr(opt, k, (' ' + v) if k.endswith('flags') and v else v)
    HOIST[0] = int(opt.hoist)
    txt = build()
    open(out, 'w').write(txt)
```

```python
import sys, struct, re
from dsl import *

KB = 1024
NAME = 'standalone__gqa_block_cached__near_ridge'
def f2h(x): return hex(struct.unpack('<I', struct.pack('<f', x))[0])
QSCALE = 1.4426950408889634 / (128 ** 0.5)
WS_WO = 8 << 20
WS_CT = 12 << 20

class Opt:
    stamps = ''
    report = ''
    kv_flags = ''
    a_flags = ''
    n0 = 22
    warm = 1
    perstep = 6
    lo_exp = -40
    hi_exp = 40
    spin = 300000
    rt_at = 5
    bar_at = 32
    nodma = 0
    lastlag = 0
    psched = ''
    spos = '1,3,5,7'
    bq = 0
    v7s = 1
    b0s = 0
    peek = 0
    pgap = 0
    cpf2_at = 99
    cpf2_skip = 1024
    pairw = 0
    dtch_at = 99
    dtch = 'op'
    dtch_flags = ''
    wpos = '5,16'
    x1e = 0
    c3 = 0
    otr = 1
    otch_at = 99
    otch_flags = ''
    worlate = 1
    pf = 9
    noout = 0
    even_end = 23
    coal = 1
    hoist = 2
    unp = 0
    f2wg = 1
    wfirst = 0
    kvnt = 'x'
    ant = ''
    tch_flags = ''
    wsb = 0
    drain = '45'
    tlb_at = 27
    aonly = 0
    la = 10
    aq = 1
    ownlate = 1
    o_flags = ' sc1'
    f1_flags = ' sc1'
    w64 = 0
    out_flags = ''
    bsched = 1
    p1w = 1
    p2w = 0
    pollk = '19,29,39'
    dyn2 = 1
    qmaj = 1
    tch_at = 27
    even_at = 99
    pdepth = 1
    kvo = 4
    finw = 0
    alim = 16
    cpf = 1
    chain = 1
    wo_at = 33
    calc_at = 16
    nl_at = 8
    nc_at = 13
    cw = 2
    shadow = 9
    bst = '0,5,10,15,20'
    no_rt = 0
    clk = 'r'
    lg0 = 0
    vpos = '1,5,9,13'
    rot_kv = 1
    rot_a = 8
    rot_c = 1
    gl_at = 29
    gc_at = 33
opt = Opt()

S_X, S_WQ, S_K, S_V, S_O, S_WO, S_WT, S_WL, S_C, S_D, S_OUT = 4, 8, 12, 16, 20, 24, 28, 52, 56, 60, 64
S_W, S_B, S_HKV, S_HQ = 32, 33, 34, 35
S_W1K, S_W8K, S_SO, S_T0, S_T1, S_T2, S_SK, S_SV = 36, 37, 38, 39, 40, 41, 42, 43
S_TAB = 44
S_REDO, S_MT, S_NT, S_VALID, S_RT, S_SPIN = 68, 69, 70, 71, 72, 73
S_EX = 74
S_F1, S_F2, S_G1, S_G2 = 100, 101, 72, 51
S_GM = 70
S_J_UNUSED = 3
S_P = 76
S_ST = 80
V_LANE, V_N, V_G, V_T0, V_T1, V_T2, V_T3, V_T4, V_T5 = 1, 2, 3, 4, 5, 6, 7, 8, 9
V_KA, V_VA, V_KD, V_VD = 10, 14, 22, 26
V_OST, V_CW, V_LW = 28, 29, 31
V_ONES, V_NEGM, V_L, V_S, V_P, V_KF, V_VF = 32, 36, 56, 76, 92, 100, 164
V_XA, V_XB, V_WA, V_WB, V_XD, V_WD, V_QW = 76, 56, 80, 82, 84, 85, 86
V_GC = 250
S_NON = 96
V_CR, V_LR, V_WOD, V_WT, V_OL, V_OW, V_OD, V_PS, V_PLD, V_OUT, V_P1, V_P2 = 228, 234, 235, 236, 242, 243, 244, 245, 246, 247, 248, 249
V_ZERO = 9
V_TCH = 64
S_H = 52
S_W5K = 55
S_J = 69
A_O, A_Q = 0, 160
V_OWN = [132, 140, 148, 156, 56]
A_KF1, A_L = 120, 240
def AO(lam, q):
    if lam < 2: return ('v', V_OWN[q] + 4 * lam)
    return ('a', A_O + 4 * (q * 6 + lam - 2))
def KF(i, k): return ('v', V_KF + 4 * k) if i % 2 == 0 else ('a', A_KF1 + 4 * k)
def LA(q): return ('a', A_L + 4 * q) if q < 4 else ('a', 152)
def AQ(q, s): return ('a', A_Q + 4 * (q * 4 + s))

def XU(c, q):
    if c == 0: return q * 4 * KB
    if c == 1: return 20 * KB + q * 4 * KB
    if c == 2: return 128 * KB + q * 4 * KB
    return [120, 124, 148, 152, 156][q] * KB
def WU(slot, ks):
    return {0: [40, 48], 1: [56, 96], 2: [104, 112], 3: [64, 72], 4: [80, 88]}[slot][ks] * KB
WSLOT = [0, 1, 2, 3, 4, 0, 1, 2]
QBUF = 128 * KB

def V(t, r=(), w=()):
    return valu(t, r=[('v', x) if isinstance(x, int) else x for x in r], w=[('v', x) if isinstance(x, int) else x for x in w])
def T(t, r=(), w=()):
    return valu(t, r=[('v', x) for x in r], w=[('v', x) for x in w], trans=True)
def S(t, r=(), w=()):
    return salu(t, r=[('s', x) if isinstance(x, int) else x for x in r], w=[('s', x) if isinstance(x, int) else x for x in w])
M0 = ('m0', 0)
VCC = ('vcc', 0)
def flat(l): return [x for y in l for x in y]

def srd(dst, plo, add_s=None, add_imm=0, size=0):
    o = []
    if add_s is not None or add_imm:
        o.append(S(f"s_add_u32 s{dst}, s{plo}, " + (f"s{add_s}" if add_s is not None else f"{add_imm}"), [plo] + ([add_s] if add_s is not None else []), [dst]))
        o.append(S(f"s_addc_u32 s{dst+1}, s{plo+1}, 0", [plo+1], [dst+1]))
    else: assert dst == plo
    o.append(S(f"s_mov_b32 s{dst+2}, {size}", [], [dst+2]))
    o.append(S(f"s_mov_b32 s{dst+3}, 0x20000", [], [dst+3]))
    return o

KV_ORDER = [[0, 2, 1, 3, 4, 6, 5, 7], [0, 1, 3, 2, 4, 5, 7, 6], [1, 0, 2, 4, 3, 5, 6, 7], [1, 0, 2, 3, 5, 4, 6, 7]]
KV_ORDERS = [KV_ORDER,
  [[0, 4, 1, 2, 3, 5, 6, 7], [1, 0, 5, 2, 3, 4, 6, 7], [2, 0, 1, 6, 3, 4, 5, 7], [3, 0, 1, 2, 7, 4, 5, 6]],
  [[0, 1, 2, 3, 4, 5, 6, 7], [0, 1, 2, 3, 4, 5, 6, 7], [4, 5, 6, 7, 0, 1, 2, 3], [4, 5, 6, 7, 0, 1, 2, 3]],
  [[0, 2, 1, 3, 5, 4, 6, 7], [1, 0, 3, 2, 4, 6, 5, 7], [2, 1, 0, 4, 3, 5, 7, 6], [0, 1, 2, 3, 5, 4, 6, 7]],
  [[0, 1, 2, 4, 3, 5, 6, 7], [1, 0, 2, 3, 5, 4, 6, 7], [2, 0, 1, 3, 4, 6, 5, 7], [0, 1, 3, 2, 4, 5, 7, 6]],
  [[0, 1, 4, 2, 3, 5, 6, 7], [1, 0, 2, 5, 3, 4, 6, 7], [2, 0, 1, 3, 6, 4, 5, 7], [0, 3, 1, 2, 4, 7, 5, 6]],
  [[0, 1, 3, 2, 4, 5, 7, 6], [0, 1, 2, 4, 3, 5, 6, 7], [0, 2, 1, 3, 5, 4, 6, 7], [0, 2, 1, 3, 4, 6, 5, 7]],
  [[0, 1, 2, 4, 3, 5, 6, 7], [1, 0, 3, 2, 5, 4, 6, 7], [2, 3, 0, 1, 4, 6, 5, 7], [3, 2, 1, 0, 4, 5, 7, 6]],
  [[0, 1, 2, 4, 3, 5, 6, 7], [1, 2, 0, 3, 5, 4, 6, 7], [2, 0, 1, 3, 4, 6, 5, 7], [0, 3, 1, 2, 4, 5, 7, 6]]]
def kv_pack(j):
    o = KV_ORDERS[int(opt.kvo)][j] if int(opt.rot_kv) else list(range(8))
    return sum(t << (4 * i) for i, t in enumerate(o))
S_KVO = 98
V_XD4 = 204
S_WC = 99

class Item:
    def __init__(s, pre, ins, after=None): s.pre, s.ins, s.after = pre, ins, after
def x_dma(c, after=None):
    return [Item([S(f"s_add_u32 m0, s{S_W1K}, {XU(c,q)}", [S_W1K], [M0])],
                 dma(V_XD4 + c, S_X, S_TAB + q, 0, ('x', c), flags=(' nt' if 'x' in opt.ant and c < 2 else opt.a_flags)), after) for q in range(5)]
def w_dma(u, after=None):
    o = []
    for k in range(4):
        pre = []
        if k == 0:
            pre.append(S(f"s_add_u32 s{S_SK}, s{S_WC}, {(u & 6) << 19}", [S_WC], [S_SK]))
            pre.append(S(f"s_and_b32 s{S_SK}, s{S_SK}, {7 << 19}", [S_SK], [S_SK]))
            if u & 1: pre.append(S(f"s_xor_b32 s{S_SK}, s{S_SK}, {1 << 19}", [S_SK], [S_SK]))
        pre.append(S(f"s_add_u32 s{S_SO}, s{S_SK}, {k*131072}", [S_SK], [S_SO]))
        pre.append(S(f"s_add_u32 m0, s{S_W1K}, {WU(WSLOT[u], k>>1) + (k&1)*4*KB}", [S_W1K], [M0]))
        o.append(Item(pre, dma(V_WD, S_WQ, S_SO, 0, ('w', u), flags=(' nt' if 'w' in opt.ant and u < 4 else opt.a_flags)), after))
    return o
def kv_dma(kind, i, after=None):
    o = []
    base = (i & 1) * 32 * KB + (0 if kind == 'k' else 64 * KB)
    sr, so = (S_K, S_SK) if kind == 'k' else (S_V, S_SV)
    for j in range(8):
        pre = []
        if j % 4 == 0:
            if j == 0:
                pre.append(S(f"s_bfe_u32 s{so}, s{S_KVO}, {hex((3 << 16) | (4 * i))}", [S_KVO], [so]))
                pre.append(S(f"s_lshl_b32 s{so}, s{so}, 13", [so], [so]))
            else:
                pre.append(S(f"s_add_u32 s{so}, s{so}, 4096", [so], [so]))
            pre.append(S(f"s_add_u32 m0, s{S_W8K}, {base + (j>>2)*4096}", [S_W8K], [M0]))
        va = V_KD + (j & 3) if kind == 'k' else V_VD + (j & 1)
        tag = (kind + 'r', i - 2, j >> 2)
        o.append(Item(pre, dma(va, sr, so, 1024 * (j & 3), (kind, i, j >> 2), needlg=[tag], flags=(' nt' if str(i) in str(opt.kvnt) else opt.kv_flags)), after if i < 2 else tag))
    return o
def k_reads(i):
    return [dsrd('ds_read_b128', KF(i, t * 4 + s), 4, V_KA + s, (i & 1) * 32 * KB + t * 4096,
                 needvm=[('k', i, t)], lgtag=('kr', i, t)) for t in range(2) for s in range(4)]
def v_reads(i):
    return [dsrd('ds_read_b64_tr_b16', ('v', V_VF + (i & 1) * 32 + lam * 4 + h * 2), 2, V_VA + lam, (i & 1) * 32 * KB + h * 4096,
                 needvm=[('v', i, h)], lgtag=('vr', i, h)) for h in range(2) for lam in range(8)]

class Queue:
    def __init__(s): s.q = []; s.pts = set()
    def push(s, items): s.q += items
    def mark(s, p): s.pts.add(p)
    def pop(s):
        if s.q and (s.q[0].after is None or s.q[0].after in s.pts): return s.q.pop(0)
        return None

def place(gaps, Q, pos):
    last = -1
    for p in pos:
        if p >= len(gaps): continue
        it = Q.pop()
        if it is None: break
        pre = list(it.pre)
        avail = list(range(last + 1, p))
        front = []
        if not avail: front = pre
        else:
            slots = [[] for _ in avail]
            for k_, x in enumerate(reversed(pre)):
                slots[max(0, len(avail) - 1 - k_)].insert(0, x)
            for g, sl in zip(avail, slots):
                k_ = 0
                while k_ < len(gaps[g]) and gaps[g][k_].k == 'salu': k_ += 1
                gaps[g][k_:k_] = sl
        k = 0
        while k < len(gaps[p]) and gaps[p][k].k == 'salu': k += 1
        gaps[p][k:k] = front + [it.ins]
        last = p
def weave(sg, Q, fill, n, per):
    for _ in range(n):
        it = Q.pop()
        if it is not None: sg.addall(it.pre + [it.ins])
        for _ in range(per):
            if fill: sg.add(fill.pop(0))

NST = 12
def stamp(sg, i, grp='1'):
    if not opt.stamps: return
    if opt.stamps == 'Z' and i: return
    if 5 <= i <= 9 and grp != opt.stamps: return
    sg.text(f"{'s_memtime' if opt.clk == 'c' else 's_memrealtime'} s[{76+2*i}:{77+2*i}]")

def prologue1():
    o = []; a = o.append
    a(raw("s_load_dwordx2 s[92:93], s[0:1], 0"))
    a(raw("s_load_dwordx2 s[26:27], s[0:1], 24"))
    a(V(f"v_lshrrev_b32 v{V_T0}, 6, v0", [0], [V_T0]))
    a(V(f"v_and_b32 v{V_LANE}, 63, v0", [0], [V_LANE]))
    a(V(f"v_readfirstlane_b32 s{S_W}, v{V_T0}", [V_T0], [('s', S_W)]))
    a(S(f"s_and_b32 s{S_HKV}, s2, 7", [2], [S_HKV]))
    a(S(f"s_lshr_b32 s{S_B}, s2, 5", [2], [S_B]))
    a(S(f"s_bfe_u32 s{S_T0}, s2, 0x20003", [2], [S_T0]))
    a(S(f"s_mov_b32 s{S_J}, s{S_T0}", [S_T0], [S_J]))
    a(S(f"s_lshl_b32 s{S_HQ}, s{S_HKV}, 2", [S_HKV], [S_HQ]))
    a(S(f"s_add_u32 s{S_HQ}, s{S_HQ}, s{S_T0}", [S_HQ, S_T0], [S_HQ]))
    if int(opt.rot_a) == 2:
        a(S(f"s_add_u32 s{S_VALID}, s{S_T0}, s{S_B}", [S_T0, S_B], [S_VALID]))
        a(S(f"s_and_b32 s{S_VALID}, s{S_VALID}, 1", [S_VALID], [S_VALID]))
        a(S(f"s_lshl_b32 s{S_VALID}, s{S_VALID}, 2", [S_VALID], [S_VALID]))
    elif int(opt.rot_a) in (5, 6):
        a_, b_ = (S_B, S_T0) if int(opt.rot_a) == 5 else (S_T0, S_B)
        a(S(f"s_lshl_b32 s{S_VALID}, s{b_}, 1", [b_], [S_VALID]))
        a(S(f"s_add_u32 s{S_VALID}, s{S_VALID}, s{a_}", [S_VALID, a_], [S_VALID]))
        a(S(f"s_and_b32 s{S_VALID}, s{S_VALID}, 3", [S_VALID], [S_VALID]))
        a(S(f"s_lshl_b32 s{S_VALID}, s{S_VALID}, 1", [S_VALID], [S_VALID]))
    elif int(opt.rot_a) in (8, 9):
        a(S(f"s_add_u32 s{S_VALID}, s{S_T0}, s{S_B}", [S_T0, S_B], [S_VALID]))
        a(S(f"s_lshl_b32 s{S_VALID}, s{S_VALID}, 1", [S_VALID], [S_VALID]))
        a(S(f"s_and_b32 s{S_T1}, s{S_HKV}, {1 if int(opt.rot_a) == 8 else 3}", [S_HKV], [S_T1]))
        a(S(f"s_add_u32 s{S_VALID}, s{S_VALID}, s{S_T1}", [S_VALID, S_T1], [S_VALID]))
        a(S(f"s_and_b32 s{S_VALID}, s{S_VALID}, 3", [S_VALID], [S_VALID]))
        a(S(f"s_lshl_b32 s{S_VALID}, s{S_VALID}, 1", [S_VALID], [S_VALID]))
    elif int(opt.rot_a) == 7:
        a(S(f"s_add_u32 s{S_VALID}, s{S_T0}, s{S_B}", [S_T0, S_B], [S_VALID]))
        a(S(f"s_and_b32 s{S_VALID}, s{S_VALID}, 1", [S_VALID], [S_VALID]))
        a(S(f"s_lshl_b32 s{S_VALID}, s{S_VALID}, 2", [S_VALID], [S_VALID]))
        a(S(f"s_bfe_u32 s{S_T1}, s{S_B}, 0x10001", [S_B], [S_T1]))
        a(S(f"s_or_b32 s{S_VALID}, s{S_VALID}, s{S_T1}", [S_VALID, S_T1], [S_VALID]))
    elif int(opt.rot_a) == 4:
        a(S(f"s_add_u32 s{S_VALID}, s{S_T0}, s{S_B}", [S_T0, S_B], [S_VALID]))
        a(S(f"s_and_b32 s{S_VALID}, s{S_VALID}, 3", [S_VALID], [S_VALID]))
        a(S(f"s_lshl_b32 s{S_VALID}, s{S_VALID}, 1", [S_VALID], [S_VALID]))
    elif int(opt.rot_a):
        a(S(f"s_lshl_b32 s{S_T0}, s{S_T0}, 1", [S_T0], [S_T0]))
        a(S(f"s_add_u32 s{S_VALID}, s{S_T0}, s{S_B}", [S_T0, S_B], [S_VALID]))
        a(S(f"s_and_b32 s{S_VALID}, s{S_VALID}, 7", [S_VALID], [S_VALID]))
    else:
        a(S(f"s_mov_b32 s{S_VALID}, 0", [], [S_VALID]))
    a(V(f"v_and_b32 v{V_N}, 15, v{V_LANE}", [V_LANE], [V_N]))
    a(V(f"v_lshrrev_b32 v{V_G}, 4, v{V_LANE}", [V_LANE], [V_G]))
    a(S(f"s_lshl_b32 s{S_W1K}, s{S_W}, 10", [S_W], [S_W1K]))
    a(S(f"s_lshl_b32 s{S_W8K}, s{S_W}, 13", [S_W], [S_W8K]))
    a(V(f"v_lshl_add_u32 v{V_T0}, s{S_W}, 2, v{V_G}", [V_G, ('s', S_W)], [V_T0]))
    a(V(f"v_xor_b32 v{V_T1}, v{V_N}, v{V_T0}", [V_N, V_T0], [V_T1]))
    a(V(f"v_lshlrev_b32 v{V_T1}, 4, v{V_T1}", [V_T1], [V_T1]))
    a(V(f"v_lshl_add_u32 v{V_XD}, v{V_T0}, 10, v{V_T1}", [V_T0, V_T1], [V_XD]))
    a(S(f"s_and_b32 s{S_T0}, s{S_W}, 2", [S_W], [S_T0]))
    a(S(f"s_lshl_b32 s{S_T0}, s{S_T0}, 2", [S_T0], [S_T0]))
    a(V(f"v_lshl_add_u32 v{V_T1}, v{V_G}, 1, s{S_T0}", [V_G, ('s', S_T0)], [V_T1]))
    a(V(f"v_xor_b32 v{V_T1}, v{V_N}, v{V_T1}", [V_N, V_T1], [V_T1]))
    a(V(f"v_lshlrev_b32 v{V_T1}, 4, v{V_T1}", [V_T1], [V_T1]))
    a(V(f"v_lshl_add_u32 v{V_WD}, v{V_T0}, 13, v{V_T1}", [V_T0, V_T1], [V_WD]))
    a(S(f"s_mul_i32 s{S_T0}, s{S_B}, 81920", [S_B], [S_T0]))
    a(S(f"s_lshl_b32 s{S_T2}, s{S_HQ}, 8", [S_HQ], [S_T2]))
    a(S(f"s_sub_u32 s{S_T1}, 4194304, s{S_T2}", [S_T2], [S_T1]))
    a(S(f"s_mov_b32 s{S_REDO}, 0", [], [S_REDO]))
    a(S(f"s_lshl_b32 s{S_WC}, s{S_VALID}, 19", [S_VALID], [S_WC]))
    a(S(f"s_mov_b64 s[{S_GM}:{S_GM+1}], -1", [], [S_GM, S_GM+1]))
    o += restart_setup()
    a(S(f"s_mov_b32 s{S_X+2}, 81920", [], [S_X+2])); a(S(f"s_mov_b32 s{S_X+3}, 0x20000", [], [S_X+3]))
    a(S(f"s_mov_b32 s{S_WQ+2}, s{S_T1}", [S_T1], [S_WQ+2])); a(S(f"s_mov_b32 s{S_WQ+3}, 0x20000", [], [S_WQ+3]))
    a(raw("s_waitcnt lgkmcnt(0)", 'wait'))
    o += srd(S_X, 92, add_s=S_T0, size=81920)[:2]
    o += srd(S_WQ, 26, add_s=S_T2, size=0)[:2]
    for dst, off in ((S_K, 8), (S_V, 16), (S_WO, 32), (S_OUT, 40), (S_D, 48), (S_O, 56)):
        a(raw(f"s_load_dwordx2 s[{dst}:{dst+1}], s[0:1], {off}"))
    return o

def restart_setup():
    o = [S(f"s_mov_b32 s{S_TAB+q}, {q*16384}", [], [S_TAB+q]) for q in range(5)]
    for c in range(4):
        o.append(S(f"s_lshr_b32 s{S_SO}, s{S_WC}, 12", [S_WC], [S_SO]))
        o.append(S(f"s_add_u32 s{S_SO}, s{S_SO}, {c*256}", [S_SO], [S_SO]))
        o.append(S(f"s_and_b32 s{S_SO}, s{S_SO}, 0x300", [S_SO], [S_SO]))
        o.append(V(f"v_add_u32 v{V_XD4+c}, s{S_SO}, v{V_XD}", [V_XD, ('s', S_SO)], [V_XD4+c]))
    return o

def prologue2():
    o = []; a = o.append
    a(raw("s_waitcnt lgkmcnt(0)", 'wait'))
    a(S(f"s_lshl_b32 s{S_T0}, s{S_B}, 3", [S_B], [S_T0]))
    a(S(f"s_add_u32 s{S_T0}, s{S_T0}, s{S_HKV}", [S_T0, S_HKV], [S_T0]))
    a(S(f"s_lshl_b32 s{S_T0}, s{S_T0}, 2", [S_T0], [S_T0]))
    a(S(f"s_add_u32 s{S_T0}, s{S_T0}, s{S_W}", [S_T0, S_W], [S_T0]))
    a(S(f"s_lshl_b32 s{S_T0}, s{S_T0}, 16", [S_T0], [S_T0]))
    o += srd(S_K, S_K, add_s=S_T0, size=65536)
    o += srd(S_V, S_V, add_s=S_T0, size=65536)
    a(S(f"s_lshl_b32 s{S_T0}, s{S_HKV}, 19", [S_HKV], [S_T0]))
    o += srd(S_WO, S_WO, add_s=S_T0, size=524288)
    o += srd(S_WT, S_O, add_imm=WS_WO, size=8*4*20*8*1024)
    o += srd(S_C, S_O, add_imm=WS_CT, size=262144)
    o += srd(S_O, S_O, size=8*5*128*1024)
    o += srd(S_D, S_D, size=256)
    o += srd(S_OUT, S_OUT, size=655360)
    a(S(f"s_bitcmp1_b32 s{S_HQ}, 0", [S_HQ], []))
    a(S(f"s_mov_b32 s{S_T0}, {hex(kv_pack(0))}", [], [S_T0]))
    a(S(f"s_cselect_b32 s{S_T0}, {hex(kv_pack(1))}, s{S_T0}", [S_T0], [S_T0]))
    a(S(f"s_mov_b32 s{S_T1}, {hex(kv_pack(2))}", [], [S_T1]))
    a(S(f"s_cselect_b32 s{S_T1}, {hex(kv_pack(3))}, s{S_T1}", [S_T1], [S_T1]))
    a(S(f"s_bitcmp1_b32 s{S_HQ}, 1", [S_HQ], []))
    a(S(f"s_cselect_b32 s{S_KVO}, s{S_T1}, s{S_T0}", [S_T0, S_T1], [S_KVO]))
    for p in range(3):
        a(S(f"s_cmp_le_u32 s{S_J}, {p}", [S_J], []))
        a(S(f"s_cselect_b32 s{S_T1}, {p + 1}, {p}", [], [S_T1]))
        a(S(f"s_lshl_b32 s{S_H+p}, s{S_T1}, 17", [S_T1], [S_H+p]))
    a(S(f"s_mul_i32 s{S_W5K}, s{S_W}, 5120", [S_W], [S_W5K]))
    a(S(f"s_lshl_b32 s{S_T0}, s{S_B}, 14", [S_B], [S_T0]))
    a(S(f"s_lshl_b32 s{S_T1}, s{S_W}, 7", [S_W], [S_T1]))
    a(S(f"s_add_u32 s{S_T0}, s{S_T0}, s{S_T1}", [S_T0, S_T1], [S_T0]))
    a(S(f"s_lshl_b32 s{S_F1}, s{S_HQ}, 9", [S_HQ], [S_F1]))
    a(S(f"s_add_u32 s{S_F1}, s{S_F1}, s{S_T0}", [S_F1, S_T0], [S_F1]))
    a(S(f"s_add_u32 s{S_F2}, s{S_F1}, 131072", [S_F1], [S_F2]))
    if int(opt.f2wg): a(S(f"s_andn2_b32 s{S_F2}, s{S_F2}, 0x180", [S_F2], [S_F2]))
    a(S(f"s_lshl_b32 s{S_T1}, s{S_HKV}, 11", [S_HKV], [S_T1]))
    a(S(f"s_lshl_b32 s{S_G1}, s{S_J}, 3", [S_J], [S_G1]))
    a(S(f"s_add_u32 s{S_G1}, s{S_G1}, s{S_T1}", [S_G1, S_T1], [S_G1]))
    a(S(f"s_add_u32 s{S_G1}, s{S_G1}, s{S_T0}", [S_G1, S_T0], [S_G1]))
    a(S(f"s_lshl_b32 s{S_T1}, s{S_J}, 9", [S_J], [S_T1]))
    a(S(f"s_lshl_b32 s{S_G2}, s{S_HKV}, 3", [S_HKV], [S_G2]))
    a(S(f"s_add_u32 s{S_G2}, s{S_G2}, s{S_T1}", [S_G2, S_T1], [S_G2]))
    a(S(f"s_add_u32 s{S_G2}, s{S_G2}, s{S_T0}", [S_G2, S_T0], [S_G2]))
    a(S(f"s_add_u32 s{S_G2}, s{S_G2}, 131072", [S_G2], [S_G2]))
    return o

def prologue3():
    o = []; a = o.append
    a(S(f"s_bfe_u32 s{S_T1}, s{S_WC}, 0x10013", [S_WC], [S_T1]))
    a(S(f"s_lshl_b32 s{S_T1}, s{S_T1}, 3", [S_T1], [S_T1]))
    a(V(f"v_xor_b32 v{V_T1}, s{S_T1}, v{V_N}", [V_N, ('s', S_T1)], [V_T1]))
    a(V(f"v_xor_b32 v{V_T0}, v{V_G}, v{V_T1}", [V_G, V_T1], [V_T0]))
    a(V(f"v_lshlrev_b32 v{V_T0}, 4, v{V_T0}", [V_T0], [V_T0]))
    a(V(f"v_lshl_add_u32 v{V_XA}, v{V_N}, 8, v{V_T0}", [V_N, V_T0], [V_XA]))
    for s in range(1, 4): a(V(f"v_xor_b32 v{V_XA+s}, {64*s}, v{V_XA}", [V_XA], [V_XA+s]))
    for s in range(4): a(V(f"v_add_u32 v{V_XB+s}, {120*KB}, v{V_XA+s}", [V_XA+s], [V_XB+s]))
    a(V(f"v_lshrrev_b32 v{V_T2}, 2, v{V_N}", [V_N], [V_T2]))
    a(V(f"v_bfe_u32 v{V_T3}, v{V_N}, 1, 1", [V_N], [V_T3]))
    a(V(f"v_and_b32 v{V_T4}, 1, v{V_N}", [V_N], [V_T4]))
    a(V(f"v_lshlrev_b32 v{V_T4}, 3, v{V_T4}", [V_T4], [V_T4]))
    a(V(f"v_and_b32 v{V_T5}, 1, v{V_G}", [V_G], [V_T5]))
    a(V(f"v_lshl_add_u32 v{V_T5}, v{V_T5}, 2, v{V_T2}", [V_T5, V_T2], [V_T5]))
    a(V(f"v_lshlrev_b32 v{V_T5}, 1, v{V_T5}", [V_T5], [V_T5]))
    a(S(f"s_lshl_b32 s{S_T1}, s{S_W}, 2", [S_W], [S_T1]))
    a(V(f"v_lshl_add_u32 v{V_T1}, v{V_G}, 3, v{V_T2}", [V_G, V_T2], [V_T1]))
    a(V(f"v_lshl_add_u32 v{V_T1}, v{V_T1}, 8, v{V_T4}", [V_T1, V_T4], [V_T1]))
    a(V(f"v_add_u32 v{V_T3}, s{S_T1}, v{V_T3}", [V_T3, ('s', S_T1)], [V_T3]))
    a(V(f"v_xor_b32 v{V_T3}, v{V_T3}, v{V_T5}", [V_T3, V_T5], [V_T3]))
    a(V(f"v_lshl_add_u32 v{V_T0}, v{V_T3}, 4, v{V_T1}", [V_T3, V_T1], [V_T0]))
    a(V(f"v_add_u32 v{V_WA}, {40*KB}, v{V_T0}", [V_T0], [V_WA]))
    a(V(f"v_add_u32 v{V_WB}, {96*KB}, v{V_T0}", [V_T0], [V_WB]))
    a(V(f"v_xor_b32 v{V_WA+1}, 32, v{V_WA}", [V_WA], [V_WA+1]))
    a(V(f"v_xor_b32 v{V_WB+1}, 32, v{V_WB}", [V_WB], [V_WB+1]))
    a(V(f"v_lshl_add_u32 v{V_T1}, v{V_G}, 2, v{V_T2}", [V_G, V_T2], [V_T1]))
    n_early = len(o)
    for s in range(4):
        a(V(f"v_add_u32 v{V_KA+s}, s{S_W8K}, v{V_XA+s}", [V_XA+s, ('s', S_W8K)], [V_KA+s]))
    a(V(f"v_lshl_add_u32 v{V_T1}, v{V_T1}, 8, v{V_T4}", [V_T1, V_T4], [V_T1]))
    a(V(f"v_lshl_add_u32 v{V_WT}, v{V_T3}, 4, v{V_T1}", [V_T3, V_T1], [V_WT]))
    a(S(f"s_add_u32 s{S_T2}, s{S_W8K}, {64*KB}", [S_W8K], [S_T2]))
    a(V(f"v_add_u32 v{V_VA}, s{S_T2}, v{V_WT}", [V_WT, ('s', S_T2)], [V_VA]))
    for lam in range(1, 8): a(V(f"v_xor_b32 v{V_VA+lam}, {32*lam}, v{V_VA}", [V_VA], [V_VA+lam]))
    a(V(f"v_xor_b32 v{V_WT+1}, 32, v{V_WT}", [V_WT], [V_WT+1]))
    for e in range(2):
        a(V(f"v_add_u32 v{V_WT+2+e}, {64*KB}, v{V_WT+e}", [V_WT+e], [V_WT+2+e]))
        a(V(f"v_add_u32 v{V_WT+4+e}, {128*KB}, v{V_WT+e}", [V_WT+e], [V_WT+4+e]))
    a(V(f"v_xor_b32 v{V_T0}, v{V_N}, v{V_G}", [V_N, V_G], [V_T0]))
    a(V(f"v_lshlrev_b32 v{V_T0}, 4, v{V_T0}", [V_T0], [V_T0]))
    a(V(f"v_lshl_add_u32 v{V_KD}, v{V_G}, 8, v{V_T0}", [V_G, V_T0], [V_KD]))
    for j in range(1, 4):
        a(V(f"v_xor_b32 v{V_KD+j}, {64*j}, v{V_KD}", [V_KD], [V_KD+j]))
    a(V(f"v_lshlrev_b32 v{V_T0}, 1, v{V_G}", [V_G], [V_T0]))
    a(V(f"v_xor_b32 v{V_T0}, v{V_N}, v{V_T0}", [V_N, V_T0], [V_T0]))
    a(V(f"v_lshlrev_b32 v{V_T0}, 4, v{V_T0}", [V_T0], [V_T0]))
    a(V(f"v_lshl_add_u32 v{V_VD}, v{V_G}, 8, v{V_T0}", [V_G, V_T0], [V_VD]))
    a(V(f"v_xor_b32 v{V_VD+1}, 128, v{V_VD}", [V_VD], [V_VD+1]))
    a(V(f"v_lshrrev_b32 v{V_T0}, 1, v{V_G}", [V_G], [V_T0]))
    a(V(f"v_add_u32 v{V_T0}, s{S_T1}, v{V_T0}", [V_T0, ('s', S_T1)], [V_T0]))
    a(V(f"v_xor_b32 v{V_T0}, v{V_T0}, v{V_N}", [V_T0, V_N], [V_T0]))
    a(V(f"v_lshlrev_b32 v{V_T0}, 4, v{V_T0}", [V_T0], [V_T0]))
    a(V(f"v_lshl_add_u32 v{V_T0}, v{V_N}, 8, v{V_T0}", [V_N, V_T0], [V_T0]))
    a(V(f"v_and_b32 v{V_T1}, 1, v{V_G}", [V_G], [V_T1]))
    a(V(f"v_lshl_add_u32 v{V_T0}, v{V_T1}, 3, v{V_T0}", [V_T0, V_T1], [V_T0]))
    a(V(f"v_add_u32 v{V_QW}, {QBUF}, v{V_T0}", [V_T0], [V_QW]))
    a(V(f"v_xor_b32 v{V_QW+1}, 32, v{V_QW}", [V_QW], [V_QW+1]))
    a(V(f"v_lshl_add_u32 v{V_CW}, v{V_LANE}, 4, s{S_W8K}", [V_LANE, ('s', S_W8K)], [V_CW]))
    a(V(f"v_add_u32 v{V_CW+1}, {64*KB}, v{V_CW}", [V_CW], [V_CW+1]))
    a(S(f"s_add_u32 s{S_T0}, s{S_W8K}, {102*KB}", [S_W8K], [S_T0]))
    a(V(f"v_lshl_add_u32 v{V_LW}, v{V_LANE}, 5, s{S_T0}", [V_LANE, ('s', S_T0)], [V_LW]))
    a(S(f"s_mul_i32 s{S_T0}, s{S_B}, 640", [S_B], [S_T0]))
    a(S(f"s_lshl_b32 s{S_T2}, s{S_HQ}, 2", [S_HQ], [S_T2]))
    a(S(f"s_add_u32 s{S_T0}, s{S_T0}, s{S_T2}", [S_T0, S_T2], [S_T0]))
    a(S(f"s_add_u32 s{S_T0}, s{S_T0}, s{S_W}", [S_T0, S_W], [S_T0]))
    a(S(f"s_lshl_b32 s{S_T0}, s{S_T0}, 10", [S_T0], [S_T0]))
    a(V(f"v_lshl_add_u32 v{V_OST}, v{V_LANE}, 4, s{S_T0}", [V_LANE, ('s', S_T0)], [V_OST]))
    a(V(f"v_cmp_eq_u32 vcc, 0, v{V_N}", [V_N], [VCC]))
    a(V(f"v_mov_b32 v{V_T0}, 0x3f803f80", [], [V_T0]))
    for i in range(4):
        a(V(f"v_cndmask_b32 v{V_ONES+i}, 0, v{V_T0}, vcc", [V_T0, VCC], [V_ONES+i]))
    for i in range(0, 20, 2):
        a(V(f"v_mov_b64 v[{V_NEGM+i}:{V_NEGM+i+1}], 0", [], [V_NEGM+i, V_NEGM+i+1]))
    return o[:n_early], o[n_early:]

V_QACC = V_VF
def AF(kap):
    return [(100, 120), (128, 148), (208, 156)][kap % 3]
def a_reads(kap):
    u, ks = kap >> 1, kap & 1
    c, s = u >> 1, kap & 3
    xf, wf = AF(kap)
    wb = WU(WSLOT[u], ks)
    xr = []
    for q in range(5):
        xb = XU(c, q)
        reg, base = (V_XA, 0) if xb < 64 * KB else (V_XB, 120 * KB)
        xr.append(dsrd('ds_read_b128', ('v', xf + q * 4), 4, reg + s, xb - base))
    wr = []
    for e in range(2):
        for h in range(2):
            reg, base = (V_WA, 40 * KB) if wb < 96 * KB else (V_WB, 96 * KB)
            wr.append(dsrd('ds_read_b64_tr_b16', ('v', wf + e * 4 + h * 2), 2, reg + e, wb - base + h * 1024))
    return wr[:2] + xr[:1] + wr[2:] + xr[1:]
def a_mfmas(kap):
    o = []
    xf, wf = AF(kap)
    for q in range(5):
        for e in range(2):
            d = ('v', V_QACC + (e * 5 + q) * 4)
            o.append(mfma(d, ('v', wf + e * 4), ('v', xf + q * 4), 0 if kap == 0 else d))
    return o
def lane0(sg, body, lab):
    sg.text(f"s_cmp_lg_u32 s{S_W}, 0"); sg.text(f"s_cbranch_scc1 {lab}")
    sg.text(f"s_mov_b64 s[{S_EX}:{S_EX+1}], exec"); sg.text("s_mov_b64 exec, 1")
    for x in body: sg.text(x)
    sg.text(f"s_mov_b64 exec, s[{S_EX}:{S_EX+1}]")
    sg.text(f"{lab}:")
def phase_a(sg, Q):
    stamp(sg, 1)
    sg.add(barrier(needvm=[('x', 0), ('w', 0)])); Q.mark('B0')
    stamp(sg, 2)
    sg.addall(a_reads(0)); sg.addall(a_reads(1))
    sg.add(S(f"s_mov_b32 s{S_T1}, {f2h(QSCALE)}", [], [S_T1]))
    sg.add(S(f"s_mov_b32 s{S_T2}, {f2h(QSCALE)}", [], [S_T2]))
    for kap in range(14 if int(opt.aq) else 16):
        mf = a_mfmas(kap)
        gaps = [[] for _ in mf]
        nx = kap + 2
        if nx < (14 if int(opt.lastlag) else 16):
            if nx % 2 == 0:
                u = nx >> 1
                need = [('x', u >> 1), ('w', u)]
                while any(it.ins.vmtag in need for it in Q.q):
                    n_ = len(Q.q); weave(sg, Q, [], 1, 0); assert len(Q.q) < n_, (u, Q.q[0].after)
                while True:
                    younger = 0
                    for tg, _w in reversed(sg.vm):
                        if tg in need: break
                        younger += 1
                    n_ = len(Q.q)
                    if younger >= int(opt.la): break
                    weave(sg, Q, [], 1, 0)
                    if len(Q.q) == n_: break
                dr = str(u) in str(opt.drain)
                sg.add(barrier(needvm=need, lg0=dr)); Q.mark(f'B{u}')
                if dr: Q.mark(f'B{u+1}')
                if u in (1, 3, 5, 7): stamp(sg, 5 + u // 2, 'A')
            for i, r in enumerate(a_reads(nx)): gaps[i].append(r)
        mf[0].r |= set(R('v', AF(kap)[0], 20) + R('v', AF(kap)[1], 8))
        pos = [1, 5, 9] if kap % 2 == 0 else [3, 7]
        if int(opt.perstep) == 6: pos = [1, 4, 7] if kap % 2 == 0 else [1, 4, 8]
        if int(opt.perstep) == 7: pos = [1, 4, 6, 9] if kap % 2 == 0 else [2, 5, 8]
        if int(opt.perstep) == 8: pos = [1, 4, 6, 9]
        nkv = sum(1 for it in Q.q if it.ins.vmtag[0] in 'kv')
        room = int(opt.alim) - (128 - nkv) + (len(Q.q) - nkv)
        place(gaps, Q, pos[:max(0, room)])
        if int(opt.aonly): sg.addall([x for x in interleave(mf, gaps) if x.k not in ('mfma', 'dsrd')])
        else: sg.addall(interleave(mf, gaps))
    if int(opt.lastlag):
        need = [('w', 7)]
        while any(it.ins.vmtag in need for it in Q.q): weave(sg, Q, [], 1, 0)
        sg.add(barrier(needvm=need, lg0=False)); Q.mark('B7')
        stamp(sg, 8, 'A')
        r14, r15 = a_reads(14), a_reads(15)
        sg.addall(r14[:3] + r15[:3] + r14[3:5] + r15[3:5] + flat([[r14[k], r15[k]] for k in range(5, 9)]))
    def qfin(q, e, packed):
        b = V_QACC + (e * 5 + q) * 4
        if packed: f_ = [V(f"v_pk_mul_f32 v[{b+r}:{b+r+1}], v[{b+r}:{b+r+1}], s[{S_T1}:{S_T1+1}]", [b+r, b+r+1], [b+r, b+r+1]) for r in (0, 2)]
        else: f_ = [V(f"v_mul_f32 v{b+r}, s{S_T1}, v{b+r}", [b+r], [b+r]) for r in range(4)]
        f_.append(V(f"v_cvt_pk_bf16_f32 v{b}, v{b}, v{b+1}", [b, b+1], [b]))
        f_.append(V(f"v_cvt_pk_bf16_f32 v{b+1}, v{b+2}, v{b+3}", [b+2, b+3], [b+1]))
        f_.append(dswr('ds_write_b64', V_QW + e, ('v', b), 2, q * 4096, lgtag='qw'))
        return f_
    todo = [(q, e) for q in range(5) for e in range(2)]
    if int(opt.aq):
        m14, m15 = a_mfmas(14), a_mfmas(15)
        if not int(opt.lastlag): m14[0].r |= set(R('v', AF(14)[0], 20) + R('v', AF(14)[1], 8))
        mf = flat([[m14[k], m15[k]] for k in range(10)])
        gaps = [[] for _ in mf]
        gi = 5
        while todo and gi + 3 <= 19:
            f_ = qfin(*todo.pop(0), False)
            gaps[gi] += f_[0:2]; gaps[gi + 1] += f_[2:4]; gaps[gi + 2] += f_[4:6]; gaps[gi + 3] = [f_[6]] + gaps[gi + 3]
            gi += 3
        nkv = sum(1 for it in Q.q if it.ins.vmtag[0] in 'kv')
        place(gaps, Q, [1, 4][:max(0, int(opt.alim) - (128 - nkv))])
        sg.addall(interleave(mf, gaps))
    stamp(sg, 9, 'A')
    for q, e in todo: sg.addall(qfin(q, e, True))
    while any(it.ins.vmtag in (('k', 0, 0), ('k', 0, 1)) for it in Q.q): weave(sg, Q, [], 1, 0)
    b = barrier(lg0=False); b.needlg = ('qw',)
    sg.addall(k_reads(0)); Q.mark(('kr', 0, 0)); Q.mark(('kr', 0, 1))
    sg.add(b); Q.mark('BQ'); Q.mark('B8')
    qr = [dsrd('ds_read_b128', AQ(q, s), 4, V_XB + s, QBUF - 120 * KB + q * 4096) for q in range(5) for s in range(4)]
    return qr

def TQ(tau):
    return divmod(tau, 5) if tau < 30 else (6 + ((tau - 30) & 1), (tau - 30) >> 1)
def qk(tau):
    i, q = TQ(tau)
    o = []
    for s, t in ([(s, t) for t in range(2) for s in range(4)] if int(opt.chain) else [(s, t) for s in range(4) for t in range(2)]):
        if True:
            d = ('v', V_S + (tau & 1) * 8 + t * 4)
            o.append(mfma(d, KF(i, t * 4 + s), AQ(q, s), ('v', V_NEGM + q * 4) if s == 0 else d))
            if s == 0 and int(opt.coal) and tau > 4: o[-1].r |= set(R(*KF(i, t * 4), 16))
    return o
def pv(tau):
    i, q = TQ(tau)
    p = ('v', V_P + (tau & 1) * 4)
    o = [mfma(AO(lam, q), ('v', V_VF + (i & 1) * 32 + lam * 4), p, AO(lam, q) if i else 0) for lam in range(8)]
    if int(opt.coal) and 0 < i < 7 + int(opt.v7s): o[0].r |= set(R('v', V_VF + (i & 1) * 32, 24)); o[5].r |= set(R('v', V_VF + (i & 1) * 32 + 24, 8))
    o.insert(0, mfma(LA(q), ('v', V_ONES), p, LA(q) if i else 0))
    return o
def sm(tau):
    b = V_S + (tau & 1) * 8
    p = V_P + (tau & 1) * 4
    e = [T(f"v_exp_f32 v{b+i}, v{b+i}", [b+i], [b+i]) for i in range(8)]
    c = [V(f"v_cvt_pk_bf16_f32 v{p+i}, v{b+2*i}, v{b+2*i+1}", [b+2*i, b+2*i+1], [p+i]) for i in range(4)]
    return e, c
def comb_writes(q):
    o = []
    for jd in range(1, 4):
        for e in range(2):
            u = q * 6 + (jd - 1) * 2 + e
            row = u >> 3
            o.append(dswr('ds_write_b128', V_CW + (row >> 1), AO(2 * jd + e, q), 4, (row & 1) * 32 * KB + (u & 7) * KB, lgtag=('cw', q)))
    o.insert(0, dswr('ds_write_b32', V_LW, LA(q), 1, [0, 4, 16, 20, 24][q], lgtag=('cw', q)))
    return o

def wo_dma(pos, after=None):
    o = []
    for ks in range(4):
        for half in range(2):
            base = (128 * KB if pos < 0 else pos * 32 * KB) + ks * 8 * KB + half * 4 * KB
            if pos < 0:
                pre = [S(f"s_lshl_b32 s{S_SK}, s{S_J}, 17", [S_J], [S_SK])] if ks + half == 0 else []
                h = S_SK
            else: pre, h = [], S_H + pos
            pre += [S(f"s_add_u32 s{S_SO}, s{h}, {ks*32768 + half*16384}", [h], [S_SO]), S(f"s_add_u32 m0, s{S_W1K}, {base}", [S_W1K], [M0])]
            o.append(Item(pre, dma(V_WOD, S_WO, S_SO, 0, ('wo', pos)), after))
    return o
def osib_dma(pos):
    o = []
    for q in range(5):
        pre = [S(f"s_lshr_b32 s{S_SK}, s{S_H+pos}, 5", [S_H+pos], [S_SK])] if q == 0 else []
        pre += [S(f"s_add_u32 s{S_SO}, s{S_SK}, {q*128*KB}", [S_SK], [S_SO]), S(f"s_add_u32 m0, s{S_W5K}, {(140 - 20*pos + q)*KB}", [S_W5K], [M0])]
        o.append(Item(pre, dma(V_OD, S_O, S_SO, 0, ('os', pos), flags=' sc1')))
    return o
def tail_calc():
    o = []; a = o.append
    T0, T1, T2 = 252, 253, 254
    a(V(f"v_lshlrev_b32 v{T0}, 4, v{V_LANE}", [V_LANE], [T0]))
    for jd in range(1, 4):
        for ab in range(2): a(V(f"v_xor_b32 v{V_CR+2*(jd-1)+ab}, {jd << 13}, v{V_CW+ab}", [V_CW+ab], [V_CR+2*(jd-1)+ab]))
    a(V(f"v_add_u32 v{V_OL}, {96*KB}, v{T0}", [T0], [V_OL]))
    a(V(f"v_add_u32 v{V_OW}, s{S_W5K}, v{V_OL}", [V_OL, ('s', S_W5K)], [V_OW]))
    a(S(f"s_mov_b32 s{S_T0}, {102*KB}", [], [S_T0]))
    a(V(f"v_lshl_add_u32 v{V_LR}, v{V_N}, 5, s{S_T0}", [V_N, ('s', S_T0)], [V_LR]))
    if int(opt.dtch_at) < 99:
        a(V(f"v_lshrrev_b32 v{T1}, 3, v{V_LANE}", [V_LANE], [T1]))
        a(V(f"v_min_u32 v{T1}, 4, v{T1}", [T1], [T1]))
        a(V(f"v_and_b32 v{T2}, 7, v{V_LANE}", [V_LANE], [T2]))
        a(V(f"v_lshlrev_b32 v{T2}, 7, v{T2}", [T2], [T2]))
        a(V(f"v_sub_u32 v{T2}, v{T2}, v{T0}", [T2, T0], [T2]))
        a(V(f"v_lshl_add_u32 v66, v{T1}, 17, v{T2}", [T1, T2], [66]))
        a(V(f"v_add_u32 v66, v66, v{V_OST}", [66, V_OST], [66]))
        a(V(f"v_lshl_add_u32 v67, v{T1}, 13, v{T2}", [T1, T2], [67]))
        a(V(f"v_add_u32 v67, v67, v{V_PS}", [67, V_PS], [67]))
    for k in range(5): a(S(f"s_mov_b32 s{S_TAB+k}, {k*8192}", [], [S_TAB+k]))
    return o
def handoff_calc():
    o = []; a = o.append
    T0, T1, T2, T3 = 252, 253, 254, 9
    a(S(f"s_lshl_b32 s{S_T0}, s{S_J}, 12", [S_J], [S_T0]))
    a(V(f"v_subrev_u32 v{V_OD}, s{S_T0}, v{V_OST}", [V_OST, ('s', S_T0)], [V_OD]))
    a(S(f"s_lshl_b32 s{S_T0}, s{S_B}, 2", [S_B], [S_T0]))
    a(S(f"s_add_u32 s{S_T0}, s{S_T0}, s{S_J}", [S_T0, S_J], [S_T0]))
    a(S(f"s_mul_i32 s{S_T0}, s{S_T0}, {20*8*KB}", [S_T0], [S_T0]))
    a(S(f"s_mul_i32 s{S_T1}, s{S_W}, {5*8*KB}", [S_W], [S_T1]))
    a(S(f"s_lshl_b32 s{S_T2}, s{S_HKV}, 10", [S_HKV], [S_T2]))
    a(S(f"s_add_u32 s{S_T2}, s{S_T2}, s{S_T1}", [S_T2, S_T1], [S_T2]))
    a(S(f"s_add_u32 s{S_T2}, s{S_T2}, s{S_T0}", [S_T2, S_T0], [S_T2]))
    a(V(f"v_lshl_add_u32 v{V_PS}, v{V_LANE}, 4, s{S_T2}", [V_LANE, ('s', S_T2)], [V_PS]))
    tr = int(opt.otr)
    if tr:
        a(S(f"s_mul_i32 s{S_T1}, s{S_HKV}, 160", [S_HKV], [S_T1]))
        a(V(f"v_add_u32 v{T0}, s{S_T1}, v0", [0, ('s', S_T1)], [T0]))
    else:
        a(S(f"s_lshl_b32 s{S_T1}, s{S_HKV}, 2", [S_HKV], [S_T1]))
        a(S(f"s_add_u32 s{S_T1}, s{S_T1}, s{S_W}", [S_T1, S_W], [S_T1]))
        a(S(f"s_mul_i32 s{S_T1}, s{S_T1}, 40", [S_T1], [S_T1]))
        a(V(f"v_add_u32 v{T0}, s{S_T1}, v{V_LANE}", [V_LANE, ('s', S_T1)], [T0]))
    if int(opt.pairw):
        a(V(f"v_lshrrev_b32 v{T1}, 6, v{T0}", [T0], [T1]))
        a(V(f"v_cmp_lt_u32 vcc, 9, v{T1}", [T1], [VCC]))
        a(V(f"v_bfe_u32 v{T2}, v{T0}, 5, 1", [T0], [T2]))
        a(V(f"v_mul_u32_u24 v{T2}, 10, v{T2}", [T2], [T2]))
        a(V(f"v_add_u32 v{T1}, v{T1}, v{T2}", [T1, T2], [T1]))
        a(V(f"v_cndmask_b32 v{T2}, 0, 10, vcc", [VCC], [T2]))
        a(V(f"v_add_u32 v{T1}, v{T1}, v{T2}", [T1, T2], [T1]))
        a(V(f"v_and_b32 v{T0}, 31, v{T0}", [T0], [T0]))
        a(V(f"v_lshl_add_u32 v{T0}, v{T1}, 5, v{T0}", [T1, T0], [T0]))
    a(V(f"v_bfe_u32 v{T1}, v{T0}, 5, 1", [T0], [T1]))
    a(V(f"v_and_b32 v{T2}, 7, v{T0}", [T0], [T2]))
    a(V(f"v_lshl_add_u32 v{T1}, v{T1}, 3, v{T2}", [T1, T2], [T1]))
    a(V(f"v_bfe_u32 v{T2}, v{T0}, 3, 2", [T0], [T2]))
    a(V(f"v_lshrrev_b32 v{T0}, 6, v{T0}", [T0], [T0]))
    a(V(f"v_lshl_add_u32 v{T3}, v{T2}, 4, v{T1}", [T1, T2], [T3]))
    a(V(f"v_lshl_add_u32 v{V_PLD}, v{T3}, 4, s{S_T0}", [T3, ('s', S_T0)], [V_PLD]))
    a(V(f"v_lshl_add_u32 v{V_PLD}, v{T0}, 13, v{V_PLD}", [T0, V_PLD], [V_PLD]))
    a(V(f"v_mul_u32_u24 v{T3}, 52, v{T0}", [T0], [T3]))
    a(V(f"v_lshrrev_b32 v{T3}, 8, v{T3}", [T3], [T3]))
    if tr:
        a(V(f"v_and_b32 v{T1}, 8, v{T1}", [T1], [T1]))
        a(V(f"v_bfe_u32 v{T2}, v0, 2, 3", [0], [T2]))
        a(V(f"v_add_u32 v{T1}, v{T1}, v{T2}", [T1, T2], [T1]))
        a(V(f"v_and_b32 v{T2}, 3, v0", [0], [T2]))
    a(V(f"v_lshlrev_b32 v{T2}, {4 if tr else 3}, v{T2}", [T2], [T2]))
    a(V(f"v_lshl_add_u32 v{T2}, v{T3}, 6, v{T2}", [T3, T2], [T2]))
    a(V(f"v_lshl_add_u32 v{T2}, v{T1}, 10, v{T2}", [T1, T2], [T2]))
    a(V(f"v_mul_u32_u24 v{T3}, 5, v{T3}", [T3], [T3]))
    a(V(f"v_sub_u32 v{T0}, v{T0}, v{T3}", [T0, T3], [T0]))
    a(V(f"v_lshl_add_u32 v{T2}, v{T0}, 14, v{T2}", [T0, T2], [T2]))
    a(S(f"s_mul_i32 s{S_T0}, s{S_B}, 81920", [S_B], [S_T0]))
    a(S(f"s_lshl_b32 s{S_T2}, s{S_J}, 8", [S_J], [S_T2]))
    a(S(f"s_add_u32 s{S_T0}, s{S_T0}, s{S_T2}", [S_T0, S_T2], [S_T0]))
    a(V(f"v_add_u32 v{V_OUT}, s{S_T0}, v{T2}", [T2, ('s', S_T0)], [V_OUT]))
    a(V(f"v_cmp_gt_u32 vcc, 160, v0", [0], [VCC]) if tr else V(f"v_cmp_gt_u32 vcc, 40, v{V_LANE}", [V_LANE], [VCC]))
    a(V(f"v_mov_b32 v{T0}, 0x7ff00000", [], [T0]))
    a(V(f"v_cndmask_b32 v{V_PLD}, v{T0}, v{V_PLD}, vcc", [T0, V_PLD, VCC], [V_PLD]))
    a(V(f"v_cndmask_b32 v{V_OUT}, v{T0}, v{V_OUT}, vcc", [T0, V_OUT, VCC], [V_OUT]))
    for pv_, n_, sh, sg_ in ((V_P1, 4, 9, S_G1), (V_P2, 8, 11, S_G2)):
        a(V(f"v_lshl_add_u32 v{pv_}, v{V_LANE}, {sh}, s{sg_}", [V_LANE, ('s', sg_)], [pv_]))
        a(V(f"v_cmp_gt_u32 vcc, {n_}, v{V_LANE}", [V_LANE], [VCC]))
        a(V(f"v_cndmask_b32 v{pv_}, v{T0}, v{pv_}, vcc", [T0, pv_, VCC], [pv_]))
    return o
def wod_calc():
    o = []; a = o.append
    T0, T1 = 252, 253
    a(S(f"s_lshl_b32 s{S_T0}, s{S_B}, 2", [S_B], [S_T0]))
    a(S(f"s_add_u32 s{S_T0}, s{S_T0}, s{S_W}", [S_T0, S_W], [S_T0]))
    a(S(f"s_lshl_b32 s{S_T0}, s{S_T0}, 14", [S_T0], [S_T0]))
    a(S(f"s_lshl_b32 s{S_T2}, s{S_J}, 8", [S_J], [S_T2]))
    a(S(f"s_add_u32 s{S_T0}, s{S_T0}, s{S_T2}", [S_T0, S_T2], [S_T0]))
    a(V(f"v_bfe_u32 v{T0}, v{V_LANE}, 1, 4", [V_LANE], [T0]))
    a(V(f"v_and_b32 v{T1}, 1, v{V_LANE}", [V_LANE], [T1]))
    a(V(f"v_lshlrev_b32 v{T1}, 7, v{T1}", [T1], [T1]))
    a(V(f"v_lshl_add_u32 v{T0}, v{T0}, 10, v{T1}", [T0, T1], [T0]))
    a(V(f"v_add_u32 v{V_TCH}, s{S_T0}, v{T0}", [T0, ('s', S_T0)], [V_TCH]))
    a(S(f"s_and_b32 s{S_T0}, s{S_W}, 1", [S_W], [S_T0]))
    a(S(f"s_lshl_b32 s{S_T0}, s{S_T0}, 3", [S_T0], [S_T0]))
    a(V(f"v_lshl_add_u32 v{T0}, v{V_G}, 1, s{S_T0}", [V_G, ('s', S_T0)], [T0]))
    a(V(f"v_xor_b32 v{T0}, v{V_N}, v{T0}", [V_N, T0], [T0]))
    a(S(f"s_lshl_b32 s{S_T0}, s{S_J}, 8", [S_J], [S_T0]))
    a(V(f"v_lshl_add_u32 v{T0}, v{T0}, 4, s{S_T0}", [T0, ('s', S_T0)], [T0]))
    a(V(f"v_lshl_add_u32 v{T1}, s{S_W}, 2, v{V_G}", [V_G, ('s', S_W)], [T1]))
    a(V(f"v_lshl_add_u32 v{V_WOD}, v{T1}, 10, v{T0}", [T0, T1], [V_WOD]))
    return o

def phase_b(sg, Q, qr):
    NT = 8
    calc = tail_calc()[-5:]
    sg.addall(qr[:4])
    weave(sg, Q, [], int(opt.bq), 0)
    qr = qr[4:]
    for tau in range(-1, 40):
        i, q = divmod(tau, 5) if tau >= 0 else (-1, 4)
        mf = []
        bst = [int(x) for x in opt.bst.split(',')]
        if tau in bst: stamp(sg, 5 + bst.index(tau), 'B')
        if tau + 1 < 40: mf += qk(tau + 1)
        if tau - 1 >= 0: mf += pv(tau - 1)
        ds, marks = [], []
        if tau == -1: ds = qr[:8] if int(opt.b0s) else qr
        elif tau == 0 and int(opt.b0s): v0 = v_reads(0); ds = [v0[l + 8 * h] for l in range(5) for h in range(2)]
        elif tau == 1 and int(opt.b0s): v0 = v_reads(0); ds = [v0[l + 8 * h] for l in range(5, 8) for h in range(2)] + qr[8:11]; marks = [('vr', 0, 0), ('vr', 0, 1)]
        elif tau == 2 and int(opt.b0s): ds = qr[11:16] + k_reads(1)[:4]; marks = [('kr', 1, 0)]
        elif tau == 0: ds = v_reads(0); marks = [('vr', 0, 0), ('vr', 0, 1)]
        elif tau < 27:
            if q == 2: ds = k_reads(i + 1)[:4]; marks = [('kr', i + 1, 0)]
            if q == 3: ds = k_reads(i + 1)[4:] + v_reads(i + 1)[:2]; marks = [('kr', i + 1, 1)]
            if q == 4: ds = v_reads(i + 1)[2:8]; marks = [('vr', i + 1, 0)]
            if q == 0: ds = v_reads(i)[8:14]
            if q == 1 and i > 0: ds = v_reads(i)[14:]; Q.mark(('vr', i, 1))
        xp = None
        if tau >= 27:
            k6, k7, v6, v7 = k_reads(6), k_reads(7), v_reads(6), v_reads(7)
            vo = [v7[l + 8 * h] for l in range(8) for h in range(2)]
            G = [1, 3, 5, 7, 9, 11, 13, 15, 16]
            def cwp(q_, second):
                w_ = comb_writes(q_)
                if int(opt.w64) and q_ < 2:
                    h_ = []
                    for x in w_[1:]:
                        m_ = re.match(r"ds_write_b128 v(\d+), a\[(\d+):\d+\] offset:(\d+)", x.t)
                        for z in range(2): h_.append(dswr('ds_write_b64', int(m_.group(1)), ('a', int(m_.group(2)) + 2 * z), 2, int(m_.group(3)) + 8 * z, lgtag=x.lgtag))
                    return list(zip([1, 3, 5, 9, 13, 16], h_[6:])) if second else list(zip([7, 1, 3, 5, 9, 13, 16], [w_[0]] + h_[:6]))
                return list(zip([1, 9, 13], w_[4:])) if second else list(zip([7, 1, 9, 13], w_[:4]))
            xp = {27: list(zip([3, 5, 9, 11, 15, 16], k6[:4] + v6[:2])),
                  28: list(zip([1, 3, 5, 7, 9, 11, 13, 15, 16], k6[4:] + k7[:5])),
                  29: list(zip(G, k7[5:] + v6[2:8])),
                  30: list(zip([1, 3, 5, 7, 9, 11, 13, 15, 16, 16], v6[8:] + vo[:2])),
                  31: list(zip([1, 3, 5, 7, 9, 11, 13, 15, 16, 16], vo[2:12])) if int(opt.v7s) else list(zip([1, 1, 3, 5, 5, 7, 9, 9, 11, 13, 13, 15, 16, 16], vo[2:])),
                  32: list(zip([1, 3, 5, 7], vo[12:])) if int(opt.v7s) else [], 33: cwp(0, 0), 34: cwp(0, 1), 35: cwp(1, 0), 36: cwp(1, 1), 37: cwp(2, 0),
                  38: cwp(2, 1) + list(zip([3, 5, 5, 7, 11, 15, 16, 16], lreads((0, 1)) + preads(0)[:4])),
                  39: list(zip([0, 2, 4, 6], comb_writes(3)[:4])) + list(zip([1, 1, 3, 3, 5, 5, 7, 7], preads(0)[4:] + preads(1)))}[tau]
            if int(opt.x1e) and tau >= 36:
                xp = {36: list(zip([1, 5, 9], comb_writes(1)[4:])),
                      37: cwp(2, 0) + list(zip([3, 5, 11, 15, 16, 16], preads(0))),
                      38: cwp(2, 1) + list(zip([3, 5, 5, 7, 11, 15, 16, 16], lreads((0, 1)) + preads(1)[:4])),
                      39: list(zip([1, 3, 5, 7], comb_writes(3)[:4])) + list(zip([0, 8], preads(1)[4:]))}[tau]
            ds = [x for _, x in xp]; marks = []
            if tau == (37 if int(opt.x1e) else 38):
                b = barrier(needvm=[('wo', -1)], lg0=False); b.needlg = (('cw', 0), ('cw', 1)); sg.add(b)
        n = len(mf)
        gaps = [[] for _ in range(n)]
        e, c = sm(tau) if 0 <= tau < 40 else ([], [])
        if n == 17:
            epos = [0, 2, 4, 6, 8, 10, 12, 14]; cpos = [3, 7, 11, 15]
            dpos = [1, 3, 5, 7, 9, 11, 13, 15] if len(ds) > 4 else [1, 3, 5, 7]
            if ds and ds[0].k == 'dswr': dpos = [1, 1, 3, 7, 9, 13, 16]
            vpos = [1, 5, 9, 13] if (tau < int(opt.even_at) or q == 1) else [1, 7, 13]
            if int(opt.bsched) and not (ds and ds[0].k == 'dswr'):
                if q == 1: dpos, vpos = [1, 3], [5, 9, 13, 16]
                elif tau < int(opt.even_at) or tau >= int(opt.even_end): dpos, vpos = ([3, 7, 11, 15, 16, 16] if q != 3 else [1, 3, 7, 11, 15, 16]), ([1, 5, 9, 13] if q != 3 else [5, 9, 13, 16])
                else: dpos, vpos = [3, 5, 9, 11, 15, 16], [1, 7, 13]
        else:
            epos = list(range(8)); cpos = [min(n - 1, x) for x in (2, 4, 6, 8)]
            dpos = [(k * n) // max(1, len(ds)) for k in range(len(ds))]
            vpos = [int(x) for x in opt.spos.split(',')] if tau < 5 else [1, 5]
        if int(opt.b0s) and tau in (1, 2): dpos, vpos = [1, 1, 3, 5, 5, 7, 11, 15, 16], [9, 13]
        if xp is not None:
            dpos = [g_ for g_, _ in xp]; vpos = [int(x) for x in opt.wpos.split(',')] if tau >= 32 else [13]
            if tau == 27: vpos = [1, 7, 13]
        for x, p_ in zip(ds, dpos): gaps[p_].append(x)
        if tau == int(opt.nl_at):
            sg.add(V("v_mov_b32 v9, 0", [], [9]))
            Q.q.insert(0, Item([], vload(('v', V_GC), 2, 9, S_D, None, 0, flags=' sc1', tag='non')))
        if tau == int(opt.nc_at):
            assert not any(it.ins.vmtag == 'non' for it in Q.q)
            sg.add(V(f"v_readfirstlane_b32 s{S_NON}, v{V_GC}", [V_GC], [('s', S_NON)]))
            sg.add(V(f"v_readfirstlane_b32 s{S_NON+1}, v{V_GC+1}", [V_GC+1], [('s', S_NON+1)]))
            sg.add(S(f"s_cmp_eq_u64 s[{S_NON}:{S_NON+1}], 0", [S_NON, S_NON+1], []))
            sg.text("s_cbranch_scc1 L_spin_n"); sg.text("L_back_n:")
        if tau == 32: stamp_out(sg, 1) if opt.stamps == 'Z' else None
        if tau == int(opt.bar_at): sg.add(barrier(lg0=False))
        for x in ds:
            while any(it.ins.vmtag in x.needvm for it in Q.q): weave(sg, Q, [], 1, 0)
        if tau == int(opt.tch_at): Q.push([Item([], vload(('v', V_TCH + 1), 1, V_TCH, S_WO, None, 0, flags=opt.tch_flags))])
        if tau == int(opt.tlb_at):
            Q.push([Item([], vload(('v', 72), 1, V_ZERO, S_C, S_F1, 0, flags=' sc1')), Item([], vload(('v', 73), 1, V_ZERO, S_C, S_F2, 0, flags=' sc1'))])
        if tau == int(opt.cpf2_at):
            for x in ["s_getpc_b64 s[94:95]", "L_pc2:", "s_lshr_b32 s92, s2, 3", f"s_lshl_b32 s92, s92, 2", f"s_add_u32 s92, s92, s{S_W}", "s_lshl_b32 s92, s92, 7",
                      f"s_add_u32 s92, s92, {int(opt.cpf2_skip)}", "s_min_u32 s92, s92, (L_code_end - L_pc2 - 4) & 0xffffff80", "v_mov_b32 v74, s92", "global_load_dword v255, v74, s[94:95]"]: sg.text(x)
        if tau == int(opt.dtch_at):
            assert not calc
            Q.push(([Item([], vload(('v', 74), 1, 66, S_O, None, 0, flags=opt.dtch_flags))] if 'o' in opt.dtch else []) + ([Item([], vload(('v', 75), 1, 67, S_WT, None, 0, flags=opt.dtch_flags))] if 'p' in opt.dtch else []))
        if tau == int(opt.otch_at): Q.push([Item([], vload(('v', 66), 1, V_OUT, S_OUT, None, 0, flags=opt.otch_flags))])
        if tau == int(opt.wo_at): assert not calc; Q.push(wo_dma(-1))
        place(gaps, Q, vpos)
        for x, p_ in zip(e, epos): gaps[p_].append(x)
        for x, p_ in zip(c, cpos): gaps[p_].append(x)
        if tau >= int(opt.calc_at) and n == 17:
            for gi in range(17):
                if calc and calc[0].k == 'salu' and not any(y.k == 'salu' for y in gaps[gi]): gaps[gi].insert(0, calc.pop(0))
                cost = sum(8 if y.k == 'trans' else 0 if y.k == 'salu' else 4 for y in gaps[gi])
                while calc and calc[0].k != 'salu' and cost <= 4: gaps[gi].append(calc.pop(0)); cost += 4
        sg.addall(interleave(mf, gaps))
        for m in marks: Q.mark(m)

def poll(sg, lab, vaddr):
    sg.text(f"s_mov_b32 s{S_SPIN}, {opt.spin}")
    sg.text(f"{lab}:")
    sg.text(f"buffer_load_dwordx2 v[250:251], v{vaddr}, s[{S_C}:{S_C+3}], 0 offen sc1")
    sg.text(f"s_sub_u32 s{S_SPIN}, s{S_SPIN}, 1")
    sg.text("s_waitcnt vmcnt(0)")
    sg.text(f"v_cmp_ne_u64 vcc, s[{S_NON}:{S_NON+1}], v[250:251]")
    sg.text(f"s_cmp_eq_u32 s{S_SPIN}, 0")
    sg.text(f"s_cbranch_scc1 {lab}_done")
    sg.text("s_nop 2")
    sg.text(f"s_cbranch_vccnz {lab}")
    sg.text(f"{lab}_done:")
    sg.vm = []
def raise_flag(sg, stage, tag):
    ins = vstore(('v', V_GC), 2, V_P1 if stage == 1 else V_P2, S_C, None, 0, flags=' sc1')
    ins.needvm = (tag,)
    sg.add(ins)
WOF = A_Q
RES = 100
def part(q, k):
    if q == 0: return 36 + 4 * k if k < 4 else 64 + 4 * (k - 4)
    return {1: 100, 2: 164, 3: 188, 4: 100}[q] + 4 * k
def preads(q):
    o = []
    for jd in range(1, 4):
        for e in range(2):
            k = (jd - 1) * 2 + e; u = q * 6 + k; row = u >> 3
            o.append(dsrd('ds_read_b128', ('v', part(q, k)), 4, V_CR + 2 * (jd - 1) + (row >> 1), (row & 1) * 32 * KB + (u & 7) * KB))
    return o
LSA, LSB = 124, 76
def lreads(qs):
    if qs == (0, 1): return [dsrd('ds_read_b64', ('v', LSA + src * 2), 2, V_LR, src * 8 * KB) for src in range(4)]
    if qs == (2, 3): return [dsrd('ds_read_b64', ('v', LSB + src * 4), 2, V_LR, src * 8 * KB + 16) for src in range(4)]
    if qs == (4,): return [dsrd('ds_read_b32', ('v', LSB + src * 4 + 2), 1, V_LR, src * 8 * KB + 24) for src in range(4)]
    return [dsrd('ds_read_b128', ('v', LSB + src * 4), 4, V_LR, src * 8 * KB + 16) for src in range(4)]
def lsum(qs):
    w = []
    def lr(src, q): return LSA + src * 2 + q if q < 2 else LSB + src * 4 + q - 2
    LS = lr(0, qs[0])
    for q in qs:
        d = V_T0 + q
        w.append(V(f"v_add_f32 v{d}, v{lr(0,q)}, v{lr(1,q)}", [lr(0,q), lr(1,q)], [d]))
        w.append(V(f"v_add_f32 v{lr(2,q)}, v{lr(2,q)}, v{lr(3,q)}", [lr(2,q), lr(3,q)], [lr(2,q)]))
        w.append(V(f"v_add_f32 v{d}, v{d}, v{lr(2,q)}", [d, lr(2,q)], [d]))
    lo_, hi_ = LS, LS + 1
    if len(qs) == 1: lo_ = hi_ = V_T0 + qs[0]
    else:
        a_, b_, c_ = V_T0 + qs[0], V_T0 + qs[1], V_T0 + qs[-1]
        w.append(V(f"v_min3_f32 v{LS}, v{a_}, v{b_}, v{c_}", [a_, b_, c_], [LS]))
        w.append(V(f"v_add_f32 v{LS+1}, v{a_}, v{b_}", [a_, b_], [LS+1]))
        if len(qs) == 3: w.append(V(f"v_add_f32 v{LS+1}, v{LS+1}, v{c_}", [LS+1, c_], [LS+1]))
    w.append(V(f"v_cmp_nle_f32 vcc, {f2h(2.0**int(opt.lo_exp))}, v{lo_}", [lo_], [VCC]))
    w.append(S(f"s_mov_b64 s[{S_EX}:{S_EX+1}], vcc", [VCC], [S_EX, S_EX+1]))
    w.append(V(f"v_cmp_nge_f32 vcc, {f2h(2.0**int(opt.hi_exp))}, v{hi_}", [hi_], [VCC]))
    w.append(S(f"s_or_b64 vcc, vcc, s[{S_EX}:{S_EX+1}]", [VCC, S_EX, S_EX+1], [VCC]))
    w.append(S(f"s_and_b64 vcc, vcc, s[{S_GM}:{S_GM+1}]", [VCC], [VCC]))
    w.append(raw("s_cbranch_vccnz L_redo      ; softmax guard, see header"))
    for q in qs: w.append(T(f"v_rcp_f32 v{V_T0+q}, v{V_T0+q}", [V_T0+q], [V_T0+q]))
    return w
def finish(q):
    w = []
    for e in range(2):
        o_ = V_OWN[q] + e * 4
        for jd in range(1, 4):
            p_ = part(q, (jd - 1) * 2 + e)
            for r in (0, 2):
                w.append(V(f"v_pk_add_f32 v[{o_+r}:{o_+r+1}], v[{o_+r}:{o_+r+1}], v[{p_+r}:{p_+r+1}]", [o_+r, o_+r+1, p_+r, p_+r+1], [o_+r, o_+r+1]))
    o_ = V_OWN[q]
    ri = V_T0 + (q & ~1); sel = "op_sel:[0,1] op_sel_hi:[1,1]" if q & 1 else "op_sel:[0,0] op_sel_hi:[1,0]"
    for r in range(0, 8, 2):
        w.append(V(f"v_pk_mul_f32 v[{o_+r}:{o_+r+1}], v[{o_+r}:{o_+r+1}], v[{ri}:{ri+1}] {sel}", [o_+r, o_+r+1, V_T0+q], [o_+r, o_+r+1]))
    for r in range(4):
        w.append(V(f"v_cvt_pk_bf16_f32 v{o_+r}, v{o_+2*r}, v{o_+2*r+1}", [o_+2*r, o_+2*r+1], [o_+r]))
    w.append(S(f"s_mov_b32 s{S_SV}, {q*128*KB}", [], [S_SV]))
    w.append(vstore(('v', o_), 4, V_OST, S_O, S_SV, 0, flags=opt.o_flags, tag='ost'))
    return w
def wor():
    return [dsrd('ds_read_b64_tr_b16', ('a', WOF + (ks * 2 + e) * 4 + h * 2), 2, V_WT + 4 + e, ks * 8 * KB + h * 4096) for ks in range(4) for e in range(2) for h in range(2)]
def combine(sg, Q):
    assert not Q.q
    mf = pv(39); gaps = [[] for _ in mf]
    wr = comb_writes(3)[4:]; ls = lsum((0, 1))
    for k, x in enumerate(wr): gaps[3 * k].append(x)
    k = 0
    for gi in range(9):
        n_ = 2 - len(gaps[gi])
        while ls and (n_ > 0 or ls[0].k == 'salu') and gi < 9:
            x = ls.pop(0); gaps[gi].append(x)
            n_ -= 0 if x.k == 'salu' else 2 if x.k == 'trans' else 1
    sg.addall(interleave(mf, gaps))
    stamp(sg, 4)
    if int(opt.c3):
        sg.addall(ls + finish(0))
        b = barrier(lg0=False); b.needlg = (('cw', 2), ('cw', 3)); sg.add(b)
        w4 = comb_writes(4)
        rd = lreads((2, 3)) + preads(2) + preads(3)
        for k in range(len(rd)):
            sg.add(rd[k])
            if k % 3 == 1 and w4: sg.add(w4.pop(0))
        w = finish(1) + lsum((2, 3)) + finish(2)
        for k, x in enumerate(w4): w.insert(4 + 8 * k, x)
        sg.addall(w)
        sg.add(barrier())
        stamp(sg, 5)
        Q.push(wo_dma(0))
        rd = lreads((4,)) + preads(4)
        weave(sg, Q, rd, int(opt.cw), 5)
        sg.addall(rd + finish(3) + lsum((4,)) + finish(4))
        stamp(sg, 6)
        return
    w4 = comb_writes(4)
    w = ls + finish(0) + finish(1)
    for k, x in enumerate(w4): w.insert(min(len(w), 6 + k * 6), x)
    sg.addall(w)
    sg.add(barrier())
    stamp(sg, 5)
    Q.push(wo_dma(0))
    rd = lreads((2, 3, 4)) + preads(2) + preads(3)
    weave(sg, Q, rd, int(opt.cw), 2)
    sg.addall(rd)
    w = lsum((2, 3, 4)) + preads(4) + finish(2) + finish(3) + finish(4)
    if not int(opt.worlate):
        for k, x in enumerate(wor()): w.insert(30 + 3 * k, x)
    sg.addall(w)
    stamp(sg, 6)

def phase_c(sg, Q):
    a = sg.add
    ACC = 164
    a(barrier())
    stamp(sg, 5, 'D')
    for q in range(5): a(dswr('ds_write_b128', V_OW, ('v', V_OWN[q]), 4, q * KB))
    Q.push(wo_dma(1) + wo_dma(2))
    wr_ = wor() if int(opt.worlate) else []
    weave(sg, Q, wr_, int(opt.shadow), 3)
    sg.addall(wr_)
    stamp(sg, 6, 'D')
    a(barrier())
    def CF(k): return [(100, 120), (64, 84), (204, 36)][k % 3]
    def c_reads(k):
        pos, ks = divmod(k, 4); pos -= 1
        xf, wf = CF(k)
        ob = 0 if pos < 0 else (44 - 20 * pos) * KB
        xr = [dsrd('ds_read_b128', ('v', xf + q * 4), 4, V_OL, ob + (ks * 5 + q) * KB) for q in range(5)]
        if pos < 0: return xr
        wb = (pos * 4 + ks) * 8 * KB
        wr = [dsrd('ds_read_b64_tr_b16', ('v', wf + e * 4 + h * 2), 2, V_WT + (2 if wb >= 64 * KB else 0) + e, (wb % (64 * KB)) + h * 4096) for e in range(2) for h in range(2)]
        return wr[:2] + xr[:1] + wr[2:] + xr[1:]
    def c_mfmas(k):
        xf, wf = CF(k)
        ff = 'v'
        if k < 4: wf, ff = WOF + k * 8, 'a'
        o = []
        for q in range(5):
            for e in range(2):
                d = ('v', ACC + (q * 2 + e) * 4)
                o.append(mfma(d, (ff, wf + e * 4), ('v', xf + q * 4), 0 if k == 0 else d))
        o[0].r |= set(R('v', xf, 20) + R(ff, wf, 8))
        return o
    def step(k, nx, pos=()):
        mf = c_mfmas(k); gaps = [[] for _ in mf]
        if nx is not None:
            for i, r in enumerate(c_reads(nx)): gaps[i].append(r)
        place(gaps, Q, pos)
        sg.addall(interleave(mf, gaps))
    def own_steps():
        for k in range(4): step(k, k + 2 if k < 2 else None, [1, 5, 9] if k % 2 == 0 else [3, 7])
    sg.addall(c_reads(0)); sg.addall(c_reads(1))
    raise_flag(sg, 1, 'ost')
    stamp(sg, 7, 'D'); stamp(sg, 7)
    weave(sg, Q, [], min(len(Q.q), int(opt.pf)), 0)
    held = Q.q; Q.q = []
    stamp(sg, 8, 'D')
    t = ["; hand-off 1 - wait (bounded) until the same wave of the three sibling heads has published its O", f"s_mov_b32 s{S_SPIN}, {opt.spin}", "L_poll1:", f"s_load_dwordx8 s[4:11], s[{S_C}:{S_C+1}], s{S_F1} glc", f"s_sub_u32 s{S_SPIN}, s{S_SPIN}, 1", "s_waitcnt lgkmcnt(0)",
         f"s_cmp_eq_u32 s{S_SPIN}, 0", "s_cbranch_scc1 L_poll1_done"]
    t += [f"s_lshl_b32 s{S_T0}, 1, s{S_J}"]
    for h in range(4): t += [f"s_cmp_eq_u64 s[{4+2*h}:{5+2*h}], s[{S_NON}:{S_NON+1}]", f"s_cselect_b32 s{S_T1}, {1 << h}, 0", f"s_or_b32 s{S_T0}, s{S_T0}, s{S_T1}"]
    t += [f"s_cmp_lg_u32 s{S_T0}, 15", "s_cbranch_scc1 L_poll1", "L_poll1_done:"]
    if int(opt.peek) & 1:
        sets = [4, 12, 76, 84]
        t = [f"s_mov_b32 s{S_SPIN}, {opt.spin}", f"s_lshl_b32 s{S_T2}, 1, s{S_J}", "s_waitcnt lgkmcnt(0)"]
        for b_ in sets: t += [f"s_mov_b64 s[{b_+2*h}:{b_+2*h+1}], 0" for h in range(4)]
        t += ["L_poll1:", f"s_sub_u32 s{S_SPIN}, s{S_SPIN}, 1", f"s_cmp_eq_u32 s{S_SPIN}, 0", "s_cbranch_scc1 L_poll1_done"]
        for b_ in sets:
            t += [f"s_mov_b32 s{S_T0}, s{S_T2}"]
            for h in range(4): t += [f"s_cmp_eq_u64 s[{b_+2*h}:{b_+2*h+1}], s[{S_NON}:{S_NON+1}]", f"s_cselect_b32 s{S_T1}, {1 << h}, 0", f"s_or_b32 s{S_T0}, s{S_T0}, s{S_T1}"]
            t += [f"s_cmp_eq_u32 s{S_T0}, 15", "s_cbranch_scc1 L_poll1_done", f"s_load_dwordx8 s[{b_}:{b_+7}], s[{S_C}:{S_C+1}], s{S_F1} glc"] + ["s_nop 7"] * int(opt.pgap)
        t += ["s_branch L_poll1", "L_poll1_done:"]
    for x in t: sg.text(x)
    sg.lg = []
    stamp(sg, 9, 'D')
    stamp(sg, 5, 'E')
    stamp(sg, 8)
    assert all(it.ins.vmtag == ('wo', 2) for it in held)
    Q.push(osib_dma(0) + osib_dma(1) + held)
    weave(sg, Q, [], 5, 0); own_steps()
    weave(sg, Q, [], len(Q.q), 0)
    stamp(sg, 6, 'E')
    a(barrier(needvm=[('os', 0), ('wo', 0), ('wo', 1)]))
    stamp(sg, 7, 'E')
    Q.push(osib_dma(2))
    sg.addall(c_reads(4)); sg.addall(c_reads(5))
    def pfin(q):
        b = ACC + q * 8
        return [V(f"v_cvt_pk_bf16_f32 v{b+r}, v{b+2*r}, v{b+2*r+1}", [b+2*r, b+2*r+1], [b+r]) for r in range(4)] + [vstore(('v', b), 4, V_PS, S_WT, S_TAB + q, 0, flags=' sc1', tag='pst')]
    last = 16 - (2 if int(opt.qmaj) else 0)
    for k in range(4, last):
        nx = k + 2 if k + 2 < 16 else None
        if nx in (8, 12):
            assert not Q.q or nx == 8
            a(barrier(needvm=[('os', nx // 4 - 1), ('wo', nx // 4 - 1)], lg0=False))
            stamp(sg, 8 if nx == 8 else 9, 'E')
        step(k, nx, [1, 5, 9] if k % 2 == 0 else [3, 7])
    if int(opt.qmaj):
        m14, m15 = c_mfmas(14), c_mfmas(15)
        m15[0].r -= set(R('v', CF(15)[0] + 4, 16))
        mf = flat([[m14[2*q], m15[2*q], m14[2*q+1], m15[2*q+1]] for q in range(5)])
        gaps = [[] for _ in mf]
        for q in range(4):
            f_ = pfin(q)
            g0 = 4 * q + 6
            if g0 + 2 < 20:
                gaps[g0] += f_[0:2]; gaps[g0 + 1] += f_[2:4]; gaps[g0 + 2] += f_[4:]
        sg.addall(interleave(mf, gaps))
        stamp(sg, 9)
        sg.addall(pfin(3) + pfin(4))
    else:
        stamp(sg, 9)
        for q in range(5): sg.addall(pfin(q))
    a(S(f"s_mov_b32 s{S_SO}, 4096", [], [S_SO]))
    a(S(f"s_mov_b32 s{S_T1}, 0xffff0000", [], [S_T1]))
    a(S(f"s_mov_b32 s{S_SPIN}, {opt.spin}", [], [S_SPIN]))
    a(S(f"s_mov_b32 s{S_T2}, 0", [], [S_T2]))
    a(S(f"s_mov_b32 s{S_SK}, 0", [], [S_SK]))
    if int(opt.f2wg):
        a(barrier(needvm=['pst'], lg0=False))
        sg.text(f"s_cmp_lg_u32 s{S_W}, 0"); sg.text("s_cbranch_scc1 L_sig2"); raise_flag(sg, 2, 'pst'); sg.text("L_sig2:")
    else: raise_flag(sg, 2, 'pst')
    stamp(sg, 5, '2')
    if int(opt.otr):
        a(V("v_lshlrev_b32 v11, 4, v0", [0], [11]))
        a(V("v_and_b32 v10, 0xe0, v0", [0], [10])); a(V("v_lshlrev_b32 v10, 4, v10", [10], [10]))
        a(V("v_and_b32 v12, 7, v0", [0], [12])); a(V("v_lshl_add_u32 v10, v12, 6, v10", [12, 10], [10]))
        a(V("v_bfe_u32 v12, v0, 3, 2", [0], [12])); a(V("v_lshl_add_u32 v10, v12, 3, v10", [12, 10], [10]))
        sg.text(f"s_cmp_eq_u32 s{S_W}, 3"); sg.text("s_cbranch_scc1 L_fin")
    PB, SM = 100, 132
    def pl(h): return vload(('v', PB + 4 * h), 4, V_PLD, S_WT, S_SO if h >= 4 else None, (h & 3) * 1024, flags=' sc1')
    t = ["L_poll2:", f"s_load_dwordx16 s[4:19], s[{S_C}:{S_C+1}], s{S_F2} glc", f"s_cmp_eq_u32 s{S_SK}, 0", "s_cbranch_scc1 L_nounp", "L_unp:", "s_waitcnt vmcnt(0)"]
    for h in range(8):
        t += [f"s_bitcmp1_b32 s{S_SK}, {h}", f"s_cbranch_scc0 L_u{h}"]
        for r in range(4): t += [f"v_lshlrev_b32 v{SM+8*h+2*r}, 16, v{PB+4*h+r}", f"v_and_b32 v{SM+8*h+2*r+1}, s{S_T1}, v{PB+4*h+r}"]
        t += [f"L_u{h}:"]
    t += [f"s_cmp_eq_u32 s{S_T2}, 0xff", "s_cbranch_scc1 L_poll2_done", "L_nounp:", f"s_mov_b32 s{S_SK}, 0", f"s_sub_u32 s{S_SPIN}, s{S_SPIN}, 1", "s_waitcnt lgkmcnt(0)",
          f"s_cmp_eq_u32 s{S_SPIN}, 0", "s_cbranch_scc1 L_poll2_done"]
    for h in range(8):
        t += [f"s_cmp_lg_u64 s[{4+2*h}:{5+2*h}], s[{S_NON}:{S_NON+1}]", f"s_cbranch_scc1 L_g{h}", f"s_bitcmp1_b32 s{S_T2}, {h}", f"s_cbranch_scc1 L_g{h}",
              f"s_bitset1_b32 s{S_T2}, {h}", f"s_bitset1_b32 s{S_SK}, {h}", pl(h).t, f"L_g{h}:"]
    t += [f"s_cmp_lg_u32 s{S_T2}, 0xff", "s_cbranch_scc1 L_poll2", "s_branch L_unp", "L_poll2_done:"]
    if not int(opt.unp):
        t = ["; hand-off 2 - fetch each producer's partial result once its flag is up (bounded wait); summed below in a fixed order", "L_poll2:", f"s_load_dwordx16 s[4:19], s[{S_C}:{S_C+1}], s{S_F2} glc", f"s_sub_u32 s{S_SPIN}, s{S_SPIN}, 1", "s_waitcnt lgkmcnt(0)", f"s_cmp_eq_u32 s{S_SPIN}, 0", "s_cbranch_scc1 L_poll2_done"]
        for h in range(8):
            t += [f"s_cmp_lg_u64 s[{4+2*h}:{5+2*h}], s[{S_NON}:{S_NON+1}]", f"s_cbranch_scc1 L_g{h}", f"s_bitcmp1_b32 s{S_T2}, {h}", f"s_cbranch_scc1 L_g{h}",
                  f"s_bitset1_b32 s{S_T2}, {h}", f"s_bitset1_b32 s{S_SK}, {h}", pl(h).t, f"L_g{h}:"]
        t += [f"s_cmp_eq_u32 s{S_T2}, 0xff", "s_cbranch_scc1 L_poll2_done", f"s_mov_b32 s{S_SK}, 0", "s_branch L_poll2", "L_poll2_done:"]
        if int(opt.peek) & 2:
            t = ["s_waitcnt lgkmcnt(0)"]
            for b_ in (4, 76): t += [f"s_mov_b64 s[{b_+2*h}:{b_+2*h+1}], 0" for h in range(8)]
            t += ["L_poll2:", f"s_sub_u32 s{S_SPIN}, s{S_SPIN}, 1", f"s_cmp_eq_u32 s{S_SPIN}, 0", "s_cbranch_scc1 L_poll2_done"]
            for n_, b_ in enumerate((4, 76)):
                for h in range(8):
                    t += [f"s_cmp_lg_u64 s[{b_+2*h}:{b_+2*h+1}], s[{S_NON}:{S_NON+1}]", f"s_cbranch_scc1 L_g{n_}{h}", f"s_bitcmp1_b32 s{S_T2}, {h}", f"s_cbranch_scc1 L_g{n_}{h}",
                          f"s_bitset1_b32 s{S_T2}, {h}", pl(h).t, f"L_g{n_}{h}:"]
                t += [f"s_cmp_eq_u32 s{S_T2}, 0xff", "s_cbranch_scc1 L_poll2_done", f"s_load_dwordx16 s[{b_}:{b_+15}], s[{S_C}:{S_C+1}], s{S_F2} glc"]
            t += ["s_branch L_poll2", "L_poll2_done:"]
        t += ["s_waitcnt vmcnt(0)"]
        for h in range(8):
            for r in range(4): t += [f"v_lshlrev_b32 v{SM+8*h+2*r}, 16, v{PB+4*h+r}", f"v_and_b32 v{SM+8*h+2*r+1}, s{S_T1}, v{PB+4*h+r}"]
    for x in t: sg.text(x)
    sg.vm = []
    stamp(sg, 6, '2')
    for h in range(1, 8):
        for r in range(0, 8, 2):
            u = SM + 8 * h + r
            a(V(f"v_pk_add_f32 v[{SM+r}:{SM+r+1}], v[{SM+r}:{SM+r+1}], v[{u}:{u+1}]", [SM+r, SM+r+1, u, u+1], [SM+r, SM+r+1]))
    for r in range(4):
        a(V(f"v_cvt_pk_bf16_f32 v{SM+r}, v{SM+2*r}, v{SM+2*r+1}", [SM+2*r, SM+2*r+1], [SM+r]))
    if int(opt.otr):
        a(dswr('ds_write_b64', 10, ('v', SM), 2, 0)); a(dswr('ds_write_b64', 10, ('v', SM + 2), 2, 32))
        r_ = dsrd('ds_read_b128', ('v', SM + 4), 4, 11, 0); r_.needlg = ('*',); a(r_)
        a(vstore(('v', SM + 4), 4, V_OUT, S_OUT, None, 0, flags=opt.out_flags))
    elif not int(opt.noout):
        a(vstore(('v', SM), 2, V_OUT, S_OUT, None, 0, flags=opt.out_flags))
        a(vstore(('v', SM + 2), 2, V_OUT, S_OUT, None, 32, flags=opt.out_flags))

def out_of_line():
    t = []
    t += ["L_spin_n:", f"s_mov_b32 s{S_SPIN}, {opt.spin}", "L_spin_n1:",
          f"buffer_load_dwordx2 v[{V_GC}:{V_GC+1}], v9, s[{S_D}:{S_D+3}], 0 offen sc1", f"s_sub_u32 s{S_SPIN}, s{S_SPIN}, 1", "s_waitcnt vmcnt(0)",
          f"v_readfirstlane_b32 s{S_NON}, v{V_GC}", f"v_readfirstlane_b32 s{S_NON+1}, v{V_GC+1}", f"s_cmp_eq_u32 s{S_SPIN}, 0", "s_cbranch_scc1 L_back_n", "s_nop 2",
          f"s_cmp_eq_u64 s[{S_NON}:{S_NON+1}], 0", "s_cbranch_scc1 L_spin_n1", "s_branch L_back_n"]
    t += ["; a row sum left the safe range - start over with the true row maxima", "L_redo:", f"s_mov_b64 s[{S_GM}:{S_GM+1}], 0", f"s_mov_b32 s{S_REDO}, 1",
          "s_waitcnt vmcnt(0) lgkmcnt(0)", "s_barrier"]
    sg = Seg()
    p1 = prologue1()
    a = sg.add
    a(V(f"v_lshl_add_u32 v{V_T0}, s{S_W}, 2, v{V_G}", [V_G], [V_T0]))
    a(V(f"v_xor_b32 v{V_T1}, v{V_N}, v{V_T0}", [V_N, V_T0], [V_T1]))
    a(V(f"v_lshlrev_b32 v{V_T1}, 4, v{V_T1}", [V_T1], [V_T1]))
    a(V(f"v_lshl_add_u32 v{V_XD}, v{V_T0}, 10, v{V_T1}", [V_T0, V_T1], [V_XD]))
    a(S(f"s_and_b32 s{S_T0}, s{S_W}, 2", [S_W], [S_T0]))
    a(S(f"s_lshl_b32 s{S_T0}, s{S_T0}, 2", [S_T0], [S_T0]))
    a(V(f"v_lshl_add_u32 v{V_T1}, v{V_G}, 1, s{S_T0}", [V_G], [V_T1]))
    a(V(f"v_xor_b32 v{V_T1}, v{V_N}, v{V_T1}", [V_N, V_T1], [V_T1]))
    a(V(f"v_lshlrev_b32 v{V_T1}, 4, v{V_T1}", [V_T1], [V_T1]))
    a(V(f"v_lshl_add_u32 v{V_WD}, v{V_T0}, 13, v{V_T1}", [V_T0, V_T1], [V_WD]))
    t += sg.out + ["s_nop 4", "s_branch L_restart"]
    sg = Seg(); a = sg.add
    sg.text("; true row maxima over all keys -> negated into the accumulator seed of S")
    sg.text("L_max:")
    sg.text(f"s_mov_b32 s{S_SPIN}, m0")
    sg.drain()
    sg.text("s_barrier")
    MX, KF, AD = 76, V_VF, 84
    for q in range(5): a(V(f"v_mov_b32 v{MX+q}, 0xff800000", [], [MX+q]))
    for s in range(4): a(V(f"v_add_u32 v{AD+s}, {96*KB}, v{V_KA+s}", [V_KA+s], [AD+s]))
    a(S(f"s_mov_b32 s{S_T2}, 0", [], [S_T2]))
    sg.text("L_max_loop:"); sg.reset_hist()
    for j in range(8):
        if j % 4 == 0:
            a(S(f"s_add_u32 s{S_T1}, s{S_T2}, {(j>>2)*4096}", [S_T2], [S_T1]))
            a(S(f"s_add_u32 m0, s{S_W8K}, {96*KB + (j>>2)*4096}", [S_W8K], [M0]))
        a(dma(V_KD + (j & 3), S_K, S_T1, 1024 * (j & 3), 'mk'))
    for t_ in range(2):
        for s in range(4):
            a(dsrd('ds_read_b128', ('v', KF + (t_ * 4 + s) * 4), 4, AD + s, t_ * 4096, needvm=['mk']))
    for q in range(5):
        for t_ in range(2):
            d = ('v', 88 + t_ * 4)
            for s in range(4): a(mfma(d, ('v', KF + (t_ * 4 + s) * 4), AQ(q, s), 0 if s == 0 else d))
        for k in range(4):
            a(V(f"v_max3_f32 v{MX+q}, v{MX+q}, v{88+2*k}, v{89+2*k}", [MX+q, 88+2*k, 89+2*k], [MX+q]))
    sg.drain()
    a(S(f"s_add_u32 s{S_T2}, s{S_T2}, 8192", [S_T2], [S_T2]))
    sg.text(f"s_cmp_lt_u32 s{S_T2}, 65536"); sg.text("s_nop 4"); sg.text("s_cbranch_scc1 L_max_loop")
    sg.text("s_barrier")
    a(S(f"s_mul_i32 s{S_T0}, s{S_W}, 1280", [S_W], [S_T0]))
    a(S(f"s_add_u32 s{S_T0}, s{S_T0}, {96*KB}", [S_T0], [S_T0]))
    a(V(f"v_lshl_add_u32 v{AD}, v{V_LANE}, 2, s{S_T0}", [V_LANE], [AD]))
    a(S(f"s_mov_b32 s{S_T0}, {96*KB}", [], [S_T0]))
    a(V(f"v_lshl_add_u32 v{AD+1}, v{V_N}, 2, s{S_T0}", [V_N], [AD+1]))
    for q in range(5): a(dswr('ds_write_b32', AD, ('v', MX + q), 1, q * 256))
    a(barrier())
    for q in range(5):
        for k in range(16):
            a(dsrd('ds_read_b32', ('v', KF + k), 1, AD + 1, (k >> 2) * 1280 + q * 256 + (k & 3) * 64))
        for k in range(8):
            a(V(f"v_max3_f32 v{MX+q}, v{MX+q}, v{KF+2*k}, v{KF+2*k+1}", [MX+q, KF+2*k, KF+2*k+1], [MX+q]))
        for r in range(4):
            a(V(f"v_sub_f32 v{V_NEGM+q*4+r}, 0, v{MX+q}", [MX+q], [V_NEGM+q*4+r]))
    sg.drain()
    sg.text("s_barrier"); sg.text(f"s_mov_b32 m0, s{S_SPIN}"); sg.text("s_nop 4"); sg.text("s_branch L_back_max")
    return t + sg.out

def stamp_out(sg, n):
    if not opt.stamps or (opt.stamps == 'Z' and n > 1): return
    if opt.stamps == 'Z':
        for x in ["s_load_dwordx2 s[76:77], s[0:1], 56", "s_waitcnt lgkmcnt(0)", f"s_add_u32 s76, s76, {16<<20}", "s_addc_u32 s77, s77, 0", "s_and_b32 s77, s77, 0xffff",
                  "s_mov_b32 s78, 0x100000", "s_mov_b32 s79, 0x20000", "s_lshl_b32 s80, s2, 2", "s_add_u32 s80, s80, s32", "s_lshl_b32 s80, s80, 6", "v_mov_b32 v74, s80",
                  "v_mov_b32 v75, s3", "buffer_store_dword v75, v74, s[76:79], 0 offen sc1"]: sg.text(x)
        return
    stamp(sg, n - 1)
    t = ["s_load_dwordx2 s[4:5], s[0:1], 56", "s_waitcnt lgkmcnt(0)", f"s_add_u32 s4, s4, {16<<20}", "s_addc_u32 s5, s5, 0", "s_and_b32 s5, s5, 0xffff",
         "s_mov_b32 s6, 0x100000", "s_mov_b32 s7, 0x20000", "s_lshl_b32 s8, s2, 2", "s_add_u32 s8, s8, s32", "s_lshl_b32 s8, s8, 6", "v_mov_b32 v2, s8"]
    for i in range(n):
        t += [f"v_mov_b32 v3, s{3 if i == 0 else 76+2*i}", f"buffer_store_dword v3, v2, s[4:7], 0 offen offset:{4*i} sc1"]
    for x in t: sg.text(x)

def kernel():
    sg = Seg()
    sg.text(NAME + "_kernel:")
    sg.text("s_cmp_ge_u32 s2, 256")
    sg.text("s_cbranch_scc1 L_end")
    if opt.stamps:
        stamp(sg, 0)
    p1 = prologue1()
    sg.addall(p1[:2])
    if int(opt.cpf):
        for x in ["; pull the kernel's code into this XCD's L2 (two lines per wave, value unused)", "s_getpc_b64 s[94:95]", "L_pc:", "s_lshr_b32 s3, s2, 3", "v_lshrrev_b32 v8, 6, v0", "v_and_b32 v9, 1, v0", "v_lshl_add_u32 v8, v8, 1, v9",
                  "v_lshl_add_u32 v8, s3, 3, v8", "v_lshlrev_b32 v8, 7, v8", "v_min_u32 v8, (L_code_end - L_pc - 4) & 0xffffff80, v8"] + (["global_load_dword v255, v8, s[94:95]"] if int(opt.cpf) == 1 else ["s_mov_b64 s[12:13], s[94:95]"]): sg.text(x)
    sg.addall(p1[2:])
    if opt.stamps:
        sg.text("s_mov_b32 s3, s76")
    p2 = prologue2()
    Q = Queue()
    first = x_dma(0) + w_dma(0) if not int(opt.wfirst) else w_dma(0) + x_dma(0)
    stamp(sg, 5, 'P')
    Q.push(first)
    weave(sg, Q, [], 9, 0)
    if int(opt.cpf) == 2: sg.text("global_load_dword v255, v8, s[12:13]")
    stamp(sg, 6, 'P')
    sg.addall(p2)
    stamp(sg, 7, 'P')
    sg.text("; workgroup 0 publishes this launch's hand-off tag (a clock value, used only to tell this launch's flags from stale ones)")
    sg.text("s_cmp_lg_u32 s2, 0"); sg.text("s_cbranch_scc1 L_nocz")
    lane0(sg, ["v_mov_b32 v9, 0", f"s_memrealtime s[{S_NON}:{S_NON+1}]", "s_waitcnt lgkmcnt(0)", f"s_or_b32 s{S_NON}, s{S_NON}, 1", f"v_mov_b32 v250, s{S_NON}", f"v_mov_b32 v251, s{S_NON+1}",
               f"buffer_store_dwordx2 v[250:251], v9, s[{S_D}:{S_D+3}], 0 offen sc1"], "L_nocz")
    sg.text("s_branch L_first")
    sg.text("L_restart:")
    s2 = Seg(); s2.addall(restart_setup()); Q2 = Queue(); Q2.push(x_dma(0) + w_dma(0) if not int(opt.wfirst) else w_dma(0) + x_dma(0)); weave(s2, Q2, [], 9, 0)
    for x in s2.out: sg.text(x)
    sg.text("L_first:")
    early, late = prologue3()
    tc = wod_calc() + tail_calc()
    early = early + late + handoff_calc() + tc[:-5]
    def BB(u): return f"B{u + 1}"
    Q.push(w_dma(1) + x_dma(1) + w_dma(2) + w_dma(3) + x_dma(2) + w_dma(4) + ((w_dma(5, 'B2') + x_dma(3)) if int(opt.la) else (x_dma(3) + w_dma(5, 'B2'))) + w_dma(6, 'B3') + w_dma(7, 'B4')
           + kv_dma('k', 0, 'B5') + kv_dma('v', 0, 'B6') + kv_dma('k', 1, 'B8') + kv_dma('v', 1, 'BQ'))
    for i in range(2, 8):
        if not int(opt.nodma): Q.push(kv_dma('k', i) + kv_dma('v', i))
    n0 = int(opt.n0) - 9
    if opt.psched:
        for part_ in opt.psched.split(','):
            ni, nf = [int(x) for x in part_.split(':')]
            weave(sg, Q, [], ni, 0); n0 -= ni
            for _ in range(min(nf, len(early))): sg.add(early.pop(0))
        weave(sg, Q, [], max(0, n0), 0)
    else:
        weave(sg, Q, early, n0, (len(early) + n0 - 1) // n0)
    sg.addall(early)
    qr = phase_a(sg, Q)
    sg.addall(qr[:0])
    stamp(sg, 3)
    sg.text(f"s_cmp_eq_u32 s{S_REDO}, 0"); sg.text("s_cbranch_scc1 L_back_max")
    s2 = Seg(); s2.addall(qr)
    for x in s2.out: sg.text(x)
    sg.text("s_branch L_max")
    sg.text("L_back_max:")
    phase_b(sg, Q, qr)
    combine(sg, Q)
    phase_c(sg, Q)
    sg.text("L_fin:")
    stamp_out(sg, 11)
    sg.text("L_end:")
    sg.text("s_endpgm")
    return sg.out + ['L_code_end:'] + out_of_line()

def report_kernel():
    idx, mode = opt.report.split(',')
    if mode == 'next':
        return ["report_kernel:", "s_cmp_ge_u32 s2, 1", "s_cbranch_scc1 L3_end", "s_memrealtime s[12:13]", "s_load_dwordx2 s[4:5], s[0:1], 56", "s_waitcnt lgkmcnt(0)",
                f"s_add_u32 s4, s4, {17<<20}", "s_addc_u32 s5, s5, 0", "s_and_b32 s5, s5, 0xffff", "s_mov_b32 s6, 64", "s_mov_b32 s7, 0x20000", "v_mov_b32 v1, 0", "v_mov_b32 v2, s12",
                "buffer_store_dword v2, v1, s[4:7], 0 offen", "L3_end:", "s_endpgm"]
    t = ["report_kernel:", "s_cmp_ge_u32 s2, 1", "s_cbranch_scc1 L3_end", "s_memrealtime s[16:17]", "s_load_dwordx2 s[4:5], s[0:1], 56", "s_waitcnt lgkmcnt(0)",
         f"s_add_u32 s4, s4, {16<<20}", "s_addc_u32 s5, s5, 0", "s_and_b32 s5, s5, 0xffff", "s_mov_b32 s6, 0x100000", "s_mov_b32 s7, 0x20000",
         "v_lshlrev_b32 v1, 8, v0", f"buffer_load_dword v2, v1, s[4:7], 0 offen offset:{4*int(idx)}", "buffer_load_dword v3, v1, s[4:7], 0 offen",
         "v_mov_b32 v4, 0", "v_mov_b32 v5, 0", "v_mov_b32 v6, -1", "ds_write_b32 v4, v5", "ds_write_b32 v4, v6 offset:8", "s_waitcnt vmcnt(0) lgkmcnt(0)", "s_barrier",
         "ds_min_u32 v4, v3 offset:8", "s_waitcnt lgkmcnt(0)", "s_barrier", "ds_read_b32 v6, v4 offset:8", "s_waitcnt lgkmcnt(0)", "v_sub_u32 v2, v2, v6",
         "v_lshrrev_b32 v7, 3, v0", "v_mul_u32_u24 v7, 52, v7", "v_lshrrev_b32 v7, 8, v7", "v_and_b32 v8, 1, v0", "v_sub_u32 v8, 6, v8", "v_cmp_lt_u32 vcc, v7, v8",
         "v_min_u32 v2, 10000, v2",
         ("ds_add_u32 v4, v2" if mode == 'mean' else "ds_max_u32 v4, v2"), "s_waitcnt lgkmcnt(0)", "s_barrier", "ds_read_b32 v6, v4", "s_memrealtime s[12:13]", "s_waitcnt lgkmcnt(0)",
         "v_readfirstlane_b32 s10, v6", "s_nop 4"]
    if mode == 'mean': t += ["s_mul_i32 s10, s10, 10", "s_lshr_b32 s10, s10, 8"]
    elif mode == 'max': t += ["s_mul_i32 s10, s10, 10"]
    elif mode == 'gap': t += ["ds_read_b32 v6, v4 offset:8", "s_waitcnt lgkmcnt(0)", "v_readfirstlane_b32 s11, v6", "s_nop 4", "s_sub_u32 s16, s16, s11", "s_sub_u32 s10, s16, s10",
                              "s_min_u32 s10, s10, 2000", "s_mul_i32 s10, s10, 20"]
    else: t += ["s_mov_b32 s10, 0"]
    t += ["L3_spin:", "s_memrealtime s[14:15]", "s_waitcnt lgkmcnt(0)", "s_sub_u32 s14, s14, s12",
          "s_cmp_lt_u32 s14, s10", "s_cbranch_scc1 L3_spin", "L3_end:", "s_endpgm"]
    return t

HEADER = """; Kernarg layout (64 bytes, pointers only, base s[0:1]):
;  24: wq (512,4096) bf16  32: wo (4096,512) bf16   40: d_out (8,80,512) bf16   48: d_debug   56: d_ws
;
; One launch, one workgroup (4 waves) per (batch b, query head hq); hkv = id & 7, j = (id >> 3) & 3, b = id >> 5, hq = 4*hkv + j.
;     Softmax shift m: the first pass uses m = 0, which is exact as long as nothing leaves the fp32 range.  Every row sum is
;     checked against [2^-40, 2^40] (NaN fails too); if any row is outside, the workgroup starts over, computes the true row
;     maxima over all 1024 keys (L_max) and repeats phase B with m = row maximum.
;  C  hand-off 1: O (bf16) goes to the three other heads of the kv group; workgroup (b, hkv, j) multiplies the four heads
;     with wo[hkv*512.., j*128..] -> partial result for 128 output columns.
;     hand-off 2: the eight partial results (one per hkv) are summed in fp32, each workgroup finishing one eighth.
;  and read with sc1.  The tag is a clock value that workgroup 0 publishes in d_debug (zero at launch), so flags left in d_ws
;  by earlier launches never match.  Polls are bounded.  Nothing depends on the XCD a workgroup runs on; the id mapping, the
"""
def build():
    def fmt(l): return "\n".join(x if x.endswith(':') else "    " + x for x in l)
    nm = NAME + "_kernel"
    s = HEADER + "; @launch grid=(256,1,1) block=(256,1,1) lds=163840\n"
    if opt.report:
        s = f"; @launch kernel={nm} grid=(256,1,1) block=(256,1,1) lds=163840\n; @launch kernel=report_kernel grid=(1,1,1) block=(256,1,1) lds=64\n"
    s += '.amdgcn_target "amdgcn-amd-amdhsa--gfx950"\n.text\n'
    s += f".globl {nm}\n.p2align 8\n.type {nm},@function\n" + fmt(kernel()) + "\n"
    if opt.report: s += ".globl report_kernel\n.p2align 8\n.type report_kernel,@function\n" + fmt(report_kernel()) + "\n"
    s += f""".section .rodata,"a"
.p2align 6
.amdhsa_kernel {nm}
  .amdhsa_next_free_vgpr 512
  .amdhsa_next_free_sgpr 102
  .amdhsa_accum_offset 256
  .amdhsa_group_segment_fixed_size 0
  .amdhsa_kernarg_size 64
  .amdhsa_user_sgpr_count 2
  .amdhsa_user_sgpr_kernarg_segment_ptr 1
  .amdhsa_system_sgpr_workgroup_id_x 1
  .amdhsa_float_denorm_mode_32 3
.end_amdhsa_kernel
"""
    if opt.report:
        s += """.p2align 6
.amdhsa_kernel report_kernel
  .amdhsa_next_free_vgpr 32
  .amdhsa_next_free_sgpr 32
  .amdhsa_accum_offset 32
  .amdhsa_group_segment_fixed_size 0
  .amdhsa_kernarg_size 64
  .amdhsa_user_sgpr_count 2
  .amdhsa_user_sgpr_kernarg_segment_ptr 1
  .amdhsa_system_sgpr_workgroup_id_x 1
.end_amdhsa_kernel
"""
    return s

if __name__ == '__main__':
    out = sys.argv[1] if len(sys.argv) > 1 else 'cdna_kernels/' + NAME + '.s'
    for a_ in sys.argv[2:]:
        k, v = a_.split('=', 1)
        setattr(opt, k, (' ' + v) if k.endswith('flags') and v else v)
    HOIST[0] = int(opt.hoist)
    txt = build()
    open(out, 'w').write(txt)
```

```python
import sys, struct, re
from dsl import *

KB = 1024
NAME = 'standalone__gqa_block_cached__near_ridge'
def f2h(x): return hex(struct.unpack('<I', struct.pack('<f', x))[0])
QSCALE = 1.4426950408889634 / (128 ** 0.5)
WS_WO = 8 << 20
WS_CT = 12 << 20

class Opt:
    stamps = ''
    report = ''
    kv_flags = ''
    a_flags = ''
    n0 = 22
    warm = 1
    perstep = 6
    lo_exp = -40
    hi_exp = 40
    spin = 300000
    rt_at = 5
    bar_at = 32
    nodma = 0
    f2rep = 1
    late0 = 0
    lastlag = 0
    psched = ''
    spos = '1,3,5,7'
    bq = 0
    v7s = 1
    b0s = 0
    peek = 0
    pgap = 0
    cpf2_at = 99
    cpf2_skip = 1024
    pairw = 0
    dtch_at = 99
    dtch = 'op'
    dtch_flags = ''
    wpos = '5,16'
    x1e = 0
    c3 = 0
    otr = 1
    otch_at = 99
    otch_flags = ''
    worlate = 1
    pf = 9
    noout = 0
    even_end = 23
    coal = 1
    hoist = 2
    unp = 0
    f2wg = 1
    wfirst = 0
    kvnt = 'x'
    ant = ''
    tch_flags = ''
    wsb = 0
    drain = '45'
    tlb_at = 27
    aonly = 0
    la = 10
    aq = 1
    ownlate = 1
    o_flags = ' sc1'
    f1_flags = ' sc1'
    w64 = 0
    out_flags = ''
    bsched = 1
    p1w = 1
    p2w = 0
    pollk = '19,29,39'
    dyn2 = 1
    qmaj = 1
    tch_at = 27
    even_at = 99
    pdepth = 1
    kvo = 4
    finw = 0
    alim = 16
    cpf = 1
    chain = 1
    wo_at = 33
    calc_at = 16
    nl_at = 8
    nc_at = 13
    cw = 2
    shadow = 9
    bst = '0,5,10,15,20'
    no_rt = 0
    clk = 'r'
    lg0 = 0
    vpos = '1,5,9,13'
    rot_kv = 1
    rot_a = 8
    rot_c = 1
    gl_at = 29
    gc_at = 33
opt = Opt()

S_X, S_WQ, S_K, S_V, S_O, S_WO, S_WT, S_WL, S_C, S_D, S_OUT = 4, 8, 12, 16, 20, 24, 28, 52, 56, 60, 64
S_W, S_B, S_HKV, S_HQ = 32, 33, 34, 35
S_W1K, S_W8K, S_SO, S_T0, S_T1, S_T2, S_SK, S_SV = 36, 37, 38, 39, 40, 41, 42, 43
S_TAB = 44
S_REDO, S_MT, S_NT, S_VALID, S_RT, S_SPIN = 68, 69, 70, 71, 72, 73
S_EX = 74
S_F1, S_F2, S_G1, S_G2 = 100, 101, 72, 51
S_GM = 70
S_J_UNUSED = 3
S_P = 76
S_ST = 80
V_LANE, V_N, V_G, V_T0, V_T1, V_T2, V_T3, V_T4, V_T5 = 1, 2, 3, 4, 5, 6, 7, 8, 9
V_KA, V_VA, V_KD, V_VD = 10, 14, 22, 26
V_OST, V_CW, V_LW = 28, 29, 31
V_ONES, V_NEGM, V_L, V_S, V_P, V_KF, V_VF = 32, 36, 56, 76, 92, 100, 164
V_XA, V_XB, V_WA, V_WB, V_XD, V_WD, V_QW = 76, 56, 80, 82, 84, 85, 86
V_GC = 250
S_NON = 96
V_CR, V_LR, V_WOD, V_WT, V_OL, V_OW, V_OD, V_PS, V_PLD, V_OUT, V_P1, V_P2 = 228, 234, 235, 236, 242, 243, 244, 245, 246, 247, 248, 249
V_ZERO = 9
V_TCH = 64
S_H = 52
S_W5K = 55
S_J = 69
A_O, A_Q = 0, 160
V_OWN = [132, 140, 148, 156, 56]
A_KF1, A_L = 120, 240
def AO(lam, q):
    if lam < 2: return ('v', V_OWN[q] + 4 * lam)
    return ('a', A_O + 4 * (q * 6 + lam - 2))
def KF(i, k): return ('v', V_KF + 4 * k) if i % 2 == 0 else ('a', A_KF1 + 4 * k)
def LA(q): return ('a', A_L + 4 * q) if q < 4 else ('a', 152)
def AQ(q, s): return ('a', A_Q + 4 * (q * 4 + s))

def XU(c, q):
    if c == 0: return q * 4 * KB
    if c == 1: return 20 * KB + q * 4 * KB
    if c == 2: return 128 * KB + q * 4 * KB
    return [120, 124, 148, 152, 156][q] * KB
def WU(slot, ks):
    return {0: [40, 48], 1: [56, 96], 2: [104, 112], 3: [64, 72], 4: [80, 88]}[slot][ks] * KB
WSLOT = [0, 1, 2, 3, 4, 0, 1, 2]
QBUF = 128 * KB

def V(t, r=(), w=()):
    return valu(t, r=[('v', x) if isinstance(x, int) else x for x in r], w=[('v', x) if isinstance(x, int) else x for x in w])
def T(t, r=(), w=()):
    return valu(t, r=[('v', x) for x in r], w=[('v', x) for x in w], trans=True)
def S(t, r=(), w=()):
    return salu(t, r=[('s', x) if isinstance(x, int) else x for x in r], w=[('s', x) if isinstance(x, int) else x for x in w])
M0 = ('m0', 0)
VCC = ('vcc', 0)
def flat(l): return [x for y in l for x in y]

def srd(dst, plo, add_s=None, add_imm=0, size=0):
    o = []
    if add_s is not None or add_imm:
        o.append(S(f"s_add_u32 s{dst}, s{plo}, " + (f"s{add_s}" if add_s is not None else f"{add_imm}"), [plo] + ([add_s] if add_s is not None else []), [dst]))
        o.append(S(f"s_addc_u32 s{dst+1}, s{plo+1}, 0", [plo+1], [dst+1]))
    else: assert dst == plo
    o.append(S(f"s_mov_b32 s{dst+2}, {size}", [], [dst+2]))
    o.append(S(f"s_mov_b32 s{dst+3}, 0x20000", [], [dst+3]))
    return o

KV_ORDER = [[0, 2, 1, 3, 4, 6, 5, 7], [0, 1, 3, 2, 4, 5, 7, 6], [1, 0, 2, 4, 3, 5, 6, 7], [1, 0, 2, 3, 5, 4, 6, 7]]
KV_ORDERS = [KV_ORDER,
  [[0, 4, 1, 2, 3, 5, 6, 7], [1, 0, 5, 2, 3, 4, 6, 7], [2, 0, 1, 6, 3, 4, 5, 7], [3, 0, 1, 2, 7, 4, 5, 6]],
  [[0, 1, 2, 3, 4, 5, 6, 7], [0, 1, 2, 3, 4, 5, 6, 7], [4, 5, 6, 7, 0, 1, 2, 3], [4, 5, 6, 7, 0, 1, 2, 3]],
  [[0, 2, 1, 3, 5, 4, 6, 7], [1, 0, 3, 2, 4, 6, 5, 7], [2, 1, 0, 4, 3, 5, 7, 6], [0, 1, 2, 3, 5, 4, 6, 7]],
  [[0, 1, 2, 4, 3, 5, 6, 7], [1, 0, 2, 3, 5, 4, 6, 7], [2, 0, 1, 3, 4, 6, 5, 7], [0, 1, 3, 2, 4, 5, 7, 6]],
  [[0, 1, 4, 2, 3, 5, 6, 7], [1, 0, 2, 5, 3, 4, 6, 7], [2, 0, 1, 3, 6, 4, 5, 7], [0, 3, 1, 2, 4, 7, 5, 6]],
  [[0, 1, 3, 2, 4, 5, 7, 6], [0, 1, 2, 4, 3, 5, 6, 7], [0, 2, 1, 3, 5, 4, 6, 7], [0, 2, 1, 3, 4, 6, 5, 7]],
  [[0, 1, 2, 4, 3, 5, 6, 7], [1, 0, 3, 2, 5, 4, 6, 7], [2, 3, 0, 1, 4, 6, 5, 7], [3, 2, 1, 0, 4, 5, 7, 6]],
  [[0, 1, 2, 4, 3, 5, 6, 7], [1, 2, 0, 3, 5, 4, 6, 7], [2, 0, 1, 3, 4, 6, 5, 7], [0, 3, 1, 2, 4, 5, 7, 6]]]
def kv_pack(j):
    o = KV_ORDERS[int(opt.kvo)][j] if int(opt.rot_kv) else list(range(8))
    return sum(t << (4 * i) for i, t in enumerate(o))
S_KVO = 98
V_XD4 = 204
S_WC = 99

class Item:
    def __init__(s, pre, ins, after=None): s.pre, s.ins, s.after = pre, ins, after
def x_dma(c, after=None):
    return [Item([S(f"s_add_u32 m0, s{S_W1K}, {XU(c,q)}", [S_W1K], [M0])],
                 dma(V_XD4 + c, S_X, S_TAB + q, 0, ('x', c), flags=(' nt' if 'x' in opt.ant and c < 2 else opt.a_flags)), after) for q in range(5)]
def w_dma(u, after=None):
    o = []
    for k in range(4):
        pre = []
        if k == 0:
            pre.append(S(f"s_add_u32 s{S_SK}, s{S_WC}, {(u & 6) << 19}", [S_WC], [S_SK]))
            pre.append(S(f"s_and_b32 s{S_SK}, s{S_SK}, {7 << 19}", [S_SK], [S_SK]))
            if u & 1: pre.append(S(f"s_xor_b32 s{S_SK}, s{S_SK}, {1 << 19}", [S_SK], [S_SK]))
        pre.append(S(f"s_add_u32 s{S_SO}, s{S_SK}, {k*131072}", [S_SK], [S_SO]))
        pre.append(S(f"s_add_u32 m0, s{S_W1K}, {WU(WSLOT[u], k>>1) + (k&1)*4*KB}", [S_W1K], [M0]))
        o.append(Item(pre, dma(V_WD, S_WQ, S_SO, 0, ('w', u), flags=(' nt' if 'w' in opt.ant and u < 4 else opt.a_flags)), after))
    return o
def kv_dma(kind, i, after=None):
    o = []
    base = (i & 1) * 32 * KB + (0 if kind == 'k' else 64 * KB)
    sr, so = (S_K, S_SK) if kind == 'k' else (S_V, S_SV)
    for j in range(8):
        pre = []
        if j % 4 == 0:
            if j == 0:
                pre.append(S(f"s_bfe_u32 s{so}, s{S_KVO}, {hex((3 << 16) | (4 * i))}", [S_KVO], [so]))
                pre.append(S(f"s_lshl_b32 s{so}, s{so}, 13", [so], [so]))
            else:
                pre.append(S(f"s_add_u32 s{so}, s{so}, 4096", [so], [so]))
            pre.append(S(f"s_add_u32 m0, s{S_W8K}, {base + (j>>2)*4096}", [S_W8K], [M0]))
        va = V_KD + (j & 3) if kind == 'k' else V_VD + (j & 1)
        tag = (kind + 'r', i - 2, j >> 2)
        o.append(Item(pre, dma(va, sr, so, 1024 * (j & 3), (kind, i, j >> 2), needlg=[tag], flags=(' nt' if str(i) in str(opt.kvnt) else opt.kv_flags)), after if i < 2 else tag))
    return o
def k_reads(i):
    return [dsrd('ds_read_b128', KF(i, t * 4 + s), 4, V_KA + s, (i & 1) * 32 * KB + t * 4096,
                 needvm=[('k', i, t)], lgtag=('kr', i, t)) for t in range(2) for s in range(4)]
def v_reads(i):
    return [dsrd('ds_read_b64_tr_b16', ('v', V_VF + (i & 1) * 32 + lam * 4 + h * 2), 2, V_VA + lam, (i & 1) * 32 * KB + h * 4096,
                 needvm=[('v', i, h)], lgtag=('vr', i, h)) for h in range(2) for lam in range(8)]

class Queue:
    def __init__(s): s.q = []; s.pts = set()
    def push(s, items): s.q += items
    def mark(s, p): s.pts.add(p)
    def pop(s):
        if s.q and (s.q[0].after is None or s.q[0].after in s.pts): return s.q.pop(0)
        return None

def place(gaps, Q, pos):
    last = -1
    for p in pos:
        if p >= len(gaps): continue
        it = Q.pop()
        if it is None: break
        pre = list(it.pre)
        avail = list(range(last + 1, p))
        front = []
        if not avail: front = pre
        else:
            slots = [[] for _ in avail]
            for k_, x in enumerate(reversed(pre)):
                slots[max(0, len(avail) - 1 - k_)].insert(0, x)
            for g, sl in zip(avail, slots):
                k_ = 0
                while k_ < len(gaps[g]) and gaps[g][k_].k == 'salu': k_ += 1
                gaps[g][k_:k_] = sl
        k = 0
        while k < len(gaps[p]) and gaps[p][k].k == 'salu': k += 1
        gaps[p][k:k] = front + [it.ins]
        last = p
def weave(sg, Q, fill, n, per):
    for _ in range(n):
        it = Q.pop()
        if it is not None: sg.addall(it.pre + [it.ins])
        for _ in range(per):
            if fill: sg.add(fill.pop(0))

NST = 12
def stamp(sg, i, grp='1'):
    if not opt.stamps: return
    if opt.stamps == 'Z' and i: return
    if 5 <= i <= 9 and grp != opt.stamps: return
    sg.text(f"{'s_memtime' if opt.clk == 'c' else 's_memrealtime'} s[{76+2*i}:{77+2*i}]")

def prologue1():
    o = []; a = o.append
    a(raw("s_load_dwordx2 s[92:93], s[0:1], 0"))
    a(raw("s_load_dwordx2 s[26:27], s[0:1], 24"))
    a(V(f"v_lshrrev_b32 v{V_T0}, 6, v0", [0], [V_T0]))
    a(V(f"v_and_b32 v{V_LANE}, 63, v0", [0], [V_LANE]))
    a(V(f"v_readfirstlane_b32 s{S_W}, v{V_T0}", [V_T0], [('s', S_W)]))
    a(S(f"s_and_b32 s{S_HKV}, s2, 7", [2], [S_HKV]))
    a(S(f"s_lshr_b32 s{S_B}, s2, 5", [2], [S_B]))
    a(S(f"s_bfe_u32 s{S_T0}, s2, 0x20003", [2], [S_T0]))
    a(S(f"s_mov_b32 s{S_J}, s{S_T0}", [S_T0], [S_J]))
    a(S(f"s_lshl_b32 s{S_HQ}, s{S_HKV}, 2", [S_HKV], [S_HQ]))
    a(S(f"s_add_u32 s{S_HQ}, s{S_HQ}, s{S_T0}", [S_HQ, S_T0], [S_HQ]))
    if int(opt.rot_a) == 2:
        a(S(f"s_add_u32 s{S_VALID}, s{S_T0}, s{S_B}", [S_T0, S_B], [S_VALID]))
        a(S(f"s_and_b32 s{S_VALID}, s{S_VALID}, 1", [S_VALID], [S_VALID]))
        a(S(f"s_lshl_b32 s{S_VALID}, s{S_VALID}, 2", [S_VALID], [S_VALID]))
    elif int(opt.rot_a) in (5, 6):
        a_, b_ = (S_B, S_T0) if int(opt.rot_a) == 5 else (S_T0, S_B)
        a(S(f"s_lshl_b32 s{S_VALID}, s{b_}, 1", [b_], [S_VALID]))
        a(S(f"s_add_u32 s{S_VALID}, s{S_VALID}, s{a_}", [S_VALID, a_], [S_VALID]))
        a(S(f"s_and_b32 s{S_VALID}, s{S_VALID}, 3", [S_VALID], [S_VALID]))
        a(S(f"s_lshl_b32 s{S_VALID}, s{S_VALID}, 1", [S_VALID], [S_VALID]))
    elif int(opt.rot_a) in (8, 9):
        a(S(f"s_add_u32 s{S_VALID}, s{S_T0}, s{S_B}", [S_T0, S_B], [S_VALID]))
        a(S(f"s_lshl_b32 s{S_VALID}, s{S_VALID}, 1", [S_VALID], [S_VALID]))
        a(S(f"s_and_b32 s{S_T1}, s{S_HKV}, {1 if int(opt.rot_a) == 8 else 3}", [S_HKV], [S_T1]))
        a(S(f"s_add_u32 s{S_VALID}, s{S_VALID}, s{S_T1}", [S_VALID, S_T1], [S_VALID]))
        a(S(f"s_and_b32 s{S_VALID}, s{S_VALID}, 3", [S_VALID], [S_VALID]))
        a(S(f"s_lshl_b32 s{S_VALID}, s{S_VALID}, 1", [S_VALID], [S_VALID]))
    elif int(opt.rot_a) == 7:
        a(S(f"s_add_u32 s{S_VALID}, s{S_T0}, s{S_B}", [S_T0, S_B], [S_VALID]))
        a(S(f"s_and_b32 s{S_VALID}, s{S_VALID}, 1", [S_VALID], [S_VALID]))
        a(S(f"s_lshl_b32 s{S_VALID}, s{S_VALID}, 2", [S_VALID], [S_VALID]))
        a(S(f"s_bfe_u32 s{S_T1}, s{S_B}, 0x10001", [S_B], [S_T1]))
        a(S(f"s_or_b32 s{S_VALID}, s{S_VALID}, s{S_T1}", [S_VALID, S_T1], [S_VALID]))
    elif int(opt.rot_a) == 4:
        a(S(f"s_add_u32 s{S_VALID}, s{S_T0}, s{S_B}", [S_T0, S_B], [S_VALID]))
        a(S(f"s_and_b32 s{S_VALID}, s{S_VALID}, 3", [S_VALID], [S_VALID]))
        a(S(f"s_lshl_b32 s{S_VALID}, s{S_VALID}, 1", [S_VALID], [S_VALID]))
    elif int(opt.rot_a):
        a(S(f"s_lshl_b32 s{S_T0}, s{S_T0}, 1", [S_T0], [S_T0]))
        a(S(f"s_add_u32 s{S_VALID}, s{S_T0}, s{S_B}", [S_T0, S_B], [S_VALID]))
        a(S(f"s_and_b32 s{S_VALID}, s{S_VALID}, 7", [S_VALID], [S_VALID]))
    else:
        a(S(f"s_mov_b32 s{S_VALID}, 0", [], [S_VALID]))
    a(V(f"v_and_b32 v{V_N}, 15, v{V_LANE}", [V_LANE], [V_N]))
    a(V(f"v_lshrrev_b32 v{V_G}, 4, v{V_LANE}", [V_LANE], [V_G]))
    a(S(f"s_lshl_b32 s{S_W1K}, s{S_W}, 10", [S_W], [S_W1K]))
    a(S(f"s_lshl_b32 s{S_W8K}, s{S_W}, 13", [S_W], [S_W8K]))
    a(V(f"v_lshl_add_u32 v{V_T0}, s{S_W}, 2, v{V_G}", [V_G, ('s', S_W)], [V_T0]))
    a(V(f"v_xor_b32 v{V_T1}, v{V_N}, v{V_T0}", [V_N, V_T0], [V_T1]))
    a(V(f"v_lshlrev_b32 v{V_T1}, 4, v{V_T1}", [V_T1], [V_T1]))
    a(V(f"v_lshl_add_u32 v{V_XD}, v{V_T0}, 10, v{V_T1}", [V_T0, V_T1], [V_XD]))
    a(S(f"s_and_b32 s{S_T0}, s{S_W}, 2", [S_W], [S_T0]))
    a(S(f"s_lshl_b32 s{S_T0}, s{S_T0}, 2", [S_T0], [S_T0]))
    a(V(f"v_lshl_add_u32 v{V_T1}, v{V_G}, 1, s{S_T0}", [V_G, ('s', S_T0)], [V_T1]))
    a(V(f"v_xor_b32 v{V_T1}, v{V_N}, v{V_T1}", [V_N, V_T1], [V_T1]))
    a(V(f"v_lshlrev_b32 v{V_T1}, 4, v{V_T1}", [V_T1], [V_T1]))
    a(V(f"v_lshl_add_u32 v{V_WD}, v{V_T0}, 13, v{V_T1}", [V_T0, V_T1], [V_WD]))
    a(S(f"s_mul_i32 s{S_T0}, s{S_B}, 81920", [S_B], [S_T0]))
    a(S(f"s_lshl_b32 s{S_T2}, s{S_HQ}, 8", [S_HQ], [S_T2]))
    a(S(f"s_sub_u32 s{S_T1}, 4194304, s{S_T2}", [S_T2], [S_T1]))
    a(S(f"s_mov_b32 s{S_REDO}, 0", [], [S_REDO]))
    a(S(f"s_lshl_b32 s{S_WC}, s{S_VALID}, 19", [S_VALID], [S_WC]))
    a(S(f"s_mov_b64 s[{S_GM}:{S_GM+1}], -1", [], [S_GM, S_GM+1]))
    o += restart_setup()
    a(S(f"s_mov_b32 s{S_X+2}, 81920", [], [S_X+2])); a(S(f"s_mov_b32 s{S_X+3}, 0x20000", [], [S_X+3]))
    a(S(f"s_mov_b32 s{S_WQ+2}, s{S_T1}", [S_T1], [S_WQ+2])); a(S(f"s_mov_b32 s{S_WQ+3}, 0x20000", [], [S_WQ+3]))
    a(raw("s_waitcnt lgkmcnt(0)", 'wait'))
    o += srd(S_X, 92, add_s=S_T0, size=81920)[:2]
    o += srd(S_WQ, 26, add_s=S_T2, size=0)[:2]
    for dst, off in ((S_K, 8), (S_V, 16), (S_WO, 32), (S_OUT, 40), (S_D, 48), (S_O, 56)):
        a(raw(f"s_load_dwordx2 s[{dst}:{dst+1}], s[0:1], {off}"))
    return o

def restart_setup():
    o = [S(f"s_mov_b32 s{S_TAB+q}, {q*16384}", [], [S_TAB+q]) for q in range(5)]
    for c in range(4):
        o.append(S(f"s_lshr_b32 s{S_SO}, s{S_WC}, 12", [S_WC], [S_SO]))
        o.append(S(f"s_add_u32 s{S_SO}, s{S_SO}, {c*256}", [S_SO], [S_SO]))
        o.append(S(f"s_and_b32 s{S_SO}, s{S_SO}, 0x300", [S_SO], [S_SO]))
        o.append(V(f"v_add_u32 v{V_XD4+c}, s{S_SO}, v{V_XD}", [V_XD, ('s', S_SO)], [V_XD4+c]))
    return o

def prologue2():
    o = []; a = o.append
    a(raw("s_waitcnt lgkmcnt(0)", 'wait'))
    a(S(f"s_lshl_b32 s{S_T0}, s{S_B}, 3", [S_B], [S_T0]))
    a(S(f"s_add_u32 s{S_T0}, s{S_T0}, s{S_HKV}", [S_T0, S_HKV], [S_T0]))
    a(S(f"s_lshl_b32 s{S_T0}, s{S_T0}, 2", [S_T0], [S_T0]))
    a(S(f"s_add_u32 s{S_T0}, s{S_T0}, s{S_W}", [S_T0, S_W], [S_T0]))
    a(S(f"s_lshl_b32 s{S_T0}, s{S_T0}, 16", [S_T0], [S_T0]))
    o += srd(S_K, S_K, add_s=S_T0, size=65536)
    o += srd(S_V, S_V, add_s=S_T0, size=65536)
    a(S(f"s_lshl_b32 s{S_T0}, s{S_HKV}, 19", [S_HKV], [S_T0]))
    o += srd(S_WO, S_WO, add_s=S_T0, size=524288)
    o += srd(S_WT, S_O, add_imm=WS_WO, size=8*4*20*8*1024)
    o += srd(S_C, S_O, add_imm=WS_CT, size=262144)
    o += srd(S_O, S_O, size=8*5*128*1024)
    o += srd(S_D, S_D, size=256)
    o += srd(S_OUT, S_OUT, size=655360)
    a(S(f"s_bitcmp1_b32 s{S_HQ}, 0", [S_HQ], []))
    a(S(f"s_mov_b32 s{S_T0}, {hex(kv_pack(0))}", [], [S_T0]))
    a(S(f"s_cselect_b32 s{S_T0}, {hex(kv_pack(1))}, s{S_T0}", [S_T0], [S_T0]))
    a(S(f"s_mov_b32 s{S_T1}, {hex(kv_pack(2))}", [], [S_T1]))
    a(S(f"s_cselect_b32 s{S_T1}, {hex(kv_pack(3))}, s{S_T1}", [S_T1], [S_T1]))
    a(S(f"s_bitcmp1_b32 s{S_HQ}, 1", [S_HQ], []))
    a(S(f"s_cselect_b32 s{S_KVO}, s{S_T1}, s{S_T0}", [S_T0, S_T1], [S_KVO]))
    for p in range(3):
        a(S(f"s_cmp_le_u32 s{S_J}, {p}", [S_J], []))
        a(S(f"s_cselect_b32 s{S_T1}, {p + 1}, {p}", [], [S_T1]))
        a(S(f"s_lshl_b32 s{S_H+p}, s{S_T1}, 17", [S_T1], [S_H+p]))
    a(S(f"s_mul_i32 s{S_W5K}, s{S_W}, 5120", [S_W], [S_W5K]))
    a(S(f"s_lshl_b32 s{S_T0}, s{S_B}, 14", [S_B], [S_T0]))
    a(S(f"s_lshl_b32 s{S_T1}, s{S_W}, 7", [S_W], [S_T1]))
    a(S(f"s_add_u32 s{S_T0}, s{S_T0}, s{S_T1}", [S_T0, S_T1], [S_T0]))
    a(S(f"s_lshl_b32 s{S_F1}, s{S_HQ}, 9", [S_HQ], [S_F1]))
    a(S(f"s_add_u32 s{S_F1}, s{S_F1}, s{S_T0}", [S_F1, S_T0], [S_F1]))
    a(S(f"s_add_u32 s{S_F2}, s{S_F1}, 131072", [S_F1], [S_F2]))
    if int(opt.f2wg) and not int(opt.f2rep): a(S(f"s_andn2_b32 s{S_F2}, s{S_F2}, 0x180", [S_F2], [S_F2]))
    a(S(f"s_lshl_b32 s{S_T1}, s{S_HKV}, 11", [S_HKV], [S_T1]))
    a(S(f"s_lshl_b32 s{S_G1}, s{S_J}, 3", [S_J], [S_G1]))
    a(S(f"s_add_u32 s{S_G1}, s{S_G1}, s{S_T1}", [S_G1, S_T1], [S_G1]))
    a(S(f"s_add_u32 s{S_G1}, s{S_G1}, s{S_T0}", [S_G1, S_T0], [S_G1]))
    a(S(f"s_lshl_b32 s{S_T1}, s{S_J}, 9", [S_J], [S_T1]))
    a(S(f"s_lshl_b32 s{S_G2}, s{S_HKV}, 3", [S_HKV], [S_G2]))
    a(S(f"s_add_u32 s{S_G2}, s{S_G2}, s{S_T1}", [S_G2, S_T1], [S_G2]))
    a(S(f"s_add_u32 s{S_G2}, s{S_G2}, s{S_T0}", [S_G2, S_T0], [S_G2]))
    a(S(f"s_add_u32 s{S_G2}, s{S_G2}, 131072", [S_G2], [S_G2]))
    return o

def prologue3():
    o = []; a = o.append
    a(S(f"s_bfe_u32 s{S_T1}, s{S_WC}, 0x10013", [S_WC], [S_T1]))
    a(S(f"s_lshl_b32 s{S_T1}, s{S_T1}, 3", [S_T1], [S_T1]))
    a(V(f"v_xor_b32 v{V_T1}, s{S_T1}, v{V_N}", [V_N, ('s', S_T1)], [V_T1]))
    a(V(f"v_xor_b32 v{V_T0}, v{V_G}, v{V_T1}", [V_G, V_T1], [V_T0]))
    a(V(f"v_lshlrev_b32 v{V_T0}, 4, v{V_T0}", [V_T0], [V_T0]))
    a(V(f"v_lshl_add_u32 v{V_XA}, v{V_N}, 8, v{V_T0}", [V_N, V_T0], [V_XA]))
    for s in range(1, 4): a(V(f"v_xor_b32 v{V_XA+s}, {64*s}, v{V_XA}", [V_XA], [V_XA+s]))
    for s in range(4): a(V(f"v_add_u32 v{V_XB+s}, {120*KB}, v{V_XA+s}", [V_XA+s], [V_XB+s]))
    a(V(f"v_lshrrev_b32 v{V_T2}, 2, v{V_N}", [V_N], [V_T2]))
    a(V(f"v_bfe_u32 v{V_T3}, v{V_N}, 1, 1", [V_N], [V_T3]))
    a(V(f"v_and_b32 v{V_T4}, 1, v{V_N}", [V_N], [V_T4]))
    a(V(f"v_lshlrev_b32 v{V_T4}, 3, v{V_T4}", [V_T4], [V_T4]))
    a(V(f"v_and_b32 v{V_T5}, 1, v{V_G}", [V_G], [V_T5]))
    a(V(f"v_lshl_add_u32 v{V_T5}, v{V_T5}, 2, v{V_T2}", [V_T5, V_T2], [V_T5]))
    a(V(f"v_lshlrev_b32 v{V_T5}, 1, v{V_T5}", [V_T5], [V_T5]))
    a(S(f"s_lshl_b32 s{S_T1}, s{S_W}, 2", [S_W], [S_T1]))
    a(V(f"v_lshl_add_u32 v{V_T1}, v{V_G}, 3, v{V_T2}", [V_G, V_T2], [V_T1]))
    a(V(f"v_lshl_add_u32 v{V_T1}, v{V_T1}, 8, v{V_T4}", [V_T1, V_T4], [V_T1]))
    a(V(f"v_add_u32 v{V_T3}, s{S_T1}, v{V_T3}", [V_T3, ('s', S_T1)], [V_T3]))
    a(V(f"v_xor_b32 v{V_T3}, v{V_T3}, v{V_T5}", [V_T3, V_T5], [V_T3]))
    a(V(f"v_lshl_add_u32 v{V_T0}, v{V_T3}, 4, v{V_T1}", [V_T3, V_T1], [V_T0]))
    a(V(f"v_add_u32 v{V_WA}, {40*KB}, v{V_T0}", [V_T0], [V_WA]))
    a(V(f"v_add_u32 v{V_WB}, {96*KB}, v{V_T0}", [V_T0], [V_WB]))
    a(V(f"v_xor_b32 v{V_WA+1}, 32, v{V_WA}", [V_WA], [V_WA+1]))
    a(V(f"v_xor_b32 v{V_WB+1}, 32, v{V_WB}", [V_WB], [V_WB+1]))
    a(V(f"v_lshl_add_u32 v{V_T1}, v{V_G}, 2, v{V_T2}", [V_G, V_T2], [V_T1]))
    n_early = len(o)
    for s in range(4):
        a(V(f"v_add_u32 v{V_KA+s}, s{S_W8K}, v{V_XA+s}", [V_XA+s, ('s', S_W8K)], [V_KA+s]))
    a(V(f"v_lshl_add_u32 v{V_T1}, v{V_T1}, 8, v{V_T4}", [V_T1, V_T4], [V_T1]))
    a(V(f"v_lshl_add_u32 v{V_WT}, v{V_T3}, 4, v{V_T1}", [V_T3, V_T1], [V_WT]))
    a(S(f"s_add_u32 s{S_T2}, s{S_W8K}, {64*KB}", [S_W8K], [S_T2]))
    a(V(f"v_add_u32 v{V_VA}, s{S_T2}, v{V_WT}", [V_WT, ('s', S_T2)], [V_VA]))
    for lam in range(1, 8): a(V(f"v_xor_b32 v{V_VA+lam}, {32*lam}, v{V_VA}", [V_VA], [V_VA+lam]))
    a(V(f"v_xor_b32 v{V_WT+1}, 32, v{V_WT}", [V_WT], [V_WT+1]))
    for e in range(2):
        a(V(f"v_add_u32 v{V_WT+2+e}, {64*KB}, v{V_WT+e}", [V_WT+e], [V_WT+2+e]))
        a(V(f"v_add_u32 v{V_WT+4+e}, {128*KB}, v{V_WT+e}", [V_WT+e], [V_WT+4+e]))
    a(V(f"v_xor_b32 v{V_T0}, v{V_N}, v{V_G}", [V_N, V_G], [V_T0]))
    a(V(f"v_lshlrev_b32 v{V_T0}, 4, v{V_T0}", [V_T0], [V_T0]))
    a(V(f"v_lshl_add_u32 v{V_KD}, v{V_G}, 8, v{V_T0}", [V_G, V_T0], [V_KD]))
    for j in range(1, 4):
        a(V(f"v_xor_b32 v{V_KD+j}, {64*j}, v{V_KD}", [V_KD], [V_KD+j]))
    a(V(f"v_lshlrev_b32 v{V_T0}, 1, v{V_G}", [V_G], [V_T0]))
    a(V(f"v_xor_b32 v{V_T0}, v{V_N}, v{V_T0}", [V_N, V_T0], [V_T0]))
    a(V(f"v_lshlrev_b32 v{V_T0}, 4, v{V_T0}", [V_T0], [V_T0]))
    a(V(f"v_lshl_add_u32 v{V_VD}, v{V_G}, 8, v{V_T0}", [V_G, V_T0], [V_VD]))
    a(V(f"v_xor_b32 v{V_VD+1}, 128, v{V_VD}", [V_VD], [V_VD+1]))
    a(V(f"v_lshrrev_b32 v{V_T0}, 1, v{V_G}", [V_G], [V_T0]))
    a(V(f"v_add_u32 v{V_T0}, s{S_T1}, v{V_T0}", [V_T0, ('s', S_T1)], [V_T0]))
    a(V(f"v_xor_b32 v{V_T0}, v{V_T0}, v{V_N}", [V_T0, V_N], [V_T0]))
    a(V(f"v_lshlrev_b32 v{V_T0}, 4, v{V_T0}", [V_T0], [V_T0]))
    a(V(f"v_lshl_add_u32 v{V_T0}, v{V_N}, 8, v{V_T0}", [V_N, V_T0], [V_T0]))
    a(V(f"v_and_b32 v{V_T1}, 1, v{V_G}", [V_G], [V_T1]))
    a(V(f"v_lshl_add_u32 v{V_T0}, v{V_T1}, 3, v{V_T0}", [V_T0, V_T1], [V_T0]))
    a(V(f"v_add_u32 v{V_QW}, {QBUF}, v{V_T0}", [V_T0], [V_QW]))
    a(V(f"v_xor_b32 v{V_QW+1}, 32, v{V_QW}", [V_QW], [V_QW+1]))
    a(V(f"v_lshl_add_u32 v{V_CW}, v{V_LANE}, 4, s{S_W8K}", [V_LANE, ('s', S_W8K)], [V_CW]))
    a(V(f"v_add_u32 v{V_CW+1}, {64*KB}, v{V_CW}", [V_CW], [V_CW+1]))
    a(S(f"s_add_u32 s{S_T0}, s{S_W8K}, {102*KB}", [S_W8K], [S_T0]))
    a(V(f"v_lshl_add_u32 v{V_LW}, v{V_LANE}, 5, s{S_T0}", [V_LANE, ('s', S_T0)], [V_LW]))
    a(S(f"s_mul_i32 s{S_T0}, s{S_B}, 640", [S_B], [S_T0]))
    a(S(f"s_lshl_b32 s{S_T2}, s{S_HQ}, 2", [S_HQ], [S_T2]))
    a(S(f"s_add_u32 s{S_T0}, s{S_T0}, s{S_T2}", [S_T0, S_T2], [S_T0]))
    a(S(f"s_add_u32 s{S_T0}, s{S_T0}, s{S_W}", [S_T0, S_W], [S_T0]))
    a(S(f"s_lshl_b32 s{S_T0}, s{S_T0}, 10", [S_T0], [S_T0]))
    a(V(f"v_lshl_add_u32 v{V_OST}, v{V_LANE}, 4, s{S_T0}", [V_LANE, ('s', S_T0)], [V_OST]))
    a(V(f"v_cmp_eq_u32 vcc, 0, v{V_N}", [V_N], [VCC]))
    a(V(f"v_mov_b32 v{V_T0}, 0x3f803f80", [], [V_T0]))
    for i in range(4):
        a(V(f"v_cndmask_b32 v{V_ONES+i}, 0, v{V_T0}, vcc", [V_T0, VCC], [V_ONES+i]))
    for i in range(0, 20, 2):
        a(V(f"v_mov_b64 v[{V_NEGM+i}:{V_NEGM+i+1}], 0", [], [V_NEGM+i, V_NEGM+i+1]))
    return o[:n_early], o[n_early:]

V_QACC = V_VF
def AF(kap):
    return [(100, 120), (128, 148), (208, 156)][kap % 3]
def a_reads(kap):
    u, ks = kap >> 1, kap & 1
    c, s = u >> 1, kap & 3
    xf, wf = AF(kap)
    wb = WU(WSLOT[u], ks)
    xr = []
    for q in range(5):
        xb = XU(c, q)
        reg, base = (V_XA, 0) if xb < 64 * KB else (V_XB, 120 * KB)
        xr.append(dsrd('ds_read_b128', ('v', xf + q * 4), 4, reg + s, xb - base))
    wr = []
    for e in range(2):
        for h in range(2):
            reg, base = (V_WA, 40 * KB) if wb < 96 * KB else (V_WB, 96 * KB)
            wr.append(dsrd('ds_read_b64_tr_b16', ('v', wf + e * 4 + h * 2), 2, reg + e, wb - base + h * 1024))
    return wr[:2] + xr[:1] + wr[2:] + xr[1:]
def a_mfmas(kap):
    o = []
    xf, wf = AF(kap)
    for q in range(5):
        for e in range(2):
            d = ('v', V_QACC + (e * 5 + q) * 4)
            o.append(mfma(d, ('v', wf + e * 4), ('v', xf + q * 4), 0 if kap == 0 else d))
    return o
def lane0(sg, body, lab):
    sg.text(f"s_cmp_lg_u32 s{S_W}, 0"); sg.text(f"s_cbranch_scc1 {lab}")
    sg.text(f"s_mov_b64 s[{S_EX}:{S_EX+1}], exec"); sg.text("s_mov_b64 exec, 1")
    for x in body: sg.text(x)
    sg.text(f"s_mov_b64 exec, s[{S_EX}:{S_EX+1}]")
    sg.text(f"{lab}:")
def phase_a(sg, Q):
    stamp(sg, 1)
    sg.add(barrier(needvm=[('x', 0), ('w', 0)])); Q.mark('B0')
    stamp(sg, 2)
    sg.addall(a_reads(0)); sg.addall(a_reads(1))
    sg.add(S(f"s_mov_b32 s{S_T1}, {f2h(QSCALE)}", [], [S_T1]))
    sg.add(S(f"s_mov_b32 s{S_T2}, {f2h(QSCALE)}", [], [S_T2]))
    for kap in range(14 if int(opt.aq) else 16):
        mf = a_mfmas(kap)
        gaps = [[] for _ in mf]
        nx = kap + 2
        if nx < (14 if int(opt.lastlag) else 16):
            if nx % 2 == 0:
                u = nx >> 1
                need = [('x', u >> 1), ('w', u)]
                while any(it.ins.vmtag in need for it in Q.q):
                    n_ = len(Q.q); weave(sg, Q, [], 1, 0); assert len(Q.q) < n_, (u, Q.q[0].after)
                while True:
                    younger = 0
                    for tg, _w in reversed(sg.vm):
                        if tg in need: break
                        younger += 1
                    n_ = len(Q.q)
                    if younger >= int(opt.la): break
                    weave(sg, Q, [], 1, 0)
                    if len(Q.q) == n_: break
                dr = str(u) in str(opt.drain)
                sg.add(barrier(needvm=need, lg0=dr)); Q.mark(f'B{u}')
                if dr: Q.mark(f'B{u+1}')
                if u in (1, 3, 5, 7): stamp(sg, 5 + u // 2, 'A')
            for i, r in enumerate(a_reads(nx)): gaps[i].append(r)
        mf[0].r |= set(R('v', AF(kap)[0], 20) + R('v', AF(kap)[1], 8))
        pos = [1, 5, 9] if kap % 2 == 0 else [3, 7]
        if int(opt.perstep) == 6: pos = [1, 4, 7] if kap % 2 == 0 else [1, 4, 8]
        if int(opt.perstep) == 7: pos = [1, 4, 6, 9] if kap % 2 == 0 else [2, 5, 8]
        if int(opt.perstep) == 8: pos = [1, 4, 6, 9]
        nkv = sum(1 for it in Q.q if it.ins.vmtag[0] in 'kv')
        room = int(opt.alim) - (128 - nkv) + (len(Q.q) - nkv)
        place(gaps, Q, pos[:max(0, room)])
        if int(opt.aonly): sg.addall([x for x in interleave(mf, gaps) if x.k not in ('mfma', 'dsrd')])
        else: sg.addall(interleave(mf, gaps))
    if int(opt.lastlag):
        need = [('w', 7)]
        while any(it.ins.vmtag in need for it in Q.q): weave(sg, Q, [], 1, 0)
        sg.add(barrier(needvm=need, lg0=False)); Q.mark('B7')
        stamp(sg, 8, 'A')
        r14, r15 = a_reads(14), a_reads(15)
        sg.addall(r14[:3] + r15[:3] + r14[3:5] + r15[3:5] + flat([[r14[k], r15[k]] for k in range(5, 9)]))
    def qfin(q, e, packed):
        b = V_QACC + (e * 5 + q) * 4
        if packed: f_ = [V(f"v_pk_mul_f32 v[{b+r}:{b+r+1}], v[{b+r}:{b+r+1}], s[{S_T1}:{S_T1+1}]", [b+r, b+r+1], [b+r, b+r+1]) for r in (0, 2)]
        else: f_ = [V(f"v_mul_f32 v{b+r}, s{S_T1}, v{b+r}", [b+r], [b+r]) for r in range(4)]
        f_.append(V(f"v_cvt_pk_bf16_f32 v{b}, v{b}, v{b+1}", [b, b+1], [b]))
        f_.append(V(f"v_cvt_pk_bf16_f32 v{b+1}, v{b+2}, v{b+3}", [b+2, b+3], [b+1]))
        f_.append(dswr('ds_write_b64', V_QW + e, ('v', b), 2, q * 4096, lgtag='qw'))
        return f_
    todo = [(q, e) for q in range(5) for e in range(2)]
    if int(opt.aq):
        m14, m15 = a_mfmas(14), a_mfmas(15)
        if not int(opt.lastlag): m14[0].r |= set(R('v', AF(14)[0], 20) + R('v', AF(14)[1], 8))
        mf = flat([[m14[k], m15[k]] for k in range(10)])
        gaps = [[] for _ in mf]
        gi = 5
        while todo and gi + 3 <= 19:
            f_ = qfin(*todo.pop(0), False)
            gaps[gi] += f_[0:2]; gaps[gi + 1] += f_[2:4]; gaps[gi + 2] += f_[4:6]; gaps[gi + 3] = [f_[6]] + gaps[gi + 3]
            gi += 3
        nkv = sum(1 for it in Q.q if it.ins.vmtag[0] in 'kv')
        place(gaps, Q, [1, 4][:max(0, int(opt.alim) - (128 - nkv))])
        sg.addall(interleave(mf, gaps))
    stamp(sg, 9, 'A')
    for q, e in todo: sg.addall(qfin(q, e, True))
    while any(it.ins.vmtag in (('k', 0, 0), ('k', 0, 1)) for it in Q.q): weave(sg, Q, [], 1, 0)
    b = barrier(lg0=False); b.needlg = ('qw',)
    sg.addall(k_reads(0)); Q.mark(('kr', 0, 0)); Q.mark(('kr', 0, 1))
    sg.add(b); Q.mark('BQ'); Q.mark('B8')
    qr = [dsrd('ds_read_b128', AQ(q, s), 4, V_XB + s, QBUF - 120 * KB + q * 4096) for q in range(5) for s in range(4)]
    return qr

def TQ(tau):
    return divmod(tau, 5) if tau < 30 else (6 + ((tau - 30) & 1), (tau - 30) >> 1)
def qk(tau):
    i, q = TQ(tau)
    o = []
    for s, t in ([(s, t) for t in range(2) for s in range(4)] if int(opt.chain) else [(s, t) for s in range(4) for t in range(2)]):
        if True:
            d = ('v', V_S + (tau & 1) * 8 + t * 4)
            o.append(mfma(d, KF(i, t * 4 + s), AQ(q, s), ('v', V_NEGM + q * 4) if s == 0 else d))
            if s == 0 and int(opt.coal) and tau > 4: o[-1].r |= set(R(*KF(i, t * 4), 16))
    return o
def pv(tau):
    i, q = TQ(tau)
    p = ('v', V_P + (tau & 1) * 4)
    o = [mfma(AO(lam, q), ('v', V_VF + (i & 1) * 32 + lam * 4), p, AO(lam, q) if i else 0) for lam in range(8)]
    if int(opt.coal) and int(opt.late0) < i < 7 + int(opt.v7s) and i > 0: o[0].r |= set(R('v', V_VF + (i & 1) * 32, 24)); o[5].r |= set(R('v', V_VF + (i & 1) * 32 + 24, 8))
    o.insert(0, mfma(LA(q), ('v', V_ONES), p, LA(q) if i else 0))
    return o
def sm(tau):
    b = V_S + (tau & 1) * 8
    p = V_P + (tau & 1) * 4
    e = [T(f"v_exp_f32 v{b+i}, v{b+i}", [b+i], [b+i]) for i in range(8)]
    c = [V(f"v_cvt_pk_bf16_f32 v{p+i}, v{b+2*i}, v{b+2*i+1}", [b+2*i, b+2*i+1], [p+i]) for i in range(4)]
    return e, c
def comb_writes(q):
    o = []
    for jd in range(1, 4):
        for e in range(2):
            u = q * 6 + (jd - 1) * 2 + e
            row = u >> 3
            o.append(dswr('ds_write_b128', V_CW + (row >> 1), AO(2 * jd + e, q), 4, (row & 1) * 32 * KB + (u & 7) * KB, lgtag=('cw', q)))
    o.insert(0, dswr('ds_write_b32', V_LW, LA(q), 1, [0, 4, 16, 20, 24][q], lgtag=('cw', q)))
    return o

def wo_dma(pos, after=None):
    o = []
    for ks in range(4):
        for half in range(2):
            base = (128 * KB if pos < 0 else pos * 32 * KB) + ks * 8 * KB + half * 4 * KB
            if pos < 0:
                pre = [S(f"s_lshl_b32 s{S_SK}, s{S_J}, 17", [S_J], [S_SK])] if ks + half == 0 else []
                h = S_SK
            else: pre, h = [], S_H + pos
            pre += [S(f"s_add_u32 s{S_SO}, s{h}, {ks*32768 + half*16384}", [h], [S_SO]), S(f"s_add_u32 m0, s{S_W1K}, {base}", [S_W1K], [M0])]
            o.append(Item(pre, dma(V_WOD, S_WO, S_SO, 0, ('wo', pos)), after))
    return o
def osib_dma(pos):
    o = []
    for q in range(5):
        pre = [S(f"s_lshr_b32 s{S_SK}, s{S_H+pos}, 5", [S_H+pos], [S_SK])] if q == 0 else []
        pre += [S(f"s_add_u32 s{S_SO}, s{S_SK}, {q*128*KB}", [S_SK], [S_SO]), S(f"s_add_u32 m0, s{S_W5K}, {(140 - 20*pos + q)*KB}", [S_W5K], [M0])]
        o.append(Item(pre, dma(V_OD, S_O, S_SO, 0, ('os', pos), flags=' sc1')))
    return o
def tail_calc():
    o = []; a = o.append
    T0, T1, T2 = 252, 253, 254
    a(V(f"v_lshlrev_b32 v{T0}, 4, v{V_LANE}", [V_LANE], [T0]))
    for jd in range(1, 4):
        for ab in range(2): a(V(f"v_xor_b32 v{V_CR+2*(jd-1)+ab}, {jd << 13}, v{V_CW+ab}", [V_CW+ab], [V_CR+2*(jd-1)+ab]))
    a(V(f"v_add_u32 v{V_OL}, {96*KB}, v{T0}", [T0], [V_OL]))
    a(V(f"v_add_u32 v{V_OW}, s{S_W5K}, v{V_OL}", [V_OL, ('s', S_W5K)], [V_OW]))
    a(S(f"s_mov_b32 s{S_T0}, {102*KB}", [], [S_T0]))
    a(V(f"v_lshl_add_u32 v{V_LR}, v{V_N}, 5, s{S_T0}", [V_N, ('s', S_T0)], [V_LR]))
    if int(opt.dtch_at) < 99:
        a(V(f"v_lshrrev_b32 v{T1}, 3, v{V_LANE}", [V_LANE], [T1]))
        a(V(f"v_min_u32 v{T1}, 4, v{T1}", [T1], [T1]))
        a(V(f"v_and_b32 v{T2}, 7, v{V_LANE}", [V_LANE], [T2]))
        a(V(f"v_lshlrev_b32 v{T2}, 7, v{T2}", [T2], [T2]))
        a(V(f"v_sub_u32 v{T2}, v{T2}, v{T0}", [T2, T0], [T2]))
        a(V(f"v_lshl_add_u32 v66, v{T1}, 17, v{T2}", [T1, T2], [66]))
        a(V(f"v_add_u32 v66, v66, v{V_OST}", [66, V_OST], [66]))
        a(V(f"v_lshl_add_u32 v67, v{T1}, 13, v{T2}", [T1, T2], [67]))
        a(V(f"v_add_u32 v67, v67, v{V_PS}", [67, V_PS], [67]))
    for k in range(5): a(S(f"s_mov_b32 s{S_TAB+k}, {k*8192}", [], [S_TAB+k]))
    return o
def handoff_calc():
    o = []; a = o.append
    T0, T1, T2, T3 = 252, 253, 254, 9
    a(S(f"s_lshl_b32 s{S_T0}, s{S_J}, 12", [S_J], [S_T0]))
    a(V(f"v_subrev_u32 v{V_OD}, s{S_T0}, v{V_OST}", [V_OST, ('s', S_T0)], [V_OD]))
    a(S(f"s_lshl_b32 s{S_T0}, s{S_B}, 2", [S_B], [S_T0]))
    a(S(f"s_add_u32 s{S_T0}, s{S_T0}, s{S_J}", [S_T0, S_J], [S_T0]))
    a(S(f"s_mul_i32 s{S_T0}, s{S_T0}, {20*8*KB}", [S_T0], [S_T0]))
    a(S(f"s_mul_i32 s{S_T1}, s{S_W}, {5*8*KB}", [S_W], [S_T1]))
    a(S(f"s_lshl_b32 s{S_T2}, s{S_HKV}, 10", [S_HKV], [S_T2]))
    a(S(f"s_add_u32 s{S_T2}, s{S_T2}, s{S_T1}", [S_T2, S_T1], [S_T2]))
    a(S(f"s_add_u32 s{S_T2}, s{S_T2}, s{S_T0}", [S_T2, S_T0], [S_T2]))
    a(V(f"v_lshl_add_u32 v{V_PS}, v{V_LANE}, 4, s{S_T2}", [V_LANE, ('s', S_T2)], [V_PS]))
    tr = int(opt.otr)
    if tr:
        a(S(f"s_mul_i32 s{S_T1}, s{S_HKV}, 160", [S_HKV], [S_T1]))
        a(V(f"v_add_u32 v{T0}, s{S_T1}, v0", [0, ('s', S_T1)], [T0]))
    else:
        a(S(f"s_lshl_b32 s{S_T1}, s{S_HKV}, 2", [S_HKV], [S_T1]))
        a(S(f"s_add_u32 s{S_T1}, s{S_T1}, s{S_W}", [S_T1, S_W], [S_T1]))
        a(S(f"s_mul_i32 s{S_T1}, s{S_T1}, 40", [S_T1], [S_T1]))
        a(V(f"v_add_u32 v{T0}, s{S_T1}, v{V_LANE}", [V_LANE, ('s', S_T1)], [T0]))
    if int(opt.pairw):
        a(V(f"v_lshrrev_b32 v{T1}, 6, v{T0}", [T0], [T1]))
        a(V(f"v_cmp_lt_u32 vcc, 9, v{T1}", [T1], [VCC]))
        a(V(f"v_bfe_u32 v{T2}, v{T0}, 5, 1", [T0], [T2]))
        a(V(f"v_mul_u32_u24 v{T2}, 10, v{T2}", [T2], [T2]))
        a(V(f"v_add_u32 v{T1}, v{T1}, v{T2}", [T1, T2], [T1]))
        a(V(f"v_cndmask_b32 v{T2}, 0, 10, vcc", [VCC], [T2]))
        a(V(f"v_add_u32 v{T1}, v{T1}, v{T2}", [T1, T2], [T1]))
        a(V(f"v_and_b32 v{T0}, 31, v{T0}", [T0], [T0]))
        a(V(f"v_lshl_add_u32 v{T0}, v{T1}, 5, v{T0}", [T1, T0], [T0]))
    a(V(f"v_bfe_u32 v{T1}, v{T0}, 5, 1", [T0], [T1]))
    a(V(f"v_and_b32 v{T2}, 7, v{T0}", [T0], [T2]))
    a(V(f"v_lshl_add_u32 v{T1}, v{T1}, 3, v{T2}", [T1, T2], [T1]))
    a(V(f"v_bfe_u32 v{T2}, v{T0}, 3, 2", [T0], [T2]))
    a(V(f"v_lshrrev_b32 v{T0}, 6, v{T0}", [T0], [T0]))
    a(V(f"v_lshl_add_u32 v{T3}, v{T2}, 4, v{T1}", [T1, T2], [T3]))
    a(V(f"v_lshl_add_u32 v{V_PLD}, v{T3}, 4, s{S_T0}", [T3, ('s', S_T0)], [V_PLD]))
    a(V(f"v_lshl_add_u32 v{V_PLD}, v{T0}, 13, v{V_PLD}", [T0, V_PLD], [V_PLD]))
    a(V(f"v_mul_u32_u24 v{T3}, 52, v{T0}", [T0], [T3]))
    a(V(f"v_lshrrev_b32 v{T3}, 8, v{T3}", [T3], [T3]))
    if tr:
        a(V(f"v_and_b32 v{T1}, 8, v{T1}", [T1], [T1]))
        a(V(f"v_bfe_u32 v{T2}, v0, 2, 3", [0], [T2]))
        a(V(f"v_add_u32 v{T1}, v{T1}, v{T2}", [T1, T2], [T1]))
        a(V(f"v_and_b32 v{T2}, 3, v0", [0], [T2]))
    a(V(f"v_lshlrev_b32 v{T2}, {4 if tr else 3}, v{T2}", [T2], [T2]))
    a(V(f"v_lshl_add_u32 v{T2}, v{T3}, 6, v{T2}", [T3, T2], [T2]))
    a(V(f"v_lshl_add_u32 v{T2}, v{T1}, 10, v{T2}", [T1, T2], [T2]))
    a(V(f"v_mul_u32_u24 v{T3}, 5, v{T3}", [T3], [T3]))
    a(V(f"v_sub_u32 v{T0}, v{T0}, v{T3}", [T0, T3], [T0]))
    a(V(f"v_lshl_add_u32 v{T2}, v{T0}, 14, v{T2}", [T0, T2], [T2]))
    a(S(f"s_mul_i32 s{S_T0}, s{S_B}, 81920", [S_B], [S_T0]))
    a(S(f"s_lshl_b32 s{S_T2}, s{S_J}, 8", [S_J], [S_T2]))
    a(S(f"s_add_u32 s{S_T0}, s{S_T0}, s{S_T2}", [S_T0, S_T2], [S_T0]))
    a(V(f"v_add_u32 v{V_OUT}, s{S_T0}, v{T2}", [T2, ('s', S_T0)], [V_OUT]))
    a(V(f"v_cmp_gt_u32 vcc, 160, v0", [0], [VCC]) if tr else V(f"v_cmp_gt_u32 vcc, 40, v{V_LANE}", [V_LANE], [VCC]))
    a(V(f"v_mov_b32 v{T0}, 0x7ff00000", [], [T0]))
    a(V(f"v_cndmask_b32 v{V_PLD}, v{T0}, v{V_PLD}, vcc", [T0, V_PLD, VCC], [V_PLD]))
    a(V(f"v_cndmask_b32 v{V_OUT}, v{T0}, v{V_OUT}, vcc", [T0, V_OUT, VCC], [V_OUT]))
    for pv_, n_, sh, sg_ in ((V_P1, 4, 9, S_G1), (V_P2, 8, 11, S_G2)):
        if pv_ == V_P2 and int(opt.f2rep):
            n_ = 24
            a(V(f"v_and_b32 v{T1}, 7, v{V_LANE}", [V_LANE], [T1]))
            a(V(f"v_lshl_add_u32 v{pv_}, v{T1}, {sh}, s{sg_}", [T1, ('s', sg_)], [pv_]))
            a(V(f"v_lshrrev_b32 v{T1}, 3, v{V_LANE}", [V_LANE], [T1]))
            a(V(f"v_lshl_add_u32 v{pv_}, v{T1}, 7, v{pv_}", [T1, pv_], [pv_]))
        else: a(V(f"v_lshl_add_u32 v{pv_}, v{V_LANE}, {sh}, s{sg_}", [V_LANE, ('s', sg_)], [pv_]))
        a(V(f"v_cmp_gt_u32 vcc, {n_}, v{V_LANE}", [V_LANE], [VCC]))
        a(V(f"v_cndmask_b32 v{pv_}, v{T0}, v{pv_}, vcc", [T0, pv_, VCC], [pv_]))
    return o
def wod_calc():
    o = []; a = o.append
    T0, T1 = 252, 253
    a(S(f"s_lshl_b32 s{S_T0}, s{S_B}, 2", [S_B], [S_T0]))
    a(S(f"s_add_u32 s{S_T0}, s{S_T0}, s{S_W}", [S_T0, S_W], [S_T0]))
    a(S(f"s_lshl_b32 s{S_T0}, s{S_T0}, 14", [S_T0], [S_T0]))
    a(S(f"s_lshl_b32 s{S_T2}, s{S_J}, 8", [S_J], [S_T2]))
    a(S(f"s_add_u32 s{S_T0}, s{S_T0}, s{S_T2}", [S_T0, S_T2], [S_T0]))
    a(V(f"v_bfe_u32 v{T0}, v{V_LANE}, 1, 4", [V_LANE], [T0]))
    a(V(f"v_and_b32 v{T1}, 1, v{V_LANE}", [V_LANE], [T1]))
    a(V(f"v_lshlrev_b32 v{T1}, 7, v{T1}", [T1], [T1]))
    a(V(f"v_lshl_add_u32 v{T0}, v{T0}, 10, v{T1}", [T0, T1], [T0]))
    a(V(f"v_add_u32 v{V_TCH}, s{S_T0}, v{T0}", [T0, ('s', S_T0)], [V_TCH]))
    a(S(f"s_and_b32 s{S_T0}, s{S_W}, 1", [S_W], [S_T0]))
    a(S(f"s_lshl_b32 s{S_T0}, s{S_T0}, 3", [S_T0], [S_T0]))
    a(V(f"v_lshl_add_u32 v{T0}, v{V_G}, 1, s{S_T0}", [V_G, ('s', S_T0)], [T0]))
    a(V(f"v_xor_b32 v{T0}, v{V_N}, v{T0}", [V_N, T0], [T0]))
    a(S(f"s_lshl_b32 s{S_T0}, s{S_J}, 8", [S_J], [S_T0]))
    a(V(f"v_lshl_add_u32 v{T0}, v{T0}, 4, s{S_T0}", [T0, ('s', S_T0)], [T0]))
    a(V(f"v_lshl_add_u32 v{T1}, s{S_W}, 2, v{V_G}", [V_G, ('s', S_W)], [T1]))
    a(V(f"v_lshl_add_u32 v{V_WOD}, v{T1}, 10, v{T0}", [T0, T1], [V_WOD]))
    return o

def phase_b(sg, Q, qr):
    NT = 8
    calc = tail_calc()[-5:]
    sg.addall(qr[:4])
    weave(sg, Q, [], int(opt.bq), 0)
    qr = qr[4:]
    for tau in range(-1, 40):
        i, q = divmod(tau, 5) if tau >= 0 else (-1, 4)
        mf = []
        bst = [int(x) for x in opt.bst.split(',')]
        if tau in bst: stamp(sg, 5 + bst.index(tau), 'B')
        if tau + 1 < 40: mf += qk(tau + 1)
        if tau - 1 >= 0: mf += pv(tau - 1)
        ds, marks = [], []
        if tau == -1: ds = qr[:8] if int(opt.b0s) else qr
        elif tau == 0 and int(opt.b0s): v0 = v_reads(0); ds = [v0[l + 8 * h] for l in range(5) for h in range(2)]
        elif tau == 1 and int(opt.b0s): v0 = v_reads(0); ds = [v0[l + 8 * h] for l in range(5, 8) for h in range(2)] + qr[8:11]; marks = [('vr', 0, 0), ('vr', 0, 1)]
        elif tau == 2 and int(opt.b0s): ds = qr[11:16] + k_reads(1)[:4]; marks = [('kr', 1, 0)]
        elif tau == 0: ds = v_reads(0); marks = [('vr', 0, 0), ('vr', 0, 1)]
        elif tau < 27:
            if q == 2: ds = k_reads(i + 1)[:4]; marks = [('kr', i + 1, 0)]
            if q == 3: ds = k_reads(i + 1)[4:] + v_reads(i + 1)[:2]; marks = [('kr', i + 1, 1)]
            if q == 4: ds = v_reads(i + 1)[2:8]; marks = [('vr', i + 1, 0)]
            if q == 0: ds = v_reads(i)[8:14]
            if q == 1 and i > 0:
                ds = v_reads(i)[14:]
                if i > int(opt.late0): Q.mark(('vr', i, 1))
        xp = None
        LT = int(opt.late0)
        lp = None
        if LT and 0 <= tau < 5 * LT + 2:
            def vo_(t_): v_ = v_reads(t_); return [v_[l + 8 * h] for l in range(8) for h in range(2)]
            marks = []
            if tau == 0: lp = list(zip([0, 1, 2, 3, 4, 5, 6, 7], vo_(0)[:8]))
            elif tau == 1: lp = list(zip([1, 1, 3, 5, 5, 7, 9, 9], vo_(0)[8:])); marks = [('vr', 0, 0), ('vr', 0, 1)]
            elif q == 3 and i + 1 <= LT: lp = list(zip([3, 5, 7, 9, 11, 13, 15, 16], k_reads(i + 1))); marks = [('kr', i + 1, 0), ('kr', i + 1, 1)]
            elif q == 0 and i <= LT: lp = list(zip([1, 3, 5, 7, 9, 11, 13, 15, 16, 16], vo_(i)[:10]))
            elif q == 1 and i <= LT: lp = list(zip([1, 1, 3, 5, 5, 7], vo_(i)[10:])); marks = [('vr', i, 0), ('vr', i, 1)]
            elif q in (2, 4) and i + 1 <= LT: lp = []
            if lp is not None: ds = [x for _, x in lp]
        if tau >= 27:
            k6, k7, v6, v7 = k_reads(6), k_reads(7), v_reads(6), v_reads(7)
            vo = [v7[l + 8 * h] for l in range(8) for h in range(2)]
            G = [1, 3, 5, 7, 9, 11, 13, 15, 16]
            def cwp(q_, second):
                w_ = comb_writes(q_)
                if int(opt.w64) and q_ < 2:
                    h_ = []
                    for x in w_[1:]:
                        m_ = re.match(r"ds_write_b128 v(\d+), a\[(\d+):\d+\] offset:(\d+)", x.t)
                        for z in range(2): h_.append(dswr('ds_write_b64', int(m_.group(1)), ('a', int(m_.group(2)) + 2 * z), 2, int(m_.group(3)) + 8 * z, lgtag=x.lgtag))
                    return list(zip([1, 3, 5, 9, 13, 16], h_[6:])) if second else list(zip([7, 1, 3, 5, 9, 13, 16], [w_[0]] + h_[:6]))
                return list(zip([1, 9, 13], w_[4:])) if second else list(zip([7, 1, 9, 13], w_[:4]))
            xp = {27: list(zip([3, 5, 9, 11, 15, 16], k6[:4] + v6[:2])),
                  28: list(zip([1, 3, 5, 7, 9, 11, 13, 15, 16], k6[4:] + k7[:5])),
                  29: list(zip(G, k7[5:] + v6[2:8])),
                  30: list(zip([1, 3, 5, 7, 9, 11, 13, 15, 16, 16], v6[8:] + vo[:2])),
                  31: list(zip([1, 3, 5, 7, 9, 11, 13, 15, 16, 16], vo[2:12])) if int(opt.v7s) else list(zip([1, 1, 3, 5, 5, 7, 9, 9, 11, 13, 13, 15, 16, 16], vo[2:])),
                  32: list(zip([1, 3, 5, 7], vo[12:])) if int(opt.v7s) else [], 33: cwp(0, 0), 34: cwp(0, 1), 35: cwp(1, 0), 36: cwp(1, 1), 37: cwp(2, 0),
                  38: cwp(2, 1) + list(zip([3, 5, 5, 7, 11, 15, 16, 16], lreads((0, 1)) + preads(0)[:4])),
                  39: list(zip([0, 2, 4, 6], comb_writes(3)[:4])) + list(zip([1, 1, 3, 3, 5, 5, 7, 7], preads(0)[4:] + preads(1)))}[tau]
            if int(opt.x1e) and tau >= 36:
                xp = {36: list(zip([1, 5, 9], comb_writes(1)[4:])),
                      37: cwp(2, 0) + list(zip([3, 5, 11, 15, 16, 16], preads(0))),
                      38: cwp(2, 1) + list(zip([3, 5, 5, 7, 11, 15, 16, 16], lreads((0, 1)) + preads(1)[:4])),
                      39: list(zip([1, 3, 5, 7], comb_writes(3)[:4])) + list(zip([0, 8], preads(1)[4:]))}[tau]
            ds = [x for _, x in xp]; marks = []
            if tau == (37 if int(opt.x1e) else 38):
                b = barrier(needvm=[('wo', -1)], lg0=False); b.needlg = (('cw', 0), ('cw', 1)); sg.add(b)
        n = len(mf)
        gaps = [[] for _ in range(n)]
        e, c = sm(tau) if 0 <= tau < 40 else ([], [])
        if n == 17:
            epos = [0, 2, 4, 6, 8, 10, 12, 14]; cpos = [3, 7, 11, 15]
            dpos = [1, 3, 5, 7, 9, 11, 13, 15] if len(ds) > 4 else [1, 3, 5, 7]
            if ds and ds[0].k == 'dswr': dpos = [1, 1, 3, 7, 9, 13, 16]
            vpos = [1, 5, 9, 13] if (tau < int(opt.even_at) or q == 1) else [1, 7, 13]
            if int(opt.bsched) and not (ds and ds[0].k == 'dswr'):
                if q == 1: dpos, vpos = [1, 3], [5, 9, 13, 16]
                elif tau < int(opt.even_at) or tau >= int(opt.even_end): dpos, vpos = ([3, 7, 11, 15, 16, 16] if q != 3 else [1, 3, 7, 11, 15, 16]), ([1, 5, 9, 13] if q != 3 else [5, 9, 13, 16])
                else: dpos, vpos = [3, 5, 9, 11, 15, 16], [1, 7, 13]
        else:
            epos = list(range(8)); cpos = [min(n - 1, x) for x in (2, 4, 6, 8)]
            dpos = [(k * n) // max(1, len(ds)) for k in range(len(ds))]
            vpos = [int(x) for x in opt.spos.split(',')] if tau < 5 else [1, 5]
        if int(opt.b0s) and tau in (1, 2): dpos, vpos = [1, 1, 3, 5, 5, 7, 11, 15, 16], [9, 13]
        if lp is not None:
            dpos = [g_ for g_, _ in lp]
            if n == 17: vpos = {0: [5, 13], 1: [9, 11, 13, 16], 2: [1, 5, 9, 13, 16], 3: [1, 9, 13], 4: [1, 5, 9, 13, 16]}[q]
        if xp is not None:
            dpos = [g_ for g_, _ in xp]; vpos = [int(x) for x in opt.wpos.split(',')] if tau >= 32 else [13]
            if tau == 27: vpos = [1, 7, 13]
        for x, p_ in zip(ds, dpos): gaps[p_].append(x)
        if tau == int(opt.nl_at):
            sg.add(V("v_mov_b32 v9, 0", [], [9]))
            Q.q.insert(0, Item([], vload(('v', V_GC), 2, 9, S_D, None, 0, flags=' sc1', tag='non')))
        if tau == int(opt.nc_at):
            assert not any(it.ins.vmtag == 'non' for it in Q.q)
            sg.add(V(f"v_readfirstlane_b32 s{S_NON}, v{V_GC}", [V_GC], [('s', S_NON)]))
            sg.add(V(f"v_readfirstlane_b32 s{S_NON+1}, v{V_GC+1}", [V_GC+1], [('s', S_NON+1)]))
            sg.add(S(f"s_cmp_eq_u64 s[{S_NON}:{S_NON+1}], 0", [S_NON, S_NON+1], []))
            sg.text("s_cbranch_scc1 L_spin_n"); sg.text("L_back_n:")
        if tau == 32: stamp_out(sg, 1) if opt.stamps == 'Z' else None
        if tau == int(opt.bar_at): sg.add(barrier(lg0=False))
        for x in ds:
            while any(it.ins.vmtag in x.needvm for it in Q.q): weave(sg, Q, [], 1, 0)
        if tau == int(opt.tch_at): Q.push([Item([], vload(('v', V_TCH + 1), 1, V_TCH, S_WO, None, 0, flags=opt.tch_flags))])
        if tau == int(opt.tlb_at):
            Q.push([Item([], vload(('v', 72), 1, V_ZERO, S_C, S_F1, 0, flags=' sc1')), Item([], vload(('v', 73), 1, V_ZERO, S_C, S_F2, 0, flags=' sc1'))])
        if tau == int(opt.cpf2_at):
            for x in ["s_getpc_b64 s[94:95]", "L_pc2:", "s_lshr_b32 s92, s2, 3", f"s_lshl_b32 s92, s92, 2", f"s_add_u32 s92, s92, s{S_W}", "s_lshl_b32 s92, s92, 7",
                      f"s_add_u32 s92, s92, {int(opt.cpf2_skip)}", "s_min_u32 s92, s92, (L_code_end - L_pc2 - 4) & 0xffffff80", "v_mov_b32 v74, s92", "global_load_dword v255, v74, s[94:95]"]: sg.text(x)
        if tau == int(opt.dtch_at):
            assert not calc
            Q.push(([Item([], vload(('v', 74), 1, 66, S_O, None, 0, flags=opt.dtch_flags))] if 'o' in opt.dtch else []) + ([Item([], vload(('v', 75), 1, 67, S_WT, None, 0, flags=opt.dtch_flags))] if 'p' in opt.dtch else []))
        if tau == int(opt.otch_at): Q.push([Item([], vload(('v', 66), 1, V_OUT, S_OUT, None, 0, flags=opt.otch_flags))])
        if tau == int(opt.wo_at): assert not calc; Q.push(wo_dma(-1))
        place(gaps, Q, vpos)
        for x, p_ in zip(e, epos): gaps[p_].append(x)
        for x, p_ in zip(c, cpos): gaps[p_].append(x)
        if tau >= int(opt.calc_at) and n == 17:
            for gi in range(17):
                if calc and calc[0].k == 'salu' and not any(y.k == 'salu' for y in gaps[gi]): gaps[gi].insert(0, calc.pop(0))
                cost = sum(8 if y.k == 'trans' else 0 if y.k == 'salu' else 4 for y in gaps[gi])
                while calc and calc[0].k != 'salu' and cost <= 4: gaps[gi].append(calc.pop(0)); cost += 4
        sg.addall(interleave(mf, gaps))
        for m in marks: Q.mark(m)

def poll(sg, lab, vaddr):
    sg.text(f"s_mov_b32 s{S_SPIN}, {opt.spin}")
    sg.text(f"{lab}:")
    sg.text(f"buffer_load_dwordx2 v[250:251], v{vaddr}, s[{S_C}:{S_C+3}], 0 offen sc1")
    sg.text(f"s_sub_u32 s{S_SPIN}, s{S_SPIN}, 1")
    sg.text("s_waitcnt vmcnt(0)")
    sg.text(f"v_cmp_ne_u64 vcc, s[{S_NON}:{S_NON+1}], v[250:251]")
    sg.text(f"s_cmp_eq_u32 s{S_SPIN}, 0")
    sg.text(f"s_cbranch_scc1 {lab}_done")
    sg.text("s_nop 2")
    sg.text(f"s_cbranch_vccnz {lab}")
    sg.text(f"{lab}_done:")
    sg.vm = []
def raise_flag(sg, stage, tag):
    ins = vstore(('v', V_GC), 2, V_P1 if stage == 1 else V_P2, S_C, None, 0, flags=' sc1')
    ins.needvm = (tag,)
    sg.add(ins)
WOF = A_Q
RES = 100
def part(q, k):
    if q == 0: return 36 + 4 * k if k < 4 else 64 + 4 * (k - 4)
    return {1: 100, 2: 164, 3: 188, 4: 100}[q] + 4 * k
def preads(q):
    o = []
    for jd in range(1, 4):
        for e in range(2):
            k = (jd - 1) * 2 + e; u = q * 6 + k; row = u >> 3
            o.append(dsrd('ds_read_b128', ('v', part(q, k)), 4, V_CR + 2 * (jd - 1) + (row >> 1), (row & 1) * 32 * KB + (u & 7) * KB))
    return o
LSA, LSB = 124, 76
def lreads(qs):
    if qs == (0, 1): return [dsrd('ds_read_b64', ('v', LSA + src * 2), 2, V_LR, src * 8 * KB) for src in range(4)]
    if qs == (2, 3): return [dsrd('ds_read_b64', ('v', LSB + src * 4), 2, V_LR, src * 8 * KB + 16) for src in range(4)]
    if qs == (4,): return [dsrd('ds_read_b32', ('v', LSB + src * 4 + 2), 1, V_LR, src * 8 * KB + 24) for src in range(4)]
    return [dsrd('ds_read_b128', ('v', LSB + src * 4), 4, V_LR, src * 8 * KB + 16) for src in range(4)]
def lsum(qs):
    w = []
    def lr(src, q): return LSA + src * 2 + q if q < 2 else LSB + src * 4 + q - 2
    LS = lr(0, qs[0])
    for q in qs:
        d = V_T0 + q
        w.append(V(f"v_add_f32 v{d}, v{lr(0,q)}, v{lr(1,q)}", [lr(0,q), lr(1,q)], [d]))
        w.append(V(f"v_add_f32 v{lr(2,q)}, v{lr(2,q)}, v{lr(3,q)}", [lr(2,q), lr(3,q)], [lr(2,q)]))
        w.append(V(f"v_add_f32 v{d}, v{d}, v{lr(2,q)}", [d, lr(2,q)], [d]))
    lo_, hi_ = LS, LS + 1
    if len(qs) == 1: lo_ = hi_ = V_T0 + qs[0]
    else:
        a_, b_, c_ = V_T0 + qs[0], V_T0 + qs[1], V_T0 + qs[-1]
        w.append(V(f"v_min3_f32 v{LS}, v{a_}, v{b_}, v{c_}", [a_, b_, c_], [LS]))
        w.append(V(f"v_add_f32 v{LS+1}, v{a_}, v{b_}", [a_, b_], [LS+1]))
        if len(qs) == 3: w.append(V(f"v_add_f32 v{LS+1}, v{LS+1}, v{c_}", [LS+1, c_], [LS+1]))
    w.append(V(f"v_cmp_nle_f32 vcc, {f2h(2.0**int(opt.lo_exp))}, v{lo_}", [lo_], [VCC]))
    w.append(S(f"s_mov_b64 s[{S_EX}:{S_EX+1}], vcc", [VCC], [S_EX, S_EX+1]))
    w.append(V(f"v_cmp_nge_f32 vcc, {f2h(2.0**int(opt.hi_exp))}, v{hi_}", [hi_], [VCC]))
    w.append(S(f"s_or_b64 vcc, vcc, s[{S_EX}:{S_EX+1}]", [VCC, S_EX, S_EX+1], [VCC]))
    w.append(S(f"s_and_b64 vcc, vcc, s[{S_GM}:{S_GM+1}]", [VCC], [VCC]))
    w.append(raw("s_cbranch_vccnz L_redo      ; softmax guard, see header"))
    for q in qs: w.append(T(f"v_rcp_f32 v{V_T0+q}, v{V_T0+q}", [V_T0+q], [V_T0+q]))
    return w
def finish(q):
    w = []
    for e in range(2):
        o_ = V_OWN[q] + e * 4
        for jd in range(1, 4):
            p_ = part(q, (jd - 1) * 2 + e)
            for r in (0, 2):
                w.append(V(f"v_pk_add_f32 v[{o_+r}:{o_+r+1}], v[{o_+r}:{o_+r+1}], v[{p_+r}:{p_+r+1}]", [o_+r, o_+r+1, p_+r, p_+r+1], [o_+r, o_+r+1]))
    o_ = V_OWN[q]
    ri = V_T0 + (q & ~1); sel = "op_sel:[0,1] op_sel_hi:[1,1]" if q & 1 else "op_sel:[0,0] op_sel_hi:[1,0]"
    for r in range(0, 8, 2):
        w.append(V(f"v_pk_mul_f32 v[{o_+r}:{o_+r+1}], v[{o_+r}:{o_+r+1}], v[{ri}:{ri+1}] {sel}", [o_+r, o_+r+1, V_T0+q], [o_+r, o_+r+1]))
    for r in range(4):
        w.append(V(f"v_cvt_pk_bf16_f32 v{o_+r}, v{o_+2*r}, v{o_+2*r+1}", [o_+2*r, o_+2*r+1], [o_+r]))
    w.append(S(f"s_mov_b32 s{S_SV}, {q*128*KB}", [], [S_SV]))
    w.append(vstore(('v', o_), 4, V_OST, S_O, S_SV, 0, flags=opt.o_flags, tag='ost'))
    return w
def wor():
    return [dsrd('ds_read_b64_tr_b16', ('a', WOF + (ks * 2 + e) * 4 + h * 2), 2, V_WT + 4 + e, ks * 8 * KB + h * 4096) for ks in range(4) for e in range(2) for h in range(2)]
def combine(sg, Q):
    assert not Q.q
    mf = pv(39); gaps = [[] for _ in mf]
    wr = comb_writes(3)[4:]; ls = lsum((0, 1))
    for k, x in enumerate(wr): gaps[3 * k].append(x)
    k = 0
    for gi in range(9):
        n_ = 2 - len(gaps[gi])
        while ls and (n_ > 0 or ls[0].k == 'salu') and gi < 9:
            x = ls.pop(0); gaps[gi].append(x)
            n_ -= 0 if x.k == 'salu' else 2 if x.k == 'trans' else 1
    sg.addall(interleave(mf, gaps))
    stamp(sg, 4)
    if int(opt.c3):
        sg.addall(ls + finish(0))
        b = barrier(lg0=False); b.needlg = (('cw', 2), ('cw', 3)); sg.add(b)
        w4 = comb_writes(4)
        rd = lreads((2, 3)) + preads(2) + preads(3)
        for k in range(len(rd)):
            sg.add(rd[k])
            if k % 3 == 1 and w4: sg.add(w4.pop(0))
        w = finish(1) + lsum((2, 3)) + finish(2)
        for k, x in enumerate(w4): w.insert(4 + 8 * k, x)
        sg.addall(w)
        sg.add(barrier())
        stamp(sg, 5)
        Q.push(wo_dma(0))
        rd = lreads((4,)) + preads(4)
        weave(sg, Q, rd, int(opt.cw), 5)
        sg.addall(rd + finish(3) + lsum((4,)) + finish(4))
        stamp(sg, 6)
        return
    w4 = comb_writes(4)
    w = ls + finish(0) + finish(1)
    for k, x in enumerate(w4): w.insert(min(len(w), 6 + k * 6), x)
    sg.addall(w)
    sg.add(barrier())
    stamp(sg, 5)
    Q.push(wo_dma(0))
    rd = lreads((2, 3, 4)) + preads(2) + preads(3)
    weave(sg, Q, rd, int(opt.cw), 2)
    sg.addall(rd)
    w = lsum((2, 3, 4)) + preads(4) + finish(2) + finish(3) + finish(4)
    if not int(opt.worlate):
        for k, x in enumerate(wor()): w.insert(30 + 3 * k, x)
    sg.addall(w)
    stamp(sg, 6)

def phase_c(sg, Q):
    a = sg.add
    ACC = 164
    a(barrier())
    stamp(sg, 5, 'D')
    for q in range(5): a(dswr('ds_write_b128', V_OW, ('v', V_OWN[q]), 4, q * KB))
    Q.push(wo_dma(1) + wo_dma(2))
    wr_ = wor() if int(opt.worlate) else []
    weave(sg, Q, wr_, int(opt.shadow), 3)
    sg.addall(wr_)
    stamp(sg, 6, 'D')
    a(barrier())
    def CF(k): return [(100, 120), (64, 84), (204, 36)][k % 3]
    def c_reads(k):
        pos, ks = divmod(k, 4); pos -= 1
        xf, wf = CF(k)
        ob = 0 if pos < 0 else (44 - 20 * pos) * KB
        xr = [dsrd('ds_read_b128', ('v', xf + q * 4), 4, V_OL, ob + (ks * 5 + q) * KB) for q in range(5)]
        if pos < 0: return xr
        wb = (pos * 4 + ks) * 8 * KB
        wr = [dsrd('ds_read_b64_tr_b16', ('v', wf + e * 4 + h * 2), 2, V_WT + (2 if wb >= 64 * KB else 0) + e, (wb % (64 * KB)) + h * 4096) for e in range(2) for h in range(2)]
        return wr[:2] + xr[:1] + wr[2:] + xr[1:]
    def c_mfmas(k):
        xf, wf = CF(k)
        ff = 'v'
        if k < 4: wf, ff = WOF + k * 8, 'a'
        o = []
        for q in range(5):
            for e in range(2):
                d = ('v', ACC + (q * 2 + e) * 4)
                o.append(mfma(d, (ff, wf + e * 4), ('v', xf + q * 4), 0 if k == 0 else d))
        o[0].r |= set(R('v', xf, 20) + R(ff, wf, 8))
        return o
    def step(k, nx, pos=()):
        mf = c_mfmas(k); gaps = [[] for _ in mf]
        if nx is not None:
            for i, r in enumerate(c_reads(nx)): gaps[i].append(r)
        place(gaps, Q, pos)
        sg.addall(interleave(mf, gaps))
    def own_steps():
        for k in range(4): step(k, k + 2 if k < 2 else None, [1, 5, 9] if k % 2 == 0 else [3, 7])
    sg.addall(c_reads(0)); sg.addall(c_reads(1))
    raise_flag(sg, 1, 'ost')
    stamp(sg, 7, 'D'); stamp(sg, 7)
    weave(sg, Q, [], min(len(Q.q), int(opt.pf)), 0)
    held = Q.q; Q.q = []
    stamp(sg, 8, 'D')
    t = ["; hand-off 1 - wait (bounded) until the same wave of the three sibling heads has published its O", f"s_mov_b32 s{S_SPIN}, {opt.spin}", "L_poll1:", f"s_load_dwordx8 s[4:11], s[{S_C}:{S_C+1}], s{S_F1} glc", f"s_sub_u32 s{S_SPIN}, s{S_SPIN}, 1", "s_waitcnt lgkmcnt(0)",
         f"s_cmp_eq_u32 s{S_SPIN}, 0", "s_cbranch_scc1 L_poll1_done"]
    t += [f"s_lshl_b32 s{S_T0}, 1, s{S_J}"]
    for h in range(4): t += [f"s_cmp_eq_u64 s[{4+2*h}:{5+2*h}], s[{S_NON}:{S_NON+1}]", f"s_cselect_b32 s{S_T1}, {1 << h}, 0", f"s_or_b32 s{S_T0}, s{S_T0}, s{S_T1}"]
    t += [f"s_cmp_lg_u32 s{S_T0}, 15", "s_cbranch_scc1 L_poll1", "L_poll1_done:"]
    if int(opt.peek) & 1:
        sets = [4, 12, 76, 84]
        t = [f"s_mov_b32 s{S_SPIN}, {opt.spin}", f"s_lshl_b32 s{S_T2}, 1, s{S_J}", "s_waitcnt lgkmcnt(0)"]
        for b_ in sets: t += [f"s_mov_b64 s[{b_+2*h}:{b_+2*h+1}], 0" for h in range(4)]
        t += ["L_poll1:", f"s_sub_u32 s{S_SPIN}, s{S_SPIN}, 1", f"s_cmp_eq_u32 s{S_SPIN}, 0", "s_cbranch_scc1 L_poll1_done"]
        for b_ in sets:
            t += [f"s_mov_b32 s{S_T0}, s{S_T2}"]
            for h in range(4): t += [f"s_cmp_eq_u64 s[{b_+2*h}:{b_+2*h+1}], s[{S_NON}:{S_NON+1}]", f"s_cselect_b32 s{S_T1}, {1 << h}, 0", f"s_or_b32 s{S_T0}, s{S_T0}, s{S_T1}"]
            t += [f"s_cmp_eq_u32 s{S_T0}, 15", "s_cbranch_scc1 L_poll1_done", f"s_load_dwordx8 s[{b_}:{b_+7}], s[{S_C}:{S_C+1}], s{S_F1} glc"] + ["s_nop 7"] * int(opt.pgap)
        t += ["s_branch L_poll1", "L_poll1_done:"]
    for x in t: sg.text(x)
    sg.lg = []
    stamp(sg, 9, 'D')
    stamp(sg, 5, 'E')
    stamp(sg, 8)
    assert all(it.ins.vmtag == ('wo', 2) for it in held)
    Q.push(osib_dma(0) + osib_dma(1) + held)
    weave(sg, Q, [], 5, 0); own_steps()
    weave(sg, Q, [], len(Q.q), 0)
    stamp(sg, 6, 'E')
    a(barrier(needvm=[('os', 0), ('wo', 0), ('wo', 1)]))
    stamp(sg, 7, 'E')
    Q.push(osib_dma(2))
    sg.addall(c_reads(4)); sg.addall(c_reads(5))
    def pfin(q):
        b = ACC + q * 8
        return [V(f"v_cvt_pk_bf16_f32 v{b+r}, v{b+2*r}, v{b+2*r+1}", [b+2*r, b+2*r+1], [b+r]) for r in range(4)] + [vstore(('v', b), 4, V_PS, S_WT, S_TAB + q, 0, flags=' sc1', tag='pst')]
    last = 16 - (2 if int(opt.qmaj) else 0)
    for k in range(4, last):
        nx = k + 2 if k + 2 < 16 else None
        if nx in (8, 12):
            assert not Q.q or nx == 8
            a(barrier(needvm=[('os', nx // 4 - 1), ('wo', nx // 4 - 1)], lg0=False))
            stamp(sg, 8 if nx == 8 else 9, 'E')
        step(k, nx, [1, 5, 9] if k % 2 == 0 else [3, 7])
    if int(opt.qmaj):
        m14, m15 = c_mfmas(14), c_mfmas(15)
        m15[0].r -= set(R('v', CF(15)[0] + 4, 16))
        mf = flat([[m14[2*q], m15[2*q], m14[2*q+1], m15[2*q+1]] for q in range(5)])
        gaps = [[] for _ in mf]
        for q in range(4):
            f_ = pfin(q)
            g0 = 4 * q + 6
            if g0 + 2 < 20:
                gaps[g0] += f_[0:2]; gaps[g0 + 1] += f_[2:4]; gaps[g0 + 2] += f_[4:]
        sg.addall(interleave(mf, gaps))
        stamp(sg, 9)
        sg.addall(pfin(3) + pfin(4))
    else:
        stamp(sg, 9)
        for q in range(5): sg.addall(pfin(q))
    a(S(f"s_mov_b32 s{S_SO}, 4096", [], [S_SO]))
    a(S(f"s_mov_b32 s{S_T1}, 0xffff0000", [], [S_T1]))
    a(S(f"s_mov_b32 s{S_SPIN}, {opt.spin}", [], [S_SPIN]))
    a(S(f"s_mov_b32 s{S_T2}, 0", [], [S_T2]))
    a(S(f"s_mov_b32 s{S_SK}, 0", [], [S_SK]))
    if int(opt.f2wg):
        a(barrier(needvm=['pst'], lg0=False))
        sg.text(f"s_cmp_lg_u32 s{S_W}, 0"); sg.text("s_cbranch_scc1 L_sig2"); raise_flag(sg, 2, 'pst'); sg.text("L_sig2:")
    else: raise_flag(sg, 2, 'pst')
    stamp(sg, 5, '2')
    if int(opt.otr):
        a(V("v_lshlrev_b32 v11, 4, v0", [0], [11]))
        a(V("v_and_b32 v10, 0xe0, v0", [0], [10])); a(V("v_lshlrev_b32 v10, 4, v10", [10], [10]))
        a(V("v_and_b32 v12, 7, v0", [0], [12])); a(V("v_lshl_add_u32 v10, v12, 6, v10", [12, 10], [10]))
        a(V("v_bfe_u32 v12, v0, 3, 2", [0], [12])); a(V("v_lshl_add_u32 v10, v12, 3, v10", [12, 10], [10]))
        sg.text(f"s_cmp_eq_u32 s{S_W}, 3"); sg.text("s_cbranch_scc1 L_fin")
    PB, SM = 100, 132
    def pl(h): return vload(('v', PB + 4 * h), 4, V_PLD, S_WT, S_SO if h >= 4 else None, (h & 3) * 1024, flags=' sc1')
    t = ["L_poll2:", f"s_load_dwordx16 s[4:19], s[{S_C}:{S_C+1}], s{S_F2} glc", f"s_cmp_eq_u32 s{S_SK}, 0", "s_cbranch_scc1 L_nounp", "L_unp:", "s_waitcnt vmcnt(0)"]
    for h in range(8):
        t += [f"s_bitcmp1_b32 s{S_SK}, {h}", f"s_cbranch_scc0 L_u{h}"]
        for r in range(4): t += [f"v_lshlrev_b32 v{SM+8*h+2*r}, 16, v{PB+4*h+r}", f"v_and_b32 v{SM+8*h+2*r+1}, s{S_T1}, v{PB+4*h+r}"]
        t += [f"L_u{h}:"]
    t += [f"s_cmp_eq_u32 s{S_T2}, 0xff", "s_cbranch_scc1 L_poll2_done", "L_nounp:", f"s_mov_b32 s{S_SK}, 0", f"s_sub_u32 s{S_SPIN}, s{S_SPIN}, 1", "s_waitcnt lgkmcnt(0)",
          f"s_cmp_eq_u32 s{S_SPIN}, 0", "s_cbranch_scc1 L_poll2_done"]
    for h in range(8):
        t += [f"s_cmp_lg_u64 s[{4+2*h}:{5+2*h}], s[{S_NON}:{S_NON+1}]", f"s_cbranch_scc1 L_g{h}", f"s_bitcmp1_b32 s{S_T2}, {h}", f"s_cbranch_scc1 L_g{h}",
              f"s_bitset1_b32 s{S_T2}, {h}", f"s_bitset1_b32 s{S_SK}, {h}", pl(h).t, f"L_g{h}:"]
    t += [f"s_cmp_lg_u32 s{S_T2}, 0xff", "s_cbranch_scc1 L_poll2", "s_branch L_unp", "L_poll2_done:"]
    if not int(opt.unp):
        t = ["; hand-off 2 - fetch each producer's partial result once its flag is up (bounded wait); summed below in a fixed order", "L_poll2:", f"s_load_dwordx16 s[4:19], s[{S_C}:{S_C+1}], s{S_F2} glc", f"s_sub_u32 s{S_SPIN}, s{S_SPIN}, 1", "s_waitcnt lgkmcnt(0)", f"s_cmp_eq_u32 s{S_SPIN}, 0", "s_cbranch_scc1 L_poll2_done"]
        for h in range(8):
            t += [f"s_cmp_lg_u64 s[{4+2*h}:{5+2*h}], s[{S_NON}:{S_NON+1}]", f"s_cbranch_scc1 L_g{h}", f"s_bitcmp1_b32 s{S_T2}, {h}", f"s_cbranch_scc1 L_g{h}",
                  f"s_bitset1_b32 s{S_T2}, {h}", f"s_bitset1_b32 s{S_SK}, {h}", pl(h).t, f"L_g{h}:"]
        t += [f"s_cmp_eq_u32 s{S_T2}, 0xff", "s_cbranch_scc1 L_poll2_done", f"s_mov_b32 s{S_SK}, 0", "s_branch L_poll2", "L_poll2_done:"]
        if int(opt.peek) & 2:
            t = ["s_waitcnt lgkmcnt(0)"]
            for b_ in (4, 76): t += [f"s_mov_b64 s[{b_+2*h}:{b_+2*h+1}], 0" for h in range(8)]
            t += ["L_poll2:", f"s_sub_u32 s{S_SPIN}, s{S_SPIN}, 1", f"s_cmp_eq_u32 s{S_SPIN}, 0", "s_cbranch_scc1 L_poll2_done"]
            for n_, b_ in enumerate((4, 76)):
                for h in range(8):
                    t += [f"s_cmp_lg_u64 s[{b_+2*h}:{b_+2*h+1}], s[{S_NON}:{S_NON+1}]", f"s_cbranch_scc1 L_g{n_}{h}", f"s_bitcmp1_b32 s{S_T2}, {h}", f"s_cbranch_scc1 L_g{n_}{h}",
                          f"s_bitset1_b32 s{S_T2}, {h}", pl(h).t, f"L_g{n_}{h}:"]
                t += [f"s_cmp_eq_u32 s{S_T2}, 0xff", "s_cbranch_scc1 L_poll2_done", f"s_load_dwordx16 s[{b_}:{b_+15}], s[{S_C}:{S_C+1}], s{S_F2} glc"]
            t += ["s_branch L_poll2", "L_poll2_done:"]
        t += ["s_waitcnt vmcnt(0)"]
        for h in range(8):
            for r in range(4): t += [f"v_lshlrev_b32 v{SM+8*h+2*r}, 16, v{PB+4*h+r}", f"v_and_b32 v{SM+8*h+2*r+1}, s{S_T1}, v{PB+4*h+r}"]
    for x in t: sg.text(x)
    sg.vm = []
    stamp(sg, 6, '2')
    for h in range(1, 8):
        for r in range(0, 8, 2):
            u = SM + 8 * h + r
            a(V(f"v_pk_add_f32 v[{SM+r}:{SM+r+1}], v[{SM+r}:{SM+r+1}], v[{u}:{u+1}]", [SM+r, SM+r+1, u, u+1], [SM+r, SM+r+1]))
    for r in range(4):
        a(V(f"v_cvt_pk_bf16_f32 v{SM+r}, v{SM+2*r}, v{SM+2*r+1}", [SM+2*r, SM+2*r+1], [SM+r]))
    if int(opt.otr):
        a(dswr('ds_write_b64', 10, ('v', SM), 2, 0)); a(dswr('ds_write_b64', 10, ('v', SM + 2), 2, 32))
        r_ = dsrd('ds_read_b128', ('v', SM + 4), 4, 11, 0); r_.needlg = ('*',); a(r_)
        a(vstore(('v', SM + 4), 4, V_OUT, S_OUT, None, 0, flags=opt.out_flags))
    elif not int(opt.noout):
        a(vstore(('v', SM), 2, V_OUT, S_OUT, None, 0, flags=opt.out_flags))
        a(vstore(('v', SM + 2), 2, V_OUT, S_OUT, None, 32, flags=opt.out_flags))

def out_of_line():
    t = []
    t += ["L_spin_n:", f"s_mov_b32 s{S_SPIN}, {opt.spin}", "L_spin_n1:",
          f"buffer_load_dwordx2 v[{V_GC}:{V_GC+1}], v9, s[{S_D}:{S_D+3}], 0 offen sc1", f"s_sub_u32 s{S_SPIN}, s{S_SPIN}, 1", "s_waitcnt vmcnt(0)",
          f"v_readfirstlane_b32 s{S_NON}, v{V_GC}", f"v_readfirstlane_b32 s{S_NON+1}, v{V_GC+1}", f"s_cmp_eq_u32 s{S_SPIN}, 0", "s_cbranch_scc1 L_back_n", "s_nop 2",
          f"s_cmp_eq_u64 s[{S_NON}:{S_NON+1}], 0", "s_cbranch_scc1 L_spin_n1", "s_branch L_back_n"]
    t += ["; a row sum left the safe range - start over with the true row maxima", "L_redo:", f"s_mov_b64 s[{S_GM}:{S_GM+1}], 0", f"s_mov_b32 s{S_REDO}, 1",
          "s_waitcnt vmcnt(0) lgkmcnt(0)", "s_barrier"]
    sg = Seg()
    p1 = prologue1()
    a = sg.add
    a(V(f"v_lshl_add_u32 v{V_T0}, s{S_W}, 2, v{V_G}", [V_G], [V_T0]))
    a(V(f"v_xor_b32 v{V_T1}, v{V_N}, v{V_T0}", [V_N, V_T0], [V_T1]))
    a(V(f"v_lshlrev_b32 v{V_T1}, 4, v{V_T1}", [V_T1], [V_T1]))
    a(V(f"v_lshl_add_u32 v{V_XD}, v{V_T0}, 10, v{V_T1}", [V_T0, V_T1], [V_XD]))
    a(S(f"s_and_b32 s{S_T0}, s{S_W}, 2", [S_W], [S_T0]))
    a(S(f"s_lshl_b32 s{S_T0}, s{S_T0}, 2", [S_T0], [S_T0]))
    a(V(f"v_lshl_add_u32 v{V_T1}, v{V_G}, 1, s{S_T0}", [V_G], [V_T1]))
    a(V(f"v_xor_b32 v{V_T1}, v{V_N}, v{V_T1}", [V_N, V_T1], [V_T1]))
    a(V(f"v_lshlrev_b32 v{V_T1}, 4, v{V_T1}", [V_T1], [V_T1]))
    a(V(f"v_lshl_add_u32 v{V_WD}, v{V_T0}, 13, v{V_T1}", [V_T0, V_T1], [V_WD]))
    t += sg.out + ["s_nop 4", "s_branch L_restart"]
    sg = Seg(); a = sg.add
    sg.text("; true row maxima over all keys -> negated into the accumulator seed of S")
    sg.text("L_max:")
    sg.text(f"s_mov_b32 s{S_SPIN}, m0")
    sg.drain()
    sg.text("s_barrier")
    MX, KF, AD = 76, V_VF, 84
    for q in range(5): a(V(f"v_mov_b32 v{MX+q}, 0xff800000", [], [MX+q]))
    for s in range(4): a(V(f"v_add_u32 v{AD+s}, {96*KB}, v{V_KA+s}", [V_KA+s], [AD+s]))
    a(S(f"s_mov_b32 s{S_T2}, 0", [], [S_T2]))
    sg.text("L_max_loop:"); sg.reset_hist()
    for j in range(8):
        if j % 4 == 0:
            a(S(f"s_add_u32 s{S_T1}, s{S_T2}, {(j>>2)*4096}", [S_T2], [S_T1]))
            a(S(f"s_add_u32 m0, s{S_W8K}, {96*KB + (j>>2)*4096}", [S_W8K], [M0]))
        a(dma(V_KD + (j & 3), S_K, S_T1, 1024 * (j & 3), 'mk'))
    for t_ in range(2):
        for s in range(4):
            a(dsrd('ds_read_b128', ('v', KF + (t_ * 4 + s) * 4), 4, AD + s, t_ * 4096, needvm=['mk']))
    for q in range(5):
        for t_ in range(2):
            d = ('v', 88 + t_ * 4)
            for s in range(4): a(mfma(d, ('v', KF + (t_ * 4 + s) * 4), AQ(q, s), 0 if s == 0 else d))
        for k in range(4):
            a(V(f"v_max3_f32 v{MX+q}, v{MX+q}, v{88+2*k}, v{89+2*k}", [MX+q, 88+2*k, 89+2*k], [MX+q]))
    sg.drain()
    a(S(f"s_add_u32 s{S_T2}, s{S_T2}, 8192", [S_T2], [S_T2]))
    sg.text(f"s_cmp_lt_u32 s{S_T2}, 65536"); sg.text("s_nop 4"); sg.text("s_cbranch_scc1 L_max_loop")
    sg.text("s_barrier")
    a(S(f"s_mul_i32 s{S_T0}, s{S_W}, 1280", [S_W], [S_T0]))
    a(S(f"s_add_u32 s{S_T0}, s{S_T0}, {96*KB}", [S_T0], [S_T0]))
    a(V(f"v_lshl_add_u32 v{AD}, v{V_LANE}, 2, s{S_T0}", [V_LANE], [AD]))
    a(S(f"s_mov_b32 s{S_T0}, {96*KB}", [], [S_T0]))
    a(V(f"v_lshl_add_u32 v{AD+1}, v{V_N}, 2, s{S_T0}", [V_N], [AD+1]))
    for q in range(5): a(dswr('ds_write_b32', AD, ('v', MX + q), 1, q * 256))
    a(barrier())
    for q in range(5):
        for k in range(16):
            a(dsrd('ds_read_b32', ('v', KF + k), 1, AD + 1, (k >> 2) * 1280 + q * 256 + (k & 3) * 64))
        for k in range(8):
            a(V(f"v_max3_f32 v{MX+q}, v{MX+q}, v{KF+2*k}, v{KF+2*k+1}", [MX+q, KF+2*k, KF+2*k+1], [MX+q]))
        for r in range(4):
            a(V(f"v_sub_f32 v{V_NEGM+q*4+r}, 0, v{MX+q}", [MX+q], [V_NEGM+q*4+r]))
    sg.drain()
    sg.text("s_barrier"); sg.text(f"s_mov_b32 m0, s{S_SPIN}"); sg.text("s_nop 4"); sg.text("s_branch L_back_max")
    return t + sg.out

def stamp_out(sg, n):
    if not opt.stamps or (opt.stamps == 'Z' and n > 1): return
    if opt.stamps == 'Z':
        for x in ["s_load_dwordx2 s[76:77], s[0:1], 56", "s_waitcnt lgkmcnt(0)", f"s_add_u32 s76, s76, {16<<20}", "s_addc_u32 s77, s77, 0", "s_and_b32 s77, s77, 0xffff",
                  "s_mov_b32 s78, 0x100000", "s_mov_b32 s79, 0x20000", "s_lshl_b32 s80, s2, 2", "s_add_u32 s80, s80, s32", "s_lshl_b32 s80, s80, 6", "v_mov_b32 v74, s80",
                  "v_mov_b32 v75, s3", "buffer_store_dword v75, v74, s[76:79], 0 offen sc1"]: sg.text(x)
        return
    stamp(sg, n - 1)
    t = ["s_load_dwordx2 s[4:5], s[0:1], 56", "s_waitcnt lgkmcnt(0)", f"s_add_u32 s4, s4, {16<<20}", "s_addc_u32 s5, s5, 0", "s_and_b32 s5, s5, 0xffff",
         "s_mov_b32 s6, 0x100000", "s_mov_b32 s7, 0x20000", "s_lshl_b32 s8, s2, 2", "s_add_u32 s8, s8, s32", "s_lshl_b32 s8, s8, 6", "v_mov_b32 v2, s8"]
    for i in range(n):
        t += [f"v_mov_b32 v3, s{3 if i == 0 else 76+2*i}", f"buffer_store_dword v3, v2, s[4:7], 0 offen offset:{4*i} sc1"]
    for x in t: sg.text(x)

def kernel():
    sg = Seg()
    sg.text(NAME + "_kernel:")
    sg.text("s_cmp_ge_u32 s2, 256")
    sg.text("s_cbranch_scc1 L_end")
    if opt.stamps:
        stamp(sg, 0)
    p1 = prologue1()
    sg.addall(p1[:2])
    if int(opt.cpf):
        for x in ["; pull the kernel's code into this XCD's L2 (two lines per wave, value unused)", "s_getpc_b64 s[94:95]", "L_pc:", "s_lshr_b32 s3, s2, 3", "v_lshrrev_b32 v8, 6, v0", "v_and_b32 v9, 1, v0", "v_lshl_add_u32 v8, v8, 1, v9",
                  "v_lshl_add_u32 v8, s3, 3, v8", "v_lshlrev_b32 v8, 7, v8", "v_min_u32 v8, (L_code_end - L_pc - 4) & 0xffffff80, v8"] + (["global_load_dword v255, v8, s[94:95]"] if int(opt.cpf) == 1 else ["s_mov_b64 s[12:13], s[94:95]"]): sg.text(x)
    sg.addall(p1[2:])
    if opt.stamps:
        sg.text("s_mov_b32 s3, s76")
    p2 = prologue2()
    Q = Queue()
    first = x_dma(0) + w_dma(0) if not int(opt.wfirst) else w_dma(0) + x_dma(0)
    stamp(sg, 5, 'P')
    Q.push(first)
    weave(sg, Q, [], 9, 0)
    if int(opt.cpf) == 2: sg.text("global_load_dword v255, v8, s[12:13]")
    stamp(sg, 6, 'P')
    sg.addall(p2)
    stamp(sg, 7, 'P')
    sg.text("; workgroup 0 publishes this launch's hand-off tag (a clock value, used only to tell this launch's flags from stale ones)")
    sg.text("s_cmp_lg_u32 s2, 0"); sg.text("s_cbranch_scc1 L_nocz")
    lane0(sg, ["v_mov_b32 v9, 0", f"s_memrealtime s[{S_NON}:{S_NON+1}]", "s_waitcnt lgkmcnt(0)", f"s_or_b32 s{S_NON}, s{S_NON}, 1", f"v_mov_b32 v250, s{S_NON}", f"v_mov_b32 v251, s{S_NON+1}",
               f"buffer_store_dwordx2 v[250:251], v9, s[{S_D}:{S_D+3}], 0 offen sc1"], "L_nocz")
    sg.text("s_branch L_first")
    sg.text("L_restart:")
    s2 = Seg(); s2.addall(restart_setup()); Q2 = Queue(); Q2.push(x_dma(0) + w_dma(0) if not int(opt.wfirst) else w_dma(0) + x_dma(0)); weave(s2, Q2, [], 9, 0)
    for x in s2.out: sg.text(x)
    sg.text("L_first:")
    early, late = prologue3()
    tc = wod_calc() + tail_calc()
    early = early + late + handoff_calc() + tc[:-5]
    def BB(u): return f"B{u + 1}"
    Q.push(w_dma(1) + x_dma(1) + w_dma(2) + w_dma(3) + x_dma(2) + w_dma(4) + ((w_dma(5, 'B2') + x_dma(3)) if int(opt.la) else (x_dma(3) + w_dma(5, 'B2'))) + w_dma(6, 'B3') + w_dma(7, 'B4')
           + kv_dma('k', 0, 'B5') + kv_dma('v', 0, 'B6') + kv_dma('k', 1, 'B8') + kv_dma('v', 1, 'BQ'))
    for i in range(2, 8):
        if not int(opt.nodma): Q.push(kv_dma('k', i) + kv_dma('v', i))
    n0 = int(opt.n0) - 9
    if opt.psched:
        for part_ in opt.psched.split(','):
            ni, nf = [int(x) for x in part_.split(':')]
            weave(sg, Q, [], ni, 0); n0 -= ni
            for _ in range(min(nf, len(early))): sg.add(early.pop(0))
        weave(sg, Q, [], max(0, n0), 0)
    else:
        weave(sg, Q, early, n0, (len(early) + n0 - 1) // n0)
    sg.addall(early)
    qr = phase_a(sg, Q)
    sg.addall(qr[:0])
    stamp(sg, 3)
    sg.text(f"s_cmp_eq_u32 s{S_REDO}, 0"); sg.text("s_cbranch_scc1 L_back_max")
    s2 = Seg(); s2.addall(qr)
    for x in s2.out: sg.text(x)
    sg.text("s_branch L_max")
    sg.text("L_back_max:")
    phase_b(sg, Q, qr)
    combine(sg, Q)
    phase_c(sg, Q)
    sg.text("L_fin:")
    stamp_out(sg, 11)
    sg.text("L_end:")
    sg.text("s_endpgm")
    return sg.out + ['L_code_end:'] + out_of_line()

def report_kernel():
    idx, mode = opt.report.split(',')
    if mode == 'next':
        return ["report_kernel:", "s_cmp_ge_u32 s2, 1", "s_cbranch_scc1 L3_end", "s_memrealtime s[12:13]", "s_load_dwordx2 s[4:5], s[0:1], 56", "s_waitcnt lgkmcnt(0)",
                f"s_add_u32 s4, s4, {17<<20}", "s_addc_u32 s5, s5, 0", "s_and_b32 s5, s5, 0xffff", "s_mov_b32 s6, 64", "s_mov_b32 s7, 0x20000", "v_mov_b32 v1, 0", "v_mov_b32 v2, s12",
                "buffer_store_dword v2, v1, s[4:7], 0 offen", "L3_end:", "s_endpgm"]
    t = ["report_kernel:", "s_cmp_ge_u32 s2, 1", "s_cbranch_scc1 L3_end", "s_memrealtime s[16:17]", "s_load_dwordx2 s[4:5], s[0:1], 56", "s_waitcnt lgkmcnt(0)",
         f"s_add_u32 s4, s4, {16<<20}", "s_addc_u32 s5, s5, 0", "s_and_b32 s5, s5, 0xffff", "s_mov_b32 s6, 0x100000", "s_mov_b32 s7, 0x20000",
         "v_lshlrev_b32 v1, 8, v0", f"buffer_load_dword v2, v1, s[4:7], 0 offen offset:{4*int(idx)}", "buffer_load_dword v3, v1, s[4:7], 0 offen",
         "v_mov_b32 v4, 0", "v_mov_b32 v5, 0", "v_mov_b32 v6, -1", "ds_write_b32 v4, v5", "ds_write_b32 v4, v6 offset:8", "s_waitcnt vmcnt(0) lgkmcnt(0)", "s_barrier",
         "ds_min_u32 v4, v3 offset:8", "s_waitcnt lgkmcnt(0)", "s_barrier", "ds_read_b32 v6, v4 offset:8", "s_waitcnt lgkmcnt(0)", "v_sub_u32 v2, v2, v6",
         "v_lshrrev_b32 v7, 3, v0", "v_mul_u32_u24 v7, 52, v7", "v_lshrrev_b32 v7, 8, v7", "v_and_b32 v8, 1, v0", "v_sub_u32 v8, 6, v8", "v_cmp_lt_u32 vcc, v7, v8",
         "v_min_u32 v2, 10000, v2",
         ("ds_add_u32 v4, v2" if mode == 'mean' else "ds_max_u32 v4, v2"), "s_waitcnt lgkmcnt(0)", "s_barrier", "ds_read_b32 v6, v4", "s_memrealtime s[12:13]", "s_waitcnt lgkmcnt(0)",
         "v_readfirstlane_b32 s10, v6", "s_nop 4"]
    if mode == 'mean': t += ["s_mul_i32 s10, s10, 10", "s_lshr_b32 s10, s10, 8"]
    elif mode == 'max': t += ["s_mul_i32 s10, s10, 10"]
    elif mode == 'gap': t += ["ds_read_b32 v6, v4 offset:8", "s_waitcnt lgkmcnt(0)", "v_readfirstlane_b32 s11, v6", "s_nop 4", "s_sub_u32 s16, s16, s11", "s_sub_u32 s10, s16, s10",
                              "s_min_u32 s10, s10, 2000", "s_mul_i32 s10, s10, 20"]
    else: t += ["s_mov_b32 s10, 0"]
    t += ["L3_spin:", "s_memrealtime s[14:15]", "s_waitcnt lgkmcnt(0)", "s_sub_u32 s14, s14, s12",
          "s_cmp_lt_u32 s14, s10", "s_cbranch_scc1 L3_spin", "L3_end:", "s_endpgm"]
    return t

HEADER = """; Kernarg layout (64 bytes, pointers only, base s[0:1]):
;  24: wq (512,4096) bf16  32: wo (4096,512) bf16   40: d_out (8,80,512) bf16   48: d_debug   56: d_ws
;
; One launch, one workgroup (4 waves) per (batch b, query head hq); hkv = id & 7, j = (id >> 3) & 3, b = id >> 5, hq = 4*hkv + j.
;     Softmax shift m: the first pass uses m = 0, which is exact as long as nothing leaves the fp32 range.  Every row sum is
;     checked against [2^-40, 2^40] (NaN fails too); if any row is outside, the workgroup starts over, computes the true row
;     maxima over all 1024 keys (L_max) and repeats phase B with m = row maximum.
;  C  hand-off 1: O (bf16) goes to the three other heads of the kv group; workgroup (b, hkv, j) multiplies the four heads
;     with wo[hkv*512.., j*128..] -> partial result for 128 output columns.
;     hand-off 2: the eight partial results (one per hkv) are summed in fp32, each workgroup finishing one eighth.
;  and read with sc1.  The tag is a clock value that workgroup 0 publishes in d_debug (zero at launch), so flags left in d_ws
;  by earlier launches never match.  Polls are bounded.  Nothing depends on the XCD a workgroup runs on; the id mapping, the
"""
def build():
    def fmt(l): return "\n".join(x if x.endswith(':') else "    " + x for x in l)
    nm = NAME + "_kernel"
    s = HEADER + "; @launch grid=(256,1,1) block=(256,1,1) lds=163840\n"
    if opt.report:
        s = f"; @launch kernel={nm} grid=(256,1,1) block=(256,1,1) lds=163840\n; @launch kernel=report_kernel grid=(1,1,1) block=(256,1,1) lds=64\n"
    s += '.amdgcn_target "amdgcn-amd-amdhsa--gfx950"\n.text\n'
    s += f".globl {nm}\n.p2align 8\n.type {nm},@function\n" + fmt(kernel()) + "\n"
    if opt.report: s += ".globl report_kernel\n.p2align 8\n.type report_kernel,@function\n" + fmt(report_kernel()) + "\n"
    s += f""".section .rodata,"a"
.p2align 6
.amdhsa_kernel {nm}
  .amdhsa_next_free_vgpr 512
  .amdhsa_next_free_sgpr 102
  .amdhsa_accum_offset 256
  .amdhsa_group_segment_fixed_size 0
  .amdhsa_kernarg_size 64
  .amdhsa_user_sgpr_count 2
  .amdhsa_user_sgpr_kernarg_segment_ptr 1
  .amdhsa_system_sgpr_workgroup_id_x 1
  .amdhsa_float_denorm_mode_32 3
.end_amdhsa_kernel
"""
    if opt.report:
        s += """.p2align 6
.amdhsa_kernel report_kernel
  .amdhsa_next_free_vgpr 32
  .amdhsa_next_free_sgpr 32
  .amdhsa_accum_offset 32
  .amdhsa_group_segment_fixed_size 0
  .amdhsa_kernarg_size 64
  .amdhsa_user_sgpr_count 2
  .amdhsa_user_sgpr_kernarg_segment_ptr 1
  .amdhsa_system_sgpr_workgroup_id_x 1
.end_amdhsa_kernel
"""
    return s

if __name__ == '__main__':
    out = sys.argv[1] if len(sys.argv) > 1 else 'cdna_kernels/' + NAME + '.s'
    for a_ in sys.argv[2:]:
        k, v = a_.split('=', 1)
        setattr(opt, k, (' ' + v) if k.endswith('flags') and v else v)
    HOIST[0] = int(opt.hoist)
    txt = build()
    open(out, 'w').write(txt)
```

```python
import sys, struct, re
from dsl import *

KB = 1024
NAME = 'standalone__gqa_block_cached__near_ridge'
def f2h(x): return hex(struct.unpack('<I', struct.pack('<f', x))[0])
QSCALE = 1.4426950408889634 / (128 ** 0.5)
WS_WO = 8 << 20
WS_CT = 12 << 20

class Opt:
    stamps = ''
    report = ''
    kv_flags = ''
    a_flags = ''
    n0 = 22
    warm = 1
    perstep = 6
    lo_exp = -40
    hi_exp = 40
    spin = 300000
    rt_at = 5
    bar_at = 32
    nodma = 0
    f2rep = 1
    flow = 0
    nA = 2
    pa = 20
    pb = 19
    pre2 = 2
    w2a = 0
    pre0 = 4
    pre1 = 2
    late0 = 0
    lastlag = 0
    psched = ''
    spos = '1,3,5,7'
    bq = 0
    v7s = 1
    b0s = 0
    peek = 0
    pgap = 0
    cpf2_at = 99
    cpf2_skip = 1024
    pairw = 0
    dtch_at = 99
    dtch = 'op'
    dtch_flags = ''
    wpos = '5,16'
    x1e = 0
    c3 = 0
    otr = 1
    otch_at = 99
    otch_flags = ''
    worlate = 1
    pf = 9
    noout = 0
    even_end = 23
    coal = 1
    hoist = 2
    unp = 0
    f2wg = 1
    wfirst = 0
    kvnt = 'x'
    ant = ''
    tch_flags = ''
    wsb = 0
    drain = '45'
    tlb_at = 27
    aonly = 0
    la = 10
    aq = 1
    ownlate = 1
    o_flags = ' sc1'
    f1_flags = ' sc1'
    w64 = 0
    out_flags = ''
    bsched = 1
    p1w = 1
    p2w = 0
    pollk = '19,29,39'
    dyn2 = 1
    qmaj = 1
    tch_at = 27
    even_at = 99
    pdepth = 1
    kvo = 4
    finw = 0
    alim = 16
    cpf = 1
    chain = 1
    wo_at = 33
    calc_at = 16
    nl_at = 8
    nc_at = 13
    cw = 2
    shadow = 7
    bst = '0,5,10,15,20'
    no_rt = 0
    clk = 'r'
    lg0 = 0
    vpos = '1,5,9,13'
    rot_kv = 1
    rot_a = 8
    rot_c = 1
    gl_at = 29
    gc_at = 33
opt = Opt()

S_X, S_WQ, S_K, S_V, S_O, S_WO, S_WT, S_WL, S_C, S_D, S_OUT = 4, 8, 12, 16, 20, 24, 28, 52, 56, 60, 64
S_W, S_B, S_HKV, S_HQ = 32, 33, 34, 35
S_W1K, S_W8K, S_SO, S_T0, S_T1, S_T2, S_SK, S_SV = 36, 37, 38, 39, 40, 41, 42, 43
S_TAB = 44
S_REDO, S_MT, S_NT, S_VALID, S_RT, S_SPIN = 68, 69, 70, 71, 72, 73
S_EX = 74
S_F1, S_F2, S_G1, S_G2 = 100, 101, 72, 51
S_GM = 70
S_J_UNUSED = 3
S_P = 76
S_ST = 80
V_LANE, V_N, V_G, V_T0, V_T1, V_T2, V_T3, V_T4, V_T5 = 1, 2, 3, 4, 5, 6, 7, 8, 9
V_KA, V_VA, V_KD, V_VD = 10, 14, 22, 26
V_OST, V_CW, V_LW = 28, 29, 31
V_ONES, V_NEGM, V_L, V_S, V_P, V_KF, V_VF = 32, 36, 56, 76, 92, 100, 164
V_XA, V_XB, V_WA, V_WB, V_XD, V_WD, V_QW = 76, 56, 80, 82, 84, 85, 86
V_GC = 250
S_NON = 96
V_CR, V_LR, V_WOD, V_WT, V_OL, V_OW, V_OD, V_PS, V_PLD, V_OUT, V_P1, V_P2 = 228, 234, 235, 236, 242, 243, 244, 245, 246, 247, 248, 249
V_ZERO = 9
V_TCH = 64
S_H = 52
S_W5K = 55
S_W2K, S_W3K = 49, 50
S_J = 69
A_O, A_Q = 0, 160
V_OWN = [132, 140, 148, 156, 56]
A_KF1, A_L = 120, 240
def AO(lam, q):
    if lam < 2: return ('v', V_OWN[q] + 4 * lam)
    return ('a', A_O + 4 * (q * 6 + lam - 2))
def KF(i, k): return ('v', V_KF + 4 * k) if i % 2 == 0 else ('a', A_KF1 + 4 * k)
def LA(q): return ('a', A_L + 4 * q) if q < 4 else ('a', 152)
def AQ(q, s): return ('a', A_Q + 4 * (q * 4 + s))

def XU(c, q):
    if c == 0: return q * 4 * KB
    if c == 1: return 20 * KB + q * 4 * KB
    if c == 2: return 128 * KB + q * 4 * KB
    return [120, 124, 148, 152, 156][q] * KB
def WU(slot, ks):
    return {0: [40, 48], 1: [56, 96], 2: [104, 112], 3: [64, 72], 4: [80, 88]}[slot][ks] * KB
WSLOT = [0, 1, 2, 3, 4, 0, 1, 2]
QBUF = 128 * KB

def V(t, r=(), w=()):
    return valu(t, r=[('v', x) if isinstance(x, int) else x for x in r], w=[('v', x) if isinstance(x, int) else x for x in w])
def T(t, r=(), w=()):
    return valu(t, r=[('v', x) for x in r], w=[('v', x) for x in w], trans=True)
def S(t, r=(), w=()):
    return salu(t, r=[('s', x) if isinstance(x, int) else x for x in r], w=[('s', x) if isinstance(x, int) else x for x in w])
M0 = ('m0', 0)
VCC = ('vcc', 0)
def flat(l): return [x for y in l for x in y]

def srd(dst, plo, add_s=None, add_imm=0, size=0):
    o = []
    if add_s is not None or add_imm:
        o.append(S(f"s_add_u32 s{dst}, s{plo}, " + (f"s{add_s}" if add_s is not None else f"{add_imm}"), [plo] + ([add_s] if add_s is not None else []), [dst]))
        o.append(S(f"s_addc_u32 s{dst+1}, s{plo+1}, 0", [plo+1], [dst+1]))
    else: assert dst == plo
    o.append(S(f"s_mov_b32 s{dst+2}, {size}", [], [dst+2]))
    o.append(S(f"s_mov_b32 s{dst+3}, 0x20000", [], [dst+3]))
    return o

KV_ORDER = [[0, 2, 1, 3, 4, 6, 5, 7], [0, 1, 3, 2, 4, 5, 7, 6], [1, 0, 2, 4, 3, 5, 6, 7], [1, 0, 2, 3, 5, 4, 6, 7]]
KV_ORDERS = [KV_ORDER,
  [[0, 4, 1, 2, 3, 5, 6, 7], [1, 0, 5, 2, 3, 4, 6, 7], [2, 0, 1, 6, 3, 4, 5, 7], [3, 0, 1, 2, 7, 4, 5, 6]],
  [[0, 1, 2, 3, 4, 5, 6, 7], [0, 1, 2, 3, 4, 5, 6, 7], [4, 5, 6, 7, 0, 1, 2, 3], [4, 5, 6, 7, 0, 1, 2, 3]],
  [[0, 2, 1, 3, 5, 4, 6, 7], [1, 0, 3, 2, 4, 6, 5, 7], [2, 1, 0, 4, 3, 5, 7, 6], [0, 1, 2, 3, 5, 4, 6, 7]],
  [[0, 1, 2, 4, 3, 5, 6, 7], [1, 0, 2, 3, 5, 4, 6, 7], [2, 0, 1, 3, 4, 6, 5, 7], [0, 1, 3, 2, 4, 5, 7, 6]],
  [[0, 1, 4, 2, 3, 5, 6, 7], [1, 0, 2, 5, 3, 4, 6, 7], [2, 0, 1, 3, 6, 4, 5, 7], [0, 3, 1, 2, 4, 7, 5, 6]],
  [[0, 1, 3, 2, 4, 5, 7, 6], [0, 1, 2, 4, 3, 5, 6, 7], [0, 2, 1, 3, 5, 4, 6, 7], [0, 2, 1, 3, 4, 6, 5, 7]],
  [[0, 1, 2, 4, 3, 5, 6, 7], [1, 0, 3, 2, 5, 4, 6, 7], [2, 3, 0, 1, 4, 6, 5, 7], [3, 2, 1, 0, 4, 5, 7, 6]],
  [[0, 1, 2, 4, 3, 5, 6, 7], [1, 2, 0, 3, 5, 4, 6, 7], [2, 0, 1, 3, 4, 6, 5, 7], [0, 3, 1, 2, 4, 5, 7, 6]]]
def kv_pack(j):
    o = KV_ORDERS[int(opt.kvo)][j] if int(opt.rot_kv) else list(range(8))
    return sum(t << (4 * i) for i, t in enumerate(o))
S_KVO = 98
V_XD4 = 204
S_WC = 99

class Item:
    def __init__(s, pre, ins, after=None): s.pre, s.ins, s.after = pre, ins, after
def x_dma(c, after=None):
    return [Item([S(f"s_add_u32 m0, s{S_W1K}, {XU(c,q)}", [S_W1K], [M0])],
                 dma(V_XD4 + c, S_X, S_TAB + q, 0, ('x', c), flags=(' nt' if 'x' in opt.ant and c < 2 else opt.a_flags)), after) for q in range(5)]
def w_dma(u, after=None):
    o = []
    for k in range(4):
        pre = []
        if k == 0:
            pre.append(S(f"s_add_u32 s{S_SK}, s{S_WC}, {(u & 6) << 19}", [S_WC], [S_SK]))
            pre.append(S(f"s_and_b32 s{S_SK}, s{S_SK}, {7 << 19}", [S_SK], [S_SK]))
            if u & 1: pre.append(S(f"s_xor_b32 s{S_SK}, s{S_SK}, {1 << 19}", [S_SK], [S_SK]))
        pre.append(S(f"s_add_u32 s{S_SO}, s{S_SK}, {k*131072}", [S_SK], [S_SO]))
        pre.append(S(f"s_add_u32 m0, s{S_W1K}, {WU(WSLOT[u], k>>1) + (k&1)*4*KB}", [S_W1K], [M0]))
        o.append(Item(pre, dma(V_WD, S_WQ, S_SO, 0, ('w', u), flags=(' nt' if 'w' in opt.ant and u < 4 else opt.a_flags)), after))
    return o
def kv_dma(kind, i, after=None):
    o = []
    base = (i & 1) * 32 * KB + (0 if kind == 'k' else 64 * KB)
    sr, so = (S_K, S_SK) if kind == 'k' else (S_V, S_SV)
    for j in range(8):
        pre = []
        if j % 4 == 0:
            if j == 0:
                pre.append(S(f"s_bfe_u32 s{so}, s{S_KVO}, {hex((3 << 16) | (4 * i))}", [S_KVO], [so]))
                pre.append(S(f"s_lshl_b32 s{so}, s{so}, 13", [so], [so]))
            else:
                pre.append(S(f"s_add_u32 s{so}, s{so}, 4096", [so], [so]))
            pre.append(S(f"s_add_u32 m0, s{S_W8K}, {base + (j>>2)*4096}", [S_W8K], [M0]))
        va = V_KD + (j & 3) if kind == 'k' else V_VD + (j & 1)
        tag = (kind + 'r', i - 2, j >> 2)
        o.append(Item(pre, dma(va, sr, so, 1024 * (j & 3), (kind, i, j >> 2), needlg=[tag], flags=(' nt' if str(i) in str(opt.kvnt) else opt.kv_flags)), after if i < 2 else tag))
    return o
def k_reads(i):
    return [dsrd('ds_read_b128', KF(i, t * 4 + s), 4, V_KA + s, (i & 1) * 32 * KB + t * 4096,
                 needvm=[('k', i, t)], lgtag=('kr', i, t)) for t in range(2) for s in range(4)]
def v_reads(i):
    return [dsrd('ds_read_b64_tr_b16', ('v', V_VF + (i & 1) * 32 + lam * 4 + h * 2), 2, V_VA + lam, (i & 1) * 32 * KB + h * 4096,
                 needvm=[('v', i, h)], lgtag=('vr', i, h)) for h in range(2) for lam in range(8)]

class Queue:
    def __init__(s): s.q = []; s.pts = set()
    def push(s, items): s.q += items
    def mark(s, p): s.pts.add(p)
    def pop(s):
        if s.q and (s.q[0].after is None or s.q[0].after in s.pts): return s.q.pop(0)
        return None

def place(gaps, Q, pos):
    last = -1
    for p in pos:
        if p >= len(gaps): continue
        it = Q.pop()
        if it is None: break
        pre = list(it.pre)
        avail = list(range(last + 1, p))
        front = []
        if not avail: front = pre
        else:
            slots = [[] for _ in avail]
            for k_, x in enumerate(reversed(pre)):
                slots[max(0, len(avail) - 1 - k_)].insert(0, x)
            for g, sl in zip(avail, slots):
                k_ = 0
                while k_ < len(gaps[g]) and gaps[g][k_].k == 'salu': k_ += 1
                gaps[g][k_:k_] = sl
        k = 0
        while k < len(gaps[p]) and gaps[p][k].k == 'salu': k += 1
        gaps[p][k:k] = front + [it.ins]
        last = p
def weave(sg, Q, fill, n, per):
    for _ in range(n):
        it = Q.pop()
        if it is not None: sg.addall(it.pre + [it.ins])
        for _ in range(per):
            if fill: sg.add(fill.pop(0))

NST = 12
def stamp(sg, i, grp='1'):
    if not opt.stamps: return
    if opt.stamps == 'Z' and i: return
    if 5 <= i <= 9 and grp != opt.stamps: return
    sg.text(f"{'s_memtime' if opt.clk == 'c' else 's_memrealtime'} s[{76+2*i}:{77+2*i}]")

def prologue1():
    o = []; a = o.append
    a(raw("s_load_dwordx2 s[92:93], s[0:1], 0"))
    a(raw("s_load_dwordx2 s[26:27], s[0:1], 24"))
    a(V(f"v_lshrrev_b32 v{V_T0}, 6, v0", [0], [V_T0]))
    a(V(f"v_and_b32 v{V_LANE}, 63, v0", [0], [V_LANE]))
    a(V(f"v_readfirstlane_b32 s{S_W}, v{V_T0}", [V_T0], [('s', S_W)]))
    a(S(f"s_and_b32 s{S_HKV}, s2, 7", [2], [S_HKV]))
    a(S(f"s_lshr_b32 s{S_B}, s2, 5", [2], [S_B]))
    a(S(f"s_bfe_u32 s{S_T0}, s2, 0x20003", [2], [S_T0]))
    a(S(f"s_mov_b32 s{S_J}, s{S_T0}", [S_T0], [S_J]))
    a(S(f"s_lshl_b32 s{S_HQ}, s{S_HKV}, 2", [S_HKV], [S_HQ]))
    a(S(f"s_add_u32 s{S_HQ}, s{S_HQ}, s{S_T0}", [S_HQ, S_T0], [S_HQ]))
    if int(opt.rot_a) == 2:
        a(S(f"s_add_u32 s{S_VALID}, s{S_T0}, s{S_B}", [S_T0, S_B], [S_VALID]))
        a(S(f"s_and_b32 s{S_VALID}, s{S_VALID}, 1", [S_VALID], [S_VALID]))
        a(S(f"s_lshl_b32 s{S_VALID}, s{S_VALID}, 2", [S_VALID], [S_VALID]))
    elif int(opt.rot_a) in (5, 6):
        a_, b_ = (S_B, S_T0) if int(opt.rot_a) == 5 else (S_T0, S_B)
        a(S(f"s_lshl_b32 s{S_VALID}, s{b_}, 1", [b_], [S_VALID]))
        a(S(f"s_add_u32 s{S_VALID}, s{S_VALID}, s{a_}", [S_VALID, a_], [S_VALID]))
        a(S(f"s_and_b32 s{S_VALID}, s{S_VALID}, 3", [S_VALID], [S_VALID]))
        a(S(f"s_lshl_b32 s{S_VALID}, s{S_VALID}, 1", [S_VALID], [S_VALID]))
    elif int(opt.rot_a) in (8, 9):
        a(S(f"s_add_u32 s{S_VALID}, s{S_T0}, s{S_B}", [S_T0, S_B], [S_VALID]))
        a(S(f"s_lshl_b32 s{S_VALID}, s{S_VALID}, 1", [S_VALID], [S_VALID]))
        a(S(f"s_and_b32 s{S_T1}, s{S_HKV}, {1 if int(opt.rot_a) == 8 else 3}", [S_HKV], [S_T1]))
        a(S(f"s_add_u32 s{S_VALID}, s{S_VALID}, s{S_T1}", [S_VALID, S_T1], [S_VALID]))
        a(S(f"s_and_b32 s{S_VALID}, s{S_VALID}, 3", [S_VALID], [S_VALID]))
        a(S(f"s_lshl_b32 s{S_VALID}, s{S_VALID}, 1", [S_VALID], [S_VALID]))
    elif int(opt.rot_a) == 7:
        a(S(f"s_add_u32 s{S_VALID}, s{S_T0}, s{S_B}", [S_T0, S_B], [S_VALID]))
        a(S(f"s_and_b32 s{S_VALID}, s{S_VALID}, 1", [S_VALID], [S_VALID]))
        a(S(f"s_lshl_b32 s{S_VALID}, s{S_VALID}, 2", [S_VALID], [S_VALID]))
        a(S(f"s_bfe_u32 s{S_T1}, s{S_B}, 0x10001", [S_B], [S_T1]))
        a(S(f"s_or_b32 s{S_VALID}, s{S_VALID}, s{S_T1}", [S_VALID, S_T1], [S_VALID]))
    elif int(opt.rot_a) == 4:
        a(S(f"s_add_u32 s{S_VALID}, s{S_T0}, s{S_B}", [S_T0, S_B], [S_VALID]))
        a(S(f"s_and_b32 s{S_VALID}, s{S_VALID}, 3", [S_VALID], [S_VALID]))
        a(S(f"s_lshl_b32 s{S_VALID}, s{S_VALID}, 1", [S_VALID], [S_VALID]))
    elif int(opt.rot_a):
        a(S(f"s_lshl_b32 s{S_T0}, s{S_T0}, 1", [S_T0], [S_T0]))
        a(S(f"s_add_u32 s{S_VALID}, s{S_T0}, s{S_B}", [S_T0, S_B], [S_VALID]))
        a(S(f"s_and_b32 s{S_VALID}, s{S_VALID}, 7", [S_VALID], [S_VALID]))
    else:
        a(S(f"s_mov_b32 s{S_VALID}, 0", [], [S_VALID]))
    a(V(f"v_and_b32 v{V_N}, 15, v{V_LANE}", [V_LANE], [V_N]))
    a(V(f"v_lshrrev_b32 v{V_G}, 4, v{V_LANE}", [V_LANE], [V_G]))
    a(S(f"s_lshl_b32 s{S_W1K}, s{S_W}, 10", [S_W], [S_W1K]))
    a(S(f"s_lshl_b32 s{S_W8K}, s{S_W}, 13", [S_W], [S_W8K]))
    a(V(f"v_lshl_add_u32 v{V_T0}, s{S_W}, 2, v{V_G}", [V_G, ('s', S_W)], [V_T0]))
    a(V(f"v_xor_b32 v{V_T1}, v{V_N}, v{V_T0}", [V_N, V_T0], [V_T1]))
    a(V(f"v_lshlrev_b32 v{V_T1}, 4, v{V_T1}", [V_T1], [V_T1]))
    a(V(f"v_lshl_add_u32 v{V_XD}, v{V_T0}, 10, v{V_T1}", [V_T0, V_T1], [V_XD]))
    a(S(f"s_and_b32 s{S_T0}, s{S_W}, 2", [S_W], [S_T0]))
    a(S(f"s_lshl_b32 s{S_T0}, s{S_T0}, 2", [S_T0], [S_T0]))
    a(V(f"v_lshl_add_u32 v{V_T1}, v{V_G}, 1, s{S_T0}", [V_G, ('s', S_T0)], [V_T1]))
    a(V(f"v_xor_b32 v{V_T1}, v{V_N}, v{V_T1}", [V_N, V_T1], [V_T1]))
    a(V(f"v_lshlrev_b32 v{V_T1}, 4, v{V_T1}", [V_T1], [V_T1]))
    a(V(f"v_lshl_add_u32 v{V_WD}, v{V_T0}, 13, v{V_T1}", [V_T0, V_T1], [V_WD]))
    a(S(f"s_mul_i32 s{S_T0}, s{S_B}, 81920", [S_B], [S_T0]))
    a(S(f"s_lshl_b32 s{S_T2}, s{S_HQ}, 8", [S_HQ], [S_T2]))
    a(S(f"s_sub_u32 s{S_T1}, 4194304, s{S_T2}", [S_T2], [S_T1]))
    a(S(f"s_mov_b32 s{S_REDO}, 0", [], [S_REDO]))
    a(S(f"s_lshl_b32 s{S_WC}, s{S_VALID}, 19", [S_VALID], [S_WC]))
    a(S(f"s_mov_b64 s[{S_GM}:{S_GM+1}], -1", [], [S_GM, S_GM+1]))
    o += restart_setup()
    a(S(f"s_mov_b32 s{S_X+2}, 81920", [], [S_X+2])); a(S(f"s_mov_b32 s{S_X+3}, 0x20000", [], [S_X+3]))
    a(S(f"s_mov_b32 s{S_WQ+2}, s{S_T1}", [S_T1], [S_WQ+2])); a(S(f"s_mov_b32 s{S_WQ+3}, 0x20000", [], [S_WQ+3]))
    a(raw("s_waitcnt lgkmcnt(0)", 'wait'))
    o += srd(S_X, 92, add_s=S_T0, size=81920)[:2]
    o += srd(S_WQ, 26, add_s=S_T2, size=0)[:2]
    for dst, off in ((S_K, 8), (S_V, 16), (S_WO, 32), (S_OUT, 40), (S_D, 48), (S_O, 56)):
        a(raw(f"s_load_dwordx2 s[{dst}:{dst+1}], s[0:1], {off}"))
    return o

def restart_setup():
    o = [S(f"s_mov_b32 s{S_TAB+q}, {q*16384}", [], [S_TAB+q]) for q in range(5)]
    for c in range(4):
        o.append(S(f"s_lshr_b32 s{S_SO}, s{S_WC}, 12", [S_WC], [S_SO]))
        o.append(S(f"s_add_u32 s{S_SO}, s{S_SO}, {c*256}", [S_SO], [S_SO]))
        o.append(S(f"s_and_b32 s{S_SO}, s{S_SO}, 0x300", [S_SO], [S_SO]))
        o.append(V(f"v_add_u32 v{V_XD4+c}, s{S_SO}, v{V_XD}", [V_XD, ('s', S_SO)], [V_XD4+c]))
    return o

def prologue2():
    o = []; a = o.append
    a(raw("s_waitcnt lgkmcnt(0)", 'wait'))
    a(S(f"s_lshl_b32 s{S_T0}, s{S_B}, 3", [S_B], [S_T0]))
    a(S(f"s_add_u32 s{S_T0}, s{S_T0}, s{S_HKV}", [S_T0, S_HKV], [S_T0]))
    a(S(f"s_lshl_b32 s{S_T0}, s{S_T0}, 2", [S_T0], [S_T0]))
    a(S(f"s_add_u32 s{S_T0}, s{S_T0}, s{S_W}", [S_T0, S_W], [S_T0]))
    a(S(f"s_lshl_b32 s{S_T0}, s{S_T0}, 16", [S_T0], [S_T0]))
    o += srd(S_K, S_K, add_s=S_T0, size=65536)
    o += srd(S_V, S_V, add_s=S_T0, size=65536)
    a(S(f"s_lshl_b32 s{S_T0}, s{S_HKV}, 19", [S_HKV], [S_T0]))
    o += srd(S_WO, S_WO, add_s=S_T0, size=524288)
    o += srd(S_WT, S_O, add_imm=WS_WO, size=8*4*20*8*1024)
    o += srd(S_C, S_O, add_imm=WS_CT, size=262144)
    o += srd(S_O, S_O, size=8*5*128*1024)
    o += srd(S_D, S_D, size=256)
    o += srd(S_OUT, S_OUT, size=655360)
    a(S(f"s_bitcmp1_b32 s{S_HQ}, 0", [S_HQ], []))
    a(S(f"s_mov_b32 s{S_T0}, {hex(kv_pack(0))}", [], [S_T0]))
    a(S(f"s_cselect_b32 s{S_T0}, {hex(kv_pack(1))}, s{S_T0}", [S_T0], [S_T0]))
    a(S(f"s_mov_b32 s{S_T1}, {hex(kv_pack(2))}", [], [S_T1]))
    a(S(f"s_cselect_b32 s{S_T1}, {hex(kv_pack(3))}, s{S_T1}", [S_T1], [S_T1]))
    a(S(f"s_bitcmp1_b32 s{S_HQ}, 1", [S_HQ], []))
    a(S(f"s_cselect_b32 s{S_KVO}, s{S_T1}, s{S_T0}", [S_T0, S_T1], [S_KVO]))
    for p in range(3):
        a(S(f"s_cmp_le_u32 s{S_J}, {p}", [S_J], []))
        a(S(f"s_cselect_b32 s{S_T1}, {p + 1}, {p}", [], [S_T1]))
        a(S(f"s_lshl_b32 s{S_H+p}, s{S_T1}, 17", [S_T1], [S_H+p]))
    a(S(f"s_mul_i32 s{S_W5K}, s{S_W}, 5120", [S_W], [S_W5K]))
    a(S(f"s_lshl_b32 s{S_W2K}, s{S_W}, 11", [S_W], [S_W2K]))
    a(S(f"s_mul_i32 s{S_W3K}, s{S_W}, 3072", [S_W], [S_W3K]))
    a(S(f"s_lshl_b32 s{S_T0}, s{S_B}, 14", [S_B], [S_T0]))
    a(S(f"s_lshl_b32 s{S_T1}, s{S_W}, 7", [S_W], [S_T1]))
    a(S(f"s_add_u32 s{S_T0}, s{S_T0}, s{S_T1}", [S_T0, S_T1], [S_T0]))
    a(S(f"s_lshl_b32 s{S_F1}, s{S_HQ}, 9", [S_HQ], [S_F1]))
    a(S(f"s_add_u32 s{S_F1}, s{S_F1}, s{S_T0}", [S_F1, S_T0], [S_F1]))
    a(S(f"s_add_u32 s{S_F2}, s{S_F1}, 131072", [S_F1], [S_F2]))
    if int(opt.f2wg) and not int(opt.f2rep): a(S(f"s_andn2_b32 s{S_F2}, s{S_F2}, 0x180", [S_F2], [S_F2]))
    a(S(f"s_lshl_b32 s{S_T1}, s{S_HKV}, 11", [S_HKV], [S_T1]))
    a(S(f"s_lshl_b32 s{S_G1}, s{S_J}, 3", [S_J], [S_G1]))
    a(S(f"s_add_u32 s{S_G1}, s{S_G1}, s{S_T1}", [S_G1, S_T1], [S_G1]))
    a(S(f"s_add_u32 s{S_G1}, s{S_G1}, s{S_T0}", [S_G1, S_T0], [S_G1]))
    a(S(f"s_lshl_b32 s{S_T1}, s{S_J}, 9", [S_J], [S_T1]))
    a(S(f"s_lshl_b32 s{S_G2}, s{S_HKV}, 3", [S_HKV], [S_G2]))
    a(S(f"s_add_u32 s{S_G2}, s{S_G2}, s{S_T1}", [S_G2, S_T1], [S_G2]))
    a(S(f"s_add_u32 s{S_G2}, s{S_G2}, s{S_T0}", [S_G2, S_T0], [S_G2]))
    a(S(f"s_add_u32 s{S_G2}, s{S_G2}, 131072", [S_G2], [S_G2]))
    return o

def prologue3():
    o = []; a = o.append
    a(S(f"s_bfe_u32 s{S_T1}, s{S_WC}, 0x10013", [S_WC], [S_T1]))
    a(S(f"s_lshl_b32 s{S_T1}, s{S_T1}, 3", [S_T1], [S_T1]))
    a(V(f"v_xor_b32 v{V_T1}, s{S_T1}, v{V_N}", [V_N, ('s', S_T1)], [V_T1]))
    a(V(f"v_xor_b32 v{V_T0}, v{V_G}, v{V_T1}", [V_G, V_T1], [V_T0]))
    a(V(f"v_lshlrev_b32 v{V_T0}, 4, v{V_T0}", [V_T0], [V_T0]))
    a(V(f"v_lshl_add_u32 v{V_XA}, v{V_N}, 8, v{V_T0}", [V_N, V_T0], [V_XA]))
    for s in range(1, 4): a(V(f"v_xor_b32 v{V_XA+s}, {64*s}, v{V_XA}", [V_XA], [V_XA+s]))
    for s in range(4): a(V(f"v_add_u32 v{V_XB+s}, {120*KB}, v{V_XA+s}", [V_XA+s], [V_XB+s]))
    a(V(f"v_lshrrev_b32 v{V_T2}, 2, v{V_N}", [V_N], [V_T2]))
    a(V(f"v_bfe_u32 v{V_T3}, v{V_N}, 1, 1", [V_N], [V_T3]))
    a(V(f"v_and_b32 v{V_T4}, 1, v{V_N}", [V_N], [V_T4]))
    a(V(f"v_lshlrev_b32 v{V_T4}, 3, v{V_T4}", [V_T4], [V_T4]))
    a(V(f"v_and_b32 v{V_T5}, 1, v{V_G}", [V_G], [V_T5]))
    a(V(f"v_lshl_add_u32 v{V_T5}, v{V_T5}, 2, v{V_T2}", [V_T5, V_T2], [V_T5]))
    a(V(f"v_lshlrev_b32 v{V_T5}, 1, v{V_T5}", [V_T5], [V_T5]))
    a(S(f"s_lshl_b32 s{S_T1}, s{S_W}, 2", [S_W], [S_T1]))
    a(V(f"v_lshl_add_u32 v{V_T1}, v{V_G}, 3, v{V_T2}", [V_G, V_T2], [V_T1]))
    a(V(f"v_lshl_add_u32 v{V_T1}, v{V_T1}, 8, v{V_T4}", [V_T1, V_T4], [V_T1]))
    a(V(f"v_add_u32 v{V_T3}, s{S_T1}, v{V_T3}", [V_T3, ('s', S_T1)], [V_T3]))
    a(V(f"v_xor_b32 v{V_T3}, v{V_T3}, v{V_T5}", [V_T3, V_T5], [V_T3]))
    a(V(f"v_lshl_add_u32 v{V_T0}, v{V_T3}, 4, v{V_T1}", [V_T3, V_T1], [V_T0]))
    a(V(f"v_add_u32 v{V_WA}, {40*KB}, v{V_T0}", [V_T0], [V_WA]))
    a(V(f"v_add_u32 v{V_WB}, {96*KB}, v{V_T0}", [V_T0], [V_WB]))
    a(V(f"v_xor_b32 v{V_WA+1}, 32, v{V_WA}", [V_WA], [V_WA+1]))
    a(V(f"v_xor_b32 v{V_WB+1}, 32, v{V_WB}", [V_WB], [V_WB+1]))
    a(V(f"v_lshl_add_u32 v{V_T1}, v{V_G}, 2, v{V_T2}", [V_G, V_T2], [V_T1]))
    n_early = len(o)
    for s in range(4):
        a(V(f"v_add_u32 v{V_KA+s}, s{S_W8K}, v{V_XA+s}", [V_XA+s, ('s', S_W8K)], [V_KA+s]))
    a(V(f"v_lshl_add_u32 v{V_T1}, v{V_T1}, 8, v{V_T4}", [V_T1, V_T4], [V_T1]))
    a(V(f"v_lshl_add_u32 v{V_WT}, v{V_T3}, 4, v{V_T1}", [V_T3, V_T1], [V_WT]))
    a(S(f"s_add_u32 s{S_T2}, s{S_W8K}, {64*KB}", [S_W8K], [S_T2]))
    a(V(f"v_add_u32 v{V_VA}, s{S_T2}, v{V_WT}", [V_WT, ('s', S_T2)], [V_VA]))
    for lam in range(1, 8): a(V(f"v_xor_b32 v{V_VA+lam}, {32*lam}, v{V_VA}", [V_VA], [V_VA+lam]))
    a(V(f"v_xor_b32 v{V_WT+1}, 32, v{V_WT}", [V_WT], [V_WT+1]))
    for e in range(2):
        a(V(f"v_add_u32 v{V_WT+2+e}, {64*KB}, v{V_WT+e}", [V_WT+e], [V_WT+2+e]))
        a(V(f"v_add_u32 v{V_WT+4+e}, {128*KB}, v{V_WT+e}", [V_WT+e], [V_WT+4+e]))
    a(V(f"v_xor_b32 v{V_T0}, v{V_N}, v{V_G}", [V_N, V_G], [V_T0]))
    a(V(f"v_lshlrev_b32 v{V_T0}, 4, v{V_T0}", [V_T0], [V_T0]))
    a(V(f"v_lshl_add_u32 v{V_KD}, v{V_G}, 8, v{V_T0}", [V_G, V_T0], [V_KD]))
    for j in range(1, 4):
        a(V(f"v_xor_b32 v{V_KD+j}, {64*j}, v{V_KD}", [V_KD], [V_KD+j]))
    a(V(f"v_lshlrev_b32 v{V_T0}, 1, v{V_G}", [V_G], [V_T0]))
    a(V(f"v_xor_b32 v{V_T0}, v{V_N}, v{V_T0}", [V_N, V_T0], [V_T0]))
    a(V(f"v_lshlrev_b32 v{V_T0}, 4, v{V_T0}", [V_T0], [V_T0]))
    a(V(f"v_lshl_add_u32 v{V_VD}, v{V_G}, 8, v{V_T0}", [V_G, V_T0], [V_VD]))
    a(V(f"v_xor_b32 v{V_VD+1}, 128, v{V_VD}", [V_VD], [V_VD+1]))
    a(V(f"v_lshrrev_b32 v{V_T0}, 1, v{V_G}", [V_G], [V_T0]))
    a(V(f"v_add_u32 v{V_T0}, s{S_T1}, v{V_T0}", [V_T0, ('s', S_T1)], [V_T0]))
    a(V(f"v_xor_b32 v{V_T0}, v{V_T0}, v{V_N}", [V_T0, V_N], [V_T0]))
    a(V(f"v_lshlrev_b32 v{V_T0}, 4, v{V_T0}", [V_T0], [V_T0]))
    a(V(f"v_lshl_add_u32 v{V_T0}, v{V_N}, 8, v{V_T0}", [V_N, V_T0], [V_T0]))
    a(V(f"v_and_b32 v{V_T1}, 1, v{V_G}", [V_G], [V_T1]))
    a(V(f"v_lshl_add_u32 v{V_T0}, v{V_T1}, 3, v{V_T0}", [V_T0, V_T1], [V_T0]))
    a(V(f"v_add_u32 v{V_QW}, {QBUF}, v{V_T0}", [V_T0], [V_QW]))
    a(V(f"v_xor_b32 v{V_QW+1}, 32, v{V_QW}", [V_QW], [V_QW+1]))
    a(V(f"v_lshl_add_u32 v{V_CW}, v{V_LANE}, 4, s{S_W8K}", [V_LANE, ('s', S_W8K)], [V_CW]))
    a(V(f"v_add_u32 v{V_CW+1}, {64*KB}, v{V_CW}", [V_CW], [V_CW+1]))
    a(S(f"s_add_u32 s{S_T0}, s{S_W8K}, {102*KB}", [S_W8K], [S_T0]))
    a(V(f"v_lshl_add_u32 v{V_LW}, v{V_LANE}, 5, s{S_T0}", [V_LANE, ('s', S_T0)], [V_LW]))
    a(S(f"s_mul_i32 s{S_T0}, s{S_B}, 640", [S_B], [S_T0]))
    a(S(f"s_lshl_b32 s{S_T2}, s{S_HQ}, 2", [S_HQ], [S_T2]))
    a(S(f"s_add_u32 s{S_T0}, s{S_T0}, s{S_T2}", [S_T0, S_T2], [S_T0]))
    a(S(f"s_add_u32 s{S_T0}, s{S_T0}, s{S_W}", [S_T0, S_W], [S_T0]))
    a(S(f"s_lshl_b32 s{S_T0}, s{S_T0}, 10", [S_T0], [S_T0]))
    a(V(f"v_lshl_add_u32 v{V_OST}, v{V_LANE}, 4, s{S_T0}", [V_LANE, ('s', S_T0)], [V_OST]))
    a(V(f"v_cmp_eq_u32 vcc, 0, v{V_N}", [V_N], [VCC]))
    a(V(f"v_mov_b32 v{V_T0}, 0x3f803f80", [], [V_T0]))
    for i in range(4):
        a(V(f"v_cndmask_b32 v{V_ONES+i}, 0, v{V_T0}, vcc", [V_T0, VCC], [V_ONES+i]))
    for i in range(0, 20, 2):
        a(V(f"v_mov_b64 v[{V_NEGM+i}:{V_NEGM+i+1}], 0", [], [V_NEGM+i, V_NEGM+i+1]))
    return o[:n_early], o[n_early:]

V_QACC = V_VF
def AF(kap):
    return [(100, 120), (128, 148), (208, 156)][kap % 3]
def a_reads(kap):
    u, ks = kap >> 1, kap & 1
    c, s = u >> 1, kap & 3
    xf, wf = AF(kap)
    wb = WU(WSLOT[u], ks)
    xr = []
    for q in range(5):
        xb = XU(c, q)
        reg, base = (V_XA, 0) if xb < 64 * KB else (V_XB, 120 * KB)
        xr.append(dsrd('ds_read_b128', ('v', xf + q * 4), 4, reg + s, xb - base))
    wr = []
    for e in range(2):
        for h in range(2):
            reg, base = (V_WA, 40 * KB) if wb < 96 * KB else (V_WB, 96 * KB)
            wr.append(dsrd('ds_read_b64_tr_b16', ('v', wf + e * 4 + h * 2), 2, reg + e, wb - base + h * 1024))
    return wr[:2] + xr[:1] + wr[2:] + xr[1:]
def a_mfmas(kap):
    o = []
    xf, wf = AF(kap)
    for q in range(5):
        for e in range(2):
            d = ('v', V_QACC + (e * 5 + q) * 4)
            o.append(mfma(d, ('v', wf + e * 4), ('v', xf + q * 4), 0 if kap == 0 else d))
    return o
def lane0(sg, body, lab):
    sg.text(f"s_cmp_lg_u32 s{S_W}, 0"); sg.text(f"s_cbranch_scc1 {lab}")
    sg.text(f"s_mov_b64 s[{S_EX}:{S_EX+1}], exec"); sg.text("s_mov_b64 exec, 1")
    for x in body: sg.text(x)
    sg.text(f"s_mov_b64 exec, s[{S_EX}:{S_EX+1}]")
    sg.text(f"{lab}:")
def phase_a(sg, Q):
    stamp(sg, 1)
    sg.add(barrier(needvm=[('x', 0), ('w', 0)])); Q.mark('B0')
    stamp(sg, 2)
    sg.addall(a_reads(0)); sg.addall(a_reads(1))
    sg.add(S(f"s_mov_b32 s{S_T1}, {f2h(QSCALE)}", [], [S_T1]))
    sg.add(S(f"s_mov_b32 s{S_T2}, {f2h(QSCALE)}", [], [S_T2]))
    for kap in range(14 if int(opt.aq) else 16):
        mf = a_mfmas(kap)
        gaps = [[] for _ in mf]
        nx = kap + 2
        if nx < (14 if int(opt.lastlag) else 16):
            if nx % 2 == 0:
                u = nx >> 1
                need = [('x', u >> 1), ('w', u)]
                while any(it.ins.vmtag in need for it in Q.q):
                    n_ = len(Q.q); weave(sg, Q, [], 1, 0); assert len(Q.q) < n_, (u, Q.q[0].after)
                while True:
                    younger = 0
                    for tg, _w in reversed(sg.vm):
                        if tg in need: break
                        younger += 1
                    n_ = len(Q.q)
                    if younger >= int(opt.la): break
                    weave(sg, Q, [], 1, 0)
                    if len(Q.q) == n_: break
                dr = str(u) in str(opt.drain)
                sg.add(barrier(needvm=need, lg0=dr)); Q.mark(f'B{u}')
                if dr: Q.mark(f'B{u+1}')
                if u in (1, 3, 5, 7): stamp(sg, 5 + u // 2, 'A')
            for i, r in enumerate(a_reads(nx)): gaps[i].append(r)
        mf[0].r |= set(R('v', AF(kap)[0], 20) + R('v', AF(kap)[1], 8))
        pos = [1, 5, 9] if kap % 2 == 0 else [3, 7]
        if int(opt.perstep) == 6: pos = [1, 4, 7] if kap % 2 == 0 else [1, 4, 8]
        if int(opt.perstep) == 7: pos = [1, 4, 6, 9] if kap % 2 == 0 else [2, 5, 8]
        if int(opt.perstep) == 8: pos = [1, 4, 6, 9]
        nkv = sum(1 for it in Q.q if it.ins.vmtag[0] in 'kv')
        room = int(opt.alim) - (128 - nkv) + (len(Q.q) - nkv)
        place(gaps, Q, pos[:max(0, room)])
        if int(opt.aonly): sg.addall([x for x in interleave(mf, gaps) if x.k not in ('mfma', 'dsrd')])
        else: sg.addall(interleave(mf, gaps))
    if int(opt.lastlag):
        need = [('w', 7)]
        while any(it.ins.vmtag in need for it in Q.q): weave(sg, Q, [], 1, 0)
        sg.add(barrier(needvm=need, lg0=False)); Q.mark('B7')
        stamp(sg, 8, 'A')
        r14, r15 = a_reads(14), a_reads(15)
        sg.addall(r14[:3] + r15[:3] + r14[3:5] + r15[3:5] + flat([[r14[k], r15[k]] for k in range(5, 9)]))
    def qfin(q, e, packed):
        b = V_QACC + (e * 5 + q) * 4
        if packed: f_ = [V(f"v_pk_mul_f32 v[{b+r}:{b+r+1}], v[{b+r}:{b+r+1}], s[{S_T1}:{S_T1+1}]", [b+r, b+r+1], [b+r, b+r+1]) for r in (0, 2)]
        else: f_ = [V(f"v_mul_f32 v{b+r}, s{S_T1}, v{b+r}", [b+r], [b+r]) for r in range(4)]
        f_.append(V(f"v_cvt_pk_bf16_f32 v{b}, v{b}, v{b+1}", [b, b+1], [b]))
        f_.append(V(f"v_cvt_pk_bf16_f32 v{b+1}, v{b+2}, v{b+3}", [b+2, b+3], [b+1]))
        f_.append(dswr('ds_write_b64', V_QW + e, ('v', b), 2, q * 4096, lgtag='qw'))
        return f_
    todo = [(q, e) for q in range(5) for e in range(2)]
    if int(opt.aq):
        m14, m15 = a_mfmas(14), a_mfmas(15)
        if not int(opt.lastlag): m14[0].r |= set(R('v', AF(14)[0], 20) + R('v', AF(14)[1], 8))
        mf = flat([[m14[k], m15[k]] for k in range(10)])
        gaps = [[] for _ in mf]
        gi = 5
        while todo and gi + 3 <= 19:
            f_ = qfin(*todo.pop(0), False)
            gaps[gi] += f_[0:2]; gaps[gi + 1] += f_[2:4]; gaps[gi + 2] += f_[4:6]; gaps[gi + 3] = [f_[6]] + gaps[gi + 3]
            gi += 3
        nkv = sum(1 for it in Q.q if it.ins.vmtag[0] in 'kv')
        place(gaps, Q, [1, 4][:max(0, int(opt.alim) - (128 - nkv))])
        sg.addall(interleave(mf, gaps))
    stamp(sg, 9, 'A')
    for q, e in todo: sg.addall(qfin(q, e, True))
    while any(it.ins.vmtag in (('k', 0, 0), ('k', 0, 1)) for it in Q.q): weave(sg, Q, [], 1, 0)
    b = barrier(lg0=False); b.needlg = ('qw',)
    sg.addall(k_reads(0)); Q.mark(('kr', 0, 0)); Q.mark(('kr', 0, 1))
    sg.add(b); Q.mark('BQ'); Q.mark('B8')
    qr = [dsrd('ds_read_b128', AQ(q, s), 4, V_XB + s, QBUF - 120 * KB + q * 4096) for q in range(5) for s in range(4)]
    return qr

def TQ(tau):
    return divmod(tau, 5) if tau < 30 else (6 + ((tau - 30) & 1), (tau - 30) >> 1)
def qk(tau):
    i, q = TQ(tau)
    o = []
    for s, t in ([(s, t) for t in range(2) for s in range(4)] if int(opt.chain) else [(s, t) for s in range(4) for t in range(2)]):
        if True:
            d = ('v', V_S + (tau & 1) * 8 + t * 4)
            o.append(mfma(d, KF(i, t * 4 + s), AQ(q, s), ('v', V_NEGM + q * 4) if s == 0 else d))
            if s == 0 and int(opt.coal) and tau > 4: o[-1].r |= set(R(*KF(i, t * 4), 16))
    return o
def pv(tau):
    i, q = TQ(tau)
    p = ('v', V_P + (tau & 1) * 4)
    o = [mfma(AO(lam, q), ('v', V_VF + (i & 1) * 32 + lam * 4), p, AO(lam, q) if i else 0) for lam in range(8)]
    if int(opt.coal) and int(opt.late0) < i < 7 + int(opt.v7s) and i > 0: o[0].r |= set(R('v', V_VF + (i & 1) * 32, 24)); o[5].r |= set(R('v', V_VF + (i & 1) * 32 + 24, 8))
    o.insert(0, mfma(LA(q), ('v', V_ONES), p, LA(q) if i else 0))
    return o
def sm(tau):
    b = V_S + (tau & 1) * 8
    p = V_P + (tau & 1) * 4
    e = [T(f"v_exp_f32 v{b+i}, v{b+i}", [b+i], [b+i]) for i in range(8)]
    c = [V(f"v_cvt_pk_bf16_f32 v{p+i}, v{b+2*i}, v{b+2*i+1}", [b+2*i, b+2*i+1], [p+i]) for i in range(4)]
    return e, c
def comb_writes(q):
    o = []
    for jd in range(1, 4):
        for e in range(2):
            u = q * 6 + (jd - 1) * 2 + e
            row = u >> 3
            o.append(dswr('ds_write_b128', V_CW + (row >> 1), AO(2 * jd + e, q), 4, (row & 1) * 32 * KB + (u & 7) * KB, lgtag=('cw', q)))
    o.insert(0, dswr('ds_write_b32', V_LW, LA(q), 1, [0, 4, 16, 20, 24][q], lgtag=('cw', q)))
    return o

def wo_dma(pos, after=None):
    o = []
    for ks in range(4):
        for half in range(2):
            base = (128 * KB if pos < 0 else pos * 32 * KB) + ks * 8 * KB + half * 4 * KB
            if pos < 0:
                pre = [S(f"s_lshl_b32 s{S_SK}, s{S_J}, 17", [S_J], [S_SK])] if ks + half == 0 else []
                h = S_SK
            else: pre, h = [], S_H + pos
            pre += [S(f"s_add_u32 s{S_SO}, s{h}, {ks*32768 + half*16384}", [h], [S_SO]), S(f"s_add_u32 m0, s{S_W1K}, {base}", [S_W1K], [M0])]
            o.append(Item(pre, dma(V_WOD, S_WO, S_SO, 0, ('wo', pos)), after))
    return o
def osib_dma(pos, qs):
    o = []
    for q in qs:
        pre = [S(f"s_lshr_b32 s{S_SK}, s{S_H+pos}, 5", [S_H+pos], [S_SK])] if q == qs[0] else []
        m0 = (f"s_add_u32 m0, s{S_W2K}, {(136 + pos*8 + q)*KB}", S_W2K) if q < 2 else (f"s_add_u32 m0, s{S_W3K}, {(100 + pos*12 + q - 2)*KB}", S_W3K)
        pre += [S(f"s_add_u32 s{S_SO}, s{S_SK}, {q*128*KB}", [S_SK], [S_SO]), S(m0[0], [m0[1]], [M0])]
        o.append(Item(pre, dma(V_OD, S_O, S_SO, 0, ('osA' if q < 2 else 'osB', pos), flags=' sc1')))
    return o
def tail_calc():
    o = []; a = o.append
    T0, T1, T2 = 252, 253, 254
    a(V(f"v_lshlrev_b32 v{T0}, 4, v{V_LANE}", [V_LANE], [T0]))
    for jd in range(1, 4):
        for ab in range(2): a(V(f"v_xor_b32 v{V_CR+2*(jd-1)+ab}, {jd << 13}, v{V_CW+ab}", [V_CW+ab], [V_CR+2*(jd-1)+ab]))
    a(V(f"v_add_u32 v{V_OL}, {96*KB}, v{T0}", [T0], [V_OL]))
    a(V(f"v_add_u32 v{V_OW}, s{S_W5K}, v{V_OL}", [V_OL, ('s', S_W5K)], [V_OW]))
    a(S(f"s_mov_b32 s{S_T0}, {102*KB}", [], [S_T0]))
    a(V(f"v_lshl_add_u32 v{V_LR}, v{V_N}, 5, s{S_T0}", [V_N, ('s', S_T0)], [V_LR]))
    if int(opt.dtch_at) < 99:
        a(V(f"v_lshrrev_b32 v{T1}, 3, v{V_LANE}", [V_LANE], [T1]))
        a(V(f"v_min_u32 v{T1}, 4, v{T1}", [T1], [T1]))
        a(V(f"v_and_b32 v{T2}, 7, v{V_LANE}", [V_LANE], [T2]))
        a(V(f"v_lshlrev_b32 v{T2}, 7, v{T2}", [T2], [T2]))
        a(V(f"v_sub_u32 v{T2}, v{T2}, v{T0}", [T2, T0], [T2]))
        a(V(f"v_lshl_add_u32 v66, v{T1}, 17, v{T2}", [T1, T2], [66]))
        a(V(f"v_add_u32 v66, v66, v{V_OST}", [66, V_OST], [66]))
        a(V(f"v_lshl_add_u32 v67, v{T1}, 13, v{T2}", [T1, T2], [67]))
        a(V(f"v_add_u32 v67, v67, v{V_PS}", [67, V_PS], [67]))
    for k in range(5): a(S(f"s_mov_b32 s{S_TAB+k}, {k*8192}", [], [S_TAB+k]))
    return o
def handoff_calc():
    o = []; a = o.append
    T0, T1, T2, T3 = 252, 253, 254, 9
    a(S(f"s_lshl_b32 s{S_T0}, s{S_J}, 12", [S_J], [S_T0]))
    a(V(f"v_subrev_u32 v{V_OD}, s{S_T0}, v{V_OST}", [V_OST, ('s', S_T0)], [V_OD]))
    a(S(f"s_lshl_b32 s{S_T0}, s{S_B}, 2", [S_B], [S_T0]))
    a(S(f"s_add_u32 s{S_T0}, s{S_T0}, s{S_J}", [S_T0, S_J], [S_T0]))
    a(S(f"s_mul_i32 s{S_T0}, s{S_T0}, {20*8*KB}", [S_T0], [S_T0]))
    a(S(f"s_mul_i32 s{S_T1}, s{S_W}, {5*8*KB}", [S_W], [S_T1]))
    a(S(f"s_lshl_b32 s{S_T2}, s{S_HKV}, 10", [S_HKV], [S_T2]))
    a(S(f"s_add_u32 s{S_T2}, s{S_T2}, s{S_T1}", [S_T2, S_T1], [S_T2]))
    a(S(f"s_add_u32 s{S_T2}, s{S_T2}, s{S_T0}", [S_T2, S_T0], [S_T2]))
    a(V(f"v_lshl_add_u32 v{V_PS}, v{V_LANE}, 4, s{S_T2}", [V_LANE, ('s', S_T2)], [V_PS]))
    tr = int(opt.otr)
    if tr:
        a(S(f"s_mul_i32 s{S_T1}, s{S_HKV}, 160", [S_HKV], [S_T1]))
        a(V(f"v_add_u32 v{T0}, s{S_T1}, v0", [0, ('s', S_T1)], [T0]))
    else:
        a(S(f"s_lshl_b32 s{S_T1}, s{S_HKV}, 2", [S_HKV], [S_T1]))
        a(S(f"s_add_u32 s{S_T1}, s{S_T1}, s{S_W}", [S_T1, S_W], [S_T1]))
        a(S(f"s_mul_i32 s{S_T1}, s{S_T1}, 40", [S_T1], [S_T1]))
        a(V(f"v_add_u32 v{T0}, s{S_T1}, v{V_LANE}", [V_LANE, ('s', S_T1)], [T0]))
    if int(opt.pairw):
        a(V(f"v_lshrrev_b32 v{T1}, 6, v{T0}", [T0], [T1]))
        a(V(f"v_cmp_lt_u32 vcc, 9, v{T1}", [T1], [VCC]))
        a(V(f"v_bfe_u32 v{T2}, v{T0}, 5, 1", [T0], [T2]))
        a(V(f"v_mul_u32_u24 v{T2}, 10, v{T2}", [T2], [T2]))
        a(V(f"v_add_u32 v{T1}, v{T1}, v{T2}", [T1, T2], [T1]))
        a(V(f"v_cndmask_b32 v{T2}, 0, 10, vcc", [VCC], [T2]))
        a(V(f"v_add_u32 v{T1}, v{T1}, v{T2}", [T1, T2], [T1]))
        a(V(f"v_and_b32 v{T0}, 31, v{T0}", [T0], [T0]))
        a(V(f"v_lshl_add_u32 v{T0}, v{T1}, 5, v{T0}", [T1, T0], [T0]))
    a(V(f"v_bfe_u32 v{T1}, v{T0}, 5, 1", [T0], [T1]))
    a(V(f"v_and_b32 v{T2}, 7, v{T0}", [T0], [T2]))
    a(V(f"v_lshl_add_u32 v{T1}, v{T1}, 3, v{T2}", [T1, T2], [T1]))
    a(V(f"v_bfe_u32 v{T2}, v{T0}, 3, 2", [T0], [T2]))
    a(V(f"v_lshrrev_b32 v{T0}, 6, v{T0}", [T0], [T0]))
    a(V(f"v_lshl_add_u32 v{T3}, v{T2}, 4, v{T1}", [T1, T2], [T3]))
    a(V(f"v_lshl_add_u32 v{V_PLD}, v{T3}, 4, s{S_T0}", [T3, ('s', S_T0)], [V_PLD]))
    a(V(f"v_lshl_add_u32 v{V_PLD}, v{T0}, 13, v{V_PLD}", [T0, V_PLD], [V_PLD]))
    a(V(f"v_mul_u32_u24 v{T3}, 52, v{T0}", [T0], [T3]))
    a(V(f"v_lshrrev_b32 v{T3}, 8, v{T3}", [T3], [T3]))
    if tr:
        a(V(f"v_and_b32 v{T1}, 8, v{T1}", [T1], [T1]))
        a(V(f"v_bfe_u32 v{T2}, v0, 2, 3", [0], [T2]))
        a(V(f"v_add_u32 v{T1}, v{T1}, v{T2}", [T1, T2], [T1]))
        a(V(f"v_and_b32 v{T2}, 3, v0", [0], [T2]))
    a(V(f"v_lshlrev_b32 v{T2}, {4 if tr else 3}, v{T2}", [T2], [T2]))
    a(V(f"v_lshl_add_u32 v{T2}, v{T3}, 6, v{T2}", [T3, T2], [T2]))
    a(V(f"v_lshl_add_u32 v{T2}, v{T1}, 10, v{T2}", [T1, T2], [T2]))
    a(V(f"v_mul_u32_u24 v{T3}, 5, v{T3}", [T3], [T3]))
    a(V(f"v_sub_u32 v{T0}, v{T0}, v{T3}", [T0, T3], [T0]))
    a(V(f"v_lshl_add_u32 v{T2}, v{T0}, 14, v{T2}", [T0, T2], [T2]))
    a(S(f"s_mul_i32 s{S_T0}, s{S_B}, 81920", [S_B], [S_T0]))
    a(S(f"s_lshl_b32 s{S_T2}, s{S_J}, 8", [S_J], [S_T2]))
    a(S(f"s_add_u32 s{S_T0}, s{S_T0}, s{S_T2}", [S_T0, S_T2], [S_T0]))
    a(V(f"v_add_u32 v{V_OUT}, s{S_T0}, v{T2}", [T2, ('s', S_T0)], [V_OUT]))
    a(V(f"v_cmp_gt_u32 vcc, 160, v0", [0], [VCC]) if tr else V(f"v_cmp_gt_u32 vcc, 40, v{V_LANE}", [V_LANE], [VCC]))
    a(V(f"v_mov_b32 v{T0}, 0x7ff00000", [], [T0]))
    a(V(f"v_cndmask_b32 v{V_PLD}, v{T0}, v{V_PLD}, vcc", [T0, V_PLD, VCC], [V_PLD]))
    a(V(f"v_cndmask_b32 v{V_OUT}, v{T0}, v{V_OUT}, vcc", [T0, V_OUT, VCC], [V_OUT]))
    for pv_, n_, sh, sg_ in ((V_P1, 4, 9, S_G1), (V_P2, 8, 11, S_G2)):
        if pv_ == V_P2 and int(opt.f2rep):
            n_ = 24
            a(V(f"v_and_b32 v{T1}, 7, v{V_LANE}", [V_LANE], [T1]))
            a(V(f"v_lshl_add_u32 v{pv_}, v{T1}, {sh}, s{sg_}", [T1, ('s', sg_)], [pv_]))
            a(V(f"v_lshrrev_b32 v{T1}, 3, v{V_LANE}", [V_LANE], [T1]))
            a(V(f"v_lshl_add_u32 v{pv_}, v{T1}, 7, v{pv_}", [T1, pv_], [pv_]))
        else: a(V(f"v_lshl_add_u32 v{pv_}, v{V_LANE}, {sh}, s{sg_}", [V_LANE, ('s', sg_)], [pv_]))
        a(V(f"v_cmp_gt_u32 vcc, {n_}, v{V_LANE}", [V_LANE], [VCC]))
        a(V(f"v_cndmask_b32 v{pv_}, v{T0}, v{pv_}, vcc", [T0, pv_, VCC], [pv_]))
    return o
def wod_calc():
    o = []; a = o.append
    T0, T1 = 252, 253
    a(S(f"s_lshl_b32 s{S_T0}, s{S_B}, 2", [S_B], [S_T0]))
    a(S(f"s_add_u32 s{S_T0}, s{S_T0}, s{S_W}", [S_T0, S_W], [S_T0]))
    a(S(f"s_lshl_b32 s{S_T0}, s{S_T0}, 14", [S_T0], [S_T0]))
    a(S(f"s_lshl_b32 s{S_T2}, s{S_J}, 8", [S_J], [S_T2]))
    a(S(f"s_add_u32 s{S_T0}, s{S_T0}, s{S_T2}", [S_T0, S_T2], [S_T0]))
    a(V(f"v_bfe_u32 v{T0}, v{V_LANE}, 1, 4", [V_LANE], [T0]))
    a(V(f"v_and_b32 v{T1}, 1, v{V_LANE}", [V_LANE], [T1]))
    a(V(f"v_lshlrev_b32 v{T1}, 7, v{T1}", [T1], [T1]))
    a(V(f"v_lshl_add_u32 v{T0}, v{T0}, 10, v{T1}", [T0, T1], [T0]))
    a(V(f"v_add_u32 v{V_TCH}, s{S_T0}, v{T0}", [T0, ('s', S_T0)], [V_TCH]))
    a(S(f"s_and_b32 s{S_T0}, s{S_W}, 1", [S_W], [S_T0]))
    a(S(f"s_lshl_b32 s{S_T0}, s{S_T0}, 3", [S_T0], [S_T0]))
    a(V(f"v_lshl_add_u32 v{T0}, v{V_G}, 1, s{S_T0}", [V_G, ('s', S_T0)], [T0]))
    a(V(f"v_xor_b32 v{T0}, v{V_N}, v{T0}", [V_N, T0], [T0]))
    a(S(f"s_lshl_b32 s{S_T0}, s{S_J}, 8", [S_J], [S_T0]))
    a(V(f"v_lshl_add_u32 v{T0}, v{T0}, 4, s{S_T0}", [T0, ('s', S_T0)], [T0]))
    a(V(f"v_lshl_add_u32 v{T1}, s{S_W}, 2, v{V_G}", [V_G, ('s', S_W)], [T1]))
    a(V(f"v_lshl_add_u32 v{V_WOD}, v{T1}, 10, v{T0}", [T0, T1], [V_WOD]))
    return o

def phase_b(sg, Q, qr):
    NT = 8
    calc = tail_calc()[-5:]
    sg.addall(qr[:4])
    weave(sg, Q, [], int(opt.bq), 0)
    qr = qr[4:]
    for tau in range(-1, 40):
        i, q = divmod(tau, 5) if tau >= 0 else (-1, 4)
        mf = []
        bst = [int(x) for x in opt.bst.split(',')]
        if tau in bst: stamp(sg, 5 + bst.index(tau), 'B')
        if tau + 1 < 40: mf += qk(tau + 1)
        if tau - 1 >= 0: mf += pv(tau - 1)
        ds, marks = [], []
        if tau == -1: ds = qr[:8] if int(opt.b0s) else qr
        elif tau == 0 and int(opt.b0s): v0 = v_reads(0); ds = [v0[l + 8 * h] for l in range(5) for h in range(2)]
        elif tau == 1 and int(opt.b0s): v0 = v_reads(0); ds = [v0[l + 8 * h] for l in range(5, 8) for h in range(2)] + qr[8:11]; marks = [('vr', 0, 0), ('vr', 0, 1)]
        elif tau == 2 and int(opt.b0s): ds = qr[11:16] + k_reads(1)[:4]; marks = [('kr', 1, 0)]
        elif tau == 0: ds = v_reads(0); marks = [('vr', 0, 0), ('vr', 0, 1)]
        elif tau < 27:
            if q == 2: ds = k_reads(i + 1)[:4]; marks = [('kr', i + 1, 0)]
            if q == 3: ds = k_reads(i + 1)[4:] + v_reads(i + 1)[:2]; marks = [('kr', i + 1, 1)]
            if q == 4: ds = v_reads(i + 1)[2:8]; marks = [('vr', i + 1, 0)]
            if q == 0: ds = v_reads(i)[8:14]
            if q == 1 and i > 0:
                ds = v_reads(i)[14:]
                if i > int(opt.late0): Q.mark(('vr', i, 1))
        xp = None
        LT = int(opt.late0)
        lp = None
        if LT and 0 <= tau < 5 * LT + 2:
            def vo_(t_): v_ = v_reads(t_); return [v_[l + 8 * h] for l in range(8) for h in range(2)]
            marks = []
            if tau == 0: lp = list(zip([0, 1, 2, 3, 4, 5, 6, 7], vo_(0)[:8]))
            elif tau == 1: lp = list(zip([1, 1, 3, 5, 5, 7, 9, 9], vo_(0)[8:])); marks = [('vr', 0, 0), ('vr', 0, 1)]
            elif q == 3 and i + 1 <= LT: lp = list(zip([3, 5, 7, 9, 11, 13, 15, 16], k_reads(i + 1))); marks = [('kr', i + 1, 0), ('kr', i + 1, 1)]
            elif q == 0 and i <= LT: lp = list(zip([1, 3, 5, 7, 9, 11, 13, 15, 16, 16], vo_(i)[:10]))
            elif q == 1 and i <= LT: lp = list(zip([1, 1, 3, 5, 5, 7], vo_(i)[10:])); marks = [('vr', i, 0), ('vr', i, 1)]
            elif q in (2, 4) and i + 1 <= LT: lp = []
            if lp is not None: ds = [x for _, x in lp]
        if tau >= 27:
            k6, k7, v6, v7 = k_reads(6), k_reads(7), v_reads(6), v_reads(7)
            vo = [v7[l + 8 * h] for l in range(8) for h in range(2)]
            G = [1, 3, 5, 7, 9, 11, 13, 15, 16]
            def cwp(q_, second):
                w_ = comb_writes(q_)
                if int(opt.w64) and q_ < 2:
                    h_ = []
                    for x in w_[1:]:
                        m_ = re.match(r"ds_write_b128 v(\d+), a\[(\d+):\d+\] offset:(\d+)", x.t)
                        for z in range(2): h_.append(dswr('ds_write_b64', int(m_.group(1)), ('a', int(m_.group(2)) + 2 * z), 2, int(m_.group(3)) + 8 * z, lgtag=x.lgtag))
                    return list(zip([1, 3, 5, 9, 13, 16], h_[6:])) if second else list(zip([7, 1, 3, 5, 9, 13, 16], [w_[0]] + h_[:6]))
                return list(zip([1, 9, 13], w_[4:])) if second else list(zip([7, 1, 9, 13], w_[:4]))
            xp = {27: list(zip([3, 5, 9, 11, 15, 16], k6[:4] + v6[:2])),
                  28: list(zip([1, 3, 5, 7, 9, 11, 13, 15, 16], k6[4:] + k7[:5])),
                  29: list(zip(G, k7[5:] + v6[2:8])),
                  30: list(zip([1, 3, 5, 7, 9, 11, 13, 15, 16, 16], v6[8:] + vo[:2])),
                  31: list(zip([1, 3, 5, 7, 9, 11, 13, 15, 16, 16], vo[2:12])) if int(opt.v7s) else list(zip([1, 1, 3, 5, 5, 7, 9, 9, 11, 13, 13, 15, 16, 16], vo[2:])),
                  32: list(zip([1, 3, 5, 7], vo[12:])) if int(opt.v7s) else [], 33: cwp(0, 0), 34: cwp(0, 1), 35: cwp(1, 0), 36: cwp(1, 1), 37: cwp(2, 0),
                  38: cwp(2, 1) + list(zip([3, 5, 5, 7, 11, 15, 16, 16], lreads((0, 1)) + preads(0)[:4])),
                  39: list(zip([0, 2, 4, 6], comb_writes(3)[:4])) + list(zip([1, 1, 3, 3, 5, 5, 7, 7], preads(0)[4:] + preads(1)))}[tau]
            if int(opt.x1e) and tau >= 36:
                xp = {36: list(zip([1, 5, 9], comb_writes(1)[4:])),
                      37: cwp(2, 0) + list(zip([3, 5, 11, 15, 16, 16], preads(0))),
                      38: cwp(2, 1) + list(zip([3, 5, 5, 7, 11, 15, 16, 16], lreads((0, 1)) + preads(1)[:4])),
                      39: list(zip([1, 3, 5, 7], comb_writes(3)[:4])) + list(zip([0, 8], preads(1)[4:]))}[tau]
            ds = [x for _, x in xp]; marks = []
            if tau == (37 if int(opt.x1e) else 38):
                b = barrier(needvm=[('wo', -1)], lg0=False); b.needlg = (('cw', 0), ('cw', 1)); sg.add(b)
        n = len(mf)
        gaps = [[] for _ in range(n)]
        e, c = sm(tau) if 0 <= tau < 40 else ([], [])
        if n == 17:
            epos = [0, 2, 4, 6, 8, 10, 12, 14]; cpos = [3, 7, 11, 15]
            dpos = [1, 3, 5, 7, 9, 11, 13, 15] if len(ds) > 4 else [1, 3, 5, 7]
            if ds and ds[0].k == 'dswr': dpos = [1, 1, 3, 7, 9, 13, 16]
            vpos = [1, 5, 9, 13] if (tau < int(opt.even_at) or q == 1) else [1, 7, 13]
            if int(opt.bsched) and not (ds and ds[0].k == 'dswr'):
                if q == 1: dpos, vpos = [1, 3], [5, 9, 13, 16]
                elif tau < int(opt.even_at) or tau >= int(opt.even_end): dpos, vpos = ([3, 7, 11, 15, 16, 16] if q != 3 else [1, 3, 7, 11, 15, 16]), ([1, 5, 9, 13] if q != 3 else [5, 9, 13, 16])
                else: dpos, vpos = [3, 5, 9, 11, 15, 16], [1, 7, 13]
        else:
            epos = list(range(8)); cpos = [min(n - 1, x) for x in (2, 4, 6, 8)]
            dpos = [(k * n) // max(1, len(ds)) for k in range(len(ds))]
            vpos = [int(x) for x in opt.spos.split(',')] if tau < 5 else [1, 5]
        if int(opt.b0s) and tau in (1, 2): dpos, vpos = [1, 1, 3, 5, 5, 7, 11, 15, 16], [9, 13]
        if lp is not None:
            dpos = [g_ for g_, _ in lp]
            if n == 17: vpos = {0: [5, 13], 1: [9, 11, 13, 16], 2: [1, 5, 9, 13, 16], 3: [1, 9, 13], 4: [1, 5, 9, 13, 16]}[q]
        if xp is not None:
            dpos = [g_ for g_, _ in xp]; vpos = [int(x) for x in opt.wpos.split(',')] if tau >= 32 else [13]
            if tau == 27: vpos = [1, 7, 13]
        for x, p_ in zip(ds, dpos): gaps[p_].append(x)
        if tau == int(opt.nl_at):
            sg.add(V("v_mov_b32 v9, 0", [], [9]))
            Q.q.insert(0, Item([], vload(('v', V_GC), 2, 9, S_D, None, 0, flags=' sc1', tag='non')))
        if tau == int(opt.nc_at):
            assert not any(it.ins.vmtag == 'non' for it in Q.q)
            sg.add(V(f"v_readfirstlane_b32 s{S_NON}, v{V_GC}", [V_GC], [('s', S_NON)]))
            sg.add(V(f"v_readfirstlane_b32 s{S_NON+1}, v{V_GC+1}", [V_GC+1], [('s', S_NON+1)]))
            sg.add(S(f"s_cmp_eq_u64 s[{S_NON}:{S_NON+1}], 0", [S_NON, S_NON+1], []))
            sg.text("s_cbranch_scc1 L_spin_n"); sg.text("L_back_n:")
        if tau == 32: stamp_out(sg, 1) if opt.stamps == 'Z' else None
        if tau == int(opt.bar_at): sg.add(barrier(lg0=False))
        for x in ds:
            while any(it.ins.vmtag in x.needvm for it in Q.q): weave(sg, Q, [], 1, 0)
        if tau == int(opt.tch_at): Q.push([Item([], vload(('v', V_TCH + 1), 1, V_TCH, S_WO, None, 0, flags=opt.tch_flags))])
        if tau == int(opt.tlb_at):
            Q.push([Item([], vload(('v', 72), 1, V_ZERO, S_C, S_F1, 0, flags=' sc1')), Item([], vload(('v', 73), 1, V_ZERO, S_C, S_F2, 0, flags=' sc1'))])
        if tau == int(opt.cpf2_at):
            for x in ["s_getpc_b64 s[94:95]", "L_pc2:", "s_lshr_b32 s92, s2, 3", f"s_lshl_b32 s92, s92, 2", f"s_add_u32 s92, s92, s{S_W}", "s_lshl_b32 s92, s92, 7",
                      f"s_add_u32 s92, s92, {int(opt.cpf2_skip)}", "s_min_u32 s92, s92, (L_code_end - L_pc2 - 4) & 0xffffff80", "v_mov_b32 v74, s92", "global_load_dword v255, v74, s[94:95]"]: sg.text(x)
        if tau == int(opt.dtch_at):
            assert not calc
            Q.push(([Item([], vload(('v', 74), 1, 66, S_O, None, 0, flags=opt.dtch_flags))] if 'o' in opt.dtch else []) + ([Item([], vload(('v', 75), 1, 67, S_WT, None, 0, flags=opt.dtch_flags))] if 'p' in opt.dtch else []))
        if tau == int(opt.otch_at): Q.push([Item([], vload(('v', 66), 1, V_OUT, S_OUT, None, 0, flags=opt.otch_flags))])
        if tau == int(opt.wo_at): assert not calc; Q.push(wo_dma(-1))
        place(gaps, Q, vpos)
        for x, p_ in zip(e, epos): gaps[p_].append(x)
        for x, p_ in zip(c, cpos): gaps[p_].append(x)
        if tau >= int(opt.calc_at) and n == 17:
            for gi in range(17):
                if calc and calc[0].k == 'salu' and not any(y.k == 'salu' for y in gaps[gi]): gaps[gi].insert(0, calc.pop(0))
                cost = sum(8 if y.k == 'trans' else 0 if y.k == 'salu' else 4 for y in gaps[gi])
                while calc and calc[0].k != 'salu' and cost <= 4: gaps[gi].append(calc.pop(0)); cost += 4
        sg.addall(interleave(mf, gaps))
        for m in marks: Q.mark(m)

def poll(sg, lab, vaddr):
    sg.text(f"s_mov_b32 s{S_SPIN}, {opt.spin}")
    sg.text(f"{lab}:")
    sg.text(f"buffer_load_dwordx2 v[250:251], v{vaddr}, s[{S_C}:{S_C+3}], 0 offen sc1")
    sg.text(f"s_sub_u32 s{S_SPIN}, s{S_SPIN}, 1")
    sg.text("s_waitcnt vmcnt(0)")
    sg.text(f"v_cmp_ne_u64 vcc, s[{S_NON}:{S_NON+1}], v[250:251]")
    sg.text(f"s_cmp_eq_u32 s{S_SPIN}, 0")
    sg.text(f"s_cbranch_scc1 {lab}_done")
    sg.text("s_nop 2")
    sg.text(f"s_cbranch_vccnz {lab}")
    sg.text(f"{lab}_done:")
    sg.vm = []
def raise_flag(sg, stage, tag):
    ins = vstore(('v', V_GC), 2, V_P1 if stage == 1 else V_P2, S_C, None, 0, flags=' sc1')
    ins.needvm = (tag,)
    sg.add(ins)
WOF = A_Q
RES = 100
def part(q, k):
    if q == 0: return 36 + 4 * k if k < 4 else 64 + 4 * (k - 4)
    return {1: 100, 2: 164, 3: 188, 4: 100}[q] + 4 * k
def preads(q):
    o = []
    for jd in range(1, 4):
        for e in range(2):
            k = (jd - 1) * 2 + e; u = q * 6 + k; row = u >> 3
            o.append(dsrd('ds_read_b128', ('v', part(q, k)), 4, V_CR + 2 * (jd - 1) + (row >> 1), (row & 1) * 32 * KB + (u & 7) * KB))
    return o
LSA, LSB = 124, 76
def lreads(qs):
    if qs == (0, 1): return [dsrd('ds_read_b64', ('v', LSA + src * 2), 2, V_LR, src * 8 * KB) for src in range(4)]
    if qs == (2, 3): return [dsrd('ds_read_b64', ('v', LSB + src * 4), 2, V_LR, src * 8 * KB + 16) for src in range(4)]
    if qs == (4,): return [dsrd('ds_read_b32', ('v', LSB + src * 4 + 2), 1, V_LR, src * 8 * KB + 24) for src in range(4)]
    return [dsrd('ds_read_b128', ('v', LSB + src * 4), 4, V_LR, src * 8 * KB + 16) for src in range(4)]
def lsum(qs):
    w = []
    def lr(src, q): return LSA + src * 2 + q if q < 2 else LSB + src * 4 + q - 2
    LS = lr(0, qs[0])
    for q in qs:
        d = V_T0 + q
        w.append(V(f"v_add_f32 v{d}, v{lr(0,q)}, v{lr(1,q)}", [lr(0,q), lr(1,q)], [d]))
        w.append(V(f"v_add_f32 v{lr(2,q)}, v{lr(2,q)}, v{lr(3,q)}", [lr(2,q), lr(3,q)], [lr(2,q)]))
        w.append(V(f"v_add_f32 v{d}, v{d}, v{lr(2,q)}", [d, lr(2,q)], [d]))
    lo_, hi_ = LS, LS + 1
    if len(qs) == 1: lo_ = hi_ = V_T0 + qs[0]
    else:
        a_, b_, c_ = V_T0 + qs[0], V_T0 + qs[1], V_T0 + qs[-1]
        w.append(V(f"v_min3_f32 v{LS}, v{a_}, v{b_}, v{c_}", [a_, b_, c_], [LS]))
        w.append(V(f"v_add_f32 v{LS+1}, v{a_}, v{b_}", [a_, b_], [LS+1]))
        if len(qs) == 3: w.append(V(f"v_add_f32 v{LS+1}, v{LS+1}, v{c_}", [LS+1, c_], [LS+1]))
    w.append(V(f"v_cmp_nle_f32 vcc, {f2h(2.0**int(opt.lo_exp))}, v{lo_}", [lo_], [VCC]))
    w.append(S(f"s_mov_b64 s[{S_EX}:{S_EX+1}], vcc", [VCC], [S_EX, S_EX+1]))
    w.append(V(f"v_cmp_nge_f32 vcc, {f2h(2.0**int(opt.hi_exp))}, v{hi_}", [hi_], [VCC]))
    w.append(S(f"s_or_b64 vcc, vcc, s[{S_EX}:{S_EX+1}]", [VCC, S_EX, S_EX+1], [VCC]))
    w.append(S(f"s_and_b64 vcc, vcc, s[{S_GM}:{S_GM+1}]", [VCC], [VCC]))
    w.append(raw("s_cbranch_vccnz L_redo      ; softmax guard, see header"))
    for q in qs: w.append(T(f"v_rcp_f32 v{V_T0+q}, v{V_T0+q}", [V_T0+q], [V_T0+q]))
    return w
def finish(q):
    w = []
    for e in range(2):
        o_ = V_OWN[q] + e * 4
        for jd in range(1, 4):
            p_ = part(q, (jd - 1) * 2 + e)
            for r in (0, 2):
                w.append(V(f"v_pk_add_f32 v[{o_+r}:{o_+r+1}], v[{o_+r}:{o_+r+1}], v[{p_+r}:{p_+r+1}]", [o_+r, o_+r+1, p_+r, p_+r+1], [o_+r, o_+r+1]))
    o_ = V_OWN[q]
    ri = V_T0 + (q & ~1); sel = "op_sel:[0,1] op_sel_hi:[1,1]" if q & 1 else "op_sel:[0,0] op_sel_hi:[1,0]"
    for r in range(0, 8, 2):
        w.append(V(f"v_pk_mul_f32 v[{o_+r}:{o_+r+1}], v[{o_+r}:{o_+r+1}], v[{ri}:{ri+1}] {sel}", [o_+r, o_+r+1, V_T0+q], [o_+r, o_+r+1]))
    for r in range(4):
        w.append(V(f"v_cvt_pk_bf16_f32 v{o_+r}, v{o_+2*r}, v{o_+2*r+1}", [o_+2*r, o_+2*r+1], [o_+r]))
    w.append(S(f"s_mov_b32 s{S_SV}, {q*128*KB}", [], [S_SV]))
    w.append(vstore(('v', o_), 4, V_OST, S_O, S_SV, 0, flags=opt.o_flags, tag='ostA' if q < 2 else 'ostB'))
    return w
def wor():
    return [dsrd('ds_read_b64_tr_b16', ('a', WOF + (ks * 2 + e) * 4 + h * 2), 2, V_WT + 4 + e, ks * 8 * KB + h * 4096) for ks in range(4) for e in range(2) for h in range(2)]
def combine(sg, Q):
    assert not Q.q
    mf = pv(39); gaps = [[] for _ in mf]
    wr = comb_writes(3)[4:]; ls = lsum((0, 1))
    for k, x in enumerate(wr): gaps[3 * k].append(x)
    k = 0
    for gi in range(9):
        n_ = 2 - len(gaps[gi])
        while ls and (n_ > 0 or ls[0].k == 'salu') and gi < 9:
            x = ls.pop(0); gaps[gi].append(x)
            n_ -= 0 if x.k == 'salu' else 2 if x.k == 'trans' else 1
    sg.addall(interleave(mf, gaps))
    stamp(sg, 4)
    if int(opt.c3):
        sg.addall(ls + finish(0))
        b = barrier(lg0=False); b.needlg = (('cw', 2), ('cw', 3)); sg.add(b)
        w4 = comb_writes(4)
        rd = lreads((2, 3)) + preads(2) + preads(3)
        for k in range(len(rd)):
            sg.add(rd[k])
            if k % 3 == 1 and w4: sg.add(w4.pop(0))
        w = finish(1) + lsum((2, 3)) + finish(2)
        for k, x in enumerate(w4): w.insert(4 + 8 * k, x)
        sg.addall(w)
        sg.add(barrier())
        stamp(sg, 5)
        Q.push(wo_dma(0))
        rd = lreads((4,)) + preads(4)
        weave(sg, Q, rd, int(opt.cw), 5)
        sg.addall(rd + finish(3) + lsum((4,)) + finish(4))
        stamp(sg, 6)
        return
    w4 = comb_writes(4)
    w = ls + finish(0) + finish(1)
    for k, x in enumerate(w4): w.insert(min(len(w), 6 + k * 6), x)
    sg.addall(w)
    sg.add(barrier())
    stamp(sg, 5)
    Q.push(wo_dma(0))
    rd = lreads((2, 3, 4)) + preads(2) + preads(3)
    weave(sg, Q, rd, int(opt.cw), 2)
    sg.addall(rd)
    w = lsum((2, 3, 4)) + preads(4) + finish(2) + finish(3) + finish(4)
    if not int(opt.worlate):
        for k, x in enumerate(wor()): w.insert(30 + 3 * k, x)
    sg.addall(w)
    stamp(sg, 6)

def phase_c(sg, Q):
    a = sg.add
    ACC = 164
    a(barrier())
    stamp(sg, 5, 'D')
    def sflag(tag, off):
        w_ = I("s_nop 0", 'salu'); w_.needvm = (tag,); a(w_)
        for p in range(3):
            sg.text(f"s_lshr_b32 s{S_T0+p}, s{S_H+p}, 8"); sg.text(f"s_add_u32 s{S_T0+p}, s{S_T0+p}, s{S_G1}")
            if off: sg.text(f"s_add_u32 s{S_T0+p}, s{S_T0+p}, {off}")
            sg.text(f"s_atomic_swap_x2 s[{S_NON}:{S_NON+1}], s[{S_C}:{S_C+1}], s{S_T0+p}")
    raise_flag(sg, 1, 'ostA')
    for q in range(5): a(dswr('ds_write_b128', V_OW, ('v', V_OWN[q]), 4, q * KB))
    Q.push(wo_dma(1) + wo_dma(2))
    wr_ = wor()
    weave(sg, Q, wr_, int(opt.shadow), 3)
    sg.addall(wr_)
    sg.text("s_waitcnt lgkmcnt(0)"); sg.lg = []
    a(barrier())
    stamp(sg, 6, 'D')
    def check(lab, base):
        t = [f"s_lshl_b32 s{S_KVO}, 1, s{S_J}"]
        for h in range(4): t += [f"s_cmp_eq_u64 s[{base+2*h}:{base+2*h+1}], s[{S_NON}:{S_NON+1}]", f"s_cselect_b32 s{S_WC}, {1 << h}, 0", f"s_or_b32 s{S_KVO}, s{S_KVO}, s{S_WC}"]
        return t + [f"s_cmp_lg_u32 s{S_KVO}, 15"]
    PL = f"s_load_dwordx16 s[4:19], s[{S_C}:{S_C+1}], s{S_F1} glc"
    def await_(lab, base):
        t = [f"s_mov_b32 s{S_SPIN}, {opt.spin}", f"{lab}:", "s_waitcnt lgkmcnt(0)"] + check(lab, base) + [f"s_cbranch_scc0 {lab}_done", PL, f"s_sub_u32 s{S_SPIN}, s{S_SPIN}, 1",
             f"s_cmp_lg_u32 s{S_SPIN}, 0", f"s_cbranch_scc1 {lab}", "s_waitcnt lgkmcnt(0)", f"{lab}_done:"]
        for x in t: sg.text(x)
    XS = [100, 64, 204]
    def WF(k, e): return ('a', WOF + k * 8 + e * 4) if k < 4 else ('a', (k - 4) * 8 + e * 4)
    steps = [('o', k) for k in range(4)] + [('A', k) for k in range(4, 16)] + [('B', k) for k in range(4, 16)]
    QS = {'o': (0, 1, 2, 3, 4), 'A': (0, 1), 'B': (2, 3, 4)}
    def reads(n_):
        kind, k = steps[n_]; xf = XS[n_ % 3] if n_ != 3 else 12
        off = {'o': lambda q: k * 5 + q, 'A': lambda q: 40 + (k - 4) * 2 + q, 'B': lambda q: 4 + (k - 4) * 3 + q - 2}[kind]
        xr = [dsrd('ds_read_b128', ('v', xf + q * 4), 4, V_OL, off(q) * KB) for q in QS[kind]]
        if kind != 'A': return xr
        wb = (k - 4) * 8 * KB
        wr = [dsrd('ds_read_b64_tr_b16', (WF(k, e)[0], WF(k, e)[1] + h * 2), 2, V_WT + (2 if wb >= 64 * KB else 0) + e, (wb % (64 * KB)) + h * 4096) for e in range(2) for h in range(2)]
        return wr[:2] + xr[:1] + wr[2:] + xr[1:]
    def mfs(n_):
        kind, k = steps[n_]; xf = XS[n_ % 3] if n_ != 3 else 12
        o = []
        for q in QS[kind]:
            for e in range(2):
                d = ('v', ACC + (q * 2 + e) * 4)
                o.append(mfma(d, WF(k, e), ('v', xf + q * 4), 0 if n_ == 0 else d))
        o[0].r |= set(flat([R('v', xf + q * 4, 4) for q in QS[kind]]) + R(*WF(k, 0), 8))
        return o
    def pfin(q):
        b = ACC + q * 8
        return [V(f"v_cvt_pk_bf16_f32 v{b+r}, v{b+2*r}, v{b+2*r+1}", [b+2*r, b+2*r+1], [b+r]) for r in range(4)] + [vstore(('v', b), 4, V_PS, S_WT, S_TAB + q, 0, flags=' sc1', tag='pst')]
    def step(n_, nx, pos=(), extra=()):
        mf = mfs(n_); gaps = [[] for _ in mf]
        if nx is not None:
            rd = reads(nx)
            for i, r in enumerate(rd): gaps[(i * len(mf)) // len(rd) if len(rd) > len(mf) else i].append(r)
        for g_, x in extra: gaps[g_].append(x)
        place(gaps, Q, pos)
        sg.addall(interleave(mf, gaps))
    def need(tags):
        while any(it.ins.vmtag in tags for it in Q.q): weave(sg, Q, [], 1, 0)
    rd = reads(0) + reads(1) + reads(2) + reads(3)
    if int(opt.flow):
        sg.addall(rd)
        sg.text("s_waitcnt lgkmcnt(0)"); sg.lg = []
        if int(opt.flow) == 2: sg.text(PL)
        sflag('ostB', 32)
        if int(opt.flow) == 1: sg.text(PL)
        stamp(sg, 7)
        nA = int(opt.nA)
        for n_ in range(nA): step(n_, None, [1, 5, 9] if n_ % 2 == 0 else [3, 7])
        await_("L_pollA2", 4)
        a(barrier(lg0=False))
        pb = int(opt.pb)
        if pb < 0: sg.text(PL)
        Q.q = osib_dma(0, (0, 1)) + osib_dma(1, (0, 1)) + osib_dma(2, (0, 1)) + Q.q
        weave(sg, Q, [], int(opt.pre2), 0)
        for n_ in range(nA, 4): step(n_, None, [1, 4, 7], extra=[(pb % 10, raw(PL))] if pb >= 0 and n_ == pb // 10 else ())
        weave(sg, Q, [], min(len(Q.q), int(opt.pre1)), 0)
    else:
        pa = int(opt.pa)
        sg.addall(rd[:pa]); sg.text(PL); sg.addall(rd[pa:])
        sg.text("s_waitcnt lgkmcnt(0)"); sg.lg = []
        sflag('ostB', 32)
        stamp(sg, 7, 'D'); stamp(sg, 7)
        for x in check("", 4) + ["s_cbranch_scc1 L_slowA", "L_backA:"]: sg.text(x)
        a(barrier(lg0=False))
        stamp(sg, 8, 'D')
        Q.q = osib_dma(0, (0, 1)) + osib_dma(1, (0, 1)) + osib_dma(2, (0, 1)) + Q.q
        weave(sg, Q, [], int(opt.pre2), 0)
        pb = int(opt.pb)
        for n_ in range(4): step(n_, None, [1, 4, 7] if n_ % 2 == 0 else [1, 4, 8], extra=[(pb % 10, raw(PL))] if n_ == pb // 10 else ())
        weave(sg, Q, [], min(len(Q.q), int(opt.pre1)), 0)
    await_("L_pollB", 12)
    global SLOW_A
    SLOW_A = ["L_slowA:", PL, f"s_mov_b32 s{S_SPIN}, {opt.spin}", "L_pollA:", "s_waitcnt lgkmcnt(0)"] + check("", 4) + ["s_cbranch_scc0 L_backA", PL, f"s_sub_u32 s{S_SPIN}, s{S_SPIN}, 1",
              f"s_cmp_lg_u32 s{S_SPIN}, 0", "s_cbranch_scc1 L_pollA", "s_waitcnt lgkmcnt(0)", "s_branch L_backA"]
    stamp(sg, 9, 'D')
    Q.push(osib_dma(0, (2, 3, 4)) + osib_dma(1, (2, 3, 4)) + osib_dma(2, (2, 3, 4)))
    weave(sg, Q, [], int(opt.pre0), 0)
    need([('osA', 2)])
    need([('wo', 0)])
    a(barrier(needvm=[('osA', 0), ('osA', 1), ('osA', 2), ('wo', 0)]))
    stamp(sg, 8); stamp(sg, 5, 'E')
    sg.addall(reads(4)); sg.addall(reads(5))
    N = len(steps)
    for n_ in range(4, N - 2):
        nx = n_ + 2
        kind, k = steps[nx]
        tg = None
        if kind == 'A' and k in (8, 12): tg = [('wo', k // 4 - 1)]
        if kind == 'B' and k in (4, 8, 12): tg = [('osB', k // 4 - 1)]
        if tg:
            need(tg); a(barrier(needvm=tg, lg0=False))
            if (kind, k) != ('A', 8): stamp(sg, {('A', 12): 6, ('B', 4): 7, ('B', 8): 8, ('B', 12): 9}[(kind, k)], 'E')
        ex = []
        if steps[n_] in (('B', 5), ('B', 7)):
            f_ = pfin(0 if steps[n_][1] == 5 else 1)
            ex = [(3, f_[0]), (3, f_[1]), (4, f_[2]), (4, f_[3]), (5, f_[4])]
        step(n_, nx, [1] if steps[n_][0] == 'A' else [1, 4] if not ex else [1], ex)
    m14, m15 = mfs(N - 2), mfs(N - 1)
    m15[0].r -= set(R('v', XS[(N - 1) % 3] + 12, 8))
    mf = flat([[m14[k], m15[k]] for k in range(6)])
    gaps = [[] for _ in mf]
    f_ = pfin(2); gaps[6] += f_[0:2]; gaps[7] += f_[2:4]; gaps[8] += f_[4:]
    sg.addall(interleave(mf, gaps))
    stamp(sg, 9)
    sg.addall(pfin(3) + pfin(4))
    a(S(f"s_mov_b32 s{S_SO}, 4096", [], [S_SO]))
    a(S(f"s_mov_b32 s{S_T1}, 0xffff0000", [], [S_T1]))
    a(S(f"s_mov_b32 s{S_SPIN}, {opt.spin}", [], [S_SPIN]))
    a(S(f"s_mov_b32 s{S_T2}, 0", [], [S_T2]))
    a(S(f"s_mov_b32 s{S_SK}, 0", [], [S_SK]))
    if int(opt.f2wg):
        a(barrier(needvm=['pst'], lg0=False))
        sg.text(f"s_cmp_lg_u32 s{S_W}, 0"); sg.text("s_cbranch_scc1 L_sig2"); raise_flag(sg, 2, 'pst'); sg.text("L_sig2:")
    else: raise_flag(sg, 2, 'pst')
    stamp(sg, 5, '2')
    if int(opt.otr):
        a(V("v_lshlrev_b32 v11, 4, v0", [0], [11]))
        a(V("v_and_b32 v10, 0xe0, v0", [0], [10])); a(V("v_lshlrev_b32 v10, 4, v10", [10], [10]))
        a(V("v_and_b32 v12, 7, v0", [0], [12])); a(V("v_lshl_add_u32 v10, v12, 6, v10", [12, 10], [10]))
        a(V("v_bfe_u32 v12, v0, 3, 2", [0], [12])); a(V("v_lshl_add_u32 v10, v12, 3, v10", [12, 10], [10]))
        sg.text(f"s_cmp_eq_u32 s{S_W}, 3"); sg.text("s_cbranch_scc1 L_fin")
    PB, SM = 100, 132
    def pl(h): return vload(('v', PB + 4 * h), 4, V_PLD, S_WT, S_SO if h >= 4 else None, (h & 3) * 1024, flags=' sc1')
    t = ["L_poll2:", f"s_load_dwordx16 s[4:19], s[{S_C}:{S_C+1}], s{S_F2} glc", f"s_cmp_eq_u32 s{S_SK}, 0", "s_cbranch_scc1 L_nounp", "L_unp:", "s_waitcnt vmcnt(0)"]
    for h in range(8):
        t += [f"s_bitcmp1_b32 s{S_SK}, {h}", f"s_cbranch_scc0 L_u{h}"]
        for r in range(4): t += [f"v_lshlrev_b32 v{SM+8*h+2*r}, 16, v{PB+4*h+r}", f"v_and_b32 v{SM+8*h+2*r+1}, s{S_T1}, v{PB+4*h+r}"]
        t += [f"L_u{h}:"]
    t += [f"s_cmp_eq_u32 s{S_T2}, 0xff", "s_cbranch_scc1 L_poll2_done", "L_nounp:", f"s_mov_b32 s{S_SK}, 0", f"s_sub_u32 s{S_SPIN}, s{S_SPIN}, 1", "s_waitcnt lgkmcnt(0)",
          f"s_cmp_eq_u32 s{S_SPIN}, 0", "s_cbranch_scc1 L_poll2_done"]
    for h in range(8):
        t += [f"s_cmp_lg_u64 s[{4+2*h}:{5+2*h}], s[{S_NON}:{S_NON+1}]", f"s_cbranch_scc1 L_g{h}", f"s_bitcmp1_b32 s{S_T2}, {h}", f"s_cbranch_scc1 L_g{h}",
              f"s_bitset1_b32 s{S_T2}, {h}", f"s_bitset1_b32 s{S_SK}, {h}", pl(h).t, f"L_g{h}:"]
    t += [f"s_cmp_lg_u32 s{S_T2}, 0xff", "s_cbranch_scc1 L_poll2", "s_branch L_unp", "L_poll2_done:"]
    if not int(opt.unp):
        t = ["; hand-off 2 - fetch each producer's partial result once its flag is up (bounded wait); summed below in a fixed order", "L_poll2:", f"s_load_dwordx16 s[4:19], s[{S_C}:{S_C+1}], s{S_F2} glc", f"s_sub_u32 s{S_SPIN}, s{S_SPIN}, 1", "s_waitcnt lgkmcnt(0)", f"s_cmp_eq_u32 s{S_SPIN}, 0", "s_cbranch_scc1 L_poll2_done"]
        for h in range(8):
            t += [f"s_cmp_lg_u64 s[{4+2*h}:{5+2*h}], s[{S_NON}:{S_NON+1}]", f"s_cbranch_scc1 L_g{h}", f"s_bitcmp1_b32 s{S_T2}, {h}", f"s_cbranch_scc1 L_g{h}",
                  f"s_bitset1_b32 s{S_T2}, {h}", f"s_bitset1_b32 s{S_SK}, {h}", pl(h).t, f"L_g{h}:"]
        t += [f"s_cmp_eq_u32 s{S_T2}, 0xff", "s_cbranch_scc1 L_poll2_done", f"s_mov_b32 s{S_SK}, 0", "s_branch L_poll2", "L_poll2_done:"]
        if int(opt.peek) & 2:
            t = ["s_waitcnt lgkmcnt(0)"]
            for b_ in (4, 76): t += [f"s_mov_b64 s[{b_+2*h}:{b_+2*h+1}], 0" for h in range(8)]
            t += ["L_poll2:", f"s_sub_u32 s{S_SPIN}, s{S_SPIN}, 1", f"s_cmp_eq_u32 s{S_SPIN}, 0", "s_cbranch_scc1 L_poll2_done"]
            for n_, b_ in enumerate((4, 76)):
                for h in range(8):
                    t += [f"s_cmp_lg_u64 s[{b_+2*h}:{b_+2*h+1}], s[{S_NON}:{S_NON+1}]", f"s_cbranch_scc1 L_g{n_}{h}", f"s_bitcmp1_b32 s{S_T2}, {h}", f"s_cbranch_scc1 L_g{n_}{h}",
                          f"s_bitset1_b32 s{S_T2}, {h}", pl(h).t, f"L_g{n_}{h}:"]
                t += [f"s_cmp_eq_u32 s{S_T2}, 0xff", "s_cbranch_scc1 L_poll2_done", f"s_load_dwordx16 s[{b_}:{b_+15}], s[{S_C}:{S_C+1}], s{S_F2} glc"]
            t += ["s_branch L_poll2", "L_poll2_done:"]
        t += ["s_waitcnt vmcnt(0)"]
        for h in range(8):
            for r in range(4): t += [f"v_lshlrev_b32 v{SM+8*h+2*r}, 16, v{PB+4*h+r}", f"v_and_b32 v{SM+8*h+2*r+1}, s{S_T1}, v{PB+4*h+r}"]
    for x in t: sg.text(x)
    sg.vm = []
    stamp(sg, 6, '2')
    for h in range(1, 8):
        for r in range(0, 8, 2):
            u = SM + 8 * h + r
            a(V(f"v_pk_add_f32 v[{SM+r}:{SM+r+1}], v[{SM+r}:{SM+r+1}], v[{u}:{u+1}]", [SM+r, SM+r+1, u, u+1], [SM+r, SM+r+1]))
    for r in range(4):
        a(V(f"v_cvt_pk_bf16_f32 v{SM+r}, v{SM+2*r}, v{SM+2*r+1}", [SM+2*r, SM+2*r+1], [SM+r]))
    if int(opt.otr):
        a(dswr('ds_write_b64', 10, ('v', SM), 2, 0)); a(dswr('ds_write_b64', 10, ('v', SM + 2), 2, 32))
        r_ = dsrd('ds_read_b128', ('v', SM + 4), 4, 11, 0); r_.needlg = ('*',); a(r_)
        a(vstore(('v', SM + 4), 4, V_OUT, S_OUT, None, 0, flags=opt.out_flags))
    elif not int(opt.noout):
        a(vstore(('v', SM), 2, V_OUT, S_OUT, None, 0, flags=opt.out_flags))
        a(vstore(('v', SM + 2), 2, V_OUT, S_OUT, None, 32, flags=opt.out_flags))

def out_of_line():
    t = []
    t += ["L_spin_n:", f"s_mov_b32 s{S_SPIN}, {opt.spin}", "L_spin_n1:",
          f"buffer_load_dwordx2 v[{V_GC}:{V_GC+1}], v9, s[{S_D}:{S_D+3}], 0 offen sc1", f"s_sub_u32 s{S_SPIN}, s{S_SPIN}, 1", "s_waitcnt vmcnt(0)",
          f"v_readfirstlane_b32 s{S_NON}, v{V_GC}", f"v_readfirstlane_b32 s{S_NON+1}, v{V_GC+1}", f"s_cmp_eq_u32 s{S_SPIN}, 0", "s_cbranch_scc1 L_back_n", "s_nop 2",
          f"s_cmp_eq_u64 s[{S_NON}:{S_NON+1}], 0", "s_cbranch_scc1 L_spin_n1", "s_branch L_back_n"]
    t += ["; a row sum left the safe range - start over with the true row maxima", "L_redo:", f"s_mov_b64 s[{S_GM}:{S_GM+1}], 0", f"s_mov_b32 s{S_REDO}, 1",
          "s_waitcnt vmcnt(0) lgkmcnt(0)", "s_barrier"]
    sg = Seg()
    p1 = prologue1()
    a = sg.add
    a(V(f"v_lshl_add_u32 v{V_T0}, s{S_W}, 2, v{V_G}", [V_G], [V_T0]))
    a(V(f"v_xor_b32 v{V_T1}, v{V_N}, v{V_T0}", [V_N, V_T0], [V_T1]))
    a(V(f"v_lshlrev_b32 v{V_T1}, 4, v{V_T1}", [V_T1], [V_T1]))
    a(V(f"v_lshl_add_u32 v{V_XD}, v{V_T0}, 10, v{V_T1}", [V_T0, V_T1], [V_XD]))
    a(S(f"s_and_b32 s{S_T0}, s{S_W}, 2", [S_W], [S_T0]))
    a(S(f"s_lshl_b32 s{S_T0}, s{S_T0}, 2", [S_T0], [S_T0]))
    a(V(f"v_lshl_add_u32 v{V_T1}, v{V_G}, 1, s{S_T0}", [V_G], [V_T1]))
    a(V(f"v_xor_b32 v{V_T1}, v{V_N}, v{V_T1}", [V_N, V_T1], [V_T1]))
    a(V(f"v_lshlrev_b32 v{V_T1}, 4, v{V_T1}", [V_T1], [V_T1]))
    a(V(f"v_lshl_add_u32 v{V_WD}, v{V_T0}, 13, v{V_T1}", [V_T0, V_T1], [V_WD]))
    t += sg.out + ["s_nop 4", "s_branch L_restart"]
    sg = Seg(); a = sg.add
    sg.text("; true row maxima over all keys -> negated into the accumulator seed of S")
    sg.text("L_max:")
    sg.text(f"s_mov_b32 s{S_SPIN}, m0")
    sg.drain()
    sg.text("s_barrier")
    MX, KF, AD = 76, V_VF, 84
    for q in range(5): a(V(f"v_mov_b32 v{MX+q}, 0xff800000", [], [MX+q]))
    for s in range(4): a(V(f"v_add_u32 v{AD+s}, {96*KB}, v{V_KA+s}", [V_KA+s], [AD+s]))
    a(S(f"s_mov_b32 s{S_T2}, 0", [], [S_T2]))
    sg.text("L_max_loop:"); sg.reset_hist()
    for j in range(8):
        if j % 4 == 0:
            a(S(f"s_add_u32 s{S_T1}, s{S_T2}, {(j>>2)*4096}", [S_T2], [S_T1]))
            a(S(f"s_add_u32 m0, s{S_W8K}, {96*KB + (j>>2)*4096}", [S_W8K], [M0]))
        a(dma(V_KD + (j & 3), S_K, S_T1, 1024 * (j & 3), 'mk'))
    for t_ in range(2):
        for s in range(4):
            a(dsrd('ds_read_b128', ('v', KF + (t_ * 4 + s) * 4), 4, AD + s, t_ * 4096, needvm=['mk']))
    for q in range(5):
        for t_ in range(2):
            d = ('v', 88 + t_ * 4)
            for s in range(4): a(mfma(d, ('v', KF + (t_ * 4 + s) * 4), AQ(q, s), 0 if s == 0 else d))
        for k in range(4):
            a(V(f"v_max3_f32 v{MX+q}, v{MX+q}, v{88+2*k}, v{89+2*k}", [MX+q, 88+2*k, 89+2*k], [MX+q]))
    sg.drain()
    a(S(f"s_add_u32 s{S_T2}, s{S_T2}, 8192", [S_T2], [S_T2]))
    sg.text(f"s_cmp_lt_u32 s{S_T2}, 65536"); sg.text("s_nop 4"); sg.text("s_cbranch_scc1 L_max_loop")
    sg.text("s_barrier")
    a(S(f"s_mul_i32 s{S_T0}, s{S_W}, 1280", [S_W], [S_T0]))
    a(S(f"s_add_u32 s{S_T0}, s{S_T0}, {96*KB}", [S_T0], [S_T0]))
    a(V(f"v_lshl_add_u32 v{AD}, v{V_LANE}, 2, s{S_T0}", [V_LANE], [AD]))
    a(S(f"s_mov_b32 s{S_T0}, {96*KB}", [], [S_T0]))
    a(V(f"v_lshl_add_u32 v{AD+1}, v{V_N}, 2, s{S_T0}", [V_N], [AD+1]))
    for q in range(5): a(dswr('ds_write_b32', AD, ('v', MX + q), 1, q * 256))
    a(barrier())
    for q in range(5):
        for k in range(16):
            a(dsrd('ds_read_b32', ('v', KF + k), 1, AD + 1, (k >> 2) * 1280 + q * 256 + (k & 3) * 64))
        for k in range(8):
            a(V(f"v_max3_f32 v{MX+q}, v{MX+q}, v{KF+2*k}, v{KF+2*k+1}", [MX+q, KF+2*k, KF+2*k+1], [MX+q]))
        for r in range(4):
            a(V(f"v_sub_f32 v{V_NEGM+q*4+r}, 0, v{MX+q}", [MX+q], [V_NEGM+q*4+r]))
    sg.drain()
    sg.text("s_barrier"); sg.text(f"s_mov_b32 m0, s{S_SPIN}"); sg.text("s_nop 4"); sg.text("s_branch L_back_max")
    return t + sg.out

def stamp_out(sg, n):
    if not opt.stamps or (opt.stamps == 'Z' and n > 1): return
    if opt.stamps == 'Z':
        for x in ["s_load_dwordx2 s[76:77], s[0:1], 56", "s_waitcnt lgkmcnt(0)", f"s_add_u32 s76, s76, {16<<20}", "s_addc_u32 s77, s77, 0", "s_and_b32 s77, s77, 0xffff",
                  "s_mov_b32 s78, 0x100000", "s_mov_b32 s79, 0x20000", "s_lshl_b32 s80, s2, 2", "s_add_u32 s80, s80, s32", "s_lshl_b32 s80, s80, 6", "v_mov_b32 v74, s80",
                  "v_mov_b32 v75, s3", "buffer_store_dword v75, v74, s[76:79], 0 offen sc1"]: sg.text(x)
        return
    stamp(sg, n - 1)
    t = ["s_load_dwordx2 s[4:5], s[0:1], 56", "s_waitcnt lgkmcnt(0)", f"s_add_u32 s4, s4, {16<<20}", "s_addc_u32 s5, s5, 0", "s_and_b32 s5, s5, 0xffff",
         "s_mov_b32 s6, 0x100000", "s_mov_b32 s7, 0x20000", "s_lshl_b32 s8, s2, 2", "s_add_u32 s8, s8, s32", "s_lshl_b32 s8, s8, 6", "v_mov_b32 v2, s8"]
    for i in range(n):
        t += [f"v_mov_b32 v3, s{3 if i == 0 else 76+2*i}", f"buffer_store_dword v3, v2, s[4:7], 0 offen offset:{4*i} sc1"]
    for x in t: sg.text(x)

def kernel():
    sg = Seg()
    sg.text(NAME + "_kernel:")
    sg.text("s_cmp_ge_u32 s2, 256")
    sg.text("s_cbranch_scc1 L_end")
    if opt.stamps:
        stamp(sg, 0)
    p1 = prologue1()
    sg.addall(p1[:2])
    if int(opt.cpf):
        for x in ["; pull the kernel's code into this XCD's L2 (two lines per wave, value unused)", "s_getpc_b64 s[94:95]", "L_pc:", "s_lshr_b32 s3, s2, 3", "v_lshrrev_b32 v8, 6, v0", "v_and_b32 v9, 1, v0", "v_lshl_add_u32 v8, v8, 1, v9",
                  "v_lshl_add_u32 v8, s3, 3, v8", "v_lshlrev_b32 v8, 7, v8", "v_min_u32 v8, (L_code_end - L_pc - 4) & 0xffffff80, v8"] + (["global_load_dword v255, v8, s[94:95]"] if int(opt.cpf) == 1 else ["s_mov_b64 s[12:13], s[94:95]"]): sg.text(x)
    sg.addall(p1[2:])
    if opt.stamps:
        sg.text("s_mov_b32 s3, s76")
    p2 = prologue2()
    Q = Queue()
    first = x_dma(0) + w_dma(0) if not int(opt.wfirst) else w_dma(0) + x_dma(0)
    stamp(sg, 5, 'P')
    Q.push(first)
    weave(sg, Q, [], 9, 0)
    if int(opt.cpf) == 2: sg.text("global_load_dword v255, v8, s[12:13]")
    stamp(sg, 6, 'P')
    sg.addall(p2)
    stamp(sg, 7, 'P')
    sg.text("; workgroup 0 publishes this launch's hand-off tag (a clock value, used only to tell this launch's flags from stale ones)")
    sg.text("s_cmp_lg_u32 s2, 0"); sg.text("s_cbranch_scc1 L_nocz")
    lane0(sg, ["v_mov_b32 v9, 0", f"s_memrealtime s[{S_NON}:{S_NON+1}]", "s_waitcnt lgkmcnt(0)", f"s_or_b32 s{S_NON}, s{S_NON}, 1", f"v_mov_b32 v250, s{S_NON}", f"v_mov_b32 v251, s{S_NON+1}",
               f"buffer_store_dwordx2 v[250:251], v9, s[{S_D}:{S_D+3}], 0 offen sc1"], "L_nocz")
    sg.text("s_branch L_first")
    sg.text("L_restart:")
    s2 = Seg(); s2.addall(restart_setup()); Q2 = Queue(); Q2.push(x_dma(0) + w_dma(0) if not int(opt.wfirst) else w_dma(0) + x_dma(0)); weave(s2, Q2, [], 9, 0)
    for x in s2.out: sg.text(x)
    sg.text("L_first:")
    early, late = prologue3()
    tc = wod_calc() + tail_calc()
    early = early + late + handoff_calc() + tc[:-5]
    def BB(u): return f"B{u + 1}"
    Q.push(w_dma(1) + x_dma(1) + w_dma(2) + w_dma(3) + x_dma(2) + w_dma(4) + ((w_dma(5, 'B2') + x_dma(3)) if int(opt.la) else (x_dma(3) + w_dma(5, 'B2'))) + w_dma(6, 'B3') + w_dma(7, 'B4')
           + kv_dma('k', 0, 'B5') + kv_dma('v', 0, 'B6') + kv_dma('k', 1, 'B8') + kv_dma('v', 1, 'BQ'))
    for i in range(2, 8):
        if not int(opt.nodma): Q.push(kv_dma('k', i) + kv_dma('v', i))
    n0 = int(opt.n0) - 9
    if opt.psched:
        for part_ in opt.psched.split(','):
            ni, nf = [int(x) for x in part_.split(':')]
            weave(sg, Q, [], ni, 0); n0 -= ni
            for _ in range(min(nf, len(early))): sg.add(early.pop(0))
        weave(sg, Q, [], max(0, n0), 0)
    else:
        weave(sg, Q, early, n0, (len(early) + n0 - 1) // n0)
    sg.addall(early)
    qr = phase_a(sg, Q)
    sg.addall(qr[:0])
    stamp(sg, 3)
    sg.text(f"s_cmp_eq_u32 s{S_REDO}, 0"); sg.text("s_cbranch_scc1 L_back_max")
    s2 = Seg(); s2.addall(qr)
    for x in s2.out: sg.text(x)
    sg.text("s_branch L_max")
    sg.text("L_back_max:")
    phase_b(sg, Q, qr)
    combine(sg, Q)
    phase_c(sg, Q)
    sg.text("L_fin:")
    stamp_out(sg, 11)
    sg.text("L_end:")
    sg.text("s_endpgm")
    return sg.out + ['L_code_end:'] + (SLOW_A if not int(opt.flow) else []) + out_of_line()

def report_kernel():
    idx, mode = opt.report.split(',')
    if mode == 'next':
        return ["report_kernel:", "s_cmp_ge_u32 s2, 1", "s_cbranch_scc1 L3_end", "s_memrealtime s[12:13]", "s_load_dwordx2 s[4:5], s[0:1], 56", "s_waitcnt lgkmcnt(0)",
                f"s_add_u32 s4, s4, {17<<20}", "s_addc_u32 s5, s5, 0", "s_and_b32 s5, s5, 0xffff", "s_mov_b32 s6, 64", "s_mov_b32 s7, 0x20000", "v_mov_b32 v1, 0", "v_mov_b32 v2, s12",
                "buffer_store_dword v2, v1, s[4:7], 0 offen", "L3_end:", "s_endpgm"]
    t = ["report_kernel:", "s_cmp_ge_u32 s2, 1", "s_cbranch_scc1 L3_end", "s_memrealtime s[16:17]", "s_load_dwordx2 s[4:5], s[0:1], 56", "s_waitcnt lgkmcnt(0)",
         f"s_add_u32 s4, s4, {16<<20}", "s_addc_u32 s5, s5, 0", "s_and_b32 s5, s5, 0xffff", "s_mov_b32 s6, 0x100000", "s_mov_b32 s7, 0x20000",
         "v_lshlrev_b32 v1, 8, v0", f"buffer_load_dword v2, v1, s[4:7], 0 offen offset:{4*int(idx)}", "buffer_load_dword v3, v1, s[4:7], 0 offen",
         "v_mov_b32 v4, 0", "v_mov_b32 v5, 0", "v_mov_b32 v6, -1", "ds_write_b32 v4, v5", "ds_write_b32 v4, v6 offset:8", "s_waitcnt vmcnt(0) lgkmcnt(0)", "s_barrier",
         "ds_min_u32 v4, v3 offset:8", "s_waitcnt lgkmcnt(0)", "s_barrier", "ds_read_b32 v6, v4 offset:8", "s_waitcnt lgkmcnt(0)", "v_sub_u32 v2, v2, v6",
         "v_lshrrev_b32 v7, 3, v0", "v_mul_u32_u24 v7, 52, v7", "v_lshrrev_b32 v7, 8, v7", "v_and_b32 v8, 1, v0", "v_sub_u32 v8, 6, v8", "v_cmp_lt_u32 vcc, v7, v8",
         "v_min_u32 v2, 10000, v2",
         ("ds_add_u32 v4, v2" if mode == 'mean' else "ds_max_u32 v4, v2"), "s_waitcnt lgkmcnt(0)", "s_barrier", "ds_read_b32 v6, v4", "s_memrealtime s[12:13]", "s_waitcnt lgkmcnt(0)",
         "v_readfirstlane_b32 s10, v6", "s_nop 4"]
    if mode == 'mean': t += ["s_mul_i32 s10, s10, 10", "s_lshr_b32 s10, s10, 8"]
    elif mode == 'max': t += ["s_mul_i32 s10, s10, 10"]
    elif mode == 'gap': t += ["ds_read_b32 v6, v4 offset:8", "s_waitcnt lgkmcnt(0)", "v_readfirstlane_b32 s11, v6", "s_nop 4", "s_sub_u32 s16, s16, s11", "s_sub_u32 s10, s16, s10",
                              "s_min_u32 s10, s10, 2000", "s_mul_i32 s10, s10, 20"]
    else: t += ["s_mov_b32 s10, 0"]
    t += ["L3_spin:", "s_memrealtime s[14:15]", "s_waitcnt lgkmcnt(0)", "s_sub_u32 s14, s14, s12",
          "s_cmp_lt_u32 s14, s10", "s_cbranch_scc1 L3_spin", "L3_end:", "s_endpgm"]
    return t

HEADER = """; Kernarg layout (64 bytes, pointers only, base s[0:1]):
;
; One launch, one workgroup (4 waves) per (batch b, query head hq); hkv = id & 7, j = (id >> 3) & 3, b = id >> 5, hq = 4*hkv + j.
;     Softmax shift m: the first pass uses m = 0, which is exact as long as nothing leaves the fp32 range.  Every row sum is
;     maxima over all 1024 keys (L_max) and repeats phase B with m = row maximum.
;  C  hand-off 1: O (bf16) goes to the three other heads of the kv group; workgroup (b, hkv, j) multiplies the four heads
;     with wo[hkv*512.., j*128..] -> partial result for 128 output columns.
;     hand-off 2: the eight partial results (one per hkv) are summed in fp32, each workgroup finishing one eighth.
;  and read with sc1.  The tag is a clock value that workgroup 0 publishes in d_debug (zero at launch), so flags left in d_ws
"""
def build():
    def fmt(l): return "\n".join(x if x.endswith(':') else "    " + x for x in l)
    nm = NAME + "_kernel"
    s = HEADER + "; @launch grid=(256,1,1) block=(256,1,1) lds=163840\n"
    if opt.report:
        s = f"; @launch kernel={nm} grid=(256,1,1) block=(256,1,1) lds=163840\n; @launch kernel=report_kernel grid=(1,1,1) block=(256,1,1) lds=64\n"
    s += '.amdgcn_target "amdgcn-amd-amdhsa--gfx950"\n.text\n'
    s += f".globl {nm}\n.p2align 8\n.type {nm},@function\n" + fmt(kernel()) + "\n"
    if opt.report: s += ".globl report_kernel\n.p2align 8\n.type report_kernel,@function\n" + fmt(report_kernel()) + "\n"
    s += f""".section .rodata,"a"
.p2align 6
.amdhsa_kernel {nm}
  .amdhsa_next_free_vgpr 512
  .amdhsa_next_free_sgpr 102
  .amdhsa_accum_offset 256
  .amdhsa_group_segment_fixed_size 0
  .amdhsa_kernarg_size 64
  .amdhsa_user_sgpr_count 2
  .amdhsa_user_sgpr_kernarg_segment_ptr 1
  .amdhsa_system_sgpr_workgroup_id_x 1
  .amdhsa_float_denorm_mode_32 3
.end_amdhsa_kernel
"""
    if opt.report:
        s += """.p2align 6
.amdhsa_kernel report_kernel
  .amdhsa_next_free_vgpr 32
  .amdhsa_next_free_sgpr 32
  .amdhsa_accum_offset 32
  .amdhsa_group_segment_fixed_size 0
  .amdhsa_kernarg_size 64
  .amdhsa_user_sgpr_count 2
  .amdhsa_user_sgpr_kernarg_segment_ptr 1
  .amdhsa_system_sgpr_workgroup_id_x 1
.end_amdhsa_kernel
"""
    return s

if __name__ == '__main__':
    out = sys.argv[1] if len(sys.argv) > 1 else 'cdna_kernels/' + NAME + '.s'
    for a_ in sys.argv[2:]:
        k, v = a_.split('=', 1)
        setattr(opt, k, (' ' + v) if k.endswith('flags') and v else v)
    HOIST[0] = int(opt.hoist)
    txt = build()
    open(out, 'w').write(txt)
```
